```python
import torch

def _softmax(x, axis=-1):
    return torch.softmax(x, dim=axis)
def _gelu(x):
    return torch.nn.functional.gelu(x, approximate="tanh")
def _silu(x):
    return torch.nn.functional.silu(x)
def _sigmoid(x):
    return torch.sigmoid(x)
def _layernorm(x, axis=-1, eps=1e-5):
    m = x.mean(dim=axis, keepdim=True)
    v = x.var(dim=axis, keepdim=True, unbiased=False)
    return (x - m) / torch.sqrt(v + eps)
def _scatter_add(tgt, idx, src, axis=0):
    return tgt.clone().index_add_(axis, idx, src)
def _segment_sum(src, seg, n):
    out = torch.zeros((n,) + src.shape[1:], dtype=src.dtype)
    return out.index_add_(0, seg, src)
def _pad(x, pw):
    flat = tuple(v for pair in reversed(pw) for v in pair)
    return torch.nn.functional.pad(x, flat)

kernel_name = 'sequential_preLN__ssm_conv_h3__geglu_ffn__prompt'

def setup_inputs():

    _w = (lambda a: (lambda t: t.to(torch.bfloat16) if t.is_floating_point() else t)(torch.as_tensor(a)))
    def _A_setup():
        B, S, D = 1, 2048, 640
        ks = 4
        return {
            "q": _w((lambda *s: torch.randn(*s, dtype=torch.bfloat16) * 0.05)(B, S, D)),
            "k": _w((lambda *s: torch.randn(*s, dtype=torch.bfloat16) * 0.4)(B, S, D)),
            "v": _w((lambda *s: torch.randn(*s, dtype=torch.bfloat16) * 0.4)(B, S, D)),
            "shift_k": _w((lambda *s: torch.randn(*s, dtype=torch.bfloat16) * 0.4)(D, ks) * 0.5),
            "ssm_k": _w((lambda *s: torch.randn(*s, dtype=torch.bfloat16) * 0.4)(D, S) * (1.0 / S ** 0.5)),
            "ssm_D": _w((lambda *s: torch.randn(*s, dtype=torch.bfloat16) * 0.4)(D)),
        }
    _A_in = _A_setup()

    def _B_setup():
        B, S, D, F = 1, 2048, 640, 1536
        return {
            "x": _w((lambda *s: torch.randn(*s, dtype=torch.bfloat16) * 0.05)(B, S, D)),
            "w_gate": _w((lambda *s: torch.randn(*s, dtype=torch.bfloat16) * 0.05)(D, F)),
            "w_up": _w((lambda *s: torch.randn(*s, dtype=torch.bfloat16) * 0.05)(D, F)),
            "w_down": _w((lambda *s: torch.randn(*s, dtype=torch.bfloat16) * 0.05)(F, D)),
        }
    _B_in = _B_setup()

    return {
        "A_q": _A_in["q"],
        "A_k": _A_in["k"],
        "A_v": _A_in["v"],
        "A_shift_k": _A_in["shift_k"],
        "A_ssm_k": _A_in["ssm_k"],
        "A_ssm_D": _A_in["ssm_D"],
        "B_x": _B_in["x"],
        "B_w_gate": _B_in["w_gate"],
        "B_w_up": _B_in["w_up"],
        "B_w_down": _B_in["w_down"],
    }

def reference(A_q, A_k, A_v, A_shift_k, A_ssm_k, A_ssm_D, B_x, B_w_gate, B_w_up, B_w_down):
    def _A_ref(q, k, v, shift_k, ssm_k, ssm_D):
        B, S, D = q.shape
        ks = shift_k.shape[-1]
        k_pad = _pad(k, ((0, 0), (ks - 1, 0), (0, 0)))
        k_shift = torch.zeros_like(k)
        for t in range(ks):
            k_shift = k_shift + k_pad[:, t:t + S, :] * shift_k[:, ks - 1 - t][None, None, :]
        kv = k_shift * v
        L = 2 * S
        kv_pad = _pad(kv, ((0, 0), (0, S), (0, 0)))
        kf_pad = _pad(ssm_k, ((0, 0), (0, S)))
        kv_f = (lambda x, axes=(-2,-1): torch.fft.rfft2(x.float(), dim=axes))(kv_pad[:, None, :, :], axes=(1, 2))
        kf_f = (lambda x, axes=(-2,-1): torch.fft.rfft2(x.float(), dim=axes))(kf_pad[:, None, :], axes=(1, 2))
        kf_f = (lambda x, *d: x.permute(*d))(kf_f, 1, 2, 0)
        y_f = kv_f * kf_f[None, :, :, :]
        y = (lambda x, s, axes=(-2,-1): torch.fft.irfft2(x, s=s, dim=axes).to(torch.bfloat16))(y_f, (1, L), axes=(1, 2))[:, 0, :S, :]
        y = y + kv * ssm_D[None, None, :]
        return q * y

    def _B_ref(x, w_gate, w_up, w_down):
        return (_gelu(x @ w_gate) * (x @ w_up)) @ w_down

    x = A_q
    h = x + _A_ref(_layernorm(x, axis=-1), A_k, A_v, A_shift_k, A_ssm_k, A_ssm_D)
    h2 = h + _B_ref(_layernorm(h, axis=-1), B_w_gate, B_w_up, B_w_down)
    return h2
```

```python
import re

REG_RE = re.compile(r'^(-|\|)?([vas])(\d+|\[(\d+):(\d+)\])\|?$')


def regs_of(tok):
    tok = tok.strip()
    if tok.startswith('abs(') or tok.startswith('-abs('):
        tok = tok[tok.index('(') + 1:-1]
    if tok == 'vcc':
        return [('s', 106), ('s', 107)]
    if tok == 'exec':
        return [('s', 126), ('s', 127)]
    if tok == 'm0':
        return [('s', 124)]
    m = REG_RE.match(tok)
    if not m:
        return []
    f = m.group(2)
    if m.group(4) is not None:
        return [(f, i) for i in range(int(m.group(4)), int(m.group(5)) + 1)]
    return [(f, int(m.group(3)))]


TRANS = ('v_exp_f32', 'v_log_f32', 'v_rcp_f32', 'v_rsq_f32', 'v_sqrt_f32', 'v_sin_f32', 'v_cos_f32')


class Ins:
    def __init__(self, text, untracked=False):
        self.text = text
        self.untracked = untracked
        t = text.split(';')[0].strip()
        self.is_label = t.endswith(':')
        self.is_dir = t.startswith('.') and not self.is_label
        self.op = ''
        self.defs = []
        self.uses = []
        self.kind = 'other'
        self.mods = ''
        if self.is_label or self.is_dir or not t:
            self.kind = 'none'
            return
        parts = t.split(None, 1)
        op = self.op = parts[0]
        rest = parts[1] if len(parts) > 1 else ''
        ops = []
        cur = ''
        depth = 0
        for ch in rest:
            if ch == '[':
                depth += 1
            if ch == ']':
                depth -= 1
            if ch == ',' and depth == 0:
                ops.append(cur.strip())
                cur = ''
            else:
                cur += ch
        if cur.strip():
            ops.append(cur.strip())
        if ops:
            last = ops[-1].split(None, 1)
            ops[-1] = last[0]
            self.mods = last[1] if len(last) > 1 else ''
        self.ops = ops
        R = [regs_of(o) for o in ops]
        allr = [r for x in R for r in x]
        rest1 = [r for x in R[1:] for r in x]
        self.srcA = self.srcB = self.srcC = []
        self.data = []
        if op.startswith('buffer_load') or op.startswith('global_load'):
            self.kind = 'vmem'
            if re.search(r'\blds\b', self.mods) or '_lds_' in op:
                self.uses = allr + [('s', 124)]
            else:
                self.defs = R[0]
                self.uses = rest1
        elif op.startswith('buffer_store') or op.startswith('global_store'):
            self.kind = 'vmem'
            self.uses = allr
            self.data = R[0] if op.startswith('buffer') else R[1]
        elif op.startswith('buffer_atomic'):
            self.kind = 'vmem'
            self.uses = allr
            if re.search(r'\bsc0\b', self.mods):
                self.defs = R[0]
        elif op.startswith('buffer_inv') or op.startswith('buffer_wbl2'):
            self.kind = 'vmem'
        elif op.startswith('ds_read') or op.startswith('ds_bpermute') or op.startswith('ds_swizzle'):
            self.kind = 'ds'
            self.defs = R[0]
            self.uses = rest1
        elif op.startswith('ds_'):
            self.kind = 'ds'
            self.uses = allr
        elif op.startswith('v_mfma'):
            self.kind = 'mfma'
            self.defs = R[0]
            self.uses = rest1
            self.srcA, self.srcB, self.srcC = R[1], R[2], R[3]
            self.passes = 8 if '32x32' in op else 4
        elif op.startswith('v_'):
            self.kind = 'valu'
            base = re.sub(r'_(e32|e64|dpp|sdwa)$', '', op)
            self.base = base
            self.defs = R[0]
            self.uses = rest1
            if base.startswith('v_fmac') or base.startswith('v_dot2c') or base.startswith('v_pk_fmac') \
                    or op.endswith('_dpp') or op.endswith('_sdwa') or base == 'v_writelane_b32':
                self.uses = allr
            if 'swap' in base:
                self.defs = allr
                self.uses = allr
            if base.startswith('v_cmpx'):
                self.defs = R[0] + [('s', 126), ('s', 127)]
        elif op.startswith('s_load') or op.startswith('s_buffer_load') or op in ('s_memtime', 's_memrealtime'):
            self.kind = 'smem'
            self.defs = R[0]
            self.uses = rest1
        elif op.startswith('s_'):
            self.kind = 'salu'
            nodef = ('s_cmp', 's_waitcnt', 's_barrier', 's_branch', 's_cbranch', 's_nop', 's_setprio', 's_sleep',
                     's_endpgm', 's_bitcmp', 's_setpc')
            if any(op.startswith(x) for x in nodef):
                self.uses = allr
            else:
                self.defs = R[0]
                self.uses = rest1
                if 'saveexec' in op:
                    self.defs = R[0] + [('s', 126), ('s', 127)]
                if op.startswith('s_addk') or op.startswith('s_mulk') or op.startswith('s_cmov'):
                    self.uses = allr


def states_of(ins):
    if ins.kind == 'none':
        return 0
    if ins.op == 's_nop':
        return int(ins.ops[0]) + 1
    return 1


def overlap(a, b):
    if not a or not b:
        return False
    return not set(a).isdisjoint(b)


def need_states(p, c):
    n = 0
    pk, ck = p.kind, c.kind
    vdefs = [r for r in p.defs if r[0] != 's']
    sdefs = [r for r in p.defs if r[0] == 's']
    if pk == 'valu':
        isdot = p.base.startswith('v_dot')
        if ck == 'mfma' and overlap(vdefs, c.uses):
            n = max(n, 3 if isdot else 2)
        if ck == 'valu':
            if 'permlane' in c.base and overlap(vdefs, c.uses):
                n = max(n, 2)
            if c.op.endswith('_dpp') and overlap(vdefs, c.uses):
                n = max(n, 2)
            if c.base in ('v_readlane_b32', 'v_readfirstlane_b32') and overlap(vdefs, c.uses):
                n = max(n, 1)
            if p.base in TRANS and overlap(vdefs, c.uses):
                n = max(n, 1)
            if sdefs and overlap(sdefs, c.uses):
                n = max(n, 4 if c.base in ('v_readlane_b32', 'v_writelane_b32') else 2)
            if sdefs and ('s', 106) in sdefs and c.base == 'v_cndmask_b32':
                n = max(n, 2)
            if 'op_sel' in p.mods and overlap(vdefs, c.uses + c.defs):
                n = max(n, 1)
            if ('s', 126) in sdefs:
                n = max(n, 5)
        if isdot and overlap(vdefs, c.uses + c.defs):
            same = ck == 'valu' and c.base == p.base
            if same:
                srcab = [r for o in c.ops[1:3] for r in regs_of(o)]
                if overlap(vdefs, srcab):
                    n = max(n, 3)
            else:
                n = max(n, 3)
        if ck == 'vmem' and sdefs and overlap(sdefs, c.uses):
            n = max(n, 5)
        if ck in ('salu', 'smem') and sdefs and overlap(sdefs, c.uses):
            n = max(n, 2)
        if ck == 'mfma' and ('s', 126) in sdefs:
            n = max(n, 4)
    if pk == 'mfma':
        ps = p.passes
        if ck == 'mfma':
            if overlap(p.defs, c.srcA + c.srcB):
                n = max(n, ps + 4)
            if overlap(p.defs, c.srcC):
                if not (p.defs == c.srcC and p.passes == c.passes):
                    n = max(n, ps + 2)
            elif overlap(p.defs, c.defs):
                n = max(n, ps + 4)
        elif ck in ('valu', 'vmem', 'ds'):
            if overlap(p.defs, c.uses + c.defs):
                n = max(n, ps + 4)
            if overlap(p.srcC, c.defs):
                n = max(n, ps - 1)
    if pk == 'vmem' and len(p.data) >= 3:
        if overlap(p.data, c.defs):
            n = max(n, 2)
    if pk == 'salu' and ('s', 124) in p.defs and ck in ('vmem', 'ds') and ('s', 124) in c.uses:
        n = max(n, 1)
    return n


class Asm:
    def __init__(self):
        self.items = []
        self._untracked = 0
        self.nlabel = 0

    def __call__(self, text):
        for line in text.split('\n'):
            line = line.strip()
            if line:
                self.items.append(Ins(line, self._untracked > 0))

    def label(self, stem='L'):
        self.nlabel += 1
        return f'.L{stem}_{self.nlabel}'

    def mark(self, what, name=None):
        i = Ins('')
        i.kind = 'mark'
        i.what = what
        i.name = name
        self.items.append(i)

    def need(self, *toks):
        i = Ins('')
        i.kind = 'need'
        i.uses = [r for t in toks for r in regs_of(t)]
        self.items.append(i)

    def drain_stores(self):
        i = Ins('')
        i.kind = 'need'
        i.uses = [('store', 0)]
        self.items.append(i)

    def snapshot(self, name):
        self.mark('snap', name)

    def fresh(self, name=None):
        self.mark('fresh', name)

    class _U:
        def __init__(self, a):
            self.a = a

        def __enter__(self):
            self.a._untracked += 1

        def __exit__(self, *x):
            self.a._untracked -= 1

    def untracked(self):
        return Asm._U(self)

    def finish(self, verbose=False):
        out = []
        vm = []
        lg = []
        sm = set()
        snaps = {}
        hist = []
        stats = {'nop': 0, 'wait': 0}

        def emit(i):
            out.append(i)
            if i.kind not in ('none', 'mark'):
                hist.append(i)
                if len(hist) > 24:
                    hist.pop(0)

        for ins in self.items:
            if ins.kind == 'mark':
                if ins.what == 'snap':
                    snaps[ins.name] = (list(vm), list(lg), set(sm))
                elif ins.what == 'fresh':
                    if ins.name:
                        a, b, c = snaps[ins.name]
                        vm, lg, sm = list(a), list(b), set(c)
                    else:
                        vm, lg, sm = [], [], set()
                continue
            if ins.kind == 'none':
                emit(ins)
                continue
            touched = set(ins.uses) | set(ins.defs)
            if ins.op == 's_waitcnt':
                if not ins.untracked:
                    m = re.search(r'vmcnt\((\d+)\)', ins.text)
                    if m:
                        n = int(m.group(1))
                        if len(vm) > n:
                            vm = vm[len(vm) - n:] if n else []
                    m = re.search(r'lgkmcnt\((\d+)\)', ins.text)
                    if m:
                        n = int(m.group(1))
                        if n == 0:
                            sm = set()
                            lg = []
                        elif len(lg) > n:
                            lg = lg[len(lg) - n:]
                emit(ins)
                continue
            wv = wl = None
            for idx in range(len(vm) - 1, -1, -1):
                if vm[idx] & touched:
                    wv = len(vm) - 1 - idx
                    break
            for idx in range(len(lg) - 1, -1, -1):
                if lg[idx] & touched:
                    wl = len(lg) - 1 - idx
                    break
            if sm & touched:
                wl = 0
            if ins.untracked and (wv is not None or wl is not None):
                raise RuntimeError('untracked instruction touches pending register: ' + ins.text)
            if wv is not None or wl is not None:
                s = 's_waitcnt'
                if wv is not None:
                    wv = min(wv, 63)
                    s += f' vmcnt({wv})'
                    vm = vm[len(vm) - wv:] if wv else []
                if wl is not None:
                    wl = min(wl, 15)
                    s += f' lgkmcnt({wl})'
                    lg = lg[len(lg) - wl:] if wl else []
                    if wl == 0:
                        sm = set()
                emit(Ins(s))
                stats['wait'] += 1
            if ins.kind == 'need':
                continue
            need = 0
            dist = 0
            for p in reversed(hist):
                n = need_states(p, ins)
                if n > dist:
                    need = max(need, n - dist)
                dist += states_of(p)
                if dist >= 20:
                    break
            while need > 0:
                k = min(need, 16)
                emit(Ins(f's_nop {k - 1}'))
                stats['nop'] += 1
                need -= k
            emit(ins)
            if not ins.untracked:
                if ins.kind == 'vmem':
                    d = set(ins.defs)
                    if 'store' in ins.op:
                        d.add(('store', 0))
                    vm.append(d)
                elif ins.kind == 'ds':
                    lg.append(set(ins.defs))
                elif ins.kind == 'smem':
                    sm |= set(ins.defs)
        if verbose:
            print('auto waits', stats['wait'], 'auto nops', stats['nop'], 'instructions',
                  sum(1 for i in out if i.kind not in ('none', 'mark')))
        lines = []
        for i in out:
            if i.kind == 'mark':
                continue
            lines.append(i.text if i.is_label else '    ' + i.text)
        return '\n'.join(lines) + '\n'


def vr(base, n=1, f='v'):
    return f'{f}{base}' if n == 1 else f'{f}[{base}:{base + n - 1}]'


def ar(base, n=1):
    return vr(base, n, 'a')


def sr(base, n=1):
    return vr(base, n, 's')
```

```python
import struct
import sys
from asmlib import Asm, vr, ar, sr

NAME = 'sequential_preLN__ssm_conv_h3__geglu_ffn__prompt'

QS = 16384
CNT = 0
ST1 = 16384
CSF = 32768
STAMP = 65536
KVX = 131072
XP4 = KVX + 160 * QS
HP4 = XP4 + 160 * QS
WDF = HP4 + 160 * QS
ACT = WDF + 1966080
WS_END = ACT + 6291456
C_F1, C_FX, C_B1, C_B2, C_F3 = 0, 10, 16, 24, 32
SPIN = 200000

S_W = 3
S_K, S_V, S_SH, S_SK, S_X, S_WG, S_WU, S_WD, S_OUT, S_DBG, S_WS = 4, 8, 12, 16, 20, 24, 28, 32, 36, 40, 44
S_D = 48
sX, sJ, sG, sM, sQ, sRB, sCB, sA, sB = 50, 51, 52, 53, 54, 55, 56, 57, 58
sT0, sT1, sT2, sT3, sT4, sT5, sT6, sT7 = 60, 61, 62, 63, 64, 65, 66, 67
sWoff, sWoff2, sSpin, sDv = 68, 69, 70, 71
sOne = 72
S_STAMP = 76
NSTAMP = 13

GSTR = 4160
GW = 8 * GSTR
UBASE = 4 * GW
USTR = 4608
TILE = 40960


def f32(x):
    return '0x%08x' % struct.unpack('<I', struct.pack('<f', x))[0]


class Gen:
    def __init__(self, diag=False, opt=None):
        self.a = Asm()
        self.diag = diag
        self.opt = dict(w_kv=12, w45_where='hdrain', wd_tail=12, counted=1)
        if opt:
            self.opt.update(opt)

    def stamp(self, i):
        if self.diag:
            assert i < NSTAMP
            self.a(f's_memrealtime {sr(S_STAMP + 2 * i, 2)}')

    def spin(self, srd, soff, target, vt, first_loaded=False):
        a = self.a
        top, done = a.label('spin'), a.label('done')
        chk = a.label('chk')
        with a.untracked():
            a(f's_mov_b32 s{sSpin}, {SPIN}')
            if first_loaded:
                a(f's_branch {chk}')
            a(f'{top}:')
            a(f'buffer_load_dword v{vt}, off, {sr(srd, 4)}, {soff} sc1')
            a('s_waitcnt vmcnt(0)')
            a(f'{chk}:')
            a(f'v_readfirstlane_b32 s{sT7}, v{vt}')
            a(f's_sub_u32 s{sSpin}, s{sSpin}, 1')
            a(f's_cbranch_scc1 {done}')
            a(f's_cmp_lt_u32 s{sT7}, {target}')
            a(f's_cbranch_scc1 {top}')
            a(f'{done}:')

    def wave0(self):
        g = self

        class W:
            def __enter__(s):
                s.l = g.a.label('nw0')
                g.a(f's_cmp_lg_u32 s{S_W}, 0')
                g.a(f's_cbranch_scc1 {s.l}')
                s.u = g.a.untracked()
                s.u.__enter__()
                g.a('s_mov_b64 exec, 1')

            def __exit__(s, *x):
                g.a('s_mov_b64 exec, -1')
                s.u.__exit__()
                g.a(f'{s.l}:')
        return W()

    def drain(self):
        if self.opt['counted']:
            self.a.drain_stores()
        else:
            self.a('s_waitcnt vmcnt(0)')

    def prologue(self):
        a = self.a
        a('s_cmp_ge_u32 s2, 0x100')
        a('s_cbranch_scc1 .Lend')
        self.stamp(0)
        for srd, off in ((S_K, 8), (S_V, 16), (S_SH, 24), (S_SK, 32), (S_X, 0), (S_WG, 56), (S_WU, 64), (S_WD, 72),
                         (S_OUT, 80), (S_DBG, 88), (S_WS, 96), (S_D, 40)):
            a(f's_load_dwordx2 {sr(srd, 2)}, s[0:1], {off}')
        a(f's_getpc_b64 {sr(sT0, 2)}')
        a('.Lpc:')
        a('v_lshlrev_b32 v2, 7, v0')
        a('v_min_u32 v2, .Lcode_end-.Lpc-4, v2')
        a('v_mov_b32 v3, 0')
        a(f'v_lshl_add_u64 v[2:3], v[2:3], 0, {sr(sT0, 2)}')
        a('global_load_dword v255, v[2:3], off')
        a('v_lshrrev_b32 v1, 6, v0')
        a('v_and_b32 v0, 63, v0')
        a(f'v_readfirstlane_b32 s{S_W}, v1')
        for srd, n in ((S_K, 2621440), (S_V, 2621440), (S_SH, 5120), (S_SK, 4096), (S_X, 2621440), (S_WG, 1966080),
                       (S_WU, 1966080), (S_WD, 1966080), (S_OUT, 2621440), (S_DBG, 256), (S_WS, WS_END)):
            a(f's_mov_b32 s{srd + 2}, {n}')
            a(f's_mov_b32 s{srd + 3}, 0x20000')
        a(f's_and_b32 s{sX}, s2, 7')
        a(f's_lshr_b32 s{sJ}, s2, 3')
        a(f's_and_b32 s{sM}, s{sJ}, 15')
        a(f's_mov_b32 s{sG}, s{sX}')
        a(f's_cmp_lt_u32 s{sJ}, 16')
        a.snapshot('role')
        a('s_cbranch_scc1 .Lconv')
        a(f's_add_u32 s{sG}, s{sX}, 8')
        a(f's_cmp_lt_u32 s{sX}, 2')
        a('s_cbranch_scc0 .Lside')
        a('.Lconv:')

    def gemm_ids(self):
        a = self.a
        a(f's_lshr_b32 s{sRB}, s{sX}, 1')
        a(f's_lshl_b32 s{sRB}, s{sRB}, 2')
        a(f's_lshr_b32 s{sT0}, s{sJ}, 3')
        a(f's_add_u32 s{sRB}, s{sRB}, s{sT0}')
        a(f's_and_b32 s{sCB}, s{sX}, 1')
        a(f's_lshl_b32 s{sCB}, s{sCB}, 3')
        a(f's_and_b32 s{sT0}, s{sJ}, 7')
        a(f's_add_u32 s{sCB}, s{sCB}, s{sT0}')
        a(f's_and_b32 s{sT0}, s{sCB}, 1')
        a(f's_mul_i32 s{sA}, s{sCB}, 6')
        a(f's_add_u32 s{sB}, s{sA}, 4')
        a(f's_lshl_b32 s{sT1}, s{sT0}, 1')
        a(f's_add_u32 s{sA}, s{sA}, s{sT1}')
        a(f's_lshl_b32 s{sT1}, s{sT0}, 2')
        a(f's_sub_u32 s{sB}, s{sB}, s{sT1}')

    vWL, vWL2, vWW, vWW2, vTmp, vTmp2, vOne = 254, 253, 252, 251, 250, 249, 248

    def w_addr(self):
        a = self.a
        t, t2 = self.vTmp, self.vTmp2
        a(f's_movk_i32 s{sT2}, 3072')
        a(f's_mul_i32 s{sT0}, s{S_W}, {8 * 3072}')
        a(f's_lshl_b32 s{sT1}, s{sA}, 5')
        a(f's_add_u32 s{sT0}, s{sT0}, s{sT1}')
        a(f'v_lshrrev_b32 v{t}, 3, v0')
        a(f'v_and_b32 v{t2}, 7, v0')
        a(f'v_lshl_add_u32 v{t2}, v{t2}, 4, s{sT0}')
        a(f'v_mad_u32_u24 v{self.vWL}, v{t}, s{sT2}, v{t2}')
        a(f's_mul_i32 s{sT0}, s{S_W}, {16 * 3072}')
        a(f's_lshl_b32 s{sT1}, s{sB}, 5')
        a(f's_add_u32 s{sT0}, s{sT0}, s{sT1}')
        a(f'v_lshrrev_b32 v{t}, 2, v0')
        a(f'v_and_b32 v{t2}, 3, v0')
        a(f'v_lshl_add_u32 v{t2}, v{t2}, 4, s{sT0}')
        a(f'v_mad_u32_u24 v{self.vWL2}, v{t}, s{sT2}, v{t2}')
        a(f's_mov_b32 s{sWoff}, 0')
        a(f's_mov_b32 s{sWoff2}, 0')
        a(f'v_mov_b32 v{self.vOne}, 1')

    def w_loads_main(self):
        out = []
        for i in range(40):
            srd = S_WU if i & 1 else S_WG
            g = [f'buffer_load_dwordx4 {ar(4 * i, 4)}, v{self.vWL}, {sr(srd, 4)}, s{sWoff} offen']
            if i & 1 and i != 39:
                g.append(f's_add_u32 s{sWoff}, s{sWoff}, {32 * 3072}')
            out.append(g)
        return out

    def w_loads_tail(self):
        out = []
        for i in range(20):
            srd = S_WU if i & 1 else S_WG
            g = [f'buffer_load_dwordx4 {ar(160 + 4 * i, 4)}, v{self.vWL2}, {sr(srd, 4)}, s{sWoff2} offen']
            if i & 1 and i != 19:
                g.append(f's_add_u32 s{sWoff2}, s{sWoff2}, {64 * 3072}')
            out.append(g)
        return out

    def w_write_addr_main(self):
        a = self.a
        t, t2 = self.vTmp, self.vTmp2
        a(f's_lshl_b32 s{sT0}, s{S_W}, 9')
        a(f'v_lshrrev_b32 v{t}, 3, v0')
        a(f'v_lshl_add_u32 v{t}, v{t}, 6, s{sT0}')
        a(f'v_and_b32 v{t2}, 1, v0')
        a(f'v_lshl_add_u32 v{t}, v{t2}, 4, v{t}')
        a(f'v_bfe_u32 v{t2}, v0, 1, 2')
        a(f'v_lshlrev_b32 v{self.vWW}, 5, v{t2}')
        a(f'v_xor_b32 v{t}, v{t}, v{self.vWW}')
        a(f's_mov_b32 s{sT0}, {TILE}')
        a(f'v_mad_u32_u24 v{self.vWW}, v{t2}, s{sT0}, v{t}')
        a(f'v_xor_b32 v{self.vWW2}, 32, v{self.vWW}')

    def w_writes_main(self):
        return [f'ds_write_b128 v{self.vWW2 if i & 1 else self.vWW}, {ar(4 * i, 4)} offset:{(i >> 1) * 2048}'
                for i in range(40)]

    def w_write_addr_tail(self):
        a = self.a
        t, t2 = self.vTmp, self.vTmp2
        a(f's_lshl_b32 s{sT0}, s{S_W}, 10')
        a(f'v_lshrrev_b32 v{t}, 2, v0')
        a(f'v_lshl_add_u32 v{t}, v{t}, 6, s{sT0}')
        a(f'v_and_b32 v{t2}, 1, v0')
        a(f'v_lshl_add_u32 v{t}, v{t2}, 4, v{t}')
        a(f'v_bfe_u32 v{t2}, v0, 1, 1')
        a(f'v_lshlrev_b32 v{self.vWW}, 5, v{t2}')
        a(f'v_xor_b32 v{t}, v{t}, v{self.vWW}')
        a(f's_mov_b32 s{sT0}, {TILE}')
        a(f'v_mad_u32_u24 v{self.vWW}, v{t2}, s{sT0}, v{t}')
        a(f'v_xor_b32 v{self.vWW2}, 32, v{self.vWW}')

    def w_writes_tail(self):
        return [f'ds_write_b128 v{self.vWW2 if i & 1 else self.vWW}, {ar(160 + 4 * i, 4)} offset:{(i >> 1) * 4096}'
                for i in range(20)]

    def check_init(self, vflag):
        self.spin(S_DBG, '0', 1, vflag, first_loaded=True)

    def conv(self):
        a = self.a
        o = self.opt
        vK, vKh, vC, vR = 1, 2, 3, 4
        SH = 8
        KR = 16
        VR = 38
        SK = 56
        WF = 88
        KF = 104
        KV = 148
        VF = 180
        O = 188
        a(f's_lshl_b32 s{sQ}, s{sG}, 4')
        a(f's_add_u32 s{sQ}, s{sQ}, s{sM}')
        a(f'v_and_b32 v{vC}, 15, v0')
        a(f'v_lshrrev_b32 v{vR}, 4, v0')
        a(f's_lshl_b32 s{sT0}, s{sM}, 2')
        a(f's_add_u32 s{sT0}, s{sT0}, s{S_W}')
        a(f's_mul_i32 s{sT0}, s{sT0}, {32 * 1280}')
        a(f's_lshl_b32 s{sT1}, s{sG}, 7')
        a(f's_add_u32 s{sT0}, s{sT0}, s{sT1}')
        a(f's_movk_i32 s{sT2}, {8 * 1280}')
        a(f'v_lshl_add_u32 v{vK}, v{vC}, 3, s{sT0}')
        a(f'v_mad_u32_u24 v{vK}, v{vR}, s{sT2}, v{vK}')
        a(f'v_subrev_u32 v{vKh}, 3840, v{vK}')
        a(f's_lshl_b32 s{sT1}, s{sG}, 9')
        a(f'v_lshl_add_u32 v5, v{vC}, 5, s{sT1}')
        a(f's_movk_i32 s{sT3}, 5120')
        linit = a.label('noinit')
        a(f's_lshl_b32 s{sT4}, s2, 2')
        a(f's_add_u32 s{sT4}, s{sT4}, s{S_W}')
        a.need(sr(S_WS, 2))
        a(f's_cmp_lg_u32 s{sT4}, 3')
        a(f's_cbranch_scc1 {linit}')
        with a.untracked():
            a('v_lshlrev_b32 v6, 8, v0')
            a('v_mov_b32 v7, 0')
            a(f'buffer_store_dword v7, v6, {sr(S_WS, 4)}, 0 offen sc1')
        a(f'{linit}:')
        a(f'buffer_load_dwordx4 {vr(SH, 4)}, v5, {sr(S_SH, 4)}, 0 offen')
        a(f'buffer_load_dwordx4 {vr(SH + 4, 4)}, v5, {sr(S_SH, 4)}, 0 offen offset:16')
        for r in range(3):
            a(f'buffer_load_dwordx2 {vr(KR + 2 * r, 2)}, v{vKh}, {sr(S_K, 4)}, 0 offen offset:{r * 1280}')
        for r in range(8):
            so = f's{sT3}' if r >= 4 else '0'
            a(f'buffer_load_dwordx2 {vr(KR + 6 + 2 * r, 2)}, v{vK}, {sr(S_K, 4)}, {so} offen offset:{(r & 3) * 1280}')
            a(f'buffer_load_dwordx2 {vr(VR + 2 * r, 2)}, v{vK}, {sr(S_V, 4)}, {so} offen offset:{(r & 3) * 1280}')
        a(f's_lshl_b32 s{sT0}, s{sQ}, 2')
        a(f's_add_u32 s{sT0}, s{sT0}, s{S_W}')
        a(f's_lshl_b32 s{sT1}, s{sT0}, 12')
        a(f's_add_u32 s{S_SK}, s{S_SK}, s{sT1}')
        a(f's_addc_u32 s{S_SK + 1}, s{S_SK + 1}, 0')
        a(f's_lshl_b32 s{sT0}, s{sT0}, 1')
        a(f's_and_b32 s{sT0}, s{sT0}, -4')
        a(f's_load_dword s{sDv}, {sr(S_D, 2)}, s{sT0}')
        vL16 = 6
        a(f'v_lshlrev_b32 v{vL16}, 4, v0')
        a(f'v_subrev_u32 v7, 16, v{vL16}')
        for j in range(4):
            if j == 0:
                a(f'buffer_load_dwordx4 {vr(SK, 4)}, v7, {sr(S_SK, 4)}, 0 offen')
            else:
                a(f'buffer_load_dwordx4 {vr(SK + 8 * j, 4)}, v{vL16}, {sr(S_SK, 4)}, 0 offen offset:{1024 * j - 16}')
            a(f'buffer_load_dwordx4 {vr(SK + 8 * j + 4, 4)}, v{vL16}, {sr(S_SK, 4)}, 0 offen offset:{1024 * j}')
        linit = a.label('noinit')
        a(f's_cmp_lg_u32 s{sT4}, 3')
        a(f's_cbranch_scc1 {linit}')
        with a.untracked():
            a('s_waitcnt vmcnt(29)' if o['counted'] else 's_waitcnt vmcnt(0)')
            a('v_mov_b32 v7, 1')
            a('s_mov_b64 exec, 1')
            a(f'buffer_store_dword v7, off, {sr(S_DBG, 4)}, 0 sc1')
            a('s_mov_b64 exec, -1')
        a(f'{linit}:')
        self.gemm_ids()
        self.w_addr()
        vSW, vSR, vKS, vG, vUL, vUW = 204, 205, 206, 207, 208, 209
        a(f's_mul_i32 s{sT0}, s{S_W}, {USTR}')
        a(f's_add_u32 s{sT0}, s{sT0}, {UBASE}')
        a(f's_movk_i32 s{sT1}, 272')
        a(f'v_lshl_add_u32 v{vSW}, v{vR}, 4, s{sT0}')
        a(f'v_mad_u32_u24 v{vSW}, v{vC}, s{sT1}, v{vSW}')
        a(f'v_lshl_add_u32 v{vSR}, v{vC}, 4, s{sT0}')
        a(f'v_mad_u32_u24 v{vSR}, v{vR}, s{sT1}, v{vSR}')
        a(f'v_add_u32 v{vUW}, s{sT0}, v{vL16}')
        vBa, vAa = 210, 211
        a(f's_add_u32 s{sT0}, s{sT0}, 32')
        a(f'v_lshl_add_u32 v{vBa}, v{vC}, 5, s{sT0}')
        a(f'v_lshl_add_u32 v{vBa}, v{vR}, 4, v{vBa}')
        a(f's_mul_i32 s{sT0}, s{sG}, {16 * QS}')
        a(f's_lshl_b32 s{sT1}, s{sM}, 10')
        a(f's_add_u32 s{sT0}, s{sT0}, s{sT1}')
        a(f's_lshl_b32 s{sT1}, s{S_W}, 8')
        a(f's_add_u32 s{sT0}, s{sT0}, s{sT1}')
        a(f's_mov_b32 s{sT1}, {QS}')
        a(f'v_lshl_add_u32 v{vKS}, v{vC}, 4, s{sT0}')
        a(f'v_mad_u32_u24 v{vKS}, v{vR}, s{sT1}, v{vKS}')
        a(f's_mul_i32 s{sT5}, s{S_W}, {GW}')
        a(f'v_add_u32 v{vG}, s{sT5}, v{vL16}')
        a(f'v_bfe_u32 v{vAa}, v0, 3, 1')
        a(f'v_sub_u32 v{vAa}, v{vAa}, v{vR}')
        a(f's_add_u32 s{sT0}, s{sT5}, 48')
        a(f'v_lshl_add_u32 v{vAa}, v{vAa}, 4, s{sT0}')
        vI7 = 212
        a(f'v_and_b32 v{vI7}, 7, v0')
        a(f's_movk_i32 s{sT1}, {GSTR}')
        a(f'v_mad_u32_u24 v{vAa}, v{vI7}, s{sT1}, v{vAa}')
        vGZ = 213
        a(f'v_mov_b32 v{vGZ}, s{sT5}')
        a(f'v_mad_u32_u24 v{vGZ}, v{vI7}, s{sT1}, v{vGZ}')
        a(f's_mul_i32 s{sT6}, s{sQ}, {QS}')
        a(f's_lshl_b32 s{sT1}, s{S_W}, 6')
        a(f's_add_u32 s{sT0}, s{sT6}, s{sT1}')
        a(f'v_and_b32 v{vUL}, 3, v0')
        a(f'v_lshl_add_u32 v{vUL}, v{vUL}, 4, s{sT0}')
        a(f'v_lshrrev_b32 v5, 2, v0')
        a(f'v_lshl_add_u32 v{vUL}, v5, 8, v{vUL}')
        vXS, vHS = 214, 215
        a(f's_lshl_b32 s{sT0}, s{S_W}, 12')
        a(f'v_lshl_add_u32 v{vXS}, v{vC}, 7, s{sT0}')
        a(f'v_lshl_add_u32 v{vXS}, v{vR}, 5, v{vXS}')
        a(f's_add_u32 s{sT0}, s{sT0}, s{sT6}')
        a(f'v_add_u32 v{vHS}, s{sT0}, v{vL16}')
        vZR, vZR2 = 216, 217
        a(f's_lshl_b32 s{sT0}, s{S_W}, 11')
        a(f'v_add_u32 v{vZR}, s{sT0}, v{vL16}')
        a(f'v_add_u32 v{vZR2}, {2 * GW}, v{vZR}')
        ZERO = 220
        for i in range(4):
            a(f'v_mov_b32 v{ZERO + i}, 0')
        a(f's_mov_b32 s{sT2}, 0xffff0000')
        for ch in range(4):
            for j in range(4):
                src = SH + 2 * ch + (j >> 1)
                if j & 1:
                    a(f'v_and_b32 v{WF + 4 * j + ch}, s{sT2}, v{src}')
                else:
                    a(f'v_lshlrev_b32 v{WF + 4 * j + ch}, 16, v{src}')

        def unpack(dst, src):
            a(f'v_lshlrev_b32 v{dst}, 16, v{src}')
            a(f'v_and_b32 v{dst + 1}, s{sT2}, v{src}')
            a(f'v_lshlrev_b32 v{dst + 2}, 16, v{src + 1}')
            a(f'v_and_b32 v{dst + 3}, s{sT2}, v{src + 1}')
        for r in range(3):
            unpack(KF + 4 * r, KR + 2 * r)
        self.stamp(1)
        for r in range(8):
            unpack(KF + 4 * (r + 3), KR + 2 * (r + 3))
            vf = VF + 4 * (r & 1)
            for j in (3, 2, 1, 0):
                for p in range(2):
                    d = vr(KV + 4 * r + 2 * p, 2)
                    k = vr(KF + 4 * (r + 3 - j) + 2 * p, 2)
                    w = vr(WF + 4 * j + 2 * p, 2)
                    if j == 3:
                        a(f'v_pk_mul_f32 {d}, {k}, {w}')
                    else:
                        a(f'v_pk_fma_f32 {d}, {k}, {w}, {d}')
                if j == 3:
                    unpack(vf, VR + 2 * r)
            for p in range(2):
                d = vr(KV + 4 * r + 2 * p, 2)
                a(f'v_pk_mul_f32 {d}, {d}, {vr(vf + 2 * p, 2)}')
            if r & 1:
                d = (7 - r) >> 1
                for ch in range(4):
                    a(f'v_cvt_pk_bf16_f32 v{O + 4 * ch + d}, v{KV + 4 * r + ch}, v{KV + 4 * (r - 1) + ch}')
        for ch in range(4):
            a(f'ds_write_b128 v{vSW}, {vr(O + 4 * ch, 4)} offset:{ch * 64}')
        for j in range(4):
            a(f'ds_read_b128 {vr(KV + 4 * j, 4)}, v{vSR} offset:{j * 1088}')
        a(f's_mov_b32 s{sT0}, {KVX}')
        for j in range(4):
            a(f'buffer_store_dwordx4 {vr(KV + 4 * j, 4)}, v{vKS}, {sr(S_WS, 4)}, s{sT0} offen sc1')
            if j < 3:
                a(f's_add_u32 s{sT0}, s{sT0}, {4 * QS}')
        self.stamp(2)
        vFl = 218
        a(f'buffer_load_dword v{vFl}, off, {sr(S_DBG, 4)}, 0 sc1')
        wl = self.w_loads_main()
        a(f'ds_write_b128 v{vUW}, {vr(ZERO, 4)}')
        a(f'ds_write_b128 v{vGZ}, {vr(ZERO, 4)}')
        nw = o['w_kv']
        for j in range(4):
            D = SK + 8 * j
            Ea, Eb, Db = KF + 20 * (j & 1), KF + 20 * (j & 1) + 8, KF + 20 * (j & 1) + 14

            def wr(rho, reg):
                a(f'ds_write_b128 v{vG}, {vr(reg, 4)} offset:{rho * GSTR + 1024 * j + 16}')
            wr(7, D + 4)
            wr(3, D + 2)
            for i in range(3):
                a(f'v_pk_mov_b32 {vr(Db + 2 * i, 2)}, {vr(D + 2 * i, 2)}, {vr(D + 2 * i + 2, 2)} op_sel:[1,0]')
            for i in range(7):
                a(f'v_alignbit_b32 v{Ea + i}, v{D + i + 1}, v{D + i}, 16')
            wr(1, Db)
            wr(5, Db + 2)
            for i in range(3):
                a(f'v_pk_mov_b32 {vr(Eb + 2 * i, 2)}, {vr(Ea + 2 * i, 2)}, {vr(Ea + 2 * i + 2, 2)} op_sel:[1,0]')
            wr(0, Ea)
            wr(4, Ea + 2)
            wr(2, Eb)
            wr(6, Eb + 2)
            for _ in range((nw + 3 - j) // 4):
                for x in wl.pop(0):
                    a(x)
        a.need(f'v{vFl}')
        self.drain()
        a('s_barrier')
        self.stamp(3)
        a(f's_lshl_b32 s{sT0}, s{sG}, 8')
        with self.wave0():
            self.check_init(vFl)
            a(f'buffer_atomic_add v{self.vOne}, off, {sr(S_WS, 4)}, s{sT0} sc1')
        AD = 224
        a.need(f's{sDv}')
        a(f's_and_b32 s{sT1}, s{S_W}, 1')
        a(f's_lshl_b32 s{sT1}, s{sT1}, 4')
        a(f's_lshr_b32 s{sDv}, s{sDv}, s{sT1}')
        a(f's_and_b32 s{sDv}, s{sDv}, 0xffff')
        a(f'v_sub_u32 v5, 7, v{vI7}')
        a(f'v_and_b32 v7, 1, v5')
        a(f'v_lshlrev_b32 v7, 4, v7')
        a(f'v_lshlrev_b32 v7, v7, s{sDv}')
        a(f'v_bfe_u32 v8, v0, 3, 1')
        a(f'v_add_u32 v8, 2, v8')
        a(f'v_cmp_eq_u32 vcc, v8, v{vR}')
        a(f'v_cndmask_b32 v7, 0, v7, vcc')
        a(f'v_lshrrev_b32 v5, 1, v5')
        for d in range(4):
            a(f'v_cmp_eq_u32 vcc, {d}, v5')
            a(f'v_cndmask_b32 v{AD + d}, 0, v7, vcc')
        ACC = 8
        BUF = (40, 104)
        XR, SR = 168, 184

        def rdA(it, t):
            return f'ds_read_b128 {vr(BUF[it & 1] + 4 * t, 4)}, v{vAa} offset:{64 * it + 512 * t}'

        def rdB(it, t):
            return f'ds_read_b128 {vr(BUF[it & 1] + 32 + 4 * t, 4)}, v{vBa} offset:{448 - 64 * it + 512 * t}'
        for t in range(8):
            a(rdA(0, t))
        with self.wave0():
            self.spin(S_WS, f's{sT0}', 16, vFl)
        a('s_barrier')
        self.stamp(4)
        a(f's_mov_b32 s{sT0}, {KVX}')
        for j in range(4):
            a(f'buffer_load_dwordx4 {vr(BUF[1] + 4 * j, 4)}, v{vUL}, {sr(S_WS, 4)}, s{sT0} offen sc1')
            if j < 3:
                a(f's_add_u32 s{sT0}, s{sT0}, 4096')
        for j in range(4):
            a(f'ds_write_b128 v{vUW}, {vr(BUF[1] + 4 * j, 4)} offset:{512 + 1024 * j}')
            a(rdB(0, 2 * j))
            a(rdB(0, 2 * j + 1))
        self.stamp(5)
        a(f's_mov_b32 s{sT3}, {C_FX * 256}')
        a(f's_mov_b32 s{sT4}, {ST1}')
        a(f's_add_u32 s{sT6}, s{sT6}, {XP4}')
        for it in range(8):
            A, B = BUF[it & 1], BUF[it & 1] + 32
            mf = []
            for tp in range(8):
                if it == 0:
                    mf.append(f'v_mfma_f32_16x16x32_bf16 {vr(ACC + 4 * tp, 4)}, {vr(AD, 4)}, {vr(B + 4 * tp, 4)}, 0')
            for tp in range(8):
                for t in range(8 - tp):
                    c = vr(ACC + 4 * (t + tp), 4)
                    mf.append(f'v_mfma_f32_16x16x32_bf16 {c}, {vr(A + 4 * t, 4)}, {vr(B + 4 * tp, 4)}, {c}')
            fill = [[] for _ in mf]
            if it < 7:
                rd = [rdB(it + 1, 0)] + [rdA(it + 1, t) for t in range(8)] + [rdB(it + 1, t) for t in range(1, 8)]
                base = 8 if it == 0 else 0
                for i, x in enumerate(rd):
                    fill[base + 2 * i].append(x)
                n = (len(wl) + (6 - it)) // (7 - it)
                for i in range(n):
                    fill[base + 1 + 2 * ((i * 17) // n)] += wl.pop(0)
            if it == 2:
                fill[33].append(f'buffer_load_dword v{vFl}, off, {sr(S_WS, 4)}, s{sT3} sc1')
            if it == 7:
                ops = []
                for T in range(2):
                    for row in range(4):
                        src = XR + 8 * T + 2 * row
                        xf = BUF[0] + 16 * T + 4 * row
                        st = SR + 8 * T + 2 * row
                        ops += [f'v_lshlrev_b32 v{xf}, 16, v{src}', f'v_and_b32 v{xf + 1}, s{sT2}, v{src}',
                                f'v_lshlrev_b32 v{xf + 2}, 16, v{src + 1}', f'v_and_b32 v{xf + 3}, s{sT2}, v{src + 1}']
                        ops += [f'v_fma_f32 v{xf + 32 + c}, v{xf + c}, v{st}, v{st + 1}' for c in range(4)]
                for i, x in enumerate(ops):
                    fill[2 + i // 2].append(x)
            if it == 4:
                a.need(f'v{vFl}')
                self.spin(S_WS, f's{sT3}', 64, vFl, first_loaded=True)
                k = 0
                for T in range(2):
                    for p in range(2):
                        off = 2048 * T + 16 * p
                        fill[4 * k + 3].append(f'buffer_load_dwordx4 {vr(XR + 8 * T + 4 * p, 4)}, v{vXS}, {sr(S_WS, 4)}, s{sT6} offen offset:{off} sc1')
                        fill[4 * k + 5].append(f'buffer_load_dwordx4 {vr(SR + 8 * T + 4 * p, 4)}, v{vXS}, {sr(S_WS, 4)}, s{sT4} offen offset:{off} sc1')
                        k += 2
            if it > 0:
                a.need(vr(BUF[it & 1], 36))
            for m, f in zip(mf, fill):
                a(m)
                for x in f:
                    a(x)
        assert not wl
        self.stamp(6)
        for T in range(8):
            a(f'ds_write_b128 v{vG}, {vr(ACC + 4 * T, 4)} offset:{1024 * T}')
        a('s_waitcnt lgkmcnt(0)')
        a('s_barrier')
        Z = BUF[1]
        for T in range(2):
            for ch in range(4):
                a(f'ds_read_b128 {vr(Z + 16 * T + 4 * ch, 4)}, v{vZR2 if ch & 2 else vZR} offset:{(ch & 1) * GW + 1024 * T}')
        a(f's_mov_b32 s{sT0}, {HP4}')
        XF, QF, HO = BUF[0], BUF[0] + 32, ACC
        for T in range(2):
            for p in range(2):
                for b in range(2):
                    row = 2 * p + b
                    for c in range(4):
                        x = XF + 16 * T + 4 * row + c
                        a(f'v_fmac_f32 v{x}, v{x + 32}, v{Z + 16 * T + 4 * c + row}')
                    for c2 in range(2):
                        x = XF + 16 * T + 4 * row + 2 * c2
                        a(f'v_cvt_pk_bf16_f32 v{HO + 8 * T + 4 * p + 2 * b + c2}, v{x}, v{x + 1}')
                a(f'buffer_store_dwordx4 {vr(HO + 8 * T + 4 * p, 4)}, v{vHS}, {sr(S_WS, 4)}, s{sT0} offen offset:{2048 * T + 1024 * p} sc1')
        self.stamp(7)
        self.w_write_addr_main()
        a('s_barrier')
        wt = self.w_loads_tail()
        ww = self.w_writes_main()
        for i in range(20):
            for x in wt[i]:
                a(x)
            a(ww[i])
        self.drain()
        a('s_barrier')
        self.arrive_e2()
        for i in range(20, 40):
            a(ww[i])
        a.snapshot('join')
        a('.Ljoin:')

    def arrive_e2(self):
        a = self.a
        a(f's_lshl_b32 s{sT0}, s{sX}, 8')
        a(f's_add_u32 s{sT0}, s{sT0}, {C_B1 * 256}')
        with self.wave0():
            l = a.label('notlast')
            a(f'v_mov_b32 v{self.vTmp}, 1')
            a(f'buffer_atomic_add v{self.vTmp}, off, {sr(S_WS, 4)}, s{sT0} sc0 sc1')
            a('s_waitcnt vmcnt(0)')
            a(f'v_readfirstlane_b32 s{sT7}, v{self.vTmp}')
            a(f's_cmp_lg_u32 s{sT7}, 31')
            a(f's_cbranch_scc1 {l}')
            a('s_mov_b64 exec, 0xff')
            a(f'v_lshlrev_b32 v{self.vTmp}, 8, v0')
            a(f's_movk_i32 s{sT7}, {C_B2 * 256}')
            a(f'buffer_atomic_add v{self.vOne}, v{self.vTmp}, {sr(S_WS, 4)}, s{sT7} offen sc1')
            a(f'{l}:')

    def side(self):
        a = self.a
        a('.Lside:')
        a.fresh('role')
        vTid = 1
        a(f'v_lshl_add_u32 v{vTid}, s{S_W}, 6, v0')
        a(f's_sub_u32 s{sG}, s{sX}, 2')
        a(f's_lshl_b32 s{sG}, s{sG}, 4')
        a(f's_add_u32 s{sG}, s{sG}, s{sM}')
        self.gemm_ids()
        self.w_addr()
        a.need(sr(S_WS, 2))
        a(f's_cmp_ge_u32 s{sG}, 64')
        a.snapshot('s2')
        a('s_cbranch_scc1 .Ls2')
        XR, WR = 16, 56
        vA, vRow, vS8 = 2, 3, 4
        a(f'v_lshrrev_b32 v{vRow}, 3, v{vTid}')
        a(f'v_and_b32 v{vS8}, 7, v0')
        a(f's_mul_i32 s{sT0}, s{sG}, {32 * 1280}')
        a(f's_movk_i32 s{sT1}, 1280')
        a(f'v_lshl_add_u32 v{vA}, v{vS8}, 4, s{sT0}')
        a(f'v_mad_u32_u24 v{vA}, v{vRow}, s{sT1}, v{vA}')
        for j in range(10):
            a(f'buffer_load_dwordx4 {vr(XR + 4 * j, 4)}, v{vA}, {sr(S_X, 4)}, 0 offen offset:{128 * j}')
        for j in range(10):
            a(f'buffer_load_dwordx4 {vr(WR + 4 * j, 4)}, v{vA}, {sr(S_WD, 4)}, 0 offen offset:{128 * j}')
        vW, vRd, vSt = 5, 6, 7
        a(f's_movk_i32 s{sT1}, 528')
        a(f'v_lshlrev_b32 v{vW}, 3, v{vRow}')
        a(f'v_mad_u32_u24 v{vW}, v{vS8}, s{sT1}, v{vW}')
        a(f'v_and_b32 v{vRd}, 31, v0')
        a(f'v_lshlrev_b32 v{vRd}, 4, v{vRd}')
        a(f'v_lshrrev_b32 v8, 5, v{vTid}')
        a(f'v_mad_u32_u24 v{vRd}, v8, s{sT1}, v{vRd}')
        a(f's_lshl_b32 s{sT0}, s{sG}, 8')
        a(f'v_and_b32 v{vSt}, 15, v0')
        a(f'v_lshl_add_u32 v{vSt}, v{vSt}, 4, s{sT0}')
        a(f'v_lshrrev_b32 v8, 4, v{vTid}')
        a(f's_mov_b32 s{sT1}, {QS}')
        a(f'v_mad_u32_u24 v{vSt}, v8, s{sT1}, v{vSt}')
        for j in range(10):
            for o_ in range(2):
                a(f'ds_write_b64 v{vW}, {vr(XR + 4 * j + 2 * o_, 2)} offset:{j * 4224 + o_ * 256}')
        a('s_waitcnt lgkmcnt(0)')
        a('s_barrier')
        XO = 96
        for j in range(10):
            a(f'ds_read_b128 {vr(XO + 4 * j, 4)}, v{vRd} offset:{j * 4224}')
        a(f's_mov_b32 s{sT1}, {XP4}')
        for j in range(10):
            a(f'buffer_store_dwordx4 {vr(XO + 4 * j, 4)}, v{vSt}, {sr(S_WS, 4)}, s{sT1} offen sc1')
            a(f's_add_u32 s{sT1}, s{sT1}, {16 * QS}')
        a(f's_mov_b32 s{sOne}, 0x3f803f80')
        for i in range(4):
            a(f'v_mov_b32 v{8 + i}, 0')
        for i in range(40):
            a(f'v_dot2c_f32_bf16 v{8 + (i & 1)}, s{sOne}, v{XR + i}')
            a(f'v_dot2c_f32_bf16 v{10 + (i & 1)}, v{XR + i}, v{XR + i}')
        a('v_add_f32 v8, v8, v9')
        a('v_add_f32 v10, v10, v11')
        for m in ('quad_perm:[1,0,3,2]', 'quad_perm:[2,3,0,1]', 'row_half_mirror'):
            a(f'v_add_f32_dpp v8, v8, v8 {m} row_mask:0xf bank_mask:0xf')
            a(f'v_add_f32_dpp v10, v10, v10 {m} row_mask:0xf bank_mask:0xf')
        a(f'v_mul_f32 v8, {f32(1 / 640)}, v8')
        a(f'v_mul_f32 v10, {f32(1 / 640)}, v10')
        a('v_fma_f32 v10, -v8, v8, v10')
        a('v_max_f32 v10, 0, v10')
        a(f'v_add_f32 v10, {f32(1e-5)}, v10')
        a('v_rsq_f32 v10, v10')
        a(f'v_lshl_add_u32 v12, v{vRow}, 3, s{sT0}')
        a('v_mul_f32 v11, -v8, v10')
        a(f's_mov_b32 s{sT1}, {ST1}')
        a('s_mov_b32 exec_lo, 0x01010101')
        a('s_mov_b32 exec_hi, 0x01010101')
        a(f'buffer_store_dwordx2 v[10:11], v12, {sr(S_WS, 4)}, s{sT1} offen sc1')
        a('s_mov_b64 exec, -1')
        vFl = 13
        a(f'buffer_load_dword v{vFl}, off, {sr(S_DBG, 4)}, 0 sc1')
        WB = 49152
        a(f's_movk_i32 s{sT1}, 1344')
        a(f'v_lshlrev_b32 v{vW}, 4, v{vS8}')
        a(f'v_mad_u32_u24 v{vW}, v{vRow}, s{sT1}, v{vW}')
        for j in range(10):
            a(f'ds_write_b128 v{vW}, {vr(WR + 4 * j, 4)} offset:{WB + 128 * j}')
        a('s_waitcnt vmcnt(0) lgkmcnt(0)')
        a('s_barrier')
        a(f's_movk_i32 s{sT0}, {C_FX * 256}')
        with self.wave0():
            self.check_init(vFl)
            a(f'buffer_atomic_add v{self.vOne}, off, {sr(S_WS, 4)}, s{sT0} sc1')
        self.stamp(2)
        ls3 = a.label('nos3')
        a(f's_cmp_ge_u32 s{sG}, 48')
        a(f's_cbranch_scc1 {ls3}')
        with a.untracked():
            a('v_lshrrev_b32 v8, 4, v0')
            a('v_bfe_u32 v9, v0, 2, 2')
            a('v_lshl_add_u32 v8, v8, 3, v9')
            a(f's_mul_i32 s{sT0}, s{S_W}, 320')
            a(f'v_mov_b32 v9, s{sT0}')
            a(f'v_mad_u32_u24 v8, v8, s{sT1}, v9')
            a('v_and_b32 v9, 3, v0')
            a('v_lshl_add_u32 v10, v9, 3, v8')
            a('v_lshl_add_u32 v8, v9, 4, v8')
            for cc in range(2):
                for nt in range(5):
                    for e in range(2):
                        off = WB + cc * 160 + e * 4 * 1344 + ((nt >> 1) * 64 + (nt & 1) * 8)
                        a(f'ds_read_b64_tr_b16 {vr(XO + 4 * (5 * cc + nt) + 2 * e, 2)}, v{10 if nt == 4 else 8} offset:{off}')
            a(f's_mul_i32 s{sT0}, s{S_W}, 96')
            a(f's_add_u32 s{sT0}, s{sT0}, s{sG}')
            a(f's_mul_i32 s{sT0}, s{sT0}, 5120')
            a(f's_add_u32 s{sT0}, s{sT0}, {WDF}')
            a('v_lshlrev_b32 v9, 4, v0')
            a('s_waitcnt lgkmcnt(0)')
            for cc in range(2):
                for nt in range(5):
                    if nt == 4:
                        a(f's_add_u32 s{sT0}, s{sT0}, 4096')
                    a(f'buffer_store_dwordx4 {vr(XO + 4 * (5 * cc + nt), 4)}, v9, {sr(S_WS, 4)}, s{sT0} offen offset:{(nt & 3) * 1024} sc1')
                a(f's_add_u32 s{sT0}, s{sT0}, {48 * 5120 - 4096}')
        a(f'{ls3}:')
        a('s_branch .Lside_w')
        a('.Ls2:')
        a.fresh('s2')
        a(f'buffer_load_dword v13, off, {sr(S_DBG, 4)}, 0 sc1')
        a('s_waitcnt vmcnt(0)')
        a(f's_cmp_ge_u32 s{sG}, 88')
        a('s_cbranch_scc1 .Ls2_done')
        a(f's_sub_u32 s{sT0}, s{sG}, 64')
        a(f's_cmp_ge_u32 s{sT0}, 12')
        a(f's_cselect_b32 s{S_WD}, s{S_WU}, s{S_WG}')
        a(f's_cselect_b32 s{S_WD + 1}, s{S_WU + 1}, s{S_WG + 1}')
        a(f's_cselect_b32 s{sT1}, 12, 0')
        a(f's_sub_u32 s{sT1}, s{sT0}, s{sT1}')
        a(f's_lshl_b32 s{sT1}, s{sT1}, 8')
        a('v_and_b32 v2, 15, v0')
        a(f'v_lshrrev_b32 v3, 4, v{vTid}')
        a(f'v_lshl_add_u32 v4, v2, 4, s{sT1}')
        a(f's_movk_i32 s{sT2}, 3072')
        a(f'v_mad_u32_u24 v4, v3, s{sT2}, v4')
        a(f's_mov_b32 s{sT2}, 0')
        for i in range(40):
            a(f'buffer_load_dwordx4 {vr(32 + 4 * i, 4)}, v4, {sr(S_WD, 4)}, s{sT2} offen')
            a(f's_add_u32 s{sT2}, s{sT2}, {16 * 3072}')
        for i in range(8):
            a(f'v_mov_b32 v{16 + i}, 0')
        a(f's_mov_b32 s{sT2}, 0x3f80')
        a(f's_mov_b32 s{sT3}, 0x3f800000')
        for i in range(160):
            a(f'v_dot2c_f32_bf16 v{16 + 2 * (i & 3)}, s{sT2}, v{32 + i}')
            a(f'v_dot2c_f32_bf16 v{17 + 2 * (i & 3)}, s{sT3}, v{32 + i}')
        a(f'v_lshlrev_b32 v5, 5, v{vTid}')
        a('ds_write_b128 v5, v[16:19]')
        a('ds_write_b128 v5, v[20:23] offset:16')
        a('s_waitcnt lgkmcnt(0)')
        a('s_barrier')
        a(f'v_and_b32 v5, 127, v{vTid}')
        a('v_lshlrev_b32 v6, 2, v5')
        for i in range(16):
            a(f'ds_read_b32 v{32 + i}, v6 offset:{512 * i}')
        for i in range(1, 16):
            a(f'v_add_f32 v32, v32, v{32 + i}')
        a('v_cvt_pk_bf16_f32 v8, v32, v32')
        a('v_lshlrev_b32 v10, 16, v8')
        a('v_sub_f32 v10, v32, v10')
        a('v_cvt_pk_bf16_f32 v9, v10, v10')
        a(f's_lshl_b32 s{sT0}, s{sT0}, 10')
        a(f's_add_u32 s{sT0}, s{sT0}, {CSF}')
        a('v_lshrrev_b32 v6, 5, v5')
        a('v_lshlrev_b32 v6, 8, v6')
        a('v_lshl_add_u32 v6, v2, 4, v6')
        a('v_bfe_u32 v7, v5, 4, 1')
        a('v_lshl_add_u32 v6, v7, 3, v6')
        a(f'buffer_store_dwordx2 v[8:9], v6, {sr(S_WS, 4)}, s{sT0} offen sc1')
        a('.Ls2_done:')
        with self.wave0():
            self.check_init(13)
        a('.Lside_w:')
        a.fresh()
        for g in self.w_loads_main() + self.w_loads_tail():
            for x in g:
                a(x)
        self.w_write_addr_main()
        a('s_waitcnt vmcnt(0) lgkmcnt(0)')
        a('s_barrier')
        self.arrive_e2()
        for x in self.w_writes_main():
            a(x)
        self.stamp(7)
        a('s_branch .Ljoin')

    def gemm1(self):
        a = self.a
        o = self.opt
        t, t2 = self.vTmp, self.vTmp2
        vTR = 224
        vAL, vAS, vWD, vCS = 228, 229, 230, 231
        vS = 232
        BP = 236
        CS45 = 242
        TM = 246
        ACC = 160
        RING1, CS01, RING2 = 128, 152, 240
        a(f'v_lshrrev_b32 v{t}, 5, v0')
        a(f'v_bfe_u32 v{t2}, v0, 2, 2')
        a(f'v_lshl_add_u32 v{t}, v{t}, 3, v{t2}')
        a(f'v_lshlrev_b32 v{t}, 6, v{t}')
        a(f'v_and_b32 v{t2}, 3, v0')
        a(f'v_lshl_add_u32 v{t}, v{t2}, 4, v{t}')
        a(f'v_bfe_u32 v{t2}, v0, 4, 1')
        a(f'v_lshl_add_u32 v{vTR}, v{t2}, 3, v{t}')
        for s in range(1, 4):
            a(f'v_xor_b32 v{t}, {32 * s}, v{vTR}')
            a(f'v_add_u32 v{vTR + s}, {TILE * s}, v{t}')
        a(f's_lshl_b32 s{sT0}, s{sRB}, 2')
        a(f's_add_u32 s{sT0}, s{sT0}, s{S_W}')
        a(f's_lshl_b32 s{sT1}, s{sT0}, 8')
        a(f'v_and_b32 v{t}, 15, v0')
        a(f'v_lshl_add_u32 v{t}, v{t}, 4, s{sT1}')
        a(f'v_lshrrev_b32 v{t2}, 4, v0')
        a(f's_mov_b32 s{sT1}, {QS}')
        a(f'v_mad_u32_u24 v{vAL}, v{t2}, s{sT1}, v{t}')
        a(f's_mul_i32 s{sT1}, s{sT0}, 98304')
        a(f'v_lshl_add_u32 v{vAS}, v0, 4, s{sT1}')
        a(f's_and_b32 s{sT0}, s{sJ}, 7')
        a(f's_lshl_b32 s{sT0}, s{sT0}, 2')
        a(f's_add_u32 s{sT0}, s{sT0}, s{S_W}')
        a(f's_mul_i32 s{sT0}, s{sT0}, {12 * 5120}')
        a(f'v_lshl_add_u32 v{vWD}, v0, 4, s{sT0}')
        a(f'v_and_b32 v{t}, 3, v0')
        a(f'v_bfe_u32 v{t2}, v0, 2, 1')
        a(f'v_lshl_add_u32 v{t}, v{t2}, 3, v{t}')
        a(f'v_bfe_u32 v{t2}, v0, 4, 1')
        a(f'v_lshl_add_u32 v{t}, v{t2}, 2, v{t}')
        a(f'v_lshlrev_b32 v{t}, 4, v{t}')
        a(f'v_bfe_u32 v{t2}, v0, 3, 1')
        a(f's_movk_i32 s{sT1}, 12288')
        a(f'v_mad_u32_u24 v{vCS}, v{t2}, s{sT1}, v{t}')
        self.w_write_addr_tail()
        for i in range(4):
            a(f'v_mov_b32 v{vS + i}, 0')
        for i in (0, 1, 4, 5):
            a(f'v_mov_b32 v{BP + i}, 0')
        a(f's_mov_b32 s{sOne}, 0x3f803f80')
        a(f's_lshl_b32 s{sT2}, s{sA}, 7')
        a(f's_add_u32 s{sT2}, s{sT2}, {CSF}')
        a(f's_lshl_b32 s{sT3}, s{sB}, 7')
        a(f's_add_u32 s{sT3}, s{sT3}, {CSF}')
        a(f's_lshl_b32 s{sA}, s{sA}, 10')
        a(f's_add_u32 s{sA}, s{sA}, {ACT}')
        a(f's_lshl_b32 s{sB}, s{sB}, 10')
        a(f's_add_u32 s{sB}, s{sB}, {ACT}')
        a(f's_mov_b32 s{sWoff}, {WDF}')
        a(f's_mov_b32 s{sT1}, {HP4}')
        a(f's_lshl_b32 s{sT0}, s{sX}, 8')
        a(f's_add_u32 s{sT0}, s{sT0}, {C_B2 * 256}')
        a.need('v255')
        a(f'v_mov_b32 v255, v0')
        with self.wave0():
            self.spin(S_WS, f's{sT0}', 8, t)
        a('s_waitcnt lgkmcnt(0)')
        a('s_barrier')
        self.stamp(8)
        for j in range(40):
            a(f'buffer_load_dwordx4 {vr(4 * j, 4)}, v{vAL}, {sr(S_WS, 4)}, s{sT1} offen sc1')
            if j < 39:
                a(f's_add_u32 s{sT1}, s{sT1}, {4 * QS}')
        a(f'buffer_load_dwordx4 {ar(CS01, 4)}, v{vCS}, {sr(S_WS, 4)}, s{sT2} offen sc1')
        a(f'buffer_load_dwordx4 {ar(CS01 + 4, 4)}, v{vCS}, {sr(S_WS, 4)}, s{sT2} offen offset:256 sc1')
        a(f'buffer_load_dwordx4 {vr(CS45, 4)}, v{vCS}, {sr(S_WS, 4)}, s{sT3} offen sc1')

        def rd(dst, slot, j):
            return [f'ds_read_b64_tr_b16 {ar(dst + 2 * e, 2)}, v{vTR + slot} offset:{1024 * j + 256 * e}'
                    for e in range(2)]

        def swaps(j):
            return [f'v_permlane16_swap_b32 v{4 * j}, v{4 * j + 2}', f'v_permlane16_swap_b32 v{4 * j + 1}, v{4 * j + 3}']

        def acc(slot):
            return vr(ACC + 16 * slot, 16)
        wd = []
        for i in range(60):
            g = [f'buffer_load_dwordx4 {ar(4 * i, 4)}, v{vWD}, {sr(S_WS, 4)}, s{sWoff} offen offset:{(i & 3) * 1024} sc1']
            if i & 3 == 3 and i != 59:
                g.append(f's_add_u32 s{sWoff}, s{sWoff}, 4096')
            wd.append(g)
        wtail = self.w_writes_tail()
        for j in range(2):
            for s in range(3):
                for x in rd(RING1 + 12 * j + 4 * s, s, j):
                    a(x)
        for x in swaps(0):
            a(x)
        p2 = [(3, 3, j) for j in range(40)] + [(4, 0, j) for j in range(40)] + [(5, 1, j) for j in range(40)]
        for j in range(40):
            base = RING1 + 12 * (j & 1)
            a.need(ar(base, 12))
            for s in range(3):
                c = '0' if j == 0 else acc(s)
                a(f'v_mfma_f32_32x32x16_bf16 {acc(s)}, {ar(base + 4 * s, 4)}, {vr(4 * j, 4)}, {c}')
                if j < 38:
                    for x in rd(base + 4 * s, s, j + 2):
                        a(x)
                else:
                    i = (j - 38) * 3 + s
                    if i < 4:
                        for x in rd(RING2 + 4 * i, p2[i][1], p2[i][2]):
                            a(x)
                if s == 0 and j < 39:
                    for x in swaps(j + 1):
                        a(x)
                if s == 1 and 22 <= j < 32:
                    a(wtail.pop(0))
                if s == 2 and j >= 24:
                    for x in wd.pop(0):
                        a(x)
            if j == 21:
                a('s_barrier')
            if j & 7 == 7:
                for r in range(32 * (j >> 3), 32 * (j >> 3) + 32):
                    a(f'v_dot2c_f32_bf16 v{vS + (r & 1)}, s{sOne}, v{r}')
                    a(f'v_dot2c_f32_bf16 v{vS + 2 + (r & 1)}, v{r}, v{r}')
        self.stamp(9)
        C0, C1, R = vS, vS + 1, vS + 2
        c0 = -2.0 * 0.7978845608028654 * 1.4426950408889634
        st = [
            f'v_add_f32 v{vS}, v{vS}, v{vS + 1}',
            f'v_add_f32 v{vS + 2}, v{vS + 2}, v{vS + 3}',
            f'v_mov_b32 v{vS + 1}, v{vS}',
            f'v_mov_b32 v{vS + 3}, v{vS + 2}',
            f'v_cmp_gt_u32 vcc, 32, v255',
            f'v_permlane32_swap_b32 v{vS}, v{vS + 1}',
            f'v_permlane32_swap_b32 v{vS + 2}, v{vS + 3}',
            f'v_add_f32 v{vS}, v{vS}, v{vS + 1}',
            f'v_add_f32 v{vS + 2}, v{vS + 2}, v{vS + 3}',
            f'v_mul_f32 v{vS}, {f32(-1 / 640)}, v{vS}',
            f'v_mul_f32 v{vS + 2}, {f32(1 / 640)}, v{vS + 2}',
            f'v_cvt_pk_bf16_f32 v{t}, v{vS}, v{vS}',
            f'v_fma_f32 v{R}, -v{vS}, v{vS}, v{R}',
            f'v_lshlrev_b32 v{t}, 16, v{t}',
            f'v_max_f32 v{R}, 0, v{R}',
            f'v_sub_f32 v{t2}, v{vS}, v{t}',
            f'v_add_f32 v{R}, {f32(1e-5)}, v{R}',
            f'v_cvt_pk_bf16_f32 v{t}, v{t}, v{t2}',
            f'v_rsq_f32 v{vS + 3}, v{R}',
            f'v_cndmask_b32 v{BP + 2}, 0, v{t}, vcc',
            f'v_cndmask_b32 v{BP + 3}, 0, v{t}, vcc',
            f'v_mul_f32 v{C0}, {f32(c0)}, v{vS + 3}',
            f'v_mul_f32 v{t}, v{vS + 3}, v{vS + 3}',
            f'v_mul_f32 v{t}, {f32(0.044715)}, v{t}',
            f'v_mul_f32 v{C1}, v{t}, v{C0}',
        ]

        def csm(tile, slot, first):
            src = vr(CS45, 4) if tile >= 4 else ar(CS01 + 4 * (tile >> 1), 4)
            b = vr(BP, 4) if tile & 1 else vr(BP + 2, 4)
            return f'v_mfma_f32_32x32x16_bf16 {acc(slot)}, {src}, {b}, {"0" if first else acc(slot)}'

        def epi(tile, slot):
            b = ACC + 16 * slot
            tm = [TM, TM + 1, t, t2]
            ops = []
            for h in range(2):
                g, u = b + 8 * h, b + 8 * h + 4
                ops += [(1, f'v_mul_f32 v{tm[i]}, v{g + i}, v{g + i}') for i in range(4)]
                ops += [(1, f'v_fma_f32 v{tm[i]}, v{tm[i]}, v{C1}, v{C0}') for i in range(4)]
                ops += [(1, f'v_mul_f32 v{tm[i]}, v{tm[i]}, v{g + i}') for i in range(4)]
                for i in range(4):
                    ops += [(2, f'v_exp_f32 v{tm[i]}, v{tm[i]}'), (1, f'v_mul_f32 v{u + i}, v{u + i}, v{g + i}')]
                ops += [(1, f'v_fma_f32 v{tm[i]}, v{tm[i]}, v{R}, v{R}') for i in range(4)]
                ops += [(2, f'v_rcp_f32 v{tm[i]}, v{tm[i]}') for i in range(4)]
                ops += [(1, f'v_mul_f32 v{u + i}, v{u + i}, v{tm[i]}') for i in range(4)]
                ops += [(1, f'v_cvt_pk_bf16_f32 v{b + 2 * h + i}, v{u + 2 * i}, v{u + 2 * i + 1}') for i in range(2)]
            so = sA if tile < 4 else sB
            ops.append((1, f'buffer_store_dwordx4 {vr(b, 4)}, v{vAS}, {sr(S_WS, 4)}, s{so} offen offset:{(tile & 3) * 1024} sc1'))
            return ops
        slot_of = {0: 0, 1: 1, 2: 2, 3: 3, 4: 0, 5: 1}
        eq = []
        budget = 0.0
        RATE = o.get('epi_rate', 3.75)
        nwd_loop = len(wd) - o['wd_tail']
        wd_done = 0
        for i, (tile, ls, j) in enumerate(p2):
            slot = slot_of[tile]
            if j == 0 and tile > 3:
                a(csm(tile, slot, True))
            if i & 1 == 0:
                a.need(ar(RING2 + 4 * (i & 3), 8))
            c = '0' if i == 0 else acc(slot)
            a(f'v_mfma_f32_32x32x16_bf16 {acc(slot)}, {ar(RING2 + 4 * (i & 3), 4)}, {vr(4 * j, 4)}, {c}')
            if i == 31:
                assert not wtail
                a('s_waitcnt lgkmcnt(0)')
                a('s_barrier')
            if i + 4 < len(p2):
                for x in rd(RING2 + 4 * (i & 3), p2[i + 4][1], p2[i + 4][2]):
                    a(x)
            if i == 1:
                a('s_barrier')
            if 2 <= i < 22 and i & 1 == 0:
                a(wtail.pop(0))
            if i < 7:
                for _ in range(4):
                    if st:
                        a(st.pop(0))
            if i == 7:
                assert not st
                for tl in range(4):
                    a(csm(tl, tl, False))
                eq += epi(0, 0) + epi(1, 1) + epi(2, 2)
            if i == 42:
                eq += epi(3, 3)
            if i == 82:
                eq += epi(4, 0)
            if i >= 8:
                budget += RATE
                while eq and budget >= eq[0][0]:
                    cst, x = eq.pop(0)
                    budget -= cst
                    a(x)
                if not eq:
                    budget = 0
                if i == 39:
                    assert len(eq) <= 2 * 69, len(eq)
                if i == 79:
                    assert len(eq) <= 2 * 69, len(eq)
            want = ((i + 1) * nwd_loop) // len(p2)
            while wd_done < want:
                for x in wd.pop(0):
                    a(x)
                wd_done += 1
        for cst, x in eq:
            a(x)
        for cst, x in epi(5, 1):
            a(x)
        self.stamp(10)
        while wd:
            for x in wd.pop(0):
                a(x)

    def gemm2(self):
        a = self.a
        L = 255
        t, t2 = self.vTmp, self.vTmp2
        vA2 = 240
        vRes, vRes2, vOut, vOut2 = 244, 245, 246, 247
        vRW, vRR = 251, 254
        RES = 240
        a(f's_and_b32 s{sT0}, s{sX}, 1')
        a(f's_lshl_b32 s{sT0}, s{sT0}, 1')
        a(f's_lshl_b32 s{sT1}, s{sRB}, 2')
        a(f's_add_u32 s{sT0}, s{sT0}, s{sT1}')
        a(f'v_and_b32 v{t}, 15, v{L}')
        a(f'v_lshrrev_b32 v{t2}, 4, v{L}')
        a(f's_lshr_b32 s{sT1}, s{S_W}, 1')
        a(f's_add_u32 s{sT1}, s{sT1}, s{sT0}')
        a(f's_lshl_b32 s{sT2}, s{sT1}, 8')
        a(f's_and_b32 s{sT3}, s{S_W}, 1')
        a(f's_lshl_b32 s{sT4}, s{sT3}, 3')
        a(f's_add_u32 s{sT2}, s{sT2}, s{sT4}')
        a(f's_and_b32 s{sT4}, s{sJ}, 7')
        a(f's_mul_i32 s{sT5}, s{sT4}, {20 * QS}')
        a(f's_add_u32 s{sT2}, s{sT2}, s{sT5}')
        a(f'v_lshl_add_u32 v{vRes2}, v{t}, 4, s{sT2}')
        a(f's_mov_b32 s{sT5}, {2 * QS}')
        a(f'v_mad_u32_u24 v{vRes}, v{t2}, s{sT5}, v{vRes2}')
        a(f's_mov_b32 s{sT5}, {QS}')
        a(f'v_mad_u32_u24 v{vRes2}, v{t2}, s{sT5}, v{vRes2}')
        for nt in range(5):
            q = 8 * (nt >> 1) + (nt & 1)
            a(f's_mov_b32 s{sT5}, {HP4 + q * QS}')
            a(f'buffer_load_dwordx2 {ar(RES + 2 * nt, 2)}, v{vRes2 if nt == 4 else vRes}, {sr(S_WS, 4)}, s{sT5} offen sc1')
        a(f's_lshr_b32 s{sT5}, s{sRB}, 1')
        a(f's_lshl_b32 s{sT5}, s{sT5}, 8')
        a(f's_and_b32 s{sT6}, s{sT1}, 3')
        a(f's_lshl_b32 s{sT6}, s{sT6}, 2')
        a(f's_add_u32 s{sT5}, s{sT5}, s{sT6}')
        a(f's_and_b32 s{sT6}, s{sRB}, 1')
        a(f's_lshl_b32 s{sT6}, s{sT6}, 1')
        a(f's_add_u32 s{sT5}, s{sT5}, s{sT6}')
        a(f's_add_u32 s{sT5}, s{sT5}, s{sT3}')
        a(f's_mul_i32 s{sT5}, s{sT5}, 1280')
        a(f's_mul_i32 s{sT6}, s{sT4}, 160')
        a(f's_add_u32 s{sT5}, s{sT5}, s{sT6}')
        a(f's_movk_i32 s{sT6}, {16 * 1280}')
        a(f'v_mov_b32 v{vOut2}, s{sT5}')
        a(f'v_mad_u32_u24 v{vOut2}, v{t}, s{sT6}, v{vOut2}')
        a(f'v_lshl_add_u32 v{vOut}, v{t2}, 4, v{vOut2}')
        a(f'v_lshl_add_u32 v{vOut2}, v{t2}, 3, v{vOut2}')
        a(f'v_lshlrev_b32 v{t}, 4, v{t}')
        a(f'v_lshl_add_u32 v{t}, v{t2}, 9, v{t}')
        for lam in range(4):
            a(f's_xor_b32 s{sT2}, s{S_W}, {lam}')
            if lam:
                a(f's_mul_i32 s{sT3}, s{sT2}, {15 * 1024}')
                a(f's_add_u32 s{sT3}, s{sT3}, {(lam - 1) * 5120}')
                a(f'v_lshl_add_u32 v{vRW + lam - 1}, v{L}, 4, s{sT3}')
            else:
                a(f's_mul_i32 s{sT3}, s{sT2}, {15 * 1024}')
                a(f'v_lshl_add_u32 v{vRR}, v{L}, 4, s{sT3}')
            a(f's_lshr_b32 s{sT3}, s{sT2}, 1')
            a(f's_add_u32 s{sT3}, s{sT3}, s{sT0}')
            a(f's_mul_i32 s{sT3}, s{sT3}, 98304')
            a(f's_and_b32 s{sT2}, s{sT2}, 1')
            a(f's_lshl_b32 s{sT2}, s{sT2}, 8')
            a(f's_add_u32 s{sT3}, s{sT3}, s{sT2}')
            a(f'v_add_u32 v{vA2 + lam}, s{sT3}, v{t}')
        a(f's_mul_i32 s{sT1}, s{S_W}, {12 * 2048}')
        a(f's_add_u32 s{sT1}, s{sT1}, {ACT}')
        a(f's_lshl_b32 s{sT0}, s{sRB}, 8')
        a(f's_add_u32 s{sT0}, s{sT0}, {C_F3 * 256}')
        self.drain()
        a('s_barrier')
        with self.wave0():
            a(f'buffer_atomic_add v{self.vOne}, off, {sr(S_WS, 4)}, s{sT0} sc1')
            self.spin(S_WS, f's{sT0}', 16, t)
        a('s_barrier')
        self.stamp(11)
        AF = 80

        def ld(kk, lam):
            i = (4 * kk + lam) % 40
            r = [f'buffer_load_dwordx4 {vr(AF + 4 * i, 4)}, v{vA2 + lam}, {sr(S_WS, 4)}, s{sT1} offen offset:{(kk & 1) * 2048} sc1']
            if lam == 3 and kk & 1 and kk < 11:
                r.append(f's_add_u32 s{sT1}, s{sT1}, 4096')
            return r
        for kk in range(10):
            for lam in range(4):
                for x in ld(kk, lam):
                    a(x)
        for kk in range(12):
            for lam in range(4):
                i = (4 * kk + lam) % 40
                for nt in range(5):
                    c = vr(4 * (5 * lam + nt), 4)
                    a(f'v_mfma_f32_16x16x32_bf16 {c}, {ar(4 * (5 * kk + nt), 4)}, {vr(AF + 4 * i, 4)}, {"0" if kk == 0 else c}')
                if kk < 2:
                    for x in ld(kk + 10, lam):
                        a(x)
        RR = 200
        for i in range(10):
            a(f'v_accvgpr_read_b32 v{RR + i}, a{RES + i}')
        for lam in range(1, 4):
            for nt in range(5):
                a(f'ds_write_b128 v{vRW + lam - 1}, {vr(4 * (5 * lam + nt), 4)} offset:{1024 * nt}')
        a(f's_mov_b32 s{sT2}, 0xffff0000')
        for i in range(10):
            a(f'v_lshlrev_b32 v{t}, 16, v{RR + i}')
            a(f'v_and_b32 v{t2}, s{sT2}, v{RR + i}')
            a(f'v_add_f32 v{2 * i}, v{2 * i}, v{t}')
            a(f'v_add_f32 v{2 * i + 1}, v{2 * i + 1}, v{t2}')
        a('s_waitcnt lgkmcnt(0)')
        a('s_barrier')
        for nt in range(5):
            for s in range(3):
                a(f'ds_read_b128 {vr(AF + 12 * nt + 4 * s, 4)}, v{vRR} offset:{5120 * s + 1024 * nt}')
        for nt in range(5):
            b = AF + 12 * nt
            for p in range(2):
                a(f'v_pk_add_f32 {vr(4 * nt + 2 * p, 2)}, {vr(4 * nt + 2 * p, 2)}, {vr(b + 2 * p, 2)}')
                a(f'v_pk_add_f32 {vr(b + 4 + 2 * p, 2)}, {vr(b + 4 + 2 * p, 2)}, {vr(b + 8 + 2 * p, 2)}')
            for p in range(2):
                a(f'v_pk_add_f32 {vr(4 * nt + 2 * p, 2)}, {vr(4 * nt + 2 * p, 2)}, {vr(b + 4 + 2 * p, 2)}')
            for p in range(2):
                a(f'v_cvt_pk_bf16_f32 v{RR + 2 * nt + p}, v{4 * nt + 2 * p}, v{4 * nt + 2 * p + 1}')
            if nt & 1:
                a(f'buffer_store_dwordx4 {vr(RR + 2 * nt - 2, 4)}, v{vOut}, {sr(S_OUT, 4)}, 0 offen offset:{64 * (nt >> 1)}')
            if nt == 4:
                a(f'buffer_store_dwordx2 {vr(RR + 8, 2)}, v{vOut2}, {sr(S_OUT, 4)}, 0 offen offset:128')
        if self.diag:
            a('s_waitcnt vmcnt(0)')
            self.stamp(12)
            a('s_waitcnt lgkmcnt(0)')
            with self.wave0():
                a(f's_lshl_b32 s{sT0}, s2, 7')
                a(f's_add_u32 s{sT0}, s{sT0}, {STAMP}')
                for i in range(NSTAMP):
                    a(f'v_mov_b32 v0, s{S_STAMP + 2 * i}')
                    a(f'buffer_store_dword v0, off, {sr(S_WS, 4)}, s{sT0} offset:{4 * i}')
        a('.Lend:')
        a('s_endpgm')

    def build(self):
        a = self.a
        if self.diag:
            for i in range(2 * NSTAMP):
                a(f's_mov_b32 s{S_STAMP + i}, 0')
        self.prologue()
        self.conv()
        self.gemm1()
        self.gemm2()
        self.side()
        a('.Lcode_end:')
        a('s_endpgm')
        body = a.finish(verbose=True)
        ref = open('cdna_kernels/' + NAME + '.s.ref').read().split('\n')
        head = [l for l in ref if l.startswith(';') and '@launch' not in l and 'Override' not in l and 'grid=ceil' not in l]
        txt = '\n'.join(head) + '\n'
        txt += '; Generated by my generator script (one persistent launch; see comments there).\n'
        txt += '; @launch grid=(256,1,1) block=(256,1,1) lds=163840\n'
        txt += f'''.amdgcn_target "amdgcn-amd-amdhsa--gfx950"
.text
.globl {NAME}_kernel
.p2align 8
.type {NAME}_kernel,@function
{NAME}_kernel:
{body}.section .rodata,"a"
.p2align 6
.amdhsa_kernel {NAME}_kernel
  .amdhsa_next_free_vgpr 512
  .amdhsa_next_free_sgpr 102
  .amdhsa_accum_offset 256
  .amdhsa_group_segment_fixed_size 0
  .amdhsa_kernarg_size 104
  .amdhsa_user_sgpr_count 2
  .amdhsa_user_sgpr_kernarg_segment_ptr 1
  .amdhsa_system_sgpr_workgroup_id_x 1
  .amdhsa_float_denorm_mode_32 3
.end_amdhsa_kernel
'''
        return txt


if __name__ == '__main__':
    out = sys.argv[1]
    diag = 'diag' in sys.argv[2:]
    opt = {}
    for x in sys.argv[2:]:
        if '=' in x:
            k, v = x.split('=')
            try:
                v = int(v)
            except ValueError:
                try:
                    v = float(v)
                except ValueError:
                    pass
            opt[k] = v
    open(out, 'w').write(Gen(diag, opt).build())
```

```python
import re
import subprocess

REG_RE = re.compile(r'^(-|\|)?([vas])(\d+|\[(\d+):(\d+)\])\|?$')


def regs_of(tok):
    tok = tok.strip()
    if tok.startswith('abs(') or tok.startswith('-abs('):
        tok = tok[tok.index('(') + 1:-1]
    if tok == 'vcc':
        return [('s', 106), ('s', 107)]
    if tok == 'exec':
        return [('s', 126), ('s', 127)]
    if tok == 'm0':
        return [('s', 124)]
    m = REG_RE.match(tok)
    if not m:
        return []
    f = m.group(2)
    if m.group(4) is not None:
        return [(f, i) for i in range(int(m.group(4)), int(m.group(5)) + 1)]
    return [(f, int(m.group(3)))]


TRANS = ('v_exp_f32', 'v_log_f32', 'v_rcp_f32', 'v_rsq_f32', 'v_sqrt_f32', 'v_sin_f32', 'v_cos_f32')


class Ins:
    def __init__(self, text, untracked=False):
        self.text = text
        self.untracked = untracked
        t = text.split(';')[0].strip()
        self.is_label = t.endswith(':')
        self.is_dir = t.startswith('.') and not self.is_label
        self.op = ''
        self.defs = []
        self.uses = []
        self.kind = 'other'
        self.mods = ''
        if self.is_label or self.is_dir or not t:
            self.kind = 'none'
            return
        parts = t.split(None, 1)
        op = self.op = parts[0]
        rest = parts[1] if len(parts) > 1 else ''
        ops = []
        cur = ''
        depth = 0
        for ch in rest:
            if ch == '[':
                depth += 1
            if ch == ']':
                depth -= 1
            if ch == ',' and depth == 0:
                ops.append(cur.strip())
                cur = ''
            else:
                cur += ch
        if cur.strip():
            ops.append(cur.strip())
        if ops:
            last = ops[-1].split(None, 1)
            ops[-1] = last[0]
            self.mods = last[1] if len(last) > 1 else ''
        self.ops = ops
        R = [regs_of(o) for o in ops]
        allr = [r for x in R for r in x]
        rest1 = [r for x in R[1:] for r in x]
        self.srcA = self.srcB = self.srcC = []
        self.data = []
        if op.startswith('buffer_load') or op.startswith('global_load'):
            self.kind = 'vmem'
            if re.search(r'\blds\b', self.mods) or '_lds_' in op:
                self.uses = allr + [('s', 124)]
            else:
                self.defs = R[0]
                self.uses = rest1
        elif op.startswith('buffer_store') or op.startswith('global_store'):
            self.kind = 'vmem'
            self.uses = allr
            self.data = R[0] if op.startswith('buffer') else R[1]
        elif op.startswith('buffer_atomic'):
            self.kind = 'vmem'
            self.uses = allr
            if re.search(r'\bsc0\b', self.mods):
                self.defs = R[0]
        elif op.startswith('buffer_inv') or op.startswith('buffer_wbl2'):
            self.kind = 'vmem'
        elif op.startswith('ds_read') or op.startswith('ds_bpermute') or op.startswith('ds_swizzle'):
            self.kind = 'ds'
            self.defs = R[0]
            self.uses = rest1
        elif op.startswith('ds_'):
            self.kind = 'ds'
            self.uses = allr
        elif op.startswith('v_mfma'):
            self.kind = 'mfma'
            self.defs = R[0]
            self.uses = rest1
            self.srcA, self.srcB, self.srcC = R[1], R[2], R[3]
            self.passes = 8 if '32x32' in op else 4
        elif op.startswith('v_'):
            self.kind = 'valu'
            base = re.sub(r'_(e32|e64|dpp|sdwa)$', '', op)
            self.base = base
            self.defs = R[0]
            self.uses = rest1
            if base.startswith('v_fmac') or base.startswith('v_dot2c') or base.startswith('v_pk_fmac') \
                    or op.endswith('_dpp') or op.endswith('_sdwa') or base == 'v_writelane_b32':
                self.uses = allr
            if 'swap' in base:
                self.defs = allr
                self.uses = allr
            if base.startswith('v_cmpx'):
                self.defs = R[0] + [('s', 126), ('s', 127)]
        elif op.startswith('s_load') or op.startswith('s_buffer_load') or op in ('s_memtime', 's_memrealtime'):
            self.kind = 'smem'
            self.defs = R[0]
            self.uses = rest1
        elif op.startswith('s_'):
            self.kind = 'salu'
            nodef = ('s_cmp', 's_waitcnt', 's_barrier', 's_branch', 's_cbranch', 's_nop', 's_setprio', 's_sleep',
                     's_endpgm', 's_bitcmp', 's_setpc')
            if any(op.startswith(x) for x in nodef):
                self.uses = allr
            else:
                self.defs = R[0]
                self.uses = rest1
                if 'saveexec' in op:
                    self.defs = R[0] + [('s', 126), ('s', 127)]
                if op.startswith('s_addk') or op.startswith('s_mulk') or op.startswith('s_cmov'):
                    self.uses = allr


def states_of(ins):
    if ins.kind == 'none':
        return 0
    if ins.op == 's_nop':
        return int(ins.ops[0]) + 1
    return 1


def overlap(a, b):
    if not a or not b:
        return False
    return not set(a).isdisjoint(b)


def need_states(p, c):
    n = 0
    pk, ck = p.kind, c.kind
    vdefs = [r for r in p.defs if r[0] != 's']
    sdefs = [r for r in p.defs if r[0] == 's']
    if pk == 'valu':
        isdot = p.base.startswith('v_dot')
        if ck == 'mfma' and overlap(vdefs, c.uses):
            n = max(n, 3 if isdot else 2)
        if ck == 'valu':
            if 'permlane' in c.base and overlap(vdefs, c.uses):
                n = max(n, 2)
            if c.op.endswith('_dpp') and overlap(vdefs, c.uses):
                n = max(n, 2)
            if c.base in ('v_readlane_b32', 'v_readfirstlane_b32') and overlap(vdefs, c.uses):
                n = max(n, 1)
            if p.base in TRANS and overlap(vdefs, c.uses):
                n = max(n, 1)
            if sdefs and overlap(sdefs, c.uses):
                n = max(n, 4 if c.base in ('v_readlane_b32', 'v_writelane_b32') else 2)
            if sdefs and ('s', 106) in sdefs and c.base == 'v_cndmask_b32':
                n = max(n, 2)
            if 'op_sel' in p.mods and overlap(vdefs, c.uses + c.defs):
                n = max(n, 1)
            if ('s', 126) in sdefs:
                n = max(n, 5)
        if isdot and overlap(vdefs, c.uses + c.defs):
            same = ck == 'valu' and c.base == p.base
            if same:
                srcab = [r for o in c.ops[1:3] for r in regs_of(o)]
                if overlap(vdefs, srcab):
                    n = max(n, 3)
            else:
                n = max(n, 3)
        if ck == 'vmem' and sdefs and overlap(sdefs, c.uses):
            n = max(n, 5)
        if ck in ('salu', 'smem') and sdefs and overlap(sdefs, c.uses):
            n = max(n, 2)
        if ck == 'mfma' and ('s', 126) in sdefs:
            n = max(n, 4)
    if pk == 'mfma':
        ps = p.passes
        if ck == 'mfma':
            if overlap(p.defs, c.srcA + c.srcB):
                n = max(n, ps + 4)
            if overlap(p.defs, c.srcC):
                if not (p.defs == c.srcC and p.passes == c.passes):
                    n = max(n, ps + 2)
            elif overlap(p.defs, c.defs):
                n = max(n, ps + 4)
        elif ck in ('valu', 'vmem', 'ds'):
            if overlap(p.defs, c.uses + c.defs):
                n = max(n, ps + 4)
            if overlap(p.srcC, c.defs):
                n = max(n, ps - 1)
    if pk == 'vmem' and len(p.data) >= 3:
        if overlap(p.data, c.defs):
            n = max(n, 2)
    if pk == 'salu' and ('s', 124) in p.defs and ck in ('vmem', 'ds') and ('s', 124) in c.uses:
        n = max(n, 1)
    return n


class Asm:
    def __init__(self):
        self.items = []
        self._untracked = 0
        self.nlabel = 0

    def __call__(self, text):
        for line in text.split('\n'):
            line = line.strip()
            if line:
                self.items.append(Ins(line, self._untracked > 0))

    def label(self, stem='L'):
        self.nlabel += 1
        return f'.L{stem}_{self.nlabel}'

    def mark(self, what, name=None):
        i = Ins('')
        i.kind = 'mark'
        i.what = what
        i.name = name
        self.items.append(i)

    def need(self, *toks):
        i = Ins('')
        i.kind = 'need'
        i.uses = [r for t in toks for r in regs_of(t)]
        self.items.append(i)

    def drain_stores(self):
        i = Ins('')
        i.kind = 'need'
        i.uses = [('store', 0)]
        self.items.append(i)

    def snapshot(self, name):
        self.mark('snap', name)

    def fresh(self, name=None):
        self.mark('fresh', name)

    class _U:
        def __init__(self, a):
            self.a = a

        def __enter__(self):
            self.a._untracked += 1

        def __exit__(self, *x):
            self.a._untracked -= 1

    def untracked(self):
        return Asm._U(self)

    def finish(self, verbose=False, align=True):
        out = []
        vm = []
        lg = []
        sm = set()
        snaps = {}
        hist = []
        stats = {'nop': 0, 'wait': 0}

        def emit(i):
            out.append(i)
            if i.kind not in ('none', 'mark'):
                hist.append(i)
                if len(hist) > 24:
                    hist.pop(0)

        for ins in self.items:
            if ins.kind == 'mark':
                if ins.what == 'snap':
                    snaps[ins.name] = (list(vm), list(lg), set(sm))
                elif ins.what == 'fresh':
                    if ins.name:
                        a, b, c = snaps[ins.name]
                        vm, lg, sm = list(a), list(b), set(c)
                    else:
                        vm, lg, sm = [], [], set()
                continue
            if ins.kind == 'none':
                emit(ins)
                continue
            touched = set(ins.uses) | set(ins.defs)
            if ins.op == 's_waitcnt':
                if not ins.untracked:
                    m = re.search(r'vmcnt\((\d+)\)', ins.text)
                    if m:
                        n = int(m.group(1))
                        if len(vm) > n:
                            vm = vm[len(vm) - n:] if n else []
                    m = re.search(r'lgkmcnt\((\d+)\)', ins.text)
                    if m:
                        n = int(m.group(1))
                        if n == 0:
                            sm = set()
                            lg = []
                        elif len(lg) > n:
                            lg = lg[len(lg) - n:]
                emit(ins)
                continue
            wv = wl = None
            for idx in range(len(vm) - 1, -1, -1):
                if vm[idx] & touched:
                    wv = len(vm) - 1 - idx
                    break
            for idx in range(len(lg) - 1, -1, -1):
                if lg[idx] & touched:
                    wl = len(lg) - 1 - idx
                    break
            if sm & touched:
                wl = 0
            if ins.untracked and (wv is not None or wl is not None):
                raise RuntimeError('untracked instruction touches pending register: ' + ins.text)
            if wv is not None or wl is not None:
                s = 's_waitcnt'
                if wv is not None:
                    wv = min(wv, 63)
                    s += f' vmcnt({wv})'
                    vm = vm[len(vm) - wv:] if wv else []
                if wl is not None:
                    wl = min(wl, 15)
                    s += f' lgkmcnt({wl})'
                    lg = lg[len(lg) - wl:] if wl else []
                    if wl == 0:
                        sm = set()
                emit(Ins(s))
                stats['wait'] += 1
            if ins.kind == 'need':
                continue
            need = 0
            dist = 0
            for p in reversed(hist):
                n = need_states(p, ins)
                if n > dist:
                    need = max(need, n - dist)
                dist += states_of(p)
                if dist >= 20:
                    break
            while need > 0:
                k = min(need, 16)
                emit(Ins(f's_nop {k - 1}'))
                stats['nop'] += 1
                need -= k
            emit(ins)
            if not ins.untracked:
                if ins.kind == 'vmem':
                    d = set(ins.defs)
                    if 'store' in ins.op:
                        d.add(('store', 0))
                    vm.append(d)
                elif ins.kind == 'ds':
                    lg.append(set(ins.defs))
                elif ins.kind == 'smem':
                    sm |= set(ins.defs)
        if verbose:
            print('auto waits', stats['wait'], 'auto nops', stats['nop'], 'instructions',
                  sum(1 for i in out if i.kind not in ('none', 'mark')))
        out = [i for i in out if i.kind != 'mark']
        if align:
            out = align8(out, verbose)
        lines = []
        for i in out:
            lines.append(i.text if i.is_label else '    ' + i.text)
        return '\n'.join(lines) + '\n'


def sizes_of(out):
    txt = '\n'.join(i.text for i in out) + '\n'
    r = subprocess.run(['llvm-mc', '-triple=amdgcn-amd-amdhsa', '-mcpu=gfx950', '-show-encoding'],
                       input=txt, capture_output=True, text=True)
    assert r.returncode == 0, r.stderr[:2000]
    sz = [l.split('encoding: [')[1].count(',') + 1 for l in r.stdout.split('\n') if 'encoding: [' in l]
    real = [i for i in out if i.kind != 'none']
    assert len(sz) == len(real), (len(sz), len(real))
    for i, n in zip(real, sz):
        i.size = n


def align8(out, verbose, c_mis=1.35, c_nop=4.0, c_pro=0.05):
    sizes_of(out)
    real = [i for i in out if i.kind != 'none']
    INF = 1e18
    cost = [0.0, INF]
    back = []
    for i in real:
        nc = [INF, INF]
        nb = [None, None]
        prom = i.size == 4 and i.kind == 'valu' and not i.op.startswith('v_readfirstlane') \
            and not i.op.endswith('_e32') and not i.op.startswith('v_accvgpr') and i.op != 'v_nop'
        for p in range(2):
            if cost[p] >= INF:
                continue
            for nop in (0, 1):
                q = p ^ nop
                for pr in ((0, 1) if prom else (0,)):
                    sz = 8 if pr else i.size
                    c = cost[p] + nop * c_nop + pr * c_pro + (c_mis if sz >= 8 and q else 0)
                    e = q ^ ((sz >> 2) & 1)
                    if c < nc[e]:
                        nc[e] = c
                        nb[e] = (p, nop, pr)
        back.append(nb)
        cost = nc
    p = 0 if cost[0] <= cost[1] else 1
    dec = []
    for nb in reversed(back):
        pp, nop, pr = nb[p]
        dec.append((nop, pr))
        p = pp
    dec.reverse()
    res = []
    k = 0
    n1 = n2 = 0
    for i in out:
        if i.kind == 'none':
            res.append(i)
            continue
        nop, pr = dec[k]
        k += 1
        if nop:
            res.append(Ins('s_nop 0'))
            n1 += 1
        if pr:
            i.text = i.text.replace(i.op, i.op + '_e64', 1)
            n2 += 1
        res.append(i)
    if verbose:
        print('align: nops', n1, 'widened', n2, 'cost', min(cost))
    return res


def vr(base, n=1, f='v'):
    return f'{f}{base}' if n == 1 else f'{f}[{base}:{base + n - 1}]'


def ar(base, n=1):
    return vr(base, n, 'a')


def sr(base, n=1):
    return vr(base, n, 's')
```

```python
import struct
import sys
from asmlib import Asm, vr, ar, sr

NAME = 'sequential_preLN__ssm_conv_h3__geglu_ffn__prompt'

QS = 16384
CNT = 0
ST1 = 16384
CSF = 32768
STAMP = 65536
KVX = 131072
XP4 = KVX + 160 * QS
HP4 = XP4 + 160 * QS
WDF = HP4 + 160 * QS
ACT = WDF + 1966080
WS_END = ACT + 6291456
C_F1, C_FX, C_B1, C_B2, C_F3 = 0, 10, 16, 24, 32
SPIN = 200000

S_W = 3
S_K, S_V, S_SH, S_SK, S_X, S_WG, S_WU, S_WD, S_OUT, S_DBG, S_WS = 4, 8, 12, 16, 20, 24, 28, 32, 36, 40, 44
S_D = 48
sX, sJ, sG, sM, sQ, sRB, sCB, sA, sB = 50, 51, 52, 53, 54, 55, 56, 57, 58
sT0, sT1, sT2, sT3, sT4, sT5, sT6, sT7 = 60, 61, 62, 63, 64, 65, 66, 67
sWoff, sWoff2, sSpin, sDv = 68, 69, 70, 71
sOne = 72
S_STAMP = 76
NSTAMP = 13

GSTR = 4160
GW = 8 * GSTR
UBASE = 4 * GW
USTR = 4608
TILE = 40960


def f32(x):
    return '0x%08x' % struct.unpack('<I', struct.pack('<f', x))[0]


class Gen:
    def __init__(self, diag=False, opt=None):
        self.a = Asm()
        self.diag = diag
        self.opt = dict(w_kv=0, w_start=0, w_e1=0, ssm_late=0, flag2=0, tb_pre=2, s1_wait=0, wd_late=0, w45_where='hdrain', wd_tail=16, counted=1, a_ahead=12, act_ahead=16)
        if opt:
            self.opt.update(opt)

    def stamp(self, i):
        if self.diag:
            assert i < NSTAMP
            self.a(f'{"s_memtime" if self.opt.get("cyc") else "s_memrealtime"} {sr(S_STAMP + 2 * i, 2)}')

    def spin(self, srd, soff, target, vt, first_loaded=False, sleep=False):
        a = self.a
        top, done = a.label('spin'), a.label('done')
        chk = a.label('chk')
        with a.untracked():
            a(f's_mov_b32 s{sSpin}, {SPIN}')
            if first_loaded:
                a(f's_branch {chk}')
            a(f'{top}:')
            if sleep:
                a('s_sleep 4')
            a(f'buffer_load_dword v{vt}, off, {sr(srd, 4)}, {soff} sc1')
            a('s_waitcnt vmcnt(0)')
            a(f'{chk}:')
            a(f'v_readfirstlane_b32 s{sT7}, v{vt}')
            a(f's_sub_u32 s{sSpin}, s{sSpin}, 1')
            a(f's_cbranch_scc1 {done}')
            a(f's_cmp_lt_u32 s{sT7}, {target}')
            a(f's_cbranch_scc1 {top}')
            a(f'{done}:')

    def wave0(self):
        g = self

        class W:
            def __enter__(s):
                s.l = g.a.label('nw0')
                g.a(f's_cmp_lg_u32 s{S_W}, 0')
                g.a(f's_cbranch_scc1 {s.l}')
                s.u = g.a.untracked()
                s.u.__enter__()
                g.a('s_mov_b64 exec, 1')

            def __exit__(s, *x):
                g.a('s_mov_b64 exec, -1')
                s.u.__exit__()
                g.a(f'{s.l}:')
        return W()

    def drain(self):
        if self.opt['counted']:
            self.a.drain_stores()
        else:
            self.a('s_waitcnt vmcnt(0)')

    def prologue(self):
        a = self.a
        a('s_cmp_ge_u32 s2, 0x100')
        a('s_cbranch_scc1 .Lend')
        self.stamp(0)
        for srd, off in ((S_K, 8), (S_V, 16), (S_SH, 24), (S_SK, 32), (S_X, 0), (S_WG, 56), (S_WU, 64), (S_WD, 72),
                         (S_OUT, 80), (S_DBG, 88), (S_WS, 96), (S_D, 40)):
            a(f's_load_dwordx2 {sr(srd, 2)}, s[0:1], {off}')
        a(f's_getpc_b64 {sr(sT0, 2)}')
        a('.Lpc:')
        a('v_lshlrev_b32 v2, 7, v0')
        a('v_min_u32 v2, .Lcode_end-.Lpc-4, v2')
        a('v_mov_b32 v3, 0')
        a(f'v_lshl_add_u64 v[2:3], v[2:3], 0, {sr(sT0, 2)}')
        a('global_load_dword v255, v[2:3], off')
        a('v_lshrrev_b32 v1, 6, v0')
        a('v_and_b32 v0, 63, v0')
        a(f'v_readfirstlane_b32 s{S_W}, v1')
        for srd, n in ((S_K, 2621440), (S_V, 2621440), (S_SH, 5120), (S_SK, 4096), (S_X, 2621440), (S_WG, 1966080),
                       (S_WU, 1966080), (S_WD, 1966080), (S_OUT, 2621440), (S_DBG, 256), (S_WS, WS_END)):
            a(f's_mov_b32 s{srd + 2}, {n}')
            a(f's_mov_b32 s{srd + 3}, 0x20000')
        if self.opt.get('probe'):
            which = self.opt['probe']
            a(f's_load_dwordx2 {sr(sT0, 2)}, s[0:1], {48 if which == 1 else 96}')
            a(f's_mov_b32 s{sT2}, {2621440 if which == 1 else 0x8000000}')
            a(f's_mov_b32 s{sT3}, 0x20000')
            a(f's_mul_i32 s{sT4}, s2, 10240')
            if which == 2:
                a(f's_add_u32 s{sT4}, s{sT4}, 0x4000000')
            a('v_mov_b32 v2, 0')
            for i in range(16):
                a(f'buffer_load_dword v3, v2, {sr(sT0, 4)}, s{sT4} offen offset:{256 * i}')
                a('v_and_b32 v2, 0, v3')
        a(f's_and_b32 s{sX}, s2, 7')
        a(f's_lshr_b32 s{sJ}, s2, 3')
        a(f's_and_b32 s{sM}, s{sJ}, 15')
        a(f's_mov_b32 s{sG}, s{sX}')
        a(f's_cmp_lt_u32 s{sJ}, 16')
        a.snapshot('role')
        a('s_cbranch_scc1 .Lconv')
        a(f's_add_u32 s{sG}, s{sX}, 8')
        a(f's_cmp_lt_u32 s{sX}, 2')
        a('s_cbranch_scc0 .Lside')
        a('.Lconv:')

    def gemm_ids(self):
        a = self.a
        a(f's_lshr_b32 s{sRB}, s{sX}, 1')
        a(f's_lshl_b32 s{sRB}, s{sRB}, 2')
        a(f's_lshr_b32 s{sT0}, s{sJ}, 3')
        a(f's_add_u32 s{sRB}, s{sRB}, s{sT0}')
        a(f's_and_b32 s{sCB}, s{sX}, 1')
        a(f's_lshl_b32 s{sCB}, s{sCB}, 3')
        a(f's_and_b32 s{sT0}, s{sJ}, 7')
        a(f's_add_u32 s{sCB}, s{sCB}, s{sT0}')
        a(f's_and_b32 s{sT0}, s{sCB}, 1')
        a(f's_mul_i32 s{sA}, s{sCB}, 6')
        a(f's_add_u32 s{sB}, s{sA}, 4')
        a(f's_lshl_b32 s{sT1}, s{sT0}, 1')
        a(f's_add_u32 s{sA}, s{sA}, s{sT1}')
        a(f's_lshl_b32 s{sT1}, s{sT0}, 2')
        a(f's_sub_u32 s{sB}, s{sB}, s{sT1}')

    vWL, vWL2, vWW, vWW2, vTmp, vTmp2, vOne = 254, 253, 252, 251, 250, 249, 248

    def w_addr(self):
        a = self.a
        t, t2 = self.vTmp, self.vTmp2
        a(f's_movk_i32 s{sT2}, 3072')
        a(f's_mul_i32 s{sT0}, s{S_W}, {8 * 3072}')
        a(f's_lshl_b32 s{sT1}, s{sA}, 5')
        a(f's_add_u32 s{sT0}, s{sT0}, s{sT1}')
        a(f'v_lshrrev_b32 v{t}, 3, v0')
        a(f'v_and_b32 v{t2}, 7, v0')
        a(f'v_lshl_add_u32 v{t2}, v{t2}, 4, s{sT0}')
        a(f'v_mad_u32_u24 v{self.vWL}, v{t}, s{sT2}, v{t2}')
        a(f's_mul_i32 s{sT0}, s{S_W}, {16 * 3072}')
        a(f's_lshl_b32 s{sT1}, s{sB}, 5')
        a(f's_add_u32 s{sT0}, s{sT0}, s{sT1}')
        a(f'v_lshrrev_b32 v{t}, 2, v0')
        a(f'v_and_b32 v{t2}, 3, v0')
        a(f'v_lshl_add_u32 v{t2}, v{t2}, 4, s{sT0}')
        a(f'v_mad_u32_u24 v{self.vWL2}, v{t}, s{sT2}, v{t2}')
        a(f's_mov_b32 s{sWoff}, 0')
        a(f's_mov_b32 s{sWoff2}, 0')
        a(f'v_mov_b32 v{self.vOne}, 1')

    def w_loads_main(self):
        out = []
        for i in range(40):
            srd = S_WU if i & 1 else S_WG
            g = [f'buffer_load_dwordx4 {ar(4 * i, 4)}, v{self.vWL}, {sr(srd, 4)}, s{sWoff} offen']
            if i & 1 and i != 39:
                g.append(f's_add_u32 s{sWoff}, s{sWoff}, {32 * 3072}')
            out.append(g)
        return out

    def w_loads_tail(self):
        out = []
        for i in range(20):
            srd = S_WU if i & 1 else S_WG
            g = [f'buffer_load_dwordx4 {ar(160 + 4 * i, 4)}, v{self.vWL2}, {sr(srd, 4)}, s{sWoff2} offen']
            if i & 1 and i != 19:
                g.append(f's_add_u32 s{sWoff2}, s{sWoff2}, {64 * 3072}')
            out.append(g)
        return out

    def w_write_addr_main(self):
        a = self.a
        t, t2 = self.vTmp, self.vTmp2
        a(f's_lshl_b32 s{sT0}, s{S_W}, 9')
        a(f'v_lshrrev_b32 v{t}, 3, v0')
        a(f'v_lshl_add_u32 v{t}, v{t}, 6, s{sT0}')
        a(f'v_and_b32 v{t2}, 1, v0')
        a(f'v_lshl_add_u32 v{t}, v{t2}, 4, v{t}')
        a(f'v_bfe_u32 v{t2}, v0, 1, 2')
        a(f'v_lshlrev_b32 v{self.vWW}, 5, v{t2}')
        a(f'v_xor_b32 v{t}, v{t}, v{self.vWW}')
        a(f's_mov_b32 s{sT0}, {TILE}')
        a(f'v_mad_u32_u24 v{self.vWW}, v{t2}, s{sT0}, v{t}')
        a(f'v_xor_b32 v{self.vWW2}, 32, v{self.vWW}')

    def w_writes_main(self):
        return [f'ds_write_b128 v{self.vWW2 if i & 1 else self.vWW}, {ar(4 * i, 4)} offset:{(i >> 1) * 2048}'
                for i in range(40)]

    def w_write_addr_tail(self):
        a = self.a
        t, t2 = self.vTmp, self.vTmp2
        a(f's_lshl_b32 s{sT0}, s{S_W}, 10')
        a(f'v_lshrrev_b32 v{t}, 2, v0')
        a(f'v_lshl_add_u32 v{t}, v{t}, 6, s{sT0}')
        a(f'v_and_b32 v{t2}, 1, v0')
        a(f'v_lshl_add_u32 v{t}, v{t2}, 4, v{t}')
        a(f'v_bfe_u32 v{t2}, v0, 1, 1')
        a(f'v_lshlrev_b32 v{self.vWW}, 5, v{t2}')
        a(f'v_xor_b32 v{t}, v{t}, v{self.vWW}')
        a(f's_mov_b32 s{sT0}, {TILE}')
        a(f'v_mad_u32_u24 v{self.vWW}, v{t2}, s{sT0}, v{t}')
        a(f'v_xor_b32 v{self.vWW2}, 32, v{self.vWW}')

    def w_writes_tail(self):
        return [f'ds_write_b128 v{self.vWW2 if i & 1 else self.vWW}, {ar(160 + 4 * i, 4)} offset:{(i >> 1) * 4096}'
                for i in range(20)]

    def check_init(self, vflag):
        self.spin(S_DBG, '0', 1, vflag, first_loaded=True)

    def conv(self):
        a = self.a
        o = self.opt
        vK, vKh, vC, vR = 1, 2, 3, 4
        SH = 8
        KR = 16
        VR = 38
        SK = 56
        WF = 88
        KF = 104
        KV = 148
        VF = 180
        O = 188
        a(f's_lshl_b32 s{sQ}, s{sG}, 4')
        a(f's_add_u32 s{sQ}, s{sQ}, s{sM}')
        a(f'v_and_b32 v{vC}, 15, v0')
        a(f'v_lshrrev_b32 v{vR}, 4, v0')
        a(f's_lshl_b32 s{sT0}, s{sM}, 2')
        a(f's_add_u32 s{sT0}, s{sT0}, s{S_W}')
        a(f's_mul_i32 s{sT0}, s{sT0}, {32 * 1280}')
        a(f's_lshl_b32 s{sT1}, s{sG}, 7')
        a(f's_add_u32 s{sT0}, s{sT0}, s{sT1}')
        a(f's_movk_i32 s{sT2}, {8 * 1280}')
        a(f'v_lshl_add_u32 v{vK}, v{vC}, 3, s{sT0}')
        a(f'v_mad_u32_u24 v{vK}, v{vR}, s{sT2}, v{vK}')
        a(f'v_subrev_u32 v{vKh}, 3840, v{vK}')
        a(f's_lshl_b32 s{sT1}, s{sG}, 9')
        a(f'v_lshl_add_u32 v5, v{vC}, 5, s{sT1}')
        a(f's_movk_i32 s{sT3}, 5120')
        linit = a.label('noinit')
        a(f's_lshl_b32 s{sT4}, s2, 2')
        a(f's_add_u32 s{sT4}, s{sT4}, s{S_W}')
        a.need(sr(S_WS, 2))
        a(f's_cmp_lg_u32 s{sT4}, 3')
        a(f's_cbranch_scc1 {linit}')
        with a.untracked():
            a('v_lshlrev_b32 v6, 8, v0')
            a('v_mov_b32 v7, 0')
            a(f'buffer_store_dword v7, v6, {sr(S_WS, 4)}, 0 offen sc1')
        a(f'{linit}:')
        a(f'buffer_load_dwordx4 {vr(SH, 4)}, v5, {sr(S_SH, 4)}, 0 offen')
        a(f'buffer_load_dwordx4 {vr(SH + 4, 4)}, v5, {sr(S_SH, 4)}, 0 offen offset:16')
        for r in range(3):
            a(f'buffer_load_dwordx2 {vr(KR + 2 * r, 2)}, v{vKh}, {sr(S_K, 4)}, 0 offen offset:{r * 1280}')
        for r in range(8):
            so = f's{sT3}' if r >= 4 else '0'
            a(f'buffer_load_dwordx2 {vr(KR + 6 + 2 * r, 2)}, v{vK}, {sr(S_K, 4)}, {so} offen offset:{(r & 3) * 1280}')
            a(f'buffer_load_dwordx2 {vr(VR + 2 * r, 2)}, v{vK}, {sr(S_V, 4)}, {so} offen offset:{(r & 3) * 1280}')
        a(f's_lshl_b32 s{sT0}, s{sQ}, 2')
        a(f's_add_u32 s{sT0}, s{sT0}, s{S_W}')
        a(f's_lshl_b32 s{sT1}, s{sT0}, 12')
        a(f's_add_u32 s{S_SK}, s{S_SK}, s{sT1}')
        a(f's_addc_u32 s{S_SK + 1}, s{S_SK + 1}, 0')
        a(f's_lshl_b32 s{sT0}, s{sT0}, 1')
        a(f's_and_b32 s{sT0}, s{sT0}, -4')
        a(f's_load_dword s{sDv}, {sr(S_D, 2)}, s{sT0}')
        vL16 = 6
        a(f'v_lshlrev_b32 v{vL16}, 4, v0')
        a(f'v_subrev_u32 v219, 16, v{vL16}')

        def ssm_loads():
            for j in range(4):
                if j == 0:
                    a(f'buffer_load_dwordx4 {vr(SK, 4)}, v219, {sr(S_SK, 4)}, 0 offen')
                else:
                    a(f'buffer_load_dwordx4 {vr(SK + 8 * j, 4)}, v{vL16}, {sr(S_SK, 4)}, 0 offen offset:{1024 * j - 16}')
                a(f'buffer_load_dwordx4 {vr(SK + 8 * j + 4, 4)}, v{vL16}, {sr(S_SK, 4)}, 0 offen offset:{1024 * j}')
        if o['ssm_late'] == 0:
            ssm_loads()
        linit = a.label('noinit')
        a(f's_cmp_lg_u32 s{sT4}, 3')
        a(f's_cbranch_scc1 {linit}')
        with a.untracked():
            a(f's_waitcnt vmcnt({21 if o["ssm_late"] else 29})' if o['counted'] else 's_waitcnt vmcnt(0)')
            a('v_mov_b32 v7, 1')
            a('s_mov_b64 exec, 1')
            a(f'buffer_store_dword v7, off, {sr(S_DBG, 4)}, 0 sc1')
            a('s_mov_b64 exec, -1')
        a(f'{linit}:')
        self.gemm_ids()
        self.w_addr()
        wl = self.w_loads_main()

        def w_some(n):
            for _ in range(n):
                for x in wl.pop(0):
                    a(x)
        w_some(o['w_start'])
        vSW, vSR, vKS, vG, vUL, vUW = 204, 205, 206, 207, 208, 209
        a(f's_mul_i32 s{sT0}, s{S_W}, {USTR}')
        a(f's_add_u32 s{sT0}, s{sT0}, {UBASE}')
        a(f's_movk_i32 s{sT1}, 272')
        a(f'v_lshl_add_u32 v{vSW}, v{vR}, 4, s{sT0}')
        a(f'v_mad_u32_u24 v{vSW}, v{vC}, s{sT1}, v{vSW}')
        a(f'v_lshl_add_u32 v{vSR}, v{vC}, 4, s{sT0}')
        a(f'v_mad_u32_u24 v{vSR}, v{vR}, s{sT1}, v{vSR}')
        a(f'v_add_u32 v{vUW}, s{sT0}, v{vL16}')
        vBa, vAa = 210, 211
        a(f's_add_u32 s{sT0}, s{sT0}, 32')
        a(f'v_lshl_add_u32 v{vBa}, v{vC}, 5, s{sT0}')
        a(f'v_lshl_add_u32 v{vBa}, v{vR}, 4, v{vBa}')
        a(f's_mul_i32 s{sT0}, s{sG}, {16 * QS}')
        a(f's_lshl_b32 s{sT1}, s{sM}, 10')
        a(f's_add_u32 s{sT0}, s{sT0}, s{sT1}')
        a(f's_lshl_b32 s{sT1}, s{S_W}, 8')
        a(f's_add_u32 s{sT0}, s{sT0}, s{sT1}')
        a(f's_mov_b32 s{sT1}, {QS}')
        a(f'v_lshl_add_u32 v{vKS}, v{vC}, 4, s{sT0}')
        a(f'v_mad_u32_u24 v{vKS}, v{vR}, s{sT1}, v{vKS}')
        a(f's_mul_i32 s{sT5}, s{S_W}, {GW}')
        a(f'v_add_u32 v{vG}, s{sT5}, v{vL16}')
        a(f'v_bfe_u32 v{vAa}, v0, 3, 1')
        a(f'v_sub_u32 v{vAa}, v{vAa}, v{vR}')
        a(f's_add_u32 s{sT0}, s{sT5}, 48')
        a(f'v_lshl_add_u32 v{vAa}, v{vAa}, 4, s{sT0}')
        vI7 = 212
        a(f'v_and_b32 v{vI7}, 7, v0')
        a(f's_movk_i32 s{sT1}, {GSTR}')
        a(f'v_mad_u32_u24 v{vAa}, v{vI7}, s{sT1}, v{vAa}')
        vGZ = 213
        a(f'v_mov_b32 v{vGZ}, s{sT5}')
        a(f'v_mad_u32_u24 v{vGZ}, v{vI7}, s{sT1}, v{vGZ}')
        a(f's_mul_i32 s{sT6}, s{sQ}, {QS}')
        a(f's_lshl_b32 s{sT1}, s{S_W}, 6')
        a(f's_add_u32 s{sT0}, s{sT6}, s{sT1}')
        a(f'v_and_b32 v{vUL}, 3, v0')
        a(f'v_lshl_add_u32 v{vUL}, v{vUL}, 4, s{sT0}')
        a(f'v_lshrrev_b32 v5, 2, v0')
        a(f'v_lshl_add_u32 v{vUL}, v5, 8, v{vUL}')
        vXS, vHS = 214, 215
        a(f's_lshl_b32 s{sT0}, s{S_W}, 12')
        a(f'v_lshl_add_u32 v{vXS}, v{vC}, 7, s{sT0}')
        a(f'v_lshl_add_u32 v{vXS}, v{vR}, 5, v{vXS}')
        a(f's_add_u32 s{sT0}, s{sT0}, s{sT6}')
        a(f'v_add_u32 v{vHS}, s{sT0}, v{vL16}')
        vZR, vZR2 = 216, 217
        a(f's_lshl_b32 s{sT0}, s{S_W}, 11')
        a(f'v_add_u32 v{vZR}, s{sT0}, v{vL16}')
        a(f'v_add_u32 v{vZR2}, {2 * GW}, v{vZR}')
        ZERO = 220
        for i in range(4):
            a(f'v_mov_b32 v{ZERO + i}, 0')
        a(f's_mov_b32 s{sT2}, 0xffff0000')
        for ch in range(4):
            for j in range(4):
                src = SH + 2 * ch + (j >> 1)
                if j & 1:
                    a(f'v_and_b32 v{WF + 4 * j + ch}, s{sT2}, v{src}')
                else:
                    a(f'v_lshlrev_b32 v{WF + 4 * j + ch}, 16, v{src}')

        def unpack(dst, src):
            a(f'v_lshlrev_b32 v{dst}, 16, v{src}')
            a(f'v_and_b32 v{dst + 1}, s{sT2}, v{src}')
            a(f'v_lshlrev_b32 v{dst + 2}, 16, v{src + 1}')
            a(f'v_and_b32 v{dst + 3}, s{sT2}, v{src + 1}')
        for r in range(3):
            unpack(KF + 4 * r, KR + 2 * r)
        self.stamp(1)
        if o['ssm_late'] == 1:
            ssm_loads()
        if o['flag2']:
            linit = a.label('noinit')
            a(f's_cmp_lg_u32 s{sT4}, 3')
            a(f's_cbranch_scc1 {linit}')
            with a.untracked():
                a('s_mov_b64 exec, 1')
                a(f'buffer_store_dword v7, off, {sr(S_DBG, 4)}, 0 offset:128 sc1')
                a('s_mov_b64 exec, -1')
            a(f'{linit}:')
        for r in range(8):
            unpack(KF + 4 * (r + 3), KR + 2 * (r + 3))
            vf = VF + 4 * (r & 1)
            for j in (3, 2, 1, 0):
                for p in range(2):
                    d = vr(KV + 4 * r + 2 * p, 2)
                    k = vr(KF + 4 * (r + 3 - j) + 2 * p, 2)
                    w = vr(WF + 4 * j + 2 * p, 2)
                    if j == 3:
                        a(f'v_pk_mul_f32 {d}, {k}, {w}')
                    else:
                        a(f'v_pk_fma_f32 {d}, {k}, {w}, {d}')
                if j == 3:
                    unpack(vf, VR + 2 * r)
            for p in range(2):
                d = vr(KV + 4 * r + 2 * p, 2)
                a(f'v_pk_mul_f32 {d}, {d}, {vr(vf + 2 * p, 2)}')
            if r & 1:
                d = (7 - r) >> 1
                for ch in range(4):
                    a(f'v_cvt_pk_bf16_f32 v{O + 4 * ch + d}, v{KV + 4 * r + ch}, v{KV + 4 * (r - 1) + ch}')
        for ch in range(4):
            a(f'ds_write_b128 v{vSW}, {vr(O + 4 * ch, 4)} offset:{ch * 64}')
        for j in range(4):
            a(f'ds_read_b128 {vr(KV + 4 * j, 4)}, v{vSR} offset:{j * 1088}')
        a(f's_mov_b32 s{sT0}, {KVX}')
        for j in range(4):
            a(f'buffer_store_dwordx4 {vr(KV + 4 * j, 4)}, v{vKS}, {sr(S_WS, 4)}, s{sT0} offen sc1')
            if j < 3:
                a(f's_add_u32 s{sT0}, s{sT0}, {4 * QS}')
        self.stamp(2)
        vFl = 218
        a(f'buffer_load_dword v{vFl}, off, {sr(S_DBG, 4)}, 0 sc1')
        a(f'ds_write_b128 v{vUW}, {vr(ZERO, 4)}')
        a(f'ds_write_b128 v{vGZ}, {vr(ZERO, 4)}')
        def table(j):
            D = SK + 8 * j
            Ea, Eb, Db = KF + 20 * (j & 1), KF + 20 * (j & 1) + 8, KF + 20 * (j & 1) + 14

            def wr(rho, reg):
                a(f'ds_write_b128 v{vG}, {vr(reg, 4)} offset:{rho * GSTR + 1024 * j + 16}')
            wr(7, D + 4)
            wr(3, D + 2)
            for i in range(3):
                a(f'v_pk_mov_b32 {vr(Db + 2 * i, 2)}, {vr(D + 2 * i, 2)}, {vr(D + 2 * i + 2, 2)} op_sel:[1,0]')
            for i in range(7):
                a(f'v_alignbit_b32 v{Ea + i}, v{D + i + 1}, v{D + i}, 16')
            wr(1, Db)
            wr(5, Db + 2)
            for i in range(3):
                a(f'v_pk_mov_b32 {vr(Eb + 2 * i, 2)}, {vr(Ea + 2 * i, 2)}, {vr(Ea + 2 * i + 2, 2)} op_sel:[1,0]')
            wr(0, Ea)
            wr(4, Ea + 2)
            wr(2, Eb)
            wr(6, Eb + 2)
        w_some(o['w_kv'])
        for j in range(o['tb_pre']):
            table(j)
        a.need(f'v{vFl}')
        self.drain()
        a('s_barrier')
        self.stamp(3)
        a(f's_lshl_b32 s{sT0}, s{sG}, 8')
        with self.wave0():
            self.check_init(vFl)
            a(f'buffer_atomic_add v{self.vOne}, off, {sr(S_WS, 4)}, s{sT0} sc1')
        w_some(o['w_e1'])
        for j in range(o['tb_pre'], 4):
            table(j)
        AD = 224
        a.need(f's{sDv}')
        a(f's_and_b32 s{sT1}, s{S_W}, 1')
        a(f's_lshl_b32 s{sT1}, s{sT1}, 4')
        a(f's_lshr_b32 s{sDv}, s{sDv}, s{sT1}')
        a(f's_and_b32 s{sDv}, s{sDv}, 0xffff')
        a(f'v_sub_u32 v5, 7, v{vI7}')
        a(f'v_and_b32 v7, 1, v5')
        a(f'v_lshlrev_b32 v7, 4, v7')
        a(f'v_lshlrev_b32 v7, v7, s{sDv}')
        a(f'v_bfe_u32 v8, v0, 3, 1')
        a(f'v_add_u32 v8, 2, v8')
        a(f'v_cmp_eq_u32 vcc, v8, v{vR}')
        a(f'v_cndmask_b32 v7, 0, v7, vcc')
        a(f'v_lshrrev_b32 v5, 1, v5')
        for d in range(4):
            a(f'v_cmp_eq_u32 vcc, {d}, v5')
            a(f'v_cndmask_b32 v{AD + d}, 0, v7, vcc')
        ACC = 8
        BUF = (40, 104)
        XR, SR = 168, 184

        def rdA(it, t):
            return f'ds_read_b128 {vr(BUF[it & 1] + 4 * t, 4)}, v{vAa} offset:{64 * it + 512 * t}'

        def rdB(it, t):
            return f'ds_read_b128 {vr(BUF[it & 1] + 32 + 4 * t, 4)}, v{vBa} offset:{448 - 64 * it + 512 * t}'
        for t in range(8):
            a(rdA(0, t))
        with self.wave0():
            self.spin(S_WS, f's{sT0}', 16, vFl)
        a('s_barrier')
        self.stamp(4)
        a(f's_mov_b32 s{sT0}, {KVX}')
        for j in range(4):
            a(f'buffer_load_dwordx4 {vr(BUF[1] + 4 * j, 4)}, v{vUL}, {sr(S_WS, 4)}, s{sT0} offen sc1')
            if j < 3:
                a(f's_add_u32 s{sT0}, s{sT0}, 4096')
        for j in range(4):
            a(f'ds_write_b128 v{vUW}, {vr(BUF[1] + 4 * j, 4)} offset:{512 + 1024 * j}')
            a(rdB(0, 2 * j))
            a(rdB(0, 2 * j + 1))
        self.stamp(5)
        a(f's_mov_b32 s{sT3}, {C_FX * 256}')
        a(f's_mov_b32 s{sT4}, {ST1}')
        a(f's_add_u32 s{sT6}, s{sT6}, {XP4}')
        for it in range(8):
            A, B = BUF[it & 1], BUF[it & 1] + 32
            mf = []
            for tp in range(8):
                if it == 0:
                    mf.append(f'v_mfma_f32_16x16x32_bf16 {vr(ACC + 4 * tp, 4)}, {vr(AD, 4)}, {vr(B + 4 * tp, 4)}, 0')
            for tp in range(8):
                for t in range(8 - tp):
                    c = vr(ACC + 4 * (t + tp), 4)
                    mf.append(f'v_mfma_f32_16x16x32_bf16 {c}, {vr(A + 4 * t, 4)}, {vr(B + 4 * tp, 4)}, {c}')
            fill = [[] for _ in mf]
            if it < 7:
                rd = [rdB(it + 1, 0)] + [rdA(it + 1, t) for t in range(8)] + [rdB(it + 1, t) for t in range(1, 8)]
                base = 8 if it == 0 else 0
                for i, x in enumerate(rd):
                    fill[base + 2 * i].append(x)
                n = (len(wl) + (6 - it)) // (7 - it)
                for i in range(n):
                    fill[base + 1 + 2 * ((i * 17) // n)] += wl.pop(0)
            if it == 0:
                w_some(0)
            if it == 2:
                fill[33].append(f'buffer_load_dword v{vFl}, off, {sr(S_WS, 4)}, s{sT3} sc1')
            if it == 7:
                ops = []
                for T in range(2):
                    for row in range(4):
                        src = XR + 8 * T + 2 * row
                        xf = BUF[0] + 16 * T + 4 * row
                        st = SR + 8 * T + 2 * row
                        ops += [f'v_lshlrev_b32 v{xf}, 16, v{src}', f'v_and_b32 v{xf + 1}, s{sT2}, v{src}',
                                f'v_lshlrev_b32 v{xf + 2}, 16, v{src + 1}', f'v_and_b32 v{xf + 3}, s{sT2}, v{src + 1}']
                        ops += [f'v_fma_f32 v{xf + 32 + c}, v{xf + c}, v{st}, v{st + 1}' for c in range(4)]
                for i, x in enumerate(ops):
                    fill[2 + i // 2].append(x)
            if it == 4:
                a.need(f'v{vFl}')
                self.spin(S_WS, f's{sT3}', 64, vFl, first_loaded=True)
                k = 0
                for T in range(2):
                    for p in range(2):
                        off = 2048 * T + 16 * p
                        fill[4 * k + 3].append(f'buffer_load_dwordx4 {vr(XR + 8 * T + 4 * p, 4)}, v{vXS}, {sr(S_WS, 4)}, s{sT6} offen offset:{off} sc1')
                        fill[4 * k + 5].append(f'buffer_load_dwordx4 {vr(SR + 8 * T + 4 * p, 4)}, v{vXS}, {sr(S_WS, 4)}, s{sT4} offen offset:{off} sc1')
                        k += 2
            if it > 0:
                a.need(vr(BUF[it & 1], 36))
            for m, f in zip(mf, fill):
                a(m)
                for x in f:
                    a(x)
        assert not wl
        self.stamp(6)
        for T in range(8):
            a(f'ds_write_b128 v{vG}, {vr(ACC + 4 * T, 4)} offset:{1024 * T}')
        a('s_waitcnt lgkmcnt(0)')
        a('s_barrier')
        Z = BUF[1]
        for T in range(2):
            for ch in range(4):
                a(f'ds_read_b128 {vr(Z + 16 * T + 4 * ch, 4)}, v{vZR2 if ch & 2 else vZR} offset:{(ch & 1) * GW + 1024 * T}')
        a(f's_mov_b32 s{sT0}, {HP4}')
        XF, QF, HO = BUF[0], BUF[0] + 32, ACC
        for T in range(2):
            for p in range(2):
                for b in range(2):
                    row = 2 * p + b
                    for c in range(4):
                        x = XF + 16 * T + 4 * row + c
                        a(f'v_fmac_f32 v{x}, v{x + 32}, v{Z + 16 * T + 4 * c + row}')
                    for c2 in range(2):
                        x = XF + 16 * T + 4 * row + 2 * c2
                        a(f'v_cvt_pk_bf16_f32 v{HO + 8 * T + 4 * p + 2 * b + c2}, v{x}, v{x + 1}')
                a(f'buffer_store_dwordx4 {vr(HO + 8 * T + 4 * p, 4)}, v{vHS}, {sr(S_WS, 4)}, s{sT0} offen offset:{2048 * T + 1024 * p} sc1')
        self.stamp(7)
        self.w_write_addr_main()
        a('s_barrier')
        wt = self.w_loads_tail()
        ww = self.w_writes_main()
        for i in range(20):
            for x in wt[i]:
                a(x)
            a(ww[i])
        self.drain()
        a('s_barrier')
        self.arrive_e2()
        for i in range(20, 40):
            a(ww[i])
        a.snapshot('join')
        a('.Ljoin:')

    def arrive_e2(self):
        a = self.a
        a(f's_lshl_b32 s{sT0}, s{sX}, 8')
        a(f's_add_u32 s{sT0}, s{sT0}, {C_B1 * 256}')
        with self.wave0():
            l = a.label('notlast')
            a(f'v_mov_b32 v{self.vTmp}, 1')
            a(f'buffer_atomic_add v{self.vTmp}, off, {sr(S_WS, 4)}, s{sT0} sc0 sc1')
            a('s_waitcnt vmcnt(0)')
            a(f'v_readfirstlane_b32 s{sT7}, v{self.vTmp}')
            a(f's_cmp_lg_u32 s{sT7}, 31')
            a(f's_cbranch_scc1 {l}')
            a('s_mov_b64 exec, 0xff')
            a(f'v_lshlrev_b32 v{self.vTmp}, 8, v0')
            a(f's_movk_i32 s{sT7}, {C_B2 * 256}')
            a(f'buffer_atomic_add v{self.vOne}, v{self.vTmp}, {sr(S_WS, 4)}, s{sT7} offen sc1')
            a(f'{l}:')

    def side(self):
        a = self.a
        a('.Lside:')
        a.fresh('role')
        vTid = 1
        a(f'v_lshl_add_u32 v{vTid}, s{S_W}, 6, v0')
        a(f's_sub_u32 s{sG}, s{sX}, 2')
        a(f's_lshl_b32 s{sG}, s{sG}, 4')
        a(f's_add_u32 s{sG}, s{sG}, s{sM}')
        self.gemm_ids()
        self.w_addr()
        a.need(sr(S_WS, 2))
        if self.opt['s1_wait']:
            self.spin(S_DBG, '0', 1, 13, sleep=True)
        a(f's_cmp_ge_u32 s{sG}, 64')
        a.snapshot('s2')
        a('s_cbranch_scc1 .Ls2')
        XR, WR = 16, 56
        vA, vRow, vS8 = 2, 3, 4
        a(f'v_lshrrev_b32 v{vRow}, 3, v{vTid}')
        a(f'v_and_b32 v{vS8}, 7, v0')
        a(f's_mul_i32 s{sT0}, s{sG}, {32 * 1280}')
        a(f's_movk_i32 s{sT1}, 1280')
        a(f'v_lshl_add_u32 v{vA}, v{vS8}, 4, s{sT0}')
        a(f'v_mad_u32_u24 v{vA}, v{vRow}, s{sT1}, v{vA}')
        for j in range(10):
            a(f'buffer_load_dwordx4 {vr(XR + 4 * j, 4)}, v{vA}, {sr(S_X, 4)}, 0 offen offset:{128 * j}')
        def wd_loads():
            for j in range(10):
                a(f'buffer_load_dwordx4 {vr(WR + 4 * j, 4)}, v{vA}, {sr(S_WD, 4)}, 0 offen offset:{128 * j}')
        if not self.opt['wd_late']:
            wd_loads()
        vW, vRd, vSt = 5, 6, 7
        a(f's_movk_i32 s{sT1}, 528')
        a(f'v_lshlrev_b32 v{vW}, 3, v{vRow}')
        a(f'v_mad_u32_u24 v{vW}, v{vS8}, s{sT1}, v{vW}')
        a(f'v_and_b32 v{vRd}, 31, v0')
        a(f'v_lshlrev_b32 v{vRd}, 4, v{vRd}')
        a(f'v_lshrrev_b32 v8, 5, v{vTid}')
        a(f'v_mad_u32_u24 v{vRd}, v8, s{sT1}, v{vRd}')
        a(f's_lshl_b32 s{sT0}, s{sG}, 8')
        a(f'v_and_b32 v{vSt}, 15, v0')
        a(f'v_lshl_add_u32 v{vSt}, v{vSt}, 4, s{sT0}')
        a(f'v_lshrrev_b32 v8, 4, v{vTid}')
        a(f's_mov_b32 s{sT1}, {QS}')
        a(f'v_mad_u32_u24 v{vSt}, v8, s{sT1}, v{vSt}')
        for j in range(10):
            for o_ in range(2):
                a(f'ds_write_b64 v{vW}, {vr(XR + 4 * j + 2 * o_, 2)} offset:{j * 4224 + o_ * 256}')
        a('s_waitcnt lgkmcnt(0)')
        a('s_barrier')
        XO = 96
        for j in range(10):
            a(f'ds_read_b128 {vr(XO + 4 * j, 4)}, v{vRd} offset:{j * 4224}')
        a(f's_mov_b32 s{sT1}, {XP4}')
        for j in range(10):
            a(f'buffer_store_dwordx4 {vr(XO + 4 * j, 4)}, v{vSt}, {sr(S_WS, 4)}, s{sT1} offen sc1')
            a(f's_add_u32 s{sT1}, s{sT1}, {16 * QS}')
        a(f's_mov_b32 s{sOne}, 0x3f803f80')
        for i in range(4):
            a(f'v_mov_b32 v{8 + i}, 0')
        for i in range(40):
            a(f'v_dot2c_f32_bf16 v{8 + (i & 1)}, s{sOne}, v{XR + i}')
            a(f'v_dot2c_f32_bf16 v{10 + (i & 1)}, v{XR + i}, v{XR + i}')
        a('v_add_f32 v8, v8, v9')
        a('v_add_f32 v10, v10, v11')
        for m in ('quad_perm:[1,0,3,2]', 'quad_perm:[2,3,0,1]', 'row_half_mirror'):
            a(f'v_add_f32_dpp v8, v8, v8 {m} row_mask:0xf bank_mask:0xf')
            a(f'v_add_f32_dpp v10, v10, v10 {m} row_mask:0xf bank_mask:0xf')
        a(f'v_mul_f32 v8, {f32(1 / 640)}, v8')
        a(f'v_mul_f32 v10, {f32(1 / 640)}, v10')
        a('v_fma_f32 v10, -v8, v8, v10')
        a('v_max_f32 v10, 0, v10')
        a(f'v_add_f32 v10, {f32(1e-5)}, v10')
        a('v_rsq_f32 v10, v10')
        a(f'v_lshl_add_u32 v12, v{vRow}, 3, s{sT0}')
        a('v_mul_f32 v11, -v8, v10')
        a(f's_mov_b32 s{sT1}, {ST1}')
        a('s_mov_b32 exec_lo, 0x01010101')
        a('s_mov_b32 exec_hi, 0x01010101')
        a(f'buffer_store_dwordx2 v[10:11], v12, {sr(S_WS, 4)}, s{sT1} offen sc1')
        a('s_mov_b64 exec, -1')
        vFl = 13
        a(f'buffer_load_dword v{vFl}, off, {sr(S_DBG, 4)}, 0 sc1')
        WB = 49152
        a(f's_movk_i32 s{sT1}, 1344')
        a(f'v_lshlrev_b32 v{vW}, 4, v{vS8}')
        a(f'v_mad_u32_u24 v{vW}, v{vRow}, s{sT1}, v{vW}')
        if self.opt['wd_late']:
            wd_loads()
        a.need(f'v{vFl}')
        self.drain()
        a('s_barrier')
        a(f's_movk_i32 s{sT0}, {C_FX * 256}')
        with self.wave0():
            self.check_init(vFl)
            a(f'buffer_atomic_add v{self.vOne}, off, {sr(S_WS, 4)}, s{sT0} sc1')
        self.stamp(1)
        for j in range(10):
            a(f'ds_write_b128 v{vW}, {vr(WR + 4 * j, 4)} offset:{WB + 128 * j}')
        a('s_waitcnt vmcnt(0) lgkmcnt(0)')
        a('s_barrier')
        self.stamp(2)
        ls3 = a.label('nos3')
        a(f's_cmp_ge_u32 s{sG}, 48')
        a(f's_cbranch_scc1 {ls3}')
        with a.untracked():
            a('v_lshrrev_b32 v8, 4, v0')
            a('v_bfe_u32 v9, v0, 2, 2')
            a('v_lshl_add_u32 v8, v8, 3, v9')
            a(f's_mul_i32 s{sT0}, s{S_W}, 320')
            a(f'v_mov_b32 v9, s{sT0}')
            a(f'v_mad_u32_u24 v8, v8, s{sT1}, v9')
            a('v_and_b32 v9, 3, v0')
            a('v_lshl_add_u32 v10, v9, 3, v8')
            a('v_lshl_add_u32 v8, v9, 4, v8')
            for cc in range(2):
                for nt in range(5):
                    for e in range(2):
                        off = WB + cc * 160 + e * 4 * 1344 + ((nt >> 1) * 64 + (nt & 1) * 8)
                        a(f'ds_read_b64_tr_b16 {vr(XO + 4 * (5 * cc + nt) + 2 * e, 2)}, v{10 if nt == 4 else 8} offset:{off}')
            a(f's_mul_i32 s{sT0}, s{S_W}, 96')
            a(f's_add_u32 s{sT0}, s{sT0}, s{sG}')
            a(f's_mul_i32 s{sT0}, s{sT0}, 5120')
            a(f's_add_u32 s{sT0}, s{sT0}, {WDF}')
            a('v_lshlrev_b32 v9, 4, v0')
            a('s_waitcnt lgkmcnt(0)')
            for cc in range(2):
                for nt in range(5):
                    if nt == 4:
                        a(f's_add_u32 s{sT0}, s{sT0}, 4096')
                    a(f'buffer_store_dwordx4 {vr(XO + 4 * (5 * cc + nt), 4)}, v9, {sr(S_WS, 4)}, s{sT0} offen offset:{(nt & 3) * 1024} sc1')
                a(f's_add_u32 s{sT0}, s{sT0}, {48 * 5120 - 4096}')
        a(f'{ls3}:')
        a('s_branch .Lside_w')
        a('.Ls2:')
        a.fresh('s2')
        if self.opt['flag2']:
            a(f's_movk_i32 s{sT0}, 128')
            self.spin(S_DBG, f's{sT0}', 1, 13, sleep=True)
        a(f'buffer_load_dword v13, off, {sr(S_DBG, 4)}, 0 sc1')
        a('s_waitcnt vmcnt(0)')
        self.stamp(1)
        a(f's_cmp_ge_u32 s{sG}, 88')
        a('s_cbranch_scc1 .Ls2_done')
        a(f's_sub_u32 s{sT0}, s{sG}, 64')
        a(f's_cmp_ge_u32 s{sT0}, 12')
        a(f's_cselect_b32 s{S_WD}, s{S_WU}, s{S_WG}')
        a(f's_cselect_b32 s{S_WD + 1}, s{S_WU + 1}, s{S_WG + 1}')
        a(f's_cselect_b32 s{sT1}, 12, 0')
        a(f's_sub_u32 s{sT1}, s{sT0}, s{sT1}')
        a(f's_lshl_b32 s{sT1}, s{sT1}, 8')
        a('v_and_b32 v2, 15, v0')
        a(f'v_lshrrev_b32 v3, 4, v{vTid}')
        a(f'v_lshl_add_u32 v4, v2, 4, s{sT1}')
        a(f's_movk_i32 s{sT2}, 3072')
        a(f'v_mad_u32_u24 v4, v3, s{sT2}, v4')
        a(f's_mov_b32 s{sT2}, 0')
        for i in range(40):
            a(f'buffer_load_dwordx4 {vr(32 + 4 * i, 4)}, v4, {sr(S_WD, 4)}, s{sT2} offen')
            a(f's_add_u32 s{sT2}, s{sT2}, {16 * 3072}')
        for i in range(8):
            a(f'v_mov_b32 v{16 + i}, 0')
        a(f's_mov_b32 s{sT2}, 0x3f80')
        a(f's_mov_b32 s{sT3}, 0x3f800000')
        for i in range(160):
            a(f'v_dot2c_f32_bf16 v{16 + 2 * (i & 3)}, s{sT2}, v{32 + i}')
            a(f'v_dot2c_f32_bf16 v{17 + 2 * (i & 3)}, s{sT3}, v{32 + i}')
        a(f'v_lshlrev_b32 v5, 5, v{vTid}')
        a('ds_write_b128 v5, v[16:19]')
        a('ds_write_b128 v5, v[20:23] offset:16')
        a('s_waitcnt lgkmcnt(0)')
        a('s_barrier')
        a(f'v_and_b32 v5, 127, v{vTid}')
        a('v_lshlrev_b32 v6, 2, v5')
        for i in range(16):
            a(f'ds_read_b32 v{32 + i}, v6 offset:{512 * i}')
        for i in range(1, 16):
            a(f'v_add_f32 v32, v32, v{32 + i}')
        a('v_cvt_pk_bf16_f32 v8, v32, v32')
        a('v_lshlrev_b32 v10, 16, v8')
        a('v_sub_f32 v10, v32, v10')
        a('v_cvt_pk_bf16_f32 v9, v10, v10')
        a(f's_lshl_b32 s{sT0}, s{sT0}, 10')
        a(f's_add_u32 s{sT0}, s{sT0}, {CSF}')
        a('v_lshrrev_b32 v6, 5, v5')
        a('v_lshlrev_b32 v6, 8, v6')
        a('v_lshl_add_u32 v6, v2, 4, v6')
        a('v_bfe_u32 v7, v5, 4, 1')
        a('v_lshl_add_u32 v6, v7, 3, v6')
        a(f'buffer_store_dwordx2 v[8:9], v6, {sr(S_WS, 4)}, s{sT0} offen sc1')
        a('.Ls2_done:')
        self.stamp(2)
        with self.wave0():
            self.check_init(13)
        a('.Lside_w:')
        a.fresh()
        for g in self.w_loads_main() + self.w_loads_tail():
            for x in g:
                a(x)
        self.w_write_addr_main()
        a('s_waitcnt vmcnt(0) lgkmcnt(0)')
        a('s_barrier')
        self.stamp(6)
        self.arrive_e2()
        for x in self.w_writes_main():
            a(x)
        self.stamp(7)
        a('s_branch .Ljoin')

    def gemm1(self):
        a = self.a
        o = self.opt
        t, t2 = self.vTmp, self.vTmp2
        vTR = 224
        vAL, vAS, vWD, vCS = 228, 229, 230, 231
        vS = 232
        BP = 236
        CS45 = 242
        TM = 246
        ACC = 160
        RING1, CS01, RING2 = 128, 152, 240
        a(f'v_lshrrev_b32 v{t}, 5, v0')
        a(f'v_bfe_u32 v{t2}, v0, 2, 2')
        a(f'v_lshl_add_u32 v{t}, v{t}, 3, v{t2}')
        a(f'v_lshlrev_b32 v{t}, 6, v{t}')
        a(f'v_and_b32 v{t2}, 3, v0')
        a(f'v_lshl_add_u32 v{t}, v{t2}, 4, v{t}')
        a(f'v_bfe_u32 v{t2}, v0, 4, 1')
        a(f'v_lshl_add_u32 v{vTR}, v{t2}, 3, v{t}')
        for s in range(1, 4):
            a(f'v_xor_b32 v{t}, {32 * s}, v{vTR}')
            a(f'v_add_u32 v{vTR + s}, {TILE * s}, v{t}')
        a(f's_lshl_b32 s{sT0}, s{sRB}, 2')
        a(f's_add_u32 s{sT0}, s{sT0}, s{S_W}')
        a(f's_lshl_b32 s{sT1}, s{sT0}, 8')
        a(f'v_and_b32 v{t}, 15, v0')
        a(f'v_lshl_add_u32 v{t}, v{t}, 4, s{sT1}')
        a(f'v_lshrrev_b32 v{t2}, 4, v0')
        a(f's_mov_b32 s{sT1}, {QS}')
        a(f'v_mad_u32_u24 v{vAL}, v{t2}, s{sT1}, v{t}')
        a(f's_mul_i32 s{sT1}, s{sT0}, 98304')
        a(f'v_lshl_add_u32 v{vAS}, v0, 4, s{sT1}')
        a(f's_and_b32 s{sT0}, s{sJ}, 7')
        a(f's_lshl_b32 s{sT0}, s{sT0}, 2')
        a(f's_add_u32 s{sT0}, s{sT0}, s{S_W}')
        a(f's_mul_i32 s{sT0}, s{sT0}, {12 * 5120}')
        a(f'v_lshl_add_u32 v{vWD}, v0, 4, s{sT0}')
        a(f'v_and_b32 v{t}, 3, v0')
        a(f'v_bfe_u32 v{t2}, v0, 2, 1')
        a(f'v_lshl_add_u32 v{t}, v{t2}, 3, v{t}')
        a(f'v_bfe_u32 v{t2}, v0, 4, 1')
        a(f'v_lshl_add_u32 v{t}, v{t2}, 2, v{t}')
        a(f'v_lshlrev_b32 v{t}, 4, v{t}')
        a(f'v_bfe_u32 v{t2}, v0, 3, 1')
        a(f's_movk_i32 s{sT1}, 12288')
        a(f'v_mad_u32_u24 v{vCS}, v{t2}, s{sT1}, v{t}')
        self.w_write_addr_tail()
        for i in range(4):
            a(f'v_mov_b32 v{vS + i}, 0')
        for i in (0, 1, 4, 5):
            a(f'v_mov_b32 v{BP + i}, 0')
        a(f's_mov_b32 s{sOne}, 0x3f803f80')
        a(f's_lshl_b32 s{sT2}, s{sA}, 7')
        a(f's_add_u32 s{sT2}, s{sT2}, {CSF}')
        a(f's_lshl_b32 s{sT3}, s{sB}, 7')
        a(f's_add_u32 s{sT3}, s{sT3}, {CSF}')
        a(f's_lshl_b32 s{sA}, s{sA}, 10')
        a(f's_add_u32 s{sA}, s{sA}, {ACT}')
        a(f's_lshl_b32 s{sB}, s{sB}, 10')
        a(f's_add_u32 s{sB}, s{sB}, {ACT}')
        a(f's_mov_b32 s{sWoff}, {WDF}')
        a(f's_mov_b32 s{sT1}, {HP4}')
        a(f's_lshl_b32 s{sT0}, s{sX}, 8')
        a(f's_add_u32 s{sT0}, s{sT0}, {C_B2 * 256}')
        a.need('v255')
        a(f'v_mov_b32 v255, v0')
        with self.wave0():
            self.spin(S_WS, f's{sT0}', 8, t)
        a('s_waitcnt lgkmcnt(0)')
        a('s_barrier')
        self.stamp(8)
        al = []
        for j in range(40):
            g = [f'buffer_load_dwordx4 {vr(4 * j, 4)}, v{vAL}, {sr(S_WS, 4)}, s{sT1} offen sc1']
            if j < 39:
                g.append(f's_add_u32 s{sT1}, s{sT1}, {4 * QS}')
            al.append(g)
        al.append([f'buffer_load_dwordx4 {ar(CS01, 4)}, v{vCS}, {sr(S_WS, 4)}, s{sT2} offen sc1'])
        al.append([f'buffer_load_dwordx4 {ar(CS01 + 4, 4)}, v{vCS}, {sr(S_WS, 4)}, s{sT2} offen offset:256 sc1'])
        al.append([f'buffer_load_dwordx4 {vr(CS45, 4)}, v{vCS}, {sr(S_WS, 4)}, s{sT3} offen sc1'])
        for _ in range(o['a_ahead']):
            for x in al.pop(0):
                a(x)

        def rd(dst, slot, j):
            return [f'ds_read_b64_tr_b16 {ar(dst + 2 * e, 2)}, v{vTR + slot} offset:{1024 * j + 256 * e}'
                    for e in range(2)]

        def swaps(j):
            return [f'v_permlane16_swap_b32 v{4 * j}, v{4 * j + 2}', f'v_permlane16_swap_b32 v{4 * j + 1}, v{4 * j + 3}']

        def acc(slot):
            return vr(ACC + 16 * slot, 16)
        wd = []
        for i in range(60):
            g = [f'buffer_load_dwordx4 {ar(4 * i, 4)}, v{vWD}, {sr(S_WS, 4)}, s{sWoff} offen offset:{(i & 3) * 1024} sc1']
            if i & 3 == 3 and i != 59:
                g.append(f's_add_u32 s{sWoff}, s{sWoff}, 4096')
            wd.append(g)
        wtail = self.w_writes_tail()
        for j in range(2):
            for s in range(3):
                for x in rd(RING1 + 12 * j + 4 * s, s, j):
                    a(x)
        for x in swaps(0):
            a(x)
        p2 = [(3, 3, j) for j in range(40)] + [(4, 0, j) for j in range(40)] + [(5, 1, j) for j in range(40)]
        for j in range(40):
            base = RING1 + 12 * (j & 1)
            a.need(ar(base, 12))
            for s in range(3):
                c = '0' if j == 0 else acc(s)
                a(f'v_mfma_f32_32x32x16_bf16 {acc(s)}, {ar(base + 4 * s, 4)}, {vr(4 * j, 4)}, {c}')
                if j < 38:
                    for x in rd(base + 4 * s, s, j + 2):
                        a(x)
                else:
                    i = (j - 38) * 3 + s
                    if i < 4:
                        for x in rd(RING2 + 4 * i, p2[i][1], p2[i][2]):
                            a(x)
                if s == 0 and j < 39:
                    for x in swaps(j + 1):
                        a(x)
                if s == 1 and 22 <= j < 32:
                    a(wtail.pop(0))
                if s == 2:
                    for x in (al.pop(0) if al else wd.pop(0)):
                        a(x)
            if j == 21:
                a('s_barrier')
            if j & 7 == 7:
                for r in range(32 * (j >> 3), 32 * (j >> 3) + 32):
                    a(f'v_dot2c_f32_bf16 v{vS + (r & 1)}, s{sOne}, v{r}')
                    a(f'v_dot2c_f32_bf16 v{vS + 2 + (r & 1)}, v{r}, v{r}')
        self.stamp(9)
        C0, C1, R = vS, vS + 1, vS + 2
        c0 = -2.0 * 0.7978845608028654 * 1.4426950408889634
        st = [
            f'v_add_f32 v{vS}, v{vS}, v{vS + 1}',
            f'v_add_f32 v{vS + 2}, v{vS + 2}, v{vS + 3}',
            f'v_mov_b32 v{vS + 1}, v{vS}',
            f'v_mov_b32 v{vS + 3}, v{vS + 2}',
            f'v_cmp_gt_u32 vcc, 32, v255',
            f'v_permlane32_swap_b32 v{vS}, v{vS + 1}',
            f'v_permlane32_swap_b32 v{vS + 2}, v{vS + 3}',
            f'v_add_f32 v{vS}, v{vS}, v{vS + 1}',
            f'v_add_f32 v{vS + 2}, v{vS + 2}, v{vS + 3}',
            f'v_mul_f32 v{vS}, {f32(-1 / 640)}, v{vS}',
            f'v_mul_f32 v{vS + 2}, {f32(1 / 640)}, v{vS + 2}',
            f'v_cvt_pk_bf16_f32 v{t}, v{vS}, v{vS}',
            f'v_fma_f32 v{R}, -v{vS}, v{vS}, v{R}',
            f'v_lshlrev_b32 v{t}, 16, v{t}',
            f'v_max_f32 v{R}, 0, v{R}',
            f'v_sub_f32 v{t2}, v{vS}, v{t}',
            f'v_add_f32 v{R}, {f32(1e-5)}, v{R}',
            f'v_cvt_pk_bf16_f32 v{t}, v{t}, v{t2}',
            f'v_rsq_f32 v{vS + 3}, v{R}',
            f'v_cndmask_b32 v{BP + 2}, 0, v{t}, vcc',
            f'v_cndmask_b32 v{BP + 3}, 0, v{t}, vcc',
            f'v_mul_f32 v{C0}, {f32(c0)}, v{vS + 3}',
            f'v_mul_f32 v{t}, v{vS + 3}, v{vS + 3}',
            f'v_mul_f32 v{t}, {f32(0.044715)}, v{t}',
            f'v_mul_f32 v{C1}, v{t}, v{C0}',
        ]

        def csm(tile, slot, first):
            src = vr(CS45, 4) if tile >= 4 else ar(CS01 + 4 * (tile >> 1), 4)
            b = vr(BP, 4) if tile & 1 else vr(BP + 2, 4)
            return f'v_mfma_f32_32x32x16_bf16 {acc(slot)}, {src}, {b}, {"0" if first else acc(slot)}'

        def epi(tile, slot):
            b = ACC + 16 * slot
            tm = [TM, TM + 1, t, t2]
            ops = []
            for h in range(2):
                g, u = b + 8 * h, b + 8 * h + 4
                ops += [(1, f'v_mul_f32 v{tm[i]}, v{g + i}, v{g + i}') for i in range(4)]
                ops += [(1, f'v_fma_f32 v{tm[i]}, v{tm[i]}, v{C1}, v{C0}') for i in range(4)]
                ops += [(1, f'v_mul_f32 v{tm[i]}, v{tm[i]}, v{g + i}') for i in range(4)]
                for i in range(4):
                    ops += [(2, f'v_exp_f32 v{tm[i]}, v{tm[i]}'), (1, f'v_mul_f32 v{u + i}, v{u + i}, v{g + i}')]
                ops += [(1, f'v_fma_f32 v{tm[i]}, v{tm[i]}, v{R}, v{R}') for i in range(4)]
                ops += [(2, f'v_rcp_f32 v{tm[i]}, v{tm[i]}') for i in range(4)]
                ops += [(1, f'v_mul_f32 v{u + i}, v{u + i}, v{tm[i]}') for i in range(4)]
                ops += [(1, f'v_cvt_pk_bf16_f32 v{b + 2 * h + i}, v{u + 2 * i}, v{u + 2 * i + 1}') for i in range(2)]
            so = sA if tile < 4 else sB
            ops.append((1, f'buffer_store_dwordx4 {vr(b, 4)}, v{vAS}, {sr(S_WS, 4)}, s{so} offen offset:{(tile & 3) * 1024} sc1'))
            return ops
        slot_of = {0: 0, 1: 1, 2: 2, 3: 3, 4: 0, 5: 1}
        eq = []
        budget = 0.0
        RATE = o.get('epi_rate', 3.75)
        nwd_loop = len(wd) - o['wd_tail']
        wd_done = 0
        for i, (tile, ls, j) in enumerate(p2):
            slot = slot_of[tile]
            if j == 0 and tile > 3:
                a(csm(tile, slot, True))
            if i & 1 == 0:
                a.need(ar(RING2 + 4 * (i & 3), 8))
            c = '0' if i == 0 else acc(slot)
            a(f'v_mfma_f32_32x32x16_bf16 {acc(slot)}, {ar(RING2 + 4 * (i & 3), 4)}, {vr(4 * j, 4)}, {c}')
            if i == 31:
                assert not wtail
                a('s_waitcnt lgkmcnt(0)')
                a('s_barrier')
            if i + 4 < len(p2):
                for x in rd(RING2 + 4 * (i & 3), p2[i + 4][1], p2[i + 4][2]):
                    a(x)
            if i == 1:
                a('s_barrier')
            if 2 <= i < 22 and i & 1 == 0:
                a(wtail.pop(0))
            if i < 7:
                for _ in range(4):
                    if st:
                        a(st.pop(0))
            if i == 7:
                assert not st
                for tl in range(4):
                    a(csm(tl, tl, False))
                eq += epi(0, 0) + epi(1, 1) + epi(2, 2)
            if i == 42:
                eq += epi(3, 3)
            if i == 82:
                eq += epi(4, 0)
            if i >= 8:
                budget += RATE
                while eq and budget >= eq[0][0]:
                    cst, x = eq.pop(0)
                    budget -= cst
                    a(x)
                if not eq:
                    budget = 0
                if i == 39:
                    assert len(eq) <= 2 * 69, len(eq)
                if i == 79:
                    assert len(eq) <= 2 * 69, len(eq)
            want = ((i + 1) * nwd_loop) // len(p2)
            while wd_done < want:
                for x in wd.pop(0):
                    a(x)
                wd_done += 1
        for cst, x in eq:
            a(x)
        for cst, x in epi(5, 1):
            a(x)
        self.stamp(10)
        while wd:
            for x in wd.pop(0):
                a(x)

    def gemm2(self):
        a = self.a
        L = 255
        t, t2 = self.vTmp, self.vTmp2
        vA2 = 240
        vRes, vRes2, vOut, vOut2 = 244, 245, 246, 247
        vRW, vRR = 251, 254
        RES = 240
        a(f's_and_b32 s{sT0}, s{sX}, 1')
        a(f's_lshl_b32 s{sT0}, s{sT0}, 1')
        a(f's_lshl_b32 s{sT1}, s{sRB}, 2')
        a(f's_add_u32 s{sT0}, s{sT0}, s{sT1}')
        a(f'v_and_b32 v{t}, 15, v{L}')
        a(f'v_lshrrev_b32 v{t2}, 4, v{L}')
        a(f's_lshr_b32 s{sT1}, s{S_W}, 1')
        a(f's_add_u32 s{sT1}, s{sT1}, s{sT0}')
        a(f's_lshl_b32 s{sT2}, s{sT1}, 8')
        a(f's_and_b32 s{sT3}, s{S_W}, 1')
        a(f's_lshl_b32 s{sT4}, s{sT3}, 3')
        a(f's_add_u32 s{sT2}, s{sT2}, s{sT4}')
        a(f's_and_b32 s{sT4}, s{sJ}, 7')
        a(f's_mul_i32 s{sT5}, s{sT4}, {20 * QS}')
        a(f's_add_u32 s{sT2}, s{sT2}, s{sT5}')
        a(f'v_lshl_add_u32 v{vRes2}, v{t}, 4, s{sT2}')
        a(f's_mov_b32 s{sT5}, {2 * QS}')
        a(f'v_mad_u32_u24 v{vRes}, v{t2}, s{sT5}, v{vRes2}')
        a(f's_mov_b32 s{sT5}, {QS}')
        a(f'v_mad_u32_u24 v{vRes2}, v{t2}, s{sT5}, v{vRes2}')
        for nt in range(5):
            q = 8 * (nt >> 1) + (nt & 1)
            a(f's_mov_b32 s{sT5}, {HP4 + q * QS}')
            a(f'buffer_load_dwordx2 {ar(RES + 2 * nt, 2)}, v{vRes2 if nt == 4 else vRes}, {sr(S_WS, 4)}, s{sT5} offen sc1')
        a(f's_lshr_b32 s{sT5}, s{sRB}, 1')
        a(f's_lshl_b32 s{sT5}, s{sT5}, 8')
        a(f's_and_b32 s{sT6}, s{sT1}, 3')
        a(f's_lshl_b32 s{sT6}, s{sT6}, 2')
        a(f's_add_u32 s{sT5}, s{sT5}, s{sT6}')
        a(f's_and_b32 s{sT6}, s{sRB}, 1')
        a(f's_lshl_b32 s{sT6}, s{sT6}, 1')
        a(f's_add_u32 s{sT5}, s{sT5}, s{sT6}')
        a(f's_add_u32 s{sT5}, s{sT5}, s{sT3}')
        a(f's_mul_i32 s{sT5}, s{sT5}, 1280')
        a(f's_mul_i32 s{sT6}, s{sT4}, 160')
        a(f's_add_u32 s{sT5}, s{sT5}, s{sT6}')
        a(f's_movk_i32 s{sT6}, {16 * 1280}')
        a(f'v_mov_b32 v{vOut2}, s{sT5}')
        a(f'v_mad_u32_u24 v{vOut2}, v{t}, s{sT6}, v{vOut2}')
        a(f'v_lshl_add_u32 v{vOut}, v{t2}, 4, v{vOut2}')
        a(f'v_lshl_add_u32 v{vOut2}, v{t2}, 3, v{vOut2}')
        a(f'v_lshlrev_b32 v{t}, 4, v{t}')
        a(f'v_lshl_add_u32 v{t}, v{t2}, 9, v{t}')
        for lam in range(4):
            a(f's_xor_b32 s{sT2}, s{S_W}, {lam}')
            if lam:
                a(f's_mul_i32 s{sT3}, s{sT2}, {15 * 1024}')
                a(f's_add_u32 s{sT3}, s{sT3}, {(lam - 1) * 5120}')
                a(f'v_lshl_add_u32 v{vRW + lam - 1}, v{L}, 4, s{sT3}')
            else:
                a(f's_mul_i32 s{sT3}, s{sT2}, {15 * 1024}')
                a(f'v_lshl_add_u32 v{vRR}, v{L}, 4, s{sT3}')
            a(f's_lshr_b32 s{sT3}, s{sT2}, 1')
            a(f's_add_u32 s{sT3}, s{sT3}, s{sT0}')
            a(f's_mul_i32 s{sT3}, s{sT3}, 98304')
            a(f's_and_b32 s{sT2}, s{sT2}, 1')
            a(f's_lshl_b32 s{sT2}, s{sT2}, 8')
            a(f's_add_u32 s{sT3}, s{sT3}, s{sT2}')
            a(f'v_add_u32 v{vA2 + lam}, s{sT3}, v{t}')
        a(f's_mul_i32 s{sT1}, s{S_W}, {12 * 2048}')
        a(f's_add_u32 s{sT1}, s{sT1}, {ACT}')
        a(f's_lshl_b32 s{sT0}, s{sRB}, 8')
        a(f's_add_u32 s{sT0}, s{sT0}, {C_F3 * 256}')
        self.drain()
        a('s_barrier')
        with self.wave0():
            a(f'buffer_atomic_add v{self.vOne}, off, {sr(S_WS, 4)}, s{sT0} sc1')
            self.spin(S_WS, f's{sT0}', 16, t)
        a('s_barrier')
        self.stamp(11)
        AF = 80

        def ld(kk, lam):
            i = (4 * kk + lam) % 40
            r = [f'buffer_load_dwordx4 {vr(AF + 4 * i, 4)}, v{vA2 + lam}, {sr(S_WS, 4)}, s{sT1} offen offset:{(kk & 1) * 2048} sc1']
            if lam == 3 and kk & 1 and kk < 11:
                r.append(f's_add_u32 s{sT1}, s{sT1}, 4096')
            return r
        lq = [ld(kk, lam) for kk in range(12) for lam in range(4)]
        for _ in range(self.opt['act_ahead']):
            for x in lq.pop(0):
                a(x)
        for kk in range(12):
            for lam in range(4):
                i = (4 * kk + lam) % 40
                for nt in range(5):
                    c = vr(4 * (5 * lam + nt), 4)
                    a(f'v_mfma_f32_16x16x32_bf16 {c}, {ar(4 * (5 * kk + nt), 4)}, {vr(AF + 4 * i, 4)}, {"0" if kk == 0 else c}')
                if lq:
                    for x in lq.pop(0):
                        a(x)
        RR = 200
        for i in range(10):
            a(f'v_accvgpr_read_b32 v{RR + i}, a{RES + i}')
        for lam in range(1, 4):
            for nt in range(5):
                a(f'ds_write_b128 v{vRW + lam - 1}, {vr(4 * (5 * lam + nt), 4)} offset:{1024 * nt}')
        a(f's_mov_b32 s{sT2}, 0xffff0000')
        for i in range(10):
            a(f'v_lshlrev_b32 v{t}, 16, v{RR + i}')
            a(f'v_and_b32 v{t2}, s{sT2}, v{RR + i}')
            a(f'v_add_f32 v{2 * i}, v{2 * i}, v{t}')
            a(f'v_add_f32 v{2 * i + 1}, v{2 * i + 1}, v{t2}')
        a('s_waitcnt lgkmcnt(0)')
        a('s_barrier')
        for nt in range(5):
            for s in range(3):
                a(f'ds_read_b128 {vr(AF + 12 * nt + 4 * s, 4)}, v{vRR} offset:{5120 * s + 1024 * nt}')
        for nt in range(5):
            b = AF + 12 * nt
            for p in range(2):
                a(f'v_pk_add_f32 {vr(4 * nt + 2 * p, 2)}, {vr(4 * nt + 2 * p, 2)}, {vr(b + 2 * p, 2)}')
                a(f'v_pk_add_f32 {vr(b + 4 + 2 * p, 2)}, {vr(b + 4 + 2 * p, 2)}, {vr(b + 8 + 2 * p, 2)}')
            for p in range(2):
                a(f'v_pk_add_f32 {vr(4 * nt + 2 * p, 2)}, {vr(4 * nt + 2 * p, 2)}, {vr(b + 4 + 2 * p, 2)}')
            for p in range(2):
                a(f'v_cvt_pk_bf16_f32 v{RR + 2 * nt + p}, v{4 * nt + 2 * p}, v{4 * nt + 2 * p + 1}')
            if nt & 1:
                a(f'buffer_store_dwordx4 {vr(RR + 2 * nt - 2, 4)}, v{vOut}, {sr(S_OUT, 4)}, 0 offen offset:{64 * (nt >> 1)}')
            if nt == 4:
                a(f'buffer_store_dwordx2 {vr(RR + 8, 2)}, v{vOut2}, {sr(S_OUT, 4)}, 0 offen offset:128')
        if self.diag:
            a('s_waitcnt vmcnt(0)')
            self.stamp(12)
            a('s_waitcnt lgkmcnt(0)')
            with self.wave0():
                a(f's_lshl_b32 s{sT0}, s2, 7')
                a(f's_add_u32 s{sT0}, s{sT0}, {STAMP}')
                for i in range(NSTAMP):
                    a(f'v_mov_b32 v0, s{S_STAMP + 2 * i}')
                    a(f'buffer_store_dword v0, off, {sr(S_WS, 4)}, s{sT0} offset:{4 * i}')
        a('.Lend:')
        a('s_endpgm')

    def build(self):
        a = self.a
        if self.diag:
            for i in range(2 * NSTAMP):
                a(f's_mov_b32 s{S_STAMP + i}, 0')
        self.prologue()
        self.conv()
        self.gemm1()
        self.gemm2()
        self.side()
        a('.Lcode_end:')
        a('s_endpgm')
        body = a.finish(verbose=True, align=self.opt.get('align', 1))
        ref = open('cdna_kernels/' + NAME + '.s.ref').read().split('\n')
        head = [l for l in ref if l.startswith(';') and '@launch' not in l and 'Override' not in l and 'grid=ceil' not in l]
        txt = '\n'.join(head) + '\n'
        txt += '; Generated by my generator script (one persistent launch; see comments there).\n'
        txt += '; @launch grid=(256,1,1) block=(256,1,1) lds=163840\n'
        txt += f'''.amdgcn_target "amdgcn-amd-amdhsa--gfx950"
.text
.globl {NAME}_kernel
.p2align 8
.type {NAME}_kernel,@function
{NAME}_kernel:
{body}.section .rodata,"a"
.p2align 6
.amdhsa_kernel {NAME}_kernel
  .amdhsa_next_free_vgpr 512
  .amdhsa_next_free_sgpr 102
  .amdhsa_accum_offset 256
  .amdhsa_group_segment_fixed_size 0
  .amdhsa_kernarg_size 104
  .amdhsa_user_sgpr_count 2
  .amdhsa_user_sgpr_kernarg_segment_ptr 1
  .amdhsa_system_sgpr_workgroup_id_x 1
  .amdhsa_float_denorm_mode_32 3
.end_amdhsa_kernel
'''
        return txt


if __name__ == '__main__':
    out = sys.argv[1]
    diag = 'diag' in sys.argv[2:]
    opt = {}
    for x in sys.argv[2:]:
        if '=' in x:
            k, v = x.split('=')
            try:
                v = int(v)
            except ValueError:
                try:
                    v = float(v)
                except ValueError:
                    pass
            opt[k] = v
    open(out, 'w').write(Gen(diag, opt).build())
```

```python
import struct
import sys
from asmlib import Asm, vr, ar, sr

NAME = 'sequential_preLN__ssm_conv_h3__geglu_ffn__prompt'

QS = 16384
CNT = 0
ST1 = 16384
CSF = 32768
STAMP = 65536
KVX = 131072
XP4 = KVX + 160 * QS
HP4 = XP4 + 160 * QS
WDF = HP4 + 160 * QS
ACT = WDF + 1966080
WS_END = ACT + 6291456
C_F1, C_FX, C_B1, C_B2, C_F3 = 0, 10, 16, 24, 32
SPIN = 200000

S_W = 3
S_K, S_V, S_SH, S_SK, S_X, S_WG, S_WU, S_WD, S_OUT, S_DBG, S_WS = 4, 8, 12, 16, 20, 24, 28, 32, 36, 40, 44
S_D = 48
sX, sJ, sG, sM, sQ, sRB, sCB, sA, sB = 50, 51, 52, 53, 54, 55, 56, 57, 58
sT0, sT1, sT2, sT3, sT4, sT5, sT6, sT7 = 60, 61, 62, 63, 64, 65, 66, 67
sWoff, sWoff2, sSpin, sDv = 68, 69, 70, 71
sOne = 72
S_STAMP = 76
NSTAMP = 13

GSTR = 4160
GW = 8 * GSTR
UBASE = 4 * GW
USTR = 4608
TILE = 40960


def f32(x):
    return '0x%08x' % struct.unpack('<I', struct.pack('<f', x))[0]


class Gen:
    def __init__(self, diag=False, opt=None):
        self.a = Asm()
        self.diag = diag
        self.opt = dict(w_kv=0, w_start=0, w_e1=0, ssm_late=0, flag2=0, tb_pre=2, s1_wait=0, wd_late=0, w45_where='hdrain', wd_tail=16, counted=1, a_ahead=12, act_ahead=16)
        if opt:
            self.opt.update(opt)

    def stamp(self, i):
        if self.diag and not (self.opt.get('dbg') and getattr(self, 'in_side', False) and i != 7):
            assert i < NSTAMP
            self.a(f'{"s_memtime" if self.opt.get("cyc") else "s_memrealtime"} {sr(S_STAMP + 2 * i, 2)}')

    def spin(self, srd, soff, target, vt, first_loaded=False, sleep=False):
        a = self.a
        top, done = a.label('spin'), a.label('done')
        chk = a.label('chk')
        with a.untracked():
            a(f's_mov_b32 s{sSpin}, {SPIN}')
            if first_loaded:
                a(f's_branch {chk}')
            a(f'{top}:')
            if sleep:
                a('s_sleep 4')
            a(f'buffer_load_dword v{vt}, off, {sr(srd, 4)}, {soff} sc1')
            a('s_waitcnt vmcnt(0)')
            a(f'{chk}:')
            a(f'v_readfirstlane_b32 s{sT7}, v{vt}')
            a(f's_sub_u32 s{sSpin}, s{sSpin}, 1')
            a(f's_cbranch_scc1 {done}')
            a(f's_cmp_lt_u32 s{sT7}, {target}')
            a(f's_cbranch_scc1 {top}')
            a(f'{done}:')

    def wave0(self):
        g = self

        class W:
            def __enter__(s):
                s.l = g.a.label('nw0')
                g.a(f's_cmp_lg_u32 s{S_W}, 0')
                g.a(f's_cbranch_scc1 {s.l}')
                s.u = g.a.untracked()
                s.u.__enter__()
                g.a('s_mov_b64 exec, 1')

            def __exit__(s, *x):
                g.a('s_mov_b64 exec, -1')
                s.u.__exit__()
                g.a(f'{s.l}:')
        return W()

    def drain(self):
        if self.opt['counted']:
            self.a.drain_stores()
        else:
            self.a('s_waitcnt vmcnt(0)')

    def prologue(self):
        a = self.a
        a('s_cmp_ge_u32 s2, 0x100')
        a('s_cbranch_scc1 .Lend')
        self.stamp(0)
        for srd, off in ((S_K, 8), (S_V, 16), (S_SH, 24), (S_SK, 32), (S_X, 0), (S_WG, 56), (S_WU, 64), (S_WD, 72),
                         (S_OUT, 80), (S_DBG, 88), (S_WS, 96), (S_D, 40)):
            a(f's_load_dwordx2 {sr(srd, 2)}, s[0:1], {off}')
        a(f's_getpc_b64 {sr(sT0, 2)}')
        a('.Lpc:')
        a('v_lshlrev_b32 v2, 7, v0')
        a('v_min_u32 v2, .Lcode_end-.Lpc-4, v2')
        a('v_mov_b32 v3, 0')
        a(f'v_lshl_add_u64 v[2:3], v[2:3], 0, {sr(sT0, 2)}')
        a('global_load_dword v255, v[2:3], off')
        a('v_lshrrev_b32 v1, 6, v0')
        a('v_and_b32 v0, 63, v0')
        a(f'v_readfirstlane_b32 s{S_W}, v1')
        for srd, n in ((S_K, 2621440), (S_V, 2621440), (S_SH, 5120), (S_SK, 4096), (S_X, 2621440), (S_WG, 1966080),
                       (S_WU, 1966080), (S_WD, 1966080), (S_OUT, 2621440), (S_DBG, 256), (S_WS, WS_END)):
            a(f's_mov_b32 s{srd + 2}, {n}')
            a(f's_mov_b32 s{srd + 3}, 0x20000')
        if self.opt.get('probe'):
            which = self.opt['probe']
            a(f's_load_dwordx2 {sr(sT0, 2)}, s[0:1], {48 if which == 1 else 96}')
            a(f's_mov_b32 s{sT2}, {2621440 if which == 1 else 0x8000000}')
            a(f's_mov_b32 s{sT3}, 0x20000')
            a(f's_mul_i32 s{sT4}, s2, 10240')
            if which == 2:
                a(f's_add_u32 s{sT4}, s{sT4}, 0x4000000')
            a('v_mov_b32 v2, 0')
            for i in range(16):
                a(f'buffer_load_dword v3, v2, {sr(sT0, 4)}, s{sT4} offen offset:{256 * i}')
                a('v_and_b32 v2, 0, v3')
        if self.opt.get('badmap'):
            a(f's_and_b32 s{sX}, s2, 31')
            a(f's_lshl_b32 s{sX}, s{sX}, 3')
            a(f's_lshr_b32 s2, s2, 5')
            a(f's_or_b32 s2, s2, s{sX}')
        a(f's_and_b32 s{sX}, s2, 7')
        a(f's_lshr_b32 s{sJ}, s2, 3')
        a(f's_and_b32 s{sM}, s{sJ}, 15')
        a(f's_mov_b32 s{sG}, s{sX}')
        a(f's_cmp_lt_u32 s{sJ}, 16')
        a.snapshot('role')
        a('s_cbranch_scc1 .Lconv')
        a(f's_add_u32 s{sG}, s{sX}, 8')
        a(f's_cmp_lt_u32 s{sX}, 2')
        a('s_cbranch_scc0 .Lside')
        a('.Lconv:')

    def gemm_ids(self):
        a = self.a
        a(f's_lshr_b32 s{sRB}, s{sX}, 1')
        a(f's_lshl_b32 s{sRB}, s{sRB}, 2')
        a(f's_lshr_b32 s{sT0}, s{sJ}, 3')
        a(f's_add_u32 s{sRB}, s{sRB}, s{sT0}')
        a(f's_and_b32 s{sCB}, s{sX}, 1')
        a(f's_lshl_b32 s{sCB}, s{sCB}, 3')
        a(f's_and_b32 s{sT0}, s{sJ}, 7')
        a(f's_add_u32 s{sCB}, s{sCB}, s{sT0}')
        a(f's_and_b32 s{sT0}, s{sCB}, 1')
        a(f's_mul_i32 s{sA}, s{sCB}, 6')
        a(f's_add_u32 s{sB}, s{sA}, 4')
        a(f's_lshl_b32 s{sT1}, s{sT0}, 1')
        a(f's_add_u32 s{sA}, s{sA}, s{sT1}')
        a(f's_lshl_b32 s{sT1}, s{sT0}, 2')
        a(f's_sub_u32 s{sB}, s{sB}, s{sT1}')

    vWL, vWL2, vWW, vWW2, vTmp, vTmp2, vOne = 254, 253, 252, 251, 250, 249, 248

    def w_addr(self):
        a = self.a
        t, t2 = self.vTmp, self.vTmp2
        a(f's_movk_i32 s{sT2}, 3072')
        a(f's_mul_i32 s{sT0}, s{S_W}, {8 * 3072}')
        a(f's_lshl_b32 s{sT1}, s{sA}, 5')
        a(f's_add_u32 s{sT0}, s{sT0}, s{sT1}')
        a(f'v_lshrrev_b32 v{t}, 3, v0')
        a(f'v_and_b32 v{t2}, 7, v0')
        a(f'v_lshl_add_u32 v{t2}, v{t2}, 4, s{sT0}')
        a(f'v_mad_u32_u24 v{self.vWL}, v{t}, s{sT2}, v{t2}')
        a(f's_mul_i32 s{sT0}, s{S_W}, {16 * 3072}')
        a(f's_lshl_b32 s{sT1}, s{sB}, 5')
        a(f's_add_u32 s{sT0}, s{sT0}, s{sT1}')
        a(f'v_lshrrev_b32 v{t}, 2, v0')
        a(f'v_and_b32 v{t2}, 3, v0')
        a(f'v_lshl_add_u32 v{t2}, v{t2}, 4, s{sT0}')
        a(f'v_mad_u32_u24 v{self.vWL2}, v{t}, s{sT2}, v{t2}')
        a(f's_mov_b32 s{sWoff}, 0')
        a(f's_mov_b32 s{sWoff2}, 0')
        a(f'v_mov_b32 v{self.vOne}, 1')

    def w_loads_main(self):
        out = []
        for i in range(40):
            srd = S_WU if i & 1 else S_WG
            g = [f'buffer_load_dwordx4 {ar(4 * i, 4)}, v{self.vWL}, {sr(srd, 4)}, s{sWoff} offen']
            if i & 1 and i != 39:
                g.append(f's_add_u32 s{sWoff}, s{sWoff}, {32 * 3072}')
            out.append(g)
        return out

    def w_loads_tail(self):
        out = []
        for i in range(20):
            srd = S_WU if i & 1 else S_WG
            g = [f'buffer_load_dwordx4 {ar(160 + 4 * i, 4)}, v{self.vWL2}, {sr(srd, 4)}, s{sWoff2} offen']
            if i & 1 and i != 19:
                g.append(f's_add_u32 s{sWoff2}, s{sWoff2}, {64 * 3072}')
            out.append(g)
        return out

    def w_write_addr_main(self):
        a = self.a
        t, t2 = self.vTmp, self.vTmp2
        a(f's_lshl_b32 s{sT0}, s{S_W}, 9')
        a(f'v_lshrrev_b32 v{t}, 3, v0')
        a(f'v_lshl_add_u32 v{t}, v{t}, 6, s{sT0}')
        a(f'v_and_b32 v{t2}, 1, v0')
        a(f'v_lshl_add_u32 v{t}, v{t2}, 4, v{t}')
        a(f'v_bfe_u32 v{t2}, v0, 1, 2')
        a(f'v_lshlrev_b32 v{self.vWW}, 5, v{t2}')
        a(f'v_xor_b32 v{t}, v{t}, v{self.vWW}')
        a(f's_mov_b32 s{sT0}, {TILE}')
        a(f'v_mad_u32_u24 v{self.vWW}, v{t2}, s{sT0}, v{t}')
        a(f'v_xor_b32 v{self.vWW2}, 32, v{self.vWW}')

    def w_writes_main(self):
        return [f'ds_write_b128 v{self.vWW2 if i & 1 else self.vWW}, {ar(4 * i, 4)} offset:{(i >> 1) * 2048}'
                for i in range(40)]

    def w_write_addr_tail(self):
        a = self.a
        t, t2 = self.vTmp, self.vTmp2
        a(f's_lshl_b32 s{sT0}, s{S_W}, 10')
        a(f'v_lshrrev_b32 v{t}, 2, v0')
        a(f'v_lshl_add_u32 v{t}, v{t}, 6, s{sT0}')
        a(f'v_and_b32 v{t2}, 1, v0')
        a(f'v_lshl_add_u32 v{t}, v{t2}, 4, v{t}')
        a(f'v_bfe_u32 v{t2}, v0, 1, 1')
        a(f'v_lshlrev_b32 v{self.vWW}, 5, v{t2}')
        a(f'v_xor_b32 v{t}, v{t}, v{self.vWW}')
        a(f's_mov_b32 s{sT0}, {TILE}')
        a(f'v_mad_u32_u24 v{self.vWW}, v{t2}, s{sT0}, v{t}')
        a(f'v_xor_b32 v{self.vWW2}, 32, v{self.vWW}')

    def w_writes_tail(self):
        return [f'ds_write_b128 v{self.vWW2 if i & 1 else self.vWW}, {ar(160 + 4 * i, 4)} offset:{(i >> 1) * 4096}'
                for i in range(20)]

    def check_init(self, vflag):
        self.spin(S_DBG, '0', 1, vflag, first_loaded=True)

    def conv(self):
        a = self.a
        o = self.opt
        vK, vKh, vC, vR = 1, 2, 3, 4
        SH = 8
        KR = 16
        VR = 38
        SK = 56
        WF = 88
        KF = 104
        KV = 148
        VF = 180
        O = 188
        a(f's_lshl_b32 s{sQ}, s{sG}, 4')
        a(f's_add_u32 s{sQ}, s{sQ}, s{sM}')
        a(f'v_and_b32 v{vC}, 15, v0')
        a(f'v_lshrrev_b32 v{vR}, 4, v0')
        a(f's_lshl_b32 s{sT0}, s{sM}, 2')
        a(f's_add_u32 s{sT0}, s{sT0}, s{S_W}')
        a(f's_mul_i32 s{sT0}, s{sT0}, {32 * 1280}')
        a(f's_lshl_b32 s{sT1}, s{sG}, 7')
        a(f's_add_u32 s{sT0}, s{sT0}, s{sT1}')
        a(f's_movk_i32 s{sT2}, {8 * 1280}')
        a(f'v_lshl_add_u32 v{vK}, v{vC}, 3, s{sT0}')
        a(f'v_mad_u32_u24 v{vK}, v{vR}, s{sT2}, v{vK}')
        a(f'v_subrev_u32 v{vKh}, 3840, v{vK}')
        a(f's_lshl_b32 s{sT1}, s{sG}, 9')
        a(f'v_lshl_add_u32 v5, v{vC}, 5, s{sT1}')
        a(f's_movk_i32 s{sT3}, 5120')
        linit = a.label('noinit')
        a(f's_lshl_b32 s{sT4}, s2, 2')
        a(f's_add_u32 s{sT4}, s{sT4}, s{S_W}')
        a.need(sr(S_WS, 2))
        a(f's_cmp_lg_u32 s{sT4}, 3')
        a(f's_cbranch_scc1 {linit}')
        with a.untracked():
            a('v_lshlrev_b32 v6, 8, v0')
            a('v_mov_b32 v7, 0')
            a(f'buffer_store_dword v7, v6, {sr(S_WS, 4)}, 0 offen sc1')
        a(f'{linit}:')
        a(f'buffer_load_dwordx4 {vr(SH, 4)}, v5, {sr(S_SH, 4)}, 0 offen')
        a(f'buffer_load_dwordx4 {vr(SH + 4, 4)}, v5, {sr(S_SH, 4)}, 0 offen offset:16')
        for r in range(3):
            a(f'buffer_load_dwordx2 {vr(KR + 2 * r, 2)}, v{vKh}, {sr(S_K, 4)}, 0 offen offset:{r * 1280}')
        for r in range(8):
            so = f's{sT3}' if r >= 4 else '0'
            a(f'buffer_load_dwordx2 {vr(KR + 6 + 2 * r, 2)}, v{vK}, {sr(S_K, 4)}, {so} offen offset:{(r & 3) * 1280}')
            a(f'buffer_load_dwordx2 {vr(VR + 2 * r, 2)}, v{vK}, {sr(S_V, 4)}, {so} offen offset:{(r & 3) * 1280}')
        a(f's_lshl_b32 s{sT0}, s{sQ}, 2')
        a(f's_add_u32 s{sT0}, s{sT0}, s{S_W}')
        a(f's_lshl_b32 s{sT1}, s{sT0}, 12')
        a(f's_add_u32 s{S_SK}, s{S_SK}, s{sT1}')
        a(f's_addc_u32 s{S_SK + 1}, s{S_SK + 1}, 0')
        a(f's_lshl_b32 s{sT0}, s{sT0}, 1')
        a(f's_and_b32 s{sT0}, s{sT0}, -4')
        a(f's_load_dword s{sDv}, {sr(S_D, 2)}, s{sT0}')
        vL16 = 6
        a(f'v_lshlrev_b32 v{vL16}, 4, v0')
        a(f'v_subrev_u32 v219, 16, v{vL16}')

        def ssm_loads():
            for j in range(4):
                if j == 0:
                    a(f'buffer_load_dwordx4 {vr(SK, 4)}, v219, {sr(S_SK, 4)}, 0 offen')
                else:
                    a(f'buffer_load_dwordx4 {vr(SK + 8 * j, 4)}, v{vL16}, {sr(S_SK, 4)}, 0 offen offset:{1024 * j - 16}')
                a(f'buffer_load_dwordx4 {vr(SK + 8 * j + 4, 4)}, v{vL16}, {sr(S_SK, 4)}, 0 offen offset:{1024 * j}')
        if o['ssm_late'] == 0:
            ssm_loads()
        linit = a.label('noinit')
        a(f's_cmp_lg_u32 s{sT4}, 3')
        a(f's_cbranch_scc1 {linit}')
        with a.untracked():
            a(f's_waitcnt vmcnt({21 if o["ssm_late"] else 29})' if o['counted'] else 's_waitcnt vmcnt(0)')
            a('v_mov_b32 v7, 1')
            a('s_mov_b64 exec, 1')
            a(f'buffer_store_dword v7, off, {sr(S_DBG, 4)}, 0 sc1')
            a('s_mov_b64 exec, -1')
        a(f'{linit}:')
        self.gemm_ids()
        self.w_addr()
        wl = self.w_loads_main()

        def w_some(n):
            for _ in range(n):
                for x in wl.pop(0):
                    a(x)
        w_some(o['w_start'])
        vSW, vSR, vKS, vG, vUL, vUW = 204, 205, 206, 207, 208, 209
        a(f's_mul_i32 s{sT0}, s{S_W}, {USTR}')
        a(f's_add_u32 s{sT0}, s{sT0}, {UBASE}')
        a(f's_movk_i32 s{sT1}, 272')
        a(f'v_lshl_add_u32 v{vSW}, v{vR}, 4, s{sT0}')
        a(f'v_mad_u32_u24 v{vSW}, v{vC}, s{sT1}, v{vSW}')
        a(f'v_lshl_add_u32 v{vSR}, v{vC}, 4, s{sT0}')
        a(f'v_mad_u32_u24 v{vSR}, v{vR}, s{sT1}, v{vSR}')
        a(f'v_add_u32 v{vUW}, s{sT0}, v{vL16}')
        vBa, vAa = 210, 211
        a(f's_add_u32 s{sT0}, s{sT0}, 32')
        a(f'v_lshl_add_u32 v{vBa}, v{vC}, 5, s{sT0}')
        a(f'v_lshl_add_u32 v{vBa}, v{vR}, 4, v{vBa}')
        a(f's_mul_i32 s{sT0}, s{sG}, {16 * QS}')
        a(f's_lshl_b32 s{sT1}, s{sM}, 10')
        a(f's_add_u32 s{sT0}, s{sT0}, s{sT1}')
        a(f's_lshl_b32 s{sT1}, s{S_W}, 8')
        a(f's_add_u32 s{sT0}, s{sT0}, s{sT1}')
        a(f's_mov_b32 s{sT1}, {QS}')
        a(f'v_lshl_add_u32 v{vKS}, v{vC}, 4, s{sT0}')
        a(f'v_mad_u32_u24 v{vKS}, v{vR}, s{sT1}, v{vKS}')
        a(f's_mul_i32 s{sT5}, s{S_W}, {GW}')
        a(f'v_add_u32 v{vG}, s{sT5}, v{vL16}')
        a(f'v_bfe_u32 v{vAa}, v0, 3, 1')
        a(f'v_sub_u32 v{vAa}, v{vAa}, v{vR}')
        a(f's_add_u32 s{sT0}, s{sT5}, 48')
        a(f'v_lshl_add_u32 v{vAa}, v{vAa}, 4, s{sT0}')
        vI7 = 212
        a(f'v_and_b32 v{vI7}, 7, v0')
        a(f's_movk_i32 s{sT1}, {GSTR}')
        a(f'v_mad_u32_u24 v{vAa}, v{vI7}, s{sT1}, v{vAa}')
        vGZ = 213
        a(f'v_mov_b32 v{vGZ}, s{sT5}')
        a(f'v_mad_u32_u24 v{vGZ}, v{vI7}, s{sT1}, v{vGZ}')
        a(f's_mul_i32 s{sT6}, s{sQ}, {QS}')
        a(f's_lshl_b32 s{sT1}, s{S_W}, 6')
        a(f's_add_u32 s{sT0}, s{sT6}, s{sT1}')
        a(f'v_and_b32 v{vUL}, 3, v0')
        a(f'v_lshl_add_u32 v{vUL}, v{vUL}, 4, s{sT0}')
        a(f'v_lshrrev_b32 v5, 2, v0')
        a(f'v_lshl_add_u32 v{vUL}, v5, 8, v{vUL}')
        vXS, vHS = 214, 215
        a(f's_lshl_b32 s{sT0}, s{S_W}, 12')
        a(f'v_lshl_add_u32 v{vXS}, v{vC}, 7, s{sT0}')
        a(f'v_lshl_add_u32 v{vXS}, v{vR}, 5, v{vXS}')
        a(f's_add_u32 s{sT0}, s{sT0}, s{sT6}')
        a(f'v_add_u32 v{vHS}, s{sT0}, v{vL16}')
        vZR, vZR2 = 216, 217
        a(f's_lshl_b32 s{sT0}, s{S_W}, 11')
        a(f'v_add_u32 v{vZR}, s{sT0}, v{vL16}')
        a(f'v_add_u32 v{vZR2}, {2 * GW}, v{vZR}')
        ZERO = 220
        for i in range(4):
            a(f'v_mov_b32 v{ZERO + i}, 0')
        a(f's_mov_b32 s{sT2}, 0xffff0000')
        for ch in range(4):
            for j in range(4):
                src = SH + 2 * ch + (j >> 1)
                if j & 1:
                    a(f'v_and_b32 v{WF + 4 * j + ch}, s{sT2}, v{src}')
                else:
                    a(f'v_lshlrev_b32 v{WF + 4 * j + ch}, 16, v{src}')

        def unpack(dst, src):
            a(f'v_lshlrev_b32 v{dst}, 16, v{src}')
            a(f'v_and_b32 v{dst + 1}, s{sT2}, v{src}')
            a(f'v_lshlrev_b32 v{dst + 2}, 16, v{src + 1}')
            a(f'v_and_b32 v{dst + 3}, s{sT2}, v{src + 1}')
        for r in range(3):
            unpack(KF + 4 * r, KR + 2 * r)
        self.stamp(1)
        if o['ssm_late'] == 1:
            ssm_loads()
        if o['flag2']:
            linit = a.label('noinit')
            a(f's_cmp_lg_u32 s{sT4}, 3')
            a(f's_cbranch_scc1 {linit}')
            with a.untracked():
                a('s_mov_b64 exec, 1')
                a(f'buffer_store_dword v7, off, {sr(S_DBG, 4)}, 0 offset:128 sc1')
                a('s_mov_b64 exec, -1')
            a(f'{linit}:')
        for r in range(8):
            unpack(KF + 4 * (r + 3), KR + 2 * (r + 3))
            vf = VF + 4 * (r & 1)
            for j in (3, 2, 1, 0):
                for p in range(2):
                    d = vr(KV + 4 * r + 2 * p, 2)
                    k = vr(KF + 4 * (r + 3 - j) + 2 * p, 2)
                    w = vr(WF + 4 * j + 2 * p, 2)
                    if j == 3:
                        a(f'v_pk_mul_f32 {d}, {k}, {w}')
                    else:
                        a(f'v_pk_fma_f32 {d}, {k}, {w}, {d}')
                if j == 3:
                    unpack(vf, VR + 2 * r)
            for p in range(2):
                d = vr(KV + 4 * r + 2 * p, 2)
                a(f'v_pk_mul_f32 {d}, {d}, {vr(vf + 2 * p, 2)}')
            if r & 1:
                d = (7 - r) >> 1
                for ch in range(4):
                    a(f'v_cvt_pk_bf16_f32 v{O + 4 * ch + d}, v{KV + 4 * r + ch}, v{KV + 4 * (r - 1) + ch}')
        for ch in range(4):
            a(f'ds_write_b128 v{vSW}, {vr(O + 4 * ch, 4)} offset:{ch * 64}')
        for j in range(4):
            a(f'ds_read_b128 {vr(KV + 4 * j, 4)}, v{vSR} offset:{j * 1088}')
        a(f's_mov_b32 s{sT0}, {KVX}')
        for j in range(4):
            a(f'buffer_store_dwordx4 {vr(KV + 4 * j, 4)}, v{vKS}, {sr(S_WS, 4)}, s{sT0} offen sc1')
            if j < 3:
                a(f's_add_u32 s{sT0}, s{sT0}, {4 * QS}')
        self.stamp(2)
        vFl = 218
        a(f'buffer_load_dword v{vFl}, off, {sr(S_DBG, 4)}, 0 sc1')
        a(f'ds_write_b128 v{vUW}, {vr(ZERO, 4)}')
        a(f'ds_write_b128 v{vGZ}, {vr(ZERO, 4)}')
        def table(j):
            D = SK + 8 * j
            Ea, Eb, Db = KF + 20 * (j & 1), KF + 20 * (j & 1) + 8, KF + 20 * (j & 1) + 14

            def wr(rho, reg):
                a(f'ds_write_b128 v{vG}, {vr(reg, 4)} offset:{rho * GSTR + 1024 * j + 16}')
            wr(7, D + 4)
            wr(3, D + 2)
            for i in range(3):
                a(f'v_pk_mov_b32 {vr(Db + 2 * i, 2)}, {vr(D + 2 * i, 2)}, {vr(D + 2 * i + 2, 2)} op_sel:[1,0]')
            for i in range(7):
                a(f'v_alignbit_b32 v{Ea + i}, v{D + i + 1}, v{D + i}, 16')
            wr(1, Db)
            wr(5, Db + 2)
            for i in range(3):
                a(f'v_pk_mov_b32 {vr(Eb + 2 * i, 2)}, {vr(Ea + 2 * i, 2)}, {vr(Ea + 2 * i + 2, 2)} op_sel:[1,0]')
            wr(0, Ea)
            wr(4, Ea + 2)
            wr(2, Eb)
            wr(6, Eb + 2)
        w_some(o['w_kv'])
        for j in range(o['tb_pre']):
            table(j)
        a.need(f'v{vFl}')
        self.drain()
        a('s_barrier')
        self.stamp(3)
        a(f's_lshl_b32 s{sT0}, s{sG}, 8')
        with self.wave0():
            self.check_init(vFl)
            a(f'buffer_atomic_add v{self.vOne}, off, {sr(S_WS, 4)}, s{sT0} sc1')
        w_some(o['w_e1'])
        for j in range(o['tb_pre'], 4):
            table(j)
        AD = 224
        a.need(f's{sDv}')
        a(f's_and_b32 s{sT1}, s{S_W}, 1')
        a(f's_lshl_b32 s{sT1}, s{sT1}, 4')
        a(f's_lshr_b32 s{sDv}, s{sDv}, s{sT1}')
        a(f's_and_b32 s{sDv}, s{sDv}, 0xffff')
        a(f'v_sub_u32 v5, 7, v{vI7}')
        a(f'v_and_b32 v7, 1, v5')
        a(f'v_lshlrev_b32 v7, 4, v7')
        a(f'v_lshlrev_b32 v7, v7, s{sDv}')
        a(f'v_bfe_u32 v8, v0, 3, 1')
        a(f'v_add_u32 v8, 2, v8')
        a(f'v_cmp_eq_u32 vcc, v8, v{vR}')
        a(f'v_cndmask_b32 v7, 0, v7, vcc')
        a(f'v_lshrrev_b32 v5, 1, v5')
        for d in range(4):
            a(f'v_cmp_eq_u32 vcc, {d}, v5')
            a(f'v_cndmask_b32 v{AD + d}, 0, v7, vcc')
        ACC = 8
        BUF = (40, 104)
        XR, SR = 168, 184

        def rdA(it, t):
            return f'ds_read_b128 {vr(BUF[it & 1] + 4 * t, 4)}, v{vAa} offset:{64 * it + 512 * t}'

        def rdB(it, t):
            return f'ds_read_b128 {vr(BUF[it & 1] + 32 + 4 * t, 4)}, v{vBa} offset:{448 - 64 * it + 512 * t}'
        for t in range(8):
            a(rdA(0, t))
        with self.wave0():
            self.spin(S_WS, f's{sT0}', 16, vFl)
        a('s_barrier')
        self.stamp(4)
        a(f's_mov_b32 s{sT0}, {KVX}')
        for j in range(4):
            a(f'buffer_load_dwordx4 {vr(BUF[1] + 4 * j, 4)}, v{vUL}, {sr(S_WS, 4)}, s{sT0} offen sc1')
            if j < 3:
                a(f's_add_u32 s{sT0}, s{sT0}, 4096')
        for j in range(4):
            a(f'ds_write_b128 v{vUW}, {vr(BUF[1] + 4 * j, 4)} offset:{512 + 1024 * j}')
            a(rdB(0, 2 * j))
            a(rdB(0, 2 * j + 1))
        self.stamp(5)
        a(f's_mov_b32 s{sT3}, {C_FX * 256}')
        a(f's_mov_b32 s{sT4}, {ST1}')
        a(f's_add_u32 s{sT6}, s{sT6}, {XP4}')
        for it in range(8):
            A, B = BUF[it & 1], BUF[it & 1] + 32
            mf = []
            for tp in range(8):
                if it == 0:
                    mf.append(f'v_mfma_f32_16x16x32_bf16 {vr(ACC + 4 * tp, 4)}, {vr(AD, 4)}, {vr(B + 4 * tp, 4)}, 0')
            for tp in range(8):
                for t in range(8 - tp):
                    c = vr(ACC + 4 * (t + tp), 4)
                    mf.append(f'v_mfma_f32_16x16x32_bf16 {c}, {vr(A + 4 * t, 4)}, {vr(B + 4 * tp, 4)}, {c}')
            fill = [[] for _ in mf]
            if it < 7:
                rd = [rdB(it + 1, 0)] + [rdA(it + 1, t) for t in range(8)] + [rdB(it + 1, t) for t in range(1, 8)]
                base = 8 if it == 0 else 0
                for i, x in enumerate(rd):
                    fill[base + 2 * i].append(x)
                n = (len(wl) + (6 - it)) // (7 - it)
                for i in range(n):
                    fill[base + 1 + 2 * ((i * 17) // n)] += wl.pop(0)
            if it == 0:
                w_some(0)
            if it == 2:
                fill[33].append(f'buffer_load_dword v{vFl}, off, {sr(S_WS, 4)}, s{sT3} sc1')
            if it == 7:
                ops = []
                for T in range(2):
                    for row in range(4):
                        src = XR + 8 * T + 2 * row
                        xf = BUF[0] + 16 * T + 4 * row
                        st = SR + 8 * T + 2 * row
                        ops += [f'v_lshlrev_b32 v{xf}, 16, v{src}', f'v_and_b32 v{xf + 1}, s{sT2}, v{src}',
                                f'v_lshlrev_b32 v{xf + 2}, 16, v{src + 1}', f'v_and_b32 v{xf + 3}, s{sT2}, v{src + 1}']
                        ops += [f'v_fma_f32 v{xf + 32 + c}, v{xf + c}, v{st}, v{st + 1}' for c in range(4)]
                for i, x in enumerate(ops):
                    fill[2 + i // 2].append(x)
            if it == 4:
                a.need(f'v{vFl}')
                self.spin(S_WS, f's{sT3}', 64, vFl, first_loaded=True)
                k = 0
                for T in range(2):
                    for p in range(2):
                        off = 2048 * T + 16 * p
                        fill[4 * k + 3].append(f'buffer_load_dwordx4 {vr(XR + 8 * T + 4 * p, 4)}, v{vXS}, {sr(S_WS, 4)}, s{sT6} offen offset:{off} sc1')
                        fill[4 * k + 5].append(f'buffer_load_dwordx4 {vr(SR + 8 * T + 4 * p, 4)}, v{vXS}, {sr(S_WS, 4)}, s{sT4} offen offset:{off} sc1')
                        k += 2
            if it > 0:
                a.need(vr(BUF[it & 1], 36))
            for m, f in zip(mf, fill):
                a(m)
                for x in f:
                    a(x)
        assert not wl
        self.stamp(6)
        for T in range(8):
            a(f'ds_write_b128 v{vG}, {vr(ACC + 4 * T, 4)} offset:{1024 * T}')
        a('s_waitcnt lgkmcnt(0)')
        a('s_barrier')
        Z = BUF[1]
        for T in range(2):
            for ch in range(4):
                a(f'ds_read_b128 {vr(Z + 16 * T + 4 * ch, 4)}, v{vZR2 if ch & 2 else vZR} offset:{(ch & 1) * GW + 1024 * T}')
        a(f's_mov_b32 s{sT0}, {HP4}')
        XF, QF, HO = BUF[0], BUF[0] + 32, ACC
        for T in range(2):
            for p in range(2):
                for b in range(2):
                    row = 2 * p + b
                    for c in range(4):
                        x = XF + 16 * T + 4 * row + c
                        a(f'v_fmac_f32 v{x}, v{x + 32}, v{Z + 16 * T + 4 * c + row}')
                    for c2 in range(2):
                        x = XF + 16 * T + 4 * row + 2 * c2
                        a(f'v_cvt_pk_bf16_f32 v{HO + 8 * T + 4 * p + 2 * b + c2}, v{x}, v{x + 1}')
                a(f'buffer_store_dwordx4 {vr(HO + 8 * T + 4 * p, 4)}, v{vHS}, {sr(S_WS, 4)}, s{sT0} offen offset:{2048 * T + 1024 * p} sc1')
        self.stamp(7)
        self.w_write_addr_main()
        a('s_barrier')
        wt = self.w_loads_tail()
        ww = self.w_writes_main()
        for i in range(20):
            for x in wt[i]:
                a(x)
            a(ww[i])
        self.drain()
        a('s_barrier')
        self.arrive_e2()
        for i in range(20, 40):
            a(ww[i])
        a.snapshot('join')
        a('.Ljoin:')

    def arrive_e2(self):
        a = self.a
        a(f's_lshl_b32 s{sT0}, s{sX}, 8')
        a(f's_add_u32 s{sT0}, s{sT0}, {C_B1 * 256}')
        with self.wave0():
            l = a.label('notlast')
            a(f'v_mov_b32 v{self.vTmp}, 1')
            a(f'buffer_atomic_add v{self.vTmp}, off, {sr(S_WS, 4)}, s{sT0} sc0 sc1')
            a('s_waitcnt vmcnt(0)')
            a(f'v_readfirstlane_b32 s{sT7}, v{self.vTmp}')
            a(f's_cmp_lg_u32 s{sT7}, 31')
            a(f's_cbranch_scc1 {l}')
            a('s_mov_b64 exec, 0xff')
            a(f'v_lshlrev_b32 v{self.vTmp}, 8, v0')
            a(f's_movk_i32 s{sT7}, {C_B2 * 256}')
            a(f'buffer_atomic_add v{self.vOne}, v{self.vTmp}, {sr(S_WS, 4)}, s{sT7} offen sc1')
            a(f'{l}:')

    def side(self):
        a = self.a
        self.in_side = True
        a('.Lside:')
        a.fresh('role')
        vTid = 1
        a(f'v_lshl_add_u32 v{vTid}, s{S_W}, 6, v0')
        a(f's_sub_u32 s{sG}, s{sX}, 2')
        a(f's_lshl_b32 s{sG}, s{sG}, 4')
        a(f's_add_u32 s{sG}, s{sG}, s{sM}')
        self.gemm_ids()
        self.w_addr()
        a.need(sr(S_WS, 2))
        if self.opt['s1_wait']:
            self.spin(S_DBG, '0', 1, 13, sleep=True)
        a(f's_cmp_ge_u32 s{sG}, 64')
        a.snapshot('s2')
        a('s_cbranch_scc1 .Ls2')
        XR, WR = 16, 56
        vA, vRow, vS8 = 2, 3, 4
        a(f'v_lshrrev_b32 v{vRow}, 3, v{vTid}')
        a(f'v_and_b32 v{vS8}, 7, v0')
        a(f's_mul_i32 s{sT0}, s{sG}, {32 * 1280}')
        a(f's_movk_i32 s{sT1}, 1280')
        a(f'v_lshl_add_u32 v{vA}, v{vS8}, 4, s{sT0}')
        a(f'v_mad_u32_u24 v{vA}, v{vRow}, s{sT1}, v{vA}')
        for j in range(10):
            a(f'buffer_load_dwordx4 {vr(XR + 4 * j, 4)}, v{vA}, {sr(S_X, 4)}, 0 offen offset:{128 * j}')
        def wd_loads():
            for j in range(10):
                a(f'buffer_load_dwordx4 {vr(WR + 4 * j, 4)}, v{vA}, {sr(S_WD, 4)}, 0 offen offset:{128 * j}')
        if not self.opt['wd_late']:
            wd_loads()
        vW, vRd, vSt = 5, 6, 7
        a(f's_movk_i32 s{sT1}, 528')
        a(f'v_lshlrev_b32 v{vW}, 3, v{vRow}')
        a(f'v_mad_u32_u24 v{vW}, v{vS8}, s{sT1}, v{vW}')
        a(f'v_and_b32 v{vRd}, 31, v0')
        a(f'v_lshlrev_b32 v{vRd}, 4, v{vRd}')
        a(f'v_lshrrev_b32 v8, 5, v{vTid}')
        a(f'v_mad_u32_u24 v{vRd}, v8, s{sT1}, v{vRd}')
        a(f's_lshl_b32 s{sT0}, s{sG}, 8')
        a(f'v_and_b32 v{vSt}, 15, v0')
        a(f'v_lshl_add_u32 v{vSt}, v{vSt}, 4, s{sT0}')
        a(f'v_lshrrev_b32 v8, 4, v{vTid}')
        a(f's_mov_b32 s{sT1}, {QS}')
        a(f'v_mad_u32_u24 v{vSt}, v8, s{sT1}, v{vSt}')
        for j in range(10):
            for o_ in range(2):
                a(f'ds_write_b64 v{vW}, {vr(XR + 4 * j + 2 * o_, 2)} offset:{j * 4224 + o_ * 256}')
        a('s_waitcnt lgkmcnt(0)')
        a('s_barrier')
        XO = 96
        for j in range(10):
            a(f'ds_read_b128 {vr(XO + 4 * j, 4)}, v{vRd} offset:{j * 4224}')
        a(f's_mov_b32 s{sT1}, {XP4}')
        for j in range(10):
            a(f'buffer_store_dwordx4 {vr(XO + 4 * j, 4)}, v{vSt}, {sr(S_WS, 4)}, s{sT1} offen sc1')
            a(f's_add_u32 s{sT1}, s{sT1}, {16 * QS}')
        a(f's_mov_b32 s{sOne}, 0x3f803f80')
        for i in range(4):
            a(f'v_mov_b32 v{8 + i}, 0')
        for i in range(40):
            a(f'v_dot2c_f32_bf16 v{8 + (i & 1)}, s{sOne}, v{XR + i}')
            a(f'v_dot2c_f32_bf16 v{10 + (i & 1)}, v{XR + i}, v{XR + i}')
        a('v_add_f32 v8, v8, v9')
        a('v_add_f32 v10, v10, v11')
        for m in ('quad_perm:[1,0,3,2]', 'quad_perm:[2,3,0,1]', 'row_half_mirror'):
            a(f'v_add_f32_dpp v8, v8, v8 {m} row_mask:0xf bank_mask:0xf')
            a(f'v_add_f32_dpp v10, v10, v10 {m} row_mask:0xf bank_mask:0xf')
        a(f'v_mul_f32 v8, {f32(1 / 640)}, v8')
        a(f'v_mul_f32 v10, {f32(1 / 640)}, v10')
        a('v_fma_f32 v10, -v8, v8, v10')
        a('v_max_f32 v10, 0, v10')
        a(f'v_add_f32 v10, {f32(1e-5)}, v10')
        a('v_rsq_f32 v10, v10')
        a(f'v_lshl_add_u32 v12, v{vRow}, 3, s{sT0}')
        a('v_mul_f32 v11, -v8, v10')
        a(f's_mov_b32 s{sT1}, {ST1}')
        a('s_mov_b32 exec_lo, 0x01010101')
        a('s_mov_b32 exec_hi, 0x01010101')
        a(f'buffer_store_dwordx2 v[10:11], v12, {sr(S_WS, 4)}, s{sT1} offen sc1')
        a('s_mov_b64 exec, -1')
        vFl = 13
        a(f'buffer_load_dword v{vFl}, off, {sr(S_DBG, 4)}, 0 sc1')
        WB = 49152
        a(f's_movk_i32 s{sT1}, 1344')
        a(f'v_lshlrev_b32 v{vW}, 4, v{vS8}')
        a(f'v_mad_u32_u24 v{vW}, v{vRow}, s{sT1}, v{vW}')
        if self.opt['wd_late']:
            wd_loads()
        a.need(f'v{vFl}')
        self.drain()
        a('s_barrier')
        a(f's_movk_i32 s{sT0}, {C_FX * 256}')
        with self.wave0():
            self.check_init(vFl)
            a(f'buffer_atomic_add v{self.vOne}, off, {sr(S_WS, 4)}, s{sT0} sc1')
        self.stamp(1)
        for j in range(10):
            a(f'ds_write_b128 v{vW}, {vr(WR + 4 * j, 4)} offset:{WB + 128 * j}')
        a('s_waitcnt vmcnt(0) lgkmcnt(0)')
        a('s_barrier')
        self.stamp(2)
        ls3 = a.label('nos3')
        a(f's_cmp_ge_u32 s{sG}, 48')
        a(f's_cbranch_scc1 {ls3}')
        with a.untracked():
            a('v_lshrrev_b32 v8, 4, v0')
            a('v_bfe_u32 v9, v0, 2, 2')
            a('v_lshl_add_u32 v8, v8, 3, v9')
            a(f's_mul_i32 s{sT0}, s{S_W}, 320')
            a(f'v_mov_b32 v9, s{sT0}')
            a(f'v_mad_u32_u24 v8, v8, s{sT1}, v9')
            a('v_and_b32 v9, 3, v0')
            a('v_lshl_add_u32 v10, v9, 3, v8')
            a('v_lshl_add_u32 v8, v9, 4, v8')
            for cc in range(2):
                for nt in range(5):
                    for e in range(2):
                        off = WB + cc * 160 + e * 4 * 1344 + ((nt >> 1) * 64 + (nt & 1) * 8)
                        a(f'ds_read_b64_tr_b16 {vr(XO + 4 * (5 * cc + nt) + 2 * e, 2)}, v{10 if nt == 4 else 8} offset:{off}')
            a(f's_mul_i32 s{sT0}, s{S_W}, 96')
            a(f's_add_u32 s{sT0}, s{sT0}, s{sG}')
            a(f's_mul_i32 s{sT0}, s{sT0}, 5120')
            a(f's_add_u32 s{sT0}, s{sT0}, {WDF}')
            a('v_lshlrev_b32 v9, 4, v0')
            a('s_waitcnt lgkmcnt(0)')
            for cc in range(2):
                for nt in range(5):
                    if nt == 4:
                        a(f's_add_u32 s{sT0}, s{sT0}, 4096')
                    a(f'buffer_store_dwordx4 {vr(XO + 4 * (5 * cc + nt), 4)}, v9, {sr(S_WS, 4)}, s{sT0} offen offset:{(nt & 3) * 1024} sc1')
                a(f's_add_u32 s{sT0}, s{sT0}, {48 * 5120 - 4096}')
        a(f'{ls3}:')
        a('s_branch .Lside_w')
        a('.Ls2:')
        a.fresh('s2')
        if self.opt['flag2']:
            a(f's_movk_i32 s{sT0}, 128')
            self.spin(S_DBG, f's{sT0}', 1, 13, sleep=True)
        a(f'buffer_load_dword v13, off, {sr(S_DBG, 4)}, 0 sc1')
        a('s_waitcnt vmcnt(0)')
        self.stamp(1)
        a(f's_cmp_ge_u32 s{sG}, 88')
        a('s_cbranch_scc1 .Ls2_done')
        a(f's_sub_u32 s{sT0}, s{sG}, 64')
        a(f's_cmp_ge_u32 s{sT0}, 12')
        a(f's_cselect_b32 s{S_WD}, s{S_WU}, s{S_WG}')
        a(f's_cselect_b32 s{S_WD + 1}, s{S_WU + 1}, s{S_WG + 1}')
        a(f's_cselect_b32 s{sT1}, 12, 0')
        a(f's_sub_u32 s{sT1}, s{sT0}, s{sT1}')
        a(f's_lshl_b32 s{sT1}, s{sT1}, 8')
        a('v_and_b32 v2, 15, v0')
        a(f'v_lshrrev_b32 v3, 4, v{vTid}')
        a(f'v_lshl_add_u32 v4, v2, 4, s{sT1}')
        a(f's_movk_i32 s{sT2}, 3072')
        a(f'v_mad_u32_u24 v4, v3, s{sT2}, v4')
        a(f's_mov_b32 s{sT2}, 0')
        for i in range(40):
            a(f'buffer_load_dwordx4 {vr(32 + 4 * i, 4)}, v4, {sr(S_WD, 4)}, s{sT2} offen')
            a(f's_add_u32 s{sT2}, s{sT2}, {16 * 3072}')
        for i in range(8):
            a(f'v_mov_b32 v{16 + i}, 0')
        a(f's_mov_b32 s{sT2}, 0x3f80')
        a(f's_mov_b32 s{sT3}, 0x3f800000')
        for i in range(160):
            a(f'v_dot2c_f32_bf16 v{16 + 2 * (i & 3)}, s{sT2}, v{32 + i}')
            a(f'v_dot2c_f32_bf16 v{17 + 2 * (i & 3)}, s{sT3}, v{32 + i}')
        a(f'v_lshlrev_b32 v5, 5, v{vTid}')
        a('ds_write_b128 v5, v[16:19]')
        a('ds_write_b128 v5, v[20:23] offset:16')
        a('s_waitcnt lgkmcnt(0)')
        a('s_barrier')
        a(f'v_and_b32 v5, 127, v{vTid}')
        a('v_lshlrev_b32 v6, 2, v5')
        for i in range(16):
            a(f'ds_read_b32 v{32 + i}, v6 offset:{512 * i}')
        for i in range(1, 16):
            a(f'v_add_f32 v32, v32, v{32 + i}')
        a('v_cvt_pk_bf16_f32 v8, v32, v32')
        a('v_lshlrev_b32 v10, 16, v8')
        a('v_sub_f32 v10, v32, v10')
        a('v_cvt_pk_bf16_f32 v9, v10, v10')
        a(f's_lshl_b32 s{sT0}, s{sT0}, 10')
        a(f's_add_u32 s{sT0}, s{sT0}, {CSF}')
        a('v_lshrrev_b32 v6, 5, v5')
        a('v_lshlrev_b32 v6, 8, v6')
        a('v_lshl_add_u32 v6, v2, 4, v6')
        a('v_bfe_u32 v7, v5, 4, 1')
        a('v_lshl_add_u32 v6, v7, 3, v6')
        a(f'buffer_store_dwordx2 v[8:9], v6, {sr(S_WS, 4)}, s{sT0} offen sc1')
        a('.Ls2_done:')
        self.stamp(2)
        with self.wave0():
            self.check_init(13)
        a('.Lside_w:')
        a.fresh()
        for g in self.w_loads_main() + self.w_loads_tail():
            for x in g:
                a(x)
        self.w_write_addr_main()
        a('s_waitcnt vmcnt(0) lgkmcnt(0)')
        a('s_barrier')
        self.stamp(6)
        self.arrive_e2()
        for x in self.w_writes_main():
            a(x)
        self.stamp(7)
        a('s_branch .Ljoin')

    def gemm1(self):
        a = self.a
        o = self.opt
        t, t2 = self.vTmp, self.vTmp2
        vTR = 224
        vAL, vAS, vWD, vCS = 228, 229, 230, 231
        vS = 232
        BP = 236
        CS45 = 242
        TM = 246
        ACC = 160
        RING1, CS01, RING2 = 128, 152, 240
        a(f'v_lshrrev_b32 v{t}, 5, v0')
        a(f'v_bfe_u32 v{t2}, v0, 2, 2')
        a(f'v_lshl_add_u32 v{t}, v{t}, 3, v{t2}')
        a(f'v_lshlrev_b32 v{t}, 6, v{t}')
        a(f'v_and_b32 v{t2}, 3, v0')
        a(f'v_lshl_add_u32 v{t}, v{t2}, 4, v{t}')
        a(f'v_bfe_u32 v{t2}, v0, 4, 1')
        a(f'v_lshl_add_u32 v{vTR}, v{t2}, 3, v{t}')
        for s in range(1, 4):
            a(f'v_xor_b32 v{t}, {32 * s}, v{vTR}')
            a(f'v_add_u32 v{vTR + s}, {TILE * s}, v{t}')
        a(f's_lshl_b32 s{sT0}, s{sRB}, 2')
        a(f's_add_u32 s{sT0}, s{sT0}, s{S_W}')
        a(f's_lshl_b32 s{sT1}, s{sT0}, 8')
        a(f'v_and_b32 v{t}, 15, v0')
        a(f'v_lshl_add_u32 v{t}, v{t}, 4, s{sT1}')
        a(f'v_lshrrev_b32 v{t2}, 4, v0')
        a(f's_mov_b32 s{sT1}, {QS}')
        a(f'v_mad_u32_u24 v{vAL}, v{t2}, s{sT1}, v{t}')
        a(f's_mul_i32 s{sT1}, s{sT0}, 98304')
        a(f'v_lshl_add_u32 v{vAS}, v0, 4, s{sT1}')
        a(f's_and_b32 s{sT0}, s{sJ}, 7')
        a(f's_lshl_b32 s{sT0}, s{sT0}, 2')
        a(f's_add_u32 s{sT0}, s{sT0}, s{S_W}')
        a(f's_mul_i32 s{sT0}, s{sT0}, {12 * 5120}')
        a(f'v_lshl_add_u32 v{vWD}, v0, 4, s{sT0}')
        a(f'v_and_b32 v{t}, 3, v0')
        a(f'v_bfe_u32 v{t2}, v0, 2, 1')
        a(f'v_lshl_add_u32 v{t}, v{t2}, 3, v{t}')
        a(f'v_bfe_u32 v{t2}, v0, 4, 1')
        a(f'v_lshl_add_u32 v{t}, v{t2}, 2, v{t}')
        a(f'v_lshlrev_b32 v{t}, 4, v{t}')
        a(f'v_bfe_u32 v{t2}, v0, 3, 1')
        a(f's_movk_i32 s{sT1}, 12288')
        a(f'v_mad_u32_u24 v{vCS}, v{t2}, s{sT1}, v{t}')
        self.w_write_addr_tail()
        for i in range(4):
            a(f'v_mov_b32 v{vS + i}, 0')
        for i in (0, 1, 4, 5):
            a(f'v_mov_b32 v{BP + i}, 0')
        a(f's_mov_b32 s{sOne}, 0x3f803f80')
        a(f's_lshl_b32 s{sT2}, s{sA}, 7')
        a(f's_add_u32 s{sT2}, s{sT2}, {CSF}')
        a(f's_lshl_b32 s{sT3}, s{sB}, 7')
        a(f's_add_u32 s{sT3}, s{sT3}, {CSF}')
        a(f's_lshl_b32 s{sA}, s{sA}, 10')
        a(f's_add_u32 s{sA}, s{sA}, {ACT}')
        a(f's_lshl_b32 s{sB}, s{sB}, 10')
        a(f's_add_u32 s{sB}, s{sB}, {ACT}')
        a(f's_mov_b32 s{sWoff}, {WDF}')
        a(f's_mov_b32 s{sT1}, {HP4}')
        a(f's_lshl_b32 s{sT0}, s{sX}, 8')
        a(f's_add_u32 s{sT0}, s{sT0}, {C_B2 * 256}')
        a.need('v255')
        a(f'v_mov_b32 v255, v0')
        with self.wave0():
            self.spin(S_WS, f's{sT0}', 8, t)
        a('s_waitcnt lgkmcnt(0)')
        a('s_barrier')
        self.stamp(8)
        al = []
        for j in range(40):
            g = [f'buffer_load_dwordx4 {vr(4 * j, 4)}, v{vAL}, {sr(S_WS, 4)}, s{sT1} offen sc1']
            if j < 39:
                g.append(f's_add_u32 s{sT1}, s{sT1}, {4 * QS}')
            al.append(g)
        al.append([f'buffer_load_dwordx4 {ar(CS01, 4)}, v{vCS}, {sr(S_WS, 4)}, s{sT2} offen sc1'])
        al.append([f'buffer_load_dwordx4 {ar(CS01 + 4, 4)}, v{vCS}, {sr(S_WS, 4)}, s{sT2} offen offset:256 sc1'])
        al.append([f'buffer_load_dwordx4 {vr(CS45, 4)}, v{vCS}, {sr(S_WS, 4)}, s{sT3} offen sc1'])
        for _ in range(o['a_ahead']):
            for x in al.pop(0):
                a(x)

        def rd(dst, slot, j):
            return [f'ds_read_b64_tr_b16 {ar(dst + 2 * e, 2)}, v{vTR + slot} offset:{1024 * j + 256 * e}'
                    for e in range(2)]

        def swaps(j):
            return [f'v_permlane16_swap_b32 v{4 * j}, v{4 * j + 2}', f'v_permlane16_swap_b32 v{4 * j + 1}, v{4 * j + 3}']

        def acc(slot):
            return vr(ACC + 16 * slot, 16)
        wd = []
        for i in range(60):
            g = [f'buffer_load_dwordx4 {ar(4 * i, 4)}, v{vWD}, {sr(S_WS, 4)}, s{sWoff} offen offset:{(i & 3) * 1024} sc1']
            if i & 3 == 3 and i != 59:
                g.append(f's_add_u32 s{sWoff}, s{sWoff}, 4096')
            wd.append(g)
        wtail = self.w_writes_tail()
        for j in range(2):
            for s in range(3):
                for x in rd(RING1 + 12 * j + 4 * s, s, j):
                    a(x)
        for x in swaps(0):
            a(x)
        p2 = [(3, 3, j) for j in range(40)] + [(4, 0, j) for j in range(40)] + [(5, 1, j) for j in range(40)]
        for j in range(40):
            base = RING1 + 12 * (j & 1)
            a.need(ar(base, 12))
            for s in range(3):
                c = '0' if j == 0 else acc(s)
                a(f'v_mfma_f32_32x32x16_bf16 {acc(s)}, {ar(base + 4 * s, 4)}, {vr(4 * j, 4)}, {c}')
                if j < 38:
                    for x in rd(base + 4 * s, s, j + 2):
                        a(x)
                else:
                    i = (j - 38) * 3 + s
                    if i < 4:
                        for x in rd(RING2 + 4 * i, p2[i][1], p2[i][2]):
                            a(x)
                if s == 0 and j < 39:
                    for x in swaps(j + 1):
                        a(x)
                if s == 1 and 22 <= j < 32:
                    a(wtail.pop(0))
                if s == 2:
                    for x in (al.pop(0) if al else wd.pop(0)):
                        a(x)
            if j == 21:
                a('s_barrier')
            if j & 7 == 7:
                for r in range(32 * (j >> 3), 32 * (j >> 3) + 32):
                    a(f'v_dot2c_f32_bf16 v{vS + (r & 1)}, s{sOne}, v{r}')
                    a(f'v_dot2c_f32_bf16 v{vS + 2 + (r & 1)}, v{r}, v{r}')
        self.stamp(9)
        C0, C1, R = vS, vS + 1, vS + 2
        c0 = -2.0 * 0.7978845608028654 * 1.4426950408889634
        st = [
            f'v_add_f32 v{vS}, v{vS}, v{vS + 1}',
            f'v_add_f32 v{vS + 2}, v{vS + 2}, v{vS + 3}',
            f'v_mov_b32 v{vS + 1}, v{vS}',
            f'v_mov_b32 v{vS + 3}, v{vS + 2}',
            f'v_cmp_gt_u32 vcc, 32, v255',
            f'v_permlane32_swap_b32 v{vS}, v{vS + 1}',
            f'v_permlane32_swap_b32 v{vS + 2}, v{vS + 3}',
            f'v_add_f32 v{vS}, v{vS}, v{vS + 1}',
            f'v_add_f32 v{vS + 2}, v{vS + 2}, v{vS + 3}',
            f'v_mul_f32 v{vS}, {f32(-1 / 640)}, v{vS}',
            f'v_mul_f32 v{vS + 2}, {f32(1 / 640)}, v{vS + 2}',
            f'v_cvt_pk_bf16_f32 v{t}, v{vS}, v{vS}',
            f'v_fma_f32 v{R}, -v{vS}, v{vS}, v{R}',
            f'v_lshlrev_b32 v{t}, 16, v{t}',
            f'v_max_f32 v{R}, 0, v{R}',
            f'v_sub_f32 v{t2}, v{vS}, v{t}',
            f'v_add_f32 v{R}, {f32(1e-5)}, v{R}',
            f'v_cvt_pk_bf16_f32 v{t}, v{t}, v{t2}',
            f'v_rsq_f32 v{vS + 3}, v{R}',
            f'v_cndmask_b32 v{BP + 2}, 0, v{t}, vcc',
            f'v_cndmask_b32 v{BP + 3}, 0, v{t}, vcc',
            f'v_mul_f32 v{C0}, {f32(c0)}, v{vS + 3}',
            f'v_mul_f32 v{t}, v{vS + 3}, v{vS + 3}',
            f'v_mul_f32 v{t}, {f32(0.044715)}, v{t}',
            f'v_mul_f32 v{C1}, v{t}, v{C0}',
        ]

        def csm(tile, slot, first):
            src = vr(CS45, 4) if tile >= 4 else ar(CS01 + 4 * (tile >> 1), 4)
            b = vr(BP, 4) if tile & 1 else vr(BP + 2, 4)
            return f'v_mfma_f32_32x32x16_bf16 {acc(slot)}, {src}, {b}, {"0" if first else acc(slot)}'

        def epi(tile, slot):
            b = ACC + 16 * slot
            tm = [TM, TM + 1, t, t2]
            ops = []
            for h in range(2):
                g, u = b + 8 * h, b + 8 * h + 4
                ops += [(1, f'v_mul_f32 v{tm[i]}, v{g + i}, v{g + i}') for i in range(4)]
                ops += [(1, f'v_fma_f32 v{tm[i]}, v{tm[i]}, v{C1}, v{C0}') for i in range(4)]
                ops += [(1, f'v_mul_f32 v{tm[i]}, v{tm[i]}, v{g + i}') for i in range(4)]
                for i in range(4):
                    ops += [(2, f'v_exp_f32 v{tm[i]}, v{tm[i]}'), (1, f'v_mul_f32 v{u + i}, v{u + i}, v{g + i}')]
                ops += [(1, f'v_fma_f32 v{tm[i]}, v{tm[i]}, v{R}, v{R}') for i in range(4)]
                ops += [(2, f'v_rcp_f32 v{tm[i]}, v{tm[i]}') for i in range(4)]
                ops += [(1, f'v_mul_f32 v{u + i}, v{u + i}, v{tm[i]}') for i in range(4)]
                ops += [(1, f'v_cvt_pk_bf16_f32 v{b + 2 * h + i}, v{u + 2 * i}, v{u + 2 * i + 1}') for i in range(2)]
            so = sA if tile < 4 else sB
            ops.append((1, f'buffer_store_dwordx4 {vr(b, 4)}, v{vAS}, {sr(S_WS, 4)}, s{so} offen offset:{(tile & 3) * 1024} sc1'))
            return ops
        slot_of = {0: 0, 1: 1, 2: 2, 3: 3, 4: 0, 5: 1}
        eq = []
        budget = 0.0
        RATE = o.get('epi_rate', 3.75)
        nwd_loop = len(wd) - o['wd_tail']
        wd_done = 0
        for i, (tile, ls, j) in enumerate(p2):
            slot = slot_of[tile]
            if j == 0 and tile > 3:
                a(csm(tile, slot, True))
            if i & 1 == 0:
                a.need(ar(RING2 + 4 * (i & 3), 8))
            c = '0' if i == 0 else acc(slot)
            a(f'v_mfma_f32_32x32x16_bf16 {acc(slot)}, {ar(RING2 + 4 * (i & 3), 4)}, {vr(4 * j, 4)}, {c}')
            if i == 31:
                assert not wtail
                a('s_waitcnt lgkmcnt(0)')
                a('s_barrier')
            if i + 4 < len(p2):
                for x in rd(RING2 + 4 * (i & 3), p2[i + 4][1], p2[i + 4][2]):
                    a(x)
            if i == 1:
                a('s_barrier')
            if 2 <= i < 22 and i & 1 == 0:
                a(wtail.pop(0))
            if i < 7:
                for _ in range(4):
                    if st:
                        a(st.pop(0))
            if i == 7:
                assert not st
                for tl in range(4):
                    a(csm(tl, tl, False))
                eq += epi(0, 0) + epi(1, 1) + epi(2, 2)
            if i == 42:
                eq += epi(3, 3)
            if i == 82:
                eq += epi(4, 0)
            if i >= 8:
                budget += RATE
                while eq and budget >= eq[0][0]:
                    cst, x = eq.pop(0)
                    budget -= cst
                    a(x)
                if not eq:
                    budget = 0
                if i == 39:
                    assert len(eq) <= 2 * 69, len(eq)
                if i == 79:
                    assert len(eq) <= 2 * 69, len(eq)
            want = ((i + 1) * nwd_loop) // len(p2)
            while wd_done < want:
                for x in wd.pop(0):
                    a(x)
                wd_done += 1
        for cst, x in eq:
            a(x)
        for cst, x in epi(5, 1):
            a(x)
        self.stamp(10)
        while wd:
            for x in wd.pop(0):
                a(x)

    def gemm2(self):
        a = self.a
        L = 255
        t, t2 = self.vTmp, self.vTmp2
        vA2 = 240
        vRes, vRes2, vOut, vOut2 = 244, 245, 246, 247
        vRW, vRR = 251, 254
        RES = 240
        a(f's_and_b32 s{sT0}, s{sX}, 1')
        a(f's_lshl_b32 s{sT0}, s{sT0}, 1')
        a(f's_lshl_b32 s{sT1}, s{sRB}, 2')
        a(f's_add_u32 s{sT0}, s{sT0}, s{sT1}')
        a(f'v_and_b32 v{t}, 15, v{L}')
        a(f'v_lshrrev_b32 v{t2}, 4, v{L}')
        a(f's_lshr_b32 s{sT1}, s{S_W}, 1')
        a(f's_add_u32 s{sT1}, s{sT1}, s{sT0}')
        a(f's_lshl_b32 s{sT2}, s{sT1}, 8')
        a(f's_and_b32 s{sT3}, s{S_W}, 1')
        a(f's_lshl_b32 s{sT4}, s{sT3}, 3')
        a(f's_add_u32 s{sT2}, s{sT2}, s{sT4}')
        a(f's_and_b32 s{sT4}, s{sJ}, 7')
        a(f's_mul_i32 s{sT5}, s{sT4}, {20 * QS}')
        a(f's_add_u32 s{sT2}, s{sT2}, s{sT5}')
        a(f'v_lshl_add_u32 v{vRes2}, v{t}, 4, s{sT2}')
        a(f's_mov_b32 s{sT5}, {2 * QS}')
        a(f'v_mad_u32_u24 v{vRes}, v{t2}, s{sT5}, v{vRes2}')
        a(f's_mov_b32 s{sT5}, {QS}')
        a(f'v_mad_u32_u24 v{vRes2}, v{t2}, s{sT5}, v{vRes2}')
        for nt in range(5):
            q = 8 * (nt >> 1) + (nt & 1)
            a(f's_mov_b32 s{sT5}, {HP4 + q * QS}')
            a(f'buffer_load_dwordx2 {ar(RES + 2 * nt, 2)}, v{vRes2 if nt == 4 else vRes}, {sr(S_WS, 4)}, s{sT5} offen sc1')
        a(f's_lshr_b32 s{sT5}, s{sRB}, 1')
        a(f's_lshl_b32 s{sT5}, s{sT5}, 8')
        a(f's_and_b32 s{sT6}, s{sT1}, 3')
        a(f's_lshl_b32 s{sT6}, s{sT6}, 2')
        a(f's_add_u32 s{sT5}, s{sT5}, s{sT6}')
        a(f's_and_b32 s{sT6}, s{sRB}, 1')
        a(f's_lshl_b32 s{sT6}, s{sT6}, 1')
        a(f's_add_u32 s{sT5}, s{sT5}, s{sT6}')
        a(f's_add_u32 s{sT5}, s{sT5}, s{sT3}')
        a(f's_mul_i32 s{sT5}, s{sT5}, 1280')
        a(f's_mul_i32 s{sT6}, s{sT4}, 160')
        a(f's_add_u32 s{sT5}, s{sT5}, s{sT6}')
        a(f's_movk_i32 s{sT6}, {16 * 1280}')
        a(f'v_mov_b32 v{vOut2}, s{sT5}')
        a(f'v_mad_u32_u24 v{vOut2}, v{t}, s{sT6}, v{vOut2}')
        a(f'v_lshl_add_u32 v{vOut}, v{t2}, 4, v{vOut2}')
        a(f'v_lshl_add_u32 v{vOut2}, v{t2}, 3, v{vOut2}')
        a(f'v_lshlrev_b32 v{t}, 4, v{t}')
        a(f'v_lshl_add_u32 v{t}, v{t2}, 9, v{t}')
        for lam in range(4):
            a(f's_xor_b32 s{sT2}, s{S_W}, {lam}')
            if lam:
                a(f's_mul_i32 s{sT3}, s{sT2}, {15 * 1024}')
                a(f's_add_u32 s{sT3}, s{sT3}, {(lam - 1) * 5120}')
                a(f'v_lshl_add_u32 v{vRW + lam - 1}, v{L}, 4, s{sT3}')
            else:
                a(f's_mul_i32 s{sT3}, s{sT2}, {15 * 1024}')
                a(f'v_lshl_add_u32 v{vRR}, v{L}, 4, s{sT3}')
            a(f's_lshr_b32 s{sT3}, s{sT2}, 1')
            a(f's_add_u32 s{sT3}, s{sT3}, s{sT0}')
            a(f's_mul_i32 s{sT3}, s{sT3}, 98304')
            a(f's_and_b32 s{sT2}, s{sT2}, 1')
            a(f's_lshl_b32 s{sT2}, s{sT2}, 8')
            a(f's_add_u32 s{sT3}, s{sT3}, s{sT2}')
            a(f'v_add_u32 v{vA2 + lam}, s{sT3}, v{t}')
        a(f's_mul_i32 s{sT1}, s{S_W}, {12 * 2048}')
        a(f's_add_u32 s{sT1}, s{sT1}, {ACT}')
        a(f's_lshl_b32 s{sT0}, s{sRB}, 8')
        a(f's_add_u32 s{sT0}, s{sT0}, {C_F3 * 256}')
        self.drain()
        a('s_barrier')
        with self.wave0():
            a(f'buffer_atomic_add v{self.vOne}, off, {sr(S_WS, 4)}, s{sT0} sc1')
            self.spin(S_WS, f's{sT0}', 16, t)
        a('s_barrier')
        self.stamp(11)
        AF = 80

        def ld(kk, lam):
            i = (4 * kk + lam) % 40
            r = [f'buffer_load_dwordx4 {vr(AF + 4 * i, 4)}, v{vA2 + lam}, {sr(S_WS, 4)}, s{sT1} offen offset:{(kk & 1) * 2048} sc1']
            if lam == 3 and kk & 1 and kk < 11:
                r.append(f's_add_u32 s{sT1}, s{sT1}, 4096')
            return r
        lq = [ld(kk, lam) for kk in range(12) for lam in range(4)]
        for _ in range(self.opt['act_ahead']):
            for x in lq.pop(0):
                a(x)
        for kk in range(12):
            for lam in range(4):
                i = (4 * kk + lam) % 40
                for nt in range(5):
                    c = vr(4 * (5 * lam + nt), 4)
                    a(f'v_mfma_f32_16x16x32_bf16 {c}, {ar(4 * (5 * kk + nt), 4)}, {vr(AF + 4 * i, 4)}, {"0" if kk == 0 else c}')
                if lq:
                    for x in lq.pop(0):
                        a(x)
        RR = 200
        for i in range(10):
            a(f'v_accvgpr_read_b32 v{RR + i}, a{RES + i}')
        for lam in range(1, 4):
            for nt in range(5):
                a(f'ds_write_b128 v{vRW + lam - 1}, {vr(4 * (5 * lam + nt), 4)} offset:{1024 * nt}')
        a(f's_mov_b32 s{sT2}, 0xffff0000')
        for i in range(10):
            a(f'v_lshlrev_b32 v{t}, 16, v{RR + i}')
            a(f'v_and_b32 v{t2}, s{sT2}, v{RR + i}')
            a(f'v_add_f32 v{2 * i}, v{2 * i}, v{t}')
            a(f'v_add_f32 v{2 * i + 1}, v{2 * i + 1}, v{t2}')
        a('s_waitcnt lgkmcnt(0)')
        a('s_barrier')
        for nt in range(5):
            for s in range(3):
                a(f'ds_read_b128 {vr(AF + 12 * nt + 4 * s, 4)}, v{vRR} offset:{5120 * s + 1024 * nt}')
        for nt in range(5):
            b = AF + 12 * nt
            for p in range(2):
                a(f'v_pk_add_f32 {vr(4 * nt + 2 * p, 2)}, {vr(4 * nt + 2 * p, 2)}, {vr(b + 2 * p, 2)}')
                a(f'v_pk_add_f32 {vr(b + 4 + 2 * p, 2)}, {vr(b + 4 + 2 * p, 2)}, {vr(b + 8 + 2 * p, 2)}')
            for p in range(2):
                a(f'v_pk_add_f32 {vr(4 * nt + 2 * p, 2)}, {vr(4 * nt + 2 * p, 2)}, {vr(b + 4 + 2 * p, 2)}')
            for p in range(2):
                a(f'v_cvt_pk_bf16_f32 v{RR + 2 * nt + p}, v{4 * nt + 2 * p}, v{4 * nt + 2 * p + 1}')
            if nt & 1:
                a(f'buffer_store_dwordx4 {vr(RR + 2 * nt - 2, 4)}, v{vOut}, {sr(S_OUT, 4)}, 0 offen offset:{64 * (nt >> 1)}')
            if nt == 4:
                a(f'buffer_store_dwordx2 {vr(RR + 8, 2)}, v{vOut2}, {sr(S_OUT, 4)}, 0 offen offset:128')
        if self.diag:
            a('s_waitcnt vmcnt(0)')
            self.stamp(12)
            a('s_waitcnt lgkmcnt(0)')
            with self.wave0():
                a(f's_lshl_b32 s{sT0}, s2, 7')
                a(f's_add_u32 s{sT0}, s{sT0}, {STAMP}')
                for i in range(NSTAMP):
                    a(f'v_mov_b32 v0, s{S_STAMP + 2 * i}')
                    a(f'buffer_store_dword v0, off, {sr(S_WS, 4)}, s{sT0} offset:{4 * i}')
                    if self.opt.get('dbg'):
                        a(f'buffer_atomic_umax v0, off, {sr(S_DBG, 4)}, 0 offset:{4 * i + 8} sc1')
                        if i == 0:
                            a('v_not_b32 v1, v0')
                            a(f'buffer_atomic_umax v1, off, {sr(S_DBG, 4)}, 0 offset:4 sc1')
        a('.Lend:')
        a('s_endpgm')

    def build(self):
        a = self.a
        if self.diag:
            for i in range(2 * NSTAMP):
                a(f's_mov_b32 s{S_STAMP + i}, 0')
        self.prologue()
        self.conv()
        self.gemm1()
        self.gemm2()
        self.side()
        a('.Lcode_end:')
        a('s_endpgm')
        body = a.finish(verbose=True, align=self.opt.get('align', 1))
        ref = open('cdna_kernels/' + NAME + '.s.ref').read().split('\n')
        head = [l for l in ref if l.startswith(';') and '@launch' not in l and 'Override' not in l and 'grid=ceil' not in l]
        txt = '\n'.join(head) + '\n'
        txt += '; Generated by my generator script (one persistent launch; see comments there).\n'
        txt += '; @launch grid=(256,1,1) block=(256,1,1) lds=163840\n'
        txt += f'''.amdgcn_target "amdgcn-amd-amdhsa--gfx950"
.text
.globl {NAME}_kernel
.p2align 8
.type {NAME}_kernel,@function
{NAME}_kernel:
{body}.section .rodata,"a"
.p2align 6
.amdhsa_kernel {NAME}_kernel
  .amdhsa_next_free_vgpr 512
  .amdhsa_next_free_sgpr 102
  .amdhsa_accum_offset 256
  .amdhsa_group_segment_fixed_size 0
  .amdhsa_kernarg_size 104
  .amdhsa_user_sgpr_count 2
  .amdhsa_user_sgpr_kernarg_segment_ptr 1
  .amdhsa_system_sgpr_workgroup_id_x 1
  .amdhsa_float_denorm_mode_32 3
.end_amdhsa_kernel
'''
        return txt


if __name__ == '__main__':
    out = sys.argv[1]
    diag = 'diag' in sys.argv[2:]
    opt = {}
    for x in sys.argv[2:]:
        if '=' in x:
            k, v = x.split('=')
            try:
                v = int(v)
            except ValueError:
                try:
                    v = float(v)
                except ValueError:
                    pass
            opt[k] = v
    open(out, 'w').write(Gen(diag, opt).build())
```

```python
import struct
import sys
from asmlib import Asm, vr, ar, sr

NAME = 'sequential_preLN__ssm_conv_h3__geglu_ffn__prompt'

QS = 16384
CNT = 0
ST1 = 16384
CSF = 32768
STAMP = 65536
KVX = 131072
XP4 = KVX + 160 * QS
HP4 = XP4 + 160 * QS
WDF = HP4 + 160 * QS
ACT = WDF + 1966080
WS_END = ACT + 6291456
C_F1, C_FX, C_B1, C_B2, C_F3 = 0, 10, 16, 24, 32
SPIN = 200000

S_W = 3
S_K, S_V, S_SH, S_SK, S_X, S_WG, S_WU, S_WD, S_OUT, S_DBG, S_WS = 4, 8, 12, 16, 20, 24, 28, 32, 36, 40, 44
S_D = 48
sX, sJ, sG, sM, sQ, sRB, sCB, sA, sB = 50, 51, 52, 53, 54, 55, 56, 57, 58
sT0, sT1, sT2, sT3, sT4, sT5, sT6, sT7 = 60, 61, 62, 63, 64, 65, 66, 67
sWoff, sWoff2, sSpin, sDv = 68, 69, 70, 71
sOne = 72
S_STAMP = 76
NSTAMP = 13

GSTR = 4160
GW = 8 * GSTR
UBASE = 4 * GW
USTR = 4608
TILE = 40960


def f32(x):
    return '0x%08x' % struct.unpack('<I', struct.pack('<f', x))[0]


class Gen:
    def __init__(self, diag=False, opt=None):
        self.a = Asm()
        self.diag = diag
        self.opt = dict(w_kv=0, w_start=0, w_e1=0, ssm_late=0, flag2=0, tb_pre=2, s1_wait=0, wd_late=0, w45_where='hdrain', wd_tail=16, counted=1, a_ahead=12, act_ahead=16)
        if opt:
            self.opt.update(opt)

    def stamp(self, i):
        if self.diag and not (self.opt.get('dbg') and getattr(self, 'in_side', False) and i != 7):
            assert i < NSTAMP
            self.a(f'{"s_memtime" if self.opt.get("cyc") else "s_memrealtime"} {sr(S_STAMP + 2 * i, 2)}')

    def spin(self, srd, soff, target, vt, first_loaded=False, sleep=False):
        a = self.a
        top, done = a.label('spin'), a.label('done')
        chk = a.label('chk')
        with a.untracked():
            a(f's_mov_b32 s{sSpin}, {SPIN}')
            if first_loaded:
                a(f's_branch {chk}')
            a(f'{top}:')
            if sleep:
                a('s_sleep 4')
            a(f'buffer_load_dword v{vt}, off, {sr(srd, 4)}, {soff} sc1')
            a('s_waitcnt vmcnt(0)')
            a(f'{chk}:')
            a(f'v_readfirstlane_b32 s{sT7}, v{vt}')
            a(f's_sub_u32 s{sSpin}, s{sSpin}, 1')
            a(f's_cbranch_scc1 {done}')
            a(f's_cmp_lt_u32 s{sT7}, {target}')
            a(f's_cbranch_scc1 {top}')
            a(f'{done}:')

    def wave0(self):
        g = self

        class W:
            def __enter__(s):
                s.l = g.a.label('nw0')
                g.a(f's_cmp_lg_u32 s{S_W}, 0')
                g.a(f's_cbranch_scc1 {s.l}')
                s.u = g.a.untracked()
                s.u.__enter__()
                g.a('s_mov_b64 exec, 1')

            def __exit__(s, *x):
                g.a('s_mov_b64 exec, -1')
                s.u.__exit__()
                g.a(f'{s.l}:')
        return W()

    def drain(self):
        if self.opt['counted']:
            self.a.drain_stores()
        else:
            self.a('s_waitcnt vmcnt(0)')

    def prologue(self):
        a = self.a
        a('s_cmp_ge_u32 s2, 0x100')
        a('s_cbranch_scc1 .Lend')
        self.stamp(0)
        for srd, off in ((S_K, 8), (S_V, 16), (S_SH, 24), (S_SK, 32), (S_X, 0), (S_WG, 56), (S_WU, 64), (S_WD, 72),
                         (S_OUT, 80), (S_DBG, 88), (S_WS, 96), (S_D, 40)):
            a(f's_load_dwordx2 {sr(srd, 2)}, s[0:1], {off}')
        a(f's_getpc_b64 {sr(sT0, 2)}')
        a('.Lpc:')
        a('v_lshlrev_b32 v2, 7, v0')
        a('v_min_u32 v2, .Lcode_end-.Lpc-4, v2')
        a('v_mov_b32 v3, 0')
        a(f'v_lshl_add_u64 v[2:3], v[2:3], 0, {sr(sT0, 2)}')
        a('global_load_dword v255, v[2:3], off')
        a('v_lshrrev_b32 v1, 6, v0')
        a('v_and_b32 v0, 63, v0')
        a(f'v_readfirstlane_b32 s{S_W}, v1')
        for srd, n in ((S_K, 2621440), (S_V, 2621440), (S_SH, 5120), (S_SK, 4096), (S_X, 2621440), (S_WG, 1966080),
                       (S_WU, 1966080), (S_WD, 1966080), (S_OUT, 2621440), (S_DBG, 256), (S_WS, WS_END)):
            a(f's_mov_b32 s{srd + 2}, {n}')
            a(f's_mov_b32 s{srd + 3}, 0x20000')
        if self.opt.get('probe'):
            which = self.opt['probe']
            a(f's_load_dwordx2 {sr(sT0, 2)}, s[0:1], {48 if which == 1 else 96}')
            a(f's_mov_b32 s{sT2}, {2621440 if which == 1 else 0x8000000}')
            a(f's_mov_b32 s{sT3}, 0x20000')
            a(f's_mul_i32 s{sT4}, s2, 10240')
            if which == 2:
                a(f's_add_u32 s{sT4}, s{sT4}, 0x4000000')
            a('v_mov_b32 v2, 0')
            for i in range(16):
                a(f'buffer_load_dword v3, v2, {sr(sT0, 4)}, s{sT4} offen offset:{256 * i}')
                a('v_and_b32 v2, 0, v3')
        if self.opt.get('badmap'):
            a(f's_and_b32 s{sX}, s2, 31')
            a(f's_lshl_b32 s{sX}, s{sX}, 3')
            a(f's_lshr_b32 s2, s2, 5')
            a(f's_or_b32 s2, s2, s{sX}')
        a(f's_and_b32 s{sX}, s2, 7')
        a(f's_lshr_b32 s{sJ}, s2, 3')
        a(f's_and_b32 s{sM}, s{sJ}, 15')
        a(f's_mov_b32 s{sG}, s{sX}')
        a(f's_cmp_lt_u32 s{sJ}, 16')
        a.snapshot('role')
        a('s_cbranch_scc1 .Lconv')
        a(f's_add_u32 s{sG}, s{sX}, 8')
        a(f's_cmp_lt_u32 s{sX}, 2')
        a('s_cbranch_scc0 .Lside')
        a('.Lconv:')

    def gemm_ids(self):
        a = self.a
        a(f's_lshr_b32 s{sRB}, s{sX}, 1')
        a(f's_lshl_b32 s{sRB}, s{sRB}, 2')
        a(f's_lshr_b32 s{sT0}, s{sJ}, 3')
        a(f's_add_u32 s{sRB}, s{sRB}, s{sT0}')
        a(f's_and_b32 s{sCB}, s{sX}, 1')
        a(f's_lshl_b32 s{sCB}, s{sCB}, 3')
        a(f's_and_b32 s{sT0}, s{sJ}, 7')
        a(f's_add_u32 s{sCB}, s{sCB}, s{sT0}')
        a(f's_and_b32 s{sT0}, s{sCB}, 1')
        a(f's_mul_i32 s{sA}, s{sCB}, 6')
        a(f's_add_u32 s{sB}, s{sA}, 4')
        a(f's_lshl_b32 s{sT1}, s{sT0}, 1')
        a(f's_add_u32 s{sA}, s{sA}, s{sT1}')
        a(f's_lshl_b32 s{sT1}, s{sT0}, 2')
        a(f's_sub_u32 s{sB}, s{sB}, s{sT1}')

    vWL, vWL2, vWW, vWW2, vTmp, vTmp2, vOne = 254, 253, 252, 251, 250, 249, 248

    def w_addr(self):
        a = self.a
        t, t2 = self.vTmp, self.vTmp2
        a(f's_movk_i32 s{sT2}, 3072')
        a(f's_mul_i32 s{sT0}, s{S_W}, {8 * 3072}')
        a(f's_lshl_b32 s{sT1}, s{sA}, 5')
        a(f's_add_u32 s{sT0}, s{sT0}, s{sT1}')
        a(f'v_lshrrev_b32 v{t}, 3, v0')
        a(f'v_and_b32 v{t2}, 7, v0')
        a(f'v_lshl_add_u32 v{t2}, v{t2}, 4, s{sT0}')
        a(f'v_mad_u32_u24 v{self.vWL}, v{t}, s{sT2}, v{t2}')
        a(f's_mul_i32 s{sT0}, s{S_W}, {16 * 3072}')
        a(f's_lshl_b32 s{sT1}, s{sB}, 5')
        a(f's_add_u32 s{sT0}, s{sT0}, s{sT1}')
        a(f'v_lshrrev_b32 v{t}, 2, v0')
        a(f'v_and_b32 v{t2}, 3, v0')
        a(f'v_lshl_add_u32 v{t2}, v{t2}, 4, s{sT0}')
        a(f'v_mad_u32_u24 v{self.vWL2}, v{t}, s{sT2}, v{t2}')
        a(f's_mov_b32 s{sWoff}, 0')
        a(f's_mov_b32 s{sWoff2}, 0')
        a(f'v_mov_b32 v{self.vOne}, 1')

    def w_loads_main(self):
        out = []
        for i in range(40):
            srd = S_WU if i & 1 else S_WG
            g = [f'buffer_load_dwordx4 {ar(4 * i, 4)}, v{self.vWL}, {sr(srd, 4)}, s{sWoff} offen']
            if i & 1 and i != 39:
                g.append(f's_add_u32 s{sWoff}, s{sWoff}, {32 * 3072}')
            out.append(g)
        return out

    def w_loads_tail(self):
        out = []
        for i in range(20):
            srd = S_WU if i & 1 else S_WG
            g = [f'buffer_load_dwordx4 {ar(160 + 4 * i, 4)}, v{self.vWL2}, {sr(srd, 4)}, s{sWoff2} offen']
            if i & 1 and i != 19:
                g.append(f's_add_u32 s{sWoff2}, s{sWoff2}, {64 * 3072}')
            out.append(g)
        return out

    def w_write_addr_main(self):
        a = self.a
        t, t2 = self.vTmp, self.vTmp2
        a(f's_lshl_b32 s{sT0}, s{S_W}, 9')
        a(f'v_lshrrev_b32 v{t}, 3, v0')
        a(f'v_lshl_add_u32 v{t}, v{t}, 6, s{sT0}')
        a(f'v_and_b32 v{t2}, 1, v0')
        a(f'v_lshl_add_u32 v{t}, v{t2}, 4, v{t}')
        a(f'v_bfe_u32 v{t2}, v0, 1, 2')
        a(f'v_lshlrev_b32 v{self.vWW}, 5, v{t2}')
        a(f'v_xor_b32 v{t}, v{t}, v{self.vWW}')
        a(f's_mov_b32 s{sT0}, {TILE}')
        a(f'v_mad_u32_u24 v{self.vWW}, v{t2}, s{sT0}, v{t}')
        a(f'v_xor_b32 v{self.vWW2}, 32, v{self.vWW}')

    def w_writes_main(self):
        return [f'ds_write_b128 v{self.vWW2 if i & 1 else self.vWW}, {ar(4 * i, 4)} offset:{(i >> 1) * 2048}'
                for i in range(40)]

    def w_write_addr_tail(self):
        a = self.a
        t, t2 = self.vTmp, self.vTmp2
        a(f's_lshl_b32 s{sT0}, s{S_W}, 10')
        a(f'v_lshrrev_b32 v{t}, 2, v0')
        a(f'v_lshl_add_u32 v{t}, v{t}, 6, s{sT0}')
        a(f'v_and_b32 v{t2}, 1, v0')
        a(f'v_lshl_add_u32 v{t}, v{t2}, 4, v{t}')
        a(f'v_bfe_u32 v{t2}, v0, 1, 1')
        a(f'v_lshlrev_b32 v{self.vWW}, 5, v{t2}')
        a(f'v_xor_b32 v{t}, v{t}, v{self.vWW}')
        a(f's_mov_b32 s{sT0}, {TILE}')
        a(f'v_mad_u32_u24 v{self.vWW}, v{t2}, s{sT0}, v{t}')
        a(f'v_xor_b32 v{self.vWW2}, 32, v{self.vWW}')

    def w_writes_tail(self):
        return [f'ds_write_b128 v{self.vWW2 if i & 1 else self.vWW}, {ar(160 + 4 * i, 4)} offset:{(i >> 1) * 4096}'
                for i in range(20)]

    def check_init(self, vflag):
        self.spin(S_DBG, '0', 1, vflag, first_loaded=True)

    def conv(self):
        a = self.a
        o = self.opt
        vK, vKh, vC, vR = 1, 2, 3, 4
        SH = 8
        KR = 16
        VR = 38
        SK = 56
        WF = 88
        KF = 104
        KV = 148
        VF = 180
        O = 188
        a(f's_lshl_b32 s{sQ}, s{sG}, 4')
        a(f's_add_u32 s{sQ}, s{sQ}, s{sM}')
        a(f'v_and_b32 v{vC}, 15, v0')
        a(f'v_lshrrev_b32 v{vR}, 4, v0')
        a(f's_lshl_b32 s{sT0}, s{sM}, 2')
        a(f's_add_u32 s{sT0}, s{sT0}, s{S_W}')
        a(f's_mul_i32 s{sT0}, s{sT0}, {32 * 1280}')
        a(f's_lshl_b32 s{sT1}, s{sG}, 7')
        a(f's_add_u32 s{sT0}, s{sT0}, s{sT1}')
        a(f's_movk_i32 s{sT2}, {8 * 1280}')
        a(f'v_lshl_add_u32 v{vK}, v{vC}, 3, s{sT0}')
        a(f'v_mad_u32_u24 v{vK}, v{vR}, s{sT2}, v{vK}')
        a(f'v_subrev_u32 v{vKh}, 3840, v{vK}')
        a(f's_lshl_b32 s{sT1}, s{sG}, 9')
        a(f'v_lshl_add_u32 v5, v{vC}, 5, s{sT1}')
        a(f's_movk_i32 s{sT3}, 5120')
        linit = a.label('noinit')
        a(f's_lshl_b32 s{sT4}, s2, 2')
        a(f's_add_u32 s{sT4}, s{sT4}, s{S_W}')
        a.need(sr(S_WS, 2))
        a(f's_cmp_lg_u32 s{sT4}, 3')
        a(f's_cbranch_scc1 {linit}')
        with a.untracked():
            a('v_lshlrev_b32 v6, 8, v0')
            a('v_mov_b32 v7, 0')
            a(f'buffer_store_dword v7, v6, {sr(S_WS, 4)}, 0 offen sc1')
        a(f'{linit}:')
        a(f'buffer_load_dwordx4 {vr(SH, 4)}, v5, {sr(S_SH, 4)}, 0 offen')
        a(f'buffer_load_dwordx4 {vr(SH + 4, 4)}, v5, {sr(S_SH, 4)}, 0 offen offset:16')
        for r in range(3):
            a(f'buffer_load_dwordx2 {vr(KR + 2 * r, 2)}, v{vKh}, {sr(S_K, 4)}, 0 offen offset:{r * 1280}')
        for r in range(8):
            so = f's{sT3}' if r >= 4 else '0'
            a(f'buffer_load_dwordx2 {vr(KR + 6 + 2 * r, 2)}, v{vK}, {sr(S_K, 4)}, {so} offen offset:{(r & 3) * 1280}')
            a(f'buffer_load_dwordx2 {vr(VR + 2 * r, 2)}, v{vK}, {sr(S_V, 4)}, {so} offen offset:{(r & 3) * 1280}')
        a(f's_lshl_b32 s{sT0}, s{sQ}, 2')
        a(f's_add_u32 s{sT0}, s{sT0}, s{S_W}')
        a(f's_lshl_b32 s{sT1}, s{sT0}, 12')
        a(f's_add_u32 s{S_SK}, s{S_SK}, s{sT1}')
        a(f's_addc_u32 s{S_SK + 1}, s{S_SK + 1}, 0')
        a(f's_lshl_b32 s{sT0}, s{sT0}, 1')
        a(f's_and_b32 s{sT0}, s{sT0}, -4')
        a(f's_load_dword s{sDv}, {sr(S_D, 2)}, s{sT0}')
        vL16 = 6
        a(f'v_lshlrev_b32 v{vL16}, 4, v0')
        a(f'v_subrev_u32 v219, 16, v{vL16}')

        def ssm_loads():
            for j in range(4):
                if j == 0:
                    a(f'buffer_load_dwordx4 {vr(SK, 4)}, v219, {sr(S_SK, 4)}, 0 offen')
                else:
                    a(f'buffer_load_dwordx4 {vr(SK + 8 * j, 4)}, v{vL16}, {sr(S_SK, 4)}, 0 offen offset:{1024 * j - 16}')
                a(f'buffer_load_dwordx4 {vr(SK + 8 * j + 4, 4)}, v{vL16}, {sr(S_SK, 4)}, 0 offen offset:{1024 * j}')
        if o['ssm_late'] == 0:
            ssm_loads()
        linit = a.label('noinit')
        a(f's_cmp_lg_u32 s{sT4}, 3')
        a(f's_cbranch_scc1 {linit}')
        with a.untracked():
            a(f's_waitcnt vmcnt({21 if o["ssm_late"] else 29})' if o['counted'] else 's_waitcnt vmcnt(0)')
            a('v_mov_b32 v7, 1')
            a('s_mov_b64 exec, 1')
            a(f'buffer_store_dword v7, off, {sr(S_DBG, 4)}, 0 sc1')
            a('s_mov_b64 exec, -1')
        a(f'{linit}:')
        self.gemm_ids()
        self.w_addr()
        wl = self.w_loads_main()

        def w_some(n):
            for _ in range(n):
                for x in wl.pop(0):
                    a(x)
        w_some(o['w_start'])
        vSW, vSR, vKS, vG, vUL, vUW = 204, 205, 206, 207, 208, 209
        a(f's_mul_i32 s{sT0}, s{S_W}, {USTR}')
        a(f's_add_u32 s{sT0}, s{sT0}, {UBASE}')
        a(f's_movk_i32 s{sT1}, 272')
        a(f'v_lshl_add_u32 v{vSW}, v{vR}, 4, s{sT0}')
        a(f'v_mad_u32_u24 v{vSW}, v{vC}, s{sT1}, v{vSW}')
        a(f'v_lshl_add_u32 v{vSR}, v{vC}, 4, s{sT0}')
        a(f'v_mad_u32_u24 v{vSR}, v{vR}, s{sT1}, v{vSR}')
        a(f'v_add_u32 v{vUW}, s{sT0}, v{vL16}')
        vBa, vAa = 210, 211
        a(f's_add_u32 s{sT0}, s{sT0}, 32')
        a(f'v_lshl_add_u32 v{vBa}, v{vC}, 5, s{sT0}')
        a(f'v_lshl_add_u32 v{vBa}, v{vR}, 4, v{vBa}')
        a(f's_mul_i32 s{sT0}, s{sG}, {16 * QS}')
        a(f's_lshl_b32 s{sT1}, s{sM}, 10')
        a(f's_add_u32 s{sT0}, s{sT0}, s{sT1}')
        a(f's_lshl_b32 s{sT1}, s{S_W}, 8')
        a(f's_add_u32 s{sT0}, s{sT0}, s{sT1}')
        a(f's_mov_b32 s{sT1}, {QS}')
        a(f'v_lshl_add_u32 v{vKS}, v{vC}, 4, s{sT0}')
        a(f'v_mad_u32_u24 v{vKS}, v{vR}, s{sT1}, v{vKS}')
        a(f's_mul_i32 s{sT5}, s{S_W}, {GW}')
        a(f'v_add_u32 v{vG}, s{sT5}, v{vL16}')
        a(f'v_bfe_u32 v{vAa}, v0, 3, 1')
        a(f'v_sub_u32 v{vAa}, v{vAa}, v{vR}')
        a(f's_add_u32 s{sT0}, s{sT5}, 48')
        a(f'v_lshl_add_u32 v{vAa}, v{vAa}, 4, s{sT0}')
        vI7 = 212
        a(f'v_and_b32 v{vI7}, 7, v0')
        a(f's_movk_i32 s{sT1}, {GSTR}')
        a(f'v_mad_u32_u24 v{vAa}, v{vI7}, s{sT1}, v{vAa}')
        vGZ = 213
        a(f'v_mov_b32 v{vGZ}, s{sT5}')
        a(f'v_mad_u32_u24 v{vGZ}, v{vI7}, s{sT1}, v{vGZ}')
        a(f's_mul_i32 s{sT6}, s{sQ}, {QS}')
        a(f's_lshl_b32 s{sT1}, s{S_W}, 6')
        a(f's_add_u32 s{sT0}, s{sT6}, s{sT1}')
        a(f'v_and_b32 v{vUL}, 3, v0')
        a(f'v_lshl_add_u32 v{vUL}, v{vUL}, 4, s{sT0}')
        a(f'v_lshrrev_b32 v5, 2, v0')
        a(f'v_lshl_add_u32 v{vUL}, v5, 8, v{vUL}')
        vXS, vHS = 214, 215
        a(f's_lshl_b32 s{sT0}, s{S_W}, 12')
        a(f'v_lshl_add_u32 v{vXS}, v{vC}, 7, s{sT0}')
        a(f'v_lshl_add_u32 v{vXS}, v{vR}, 5, v{vXS}')
        a(f's_add_u32 s{sT0}, s{sT0}, s{sT6}')
        a(f'v_add_u32 v{vHS}, s{sT0}, v{vL16}')
        vZR, vZR2 = 216, 217
        a(f's_lshl_b32 s{sT0}, s{S_W}, 11')
        a(f'v_add_u32 v{vZR}, s{sT0}, v{vL16}')
        a(f'v_add_u32 v{vZR2}, {2 * GW}, v{vZR}')
        ZERO = 220
        for i in range(4):
            a(f'v_mov_b32 v{ZERO + i}, 0')
        a(f's_mov_b32 s{sT2}, 0xffff0000')
        for ch in range(4):
            for j in range(4):
                src = SH + 2 * ch + (j >> 1)
                if j & 1:
                    a(f'v_and_b32 v{WF + 4 * j + ch}, s{sT2}, v{src}')
                else:
                    a(f'v_lshlrev_b32 v{WF + 4 * j + ch}, 16, v{src}')

        def unpack(dst, src):
            a(f'v_lshlrev_b32 v{dst}, 16, v{src}')
            a(f'v_and_b32 v{dst + 1}, s{sT2}, v{src}')
            a(f'v_lshlrev_b32 v{dst + 2}, 16, v{src + 1}')
            a(f'v_and_b32 v{dst + 3}, s{sT2}, v{src + 1}')
        for r in range(3):
            unpack(KF + 4 * r, KR + 2 * r)
        self.stamp(1)
        if o['ssm_late'] == 1:
            ssm_loads()
        if o['flag2']:
            linit = a.label('noinit')
            a(f's_cmp_lg_u32 s{sT4}, 3')
            a(f's_cbranch_scc1 {linit}')
            with a.untracked():
                a('s_mov_b64 exec, 1')
                a(f'buffer_store_dword v7, off, {sr(S_DBG, 4)}, 0 offset:128 sc1')
                a('s_mov_b64 exec, -1')
            a(f'{linit}:')
        for r in range(8):
            unpack(KF + 4 * (r + 3), KR + 2 * (r + 3))
            vf = VF + 4 * (r & 1)
            for j in (3, 2, 1, 0):
                for p in range(2):
                    d = vr(KV + 4 * r + 2 * p, 2)
                    k = vr(KF + 4 * (r + 3 - j) + 2 * p, 2)
                    w = vr(WF + 4 * j + 2 * p, 2)
                    if j == 3:
                        a(f'v_pk_mul_f32 {d}, {k}, {w}')
                    else:
                        a(f'v_pk_fma_f32 {d}, {k}, {w}, {d}')
                if j == 3:
                    unpack(vf, VR + 2 * r)
            for p in range(2):
                d = vr(KV + 4 * r + 2 * p, 2)
                a(f'v_pk_mul_f32 {d}, {d}, {vr(vf + 2 * p, 2)}')
            if r & 1:
                d = (7 - r) >> 1
                for ch in range(4):
                    a(f'v_cvt_pk_bf16_f32 v{O + 4 * ch + d}, v{KV + 4 * r + ch}, v{KV + 4 * (r - 1) + ch}')
        for ch in range(4):
            a(f'ds_write_b128 v{vSW}, {vr(O + 4 * ch, 4)} offset:{ch * 64}')
        for j in range(4):
            a(f'ds_read_b128 {vr(KV + 4 * j, 4)}, v{vSR} offset:{j * 1088}')
        a(f's_mov_b32 s{sT0}, {KVX}')
        for j in range(4):
            a(f'buffer_store_dwordx4 {vr(KV + 4 * j, 4)}, v{vKS}, {sr(S_WS, 4)}, s{sT0} offen sc1')
            if j < 3:
                a(f's_add_u32 s{sT0}, s{sT0}, {4 * QS}')
        self.stamp(2)
        vFl = 218
        a(f'buffer_load_dword v{vFl}, off, {sr(S_DBG, 4)}, 0 sc1')
        a(f'ds_write_b128 v{vUW}, {vr(ZERO, 4)}')
        a(f'ds_write_b128 v{vGZ}, {vr(ZERO, 4)}')
        def table(j):
            D = SK + 8 * j
            Ea, Eb, Db = KF + 20 * (j & 1), KF + 20 * (j & 1) + 8, KF + 20 * (j & 1) + 14

            def wr(rho, reg):
                a(f'ds_write_b128 v{vG}, {vr(reg, 4)} offset:{rho * GSTR + 1024 * j + 16}')
            wr(7, D + 4)
            wr(3, D + 2)
            for i in range(3):
                a(f'v_pk_mov_b32 {vr(Db + 2 * i, 2)}, {vr(D + 2 * i, 2)}, {vr(D + 2 * i + 2, 2)} op_sel:[1,0]')
            for i in range(7):
                a(f'v_alignbit_b32 v{Ea + i}, v{D + i + 1}, v{D + i}, 16')
            wr(1, Db)
            wr(5, Db + 2)
            for i in range(3):
                a(f'v_pk_mov_b32 {vr(Eb + 2 * i, 2)}, {vr(Ea + 2 * i, 2)}, {vr(Ea + 2 * i + 2, 2)} op_sel:[1,0]')
            wr(0, Ea)
            wr(4, Ea + 2)
            wr(2, Eb)
            wr(6, Eb + 2)
        w_some(o['w_kv'])
        for j in range(o['tb_pre']):
            table(j)
        a.need(f'v{vFl}')
        self.drain()
        a('s_barrier')
        self.stamp(3)
        a(f's_lshl_b32 s{sT0}, s{sG}, 8')
        with self.wave0():
            self.check_init(vFl)
            a(f'buffer_atomic_add v{self.vOne}, off, {sr(S_WS, 4)}, s{sT0} sc1')
        w_some(o['w_e1'])
        for j in range(o['tb_pre'], 4):
            table(j)
        AD = 224
        a.need(f's{sDv}')
        a(f's_and_b32 s{sT1}, s{S_W}, 1')
        a(f's_lshl_b32 s{sT1}, s{sT1}, 4')
        a(f's_lshr_b32 s{sDv}, s{sDv}, s{sT1}')
        a(f's_and_b32 s{sDv}, s{sDv}, 0xffff')
        a(f'v_sub_u32 v5, 7, v{vI7}')
        a(f'v_and_b32 v7, 1, v5')
        a(f'v_lshlrev_b32 v7, 4, v7')
        a(f'v_lshlrev_b32 v7, v7, s{sDv}')
        a(f'v_bfe_u32 v8, v0, 3, 1')
        a(f'v_add_u32 v8, 2, v8')
        a(f'v_cmp_eq_u32 vcc, v8, v{vR}')
        a(f'v_cndmask_b32 v7, 0, v7, vcc')
        a(f'v_lshrrev_b32 v5, 1, v5')
        for d in range(4):
            a(f'v_cmp_eq_u32 vcc, {d}, v5')
            a(f'v_cndmask_b32 v{AD + d}, 0, v7, vcc')
        ACC = 8
        BUF = (40, 104)
        XR, SR = 168, 184

        def rdA(it, t):
            return f'ds_read_b128 {vr(BUF[it & 1] + 4 * t, 4)}, v{vAa} offset:{64 * it + 512 * t}'

        def rdB(it, t):
            return f'ds_read_b128 {vr(BUF[it & 1] + 32 + 4 * t, 4)}, v{vBa} offset:{448 - 64 * it + 512 * t}'
        for t in range(8):
            a(rdA(0, t))
        with self.wave0():
            self.spin(S_WS, f's{sT0}', 16, vFl)
        a('s_barrier')
        self.stamp(4)
        a(f's_mov_b32 s{sT0}, {KVX}')
        for j in range(4):
            a(f'buffer_load_dwordx4 {vr(BUF[1] + 4 * j, 4)}, v{vUL}, {sr(S_WS, 4)}, s{sT0} offen sc1')
            if j < 3:
                a(f's_add_u32 s{sT0}, s{sT0}, 4096')
        for j in range(4):
            a(f'ds_write_b128 v{vUW}, {vr(BUF[1] + 4 * j, 4)} offset:{512 + 1024 * j}')
            a(rdB(0, 2 * j))
            a(rdB(0, 2 * j + 1))
        self.stamp(5)
        a(f's_mov_b32 s{sT3}, {C_FX * 256}')
        a(f's_mov_b32 s{sT4}, {ST1}')
        a(f's_add_u32 s{sT6}, s{sT6}, {XP4}')
        for it in range(8):
            A, B = BUF[it & 1], BUF[it & 1] + 32
            mf = []
            for tp in range(8):
                if it == 0:
                    mf.append(f'v_mfma_f32_16x16x32_bf16 {vr(ACC + 4 * tp, 4)}, {vr(AD, 4)}, {vr(B + 4 * tp, 4)}, 0')
            for tp in range(8):
                for t in range(8 - tp):
                    c = vr(ACC + 4 * (t + tp), 4)
                    mf.append(f'v_mfma_f32_16x16x32_bf16 {c}, {vr(A + 4 * t, 4)}, {vr(B + 4 * tp, 4)}, {c}')
            fill = [[] for _ in mf]
            if it < 7:
                rd = [rdB(it + 1, 0)] + [rdA(it + 1, t) for t in range(8)] + [rdB(it + 1, t) for t in range(1, 8)]
                base = 8 if it == 0 else 0
                for i, x in enumerate(rd):
                    fill[base + 2 * i].append(x)
                n = (len(wl) + (6 - it)) // (7 - it)
                for i in range(n):
                    fill[base + 1 + 2 * ((i * 17) // n)] += wl.pop(0)
            if it == 0:
                w_some(0)
            if it == 2:
                fill[33].append(f'buffer_load_dword v{vFl}, off, {sr(S_WS, 4)}, s{sT3} sc1')
            if it == 7:
                ops = []
                for T in range(2):
                    for row in range(4):
                        src = XR + 8 * T + 2 * row
                        xf = BUF[0] + 16 * T + 4 * row
                        st = SR + 8 * T + 2 * row
                        ops += [f'v_lshlrev_b32 v{xf}, 16, v{src}', f'v_and_b32 v{xf + 1}, s{sT2}, v{src}',
                                f'v_lshlrev_b32 v{xf + 2}, 16, v{src + 1}', f'v_and_b32 v{xf + 3}, s{sT2}, v{src + 1}']
                        ops += [f'v_fma_f32 v{xf + 32 + c}, v{xf + c}, v{st}, v{st + 1}' for c in range(4)]
                for i, x in enumerate(ops):
                    fill[2 + i // 2].append(x)
            if it == 4:
                a.need(f'v{vFl}')
                self.spin(S_WS, f's{sT3}', 64, vFl, first_loaded=True)
                k = 0
                for T in range(2):
                    for p in range(2):
                        off = 2048 * T + 16 * p
                        fill[4 * k + 3].append(f'buffer_load_dwordx4 {vr(XR + 8 * T + 4 * p, 4)}, v{vXS}, {sr(S_WS, 4)}, s{sT6} offen offset:{off} sc1')
                        fill[4 * k + 5].append(f'buffer_load_dwordx4 {vr(SR + 8 * T + 4 * p, 4)}, v{vXS}, {sr(S_WS, 4)}, s{sT4} offen offset:{off} sc1')
                        k += 2
            if it > 0:
                a.need(vr(BUF[it & 1], 36))
            for m, f in zip(mf, fill):
                a(m)
                for x in f:
                    a(x)
        assert not wl
        self.stamp(6)
        for T in range(8):
            a(f'ds_write_b128 v{vG}, {vr(ACC + 4 * T, 4)} offset:{1024 * T}')
        a('s_waitcnt lgkmcnt(0)')
        a('s_barrier')
        Z = BUF[1]
        for T in range(2):
            for ch in range(4):
                a(f'ds_read_b128 {vr(Z + 16 * T + 4 * ch, 4)}, v{vZR2 if ch & 2 else vZR} offset:{(ch & 1) * GW + 1024 * T}')
        a(f's_mov_b32 s{sT0}, {HP4}')
        XF, QF, HO = BUF[0], BUF[0] + 32, ACC
        for T in range(2):
            for p in range(2):
                for b in range(2):
                    row = 2 * p + b
                    for c in range(4):
                        x = XF + 16 * T + 4 * row + c
                        a(f'v_fmac_f32 v{x}, v{x + 32}, v{Z + 16 * T + 4 * c + row}')
                    for c2 in range(2):
                        x = XF + 16 * T + 4 * row + 2 * c2
                        a(f'v_cvt_pk_bf16_f32 v{HO + 8 * T + 4 * p + 2 * b + c2}, v{x}, v{x + 1}')
                a(f'buffer_store_dwordx4 {vr(HO + 8 * T + 4 * p, 4)}, v{vHS}, {sr(S_WS, 4)}, s{sT0} offen offset:{2048 * T + 1024 * p} sc1')
        self.stamp(7)
        self.w_write_addr_main()
        a('s_barrier')
        wt = self.w_loads_tail()
        ww = self.w_writes_main()
        for i in range(20):
            for x in wt[i]:
                a(x)
            a(ww[i])
        self.drain()
        a('s_barrier')
        self.arrive_e2()
        for i in range(20, 40):
            a(ww[i])
        a.snapshot('join')
        a('.Ljoin:')

    def arrive_e2(self):
        a = self.a
        a(f's_lshl_b32 s{sT0}, s{sX}, 8')
        a(f's_add_u32 s{sT0}, s{sT0}, {C_B1 * 256}')
        with self.wave0():
            l = a.label('notlast')
            a(f'v_mov_b32 v{self.vTmp}, 1')
            a(f'buffer_atomic_add v{self.vTmp}, off, {sr(S_WS, 4)}, s{sT0} sc0 sc1')
            a('s_waitcnt vmcnt(0)')
            a(f'v_readfirstlane_b32 s{sT7}, v{self.vTmp}')
            a(f's_cmp_lg_u32 s{sT7}, 31')
            a(f's_cbranch_scc1 {l}')
            a('s_mov_b64 exec, 0xff')
            a(f'v_lshlrev_b32 v{self.vTmp}, 8, v0')
            a(f's_movk_i32 s{sT7}, {C_B2 * 256}')
            a(f'buffer_atomic_add v{self.vOne}, v{self.vTmp}, {sr(S_WS, 4)}, s{sT7} offen sc1')
            a(f'{l}:')

    def side(self):
        a = self.a
        self.in_side = True
        a('.Lside:')
        a.fresh('role')
        vTid = 1
        a(f'v_lshl_add_u32 v{vTid}, s{S_W}, 6, v0')
        a(f's_sub_u32 s{sG}, s{sX}, 2')
        a(f's_lshl_b32 s{sG}, s{sG}, 4')
        a(f's_add_u32 s{sG}, s{sG}, s{sM}')
        self.gemm_ids()
        self.w_addr()
        a.need(sr(S_WS, 2))
        if self.opt['s1_wait']:
            self.spin(S_DBG, '0', 1, 13, sleep=True)
        a(f's_cmp_ge_u32 s{sG}, 64')
        a.snapshot('s2')
        a('s_cbranch_scc1 .Ls2')
        XR, WR = 16, 56
        vA, vRow, vS8 = 2, 3, 4
        a(f'v_lshrrev_b32 v{vRow}, 3, v{vTid}')
        a(f'v_and_b32 v{vS8}, 7, v0')
        a(f's_mul_i32 s{sT0}, s{sG}, {32 * 1280}')
        a(f's_movk_i32 s{sT1}, 1280')
        a(f'v_lshl_add_u32 v{vA}, v{vS8}, 4, s{sT0}')
        a(f'v_mad_u32_u24 v{vA}, v{vRow}, s{sT1}, v{vA}')
        for j in range(10):
            a(f'buffer_load_dwordx4 {vr(XR + 4 * j, 4)}, v{vA}, {sr(S_X, 4)}, 0 offen offset:{128 * j}')
        def wd_loads():
            for j in range(10):
                a(f'buffer_load_dwordx4 {vr(WR + 4 * j, 4)}, v{vA}, {sr(S_WD, 4)}, 0 offen offset:{128 * j}')
        if not self.opt['wd_late']:
            wd_loads()
        vW, vRd, vSt = 5, 6, 7
        a(f's_movk_i32 s{sT1}, 528')
        a(f'v_lshlrev_b32 v{vW}, 3, v{vRow}')
        a(f'v_mad_u32_u24 v{vW}, v{vS8}, s{sT1}, v{vW}')
        a(f'v_and_b32 v{vRd}, 31, v0')
        a(f'v_lshlrev_b32 v{vRd}, 4, v{vRd}')
        a(f'v_lshrrev_b32 v8, 5, v{vTid}')
        a(f'v_mad_u32_u24 v{vRd}, v8, s{sT1}, v{vRd}')
        a(f's_lshl_b32 s{sT0}, s{sG}, 8')
        a(f'v_and_b32 v{vSt}, 15, v0')
        a(f'v_lshl_add_u32 v{vSt}, v{vSt}, 4, s{sT0}')
        a(f'v_lshrrev_b32 v8, 4, v{vTid}')
        a(f's_mov_b32 s{sT1}, {QS}')
        a(f'v_mad_u32_u24 v{vSt}, v8, s{sT1}, v{vSt}')
        for j in range(10):
            for o_ in range(2):
                a(f'ds_write_b64 v{vW}, {vr(XR + 4 * j + 2 * o_, 2)} offset:{j * 4224 + o_ * 256}')
        a('s_waitcnt lgkmcnt(0)')
        a('s_barrier')
        XO = 96
        for j in range(10):
            a(f'ds_read_b128 {vr(XO + 4 * j, 4)}, v{vRd} offset:{j * 4224}')
        a(f's_mov_b32 s{sT1}, {XP4}')
        for j in range(10):
            a(f'buffer_store_dwordx4 {vr(XO + 4 * j, 4)}, v{vSt}, {sr(S_WS, 4)}, s{sT1} offen sc1')
            a(f's_add_u32 s{sT1}, s{sT1}, {16 * QS}')
        a(f's_mov_b32 s{sOne}, 0x3f803f80')
        for i in range(4):
            a(f'v_mov_b32 v{8 + i}, 0')
        for i in range(40):
            a(f'v_dot2c_f32_bf16 v{8 + (i & 1)}, s{sOne}, v{XR + i}')
            a(f'v_dot2c_f32_bf16 v{10 + (i & 1)}, v{XR + i}, v{XR + i}')
        a('v_add_f32 v8, v8, v9')
        a('v_add_f32 v10, v10, v11')
        for m in ('quad_perm:[1,0,3,2]', 'quad_perm:[2,3,0,1]', 'row_half_mirror'):
            a(f'v_add_f32_dpp v8, v8, v8 {m} row_mask:0xf bank_mask:0xf')
            a(f'v_add_f32_dpp v10, v10, v10 {m} row_mask:0xf bank_mask:0xf')
        a(f'v_mul_f32 v8, {f32(1 / 640)}, v8')
        a(f'v_mul_f32 v10, {f32(1 / 640)}, v10')
        a('v_fma_f32 v10, -v8, v8, v10')
        a('v_max_f32 v10, 0, v10')
        a(f'v_add_f32 v10, {f32(1e-5)}, v10')
        a('v_rsq_f32 v10, v10')
        a(f'v_lshl_add_u32 v12, v{vRow}, 3, s{sT0}')
        a('v_mul_f32 v11, -v8, v10')
        a(f's_mov_b32 s{sT1}, {ST1}')
        a('s_mov_b32 exec_lo, 0x01010101')
        a('s_mov_b32 exec_hi, 0x01010101')
        a(f'buffer_store_dwordx2 v[10:11], v12, {sr(S_WS, 4)}, s{sT1} offen sc1')
        a('s_mov_b64 exec, -1')
        vFl = 13
        a(f'buffer_load_dword v{vFl}, off, {sr(S_DBG, 4)}, 0 sc1')
        WB = 49152
        a(f's_movk_i32 s{sT1}, 1344')
        a(f'v_lshlrev_b32 v{vW}, 4, v{vS8}')
        a(f'v_mad_u32_u24 v{vW}, v{vRow}, s{sT1}, v{vW}')
        if self.opt['wd_late']:
            wd_loads()
        a.need(f'v{vFl}')
        self.drain()
        a('s_barrier')
        a(f's_movk_i32 s{sT0}, {C_FX * 256}')
        with self.wave0():
            self.check_init(vFl)
            a(f'buffer_atomic_add v{self.vOne}, off, {sr(S_WS, 4)}, s{sT0} sc1')
        self.stamp(1)
        for j in range(10):
            a(f'ds_write_b128 v{vW}, {vr(WR + 4 * j, 4)} offset:{WB + 128 * j}')
        a('s_waitcnt vmcnt(0) lgkmcnt(0)')
        a('s_barrier')
        self.stamp(2)
        ls3 = a.label('nos3')
        a(f's_cmp_ge_u32 s{sG}, 48')
        a(f's_cbranch_scc1 {ls3}')
        with a.untracked():
            a('v_lshrrev_b32 v8, 4, v0')
            a('v_bfe_u32 v9, v0, 2, 2')
            a('v_lshl_add_u32 v8, v8, 3, v9')
            a(f's_mul_i32 s{sT0}, s{S_W}, 320')
            a(f'v_mov_b32 v9, s{sT0}')
            a(f'v_mad_u32_u24 v8, v8, s{sT1}, v9')
            a('v_and_b32 v9, 3, v0')
            a('v_lshl_add_u32 v10, v9, 3, v8')
            a('v_lshl_add_u32 v8, v9, 4, v8')
            for cc in range(2):
                for nt in range(5):
                    for e in range(2):
                        off = WB + cc * 160 + e * 4 * 1344 + ((nt >> 1) * 64 + (nt & 1) * 8)
                        a(f'ds_read_b64_tr_b16 {vr(XO + 4 * (5 * cc + nt) + 2 * e, 2)}, v{10 if nt == 4 else 8} offset:{off}')
            a(f's_mul_i32 s{sT0}, s{S_W}, 96')
            a(f's_add_u32 s{sT0}, s{sT0}, s{sG}')
            a(f's_mul_i32 s{sT0}, s{sT0}, 5120')
            a(f's_add_u32 s{sT0}, s{sT0}, {WDF}')
            a('v_lshlrev_b32 v9, 4, v0')
            a('s_waitcnt lgkmcnt(0)')
            for cc in range(2):
                for nt in range(5):
                    if nt == 4:
                        a(f's_add_u32 s{sT0}, s{sT0}, 4096')
                    a(f'buffer_store_dwordx4 {vr(XO + 4 * (5 * cc + nt), 4)}, v9, {sr(S_WS, 4)}, s{sT0} offen offset:{(nt & 3) * 1024} sc1')
                a(f's_add_u32 s{sT0}, s{sT0}, {48 * 5120 - 4096}')
        a(f'{ls3}:')
        a('s_branch .Lside_w')
        a('.Ls2:')
        a.fresh('s2')
        if self.opt['flag2']:
            a(f's_movk_i32 s{sT0}, 128')
            self.spin(S_DBG, f's{sT0}', 1, 13, sleep=True)
        a(f'buffer_load_dword v13, off, {sr(S_DBG, 4)}, 0 sc1')
        a('s_waitcnt vmcnt(0)')
        self.stamp(1)
        a(f's_cmp_ge_u32 s{sG}, 88')
        a('s_cbranch_scc1 .Ls2_done')
        a(f's_sub_u32 s{sT0}, s{sG}, 64')
        a(f's_cmp_ge_u32 s{sT0}, 12')
        a(f's_cselect_b32 s{S_WD}, s{S_WU}, s{S_WG}')
        a(f's_cselect_b32 s{S_WD + 1}, s{S_WU + 1}, s{S_WG + 1}')
        a(f's_cselect_b32 s{sT1}, 12, 0')
        a(f's_sub_u32 s{sT1}, s{sT0}, s{sT1}')
        a(f's_lshl_b32 s{sT1}, s{sT1}, 8')
        a('v_and_b32 v2, 15, v0')
        a(f'v_lshrrev_b32 v3, 4, v{vTid}')
        a(f'v_lshl_add_u32 v4, v2, 4, s{sT1}')
        a(f's_movk_i32 s{sT2}, 3072')
        a(f'v_mad_u32_u24 v4, v3, s{sT2}, v4')
        a(f's_mov_b32 s{sT2}, 0')
        for i in range(40):
            a(f'buffer_load_dwordx4 {vr(32 + 4 * i, 4)}, v4, {sr(S_WD, 4)}, s{sT2} offen')
            a(f's_add_u32 s{sT2}, s{sT2}, {16 * 3072}')
        for i in range(8):
            a(f'v_mov_b32 v{16 + i}, 0')
        a(f's_mov_b32 s{sT2}, 0x3f80')
        a(f's_mov_b32 s{sT3}, 0x3f800000')
        for i in range(160):
            a(f'v_dot2c_f32_bf16 v{16 + 2 * (i & 3)}, s{sT2}, v{32 + i}')
            a(f'v_dot2c_f32_bf16 v{17 + 2 * (i & 3)}, s{sT3}, v{32 + i}')
        a(f'v_lshlrev_b32 v5, 5, v{vTid}')
        a('ds_write_b128 v5, v[16:19]')
        a('ds_write_b128 v5, v[20:23] offset:16')
        a('s_waitcnt lgkmcnt(0)')
        a('s_barrier')
        a(f'v_and_b32 v5, 127, v{vTid}')
        a('v_lshlrev_b32 v6, 2, v5')
        for i in range(16):
            a(f'ds_read_b32 v{32 + i}, v6 offset:{512 * i}')
        for i in range(1, 16):
            a(f'v_add_f32 v32, v32, v{32 + i}')
        a('v_cvt_pk_bf16_f32 v8, v32, v32')
        a('v_lshlrev_b32 v10, 16, v8')
        a('v_sub_f32 v10, v32, v10')
        a('v_cvt_pk_bf16_f32 v9, v10, v10')
        a(f's_lshl_b32 s{sT0}, s{sT0}, 10')
        a(f's_add_u32 s{sT0}, s{sT0}, {CSF}')
        a('v_lshrrev_b32 v6, 5, v5')
        a('v_lshlrev_b32 v6, 8, v6')
        a('v_lshl_add_u32 v6, v2, 4, v6')
        a('v_bfe_u32 v7, v5, 4, 1')
        a('v_lshl_add_u32 v6, v7, 3, v6')
        a(f'buffer_store_dwordx2 v[8:9], v6, {sr(S_WS, 4)}, s{sT0} offen sc1')
        a('.Ls2_done:')
        self.stamp(2)
        with self.wave0():
            self.check_init(13)
        a('.Lside_w:')
        a.fresh()
        for g in self.w_loads_main() + self.w_loads_tail():
            for x in g:
                a(x)
        self.w_write_addr_main()
        a('s_waitcnt vmcnt(0) lgkmcnt(0)')
        a('s_barrier')
        self.stamp(6)
        self.arrive_e2()
        for x in self.w_writes_main():
            a(x)
        self.stamp(7)
        a('s_branch .Ljoin')

    def gemm1(self):
        a = self.a
        o = self.opt
        t, t2 = self.vTmp, self.vTmp2
        vTR = 224
        vAL, vAS, vWD, vCS = 228, 229, 230, 231
        vS = 232
        BP = 236
        CS45 = 242
        TM = 246
        ACC = 160
        RING1, CS01, RING2 = 128, 152, 240
        a(f'v_lshrrev_b32 v{t}, 5, v0')
        a(f'v_bfe_u32 v{t2}, v0, 2, 2')
        a(f'v_lshl_add_u32 v{t}, v{t}, 3, v{t2}')
        a(f'v_lshlrev_b32 v{t}, 6, v{t}')
        a(f'v_and_b32 v{t2}, 3, v0')
        a(f'v_lshl_add_u32 v{t}, v{t2}, 4, v{t}')
        a(f'v_bfe_u32 v{t2}, v0, 4, 1')
        a(f'v_lshl_add_u32 v{vTR}, v{t2}, 3, v{t}')
        for s in range(1, 4):
            a(f'v_xor_b32 v{t}, {32 * s}, v{vTR}')
            a(f'v_add_u32 v{vTR + s}, {TILE * s}, v{t}')
        a(f's_lshl_b32 s{sT0}, s{sRB}, 2')
        a(f's_add_u32 s{sT0}, s{sT0}, s{S_W}')
        a(f's_lshl_b32 s{sT1}, s{sT0}, 8')
        a(f'v_and_b32 v{t}, 15, v0')
        a(f'v_lshl_add_u32 v{t}, v{t}, 4, s{sT1}')
        a(f'v_lshrrev_b32 v{t2}, 4, v0')
        a(f's_mov_b32 s{sT1}, {QS}')
        a(f'v_mad_u32_u24 v{vAL}, v{t2}, s{sT1}, v{t}')
        a(f's_mul_i32 s{sT1}, s{sT0}, 98304')
        a(f'v_lshl_add_u32 v{vAS}, v0, 4, s{sT1}')
        a(f's_and_b32 s{sT0}, s{sJ}, 7')
        a(f's_lshl_b32 s{sT0}, s{sT0}, 2')
        a(f's_add_u32 s{sT0}, s{sT0}, s{S_W}')
        a(f's_mul_i32 s{sT0}, s{sT0}, {12 * 5120}')
        a(f'v_lshl_add_u32 v{vWD}, v0, 4, s{sT0}')
        a(f'v_and_b32 v{t}, 3, v0')
        a(f'v_bfe_u32 v{t2}, v0, 2, 1')
        a(f'v_lshl_add_u32 v{t}, v{t2}, 3, v{t}')
        a(f'v_bfe_u32 v{t2}, v0, 4, 1')
        a(f'v_lshl_add_u32 v{t}, v{t2}, 2, v{t}')
        a(f'v_lshlrev_b32 v{t}, 4, v{t}')
        a(f'v_bfe_u32 v{t2}, v0, 3, 1')
        a(f's_movk_i32 s{sT1}, 12288')
        a(f'v_mad_u32_u24 v{vCS}, v{t2}, s{sT1}, v{t}')
        self.w_write_addr_tail()
        for i in range(4):
            a(f'v_mov_b32 v{vS + i}, 0')
        for i in (0, 1, 4, 5):
            a(f'v_mov_b32 v{BP + i}, 0')
        a(f's_mov_b32 s{sOne}, 0x3f803f80')
        a(f's_lshl_b32 s{sT2}, s{sA}, 7')
        a(f's_add_u32 s{sT2}, s{sT2}, {CSF}')
        a(f's_lshl_b32 s{sT3}, s{sB}, 7')
        a(f's_add_u32 s{sT3}, s{sT3}, {CSF}')
        a(f's_lshl_b32 s{sA}, s{sA}, 10')
        a(f's_add_u32 s{sA}, s{sA}, {ACT}')
        a(f's_lshl_b32 s{sB}, s{sB}, 10')
        a(f's_add_u32 s{sB}, s{sB}, {ACT}')
        a(f's_mov_b32 s{sWoff}, {WDF}')
        a(f's_mov_b32 s{sT1}, {HP4}')
        a(f's_lshl_b32 s{sT0}, s{sX}, 8')
        a(f's_add_u32 s{sT0}, s{sT0}, {C_B2 * 256}')
        a.need('v255')
        a(f'v_mov_b32 v255, v0')
        with self.wave0():
            self.spin(S_WS, f's{sT0}', 8, t)
        a('s_waitcnt lgkmcnt(0)')
        a('s_barrier')
        self.stamp(8)
        al = []
        for j in range(40):
            g = [f'buffer_load_dwordx4 {vr(4 * j, 4)}, v{vAL}, {sr(S_WS, 4)}, s{sT1} offen sc1']
            if j < 39:
                g.append(f's_add_u32 s{sT1}, s{sT1}, {4 * QS}')
            al.append(g)
        al.append([f'buffer_load_dwordx4 {ar(CS01, 4)}, v{vCS}, {sr(S_WS, 4)}, s{sT2} offen sc1'])
        al.append([f'buffer_load_dwordx4 {ar(CS01 + 4, 4)}, v{vCS}, {sr(S_WS, 4)}, s{sT2} offen offset:256 sc1'])
        al.append([f'buffer_load_dwordx4 {vr(CS45, 4)}, v{vCS}, {sr(S_WS, 4)}, s{sT3} offen sc1'])
        for _ in range(o['a_ahead']):
            for x in al.pop(0):
                a(x)

        def rd(dst, slot, j):
            return [f'ds_read_b64_tr_b16 {ar(dst + 2 * e, 2)}, v{vTR + slot} offset:{1024 * j + 256 * e}'
                    for e in range(2)]

        def swaps(j):
            return [f'v_permlane16_swap_b32 v{4 * j}, v{4 * j + 2}', f'v_permlane16_swap_b32 v{4 * j + 1}, v{4 * j + 3}']

        def acc(slot):
            return vr(ACC + 16 * slot, 16)
        wd = []
        for i in range(60):
            g = [f'buffer_load_dwordx4 {ar(4 * i, 4)}, v{vWD}, {sr(S_WS, 4)}, s{sWoff} offen offset:{(i & 3) * 1024} sc1']
            if i & 3 == 3 and i != 59:
                g.append(f's_add_u32 s{sWoff}, s{sWoff}, 4096')
            wd.append(g)
        wtail = self.w_writes_tail()
        for j in range(2):
            for s in range(3):
                for x in rd(RING1 + 12 * j + 4 * s, s, j):
                    a(x)
        for x in swaps(0):
            a(x)
        p2 = [(3, 3, j) for j in range(40)] + [(4, 0, j) for j in range(40)] + [(5, 1, j) for j in range(40)]
        for j in range(40):
            base = RING1 + 12 * (j & 1)
            a.need(ar(base, 12))
            for s in range(3):
                c = '0' if j == 0 else acc(s)
                a(f'v_mfma_f32_32x32x16_bf16 {acc(s)}, {ar(base + 4 * s, 4)}, {vr(4 * j, 4)}, {c}')
                if j < 38:
                    for x in rd(base + 4 * s, s, j + 2):
                        a(x)
                else:
                    i = (j - 38) * 3 + s
                    if i < 4:
                        for x in rd(RING2 + 4 * i, p2[i][1], p2[i][2]):
                            a(x)
                if s == 0 and j < 39:
                    for x in swaps(j + 1):
                        a(x)
                if s == 1 and 22 <= j < 32:
                    a(wtail.pop(0))
                if s == 2:
                    for x in (al.pop(0) if al else wd.pop(0)):
                        a(x)
            if j == 21:
                a('s_barrier')
            if j & 7 == 7:
                for r in range(32 * (j >> 3), 32 * (j >> 3) + 32):
                    a(f'v_dot2c_f32_bf16 v{vS + (r & 1)}, s{sOne}, v{r}')
                    a(f'v_dot2c_f32_bf16 v{vS + 2 + (r & 1)}, v{r}, v{r}')
        self.stamp(9)
        C0, C1, R = vS, vS + 1, vS + 2
        c0 = -2.0 * 0.7978845608028654 * 1.4426950408889634
        st = [
            f'v_add_f32 v{vS}, v{vS}, v{vS + 1}',
            f'v_add_f32 v{vS + 2}, v{vS + 2}, v{vS + 3}',
            f'v_mov_b32 v{vS + 1}, v{vS}',
            f'v_mov_b32 v{vS + 3}, v{vS + 2}',
            f'v_cmp_gt_u32 vcc, 32, v255',
            f'v_permlane32_swap_b32 v{vS}, v{vS + 1}',
            f'v_permlane32_swap_b32 v{vS + 2}, v{vS + 3}',
            f'v_add_f32 v{vS}, v{vS}, v{vS + 1}',
            f'v_add_f32 v{vS + 2}, v{vS + 2}, v{vS + 3}',
            f'v_mul_f32 v{vS}, {f32(-1 / 640)}, v{vS}',
            f'v_mul_f32 v{vS + 2}, {f32(1 / 640)}, v{vS + 2}',
            f'v_cvt_pk_bf16_f32 v{t}, v{vS}, v{vS}',
            f'v_fma_f32 v{R}, -v{vS}, v{vS}, v{R}',
            f'v_lshlrev_b32 v{t}, 16, v{t}',
            f'v_max_f32 v{R}, 0, v{R}',
            f'v_sub_f32 v{t2}, v{vS}, v{t}',
            f'v_add_f32 v{R}, {f32(1e-5)}, v{R}',
            f'v_cvt_pk_bf16_f32 v{t}, v{t}, v{t2}',
            f'v_rsq_f32 v{vS + 3}, v{R}',
            f'v_cndmask_b32 v{BP + 2}, 0, v{t}, vcc',
            f'v_cndmask_b32 v{BP + 3}, 0, v{t}, vcc',
            f'v_mul_f32 v{C0}, {f32(c0)}, v{vS + 3}',
            f'v_mul_f32 v{t}, v{vS + 3}, v{vS + 3}',
            f'v_mul_f32 v{t}, {f32(0.044715)}, v{t}',
            f'v_mul_f32 v{C1}, v{t}, v{C0}',
        ]

        def csm(tile, slot, first):
            src = vr(CS45, 4) if tile >= 4 else ar(CS01 + 4 * (tile >> 1), 4)
            b = vr(BP, 4) if tile & 1 else vr(BP + 2, 4)
            return f'v_mfma_f32_32x32x16_bf16 {acc(slot)}, {src}, {b}, {"0" if first else acc(slot)}'

        def epi(tile, slot):
            b = ACC + 16 * slot
            tm = [TM, TM + 1, t, t2]
            ops = []
            for h in range(2):
                g, u = b + 8 * h, b + 8 * h + 4
                ops += [(1, f'v_mul_f32 v{tm[i]}, v{g + i}, v{g + i}') for i in range(4)]
                ops += [(1, f'v_fma_f32 v{tm[i]}, v{tm[i]}, v{C1}, v{C0}') for i in range(4)]
                ops += [(1, f'v_mul_f32 v{tm[i]}, v{tm[i]}, v{g + i}') for i in range(4)]
                for i in range(4):
                    ops += [(2, f'v_exp_f32 v{tm[i]}, v{tm[i]}'), (1, f'v_mul_f32 v{u + i}, v{u + i}, v{g + i}')]
                ops += [(1, f'v_fma_f32 v{tm[i]}, v{tm[i]}, v{R}, v{R}') for i in range(4)]
                ops += [(2, f'v_rcp_f32 v{tm[i]}, v{tm[i]}') for i in range(4)]
                ops += [(1, f'v_mul_f32 v{u + i}, v{u + i}, v{tm[i]}') for i in range(4)]
                ops += [(1, f'v_cvt_pk_bf16_f32 v{b + 2 * h + i}, v{u + 2 * i}, v{u + 2 * i + 1}') for i in range(2)]
            so = sA if tile < 4 else sB
            ops.append((1, f'buffer_store_dwordx4 {vr(b, 4)}, v{vAS}, {sr(S_WS, 4)}, s{so} offen offset:{(tile & 3) * 1024} sc1'))
            return ops
        slot_of = {0: 0, 1: 1, 2: 2, 3: 3, 4: 0, 5: 1}
        eq = []
        budget = 0.0
        RATE = o.get('epi_rate', 3.75)
        nwd_loop = len(wd) - o['wd_tail']
        wd_done = 0
        for i, (tile, ls, j) in enumerate(p2):
            slot = slot_of[tile]
            if j == 0 and tile > 3:
                a(csm(tile, slot, True))
            if i & 1 == 0:
                a.need(ar(RING2 + 4 * (i & 3), 8))
            c = '0' if i == 0 else acc(slot)
            a(f'v_mfma_f32_32x32x16_bf16 {acc(slot)}, {ar(RING2 + 4 * (i & 3), 4)}, {vr(4 * j, 4)}, {c}')
            if i == 31:
                assert not wtail
                a('s_waitcnt lgkmcnt(0)')
                a('s_barrier')
            if i + 4 < len(p2):
                for x in rd(RING2 + 4 * (i & 3), p2[i + 4][1], p2[i + 4][2]):
                    a(x)
            if i == 1:
                a('s_barrier')
            if 2 <= i < 22 and i & 1 == 0:
                a(wtail.pop(0))
            if i < 7:
                for _ in range(4):
                    if st:
                        a(st.pop(0))
            if i == 7:
                assert not st
                for tl in range(4):
                    a(csm(tl, tl, False))
                eq += epi(0, 0) + epi(1, 1) + epi(2, 2)
            if i == 42:
                eq += epi(3, 3)
            if i == 82:
                eq += epi(4, 0)
            if i >= 8:
                budget += RATE
                while eq and budget >= eq[0][0]:
                    cst, x = eq.pop(0)
                    budget -= cst
                    a(x)
                if not eq:
                    budget = 0
                if i == 39:
                    assert len(eq) <= 2 * 69, len(eq)
                if i == 79:
                    assert len(eq) <= 2 * 69, len(eq)
            want = ((i + 1) * nwd_loop) // len(p2)
            while wd_done < want:
                for x in wd.pop(0):
                    a(x)
                wd_done += 1
        for cst, x in eq:
            a(x)
        for cst, x in epi(5, 1):
            a(x)
        self.stamp(10)
        while wd:
            for x in wd.pop(0):
                a(x)

    def gemm2(self):
        a = self.a
        L = 255
        t, t2 = self.vTmp, self.vTmp2
        vA2 = 240
        vRes, vRes2, vOut, vOut2 = 244, 245, 246, 247
        vRW, vRR = 251, 254
        RES = 240
        a(f's_and_b32 s{sT0}, s{sX}, 1')
        a(f's_lshl_b32 s{sT0}, s{sT0}, 1')
        a(f's_lshl_b32 s{sT1}, s{sRB}, 2')
        a(f's_add_u32 s{sT0}, s{sT0}, s{sT1}')
        a(f'v_and_b32 v{t}, 15, v{L}')
        a(f'v_lshrrev_b32 v{t2}, 4, v{L}')
        a(f's_lshr_b32 s{sT1}, s{S_W}, 1')
        a(f's_add_u32 s{sT1}, s{sT1}, s{sT0}')
        a(f's_lshl_b32 s{sT2}, s{sT1}, 8')
        a(f's_and_b32 s{sT3}, s{S_W}, 1')
        a(f's_lshl_b32 s{sT4}, s{sT3}, 3')
        a(f's_add_u32 s{sT2}, s{sT2}, s{sT4}')
        a(f's_and_b32 s{sT4}, s{sJ}, 7')
        a(f's_mul_i32 s{sT5}, s{sT4}, {20 * QS}')
        a(f's_add_u32 s{sT2}, s{sT2}, s{sT5}')
        a(f'v_lshl_add_u32 v{vRes2}, v{t}, 4, s{sT2}')
        a(f's_mov_b32 s{sT5}, {2 * QS}')
        a(f'v_mad_u32_u24 v{vRes}, v{t2}, s{sT5}, v{vRes2}')
        a(f's_mov_b32 s{sT5}, {QS}')
        a(f'v_mad_u32_u24 v{vRes2}, v{t2}, s{sT5}, v{vRes2}')
        for nt in range(5):
            q = 8 * (nt >> 1) + (nt & 1)
            a(f's_mov_b32 s{sT5}, {HP4 + q * QS}')
            a(f'buffer_load_dwordx2 {ar(RES + 2 * nt, 2)}, v{vRes2 if nt == 4 else vRes}, {sr(S_WS, 4)}, s{sT5} offen sc1')
        a(f's_lshr_b32 s{sT5}, s{sRB}, 1')
        a(f's_lshl_b32 s{sT5}, s{sT5}, 8')
        a(f's_and_b32 s{sT6}, s{sT1}, 3')
        a(f's_lshl_b32 s{sT6}, s{sT6}, 2')
        a(f's_add_u32 s{sT5}, s{sT5}, s{sT6}')
        a(f's_and_b32 s{sT6}, s{sRB}, 1')
        a(f's_lshl_b32 s{sT6}, s{sT6}, 1')
        a(f's_add_u32 s{sT5}, s{sT5}, s{sT6}')
        a(f's_add_u32 s{sT5}, s{sT5}, s{sT3}')
        a(f's_mul_i32 s{sT5}, s{sT5}, 1280')
        a(f's_mul_i32 s{sT6}, s{sT4}, 160')
        a(f's_add_u32 s{sT5}, s{sT5}, s{sT6}')
        a(f's_movk_i32 s{sT6}, {16 * 1280}')
        a(f'v_mov_b32 v{vOut2}, s{sT5}')
        a(f'v_mad_u32_u24 v{vOut2}, v{t}, s{sT6}, v{vOut2}')
        a(f'v_lshl_add_u32 v{vOut}, v{t2}, 4, v{vOut2}')
        a(f'v_lshl_add_u32 v{vOut2}, v{t2}, 3, v{vOut2}')
        a(f'v_lshlrev_b32 v{t}, 4, v{t}')
        a(f'v_lshl_add_u32 v{t}, v{t2}, 9, v{t}')
        for lam in range(4):
            a(f's_xor_b32 s{sT2}, s{S_W}, {lam}')
            if lam:
                a(f's_mul_i32 s{sT3}, s{sT2}, {15 * 1024}')
                a(f's_add_u32 s{sT3}, s{sT3}, {(lam - 1) * 5120}')
                a(f'v_lshl_add_u32 v{vRW + lam - 1}, v{L}, 4, s{sT3}')
            else:
                a(f's_mul_i32 s{sT3}, s{sT2}, {15 * 1024}')
                a(f'v_lshl_add_u32 v{vRR}, v{L}, 4, s{sT3}')
            a(f's_lshr_b32 s{sT3}, s{sT2}, 1')
            a(f's_add_u32 s{sT3}, s{sT3}, s{sT0}')
            a(f's_mul_i32 s{sT3}, s{sT3}, 98304')
            a(f's_and_b32 s{sT2}, s{sT2}, 1')
            a(f's_lshl_b32 s{sT2}, s{sT2}, 8')
            a(f's_add_u32 s{sT3}, s{sT3}, s{sT2}')
            a(f'v_add_u32 v{vA2 + lam}, s{sT3}, v{t}')
        a(f's_mul_i32 s{sT1}, s{S_W}, {12 * 2048}')
        a(f's_add_u32 s{sT1}, s{sT1}, {ACT}')
        a(f's_lshl_b32 s{sT0}, s{sRB}, 8')
        a(f's_add_u32 s{sT0}, s{sT0}, {C_F3 * 256}')
        self.drain()
        a('s_barrier')
        with self.wave0():
            a(f'buffer_atomic_add v{self.vOne}, off, {sr(S_WS, 4)}, s{sT0} sc1')
            self.spin(S_WS, f's{sT0}', 16, t)
        a('s_barrier')
        self.stamp(11)
        AF = 80

        def ld(kk, lam):
            i = (4 * kk + lam) % 40
            r = [f'buffer_load_dwordx4 {vr(AF + 4 * i, 4)}, v{vA2 + lam}, {sr(S_WS, 4)}, s{sT1} offen offset:{(kk & 1) * 2048} sc1']
            if lam == 3 and kk & 1 and kk < 11:
                r.append(f's_add_u32 s{sT1}, s{sT1}, 4096')
            return r
        lq = [ld(kk, lam) for kk in range(12) for lam in range(4)]
        for _ in range(self.opt['act_ahead']):
            for x in lq.pop(0):
                a(x)
        for kk in range(12):
            for lam in range(4):
                i = (4 * kk + lam) % 40
                for nt in range(5):
                    c = vr(4 * (5 * lam + nt), 4)
                    a(f'v_mfma_f32_16x16x32_bf16 {c}, {ar(4 * (5 * kk + nt), 4)}, {vr(AF + 4 * i, 4)}, {"0" if kk == 0 else c}')
                if lq:
                    for x in lq.pop(0):
                        a(x)
        RR = 200
        for i in range(10):
            a(f'v_accvgpr_read_b32 v{RR + i}, a{RES + i}')
        for lam in range(1, 4):
            for nt in range(5):
                a(f'ds_write_b128 v{vRW + lam - 1}, {vr(4 * (5 * lam + nt), 4)} offset:{1024 * nt}')
        a(f's_mov_b32 s{sT2}, 0xffff0000')
        for i in range(10):
            a(f'v_lshlrev_b32 v{t}, 16, v{RR + i}')
            a(f'v_and_b32 v{t2}, s{sT2}, v{RR + i}')
            a(f'v_add_f32 v{2 * i}, v{2 * i}, v{t}')
            a(f'v_add_f32 v{2 * i + 1}, v{2 * i + 1}, v{t2}')
        a('s_waitcnt lgkmcnt(0)')
        a('s_barrier')
        for nt in range(5):
            for s in range(3):
                a(f'ds_read_b128 {vr(AF + 12 * nt + 4 * s, 4)}, v{vRR} offset:{5120 * s + 1024 * nt}')
        for nt in range(5):
            b = AF + 12 * nt
            for p in range(2):
                a(f'v_pk_add_f32 {vr(4 * nt + 2 * p, 2)}, {vr(4 * nt + 2 * p, 2)}, {vr(b + 2 * p, 2)}')
                a(f'v_pk_add_f32 {vr(b + 4 + 2 * p, 2)}, {vr(b + 4 + 2 * p, 2)}, {vr(b + 8 + 2 * p, 2)}')
            for p in range(2):
                a(f'v_pk_add_f32 {vr(4 * nt + 2 * p, 2)}, {vr(4 * nt + 2 * p, 2)}, {vr(b + 4 + 2 * p, 2)}')
            for p in range(2):
                a(f'v_cvt_pk_bf16_f32 v{RR + 2 * nt + p}, v{4 * nt + 2 * p}, v{4 * nt + 2 * p + 1}')
            if nt & 1:
                a(f'buffer_store_dwordx4 {vr(RR + 2 * nt - 2, 4)}, v{vOut}, {sr(S_OUT, 4)}, 0 offen offset:{64 * (nt >> 1)}')
            if nt == 4:
                a(f'buffer_store_dwordx2 {vr(RR + 8, 2)}, v{vOut2}, {sr(S_OUT, 4)}, 0 offen offset:128')
        if self.diag:
            a('s_waitcnt vmcnt(0)')
            self.stamp(12)
            a('s_waitcnt lgkmcnt(0)')
            with self.wave0():
                a(f's_lshl_b32 s{sT0}, s2, 7')
                a(f's_add_u32 s{sT0}, s{sT0}, {STAMP}')
                for i in range(NSTAMP):
                    a(f'v_mov_b32 v0, s{S_STAMP + 2 * i}')
                    a(f'buffer_store_dword v0, off, {sr(S_WS, 4)}, s{sT0} offset:{4 * i}')
                    if self.opt.get('dbg'):
                        a(f'buffer_atomic_umax v0, off, {sr(S_DBG, 4)}, 0 offset:{4 * i + 8} sc1')
                        if i == 0:
                            a('v_not_b32 v1, v0')
                            a(f'buffer_atomic_umax v1, off, {sr(S_DBG, 4)}, 0 offset:4 sc1')
        if self.opt.get('fixt'):
            with a.untracked():
                a('s_cmp_lg_u32 s2, 0')
                a('s_cbranch_scc1 .Lend')
                a('.Lfix:')
                a(f's_memrealtime {sr(sT0, 2)}')
                a('s_waitcnt lgkmcnt(0)')
                a(f's_sub_u32 s{sT0}, s{sT0}, s{S_STAMP}')
                a(f's_cmp_lt_u32 s{sT0}, {self.opt["fixt"]}')
                a('s_cbranch_scc1 .Lfix')
        a('.Lend:')
        a('s_endpgm')

    def build(self):
        a = self.a
        if self.diag:
            for i in range(2 * NSTAMP):
                a(f's_mov_b32 s{S_STAMP + i}, 0')
        self.prologue()
        self.conv()
        self.gemm1()
        self.gemm2()
        self.side()
        a('.Lcode_end:')
        a('s_endpgm')
        body = a.finish(verbose=True, align=self.opt.get('align', 1))
        ref = open('cdna_kernels/' + NAME + '.s.ref').read().split('\n')
        head = [l for l in ref if l.startswith(';') and '@launch' not in l and 'Override' not in l and 'grid=ceil' not in l]
        txt = '\n'.join(head) + '\n'
        txt += '; Generated by my generator script (one persistent launch; see comments there).\n'
        txt += '; @launch grid=(256,1,1) block=(256,1,1) lds=163840\n'
        txt += f'''.amdgcn_target "amdgcn-amd-amdhsa--gfx950"
.text
.globl {NAME}_kernel
.p2align 8
.type {NAME}_kernel,@function
{NAME}_kernel:
{body}.section .rodata,"a"
.p2align 6
.amdhsa_kernel {NAME}_kernel
  .amdhsa_next_free_vgpr 512
  .amdhsa_next_free_sgpr 102
  .amdhsa_accum_offset 256
  .amdhsa_group_segment_fixed_size 0
  .amdhsa_kernarg_size 104
  .amdhsa_user_sgpr_count 2
  .amdhsa_user_sgpr_kernarg_segment_ptr 1
  .amdhsa_system_sgpr_workgroup_id_x 1
  .amdhsa_float_denorm_mode_32 3
.end_amdhsa_kernel
'''
        return txt


if __name__ == '__main__':
    out = sys.argv[1]
    diag = 'diag' in sys.argv[2:]
    opt = {}
    for x in sys.argv[2:]:
        if '=' in x:
            k, v = x.split('=')
            try:
                v = int(v)
            except ValueError:
                try:
                    v = float(v)
                except ValueError:
                    pass
            opt[k] = v
    open(out, 'w').write(Gen(diag, opt).build())
```

```python
import struct
import sys
from asmlib import Asm, vr, ar, sr

NAME = 'sequential_preLN__ssm_conv_h3__geglu_ffn__prompt'

QS = 16384
CNT = 0
ST1 = 16384
CSF = 32768
STAMP = 65536
KVX = 131072
XP4 = KVX + 160 * QS
HP4 = XP4 + 160 * QS
WDF = HP4 + 160 * QS
ACT = WDF + 1966080
WS_END = ACT + 6291456
C_F1, C_FX, C_B1, C_B2, C_F3 = 0, 10, 16, 24, 32
SPIN = 200000

S_W = 3
S_K, S_V, S_SH, S_SK, S_X, S_WG, S_WU, S_WD, S_OUT, S_DBG, S_WS = 4, 8, 12, 16, 20, 24, 28, 32, 36, 40, 44
S_D = 48
sX, sJ, sG, sM, sQ, sRB, sCB, sA, sB = 50, 51, 52, 53, 54, 55, 56, 57, 58
sT0, sT1, sT2, sT3, sT4, sT5, sT6, sT7 = 60, 61, 62, 63, 64, 65, 66, 67
sWoff, sWoff2, sSpin, sDv = 68, 69, 70, 71
sOne = 72
S_STAMP = 76
NSTAMP = 13

GSTR = 4160
GW = 8 * GSTR
UBASE = 4 * GW
USTR = 4608
TILE = 40960


def f32(x):
    return '0x%08x' % struct.unpack('<I', struct.pack('<f', x))[0]


class Gen:
    def __init__(self, diag=False, opt=None):
        self.a = Asm()
        self.diag = diag
        self.opt = dict(w_kv=0, w_start=0, w_e1=0, ssm_late=0, flag2=0, tb_pre=2, s1_wait=0, wd_late=0, w45_where='hdrain', wd_tail=16, counted=1, a_ahead=12, act_ahead=16)
        if opt:
            self.opt.update(opt)

    def stamp(self, i):
        if self.diag and not (self.opt.get('dbg') and getattr(self, 'in_side', False) and i != 7):
            assert i < NSTAMP
            self.a(f'{"s_memtime" if self.opt.get("cyc") else "s_memrealtime"} {sr(S_STAMP + 2 * i, 2)}')

    def spin(self, srd, soff, target, vt, first_loaded=False, sleep=False):
        a = self.a
        top, done = a.label('spin'), a.label('done')
        chk = a.label('chk')
        with a.untracked():
            a(f's_mov_b32 s{sSpin}, {SPIN}')
            if first_loaded:
                a(f's_branch {chk}')
            a(f'{top}:')
            if sleep:
                a('s_sleep 4')
            a(f'buffer_load_dword v{vt}, off, {sr(srd, 4)}, {soff} sc1')
            a('s_waitcnt vmcnt(0)')
            a(f'{chk}:')
            a(f'v_readfirstlane_b32 s{sT7}, v{vt}')
            a(f's_sub_u32 s{sSpin}, s{sSpin}, 1')
            a(f's_cbranch_scc1 {done}')
            a(f's_cmp_lt_u32 s{sT7}, {target}')
            a(f's_cbranch_scc1 {top}')
            a(f'{done}:')

    def wave0(self):
        g = self

        class W:
            def __enter__(s):
                s.l = g.a.label('nw0')
                g.a(f's_cmp_lg_u32 s{S_W}, 0')
                g.a(f's_cbranch_scc1 {s.l}')
                s.u = g.a.untracked()
                s.u.__enter__()
                g.a('s_mov_b64 exec, 1')

            def __exit__(s, *x):
                g.a('s_mov_b64 exec, -1')
                s.u.__exit__()
                g.a(f'{s.l}:')
        return W()

    def drain(self):
        if self.opt['counted']:
            self.a.drain_stores()
        else:
            self.a('s_waitcnt vmcnt(0)')

    def prologue(self):
        a = self.a
        a('s_cmp_ge_u32 s2, 0x100')
        a('s_cbranch_scc1 .Lend')
        self.stamp(0)
        for srd, off in ((S_K, 8), (S_V, 16), (S_SH, 24), (S_SK, 32), (S_X, 0), (S_WG, 56), (S_WU, 64), (S_WD, 72),
                         (S_OUT, 80), (S_DBG, 88), (S_WS, 96), (S_D, 40)):
            a(f's_load_dwordx2 {sr(srd, 2)}, s[0:1], {off}')
        a(f's_getpc_b64 {sr(sT0, 2)}')
        a('.Lpc:')
        a('v_lshlrev_b32 v2, 7, v0')
        a('v_min_u32 v2, .Lcode_end-.Lpc-4, v2')
        a('v_mov_b32 v3, 0')
        a(f'v_lshl_add_u64 v[2:3], v[2:3], 0, {sr(sT0, 2)}')
        a('global_load_dword v255, v[2:3], off')
        a('v_lshrrev_b32 v1, 6, v0')
        a('v_and_b32 v0, 63, v0')
        a(f'v_readfirstlane_b32 s{S_W}, v1')
        for srd, n in ((S_K, 2621440), (S_V, 2621440), (S_SH, 5120), (S_SK, 4096), (S_X, 2621440), (S_WG, 1966080),
                       (S_WU, 1966080), (S_WD, 1966080), (S_OUT, 2621440), (S_DBG, 256), (S_WS, WS_END)):
            a(f's_mov_b32 s{srd + 2}, {n}')
            a(f's_mov_b32 s{srd + 3}, 0x20000')
        if self.opt.get('probe'):
            which = self.opt['probe']
            a(f's_load_dwordx2 {sr(sT0, 2)}, s[0:1], {48 if which == 1 else 96}')
            a(f's_mov_b32 s{sT2}, {2621440 if which == 1 else 0x8000000}')
            a(f's_mov_b32 s{sT3}, 0x20000')
            a(f's_mul_i32 s{sT4}, s2, 10240')
            if which == 2:
                a(f's_add_u32 s{sT4}, s{sT4}, 0x4000000')
            a('v_mov_b32 v2, 0')
            for i in range(16):
                a(f'buffer_load_dword v3, v2, {sr(sT0, 4)}, s{sT4} offen offset:{256 * i}')
                a('v_and_b32 v2, 0, v3')
        if self.opt.get('badmap'):
            a(f's_and_b32 s{sX}, s2, 31')
            a(f's_lshl_b32 s{sX}, s{sX}, 3')
            a(f's_lshr_b32 s2, s2, 5')
            a(f's_or_b32 s2, s2, s{sX}')
        a(f's_and_b32 s{sX}, s2, 7')
        a(f's_lshr_b32 s{sJ}, s2, 3')
        a(f's_and_b32 s{sM}, s{sJ}, 15')
        a(f's_mov_b32 s{sG}, s{sX}')
        a(f's_cmp_lt_u32 s{sJ}, 16')
        a.snapshot('role')
        a('s_cbranch_scc1 .Lconv')
        a(f's_add_u32 s{sG}, s{sX}, 8')
        a(f's_cmp_lt_u32 s{sX}, 2')
        a('s_cbranch_scc0 .Lside')
        a('.Lconv:')

    def gemm_ids(self):
        a = self.a
        a(f's_lshr_b32 s{sRB}, s{sX}, 1')
        a(f's_lshl_b32 s{sRB}, s{sRB}, 2')
        a(f's_lshr_b32 s{sT0}, s{sJ}, 3')
        a(f's_add_u32 s{sRB}, s{sRB}, s{sT0}')
        a(f's_and_b32 s{sCB}, s{sX}, 1')
        a(f's_lshl_b32 s{sCB}, s{sCB}, 3')
        a(f's_and_b32 s{sT0}, s{sJ}, 7')
        a(f's_add_u32 s{sCB}, s{sCB}, s{sT0}')
        a(f's_and_b32 s{sT0}, s{sCB}, 1')
        a(f's_mul_i32 s{sA}, s{sCB}, 6')
        a(f's_add_u32 s{sB}, s{sA}, 4')
        a(f's_lshl_b32 s{sT1}, s{sT0}, 1')
        a(f's_add_u32 s{sA}, s{sA}, s{sT1}')
        a(f's_lshl_b32 s{sT1}, s{sT0}, 2')
        a(f's_sub_u32 s{sB}, s{sB}, s{sT1}')

    vWL, vWL2, vWW, vWW2, vTmp, vTmp2, vOne = 254, 253, 252, 251, 250, 249, 248

    def w_addr(self):
        a = self.a
        t, t2 = self.vTmp, self.vTmp2
        a(f's_movk_i32 s{sT2}, 3072')
        a(f's_mul_i32 s{sT0}, s{S_W}, {8 * 3072}')
        a(f's_lshl_b32 s{sT1}, s{sA}, 5')
        a(f's_add_u32 s{sT0}, s{sT0}, s{sT1}')
        a(f'v_lshrrev_b32 v{t}, 3, v0')
        a(f'v_and_b32 v{t2}, 7, v0')
        a(f'v_lshl_add_u32 v{t2}, v{t2}, 4, s{sT0}')
        a(f'v_mad_u32_u24 v{self.vWL}, v{t}, s{sT2}, v{t2}')
        a(f's_mul_i32 s{sT0}, s{S_W}, {16 * 3072}')
        a(f's_lshl_b32 s{sT1}, s{sB}, 5')
        a(f's_add_u32 s{sT0}, s{sT0}, s{sT1}')
        a(f'v_lshrrev_b32 v{t}, 2, v0')
        a(f'v_and_b32 v{t2}, 3, v0')
        a(f'v_lshl_add_u32 v{t2}, v{t2}, 4, s{sT0}')
        a(f'v_mad_u32_u24 v{self.vWL2}, v{t}, s{sT2}, v{t2}')
        a(f's_mov_b32 s{sWoff}, 0')
        a(f's_mov_b32 s{sWoff2}, 0')
        a(f'v_mov_b32 v{self.vOne}, 1')

    def w_loads_main(self):
        out = []
        for i in range(40):
            srd = S_WU if i & 1 else S_WG
            g = [f'buffer_load_dwordx4 {ar(4 * i, 4)}, v{self.vWL}, {sr(srd, 4)}, s{sWoff} offen']
            if i & 1 and i != 39:
                g.append(f's_add_u32 s{sWoff}, s{sWoff}, {32 * 3072}')
            out.append(g)
        return out

    def w_loads_tail(self):
        out = []
        for i in range(20):
            srd = S_WU if i & 1 else S_WG
            g = [f'buffer_load_dwordx4 {ar(160 + 4 * i, 4)}, v{self.vWL2}, {sr(srd, 4)}, s{sWoff2} offen']
            if i & 1 and i != 19:
                g.append(f's_add_u32 s{sWoff2}, s{sWoff2}, {64 * 3072}')
            out.append(g)
        return out

    def w_write_addr_main(self):
        a = self.a
        t, t2 = self.vTmp, self.vTmp2
        a(f's_lshl_b32 s{sT0}, s{S_W}, 9')
        a(f'v_lshrrev_b32 v{t}, 3, v0')
        a(f'v_lshl_add_u32 v{t}, v{t}, 6, s{sT0}')
        a(f'v_and_b32 v{t2}, 1, v0')
        a(f'v_lshl_add_u32 v{t}, v{t2}, 4, v{t}')
        a(f'v_bfe_u32 v{t2}, v0, 1, 2')
        a(f'v_lshlrev_b32 v{self.vWW}, 5, v{t2}')
        a(f'v_xor_b32 v{t}, v{t}, v{self.vWW}')
        a(f's_mov_b32 s{sT0}, {TILE}')
        a(f'v_mad_u32_u24 v{self.vWW}, v{t2}, s{sT0}, v{t}')
        a(f'v_xor_b32 v{self.vWW2}, 32, v{self.vWW}')

    def w_writes_main(self):
        return [f'ds_write_b128 v{self.vWW2 if i & 1 else self.vWW}, {ar(4 * i, 4)} offset:{(i >> 1) * 2048}'
                for i in range(40)]

    def w_write_addr_tail(self):
        a = self.a
        t, t2 = self.vTmp, self.vTmp2
        a(f's_lshl_b32 s{sT0}, s{S_W}, 10')
        a(f'v_lshrrev_b32 v{t}, 2, v0')
        a(f'v_lshl_add_u32 v{t}, v{t}, 6, s{sT0}')
        a(f'v_and_b32 v{t2}, 1, v0')
        a(f'v_lshl_add_u32 v{t}, v{t2}, 4, v{t}')
        a(f'v_bfe_u32 v{t2}, v0, 1, 1')
        a(f'v_lshlrev_b32 v{self.vWW}, 5, v{t2}')
        a(f'v_xor_b32 v{t}, v{t}, v{self.vWW}')
        a(f's_mov_b32 s{sT0}, {TILE}')
        a(f'v_mad_u32_u24 v{self.vWW}, v{t2}, s{sT0}, v{t}')
        a(f'v_xor_b32 v{self.vWW2}, 32, v{self.vWW}')

    def w_writes_tail(self):
        return [f'ds_write_b128 v{self.vWW2 if i & 1 else self.vWW}, {ar(160 + 4 * i, 4)} offset:{(i >> 1) * 4096}'
                for i in range(20)]

    def check_init(self, vflag):
        self.spin(S_DBG, '0', 1, vflag, first_loaded=True)

    def conv(self):
        a = self.a
        o = self.opt
        vK, vKh, vC, vR = 1, 2, 3, 4
        SH = 8
        KR = 16
        VR = 38
        SK = 56
        WF = 88
        KF = 104
        KV = 148
        VF = 180
        O = 188
        a(f's_lshl_b32 s{sQ}, s{sG}, 4')
        a(f's_add_u32 s{sQ}, s{sQ}, s{sM}')
        a(f'v_and_b32 v{vC}, 15, v0')
        a(f'v_lshrrev_b32 v{vR}, 4, v0')
        a(f's_lshl_b32 s{sT0}, s{sM}, 2')
        a(f's_add_u32 s{sT0}, s{sT0}, s{S_W}')
        a(f's_mul_i32 s{sT0}, s{sT0}, {32 * 1280}')
        a(f's_lshl_b32 s{sT1}, s{sG}, 7')
        a(f's_add_u32 s{sT0}, s{sT0}, s{sT1}')
        a(f's_movk_i32 s{sT2}, {8 * 1280}')
        a(f'v_lshl_add_u32 v{vK}, v{vC}, 3, s{sT0}')
        a(f'v_mad_u32_u24 v{vK}, v{vR}, s{sT2}, v{vK}')
        a(f'v_subrev_u32 v{vKh}, 3840, v{vK}')
        a(f's_lshl_b32 s{sT1}, s{sG}, 9')
        a(f'v_lshl_add_u32 v5, v{vC}, 5, s{sT1}')
        a(f's_movk_i32 s{sT3}, 5120')
        linit = a.label('noinit')
        a(f's_lshl_b32 s{sT4}, s2, 2')
        a(f's_add_u32 s{sT4}, s{sT4}, s{S_W}')
        a.need(sr(S_WS, 2))
        a(f's_cmp_lg_u32 s{sT4}, 3')
        a(f's_cbranch_scc1 {linit}')
        with a.untracked():
            a('v_lshlrev_b32 v6, 8, v0')
            a('v_mov_b32 v7, 0')
            a(f'buffer_store_dword v7, v6, {sr(S_WS, 4)}, 0 offen sc1')
        a(f'{linit}:')
        a(f'buffer_load_dwordx4 {vr(SH, 4)}, v5, {sr(S_SH, 4)}, 0 offen')
        a(f'buffer_load_dwordx4 {vr(SH + 4, 4)}, v5, {sr(S_SH, 4)}, 0 offen offset:16')
        for r in range(3):
            a(f'buffer_load_dwordx2 {vr(KR + 2 * r, 2)}, v{vKh}, {sr(S_K, 4)}, 0 offen offset:{r * 1280}')
        for r in range(8):
            so = f's{sT3}' if r >= 4 else '0'
            a(f'buffer_load_dwordx2 {vr(KR + 6 + 2 * r, 2)}, v{vK}, {sr(S_K, 4)}, {so} offen offset:{(r & 3) * 1280}')
            a(f'buffer_load_dwordx2 {vr(VR + 2 * r, 2)}, v{vK}, {sr(S_V, 4)}, {so} offen offset:{(r & 3) * 1280}')
        a(f's_lshl_b32 s{sT0}, s{sQ}, 2')
        a(f's_add_u32 s{sT0}, s{sT0}, s{S_W}')
        a(f's_lshl_b32 s{sT1}, s{sT0}, 12')
        a(f's_add_u32 s{S_SK}, s{S_SK}, s{sT1}')
        a(f's_addc_u32 s{S_SK + 1}, s{S_SK + 1}, 0')
        a(f's_lshl_b32 s{sT0}, s{sT0}, 1')
        a(f's_and_b32 s{sT0}, s{sT0}, -4')
        a(f's_load_dword s{sDv}, {sr(S_D, 2)}, s{sT0}')
        vL16 = 6
        a(f'v_lshlrev_b32 v{vL16}, 4, v0')
        a(f'v_subrev_u32 v219, 16, v{vL16}')

        def ssm_loads():
            for j in range(4):
                if j == 0:
                    a(f'buffer_load_dwordx4 {vr(SK, 4)}, v219, {sr(S_SK, 4)}, 0 offen')
                else:
                    a(f'buffer_load_dwordx4 {vr(SK + 8 * j, 4)}, v{vL16}, {sr(S_SK, 4)}, 0 offen offset:{1024 * j - 16}')
                a(f'buffer_load_dwordx4 {vr(SK + 8 * j + 4, 4)}, v{vL16}, {sr(S_SK, 4)}, 0 offen offset:{1024 * j}')
        if o['ssm_late'] == 0:
            ssm_loads()
        linit = a.label('noinit')
        a(f's_cmp_lg_u32 s{sT4}, 3')
        a(f's_cbranch_scc1 {linit}')
        with a.untracked():
            a(f's_waitcnt vmcnt({21 if o["ssm_late"] else 29})' if o['counted'] else 's_waitcnt vmcnt(0)')
            a('v_mov_b32 v7, 1')
            a('s_mov_b64 exec, 1')
            a(f'buffer_store_dword v7, off, {sr(S_DBG, 4)}, 0 sc1')
            a('s_mov_b64 exec, -1')
        a(f'{linit}:')
        self.gemm_ids()
        self.w_addr()
        wl = self.w_loads_main()

        def w_some(n):
            for _ in range(n):
                for x in wl.pop(0):
                    a(x)
        w_some(o['w_start'])
        vSW, vSR, vKS, vG, vUL, vUW = 204, 205, 206, 207, 208, 209
        a(f's_mul_i32 s{sT0}, s{S_W}, {USTR}')
        a(f's_add_u32 s{sT0}, s{sT0}, {UBASE}')
        a(f's_movk_i32 s{sT1}, 272')
        a(f'v_lshl_add_u32 v{vSW}, v{vR}, 4, s{sT0}')
        a(f'v_mad_u32_u24 v{vSW}, v{vC}, s{sT1}, v{vSW}')
        a(f'v_lshl_add_u32 v{vSR}, v{vC}, 4, s{sT0}')
        a(f'v_mad_u32_u24 v{vSR}, v{vR}, s{sT1}, v{vSR}')
        a(f'v_add_u32 v{vUW}, s{sT0}, v{vL16}')
        vBa, vAa = 210, 211
        a(f's_add_u32 s{sT0}, s{sT0}, 32')
        a(f'v_lshl_add_u32 v{vBa}, v{vC}, 5, s{sT0}')
        a(f'v_lshl_add_u32 v{vBa}, v{vR}, 4, v{vBa}')
        a(f's_mul_i32 s{sT0}, s{sG}, {16 * QS}')
        a(f's_lshl_b32 s{sT1}, s{sM}, 10')
        a(f's_add_u32 s{sT0}, s{sT0}, s{sT1}')
        a(f's_lshl_b32 s{sT1}, s{S_W}, 8')
        a(f's_add_u32 s{sT0}, s{sT0}, s{sT1}')
        a(f's_mov_b32 s{sT1}, {QS}')
        a(f'v_lshl_add_u32 v{vKS}, v{vC}, 4, s{sT0}')
        a(f'v_mad_u32_u24 v{vKS}, v{vR}, s{sT1}, v{vKS}')
        a(f's_mul_i32 s{sT5}, s{S_W}, {GW}')
        a(f'v_add_u32 v{vG}, s{sT5}, v{vL16}')
        a(f'v_bfe_u32 v{vAa}, v0, 3, 1')
        a(f'v_sub_u32 v{vAa}, v{vAa}, v{vR}')
        a(f's_add_u32 s{sT0}, s{sT5}, 48')
        a(f'v_lshl_add_u32 v{vAa}, v{vAa}, 4, s{sT0}')
        vI7 = 212
        a(f'v_and_b32 v{vI7}, 7, v0')
        a(f's_movk_i32 s{sT1}, {GSTR}')
        a(f'v_mad_u32_u24 v{vAa}, v{vI7}, s{sT1}, v{vAa}')
        vGZ = 213
        a(f'v_mov_b32 v{vGZ}, s{sT5}')
        a(f'v_mad_u32_u24 v{vGZ}, v{vI7}, s{sT1}, v{vGZ}')
        a(f's_mul_i32 s{sT6}, s{sQ}, {QS}')
        a(f's_lshl_b32 s{sT1}, s{S_W}, 6')
        a(f's_add_u32 s{sT0}, s{sT6}, s{sT1}')
        a(f'v_and_b32 v{vUL}, 3, v0')
        a(f'v_lshl_add_u32 v{vUL}, v{vUL}, 4, s{sT0}')
        a(f'v_lshrrev_b32 v5, 2, v0')
        a(f'v_lshl_add_u32 v{vUL}, v5, 8, v{vUL}')
        vXS, vHS = 214, 215
        a(f's_lshl_b32 s{sT0}, s{S_W}, 12')
        a(f'v_lshl_add_u32 v{vXS}, v{vC}, 7, s{sT0}')
        a(f'v_lshl_add_u32 v{vXS}, v{vR}, 5, v{vXS}')
        a(f's_add_u32 s{sT0}, s{sT0}, s{sT6}')
        a(f'v_add_u32 v{vHS}, s{sT0}, v{vL16}')
        vZR, vZR2 = 216, 217
        a(f's_lshl_b32 s{sT0}, s{S_W}, 11')
        a(f'v_add_u32 v{vZR}, s{sT0}, v{vL16}')
        a(f'v_add_u32 v{vZR2}, {2 * GW}, v{vZR}')
        ZERO = 220
        for i in range(4):
            a(f'v_mov_b32 v{ZERO + i}, 0')
        a(f's_mov_b32 s{sT2}, 0xffff0000')
        for ch in range(4):
            for j in range(4):
                src = SH + 2 * ch + (j >> 1)
                if j & 1:
                    a(f'v_and_b32 v{WF + 4 * j + ch}, s{sT2}, v{src}')
                else:
                    a(f'v_lshlrev_b32 v{WF + 4 * j + ch}, 16, v{src}')

        def unpack(dst, src):
            a(f'v_lshlrev_b32 v{dst}, 16, v{src}')
            a(f'v_and_b32 v{dst + 1}, s{sT2}, v{src}')
            a(f'v_lshlrev_b32 v{dst + 2}, 16, v{src + 1}')
            a(f'v_and_b32 v{dst + 3}, s{sT2}, v{src + 1}')
        for r in range(3):
            unpack(KF + 4 * r, KR + 2 * r)
        self.stamp(1)
        if o['ssm_late'] == 1:
            ssm_loads()
        if o['flag2']:
            linit = a.label('noinit')
            a(f's_cmp_lg_u32 s{sT4}, 3')
            a(f's_cbranch_scc1 {linit}')
            with a.untracked():
                a('s_mov_b64 exec, 1')
                a(f'buffer_store_dword v7, off, {sr(S_DBG, 4)}, 0 offset:128 sc1')
                a('s_mov_b64 exec, -1')
            a(f'{linit}:')
        for r in range(8):
            unpack(KF + 4 * (r + 3), KR + 2 * (r + 3))
            vf = VF + 4 * (r & 1)
            for j in (3, 2, 1, 0):
                for p in range(2):
                    d = vr(KV + 4 * r + 2 * p, 2)
                    k = vr(KF + 4 * (r + 3 - j) + 2 * p, 2)
                    w = vr(WF + 4 * j + 2 * p, 2)
                    if j == 3:
                        a(f'v_pk_mul_f32 {d}, {k}, {w}')
                    else:
                        a(f'v_pk_fma_f32 {d}, {k}, {w}, {d}')
                if j == 3:
                    unpack(vf, VR + 2 * r)
            for p in range(2):
                d = vr(KV + 4 * r + 2 * p, 2)
                a(f'v_pk_mul_f32 {d}, {d}, {vr(vf + 2 * p, 2)}')
            if r & 1:
                d = (7 - r) >> 1
                for ch in range(4):
                    a(f'v_cvt_pk_bf16_f32 v{O + 4 * ch + d}, v{KV + 4 * r + ch}, v{KV + 4 * (r - 1) + ch}')
        for ch in range(4):
            a(f'ds_write_b128 v{vSW}, {vr(O + 4 * ch, 4)} offset:{ch * 64}')
        for j in range(4):
            a(f'ds_read_b128 {vr(KV + 4 * j, 4)}, v{vSR} offset:{j * 1088}')
        a(f's_mov_b32 s{sT0}, {KVX}')
        for j in range(4):
            a(f'buffer_store_dwordx4 {vr(KV + 4 * j, 4)}, v{vKS}, {sr(S_WS, 4)}, s{sT0} offen sc1')
            if j < 3:
                a(f's_add_u32 s{sT0}, s{sT0}, {4 * QS}')
        self.stamp(2)
        vFl = 218
        a(f'buffer_load_dword v{vFl}, off, {sr(S_DBG, 4)}, 0 sc1')
        a(f'ds_write_b128 v{vUW}, {vr(ZERO, 4)}')
        a(f'ds_write_b128 v{vGZ}, {vr(ZERO, 4)}')
        def table(j):
            D = SK + 8 * j
            Ea, Eb, Db = KF + 20 * (j & 1), KF + 20 * (j & 1) + 8, KF + 20 * (j & 1) + 14

            def wr(rho, reg):
                a(f'ds_write_b128 v{vG}, {vr(reg, 4)} offset:{rho * GSTR + 1024 * j + 16}')
            wr(7, D + 4)
            wr(3, D + 2)
            for i in range(3):
                a(f'v_pk_mov_b32 {vr(Db + 2 * i, 2)}, {vr(D + 2 * i, 2)}, {vr(D + 2 * i + 2, 2)} op_sel:[1,0]')
            for i in range(7):
                a(f'v_alignbit_b32 v{Ea + i}, v{D + i + 1}, v{D + i}, 16')
            wr(1, Db)
            wr(5, Db + 2)
            for i in range(3):
                a(f'v_pk_mov_b32 {vr(Eb + 2 * i, 2)}, {vr(Ea + 2 * i, 2)}, {vr(Ea + 2 * i + 2, 2)} op_sel:[1,0]')
            wr(0, Ea)
            wr(4, Ea + 2)
            wr(2, Eb)
            wr(6, Eb + 2)
        w_some(o['w_kv'])
        for j in range(o['tb_pre']):
            table(j)
        a.need(f'v{vFl}')
        self.drain()
        a('s_barrier')
        self.stamp(3)
        a(f's_lshl_b32 s{sT0}, s{sG}, 8')
        with self.wave0():
            self.check_init(vFl)
            a(f'buffer_atomic_add v{self.vOne}, off, {sr(S_WS, 4)}, s{sT0} sc1')
        w_some(o['w_e1'])
        for j in range(o['tb_pre'], 4):
            table(j)
        AD = 224
        a.need(f's{sDv}')
        a(f's_and_b32 s{sT1}, s{S_W}, 1')
        a(f's_lshl_b32 s{sT1}, s{sT1}, 4')
        a(f's_lshr_b32 s{sDv}, s{sDv}, s{sT1}')
        a(f's_and_b32 s{sDv}, s{sDv}, 0xffff')
        a(f'v_sub_u32 v5, 7, v{vI7}')
        a(f'v_and_b32 v7, 1, v5')
        a(f'v_lshlrev_b32 v7, 4, v7')
        a(f'v_lshlrev_b32 v7, v7, s{sDv}')
        a(f'v_bfe_u32 v8, v0, 3, 1')
        a(f'v_add_u32 v8, 2, v8')
        a(f'v_cmp_eq_u32 vcc, v8, v{vR}')
        a(f'v_cndmask_b32 v7, 0, v7, vcc')
        a(f'v_lshrrev_b32 v5, 1, v5')
        for d in range(4):
            a(f'v_cmp_eq_u32 vcc, {d}, v5')
            a(f'v_cndmask_b32 v{AD + d}, 0, v7, vcc')
        ACC = 8
        BUF = (40, 104)
        XR, SR = 168, 184

        def rdA(it, t):
            return f'ds_read_b128 {vr(BUF[it & 1] + 4 * t, 4)}, v{vAa} offset:{64 * it + 512 * t}'

        def rdB(it, t):
            return f'ds_read_b128 {vr(BUF[it & 1] + 32 + 4 * t, 4)}, v{vBa} offset:{448 - 64 * it + 512 * t}'
        for t in range(8):
            a(rdA(0, t))
        with self.wave0():
            self.spin(S_WS, f's{sT0}', 16, vFl)
        a('s_barrier')
        self.stamp(4)
        a(f's_mov_b32 s{sT0}, {KVX}')
        for j in range(4):
            a(f'buffer_load_dwordx4 {vr(BUF[1] + 4 * j, 4)}, v{vUL}, {sr(S_WS, 4)}, s{sT0} offen sc1')
            if j < 3:
                a(f's_add_u32 s{sT0}, s{sT0}, 4096')
        for j in range(4):
            a(f'ds_write_b128 v{vUW}, {vr(BUF[1] + 4 * j, 4)} offset:{512 + 1024 * j}')
            a(rdB(0, 2 * j))
            a(rdB(0, 2 * j + 1))
        self.stamp(5)
        a(f's_mov_b32 s{sT3}, {C_FX * 256}')
        a(f's_mov_b32 s{sT4}, {ST1}')
        a(f's_add_u32 s{sT6}, s{sT6}, {XP4}')
        for it in range(8):
            A, B = BUF[it & 1], BUF[it & 1] + 32
            mf = []
            for tp in range(8):
                if it == 0:
                    mf.append(f'v_mfma_f32_16x16x32_bf16 {vr(ACC + 4 * tp, 4)}, {vr(AD, 4)}, {vr(B + 4 * tp, 4)}, 0')
            for tp in range(8):
                for t in range(8 - tp):
                    c = vr(ACC + 4 * (t + tp), 4)
                    mf.append(f'v_mfma_f32_16x16x32_bf16 {c}, {vr(A + 4 * t, 4)}, {vr(B + 4 * tp, 4)}, {c}')
            fill = [[] for _ in mf]
            if it < 7:
                rd = [rdB(it + 1, 0)] + [rdA(it + 1, t) for t in range(8)] + [rdB(it + 1, t) for t in range(1, 8)]
                base = 8 if it == 0 else 0
                for i, x in enumerate(rd):
                    fill[base + 2 * i].append(x)
                n = (len(wl) + (6 - it)) // (7 - it)
                for i in range(n):
                    fill[base + 1 + 2 * ((i * 17) // n)] += wl.pop(0)
            if it == 0:
                w_some(0)
            if it == 2:
                fill[33].append(f'buffer_load_dword v{vFl}, off, {sr(S_WS, 4)}, s{sT3} sc1')
            if it == 7:
                ops = []
                for T in range(2):
                    for row in range(4):
                        src = XR + 8 * T + 2 * row
                        xf = BUF[0] + 16 * T + 4 * row
                        st = SR + 8 * T + 2 * row
                        ops += [f'v_lshlrev_b32 v{xf}, 16, v{src}', f'v_and_b32 v{xf + 1}, s{sT2}, v{src}',
                                f'v_lshlrev_b32 v{xf + 2}, 16, v{src + 1}', f'v_and_b32 v{xf + 3}, s{sT2}, v{src + 1}']
                        ops += [f'v_fma_f32 v{xf + 32 + c}, v{xf + c}, v{st}, v{st + 1}' for c in range(4)]
                for i, x in enumerate(ops):
                    fill[2 + i // 2].append(x)
            if it == 4:
                a.need(f'v{vFl}')
                self.spin(S_WS, f's{sT3}', 64, vFl, first_loaded=True)
                k = 0
                for T in range(2):
                    for p in range(2):
                        off = 2048 * T + 16 * p
                        fill[4 * k + 3].append(f'buffer_load_dwordx4 {vr(XR + 8 * T + 4 * p, 4)}, v{vXS}, {sr(S_WS, 4)}, s{sT6} offen offset:{off} sc1')
                        fill[4 * k + 5].append(f'buffer_load_dwordx4 {vr(SR + 8 * T + 4 * p, 4)}, v{vXS}, {sr(S_WS, 4)}, s{sT4} offen offset:{off} sc1')
                        k += 2
            if it > 0:
                a.need(vr(BUF[it & 1], 36))
            for m, f in zip(mf, fill):
                a(m)
                for x in f:
                    a(x)
        assert not wl
        self.stamp(6)
        for T in range(8):
            a(f'ds_write_b128 v{vG}, {vr(ACC + 4 * T, 4)} offset:{1024 * T}')
        a('s_waitcnt lgkmcnt(0)')
        a('s_barrier')
        Z = BUF[1]
        for T in range(2):
            for ch in range(4):
                a(f'ds_read_b128 {vr(Z + 16 * T + 4 * ch, 4)}, v{vZR2 if ch & 2 else vZR} offset:{(ch & 1) * GW + 1024 * T}')
        a(f's_mov_b32 s{sT0}, {HP4}')
        XF, QF, HO = BUF[0], BUF[0] + 32, ACC
        for T in range(2):
            for p in range(2):
                for b in range(2):
                    row = 2 * p + b
                    for c in range(4):
                        x = XF + 16 * T + 4 * row + c
                        a(f'v_fmac_f32 v{x}, v{x + 32}, v{Z + 16 * T + 4 * c + row}')
                    for c2 in range(2):
                        x = XF + 16 * T + 4 * row + 2 * c2
                        a(f'v_cvt_pk_bf16_f32 v{HO + 8 * T + 4 * p + 2 * b + c2}, v{x}, v{x + 1}')
                a(f'buffer_store_dwordx4 {vr(HO + 8 * T + 4 * p, 4)}, v{vHS}, {sr(S_WS, 4)}, s{sT0} offen offset:{2048 * T + 1024 * p} sc1')
        self.stamp(7)
        self.w_write_addr_main()
        a('s_barrier')
        wt = self.w_loads_tail()
        ww = self.w_writes_main()
        for i in range(20):
            for x in wt[i]:
                a(x)
            a(ww[i])
        self.drain()
        a('s_barrier')
        self.arrive_e2()
        for i in range(20, 40):
            a(ww[i])
        a.snapshot('join')
        a('.Ljoin:')

    def arrive_e2(self):
        a = self.a
        a(f's_lshl_b32 s{sT0}, s{sX}, 8')
        a(f's_add_u32 s{sT0}, s{sT0}, {C_B1 * 256}')
        with self.wave0():
            l = a.label('notlast')
            a(f'v_mov_b32 v{self.vTmp}, 1')
            a(f'buffer_atomic_add v{self.vTmp}, off, {sr(S_WS, 4)}, s{sT0} sc0 sc1')
            a('s_waitcnt vmcnt(0)')
            a(f'v_readfirstlane_b32 s{sT7}, v{self.vTmp}')
            a(f's_cmp_lg_u32 s{sT7}, 31')
            a(f's_cbranch_scc1 {l}')
            a('s_mov_b64 exec, 0xff')
            a(f'v_lshlrev_b32 v{self.vTmp}, 8, v0')
            a(f's_movk_i32 s{sT7}, {C_B2 * 256}')
            a(f'buffer_atomic_add v{self.vOne}, v{self.vTmp}, {sr(S_WS, 4)}, s{sT7} offen sc1')
            a(f'{l}:')

    def side(self):
        a = self.a
        self.in_side = True
        a('.Lside:')
        a.fresh('role')
        vTid = 1
        a(f'v_lshl_add_u32 v{vTid}, s{S_W}, 6, v0')
        a(f's_sub_u32 s{sG}, s{sX}, 2')
        a(f's_lshl_b32 s{sG}, s{sG}, 4')
        a(f's_add_u32 s{sG}, s{sG}, s{sM}')
        self.gemm_ids()
        self.w_addr()
        a.need(sr(S_WS, 2))
        if self.opt['s1_wait']:
            self.spin(S_DBG, '0', 1, 13, sleep=True)
        a(f's_cmp_ge_u32 s{sG}, 64')
        a.snapshot('s2')
        a('s_cbranch_scc1 .Ls2')
        XR, WR = 16, 56
        vA, vRow, vS8 = 2, 3, 4
        a(f'v_lshrrev_b32 v{vRow}, 3, v{vTid}')
        a(f'v_and_b32 v{vS8}, 7, v0')
        a(f's_mul_i32 s{sT0}, s{sG}, {32 * 1280}')
        a(f's_movk_i32 s{sT1}, 1280')
        a(f'v_lshl_add_u32 v{vA}, v{vS8}, 4, s{sT0}')
        a(f'v_mad_u32_u24 v{vA}, v{vRow}, s{sT1}, v{vA}')
        for j in range(10):
            a(f'buffer_load_dwordx4 {vr(XR + 4 * j, 4)}, v{vA}, {sr(S_X, 4)}, 0 offen offset:{128 * j}')
        def wd_loads():
            for j in range(10):
                a(f'buffer_load_dwordx4 {vr(WR + 4 * j, 4)}, v{vA}, {sr(S_WD, 4)}, 0 offen offset:{128 * j}')
        if not self.opt['wd_late']:
            wd_loads()
        vW, vRd, vSt = 5, 6, 7
        a(f's_movk_i32 s{sT1}, 528')
        a(f'v_lshlrev_b32 v{vW}, 3, v{vRow}')
        a(f'v_mad_u32_u24 v{vW}, v{vS8}, s{sT1}, v{vW}')
        a(f'v_and_b32 v{vRd}, 31, v0')
        a(f'v_lshlrev_b32 v{vRd}, 4, v{vRd}')
        a(f'v_lshrrev_b32 v8, 5, v{vTid}')
        a(f'v_mad_u32_u24 v{vRd}, v8, s{sT1}, v{vRd}')
        a(f's_lshl_b32 s{sT0}, s{sG}, 8')
        a(f'v_and_b32 v{vSt}, 15, v0')
        a(f'v_lshl_add_u32 v{vSt}, v{vSt}, 4, s{sT0}')
        a(f'v_lshrrev_b32 v8, 4, v{vTid}')
        a(f's_mov_b32 s{sT1}, {QS}')
        a(f'v_mad_u32_u24 v{vSt}, v8, s{sT1}, v{vSt}')
        for j in range(10):
            for o_ in range(2):
                a(f'ds_write_b64 v{vW}, {vr(XR + 4 * j + 2 * o_, 2)} offset:{j * 4224 + o_ * 256}')
        a('s_waitcnt lgkmcnt(0)')
        a('s_barrier')
        XO = 96
        for j in range(10):
            a(f'ds_read_b128 {vr(XO + 4 * j, 4)}, v{vRd} offset:{j * 4224}')
        a(f's_mov_b32 s{sT1}, {XP4}')
        for j in range(10):
            a(f'buffer_store_dwordx4 {vr(XO + 4 * j, 4)}, v{vSt}, {sr(S_WS, 4)}, s{sT1} offen sc1')
            a(f's_add_u32 s{sT1}, s{sT1}, {16 * QS}')
        a(f's_mov_b32 s{sOne}, 0x3f803f80')
        for i in range(4):
            a(f'v_mov_b32 v{8 + i}, 0')
        for i in range(40):
            a(f'v_dot2c_f32_bf16 v{8 + (i & 1)}, s{sOne}, v{XR + i}')
            a(f'v_dot2c_f32_bf16 v{10 + (i & 1)}, v{XR + i}, v{XR + i}')
        a('v_add_f32 v8, v8, v9')
        a('v_add_f32 v10, v10, v11')
        for m in ('quad_perm:[1,0,3,2]', 'quad_perm:[2,3,0,1]', 'row_half_mirror'):
            a(f'v_add_f32_dpp v8, v8, v8 {m} row_mask:0xf bank_mask:0xf')
            a(f'v_add_f32_dpp v10, v10, v10 {m} row_mask:0xf bank_mask:0xf')
        a(f'v_mul_f32 v8, {f32(1 / 640)}, v8')
        a(f'v_mul_f32 v10, {f32(1 / 640)}, v10')
        a('v_fma_f32 v10, -v8, v8, v10')
        a('v_max_f32 v10, 0, v10')
        a(f'v_add_f32 v10, {f32(1e-5)}, v10')
        a('v_rsq_f32 v10, v10')
        a(f'v_lshl_add_u32 v12, v{vRow}, 3, s{sT0}')
        a('v_mul_f32 v11, -v8, v10')
        a(f's_mov_b32 s{sT1}, {ST1}')
        a('s_mov_b32 exec_lo, 0x01010101')
        a('s_mov_b32 exec_hi, 0x01010101')
        a(f'buffer_store_dwordx2 v[10:11], v12, {sr(S_WS, 4)}, s{sT1} offen sc1')
        a('s_mov_b64 exec, -1')
        vFl = 13
        a(f'buffer_load_dword v{vFl}, off, {sr(S_DBG, 4)}, 0 sc1')
        WB = 49152
        a(f's_movk_i32 s{sT1}, 1344')
        a(f'v_lshlrev_b32 v{vW}, 4, v{vS8}')
        a(f'v_mad_u32_u24 v{vW}, v{vRow}, s{sT1}, v{vW}')
        if self.opt['wd_late']:
            wd_loads()
        a.need(f'v{vFl}')
        self.drain()
        a('s_barrier')
        a(f's_movk_i32 s{sT0}, {C_FX * 256}')
        with self.wave0():
            self.check_init(vFl)
            a(f'buffer_atomic_add v{self.vOne}, off, {sr(S_WS, 4)}, s{sT0} sc1')
        self.stamp(1)
        for j in range(10):
            a(f'ds_write_b128 v{vW}, {vr(WR + 4 * j, 4)} offset:{WB + 128 * j}')
        a('s_waitcnt vmcnt(0) lgkmcnt(0)')
        a('s_barrier')
        self.stamp(2)
        ls3 = a.label('nos3')
        a(f's_cmp_ge_u32 s{sG}, 48')
        a(f's_cbranch_scc1 {ls3}')
        with a.untracked():
            a('v_lshrrev_b32 v8, 4, v0')
            a('v_bfe_u32 v9, v0, 2, 2')
            a('v_lshl_add_u32 v8, v8, 3, v9')
            a(f's_mul_i32 s{sT0}, s{S_W}, 320')
            a(f'v_mov_b32 v9, s{sT0}')
            a(f'v_mad_u32_u24 v8, v8, s{sT1}, v9')
            a('v_and_b32 v9, 3, v0')
            a('v_lshl_add_u32 v10, v9, 3, v8')
            a('v_lshl_add_u32 v8, v9, 4, v8')
            for cc in range(2):
                for nt in range(5):
                    for e in range(2):
                        off = WB + cc * 160 + e * 4 * 1344 + ((nt >> 1) * 64 + (nt & 1) * 8)
                        a(f'ds_read_b64_tr_b16 {vr(XO + 4 * (5 * cc + nt) + 2 * e, 2)}, v{10 if nt == 4 else 8} offset:{off}')
            a(f's_mul_i32 s{sT0}, s{S_W}, 96')
            a(f's_add_u32 s{sT0}, s{sT0}, s{sG}')
            a(f's_mul_i32 s{sT0}, s{sT0}, 5120')
            a(f's_add_u32 s{sT0}, s{sT0}, {WDF}')
            a('v_lshlrev_b32 v9, 4, v0')
            a('s_waitcnt lgkmcnt(0)')
            for cc in range(2):
                for nt in range(5):
                    if nt == 4:
                        a(f's_add_u32 s{sT0}, s{sT0}, 4096')
                    a(f'buffer_store_dwordx4 {vr(XO + 4 * (5 * cc + nt), 4)}, v9, {sr(S_WS, 4)}, s{sT0} offen offset:{(nt & 3) * 1024} sc1')
                a(f's_add_u32 s{sT0}, s{sT0}, {48 * 5120 - 4096}')
        a(f'{ls3}:')
        a('s_branch .Lside_w')
        a('.Ls2:')
        a.fresh('s2')
        if self.opt['flag2']:
            a(f's_movk_i32 s{sT0}, 128')
            self.spin(S_DBG, f's{sT0}', 1, 13, sleep=True)
        a(f'buffer_load_dword v13, off, {sr(S_DBG, 4)}, 0 sc1')
        a('s_waitcnt vmcnt(0)')
        self.stamp(1)
        a(f's_cmp_ge_u32 s{sG}, 88')
        a('s_cbranch_scc1 .Ls2_done')
        a(f's_sub_u32 s{sT0}, s{sG}, 64')
        a(f's_cmp_ge_u32 s{sT0}, 12')
        a(f's_cselect_b32 s{S_WD}, s{S_WU}, s{S_WG}')
        a(f's_cselect_b32 s{S_WD + 1}, s{S_WU + 1}, s{S_WG + 1}')
        a(f's_cselect_b32 s{sT1}, 12, 0')
        a(f's_sub_u32 s{sT1}, s{sT0}, s{sT1}')
        a(f's_lshl_b32 s{sT1}, s{sT1}, 8')
        a('v_and_b32 v2, 15, v0')
        a(f'v_lshrrev_b32 v3, 4, v{vTid}')
        a(f'v_lshl_add_u32 v4, v2, 4, s{sT1}')
        a(f's_movk_i32 s{sT2}, 3072')
        a(f'v_mad_u32_u24 v4, v3, s{sT2}, v4')
        a(f's_mov_b32 s{sT2}, 0')
        for i in range(40):
            a(f'buffer_load_dwordx4 {vr(32 + 4 * i, 4)}, v4, {sr(S_WD, 4)}, s{sT2} offen')
            a(f's_add_u32 s{sT2}, s{sT2}, {16 * 3072}')
        for i in range(8):
            a(f'v_mov_b32 v{16 + i}, 0')
        a(f's_mov_b32 s{sT2}, 0x3f80')
        a(f's_mov_b32 s{sT3}, 0x3f800000')
        for i in range(160):
            a(f'v_dot2c_f32_bf16 v{16 + 2 * (i & 3)}, s{sT2}, v{32 + i}')
            a(f'v_dot2c_f32_bf16 v{17 + 2 * (i & 3)}, s{sT3}, v{32 + i}')
        a(f'v_lshlrev_b32 v5, 5, v{vTid}')
        a('ds_write_b128 v5, v[16:19]')
        a('ds_write_b128 v5, v[20:23] offset:16')
        a('s_waitcnt lgkmcnt(0)')
        a('s_barrier')
        a(f'v_and_b32 v5, 127, v{vTid}')
        a('v_lshlrev_b32 v6, 2, v5')
        for i in range(16):
            a(f'ds_read_b32 v{32 + i}, v6 offset:{512 * i}')
        for i in range(1, 16):
            a(f'v_add_f32 v32, v32, v{32 + i}')
        a('v_cvt_pk_bf16_f32 v8, v32, v32')
        a('v_lshlrev_b32 v10, 16, v8')
        a('v_sub_f32 v10, v32, v10')
        a('v_cvt_pk_bf16_f32 v9, v10, v10')
        a(f's_lshl_b32 s{sT0}, s{sT0}, 10')
        a(f's_add_u32 s{sT0}, s{sT0}, {CSF}')
        a('v_lshrrev_b32 v6, 5, v5')
        a('v_lshlrev_b32 v6, 8, v6')
        a('v_lshl_add_u32 v6, v2, 4, v6')
        a('v_bfe_u32 v7, v5, 4, 1')
        a('v_lshl_add_u32 v6, v7, 3, v6')
        a(f'buffer_store_dwordx2 v[8:9], v6, {sr(S_WS, 4)}, s{sT0} offen sc1')
        a('.Ls2_done:')
        self.stamp(2)
        with self.wave0():
            self.check_init(13)
        a('.Lside_w:')
        a.fresh()
        for g in self.w_loads_main() + self.w_loads_tail():
            for x in g:
                a(x)
        self.w_write_addr_main()
        a('s_waitcnt vmcnt(0) lgkmcnt(0)')
        a('s_barrier')
        self.stamp(6)
        self.arrive_e2()
        for x in self.w_writes_main():
            a(x)
        self.stamp(7)
        a('s_branch .Ljoin')

    def gemm1(self):
        a = self.a
        o = self.opt
        t, t2 = self.vTmp, self.vTmp2
        vTR = 224
        vAL, vAS, vWD, vCS = 228, 229, 230, 231
        vS = 232
        BP = 236
        CS45 = 242
        TM = 246
        ACC = 160
        RING1, CS01, RING2 = 128, 152, 240
        a(f'v_lshrrev_b32 v{t}, 5, v0')
        a(f'v_bfe_u32 v{t2}, v0, 2, 2')
        a(f'v_lshl_add_u32 v{t}, v{t}, 3, v{t2}')
        a(f'v_lshlrev_b32 v{t}, 6, v{t}')
        a(f'v_and_b32 v{t2}, 3, v0')
        a(f'v_lshl_add_u32 v{t}, v{t2}, 4, v{t}')
        a(f'v_bfe_u32 v{t2}, v0, 4, 1')
        a(f'v_lshl_add_u32 v{vTR}, v{t2}, 3, v{t}')
        for s in range(1, 4):
            a(f'v_xor_b32 v{t}, {32 * s}, v{vTR}')
            a(f'v_add_u32 v{vTR + s}, {TILE * s}, v{t}')
        a(f's_lshl_b32 s{sT0}, s{sRB}, 2')
        a(f's_add_u32 s{sT0}, s{sT0}, s{S_W}')
        a(f's_lshl_b32 s{sT1}, s{sT0}, 8')
        a(f'v_and_b32 v{t}, 15, v0')
        a(f'v_lshl_add_u32 v{t}, v{t}, 4, s{sT1}')
        a(f'v_lshrrev_b32 v{t2}, 4, v0')
        a(f's_mov_b32 s{sT1}, {QS}')
        a(f'v_mad_u32_u24 v{vAL}, v{t2}, s{sT1}, v{t}')
        a(f's_mul_i32 s{sT1}, s{sT0}, 98304')
        a(f'v_lshl_add_u32 v{vAS}, v0, 4, s{sT1}')
        a(f's_and_b32 s{sT0}, s{sJ}, 7')
        a(f's_lshl_b32 s{sT0}, s{sT0}, 2')
        a(f's_add_u32 s{sT0}, s{sT0}, s{S_W}')
        a(f's_mul_i32 s{sT0}, s{sT0}, {12 * 5120}')
        a(f'v_lshl_add_u32 v{vWD}, v0, 4, s{sT0}')
        a(f'v_and_b32 v{t}, 3, v0')
        a(f'v_bfe_u32 v{t2}, v0, 2, 1')
        a(f'v_lshl_add_u32 v{t}, v{t2}, 3, v{t}')
        a(f'v_bfe_u32 v{t2}, v0, 4, 1')
        a(f'v_lshl_add_u32 v{t}, v{t2}, 2, v{t}')
        a(f'v_lshlrev_b32 v{t}, 4, v{t}')
        a(f'v_bfe_u32 v{t2}, v0, 3, 1')
        a(f's_movk_i32 s{sT1}, 12288')
        a(f'v_mad_u32_u24 v{vCS}, v{t2}, s{sT1}, v{t}')
        self.w_write_addr_tail()
        for i in range(4):
            a(f'v_mov_b32 v{vS + i}, 0')
        for i in (0, 1, 4, 5):
            a(f'v_mov_b32 v{BP + i}, 0')
        a(f's_mov_b32 s{sOne}, 0x3f803f80')
        a(f's_lshl_b32 s{sT2}, s{sA}, 7')
        a(f's_add_u32 s{sT2}, s{sT2}, {CSF}')
        a(f's_lshl_b32 s{sT3}, s{sB}, 7')
        a(f's_add_u32 s{sT3}, s{sT3}, {CSF}')
        a(f's_lshl_b32 s{sA}, s{sA}, 10')
        a(f's_add_u32 s{sA}, s{sA}, {ACT}')
        a(f's_lshl_b32 s{sB}, s{sB}, 10')
        a(f's_add_u32 s{sB}, s{sB}, {ACT}')
        a(f's_mov_b32 s{sWoff}, {WDF}')
        a(f's_mov_b32 s{sT1}, {HP4}')
        a(f's_lshl_b32 s{sT0}, s{sX}, 8')
        a(f's_add_u32 s{sT0}, s{sT0}, {C_B2 * 256}')
        a.need('v255')
        a(f'v_mov_b32 v255, v0')
        with self.wave0():
            self.spin(S_WS, f's{sT0}', 8, t)
        a('s_waitcnt lgkmcnt(0)')
        a('s_barrier')
        self.stamp(8)
        al = []
        for j in range(40):
            g = [f'buffer_load_dwordx4 {vr(4 * j, 4)}, v{vAL}, {sr(S_WS, 4)}, s{sT1} offen sc1']
            if j < 39:
                g.append(f's_add_u32 s{sT1}, s{sT1}, {4 * QS}')
            al.append(g)
        al.append([f'buffer_load_dwordx4 {ar(CS01, 4)}, v{vCS}, {sr(S_WS, 4)}, s{sT2} offen sc1'])
        al.append([f'buffer_load_dwordx4 {ar(CS01 + 4, 4)}, v{vCS}, {sr(S_WS, 4)}, s{sT2} offen offset:256 sc1'])
        al.append([f'buffer_load_dwordx4 {vr(CS45, 4)}, v{vCS}, {sr(S_WS, 4)}, s{sT3} offen sc1'])
        for _ in range(o['a_ahead']):
            for x in al.pop(0):
                a(x)

        def rd(dst, slot, j):
            return [f'ds_read_b64_tr_b16 {ar(dst + 2 * e, 2)}, v{vTR + slot} offset:{1024 * j + 256 * e}'
                    for e in range(2)]

        def swaps(j):
            return [f'v_permlane16_swap_b32 v{4 * j}, v{4 * j + 2}', f'v_permlane16_swap_b32 v{4 * j + 1}, v{4 * j + 3}']

        def acc(slot):
            return vr(ACC + 16 * slot, 16)
        wd = []
        for i in range(60):
            g = [f'buffer_load_dwordx4 {ar(4 * i, 4)}, v{vWD}, {sr(S_WS, 4)}, s{sWoff} offen offset:{(i & 3) * 1024} sc1']
            if i & 3 == 3 and i != 59:
                g.append(f's_add_u32 s{sWoff}, s{sWoff}, 4096')
            wd.append(g)
        wtail = self.w_writes_tail()
        for j in range(2):
            for s in range(3):
                for x in rd(RING1 + 12 * j + 4 * s, s, j):
                    a(x)
        for x in swaps(0):
            a(x)
        p2 = [(3, 3, j) for j in range(40)] + [(4, 0, j) for j in range(40)] + [(5, 1, j) for j in range(40)]
        for j in range(40):
            base = RING1 + 12 * (j & 1)
            a.need(ar(base, 12))
            for s in range(3):
                c = '0' if j == 0 else acc(s)
                a(f'v_mfma_f32_32x32x16_bf16 {acc(s)}, {ar(base + 4 * s, 4)}, {vr(4 * j, 4)}, {c}')
                if j < 38:
                    for x in rd(base + 4 * s, s, j + 2):
                        a(x)
                else:
                    i = (j - 38) * 3 + s
                    if i < 4:
                        for x in rd(RING2 + 4 * i, p2[i][1], p2[i][2]):
                            a(x)
                if s == 0 and j < 39:
                    for x in swaps(j + 1):
                        a(x)
                if s == 1 and 22 <= j < 32:
                    a(wtail.pop(0))
                if s == 2:
                    for x in (al.pop(0) if al else wd.pop(0)):
                        a(x)
            if j == 21:
                a('s_barrier')
            if j & 7 == 7:
                for r in range(32 * (j >> 3), 32 * (j >> 3) + 32):
                    a(f'v_dot2c_f32_bf16 v{vS + (r & 1)}, s{sOne}, v{r}')
                    a(f'v_dot2c_f32_bf16 v{vS + 2 + (r & 1)}, v{r}, v{r}')
        self.stamp(9)
        C0, C1, R = vS, vS + 1, vS + 2
        c0 = -2.0 * 0.7978845608028654 * 1.4426950408889634
        st = [
            f'v_add_f32 v{vS}, v{vS}, v{vS + 1}',
            f'v_add_f32 v{vS + 2}, v{vS + 2}, v{vS + 3}',
            f'v_mov_b32 v{vS + 1}, v{vS}',
            f'v_mov_b32 v{vS + 3}, v{vS + 2}',
            f'v_cmp_gt_u32 vcc, 32, v255',
            f'v_permlane32_swap_b32 v{vS}, v{vS + 1}',
            f'v_permlane32_swap_b32 v{vS + 2}, v{vS + 3}',
            f'v_add_f32 v{vS}, v{vS}, v{vS + 1}',
            f'v_add_f32 v{vS + 2}, v{vS + 2}, v{vS + 3}',
            f'v_mul_f32 v{vS}, {f32(-1 / 640)}, v{vS}',
            f'v_mul_f32 v{vS + 2}, {f32(1 / 640)}, v{vS + 2}',
            f'v_cvt_pk_bf16_f32 v{t}, v{vS}, v{vS}',
            f'v_fma_f32 v{R}, -v{vS}, v{vS}, v{R}',
            f'v_lshlrev_b32 v{t}, 16, v{t}',
            f'v_max_f32 v{R}, 0, v{R}',
            f'v_sub_f32 v{t2}, v{vS}, v{t}',
            f'v_add_f32 v{R}, {f32(1e-5)}, v{R}',
            f'v_cvt_pk_bf16_f32 v{t}, v{t}, v{t2}',
            f'v_rsq_f32 v{vS + 3}, v{R}',
            f'v_cndmask_b32 v{BP + 2}, 0, v{t}, vcc',
            f'v_cndmask_b32 v{BP + 3}, 0, v{t}, vcc',
            f'v_mul_f32 v{C0}, {f32(c0)}, v{vS + 3}',
            f'v_mul_f32 v{t}, v{vS + 3}, v{vS + 3}',
            f'v_mul_f32 v{t}, {f32(0.044715)}, v{t}',
            f'v_mul_f32 v{C1}, v{t}, v{C0}',
        ]

        def csm(tile, slot, first):
            src = vr(CS45, 4) if tile >= 4 else ar(CS01 + 4 * (tile >> 1), 4)
            b = vr(BP, 4) if tile & 1 else vr(BP + 2, 4)
            return f'v_mfma_f32_32x32x16_bf16 {acc(slot)}, {src}, {b}, {"0" if first else acc(slot)}'

        def epi(tile, slot):
            b = ACC + 16 * slot
            tm = [TM, TM + 1, t, t2]
            ops = []
            for h in range(2):
                g, u = b + 8 * h, b + 8 * h + 4
                ops += [(1, f'v_mul_f32 v{tm[i]}, v{g + i}, v{g + i}') for i in range(4)]
                ops += [(1, f'v_fma_f32 v{tm[i]}, v{tm[i]}, v{C1}, v{C0}') for i in range(4)]
                ops += [(1, f'v_mul_f32 v{tm[i]}, v{tm[i]}, v{g + i}') for i in range(4)]
                for i in range(4):
                    ops += [(2, f'v_exp_f32 v{tm[i]}, v{tm[i]}'), (1, f'v_mul_f32 v{u + i}, v{u + i}, v{g + i}')]
                ops += [(1, f'v_fma_f32 v{tm[i]}, v{tm[i]}, v{R}, v{R}') for i in range(4)]
                ops += [(2, f'v_rcp_f32 v{tm[i]}, v{tm[i]}') for i in range(4)]
                ops += [(1, f'v_mul_f32 v{u + i}, v{u + i}, v{tm[i]}') for i in range(4)]
                ops += [(1, f'v_cvt_pk_bf16_f32 v{b + 2 * h + i}, v{u + 2 * i}, v{u + 2 * i + 1}') for i in range(2)]
            so = sA if tile < 4 else sB
            ops.append((1, f'buffer_store_dwordx4 {vr(b, 4)}, v{vAS}, {sr(S_WS, 4)}, s{so} offen offset:{(tile & 3) * 1024} sc1'))
            return ops
        slot_of = {0: 0, 1: 1, 2: 2, 3: 3, 4: 0, 5: 1}
        eq = []
        budget = 0.0
        RATE = o.get('epi_rate', 3.75)
        nwd_loop = len(wd) - o['wd_tail']
        wd_done = 0
        for i, (tile, ls, j) in enumerate(p2):
            slot = slot_of[tile]
            if j == 0 and tile > 3:
                a(csm(tile, slot, True))
            if i & 1 == 0:
                a.need(ar(RING2 + 4 * (i & 3), 8))
            c = '0' if i == 0 else acc(slot)
            a(f'v_mfma_f32_32x32x16_bf16 {acc(slot)}, {ar(RING2 + 4 * (i & 3), 4)}, {vr(4 * j, 4)}, {c}')
            if i == 31:
                assert not wtail
                a('s_waitcnt lgkmcnt(0)')
                a('s_barrier')
            if i + 4 < len(p2):
                for x in rd(RING2 + 4 * (i & 3), p2[i + 4][1], p2[i + 4][2]):
                    a(x)
            if i == 1:
                a('s_barrier')
            if 2 <= i < 22 and i & 1 == 0:
                a(wtail.pop(0))
            if i < 7:
                for _ in range(4):
                    if st:
                        a(st.pop(0))
            if i == 7:
                assert not st
                for tl in range(4):
                    a(csm(tl, tl, False))
                eq += epi(0, 0) + epi(1, 1) + epi(2, 2)
            if i == 42:
                eq += epi(3, 3)
            if i == 82:
                eq += epi(4, 0)
            if i >= 8:
                budget += RATE
                while eq and budget >= eq[0][0]:
                    cst, x = eq.pop(0)
                    budget -= cst
                    a(x)
                if not eq:
                    budget = 0
                if i == 39:
                    assert len(eq) <= 2 * 69, len(eq)
                if i == 79:
                    assert len(eq) <= 2 * 69, len(eq)
            want = ((i + 1) * nwd_loop) // len(p2)
            while wd_done < want:
                for x in wd.pop(0):
                    a(x)
                wd_done += 1
        for cst, x in eq:
            a(x)
        for cst, x in epi(5, 1):
            a(x)
        self.stamp(10)
        while wd:
            for x in wd.pop(0):
                a(x)

    def gemm2(self):
        a = self.a
        L = 255
        t, t2 = self.vTmp, self.vTmp2
        vA2 = 240
        vRes, vRes2, vOut, vOut2 = 244, 245, 246, 247
        vRW, vRR = 251, 254
        RES = 240
        a(f's_and_b32 s{sT0}, s{sX}, 1')
        a(f's_lshl_b32 s{sT0}, s{sT0}, 1')
        a(f's_lshl_b32 s{sT1}, s{sRB}, 2')
        a(f's_add_u32 s{sT0}, s{sT0}, s{sT1}')
        a(f'v_and_b32 v{t}, 15, v{L}')
        a(f'v_lshrrev_b32 v{t2}, 4, v{L}')
        a(f's_lshr_b32 s{sT1}, s{S_W}, 1')
        a(f's_add_u32 s{sT1}, s{sT1}, s{sT0}')
        a(f's_lshl_b32 s{sT2}, s{sT1}, 8')
        a(f's_and_b32 s{sT3}, s{S_W}, 1')
        a(f's_lshl_b32 s{sT4}, s{sT3}, 3')
        a(f's_add_u32 s{sT2}, s{sT2}, s{sT4}')
        a(f's_and_b32 s{sT4}, s{sJ}, 7')
        a(f's_mul_i32 s{sT5}, s{sT4}, {20 * QS}')
        a(f's_add_u32 s{sT2}, s{sT2}, s{sT5}')
        a(f'v_lshl_add_u32 v{vRes2}, v{t}, 4, s{sT2}')
        a(f's_mov_b32 s{sT5}, {2 * QS}')
        a(f'v_mad_u32_u24 v{vRes}, v{t2}, s{sT5}, v{vRes2}')
        a(f's_mov_b32 s{sT5}, {QS}')
        a(f'v_mad_u32_u24 v{vRes2}, v{t2}, s{sT5}, v{vRes2}')
        for nt in range(5):
            q = 8 * (nt >> 1) + (nt & 1)
            a(f's_mov_b32 s{sT5}, {HP4 + q * QS}')
            a(f'buffer_load_dwordx2 {ar(RES + 2 * nt, 2)}, v{vRes2 if nt == 4 else vRes}, {sr(S_WS, 4)}, s{sT5} offen sc1')
        a(f's_lshr_b32 s{sT5}, s{sRB}, 1')
        a(f's_lshl_b32 s{sT5}, s{sT5}, 8')
        a(f's_and_b32 s{sT6}, s{sT1}, 3')
        a(f's_lshl_b32 s{sT6}, s{sT6}, 2')
        a(f's_add_u32 s{sT5}, s{sT5}, s{sT6}')
        a(f's_and_b32 s{sT6}, s{sRB}, 1')
        a(f's_lshl_b32 s{sT6}, s{sT6}, 1')
        a(f's_add_u32 s{sT5}, s{sT5}, s{sT6}')
        a(f's_add_u32 s{sT5}, s{sT5}, s{sT3}')
        a(f's_mul_i32 s{sT5}, s{sT5}, 1280')
        a(f's_mul_i32 s{sT6}, s{sT4}, 160')
        a(f's_add_u32 s{sT5}, s{sT5}, s{sT6}')
        a(f's_movk_i32 s{sT6}, {16 * 1280}')
        a(f'v_mov_b32 v{vOut2}, s{sT5}')
        a(f'v_mad_u32_u24 v{vOut2}, v{t}, s{sT6}, v{vOut2}')
        a(f'v_lshl_add_u32 v{vOut}, v{t2}, 4, v{vOut2}')
        a(f'v_lshl_add_u32 v{vOut2}, v{t2}, 3, v{vOut2}')
        a(f'v_lshlrev_b32 v{t}, 4, v{t}')
        a(f'v_lshl_add_u32 v{t}, v{t2}, 9, v{t}')
        for lam in range(4):
            a(f's_xor_b32 s{sT2}, s{S_W}, {lam}')
            if lam:
                a(f's_mul_i32 s{sT3}, s{sT2}, {15 * 1024}')
                a(f's_add_u32 s{sT3}, s{sT3}, {(lam - 1) * 5120}')
                a(f'v_lshl_add_u32 v{vRW + lam - 1}, v{L}, 4, s{sT3}')
            else:
                a(f's_mul_i32 s{sT3}, s{sT2}, {15 * 1024}')
                a(f'v_lshl_add_u32 v{vRR}, v{L}, 4, s{sT3}')
            a(f's_lshr_b32 s{sT3}, s{sT2}, 1')
            a(f's_add_u32 s{sT3}, s{sT3}, s{sT0}')
            a(f's_mul_i32 s{sT3}, s{sT3}, 98304')
            a(f's_and_b32 s{sT2}, s{sT2}, 1')
            a(f's_lshl_b32 s{sT2}, s{sT2}, 8')
            a(f's_add_u32 s{sT3}, s{sT3}, s{sT2}')
            a(f'v_add_u32 v{vA2 + lam}, s{sT3}, v{t}')
        a(f's_mul_i32 s{sT1}, s{S_W}, {12 * 2048}')
        a(f's_add_u32 s{sT1}, s{sT1}, {ACT}')
        a(f's_lshl_b32 s{sT0}, s{sRB}, 8')
        a(f's_add_u32 s{sT0}, s{sT0}, {C_F3 * 256}')
        self.drain()
        a('s_barrier')
        with self.wave0():
            a(f'buffer_atomic_add v{self.vOne}, off, {sr(S_WS, 4)}, s{sT0} sc1')
            self.spin(S_WS, f's{sT0}', 16, t)
        a('s_barrier')
        self.stamp(11)
        AF = 80

        def ld(kk, lam):
            i = (4 * kk + lam) % 40
            r = [f'buffer_load_dwordx4 {vr(AF + 4 * i, 4)}, v{vA2 + lam}, {sr(S_WS, 4)}, s{sT1} offen offset:{(kk & 1) * 2048} sc1']
            if lam == 3 and kk & 1 and kk < 11:
                r.append(f's_add_u32 s{sT1}, s{sT1}, 4096')
            return r
        lq = [ld(kk, lam) for kk in range(12) for lam in range(4)]
        for _ in range(self.opt['act_ahead']):
            for x in lq.pop(0):
                a(x)
        for kk in range(12):
            for lam in range(4):
                i = (4 * kk + lam) % 40
                for nt in range(5):
                    c = vr(4 * (5 * lam + nt), 4)
                    a(f'v_mfma_f32_16x16x32_bf16 {c}, {ar(4 * (5 * kk + nt), 4)}, {vr(AF + 4 * i, 4)}, {"0" if kk == 0 else c}')
                if lq:
                    for x in lq.pop(0):
                        a(x)
        RR = 200
        for i in range(10):
            a(f'v_accvgpr_read_b32 v{RR + i}, a{RES + i}')
        for lam in range(1, 4):
            for nt in range(5):
                a(f'ds_write_b128 v{vRW + lam - 1}, {vr(4 * (5 * lam + nt), 4)} offset:{1024 * nt}')
        a(f's_mov_b32 s{sT2}, 0xffff0000')
        for i in range(10):
            a(f'v_lshlrev_b32 v{t}, 16, v{RR + i}')
            a(f'v_and_b32 v{t2}, s{sT2}, v{RR + i}')
            a(f'v_add_f32 v{2 * i}, v{2 * i}, v{t}')
            a(f'v_add_f32 v{2 * i + 1}, v{2 * i + 1}, v{t2}')
        a('s_waitcnt lgkmcnt(0)')
        a('s_barrier')
        for nt in range(5):
            for s in range(3):
                a(f'ds_read_b128 {vr(AF + 12 * nt + 4 * s, 4)}, v{vRR} offset:{5120 * s + 1024 * nt}')
        for nt in range(5):
            b = AF + 12 * nt
            for p in range(2):
                a(f'v_pk_add_f32 {vr(4 * nt + 2 * p, 2)}, {vr(4 * nt + 2 * p, 2)}, {vr(b + 2 * p, 2)}')
                a(f'v_pk_add_f32 {vr(b + 4 + 2 * p, 2)}, {vr(b + 4 + 2 * p, 2)}, {vr(b + 8 + 2 * p, 2)}')
            for p in range(2):
                a(f'v_pk_add_f32 {vr(4 * nt + 2 * p, 2)}, {vr(4 * nt + 2 * p, 2)}, {vr(b + 4 + 2 * p, 2)}')
            for p in range(2):
                a(f'v_cvt_pk_bf16_f32 v{RR + 2 * nt + p}, v{4 * nt + 2 * p}, v{4 * nt + 2 * p + 1}')
            if nt & 1:
                a(f'buffer_store_dwordx4 {vr(RR + 2 * nt - 2, 4)}, v{vOut}, {sr(S_OUT, 4)}, 0 offen offset:{64 * (nt >> 1)}')
            if nt == 4:
                a(f'buffer_store_dwordx2 {vr(RR + 8, 2)}, v{vOut2}, {sr(S_OUT, 4)}, 0 offen offset:128')
        if self.diag:
            a('s_waitcnt vmcnt(0)')
            self.stamp(12)
            a('s_waitcnt lgkmcnt(0)')
            with self.wave0():
                a(f's_lshl_b32 s{sT0}, s2, 7')
                a(f's_add_u32 s{sT0}, s{sT0}, {STAMP}')
                for i in range(NSTAMP):
                    a(f'v_mov_b32 v0, s{S_STAMP + 2 * i}')
                    a(f'buffer_store_dword v0, off, {sr(S_WS, 4)}, s{sT0} offset:{4 * i}')
                    if self.opt.get('dbg'):
                        a(f'buffer_atomic_umax v0, off, {sr(S_DBG, 4)}, 0 offset:{4 * i + 8} sc1')
                        if i == 0:
                            a('v_not_b32 v1, v0')
                            a(f'buffer_atomic_umax v1, off, {sr(S_DBG, 4)}, 0 offset:4 sc1')
        if self.opt.get('fixt'):
            with a.untracked():
                a(f's_cmp_lg_u32 s2, {self.opt.get("fixwg", 0)}')
                a('s_cbranch_scc1 .Lend')
                a(f's_cmp_lg_u32 s{S_W}, 0')
                a('s_cbranch_scc1 .Lend')
                a(f's_sub_u32 s{sT2}, s{S_STAMP + 2 * self.opt.get("fixs", 0)}, s{S_STAMP}')
                a(f's_lshl_b32 s{sT2}, s{sT2}, 2')
                a(f's_min_u32 s{sT2}, s{sT2}, 100000')
                a(f's_add_u32 s{sT2}, s{sT2}, {self.opt["fixt"]}')
                a('.Lfix:')
                a(f's_memrealtime {sr(sT0, 2)}')
                a('s_waitcnt lgkmcnt(0)')
                a(f's_sub_u32 s{sT0}, s{sT0}, s{S_STAMP}')
                a(f's_cmp_lt_u32 s{sT0}, s{sT2}')
                a('s_cbranch_scc1 .Lfix')
        a('.Lend:')
        a('s_endpgm')

    def build(self):
        a = self.a
        if self.diag:
            for i in range(2 * NSTAMP):
                a(f's_mov_b32 s{S_STAMP + i}, 0')
        self.prologue()
        self.conv()
        self.gemm1()
        self.gemm2()
        self.side()
        a('.Lcode_end:')
        a('s_endpgm')
        body = a.finish(verbose=True, align=self.opt.get('align', 1))
        ref = open('cdna_kernels/' + NAME + '.s.ref').read().split('\n')
        head = [l for l in ref if l.startswith(';') and '@launch' not in l and 'Override' not in l and 'grid=ceil' not in l]
        txt = '\n'.join(head) + '\n'
        txt += '; Generated by my generator script (one persistent launch; see comments there).\n'
        txt += '; @launch grid=(256,1,1) block=(256,1,1) lds=163840\n'
        txt += f'''.amdgcn_target "amdgcn-amd-amdhsa--gfx950"
.text
.globl {NAME}_kernel
.p2align 8
.type {NAME}_kernel,@function
{NAME}_kernel:
{body}.section .rodata,"a"
.p2align 6
.amdhsa_kernel {NAME}_kernel
  .amdhsa_next_free_vgpr 512
  .amdhsa_next_free_sgpr 102
  .amdhsa_accum_offset 256
  .amdhsa_group_segment_fixed_size 0
  .amdhsa_kernarg_size 104
  .amdhsa_user_sgpr_count 2
  .amdhsa_user_sgpr_kernarg_segment_ptr 1
  .amdhsa_system_sgpr_workgroup_id_x 1
  .amdhsa_float_denorm_mode_32 3
.end_amdhsa_kernel
'''
        return txt


if __name__ == '__main__':
    out = sys.argv[1]
    diag = 'diag' in sys.argv[2:]
    opt = {}
    for x in sys.argv[2:]:
        if '=' in x:
            k, v = x.split('=')
            try:
                v = int(v)
            except ValueError:
                try:
                    v = float(v)
                except ValueError:
                    pass
            opt[k] = v
    open(out, 'w').write(Gen(diag, opt).build())
```

```python
import re
import subprocess

REG_RE = re.compile(r'^(-|\|)?([vas])(\d+|\[(\d+):(\d+)\])\|?$')


def regs_of(tok):
    tok = tok.strip()
    if tok.startswith('abs(') or tok.startswith('-abs('):
        tok = tok[tok.index('(') + 1:-1]
    if tok == 'vcc':
        return [('s', 106), ('s', 107)]
    if tok == 'exec':
        return [('s', 126), ('s', 127)]
    if tok == 'm0':
        return [('s', 124)]
    m = REG_RE.match(tok)
    if not m:
        return []
    f = m.group(2)
    if m.group(4) is not None:
        return [(f, i) for i in range(int(m.group(4)), int(m.group(5)) + 1)]
    return [(f, int(m.group(3)))]


TRANS = ('v_exp_f32', 'v_log_f32', 'v_rcp_f32', 'v_rsq_f32', 'v_sqrt_f32', 'v_sin_f32', 'v_cos_f32')


class Ins:
    def __init__(self, text, untracked=False):
        self.text = text
        self.untracked = untracked
        t = text.split(';')[0].strip()
        self.is_label = t.endswith(':')
        self.is_dir = t.startswith('.') and not self.is_label
        self.op = ''
        self.defs = []
        self.uses = []
        self.kind = 'other'
        self.mods = ''
        if self.is_label or self.is_dir or not t:
            self.kind = 'none'
            return
        parts = t.split(None, 1)
        op = self.op = parts[0]
        rest = parts[1] if len(parts) > 1 else ''
        ops = []
        cur = ''
        depth = 0
        for ch in rest:
            if ch == '[':
                depth += 1
            if ch == ']':
                depth -= 1
            if ch == ',' and depth == 0:
                ops.append(cur.strip())
                cur = ''
            else:
                cur += ch
        if cur.strip():
            ops.append(cur.strip())
        if ops:
            last = ops[-1].split(None, 1)
            ops[-1] = last[0]
            self.mods = last[1] if len(last) > 1 else ''
        self.ops = ops
        R = [regs_of(o) for o in ops]
        allr = [r for x in R for r in x]
        rest1 = [r for x in R[1:] for r in x]
        self.srcA = self.srcB = self.srcC = []
        self.data = []
        if op.startswith('buffer_load') or op.startswith('global_load'):
            self.kind = 'vmem'
            if re.search(r'\blds\b', self.mods) or '_lds_' in op:
                self.uses = allr + [('s', 124)]
            else:
                self.defs = R[0]
                self.uses = rest1
        elif op.startswith('buffer_store') or op.startswith('global_store'):
            self.kind = 'vmem'
            self.uses = allr
            self.data = R[0] if op.startswith('buffer') else R[1]
        elif op.startswith('buffer_atomic'):
            self.kind = 'vmem'
            self.uses = allr
            if re.search(r'\bsc0\b', self.mods):
                self.defs = R[0]
        elif op.startswith('buffer_inv') or op.startswith('buffer_wbl2'):
            self.kind = 'vmem'
        elif op.startswith('ds_read') or op.startswith('ds_bpermute') or op.startswith('ds_swizzle'):
            self.kind = 'ds'
            self.defs = R[0]
            self.uses = rest1
        elif op.startswith('ds_'):
            self.kind = 'ds'
            self.uses = allr
        elif op.startswith('v_mfma'):
            self.kind = 'mfma'
            self.defs = R[0]
            self.uses = rest1
            self.srcA, self.srcB, self.srcC = R[1], R[2], R[3]
            self.passes = 8 if '32x32' in op else 4
        elif op.startswith('v_'):
            self.kind = 'valu'
            base = re.sub(r'_(e32|e64|dpp|sdwa)$', '', op)
            self.base = base
            self.defs = R[0]
            self.uses = rest1
            if base.startswith('v_fmac') or base.startswith('v_dot2c') or base.startswith('v_pk_fmac') \
                    or op.endswith('_dpp') or op.endswith('_sdwa') or base == 'v_writelane_b32':
                self.uses = allr
            if 'swap' in base:
                self.defs = allr
                self.uses = allr
            if base.startswith('v_cmpx'):
                self.defs = R[0] + [('s', 126), ('s', 127)]
        elif op.startswith('s_atomic'):
            self.kind = 'smem'
            self.uses = allr
            if 'glc' in self.mods:
                self.defs = R[0]
        elif op.startswith('s_load') or op.startswith('s_buffer_load') or op in ('s_memtime', 's_memrealtime'):
            self.kind = 'smem'
            self.defs = R[0]
            self.uses = rest1
        elif op.startswith('s_'):
            self.kind = 'salu'
            nodef = ('s_cmp', 's_waitcnt', 's_barrier', 's_branch', 's_cbranch', 's_nop', 's_setprio', 's_sleep',
                     's_endpgm', 's_bitcmp', 's_setpc', 's_set_gpr_idx')
            if any(op.startswith(x) for x in nodef):
                self.uses = allr
            else:
                self.defs = R[0]
                self.uses = rest1
                if 'saveexec' in op:
                    self.defs = R[0] + [('s', 126), ('s', 127)]
                if op.startswith('s_addk') or op.startswith('s_mulk') or op.startswith('s_cmov'):
                    self.uses = allr


def states_of(ins):
    if ins.kind == 'none':
        return 0
    if ins.op == 's_nop':
        return int(ins.ops[0]) + 1
    return 1


def overlap(a, b):
    if not a or not b:
        return False
    return not set(a).isdisjoint(b)


def need_states(p, c):
    n = 0
    pk, ck = p.kind, c.kind
    vdefs = [r for r in p.defs if r[0] != 's']
    sdefs = [r for r in p.defs if r[0] == 's']
    if pk == 'valu':
        isdot = p.base.startswith('v_dot')
        if ck == 'mfma' and overlap(vdefs, c.uses):
            n = max(n, 3 if isdot else 2)
        if ck == 'valu':
            if 'permlane' in c.base and overlap(vdefs, c.uses):
                n = max(n, 2)
            if c.op.endswith('_dpp') and overlap(vdefs, c.uses):
                n = max(n, 2)
            if c.base in ('v_readlane_b32', 'v_readfirstlane_b32') and overlap(vdefs, c.uses):
                n = max(n, 1)
            if p.base in TRANS and overlap(vdefs, c.uses):
                n = max(n, 1)
            if sdefs and overlap(sdefs, c.uses):
                n = max(n, 4 if c.base in ('v_readlane_b32', 'v_writelane_b32') else 2)
            if sdefs and ('s', 106) in sdefs and c.base == 'v_cndmask_b32':
                n = max(n, 2)
            if 'op_sel' in p.mods and overlap(vdefs, c.uses + c.defs):
                n = max(n, 1)
            if ('s', 126) in sdefs:
                n = max(n, 5)
        if isdot and overlap(vdefs, c.uses + c.defs):
            same = ck == 'valu' and c.base == p.base
            if same:
                srcab = [r for o in c.ops[1:3] for r in regs_of(o)]
                if overlap(vdefs, srcab):
                    n = max(n, 3)
            else:
                n = max(n, 3)
        if ck == 'vmem' and sdefs and overlap(sdefs, c.uses):
            n = max(n, 5)
        if ck in ('salu', 'smem') and sdefs and overlap(sdefs, c.uses):
            n = max(n, 2)
        if ck == 'mfma' and ('s', 126) in sdefs:
            n = max(n, 4)
    if pk == 'mfma':
        ps = p.passes
        if ck == 'mfma':
            if overlap(p.defs, c.srcA + c.srcB):
                n = max(n, ps + 4)
            if overlap(p.defs, c.srcC):
                if not (p.defs == c.srcC and p.passes == c.passes):
                    n = max(n, ps + 2)
            elif overlap(p.defs, c.defs):
                n = max(n, ps + 4)
        elif ck in ('valu', 'vmem', 'ds'):
            if overlap(p.defs, c.uses + c.defs):
                n = max(n, ps + 4)
            if overlap(p.srcC, c.defs):
                n = max(n, ps - 1)
    if pk == 'vmem' and len(p.data) >= 3:
        if overlap(p.data, c.defs):
            n = max(n, 2)
    if pk == 'salu' and ('s', 124) in p.defs and ck in ('vmem', 'ds') and ('s', 124) in c.uses:
        n = max(n, 1)
    return n


class Asm:
    def __init__(self):
        self.items = []
        self._untracked = 0
        self.nlabel = 0

    def __call__(self, text, tag=None):
        if callable(text):
            text()
            return
        if isinstance(text, (list, tuple)):
            for x in text:
                self(x)
            return
        for line in text.split('\n'):
            line = line.strip()
            if line:
                i = Ins(line, self._untracked > 0)
                i.tag = tag
                self.items.append(i)

    def need_tag(self, tag):
        i = Ins('')
        i.kind = 'need'
        i.uses = [('tag', tag)]
        self.items.append(i)

    def label(self, stem='L'):
        self.nlabel += 1
        return f'.L{stem}_{self.nlabel}'

    def mark(self, what, name=None):
        i = Ins('')
        i.kind = 'mark'
        i.what = what
        i.name = name
        self.items.append(i)

    def need(self, *toks):
        i = Ins('')
        i.kind = 'need'
        i.uses = [r for t in toks for r in regs_of(t)]
        self.items.append(i)

    def drain_stores(self):
        i = Ins('')
        i.kind = 'need'
        i.uses = [('store', 0)]
        self.items.append(i)

    def snapshot(self, name):
        self.mark('snap', name)

    def fresh(self, name=None):
        self.mark('fresh', name)

    class _U:
        def __init__(self, a):
            self.a = a

        def __enter__(self):
            self.a._untracked += 1

        def __exit__(self, *x):
            self.a._untracked -= 1

    def untracked(self):
        return Asm._U(self)

    def finish(self, verbose=False, align=True, pads=None):
        out = []
        vm = []
        lg = []
        sm = set()
        snaps = {}
        hist = []
        stats = {'nop': 0, 'wait': 0}

        def emit(i):
            out.append(i)
            if i.kind not in ('none', 'mark'):
                hist.append(i)
                if len(hist) > 24:
                    hist.pop(0)

        for ins in self.items:
            if ins.kind == 'mark':
                if ins.what == 'snap':
                    snaps[ins.name] = (list(vm), list(lg), set(sm))
                elif ins.what == 'fresh':
                    if ins.name:
                        a, b, c = snaps[ins.name]
                        vm, lg, sm = list(a), list(b), set(c)
                    else:
                        vm, lg, sm = [], [], set()
                continue
            if ins.kind == 'none':
                emit(ins)
                continue
            touched = set(ins.uses) | set(ins.defs)
            if ins.op == 's_waitcnt':
                if not ins.untracked:
                    m = re.search(r'vmcnt\((\d+)\)', ins.text)
                    if m:
                        n = int(m.group(1))
                        if len(vm) > n:
                            vm = vm[len(vm) - n:] if n else []
                    m = re.search(r'lgkmcnt\((\d+)\)', ins.text)
                    if m:
                        n = int(m.group(1))
                        if n == 0:
                            sm = set()
                            lg = []
                        elif len(lg) > n:
                            lg = lg[len(lg) - n:]
                emit(ins)
                continue
            wv = wl = None
            for idx in range(len(vm) - 1, -1, -1):
                if vm[idx] & touched:
                    wv = len(vm) - 1 - idx
                    break
            for idx in range(len(lg) - 1, -1, -1):
                if lg[idx] & touched:
                    wl = len(lg) - 1 - idx
                    break
            if sm & touched:
                wl = 0
            if ins.untracked and (wv is not None or wl is not None):
                raise RuntimeError('untracked instruction touches pending register: ' + ins.text)
            if wv is not None or wl is not None:
                s = 's_waitcnt'
                if wv is not None:
                    wv = min(wv, 63)
                    s += f' vmcnt({wv})'
                    vm = vm[len(vm) - wv:] if wv else []
                if wl is not None:
                    wl = min(wl, 15)
                    s += f' lgkmcnt({wl})'
                    lg = lg[len(lg) - wl:] if wl else []
                    if wl == 0:
                        sm = set()
                emit(Ins(s))
                stats['wait'] += 1
            if ins.kind == 'need':
                continue
            need = 0
            dist = 0
            for p in reversed(hist):
                n = need_states(p, ins)
                if n > dist:
                    need = max(need, n - dist)
                dist += states_of(p)
                if dist >= 20:
                    break
            while need > 0:
                k = min(need, 16)
                emit(Ins(f's_nop {k - 1}'))
                stats['nop'] += 1
                need -= k
            emit(ins)
            if not ins.untracked:
                if ins.kind == 'vmem':
                    d = set(ins.defs)
                    if 'store' in ins.op:
                        d.add(('store', 0))
                    if getattr(ins, 'tag', None):
                        d.add(('tag', ins.tag))
                    vm.append(d)
                elif ins.kind == 'ds':
                    lg.append(set(ins.defs))
                elif ins.kind == 'smem':
                    sm |= set(ins.defs)
        if verbose:
            print('auto waits', stats['wait'], 'auto nops', stats['nop'], 'instructions',
                  sum(1 for i in out if i.kind not in ('none', 'mark')))
        out = [i for i in out if i.kind != 'mark']
        if align:
            out = align8(out, verbose)
        if pads is not None:
            out = add_pads(out, verbose, *pads)
        lines = []
        for i in out:
            lines.append(i.text if i.is_label else '    ' + i.text)
        return '\n'.join(lines) + '\n'


def add_pads(out, verbose, base, npads, ret, stop_label, stride=4096):
    sizes_of([i for i in out if 'Lpad_' not in i.text] )
    res = []
    off = base
    k = 0
    nxt = (base // stride + 1) * stride
    done = False
    prev = None
    where = []
    last_label = ''
    for i in out:
        if i.kind == 'none':
            if i.text.strip() == stop_label + ':':
                done = True
            if i.is_label:
                last_label = i.text
            res.append(i)
            continue
        if not done and k < npads and off >= nxt and (prev.kind == 'mfma' or off >= nxt + 32):
            res += [Ins(f's_branch .Lover_{k}'), Ins(f'.Lpad_{k}:'), Ins(f's_setpc_b64 {ret}'), Ins(f'.Lover_{k}:')]
            where.append((k, hex(off), last_label))
            off += 8
            k += 1
            nxt += stride
        res.append(i)
        off += getattr(i, 'size', 4)
        prev = i
    tail = []
    while k < npads:
        tail.append(Ins(f'.Lpad_{k}:'))
        k += 1
    if tail:
        res += tail + [Ins(f's_setpc_b64 {ret}')]
    if verbose:
        print('pads', where)
    return res


def sizes_of(out):
    txt = '\n'.join(i.text for i in out) + '\n'
    r = subprocess.run(['llvm-mc', '-triple=amdgcn-amd-amdhsa', '-mcpu=gfx950', '-show-encoding'],
                       input=txt, capture_output=True, text=True)
    assert r.returncode == 0, r.stderr[:2000]
    sz = [l.split('encoding: [')[1].count(',') + 1 for l in r.stdout.split('\n') if 'encoding: [' in l]
    real = [i for i in out if i.kind != 'none']
    assert len(sz) == len(real), (len(sz), len(real))
    for i, n in zip(real, sz):
        i.size = n


def align8(out, verbose, c_mis=1.35, c_nop=4.0, c_pro=0.05):
    sizes_of([i for i in out if 'Lpad_' not in i.text])
    for i in out:
        if 'Lpad_' in i.text:
            i.size = 4
    real = [i for i in out if i.kind != 'none']
    INF = 1e18
    cost = [0.0, INF]
    back = []
    for i in real:
        nc = [INF, INF]
        nb = [None, None]
        prom = i.size == 4 and i.kind == 'valu' and not i.op.startswith('v_readfirstlane') \
            and not i.op.endswith('_e32') and not i.op.startswith('v_accvgpr') and i.op != 'v_nop'
        for p in range(2):
            if cost[p] >= INF:
                continue
            for nop in (0, 1):
                q = p ^ nop
                for pr in ((0, 1) if prom else (0,)):
                    sz = 8 if pr else i.size
                    c = cost[p] + nop * c_nop + pr * c_pro + (c_mis if sz >= 8 and q else 0)
                    e = q ^ ((sz >> 2) & 1)
                    if c < nc[e]:
                        nc[e] = c
                        nb[e] = (p, nop, pr)
        back.append(nb)
        cost = nc
    p = 0 if cost[0] <= cost[1] else 1
    dec = []
    for nb in reversed(back):
        pp, nop, pr = nb[p]
        dec.append((nop, pr))
        p = pp
    dec.reverse()
    res = []
    k = 0
    n1 = n2 = 0
    for i in out:
        if i.kind == 'none':
            res.append(i)
            continue
        nop, pr = dec[k]
        k += 1
        if nop:
            res.append(Ins('s_nop 0'))
            n1 += 1
        if pr:
            i.text = i.text.replace(i.op, i.op + '_e64', 1)
            n2 += 1
        res.append(i)
    if verbose:
        print('align: nops', n1, 'widened', n2, 'cost', min(cost))
    return res


def vr(base, n=1, f='v'):
    return f'{f}{base}' if n == 1 else f'{f}[{base}:{base + n - 1}]'


def ar(base, n=1):
    return vr(base, n, 'a')


def sr(base, n=1):
    return vr(base, n, 's')
```

```python
import struct
import sys
from asmlib import Asm, vr, ar, sr

NAME = 'sequential_preLN__ssm_conv_h3__geglu_ffn__prompt'

QS = 16384
CNT = 0
ST1 = 49152
CSF = 65536
STAMP = 98304
PST = 131072
KVX = PST + 524288
XP4 = KVX + 160 * QS
HP4 = XP4 + 160 * QS
WDF = HP4 + 160 * QS
ACT = WDF + 1966080
WS_END = ACT + 6291456
C_F1, C_FX, C_FXR, C_B1, C_B2, C_F3 = 0, 10, 16, 24, 32, 40
SPIN = 100000

S_W = 3
S_K, S_V, S_SH, S_SK, S_X, S_WG, S_WU, S_WD, S_OUT, S_DBG, S_WS = 4, 8, 12, 16, 20, 24, 28, 32, 36, 40, 44
S_D = 48
sX, sJ, sG, sM, sQ, sRB, sCB, sA, sB, sRot = 50, 51, 52, 53, 54, 55, 56, 57, 58, 59
sT0, sT1, sT2, sT3, sT4, sT5, sT6, sT7 = 60, 61, 62, 63, 64, 65, 66, 67
sWoff, sWoff2, sSpin, sDv = 68, 69, 70, 71
sOne, sU0, sU1, sU2 = 72, 73, 74, 75
sRet = 48
NPAD = 8
S_STAMP = 76
NSTAMP = 13
sAB = 4
sACT = 12
sWDO = 24

GSTR = 4160
GW = 8 * GSTR
UBASE = 4 * GW
USTR = 4608
TILE = 40960
WS = sr(S_WS, 4)


def f32(x):
    return '0x%08x' % struct.unpack('<I', struct.pack('<f', x))[0]


class Gen:
    def __init__(self, diag=False, opt=None):
        self.a = Asm()
        self.diag = diag
        self.opt = dict(map1='4x8', rot=1, w_kv=0, w_e1=0, w_u=6, tb_pre=2, tb_mid=2, w45_pre=8, a_ahead=12,
                        sig='v', epi_rate=4.1, fx_it=3, out_sc1=1, wd_p1=1, dstat=1, pads=1)
        if opt:
            self.opt.update(opt)
        self.cold = []

    PROF = {
        'main': [0, 1, 2, 3, 4, 5, 6, 7, 8, 9, 10, 11, 12],
        'front': [0, 'karg', 'issued', 1, 'kvdone', 2, 'tbpre', 'drained', 3, 'tbpost', 4, 'uload', 5],
        'e2': [0, 6, 'zbar', 7, 'hbar', 'hissued', 'hdrained', 'hbar2', 'arrived', 'wwritten', 'polled', 8, 'a0'],
        'g1': [0, 8, 'a0', 'p8', 'p16', 'p24', 'p32', 9, 't3', 't4', 't5', 10, 12],
        'g2': [0, 't5', 10, 'chkb', 'sigc', 'endA', 'chkc0', 11, 'endB', 'endC', 'redbar', 'outst', 12],
    }

    def stamp(self, i):
        prof = self.PROF[self.opt.get('prof', 'main')]
        if self.diag and i in prof:
            i = prof.index(i)
            self.a(f'{"s_memtime" if self.opt.get("cyc") else "s_memrealtime"} {sr(S_STAMP + 2 * i, 2)}')

    def spin(self, srd, soff, target, vt):
        a = self.a
        top, done = a.label('spin'), a.label('done')
        with a.untracked():
            a(f's_mov_b32 s{sSpin}, {SPIN}')
            a(f'{top}:')
            a(f'buffer_load_dword v{vt}, off, {sr(srd, 4)}, {soff} sc1')
            a('s_waitcnt vmcnt(0)')
            a(f'v_readfirstlane_b32 s{sT7}, v{vt}')
            a(f's_sub_u32 s{sSpin}, s{sSpin}, 1')
            a(f's_cbranch_scc1 {done}')
            a(f's_cmp_lt_u32 s{sT7}, {target}')
            a(f's_cbranch_scc1 {top}')
            a(f'{done}:')

    def check(self, srd, soff, target, vt):
        a = self.a
        slow, back = a.label('slow'), a.label('back')
        a(f'v_readfirstlane_b32 s{sT7}, v{vt}')
        a(f's_cmp_lt_u32 s{sT7}, {target}')
        a(f's_cbranch_scc1 {slow}')
        a(f'{back}:')

        def cold():
            a(f'{slow}:')
            self.spin(srd, soff, target, vt)
            a(f's_branch {back}')
        self.cold.append(cold)

    def wave0(self):
        g = self

        class W:
            def __enter__(s):
                s.l = g.a.label('nw0')
                g.a(f's_cmp_lg_u32 s{S_W}, 0')
                g.a(f's_cbranch_scc1 {s.l}')
                s.u = g.a.untracked()
                s.u.__enter__()
                g.a('s_mov_b64 exec, 1')

            def __exit__(s, *x):
                g.a('s_mov_b64 exec, -1')
                s.u.__exit__()
                g.a(f'{s.l}:')
        return W()

    def warm(self, sets):
        if not self.opt['pads']:
            return
        a = self.a
        for w, ks in enumerate(sets):
            if not ks:
                continue
            l = a.label('nw')
            a(f's_cmp_lg_u32 s{S_W}, {w + 1}')
            a(f's_cbranch_scc1 {l}')
            for k in ks:
                a(f's_call_b64 {sr(sRet, 2)}, .Lpad_{k}')
            a(f'{l}:')

    def two_level(self, soff, last, rep):
        a = self.a
        l = a.label('notlast')
        a(f'v_mov_b32 v{self.vTmp}, 1')
        a(f'buffer_atomic_add v{self.vTmp}, off, {WS}, {soff} sc0 sc1')
        a('s_waitcnt vmcnt(0)')
        a(f'v_readfirstlane_b32 s{sT7}, v{self.vTmp}')
        a(f's_cmp_lg_u32 s{sT7}, {last}')
        a(f's_cbranch_scc1 {l}')
        a('s_mov_b64 exec, 0xff')
        a(f'v_lshlrev_b32 v{self.vTmp}, 8, v0')
        a(f's_movk_i32 s{sT7}, {rep * 256}')
        a(f'buffer_atomic_add v{self.vOne}, v{self.vTmp}, {WS}, s{sT7} offen sc1')
        a(f'{l}:')

    def prologue(self):
        a = self.a
        a('s_cmp_ge_u32 s2, 0x100')
        a('s_cbranch_scc1 .Lend')
        self.stamp(0)
        for srd, off in ((S_K, 8), (S_WS, 96), (S_V, 16), (S_SH, 24), (S_SK, 32), (S_X, 0), (S_WG, 56), (S_WU, 64),
                         (S_WD, 72), (S_OUT, 80), (S_DBG, 88), (S_D, 40)):
            a(f's_load_dwordx2 {sr(srd, 2)}, s[0:1], {off}')
        a(f's_getpc_b64 {sr(sT0, 2)}')
        a('.Lpc:')
        a('v_lshlrev_b32 v6, 7, v0')
        a('v_min_u32 v2, .Lcode_end-.Lpc-4, v6')
        a('v_mov_b32 v3, 0')
        a(f'v_lshl_add_u64 v[4:5], v[2:3], 0, {sr(sT0, 2)}')
        a('global_load_dword v255, v[4:5], off')
        a('v_add_u32 v2, 0x8000, v6')
        a('v_min_u32 v2, .Lcode_end-.Lpc-4, v2')
        a(f'v_lshl_add_u64 v[4:5], v[2:3], 0, {sr(sT0, 2)}')
        a('global_load_dword v247, v[4:5], off')
        a('v_lshrrev_b32 v1, 6, v0')
        a('v_and_b32 v0, 63, v0')
        a(f'v_readfirstlane_b32 s{S_W}, v1')
        for srd, n in ((S_K, 2621440), (S_V, 2621440), (S_SH, 5120), (S_SK, 4096), (S_X, 2621440), (S_WG, 1966080),
                       (S_WU, 1966080), (S_WD, 1966080), (S_OUT, 2621440), (S_DBG, 256), (S_WS, WS_END)):
            a(f's_mov_b32 s{srd + 2}, {n}')
            a(f's_mov_b32 s{srd + 3}, 0x20000')
        a(f's_and_b32 s{sX}, s2, 7')
        a(f's_lshr_b32 s{sJ}, s2, 3')
        a(f's_and_b32 s{sM}, s{sJ}, 15')
        a(f's_mov_b32 s{sG}, s{sX}')
        a(f's_cmp_lt_u32 s{sJ}, 16')
        a.snapshot('role')
        a('s_cbranch_scc1 .Lconv')
        a(f's_add_u32 s{sG}, s{sX}, 8')
        a(f's_cmp_lt_u32 s{sX}, 2')
        a('s_cbranch_scc0 .Lside')
        a('.Lconv:')

    def gemm_ids(self):
        a = self.a
        if self.opt['map1'] == '4x8':
            a(f's_lshr_b32 s{sRB}, s{sX}, 1')
            a(f's_lshr_b32 s{sT0}, s{sJ}, 3')
            a(f's_lshl2_add_u32 s{sRB}, s{sRB}, s{sT0}')
            a(f's_and_b32 s{sCB}, s{sX}, 1')
            a(f's_and_b32 s{sT0}, s{sJ}, 7')
            a(f's_lshl3_add_u32 s{sCB}, s{sCB}, s{sT0}')
            a(f's_lshl1_add_u32 s{sRot}, s{sRB}, s{sCB}')
        else:
            a(f's_lshr_b32 s{sRB}, s{sX}, 2')
            a(f's_lshr_b32 s{sT0}, s{sJ}, 2')
            a(f's_lshl3_add_u32 s{sRB}, s{sRB}, s{sT0}')
            a(f's_and_b32 s{sCB}, s{sX}, 3')
            a(f's_and_b32 s{sT0}, s{sJ}, 3')
            a(f's_lshl2_add_u32 s{sCB}, s{sCB}, s{sT0}')
            a(f's_lshl1_add_u32 s{sRot}, s{sT0}, s{sRB}')
            a(f's_and_b32 s{sT0}, s{sX}, 1')
            a(f's_add_u32 s{sRot}, s{sRot}, s{sT0}')
        a(f's_and_b32 s{sRot}, s{sRot}, {7 if self.opt["rot"] else 0}')
        a(f's_and_b32 s{sT0}, s{sCB}, 1')
        a(f's_mul_i32 s{sA}, s{sCB}, 6')
        a(f's_add_u32 s{sB}, s{sA}, 4')
        a(f's_lshl1_add_u32 s{sA}, s{sT0}, s{sA}')
        a(f's_lshl_b32 s{sT1}, s{sT0}, 2')
        a(f's_sub_u32 s{sB}, s{sB}, s{sT1}')

    vWL, vWL2, vWW, vWW2, vTmp, vTmp2, vOne, vPS = 254, 253, 252, 251, 250, 249, 248, 246

    def w_addr(self):
        a = self.a
        t, t2 = self.vTmp, self.vTmp2
        a(f's_movk_i32 s{sT2}, 3072')
        a(f's_lshl_b32 s{sT1}, s{sA}, 5')
        a(f'v_lshrrev_b32 v{t}, 3, v0')
        a(f'v_and_b32 v{t2}, 7, v0')
        a(f'v_lshl_add_u32 v{t2}, v{t2}, 4, s{sT1}')
        a(f'v_mad_u32_u24 v{self.vWL}, v{t}, s{sT2}, v{t2}')
        a(f's_lshl_b32 s{sT1}, s{sB}, 5')
        a(f'v_lshrrev_b32 v{t}, 2, v0')
        a(f'v_and_b32 v{t2}, 3, v0')
        a(f'v_lshl_add_u32 v{t2}, v{t2}, 4, s{sT1}')
        a(f'v_mad_u32_u24 v{self.vWL2}, v{t}, s{sT2}, v{t2}')
        a(f's_mul_i32 s{sT0}, s{sRot}, {80 * 3072}')
        a(f's_mul_i32 s{sT1}, s{S_W}, {8 * 3072}')
        a(f's_add_u32 s{sWoff}, s{sT0}, s{sT1}')
        a(f's_add_u32 s{sWoff2}, s{sWoff}, s{sT1}')
        a(f'v_mov_b32 v{self.vOne}, 1')
        a(f's_lshr_b32 s{sT0}, s{sCB}, 3')
        a(f's_lshl1_add_u32 s{sT0}, s{sRB}, s{sT0}')
        a(f's_lshl2_add_u32 s{sT0}, s{sT0}, s{S_W}')
        a(f's_lshl_b32 s{sT0}, s{sT0}, 12')
        a(f'v_lshl_add_u32 v{self.vPS}, v0, 3, s{sT0}')

    def clear_pst(self, v2):
        if not self.opt['dstat']:
            return []
        return [f'v_mov_b32 v{v2}, -1', f'v_mov_b32 v{v2 + 1}, -1',
                f's_lshl_b32 s{sU0}, s{sRot}, 9', f's_add_u32 s{sU0}, s{sU0}, {PST}',
                f'buffer_store_dwordx2 {vr(v2, 2)}, v{self.vPS}, {WS}, s{sU0} offen sc1']

    def w_loads(self, n, base, v, so, rows):
        out = []
        for i in range(n):
            srd = S_WU if i & 1 else S_WG
            g = [f'buffer_load_dwordx4 {ar(base + 4 * i, 4)}, v{v}, {sr(srd, 4)}, s{so} offen']
            if i & 1 and i != n - 1:
                g += [f's_add_u32 s{so}, s{so}, {rows * 3072}', f's_sub_u32 s{sU1}, s{so}, {640 * 3072}',
                      f's_cselect_b32 s{so}, s{so}, s{sU1}']
            out.append(g)
        return out

    def w_loads_main(self):
        return self.w_loads(40, 0, self.vWL, sWoff, 32)

    def w_loads_tail(self):
        return self.w_loads(20, 160, self.vWL2, sWoff2, 64)

    def w_write_addr(self, tail):
        a = self.a
        t, t2 = self.vTmp, self.vTmp2
        a(f's_lshl_b32 s{sT0}, s{S_W}, {10 if tail else 9}')
        a(f'v_lshrrev_b32 v{t}, {2 if tail else 3}, v0')
        a(f'v_lshl_add_u32 v{t}, v{t}, 6, s{sT0}')
        a(f'v_and_b32 v{t2}, 1, v0')
        a(f'v_lshl_add_u32 v{t}, v{t2}, 4, v{t}')
        a(f'v_bfe_u32 v{t2}, v0, 1, {1 if tail else 2}')
        a(f'v_lshlrev_b32 v{self.vWW}, 5, v{t2}')
        a(f'v_xor_b32 v{t}, v{t}, v{self.vWW}')
        a(f's_mov_b32 s{sT0}, {TILE}')
        a(f'v_mad_u32_u24 v{self.vWW}, v{t2}, s{sT0}, v{t}')
        a(f'v_xor_b32 v{self.vWW2}, 32, v{self.vWW}')

    def w_writes_main(self):
        return [f'ds_write_b128 v{self.vWW2 if i & 1 else self.vWW}, {ar(4 * i, 4)} offset:{(i >> 1) * 2048}'
                for i in range(40)]

    def w_writes_tail(self):
        return [f'ds_write_b128 v{self.vWW2 if i & 1 else self.vWW}, {ar(160 + 4 * i, 4)} offset:{(i >> 1) * 4096}'
                for i in range(20)]

    def conv(self):
        a = self.a
        o = self.opt
        vK, vKh, vC, vR, vSHa, vL16 = 1, 2, 3, 4, 5, 6
        SH = 8
        KR = 16
        VR = 38
        SK = 56
        WF = 88
        KF = 104
        KV = 148
        VF = 180
        O = 188
        vSW, vSR, vKS, vG, vUL, vUW, vBa, vAa, vI7, vGZ, vXS, vHS, vZR, vZR2, vFl, vPrev = range(204, 220)
        ZERO, AD = 220, 224
        a(f's_lshl4_add_u32 s{sQ}, s{sG}, s{sM}')
        a(f'v_and_b32 v{vC}, 15, v0')
        a(f'v_lshrrev_b32 v{vR}, 4, v0')
        a(f's_lshl2_add_u32 s{sT0}, s{sM}, s{S_W}')
        a(f's_mul_i32 s{sT0}, s{sT0}, {32 * 1280}')
        a(f's_lshl_b32 s{sT1}, s{sG}, 7')
        a(f's_add_u32 s{sT0}, s{sT0}, s{sT1}')
        a(f's_movk_i32 s{sT2}, {8 * 1280}')
        a(f'v_lshl_add_u32 v{vK}, v{vC}, 3, s{sT0}')
        a(f'v_mad_u32_u24 v{vK}, v{vR}, s{sT2}, v{vK}')
        a(f'v_subrev_u32 v{vKh}, 3840, v{vK}')
        a(f's_lshl_b32 s{sT1}, s{sG}, 9')
        a(f'v_lshl_add_u32 v{vSHa}, v{vC}, 5, s{sT1}')
        a(f's_movk_i32 s{sT3}, 5120')
        a(f's_lshl2_add_u32 s{sT4}, s2, s{S_W}')
        a(f'v_lshlrev_b32 v{vL16}, 4, v0')

        def addr_phase_a():
            a(f'v_subrev_u32 v{vPrev}, 16, v{vL16}')
            a(f's_mul_i32 s{sT0}, s{S_W}, {USTR}')
            a(f's_add_u32 s{sT0}, s{sT0}, {UBASE}')
            a(f's_movk_i32 s{sT1}, 272')
            a(f'v_lshl_add_u32 v{vSW}, v{vR}, 4, s{sT0}')
            a(f'v_mad_u32_u24 v{vSW}, v{vC}, s{sT1}, v{vSW}')
            a(f'v_lshl_add_u32 v{vSR}, v{vC}, 4, s{sT0}')
            a(f'v_mad_u32_u24 v{vSR}, v{vR}, s{sT1}, v{vSR}')
            a(f'v_add_u32 v{vUW}, s{sT0}, v{vL16}')
            a(f's_add_u32 s{sT0}, s{sT0}, 32')
            a(f'v_lshl_add_u32 v{vBa}, v{vC}, 5, s{sT0}')
            a(f'v_lshl_add_u32 v{vBa}, v{vR}, 4, v{vBa}')
            a(f's_mul_i32 s{sT0}, s{sG}, {16 * QS}')
            a(f's_lshl2_add_u32 s{sT1}, s{sM}, s{S_W}')
            a(f's_lshl_b32 s{sT1}, s{sT1}, 8')
            a(f's_add_u32 s{sT0}, s{sT0}, s{sT1}')
            a(f's_mov_b32 s{sT1}, {QS}')
            a(f'v_lshl_add_u32 v{vKS}, v{vC}, 4, s{sT0}')
            a(f'v_mad_u32_u24 v{vKS}, v{vR}, s{sT1}, v{vKS}')

        def addr_rest():
            self.gemm_ids()
            self.w_addr()
            a(f's_mul_i32 s{sT5}, s{S_W}, {GW}')
            a(f'v_add_u32 v{vG}, s{sT5}, v{vL16}')
            a(f'v_bfe_u32 v{vAa}, v0, 3, 1')
            a(f'v_sub_u32 v{vAa}, v{vAa}, v{vR}')
            a(f's_add_u32 s{sT0}, s{sT5}, 48')
            a(f'v_lshl_add_u32 v{vAa}, v{vAa}, 4, s{sT0}')
            a(f'v_and_b32 v{vI7}, 7, v0')
            a(f's_movk_i32 s{sT1}, {GSTR}')
            a(f'v_mad_u32_u24 v{vAa}, v{vI7}, s{sT1}, v{vAa}')
            a(f'v_mov_b32 v{vGZ}, s{sT5}')
            a(f'v_mad_u32_u24 v{vGZ}, v{vI7}, s{sT1}, v{vGZ}')
            a(f's_mul_i32 s{sT6}, s{sQ}, {QS}')
            a(f's_lshl_b32 s{sT1}, s{S_W}, 6')
            a(f's_add_u32 s{sT0}, s{sT6}, s{sT1}')
            a(f'v_and_b32 v{vUL}, 3, v0')
            a(f'v_lshl_add_u32 v{vUL}, v{vUL}, 4, s{sT0}')
            a(f'v_lshrrev_b32 v{vXS}, 2, v0')
            a(f'v_lshl_add_u32 v{vUL}, v{vXS}, 8, v{vUL}')
            a(f's_lshl_b32 s{sT0}, s{S_W}, 12')
            a(f'v_lshl_add_u32 v{vXS}, v{vC}, 7, s{sT0}')
            a(f'v_lshl_add_u32 v{vXS}, v{vR}, 5, v{vXS}')
            a(f's_add_u32 s{sT0}, s{sT0}, s{sT6}')
            a(f'v_add_u32 v{vHS}, s{sT0}, v{vL16}')
            a(f's_lshl_b32 s{sT0}, s{S_W}, 11')
            a(f'v_add_u32 v{vZR}, s{sT0}, v{vL16}')
            a(f'v_add_u32 v{vZR2}, {2 * GW}, v{vZR}')
            for i in range(4):
                a(f'v_mov_b32 v{ZERO + i}, 0')
        if o.get('addr_early', 1):
            addr_phase_a()
            addr_rest()
        a.need(sr(S_WS, 2))
        self.stamp('karg')
        linit = a.label('noinit')
        a(f's_cmp_lg_u32 s{sT4}, 3')
        a(f's_cbranch_scc1 {linit}')
        with a.untracked():
            a('v_lshlrev_b32 v200, 8, v0')
            a('v_mov_b32 v7, 0')
            for i in range(3):
                a(f's_mov_b32 s{sU0}, {i * 16384}')
                a(f'buffer_store_dword v7, v200, {WS}, s{sU0} offen sc1')
        a(f'{linit}:')
        a(f'buffer_load_dwordx4 {vr(SH, 4)}, v{vSHa}, {sr(S_SH, 4)}, 0 offen')
        a(f'buffer_load_dwordx4 {vr(SH + 4, 4)}, v{vSHa}, {sr(S_SH, 4)}, 0 offen offset:16')
        for r in range(3):
            a(f'buffer_load_dwordx2 {vr(KR + 2 * r, 2)}, v{vKh}, {sr(S_K, 4)}, 0 offen offset:{r * 1280}')
        for r in range(8):
            so = f's{sT3}' if r >= 4 else '0'
            a(f'buffer_load_dwordx2 {vr(KR + 6 + 2 * r, 2)}, v{vK}, {sr(S_K, 4)}, {so} offen offset:{(r & 3) * 1280}')
            a(f'buffer_load_dwordx2 {vr(VR + 2 * r, 2)}, v{vK}, {sr(S_V, 4)}, {so} offen offset:{(r & 3) * 1280}')
        self.stamp('issued')
        if not o.get('addr_early', 1):
            addr_phase_a()
            addr_rest()
        a(f's_lshl2_add_u32 s{sT0}, s{sQ}, s{S_W}')
        a(f's_lshl_b32 s{sT1}, s{sT0}, 12')
        a(f's_add_u32 s{S_SK}, s{S_SK}, s{sT1}')
        a(f's_addc_u32 s{S_SK + 1}, s{S_SK + 1}, 0')
        a(f's_lshl_b32 s{sT0}, s{sT0}, 1')
        a(f's_and_b32 s{sT0}, s{sT0}, -4')
        a(f's_load_dword s{sDv}, {sr(S_D, 2)}, s{sT0}')
        ssm = []
        for j in range(4):
            if j == 0:
                ssm.append(f'buffer_load_dwordx4 {vr(SK, 4)}, v{vPrev}, {sr(S_SK, 4)}, 0 offen')
            else:
                ssm.append(f'buffer_load_dwordx4 {vr(SK + 8 * j, 4)}, v{vL16}, {sr(S_SK, 4)}, 0 offen offset:{1024 * j - 16}')
            ssm.append(f'buffer_load_dwordx4 {vr(SK + 8 * j + 4, 4)}, v{vL16}, {sr(S_SK, 4)}, 0 offen offset:{1024 * j}')
        linit = a.label('noinit')
        a(f's_cmp_lg_u32 s{sT4}, 3')
        a(f's_cbranch_scc1 {linit}')
        with a.untracked():
            a('s_waitcnt vmcnt(21)')
            a('s_mov_b64 exec, 1')
            a(f'buffer_store_dword v{self.vOne}, off, {sr(S_DBG, 4)}, 0 sc1')
            a('s_mov_b64 exec, -1')
        a(f'{linit}:')
        wl = self.w_loads_main()

        def w_some(n):
            for _ in range(n):
                a(wl.pop(0))
        a(f's_mov_b32 s{sT2}, 0xffff0000')
        for ch in range(4):
            for j in range(4):
                src = SH + 2 * ch + (j >> 1)
                if j & 1:
                    a(f'v_and_b32 v{WF + 4 * j + ch}, s{sT2}, v{src}')
                else:
                    a(f'v_lshlrev_b32 v{WF + 4 * j + ch}, 16, v{src}')

        def unpack(dst, src):
            a(f'v_lshlrev_b32 v{dst}, 16, v{src}')
            a(f'v_and_b32 v{dst + 1}, s{sT2}, v{src}')
            a(f'v_lshlrev_b32 v{dst + 2}, 16, v{src + 1}')
            a(f'v_and_b32 v{dst + 3}, s{sT2}, v{src + 1}')
        for r in range(3):
            unpack(KF + 4 * r, KR + 2 * r)
        self.stamp(1)
        for r in range(8):
            unpack(KF + 4 * (r + 3), KR + 2 * (r + 3))
            vf = VF + 4 * (r & 1)
            for j in (3, 2, 1, 0):
                for p in range(2):
                    d = vr(KV + 4 * r + 2 * p, 2)
                    k = vr(KF + 4 * (r + 3 - j) + 2 * p, 2)
                    w = vr(WF + 4 * j + 2 * p, 2)
                    if j == 3:
                        a(f'v_pk_mul_f32 {d}, {k}, {w}')
                    else:
                        a(f'v_pk_fma_f32 {d}, {k}, {w}, {d}')
                if j == 3:
                    unpack(vf, VR + 2 * r)
            for p in range(2):
                d = vr(KV + 4 * r + 2 * p, 2)
                a(f'v_pk_mul_f32 {d}, {d}, {vr(vf + 2 * p, 2)}')
            a(ssm.pop(0))
            if r & 1:
                d = (7 - r) >> 1
                for ch in range(4):
                    a(f'v_cvt_pk_bf16_f32 v{O + 4 * ch + d}, v{KV + 4 * r + ch}, v{KV + 4 * (r - 1) + ch}')
        self.stamp('kvdone')
        for ch in range(4):
            a(f'ds_write_b128 v{vSW}, {vr(O + 4 * ch, 4)} offset:{ch * 64}')
        for j in range(4):
            a(f'ds_read_b128 {vr(KV + 4 * j, 4)}, v{vSR} offset:{j * 1088}')
        a(f'buffer_load_dword v{vFl}, off, {sr(S_DBG, 4)}, 0 sc1')
        a(f's_mov_b32 s{sT0}, {KVX}')
        for j in range(4):
            a(f'buffer_store_dwordx4 {vr(KV + 4 * j, 4)}, v{vKS}, {WS}, s{sT0} offen sc1')
            if j < 3:
                a(f's_add_u32 s{sT0}, s{sT0}, {4 * QS}')
        self.stamp(2)
        a(f'ds_write_b128 v{vUW}, {vr(ZERO, 4)}')
        a(f'ds_write_b128 v{vGZ}, {vr(ZERO, 4)}')

        def table(j):
            D = SK + 8 * j
            Ea, Eb, Db = 128 + 20 * (j & 1), 128 + 20 * (j & 1) + 8, 128 + 20 * (j & 1) + 14

            def wr(rho, reg):
                a(f'ds_write_b128 v{vG}, {vr(reg, 4)} offset:{rho * GSTR + 1024 * j + 16}')
            wr(7, D + 4)
            wr(3, D + 2)
            for i in range(3):
                a(f'v_pk_mov_b32 {vr(Db + 2 * i, 2)}, {vr(D + 2 * i, 2)}, {vr(D + 2 * i + 2, 2)} op_sel:[1,0]')
            for i in range(7):
                a(f'v_alignbit_b32 v{Ea + i}, v{D + i + 1}, v{D + i}, 16')
            wr(1, Db)
            wr(5, Db + 2)
            for i in range(3):
                a(f'v_pk_mov_b32 {vr(Eb + 2 * i, 2)}, {vr(Ea + 2 * i, 2)}, {vr(Ea + 2 * i + 2, 2)} op_sel:[1,0]')
            wr(0, Ea)
            wr(4, Ea + 2)
            wr(2, Eb)
            wr(6, Eb + 2)
        w_some(o['w_kv'])
        n1, n2 = o['tb_pre'], o['tb_pre'] + o['tb_mid']
        for j in range(n1):
            table(j)
        self.stamp('tbpre')
        a.drain_stores()
        self.stamp('drained')
        a('s_barrier')
        self.stamp(3)
        a(f's_lshl_b32 s{sT0}, s{sG}, 8')
        with self.wave0():
            self.check(S_DBG, '0', 1, vFl)
            a(f'buffer_atomic_add v{self.vOne}, off, {WS}, s{sT0} sc1')
        w_some(o['w_e1'])
        for j in range(n1, n2):
            table(j)
        a.need(f's{sDv}')
        a(f's_and_b32 s{sT1}, s{S_W}, 1')
        a(f's_lshl_b32 s{sT1}, s{sT1}, 4')
        a(f's_lshr_b32 s{sDv}, s{sDv}, s{sT1}')
        a(f's_and_b32 s{sDv}, s{sDv}, 0xffff')
        a(f'v_sub_u32 v5, 7, v{vI7}')
        a(f'v_and_b32 v7, 1, v5')
        a(f'v_lshlrev_b32 v7, 4, v7')
        a(f'v_lshlrev_b32 v7, v7, s{sDv}')
        a(f'v_bfe_u32 v8, v0, 3, 1')
        a(f'v_add_u32 v8, 2, v8')
        a(f'v_cmp_eq_u32 vcc, v8, v{vR}')
        a(f'v_cndmask_b32 v7, 0, v7, vcc')
        a(f'v_lshrrev_b32 v5, 1, v5')
        for d in range(4):
            a(f'v_cmp_eq_u32 vcc, {d}, v5')
            a(f'v_cndmask_b32 v{AD + d}, 0, v7, vcc')
        ACC = 8
        BUF = (40, 104)
        XR, SR = 168, 184

        def rdA(it, t):
            return f'ds_read_b128 {vr(BUF[it & 1] + 4 * t, 4)}, v{vAa} offset:{64 * it + 512 * t}'

        def rdB(it, t):
            return f'ds_read_b128 {vr(BUF[it & 1] + 32 + 4 * t, 4)}, v{vBa} offset:{448 - 64 * it + 512 * t}'
        self.stamp('tbpost')
        self.warm([[1], [2], [0]])
        with self.wave0():
            self.spin(S_WS, f's{sT0}', 16, vFl)
        a('s_barrier')
        self.stamp(4)
        a(f's_mov_b32 s{sT0}, {KVX}')
        for j in range(4):
            a(f'buffer_load_dwordx4 {vr(BUF[1] + 4 * j, 4)}, v{vUL}, {WS}, s{sT0} offen sc1')
            if j < 3:
                a(f's_add_u32 s{sT0}, s{sT0}, 4096')
        w_some(o['w_u'])
        for j in range(n2, 4):
            table(j)
        for t in range(8):
            a(rdA(0, t))
        a(f's_lshl_b32 s{sT3}, s{sX}, 8')
        a(f's_add_u32 s{sT3}, s{sT3}, {C_FXR * 256}')
        a(f's_mov_b32 s{sT4}, {ST1}')
        a(f's_add_u32 s{sT6}, s{sT6}, {XP4}')
        for j in range(4):
            a(f'ds_write_b128 v{vUW}, {vr(BUF[1] + 4 * j, 4)} offset:{512 + 1024 * j}')
            if j == 0:
                self.stamp('uload')
            a(rdB(0, 2 * j))
            a(rdB(0, 2 * j + 1))
        self.stamp(5)
        fx = o['fx_it']
        for it in range(8):
            A, B = BUF[it & 1], BUF[it & 1] + 32
            mf = []
            if it == 0:
                for tp in range(8):
                    mf.append(f'v_mfma_f32_16x16x32_bf16 {vr(ACC + 4 * tp, 4)}, {vr(AD, 4)}, {vr(B + 4 * tp, 4)}, 0')
            for tp in range(8):
                for t in range(8 - tp):
                    c = vr(ACC + 4 * (t + tp), 4)
                    mf.append(f'v_mfma_f32_16x16x32_bf16 {c}, {vr(A + 4 * t, 4)}, {vr(B + 4 * tp, 4)}, {c}')
            fill = [[] for _ in mf]
            if it < 7:
                rd = [rdB(it + 1, 0)] + [rdA(it + 1, t) for t in range(8)] + [rdB(it + 1, t) for t in range(1, 8)]
                base = 8 if it == 0 else 0
                for i, x in enumerate(rd):
                    fill[base + 2 * i].append(x)
                if it != fx + 2:
                    left = len([z for z in range(it, 7) if z != fx + 2])
                    n = (len(wl) + left - 1) // left
                    for i in range(n):
                        g = wl.pop(0)
                        p = base + 1 + 2 * ((i * 16) // n)
                        fill[p].append(g[0])
                        fill[p + 1] += g[1:2]
                        fill[p + 2] += g[2:]
            if it == 0:
                for i, x in enumerate(self.clear_pst(200)):
                    fill[i].append(x)
            if it == fx:
                fill[34].append(f'buffer_load_dword v{vFl}, off, {WS}, s{sT3} sc1')
            if it == 7:
                ops = []
                for T in range(2):
                    for row in range(4):
                        src = XR + 8 * T + 2 * row
                        xf = BUF[0] + 16 * T + 4 * row
                        st = SR + 8 * T + 2 * row
                        ops += [f'v_lshlrev_b32 v{xf}, 16, v{src}', f'v_and_b32 v{xf + 1}, s{sT2}, v{src}',
                                f'v_lshlrev_b32 v{xf + 2}, 16, v{src + 1}', f'v_and_b32 v{xf + 3}, s{sT2}, v{src + 1}']
                        ops += [f'v_fma_f32 v{xf + 32 + c}, v{xf + c}, v{st}, v{st + 1}' for c in range(4)]
                for i, x in enumerate(ops):
                    fill[2 + i // 2].append(x)
            if it == fx + 1:
                fill[35].append(lambda: self.check(S_WS, f's{sT3}', 1, vFl))
            if it == fx + 2:
                k = 0
                for T in range(2):
                    for p in range(2):
                        off = 2048 * T + 16 * p
                        fill[4 * k + 1].append(f'buffer_load_dwordx4 {vr(XR + 8 * T + 4 * p, 4)}, v{vXS}, {WS}, s{sT6} offen offset:{off} sc1')
                        fill[4 * k + 3].append(f'buffer_load_dwordx4 {vr(SR + 8 * T + 4 * p, 4)}, v{vXS}, {WS}, s{sT4} offen offset:{off} sc1')
                        k += 1
            if it > 0:
                a.need(vr(BUF[it & 1], 56))
            for m, f in zip(mf, fill):
                a(m)
                a(f)
        assert not wl
        self.stamp(6)
        for T in range(8):
            a(f'ds_write_b128 v{vG}, {vr(ACC + 4 * T, 4)} offset:{1024 * T}')
        a('s_waitcnt lgkmcnt(0)')
        a('s_barrier')
        self.stamp('zbar')
        Z = BUF[1]
        for T in range(2):
            for ch in range(4):
                a(f'ds_read_b128 {vr(Z + 16 * T + 4 * ch, 4)}, v{vZR2 if ch & 2 else vZR} offset:{(ch & 1) * GW + 1024 * T}')
        a(f's_mov_b32 s{sT0}, {HP4}')
        XF, QF, HO = BUF[0], BUF[0] + 32, ACC
        for T in range(2):
            for p in range(2):
                for b in range(2):
                    row = 2 * p + b
                    for c in range(4):
                        x = XF + 16 * T + 4 * row + c
                        a(f'v_fmac_f32 v{x}, v{x + 32}, v{Z + 16 * T + 4 * c + row}')
                    for c2 in range(2):
                        x = XF + 16 * T + 4 * row + 2 * c2
                        a(f'v_cvt_pk_bf16_f32 v{HO + 8 * T + 4 * p + 2 * b + c2}, v{x}, v{x + 1}')
                a(f'buffer_store_dwordx4 {vr(HO + 8 * T + 4 * p, 4)}, v{vHS}, {WS}, s{sT0} offen offset:{2048 * T + 1024 * p} sc1')
        self.stamp(7)
        self.w_write_addr(False)
        a('s_barrier')
        self.stamp('hbar')
        wt = self.w_loads_tail()
        ww = self.w_writes_main()
        for i in range(o.get('ww_pre', 16)):
            if i < o['w45_pre']:
                a(wt.pop(0))
            a(ww.pop(0))
        self.stamp('hissued')
        a.drain_stores()
        self.stamp('hdrained')
        a('s_barrier')
        self.stamp('hbar2')
        self.arrive_e2()
        self.stamp('arrived')
        while ww or wt:
            if wt:
                a(wt.pop(0))
            if ww:
                a(ww.pop(0))
        self.stamp('wwritten')
        a('.Ljoin:')

    def arrive_e2(self):
        a = self.a
        a(f's_lshl_b32 s{sT0}, s{sX}, 8')
        a(f's_add_u32 s{sT0}, s{sT0}, {C_B1 * 256}')
        with self.wave0():
            self.two_level(f's{sT0}', 31, C_B2)

    def side(self):
        a = self.a
        a('.Lside:')
        a.fresh('role')
        vTid = 1
        a(f'v_lshl_add_u32 v{vTid}, s{S_W}, 6, v0')
        a(f's_sub_u32 s{sG}, s{sX}, 2')
        a(f's_lshl4_add_u32 s{sG}, s{sG}, s{sM}')
        a(f's_cmp_ge_u32 s{sG}, 64')
        a.snapshot('s2')
        a('s_cbranch_scc1 .Ls2')
        XR, WR = 16, 56
        vA, vRow, vS8 = 2, 3, 4
        a(f'v_lshrrev_b32 v{vRow}, 3, v{vTid}')
        a(f'v_and_b32 v{vS8}, 7, v0')
        a(f's_mul_i32 s{sT0}, s{sG}, {32 * 1280}')
        a(f's_movk_i32 s{sT1}, 1280')
        a(f'v_lshl_add_u32 v{vA}, v{vS8}, 4, s{sT0}')
        a(f'v_mad_u32_u24 v{vA}, v{vRow}, s{sT1}, v{vA}')
        for j in range(10):
            a(f'buffer_load_dwordx4 {vr(XR + 4 * j, 4)}, v{vA}, {sr(S_X, 4)}, 0 offen offset:{128 * j}')
        self.gemm_ids()
        self.w_addr()
        vW, vRd, vSt = 5, 6, 7
        a(f's_movk_i32 s{sT1}, 528')
        a(f'v_lshlrev_b32 v{vW}, 3, v{vRow}')
        a(f'v_mad_u32_u24 v{vW}, v{vS8}, s{sT1}, v{vW}')
        a(f'v_and_b32 v{vRd}, 31, v0')
        a(f'v_lshlrev_b32 v{vRd}, 4, v{vRd}')
        a(f'v_lshrrev_b32 v8, 5, v{vTid}')
        a(f'v_mad_u32_u24 v{vRd}, v8, s{sT1}, v{vRd}')
        a(f's_lshl_b32 s{sT0}, s{sG}, 8')
        a(f'v_and_b32 v{vSt}, 15, v0')
        a(f'v_lshl_add_u32 v{vSt}, v{vSt}, 4, s{sT0}')
        a(f'v_lshrrev_b32 v8, 4, v{vTid}')
        a(f's_mov_b32 s{sT1}, {QS}')
        a(f'v_mad_u32_u24 v{vSt}, v8, s{sT1}, v{vSt}')
        for j in range(10):
            for o_ in range(2):
                a(f'ds_write_b64 v{vW}, {vr(XR + 4 * j + 2 * o_, 2)} offset:{j * 4224 + o_ * 256}')
        a('s_waitcnt lgkmcnt(0)')
        a('s_barrier')
        XO = 96
        for j in range(10):
            a(f'ds_read_b128 {vr(XO + 4 * j, 4)}, v{vRd} offset:{j * 4224}')
        a(f's_mov_b32 s{sT1}, {XP4}')
        a(f's_mov_b32 s{sOne}, 0x3f803f80')
        for i in range(4):
            a(f'v_mov_b32 v{8 + i}, 0')
        for j in range(10):
            a(f'buffer_store_dwordx4 {vr(XO + 4 * j, 4)}, v{vSt}, {WS}, s{sT1} offen sc1')
            a(f's_add_u32 s{sT1}, s{sT1}, {16 * QS}')
            for i in range(4 * j, 4 * j + 4):
                a(f'v_dot2c_f32_bf16 v{8 + (i & 1)}, s{sOne}, v{XR + i}')
                a(f'v_dot2c_f32_bf16 v{10 + (i & 1)}, v{XR + i}, v{XR + i}')
        a('v_add_f32 v8, v8, v9')
        a('v_add_f32 v10, v10, v11')
        for m in ('quad_perm:[1,0,3,2]', 'quad_perm:[2,3,0,1]', 'row_half_mirror'):
            a(f'v_add_f32_dpp v8, v8, v8 {m} row_mask:0xf bank_mask:0xf')
            a(f'v_add_f32_dpp v10, v10, v10 {m} row_mask:0xf bank_mask:0xf')
        a(f'v_mul_f32 v8, {f32(1 / 640)}, v8')
        a(f'v_mul_f32 v10, {f32(1 / 640)}, v10')
        a('v_fma_f32 v10, -v8, v8, v10')
        a('v_max_f32 v10, 0, v10')
        a(f'v_add_f32 v10, {f32(1e-5)}, v10')
        a('v_rsq_f32 v10, v10')
        a(f'v_lshl_add_u32 v12, v{vRow}, 3, s{sT0}')
        a('v_mul_f32 v11, -v8, v10')
        a(f's_mov_b32 s{sT1}, {ST1}')
        vFl = 13
        a(f'buffer_load_dword v{vFl}, off, {sr(S_DBG, 4)}, 0 sc1')
        a('s_mov_b32 exec_lo, 0x01010101')
        a('s_mov_b32 exec_hi, 0x01010101')
        a(f'buffer_store_dwordx2 v[10:11], v12, {WS}, s{sT1} offen sc1')
        a('s_mov_b64 exec, -1')
        WB = 49152
        a(f's_movk_i32 s{sT1}, 1344')
        a(f'v_lshlrev_b32 v{vW}, 4, v{vS8}')
        a(f'v_mad_u32_u24 v{vW}, v{vRow}, s{sT1}, v{vW}')
        a.drain_stores()
        a('s_barrier')
        a(f's_movk_i32 s{sT0}, {C_FX * 256}')
        with self.wave0():
            self.check(S_DBG, '0', 1, vFl)
            self.two_level(f's{sT0}', 63, C_FXR)
        self.stamp(1)
        ls3 = a.label('nos3')
        a(f's_cmp_ge_u32 s{sG}, 48')
        a(f's_cbranch_scc1 {ls3}')
        with a.untracked():
            for j in range(10):
                a(f'buffer_load_dwordx4 {vr(WR + 4 * j, 4)}, v{vA}, {sr(S_WD, 4)}, 0 offen offset:{128 * j}')
            a('v_lshrrev_b32 v8, 4, v0')
            a('v_bfe_u32 v9, v0, 2, 2')
            a('v_lshl_add_u32 v8, v8, 3, v9')
            a(f's_mul_i32 s{sT0}, s{S_W}, 320')
            a(f'v_mov_b32 v9, s{sT0}')
            a(f'v_mad_u32_u24 v8, v8, s{sT1}, v9')
            a('v_and_b32 v9, 3, v0')
            a('v_lshl_add_u32 v10, v9, 3, v8')
            a('v_lshl_add_u32 v8, v9, 4, v8')
            for j in range(10):
                a(f's_waitcnt vmcnt({9 - j})')
                a(f'ds_write_b128 v{vW}, {vr(WR + 4 * j, 4)} offset:{WB + 128 * j}')
            a('s_waitcnt lgkmcnt(0)')
            a('s_barrier')
            for cc in range(2):
                for nt in range(5):
                    for e in range(2):
                        off = WB + cc * 160 + e * 4 * 1344 + ((nt >> 1) * 64 + (nt & 1) * 8)
                        a(f'ds_read_b64_tr_b16 {vr(XO + 4 * (5 * cc + nt) + 2 * e, 2)}, v{10 if nt == 4 else 8} offset:{off}')
            a(f's_mul_i32 s{sT0}, s{S_W}, 96')
            a(f's_add_u32 s{sT0}, s{sT0}, s{sG}')
            a(f's_mul_i32 s{sT0}, s{sT0}, 5120')
            a(f's_add_u32 s{sT0}, s{sT0}, {WDF}')
            a('v_lshlrev_b32 v9, 4, v0')
            a('s_waitcnt lgkmcnt(0)')
            for cc in range(2):
                for nt in range(5):
                    if nt == 4:
                        a(f's_add_u32 s{sT0}, s{sT0}, 4096')
                    a(f'buffer_store_dwordx4 {vr(XO + 4 * (5 * cc + nt), 4)}, v9, {WS}, s{sT0} offen offset:{(nt & 3) * 1024} sc1')
                a(f's_add_u32 s{sT0}, s{sT0}, {48 * 5120 - 4096}')
        a(f'{ls3}:')
        self.stamp(2)
        a('s_branch .Lside_w')
        a('.Ls2:')
        a.fresh('s2')
        self.gemm_ids()
        self.w_addr()
        a.need(sr(S_WS, 2))
        a(f's_cmp_ge_u32 s{sG}, 88')
        a('s_cbranch_scc1 .Ls2_done')
        a(f's_sub_u32 s{sT0}, s{sG}, 64')
        a(f's_cmp_ge_u32 s{sT0}, 12')
        a(f's_cselect_b32 s{S_WD}, s{S_WU}, s{S_WG}')
        a(f's_cselect_b32 s{S_WD + 1}, s{S_WU + 1}, s{S_WG + 1}')
        a(f's_cselect_b32 s{sT1}, 12, 0')
        a(f's_sub_u32 s{sT1}, s{sT0}, s{sT1}')
        a(f's_lshl_b32 s{sT1}, s{sT1}, 8')
        a('v_and_b32 v2, 15, v0')
        a(f'v_lshrrev_b32 v3, 4, v{vTid}')
        a(f'v_lshl_add_u32 v4, v2, 4, s{sT1}')
        a(f's_movk_i32 s{sT2}, 3072')
        a(f'v_mad_u32_u24 v4, v3, s{sT2}, v4')
        a(f's_mov_b32 s{sT2}, 0')
        for i in range(8):
            a(f'v_mov_b32 v{16 + i}, 0')
        a(f's_mov_b32 s{sT4}, 0x3f80')
        a(f's_mov_b32 s{sT3}, 0x3f800000')
        LA = 12
        for i in range(40 + LA):
            if i < 40:
                a(f'buffer_load_dwordx4 {vr(32 + 4 * i, 4)}, v4, {sr(S_WD, 4)}, s{sT2} offen')
                a(f's_add_u32 s{sT2}, s{sT2}, {16 * 3072}')
            if i >= LA:
                for d in range(4):
                    a(f'v_dot2c_f32_bf16 v{16 + 2 * d}, s{sT4}, v{32 + 4 * (i - LA) + d}')
                    a(f'v_dot2c_f32_bf16 v{17 + 2 * d}, s{sT3}, v{32 + 4 * (i - LA) + d}')
        a(f'v_lshlrev_b32 v5, 5, v{vTid}')
        a('ds_write_b128 v5, v[16:19]')
        a('ds_write_b128 v5, v[20:23] offset:16')
        a('s_waitcnt lgkmcnt(0)')
        a('s_barrier')
        a(f'v_and_b32 v5, 127, v{vTid}')
        a('v_lshlrev_b32 v6, 2, v5')
        for i in range(16):
            a(f'ds_read_b32 v{32 + i}, v6 offset:{512 * i}')
        for i in range(1, 16):
            a(f'v_add_f32 v32, v32, v{32 + i}')
        a('v_cvt_pk_bf16_f32 v8, v32, v32')
        a('v_lshlrev_b32 v10, 16, v8')
        a('v_sub_f32 v10, v32, v10')
        a('v_cvt_pk_bf16_f32 v9, v10, v10')
        a(f's_lshl_b32 s{sT0}, s{sT0}, 10')
        a(f's_add_u32 s{sT0}, s{sT0}, {CSF}')
        a('v_lshrrev_b32 v6, 5, v5')
        a('v_lshlrev_b32 v6, 8, v6')
        a('v_lshl_add_u32 v6, v2, 4, v6')
        a('v_bfe_u32 v7, v5, 4, 1')
        a('v_lshl_add_u32 v6, v7, 3, v6')
        a(f'buffer_store_dwordx2 v[8:9], v6, {WS}, s{sT0} offen sc1')
        a('.Ls2_done:')
        self.stamp(2)
        with self.wave0():
            self.spin(S_DBG, '0', 1, 13)
        a('.Lside_w:')
        a.fresh()
        a(self.clear_pst(14))
        self.w_write_addr(False)
        a('s_waitcnt vmcnt(0) lgkmcnt(0)')
        a('s_barrier')
        self.stamp(6)
        self.arrive_e2()
        wl = self.w_loads_main() + self.w_loads_tail()
        ww = self.w_writes_main()
        for i in range(60):
            a(wl[i])
            if 16 <= i < 56:
                a(ww[i - 16])
        a('s_waitcnt vmcnt(0)')
        self.stamp(7)
        a('s_branch .Ljoin')

    def signal(self, soff):
        a = self.a
        if self.opt['sig'] == 's':
            a(f's_atomic_add s{sU2}, {sr(S_WS, 2)}, {soff}')
        else:
            a('s_mov_b64 exec, 1')
            a(f'buffer_atomic_add v{self.vOne}, off, {WS}, {soff} sc1')
            a('s_mov_b64 exec, -1')

    def gemms(self):
        a = self.a
        o = self.opt
        t, t2 = self.vTmp, self.vTmp2
        L = 255
        vTR = 224
        vAL, vAS, vWD, vWD2, vCS, vA2, vFl = 228, 229, 230, 231, 242, 243, 247
        vS = 232
        BP = 236
        TM = 244
        ACC = 160
        RING1, CS, RING2 = 124, 148, 240
        sF3s, sF3p, sLam = sQ, sM, S_D
        sRB2w = sG
        a(f'v_lshrrev_b32 v{t}, 5, v0')
        a(f'v_bfe_u32 v{t2}, v0, 2, 2')
        a(f'v_lshl_add_u32 v{t}, v{t}, 3, v{t2}')
        a(f'v_lshlrev_b32 v{t}, 6, v{t}')
        a(f'v_and_b32 v{t2}, 3, v0')
        a(f'v_lshl_add_u32 v{t}, v{t2}, 4, v{t}')
        a(f'v_bfe_u32 v{t2}, v0, 4, 1')
        a(f'v_lshl_add_u32 v{vTR}, v{t2}, 3, v{t}')
        for s in range(1, 4):
            a(f'v_xor_b32 v{t}, {32 * s}, v{vTR}')
            a(f'v_add_u32 v{vTR + s}, {TILE * s}, v{t}')
        a(f's_lshl2_add_u32 s{sT0}, s{sRB}, s{S_W}')
        a(f's_lshl_b32 s{sT1}, s{sT0}, 8')
        a(f'v_and_b32 v{t}, 15, v0')
        a(f'v_lshlrev_b32 v{vA2}, 4, v{t}')
        a(f'v_add_u32 v{t}, s{sT1}, v{vA2}')
        a(f'v_lshrrev_b32 v{t2}, 4, v0')
        a(f's_mov_b32 s{sT1}, {QS}')
        a(f'v_mad_u32_u24 v{vAL}, v{t2}, s{sT1}, v{t}')
        a(f'v_lshl_add_u32 v{vA2}, v{t2}, 9, v{vA2}')
        a(f's_mul_i32 s{sT1}, s{sT0}, 98304')
        a(f'v_lshl_add_u32 v{vAS}, v0, 4, s{sT1}')
        a(f's_lshr_b32 s{sF3s}, s{sT0}, 1')
        a(f's_lshl_b32 s{sF3s}, s{sF3s}, 8')
        a(f's_add_u32 s{sF3s}, s{sF3s}, {C_F3 * 256}')
        a(f's_lshr_b32 s{sT1}, s{sJ}, 3')
        a(f's_lshl2_add_u32 s{sF3p}, s{sX}, s{sT1}')
        a(f's_lshl_b32 s{sRB2w}, s{sF3p}, 1')
        a(f's_lshl_b32 s{sF3p}, s{sF3p}, 8')
        a(f's_add_u32 s{sF3p}, s{sF3p}, {C_F3 * 256}')
        a(f's_and_b32 s{sT0}, s{sJ}, 7')
        a(f's_add_u32 s{sT4}, s{sT0}, s{sT1}')
        a(f's_lshl2_add_u32 s{sT0}, s{sT0}, s{S_W}')
        a(f's_mul_i32 s{sT0}, s{sT0}, {12 * 5120}')
        a(f'v_lshl_add_u32 v{vWD}, v0, 4, s{sT0}')
        a(f'v_add_u32 v{vWD2}, 0x1000, v{vWD}')
        a(f's_mul_i32 s{sT5}, s{S_W}, {12 * 2048}')
        a(f's_add_u32 s{sT5}, s{sT5}, {ACT}')
        for c in range(4):
            a(f's_add_u32 s{sT0}, s{sT4}, {c}') if o['rot'] else a(f's_mov_b32 s{sT0}, {c}')
            a(f's_and_b32 s{sT0}, s{sT0}, 3')
            a(f's_mul_i32 s{sT1}, s{sT0}, 3')
            for pi in range(3):
                a(f's_bitcmp1_b32 s{sT0}, 0')
                a(f's_cselect_b32 s{sT2}, {(pi + 1) % 3}, {pi}')
                a(f's_add_u32 s{sT2}, s{sT2}, s{sT1}')
                a(f's_mul_i32 s{sT3}, s{sT2}, 5120')
                a(f's_add_u32 s{sWDO + 4 * pi + c}, s{sT3}, {WDF}')
                a(f's_lshl_b32 s{sT2}, s{sT2}, 11')
                a(f's_add_u32 s{sACT + 4 * pi + c}, s{sT2}, s{sT5}')
        for i in range(8):
            a(f's_add_u32 s{sT0}, s{sRot}, {i}')
            a(f's_and_b32 s{sT0}, s{sT0}, 7')
            a(f's_mul_i32 s{sT0}, s{sT0}, {20 * QS}')
            a(f's_add_u32 s{sAB + i}, s{sT0}, {HP4}')
        a(f'v_and_b32 v{t}, 3, v0')
        a(f'v_bfe_u32 v{t2}, v0, 2, 1')
        a(f'v_lshl_add_u32 v{t}, v{t2}, 3, v{t}')
        a(f'v_bfe_u32 v{t2}, v0, 4, 1')
        a(f'v_lshl_add_u32 v{t}, v{t2}, 2, v{t}')
        a(f'v_lshlrev_b32 v{t}, 4, v{t}')
        a(f'v_bfe_u32 v{t2}, v0, 3, 1')
        a(f's_movk_i32 s{sT1}, 12288')
        a(f'v_mad_u32_u24 v{vCS}, v{t2}, s{sT1}, v{t}')
        self.w_write_addr(True)
        for i in range(4):
            a(f'v_mov_b32 v{vS + i}, 0')
        for i in (0, 1, 4, 5):
            a(f'v_mov_b32 v{BP + i}, 0')
        a(f's_mov_b32 s{sOne}, 0x3f803f80')
        a(f's_mov_b32 s{sU2}, 1')
        a(f's_lshl_b32 s{sT2}, s{sA}, 7')
        a(f's_add_u32 s{sT2}, s{sT2}, {CSF}')
        a(f's_lshl_b32 s{sT3}, s{sB}, 7')
        a(f's_add_u32 s{sT3}, s{sT3}, {CSF}')
        a(f's_lshl_b32 s{sA}, s{sA}, 10')
        a(f's_add_u32 s{sA}, s{sA}, {ACT}')
        a(f's_lshl_b32 s{sB}, s{sB}, 10')
        a(f's_add_u32 s{sB}, s{sB}, {ACT}')
        sL = [sWoff, sWoff2, sDv, sCB]
        for lam in range(4):
            a(f's_xor_b32 s{sT0}, s{S_W}, {lam}')
            a(f's_lshr_b32 s{sT1}, s{sT0}, 1')
            a(f's_add_u32 s{sT1}, s{sT1}, s{sRB2w}')
            a(f's_mul_i32 s{sT1}, s{sT1}, 98304')
            a(f's_and_b32 s{sT0}, s{sT0}, 1')
            a(f's_lshl_b32 s{sT0}, s{sT0}, 8')
            a(f's_add_u32 s{sL[lam]}, s{sT1}, s{sT0}')
        a(f's_lshl_b32 s{sU0}, s{sRot}, 9')
        a(f's_add_u32 s{sU0}, s{sU0}, {PST}')
        a(f's_mov_b32 s{sU1}, {PST}')
        a(f's_lshl_b32 s{sT0}, s{sX}, 8')
        a(f's_add_u32 s{sT0}, s{sT0}, {C_B2 * 256}')
        a(f'v_mov_b32 v{L}, v0')
        a.need(f'v{vFl}')
        self.warm([[2, 5], [3, 6], [4, 7]])
        with self.wave0():
            self.spin(S_WS, f's{sT0}', 8, t)
        self.stamp('polled')
        a('s_waitcnt lgkmcnt(0)')
        a('s_barrier')
        self.stamp(8)
        al = []
        for j in range(40):
            if j % 5 == 0:
                al.append([f'buffer_load_dwordx4 {vr(4 * j, 4)}, v{vAL}, {WS}, s{sAB + j // 5} offen sc1'])
            else:
                al.append([f's_add_u32 s{sT1}, s{sAB + j // 5}, {(j % 5) * 4 * QS}',
                           f'buffer_load_dwordx4 {vr(4 * j, 4)}, v{vAL}, {WS}, s{sT1} offen sc1'])
        al.append(f'buffer_load_dwordx4 {ar(CS, 4)}, v{vCS}, {WS}, s{sT2} offen sc1')
        al.append(f'buffer_load_dwordx4 {ar(CS + 4, 4)}, v{vCS}, {WS}, s{sT2} offen offset:256 sc1')
        al.append(f'buffer_load_dwordx4 {ar(CS + 8, 4)}, v{vCS}, {WS}, s{sT3} offen sc1')
        for _ in range(o['a_ahead']):
            a(al.pop(0))

        def rd(dst, slot, j):
            return [f'ds_read_b64_tr_b16 {ar(dst + 2 * e, 2)}, v{vTR + slot} offset:{1024 * j + 256 * e}'
                    for e in range(2)]

        def swaps(j):
            return [f'v_permlane16_swap_b32 v{4 * j}, v{4 * j + 2}', f'v_permlane16_swap_b32 v{4 * j + 1}, v{4 * j + 3}']

        def acc(slot):
            return vr(ACC + 16 * slot, 16)
        wd = [f'buffer_load_dwordx4 {ar(4 * i, 4)}, v{vWD2 if i % 5 == 4 else vWD}, {WS}, s{sWDO + i // 5} offen offset:{(i % 5 & 3) * 1024} sc1'
              for i in range(60)]
        if o.get('nowd'):
            wd = [[] for _ in wd]
        wtail = self.w_writes_tail()
        if o.get('nowt'):
            wtail = [[] for _ in wtail]
        C0, C1, R = vS, vS + 1, vS + 2
        c0 = -2.0 * 0.7978845608028654 * 1.4426950408889634
        G = ACC + 48
        gather = [f'buffer_load_dwordx2 {vr(G + 2 * s, 2)}, v{self.vPS}, {WS}, s{sU1} offen offset:{512 * s} sc1'
                  for s in range(8)]
        valid = [f'v_or3_b32 v{t}, v{G + 1}, v{G + 3}, v{G + 5}', f'v_or3_b32 v{t2}, v{G + 7}, v{G + 9}, v{G + 11}',
                 f'v_or3_b32 v{t}, v{t}, v{G + 13}, v{G + 15}', f'v_or_b32 v{t}, v{t}, v{t2}',
                 f'v_cmp_gt_i32 vcc, 0, v{t}']

        def chk_stats():
            slow, back = a.label('slow'), a.label('back')
            a('s_nop 1')
            a(f's_cbranch_vccnz {slow}')
            a(f'{back}:')

            def cold():
                top = a.label('top')
                a(f'{slow}:')
                with a.untracked():
                    a(f's_mov_b32 s{sSpin}, {SPIN}')
                    a(f'{top}:')
                    a(gather)
                    a('s_waitcnt vmcnt(0)')
                    a(valid)
                    a(f's_sub_u32 s{sSpin}, s{sSpin}, 1')
                    a(f's_cbranch_scc1 {back}')
                    a('s_nop 3')
                    a(f's_cbranch_vccnz {top}')
                    a(f's_branch {back}')
            self.cold.append(cold)
        st = []
        if o['dstat']:
            st += valid + [chk_stats]
            for w_ in range(2):
                g = G + w_
                st += [f'v_add_f32 v{g}, v{g}, v{g + 2}', f'v_add_f32 v{g + 4}, v{g + 4}, v{g + 6}',
                       f'v_add_f32 v{g + 8}, v{g + 8}, v{g + 10}', f'v_add_f32 v{g + 12}, v{g + 12}, v{g + 14}',
                       f'v_add_f32 v{vS + 2 * w_}, v{g}, v{g + 4}', f'v_add_f32 v{vS + 2 * w_ + 1}, v{g + 8}, v{g + 12}']
        st += [
            f'v_add_f32 v{vS}, v{vS}, v{vS + 1}',
            f'v_add_f32 v{vS + 2}, v{vS + 2}, v{vS + 3}',
            f'v_mov_b32 v{vS + 1}, v{vS}',
            f'v_mov_b32 v{vS + 3}, v{vS + 2}',
            f'v_cmp_gt_u32 vcc, 32, v{L}',
            f'v_permlane32_swap_b32 v{vS}, v{vS + 1}',
            f'v_permlane32_swap_b32 v{vS + 2}, v{vS + 3}',
            f'v_add_f32 v{vS}, v{vS}, v{vS + 1}',
            f'v_add_f32 v{vS + 2}, v{vS + 2}, v{vS + 3}',
            f'v_mul_f32 v{vS}, {f32(-1 / 640)}, v{vS}',
            f'v_mul_f32 v{vS + 2}, {f32(1 / 640)}, v{vS + 2}',
            f'v_cvt_pk_bf16_f32 v{t}, v{vS}, v{vS}',
            f'v_fma_f32 v{R}, -v{vS}, v{vS}, v{R}',
            f'v_lshlrev_b32 v{t}, 16, v{t}',
            f'v_max_f32 v{R}, 0, v{R}',
            f'v_sub_f32 v{t2}, v{vS}, v{t}',
            f'v_add_f32 v{R}, {f32(1e-5)}, v{R}',
            f'v_cvt_pk_bf16_f32 v{t}, v{t}, v{t2}',
            f'v_rsq_f32 v{vS + 3}, v{R}',
            f'v_cndmask_b32 v{BP + 2}, 0, v{t}, vcc',
            f'v_cndmask_b32 v{BP + 3}, 0, v{t}, vcc',
            f'v_mul_f32 v{C0}, {f32(c0)}, v{vS + 3}',
            f'v_mul_f32 v{t}, v{vS + 3}, v{vS + 3}',
            f'v_mul_f32 v{t}, {f32(0.044715)}, v{t}',
            f'v_mul_f32 v{C1}, v{t}, v{C0}',
        ]

        def csm(tile, slot, first):
            b = vr(BP, 4) if tile & 1 else vr(BP + 2, 4)
            return f'v_mfma_f32_32x32x16_bf16 {acc(slot)}, {ar(CS + 4 * (tile >> 1), 4)}, {b}, {"0" if first else acc(slot)}'

        def dots(r0, r1):
            for r in range(r0, r1):
                a(f'v_dot2c_f32_bf16 v{vS + (r & 1)}, s{sOne}, v{r}')
                a(f'v_dot2c_f32_bf16 v{vS + 2 + (r & 1)}, v{r}, v{r}')
        for j in range(2):
            for s in range(3):
                a(rd(RING1 + 12 * j + 4 * s, s, j))
        a(swaps(0))
        self.stamp('a0')
        p2 = [(3, 3, j) for j in range(40)] + [(4, 0, j) for j in range(40)] + [(5, 1, j) for j in range(40)]
        gq = list(gather) if o['dstat'] else []
        GJ, SJ = o.get('gather_j', 22), o.get('stat_j', 33)
        B1, B2 = 21, 33
        for j in range(40):
            base = RING1 + 12 * (j & 1)
            self.stamp(f'p{j}')
            a.need(ar(base, 12))
            for s in range(3):
                c = '0' if j == 0 else acc(s)
                a(f'v_mfma_f32_32x32x16_bf16 {acc(s)}, {ar(base + 4 * s, 4)}, {vr(4 * j, 4)}, {c}')
                if j < 38:
                    a(rd(base + 4 * s, s, j + 2))
                else:
                    i = (j - 38) * 3 + s
                    if i < 4:
                        a(rd(RING2 + 4 * i, p2[i][1], p2[i][2]))
                if s == 0 and j < 39:
                    a(swaps(j + 1))
                if s == 1 and (B1 < j <= B1 + 10 or B2 < j):
                    a(wtail.pop(0))
                if s == 1 and 6 <= j <= B1 and o['wd_p1'] and j & 1:
                    a(wd.pop(0))
                if s == 0 and j >= GJ and gq:
                    a(gq.pop(0))
                if s == 2:
                    if al:
                        a(al.pop(0))
                    elif j < SJ or not o['dstat']:
                        a(wd.pop(0))
                if o['dstat'] and j >= SJ:
                    for _ in range(2 if s < 2 else 3):
                        if st:
                            a(st.pop(0))
            if j in (B1, B2):
                a('s_barrier')
            if o['dstat'] and j == 3:
                dots(0, 20)
                a(f'v_add_f32 v{TM}, v{vS}, v{vS + 1}')
                a(f'v_add_f32 v{TM + 1}, |v{vS + 2}|, |v{vS + 3}|')
                a(f'v_and_b32 v{TM + 1}, 0x7fffffff, v{TM + 1}')
                a(f'buffer_store_dwordx2 {vr(TM, 2)}, v{self.vPS}, {WS}, s{sU0} offen sc1')
            if not o['dstat'] and j & 7 == 7:
                dots(32 * (j >> 3), 32 * (j >> 3) + 32)
        a(st)
        for tl in range(3):
            a(csm(tl, tl, False))
        self.stamp(9)

        def epi(tile, slot, packed=False):
            b = ACC + 16 * slot
            tm = [TM, TM + 1, t2, t]
            ops = []
            for h in range(2):
                g, u = b + 8 * h, b + 8 * h + 4
                ops += [(1, f'v_mul_f32 v{tm[i]}, v{g + i}, v{g + i}') for i in range(4)]
                ops += [(1, f'v_fma_f32 v{tm[i]}, v{tm[i]}, v{C1}, v{C0}') for i in range(4)]
                ops += [(1, f'v_mul_f32 v{tm[i]}, v{tm[i]}, v{g + i}') for i in range(4)]
                for i in range(4):
                    ops += [(2, f'v_exp_f32 v{tm[i]}, v{tm[i]}'), (1, f'v_mul_f32 v{u + i}, v{u + i}, v{g + i}')]
                ops += [(1, f'v_fma_f32 v{tm[i]}, v{tm[i]}, v{R}, v{R}') for i in range(4)]
                ops += [(2, f'v_rcp_f32 v{tm[i]}, v{tm[i]}') for i in range(4)]
                ops += [(1, f'v_mul_f32 v{u + i}, v{u + i}, v{tm[i]}') for i in range(4)]
                ops += [(1, f'v_cvt_pk_bf16_f32 v{b + 2 * h + i}, v{u + 2 * i}, v{u + 2 * i + 1}') for i in range(2)]
            so = sA if tile < 4 else sB
            txt = f'buffer_store_dwordx4 {vr(b, 4)}, v{vAS}, {WS}, s{so} offen offset:{(tile & 3) * 1024} sc1'
            ops.append((1, (lambda: a(txt, tag=f'act{tile}')) if not o.get('nost') else []))
            if o.get('noepi'):
                ops = [(c_, x if callable(x) else []) for c_, x in ops]
            return ops

        G2 = 64
        FR = [[4 * i for i in range(16)],
              [144 + 4 * i for i in range(4)] + [192 + 4 * i for i in range(8)] + [160 + 4 * i for i in range(4)],
              [4 * i for i in range(16)]]
        order = [[(c, lam) for c in range(4) for lam in range(4)]] * 2 + [[(c, lam) for lam in (3, 2, 1, 0) for c in range(4)]]

        def act_ld(pi, n):
            c, lam = order[pi][n]
            if o.get('noact'):
                return []
            return [f's_add_u32 s{sT1}, s{sACT + 4 * pi + c}, s{sL[lam]}',
                    f'buffer_load_dwordx4 {vr(FR[pi][n], 4)}, v{vA2}, {WS}, s{sT1} offen sc1']

        def sig(pi, tag):
            def f():
                a.need_tag(tag)
                self.signal(f's{sF3s}')
                if pi < 2:
                    a(f's_add_u32 s{sF3s}, s{sF3s}, {32 * 256}')
            return f

        def poll_ld():
            return f'buffer_load_dword v{vFl}, off, {WS}, s{sF3p} sc1'

        def poll_chk(pi):
            def f():
                self.check(S_WS, f's{sF3p}', 32, vFl)
                if pi < 2:
                    a(f's_add_u32 s{sF3p}, s{sF3p}, {32 * 256}')
            return f
        RES, vRes, vRes2 = 192, vAL, vCS
        res_addr = [
            f's_lshr_b32 s{sT2}, s{S_W}, 1',
            f's_add_u32 s{sT2}, s{sT2}, s{sRB2w}',
            f's_lshl_b32 s{sT3}, s{sT2}, 8',
            f's_and_b32 s{sT4}, s{S_W}, 1',
            f's_lshl3_add_u32 s{sT3}, s{sT4}, s{sT3}',
            f's_and_b32 s{sT5}, s{sJ}, 7',
            f's_mul_i32 s{sT6}, s{sT5}, {20 * QS}',
            f's_add_u32 s{sT3}, s{sT3}, s{sT6}',
            f'v_and_b32 v{vRes}, 15, v{L}',
            f'v_lshl_add_u32 v{vRes2}, v{vRes}, 4, s{sT3}',
            f'v_lshrrev_b32 v{vRes}, 4, v{L}',
            f's_mov_b32 s{sT6}, {QS}',
            f'v_mad_u32_u24 v{vRes2}, v{vRes}, s{sT6}, v{vRes2}',
            f'v_mad_u32_u24 v{vRes}, v{vRes}, s{sT6}, v{vRes2}',
        ]
        res_ld = []
        for nt in range(5):
            q = 8 * (nt >> 1) + (nt & 1)
            res_ld.append([f's_mov_b32 s{sT6}, {HP4 + q * QS}',
                           f'buffer_load_dwordx2 {vr(RES + 2 * nt, 2)}, v{vRes2 if nt == 4 else vRes}, {WS}, s{sT6} offen sc1'])
        slot_of = {0: 0, 1: 1, 2: 2, 3: 3, 4: 0, 5: 1}
        eq = epi(0, 0) + epi(1, 1) + epi(2, 2)
        budget = 0.0
        RATE = o['epi_rate']
        extra = {i: [] for i in range(120)}
        extra[1].append('s_barrier')
        for k in range(len(wtail)):
            extra[2 + 3 * k].append(wtail[k])
        extra[30].append('s_barrier')
        nwd = len(wd) - 20
        lo, hi = 14, o.get('wd_hi', 96)
        for k in range(nwd):
            extra[lo + (k * (hi - lo)) // nwd].append(wd.pop(0))
        extra[o.get('siga', 62)].append(sig(0, 'act1'))
        extra[o.get('lda', 86)].append(poll_ld())
        for k, x in enumerate(res_addr):
            extra[84 + k // 2].append(x)
        for k, x in enumerate(res_ld):
            extra[92 + k].append(x)
        extra[o.get('chka', 97)].append(poll_chk(0))
        for n in range(16):
            extra[98 + n].append(act_ld(0, n))
        extra[o.get('sigb', 116)].append(sig(1, 'act3'))
        extra[118].append('s_barrier')
        for i, (tile, ls, j) in enumerate(p2):
            slot = slot_of[tile]
            if j == 0:
                a(csm(tile, slot, True))
            if i & 1 == 0:
                a.need(ar(RING2 + 4 * (i & 3), 8))
            a(f'v_mfma_f32_32x32x16_bf16 {acc(slot)}, {ar(RING2 + 4 * (i & 3), 4)}, {vr(4 * j, 4)}, {acc(slot)}')
            if i + 4 < len(p2):
                a(rd(RING2 + 4 * (i & 3), p2[i + 4][1], p2[i + 4][2]))
            a(extra[i])
            if i == 42:
                eq += epi(3, 3)
            if i == 82:
                eq += epi(4, 0)
            if i >= 1:
                budget += RATE if i < 84 else o.get('epi_rate5', 2.6)
                while eq and budget >= eq[0][0]:
                    cst, x = eq.pop(0)
                    budget -= cst
                    a(x)
                if not eq:
                    budget = 0
                if i == 39:
                    assert len(eq) <= 2 * 69, len(eq)
                if i == o.get('siga', 62) - 1:
                    assert len(eq) <= 2 * 69, len(eq)
                if i == 79:
                    assert len(eq) <= 2 * 69, len(eq)
                if i == 91:
                    assert len(eq) <= 2 * 69, len(eq)
                if i == o.get('sigb', 116) - 1:
                    assert len(eq) <= 69, len(eq)
            if j == 39:
                self.stamp(f't{tile}')
        for cst, x in eq:
            a(x)
        a(f's_mov_b32 s{sT0}, 0xffff0000')
        for i in range(10):
            a(f'v_lshlrev_b32 v{G2 + 2 * i}, 16, v{RES + i}')
            a(f'v_and_b32 v{G2 + 2 * i + 1}, s{sT0}, v{RES + i}')
        for cst, x in epi(5, 1):
            a(x)
        self.stamp(10)

        vOut, vOut2, vRR, vRW = 224, 225, 226, 232
        RED = 2 * TILE
        setup = [
            f's_lshr_b32 s{sT0}, s{sRB2w}, 3',
            f's_lshl_b32 s{sT0}, s{sT0}, 8',
            f's_and_b32 s{sT6}, s{sT2}, 3',
            f's_lshl2_add_u32 s{sT0}, s{sT6}, s{sT0}',
            f's_bfe_u32 s{sT6}, s{sRB2w}, 0x10002',
            f's_lshl1_add_u32 s{sT0}, s{sT6}, s{sT0}',
            f's_add_u32 s{sT0}, s{sT0}, s{sT4}',
            f's_mul_i32 s{sT0}, s{sT0}, 1280',
            f's_mul_i32 s{sT6}, s{sT5}, 160',
            f's_add_u32 s{sT0}, s{sT0}, s{sT6}',
            f's_movk_i32 s{sT6}, {16 * 1280}',
            f'v_and_b32 v{t}, 15, v{L}',
            f'v_lshrrev_b32 v{t2}, 4, v{L}',
            f'v_mov_b32 v{vOut2}, s{sT0}',
            f'v_mad_u32_u24 v{vOut2}, v{t}, s{sT6}, v{vOut2}',
            f'v_lshl_add_u32 v{vOut}, v{t2}, 4, v{vOut2}',
            f'v_lshl_add_u32 v{vOut2}, v{t2}, 3, v{vOut2}',
        ]
        for lam in range(4):
            setup += [f's_xor_b32 s{sT0}, s{S_W}, {lam}', f's_mul_i32 s{sT0}, s{sT0}, {15 * 1024}',
                      f's_add_u32 s{sT0}, s{sT0}, {RED + (lam - 1) * 5120 if lam else RED}',
                      f'v_lshl_add_u32 v{vRW + lam - 1 if lam else vRR}, v{L}, 4, s{sT0}']

        def mf2(pi, n, nt):
            c, lam = order[pi][n]
            d = vr(G2 + 4 * (5 * lam + nt), 4)
            cin = '0' if (pi == 0 and c == 0 and lam != 0) else d
            return f'v_mfma_f32_16x16x32_bf16 {d}, {ar(4 * (5 * (4 * pi + c) + nt), 4)}, {vr(FR[pi][n], 4)}, {cin}'
        ex = [{i: [] for i in range(80)} for _ in range(3)]
        for k, x in enumerate(setup):
            ex[0][k].append(x)
        for k in range(20):
            ex[0][1 + 2 * k].append(wd.pop(0))
        ex[0][o.get('ldb', 24)].insert(0, poll_ld())
        cb_ = o.get('chkb', 42)
        ex[0][cb_] += [poll_chk(1), lambda: self.stamp('chkb')]
        for n in range(16):
            ex[0][cb_ + 1 + 2 * n].append(act_ld(1, n))
        ex[0][o.get('sigc', 41)] += [sig(2, 'act5'), lambda: self.stamp('sigc')]
        ex[1][o.get('ldc', 4)].append(poll_ld())
        cc_ = o.get('chkc', 24)
        ex[1][cc_] += [lambda: self.stamp('chkc0'), poll_chk(2), lambda: self.stamp(11)]
        for n in range(16):
            ex[1][cc_ + 1 + n].append(act_ld(2, n))
        for blk, lam in enumerate((3, 2, 1)):
            for nt in range(5):
                ex[2][20 * (blk + 1) + 5 + 2 * nt].append(
                    f'ds_write_b128 v{vRW + lam - 1}, {vr(G2 + 4 * (5 * lam + nt), 4)} offset:{1024 * nt}')
        for pi in range(3):
            for n in range(16):
                for nt in range(5):
                    a(mf2(pi, n, nt))
                    a(ex[pi][5 * n + nt])
            self.stamp('end' + 'ABC'[pi])
        a('s_waitcnt lgkmcnt(0)')
        a('s_barrier')
        self.stamp('redbar')
        RD, RR = 144, 0
        for nt in range(5):
            for s in range(3):
                a(f'ds_read_b128 {vr(RD + 12 * nt + 4 * s, 4)}, v{vRR} offset:{5120 * s + 1024 * nt}')
        sc = ' sc1' if o['out_sc1'] else ''
        for nt in range(5):
            b = RD + 12 * nt
            c = G2 + 4 * nt
            for p in range(2):
                a(f'v_pk_add_f32 {vr(c + 2 * p, 2)}, {vr(c + 2 * p, 2)}, {vr(b + 2 * p, 2)}')
                a(f'v_pk_add_f32 {vr(b + 4 + 2 * p, 2)}, {vr(b + 4 + 2 * p, 2)}, {vr(b + 8 + 2 * p, 2)}')
            for p in range(2):
                a(f'v_pk_add_f32 {vr(c + 2 * p, 2)}, {vr(c + 2 * p, 2)}, {vr(b + 4 + 2 * p, 2)}')
            for p in range(2):
                a(f'v_cvt_pk_bf16_f32 v{RR + 2 * nt + p}, v{c + 2 * p}, v{c + 2 * p + 1}')
            if nt & 1:
                a(f'buffer_store_dwordx4 {vr(RR + 2 * nt - 2, 4)}, v{vOut}, {sr(S_OUT, 4)}, 0 offen offset:{64 * (nt >> 1)}{sc}')
            if nt == 4:
                a(f'buffer_store_dwordx2 {vr(RR + 8, 2)}, v{vOut2}, {sr(S_OUT, 4)}, 0 offen offset:128{sc}')
        if self.diag:
            self.stamp('outst')
            a('s_waitcnt vmcnt(0)')
            self.stamp(12)
            a('s_waitcnt lgkmcnt(0)')
            with self.wave0():
                a(f's_lshl_b32 s{sT0}, s2, 7')
                a(f's_add_u32 s{sT0}, s{sT0}, {STAMP}')
                for i in range(NSTAMP):
                    a(f'v_mov_b32 v0, s{S_STAMP + 2 * i}')
                    a(f'buffer_store_dword v0, off, {WS}, s{sT0} offset:{4 * i}')
        if self.opt.get('fixt'):
            with a.untracked():
                a(f's_cmp_lg_u32 s2, {self.opt.get("fixwg", 0)}')
                a('s_cbranch_scc1 .Lend')
                a(f's_cmp_lg_u32 s{S_W}, 0')
                a('s_cbranch_scc1 .Lend')
                a(f's_sub_u32 s{sT2}, s{S_STAMP + 2 * self.opt.get("fixs", 0)}, s{S_STAMP}')
                a(f's_lshl_b32 s{sT2}, s{sT2}, 2')
                a(f's_min_u32 s{sT2}, s{sT2}, 100000')
                a(f's_add_u32 s{sT2}, s{sT2}, {self.opt["fixt"]}')
                a('.Lfix:')
                a(f's_memrealtime {sr(sT0, 2)}')
                a('s_waitcnt lgkmcnt(0)')
                a(f's_sub_u32 s{sT0}, s{sT0}, s{S_STAMP}')
                a(f's_cmp_lt_u32 s{sT0}, s{sT2}')
                a('s_cbranch_scc1 .Lfix')
        a('.Lend:')
        a('s_endpgm')

    def build(self):
        a = self.a
        if self.diag:
            for i in range(2 * NSTAMP):
                a(f's_mov_b32 s{S_STAMP + i}, 0')
        self.prologue()
        self.conv()
        self.gemms()
        self.side()
        for c in self.cold:
            a.fresh()
            a('s_nop 7')
            c()
        a('.Lcode_end:')
        a('s_endpgm')
        pads = (self.opt.get('base', 0x300), NPAD, sr(sRet, 2), '.Lend', self.opt.get('pstride', 4096)) if self.opt['pads'] else None
        body = a.finish(verbose=True, align=self.opt.get('align', 1), pads=pads)
        body += '.p2align 12\n    s_endpgm\n'
        ref = open('cdna_kernels/' + NAME + '.s.ref').read().split('\n')
        head = [l for l in ref if l.startswith(';') and '@launch' not in l and 'Override' not in l and 'grid=ceil' not in l]
        txt = '\n'.join(head) + '\n'
        txt += '; One persistent launch: kv/transposition -> Toeplitz-MFMA long conv -> gate/up GEMM + GEGLU -> down GEMM.\n'
        txt += '; @launch grid=(256,1,1) block=(256,1,1) lds=163840\n'
        txt += f'''.amdgcn_target "amdgcn-amd-amdhsa--gfx950"
.text
.globl {NAME}_kernel
.p2align 8
.type {NAME}_kernel,@function
{NAME}_kernel:
{body}.section .rodata,"a"
.p2align 6
.amdhsa_kernel {NAME}_kernel
  .amdhsa_next_free_vgpr 512
  .amdhsa_next_free_sgpr 102
  .amdhsa_accum_offset 256
  .amdhsa_group_segment_fixed_size 0
  .amdhsa_kernarg_size 104
  .amdhsa_user_sgpr_count 2
  .amdhsa_user_sgpr_kernarg_segment_ptr 1
  .amdhsa_system_sgpr_workgroup_id_x 1
  .amdhsa_float_denorm_mode_32 3
.end_amdhsa_kernel
'''
        return txt


if __name__ == '__main__':
    out = sys.argv[1]
    diag = 'diag' in sys.argv[2:]
    opt = {}
    for x in sys.argv[2:]:
        if '=' in x:
            k, v = x.split('=')
            try:
                v = int(v)
            except ValueError:
                try:
                    v = float(v)
                except ValueError:
                    pass
            opt[k] = v
    open(out, 'w').write(Gen(diag, opt).build())
```

```python
import struct
import sys
from asmlib import Asm, vr, ar, sr

NAME = 'sequential_preLN__ssm_conv_h3__geglu_ffn__prompt'

QS = 16384
CNT = 0
ST1 = 49152
CSF = 65536
STAMP = 98304
PST = 131072
KVX = PST + 524288
XP4 = KVX + 160 * QS
HP4 = XP4 + 160 * QS
WDF = HP4 + 160 * QS
ACT = WDF + 1966080
WS_END = ACT + 6291456
C_F1, C_FX, C_FXR, C_B1, C_B2, C_F3 = 0, 10, 16, 24, 32, 40
SPIN = 100000

S_W = 3
S_K, S_V, S_SH, S_SK, S_X, S_WG, S_WU, S_WD, S_OUT, S_DBG, S_WS = 4, 8, 12, 16, 20, 24, 28, 32, 36, 40, 44
S_D = 48
sX, sJ, sG, sM, sQ, sRB, sCB, sA, sB, sRot = 50, 51, 52, 53, 54, 55, 56, 57, 58, 59
sT0, sT1, sT2, sT3, sT4, sT5, sT6, sT7 = 60, 61, 62, 63, 64, 65, 66, 67
sWoff, sWoff2, sSpin, sDv = 68, 69, 70, 71
sOne, sU0, sU1, sU2 = 72, 73, 74, 75
sRet = 48
NPAD = 8
S_STAMP = 76
NSTAMP = 13
sAB = 4
sACT = 12
sWDO = 24

GSTR = 4160
GW = 8 * GSTR
UBASE = 4 * GW
USTR = 4608
TILE = 40960
WS = sr(S_WS, 4)


def f32(x):
    return '0x%08x' % struct.unpack('<I', struct.pack('<f', x))[0]


class Gen:
    def __init__(self, diag=False, opt=None):
        self.a = Asm()
        self.diag = diag
        self.opt = dict(map1='4x8', rot=1, w_kv=0, w_e1=0, w_u=6, tb_pre=2, tb_mid=2, w45_pre=8, a_ahead=12,
                        sig='v', epi_rate=4.1, fx_it=3, out_sc1=1, wd_p1=1, dstat=1, pads=1)
        if opt:
            self.opt.update(opt)
        self.cold = []

    PROF = {
        'main': [0, 1, 2, 3, 4, 5, 6, 7, 8, 9, 10, 11, 12],
        'front': [0, 'karg', 'issued', 1, 'kvdone', 2, 'tbpre', 'drained', 3, 'tbpost', 4, 'uload', 5],
        'e2': [0, 6, 'zbar', 7, 'hbar', 'hissued', 'hdrained', 'hbar2', 'arrived', 'wwritten', 'polled', 8, 'a0'],
        'g1': [0, 8, 'a0', 'p8', 'p16', 'p24', 'p32', 9, 't3', 't4', 't5', 10, 12],
        'g2': [0, 't5', 10, 'chkb', 'sigc', 'endA', 'chkc0', 11, 'endB', 'endC', 'redbar', 'outst', 12],
    }

    def stamp(self, i):
        prof = self.PROF[self.opt.get('prof', 'main')]
        if self.diag and i in prof:
            i = prof.index(i)
            self.a(f'{"s_memtime" if self.opt.get("cyc") else "s_memrealtime"} {sr(S_STAMP + 2 * i, 2)}')

    def spin(self, srd, soff, target, vt):
        a = self.a
        top, done = a.label('spin'), a.label('done')
        with a.untracked():
            a(f's_mov_b32 s{sSpin}, {SPIN}')
            a(f'{top}:')
            a(f'buffer_load_dword v{vt}, off, {sr(srd, 4)}, {soff} sc1')
            a('s_waitcnt vmcnt(0)')
            a(f'v_readfirstlane_b32 s{sT7}, v{vt}')
            a(f's_sub_u32 s{sSpin}, s{sSpin}, 1')
            a(f's_cbranch_scc1 {done}')
            a(f's_cmp_lt_u32 s{sT7}, {target}')
            a(f's_cbranch_scc1 {top}')
            a(f'{done}:')

    def check(self, srd, soff, target, vt):
        a = self.a
        slow, back = a.label('slow'), a.label('back')
        a(f'v_readfirstlane_b32 s{sT7}, v{vt}')
        a(f's_cmp_lt_u32 s{sT7}, {target}')
        a(f's_cbranch_scc1 {slow}')
        a(f'{back}:')

        def cold():
            a(f'{slow}:')
            self.spin(srd, soff, target, vt)
            a(f's_branch {back}')
        self.cold.append(cold)

    def wave0(self):
        g = self

        class W:
            def __enter__(s):
                s.l = g.a.label('nw0')
                g.a(f's_cmp_lg_u32 s{S_W}, 0')
                g.a(f's_cbranch_scc1 {s.l}')
                s.u = g.a.untracked()
                s.u.__enter__()
                g.a('s_mov_b64 exec, 1')

            def __exit__(s, *x):
                g.a('s_mov_b64 exec, -1')
                s.u.__exit__()
                g.a(f'{s.l}:')
        return W()

    def warm(self, sets):
        if not self.opt['pads']:
            return
        a = self.a
        for w, ks in enumerate(sets):
            if not ks:
                continue
            l = a.label('nw')
            a(f's_cmp_lg_u32 s{S_W}, {w + 1}')
            a(f's_cbranch_scc1 {l}')
            for k in ks:
                a(f's_call_b64 {sr(sRet, 2)}, .Lpad_{k}')
            a(f'{l}:')

    def two_level(self, soff, last, rep):
        a = self.a
        l = a.label('notlast')
        a(f'v_mov_b32 v{self.vTmp}, 1')
        a(f'buffer_atomic_add v{self.vTmp}, off, {WS}, {soff} sc0 sc1')
        a('s_waitcnt vmcnt(0)')
        a(f'v_readfirstlane_b32 s{sT7}, v{self.vTmp}')
        a(f's_cmp_lg_u32 s{sT7}, {last}')
        a(f's_cbranch_scc1 {l}')
        a('s_mov_b64 exec, 0xff')
        a(f'v_lshlrev_b32 v{self.vTmp}, 8, v0')
        a(f's_movk_i32 s{sT7}, {rep * 256}')
        a(f'buffer_atomic_add v{self.vOne}, v{self.vTmp}, {WS}, s{sT7} offen sc1')
        a(f'{l}:')

    def prologue(self):
        a = self.a
        a('s_cmp_ge_u32 s2, 0x100')
        a('s_cbranch_scc1 .Lend')
        self.stamp(0)
        for srd, off in ((S_K, 8), (S_WS, 96), (S_V, 16), (S_SH, 24), (S_SK, 32), (S_X, 0), (S_WG, 56), (S_WU, 64),
                         (S_WD, 72), (S_OUT, 80), (S_DBG, 88), (S_D, 40)):
            a(f's_load_dwordx2 {sr(srd, 2)}, s[0:1], {off}')
        a(f's_getpc_b64 {sr(sT0, 2)}')
        a('.Lpc:')
        a('v_lshlrev_b32 v6, 7, v0')
        a('v_min_u32 v2, .Lcode_end-.Lpc-4, v6')
        a('v_mov_b32 v3, 0')
        a(f'v_lshl_add_u64 v[4:5], v[2:3], 0, {sr(sT0, 2)}')
        a('global_load_dword v255, v[4:5], off')
        a('v_add_u32 v2, 0x8000, v6')
        a('v_min_u32 v2, .Lcode_end-.Lpc-4, v2')
        a(f'v_lshl_add_u64 v[4:5], v[2:3], 0, {sr(sT0, 2)}')
        a('global_load_dword v247, v[4:5], off')
        a('v_lshrrev_b32 v1, 6, v0')
        a('v_and_b32 v0, 63, v0')
        a(f'v_readfirstlane_b32 s{S_W}, v1')
        for srd, n in ((S_K, 2621440), (S_V, 2621440), (S_SH, 5120), (S_SK, 4096), (S_X, 2621440), (S_WG, 1966080),
                       (S_WU, 1966080), (S_WD, 1966080), (S_OUT, 2621440), (S_DBG, 256), (S_WS, WS_END)):
            a(f's_mov_b32 s{srd + 2}, {n}')
            a(f's_mov_b32 s{srd + 3}, 0x20000')
        a(f's_and_b32 s{sX}, s2, 7')
        a(f's_lshr_b32 s{sJ}, s2, 3')
        a(f's_and_b32 s{sM}, s{sJ}, 15')
        a(f's_mov_b32 s{sG}, s{sX}')
        a(f's_cmp_lt_u32 s{sJ}, 16')
        a.snapshot('role')
        a('s_cbranch_scc1 .Lconv')
        a(f's_add_u32 s{sG}, s{sX}, 8')
        a(f's_cmp_lt_u32 s{sX}, 2')
        a('s_cbranch_scc0 .Lside')
        a('.Lconv:')

    def gemm_ids(self):
        a = self.a
        if self.opt['map1'] == '4x8':
            a(f's_lshr_b32 s{sRB}, s{sX}, 1')
            a(f's_lshr_b32 s{sT0}, s{sJ}, 3')
            a(f's_lshl2_add_u32 s{sRB}, s{sRB}, s{sT0}')
            a(f's_and_b32 s{sCB}, s{sX}, 1')
            a(f's_and_b32 s{sT0}, s{sJ}, 7')
            a(f's_lshl3_add_u32 s{sCB}, s{sCB}, s{sT0}')
            a(f's_lshl1_add_u32 s{sRot}, s{sRB}, s{sCB}')
        else:
            a(f's_lshr_b32 s{sRB}, s{sX}, 2')
            a(f's_lshr_b32 s{sT0}, s{sJ}, 2')
            a(f's_lshl3_add_u32 s{sRB}, s{sRB}, s{sT0}')
            a(f's_and_b32 s{sCB}, s{sX}, 3')
            a(f's_and_b32 s{sT0}, s{sJ}, 3')
            a(f's_lshl2_add_u32 s{sCB}, s{sCB}, s{sT0}')
            a(f's_lshl1_add_u32 s{sRot}, s{sT0}, s{sRB}')
            a(f's_and_b32 s{sT0}, s{sX}, 1')
            a(f's_add_u32 s{sRot}, s{sRot}, s{sT0}')
        a(f's_and_b32 s{sRot}, s{sRot}, {7 if self.opt["rot"] else 0}')
        a(f's_and_b32 s{sT0}, s{sCB}, 1')
        a(f's_mul_i32 s{sA}, s{sCB}, 6')
        a(f's_add_u32 s{sB}, s{sA}, 4')
        a(f's_lshl1_add_u32 s{sA}, s{sT0}, s{sA}')
        a(f's_lshl_b32 s{sT1}, s{sT0}, 2')
        a(f's_sub_u32 s{sB}, s{sB}, s{sT1}')

    vWL, vWL2, vWW, vWW2, vTmp, vTmp2, vOne, vPS = 254, 253, 252, 251, 250, 249, 248, 246

    def w_addr(self):
        a = self.a
        t, t2 = self.vTmp, self.vTmp2
        a(f's_movk_i32 s{sT2}, 3072')
        a(f's_lshl_b32 s{sT1}, s{sA}, 5')
        a(f'v_lshrrev_b32 v{t}, 3, v0')
        a(f'v_and_b32 v{t2}, 7, v0')
        a(f'v_lshl_add_u32 v{t2}, v{t2}, 4, s{sT1}')
        a(f'v_mad_u32_u24 v{self.vWL}, v{t}, s{sT2}, v{t2}')
        a(f's_lshl_b32 s{sT1}, s{sB}, 5')
        a(f'v_lshrrev_b32 v{t}, 2, v0')
        a(f'v_and_b32 v{t2}, 3, v0')
        a(f'v_lshl_add_u32 v{t2}, v{t2}, 4, s{sT1}')
        a(f'v_mad_u32_u24 v{self.vWL2}, v{t}, s{sT2}, v{t2}')
        a(f's_mul_i32 s{sT0}, s{sRot}, {80 * 3072}')
        a(f's_mul_i32 s{sT1}, s{S_W}, {8 * 3072}')
        a(f's_add_u32 s{sWoff}, s{sT0}, s{sT1}')
        a(f's_add_u32 s{sWoff2}, s{sWoff}, s{sT1}')
        a(f'v_mov_b32 v{self.vOne}, 1')
        a(f's_lshr_b32 s{sT0}, s{sCB}, 3')
        a(f's_lshl1_add_u32 s{sT0}, s{sRB}, s{sT0}')
        a(f's_lshl2_add_u32 s{sT0}, s{sT0}, s{S_W}')
        a(f's_lshl_b32 s{sT0}, s{sT0}, 12')
        a(f'v_lshl_add_u32 v{self.vPS}, v0, 3, s{sT0}')

    def clear_pst(self, v2):
        if not self.opt['dstat']:
            return []
        return [f'v_mov_b32 v{v2}, -1', f'v_mov_b32 v{v2 + 1}, -1',
                f's_lshl_b32 s{sU0}, s{sRot}, 9', f's_add_u32 s{sU0}, s{sU0}, {PST}',
                f'buffer_store_dwordx2 {vr(v2, 2)}, v{self.vPS}, {WS}, s{sU0} offen sc1']

    def w_loads(self, n, base, v, so, rows):
        out = []
        for i in range(n):
            srd = S_WU if i & 1 else S_WG
            g = [f'buffer_load_dwordx4 {ar(base + 4 * i, 4)}, v{v}, {sr(srd, 4)}, s{so} offen']
            if i & 1 and i != n - 1:
                g += [f's_add_u32 s{so}, s{so}, {rows * 3072}', f's_sub_u32 s{sU1}, s{so}, {640 * 3072}',
                      f's_cselect_b32 s{so}, s{so}, s{sU1}']
            out.append(g)
        return out

    def w_loads_main(self):
        return self.w_loads(40, 0, self.vWL, sWoff, 32)

    def w_loads_tail(self):
        return self.w_loads(20, 160, self.vWL2, sWoff2, 64)

    def w_write_addr(self, tail):
        a = self.a
        t, t2 = self.vTmp, self.vTmp2
        a(f's_lshl_b32 s{sT0}, s{S_W}, {10 if tail else 9}')
        a(f'v_lshrrev_b32 v{t}, {2 if tail else 3}, v0')
        a(f'v_lshl_add_u32 v{t}, v{t}, 6, s{sT0}')
        a(f'v_and_b32 v{t2}, 1, v0')
        a(f'v_lshl_add_u32 v{t}, v{t2}, 4, v{t}')
        a(f'v_bfe_u32 v{t2}, v0, 1, {1 if tail else 2}')
        a(f'v_lshlrev_b32 v{self.vWW}, 5, v{t2}')
        a(f'v_xor_b32 v{t}, v{t}, v{self.vWW}')
        a(f's_mov_b32 s{sT0}, {TILE}')
        a(f'v_mad_u32_u24 v{self.vWW}, v{t2}, s{sT0}, v{t}')
        a(f'v_xor_b32 v{self.vWW2}, 32, v{self.vWW}')

    def w_writes_main(self):
        return [f'ds_write_b128 v{self.vWW2 if i & 1 else self.vWW}, {ar(4 * i, 4)} offset:{(i >> 1) * 2048}'
                for i in range(40)]

    def w_writes_tail(self):
        return [f'ds_write_b128 v{self.vWW2 if i & 1 else self.vWW}, {ar(160 + 4 * i, 4)} offset:{(i >> 1) * 4096}'
                for i in range(20)]

    def conv(self):
        a = self.a
        o = self.opt
        vK, vKh, vC, vR, vSHa, vL16 = 1, 2, 3, 4, 5, 6
        SH = 8
        KR = 16
        VR = 38
        SK = 56
        WF = 88
        KF = 104
        KV = 148
        VF = 180
        O = 188
        vSW, vSR, vKS, vG, vUL, vUW, vBa, vAa, vI7, vGZ, vXS, vHS, vZR, vZR2, vFl, vPrev = range(204, 220)
        ZERO, AD = 220, 224
        a(f's_lshl4_add_u32 s{sQ}, s{sG}, s{sM}')
        a(f'v_and_b32 v{vC}, 15, v0')
        a(f'v_lshrrev_b32 v{vR}, 4, v0')
        a(f's_lshl2_add_u32 s{sT0}, s{sM}, s{S_W}')
        a(f's_mul_i32 s{sT0}, s{sT0}, {32 * 1280}')
        a(f's_lshl_b32 s{sT1}, s{sG}, 7')
        a(f's_add_u32 s{sT0}, s{sT0}, s{sT1}')
        a(f's_movk_i32 s{sT2}, {8 * 1280}')
        a(f'v_lshl_add_u32 v{vK}, v{vC}, 3, s{sT0}')
        a(f'v_mad_u32_u24 v{vK}, v{vR}, s{sT2}, v{vK}')
        a(f'v_subrev_u32 v{vKh}, 3840, v{vK}')
        a(f's_lshl_b32 s{sT1}, s{sG}, 9')
        a(f'v_lshl_add_u32 v{vSHa}, v{vC}, 5, s{sT1}')
        a(f's_movk_i32 s{sT3}, 5120')
        a(f's_lshl2_add_u32 s{sT4}, s2, s{S_W}')
        a(f'v_lshlrev_b32 v{vL16}, 4, v0')

        def addr_phase_a():
            a(f'v_subrev_u32 v{vPrev}, 16, v{vL16}')
            a(f's_mul_i32 s{sT0}, s{S_W}, {USTR}')
            a(f's_add_u32 s{sT0}, s{sT0}, {UBASE}')
            a(f's_movk_i32 s{sT1}, 272')
            a(f'v_lshl_add_u32 v{vSW}, v{vR}, 4, s{sT0}')
            a(f'v_mad_u32_u24 v{vSW}, v{vC}, s{sT1}, v{vSW}')
            a(f'v_lshl_add_u32 v{vSR}, v{vC}, 4, s{sT0}')
            a(f'v_mad_u32_u24 v{vSR}, v{vR}, s{sT1}, v{vSR}')
            a(f'v_add_u32 v{vUW}, s{sT0}, v{vL16}')
            a(f's_add_u32 s{sT0}, s{sT0}, 32')
            a(f'v_lshl_add_u32 v{vBa}, v{vC}, 5, s{sT0}')
            a(f'v_lshl_add_u32 v{vBa}, v{vR}, 4, v{vBa}')
            a(f's_mul_i32 s{sT0}, s{sG}, {16 * QS}')
            a(f's_lshl2_add_u32 s{sT1}, s{sM}, s{S_W}')
            a(f's_lshl_b32 s{sT1}, s{sT1}, 8')
            a(f's_add_u32 s{sT0}, s{sT0}, s{sT1}')
            a(f's_mov_b32 s{sT1}, {QS}')
            a(f'v_lshl_add_u32 v{vKS}, v{vC}, 4, s{sT0}')
            a(f'v_mad_u32_u24 v{vKS}, v{vR}, s{sT1}, v{vKS}')

        def addr_rest():
            self.gemm_ids()
            self.w_addr()
            a(f's_mul_i32 s{sT5}, s{S_W}, {GW}')
            a(f'v_add_u32 v{vG}, s{sT5}, v{vL16}')
            a(f'v_bfe_u32 v{vAa}, v0, 3, 1')
            a(f'v_sub_u32 v{vAa}, v{vAa}, v{vR}')
            a(f's_add_u32 s{sT0}, s{sT5}, 48')
            a(f'v_lshl_add_u32 v{vAa}, v{vAa}, 4, s{sT0}')
            a(f'v_and_b32 v{vI7}, 7, v0')
            a(f's_movk_i32 s{sT1}, {GSTR}')
            a(f'v_mad_u32_u24 v{vAa}, v{vI7}, s{sT1}, v{vAa}')
            a(f'v_mov_b32 v{vGZ}, s{sT5}')
            a(f'v_mad_u32_u24 v{vGZ}, v{vI7}, s{sT1}, v{vGZ}')
            a(f's_mul_i32 s{sT6}, s{sQ}, {QS}')
            a(f's_lshl_b32 s{sT1}, s{S_W}, 6')
            a(f's_add_u32 s{sT0}, s{sT6}, s{sT1}')
            a(f'v_and_b32 v{vUL}, 3, v0')
            a(f'v_lshl_add_u32 v{vUL}, v{vUL}, 4, s{sT0}')
            a(f'v_lshrrev_b32 v{vXS}, 2, v0')
            a(f'v_lshl_add_u32 v{vUL}, v{vXS}, 8, v{vUL}')
            a(f's_lshl_b32 s{sT0}, s{S_W}, 12')
            a(f'v_lshl_add_u32 v{vXS}, v{vC}, 7, s{sT0}')
            a(f'v_lshl_add_u32 v{vXS}, v{vR}, 5, v{vXS}')
            a(f's_add_u32 s{sT0}, s{sT0}, s{sT6}')
            a(f'v_add_u32 v{vHS}, s{sT0}, v{vL16}')
            a(f's_lshl_b32 s{sT0}, s{S_W}, 11')
            a(f'v_add_u32 v{vZR}, s{sT0}, v{vL16}')
            a(f'v_add_u32 v{vZR2}, {2 * GW}, v{vZR}')
            for i in range(4):
                a(f'v_mov_b32 v{ZERO + i}, 0')
        if o.get('addr_early', 1):
            addr_phase_a()
            addr_rest()
        a.need(sr(S_WS, 2))
        self.stamp('karg')
        linit = a.label('noinit')
        a(f's_cmp_lg_u32 s{sT4}, 3')
        a(f's_cbranch_scc1 {linit}')
        with a.untracked():
            a('v_lshlrev_b32 v200, 8, v0')
            a('v_mov_b32 v7, 0')
            for i in range(3):
                a(f's_mov_b32 s{sU0}, {i * 16384}')
                a(f'buffer_store_dword v7, v200, {WS}, s{sU0} offen sc1')
        a(f'{linit}:')
        a(f'buffer_load_dwordx4 {vr(SH, 4)}, v{vSHa}, {sr(S_SH, 4)}, 0 offen')
        a(f'buffer_load_dwordx4 {vr(SH + 4, 4)}, v{vSHa}, {sr(S_SH, 4)}, 0 offen offset:16')
        for r in range(3):
            a(f'buffer_load_dwordx2 {vr(KR + 2 * r, 2)}, v{vKh}, {sr(S_K, 4)}, 0 offen offset:{r * 1280}')
        for r in range(8):
            so = f's{sT3}' if r >= 4 else '0'
            a(f'buffer_load_dwordx2 {vr(KR + 6 + 2 * r, 2)}, v{vK}, {sr(S_K, 4)}, {so} offen offset:{(r & 3) * 1280}')
            a(f'buffer_load_dwordx2 {vr(VR + 2 * r, 2)}, v{vK}, {sr(S_V, 4)}, {so} offen offset:{(r & 3) * 1280}')
        self.stamp('issued')
        if not o.get('addr_early', 1):
            addr_phase_a()
            addr_rest()
        a(f's_lshl2_add_u32 s{sT0}, s{sQ}, s{S_W}')
        a(f's_lshl_b32 s{sT1}, s{sT0}, 12')
        a(f's_add_u32 s{S_SK}, s{S_SK}, s{sT1}')
        a(f's_addc_u32 s{S_SK + 1}, s{S_SK + 1}, 0')
        a(f's_lshl_b32 s{sT0}, s{sT0}, 1')
        a(f's_and_b32 s{sT0}, s{sT0}, -4')
        a(f's_load_dword s{sDv}, {sr(S_D, 2)}, s{sT0}')
        ssm = []
        for j in range(4):
            if j == 0:
                ssm.append(f'buffer_load_dwordx4 {vr(SK, 4)}, v{vPrev}, {sr(S_SK, 4)}, 0 offen')
            else:
                ssm.append(f'buffer_load_dwordx4 {vr(SK + 8 * j, 4)}, v{vL16}, {sr(S_SK, 4)}, 0 offen offset:{1024 * j - 16}')
            ssm.append(f'buffer_load_dwordx4 {vr(SK + 8 * j + 4, 4)}, v{vL16}, {sr(S_SK, 4)}, 0 offen offset:{1024 * j}')
        linit = a.label('noinit')
        a(f's_cmp_lg_u32 s{sT4}, 3')
        a(f's_cbranch_scc1 {linit}')
        with a.untracked():
            a('s_waitcnt vmcnt(21)')
            a('s_mov_b64 exec, 1')
            a(f'buffer_store_dword v{self.vOne}, off, {sr(S_DBG, 4)}, 0 sc1')
            a('s_mov_b64 exec, -1')
        a(f'{linit}:')
        wl = self.w_loads_main()

        def w_some(n):
            for _ in range(n):
                a(wl.pop(0))
        a(f's_mov_b32 s{sT2}, 0xffff0000')
        for ch in range(4):
            for j in range(4):
                src = SH + 2 * ch + (j >> 1)
                if j & 1:
                    a(f'v_and_b32 v{WF + 4 * j + ch}, s{sT2}, v{src}')
                else:
                    a(f'v_lshlrev_b32 v{WF + 4 * j + ch}, 16, v{src}')

        def unpack(dst, src):
            a(f'v_lshlrev_b32 v{dst}, 16, v{src}')
            a(f'v_and_b32 v{dst + 1}, s{sT2}, v{src}')
            a(f'v_lshlrev_b32 v{dst + 2}, 16, v{src + 1}')
            a(f'v_and_b32 v{dst + 3}, s{sT2}, v{src + 1}')
        for r in range(3):
            unpack(KF + 4 * r, KR + 2 * r)
        self.stamp(1)
        for r in range(8):
            unpack(KF + 4 * (r + 3), KR + 2 * (r + 3))
            vf = VF + 4 * (r & 1)
            for j in (3, 2, 1, 0):
                for p in range(2):
                    d = vr(KV + 4 * r + 2 * p, 2)
                    k = vr(KF + 4 * (r + 3 - j) + 2 * p, 2)
                    w = vr(WF + 4 * j + 2 * p, 2)
                    if j == 3:
                        a(f'v_pk_mul_f32 {d}, {k}, {w}')
                    else:
                        a(f'v_pk_fma_f32 {d}, {k}, {w}, {d}')
                if j == 3:
                    unpack(vf, VR + 2 * r)
            for p in range(2):
                d = vr(KV + 4 * r + 2 * p, 2)
                a(f'v_pk_mul_f32 {d}, {d}, {vr(vf + 2 * p, 2)}')
            a(ssm.pop(0))
            if r & 1:
                d = (7 - r) >> 1
                for ch in range(4):
                    a(f'v_cvt_pk_bf16_f32 v{O + 4 * ch + d}, v{KV + 4 * r + ch}, v{KV + 4 * (r - 1) + ch}')
        self.stamp('kvdone')
        for ch in range(4):
            a(f'ds_write_b128 v{vSW}, {vr(O + 4 * ch, 4)} offset:{ch * 64}')
        for j in range(4):
            a(f'ds_read_b128 {vr(KV + 4 * j, 4)}, v{vSR} offset:{j * 1088}')
        a(f'buffer_load_dword v{vFl}, off, {sr(S_DBG, 4)}, 0 sc1')
        a(f's_mov_b32 s{sT0}, {KVX}')
        for j in range(4):
            a(f'buffer_store_dwordx4 {vr(KV + 4 * j, 4)}, v{vKS}, {WS}, s{sT0} offen sc1')
            if j < 3:
                a(f's_add_u32 s{sT0}, s{sT0}, {4 * QS}')
        self.stamp(2)
        a(f'ds_write_b128 v{vUW}, {vr(ZERO, 4)}')
        a(f'ds_write_b128 v{vGZ}, {vr(ZERO, 4)}')

        def table(j):
            D = SK + 8 * j
            Ea, Eb, Db = 128 + 20 * (j & 1), 128 + 20 * (j & 1) + 8, 128 + 20 * (j & 1) + 14

            def wr(rho, reg):
                a(f'ds_write_b128 v{vG}, {vr(reg, 4)} offset:{rho * GSTR + 1024 * j + 16}')
            wr(7, D + 4)
            wr(3, D + 2)
            for i in range(3):
                a(f'v_pk_mov_b32 {vr(Db + 2 * i, 2)}, {vr(D + 2 * i, 2)}, {vr(D + 2 * i + 2, 2)} op_sel:[1,0]')
            for i in range(7):
                a(f'v_alignbit_b32 v{Ea + i}, v{D + i + 1}, v{D + i}, 16')
            wr(1, Db)
            wr(5, Db + 2)
            for i in range(3):
                a(f'v_pk_mov_b32 {vr(Eb + 2 * i, 2)}, {vr(Ea + 2 * i, 2)}, {vr(Ea + 2 * i + 2, 2)} op_sel:[1,0]')
            wr(0, Ea)
            wr(4, Ea + 2)
            wr(2, Eb)
            wr(6, Eb + 2)
        w_some(o['w_kv'])
        n1, n2 = o['tb_pre'], o['tb_pre'] + o['tb_mid']
        for j in range(n1):
            table(j)
        self.stamp('tbpre')
        a.drain_stores()
        self.stamp('drained')
        a('s_barrier')
        self.stamp(3)
        a(f's_lshl_b32 s{sT0}, s{sG}, 8')
        with self.wave0():
            self.check(S_DBG, '0', 1, vFl)
            a(f'buffer_atomic_add v{self.vOne}, off, {WS}, s{sT0} sc1')
        w_some(o['w_e1'])
        for j in range(n1, n2):
            table(j)
        a.need(f's{sDv}')
        a(f's_and_b32 s{sT1}, s{S_W}, 1')
        a(f's_lshl_b32 s{sT1}, s{sT1}, 4')
        a(f's_lshr_b32 s{sDv}, s{sDv}, s{sT1}')
        a(f's_and_b32 s{sDv}, s{sDv}, 0xffff')
        a(f'v_sub_u32 v5, 7, v{vI7}')
        a(f'v_and_b32 v7, 1, v5')
        a(f'v_lshlrev_b32 v7, 4, v7')
        a(f'v_lshlrev_b32 v7, v7, s{sDv}')
        a(f'v_bfe_u32 v8, v0, 3, 1')
        a(f'v_add_u32 v8, 2, v8')
        a(f'v_cmp_eq_u32 vcc, v8, v{vR}')
        a(f'v_cndmask_b32 v7, 0, v7, vcc')
        a(f'v_lshrrev_b32 v5, 1, v5')
        for d in range(4):
            a(f'v_cmp_eq_u32 vcc, {d}, v5')
            a(f'v_cndmask_b32 v{AD + d}, 0, v7, vcc')
        ACC = 8
        BUF = (40, 104)
        XR, SR = 168, 184

        def rdA(it, t):
            return f'ds_read_b128 {vr(BUF[it & 1] + 4 * t, 4)}, v{vAa} offset:{64 * it + 512 * t}'

        def rdB(it, t):
            return f'ds_read_b128 {vr(BUF[it & 1] + 32 + 4 * t, 4)}, v{vBa} offset:{448 - 64 * it + 512 * t}'
        self.stamp('tbpost')
        self.warm([[1], [2], [0]])
        with self.wave0():
            self.spin(S_WS, f's{sT0}', 16, vFl)
        a('s_barrier')
        self.stamp(4)
        a(f's_mov_b32 s{sT0}, {KVX}')
        for j in range(4):
            a(f'buffer_load_dwordx4 {vr(BUF[1] + 4 * j, 4)}, v{vUL}, {WS}, s{sT0} offen sc1')
            if j < 3:
                a(f's_add_u32 s{sT0}, s{sT0}, 4096')
        w_some(o['w_u'])
        for j in range(n2, 4):
            table(j)
        for t in range(8):
            a(rdA(0, t))
        a(f's_lshl_b32 s{sT3}, s{sX}, 8')
        a(f's_add_u32 s{sT3}, s{sT3}, {C_FXR * 256}')
        a(f's_mov_b32 s{sT4}, {ST1}')
        a(f's_add_u32 s{sT6}, s{sT6}, {XP4}')
        for j in range(4):
            a(f'ds_write_b128 v{vUW}, {vr(BUF[1] + 4 * j, 4)} offset:{512 + 1024 * j}')
            if j == 0:
                self.stamp('uload')
            a(rdB(0, 2 * j))
            a(rdB(0, 2 * j + 1))
        self.stamp(5)
        fx = o['fx_it']
        for it in range(8):
            A, B = BUF[it & 1], BUF[it & 1] + 32
            mf = []
            if it == 0:
                for tp in range(8):
                    mf.append(f'v_mfma_f32_16x16x32_bf16 {vr(ACC + 4 * tp, 4)}, {vr(AD, 4)}, {vr(B + 4 * tp, 4)}, 0')
            for tp in range(8):
                for t in range(8 - tp):
                    c = vr(ACC + 4 * (t + tp), 4)
                    mf.append(f'v_mfma_f32_16x16x32_bf16 {c}, {vr(A + 4 * t, 4)}, {vr(B + 4 * tp, 4)}, {c}')
            fill = [[] for _ in mf]
            if it < 7:
                rd = [rdB(it + 1, 0)] + [rdA(it + 1, t) for t in range(8)] + [rdB(it + 1, t) for t in range(1, 8)]
                base = 8 if it == 0 else 0
                for i, x in enumerate(rd):
                    fill[base + 2 * i].append(x)
                if it != fx + 2:
                    left = len([z for z in range(it, 7) if z != fx + 2])
                    n = (len(wl) + left - 1) // left
                    for i in range(n):
                        g = wl.pop(0)
                        p = base + 1 + 2 * ((i * 16) // n)
                        fill[p].append(g[0])
                        fill[p + 1] += g[1:2]
                        fill[p + 2] += g[2:]
            if it == 0:
                for i, x in enumerate(self.clear_pst(200)):
                    fill[i].append(x)
            if it == fx:
                fill[34].append(f'buffer_load_dword v{vFl}, off, {WS}, s{sT3} sc1')
            if it == 7:
                ops = []
                for T in range(2):
                    for row in range(4):
                        src = XR + 8 * T + 2 * row
                        xf = BUF[0] + 16 * T + 4 * row
                        st = SR + 8 * T + 2 * row
                        ops += [f'v_lshlrev_b32 v{xf}, 16, v{src}', f'v_and_b32 v{xf + 1}, s{sT2}, v{src}',
                                f'v_lshlrev_b32 v{xf + 2}, 16, v{src + 1}', f'v_and_b32 v{xf + 3}, s{sT2}, v{src + 1}']
                        ops += [f'v_fma_f32 v{xf + 32 + c}, v{xf + c}, v{st}, v{st + 1}' for c in range(4)]
                for i, x in enumerate(ops):
                    fill[2 + i // 2].append(x)
            if it == fx + 1:
                fill[35].append(lambda: self.check(S_WS, f's{sT3}', 1, vFl))
            if it == fx + 2:
                k = 0
                for T in range(2):
                    for p in range(2):
                        off = 2048 * T + 16 * p
                        fill[4 * k + 1].append(f'buffer_load_dwordx4 {vr(XR + 8 * T + 4 * p, 4)}, v{vXS}, {WS}, s{sT6} offen offset:{off} sc1')
                        fill[4 * k + 3].append(f'buffer_load_dwordx4 {vr(SR + 8 * T + 4 * p, 4)}, v{vXS}, {WS}, s{sT4} offen offset:{off} sc1')
                        k += 1
            if it > 0:
                a.need(vr(BUF[it & 1], 56))
            for m, f in zip(mf, fill):
                a(m)
                a(f)
        assert not wl
        self.stamp(6)
        for T in range(8):
            a(f'ds_write_b128 v{vG}, {vr(ACC + 4 * T, 4)} offset:{1024 * T}')
        a('s_waitcnt lgkmcnt(0)')
        a('s_barrier')
        self.stamp('zbar')
        Z = BUF[1]
        for T in range(2):
            for ch in range(4):
                a(f'ds_read_b128 {vr(Z + 16 * T + 4 * ch, 4)}, v{vZR2 if ch & 2 else vZR} offset:{(ch & 1) * GW + 1024 * T}')
        a(f's_mov_b32 s{sT0}, {HP4}')
        XF, QF, HO = BUF[0], BUF[0] + 32, ACC
        for T in range(2):
            for p in range(2):
                for b in range(2):
                    row = 2 * p + b
                    for c in range(4):
                        x = XF + 16 * T + 4 * row + c
                        a(f'v_fmac_f32 v{x}, v{x + 32}, v{Z + 16 * T + 4 * c + row}')
                    for c2 in range(2):
                        x = XF + 16 * T + 4 * row + 2 * c2
                        a(f'v_cvt_pk_bf16_f32 v{HO + 8 * T + 4 * p + 2 * b + c2}, v{x}, v{x + 1}')
                a(f'buffer_store_dwordx4 {vr(HO + 8 * T + 4 * p, 4)}, v{vHS}, {WS}, s{sT0} offen offset:{2048 * T + 1024 * p} sc1')
        self.stamp(7)
        self.w_write_addr(False)
        a('s_barrier')
        self.stamp('hbar')
        wt = self.w_loads_tail()
        ww = self.w_writes_main()
        for i in range(o.get('ww_pre', 16)):
            if i < o['w45_pre']:
                a(wt.pop(0))
            a(ww.pop(0))
        self.stamp('hissued')
        a.drain_stores()
        self.stamp('hdrained')
        a('s_barrier')
        self.stamp('hbar2')
        self.arrive_e2()
        self.stamp('arrived')
        while ww or wt:
            if wt:
                a(wt.pop(0))
            if ww:
                a(ww.pop(0))
        self.stamp('wwritten')
        a('.Ljoin:')

    def arrive_e2(self):
        a = self.a
        a(f's_lshl_b32 s{sT0}, s{sX}, 8')
        a(f's_add_u32 s{sT0}, s{sT0}, {C_B1 * 256}')
        with self.wave0():
            self.two_level(f's{sT0}', 31, C_B2)

    def side(self):
        a = self.a
        a('.Lside:')
        a.fresh('role')
        vTid = 1
        a(f'v_lshl_add_u32 v{vTid}, s{S_W}, 6, v0')
        a(f's_sub_u32 s{sG}, s{sX}, 2')
        a(f's_lshl4_add_u32 s{sG}, s{sG}, s{sM}')
        a(f's_cmp_ge_u32 s{sG}, 64')
        a.snapshot('s2')
        a('s_cbranch_scc1 .Ls2')
        XR, WR = 16, 56
        vA, vRow, vS8 = 2, 3, 4
        a(f'v_lshrrev_b32 v{vRow}, 3, v{vTid}')
        a(f'v_and_b32 v{vS8}, 7, v0')
        a(f's_mul_i32 s{sT0}, s{sG}, {32 * 1280}')
        a(f's_movk_i32 s{sT1}, 1280')
        a(f'v_lshl_add_u32 v{vA}, v{vS8}, 4, s{sT0}')
        a(f'v_mad_u32_u24 v{vA}, v{vRow}, s{sT1}, v{vA}')
        for j in range(10):
            a(f'buffer_load_dwordx4 {vr(XR + 4 * j, 4)}, v{vA}, {sr(S_X, 4)}, 0 offen offset:{128 * j}')
        self.gemm_ids()
        self.w_addr()
        vW, vRd, vSt = 5, 6, 7
        a(f's_movk_i32 s{sT1}, 528')
        a(f'v_lshlrev_b32 v{vW}, 3, v{vRow}')
        a(f'v_mad_u32_u24 v{vW}, v{vS8}, s{sT1}, v{vW}')
        a(f'v_and_b32 v{vRd}, 31, v0')
        a(f'v_lshlrev_b32 v{vRd}, 4, v{vRd}')
        a(f'v_lshrrev_b32 v8, 5, v{vTid}')
        a(f'v_mad_u32_u24 v{vRd}, v8, s{sT1}, v{vRd}')
        a(f's_lshl_b32 s{sT0}, s{sG}, 8')
        a(f'v_and_b32 v{vSt}, 15, v0')
        a(f'v_lshl_add_u32 v{vSt}, v{vSt}, 4, s{sT0}')
        a(f'v_lshrrev_b32 v8, 4, v{vTid}')
        a(f's_mov_b32 s{sT1}, {QS}')
        a(f'v_mad_u32_u24 v{vSt}, v8, s{sT1}, v{vSt}')
        for j in range(10):
            for o_ in range(2):
                a(f'ds_write_b64 v{vW}, {vr(XR + 4 * j + 2 * o_, 2)} offset:{j * 4224 + o_ * 256}')
        a('s_waitcnt lgkmcnt(0)')
        a('s_barrier')
        XO = 96
        for j in range(10):
            a(f'ds_read_b128 {vr(XO + 4 * j, 4)}, v{vRd} offset:{j * 4224}')
        a(f's_mov_b32 s{sT1}, {XP4}')
        a(f's_mov_b32 s{sOne}, 0x3f803f80')
        for i in range(4):
            a(f'v_mov_b32 v{8 + i}, 0')
        for j in range(10):
            a(f'buffer_store_dwordx4 {vr(XO + 4 * j, 4)}, v{vSt}, {WS}, s{sT1} offen sc1')
            a(f's_add_u32 s{sT1}, s{sT1}, {16 * QS}')
            for i in range(4 * j, 4 * j + 4):
                a(f'v_dot2c_f32_bf16 v{8 + (i & 1)}, s{sOne}, v{XR + i}')
                a(f'v_dot2c_f32_bf16 v{10 + (i & 1)}, v{XR + i}, v{XR + i}')
        a('v_add_f32 v8, v8, v9')
        a('v_add_f32 v10, v10, v11')
        for m in ('quad_perm:[1,0,3,2]', 'quad_perm:[2,3,0,1]', 'row_half_mirror'):
            a(f'v_add_f32_dpp v8, v8, v8 {m} row_mask:0xf bank_mask:0xf')
            a(f'v_add_f32_dpp v10, v10, v10 {m} row_mask:0xf bank_mask:0xf')
        a(f'v_mul_f32 v8, {f32(1 / 640)}, v8')
        a(f'v_mul_f32 v10, {f32(1 / 640)}, v10')
        a('v_fma_f32 v10, -v8, v8, v10')
        a('v_max_f32 v10, 0, v10')
        a(f'v_add_f32 v10, {f32(1e-5)}, v10')
        a('v_rsq_f32 v10, v10')
        a(f'v_lshl_add_u32 v12, v{vRow}, 3, s{sT0}')
        a('v_mul_f32 v11, -v8, v10')
        a(f's_mov_b32 s{sT1}, {ST1}')
        vFl = 13
        a(f'buffer_load_dword v{vFl}, off, {sr(S_DBG, 4)}, 0 sc1')
        a('s_mov_b32 exec_lo, 0x01010101')
        a('s_mov_b32 exec_hi, 0x01010101')
        a(f'buffer_store_dwordx2 v[10:11], v12, {WS}, s{sT1} offen sc1')
        a('s_mov_b64 exec, -1')
        WB = 49152
        a(f's_movk_i32 s{sT1}, 1344')
        a(f'v_lshlrev_b32 v{vW}, 4, v{vS8}')
        a(f'v_mad_u32_u24 v{vW}, v{vRow}, s{sT1}, v{vW}')
        a.drain_stores()
        a('s_barrier')
        a(f's_movk_i32 s{sT0}, {C_FX * 256}')
        with self.wave0():
            self.check(S_DBG, '0', 1, vFl)
            self.two_level(f's{sT0}', 63, C_FXR)
        self.stamp(1)
        ls3 = a.label('nos3')
        a(f's_cmp_ge_u32 s{sG}, 48')
        a(f's_cbranch_scc1 {ls3}')
        with a.untracked():
            for j in range(10):
                a(f'buffer_load_dwordx4 {vr(WR + 4 * j, 4)}, v{vA}, {sr(S_WD, 4)}, 0 offen offset:{128 * j}')
            a('v_lshrrev_b32 v8, 4, v0')
            a('v_bfe_u32 v9, v0, 2, 2')
            a('v_lshl_add_u32 v8, v8, 3, v9')
            a(f's_mul_i32 s{sT0}, s{S_W}, 320')
            a(f'v_mov_b32 v9, s{sT0}')
            a(f'v_mad_u32_u24 v8, v8, s{sT1}, v9')
            a('v_and_b32 v9, 3, v0')
            a('v_lshl_add_u32 v10, v9, 3, v8')
            a('v_lshl_add_u32 v8, v9, 4, v8')
            for j in range(10):
                a(f's_waitcnt vmcnt({9 - j})')
                a(f'ds_write_b128 v{vW}, {vr(WR + 4 * j, 4)} offset:{WB + 128 * j}')
            a('s_waitcnt lgkmcnt(0)')
            a('s_barrier')
            for cc in range(2):
                for nt in range(5):
                    for e in range(2):
                        off = WB + cc * 160 + e * 4 * 1344 + ((nt >> 1) * 64 + (nt & 1) * 8)
                        a(f'ds_read_b64_tr_b16 {vr(XO + 4 * (5 * cc + nt) + 2 * e, 2)}, v{10 if nt == 4 else 8} offset:{off}')
            a(f's_mul_i32 s{sT0}, s{S_W}, 96')
            a(f's_add_u32 s{sT0}, s{sT0}, s{sG}')
            a(f's_mul_i32 s{sT0}, s{sT0}, 5120')
            a(f's_add_u32 s{sT0}, s{sT0}, {WDF}')
            a('v_lshlrev_b32 v9, 4, v0')
            a('s_waitcnt lgkmcnt(0)')
            for cc in range(2):
                for nt in range(5):
                    if nt == 4:
                        a(f's_add_u32 s{sT0}, s{sT0}, 4096')
                    a(f'buffer_store_dwordx4 {vr(XO + 4 * (5 * cc + nt), 4)}, v9, {WS}, s{sT0} offen offset:{(nt & 3) * 1024} sc1')
                a(f's_add_u32 s{sT0}, s{sT0}, {48 * 5120 - 4096}')
        a(f'{ls3}:')
        self.stamp(2)
        a('s_branch .Lside_w')
        a('.Ls2:')
        a.fresh('s2')
        self.gemm_ids()
        self.w_addr()
        a.need(sr(S_WS, 2))
        a(f's_cmp_ge_u32 s{sG}, 88')
        a('s_cbranch_scc1 .Ls2_done')
        a(f's_sub_u32 s{sT0}, s{sG}, 64')
        a(f's_cmp_ge_u32 s{sT0}, 12')
        a(f's_cselect_b32 s{S_WD}, s{S_WU}, s{S_WG}')
        a(f's_cselect_b32 s{S_WD + 1}, s{S_WU + 1}, s{S_WG + 1}')
        a(f's_cselect_b32 s{sT1}, 12, 0')
        a(f's_sub_u32 s{sT1}, s{sT0}, s{sT1}')
        a(f's_lshl_b32 s{sT1}, s{sT1}, 8')
        a('v_and_b32 v2, 15, v0')
        a(f'v_lshrrev_b32 v3, 4, v{vTid}')
        a(f'v_lshl_add_u32 v4, v2, 4, s{sT1}')
        a(f's_movk_i32 s{sT2}, 3072')
        a(f'v_mad_u32_u24 v4, v3, s{sT2}, v4')
        a(f's_mov_b32 s{sT2}, 0')
        for i in range(8):
            a(f'v_mov_b32 v{16 + i}, 0')
        a(f's_mov_b32 s{sT4}, 0x3f80')
        a(f's_mov_b32 s{sT3}, 0x3f800000')
        LA = 12
        for i in range(40 + LA):
            if i < 40:
                a(f'buffer_load_dwordx4 {vr(32 + 4 * i, 4)}, v4, {sr(S_WD, 4)}, s{sT2} offen')
                a(f's_add_u32 s{sT2}, s{sT2}, {16 * 3072}')
            if i >= LA:
                for d in range(4):
                    a(f'v_dot2c_f32_bf16 v{16 + 2 * d}, s{sT4}, v{32 + 4 * (i - LA) + d}')
                    a(f'v_dot2c_f32_bf16 v{17 + 2 * d}, s{sT3}, v{32 + 4 * (i - LA) + d}')
        a(f'v_lshlrev_b32 v5, 5, v{vTid}')
        a('ds_write_b128 v5, v[16:19]')
        a('ds_write_b128 v5, v[20:23] offset:16')
        a('s_waitcnt lgkmcnt(0)')
        a('s_barrier')
        a(f'v_and_b32 v5, 127, v{vTid}')
        a('v_lshlrev_b32 v6, 2, v5')
        for i in range(16):
            a(f'ds_read_b32 v{32 + i}, v6 offset:{512 * i}')
        for i in range(1, 16):
            a(f'v_add_f32 v32, v32, v{32 + i}')
        a('v_cvt_pk_bf16_f32 v8, v32, v32')
        a('v_lshlrev_b32 v10, 16, v8')
        a('v_sub_f32 v10, v32, v10')
        a('v_cvt_pk_bf16_f32 v9, v10, v10')
        a(f's_lshl_b32 s{sT0}, s{sT0}, 10')
        a(f's_add_u32 s{sT0}, s{sT0}, {CSF}')
        a('v_lshrrev_b32 v6, 5, v5')
        a('v_lshlrev_b32 v6, 8, v6')
        a('v_lshl_add_u32 v6, v2, 4, v6')
        a('v_bfe_u32 v7, v5, 4, 1')
        a('v_lshl_add_u32 v6, v7, 3, v6')
        a(f'buffer_store_dwordx2 v[8:9], v6, {WS}, s{sT0} offen sc1')
        a('.Ls2_done:')
        self.stamp(2)
        with self.wave0():
            self.spin(S_DBG, '0', 1, 13)
        a('.Lside_w:')
        a.fresh()
        a(self.clear_pst(14))
        self.w_write_addr(False)
        a('s_waitcnt vmcnt(0) lgkmcnt(0)')
        a('s_barrier')
        self.stamp(6)
        self.arrive_e2()
        wl = self.w_loads_main() + self.w_loads_tail()
        ww = self.w_writes_main()
        for i in range(60):
            a(wl[i])
            if 16 <= i < 56:
                a(ww[i - 16])
        a('s_waitcnt vmcnt(0)')
        self.stamp(7)
        a('s_branch .Ljoin')

    def signal(self, soff):
        a = self.a
        if self.opt['sig'] == 's':
            a(f's_atomic_add s{sU2}, {sr(S_WS, 2)}, {soff}')
        else:
            a('s_mov_b64 exec, 1')
            a(f'buffer_atomic_add v{self.vOne}, off, {WS}, {soff} sc1')
            a('s_mov_b64 exec, -1')

    def gemms(self):
        a = self.a
        o = self.opt
        t, t2 = self.vTmp, self.vTmp2
        L = 255
        vTR = 224
        vAL, vAS, vWD, vWD2, vCS, vA2, vFl = 228, 229, 230, 231, 242, 243, 247
        vS = 232
        BP = 236
        TM = 244
        ACC = 160
        RING1, CS, RING2 = 124, 148, 240
        sF3s, sF3p, sLam = sQ, sM, S_D
        sRB2w = sG
        a(f'v_lshrrev_b32 v{t}, 5, v0')
        a(f'v_bfe_u32 v{t2}, v0, 2, 2')
        a(f'v_lshl_add_u32 v{t}, v{t}, 3, v{t2}')
        a(f'v_lshlrev_b32 v{t}, 6, v{t}')
        a(f'v_and_b32 v{t2}, 3, v0')
        a(f'v_lshl_add_u32 v{t}, v{t2}, 4, v{t}')
        a(f'v_bfe_u32 v{t2}, v0, 4, 1')
        a(f'v_lshl_add_u32 v{vTR}, v{t2}, 3, v{t}')
        for s in range(1, 4):
            a(f'v_xor_b32 v{t}, {32 * s}, v{vTR}')
            a(f'v_add_u32 v{vTR + s}, {TILE * s}, v{t}')
        a(f's_lshl2_add_u32 s{sT0}, s{sRB}, s{S_W}')
        a(f's_lshl_b32 s{sT1}, s{sT0}, 8')
        a(f'v_and_b32 v{t}, 15, v0')
        a(f'v_lshlrev_b32 v{vA2}, 4, v{t}')
        a(f'v_add_u32 v{t}, s{sT1}, v{vA2}')
        a(f'v_lshrrev_b32 v{t2}, 4, v0')
        a(f's_mov_b32 s{sT1}, {QS}')
        a(f'v_mad_u32_u24 v{vAL}, v{t2}, s{sT1}, v{t}')
        a(f'v_lshl_add_u32 v{vA2}, v{t2}, 9, v{vA2}')
        a(f's_mul_i32 s{sT1}, s{sT0}, 98304')
        a(f'v_lshl_add_u32 v{vAS}, v0, 4, s{sT1}')
        a(f's_lshr_b32 s{sF3s}, s{sT0}, 1')
        a(f's_lshl_b32 s{sF3s}, s{sF3s}, 8')
        a(f's_add_u32 s{sF3s}, s{sF3s}, {C_F3 * 256}')
        a(f's_lshr_b32 s{sT1}, s{sJ}, 3')
        a(f's_lshl2_add_u32 s{sF3p}, s{sX}, s{sT1}')
        a(f's_lshl_b32 s{sRB2w}, s{sF3p}, 1')
        a(f's_lshl_b32 s{sF3p}, s{sF3p}, 8')
        a(f's_add_u32 s{sF3p}, s{sF3p}, {C_F3 * 256}')
        a(f's_and_b32 s{sT0}, s{sJ}, 7')
        a(f's_add_u32 s{sT4}, s{sT0}, s{sT1}')
        a(f's_lshl2_add_u32 s{sT0}, s{sT0}, s{S_W}')
        a(f's_mul_i32 s{sT0}, s{sT0}, {12 * 5120}')
        a(f'v_lshl_add_u32 v{vWD}, v0, 4, s{sT0}')
        a(f'v_add_u32 v{vWD2}, 0x1000, v{vWD}')
        a(f's_mul_i32 s{sT5}, s{S_W}, {12 * 2048}')
        a(f's_add_u32 s{sT5}, s{sT5}, {ACT}')
        for c in range(4):
            a(f's_add_u32 s{sT0}, s{sT4}, {c}') if o['rot'] else a(f's_mov_b32 s{sT0}, {c}')
            a(f's_and_b32 s{sT0}, s{sT0}, 3')
            a(f's_mul_i32 s{sT1}, s{sT0}, 3')
            for pi in range(3):
                a(f's_bitcmp1_b32 s{sT0}, 0')
                a(f's_cselect_b32 s{sT2}, {(pi + 1) % 3}, {pi}')
                a(f's_add_u32 s{sT2}, s{sT2}, s{sT1}')
                a(f's_mul_i32 s{sT3}, s{sT2}, 5120')
                a(f's_add_u32 s{sWDO + 4 * pi + c}, s{sT3}, {WDF}')
                a(f's_lshl_b32 s{sT2}, s{sT2}, 11')
                a(f's_add_u32 s{sACT + 4 * pi + c}, s{sT2}, s{sT5}')
        for i in range(8):
            a(f's_add_u32 s{sT0}, s{sRot}, {i}')
            a(f's_and_b32 s{sT0}, s{sT0}, 7')
            a(f's_mul_i32 s{sT0}, s{sT0}, {20 * QS}')
            a(f's_add_u32 s{sAB + i}, s{sT0}, {HP4}')
        a(f'v_and_b32 v{t}, 3, v0')
        a(f'v_bfe_u32 v{t2}, v0, 2, 1')
        a(f'v_lshl_add_u32 v{t}, v{t2}, 3, v{t}')
        a(f'v_bfe_u32 v{t2}, v0, 4, 1')
        a(f'v_lshl_add_u32 v{t}, v{t2}, 2, v{t}')
        a(f'v_lshlrev_b32 v{t}, 4, v{t}')
        a(f'v_bfe_u32 v{t2}, v0, 3, 1')
        a(f's_movk_i32 s{sT1}, 12288')
        a(f'v_mad_u32_u24 v{vCS}, v{t2}, s{sT1}, v{t}')
        self.w_write_addr(True)
        for i in range(4):
            a(f'v_mov_b32 v{vS + i}, 0')
        for i in (0, 1, 4, 5):
            a(f'v_mov_b32 v{BP + i}, 0')
        a(f's_mov_b32 s{sOne}, 0x3f803f80')
        a(f's_mov_b32 s{sU2}, 1')
        a(f's_lshl_b32 s{sT2}, s{sA}, 7')
        a(f's_add_u32 s{sT2}, s{sT2}, {CSF}')
        a(f's_lshl_b32 s{sT3}, s{sB}, 7')
        a(f's_add_u32 s{sT3}, s{sT3}, {CSF}')
        a(f's_lshl_b32 s{sA}, s{sA}, 10')
        a(f's_add_u32 s{sA}, s{sA}, {ACT}')
        a(f's_lshl_b32 s{sB}, s{sB}, 10')
        a(f's_add_u32 s{sB}, s{sB}, {ACT}')
        sL = [sWoff, sWoff2, sDv, sCB]
        for lam in range(4):
            a(f's_xor_b32 s{sT0}, s{S_W}, {lam}')
            a(f's_lshr_b32 s{sT1}, s{sT0}, 1')
            a(f's_add_u32 s{sT1}, s{sT1}, s{sRB2w}')
            a(f's_mul_i32 s{sT1}, s{sT1}, 98304')
            a(f's_and_b32 s{sT0}, s{sT0}, 1')
            a(f's_lshl_b32 s{sT0}, s{sT0}, 8')
            a(f's_add_u32 s{sL[lam]}, s{sT1}, s{sT0}')
        a(f's_lshl_b32 s{sU0}, s{sRot}, 9')
        a(f's_add_u32 s{sU0}, s{sU0}, {PST}')
        a(f's_mov_b32 s{sU1}, {PST}')
        a(f's_lshl_b32 s{sT0}, s{sX}, 8')
        a(f's_add_u32 s{sT0}, s{sT0}, {C_B2 * 256}')
        a(f'v_mov_b32 v{L}, v0')
        a.need(f'v{vFl}')
        self.warm([[2, 5], [3, 6], [4, 7]])
        with self.wave0():
            self.spin(S_WS, f's{sT0}', 8, t)
        self.stamp('polled')
        a('s_waitcnt lgkmcnt(0)')
        a('s_barrier')
        self.stamp(8)
        al = []
        for j in range(40):
            if j % 5 == 0:
                al.append([f'buffer_load_dwordx4 {vr(4 * j, 4)}, v{vAL}, {WS}, s{sAB + j // 5} offen sc1'])
            else:
                al.append([f's_add_u32 s{sT1}, s{sAB + j // 5}, {(j % 5) * 4 * QS}',
                           f'buffer_load_dwordx4 {vr(4 * j, 4)}, v{vAL}, {WS}, s{sT1} offen sc1'])
        al.append(f'buffer_load_dwordx4 {ar(CS, 4)}, v{vCS}, {WS}, s{sT2} offen sc1')
        al.append(f'buffer_load_dwordx4 {ar(CS + 4, 4)}, v{vCS}, {WS}, s{sT2} offen offset:256 sc1')
        al.append(f'buffer_load_dwordx4 {ar(CS + 8, 4)}, v{vCS}, {WS}, s{sT3} offen sc1')
        for _ in range(o['a_ahead']):
            a(al.pop(0))

        def rd(dst, slot, j):
            return [f'ds_read_b64_tr_b16 {ar(dst + 2 * e, 2)}, v{vTR + slot} offset:{1024 * j + 256 * e}'
                    for e in range(2)]

        def swaps(j):
            return [f'v_permlane16_swap_b32 v{4 * j}, v{4 * j + 2}', f'v_permlane16_swap_b32 v{4 * j + 1}, v{4 * j + 3}']

        def acc(slot):
            return vr(ACC + 16 * slot, 16)
        wd = [f'buffer_load_dwordx4 {ar(4 * i, 4)}, v{vWD2 if i % 5 == 4 else vWD}, {WS}, s{sWDO + i // 5} offen offset:{(i % 5 & 3) * 1024} sc1'
              for i in range(60)]
        if o.get('nowd'):
            wd = [[] for _ in wd]
        wtail = self.w_writes_tail()
        if o.get('nowt'):
            wtail = [[] for _ in wtail]
        C0, C1, R = vS, vS + 1, vS + 2
        c0 = -2.0 * 0.7978845608028654 * 1.4426950408889634
        G = ACC + 48
        gather = [f'buffer_load_dwordx2 {vr(G + 2 * s, 2)}, v{self.vPS}, {WS}, s{sU1} offen offset:{512 * s} sc1'
                  for s in range(8)]
        valid = [f'v_or3_b32 v{t}, v{G + 1}, v{G + 3}, v{G + 5}', f'v_or3_b32 v{t2}, v{G + 7}, v{G + 9}, v{G + 11}',
                 f'v_or3_b32 v{t}, v{t}, v{G + 13}, v{G + 15}', f'v_or_b32 v{t}, v{t}, v{t2}',
                 f'v_cmp_gt_i32 vcc, 0, v{t}']

        def chk_stats():
            slow, back = a.label('slow'), a.label('back')
            a('s_nop 1')
            a(f's_cbranch_vccnz {slow}')
            a(f'{back}:')

            def cold():
                top = a.label('top')
                a(f'{slow}:')
                with a.untracked():
                    a(f's_mov_b32 s{sSpin}, {SPIN}')
                    a(f'{top}:')
                    a(gather)
                    a('s_waitcnt vmcnt(0)')
                    a(valid)
                    a(f's_sub_u32 s{sSpin}, s{sSpin}, 1')
                    a(f's_cbranch_scc1 {back}')
                    a('s_nop 3')
                    a(f's_cbranch_vccnz {top}')
                    a(f's_branch {back}')
            self.cold.append(cold)
        st = []
        if o['dstat']:
            st += valid + [chk_stats]
            for w_ in range(2):
                g = G + w_
                st += [f'v_add_f32 v{g}, v{g}, v{g + 2}', f'v_add_f32 v{g + 4}, v{g + 4}, v{g + 6}',
                       f'v_add_f32 v{g + 8}, v{g + 8}, v{g + 10}', f'v_add_f32 v{g + 12}, v{g + 12}, v{g + 14}',
                       f'v_add_f32 v{vS + 2 * w_}, v{g}, v{g + 4}', f'v_add_f32 v{vS + 2 * w_ + 1}, v{g + 8}, v{g + 12}']
        st += [
            f'v_add_f32 v{vS}, v{vS}, v{vS + 1}',
            f'v_add_f32 v{vS + 2}, v{vS + 2}, v{vS + 3}',
            f'v_mov_b32 v{vS + 1}, v{vS}',
            f'v_mov_b32 v{vS + 3}, v{vS + 2}',
            f'v_cmp_gt_u32 vcc, 32, v{L}',
            f'v_permlane32_swap_b32 v{vS}, v{vS + 1}',
            f'v_permlane32_swap_b32 v{vS + 2}, v{vS + 3}',
            f'v_add_f32 v{vS}, v{vS}, v{vS + 1}',
            f'v_add_f32 v{vS + 2}, v{vS + 2}, v{vS + 3}',
            f'v_mul_f32 v{vS}, {f32(-1 / 640)}, v{vS}',
            f'v_mul_f32 v{vS + 2}, {f32(1 / 640)}, v{vS + 2}',
            f'v_cvt_pk_bf16_f32 v{t}, v{vS}, v{vS}',
            f'v_fma_f32 v{R}, -v{vS}, v{vS}, v{R}',
            f'v_lshlrev_b32 v{t}, 16, v{t}',
            f'v_max_f32 v{R}, 0, v{R}',
            f'v_sub_f32 v{t2}, v{vS}, v{t}',
            f'v_add_f32 v{R}, {f32(1e-5)}, v{R}',
            f'v_cvt_pk_bf16_f32 v{t}, v{t}, v{t2}',
            f'v_rsq_f32 v{vS + 3}, v{R}',
            f'v_cndmask_b32 v{BP + 2}, 0, v{t}, vcc',
            f'v_cndmask_b32 v{BP + 3}, 0, v{t}, vcc',
            f'v_mul_f32 v{C0}, {f32(c0)}, v{vS + 3}',
            f'v_mul_f32 v{t}, v{vS + 3}, v{vS + 3}',
            f'v_mul_f32 v{t}, {f32(0.044715)}, v{t}',
            f'v_mul_f32 v{C1}, v{t}, v{C0}',
        ]

        def csm(tile, slot, first):
            b = vr(BP, 4) if tile & 1 else vr(BP + 2, 4)
            return f'v_mfma_f32_32x32x16_bf16 {acc(slot)}, {ar(CS + 4 * (tile >> 1), 4)}, {b}, {"0" if first else acc(slot)}'

        def dots(r0, r1):
            for r in range(r0, r1):
                a(f'v_dot2c_f32_bf16 v{vS + (r & 1)}, s{sOne}, v{r}')
                a(f'v_dot2c_f32_bf16 v{vS + 2 + (r & 1)}, v{r}, v{r}')
        for j in range(2):
            for s in range(3):
                a(rd(RING1 + 12 * j + 4 * s, s, j))
        a(swaps(0))
        self.stamp('a0')
        p2 = [(3, 3, j) for j in range(40)] + [(4, 0, j) for j in range(40)] + [(5, 1, j) for j in range(40)]
        gq = list(gather) if o['dstat'] else []
        GJ, SJ = o.get('gather_j', 22), o.get('stat_j', 33)
        B1, B2 = 21, 33
        for j in range(40):
            base = RING1 + 12 * (j & 1)
            self.stamp(f'p{j}')
            a.need(ar(base, 12))
            for s in range(3):
                c = '0' if j == 0 else acc(s)
                a(f'v_mfma_f32_32x32x16_bf16 {acc(s)}, {ar(base + 4 * s, 4)}, {vr(4 * j, 4)}, {c}')
                if j < 38:
                    a(rd(base + 4 * s, s, j + 2))
                else:
                    i = (j - 38) * 3 + s
                    if i < 4:
                        a(rd(RING2 + 4 * i, p2[i][1], p2[i][2]))
                if s == 0 and j < 39:
                    a(swaps(j + 1))
                if s == 1 and (B1 < j <= B1 + 10 or B2 < j):
                    a(wtail.pop(0))
                if s == 1 and 6 <= j <= B1 and o['wd_p1'] and j & 1:
                    a(wd.pop(0))
                if s == 0 and j >= GJ and gq:
                    a(gq.pop(0))
                if s == 2:
                    if al:
                        a(al.pop(0))
                    elif j < SJ or not o['dstat']:
                        a(wd.pop(0))
                if o['dstat'] and j >= SJ:
                    for _ in range(2 if s < 2 else 3):
                        if st:
                            a(st.pop(0))
            if j in (B1, B2):
                a('s_barrier')
            if o['dstat'] and j == 3:
                dots(0, 20)
                a(f'v_add_f32 v{TM}, v{vS}, v{vS + 1}')
                a(f'v_add_f32 v{TM + 1}, |v{vS + 2}|, |v{vS + 3}|')
                a(f'v_and_b32 v{TM + 1}, 0x7fffffff, v{TM + 1}')
                a(f'buffer_store_dwordx2 {vr(TM, 2)}, v{self.vPS}, {WS}, s{sU0} offen sc1')
            if not o['dstat'] and j & 7 == 7:
                dots(32 * (j >> 3), 32 * (j >> 3) + 32)
        a(st)
        for tl in range(3):
            a(csm(tl, tl, False))
        self.stamp(9)

        def epi(tile, slot, packed=False):
            b = ACC + 16 * slot
            tm = [TM, TM + 1, t2, t]
            ops = []
            for h in range(2):
                g, u = b + 8 * h, b + 8 * h + 4
                ops += [(1, f'v_mul_f32 v{tm[i]}, v{g + i}, v{g + i}') for i in range(4)]
                ops += [(1, f'v_fma_f32 v{tm[i]}, v{tm[i]}, v{C1}, v{C0}') for i in range(4)]
                ops += [(1, f'v_mul_f32 v{tm[i]}, v{tm[i]}, v{g + i}') for i in range(4)]
                for i in range(4):
                    ops += [(2, f'v_exp_f32 v{tm[i]}, v{tm[i]}'), (1, f'v_mul_f32 v{u + i}, v{u + i}, v{g + i}')]
                ops += [(1, f'v_fma_f32 v{tm[i]}, v{tm[i]}, v{R}, v{R}') for i in range(4)]
                ops += [(2, f'v_rcp_f32 v{tm[i]}, v{tm[i]}') for i in range(4)]
                ops += [(1, f'v_mul_f32 v{u + i}, v{u + i}, v{tm[i]}') for i in range(4)]
                ops += [(1, f'v_cvt_pk_bf16_f32 v{b + 2 * h + i}, v{u + 2 * i}, v{u + 2 * i + 1}') for i in range(2)]
            so = sA if tile < 4 else sB
            txt = f'buffer_store_dwordx4 {vr(b, 4)}, v{vAS}, {WS}, s{so} offen offset:{(tile & 3) * 1024} sc1'
            ops.append((1, (lambda: a(txt, tag=f'act{tile}')) if not o.get('nost') else []))
            if o.get('noepi'):
                ops = [(c_, x if callable(x) else []) for c_, x in ops]
            return ops

        G2 = 64
        FR = [[4 * i for i in range(16)],
              [144 + 4 * i for i in range(4)] + [192 + 4 * i for i in range(8)] + [160 + 4 * i for i in range(4)],
              [4 * i for i in range(16)]]
        order = [[(c, lam) for c in range(4) for lam in range(4)]] * 2 + [[(c, lam) for lam in (3, 2, 1, 0) for c in range(4)]]

        def act_ld(pi, n):
            c, lam = order[pi][n]
            if o.get('noact'):
                return []
            return [f's_add_u32 s{sT1}, s{sACT + 4 * pi + c}, s{sL[lam]}',
                    f'buffer_load_dwordx4 {vr(FR[pi][n], 4)}, v{vA2}, {WS}, s{sT1} offen sc1']

        def sig(pi, tag):
            def f():
                a.need_tag(tag)
                self.signal(f's{sF3s}')
                if pi < 2:
                    a(f's_add_u32 s{sF3s}, s{sF3s}, {32 * 256}')
            return f

        def poll_ld():
            return f'buffer_load_dword v{vFl}, off, {WS}, s{sF3p} sc1'

        def poll_chk(pi):
            def f():
                self.check(S_WS, f's{sF3p}', 32, vFl)
                if pi < 2:
                    a(f's_add_u32 s{sF3p}, s{sF3p}, {32 * 256}')
            return f
        RES, vRes, vRes2 = 192, vAL, vCS
        res_addr = [
            f's_lshr_b32 s{sT2}, s{S_W}, 1',
            f's_add_u32 s{sT2}, s{sT2}, s{sRB2w}',
            f's_lshl_b32 s{sT3}, s{sT2}, 8',
            f's_and_b32 s{sT4}, s{S_W}, 1',
            f's_lshl3_add_u32 s{sT3}, s{sT4}, s{sT3}',
            f's_and_b32 s{sT5}, s{sJ}, 7',
            f's_mul_i32 s{sT6}, s{sT5}, {20 * QS}',
            f's_add_u32 s{sT3}, s{sT3}, s{sT6}',
            f'v_and_b32 v{vRes}, 15, v{L}',
            f'v_lshl_add_u32 v{vRes2}, v{vRes}, 4, s{sT3}',
            f'v_lshrrev_b32 v{vRes}, 4, v{L}',
            f's_mov_b32 s{sT6}, {QS}',
            f'v_mad_u32_u24 v{vRes2}, v{vRes}, s{sT6}, v{vRes2}',
            f'v_mad_u32_u24 v{vRes}, v{vRes}, s{sT6}, v{vRes2}',
        ]
        res_ld = []
        for nt in range(5):
            q = 8 * (nt >> 1) + (nt & 1)
            res_ld.append([f's_mov_b32 s{sT6}, {HP4 + q * QS}',
                           f'buffer_load_dwordx2 {vr(RES + 2 * nt, 2)}, v{vRes2 if nt == 4 else vRes}, {WS}, s{sT6} offen sc1'])
        slot_of = {0: 0, 1: 1, 2: 2, 3: 3, 4: 0, 5: 1}
        eq = epi(0, 0) + epi(1, 1) + epi(2, 2)
        budget = 0.0
        RATE = o['epi_rate']
        extra = {i: [] for i in range(120)}
        extra[1].append('s_barrier')
        for k in range(len(wtail)):
            extra[2 + 3 * k].append(wtail[k])
        extra[30].append('s_barrier')
        nwd = len(wd) - 20
        lo, hi = 14, o.get('wd_hi', 96)
        for k in range(nwd):
            extra[lo + (k * (hi - lo)) // nwd].append(wd.pop(0))
        extra[o.get('siga', 62)].append(sig(0, 'act1'))
        extra[o.get('lda', 86)].append(poll_ld())
        for k, x in enumerate(res_addr):
            extra[84 + k // 2].append(x)
        for k, x in enumerate(res_ld):
            extra[92 + k].append(x)
        extra[o.get('chka', 97)].append(poll_chk(0))
        for n in range(16):
            extra[98 + n].append(act_ld(0, n))
        extra[o.get('sigb', 116)].append(sig(1, 'act3'))
        extra[118].append('s_barrier')
        for i, (tile, ls, j) in enumerate(p2):
            slot = slot_of[tile]
            if j == 0:
                a(csm(tile, slot, True))
            if i & 1 == 0:
                a.need(ar(RING2 + 4 * (i & 3), 8))
            a(f'v_mfma_f32_32x32x16_bf16 {acc(slot)}, {ar(RING2 + 4 * (i & 3), 4)}, {vr(4 * j, 4)}, {acc(slot)}')
            if i + 4 < len(p2):
                a(rd(RING2 + 4 * (i & 3), p2[i + 4][1], p2[i + 4][2]))
            a(extra[i])
            if i == 42:
                eq += epi(3, 3)
            if i == 82:
                eq += epi(4, 0)
            if i >= 1:
                budget += RATE if i < 84 else o.get('epi_rate5', 2.6)
                while eq and budget >= eq[0][0]:
                    cst, x = eq.pop(0)
                    budget -= cst
                    a(x)
                if not eq:
                    budget = 0
                if i == 39:
                    assert len(eq) <= 2 * 69, len(eq)
                if i == o.get('siga', 62) - 1:
                    assert len(eq) <= 2 * 69, len(eq)
                if i == 79:
                    assert len(eq) <= 2 * 69, len(eq)
                if i == 91:
                    assert len(eq) <= 2 * 69, len(eq)
                if i == o.get('sigb', 116) - 1:
                    assert len(eq) <= 69, len(eq)
            if j == 39:
                self.stamp(f't{tile}')
        for cst, x in eq:
            a(x)
        a(f's_mov_b32 s{sT0}, 0xffff0000')
        for i in range(10):
            a(f'v_lshlrev_b32 v{G2 + 2 * i}, 16, v{RES + i}')
            a(f'v_and_b32 v{G2 + 2 * i + 1}, s{sT0}, v{RES + i}')
        for cst, x in epi(5, 1):
            a(x)
        self.stamp(10)

        vOut, vOut2, vRR, vRW = 224, 225, 226, 232
        RED = 2 * TILE
        setup = [
            f's_lshr_b32 s{sT0}, s{sRB2w}, 3',
            f's_lshl_b32 s{sT0}, s{sT0}, 8',
            f's_and_b32 s{sT6}, s{sT2}, 3',
            f's_lshl2_add_u32 s{sT0}, s{sT6}, s{sT0}',
            f's_bfe_u32 s{sT6}, s{sRB2w}, 0x10002',
            f's_lshl1_add_u32 s{sT0}, s{sT6}, s{sT0}',
            f's_add_u32 s{sT0}, s{sT0}, s{sT4}',
            f's_mul_i32 s{sT0}, s{sT0}, 1280',
            f's_mul_i32 s{sT6}, s{sT5}, 160',
            f's_add_u32 s{sT0}, s{sT0}, s{sT6}',
            f's_movk_i32 s{sT6}, {16 * 1280}',
            f'v_and_b32 v{t}, 15, v{L}',
            f'v_lshrrev_b32 v{t2}, 4, v{L}',
            f'v_mov_b32 v{vOut2}, s{sT0}',
            f'v_mad_u32_u24 v{vOut2}, v{t}, s{sT6}, v{vOut2}',
            f'v_lshl_add_u32 v{vOut}, v{t2}, 4, v{vOut2}',
            f'v_lshl_add_u32 v{vOut2}, v{t2}, 3, v{vOut2}',
        ]
        for lam in range(4):
            setup += [f's_xor_b32 s{sT0}, s{S_W}, {lam}', f's_mul_i32 s{sT0}, s{sT0}, {15 * 1024}',
                      f's_add_u32 s{sT0}, s{sT0}, {RED + (lam - 1) * 5120 if lam else RED}',
                      f'v_lshl_add_u32 v{vRW + lam - 1 if lam else vRR}, v{L}, 4, s{sT0}']

        def mf2(pi, n, nt):
            c, lam = order[pi][n]
            d = vr(G2 + 4 * (5 * lam + nt), 4)
            cin = '0' if (pi == 0 and c == 0 and lam != 0) else d
            return f'v_mfma_f32_16x16x32_bf16 {d}, {ar(4 * (5 * (4 * pi + c) + nt), 4)}, {vr(FR[pi][n], 4)}, {cin}'
        ex = [{i: [] for i in range(80)} for _ in range(3)]
        for k, x in enumerate(setup):
            ex[0][k].append(x)
        for k in range(20):
            ex[0][1 + 2 * k].append(wd.pop(0))
        ex[0][o.get('ldb', 24)].insert(0, poll_ld())
        cb_ = o.get('chkb', 42)
        ex[0][cb_] += [poll_chk(1), lambda: self.stamp('chkb')]
        for n in range(16):
            ex[0][cb_ + 1 + 2 * n].append(act_ld(1, n))
        ex[0][o.get('sigc', 41)] += [sig(2, 'act5'), lambda: self.stamp('sigc')]
        ex[1][o.get('ldc', 4)].append(poll_ld())
        cc_ = o.get('chkc', 24)
        ex[1][cc_] += [lambda: self.stamp('chkc0'), poll_chk(2), lambda: self.stamp(11)]
        for n in range(16):
            ex[1][cc_ + 1 + n].append(act_ld(2, n))
        for blk, lam in enumerate((3, 2, 1)):
            for nt in range(5):
                ex[2][20 * (blk + 1) + 5 + 2 * nt].append(
                    f'ds_write_b128 v{vRW + lam - 1}, {vr(G2 + 4 * (5 * lam + nt), 4)} offset:{1024 * nt}')
        for pi in range(3):
            for n in range(16):
                for nt in range(5):
                    a(mf2(pi, n, nt))
                    a(ex[pi][5 * n + nt])
            self.stamp('end' + 'ABC'[pi])
        a('s_waitcnt lgkmcnt(0)')
        a('s_barrier')
        self.stamp('redbar')
        RD, RR = 144, 0
        for nt in range(5):
            for s in range(3):
                a(f'ds_read_b128 {vr(RD + 12 * nt + 4 * s, 4)}, v{vRR} offset:{5120 * s + 1024 * nt}')
        sc = ' sc1' if o['out_sc1'] else ''
        for nt in range(5):
            b = RD + 12 * nt
            c = G2 + 4 * nt
            for p in range(2):
                a(f'v_pk_add_f32 {vr(c + 2 * p, 2)}, {vr(c + 2 * p, 2)}, {vr(b + 2 * p, 2)}')
                a(f'v_pk_add_f32 {vr(b + 4 + 2 * p, 2)}, {vr(b + 4 + 2 * p, 2)}, {vr(b + 8 + 2 * p, 2)}')
            for p in range(2):
                a(f'v_pk_add_f32 {vr(c + 2 * p, 2)}, {vr(c + 2 * p, 2)}, {vr(b + 4 + 2 * p, 2)}')
            for p in range(2):
                a(f'v_cvt_pk_bf16_f32 v{RR + 2 * nt + p}, v{c + 2 * p}, v{c + 2 * p + 1}')
            if nt & 1:
                a(f'buffer_store_dwordx4 {vr(RR + 2 * nt - 2, 4)}, v{vOut}, {sr(S_OUT, 4)}, 0 offen offset:{64 * (nt >> 1)}{sc}')
            if nt == 4:
                a(f'buffer_store_dwordx2 {vr(RR + 8, 2)}, v{vOut2}, {sr(S_OUT, 4)}, 0 offen offset:128{sc}')
        lz = a.label('nz')
        a('s_cmp_lg_u32 s2, 0')
        a(f's_cbranch_scc1 {lz}')
        with a.untracked():
            a(f'buffer_store_dword v{BP}, off, {sr(S_DBG, 4)}, 0 sc1')
        a(f'{lz}:')
        if self.diag:
            self.stamp('outst')
            a('s_waitcnt vmcnt(0)')
            self.stamp(12)
            a('s_waitcnt lgkmcnt(0)')
            with self.wave0():
                a(f's_lshl_b32 s{sT0}, s2, 7')
                a(f's_add_u32 s{sT0}, s{sT0}, {STAMP}')
                for i in range(NSTAMP):
                    a(f'v_mov_b32 v0, s{S_STAMP + 2 * i}')
                    a(f'buffer_store_dword v0, off, {WS}, s{sT0} offset:{4 * i}')
        if self.opt.get('fixt'):
            with a.untracked():
                a(f's_cmp_lg_u32 s2, {self.opt.get("fixwg", 0)}')
                a('s_cbranch_scc1 .Lend')
                a(f's_cmp_lg_u32 s{S_W}, 0')
                a('s_cbranch_scc1 .Lend')
                a(f's_sub_u32 s{sT2}, s{S_STAMP + 2 * self.opt.get("fixs", 0)}, s{S_STAMP + 2 * self.opt.get("fixb", 0)}')
                a(f's_mul_i32 s{sT2}, s{sT2}, 10')
                a(f's_min_u32 s{sT2}, s{sT2}, 100000')
                a(f's_add_u32 s{sT2}, s{sT2}, {self.opt["fixt"]}')
                a('.Lfix:')
                a(f's_memrealtime {sr(sT0, 2)}')
                a('s_waitcnt lgkmcnt(0)')
                a(f's_sub_u32 s{sT0}, s{sT0}, s{S_STAMP}')
                a(f's_cmp_lt_u32 s{sT0}, s{sT2}')
                a('s_cbranch_scc1 .Lfix')
        a('.Lend:')
        a('s_endpgm')

    def build(self):
        a = self.a
        if self.diag:
            for i in range(2 * NSTAMP):
                a(f's_mov_b32 s{S_STAMP + i}, 0')
        self.prologue()
        self.conv()
        self.gemms()
        self.side()
        for c in self.cold:
            a.fresh()
            a('s_nop 7')
            c()
        a('.Lcode_end:')
        a('s_endpgm')
        pads = (self.opt.get('base', 0x300), NPAD, sr(sRet, 2), '.Lend', self.opt.get('pstride', 4096)) if self.opt['pads'] else None
        body = a.finish(verbose=True, align=self.opt.get('align', 1), pads=pads)
        body += '.p2align 12\n    s_endpgm\n'
        ref = open('cdna_kernels/' + NAME + '.s.ref').read().split('\n')
        head = [l for l in ref if l.startswith(';') and '@launch' not in l and 'Override' not in l and 'grid=ceil' not in l]
        txt = '\n'.join(head) + '\n'
        txt += '; One persistent launch: kv/transposition -> Toeplitz-MFMA long conv -> gate/up GEMM + GEGLU -> down GEMM.\n'
        txt += '; @launch grid=(256,1,1) block=(256,1,1) lds=163840\n'
        txt += f'''.amdgcn_target "amdgcn-amd-amdhsa--gfx950"
.text
.globl {NAME}_kernel
.p2align 8
.type {NAME}_kernel,@function
{NAME}_kernel:
{body}.section .rodata,"a"
.p2align 6
.amdhsa_kernel {NAME}_kernel
  .amdhsa_next_free_vgpr 512
  .amdhsa_next_free_sgpr 102
  .amdhsa_accum_offset 256
  .amdhsa_group_segment_fixed_size 0
  .amdhsa_kernarg_size 104
  .amdhsa_user_sgpr_count 2
  .amdhsa_user_sgpr_kernarg_segment_ptr 1
  .amdhsa_system_sgpr_workgroup_id_x 1
  .amdhsa_float_denorm_mode_32 3
.end_amdhsa_kernel
'''
        return txt


if __name__ == '__main__':
    out = sys.argv[1]
    diag = 'diag' in sys.argv[2:]
    opt = {}
    for x in sys.argv[2:]:
        if '=' in x:
            k, v = x.split('=')
            try:
                v = int(v)
            except ValueError:
                try:
                    v = float(v)
                except ValueError:
                    pass
            opt[k] = v
    open(out, 'w').write(Gen(diag, opt).build())
```

```python
import struct
import sys
from asmlib import Asm, vr, ar, sr

NAME = 'sequential_preLN__ssm_conv_h3__geglu_ffn__prompt'

QS = 16384
CNT = 0
ST1 = 49152
CSF = 65536
STAMP = 98304
PST = 131072
W45F = PST + 262144
KVX = W45F + 1310720
XP4 = KVX + 160 * QS
HP4 = XP4 + 160 * QS
WDF = HP4 + 160 * QS
ACT = WDF + 1966080
WS_END = ACT + 6291456
C_F1, C_FX, C_FW, C_FXR, C_B1, C_B2, C_FWR, C_F3 = 0, 10, 11, 12, 20, 28, 36, 64
SPIN = 100000

S_W = 3
S_K, S_V, S_SH, S_SK, S_X, S_WG, S_WU, S_WD, S_OUT, S_DBG, S_WS = 4, 8, 12, 16, 20, 24, 28, 32, 36, 40, 44
S_D = 48
sX, sJ, sG, sM, sQ, sRB, sCB, sA, sB, sRot = 50, 51, 52, 53, 54, 55, 56, 57, 58, 59
sT0, sT1, sT2, sT3, sT4, sT5, sT6, sT7 = 60, 61, 62, 63, 64, 65, 66, 67
sWoff, sWoff2, sSpin, sDv = 68, 69, 70, 71
sOne, sU0, sU1, sU2 = 72, 73, 74, 75
sRet = 48
NPAD = 8
S_STAMP = 76
NSTAMP = 13
sAB = 4
sL = [8, 9, 10, 11]
sPL, sPH, sFW, sSide, sArr = 16, 17, 18, 19, 23
sE = [None, 12, 13, 14]

GSTR = 4160
GW = 8 * GSTR
UBASE = 4 * GW
USTR = 4608
TILE = 40960
WS = sr(S_WS, 4)


def f32(x):
    return '0x%08x' % struct.unpack('<I', struct.pack('<f', x))[0]


class Gen:
    def __init__(self, diag=False, opt=None):
        self.a = Asm()
        self.diag = diag
        self.opt = dict(place=1, w_kv=0, w_e1=0, w_u=0, tb_pre=2, tb_mid=2, a_ahead=14, sig='v', epi_rate=4.5,
                        fx_it=2, out_sc1=1, pads=1, wd_pre=16, wd_post=8, wd_pre1=8, arr='s')
        if opt:
            self.opt.update(opt)
        self.cold = []

    PROF = {
        'main': [0, 1, 2, 3, 4, 5, 6, 7, 8, 9, 10, 11, 12],
        'front': [0, 'karg', 'issued', 1, 'kvdone', 2, 'tbpre', 'drained', 3, 'tbpost', 4, 'uload', 5],
        'e2': [0, 6, 'zbar', 7, 'hbar', 'hissued', 'hdrained', 'hbar2', 'arrived', 'wwritten', 'polled', 8, 'a0'],
        'g1': [0, 8, 'a0', 'p8', 'p16', 'p24', 'p32', 9, 't3', 't4', 't5', 10, 12],
        'loop': [0, 4, 5, 'it1', 'it2', 'it3', 'it4', 'it5', 'it6', 'it7', 6, 7, 8],
        'g1b': [0, 9, 'q10', 'q20', 't3', 'presig0', 'sig0', 't4', 'prechk0', 'chk0', 'presig1', 'sig1', 't5'],
        'g2': [0, 't5', 10, 'chkb', 'sigc', 'endA', 'chkc0', 11, 'endB', 'endC', 'redbar', 'outst', 12],
    }

    def stamp(self, i):
        prof = self.PROF[self.opt.get('prof', 'main')]
        if self.diag and i in prof:
            i = prof.index(i)
            self.a(f'{"s_memtime" if self.opt.get("cyc") else "s_memrealtime"} {sr(S_STAMP + 2 * i, 2)}')

    def spin(self, srd, soff, target, vt):
        a = self.a
        top, done = a.label('spin'), a.label('done')
        with a.untracked():
            a(f's_mov_b32 s{sSpin}, {SPIN}')
            a(f'{top}:')
            a(f'buffer_load_dword v{vt}, off, {sr(srd, 4)}, {soff} sc1')
            a('s_waitcnt vmcnt(0)')
            a(f'v_readfirstlane_b32 s{sT7}, v{vt}')
            a(f's_sub_u32 s{sSpin}, s{sSpin}, 1')
            a(f's_cbranch_scc1 {done}')
            a(f's_cmp_lt_u32 s{sT7}, {target}')
            a(f's_cbranch_scc1 {top}')
            a(f'{done}:')

    def check(self, srd, soff, target, vt):
        a = self.a
        slow, back = a.label('slow'), a.label('back')
        a(f'v_readfirstlane_b32 s{sT7}, v{vt}')
        a(f's_cmp_lt_u32 s{sT7}, {target}')
        a(f's_cbranch_scc1 {slow}')
        a(f'{back}:')

        def cold():
            a(f'{slow}:')
            self.spin(srd, soff, target, vt)
            a(f's_branch {back}')
        self.cold.append(cold)

    def wave0(self):
        g = self

        class W:
            def __enter__(s):
                s.l = g.a.label('nw0')
                g.a(f's_cmp_lg_u32 s{S_W}, 0')
                g.a(f's_cbranch_scc1 {s.l}')
                s.u = g.a.untracked()
                s.u.__enter__()
                g.a('s_mov_b64 exec, 1')

            def __exit__(s, *x):
                g.a('s_mov_b64 exec, -1')
                s.u.__exit__()
                g.a(f'{s.l}:')
        return W()

    def warm(self, sets):
        if not self.opt['pads']:
            return
        a = self.a
        for w, ks in enumerate(sets):
            if not ks:
                continue
            l = a.label('nw')
            a(f's_cmp_lg_u32 s{S_W}, {w + 1}')
            a(f's_cbranch_scc1 {l}')
            for k in ks:
                a(f's_call_b64 {sr(sRet, 2)}, .Lpad_{k}')
            a(f'{l}:')

    def two_level(self, soff, last, rep, scalar=False):
        a = self.a
        l = a.label('notlast')
        if scalar:
            a(f's_mov_b32 s{sT7}, 1')
            a(f's_atomic_add s{sT7}, {sr(S_WS, 2)}, {soff} glc')
            a('s_waitcnt lgkmcnt(0)')
        else:
            a(f'v_mov_b32 v{self.vTmp}, 1')
            a(f'buffer_atomic_add v{self.vTmp}, off, {WS}, {soff} sc0 sc1')
            a('s_waitcnt vmcnt(0)')
            a(f'v_readfirstlane_b32 s{sT7}, v{self.vTmp}')
        a(f's_cmp_lg_u32 s{sT7}, {last}')
        a(f's_cbranch_scc1 {l}')
        a('s_mov_b64 exec, 0xff')
        a(f'v_lshlrev_b32 v{self.vTmp}, 8, v0')
        a(f's_mov_b32 s{sT7}, {rep * 256}')
        a(f'buffer_atomic_add v{self.vOne}, v{self.vTmp}, {WS}, s{sT7} offen sc1')
        a(f'{l}:')

    def prologue(self):
        a = self.a
        a('s_cmp_ge_u32 s2, 0x100')
        a('s_cbranch_scc1 .Lend')
        self.stamp(0)
        for srd, off in ((S_K, 8), (S_WS, 96), (S_V, 16), (S_SH, 24), (S_SK, 32), (S_X, 0), (S_WG, 56), (S_WU, 64),
                         (S_WD, 72), (S_OUT, 80), (S_DBG, 88), (S_D, 40)):
            a(f's_load_dwordx2 {sr(srd, 2)}, s[0:1], {off}')
        a(f's_getpc_b64 {sr(sT0, 2)}')
        a('.Lpc:')
        a('v_lshlrev_b32 v6, 7, v0')
        a('v_min_u32 v2, .Lcode_end-.Lpc-4, v6')
        a('v_mov_b32 v3, 0')
        a(f'v_lshl_add_u64 v[4:5], v[2:3], 0, {sr(sT0, 2)}')
        a('global_load_dword v230, v[4:5], off')
        a('v_add_u32 v2, 0x8000, v6')
        a('v_min_u32 v2, .Lcode_end-.Lpc-4, v2')
        a(f'v_lshl_add_u64 v[4:5], v[2:3], 0, {sr(sT0, 2)}')
        a('global_load_dword v231, v[4:5], off')
        a('v_lshrrev_b32 v1, 6, v0')
        a('v_and_b32 v0, 63, v0')
        a(f'v_readfirstlane_b32 s{S_W}, v1')
        for srd, n in ((S_K, 2621440), (S_V, 2621440), (S_SH, 5120), (S_SK, 4096), (S_X, 2621440), (S_WG, 1966080),
                       (S_WU, 1966080), (S_WD, 1966080), (S_OUT, 2621440), (S_DBG, 256), (S_WS, WS_END)):
            a(f's_mov_b32 s{srd + 2}, {n}')
            a(f's_mov_b32 s{srd + 3}, 0x20000')
        a(f's_and_b32 s{sX}, s2, 7')
        a(f's_lshr_b32 s{sJ}, s2, 3')
        a(f's_and_b32 s{sM}, s{sJ}, 15')
        a(f's_mov_b32 s{sG}, s{sX}')
        a(f's_cmp_lt_u32 s{sJ}, 16')
        a.snapshot('role')
        a('s_cbranch_scc1 .Lconv')
        if self.opt['place'] == 0:
            a(f's_add_u32 s{sG}, s{sX}, 8')
            a(f's_cmp_lt_u32 s{sX}, 2')
            a('s_cbranch_scc0 .Lside')
        else:
            a(f's_cmp_lt_u32 s{sJ}, 20')
            a('s_cbranch_scc0 .Lside')
            a(f's_lshr_b32 s{sG}, s{sX}, 2')
            a(f's_add_u32 s{sG}, s{sG}, 8')
            a(f's_and_b32 s{sT0}, s{sX}, 3')
            a(f's_lshl2_add_u32 s{sM}, s{sT0}, s{sM}')
        a('.Lconv:')

    def gemm_ids(self):
        a = self.a
        a(f's_lshr_b32 s{sRB}, s{sX}, 2')
        a(f's_lshr_b32 s{sT0}, s{sJ}, 2')
        a(f's_lshl3_add_u32 s{sRB}, s{sRB}, s{sT0}')
        a(f's_and_b32 s{sRot}, s{sX}, 3')
        a(f's_and_b32 s{sT0}, s{sJ}, 3')
        a(f's_lshl2_add_u32 s{sCB}, s{sRot}, s{sT0}')
        a(f's_and_b32 s{sT0}, s{sCB}, 1')
        a(f's_mul_i32 s{sA}, s{sCB}, 6')
        a(f's_add_u32 s{sB}, s{sA}, 4')
        a(f's_lshl1_add_u32 s{sA}, s{sT0}, s{sA}')
        a(f's_lshl_b32 s{sT1}, s{sT0}, 2')
        a(f's_sub_u32 s{sB}, s{sB}, s{sT1}')

    vWL, vWLb, vW45, vTmp, vTmp2, vOne, vPS = 254, 253, 252, 250, 249, 248, 251
    WRAW = [8, 40, 72, 104, 136]
    vWW = 236
    PT = 200

    def real_line(self, r, tmp):
        a = self.a
        if not self.opt.get('swz', 1):
            return
        a(f's_sub_u32 s{tmp}, s{r}, 3')
        a(f's_cmp_lt_u32 s{tmp}, 2')
        a(f's_cselect_b32 s{tmp}, 7, 0')
        a(f's_xor_b32 s{r}, s{r}, s{tmp}')
        a(f's_sub_u32 s{tmp}, s{r}, 10')
        a(f's_cmp_lt_u32 s{tmp}, 2')
        a(f's_cselect_b32 s{tmp}, 1, 0')
        a(f's_xor_b32 s{r}, s{r}, s{tmp}')

    def w_addr(self):
        a = self.a
        t = self.vTmp
        a(f's_lshr_b32 s{sT1}, s{sA}, 2')
        self.real_line(sT1, sT0)
        a(f's_lshl_b32 s{sT1}, s{sT1}, 7')
        a(f'v_and_b32 v{t}, 7, v0')
        a(f'v_lshl_add_u32 v{self.vWLb}, v{t}, 4, s{sT1}')
        a(f's_lshr_b32 s{sT0}, s{S_W}, 1')
        a(f's_lshl_b32 s{sT0}, s{sT0}, 6')
        a(f's_mul_i32 s{sWoff}, s{sRot}, 160')
        a(f's_add_u32 s{sWoff}, s{sWoff}, s{sT0}')
        a(f's_mul_i32 s{sT0}, s{sCB}, {80 * 1024}')
        a(f's_add_u32 s{sT0}, s{sT0}, {W45F}')
        a(f'v_lshl_add_u32 v{self.vW45}, v0, 4, s{sT0}')
        a(f's_mul_i32 s{sWoff2}, s{sRot}, 10')
        a(f's_add_u32 s{sWoff2}, s{sWoff2}, s{S_W}')
        a(f's_lshl_b32 s{sWoff2}, s{sWoff2}, 10')
        a(f'v_mov_b32 v{self.vOne}, 1')
        a(f's_lshl2_add_u32 s{sT0}, s{sRB}, s{S_W}')
        a(f's_lshl_b32 s{sT0}, s{sT0}, 12')
        a(f'v_and_b32 v{t}, 31, v0')
        a(f'v_lshl_add_u32 v{self.vPS}, v{t}, 3, s{sT0}')
        a(f'v_lshrrev_b32 v{t}, 5, v0')
        a(f'v_lshl_add_u32 v{self.vPS}, v{t}, 11, v{self.vPS}')

    def w_select(self):
        a = self.a
        a(f's_bitcmp1_b32 s{S_W}, 0')
        a(f's_cselect_b32 s{S_WG}, s{S_WU}, s{S_WG}')
        a(f's_cselect_b32 s{S_WG + 1}, s{S_WU + 1}, s{S_WG + 1}')
        for i in range(1, 4):
            a(f's_movk_i32 s{sE[i]}, {6144 * i}')
        a(f's_movk_i32 s15, 3072')

    def clear_pst(self, v2):
        return [f'v_mov_b32 v{v2}, -1', f'v_mov_b32 v{v2 + 1}, -1',
                f's_lshl_b32 s{sU0}, s{sCB}, 8', f's_add_u32 s{sU0}, s{sU0}, {PST}',
                ['s_mov_b32 exec_hi, 0',
                 f'buffer_store_dwordx2 {vr(v2, 2)}, v{self.vPS}, {WS}, s{sU0} offen sc1',
                 's_mov_b32 exec_hi, -1']]

    def w_loads_main(self):
        out = []
        t, t2 = self.vTmp, self.vTmp2
        for b in range(5):
            for e in range(8):
                g = []
                if e == 0:
                    g = [f'v_and_b32 v{t}, 56, v0', f'v_add_u32 v{t}, s{sWoff}, v{t}', f'v_subrev_u32 v{t2}, 640, v{t}',
                         f'v_min_u32 v{t}, v{t}, v{t2}', f'v_mad_u32_u24 v{self.vWL}, v{t}, s15, v{self.vWLb}',
                         f's_add_u32 s{sWoff}, s{sWoff}, 128']
                so = f's{sE[e >> 1]}' if e >> 1 else '0'
                g.append(f'buffer_load_dwordx4 {vr(self.WRAW[b] + 4 * e, 4)}, v{self.vWL}, {sr(S_WG, 4)}, {so} offen offset:{3072 * (e & 1)}')
                out.append(g)
        return out

    def w_loads_tail(self):
        out = []
        for i in range(20):
            if i & 1:
                g = [f's_add_u32 s{sU1}, s{sWoff2}, {TILE}',
                     f'buffer_load_dwordx4 {ar(160 + 4 * i, 4)}, v{self.vW45}, {WS}, s{sU1} offen sc1']
            else:
                g = []
                if i:
                    g = [f's_add_u32 s{sWoff2}, s{sWoff2}, 4096',
                         [f's_sub_u32 s{sU1}, s{sWoff2}, {TILE}', f's_cselect_b32 s{sWoff2}, s{sWoff2}, s{sU1}']]
                g.append(f'buffer_load_dwordx4 {ar(160 + 4 * i, 4)}, v{self.vW45}, {WS}, s{sWoff2} offen sc1')
            out.append(g)
        return out

    def w_write_addr(self):
        a = self.a
        t, t2 = self.vTmp, self.vTmp2
        a(f's_lshr_b32 s{sT0}, s{S_W}, 1')
        a(f's_lshl_b32 s{sT0}, s{sT0}, 12')
        a(f's_and_b32 s{sT1}, s{S_W}, 1')
        a(f's_lshl_b32 s{sT1}, s{sT1}, 7')
        a(f's_add_u32 s{sT0}, s{sT0}, s{sT1}')
        a(f'v_lshrrev_b32 v{t}, 3, v0')
        a(f'v_lshl_add_u32 v{t}, v{t}, 9, s{sT0}')
        a(f'v_and_b32 v{t2}, 1, v0')
        a(f'v_lshl_add_u32 v{t}, v{t2}, 6, v{t}')
        a(f'v_bfe_u32 v{t2}, v0, 1, 2')
        a(f's_mov_b32 s{sT0}, {TILE + 16}')
        a(f'v_mad_u32_u24 v{self.vWW}, v{t2}, s{sT0}, v{t}')
        for q in range(1, 4):
            a(f'v_xor_b32 v{self.vWW + q}, {16 * q}, v{self.vWW}')
        a(f's_mov_b32 s{sPL}, 0x05040100')
        a(f's_mov_b32 s{sPH}, 0x07060302')

    def w_writes_main(self):
        out = []
        for b in range(5):
            for c8 in range(8):
                p = self.PT + 4 * (c8 & 3) if b < 3 else (228 if c8 & 1 else 242)
                r = self.WRAW[b] + (c8 >> 1)
                g = [f'v_perm_b32 v{p + d}, v{r + 8 * d + 4}, v{r + 8 * d}, s{sPH if c8 & 1 else sPL}' for d in range(4)]
                g.append(f'ds_write_b128 v{self.vWW + (c8 & 3)}, {vr(p, 4)} offset:{b * 8192 + (c8 >> 2) * 256}')
                out.append(g)
        return out

    def conv(self):
        a = self.a
        o = self.opt
        vK, vKh, vC, vR, vSHa, vL16 = 1, 2, 3, 4, 5, 6
        SH = 8
        KR = 16
        VR = 38
        WF = 56
        KF = 72
        O = 120
        SK = 136
        KV = 168
        VF = 200
        vSW, vSR, vKS, vG, vBa, vAa, vZR, vZR2, vUL, vUW, vI7, vGZ, vXS, vHS, vFl, vPrev = range(232, 248)
        ZERO, AD = 224, 240
        a(f's_lshl4_add_u32 s{sQ}, s{sG}, s{sM}')
        a(f'v_and_b32 v{vC}, 15, v0')
        a(f'v_lshrrev_b32 v{vR}, 4, v0')
        a(f's_lshl2_add_u32 s{sT0}, s{sM}, s{S_W}')
        a(f's_mul_i32 s{sT0}, s{sT0}, {32 * 1280}')
        a(f's_lshl_b32 s{sT1}, s{sG}, 7')
        a(f's_add_u32 s{sT0}, s{sT0}, s{sT1}')
        a(f's_movk_i32 s{sT2}, {8 * 1280}')
        a(f'v_lshl_add_u32 v{vK}, v{vC}, 3, s{sT0}')
        a(f'v_mad_u32_u24 v{vK}, v{vR}, s{sT2}, v{vK}')
        a(f'v_subrev_u32 v{vKh}, 3840, v{vK}')
        a(f's_lshl_b32 s{sT1}, s{sG}, 9')
        a(f'v_lshl_add_u32 v{vSHa}, v{vC}, 5, s{sT1}')
        a(f's_movk_i32 s{sT3}, 5120')
        a(f'v_lshlrev_b32 v{vL16}, 4, v0')

        def addr_phase_a():
            a(f'v_subrev_u32 v{vPrev}, 16, v{vL16}')
            a(f's_mul_i32 s{sT0}, s{S_W}, {USTR}')
            a(f's_add_u32 s{sT0}, s{sT0}, {UBASE}')
            a(f's_movk_i32 s{sT1}, 272')
            a(f'v_lshl_add_u32 v{vSW}, v{vR}, 4, s{sT0}')
            a(f'v_mad_u32_u24 v{vSW}, v{vC}, s{sT1}, v{vSW}')
            a(f'v_lshl_add_u32 v{vSR}, v{vC}, 4, s{sT0}')
            a(f'v_mad_u32_u24 v{vSR}, v{vR}, s{sT1}, v{vSR}')
            a(f'v_add_u32 v{vUW}, s{sT0}, v{vL16}')
            a(f's_add_u32 s{sT0}, s{sT0}, 32')
            a(f'v_lshl_add_u32 v{vBa}, v{vC}, 5, s{sT0}')
            a(f'v_lshl_add_u32 v{vBa}, v{vR}, 4, v{vBa}')
            a(f's_mul_i32 s{sT0}, s{sG}, {16 * QS}')
            a(f's_lshl2_add_u32 s{sT1}, s{sM}, s{S_W}')
            a(f's_lshl_b32 s{sT1}, s{sT1}, 8')
            a(f's_add_u32 s{sT0}, s{sT0}, s{sT1}')
            a(f's_mov_b32 s{sT1}, {QS}')
            a(f'v_lshl_add_u32 v{vKS}, v{vC}, 4, s{sT0}')
            a(f'v_mad_u32_u24 v{vKS}, v{vR}, s{sT1}, v{vKS}')

        def addr_rest():
            self.gemm_ids()
            self.w_addr()
            a(f's_mul_i32 s{sT5}, s{S_W}, {GW}')
            a(f'v_add_u32 v{vG}, s{sT5}, v{vL16}')
            a(f'v_bfe_u32 v{vAa}, v0, 3, 1')
            a(f'v_sub_u32 v{vAa}, v{vAa}, v{vR}')
            a(f's_add_u32 s{sT0}, s{sT5}, 48')
            a(f'v_lshl_add_u32 v{vAa}, v{vAa}, 4, s{sT0}')
            a(f'v_and_b32 v{vI7}, 7, v0')
            a(f's_movk_i32 s{sT1}, {GSTR}')
            a(f'v_mad_u32_u24 v{vAa}, v{vI7}, s{sT1}, v{vAa}')
            a(f'v_mov_b32 v{vGZ}, s{sT5}')
            a(f'v_mad_u32_u24 v{vGZ}, v{vI7}, s{sT1}, v{vGZ}')
            a(f's_mul_i32 s{sT6}, s{sQ}, {QS}')
            a(f's_lshl_b32 s{sT1}, s{S_W}, 6')
            a(f's_add_u32 s{sT0}, s{sT6}, s{sT1}')
            a(f'v_and_b32 v{vUL}, 3, v0')
            a(f'v_lshl_add_u32 v{vUL}, v{vUL}, 4, s{sT0}')
            a(f'v_lshrrev_b32 v{vXS}, 2, v0')
            a(f'v_lshl_add_u32 v{vUL}, v{vXS}, 8, v{vUL}')
            a(f's_lshl_b32 s{sT0}, s{S_W}, 12')
            a(f'v_add_u32 v{vXS}, s{sT0}, v{vL16}')
            a(f's_add_u32 s{sT0}, s{sT0}, s{sT6}')
            a(f'v_add_u32 v{vHS}, s{sT0}, v{vL16}')
            a(f's_lshl_b32 s{sT0}, s{S_W}, 11')
            a(f'v_add_u32 v{vZR}, s{sT0}, v{vL16}')
            a(f'v_add_u32 v{vZR2}, {2 * GW}, v{vZR}')
            for i in range(4):
                a(f'v_mov_b32 v{ZERO + i}, 0')
        if o.get('addr_early', 1):
            addr_phase_a()
            addr_rest()
        a.need(sr(S_WS, 2))
        self.stamp('karg')
        a(f'buffer_load_dwordx4 {vr(SH, 4)}, v{vSHa}, {sr(S_SH, 4)}, 0 offen')
        a(f'buffer_load_dwordx4 {vr(SH + 4, 4)}, v{vSHa}, {sr(S_SH, 4)}, 0 offen offset:16')
        for r in range(3):
            a(f'buffer_load_dwordx2 {vr(KR + 2 * r, 2)}, v{vKh}, {sr(S_K, 4)}, 0 offen offset:{r * 1280}')
        for r in range(8):
            so = f's{sT3}' if r >= 4 else '0'
            a(f'buffer_load_dwordx2 {vr(KR + 6 + 2 * r, 2)}, v{vK}, {sr(S_K, 4)}, {so} offen offset:{(r & 3) * 1280}')
            a(f'buffer_load_dwordx2 {vr(VR + 2 * r, 2)}, v{vK}, {sr(S_V, 4)}, {so} offen offset:{(r & 3) * 1280}')
        self.stamp('issued')
        if not o.get('addr_early', 1):
            addr_phase_a()
            addr_rest()
        a(f's_lshl2_add_u32 s{sT0}, s{sQ}, s{S_W}')
        a(f's_lshl_b32 s{sT1}, s{sT0}, 12')
        a(f's_add_u32 s{S_SK}, s{S_SK}, s{sT1}')
        a(f's_addc_u32 s{S_SK + 1}, s{S_SK + 1}, 0')
        a(f's_lshl_b32 s{sT0}, s{sT0}, 1')
        a(f's_and_b32 s{sT0}, s{sT0}, -4')
        a(f's_load_dword s{sDv}, {sr(S_D, 2)}, s{sT0}')
        ssm = []
        for j in range(4):
            if j == 0:
                ssm.append(f'buffer_load_dwordx4 {vr(SK, 4)}, v{vPrev}, {sr(S_SK, 4)}, 0 offen')
            else:
                ssm.append(f'buffer_load_dwordx4 {vr(SK + 8 * j, 4)}, v{vL16}, {sr(S_SK, 4)}, 0 offen offset:{1024 * j - 16}')
            ssm.append(f'buffer_load_dwordx4 {vr(SK + 8 * j + 4, 4)}, v{vL16}, {sr(S_SK, 4)}, 0 offen offset:{1024 * j}')
        self.w_select()
        self.warm([[0], [1], []])
        wl = self.w_loads_main()

        def w_some(n):
            for _ in range(n):
                a(wl.pop(0))
        a(f's_mov_b32 s{sT2}, 0xffff0000')
        for ch in range(4):
            for j in range(4):
                src = SH + 2 * ch + (j >> 1)
                if j & 1:
                    a(f'v_and_b32 v{WF + 4 * j + ch}, s{sT2}, v{src}')
                else:
                    a(f'v_lshlrev_b32 v{WF + 4 * j + ch}, 16, v{src}')

        def unpack(dst, src):
            a(f'v_lshlrev_b32 v{dst}, 16, v{src}')
            a(f'v_and_b32 v{dst + 1}, s{sT2}, v{src}')
            a(f'v_lshlrev_b32 v{dst + 2}, 16, v{src + 1}')
            a(f'v_and_b32 v{dst + 3}, s{sT2}, v{src + 1}')
        for r in range(3):
            unpack(KF + 4 * r, KR + 2 * r)
        self.stamp(1)
        for r in range(8):
            unpack(KF + 4 * (r + 3), KR + 2 * (r + 3))
            vf = VF + 4 * (r & 1)
            for j in (3, 2, 1, 0):
                for p in range(2):
                    d = vr(KV + 4 * r + 2 * p, 2)
                    k = vr(KF + 4 * (r + 3 - j) + 2 * p, 2)
                    w = vr(WF + 4 * j + 2 * p, 2)
                    if j == 3:
                        a(f'v_pk_mul_f32 {d}, {k}, {w}')
                    else:
                        a(f'v_pk_fma_f32 {d}, {k}, {w}, {d}')
                if j == 3:
                    unpack(vf, VR + 2 * r)
            for p in range(2):
                d = vr(KV + 4 * r + 2 * p, 2)
                a(f'v_pk_mul_f32 {d}, {d}, {vr(vf + 2 * p, 2)}')
            a(ssm.pop(0))
            if r & 1:
                d = (7 - r) >> 1
                for ch in range(4):
                    a(f'v_cvt_pk_bf16_f32 v{O + 4 * ch + d}, v{KV + 4 * r + ch}, v{KV + 4 * (r - 1) + ch}')
        self.stamp('kvdone')
        for ch in range(4):
            a(f'ds_write_b128 v{vSW}, {vr(O + 4 * ch, 4)} offset:{ch * 64}')
        for j in range(4):
            a(f'ds_read_b128 {vr(KV + 4 * j, 4)}, v{vSR} offset:{j * 1088}')
        a(f'buffer_load_dword v{vFl}, off, {sr(S_DBG, 4)}, 0 sc1')
        a(f's_mov_b32 s{sT0}, {KVX}')
        for j in range(4):
            a(f'buffer_store_dwordx4 {vr(KV + 4 * j, 4)}, v{vKS}, {WS}, s{sT0} offen sc1')
            if j < 3:
                a(f's_add_u32 s{sT0}, s{sT0}, {4 * QS}')
        self.stamp(2)
        a(f'ds_write_b128 v{vUW}, {vr(ZERO, 4)}')
        a(f'ds_write_b128 v{vGZ}, {vr(ZERO, 4)}')

        def table(j):
            D = SK + 8 * j
            Ea, Eb, Db = 184 + 20 * (j & 1), 184 + 20 * (j & 1) + 8, 184 + 20 * (j & 1) + 14

            def wr(rho, reg):
                a(f'ds_write_b128 v{vG}, {vr(reg, 4)} offset:{rho * GSTR + 1024 * j + 16}')
            wr(7, D + 4)
            wr(3, D + 2)
            for i in range(3):
                a(f'v_pk_mov_b32 {vr(Db + 2 * i, 2)}, {vr(D + 2 * i, 2)}, {vr(D + 2 * i + 2, 2)} op_sel:[1,0]')
            for i in range(7):
                a(f'v_alignbit_b32 v{Ea + i}, v{D + i + 1}, v{D + i}, 16')
            wr(1, Db)
            wr(5, Db + 2)
            for i in range(3):
                a(f'v_pk_mov_b32 {vr(Eb + 2 * i, 2)}, {vr(Ea + 2 * i, 2)}, {vr(Ea + 2 * i + 2, 2)} op_sel:[1,0]')
            wr(0, Ea)
            wr(4, Ea + 2)
            wr(2, Eb)
            wr(6, Eb + 2)
        w_some(o['w_kv'])
        n1, n2 = o['tb_pre'], o['tb_pre'] + o['tb_mid']
        for j in range(n1):
            table(j)
        self.stamp('tbpre')
        a.drain_stores()
        self.stamp('drained')
        a('s_barrier')
        self.stamp(3)
        a(f's_lshl_b32 s{sT0}, s{sG}, 8')
        with self.wave0():
            self.check(S_DBG, '0', 1, vFl)
            a(f'buffer_atomic_add v{self.vOne}, off, {WS}, s{sT0} sc1')
        w_some(o['w_e1'])
        for j in range(n1, n2):
            table(j)
        a.need(f's{sDv}')
        a(f's_and_b32 s{sT1}, s{S_W}, 1')
        a(f's_lshl_b32 s{sT1}, s{sT1}, 4')
        a(f's_lshr_b32 s{sDv}, s{sDv}, s{sT1}')
        a(f's_and_b32 s{sDv}, s{sDv}, 0xffff')
        a(f'v_sub_u32 v5, 7, v{vI7}')
        a(f'v_and_b32 v7, 1, v5')
        a(f'v_lshlrev_b32 v7, 4, v7')
        a(f'v_lshlrev_b32 v7, v7, s{sDv}')
        a(f'v_bfe_u32 v1, v0, 3, 1')
        a(f'v_add_u32 v1, 2, v1')
        a(f'v_cmp_eq_u32 vcc, v1, v{vR}')
        a(f'v_cndmask_b32 v7, 0, v7, vcc')
        a(f'v_lshrrev_b32 v5, 1, v5')
        for d in range(4):
            a(f'v_cmp_eq_u32 vcc, {d}, v5')
            a(f'v_cndmask_b32 v1, 0, v7, vcc')
            a(f'v_accvgpr_write_b32 a{AD + d}, v1')
        ACC = 128
        BUF = (0, 64)
        XR, SR, XF = 136, 152, 168

        def rdA(it, t):
            return f'ds_read_b128 {ar(BUF[it & 1] + 4 * t, 4)}, v{vAa} offset:{64 * it + 512 * t}'

        def rdB(it, t):
            return f'ds_read_b128 {ar(BUF[it & 1] + 32 + 4 * t, 4)}, v{vBa} offset:{448 - 64 * it + 512 * t}'
        self.stamp('tbpost')
        self.warm([[2], [], []])
        with self.wave0():
            self.spin(S_WS, f's{sT0}', 16, vFl)
        a('s_barrier')
        self.stamp(4)
        a(f's_mov_b32 s{sT0}, {KVX}')
        for j in range(4):
            a(f'buffer_load_dwordx4 {ar(BUF[1] + 4 * j, 4)}, v{vUL}, {WS}, s{sT0} offen sc1')
            if j < 3:
                a(f's_add_u32 s{sT0}, s{sT0}, 4096')
        w_some(o['w_u'])
        for j in range(n2, 4):
            table(j)
        for t in range(8):
            a(rdA(0, t))
        a(f's_lshl_b32 s{sT3}, s{sX}, 8')
        a(f's_add_u32 s{sT3}, s{sT3}, {C_FXR * 256}')
        a(f's_mov_b32 s{sT4}, {ST1}')
        a(f's_add_u32 s{sT6}, s{sT6}, {XP4}')
        for j in range(4):
            a(f'ds_write_b128 v{vUW}, {ar(BUF[1] + 4 * j, 4)} offset:{512 + 1024 * j}')
            if j == 0:
                self.stamp('uload')
            a(rdB(0, 2 * j))
            a(rdB(0, 2 * j + 1))
        self.stamp(5)
        fx = o['fx_it']
        xl = []
        for T in range(2):
            for p in range(2):
                off = 2048 * T + 1024 * p
                xl.append([f'buffer_load_dwordx4 {vr(XR + 8 * T + 4 * p, 4)}, v{vXS}, {WS}, s{sT6} offen offset:{off} sc1'])
                xl.append([f'buffer_load_dwordx4 {vr(SR + 8 * T + 4 * p, 4)}, v{vXS}, {WS}, s{sT4} offen offset:{off} sc1'])
        if o.get('nowl'):
            wl = [g[:-1] + [[]] for g in wl]
        early = wl[:-8]
        wl = wl[-8:]
        wt = self.w_loads_tail()
        nl = o.get('w45_loop', 20)
        late = xl + wt[:nl]
        wt = wt[nl:]
        tot = len(early) + len(late)
        per = [(tot * (i + 1)) // 8 - (tot * i) // 8 for i in range(8)]
        plan = []
        for it in range(8):
            n = per[it]
            if it <= fx + 1:
                n = min(n, len(early))
                plan.append([early.pop(0) for _ in range(n)])
            else:
                rest = late[:8] + early + late[8:] if it == fx + 2 else rest
                early = late = []
                n = (len(rest) + 7 - it) // (8 - it)
                plan.append([rest.pop(0) for _ in range(n)])
        for it in range(8):
            A, B = BUF[it & 1], BUF[it & 1] + 32
            mf = []
            if it == 0:
                for tp in range(8):
                    mf.append(f'v_mfma_f32_16x16x32_bf16 {ar(ACC + 4 * tp, 4)}, {ar(AD, 4)}, {ar(B + 4 * tp, 4)}, 0')
            for tp in range(8):
                for t in range(8 - tp):
                    c = ar(ACC + 4 * (t + tp), 4)
                    mf.append(f'v_mfma_f32_16x16x32_bf16 {c}, {ar(A + 4 * t, 4)}, {ar(B + 4 * tp, 4)}, {c}')
            fill = [[] for _ in mf]
            base = 8 if it == 0 else 0
            if it < 7:
                rd = [rdB(it + 1, 0)] + [rdA(it + 1, t) for t in range(8)] + [rdB(it + 1, t) for t in range(1, 8)]
                for i, x in enumerate(rd):
                    fill[base + 2 * i].append(x)
            n = len(plan[it])
            pos = base
            for i, g in enumerate(plan[it]):
                p = max(base + ((i + 1) * 35) // n, pos)
                k = len(g) - 1
                for z, x in enumerate(g[:-1]):
                    fill[max(pos, p - (k - z + 1) // 2)].append(x)
                fill[p].append(g[-1])
                pos = p
            if it == 0:
                for i, x in enumerate(self.clear_pst(228)):
                    fill[i].append(x)
            if it == fx:
                fill[-1].append(f'buffer_load_dword v{vFl}, off, {WS}, s{sT3} sc1')
            if it == fx + 1:
                fill[-1].append(lambda: self.check(S_WS, f's{sT3}', 1, vFl))
            if it == 7:
                fill[0].append(f's_add_u32 s{sFW}, s{sT3}, {(C_FWR - C_FXR) * 256}')
                fill[1].append(f's_mov_b32 s{sSide}, 0')
                fill[-1].append(f'buffer_load_dword v{vFl}, off, {WS}, s{sFW} sc1')
            if it >= 6:
                ops = []
                T = it - 6
                for row in range(4):
                    src = XR + 8 * T + 2 * row
                    xf = XF + 16 * T + 4 * row
                    st = SR + 8 * T + 2 * row
                    ops += [f'v_lshlrev_b32 v{xf}, 16, v{src}', f'v_and_b32 v{xf + 1}, s{sT2}, v{src}',
                            f'v_lshlrev_b32 v{xf + 2}, 16, v{src + 1}', f'v_and_b32 v{xf + 3}, s{sT2}, v{src + 1}']
                    ops += [f'v_fma_f32 v{xf + 32 + c}, v{xf + c}, v{st}, v{st + 1}' for c in range(4)]
                for i, x in enumerate(ops):
                    fill[2 + i].append(x)
            self.stamp(f'it{it}')
            if it > 0:
                a.need(ar(BUF[it & 1], 56))
            for m, f in zip(mf, fill):
                a(m)
                a(f)
        self.stamp(6)
        for T in range(8):
            a(f'ds_write_b128 v{vG}, {ar(ACC + 4 * T, 4)} offset:{1024 * T}')
        a('s_waitcnt lgkmcnt(0)')
        a('s_barrier')
        self.stamp('zbar')
        Z = XR
        for T in range(2):
            for ch in range(4):
                a(f'ds_read_b128 {vr(Z + 16 * T + 4 * ch, 4)}, v{vZR2 if ch & 2 else vZR} offset:{(ch & 1) * GW + 1024 * T}')
        a(f's_mov_b32 s{sT0}, {HP4}')
        for T in range(2):
            for p in range(2):
                ho = XF + 32 + 16 * T + 8 * p
                for b in range(2):
                    row = 2 * p + b
                    for c in range(4):
                        x = XF + 16 * T + 4 * row + c
                        a(f'v_fmac_f32 v{x}, v{x + 32}, v{Z + 16 * T + 4 * c + row}')
                    for c2 in range(2):
                        x = XF + 16 * T + 4 * row + 2 * c2
                        a(f'v_cvt_pk_bf16_f32 v{ho + 2 * b + c2}, v{x}, v{x + 1}')
                a(f'buffer_store_dwordx4 {vr(ho, 4)}, v{vHS}, {WS}, s{sT0} offen offset:{2048 * T + 1024 * p} sc1')
        self.stamp(7)
        assert not wt
        a('.Ljoin:')

    def arrive_e2(self):
        a = self.a
        a(f's_lshl_b32 s{sT0}, s{sX}, 8')
        a(f's_add_u32 s{sT0}, s{sT0}, {C_B1 * 256}')
        with self.wave0():
            self.two_level(f's{sT0}', 31, C_B2, self.opt['arr'] == 's')

    def side(self):
        a = self.a
        a('.Lside:')
        a.fresh('role')
        vTid = 1
        a(f'v_lshl_add_u32 v{vTid}, s{S_W}, 6, v0')
        if self.opt['place'] == 0:
            a(f's_sub_u32 s{sG}, s{sX}, 2')
            a(f's_lshl4_add_u32 s{sG}, s{sG}, s{sM}')
        else:
            a(f's_sub_u32 s{sG}, s{sJ}, 20')
            a(f's_lshl3_add_u32 s{sG}, s{sG}, s{sX}')
        linit = a.label('noinit')
        a(f's_lshl2_add_u32 s{sT0}, s{sG}, s{S_W}')
        a(f's_cmp_lg_u32 s{sT0}, {48 * 4}')
        a(f's_cbranch_scc1 {linit}')
        with a.untracked():
            a('v_lshlrev_b32 v2, 8, v0')
            a('v_mov_b32 v3, 0')
            a('s_mov_b32 exec_hi, 0xfff')
            a('s_waitcnt lgkmcnt(0)')
            a.fresh()
            a(f'buffer_store_dword v3, v2, {WS}, 0 offen sc1')
            a('v_mov_b32 v4, 1')
            a('s_mov_b64 exec, 1')
            a('s_waitcnt vmcnt(0)')
            a(f'buffer_store_dword v4, off, {sr(S_DBG, 4)}, 0 sc1')
            a('s_mov_b64 exec, -1')
        a(f'{linit}:')
        a.fresh('role')
        a(f's_cmp_ge_u32 s{sG}, 64')
        a.snapshot('s4')
        a('s_cbranch_scc1 .Ls4')
        XR, WR = 16, 56
        vA, vRow, vS8 = 2, 3, 4
        a(f'v_lshrrev_b32 v{vRow}, 3, v{vTid}')
        a(f'v_and_b32 v{vS8}, 7, v0')
        a(f's_lshr_b32 s{sT0}, s{sG}, 3')
        a(f's_lshl_b32 s{sT0}, s{sT0}, 8')
        a(f's_and_b32 s{sT1}, s{sG}, 3')
        a(f's_lshl2_add_u32 s{sT0}, s{sT1}, s{sT0}')
        a(f's_bfe_u32 s{sT1}, s{sG}, 0x10002')
        a(f's_lshl1_add_u32 s{sT0}, s{sT1}, s{sT0}')
        a(f'v_and_b32 v5, 0xf0, v{vTid}')
        a(f'v_and_b32 v6, 1, v{vRow}')
        a(f'v_add3_u32 v5, v5, v6, s{sT0}')
        a(f's_movk_i32 s{sT1}, 1280')
        a(f'v_lshlrev_b32 v6, 4, v{vS8}')
        a(f'v_mad_u32_u24 v5, v5, s{sT1}, v6')
        for j in range(10):
            a(f'buffer_load_dwordx4 {vr(XR + 4 * j, 4)}, v5, {sr(S_X, 4)}, 0 offen offset:{128 * j}')
        a(f's_lshr_b32 s{sT0}, s{sG}, 1')
        self.real_line(sT0, sT2)
        a(f's_and_b32 s{sT2}, s{sG}, 1')
        a(f's_lshl1_add_u32 s{sT0}, s{sT0}, s{sT2}')
        a(f's_mul_i32 s{sT0}, s{sT0}, {32 * 1280}')
        a(f'v_add_u32 v{vA}, s{sT0}, v6')
        a(f'v_mad_u32_u24 v{vA}, v{vRow}, s{sT1}, v{vA}')
        self.gemm_ids()
        self.w_addr()
        vW, vRd, vSt = 5, 6, 7
        a(f's_movk_i32 s{sT1}, 528')
        a(f'v_lshlrev_b32 v{vW}, 3, v{vRow}')
        a(f'v_mad_u32_u24 v{vW}, v{vS8}, s{sT1}, v{vW}')
        a(f'v_and_b32 v{vRd}, 31, v0')
        a(f'v_lshlrev_b32 v{vRd}, 4, v{vRd}')
        a(f'v_lshrrev_b32 v8, 5, v{vTid}')
        a(f'v_mad_u32_u24 v{vRd}, v8, s{sT1}, v{vRd}')
        a(f's_lshl_b32 s{sT0}, s{sG}, 8')
        a(f'v_and_b32 v{vSt}, 15, v0')
        a(f'v_lshl_add_u32 v{vSt}, v{vSt}, 4, s{sT0}')
        a(f'v_lshrrev_b32 v8, 4, v{vTid}')
        a(f's_mov_b32 s{sT1}, {QS}')
        a(f'v_mad_u32_u24 v{vSt}, v8, s{sT1}, v{vSt}')
        for j in range(10):
            for o_ in range(2):
                a(f'ds_write_b64 v{vW}, {vr(XR + 4 * j + 2 * o_, 2)} offset:{j * 4224 + o_ * 256}')
        a('s_waitcnt lgkmcnt(0)')
        a('s_barrier')
        XO = 96
        for j in range(10):
            a(f'ds_read_b128 {vr(XO + 4 * j, 4)}, v{vRd} offset:{j * 4224}')
        a(f's_mov_b32 s{sT1}, {XP4}')
        a(f's_mov_b32 s{sOne}, 0x3f803f80')
        for i in range(4):
            a(f'v_mov_b32 v{8 + i}, 0')
        for j in range(10):
            a(f'buffer_store_dwordx4 {vr(XO + 4 * j, 4)}, v{vSt}, {WS}, s{sT1} offen sc1')
            a(f's_add_u32 s{sT1}, s{sT1}, {16 * QS}')
            for i in range(4 * j, 4 * j + 4):
                a(f'v_dot2c_f32_bf16 v{8 + (i & 1)}, s{sOne}, v{XR + i}')
                a(f'v_dot2c_f32_bf16 v{10 + (i & 1)}, v{XR + i}, v{XR + i}')
        a('v_add_f32 v8, v8, v9')
        a('v_add_f32 v10, v10, v11')
        for m in ('quad_perm:[1,0,3,2]', 'quad_perm:[2,3,0,1]', 'row_half_mirror'):
            a(f'v_add_f32_dpp v8, v8, v8 {m} row_mask:0xf bank_mask:0xf')
            a(f'v_add_f32_dpp v10, v10, v10 {m} row_mask:0xf bank_mask:0xf')
        a(f'v_mul_f32 v8, {f32(1 / 640)}, v8')
        a(f'v_mul_f32 v10, {f32(1 / 640)}, v10')
        a('v_fma_f32 v10, -v8, v8, v10')
        a('v_max_f32 v10, 0, v10')
        a(f'v_add_f32 v10, {f32(1e-5)}, v10')
        a('v_rsq_f32 v10, v10')
        a(f'v_lshl_add_u32 v12, v{vRow}, 3, s{sT0}')
        a('v_mul_f32 v11, -v8, v10')
        a(f's_mov_b32 s{sT1}, {ST1}')
        vFl = 13
        a(f'buffer_load_dword v{vFl}, off, {sr(S_DBG, 4)}, 0 sc1')
        a('s_mov_b32 exec_lo, 0x01010101')
        a('s_mov_b32 exec_hi, 0x01010101')
        a(f'buffer_store_dwordx2 v[10:11], v12, {WS}, s{sT1} offen sc1')
        a('s_mov_b64 exec, -1')
        a('s_branch .Lr1')
        a('.Ls4:')
        a.fresh('s4')
        T4 = 10240
        a(f's_sub_u32 s{sT4}, s{sG}, 64')
        a(f's_lshr_b32 s{sT5}, s{sT4}, 2')
        a(f's_and_b32 s{sT4}, s{sT4}, 3')
        a(f's_mul_i32 s{sT0}, s{sT4}, 160')
        a(f's_lshl3_add_u32 s{sT0}, s{S_W}, s{sT0}')
        a(f's_mul_i32 s{sT0}, s{sT0}, 3072')
        a(f's_mul_i32 s{sT1}, s{sT5}, 3')
        a(f's_add_u32 s{sT1}, s{sT1}, 1')
        self.real_line(sT1, sT2)
        a(f's_lshl_b32 s{sT1}, s{sT1}, 7')
        a(f's_add_u32 s{sT0}, s{sT0}, s{sT1}')
        a('v_lshrrev_b32 v3, 3, v0')
        a('v_and_b32 v4, 7, v0')
        a(f'v_lshl_add_u32 v2, v4, 4, s{sT0}')
        a(f's_movk_i32 s{sT1}, 3072')
        a(f'v_mad_u32_u24 v2, v3, s{sT1}, v2')
        a(f's_mov_b32 s{sT0}, 0')
        for i in range(10):
            a(f'buffer_load_dwordx4 {vr(XR + 4 * i, 4)}, v2, {sr(S_WU if i & 1 else S_WG, 4)}, s{sT0} offen')
            if i & 1:
                a(f's_add_u32 s{sT0}, s{sT0}, {32 * 3072}')
        self.gemm_ids()
        self.w_addr()
        a(f's_lshl_b32 s{sT0}, s{S_W}, 9')
        a(f'v_lshl_add_u32 v5, v3, 6, s{sT0}')
        a('v_and_b32 v6, 1, v0')
        a('v_lshl_add_u32 v5, v6, 4, v5')
        a('v_bfe_u32 v6, v0, 1, 2')
        a('v_lshlrev_b32 v7, 5, v6')
        a('v_xor_b32 v5, v5, v7')
        a(f's_movk_i32 s{sT0}, {T4}')
        a(f'v_mad_u32_u24 v5, v6, s{sT0}, v5')
        a('v_xor_b32 v6, 32, v5')
        a('v_lshrrev_b32 v7, 5, v0')
        a('v_bfe_u32 v8, v0, 2, 2')
        a('v_lshl_add_u32 v7, v7, 3, v8')
        a('v_lshlrev_b32 v7, 6, v7')
        a('v_and_b32 v8, 3, v0')
        a('v_lshl_add_u32 v7, v8, 4, v7')
        a('v_bfe_u32 v8, v0, 4, 1')
        a('v_lshl_add_u32 v7, v8, 3, v7')
        a(f's_lshl_b32 s{sT1}, s{S_W}, 5')
        a(f'v_xor_b32 v7, s{sT1}, v7')
        a(f's_mul_i32 s{sT1}, s{S_W}, {T4}')
        a(f'v_add_u32 v7, s{sT1}, v7')
        for i in range(10):
            a(f'ds_write_b128 v{6 if i & 1 else 5}, {vr(XR + 4 * i, 4)} offset:{(i >> 1) * 2048}')
        a('s_waitcnt lgkmcnt(0)')
        a('s_barrier')
        for j in range(10):
            for e in range(2):
                a(f'ds_read_b64_tr_b16 {vr(XO + 4 * j + 2 * e, 2)}, v7 offset:{1024 * j + 256 * e}')
        a(f's_lshl2_add_u32 s{sT0}, s{sT5}, s{S_W}')
        a(f's_lshl2_add_u32 s{sT0}, s{sT0}, s{sT4}')
        a(f's_mul_i32 s{sT0}, s{sT0}, 10240')
        a(f's_add_u32 s{sT0}, s{sT0}, {W45F}')
        a('v_lshlrev_b32 v9, 4, v0')
        a(f'buffer_load_dword v{vFl}, off, {sr(S_DBG, 4)}, 0 sc1')
        for j in range(10):
            if j and j & 3 == 0:
                a(f's_add_u32 s{sT0}, s{sT0}, 4096')
            a(f'buffer_store_dwordx4 {vr(XO + 4 * j, 4)}, v9, {WS}, s{sT0} offen offset:{(j & 3) * 1024} sc1')
        a('.Lr1:')
        a('s_waitcnt vmcnt(0) lgkmcnt(0)')
        a('s_barrier')
        a(f's_movk_i32 s{sT0}, {C_FX * 256}')
        with self.wave0():
            self.check(S_DBG, '0', 1, vFl)
            self.two_level(f's{sT0}', 95, C_FXR)
        self.stamp(1)
        a(f's_cmp_ge_u32 s{sG}, 48')
        a('s_cbranch_scc1 .Ls2')
        WB = 49152
        for j in range(10):
            a(f'buffer_load_dwordx4 {vr(WR + 4 * j, 4)}, v{vA}, {sr(S_WD, 4)}, 0 offen offset:{128 * j}')
        a(f's_movk_i32 s{sT1}, 1344')
        a(f'v_lshlrev_b32 v{vW}, 4, v{vS8}')
        a(f'v_mad_u32_u24 v{vW}, v{vRow}, s{sT1}, v{vW}')
        a('v_lshrrev_b32 v8, 4, v0')
        a('v_bfe_u32 v9, v0, 2, 2')
        a('v_lshl_add_u32 v8, v8, 3, v9')
        a(f's_mul_i32 s{sT0}, s{S_W}, 320')
        a(f'v_mov_b32 v9, s{sT0}')
        a(f'v_mad_u32_u24 v8, v8, s{sT1}, v9')
        a('v_and_b32 v9, 3, v0')
        a('v_lshl_add_u32 v10, v9, 3, v8')
        a('v_lshl_add_u32 v8, v9, 4, v8')
        for j in range(10):
            a(f'ds_write_b128 v{vW}, {vr(WR + 4 * j, 4)} offset:{WB + 128 * j}')
        a('s_waitcnt lgkmcnt(0)')
        a('s_barrier')
        for cc in range(2):
            for nt in range(5):
                for e in range(2):
                    off = WB + cc * 160 + e * 4 * 1344 + ((nt >> 1) * 64 + (nt & 1) * 8)
                    a(f'ds_read_b64_tr_b16 {vr(XO + 4 * (5 * cc + nt) + 2 * e, 2)}, v{10 if nt == 4 else 8} offset:{off}')
        a(f's_mul_i32 s{sT0}, s{S_W}, 96')
        a(f's_add_u32 s{sT0}, s{sT0}, s{sG}')
        a(f's_mul_i32 s{sT0}, s{sT0}, 5120')
        a(f's_add_u32 s{sT0}, s{sT0}, {WDF}')
        a('v_lshlrev_b32 v9, 4, v0')
        for cc in range(2):
            for nt in range(5):
                if nt == 4:
                    a(f's_add_u32 s{sT0}, s{sT0}, 4096')
                a(f'buffer_store_dwordx4 {vr(XO + 4 * (5 * cc + nt), 4)}, v9, {WS}, s{sT0} offen offset:{(nt & 3) * 1024} sc1')
            a(f's_add_u32 s{sT0}, s{sT0}, {48 * 5120 - 4096}')
        a('s_branch .Lr2')
        a('.Ls2:')
        a.fresh()
        a(f's_sub_u32 s{sT0}, s{sG}, 48')
        a(f's_cmp_ge_u32 s{sT0}, 24')
        a(f's_cselect_b32 s{S_WD}, s{S_WU}, s{S_WG}')
        a(f's_cselect_b32 s{S_WD + 1}, s{S_WU + 1}, s{S_WG + 1}')
        a(f's_cselect_b32 s{sT1}, 24, 0')
        a(f's_sub_u32 s{sT1}, s{sT0}, s{sT1}')
        self.real_line(sT1, sT2)
        a(f's_lshl_b32 s{sT1}, s{sT1}, 7')
        a('v_and_b32 v2, 7, v0')
        a(f'v_lshrrev_b32 v3, 3, v{vTid}')
        a(f'v_lshl_add_u32 v4, v2, 4, s{sT1}')
        a(f's_movk_i32 s{sT2}, 3072')
        a(f'v_mad_u32_u24 v4, v3, s{sT2}, v4')
        a(f's_mov_b32 s{sT2}, 0')
        for i in range(8):
            a(f'v_mov_b32 v{16 + i}, 0')
        a(f's_mov_b32 s{sT4}, 0x3f80')
        a(f's_mov_b32 s{sT3}, 0x3f800000')
        LA = 12
        for i in range(20 + LA):
            if i < 20:
                a(f'buffer_load_dwordx4 {vr(32 + 4 * i, 4)}, v4, {sr(S_WD, 4)}, s{sT2} offen')
                a(f's_add_u32 s{sT2}, s{sT2}, {32 * 3072}')
            if i >= LA:
                for d in range(4):
                    a(f'v_dot2c_f32_bf16 v{16 + 2 * d}, s{sT4}, v{32 + 4 * (i - LA) + d}')
                    a(f'v_dot2c_f32_bf16 v{17 + 2 * d}, s{sT3}, v{32 + 4 * (i - LA) + d}')
        a(f'v_lshlrev_b32 v5, 5, v{vTid}')
        a(f'ds_write_b128 v5, v[16:19] offset:{WB}')
        a(f'ds_write_b128 v5, v[20:23] offset:{WB + 16}')
        a('s_waitcnt lgkmcnt(0)')
        a('s_barrier')
        a('v_lshlrev_b32 v6, 2, v0')
        for i in range(16):
            a(f'ds_read2st64_b32 {vr(32 + 2 * i, 2)}, v6 offset0:{WB // 256 + 2 * i} offset1:{WB // 256 + 2 * i + 1}')
        for i in range(1, 16):
            a(f'v_pk_add_f32 v[32:33], v[32:33], {vr(32 + 2 * i, 2)}')
        a('v_add_f32 v32, v32, v33')
        a('v_cvt_pk_bf16_f32 v8, v32, v32')
        a('v_lshlrev_b32 v10, 16, v8')
        a('v_sub_f32 v10, v32, v10')
        a('v_cvt_pk_bf16_f32 v9, v10, v10')
        a(f's_lshl_b32 s{sT0}, s{sT0}, 9')
        a(f's_add_u32 s{sT0}, s{sT0}, {CSF}')
        a('v_lshrrev_b32 v6, 5, v0')
        a('v_lshlrev_b32 v6, 8, v6')
        a('v_and_b32 v7, 15, v0')
        a('v_lshl_add_u32 v6, v7, 4, v6')
        a('v_bfe_u32 v7, v0, 4, 1')
        a('v_lshl_add_u32 v6, v7, 3, v6')
        a(f'buffer_store_dwordx2 v[8:9], v6, {WS}, s{sT0} offen sc1')
        a('.Lr2:')
        a.fresh()
        self.stamp(2)
        a(f's_lshl_b32 s{sT0}, s{sG}, 8')
        a(f's_add_u32 s{sT0}, s{sT0}, {C_F3 * 256}')
        a('v_mov_b32 v4, 0')
        a('s_mov_b64 exec, 1')
        a(f'buffer_store_dword v4, off, {WS}, s{sT0} sc1')
        a('s_mov_b64 exec, -1')
        a(self.clear_pst(2))
        self.w_select()
        wl = self.w_loads_main()
        n0 = self.opt.get('side_pre', 8)
        a(wl[:n0])
        a.drain_stores()
        a('s_waitcnt lgkmcnt(0)')
        a('s_barrier')
        self.stamp(6)
        lfw = a.label('nofw')
        a(f's_cmp_ge_u32 s{sG}, 48')
        a(f's_cbranch_scc1 {lfw}')
        a(f's_movk_i32 s{sT0}, {C_FW * 256}')
        with self.wave0():
            self.two_level(f's{sT0}', 47, C_FWR)
        a(f'{lfw}:')
        self.arrive_e2()
        a(f's_lshl_b32 s{sT4}, s{sX}, 8')
        a(f's_add_u32 s{sT4}, s{sT4}, {C_FXR * 256}')
        a(f'buffer_load_dword v1, off, {WS}, s{sT4} sc1')
        a(wl[n0:32])
        self.check(S_WS, f's{sT4}', 1, 1)
        a(self.w_loads_tail())
        a(f's_add_u32 s{sFW}, s{sT4}, {(C_FWR - C_FXR) * 256}')
        a(f's_mov_b32 s{sSide}, 1')
        a(f'buffer_load_dword v246, off, {WS}, s{sFW} sc1')
        a('s_waitcnt vmcnt(0)')
        self.stamp(7)
        a('s_branch .Ljoin')

    def signal(self, soff):
        a = self.a
        if self.opt['sig'] == 's':
            a(f's_atomic_add s{sU2}, {sr(S_WS, 2)}, {soff}')
        else:
            a('s_mov_b64 exec, 1')
            a(f'buffer_atomic_add v{self.vOne}, off, {WS}, {soff} sc1')
            a('s_mov_b64 exec, -1')

    def gemms(self):
        a = self.a
        o = self.opt
        t, t2 = self.vTmp, self.vTmp2
        L, AB = 0, 8
        vRD = 4
        vAL, vAS, vA2, vWD, vWD2, vCS, vFl = 1, 2, 3, 247, 255, 246, 254
        vW5 = 252
        vS = 232
        BP = 236
        TM = 242
        ACC = 168
        RING1, CS, RING2 = 124, 148, 240
        sF3s, sF3p = sQ, sM
        sRB2w = sG
        kap = [[3 * c + ((pi + 1) % 3 if c & 1 else pi) for c in range(4)] for pi in range(3)]
        wd = []
        for i in range(60):
            g = []
            if i % 5 == 0:
                g.append(f's_mov_b32 s{sWoff2}, {WDF + 5120 * kap[i // 20][i // 5 % 4]}')
            g.append(f'buffer_load_dwordx4 {ar(4 * i, 4)}, v{vWD2 if i % 5 == 4 else vWD}, {WS}, s{sWoff2} offen offset:{(i % 5 & 3) * 1024} sc1')
            wd.append(g)
        if o.get('nowd'):
            wd = [[] for _ in wd]
        self.w_write_addr()
        wl = self.w_loads_main()[32:]
        a(wl[0][:-1])
        wl[0] = wl[0][-1]
        if o['wd_pre']:
            self.check(S_WS, f's{sFW}', 1, vCS)
        a('s_barrier')
        self.stamp('hbar')
        real, setup0 = a, []
        a = setup0.append
        a(f's_and_b32 s{sT0}, s{sJ}, 7')
        a(f's_lshl2_add_u32 s{sT0}, s{sT0}, s{S_W}')
        a(f's_mul_i32 s{sT0}, s{sT0}, {12 * 5120}')
        a(f'v_lshl_add_u32 v{vWD}, v0, 4, s{sT0}')
        a(f'v_add_u32 v{vWD2}, 0x1000, v{vWD}')
        a(f'v_lshlrev_b32 v{vRD}, 4, v0')
        for s in range(1, 4):
            a(f'v_xor_b32 v{t}, {16 * s}, v{vRD}')
            a(f'v_add_u32 v{vRD + s}, {TILE * s}, v{t}')
        a(f's_lshl_b32 s{sT0}, s{S_W}, 10')
        a(f'v_add_u32 v{vW5}, s{sT0}, v{vRD}')
        a(f'v_add_u32 v{vW5 + 1}, s{sT0}, v{vRD + 1}')
        a(f's_lshl2_add_u32 s{sT0}, s{sRB}, s{S_W}')
        a(f's_lshl_b32 s{sT1}, s{sT0}, 8')
        a(f'v_and_b32 v{t}, 15, v0')
        a(f'v_lshlrev_b32 v{vA2}, 4, v{t}')
        a(f'v_add_u32 v{t}, s{sT1}, v{vA2}')
        a(f'v_lshrrev_b32 v{t2}, 4, v0')
        a(f's_mov_b32 s{sT1}, {QS}')
        a(f'v_mad_u32_u24 v{vAL}, v{t2}, s{sT1}, v{t}')
        a(f'v_lshl_add_u32 v{vA2}, v{t2}, 9, v{vA2}')
        a(f's_mul_i32 s{sT1}, s{sT0}, 98304')
        a(f'v_lshl_add_u32 v{vAS}, v0, 4, s{sT1}')
        a(f's_lshr_b32 s{sF3s}, s{sT0}, 1')
        a(f's_lshl_b32 s{sF3s}, s{sF3s}, 8')
        a(f's_add_u32 s{sF3s}, s{sF3s}, {C_F3 * 256}')
        a(f's_lshr_b32 s{sT1}, s{sJ}, 3')
        a(f's_lshl2_add_u32 s{sF3p}, s{sX}, s{sT1}')
        a(f's_lshl_b32 s{sRB2w}, s{sF3p}, 1')
        a(f's_lshl_b32 s{sF3p}, s{sF3p}, 8')
        a(f's_add_u32 s{sF3p}, s{sF3p}, {C_F3 * 256}')
        for i in range(4):
            a(f's_add_u32 s{sT0}, s{sRot}, {i}')
            a(f's_and_b32 s{sT0}, s{sT0}, 3')
            a(f's_mul_i32 s{sT0}, s{sT0}, {40 * QS}')
            a(f's_add_u32 s{sAB + i}, s{sT0}, {HP4}')
        a(f'v_and_b32 v{t}, 3, v0')
        a(f'v_bfe_u32 v{t2}, v0, 2, 1')
        a(f'v_lshl_add_u32 v{t}, v{t2}, 3, v{t}')
        a(f'v_bfe_u32 v{t2}, v0, 4, 1')
        a(f'v_lshl_add_u32 v{t}, v{t2}, 2, v{t}')
        a(f'v_lshlrev_b32 v{t}, 4, v{t}')
        a(f'v_bfe_u32 v{t2}, v0, 3, 1')
        a(f's_movk_i32 s{sT1}, 12288')
        a(f'v_mad_u32_u24 v{vCS}, v{t2}, s{sT1}, v{t}')
        for i in range(4):
            a(f'v_mov_b32 v{vS + i}, 0')
        a(f's_mov_b32 s{sOne}, 0x3f803f80')
        a(f's_mov_b32 s{sU2}, 1')
        a(f's_lshl_b32 s{sT2}, s{sA}, 7')
        a(f's_add_u32 s{sT2}, s{sT2}, {CSF}')
        a(f's_lshl_b32 s{sT3}, s{sB}, 7')
        a(f's_add_u32 s{sT3}, s{sT3}, {CSF}')
        a(f's_lshl_b32 s{sA}, s{sA}, 10')
        a(f's_add_u32 s{sA}, s{sA}, {ACT}')
        a(f's_lshl_b32 s{sB}, s{sB}, 10')
        a(f's_add_u32 s{sB}, s{sB}, {ACT}')
        a(f's_mul_i32 s{sT5}, s{S_W}, {12 * 2048}')
        for lam in range(4):
            a(f's_xor_b32 s{sT0}, s{S_W}, {lam}')
            a(f's_lshr_b32 s{sT1}, s{sT0}, 1')
            a(f's_add_u32 s{sT1}, s{sT1}, s{sRB2w}')
            a(f's_mul_i32 s{sT1}, s{sT1}, 98304')
            a(f's_and_b32 s{sT0}, s{sT0}, 1')
            a(f's_lshl_b32 s{sT0}, s{sT0}, 8')
            a(f's_add_u32 s{sT0}, s{sT0}, s{sT5}')
            a(f's_add_u32 s{sL[lam]}, s{sT1}, s{sT0}')
        sRes, sOutB, sQS = 20, 21, 22
        a(f's_lshr_b32 s{sT0}, s{S_W}, 1')
        a(f's_add_u32 s{sT0}, s{sT0}, s{sRB2w}')
        a(f's_lshl_b32 s{sRes}, s{sT0}, 8')
        a(f's_and_b32 s{sT4}, s{S_W}, 1')
        a(f's_lshl3_add_u32 s{sRes}, s{sT4}, s{sRes}')
        a(f's_and_b32 s{sT5}, s{sJ}, 7')
        a(f's_mul_i32 s{sT6}, s{sT5}, {20 * QS}')
        a(f's_add_u32 s{sRes}, s{sRes}, s{sT6}')
        a(f's_mov_b32 s{sQS}, {QS}')
        a(f's_lshr_b32 s{sOutB}, s{sRB2w}, 3')
        a(f's_lshl_b32 s{sOutB}, s{sOutB}, 8')
        a(f's_and_b32 s{sT6}, s{sT0}, 3')
        a(f's_lshl2_add_u32 s{sOutB}, s{sT6}, s{sOutB}')
        a(f's_bfe_u32 s{sT6}, s{sRB2w}, 0x10002')
        a(f's_lshl1_add_u32 s{sOutB}, s{sT6}, s{sOutB}')
        a(f's_add_u32 s{sOutB}, s{sOutB}, s{sT4}')
        a(f's_mul_i32 s{sOutB}, s{sOutB}, 1280')
        a(f's_mul_i32 s{sT6}, s{sT5}, 160')
        a(f's_add_u32 s{sOutB}, s{sOutB}, s{sT6}')
        a(f's_lshl_b32 s{sU0}, s{sCB}, 8')
        a(f's_add_u32 s{sU0}, s{sU0}, {PST}')
        a(f's_mov_b32 s{sU1}, {PST}')
        a(f's_and_b32 s{sCB}, s{sCB}, 3')
        a(f's_mul_i32 s{sCB}, s{sCB}, 10')
        a = real
        ww = self.w_writes_main()
        lq = wl + [wd.pop(0) for _ in range(o['wd_pre'])]
        n1, n2 = o.get('ww1', 13), o.get('ww2', 7)

        def some(n, nl):
            for i in range(n):
                a(ww.pop(0))
                for _ in range(6):
                    if setup0:
                        a(setup0.pop(0))
                for _ in range(((i + 1) * nl) // n - (i * nl) // n):
                    if lq:
                        a(lq.pop(0))
        some(4, 0)
        some(n1 - 4, o.get('l1', 8))
        self.stamp('hissued')
        a.drain_stores()
        self.stamp('hdrained')
        a('s_barrier')
        self.stamp('hbar2')
        lns = a.label('noarr')
        a(f's_mov_b32 s{sArr}, 1')
        a(f's_or_b32 s{sSide}, s{sSide}, s{S_W}')
        a(f's_cbranch_scc1 {lns}')
        with a.untracked():
            a(f's_lshl_b32 s{sSpin}, s{sX}, 8')
            a(f's_atomic_add s{sArr}, {sr(S_WS, 2)}, s{sSpin} offset:{C_B1 * 256} glc')
        a(f'{lns}:')
        some(n2, o.get('l2', 6))
        lns = a.label('notlast')
        a('s_waitcnt lgkmcnt(0)')
        a(f's_cmp_lg_u32 s{sArr}, 31')
        a(f's_cbranch_scc1 {lns}')
        with a.untracked():
            a('s_mov_b64 exec, 0xff')
            a(f'v_lshlrev_b32 v{TM}, 8, v0')
            a(f's_mov_b32 s{sT7}, {C_B2 * 256}')
            a(f'buffer_atomic_add v{self.vOne}, v{TM}, {WS}, s{sT7} offen sc1')
            a('s_mov_b64 exec, -1')
        a(f'{lns}:')
        self.stamp('arrived')
        some(24 - n1 - n2, len(lq))
        a(setup0)
        a(lq)
        self.stamp('wwritten')
        a(f's_lshl_b32 s{sT0}, s{sX}, 8')
        a(f's_add_u32 s{sT0}, s{sT0}, {C_B2 * 256}')
        self.warm([[3, 6], [4, 7], [5]])
        with self.wave0():
            self.spin(S_WS, f's{sT0}', 8, t)
        self.stamp('polled')
        a('s_waitcnt lgkmcnt(0)')
        a('s_barrier')
        self.stamp(8)
        al = []
        for j in range(40):
            if j % 10 == 0:
                al.append([f'buffer_load_dwordx4 {vr(AB + 4 * j, 4)}, v{vAL}, {WS}, s{sAB + j // 10} offen sc1'])
            else:
                al.append([f's_add_u32 s{sT1}, s{sAB + j // 10}, {(j % 10) * 4 * QS}',
                           f'buffer_load_dwordx4 {vr(AB + 4 * j, 4)}, v{vAL}, {WS}, s{sT1} offen sc1'])
        al.append(f'buffer_load_dwordx4 {ar(CS, 4)}, v{vCS}, {WS}, s{sT2} offen sc1')
        al.append(f'buffer_load_dwordx4 {ar(CS + 4, 4)}, v{vCS}, {WS}, s{sT2} offen offset:256 sc1')
        al.append(f'buffer_load_dwordx4 {ar(CS + 8, 4)}, v{vCS}, {WS}, s{sT3} offen sc1')
        for _ in range(o['a_ahead']):
            a(al.pop(0))

        def rd(dst, slot, j):
            return f'ds_read_b128 {ar(dst, 4)}, v{vRD + slot} offset:{1024 * j}'

        def swaps(j):
            return [f'v_permlane16_swap_b32 v{AB + 4 * j + e}, v{AB + 4 * j + 2 + e}' for e in range(2)]

        def acc(slot):
            return vr(ACC + 16 * slot, 16)
        wtail = [f'ds_write_b128 v{vW5 + (i & 1)}, {ar(160 + 4 * i, 4)} offset:{(i >> 1) * 4096}' for i in range(20)]
        if o.get('nowt'):
            wtail = [[] for _ in wtail]
        C0, C1, R = vS, vS + 1, vS + 2
        c0 = -2.0 * 0.7978845608028654 * 1.4426950408889634
        G = ACC + 48
        gather = [f'buffer_load_dwordx2 {vr(G + 2 * s, 2)}, v{self.vPS}, {WS}, s{sU1} offen offset:{256 * s} sc1'
                  for s in range(8)]
        valid = [f'v_or3_b32 v{t}, v{G + 1}, v{G + 3}, v{G + 5}', f'v_or3_b32 v{t2}, v{G + 7}, v{G + 9}, v{G + 11}',
                 f'v_or3_b32 v{t}, v{t}, v{G + 13}, v{G + 15}', f'v_or_b32 v{t}, v{t}, v{t2}',
                 f'v_cmp_gt_i32 vcc, 0, v{t}']

        def chk_stats():
            slow, back = a.label('slow'), a.label('back')
            a('s_nop 1')
            a(f's_cbranch_vccnz {slow}')
            a(f'{back}:')

            def cold():
                top = a.label('top')
                a(f'{slow}:')
                with a.untracked():
                    a(f's_mov_b32 s{sSpin}, {SPIN}')
                    a(f'{top}:')
                    a(gather)
                    a('s_waitcnt vmcnt(0)')
                    a(valid)
                    a(f's_sub_u32 s{sSpin}, s{sSpin}, 1')
                    a(f's_cbranch_scc1 {back}')
                    a('s_nop 3')
                    a(f's_cbranch_vccnz {top}')
                    a(f's_branch {back}')
            self.cold.append(cold)
        halves = [
            f'v_add_f32 v{vS}, v{vS}, v{vS + 1}',
            f'v_add_f32 v{vS + 2}, v{vS + 2}, v{vS + 3}',
            f'v_mov_b32 v{vS + 1}, v{vS}',
            f'v_mov_b32 v{vS + 3}, v{vS + 2}',
            f'v_cmp_gt_u32 vcc, 32, v{L}',
            f'v_permlane32_swap_b32 v{vS}, v{vS + 1}',
            f'v_permlane32_swap_b32 v{vS + 2}, v{vS + 3}']
        pub = halves + [
            f'v_add_f32 v{G}, v{vS}, v{vS + 1}',
            f'v_add_f32 v{G + 1}, v{vS + 2}, v{vS + 3}',
            f'v_and_b32 v{G + 1}, 0x7fffffff, v{G + 1}',
            ['s_mov_b32 exec_hi, 0',
             f'buffer_store_dwordx2 {vr(G, 2)}, v{self.vPS}, {WS}, s{sU0} offen sc1',
             's_mov_b32 exec_hi, -1']]
        st = valid + [chk_stats]
        for w_ in range(2):
            g = G + w_
            st += [f'v_add_f32 v{g}, v{g}, v{g + 2}', f'v_add_f32 v{g + 4}, v{g + 4}, v{g + 6}',
                   f'v_add_f32 v{g + 8}, v{g + 8}, v{g + 10}', f'v_add_f32 v{g + 12}, v{g + 12}, v{g + 14}',
                   f'v_add_f32 v{vS + 2 * w_}, v{g}, v{g + 4}', f'v_add_f32 v{vS + 2 * w_ + 1}, v{g + 8}, v{g + 12}']
        st += halves + [
            f'v_add_f32 v{vS}, v{vS}, v{vS + 1}',
            f'v_add_f32 v{vS + 2}, v{vS + 2}, v{vS + 3}',
            f'v_mul_f32 v{vS}, {f32(-1 / 640)}, v{vS}',
            f'v_mul_f32 v{vS + 2}, {f32(1 / 640)}, v{vS + 2}',
            f'v_cvt_pk_bf16_f32 v{t}, v{vS}, v{vS}',
            f'v_fma_f32 v{R}, -v{vS}, v{vS}, v{R}',
            f'v_lshlrev_b32 v{t}, 16, v{t}',
            f'v_max_f32 v{R}, 0, v{R}',
            f'v_sub_f32 v{t2}, v{vS}, v{t}',
            f'v_add_f32 v{R}, {f32(1e-5)}, v{R}',
            f'v_cvt_pk_bf16_f32 v{t}, v{t}, v{t2}',
            f'v_rsq_f32 v{vS + 3}, v{R}',
            f'v_cndmask_b32 v{BP + 2}, 0, v{t}, vcc',
            f'v_cndmask_b32 v{BP + 3}, 0, v{t}, vcc',
            f'v_mul_f32 v{C0}, {f32(c0)}, v{vS + 3}',
            f'v_mul_f32 v{t}, v{vS + 3}, v{vS + 3}',
            f'v_mul_f32 v{t}, {f32(0.044715)}, v{t}',
            f'v_mul_f32 v{C1}, v{t}, v{C0}',
        ]

        def csm(tile, slot, first):
            b = vr(BP, 4) if tile & 1 else vr(BP + 2, 4)
            return f'v_mfma_f32_32x32x16_bf16 {acc(slot)}, {ar(CS + 4 * (tile >> 1), 4)}, {b}, {"0" if first else acc(slot)}'

        def pick(r0, r1):
            a(f's_set_gpr_idx_on s{sCB}, gpr_idx(SRC0)')
            a('s_nop 0')
            for r in range(r0, r1):
                a(f'v_mov_b32_e32 v{G + r}, v{AB + r}')
            a('s_set_gpr_idx_off')
        for j in range(2):
            for s in range(3):
                a(rd(RING1 + 12 * j + 4 * s, s, j))
        a(swaps(0))
        self.stamp('a0')
        p2 = [(3, 3, j) for j in range(40)] + [(4, 0, j) for j in range(40)] + [(5, 1, j) for j in range(40)]
        gq = list(gather)
        GJ, SJ = o.get('gather_j', 22), o.get('stat_j', 33)
        B1, B2 = 21, 33
        nwd1 = min(o.get('wd_p1', 6), 31 - o['wd_pre'])
        assert o['a_ahead'] <= 14
        for j in range(40):
            base = RING1 + 12 * (j & 1)
            self.stamp(f'p{j}')
            a.need(ar(base, 12))
            for s in range(3):
                c = '0' if j == 0 else acc(s)
                a(f'v_mfma_f32_32x32x16_bf16 {acc(s)}, {ar(base + 4 * s, 4)}, {vr(AB + 4 * j, 4)}, {c}')
                if j < 38:
                    a(rd(base + 4 * s, s, j + 2))
                else:
                    i = (j - 38) * 3 + s
                    if i < 4:
                        a(rd(RING2 + 4 * i, p2[i][1], p2[i][2]))
                if s == 0 and j < 39:
                    a(swaps(j + 1))
                if s == 1 and (B1 < j <= B1 + 10 or B2 < j):
                    a(wtail.pop(0))
                if s == 0 and j >= GJ and gq:
                    a(gq.pop(0))
                if s == 2:
                    if al:
                        a(al.pop(0))
                    elif nwd1 and not gq and j < SJ:
                        a(wd.pop(0))
                        nwd1 -= 1
                if j not in (8, 9) and ww:
                    if s == 0:
                        while len(ww[0]) > 1:
                            a(ww[0].pop(0))
                    if s == 1:
                        a(ww.pop(0))
                if s == 2 and j not in (7, 8) and ww:
                    a(ww[0].pop(0))
                    a(ww[0].pop(0))
                if j == 19 and s == 1:
                    assert not ww
                    for i in (0, 1, 4, 5):
                        a(f'v_mov_b32 v{BP + i}, 0')
                if j == 8 and s == 1:
                    pick(0, 4)
                if j == 9 and s == 1:
                    pick(4, 10)
                if j in (10, 11) and s != 1:
                    for _ in range(3):
                        if pub:
                            a(pub.pop(0))
                if j >= SJ:
                    for _ in range((3, 0 if j > B2 else 5, 4)[s]):
                        if st:
                            a(st.pop(0))
            if j in (B1, B2):
                a('s_barrier')
            if j == 9:
                for r in range(10):
                    a(f'v_dot2c_f32_bf16 v{vS + (r & 1)}, s{sOne}, v{G + r}')
                    a(f'v_dot2c_f32_bf16 v{vS + 2 + (r & 1)}, v{G + r}, v{G + r}')
        assert not pub and not al and not st
        a(st)
        RES, vRes, vRes2 = 200, vAL, vCS
        res_addr = [
            f'v_and_b32 v{vRes}, 15, v{L}',
            f'v_lshl_add_u32 v{vRes2}, v{vRes}, 4, s{sRes}',
            f'v_lshrrev_b32 v{vRes}, 4, v{L}',
            f'v_mad_u32_u24 v{vRes2}, v{vRes}, s{sQS}, v{vRes2}',
            f'v_mad_u32_u24 v{vRes}, v{vRes}, s{sQS}, v{vRes2}',
        ]
        a('s_barrier')
        for tl in range(3):
            a(csm(tl, tl, False))
            a(res_addr if tl == 0 else wtail.pop(0))
        self.stamp(9)

        def epi(tile, slot, packed=False):
            b = ACC + 16 * slot
            tm = [TM, TM + 1, TM + 2, TM + 3]
            ops = []
            for h in range(2):
                g, u = b + 8 * h, b + 8 * h + 4
                ops += [(1, f'v_mul_f32 v{tm[i]}, v{g + i}, v{g + i}') for i in range(4)]
                ops += [(1, f'v_fma_f32 v{tm[i]}, v{tm[i]}, v{C1}, v{C0}') for i in range(4)]
                ops += [(1, f'v_mul_f32 v{tm[i]}, v{tm[i]}, v{g + i}') for i in range(4)]
                for i in range(4):
                    ops += [(2, f'v_exp_f32 v{tm[i]}, v{tm[i]}'), (1, f'v_mul_f32 v{u + i}, v{u + i}, v{g + i}')]
                ops += [(1, f'v_fma_f32 v{tm[i]}, v{tm[i]}, v{R}, v{R}') for i in range(4)]
                ops += [(2, f'v_rcp_f32 v{tm[i]}, v{tm[i]}') for i in range(4)]
                ops += [(1, f'v_mul_f32 v{u + i}, v{u + i}, v{tm[i]}') for i in range(4)]
                ops += [(1, f'v_cvt_pk_bf16_f32 v{b + 2 * h + i}, v{u + 2 * i}, v{u + 2 * i + 1}') for i in range(2)]
            so = sA if tile < 4 else sB
            txt = f'buffer_store_dwordx4 {vr(b, 4)}, v{vAS}, {WS}, s{so} offen offset:{(tile & 3) * 1024} sc1'
            ops.append((5, (lambda: a(txt, tag=f'act{tile}')) if not o.get('nost') else []))
            if o.get('noepi'):
                ops = [(c_, x if callable(x) else []) for c_, x in ops]
            return ops

        G2 = 72
        FR = [[8 + 4 * i for i in range(16)],
              [152 + 4 * i for i in range(4)] + [200 + 4 * i for i in range(8)] + [168 + 4 * i for i in range(4)],
              [8 + 4 * i for i in range(16)]]
        order = [[(c, lam) for c in range(4) for lam in range(4)]] * 2 + [[(c, lam) for lam in (3, 2, 1, 0) for c in range(4)]]

        def act_ld(pi, n):
            c, lam = order[pi][n]
            if o.get('noact'):
                return []
            return [f's_add_u32 s{sT1}, s{sL[lam]}, {ACT + 2048 * kap[pi][c]}',
                    f'buffer_load_dwordx4 {vr(FR[pi][n], 4)}, v{vA2}, {WS}, s{sT1} offen sc1']

        def sig(pi, tag):
            def f():
                self.stamp(f'presig{pi}')
                a.need_tag(tag)
                self.signal(f's{sF3s}')
                self.stamp(f'sig{pi}')
                if pi < 2:
                    a(f's_add_u32 s{sF3s}, s{sF3s}, {32 * 256}')
            return f

        def poll_ld():
            return f'buffer_load_dword v{vFl}, off, {WS}, s{sF3p} sc1'

        def poll_chk(pi):
            def f():
                self.stamp(f'prechk{pi}')
                self.check(S_WS, f's{sF3p}', 32, vFl)
                self.stamp(f'chk{pi}')
                if pi < 2:
                    a(f's_add_u32 s{sF3p}, s{sF3p}, {32 * 256}')
            return f
        RES, vRes, vRes2 = 200, vAL, vCS
        res_addr = [
            f'v_and_b32 v{vRes}, 15, v{L}',
            f'v_lshl_add_u32 v{vRes2}, v{vRes}, 4, s{sRes}',
            f'v_lshrrev_b32 v{vRes}, 4, v{L}',
            f'v_mad_u32_u24 v{vRes2}, v{vRes}, s{sQS}, v{vRes2}',
            f'v_mad_u32_u24 v{vRes}, v{vRes}, s{sQS}, v{vRes2}',
        ]
        res_ld = []
        for nt in range(5):
            q = 8 * (nt >> 1) + (nt & 1)
            res_ld.append([f's_mov_b32 s{sT6}, {HP4 + q * QS}',
                           f'buffer_load_dwordx2 {vr(RES + 2 * nt, 2)}, v{vRes2 if nt == 4 else vRes}, {WS}, s{sT6} offen sc1'])
        slot_of = {0: 0, 1: 1, 2: 2, 3: 3, 4: 0, 5: 1}
        eq = epi(0, 0) + epi(1, 1) + epi(2, 2)
        budget = 0.0
        RATE = o['epi_rate']
        extra = {i: [] for i in range(120)}
        first_w = wtail.pop(0)
        for k in range(len(wtail)):
            extra[k].append(wtail[k])
        extra[30].append('s_barrier')
        nwd = len(wd) - o.get('wd_post', 12)
        done = 60 - len(wd)
        lo, hi = o.get('wd_lo', 4), o.get('wd_hi', 78)
        hold = None
        for k in range(nwd):
            g = wd.pop(0)
            p = lo + (k * (hi - lo)) // nwd
            fr = done + k
            if fr == 39:
                extra[81].append([f's_mov_b32 s{sT6}, {WDF + 5120 * kap[1][3]}', g[-1].replace(f's{sWoff2} offen', f's{sT6} offen')] if g else [])
                continue
            assert fr < 56 or p > 14
            extra[p].append(g)
        SA, SB = o.get('siga', 62), o.get('sigb', 104)
        extra[SA].append(sig(0, 'act1'))
        extra[o.get('lda', 86)].append(poll_ld())
        for k, x in enumerate(res_ld):
            extra[o.get('res_at', 86) + 2 * k].append(x)
        ca = o.get('chka', 105)
        extra[ca].append(poll_chk(0))
        na = o.get('a_in', 7)
        for n in range(na):
            extra[ca + 1 + (n * (119 - ca)) // na].append(act_ld(0, n))
        extra[SB].append(sig(1, 'act3'))
        extra[50].append('s_barrier')

        def cost(x):
            if callable(x):
                return 3
            if isinstance(x, (list, tuple)):
                return sum(cost(y) for y in x)
            return 5 if x.startswith('ds_write') else 2 if x.startswith('buffer') or x == 's_barrier' else 1
        CAP = o.get('cap', 6.6)
        for i, (tile, ls, j) in enumerate(p2):
            slot = slot_of[tile]
            self.stamp(f'q{i}')
            if j == 0:
                a(csm(tile, slot, True))
                if i == 0:
                    a(first_w)
                if i:
                    budget = 6
                    while eq and budget >= eq[0][0]:
                        cst, x = eq.pop(0)
                        budget -= cst
                        a(x)
            if i & 1 == 0:
                a.need(ar(RING2 + 4 * (i & 3), 8))
            a(f'v_mfma_f32_32x32x16_bf16 {acc(slot)}, {ar(RING2 + 4 * (i & 3), 4)}, {vr(AB + 4 * j, 4)}, {acc(slot)}')
            if i + 4 < len(p2):
                a(rd(RING2 + 4 * (i & 3), p2[i + 4][1], p2[i + 4][2]))
            a(extra[i])
            if i == 42:
                eq += epi(3, 3)
            if i == 82:
                eq += epi(4, 0)
            if i >= 1:
                budget = min(budget, 1.0) + CAP - 1 - (i & 1) - cost(extra[i])
                budget = max(budget, -1)
                while eq and budget >= min(eq[0][0], 2):
                    cst, x = eq.pop(0)
                    budget -= cst
                    a(x)
                    if callable(x) and o.get('verbose'):
                        print('store at gap', i)
                if i == 39:
                    assert len(eq) <= 2 * 69, len(eq)
                if i == SA - 1:
                    assert len(eq) <= 2 * 69, len(eq)
                if i == 79:
                    assert len(eq) <= 2 * 69, len(eq)
                if i == o.get('res_at', 86) - 1:
                    assert len(eq) <= 2 * 69, len(eq)
                if i == SB - 1:
                    assert len(eq) <= 69, len(eq)
            if j == 39:
                self.stamp(f't{tile}')
        for cst, x in eq:
            a(x)
        a(f's_mov_b32 s{sT0}, 0xffff0000')
        for i in range(10):
            a(f'v_lshlrev_b32 v{G2 + 2 * i}, 16, v{RES + i}')
            a(f'v_and_b32 v{G2 + 2 * i + 1}, s{sT0}, v{RES + i}')
        e5 = epi(5, 1)
        LA = o.get('la2', 11)
        rest = [act_ld(0, n) for n in range(na, LA)]
        if o.get('ldb', -1) < 0:
            rest.append(poll_ld())
        k = 0
        for i, (cst, x) in enumerate(e5):
            while k < len(rest) and (k + 1) * (len(e5) - 1) <= i * len(rest):
                a(rest[k])
                k += 1
            a(x)
        assert k == len(rest)
        self.stamp(10)

        vOut, vRR, vRW, vTW, vTR = 4, 7, 232, 238, 242
        RED = 2 * TILE
        setup = [
            f's_movk_i32 s{sT6}, {16 * 1280 - 160}',
            f's_movk_i32 s{sT5}, 6554',
            f's_movk_i32 s{sT4}, 176',
            f's_mul_i32 s{sT3}, s{S_W}, {16 * 176}',
            f'v_and_b32 v{t}, 15, v{L}',
            f'v_lshrrev_b32 v{t2}, 4, v{L}',
            f'v_mov_b32 v{vTW + 1}, s{sT3}',
            f'v_mad_u32_u24 v{vTW + 1}, v{t}, s{sT4}, v{vTW + 1}',
            f'v_lshl_add_u32 v{vTW}, v{t2}, 4, v{vTW + 1}',
            f'v_lshl_add_u32 v{vTW + 1}, v{t2}, 3, v{vTW + 1}',
        ]
        for k in range(3):
            setup += [f'v_add_u32 v{t}, {64 * k}, v{L}',
                      f'v_mul_u32_u24 v{t2}, s{sT5}, v{t}',
                      f'v_lshrrev_b32 v{t2}, 16, v{t2}',
                      f'v_lshl_add_u32 v{vOut + k}, v{t}, 4, s{sOutB}',
                      f'v_mad_u32_u24 v{vOut + k}, v{t2}, s{sT6}, v{vOut + k}',
                      f'v_add_u32 v{t}, v{t}, v{t2}',
                      f'v_lshl_add_u32 v{vTR + k}, v{t}, 4, s{sT3}']
        for lam in range(4):
            setup += [f's_xor_b32 s{sT0}, s{S_W}, {lam}', f's_mul_i32 s{sT0}, s{sT0}, {15 * 1024}',
                      f's_add_u32 s{sT0}, s{sT0}, {RED + (lam - 1) * 5120 if lam else RED}',
                      f'v_lshl_add_u32 v{vRW + lam - 1 if lam else vRR}, v{L}, 4, s{sT0}']

        def mf2(pi, n, nt):
            c, lam = order[pi][n]
            d = vr(G2 + 4 * (5 * lam + nt), 4)
            cin = '0' if (pi == 0 and c == 0 and lam != 0) else d
            return f'v_mfma_f32_16x16x32_bf16 {d}, {ar(4 * (5 * (4 * pi + c) + nt), 4)}, {vr(FR[pi][n], 4)}, {cin}'
        ex = [{i: [] for i in range(80)} for _ in range(3)]
        for k, x in enumerate(setup):
            ex[0][k].append(x)
        def put(pos, x):
            ex[pos // 80][pos % 80].append(x)
        if o.get('ldb', -1) >= 0:
            put(o['ldb'], poll_ld())
        cb_, cc_ = o.get('chkb', 5 * (16 - LA)), 80 + o.get('chkc', 44)
        put(cb_, [poll_chk(1), lambda: self.stamp('chkb')])
        put(o.get('sigc', 40), [sig(2, 'act5'), lambda: self.stamp('sigc')])
        put(80 + o.get('ldc', 28), poll_ld())
        put(cc_, [lambda: self.stamp('chkc0'), poll_chk(2), lambda: self.stamp(11)])
        pos = 0
        for g in range(LA, 48):
            pos = max(pos + (o.get('burst', 2) if g >= 16 else 0), o.get('g_gap', 5) * (g - LA) if g < 32 else 5 * (g - LA),
                      cb_ if g >= 16 else 0, cc_ if g >= 32 else 0)
            assert pos < 5 * g
            put(pos, act_ld(g // 16, g % 16))
            if g < 32 and wd and g >= o.get('wdp_from', 0):
                put(pos + 2, wd.pop(0))
        assert not wd
        for blk, lam in enumerate((3, 2, 1)):
            for nt in range(5):
                ex[2][20 * (blk + 1) + 5 + 2 * nt].append(
                    f'ds_write_b128 v{vRW + lam - 1}, {vr(G2 + 4 * (5 * lam + nt), 4)} offset:{1024 * nt}')
        for pi in range(3):
            for n in range(16):
                for nt in range(5):
                    a(mf2(pi, n, nt))
                    a(ex[pi][5 * n + nt])
            self.stamp('end' + 'ABC'[pi])
        a('s_waitcnt lgkmcnt(0)')
        a('s_barrier')
        self.stamp('redbar')
        RD, RR = 152, 8
        for nt in range(5):
            for s in range(3):
                a(f'ds_read_b128 {vr(RD + 12 * nt + 4 * s, 4)}, v{vRR} offset:{5120 * s + 1024 * nt}')
        sc = ' sc1' if o['out_sc1'] else ''
        for nt in range(5):
            b = RD + 12 * nt
            c = G2 + 4 * nt
            for p in range(2):
                a(f'v_pk_add_f32 {vr(c + 2 * p, 2)}, {vr(c + 2 * p, 2)}, {vr(b + 2 * p, 2)}')
                a(f'v_pk_add_f32 {vr(b + 4 + 2 * p, 2)}, {vr(b + 4 + 2 * p, 2)}, {vr(b + 8 + 2 * p, 2)}')
            for p in range(2):
                a(f'v_pk_add_f32 {vr(c + 2 * p, 2)}, {vr(c + 2 * p, 2)}, {vr(b + 4 + 2 * p, 2)}')
            for p in range(2):
                a(f'v_cvt_pk_bf16_f32 v{RR + 2 * nt + p}, v{c + 2 * p}, v{c + 2 * p + 1}')
            if nt & 1:
                a(f'ds_write_b128 v{vTW}, {vr(RR + 2 * nt - 2, 4)} offset:{64 * (nt >> 1)}')
            if nt == 4:
                a(f'ds_write_b64 v{vTW + 1}, {vr(RR + 8, 2)} offset:128')
        for k in range(3):
            a(f'ds_read_b128 {vr(RR + 12 + 4 * k, 4)}, v{vTR + k}')
        for k in range(3):
            if k == 2:
                a('s_mov_b32 exec_hi, 0')
            a(f'buffer_store_dwordx4 {vr(RR + 12 + 4 * k, 4)}, v{vOut + k}, {sr(S_OUT, 4)}, 0 offen{sc}')
        a('s_mov_b32 exec_hi, -1')
        lz = a.label('nz')
        a('s_cmp_lg_u32 s2, 0')
        a(f's_cbranch_scc1 {lz}')
        with a.untracked():
            a(f'buffer_store_dword v{BP}, off, {sr(S_DBG, 4)}, 0 sc1')
        a(f'{lz}:')
        if self.diag:
            self.stamp('outst')
            a('s_waitcnt vmcnt(0)')
            self.stamp(12)
            a('s_waitcnt lgkmcnt(0)')
            with self.wave0():
                a(f's_lshl_b32 s{sT0}, s2, 7')
                a(f's_add_u32 s{sT0}, s{sT0}, {STAMP}')
                for i in range(NSTAMP):
                    a(f'v_mov_b32 v0, s{S_STAMP + 2 * i}')
                    a(f'buffer_store_dword v0, off, {WS}, s{sT0} offset:{4 * i}')
        if self.opt.get('fixt'):
            with a.untracked():
                a(f's_cmp_lg_u32 s2, {self.opt.get("fixwg", 0)}')
                a('s_cbranch_scc1 .Lend')
                a(f's_cmp_lg_u32 s{S_W}, 0')
                a('s_cbranch_scc1 .Lend')
                a(f's_sub_u32 s{sT2}, s{S_STAMP + 2 * self.opt.get("fixs", 0)}, s{S_STAMP + 2 * self.opt.get("fixb", 0)}')
                a(f's_mul_i32 s{sT2}, s{sT2}, 10')
                a(f's_min_u32 s{sT2}, s{sT2}, 100000')
                a(f's_add_u32 s{sT2}, s{sT2}, {self.opt["fixt"]}')
                a('.Lfix:')
                a(f's_memrealtime {sr(sT0, 2)}')
                a('s_waitcnt lgkmcnt(0)')
                a(f's_sub_u32 s{sT0}, s{sT0}, s{S_STAMP}')
                a(f's_cmp_lt_u32 s{sT0}, s{sT2}')
                a('s_cbranch_scc1 .Lfix')
        a('.Lend:')
        a('s_endpgm')

    def build(self):
        a = self.a
        if self.diag:
            for i in range(2 * NSTAMP):
                a(f's_mov_b32 s{S_STAMP + i}, 0')
        self.prologue()
        self.conv()
        self.gemms()
        self.side()
        for c in self.cold:
            a.fresh()
            a('s_nop 7')
            c()
        a('.Lcode_end:')
        a('s_endpgm')
        pads = (self.opt.get('base', 0x300), NPAD, sr(sRet, 2), '.Lend', self.opt.get('pstride', 4096)) if self.opt['pads'] else None
        body = a.finish(verbose=True, align=self.opt.get('align', 1), pads=pads)
        body += '.p2align 12\n    s_endpgm\n'
        ref = open('cdna_kernels/' + NAME + '.s.ref').read().split('\n')
        head = [l for l in ref if l.startswith(';') and '@launch' not in l and 'Override' not in l and 'grid=ceil' not in l]
        txt = '\n'.join(head) + '\n'
        txt += '; One persistent launch: kv/transposition -> Toeplitz-MFMA long conv -> gate/up GEMM + GEGLU -> down GEMM.\n'
        txt += '; @launch grid=(256,1,1) block=(256,1,1) lds=163840\n'
        txt += f'''.amdgcn_target "amdgcn-amd-amdhsa--gfx950"
.text
.globl {NAME}_kernel
.p2align 8
.type {NAME}_kernel,@function
{NAME}_kernel:
{body}.section .rodata,"a"
.p2align 6
.amdhsa_kernel {NAME}_kernel
  .amdhsa_next_free_vgpr 512
  .amdhsa_next_free_sgpr 102
  .amdhsa_accum_offset 256
  .amdhsa_group_segment_fixed_size 0
  .amdhsa_kernarg_size 104
  .amdhsa_user_sgpr_count 2
  .amdhsa_user_sgpr_kernarg_segment_ptr 1
  .amdhsa_system_sgpr_workgroup_id_x 1
  .amdhsa_float_denorm_mode_32 3
.end_amdhsa_kernel
'''
        return txt


if __name__ == '__main__':
    out = sys.argv[1]
    diag = 'diag' in sys.argv[2:]
    opt = {}
    for x in sys.argv[2:]:
        if '=' in x:
            k, v = x.split('=')
            try:
                v = int(v)
            except ValueError:
                try:
                    v = float(v)
                except ValueError:
                    pass
            opt[k] = v
    open(out, 'w').write(Gen(diag, opt).build())
```

```python
import struct
import sys
from asmlib import Asm, vr, ar, sr

NAME = 'sequential_preLN__ssm_conv_h3__geglu_ffn__prompt'

QS = 16384
CNT = 0
ST1 = 49152
CSF = 65536
STAMP = 98304
PST = 131072
W45F = PST + 262144
KVX = W45F + 1310720
XP4 = KVX + 160 * QS
HP4 = XP4 + 160 * QS
WDF = HP4 + 160 * QS
ACT = WDF + 1966080
WS_END = ACT + 6291456
C_F1, C_FX, C_FW, C_FXR, C_B1, C_B2, C_FWR, C_F3 = 0, 10, 11, 12, 20, 28, 36, 64
SPIN = 100000

S_W = 3
S_K, S_V, S_SH, S_SK, S_X, S_WG, S_WU, S_WD, S_OUT, S_DBG, S_WS = 4, 8, 12, 16, 20, 24, 28, 32, 36, 40, 44
S_D = 48
sX, sJ, sG, sM, sQ, sRB, sCB, sA, sB, sRot = 50, 51, 52, 53, 54, 55, 56, 57, 58, 59
sT0, sT1, sT2, sT3, sT4, sT5, sT6, sT7 = 60, 61, 62, 63, 64, 65, 66, 67
sWoff, sWoff2, sSpin, sDv = 68, 69, 70, 71
sOne, sU0, sU1, sU2 = 72, 73, 74, 75
sRet = 48
NPAD = 8
S_STAMP = 76
NSTAMP = 13
sAB = 4
sL = [8, 9, 10, 11]
sPL, sPH, sFW, sSide, sArr = 16, 17, 18, 19, 23
sE = [None, 12, 13, 14]

GSTR = 4160
GW = 8 * GSTR
UBASE = 4 * GW
USTR = 4608
TILE = 40960
WS = sr(S_WS, 4)


def f32(x):
    return '0x%08x' % struct.unpack('<I', struct.pack('<f', x))[0]


class Gen:
    def __init__(self, diag=False, opt=None):
        self.a = Asm()
        self.diag = diag
        self.opt = dict(place=1, w_kv=0, w_e1=0, w_u=0, tb_pre=2, tb_mid=2, a_ahead=14, sig='v', epi_rate=4.5,
                        fx_it=2, out_sc1=1, pads=1, wd_pre=16, wd_post=8, wd_pre1=8, arr='s')
        if opt:
            self.opt.update(opt)
        self.cold = []

    PROF = {
        'main': [0, 1, 2, 3, 4, 5, 6, 7, 8, 9, 10, 11, 12],
        'front': [0, 'karg', 'issued', 1, 'kvdone', 2, 'tbpre', 'drained', 3, 'tbpost', 4, 'uload', 5],
        'e2': [0, 6, 'zbar', 7, 'hbar', 'hissued', 'hdrained', 'hbar2', 'arrived', 'wwritten', 'polled', 8, 'a0'],
        'g1': [0, 8, 'a0', 'p8', 'p16', 'p24', 'p32', 9, 't3', 't4', 't5', 10, 12],
        'loop': [0, 4, 5, 'it1', 'it2', 'it3', 'it4', 'it5', 'it6', 'it7', 6, 7, 8],
        'g1b': [0, 9, 'q10', 'q20', 't3', 'presig0', 'sig0', 't4', 'prechk0', 'chk0', 'presig1', 'sig1', 't5'],
        'g2': [0, 't5', 10, 'chkb', 'sigc', 'endA', 'chkc0', 11, 'endB', 'endC', 'redbar', 'outst', 12],
    }

    def stamp(self, i):
        prof = self.PROF[self.opt.get('prof', 'main')]
        if self.diag and i in prof:
            i = prof.index(i)
            self.a(f'{"s_memtime" if self.opt.get("cyc") else "s_memrealtime"} {sr(S_STAMP + 2 * i, 2)}')

    def spin(self, srd, soff, target, vt):
        a = self.a
        top, done = a.label('spin'), a.label('done')
        with a.untracked():
            a(f's_mov_b32 s{sSpin}, {SPIN}')
            a(f'{top}:')
            a(f'buffer_load_dword v{vt}, off, {sr(srd, 4)}, {soff} sc1')
            a('s_waitcnt vmcnt(0)')
            a(f'v_readfirstlane_b32 s{sT7}, v{vt}')
            a(f's_sub_u32 s{sSpin}, s{sSpin}, 1')
            a(f's_cbranch_scc1 {done}')
            a(f's_cmp_lt_u32 s{sT7}, {target}')
            a(f's_cbranch_scc1 {top}')
            a(f'{done}:')

    def check(self, srd, soff, target, vt):
        a = self.a
        slow, back = a.label('slow'), a.label('back')
        a(f'v_readfirstlane_b32 s{sT7}, v{vt}')
        a(f's_cmp_lt_u32 s{sT7}, {target}')
        a(f's_cbranch_scc1 {slow}')
        a(f'{back}:')

        def cold():
            a(f'{slow}:')
            self.spin(srd, soff, target, vt)
            a(f's_branch {back}')
        self.cold.append(cold)

    def wave0(self):
        g = self

        class W:
            def __enter__(s):
                s.l = g.a.label('nw0')
                g.a(f's_cmp_lg_u32 s{S_W}, 0')
                g.a(f's_cbranch_scc1 {s.l}')
                s.u = g.a.untracked()
                s.u.__enter__()
                g.a('s_mov_b64 exec, 1')

            def __exit__(s, *x):
                g.a('s_mov_b64 exec, -1')
                s.u.__exit__()
                g.a(f'{s.l}:')
        return W()

    def warm(self, sets):
        if not self.opt['pads']:
            return
        a = self.a
        for w, ks in enumerate(sets):
            if not ks:
                continue
            l = a.label('nw')
            a(f's_cmp_lg_u32 s{S_W}, {w + 1}')
            a(f's_cbranch_scc1 {l}')
            for k in ks:
                a(f's_call_b64 {sr(sRet, 2)}, .Lpad_{k}')
            a(f'{l}:')

    def two_level(self, soff, last, rep, scalar=False):
        a = self.a
        l = a.label('notlast')
        if scalar:
            a(f's_mov_b32 s{sT7}, 1')
            a(f's_atomic_add s{sT7}, {sr(S_WS, 2)}, {soff} glc')
            a('s_waitcnt lgkmcnt(0)')
        else:
            a(f'v_mov_b32 v{self.vTmp}, 1')
            a(f'buffer_atomic_add v{self.vTmp}, off, {WS}, {soff} sc0 sc1')
            a('s_waitcnt vmcnt(0)')
            a(f'v_readfirstlane_b32 s{sT7}, v{self.vTmp}')
        a(f's_cmp_lg_u32 s{sT7}, {last}')
        a(f's_cbranch_scc1 {l}')
        a('s_mov_b64 exec, 0xff')
        a(f'v_lshlrev_b32 v{self.vTmp}, 8, v0')
        a(f's_mov_b32 s{sT7}, {rep * 256}')
        a(f'buffer_atomic_add v{self.vOne}, v{self.vTmp}, {WS}, s{sT7} offen sc1')
        a(f'{l}:')

    def prologue(self):
        a = self.a
        a('s_cmp_ge_u32 s2, 0x100')
        a('s_cbranch_scc1 .Lend')
        self.stamp(0)
        for srd, off in ((S_K, 8), (S_WS, 96), (S_V, 16), (S_SH, 24), (S_SK, 32), (S_X, 0), (S_WG, 56), (S_WU, 64),
                         (S_WD, 72), (S_OUT, 80), (S_DBG, 88), (S_D, 40)):
            a(f's_load_dwordx2 {sr(srd, 2)}, s[0:1], {off}')
        a(f's_getpc_b64 {sr(sT0, 2)}')
        a('.Lpc:')
        a('v_lshlrev_b32 v6, 7, v0')
        a('v_min_u32 v2, .Lcode_end-.Lpc-4, v6')
        a('v_mov_b32 v3, 0')
        a(f'v_lshl_add_u64 v[4:5], v[2:3], 0, {sr(sT0, 2)}')
        a('global_load_dword v230, v[4:5], off')
        a('v_add_u32 v2, 0x8000, v6')
        a('v_min_u32 v2, .Lcode_end-.Lpc-4, v2')
        a(f'v_lshl_add_u64 v[4:5], v[2:3], 0, {sr(sT0, 2)}')
        a('global_load_dword v231, v[4:5], off')
        a('v_lshrrev_b32 v1, 6, v0')
        a('v_and_b32 v0, 63, v0')
        a(f'v_readfirstlane_b32 s{S_W}, v1')
        for srd, n in ((S_K, 2621440), (S_V, 2621440), (S_SH, 5120), (S_SK, 4096), (S_X, 2621440), (S_WG, 1966080),
                       (S_WU, 1966080), (S_WD, 1966080), (S_OUT, 2621440), (S_DBG, 256), (S_WS, WS_END)):
            a(f's_mov_b32 s{srd + 2}, {n}')
            a(f's_mov_b32 s{srd + 3}, 0x20000')
        a(f's_and_b32 s{sX}, s2, 7')
        a(f's_lshr_b32 s{sJ}, s2, 3')
        a(f's_and_b32 s{sM}, s{sJ}, 15')
        a(f's_mov_b32 s{sG}, s{sX}')
        a(f's_cmp_lt_u32 s{sJ}, 16')
        a.snapshot('role')
        a('s_cbranch_scc1 .Lconv')
        if self.opt['place'] == 0:
            a(f's_add_u32 s{sG}, s{sX}, 8')
            a(f's_cmp_lt_u32 s{sX}, 2')
            a('s_cbranch_scc0 .Lside')
        else:
            a(f's_cmp_lt_u32 s{sJ}, 20')
            a('s_cbranch_scc0 .Lside')
            a(f's_lshr_b32 s{sG}, s{sX}, 2')
            a(f's_add_u32 s{sG}, s{sG}, 8')
            a(f's_and_b32 s{sT0}, s{sX}, 3')
            a(f's_lshl2_add_u32 s{sM}, s{sT0}, s{sM}')
        a('.Lconv:')

    def gemm_ids(self):
        a = self.a
        a(f's_lshr_b32 s{sRB}, s{sX}, 2')
        a(f's_lshr_b32 s{sT0}, s{sJ}, 2')
        a(f's_lshl3_add_u32 s{sRB}, s{sRB}, s{sT0}')
        a(f's_and_b32 s{sRot}, s{sX}, 3')
        a(f's_and_b32 s{sT0}, s{sJ}, 3')
        a(f's_lshl2_add_u32 s{sCB}, s{sRot}, s{sT0}')
        a(f's_and_b32 s{sT0}, s{sCB}, 1')
        a(f's_mul_i32 s{sA}, s{sCB}, 6')
        a(f's_add_u32 s{sB}, s{sA}, 4')
        a(f's_lshl1_add_u32 s{sA}, s{sT0}, s{sA}')
        a(f's_lshl_b32 s{sT1}, s{sT0}, 2')
        a(f's_sub_u32 s{sB}, s{sB}, s{sT1}')

    vWL, vWLb, vW45, vTmp, vTmp2, vOne, vPS = 254, 253, 252, 250, 249, 248, 251
    WRAW = [8, 40, 72, 104, 136]
    vWW = 236
    PT = 200

    def real_line(self, r, tmp):
        a = self.a
        if not self.opt.get('swz', 1):
            return
        a(f's_sub_u32 s{tmp}, s{r}, 3')
        a(f's_cmp_lt_u32 s{tmp}, 2')
        a(f's_cselect_b32 s{tmp}, 7, 0')
        a(f's_xor_b32 s{r}, s{r}, s{tmp}')
        a(f's_sub_u32 s{tmp}, s{r}, 10')
        a(f's_cmp_lt_u32 s{tmp}, 2')
        a(f's_cselect_b32 s{tmp}, 1, 0')
        a(f's_xor_b32 s{r}, s{r}, s{tmp}')

    def w_addr(self):
        a = self.a
        t = self.vTmp
        a(f's_lshr_b32 s{sT1}, s{sA}, 2')
        self.real_line(sT1, sT0)
        a(f's_lshl_b32 s{sT1}, s{sT1}, 7')
        a(f'v_and_b32 v{t}, 7, v0')
        a(f'v_lshl_add_u32 v{self.vWLb}, v{t}, 4, s{sT1}')
        a(f's_lshr_b32 s{sT0}, s{S_W}, 1')
        a(f's_lshl_b32 s{sT0}, s{sT0}, 6')
        a(f's_mul_i32 s{sWoff}, s{sRot}, 160')
        a(f's_add_u32 s{sWoff}, s{sWoff}, s{sT0}')
        a(f's_mul_i32 s{sT0}, s{sCB}, {80 * 1024}')
        a(f's_add_u32 s{sT0}, s{sT0}, {W45F}')
        a(f'v_lshl_add_u32 v{self.vW45}, v0, 4, s{sT0}')
        a(f's_mul_i32 s{sWoff2}, s{sRot}, 10')
        a(f's_add_u32 s{sWoff2}, s{sWoff2}, s{S_W}')
        a(f's_lshl_b32 s{sWoff2}, s{sWoff2}, 10')
        a(f'v_mov_b32 v{self.vOne}, 1')
        a(f's_lshl2_add_u32 s{sT0}, s{sRB}, s{S_W}')
        a(f's_lshl_b32 s{sT0}, s{sT0}, 12')
        a(f'v_and_b32 v{t}, 31, v0')
        a(f'v_lshl_add_u32 v{self.vPS}, v{t}, 3, s{sT0}')
        a(f'v_lshrrev_b32 v{t}, 5, v0')
        a(f'v_lshl_add_u32 v{self.vPS}, v{t}, 11, v{self.vPS}')

    def w_select(self):
        a = self.a
        a(f's_bitcmp1_b32 s{S_W}, 0')
        a(f's_cselect_b32 s{S_WG}, s{S_WU}, s{S_WG}')
        a(f's_cselect_b32 s{S_WG + 1}, s{S_WU + 1}, s{S_WG + 1}')
        for i in range(1, 4):
            a(f's_movk_i32 s{sE[i]}, {6144 * i}')
        a(f's_movk_i32 s15, 3072')

    def clear_pst(self, v2):
        return [f'v_mov_b32 v{v2}, -1', f'v_mov_b32 v{v2 + 1}, -1',
                f's_lshl_b32 s{sU0}, s{sCB}, 8', f's_add_u32 s{sU0}, s{sU0}, {PST}',
                ['s_mov_b32 exec_hi, 0',
                 f'buffer_store_dwordx2 {vr(v2, 2)}, v{self.vPS}, {WS}, s{sU0} offen sc1',
                 's_mov_b32 exec_hi, -1']]

    def w_loads_main(self):
        out = []
        t, t2 = self.vTmp, self.vTmp2
        for b in range(5):
            for e in range(8):
                g = []
                if e == 0:
                    g = [f'v_and_b32 v{t}, 56, v0', f'v_add_u32 v{t}, s{sWoff}, v{t}', f'v_subrev_u32 v{t2}, 640, v{t}',
                         f'v_min_u32 v{t}, v{t}, v{t2}', f'v_mad_u32_u24 v{self.vWL}, v{t}, s15, v{self.vWLb}',
                         f's_add_u32 s{sWoff}, s{sWoff}, 128']
                so = f's{sE[e >> 1]}' if e >> 1 else '0'
                g.append(f'buffer_load_dwordx4 {vr(self.WRAW[b] + 4 * e, 4)}, v{self.vWL}, {sr(S_WG, 4)}, {so} offen offset:{3072 * (e & 1)}')
                out.append(g)
        return out

    def w_loads_tail(self):
        out = []
        for i in range(20):
            if i & 1:
                g = [f's_add_u32 s{sU1}, s{sWoff2}, {TILE}',
                     f'buffer_load_dwordx4 {ar(160 + 4 * i, 4)}, v{self.vW45}, {WS}, s{sU1} offen sc1']
            else:
                g = []
                if i:
                    g = [f's_add_u32 s{sWoff2}, s{sWoff2}, 4096',
                         [f's_sub_u32 s{sU1}, s{sWoff2}, {TILE}', f's_cselect_b32 s{sWoff2}, s{sWoff2}, s{sU1}']]
                g.append(f'buffer_load_dwordx4 {ar(160 + 4 * i, 4)}, v{self.vW45}, {WS}, s{sWoff2} offen sc1')
            out.append(g)
        return out

    def w_write_addr(self):
        a = self.a
        t, t2 = self.vTmp, self.vTmp2
        a(f's_lshr_b32 s{sT0}, s{S_W}, 1')
        a(f's_lshl_b32 s{sT0}, s{sT0}, 12')
        a(f's_and_b32 s{sT1}, s{S_W}, 1')
        a(f's_lshl_b32 s{sT1}, s{sT1}, 7')
        a(f's_add_u32 s{sT0}, s{sT0}, s{sT1}')
        a(f'v_lshrrev_b32 v{t}, 3, v0')
        a(f'v_lshl_add_u32 v{t}, v{t}, 9, s{sT0}')
        a(f'v_and_b32 v{t2}, 1, v0')
        a(f'v_lshl_add_u32 v{t}, v{t2}, 6, v{t}')
        a(f'v_bfe_u32 v{t2}, v0, 1, 2')
        a(f's_mov_b32 s{sT0}, {TILE + 16}')
        a(f'v_mad_u32_u24 v{self.vWW}, v{t2}, s{sT0}, v{t}')
        for q in range(1, 4):
            a(f'v_xor_b32 v{self.vWW + q}, {16 * q}, v{self.vWW}')
        a(f's_mov_b32 s{sPL}, 0x05040100')
        a(f's_mov_b32 s{sPH}, 0x07060302')

    def w_writes_main(self):
        out = []
        for b in range(5):
            for c8 in range(8):
                p = self.PT + 4 * (c8 & 3) if b < 3 else (228 if c8 & 1 else 242)
                r = self.WRAW[b] + (c8 >> 1)
                g = [f'v_perm_b32 v{p + d}, v{r + 8 * d + 4}, v{r + 8 * d}, s{sPH if c8 & 1 else sPL}' for d in range(4)]
                g.append(f'ds_write_b128 v{self.vWW + (c8 & 3)}, {vr(p, 4)} offset:{b * 8192 + (c8 >> 2) * 256}')
                out.append(g)
        return out

    def conv(self):
        a = self.a
        o = self.opt
        vK, vKh, vC, vR, vSHa, vL16 = 1, 2, 3, 4, 5, 6
        SH = 8
        KR = 16
        VR = 38
        WF = 56
        KF = 72
        O = 120
        SK = 136
        KV = 168
        VF = 200
        vSW, vSR, vKS, vG, vBa, vAa, vZR, vZR2, vUL, vUW, vI7, vGZ, vXS, vHS, vFl, vPrev = range(232, 248)
        ZERO, AD = 224, 240
        a(f's_lshl4_add_u32 s{sQ}, s{sG}, s{sM}')
        a(f'v_and_b32 v{vC}, 15, v0')
        a(f'v_lshrrev_b32 v{vR}, 4, v0')
        a(f's_lshl2_add_u32 s{sT0}, s{sM}, s{S_W}')
        a(f's_mul_i32 s{sT0}, s{sT0}, {32 * 1280}')
        a(f's_lshl_b32 s{sT1}, s{sG}, 7')
        a(f's_add_u32 s{sT0}, s{sT0}, s{sT1}')
        a(f's_movk_i32 s{sT2}, {8 * 1280}')
        a(f'v_lshl_add_u32 v{vK}, v{vC}, 3, s{sT0}')
        a(f'v_mad_u32_u24 v{vK}, v{vR}, s{sT2}, v{vK}')
        a(f'v_subrev_u32 v{vKh}, 3840, v{vK}')
        a(f's_lshl_b32 s{sT1}, s{sG}, 9')
        a(f'v_lshl_add_u32 v{vSHa}, v{vC}, 5, s{sT1}')
        a(f's_movk_i32 s{sT3}, 5120')
        a(f'v_lshlrev_b32 v{vL16}, 4, v0')

        def addr_phase_a():
            a(f'v_subrev_u32 v{vPrev}, 16, v{vL16}')
            a(f's_mul_i32 s{sT0}, s{S_W}, {USTR}')
            a(f's_add_u32 s{sT0}, s{sT0}, {UBASE}')
            a(f's_movk_i32 s{sT1}, 272')
            a(f'v_lshl_add_u32 v{vSW}, v{vR}, 4, s{sT0}')
            a(f'v_mad_u32_u24 v{vSW}, v{vC}, s{sT1}, v{vSW}')
            a(f'v_lshl_add_u32 v{vSR}, v{vC}, 4, s{sT0}')
            a(f'v_mad_u32_u24 v{vSR}, v{vR}, s{sT1}, v{vSR}')
            a(f'v_add_u32 v{vUW}, s{sT0}, v{vL16}')
            a(f's_add_u32 s{sT0}, s{sT0}, 32')
            a(f'v_lshl_add_u32 v{vBa}, v{vC}, 5, s{sT0}')
            a(f'v_lshl_add_u32 v{vBa}, v{vR}, 4, v{vBa}')
            a(f's_mul_i32 s{sT0}, s{sG}, {16 * QS}')
            a(f's_lshl2_add_u32 s{sT1}, s{sM}, s{S_W}')
            a(f's_lshl_b32 s{sT1}, s{sT1}, 8')
            a(f's_add_u32 s{sT0}, s{sT0}, s{sT1}')
            a(f's_mov_b32 s{sT1}, {QS}')
            a(f'v_lshl_add_u32 v{vKS}, v{vC}, 4, s{sT0}')
            a(f'v_mad_u32_u24 v{vKS}, v{vR}, s{sT1}, v{vKS}')

        def addr_rest():
            self.gemm_ids()
            self.w_addr()
            a(f's_mul_i32 s{sT5}, s{S_W}, {GW}')
            a(f'v_add_u32 v{vG}, s{sT5}, v{vL16}')
            a(f'v_bfe_u32 v{vAa}, v0, 3, 1')
            a(f'v_sub_u32 v{vAa}, v{vAa}, v{vR}')
            a(f's_add_u32 s{sT0}, s{sT5}, 48')
            a(f'v_lshl_add_u32 v{vAa}, v{vAa}, 4, s{sT0}')
            a(f'v_and_b32 v{vI7}, 7, v0')
            a(f's_movk_i32 s{sT1}, {GSTR}')
            a(f'v_mad_u32_u24 v{vAa}, v{vI7}, s{sT1}, v{vAa}')
            a(f'v_mov_b32 v{vGZ}, s{sT5}')
            a(f'v_mad_u32_u24 v{vGZ}, v{vI7}, s{sT1}, v{vGZ}')
            a(f's_mul_i32 s{sT6}, s{sQ}, {QS}')
            a(f's_lshl_b32 s{sT1}, s{S_W}, 6')
            a(f's_add_u32 s{sT0}, s{sT6}, s{sT1}')
            a(f'v_and_b32 v{vUL}, 3, v0')
            a(f'v_lshl_add_u32 v{vUL}, v{vUL}, 4, s{sT0}')
            a(f'v_lshrrev_b32 v{vXS}, 2, v0')
            a(f'v_lshl_add_u32 v{vUL}, v{vXS}, 8, v{vUL}')
            a(f's_lshl_b32 s{sT0}, s{S_W}, 12')
            a(f'v_add_u32 v{vXS}, s{sT0}, v{vL16}')
            a(f's_add_u32 s{sT0}, s{sT0}, s{sT6}')
            a(f'v_add_u32 v{vHS}, s{sT0}, v{vL16}')
            a(f's_lshl_b32 s{sT0}, s{S_W}, 11')
            a(f'v_add_u32 v{vZR}, s{sT0}, v{vL16}')
            a(f'v_add_u32 v{vZR2}, {2 * GW}, v{vZR}')
            for i in range(4):
                a(f'v_mov_b32 v{ZERO + i}, 0')
        if o.get('addr_early', 1):
            addr_phase_a()
            addr_rest()
        a.need(sr(S_WS, 2))
        self.stamp('karg')
        a(f'buffer_load_dwordx4 {vr(SH, 4)}, v{vSHa}, {sr(S_SH, 4)}, 0 offen')
        a(f'buffer_load_dwordx4 {vr(SH + 4, 4)}, v{vSHa}, {sr(S_SH, 4)}, 0 offen offset:16')
        for r in range(3):
            a(f'buffer_load_dwordx2 {vr(KR + 2 * r, 2)}, v{vKh}, {sr(S_K, 4)}, 0 offen offset:{r * 1280}')
        for r in range(8):
            so = f's{sT3}' if r >= 4 else '0'
            a(f'buffer_load_dwordx2 {vr(KR + 6 + 2 * r, 2)}, v{vK}, {sr(S_K, 4)}, {so} offen offset:{(r & 3) * 1280}')
            a(f'buffer_load_dwordx2 {vr(VR + 2 * r, 2)}, v{vK}, {sr(S_V, 4)}, {so} offen offset:{(r & 3) * 1280}')
        self.stamp('issued')
        if o.get('tlb'):
            a(f'v_lshlrev_b32 v228, {o["tlb"]}, v0')
            a(f'buffer_load_dword v229, v228, {WS}, 0 offen sc1')
            a(f'buffer_load_dword v228, v228, {sr(S_OUT, 4)}, 0 offen sc1')
        if not o.get('addr_early', 1):
            addr_phase_a()
            addr_rest()
        a(f's_lshl2_add_u32 s{sT0}, s{sQ}, s{S_W}')
        a(f's_lshl_b32 s{sT1}, s{sT0}, 12')
        a(f's_add_u32 s{S_SK}, s{S_SK}, s{sT1}')
        a(f's_addc_u32 s{S_SK + 1}, s{S_SK + 1}, 0')
        a(f's_lshl_b32 s{sT0}, s{sT0}, 1')
        a(f's_and_b32 s{sT0}, s{sT0}, -4')
        a(f's_load_dword s{sDv}, {sr(S_D, 2)}, s{sT0}')
        ssm = []
        for j in range(4):
            if j == 0:
                ssm.append(f'buffer_load_dwordx4 {vr(SK, 4)}, v{vPrev}, {sr(S_SK, 4)}, 0 offen')
            else:
                ssm.append(f'buffer_load_dwordx4 {vr(SK + 8 * j, 4)}, v{vL16}, {sr(S_SK, 4)}, 0 offen offset:{1024 * j - 16}')
            ssm.append(f'buffer_load_dwordx4 {vr(SK + 8 * j + 4, 4)}, v{vL16}, {sr(S_SK, 4)}, 0 offen offset:{1024 * j}')
        if o.get('ssm', 1) == 0:
            a(ssm)
        self.w_select()
        self.warm([[0], [1], []])
        wl = self.w_loads_main()

        def w_some(n):
            for _ in range(n):
                a(wl.pop(0))
        a(f's_mov_b32 s{sT2}, 0xffff0000')
        for ch in range(4):
            for j in range(4):
                src = SH + 2 * ch + (j >> 1)
                if j & 1:
                    a(f'v_and_b32 v{WF + 4 * j + ch}, s{sT2}, v{src}')
                else:
                    a(f'v_lshlrev_b32 v{WF + 4 * j + ch}, 16, v{src}')

        def unpack(dst, src):
            a(f'v_lshlrev_b32 v{dst}, 16, v{src}')
            a(f'v_and_b32 v{dst + 1}, s{sT2}, v{src}')
            a(f'v_lshlrev_b32 v{dst + 2}, 16, v{src + 1}')
            a(f'v_and_b32 v{dst + 3}, s{sT2}, v{src + 1}')
        for r in range(3):
            unpack(KF + 4 * r, KR + 2 * r)
        self.stamp(1)
        for r in range(8):
            unpack(KF + 4 * (r + 3), KR + 2 * (r + 3))
            vf = VF + 4 * (r & 1)
            for j in (3, 2, 1, 0):
                for p in range(2):
                    d = vr(KV + 4 * r + 2 * p, 2)
                    k = vr(KF + 4 * (r + 3 - j) + 2 * p, 2)
                    w = vr(WF + 4 * j + 2 * p, 2)
                    if j == 3:
                        a(f'v_pk_mul_f32 {d}, {k}, {w}')
                    else:
                        a(f'v_pk_fma_f32 {d}, {k}, {w}, {d}')
                if j == 3:
                    unpack(vf, VR + 2 * r)
            for p in range(2):
                d = vr(KV + 4 * r + 2 * p, 2)
                a(f'v_pk_mul_f32 {d}, {d}, {vr(vf + 2 * p, 2)}')
            if o.get('ssm', 1) == 1:
                a(ssm.pop(0))
            if r & 1:
                d = (7 - r) >> 1
                for ch in range(4):
                    a(f'v_cvt_pk_bf16_f32 v{O + 4 * ch + d}, v{KV + 4 * r + ch}, v{KV + 4 * (r - 1) + ch}')
        self.stamp('kvdone')
        for ch in range(4):
            a(f'ds_write_b128 v{vSW}, {vr(O + 4 * ch, 4)} offset:{ch * 64}')
        for j in range(4):
            a(f'ds_read_b128 {vr(KV + 4 * j, 4)}, v{vSR} offset:{j * 1088}')
        a(f'buffer_load_dword v{vFl}, off, {sr(S_DBG, 4)}, 0 sc1')
        a(f's_mov_b32 s{sT0}, {KVX}')
        for j in range(4):
            a(f'buffer_store_dwordx4 {vr(KV + 4 * j, 4)}, v{vKS}, {WS}, s{sT0} offen sc1')
            if j < 3:
                a(f's_add_u32 s{sT0}, s{sT0}, {4 * QS}')
        self.stamp(2)
        if o.get('ssm', 1) == 2:
            a(ssm)
        a(f'ds_write_b128 v{vUW}, {vr(ZERO, 4)}')
        a(f'ds_write_b128 v{vGZ}, {vr(ZERO, 4)}')

        def table(j):
            D = SK + 8 * j
            Ea, Eb, Db = 184 + 20 * (j & 1), 184 + 20 * (j & 1) + 8, 184 + 20 * (j & 1) + 14

            def wr(rho, reg):
                a(f'ds_write_b128 v{vG}, {vr(reg, 4)} offset:{rho * GSTR + 1024 * j + 16}')
            wr(7, D + 4)
            wr(3, D + 2)
            for i in range(3):
                a(f'v_pk_mov_b32 {vr(Db + 2 * i, 2)}, {vr(D + 2 * i, 2)}, {vr(D + 2 * i + 2, 2)} op_sel:[1,0]')
            for i in range(7):
                a(f'v_alignbit_b32 v{Ea + i}, v{D + i + 1}, v{D + i}, 16')
            wr(1, Db)
            wr(5, Db + 2)
            for i in range(3):
                a(f'v_pk_mov_b32 {vr(Eb + 2 * i, 2)}, {vr(Ea + 2 * i, 2)}, {vr(Ea + 2 * i + 2, 2)} op_sel:[1,0]')
            wr(0, Ea)
            wr(4, Ea + 2)
            wr(2, Eb)
            wr(6, Eb + 2)
        w_some(o['w_kv'])
        n1, n2 = o['tb_pre'], o['tb_pre'] + o['tb_mid']
        for j in range(n1):
            table(j)
        self.stamp('tbpre')
        a.drain_stores()
        self.stamp('drained')
        a('s_barrier')
        self.stamp(3)
        a(f's_lshl_b32 s{sT0}, s{sG}, 8')
        with self.wave0():
            self.check(S_DBG, '0', 1, vFl)
            a(f'buffer_atomic_add v{self.vOne}, off, {WS}, s{sT0} sc1')
        w_some(o['w_e1'])
        for j in range(n1, n2):
            table(j)
        a.need(f's{sDv}')
        a(f's_and_b32 s{sT1}, s{S_W}, 1')
        a(f's_lshl_b32 s{sT1}, s{sT1}, 4')
        a(f's_lshr_b32 s{sDv}, s{sDv}, s{sT1}')
        a(f's_and_b32 s{sDv}, s{sDv}, 0xffff')
        a(f'v_sub_u32 v5, 7, v{vI7}')
        a(f'v_and_b32 v7, 1, v5')
        a(f'v_lshlrev_b32 v7, 4, v7')
        a(f'v_lshlrev_b32 v7, v7, s{sDv}')
        a(f'v_bfe_u32 v1, v0, 3, 1')
        a(f'v_add_u32 v1, 2, v1')
        a(f'v_cmp_eq_u32 vcc, v1, v{vR}')
        a(f'v_cndmask_b32 v7, 0, v7, vcc')
        a(f'v_lshrrev_b32 v5, 1, v5')
        for d in range(4):
            a(f'v_cmp_eq_u32 vcc, {d}, v5')
            a(f'v_cndmask_b32 v1, 0, v7, vcc')
            a(f'v_accvgpr_write_b32 a{AD + d}, v1')
        ACC = 128
        BUF = (0, 64)
        XR, SR, XF = 136, 152, 168

        def rdA(it, t):
            return f'ds_read_b128 {ar(BUF[it & 1] + 4 * t, 4)}, v{vAa} offset:{64 * it + 512 * t}'

        def rdB(it, t):
            return f'ds_read_b128 {ar(BUF[it & 1] + 32 + 4 * t, 4)}, v{vBa} offset:{448 - 64 * it + 512 * t}'
        self.stamp('tbpost')
        self.warm([[2], [], []])
        with self.wave0():
            self.spin(S_WS, f's{sT0}', 16, vFl)
        a('s_barrier')
        self.stamp(4)
        a(f's_mov_b32 s{sT0}, {KVX}')
        for j in range(4):
            a(f'buffer_load_dwordx4 {ar(BUF[1] + 4 * j, 4)}, v{vUL}, {WS}, s{sT0} offen sc1')
            if j < 3:
                a(f's_add_u32 s{sT0}, s{sT0}, 4096')
        w_some(o['w_u'])
        for j in range(n2, 4):
            table(j)
        for t in range(8):
            a(rdA(0, t))
        a(f's_lshl_b32 s{sT3}, s{sX}, 8')
        a(f's_add_u32 s{sT3}, s{sT3}, {C_FXR * 256}')
        a(f's_mov_b32 s{sT4}, {ST1}')
        a(f's_add_u32 s{sT6}, s{sT6}, {XP4}')
        for j in range(4):
            a(f'ds_write_b128 v{vUW}, {ar(BUF[1] + 4 * j, 4)} offset:{512 + 1024 * j}')
            if j == 0:
                self.stamp('uload')
            a(rdB(0, 2 * j))
            a(rdB(0, 2 * j + 1))
        self.stamp(5)
        fx = o['fx_it']
        xl = []
        for T in range(2):
            for p in range(2):
                off = 2048 * T + 1024 * p
                xl.append([f'buffer_load_dwordx4 {vr(XR + 8 * T + 4 * p, 4)}, v{vXS}, {WS}, s{sT6} offen offset:{off} sc1'])
                xl.append([f'buffer_load_dwordx4 {vr(SR + 8 * T + 4 * p, 4)}, v{vXS}, {WS}, s{sT4} offen offset:{off} sc1'])
        if o.get('nowl'):
            wl = [g[:-1] + [[]] for g in wl]
        early = wl[:-8]
        wl = wl[-8:]
        wt = self.w_loads_tail()
        nl = o.get('w45_loop', 20)
        late = xl + wt[:nl]
        wt = wt[nl:]
        tot = len(early) + len(late)
        per = [(tot * (i + 1)) // 8 - (tot * i) // 8 for i in range(8)]
        plan = []
        for it in range(8):
            n = per[it]
            if it <= fx + 1:
                n = min(n, len(early))
                plan.append([early.pop(0) for _ in range(n)])
            else:
                rest = late[:8] + early + late[8:] if it == fx + 2 else rest
                early = late = []
                n = (len(rest) + 7 - it) // (8 - it)
                plan.append([rest.pop(0) for _ in range(n)])
        for it in range(8):
            A, B = BUF[it & 1], BUF[it & 1] + 32
            mf = []
            if it == 0:
                for tp in range(8):
                    mf.append(f'v_mfma_f32_16x16x32_bf16 {ar(ACC + 4 * tp, 4)}, {ar(AD, 4)}, {ar(B + 4 * tp, 4)}, 0')
            for tp in range(8):
                for t in range(8 - tp):
                    c = ar(ACC + 4 * (t + tp), 4)
                    mf.append(f'v_mfma_f32_16x16x32_bf16 {c}, {ar(A + 4 * t, 4)}, {ar(B + 4 * tp, 4)}, {c}')
            fill = [[] for _ in mf]
            base = 8 if it == 0 else 0
            if it < 7:
                rd = [rdB(it + 1, 0)] + [rdA(it + 1, t) for t in range(8)] + [rdB(it + 1, t) for t in range(1, 8)]
                for i, x in enumerate(rd):
                    fill[base + 2 * i].append(x)
            n = len(plan[it])
            pos = base
            for i, g in enumerate(plan[it]):
                p = max(base + ((i + 1) * 35) // n, pos)
                k = len(g) - 1
                for z, x in enumerate(g[:-1]):
                    fill[max(pos, p - (k - z + 1) // 2)].append(x)
                fill[p].append(g[-1])
                pos = p
            if it == 0:
                for i, x in enumerate(self.clear_pst(228)):
                    fill[i].append(x)
            if it == fx:
                fill[-1].append(f'buffer_load_dword v{vFl}, off, {WS}, s{sT3} sc1')
            if it == fx + 1:
                fill[-1].append(lambda: self.check(S_WS, f's{sT3}', 1, vFl))
            if it == 7:
                fill[0].append(f's_add_u32 s{sFW}, s{sT3}, {(C_FWR - C_FXR) * 256}')
                fill[1].append(f's_mov_b32 s{sSide}, 0')
                fill[-1].append(f'buffer_load_dword v{vFl}, off, {WS}, s{sFW} sc1')
            if it >= 6:
                ops = []
                T = it - 6
                for row in range(4):
                    src = XR + 8 * T + 2 * row
                    xf = XF + 16 * T + 4 * row
                    st = SR + 8 * T + 2 * row
                    ops += [f'v_lshlrev_b32 v{xf}, 16, v{src}', f'v_and_b32 v{xf + 1}, s{sT2}, v{src}',
                            f'v_lshlrev_b32 v{xf + 2}, 16, v{src + 1}', f'v_and_b32 v{xf + 3}, s{sT2}, v{src + 1}']
                    ops += [f'v_fma_f32 v{xf + 32 + c}, v{xf + c}, v{st}, v{st + 1}' for c in range(4)]
                for i, x in enumerate(ops):
                    fill[2 + i].append(x)
            self.stamp(f'it{it}')
            if it > 0:
                a.need(ar(BUF[it & 1], 56))
            for m, f in zip(mf, fill):
                a(m)
                a(f)
        self.stamp(6)
        for T in range(8):
            a(f'ds_write_b128 v{vG}, {ar(ACC + 4 * T, 4)} offset:{1024 * T}')
        a('s_waitcnt lgkmcnt(0)')
        a('s_barrier')
        self.stamp('zbar')
        Z = XR
        for T in range(2):
            for ch in range(4):
                a(f'ds_read_b128 {vr(Z + 16 * T + 4 * ch, 4)}, v{vZR2 if ch & 2 else vZR} offset:{(ch & 1) * GW + 1024 * T}')
        a(f's_mov_b32 s{sT0}, {HP4}')
        for T in range(2):
            for p in range(2):
                ho = XF + 32 + 16 * T + 8 * p
                for b in range(2):
                    row = 2 * p + b
                    for c in range(4):
                        x = XF + 16 * T + 4 * row + c
                        a(f'v_fmac_f32 v{x}, v{x + 32}, v{Z + 16 * T + 4 * c + row}')
                    for c2 in range(2):
                        x = XF + 16 * T + 4 * row + 2 * c2
                        a(f'v_cvt_pk_bf16_f32 v{ho + 2 * b + c2}, v{x}, v{x + 1}')
                a(f'buffer_store_dwordx4 {vr(ho, 4)}, v{vHS}, {WS}, s{sT0} offen offset:{2048 * T + 1024 * p} sc1')
        self.stamp(7)
        assert not wt
        a('.Ljoin:')

    def arrive_e2(self):
        a = self.a
        a(f's_lshl_b32 s{sT0}, s{sX}, 8')
        a(f's_add_u32 s{sT0}, s{sT0}, {C_B1 * 256}')
        with self.wave0():
            self.two_level(f's{sT0}', 31, C_B2, self.opt['arr'] == 's')

    def side(self):
        a = self.a
        a('.Lside:')
        a.fresh('role')
        vTid = 1
        a(f'v_lshl_add_u32 v{vTid}, s{S_W}, 6, v0')
        if self.opt['place'] == 0:
            a(f's_sub_u32 s{sG}, s{sX}, 2')
            a(f's_lshl4_add_u32 s{sG}, s{sG}, s{sM}')
        else:
            a(f's_sub_u32 s{sG}, s{sJ}, 20')
            a(f's_lshl3_add_u32 s{sG}, s{sG}, s{sX}')
        linit = a.label('noinit')
        if self.opt.get('fullinit', 1):
            a(f's_cmp_lg_u32 s{sG}, 48')
            a(f's_cbranch_scc1 {linit}')
            with a.untracked():
                a(f'v_lshrrev_b32 v2, 3, v{vTid}')
                a('v_and_b32 v3, 7, v0')
                a('v_lshlrev_b32 v3, 4, v3')
                a('v_lshl_add_u32 v2, v2, 8, v3')
                for i in range(4):
                    a(f'v_mov_b32 v{4 + i}, 0')
                a(f's_movk_i32 s{sT0}, 0x2000')
                a('s_waitcnt lgkmcnt(0)')
                a.fresh()
                a(f'buffer_store_dwordx4 v[4:7], v2, {WS}, 0 offen sc1')
                a(f's_cmp_gt_u32 s{S_W}, 1')
                a(f's_cbranch_scc1 {linit}b')
                a(f'buffer_store_dwordx4 v[4:7], v2, {WS}, s{sT0} offen sc1')
                a(f'{linit}b:')
                a('v_mov_b32 v3, 1')
                a('s_waitcnt vmcnt(0)')
                a('s_barrier')
                a(f's_cmp_lg_u32 s{S_W}, 0')
                a(f's_cbranch_scc1 {linit}')
                a('s_mov_b64 exec, 1')
                a(f'buffer_store_dword v3, off, {sr(S_DBG, 4)}, 0 sc1')
                a('s_mov_b64 exec, -1')
        else:
            a(f's_lshl2_add_u32 s{sT0}, s{sG}, s{S_W}')
            a(f's_cmp_lg_u32 s{sT0}, {48 * 4}')
            a(f's_cbranch_scc1 {linit}')
            with a.untracked():
                a('v_lshlrev_b32 v2, 8, v0')
                a('v_mov_b32 v3, 0')
                a('s_mov_b32 exec_hi, 0xfff')
                a('s_waitcnt lgkmcnt(0)')
                a.fresh()
                a(f'buffer_store_dword v3, v2, {WS}, 0 offen sc1')
                a('v_mov_b32 v4, 1')
                a('s_mov_b64 exec, 1')
                a('s_waitcnt vmcnt(0)')
                a(f'buffer_store_dword v4, off, {sr(S_DBG, 4)}, 0 sc1')
                a('s_mov_b64 exec, -1')
        a(f'{linit}:')
        a.fresh('role')
        a(f's_cmp_ge_u32 s{sG}, 64')
        a.snapshot('s4')
        a('s_cbranch_scc1 .Ls4')
        XR, WR = 16, 56
        vA, vRow, vS8 = 2, 3, 4
        a(f'v_lshrrev_b32 v{vRow}, 3, v{vTid}')
        a(f'v_and_b32 v{vS8}, 7, v0')
        a(f's_lshr_b32 s{sT0}, s{sG}, 3')
        a(f's_lshl_b32 s{sT0}, s{sT0}, 8')
        a(f's_and_b32 s{sT1}, s{sG}, 3')
        a(f's_lshl2_add_u32 s{sT0}, s{sT1}, s{sT0}')
        a(f's_bfe_u32 s{sT1}, s{sG}, 0x10002')
        a(f's_lshl1_add_u32 s{sT0}, s{sT1}, s{sT0}')
        a(f'v_and_b32 v5, 0xf0, v{vTid}')
        a(f'v_and_b32 v6, 1, v{vRow}')
        a(f'v_add3_u32 v5, v5, v6, s{sT0}')
        a(f's_movk_i32 s{sT1}, 1280')
        a(f'v_lshlrev_b32 v6, 4, v{vS8}')
        a(f'v_mad_u32_u24 v5, v5, s{sT1}, v6')
        for j in range(10):
            a(f'buffer_load_dwordx4 {vr(XR + 4 * j, 4)}, v5, {sr(S_X, 4)}, 0 offen offset:{128 * j}')
        a(f's_lshr_b32 s{sT0}, s{sG}, 1')
        self.real_line(sT0, sT2)
        a(f's_and_b32 s{sT2}, s{sG}, 1')
        a(f's_lshl1_add_u32 s{sT0}, s{sT0}, s{sT2}')
        a(f's_mul_i32 s{sT0}, s{sT0}, {32 * 1280}')
        a(f'v_add_u32 v{vA}, s{sT0}, v6')
        a(f'v_mad_u32_u24 v{vA}, v{vRow}, s{sT1}, v{vA}')
        self.gemm_ids()
        self.w_addr()
        vW, vRd, vSt = 5, 6, 7
        a(f's_movk_i32 s{sT1}, 528')
        a(f'v_lshlrev_b32 v{vW}, 3, v{vRow}')
        a(f'v_mad_u32_u24 v{vW}, v{vS8}, s{sT1}, v{vW}')
        a(f'v_and_b32 v{vRd}, 31, v0')
        a(f'v_lshlrev_b32 v{vRd}, 4, v{vRd}')
        a(f'v_lshrrev_b32 v8, 5, v{vTid}')
        a(f'v_mad_u32_u24 v{vRd}, v8, s{sT1}, v{vRd}')
        a(f's_lshl_b32 s{sT0}, s{sG}, 8')
        a(f'v_and_b32 v{vSt}, 15, v0')
        a(f'v_lshl_add_u32 v{vSt}, v{vSt}, 4, s{sT0}')
        a(f'v_lshrrev_b32 v8, 4, v{vTid}')
        a(f's_mov_b32 s{sT1}, {QS}')
        a(f'v_mad_u32_u24 v{vSt}, v8, s{sT1}, v{vSt}')
        for j in range(10):
            for o_ in range(2):
                a(f'ds_write_b64 v{vW}, {vr(XR + 4 * j + 2 * o_, 2)} offset:{j * 4224 + o_ * 256}')
        a('s_waitcnt lgkmcnt(0)')
        a('s_barrier')
        XO = 96
        for j in range(10):
            a(f'ds_read_b128 {vr(XO + 4 * j, 4)}, v{vRd} offset:{j * 4224}')
        a(f's_mov_b32 s{sT1}, {XP4}')
        a(f's_mov_b32 s{sOne}, 0x3f803f80')
        for i in range(4):
            a(f'v_mov_b32 v{8 + i}, 0')
        for j in range(10):
            a(f'buffer_store_dwordx4 {vr(XO + 4 * j, 4)}, v{vSt}, {WS}, s{sT1} offen sc1')
            a(f's_add_u32 s{sT1}, s{sT1}, {16 * QS}')
            for i in range(4 * j, 4 * j + 4):
                a(f'v_dot2c_f32_bf16 v{8 + (i & 1)}, s{sOne}, v{XR + i}')
                a(f'v_dot2c_f32_bf16 v{10 + (i & 1)}, v{XR + i}, v{XR + i}')
        a('v_add_f32 v8, v8, v9')
        a('v_add_f32 v10, v10, v11')
        for m in ('quad_perm:[1,0,3,2]', 'quad_perm:[2,3,0,1]', 'row_half_mirror'):
            a(f'v_add_f32_dpp v8, v8, v8 {m} row_mask:0xf bank_mask:0xf')
            a(f'v_add_f32_dpp v10, v10, v10 {m} row_mask:0xf bank_mask:0xf')
        a(f'v_mul_f32 v8, {f32(1 / 640)}, v8')
        a(f'v_mul_f32 v10, {f32(1 / 640)}, v10')
        a('v_fma_f32 v10, -v8, v8, v10')
        a('v_max_f32 v10, 0, v10')
        a(f'v_add_f32 v10, {f32(1e-5)}, v10')
        a('v_rsq_f32 v10, v10')
        a(f'v_lshl_add_u32 v12, v{vRow}, 3, s{sT0}')
        a('v_mul_f32 v11, -v8, v10')
        a(f's_mov_b32 s{sT1}, {ST1}')
        vFl = 13
        a(f'buffer_load_dword v{vFl}, off, {sr(S_DBG, 4)}, 0 sc1')
        a('s_mov_b32 exec_lo, 0x01010101')
        a('s_mov_b32 exec_hi, 0x01010101')
        a(f'buffer_store_dwordx2 v[10:11], v12, {WS}, s{sT1} offen sc1')
        a('s_mov_b64 exec, -1')
        a('s_branch .Lr1')
        a('.Ls4:')
        a.fresh('s4')
        T4 = 10240
        a(f's_sub_u32 s{sT4}, s{sG}, 64')
        a(f's_lshr_b32 s{sT5}, s{sT4}, 2')
        a(f's_and_b32 s{sT4}, s{sT4}, 3')
        a(f's_mul_i32 s{sT0}, s{sT4}, 160')
        a(f's_lshl3_add_u32 s{sT0}, s{S_W}, s{sT0}')
        a(f's_mul_i32 s{sT0}, s{sT0}, 3072')
        a(f's_mul_i32 s{sT1}, s{sT5}, 3')
        a(f's_add_u32 s{sT1}, s{sT1}, 1')
        self.real_line(sT1, sT2)
        a(f's_lshl_b32 s{sT1}, s{sT1}, 7')
        a(f's_add_u32 s{sT0}, s{sT0}, s{sT1}')
        a('v_lshrrev_b32 v3, 3, v0')
        a('v_and_b32 v4, 7, v0')
        a(f'v_lshl_add_u32 v2, v4, 4, s{sT0}')
        a(f's_movk_i32 s{sT1}, 3072')
        a(f'v_mad_u32_u24 v2, v3, s{sT1}, v2')
        a(f's_mov_b32 s{sT0}, 0')
        for i in range(10):
            a(f'buffer_load_dwordx4 {vr(XR + 4 * i, 4)}, v2, {sr(S_WU if i & 1 else S_WG, 4)}, s{sT0} offen')
            if i & 1:
                a(f's_add_u32 s{sT0}, s{sT0}, {32 * 3072}')
        self.gemm_ids()
        self.w_addr()
        a(f's_lshl_b32 s{sT0}, s{S_W}, 9')
        a(f'v_lshl_add_u32 v5, v3, 6, s{sT0}')
        a('v_and_b32 v6, 1, v0')
        a('v_lshl_add_u32 v5, v6, 4, v5')
        a('v_bfe_u32 v6, v0, 1, 2')
        a('v_lshlrev_b32 v7, 5, v6')
        a('v_xor_b32 v5, v5, v7')
        a(f's_movk_i32 s{sT0}, {T4}')
        a(f'v_mad_u32_u24 v5, v6, s{sT0}, v5')
        a('v_xor_b32 v6, 32, v5')
        a('v_lshrrev_b32 v7, 5, v0')
        a('v_bfe_u32 v8, v0, 2, 2')
        a('v_lshl_add_u32 v7, v7, 3, v8')
        a('v_lshlrev_b32 v7, 6, v7')
        a('v_and_b32 v8, 3, v0')
        a('v_lshl_add_u32 v7, v8, 4, v7')
        a('v_bfe_u32 v8, v0, 4, 1')
        a('v_lshl_add_u32 v7, v8, 3, v7')
        a(f's_lshl_b32 s{sT1}, s{S_W}, 5')
        a(f'v_xor_b32 v7, s{sT1}, v7')
        a(f's_mul_i32 s{sT1}, s{S_W}, {T4}')
        a(f'v_add_u32 v7, s{sT1}, v7')
        for i in range(10):
            a(f'ds_write_b128 v{6 if i & 1 else 5}, {vr(XR + 4 * i, 4)} offset:{(i >> 1) * 2048}')
        a('s_waitcnt lgkmcnt(0)')
        a('s_barrier')
        for j in range(10):
            for e in range(2):
                a(f'ds_read_b64_tr_b16 {vr(XO + 4 * j + 2 * e, 2)}, v7 offset:{1024 * j + 256 * e}')
        a(f's_lshl2_add_u32 s{sT0}, s{sT5}, s{S_W}')
        a(f's_lshl2_add_u32 s{sT0}, s{sT0}, s{sT4}')
        a(f's_mul_i32 s{sT0}, s{sT0}, 10240')
        a(f's_add_u32 s{sT0}, s{sT0}, {W45F}')
        a('v_lshlrev_b32 v9, 4, v0')
        a(f'buffer_load_dword v{vFl}, off, {sr(S_DBG, 4)}, 0 sc1')
        for j in range(10):
            if j and j & 3 == 0:
                a(f's_add_u32 s{sT0}, s{sT0}, 4096')
            a(f'buffer_store_dwordx4 {vr(XO + 4 * j, 4)}, v9, {WS}, s{sT0} offen offset:{(j & 3) * 1024} sc1')
        a('.Lr1:')
        a.fresh()

        def end_r1(younger):
            a(f's_waitcnt vmcnt({younger})')
            a('s_barrier')
            a(f's_movk_i32 s{sT5}, {C_FX * 256}')
            with self.wave0():
                self.check(S_DBG, '0', 1, vFl)
                self.two_level(f's{sT5}', 95, C_FXR, True)
            self.stamp(1)
        a(f's_cmp_ge_u32 s{sG}, 48')
        a('s_cbranch_scc1 .Ls2')
        WB = 49152
        for j in range(10):
            a(f'buffer_load_dwordx4 {vr(WR + 4 * j, 4)}, v{vA}, {sr(S_WD, 4)}, 0 offen offset:{128 * j}')
        a(f's_movk_i32 s{sT1}, 1344')
        a(f'v_lshlrev_b32 v{vW}, 4, v{vS8}')
        a(f'v_mad_u32_u24 v{vW}, v{vRow}, s{sT1}, v{vW}')
        a('v_lshrrev_b32 v8, 4, v0')
        a('v_bfe_u32 v9, v0, 2, 2')
        a('v_lshl_add_u32 v8, v8, 3, v9')
        a(f's_mul_i32 s{sT0}, s{S_W}, 320')
        a(f'v_mov_b32 v9, s{sT0}')
        a(f'v_mad_u32_u24 v8, v8, s{sT1}, v9')
        a('v_and_b32 v9, 3, v0')
        a('v_lshl_add_u32 v10, v9, 3, v8')
        a('v_lshl_add_u32 v8, v9, 4, v8')
        end_r1(10)
        for j in range(10):
            a(f'ds_write_b128 v{vW}, {vr(WR + 4 * j, 4)} offset:{WB + 128 * j}')
        a('s_waitcnt lgkmcnt(0)')
        a('s_barrier')
        for cc in range(2):
            for nt in range(5):
                for e in range(2):
                    off = WB + cc * 160 + e * 4 * 1344 + ((nt >> 1) * 64 + (nt & 1) * 8)
                    a(f'ds_read_b64_tr_b16 {vr(XO + 4 * (5 * cc + nt) + 2 * e, 2)}, v{10 if nt == 4 else 8} offset:{off}')
        a(f's_mul_i32 s{sT0}, s{S_W}, 96')
        a(f's_add_u32 s{sT0}, s{sT0}, s{sG}')
        a(f's_mul_i32 s{sT0}, s{sT0}, 5120')
        a(f's_add_u32 s{sT0}, s{sT0}, {WDF}')
        a('v_lshlrev_b32 v9, 4, v0')
        for cc in range(2):
            for nt in range(5):
                if nt == 4:
                    a(f's_add_u32 s{sT0}, s{sT0}, 4096')
                a(f'buffer_store_dwordx4 {vr(XO + 4 * (5 * cc + nt), 4)}, v9, {WS}, s{sT0} offen offset:{(nt & 3) * 1024} sc1')
            a(f's_add_u32 s{sT0}, s{sT0}, {48 * 5120 - 4096}')
        a('s_branch .Lr2')
        a('.Ls2:')
        a.fresh()
        a(f's_sub_u32 s{sT0}, s{sG}, 48')
        a(f's_cmp_ge_u32 s{sT0}, 24')
        a(f's_cselect_b32 s{S_WD}, s{S_WU}, s{S_WG}')
        a(f's_cselect_b32 s{S_WD + 1}, s{S_WU + 1}, s{S_WG + 1}')
        a(f's_cselect_b32 s{sT1}, 24, 0')
        a(f's_sub_u32 s{sT1}, s{sT0}, s{sT1}')
        self.real_line(sT1, sT2)
        a(f's_lshl_b32 s{sT1}, s{sT1}, 7')
        a('v_and_b32 v2, 7, v0')
        a(f'v_lshrrev_b32 v3, 3, v{vTid}')
        a(f'v_lshl_add_u32 v4, v2, 4, s{sT1}')
        a(f's_movk_i32 s{sT2}, 3072')
        a(f'v_mad_u32_u24 v4, v3, s{sT2}, v4')
        a(f's_mov_b32 s{sT2}, 0')
        for i in range(8):
            a(f'v_mov_b32 v{16 + i}, 0')
        a(f's_mov_b32 s{sT4}, 0x3f80')
        a(f's_mov_b32 s{sT3}, 0x3f800000')
        LA = 12
        for i in range(20 + LA):
            if i < 20:
                a(f'buffer_load_dwordx4 {vr(32 + 4 * i, 4)}, v4, {sr(S_WD, 4)}, s{sT2} offen')
                a(f's_add_u32 s{sT2}, s{sT2}, {32 * 3072}')
            if i == LA - 1:
                end_r1(LA)
            if i >= LA:
                for d in range(4):
                    a(f'v_dot2c_f32_bf16 v{16 + 2 * d}, s{sT4}, v{32 + 4 * (i - LA) + d}')
                    a(f'v_dot2c_f32_bf16 v{17 + 2 * d}, s{sT3}, v{32 + 4 * (i - LA) + d}')
        a(f'v_lshlrev_b32 v5, 5, v{vTid}')
        a(f'ds_write_b128 v5, v[16:19] offset:{WB}')
        a(f'ds_write_b128 v5, v[20:23] offset:{WB + 16}')
        a('s_waitcnt lgkmcnt(0)')
        a('s_barrier')
        a('v_lshlrev_b32 v6, 2, v0')
        for i in range(16):
            a(f'ds_read2st64_b32 {vr(32 + 2 * i, 2)}, v6 offset0:{WB // 256 + 2 * i} offset1:{WB // 256 + 2 * i + 1}')
        for i in range(1, 16):
            a(f'v_pk_add_f32 v[32:33], v[32:33], {vr(32 + 2 * i, 2)}')
        a('v_add_f32 v32, v32, v33')
        a('v_cvt_pk_bf16_f32 v8, v32, v32')
        a('v_lshlrev_b32 v10, 16, v8')
        a('v_sub_f32 v10, v32, v10')
        a('v_cvt_pk_bf16_f32 v9, v10, v10')
        a(f's_lshl_b32 s{sT0}, s{sT0}, 9')
        a(f's_add_u32 s{sT0}, s{sT0}, {CSF}')
        a('v_lshrrev_b32 v6, 5, v0')
        a('v_lshlrev_b32 v6, 8, v6')
        a('v_and_b32 v7, 15, v0')
        a('v_lshl_add_u32 v6, v7, 4, v6')
        a('v_bfe_u32 v7, v0, 4, 1')
        a('v_lshl_add_u32 v6, v7, 3, v6')
        a(f'buffer_store_dwordx2 v[8:9], v6, {WS}, s{sT0} offen sc1')
        a('.Lr2:')
        a.fresh()
        self.stamp(2)
        a(f's_lshl_b32 s{sT0}, s{sG}, 8')
        a(f's_add_u32 s{sT0}, s{sT0}, {C_F3 * 256}')
        a('v_mov_b32 v4, 0')
        a('s_mov_b64 exec, 1')
        a(f'buffer_store_dword v4, off, {WS}, s{sT0} sc1')
        a('s_mov_b64 exec, -1')
        a(self.clear_pst(2))
        self.w_select()
        wl = self.w_loads_main()
        n0 = self.opt.get('side_pre', 12)
        a(wl[:n0])
        a.drain_stores()
        a('s_waitcnt lgkmcnt(0)')
        a('s_barrier')
        self.stamp(6)
        lfw = a.label('nofw')
        a(f's_cmp_ge_u32 s{sG}, 48')
        a(f's_cbranch_scc1 {lfw}')
        a(f's_movk_i32 s{sT0}, {C_FW * 256}')
        with self.wave0():
            self.two_level(f's{sT0}', 47, C_FWR, True)
        a(f'{lfw}:')
        self.arrive_e2()
        a(f's_lshl_b32 s{sT4}, s{sX}, 8')
        a(f's_add_u32 s{sT4}, s{sT4}, {C_FXR * 256}')
        a(f'buffer_load_dword v1, off, {WS}, s{sT4} sc1')
        a(wl[n0:32])
        self.check(S_WS, f's{sT4}', 1, 1)
        a(self.w_loads_tail())
        a(f's_add_u32 s{sFW}, s{sT4}, {(C_FWR - C_FXR) * 256}')
        a(f's_mov_b32 s{sSide}, 1')
        a(f'buffer_load_dword v246, off, {WS}, s{sFW} sc1')
        a('s_waitcnt vmcnt(0)')
        self.stamp(7)
        if self.opt.get('outpf', 1):
            a(f's_cmp_ge_u32 s{sG}, 48')
            a('s_cbranch_scc1 .Ljoin')
            full = self.opt.get('outpf', 1) == 2
            a(f'v_lshl_add_u32 v1, s{S_W}, 6, v0')
            a(f's_lshr_b32 s{sT0}, s{sG}, 3')
            a(f's_and_b32 s{sT1}, s{sG}, 7')
            a(f's_mul_i32 s{sT1}, s{sT1}, {256 * 1280}')
            if full:
                a(f's_mul_i32 s{sT0}, s{sT0}, {428 * 128}')
                a(f's_add_u32 s{sT1}, s{sT1}, s{sT0}')
                a('v_min_u32 v1, 213, v1')
                a('v_lshlrev_b32 v1, 8, v1')
                a(f'buffer_load_dword a255, v1, {sr(S_OUT, 4)}, s{sT1} offen')
                a(f'buffer_load_dword a254, v1, {sr(S_OUT, 4)}, s{sT1} offen offset:128')
            else:
                a(f's_mul_i32 s{sT0}, s{sT0}, {171 * 320}')
                a(f's_add_u32 s{sT1}, s{sT1}, s{sT0}')
                a('v_min_u32 v1, 170, v1')
                a('v_mul_u32_u24 v1, 320, v1')
                a(f'buffer_load_dword a255, v1, {sr(S_OUT, 4)}, s{sT1} offen offset:160')
        a('s_branch .Ljoin')

    def signal(self, soff):
        a = self.a
        if self.opt['sig'] == 's':
            a(f's_atomic_add s{sU2}, {sr(S_WS, 2)}, {soff}')
        else:
            a('s_mov_b64 exec, 1')
            a(f'buffer_atomic_add v{self.vOne}, off, {WS}, {soff} sc1')
            a('s_mov_b64 exec, -1')

    def gemms(self):
        a = self.a
        o = self.opt
        t, t2 = self.vTmp, self.vTmp2
        L, AB = 0, 8
        vRD = 4
        vAL, vAS, vA2, vWD, vWD2, vCS, vFl = 1, 2, 3, 247, 255, 246, 254
        vW5 = 252
        vS = 232
        BP = 236
        TM = 242
        ACC = 168
        RING1, CS, RING2 = 124, 148, 240
        sF3s, sF3p = sQ, sM
        sRB2w = sG
        kap = [[3 * c + ((pi + 1) % 3 if c & 1 else pi) for c in range(4)] for pi in range(3)]
        wd = []
        for i in range(60):
            g = []
            if i % 5 == 0:
                g.append(f's_mov_b32 s{sWoff2}, {WDF + 5120 * kap[i // 20][i // 5 % 4]}')
            g.append(f'buffer_load_dwordx4 {ar(4 * i, 4)}, v{vWD2 if i % 5 == 4 else vWD}, {WS}, s{sWoff2} offen offset:{(i % 5 & 3) * 1024} sc1')
            wd.append(g)
        if o.get('nowd'):
            wd = [[] for _ in wd]
        self.w_write_addr()
        wl = self.w_loads_main()[32:]
        a(wl[0][:-1])
        wl[0] = wl[0][-1]
        if o['wd_pre']:
            self.check(S_WS, f's{sFW}', 1, vCS)
        a('s_barrier')
        self.stamp('hbar')
        real, setup0 = a, []
        a = setup0.append
        a(f's_and_b32 s{sT0}, s{sJ}, 7')
        a(f's_lshl2_add_u32 s{sT0}, s{sT0}, s{S_W}')
        a(f's_mul_i32 s{sT0}, s{sT0}, {12 * 5120}')
        a(f'v_lshl_add_u32 v{vWD}, v0, 4, s{sT0}')
        a(f'v_add_u32 v{vWD2}, 0x1000, v{vWD}')
        a(f'v_lshlrev_b32 v{vRD}, 4, v0')
        for s in range(1, 4):
            a(f'v_xor_b32 v{t}, {16 * s}, v{vRD}')
            a(f'v_add_u32 v{vRD + s}, {TILE * s}, v{t}')
        a(f's_lshl_b32 s{sT0}, s{S_W}, 10')
        a(f'v_add_u32 v{vW5}, s{sT0}, v{vRD}')
        a(f'v_add_u32 v{vW5 + 1}, s{sT0}, v{vRD + 1}')
        a(f's_lshl2_add_u32 s{sT0}, s{sRB}, s{S_W}')
        a(f's_lshl_b32 s{sT1}, s{sT0}, 8')
        a(f'v_and_b32 v{t}, 15, v0')
        a(f'v_lshlrev_b32 v{vA2}, 4, v{t}')
        a(f'v_add_u32 v{t}, s{sT1}, v{vA2}')
        a(f'v_lshrrev_b32 v{t2}, 4, v0')
        a(f's_mov_b32 s{sT1}, {QS}')
        a(f'v_mad_u32_u24 v{vAL}, v{t2}, s{sT1}, v{t}')
        a(f'v_lshl_add_u32 v{vA2}, v{t2}, 9, v{vA2}')
        a(f's_mul_i32 s{sT1}, s{sT0}, 98304')
        a(f'v_lshl_add_u32 v{vAS}, v0, 4, s{sT1}')
        a(f's_lshr_b32 s{sF3s}, s{sT0}, 1')
        a(f's_lshl_b32 s{sF3s}, s{sF3s}, 8')
        a(f's_add_u32 s{sF3s}, s{sF3s}, {C_F3 * 256}')
        a(f's_lshr_b32 s{sT1}, s{sJ}, 3')
        a(f's_lshl2_add_u32 s{sF3p}, s{sX}, s{sT1}')
        a(f's_lshl_b32 s{sRB2w}, s{sF3p}, 1')
        a(f's_lshl_b32 s{sF3p}, s{sF3p}, 8')
        a(f's_add_u32 s{sF3p}, s{sF3p}, {C_F3 * 256}')
        for i in range(4):
            a(f's_add_u32 s{sT0}, s{sRot}, {i}')
            a(f's_and_b32 s{sT0}, s{sT0}, 3')
            a(f's_mul_i32 s{sT0}, s{sT0}, {40 * QS}')
            a(f's_add_u32 s{sAB + i}, s{sT0}, {HP4}')
        a(f'v_and_b32 v{t}, 3, v0')
        a(f'v_bfe_u32 v{t2}, v0, 2, 1')
        a(f'v_lshl_add_u32 v{t}, v{t2}, 3, v{t}')
        a(f'v_bfe_u32 v{t2}, v0, 4, 1')
        a(f'v_lshl_add_u32 v{t}, v{t2}, 2, v{t}')
        a(f'v_lshlrev_b32 v{t}, 4, v{t}')
        a(f'v_bfe_u32 v{t2}, v0, 3, 1')
        a(f's_movk_i32 s{sT1}, 12288')
        a(f'v_mad_u32_u24 v{vCS}, v{t2}, s{sT1}, v{t}')
        for i in range(4):
            a(f'v_mov_b32 v{vS + i}, 0')
        a(f's_mov_b32 s{sOne}, 0x3f803f80')
        a(f's_mov_b32 s{sU2}, 1')
        a(f's_lshl_b32 s{sT2}, s{sA}, 7')
        a(f's_add_u32 s{sT2}, s{sT2}, {CSF}')
        a(f's_lshl_b32 s{sT3}, s{sB}, 7')
        a(f's_add_u32 s{sT3}, s{sT3}, {CSF}')
        a(f's_lshl_b32 s{sA}, s{sA}, 10')
        a(f's_add_u32 s{sA}, s{sA}, {ACT}')
        a(f's_lshl_b32 s{sB}, s{sB}, 10')
        a(f's_add_u32 s{sB}, s{sB}, {ACT}')
        a(f's_mul_i32 s{sT5}, s{S_W}, {12 * 2048}')
        for lam in range(4):
            a(f's_xor_b32 s{sT0}, s{S_W}, {lam}')
            a(f's_lshr_b32 s{sT1}, s{sT0}, 1')
            a(f's_add_u32 s{sT1}, s{sT1}, s{sRB2w}')
            a(f's_mul_i32 s{sT1}, s{sT1}, 98304')
            a(f's_and_b32 s{sT0}, s{sT0}, 1')
            a(f's_lshl_b32 s{sT0}, s{sT0}, 8')
            a(f's_add_u32 s{sT0}, s{sT0}, s{sT5}')
            a(f's_add_u32 s{sL[lam]}, s{sT1}, s{sT0}')
        sRes, sOutB, sQS = 20, 21, 22
        a(f's_lshr_b32 s{sT0}, s{S_W}, 1')
        a(f's_add_u32 s{sT0}, s{sT0}, s{sRB2w}')
        a(f's_lshl_b32 s{sRes}, s{sT0}, 8')
        a(f's_and_b32 s{sT4}, s{S_W}, 1')
        a(f's_lshl3_add_u32 s{sRes}, s{sT4}, s{sRes}')
        a(f's_and_b32 s{sT5}, s{sJ}, 7')
        a(f's_mul_i32 s{sT6}, s{sT5}, {20 * QS}')
        a(f's_add_u32 s{sRes}, s{sRes}, s{sT6}')
        a(f's_mov_b32 s{sQS}, {QS}')
        a(f's_lshr_b32 s{sOutB}, s{sRB2w}, 3')
        a(f's_lshl_b32 s{sOutB}, s{sOutB}, 8')
        a(f's_and_b32 s{sT6}, s{sT0}, 3')
        a(f's_lshl2_add_u32 s{sOutB}, s{sT6}, s{sOutB}')
        a(f's_bfe_u32 s{sT6}, s{sRB2w}, 0x10002')
        a(f's_lshl1_add_u32 s{sOutB}, s{sT6}, s{sOutB}')
        a(f's_add_u32 s{sOutB}, s{sOutB}, s{sT4}')
        a(f's_mul_i32 s{sOutB}, s{sOutB}, 1280')
        a(f's_mul_i32 s{sT6}, s{sT5}, 160')
        a(f's_add_u32 s{sOutB}, s{sOutB}, s{sT6}')
        a(f's_lshl_b32 s{sU0}, s{sCB}, 8')
        a(f's_add_u32 s{sU0}, s{sU0}, {PST}')
        a(f's_mov_b32 s{sU1}, {PST}')
        a(f's_and_b32 s{sCB}, s{sCB}, 3')
        a(f's_mul_i32 s{sCB}, s{sCB}, 10')
        a = real
        ww = self.w_writes_main()
        lq = wl + [wd.pop(0) for _ in range(o['wd_pre'])]
        n1, n2 = o.get('ww1', 13), o.get('ww2', 7)

        def some(n, nl):
            for i in range(n):
                a(ww.pop(0))
                for _ in range(6):
                    if setup0:
                        a(setup0.pop(0))
                for _ in range(((i + 1) * nl) // n - (i * nl) // n):
                    if lq:
                        a(lq.pop(0))
        some(4, 0)
        some(n1 - 4, o.get('l1', 8))
        self.stamp('hissued')
        a.drain_stores()
        self.stamp('hdrained')
        a('s_barrier')
        self.stamp('hbar2')
        lns = a.label('noarr')
        a(f's_mov_b32 s{sArr}, 1')
        a(f's_or_b32 s{sSide}, s{sSide}, s{S_W}')
        a(f's_cbranch_scc1 {lns}')
        with a.untracked():
            a(f's_lshl_b32 s{sSpin}, s{sX}, 8')
            a(f's_atomic_add s{sArr}, {sr(S_WS, 2)}, s{sSpin} offset:{C_B1 * 256} glc')
        a(f'{lns}:')
        some(n2, o.get('l2', 6))
        lns = a.label('notlast')
        a('s_waitcnt lgkmcnt(0)')
        a(f's_cmp_lg_u32 s{sArr}, 31')
        a(f's_cbranch_scc1 {lns}')
        with a.untracked():
            a('s_mov_b64 exec, 0xff')
            a(f'v_lshlrev_b32 v{TM}, 8, v0')
            a(f's_mov_b32 s{sT7}, {C_B2 * 256}')
            a(f'buffer_atomic_add v{self.vOne}, v{TM}, {WS}, s{sT7} offen sc1')
            a('s_mov_b64 exec, -1')
        a(f'{lns}:')
        self.stamp('arrived')
        some(24 - n1 - n2, len(lq))
        a(setup0)
        a(lq)
        self.stamp('wwritten')
        a(f's_lshl_b32 s{sT0}, s{sX}, 8')
        a(f's_add_u32 s{sT0}, s{sT0}, {C_B2 * 256}')
        self.warm([[3, 6], [4, 7], [5]])
        with self.wave0():
            self.spin(S_WS, f's{sT0}', 8, t)
        self.stamp('polled')
        a('s_waitcnt lgkmcnt(0)')
        a('s_barrier')
        self.stamp(8)
        al = []
        for j in range(40):
            if j % 10 == 0:
                al.append([f'buffer_load_dwordx4 {vr(AB + 4 * j, 4)}, v{vAL}, {WS}, s{sAB + j // 10} offen sc1'])
            else:
                al.append([f's_add_u32 s{sT1}, s{sAB + j // 10}, {(j % 10) * 4 * QS}',
                           f'buffer_load_dwordx4 {vr(AB + 4 * j, 4)}, v{vAL}, {WS}, s{sT1} offen sc1'])
        al.append(f'buffer_load_dwordx4 {ar(CS, 4)}, v{vCS}, {WS}, s{sT2} offen sc1')
        al.append(f'buffer_load_dwordx4 {ar(CS + 4, 4)}, v{vCS}, {WS}, s{sT2} offen offset:256 sc1')
        al.append(f'buffer_load_dwordx4 {ar(CS + 8, 4)}, v{vCS}, {WS}, s{sT3} offen sc1')
        for _ in range(o['a_ahead']):
            a(al.pop(0))

        def rd(dst, slot, j):
            return f'ds_read_b128 {ar(dst, 4)}, v{vRD + slot} offset:{1024 * j}'

        def swaps(j):
            return [f'v_permlane16_swap_b32 v{AB + 4 * j + e}, v{AB + 4 * j + 2 + e}' for e in range(2)]

        def acc(slot):
            return vr(ACC + 16 * slot, 16)
        wtail = [f'ds_write_b128 v{vW5 + (i & 1)}, {ar(160 + 4 * i, 4)} offset:{(i >> 1) * 4096}' for i in range(20)]
        if o.get('nowt'):
            wtail = [[] for _ in wtail]
        C0, C1, R = vS, vS + 1, vS + 2
        c0 = -2.0 * 0.7978845608028654 * 1.4426950408889634
        G = ACC + 48
        gather = [f'buffer_load_dwordx2 {vr(G + 2 * s, 2)}, v{self.vPS}, {WS}, s{sU1} offen offset:{256 * s} sc1'
                  for s in range(8)]
        valid = [f'v_or3_b32 v{t}, v{G + 1}, v{G + 3}, v{G + 5}', f'v_or3_b32 v{t2}, v{G + 7}, v{G + 9}, v{G + 11}',
                 f'v_or3_b32 v{t}, v{t}, v{G + 13}, v{G + 15}', f'v_or_b32 v{t}, v{t}, v{t2}',
                 f'v_cmp_gt_i32 vcc, 0, v{t}']

        def chk_stats():
            slow, back = a.label('slow'), a.label('back')
            a('s_nop 1')
            a(f's_cbranch_vccnz {slow}')
            a(f'{back}:')

            def cold():
                top = a.label('top')
                a(f'{slow}:')
                with a.untracked():
                    a(f's_mov_b32 s{sSpin}, {SPIN}')
                    a(f'{top}:')
                    a(gather)
                    a('s_waitcnt vmcnt(0)')
                    a(valid)
                    a(f's_sub_u32 s{sSpin}, s{sSpin}, 1')
                    a(f's_cbranch_scc1 {back}')
                    a('s_nop 3')
                    a(f's_cbranch_vccnz {top}')
                    a(f's_branch {back}')
            self.cold.append(cold)
        halves = [
            f'v_add_f32 v{vS}, v{vS}, v{vS + 1}',
            f'v_add_f32 v{vS + 2}, v{vS + 2}, v{vS + 3}',
            f'v_mov_b32 v{vS + 1}, v{vS}',
            f'v_mov_b32 v{vS + 3}, v{vS + 2}',
            f'v_cmp_gt_u32 vcc, 32, v{L}',
            f'v_permlane32_swap_b32 v{vS}, v{vS + 1}',
            f'v_permlane32_swap_b32 v{vS + 2}, v{vS + 3}']
        pub = halves + [
            f'v_add_f32 v{G}, v{vS}, v{vS + 1}',
            f'v_add_f32 v{G + 1}, v{vS + 2}, v{vS + 3}',
            f'v_and_b32 v{G + 1}, 0x7fffffff, v{G + 1}',
            ['s_mov_b32 exec_hi, 0',
             f'buffer_store_dwordx2 {vr(G, 2)}, v{self.vPS}, {WS}, s{sU0} offen sc1',
             's_mov_b32 exec_hi, -1']]
        st = valid + [chk_stats]
        for w_ in range(2):
            g = G + w_
            st += [f'v_add_f32 v{g}, v{g}, v{g + 2}', f'v_add_f32 v{g + 4}, v{g + 4}, v{g + 6}',
                   f'v_add_f32 v{g + 8}, v{g + 8}, v{g + 10}', f'v_add_f32 v{g + 12}, v{g + 12}, v{g + 14}',
                   f'v_add_f32 v{vS + 2 * w_}, v{g}, v{g + 4}', f'v_add_f32 v{vS + 2 * w_ + 1}, v{g + 8}, v{g + 12}']
        st += halves + [
            f'v_add_f32 v{vS}, v{vS}, v{vS + 1}',
            f'v_add_f32 v{vS + 2}, v{vS + 2}, v{vS + 3}',
            f'v_mul_f32 v{vS}, {f32(-1 / 640)}, v{vS}',
            f'v_mul_f32 v{vS + 2}, {f32(1 / 640)}, v{vS + 2}',
            f'v_cvt_pk_bf16_f32 v{t}, v{vS}, v{vS}',
            f'v_fma_f32 v{R}, -v{vS}, v{vS}, v{R}',
            f'v_lshlrev_b32 v{t}, 16, v{t}',
            f'v_max_f32 v{R}, 0, v{R}',
            f'v_sub_f32 v{t2}, v{vS}, v{t}',
            f'v_add_f32 v{R}, {f32(1e-5)}, v{R}',
            f'v_cvt_pk_bf16_f32 v{t}, v{t}, v{t2}',
            f'v_rsq_f32 v{vS + 3}, v{R}',
            f'v_cndmask_b32 v{BP + 2}, 0, v{t}, vcc',
            f'v_cndmask_b32 v{BP + 3}, 0, v{t}, vcc',
            f'v_mul_f32 v{C0}, {f32(c0)}, v{vS + 3}',
            f'v_mul_f32 v{t}, v{vS + 3}, v{vS + 3}',
            f'v_mul_f32 v{t}, {f32(0.044715)}, v{t}',
            f'v_mul_f32 v{C1}, v{t}, v{C0}',
        ]

        def csm(tile, slot, first):
            b = vr(BP, 4) if tile & 1 else vr(BP + 2, 4)
            return f'v_mfma_f32_32x32x16_bf16 {acc(slot)}, {ar(CS + 4 * (tile >> 1), 4)}, {b}, {"0" if first else acc(slot)}'

        def pick(r0, r1):
            a(f's_set_gpr_idx_on s{sCB}, gpr_idx(SRC0)')
            a('s_nop 0')
            for r in range(r0, r1):
                a(f'v_mov_b32_e32 v{G + r}, v{AB + r}')
            a('s_set_gpr_idx_off')
        for j in range(2):
            for s in range(3):
                a(rd(RING1 + 12 * j + 4 * s, s, j))
        a(swaps(0))
        self.stamp('a0')
        p2 = [(3, 3, j) for j in range(40)] + [(4, 0, j) for j in range(40)] + [(5, 1, j) for j in range(40)]
        gq = list(gather)
        GJ, SJ = o.get('gather_j', 22), o.get('stat_j', 33)
        B1, B2 = 21, 33
        nwd1 = min(o.get('wd_p1', 6), 31 - o['wd_pre'])
        assert o['a_ahead'] <= 14
        for j in range(40):
            base = RING1 + 12 * (j & 1)
            self.stamp(f'p{j}')
            a.need(ar(base, 12))
            for s in range(3):
                c = '0' if j == 0 else acc(s)
                a(f'v_mfma_f32_32x32x16_bf16 {acc(s)}, {ar(base + 4 * s, 4)}, {vr(AB + 4 * j, 4)}, {c}')
                if j < 38:
                    a(rd(base + 4 * s, s, j + 2))
                else:
                    i = (j - 38) * 3 + s
                    if i < 4:
                        a(rd(RING2 + 4 * i, p2[i][1], p2[i][2]))
                if s == 0 and j < 39:
                    a(swaps(j + 1))
                if s == 1 and (B1 < j <= B1 + 10 or B2 < j):
                    a(wtail.pop(0))
                if s == 0 and j >= GJ and gq:
                    a(gq.pop(0))
                if s == 2:
                    if al:
                        a(al.pop(0))
                    elif nwd1 and not gq and j < SJ:
                        a(wd.pop(0))
                        nwd1 -= 1
                if j not in (8, 9) and ww:
                    if s == 0:
                        while len(ww[0]) > 1:
                            a(ww[0].pop(0))
                    if s == 1:
                        a(ww.pop(0))
                if s == 2 and j not in (7, 8) and ww:
                    a(ww[0].pop(0))
                    a(ww[0].pop(0))
                if j == 19 and s == 1:
                    assert not ww
                    for i in (0, 1, 4, 5):
                        a(f'v_mov_b32 v{BP + i}, 0')
                if j == 8 and s == 1:
                    pick(0, 4)
                if j == 9 and s == 1:
                    pick(4, 10)
                if j in (10, 11) and s != 1:
                    for _ in range(3):
                        if pub:
                            a(pub.pop(0))
                if j >= SJ:
                    for _ in range((3, 0 if j > B2 else 5, 4)[s]):
                        if st:
                            a(st.pop(0))
            if j in (B1, B2):
                a('s_barrier')
            if j == 9:
                for r in range(10):
                    a(f'v_dot2c_f32_bf16 v{vS + (r & 1)}, s{sOne}, v{G + r}')
                    a(f'v_dot2c_f32_bf16 v{vS + 2 + (r & 1)}, v{G + r}, v{G + r}')
        assert not pub and not al and not st
        a(st)
        RES, vRes, vRes2 = 200, vAL, vCS
        res_addr = [
            f'v_and_b32 v{vRes}, 15, v{L}',
            f'v_lshl_add_u32 v{vRes2}, v{vRes}, 4, s{sRes}',
            f'v_lshrrev_b32 v{vRes}, 4, v{L}',
            f'v_mad_u32_u24 v{vRes2}, v{vRes}, s{sQS}, v{vRes2}',
            f'v_mad_u32_u24 v{vRes}, v{vRes}, s{sQS}, v{vRes2}',
        ]
        a('s_barrier')
        for tl in range(3):
            a(csm(tl, tl, False))
            a(res_addr if tl == 0 else wtail.pop(0))
        self.stamp(9)

        def epi(tile, slot, packed=False):
            b = ACC + 16 * slot
            tm = [TM, TM + 1, TM + 2, TM + 3]
            ops = []
            for h in range(2):
                g, u = b + 8 * h, b + 8 * h + 4
                ops += [(1, f'v_mul_f32 v{tm[i]}, v{g + i}, v{g + i}') for i in range(4)]
                ops += [(1, f'v_fma_f32 v{tm[i]}, v{tm[i]}, v{C1}, v{C0}') for i in range(4)]
                ops += [(1, f'v_mul_f32 v{tm[i]}, v{tm[i]}, v{g + i}') for i in range(4)]
                for i in range(4):
                    ops += [(2, f'v_exp_f32 v{tm[i]}, v{tm[i]}'), (1, f'v_mul_f32 v{u + i}, v{u + i}, v{g + i}')]
                ops += [(1, f'v_fma_f32 v{tm[i]}, v{tm[i]}, v{R}, v{R}') for i in range(4)]
                ops += [(2, f'v_rcp_f32 v{tm[i]}, v{tm[i]}') for i in range(4)]
                ops += [(1, f'v_mul_f32 v{u + i}, v{u + i}, v{tm[i]}') for i in range(4)]
                ops += [(1, f'v_cvt_pk_bf16_f32 v{b + 2 * h + i}, v{u + 2 * i}, v{u + 2 * i + 1}') for i in range(2)]
            so = sA if tile < 4 else sB
            txt = f'buffer_store_dwordx4 {vr(b, 4)}, v{vAS}, {WS}, s{so} offen offset:{(tile & 3) * 1024} sc1'
            ops.append((5, (lambda: a(txt, tag=f'act{tile}')) if not o.get('nost') else []))
            if o.get('noepi'):
                ops = [(c_, x if callable(x) else []) for c_, x in ops]
            return ops

        G2 = 72
        FR = [[8 + 4 * i for i in range(16)],
              [152 + 4 * i for i in range(4)] + [200 + 4 * i for i in range(8)] + [168 + 4 * i for i in range(4)],
              [8 + 4 * i for i in range(16)]]
        order = [[(c, lam) for c in range(4) for lam in range(4)]] * 2 + [[(c, lam) for lam in (3, 2, 1, 0) for c in range(4)]]

        def act_ld(pi, n):
            c, lam = order[pi][n]
            if o.get('noact'):
                return []
            return [f's_add_u32 s{sT1}, s{sL[lam]}, {ACT + 2048 * kap[pi][c]}',
                    f'buffer_load_dwordx4 {vr(FR[pi][n], 4)}, v{vA2}, {WS}, s{sT1} offen sc1']

        def sig(pi, tag):
            def f():
                self.stamp(f'presig{pi}')
                a.need_tag(tag)
                self.signal(f's{sF3s}')
                self.stamp(f'sig{pi}')
                if pi < 2:
                    a(f's_add_u32 s{sF3s}, s{sF3s}, {32 * 256}')
            return f

        def poll_ld():
            return f'buffer_load_dword v{vFl}, off, {WS}, s{sF3p} sc1'

        def poll_chk(pi):
            def f():
                self.stamp(f'prechk{pi}')
                self.check(S_WS, f's{sF3p}', 32, vFl)
                self.stamp(f'chk{pi}')
                if pi < 2:
                    a(f's_add_u32 s{sF3p}, s{sF3p}, {32 * 256}')
            return f
        RES, vRes, vRes2 = 200, vAL, vCS
        res_addr = [
            f'v_and_b32 v{vRes}, 15, v{L}',
            f'v_lshl_add_u32 v{vRes2}, v{vRes}, 4, s{sRes}',
            f'v_lshrrev_b32 v{vRes}, 4, v{L}',
            f'v_mad_u32_u24 v{vRes2}, v{vRes}, s{sQS}, v{vRes2}',
            f'v_mad_u32_u24 v{vRes}, v{vRes}, s{sQS}, v{vRes2}',
        ]
        res_ld = []
        for nt in range(5):
            q = 8 * (nt >> 1) + (nt & 1)
            res_ld.append([f's_mov_b32 s{sT6}, {HP4 + q * QS}',
                           f'buffer_load_dwordx2 {vr(RES + 2 * nt, 2)}, v{vRes2 if nt == 4 else vRes}, {WS}, s{sT6} offen sc1'])
        slot_of = {0: 0, 1: 1, 2: 2, 3: 3, 4: 0, 5: 1}
        eq = epi(0, 0) + epi(1, 1) + epi(2, 2)
        budget = 0.0
        RATE = o['epi_rate']
        extra = {i: [] for i in range(120)}
        first_w = wtail.pop(0)
        for k in range(len(wtail)):
            extra[k].append(wtail[k])
        extra[30].append('s_barrier')
        nwd = len(wd) - o.get('wd_post', 12)
        done = 60 - len(wd)
        lo, hi = o.get('wd_lo', 4), o.get('wd_hi', 78)
        hold = None
        for k in range(nwd):
            g = wd.pop(0)
            p = lo + (k * (hi - lo)) // nwd
            fr = done + k
            if fr == 39:
                extra[81].append([f's_mov_b32 s{sT6}, {WDF + 5120 * kap[1][3]}', g[-1].replace(f's{sWoff2} offen', f's{sT6} offen')] if g else [])
                continue
            assert fr < 56 or p > 14
            extra[p].append(g)
        SA, SB = o.get('siga', 62), o.get('sigb', 104)
        extra[SA].append(sig(0, 'act1'))
        extra[o.get('lda', 86)].append(poll_ld())
        for k, x in enumerate(res_ld):
            extra[o.get('res_at', 86) + 2 * k].append(x)
        ca = o.get('chka', 105)
        extra[ca].append(poll_chk(0))
        na = o.get('a_in', 7)
        for n in range(na):
            extra[ca + 1 + (n * (119 - ca)) // na].append(act_ld(0, n))
        extra[SB].append(sig(1, 'act3'))
        extra[50].append('s_barrier')

        def cost(x):
            if callable(x):
                return 3
            if isinstance(x, (list, tuple)):
                return sum(cost(y) for y in x)
            return 5 if x.startswith('ds_write') else 2 if x.startswith('buffer') or x == 's_barrier' else 1
        CAP = o.get('cap', 6.6)
        for i, (tile, ls, j) in enumerate(p2):
            slot = slot_of[tile]
            self.stamp(f'q{i}')
            if j == 0:
                a(csm(tile, slot, True))
                if i == 0:
                    a(first_w)
                if i:
                    budget = 6
                    while eq and budget >= eq[0][0]:
                        cst, x = eq.pop(0)
                        budget -= cst
                        a(x)
            if i & 1 == 0:
                a.need(ar(RING2 + 4 * (i & 3), 8))
            a(f'v_mfma_f32_32x32x16_bf16 {acc(slot)}, {ar(RING2 + 4 * (i & 3), 4)}, {vr(AB + 4 * j, 4)}, {acc(slot)}')
            if i + 4 < len(p2):
                a(rd(RING2 + 4 * (i & 3), p2[i + 4][1], p2[i + 4][2]))
            a(extra[i])
            if i == 42:
                eq += epi(3, 3)
            if i == 82:
                eq += epi(4, 0)
            if i >= 1:
                budget = min(budget, 1.0) + CAP - 1 - (i & 1) - cost(extra[i])
                budget = max(budget, -1)
                while eq and budget >= min(eq[0][0], 2):
                    cst, x = eq.pop(0)
                    budget -= cst
                    a(x)
                    if callable(x) and o.get('verbose'):
                        print('store at gap', i)
                if i == 39:
                    assert len(eq) <= 2 * 69, len(eq)
                if i == SA - 1:
                    assert len(eq) <= 2 * 69, len(eq)
                if i == 79:
                    assert len(eq) <= 2 * 69, len(eq)
                if i == o.get('res_at', 86) - 1:
                    assert len(eq) <= 2 * 69, len(eq)
                if i == SB - 1:
                    assert len(eq) <= 69, len(eq)
            if j == 39:
                self.stamp(f't{tile}')
        for cst, x in eq:
            a(x)
        a(f's_mov_b32 s{sT0}, 0xffff0000')
        for i in range(10):
            a(f'v_lshlrev_b32 v{G2 + 2 * i}, 16, v{RES + i}')
            a(f'v_and_b32 v{G2 + 2 * i + 1}, s{sT0}, v{RES + i}')
        e5 = epi(5, 1)
        LA = o.get('la2', 11)
        rest = [act_ld(0, n) for n in range(na, LA)]
        if o.get('ldb', -1) < 0:
            rest.append(poll_ld())
        k = 0
        for i, (cst, x) in enumerate(e5):
            while k < len(rest) and (k + 1) * (len(e5) - 1) <= i * len(rest):
                a(rest[k])
                k += 1
            a(x)
        assert k == len(rest)
        self.stamp(10)

        vOut, vRR, vRW, vTW, vTR = 4, 7, 232, 238, 242
        RED = 2 * TILE
        setup = [
            f's_movk_i32 s{sT6}, {16 * 1280 - 160}',
            f's_movk_i32 s{sT5}, 6554',
            f's_movk_i32 s{sT4}, 176',
            f's_mul_i32 s{sT3}, s{S_W}, {16 * 176}',
            f'v_and_b32 v{t}, 15, v{L}',
            f'v_lshrrev_b32 v{t2}, 4, v{L}',
            f'v_mov_b32 v{vTW + 1}, s{sT3}',
            f'v_mad_u32_u24 v{vTW + 1}, v{t}, s{sT4}, v{vTW + 1}',
            f'v_lshl_add_u32 v{vTW}, v{t2}, 4, v{vTW + 1}',
            f'v_lshl_add_u32 v{vTW + 1}, v{t2}, 3, v{vTW + 1}',
        ]
        setup += [f'v_mul_u32_u24 v{t2}, s{sT5}, v{L}',
                  f'v_lshrrev_b32 v{t2}, 16, v{t2}',
                  f'v_lshl_add_u32 v{vOut}, v{L}, 4, s{sOutB}',
                  f'v_mad_u32_u24 v{vOut}, v{t2}, s{sT6}, v{vOut}',
                  f'v_add_u32 v{t}, v{L}, v{t2}',
                  f'v_lshl_add_u32 v{vTR}, v{t}, 4, s{sT3}',
                  f's_mov_b32 s{sT4}, {6 * 16 * 1280}',
                  f's_mov_b32 s{sT5}, {12 * 16 * 1280}']
        for lam in range(4):
            setup += [f's_xor_b32 s{sT0}, s{S_W}, {lam}', f's_mul_i32 s{sT0}, s{sT0}, {15 * 1024}',
                      f's_add_u32 s{sT0}, s{sT0}, {RED + (lam - 1) * 5120 if lam else RED}',
                      f'v_lshl_add_u32 v{vRW + lam - 1 if lam else vRR}, v{L}, 4, s{sT0}']

        def mf2(pi, n, nt):
            c, lam = order[pi][n]
            d = vr(G2 + 4 * (5 * lam + nt), 4)
            cin = '0' if (pi == 0 and c == 0 and lam != 0) else d
            return f'v_mfma_f32_16x16x32_bf16 {d}, {ar(4 * (5 * (4 * pi + c) + nt), 4)}, {vr(FR[pi][n], 4)}, {cin}'
        ex = [{i: [] for i in range(80)} for _ in range(3)]
        for k, x in enumerate(setup):
            ex[0][k].append(x)
        def put(pos, x):
            ex[pos // 80][pos % 80].append(x)
        if o.get('ldb', -1) >= 0:
            put(o['ldb'], poll_ld())
        cb_, cc_ = o.get('chkb', 5 * (16 - LA)), 80 + o.get('chkc', 44)
        put(cb_, [poll_chk(1), lambda: self.stamp('chkb')])
        put(o.get('sigc', 40), [sig(2, 'act5'), lambda: self.stamp('sigc')])
        put(80 + o.get('ldc', 28), poll_ld())
        put(cc_, [lambda: self.stamp('chkc0'), poll_chk(2), lambda: self.stamp(11)])
        pos = 0
        for g in range(LA, 48):
            pos = max(pos + (o.get('burst', 2) if g >= 16 else 0), o.get('g_gap', 5) * (g - LA) if g < 32 else 5 * (g - LA),
                      cb_ if g >= 16 else 0, cc_ if g >= 32 else 0)
            assert pos < 5 * g
            put(pos, act_ld(g // 16, g % 16))
            if g < 32 and wd and g >= o.get('wdp_from', 0):
                put(pos + 2, wd.pop(0))
        assert not wd
        for blk, lam in enumerate((3, 2, 1)):
            for nt in range(5):
                ex[2][20 * (blk + 1) + 5 + 2 * nt].append(
                    f'ds_write_b128 v{vRW + lam - 1}, {vr(G2 + 4 * (5 * lam + nt), 4)} offset:{1024 * nt}')
        for pi in range(3):
            for n in range(16):
                for nt in range(5):
                    a(mf2(pi, n, nt))
                    a(ex[pi][5 * n + nt])
            self.stamp('end' + 'ABC'[pi])
        a('s_waitcnt lgkmcnt(0)')
        a('s_barrier')
        self.stamp('redbar')
        RD, RR = 152, 8
        for nt in range(5):
            for s in range(3):
                a(f'ds_read_b128 {vr(RD + 12 * nt + 4 * s, 4)}, v{vRR} offset:{5120 * s + 1024 * nt}')
        sc = ' sc1' if o['out_sc1'] else ''
        for nt in range(5):
            b = RD + 12 * nt
            c = G2 + 4 * nt
            for p in range(2):
                a(f'v_pk_add_f32 {vr(c + 2 * p, 2)}, {vr(c + 2 * p, 2)}, {vr(b + 2 * p, 2)}')
                a(f'v_pk_add_f32 {vr(b + 4 + 2 * p, 2)}, {vr(b + 4 + 2 * p, 2)}, {vr(b + 8 + 2 * p, 2)}')
            for p in range(2):
                a(f'v_pk_add_f32 {vr(c + 2 * p, 2)}, {vr(c + 2 * p, 2)}, {vr(b + 4 + 2 * p, 2)}')
            for p in range(2):
                a(f'v_cvt_pk_bf16_f32 v{RR + 2 * nt + p}, v{c + 2 * p}, v{c + 2 * p + 1}')
            if nt & 1:
                a(f'ds_write_b128 v{vTW}, {vr(RR + 2 * nt - 2, 4)} offset:{64 * (nt >> 1)}')
            if nt == 4:
                a(f'ds_write_b64 v{vTW + 1}, {vr(RR + 8, 2)} offset:128')
        for k in range(3):
            a(f'ds_read_b128 {vr(RR + 12 + 4 * k, 4)}, v{vTR} offset:{6 * 176 * k}')
        a('s_mov_b32 exec_hi, 0xfffffff')
        for k in range(3):
            if k == 2:
                a('s_mov_b32 exec_hi, 0xff')
            a(f'buffer_store_dwordx4 {vr(RR + 12 + 4 * k, 4)}, v{vOut}, {sr(S_OUT, 4)}, {("0", f"s{sT4}", f"s{sT5}")[k]} offen{sc}')
        a('s_mov_b32 exec_hi, -1')
        lz = a.label('nz')
        a('s_cmp_lg_u32 s2, 0')
        a(f's_cbranch_scc1 {lz}')
        with a.untracked():
            a(f'buffer_store_dword v{BP}, off, {sr(S_DBG, 4)}, 0 sc1')
        a(f'{lz}:')
        if self.diag:
            self.stamp('outst')
            a('s_waitcnt vmcnt(0)')
            self.stamp(12)
            a('s_waitcnt lgkmcnt(0)')
            with self.wave0():
                a(f's_lshl_b32 s{sT0}, s2, 7')
                a(f's_add_u32 s{sT0}, s{sT0}, {STAMP}')
                for i in range(NSTAMP):
                    a(f'v_mov_b32 v0, s{S_STAMP + 2 * i}')
                    a(f'buffer_store_dword v0, off, {WS}, s{sT0} offset:{4 * i}')
        if self.opt.get('fixt'):
            with a.untracked():
                a(f's_cmp_lg_u32 s2, {self.opt.get("fixwg", 0)}')
                a('s_cbranch_scc1 .Lend')
                a(f's_cmp_lg_u32 s{S_W}, 0')
                a('s_cbranch_scc1 .Lend')
                a(f's_sub_u32 s{sT2}, s{S_STAMP + 2 * self.opt.get("fixs", 0)}, s{S_STAMP + 2 * self.opt.get("fixb", 0)}')
                a(f's_mul_i32 s{sT2}, s{sT2}, 10')
                a(f's_min_u32 s{sT2}, s{sT2}, 100000')
                a(f's_add_u32 s{sT2}, s{sT2}, {self.opt["fixt"]}')
                a('.Lfix:')
                a(f's_memrealtime {sr(sT0, 2)}')
                a('s_waitcnt lgkmcnt(0)')
                a(f's_sub_u32 s{sT0}, s{sT0}, s{S_STAMP}')
                a(f's_cmp_lt_u32 s{sT0}, s{sT2}')
                a('s_cbranch_scc1 .Lfix')
        a('.Lend:')
        a('s_endpgm')

    def build(self):
        a = self.a
        if self.diag:
            for i in range(2 * NSTAMP):
                a(f's_mov_b32 s{S_STAMP + i}, 0')
        self.prologue()
        self.conv()
        self.gemms()
        self.side()
        for c in self.cold:
            a.fresh()
            a('s_nop 7')
            c()
        a('.Lcode_end:')
        a('s_endpgm')
        pads = (self.opt.get('base', 0x300), NPAD, sr(sRet, 2), '.Lend', self.opt.get('pstride', 4096)) if self.opt['pads'] else None
        body = a.finish(verbose=True, align=self.opt.get('align', 1), pads=pads)
        body += '.p2align 12\n    s_endpgm\n'
        ref = open('cdna_kernels/' + NAME + '.s.ref').read().split('\n')
        head = [l for l in ref if l.startswith(';') and '@launch' not in l and 'Override' not in l and 'grid=ceil' not in l]
        txt = '\n'.join(head) + '\n'
        txt += '; One persistent launch: kv/transposition -> Toeplitz-MFMA long conv -> gate/up GEMM + GEGLU -> down GEMM.\n'
        txt += '; @launch grid=(256,1,1) block=(256,1,1) lds=163840\n'
        txt += f'''.amdgcn_target "amdgcn-amd-amdhsa--gfx950"
.text
.globl {NAME}_kernel
.p2align 8
.type {NAME}_kernel,@function
{NAME}_kernel:
{body}.section .rodata,"a"
.p2align 6
.amdhsa_kernel {NAME}_kernel
  .amdhsa_next_free_vgpr 512
  .amdhsa_next_free_sgpr 102
  .amdhsa_accum_offset 256
  .amdhsa_group_segment_fixed_size 0
  .amdhsa_kernarg_size 104
  .amdhsa_user_sgpr_count 2
  .amdhsa_user_sgpr_kernarg_segment_ptr 1
  .amdhsa_system_sgpr_workgroup_id_x 1
  .amdhsa_float_denorm_mode_32 3
.end_amdhsa_kernel
'''
        return txt


if __name__ == '__main__':
    out = sys.argv[1]
    diag = 'diag' in sys.argv[2:]
    opt = {}
    for x in sys.argv[2:]:
        if '=' in x:
            k, v = x.split('=')
            try:
                v = int(v)
            except ValueError:
                try:
                    v = float(v)
                except ValueError:
                    pass
            opt[k] = v
    open(out, 'w').write(Gen(diag, opt).build())
```

```python
import struct
import sys
from asmlib import Asm, vr, ar, sr

NAME = 'sequential_preLN__ssm_conv_h3__geglu_ffn__prompt'

QS = 16384
CNT = 0
ST1 = 49152
CSF = 65536
STAMP = 98304
PST = 131072
W45F = PST + 262144
KVX = W45F + 1310720
XP4 = KVX + 160 * QS
HP4 = XP4 + 160 * QS
WDF = HP4 + 160 * QS
ACT = WDF + 1966080
WS_END = ACT + 6291456
C_F1, C_FX, C_FW, C_FXR, C_B1, C_B2, C_FWR, C_F3 = 0, 10, 18, 26, 34, 42, 50, 64
SPIN = 100000

S_W = 3
S_K, S_V, S_SH, S_SK, S_X, S_WG, S_WU, S_WD, S_OUT, S_DBG, S_WS = 4, 8, 12, 16, 20, 24, 28, 32, 36, 40, 44
S_D = 48
sX, sJ, sG, sM, sQ, sRB, sCB, sA, sB, sRot = 50, 51, 52, 53, 54, 55, 56, 57, 58, 59
sT0, sT1, sT2, sT3, sT4, sT5, sT6, sT7 = 60, 61, 62, 63, 64, 65, 66, 67
sWoff, sWoff2, sSpin, sDv = 68, 69, 70, 71
sOne, sU0, sU1, sU2 = 72, 73, 74, 75
sRet = 48
NPAD = 8
S_STAMP = 76
NSTAMP = 13
sAB = 4
sL = [8, 9, 10, 11]
sPL, sPH, sFW, sSide, sArr = 16, 17, 18, 19, 23
sE = [None, 12, 13, 14]

GSTR = 4160
GW = 8 * GSTR
UBASE = 4 * GW
USTR = 4608
TILE = 40960
WS = sr(S_WS, 4)


def f32(x):
    return '0x%08x' % struct.unpack('<I', struct.pack('<f', x))[0]


class Gen:
    def __init__(self, diag=False, opt=None):
        self.a = Asm()
        self.diag = diag
        self.opt = dict(place=1, w_kv=0, w_e1=0, w_u=0, tb_pre=0, tb_mid=3, ssm=2, defer=1, wdp_from=24, a_ahead=14, sig='v', epi_rate=4.5,
                        fx_it=2, out_sc1=1, pads=1, wd_pre=16, wd_post=8, wd_pre1=8, arr='s')
        if opt:
            self.opt.update(opt)
        self.cold = []

    PROF = {
        'main': [0, 1, 2, 3, 4, 5, 6, 7, 8, 9, 10, 11, 12],
        'front': [0, 'karg', 'issued', 1, 'kvdone', 2, 'tbpre', 'drained', 3, 'tbpost', 4, 'uload', 5],
        'e2': [0, 6, 'zbar', 7, 'hbar', 'hissued', 'hdrained', 'hbar2', 'arrived', 'wwritten', 'polled', 8, 'a0'],
        'g1': [0, 8, 'a0', 'p8', 'p16', 'p24', 'p32', 9, 't3', 't4', 't5', 10, 12],
        'side': [0, 'sx_in', 'sx_issued', 'sx_data', 'sx_bar', 'sx_st', 'sx_ld2', 'sx_dr', 1, 2, 6, 7, 8],
        'loop': [0, 4, 5, 'it1', 'it2', 'it3', 'it4', 'it5', 'it6', 'it7', 6, 7, 8],
        'g1b': [0, 9, 'q10', 'q20', 't3', 'presig0', 'sig0', 't4', 'prechk0', 'chk0', 'presig1', 'sig1', 't5'],
        'g2': [0, 't5', 10, 'chkb', 'sigc', 'endA', 'chkc0', 11, 'endB', 'endC', 'redbar', 'outst', 12],
    }

    def stamp(self, i):
        prof = self.PROF[self.opt.get('prof', 'main')]
        if self.diag and i in prof:
            i = prof.index(i)
            self.a(f'{"s_memtime" if self.opt.get("cyc") else "s_memrealtime"} {sr(S_STAMP + 2 * i, 2)}')

    def spin(self, srd, soff, target, vt):
        a = self.a
        top, done = a.label('spin'), a.label('done')
        with a.untracked():
            a(f's_mov_b32 s{sSpin}, {SPIN}')
            a(f'{top}:')
            a(f'buffer_load_dword v{vt}, off, {sr(srd, 4)}, {soff} sc1')
            a('s_waitcnt vmcnt(0)')
            a(f'v_readfirstlane_b32 s{sT7}, v{vt}')
            a(f's_sub_u32 s{sSpin}, s{sSpin}, 1')
            a(f's_cbranch_scc1 {done}')
            a(f's_cmp_lt_u32 s{sT7}, {target}')
            a(f's_cbranch_scc1 {top}')
            a(f'{done}:')

    def check(self, srd, soff, target, vt):
        a = self.a
        slow, back = a.label('slow'), a.label('back')
        a(f'v_readfirstlane_b32 s{sT7}, v{vt}')
        a(f's_cmp_lt_u32 s{sT7}, {target}')
        a(f's_cbranch_scc1 {slow}')
        a(f'{back}:')

        def cold():
            a(f'{slow}:')
            self.spin(srd, soff, target, vt)
            a(f's_branch {back}')
        self.cold.append(cold)

    def wave0(self):
        g = self

        class W:
            def __enter__(s):
                s.l = g.a.label('nw0')
                g.a(f's_cmp_lg_u32 s{S_W}, 0')
                g.a(f's_cbranch_scc1 {s.l}')
                s.u = g.a.untracked()
                s.u.__enter__()
                g.a('s_mov_b64 exec, 1')

            def __exit__(s, *x):
                g.a('s_mov_b64 exec, -1')
                s.u.__exit__()
                g.a(f'{s.l}:')
        return W()

    def warm(self, sets):
        if not self.opt['pads']:
            return
        a = self.a
        for w, ks in enumerate(sets):
            if not ks:
                continue
            l = a.label('nw')
            a(f's_cmp_lg_u32 s{S_W}, {w + 1}')
            a(f's_cbranch_scc1 {l}')
            for k in ks:
                a(f's_call_b64 {sr(sRet, 2)}, .Lpad_{k}')
            a(f'{l}:')

    def two_level(self, soff, last, rep, scalar=False):
        a = self.a
        l = a.label('notlast')
        if scalar:
            a(f's_mov_b32 s{sT7}, 1')
            a(f's_atomic_add s{sT7}, {sr(S_WS, 2)}, {soff} glc')
            a('s_waitcnt lgkmcnt(0)')
        else:
            a(f'v_mov_b32 v{self.vTmp}, 1')
            a(f'buffer_atomic_add v{self.vTmp}, off, {WS}, {soff} sc0 sc1')
            a('s_waitcnt vmcnt(0)')
            a(f'v_readfirstlane_b32 s{sT7}, v{self.vTmp}')
        a(f's_cmp_lg_u32 s{sT7}, {last}')
        a(f's_cbranch_scc1 {l}')
        a('s_mov_b64 exec, 0xff')
        a(f'v_lshlrev_b32 v{self.vTmp}, 8, v0')
        a(f's_mov_b32 s{sT7}, {rep * 256}')
        a(f'buffer_atomic_add v{self.vOne}, v{self.vTmp}, {WS}, s{sT7} offen sc1')
        a(f'{l}:')

    def prologue(self):
        a = self.a
        a('s_cmp_ge_u32 s2, 0x100')
        a('s_cbranch_scc1 .Lend')
        self.stamp(0)
        for srd, off in ((S_K, 8), (S_WS, 96), (S_V, 16), (S_SH, 24), (S_SK, 32), (S_X, 0), (S_WG, 56), (S_WU, 64),
                         (S_WD, 72), (S_OUT, 80), (S_DBG, 88), (S_D, 40)):
            a(f's_load_dwordx2 {sr(srd, 2)}, s[0:1], {off}')
        a('v_lshrrev_b32 v1, 6, v0')
        a(f's_and_b32 s{sX}, s2, 7')
        a(f's_lshr_b32 s{sJ}, s2, 3')
        a(f'v_readfirstlane_b32 s{S_W}, v1')
        a('v_mov_b32 v1, v0')
        a('v_and_b32 v0, 63, v0')
        for srd, n in ((S_K, 2621440), (S_V, 2621440), (S_SH, 5120), (S_SK, 4096), (S_X, 2621440), (S_WG, 1966080),
                       (S_WU, 1966080), (S_WD, 1966080), (S_OUT, 2621440), (S_DBG, 256), (S_WS, WS_END)):
            a(f's_mov_b32 s{srd + 2}, {n}')
            a(f's_mov_b32 s{srd + 3}, 0x20000')
        a(f's_and_b32 s{sM}, s{sJ}, 15')
        a(f's_mov_b32 s{sG}, s{sX}')
        a(f's_cmp_lt_u32 s{sJ}, 16')
        a.snapshot('role')
        a('s_cbranch_scc1 .Lconv')
        a(f's_lshr_b32 s{sG}, s{sX}, 2')
        a(f's_add_u32 s{sG}, s{sG}, 8')
        a(f's_and_b32 s{sT0}, s{sX}, 3')
        a(f's_lshl2_add_u32 s{sM}, s{sT0}, s{sM}')
        a(f's_cmp_lt_u32 s{sJ}, 20')
        a('s_cbranch_scc1 .Lconv')
        with a.untracked():
            a(f's_cmp_lg_u32 s2, {self.opt.get("initwg", 208)}')
            a('s_cbranch_scc1 .Lnoinit')
            a('v_lshrrev_b32 v2, 3, v1')
            a('v_and_b32 v3, 7, v0')
            a('v_lshlrev_b32 v3, 4, v3')
            a('v_lshl_add_u32 v2, v2, 8, v3')
            for i in range(4):
                a(f'v_mov_b32 v{4 + i}, 0')
            a(f's_movk_i32 s{sT0}, 0x2000')
            a('s_waitcnt lgkmcnt(0)')
            a.fresh()
            a(f'buffer_store_dwordx4 v[4:7], v2, {WS}, 0 offen sc1')
            a(f'buffer_store_dwordx4 v[4:7], v2, {WS}, s{sT0} offen sc1')
            a('v_mov_b32 v3, 1')
            a('s_waitcnt vmcnt(0)')
            a('s_barrier')
            a(f's_cmp_lg_u32 s{S_W}, 0')
            a('s_cbranch_scc1 .Lside')
            a('s_mov_b64 exec, 1')
            a(f'buffer_store_dword v3, off, {sr(S_DBG, 4)}, 0 sc1')
            a('s_mov_b64 exec, -1')
            a('s_branch .Lside')
            a('.Lnoinit:')
            if self.opt.get('cpf', 1):
                a(f's_getpc_b64 {sr(sT0, 2)}')
                a('.Lpc:')
                a(f's_and_b32 s{sT2}, s{sJ}, 3')
                a(f's_lshl2_add_u32 s{sT2}, s{sT2}, s{S_W}')
                a(f's_mul_i32 s{sT2}, s{sT2}, {18 * 128}')
                a('v_min_u32 v2, 17, v0')
                a(f'v_lshl_add_u32 v2, v2, 7, s{sT2}')
                a('v_min_u32 v2, .Lcode_end-.Lpc-4, v2')
                a('v_mov_b32 v3, 0')
                a(f'v_lshl_add_u64 v[4:5], v[2:3], 0, {sr(sT0, 2)}')
                a('global_load_dword a253, v[4:5], off')
            a('s_branch .Lside')
        a('.Lconv:')
        a.fresh('role')

    def gemm_ids(self):
        a = self.a
        a(f's_lshr_b32 s{sRB}, s{sX}, 2')
        a(f's_lshr_b32 s{sT0}, s{sJ}, 2')
        a(f's_lshl3_add_u32 s{sRB}, s{sRB}, s{sT0}')
        a(f's_and_b32 s{sRot}, s{sX}, 3')
        a(f's_and_b32 s{sT0}, s{sJ}, 3')
        a(f's_lshl2_add_u32 s{sCB}, s{sRot}, s{sT0}')
        a(f's_and_b32 s{sT0}, s{sCB}, 1')
        a(f's_mul_i32 s{sA}, s{sCB}, 6')
        a(f's_add_u32 s{sB}, s{sA}, 4')
        a(f's_lshl1_add_u32 s{sA}, s{sT0}, s{sA}')
        a(f's_lshl_b32 s{sT1}, s{sT0}, 2')
        a(f's_sub_u32 s{sB}, s{sB}, s{sT1}')

    vWL, vWLb, vW45, vTmp, vTmp2, vOne, vPS = 254, 253, 252, 250, 249, 248, 251
    WRAW = [8, 40, 72, 104, 136]
    vWW = 236
    PT = 200

    def real_line(self, r, tmp):
        a = self.a
        if not self.opt.get('swz', 1):
            return
        a(f's_sub_u32 s{tmp}, s{r}, 3')
        a(f's_cmp_lt_u32 s{tmp}, 2')
        a(f's_cselect_b32 s{tmp}, 7, 0')
        a(f's_xor_b32 s{r}, s{r}, s{tmp}')
        a(f's_sub_u32 s{tmp}, s{r}, 10')
        a(f's_cmp_lt_u32 s{tmp}, 2')
        a(f's_cselect_b32 s{tmp}, 1, 0')
        a(f's_xor_b32 s{r}, s{r}, s{tmp}')

    def w_addr(self):
        a = self.a
        t = self.vTmp
        a(f's_lshr_b32 s{sT1}, s{sA}, 2')
        self.real_line(sT1, sT0)
        a(f's_lshl_b32 s{sT1}, s{sT1}, 7')
        a(f'v_and_b32 v{t}, 7, v0')
        a(f'v_lshl_add_u32 v{self.vWLb}, v{t}, 4, s{sT1}')
        a(f's_lshr_b32 s{sT0}, s{S_W}, 1')
        a(f's_lshl_b32 s{sT0}, s{sT0}, 6')
        a(f's_mul_i32 s{sWoff}, s{sRot}, 160')
        a(f's_add_u32 s{sWoff}, s{sWoff}, s{sT0}')
        a(f's_mul_i32 s{sT0}, s{sCB}, {80 * 1024}')
        a(f's_add_u32 s{sT0}, s{sT0}, {W45F}')
        a(f'v_lshl_add_u32 v{self.vW45}, v0, 4, s{sT0}')
        a(f's_mul_i32 s{sWoff2}, s{sRot}, 10')
        a(f's_add_u32 s{sWoff2}, s{sWoff2}, s{S_W}')
        a(f's_lshl_b32 s{sWoff2}, s{sWoff2}, 10')
        a(f'v_mov_b32 v{self.vOne}, 1')
        a(f's_lshl2_add_u32 s{sT0}, s{sRB}, s{S_W}')
        a(f's_lshl_b32 s{sT0}, s{sT0}, 12')
        a(f'v_and_b32 v{t}, 31, v0')
        a(f'v_lshl_add_u32 v{self.vPS}, v{t}, 3, s{sT0}')
        a(f'v_lshrrev_b32 v{t}, 5, v0')
        a(f'v_lshl_add_u32 v{self.vPS}, v{t}, 11, v{self.vPS}')

    def w_select(self):
        a = self.a
        a(f's_bitcmp1_b32 s{S_W}, 0')
        a(f's_cselect_b32 s{S_WG}, s{S_WU}, s{S_WG}')
        a(f's_cselect_b32 s{S_WG + 1}, s{S_WU + 1}, s{S_WG + 1}')
        for i in range(1, 4):
            a(f's_movk_i32 s{sE[i]}, {6144 * i}')
        a(f's_movk_i32 s15, 3072')

    def clear_pst(self, v2):
        return [f'v_mov_b32 v{v2}, -1', f'v_mov_b32 v{v2 + 1}, -1',
                f's_lshl_b32 s{sU0}, s{sCB}, 8', f's_add_u32 s{sU0}, s{sU0}, {PST}',
                ['s_mov_b32 exec_hi, 0',
                 f'buffer_store_dwordx2 {vr(v2, 2)}, v{self.vPS}, {WS}, s{sU0} offen sc1',
                 's_mov_b32 exec_hi, -1']]

    def w_loads_main(self):
        out = []
        t, t2 = self.vTmp, self.vTmp2
        for b in range(5):
            for e in range(8):
                g = []
                if e == 0:
                    g = [f'v_and_b32 v{t}, 56, v0', f'v_add_u32 v{t}, s{sWoff}, v{t}', f'v_subrev_u32 v{t2}, 640, v{t}',
                         f'v_min_u32 v{t}, v{t}, v{t2}', f'v_mad_u32_u24 v{self.vWL}, v{t}, s15, v{self.vWLb}',
                         f's_add_u32 s{sWoff}, s{sWoff}, 128']
                so = f's{sE[e >> 1]}' if e >> 1 else '0'
                g.append(f'buffer_load_dwordx4 {vr(self.WRAW[b] + 4 * e, 4)}, v{self.vWL}, {sr(S_WG, 4)}, {so} offen offset:{3072 * (e & 1)}')
                out.append(g)
        return out

    def w_loads_tail(self):
        out = []
        for i in range(20):
            if i & 1:
                g = [f's_add_u32 s{sU1}, s{sWoff2}, {TILE}',
                     f'buffer_load_dwordx4 {ar(160 + 4 * i, 4)}, v{self.vW45}, {WS}, s{sU1} offen sc1']
            else:
                g = []
                if i:
                    g = [f's_add_u32 s{sWoff2}, s{sWoff2}, 4096',
                         [f's_sub_u32 s{sU1}, s{sWoff2}, {TILE}', f's_cselect_b32 s{sWoff2}, s{sWoff2}, s{sU1}']]
                g.append(f'buffer_load_dwordx4 {ar(160 + 4 * i, 4)}, v{self.vW45}, {WS}, s{sWoff2} offen sc1')
            out.append(g)
        return out

    def w_write_addr(self):
        a = self.a
        t, t2 = self.vTmp, self.vTmp2
        a(f's_lshr_b32 s{sT0}, s{S_W}, 1')
        a(f's_lshl_b32 s{sT0}, s{sT0}, 12')
        a(f's_and_b32 s{sT1}, s{S_W}, 1')
        a(f's_lshl_b32 s{sT1}, s{sT1}, 7')
        a(f's_add_u32 s{sT0}, s{sT0}, s{sT1}')
        a(f'v_lshrrev_b32 v{t}, 3, v0')
        a(f'v_lshl_add_u32 v{t}, v{t}, 9, s{sT0}')
        a(f'v_and_b32 v{t2}, 1, v0')
        a(f'v_lshl_add_u32 v{t}, v{t2}, 6, v{t}')
        a(f'v_bfe_u32 v{t2}, v0, 1, 2')
        a(f's_mov_b32 s{sT0}, {TILE + 16}')
        a(f'v_mad_u32_u24 v{self.vWW}, v{t2}, s{sT0}, v{t}')
        for q in range(1, 4):
            a(f'v_xor_b32 v{self.vWW + q}, {16 * q}, v{self.vWW}')
        a(f's_mov_b32 s{sPL}, 0x05040100')
        a(f's_mov_b32 s{sPH}, 0x07060302')

    def w_writes_main(self):
        out = []
        for b in range(5):
            for c8 in range(8):
                p = self.PT + 4 * (c8 & 3) if b < 5 - self.opt.get('defer', 2) else (228 if c8 & 1 else 242)
                r = self.WRAW[b] + (c8 >> 1)
                g = [f'v_perm_b32 v{p + d}, v{r + 8 * d + 4}, v{r + 8 * d}, s{sPH if c8 & 1 else sPL}' for d in range(4)]
                g.append(f'ds_write_b128 v{self.vWW + (c8 & 3)}, {vr(p, 4)} offset:{b * 8192 + (c8 >> 2) * 256}')
                out.append(g)
        return out

    def conv(self):
        a = self.a
        o = self.opt
        vK, vKh, vC, vR, vSHa, vL16 = 1, 2, 3, 4, 5, 6
        SH = 8
        KR = 16
        VR = 38
        WF = 56
        KF = 72
        O = 120
        SK = 136
        KV = 168
        VF = 200
        vSW, vSR, vKS, vG, vBa, vAa, vZR, vZR2, vUL, vUW, vI7, vGZ, vXS, vHS, vFl, vPrev = range(232, 248)
        ZERO, AD = 224, 240
        a(f's_lshl4_add_u32 s{sQ}, s{sG}, s{sM}')
        a(f'v_and_b32 v{vC}, 15, v0')
        a(f'v_lshrrev_b32 v{vR}, 4, v0')
        a(f's_lshl2_add_u32 s{sT0}, s{sM}, s{S_W}')
        a(f's_mul_i32 s{sT0}, s{sT0}, {32 * 1280}')
        a(f's_lshl_b32 s{sT1}, s{sG}, 7')
        a(f's_add_u32 s{sT0}, s{sT0}, s{sT1}')
        a(f's_movk_i32 s{sT2}, {8 * 1280}')
        a(f'v_lshl_add_u32 v{vK}, v{vC}, 3, s{sT0}')
        a(f'v_mad_u32_u24 v{vK}, v{vR}, s{sT2}, v{vK}')
        a(f'v_subrev_u32 v{vKh}, 3840, v{vK}')
        a(f's_lshl_b32 s{sT1}, s{sG}, 9')
        a(f'v_lshl_add_u32 v{vSHa}, v{vC}, 5, s{sT1}')
        a(f's_movk_i32 s{sT3}, 5120')
        a(f'v_lshlrev_b32 v{vL16}, 4, v0')

        def addr_phase_a():
            a(f'v_subrev_u32 v{vPrev}, 16, v{vL16}')
            a(f's_mul_i32 s{sT0}, s{S_W}, {USTR}')
            a(f's_add_u32 s{sT0}, s{sT0}, {UBASE}')
            a(f's_movk_i32 s{sT1}, 272')
            a(f'v_lshl_add_u32 v{vSW}, v{vR}, 4, s{sT0}')
            a(f'v_mad_u32_u24 v{vSW}, v{vC}, s{sT1}, v{vSW}')
            a(f'v_lshl_add_u32 v{vSR}, v{vC}, 4, s{sT0}')
            a(f'v_mad_u32_u24 v{vSR}, v{vR}, s{sT1}, v{vSR}')
            a(f'v_add_u32 v{vUW}, s{sT0}, v{vL16}')
            a(f's_add_u32 s{sT0}, s{sT0}, 32')
            a(f'v_lshl_add_u32 v{vBa}, v{vC}, 5, s{sT0}')
            a(f'v_lshl_add_u32 v{vBa}, v{vR}, 4, v{vBa}')
            a(f's_mul_i32 s{sT0}, s{sG}, {16 * QS}')
            a(f's_lshl2_add_u32 s{sT1}, s{sM}, s{S_W}')
            a(f's_lshl_b32 s{sT1}, s{sT1}, 8')
            a(f's_add_u32 s{sT0}, s{sT0}, s{sT1}')
            a(f's_mov_b32 s{sT1}, {QS}')
            a(f'v_lshl_add_u32 v{vKS}, v{vC}, 4, s{sT0}')
            a(f'v_mad_u32_u24 v{vKS}, v{vR}, s{sT1}, v{vKS}')

        def addr_rest():
            self.gemm_ids()
            self.w_addr()
            a(f's_mul_i32 s{sT5}, s{S_W}, {GW}')
            a(f'v_add_u32 v{vG}, s{sT5}, v{vL16}')
            a(f'v_bfe_u32 v{vAa}, v0, 3, 1')
            a(f'v_sub_u32 v{vAa}, v{vAa}, v{vR}')
            a(f's_add_u32 s{sT0}, s{sT5}, 48')
            a(f'v_lshl_add_u32 v{vAa}, v{vAa}, 4, s{sT0}')
            a(f'v_and_b32 v{vI7}, 7, v0')
            a(f's_movk_i32 s{sT1}, {GSTR}')
            a(f'v_mad_u32_u24 v{vAa}, v{vI7}, s{sT1}, v{vAa}')
            a(f'v_mov_b32 v{vGZ}, s{sT5}')
            a(f'v_mad_u32_u24 v{vGZ}, v{vI7}, s{sT1}, v{vGZ}')
            a(f's_mul_i32 s{sT6}, s{sQ}, {QS}')
            a(f's_lshl_b32 s{sT1}, s{S_W}, 6')
            a(f's_add_u32 s{sT0}, s{sT6}, s{sT1}')
            a(f'v_and_b32 v{vUL}, 3, v0')
            a(f'v_lshl_add_u32 v{vUL}, v{vUL}, 4, s{sT0}')
            a(f'v_lshrrev_b32 v{vXS}, 2, v0')
            a(f'v_lshl_add_u32 v{vUL}, v{vXS}, 8, v{vUL}')
            a(f's_lshl_b32 s{sT0}, s{S_W}, 12')
            a(f'v_add_u32 v{vXS}, s{sT0}, v{vL16}')
            a(f's_add_u32 s{sT0}, s{sT0}, s{sT6}')
            a(f'v_add_u32 v{vHS}, s{sT0}, v{vL16}')
            a(f's_lshl_b32 s{sT0}, s{S_W}, 11')
            a(f'v_add_u32 v{vZR}, s{sT0}, v{vL16}')
            a(f'v_add_u32 v{vZR2}, {2 * GW}, v{vZR}')
            for i in range(4):
                a(f'v_mov_b32 v{ZERO + i}, 0')
        if o.get('addr_early', 0) >= 1:
            addr_phase_a()
        if o.get('addr_early', 0) >= 2:
            addr_rest()
        a.need(sr(S_WS, 2))
        self.stamp('karg')
        a(f'buffer_load_dwordx4 {vr(SH, 4)}, v{vSHa}, {sr(S_SH, 4)}, 0 offen')
        a(f'buffer_load_dwordx4 {vr(SH + 4, 4)}, v{vSHa}, {sr(S_SH, 4)}, 0 offen offset:16')
        for r in range(3):
            a(f'buffer_load_dwordx2 {vr(KR + 2 * r, 2)}, v{vKh}, {sr(S_K, 4)}, 0 offen offset:{r * 1280}')
        for r in range(8):
            so = f's{sT3}' if r >= 4 else '0'
            a(f'buffer_load_dwordx2 {vr(KR + 6 + 2 * r, 2)}, v{vK}, {sr(S_K, 4)}, {so} offen offset:{(r & 3) * 1280}')
            a(f'buffer_load_dwordx2 {vr(VR + 2 * r, 2)}, v{vK}, {sr(S_V, 4)}, {so} offen offset:{(r & 3) * 1280}')
        self.stamp('issued')
        if o.get('tlb'):
            a(f'v_lshlrev_b32 v228, {o["tlb"]}, v0')
            a(f'buffer_load_dword v229, v228, {WS}, 0 offen sc1')
            a(f'buffer_load_dword v228, v228, {sr(S_OUT, 4)}, 0 offen sc1')
        if o.get('addr_early', 0) < 1:
            addr_phase_a()
        if o.get('addr_early', 0) < 2:
            addr_rest()
        a(f's_lshl2_add_u32 s{sT0}, s{sQ}, s{S_W}')
        a(f's_lshl_b32 s{sT1}, s{sT0}, 12')
        a(f's_add_u32 s{S_SK}, s{S_SK}, s{sT1}')
        a(f's_addc_u32 s{S_SK + 1}, s{S_SK + 1}, 0')
        a(f's_lshl_b32 s{sT0}, s{sT0}, 1')
        a(f's_and_b32 s{sT0}, s{sT0}, -4')
        a(f's_load_dword s{sDv}, {sr(S_D, 2)}, s{sT0}')
        ssm = []
        for j in range(4):
            if j == 0:
                ssm.append(f'buffer_load_dwordx4 {vr(SK, 4)}, v{vPrev}, {sr(S_SK, 4)}, 0 offen')
            else:
                ssm.append(f'buffer_load_dwordx4 {vr(SK + 8 * j, 4)}, v{vL16}, {sr(S_SK, 4)}, 0 offen offset:{1024 * j - 16}')
            ssm.append(f'buffer_load_dwordx4 {vr(SK + 8 * j + 4, 4)}, v{vL16}, {sr(S_SK, 4)}, 0 offen offset:{1024 * j}')
        if o.get('ssm', 1) == 0:
            a(ssm)
        self.w_select()
        self.warm([[0], [1], []])
        wl = self.w_loads_main()

        def w_some(n):
            for _ in range(n):
                a(wl.pop(0))
        a(f's_mov_b32 s{sT2}, 0xffff0000')
        for ch in range(4):
            for j in range(4):
                src = SH + 2 * ch + (j >> 1)
                if j & 1:
                    a(f'v_and_b32 v{WF + 4 * j + ch}, s{sT2}, v{src}')
                else:
                    a(f'v_lshlrev_b32 v{WF + 4 * j + ch}, 16, v{src}')

        def unpack(dst, src):
            a(f'v_lshlrev_b32 v{dst}, 16, v{src}')
            a(f'v_and_b32 v{dst + 1}, s{sT2}, v{src}')
            a(f'v_lshlrev_b32 v{dst + 2}, 16, v{src + 1}')
            a(f'v_and_b32 v{dst + 3}, s{sT2}, v{src + 1}')
        for r in range(3):
            unpack(KF + 4 * r, KR + 2 * r)
        self.stamp(1)
        for r in range(8):
            unpack(KF + 4 * (r + 3), KR + 2 * (r + 3))
            vf = VF + 4 * (r & 1)
            for j in (3, 2, 1, 0):
                for p in range(2):
                    d = vr(KV + 4 * r + 2 * p, 2)
                    k = vr(KF + 4 * (r + 3 - j) + 2 * p, 2)
                    w = vr(WF + 4 * j + 2 * p, 2)
                    if j == 3:
                        a(f'v_pk_mul_f32 {d}, {k}, {w}')
                    else:
                        a(f'v_pk_fma_f32 {d}, {k}, {w}, {d}')
                if j == 3:
                    unpack(vf, VR + 2 * r)
            for p in range(2):
                d = vr(KV + 4 * r + 2 * p, 2)
                a(f'v_pk_mul_f32 {d}, {d}, {vr(vf + 2 * p, 2)}')
            if o.get('ssm', 1) == 1:
                a(ssm.pop(0))
            if r & 1:
                d = (7 - r) >> 1
                for ch in range(4):
                    a(f'v_cvt_pk_bf16_f32 v{O + 4 * ch + d}, v{KV + 4 * r + ch}, v{KV + 4 * (r - 1) + ch}')
        self.stamp('kvdone')
        for ch in range(4):
            a(f'ds_write_b128 v{vSW}, {vr(O + 4 * ch, 4)} offset:{ch * 64}')
        for j in range(4):
            a(f'ds_read_b128 {vr(KV + 4 * j, 4)}, v{vSR} offset:{j * 1088}')
        a(f'buffer_load_dword v{vFl}, off, {sr(S_DBG, 4)}, 0 sc1')
        a(f's_mov_b32 s{sT0}, {KVX}')
        for j in range(4):
            a(f'buffer_store_dwordx4 {vr(KV + 4 * j, 4)}, v{vKS}, {WS}, s{sT0} offen sc1')
            if j < 3:
                a(f's_add_u32 s{sT0}, s{sT0}, {4 * QS}')
        self.stamp(2)
        if o.get('ssm', 1) == 2:
            a(ssm)
        a(f'ds_write_b128 v{vUW}, {vr(ZERO, 4)}')
        a(f'ds_write_b128 v{vGZ}, {vr(ZERO, 4)}')

        def table(j):
            D = SK + 8 * j
            Ea, Eb, Db = 184 + 20 * (j & 1), 184 + 20 * (j & 1) + 8, 184 + 20 * (j & 1) + 14

            def wr(rho, reg):
                a(f'ds_write_b128 v{vG}, {vr(reg, 4)} offset:{rho * GSTR + 1024 * j + 16}')
            wr(7, D + 4)
            wr(3, D + 2)
            for i in range(3):
                a(f'v_pk_mov_b32 {vr(Db + 2 * i, 2)}, {vr(D + 2 * i, 2)}, {vr(D + 2 * i + 2, 2)} op_sel:[1,0]')
            for i in range(7):
                a(f'v_alignbit_b32 v{Ea + i}, v{D + i + 1}, v{D + i}, 16')
            wr(1, Db)
            wr(5, Db + 2)
            for i in range(3):
                a(f'v_pk_mov_b32 {vr(Eb + 2 * i, 2)}, {vr(Ea + 2 * i, 2)}, {vr(Ea + 2 * i + 2, 2)} op_sel:[1,0]')
            wr(0, Ea)
            wr(4, Ea + 2)
            wr(2, Eb)
            wr(6, Eb + 2)
        w_some(o['w_kv'])
        n1, n2 = o['tb_pre'], o['tb_pre'] + o['tb_mid']
        for j in range(n1):
            table(j)
        self.stamp('tbpre')
        a.drain_stores()
        self.stamp('drained')
        a('s_barrier')
        self.stamp(3)
        a(f's_lshl_b32 s{sT0}, s{sG}, 8')
        with self.wave0():
            self.check(S_DBG, '0', 1, vFl)
            a(f'buffer_atomic_add v{self.vOne}, off, {WS}, s{sT0} sc1')
        w_some(o['w_e1'])
        for j in range(n1, n2):
            table(j)
        a.need(f's{sDv}')
        a(f's_and_b32 s{sT1}, s{S_W}, 1')
        a(f's_lshl_b32 s{sT1}, s{sT1}, 4')
        a(f's_lshr_b32 s{sDv}, s{sDv}, s{sT1}')
        a(f's_and_b32 s{sDv}, s{sDv}, 0xffff')
        a(f'v_sub_u32 v5, 7, v{vI7}')
        a(f'v_and_b32 v7, 1, v5')
        a(f'v_lshlrev_b32 v7, 4, v7')
        a(f'v_lshlrev_b32 v7, v7, s{sDv}')
        a(f'v_bfe_u32 v1, v0, 3, 1')
        a(f'v_add_u32 v1, 2, v1')
        a(f'v_cmp_eq_u32 vcc, v1, v{vR}')
        a(f'v_cndmask_b32 v7, 0, v7, vcc')
        a(f'v_lshrrev_b32 v5, 1, v5')
        for d in range(4):
            a(f'v_cmp_eq_u32 vcc, {d}, v5')
            a(f'v_cndmask_b32 v1, 0, v7, vcc')
            a(f'v_accvgpr_write_b32 a{AD + d}, v1')
        ACC = 128
        BUF = (0, 64)
        XR, SR, XF = 136, 152, 168

        def rdA(it, t):
            return f'ds_read_b128 {ar(BUF[it & 1] + 4 * t, 4)}, v{vAa} offset:{64 * it + 512 * t}'

        def rdB(it, t):
            return f'ds_read_b128 {ar(BUF[it & 1] + 32 + 4 * t, 4)}, v{vBa} offset:{448 - 64 * it + 512 * t}'
        self.stamp('tbpost')
        self.warm([[2], [], []])
        with self.wave0():
            self.spin(S_WS, f's{sT0}', 16, vFl)
        a('s_barrier')
        self.stamp(4)
        a(f's_mov_b32 s{sT0}, {KVX}')
        for j in range(4):
            a(f'buffer_load_dwordx4 {ar(BUF[1] + 4 * j, 4)}, v{vUL}, {WS}, s{sT0} offen sc1')
            if j < 3:
                a(f's_add_u32 s{sT0}, s{sT0}, 4096')
        w_some(o['w_u'])
        for j in range(n2, 4):
            table(j)
        for t in range(8):
            a(rdA(0, t))
        a(f's_lshl_b32 s{sT3}, s{sX}, 8')
        a(f's_add_u32 s{sT3}, s{sT3}, {C_FXR * 256}')
        a(f's_mov_b32 s{sT4}, {ST1}')
        a(f's_add_u32 s{sT6}, s{sT6}, {XP4}')
        for j in range(4):
            a(f'ds_write_b128 v{vUW}, {ar(BUF[1] + 4 * j, 4)} offset:{512 + 1024 * j}')
            if j == 0:
                self.stamp('uload')
            a(rdB(0, 2 * j))
            a(rdB(0, 2 * j + 1))
        self.stamp(5)
        fx = o['fx_it']
        xl = []
        for T in range(2):
            for p in range(2):
                off = 2048 * T + 1024 * p
                xl.append([f'buffer_load_dwordx4 {vr(XR + 8 * T + 4 * p, 4)}, v{vXS}, {WS}, s{sT6} offen offset:{off} sc1'])
                xl.append([f'buffer_load_dwordx4 {vr(SR + 8 * T + 4 * p, 4)}, v{vXS}, {WS}, s{sT4} offen offset:{off} sc1'])
        if o.get('nowl'):
            wl = [g[:-1] + [[]] for g in wl]
        early = wl[:-8]
        wl = wl[-8:]
        wt = self.w_loads_tail()
        nl = o.get('w45_loop', 20)
        late = xl + wt[:nl]
        wt = wt[nl:]
        tot = len(early) + len(late)
        per = [(tot * (i + 1)) // 8 - (tot * i) // 8 for i in range(8)]
        plan = []
        for it in range(8):
            n = per[it]
            if it <= fx + 1:
                n = min(n, len(early))
                plan.append([early.pop(0) for _ in range(n)])
            else:
                rest = late[:8] + early + late[8:] if it == fx + 2 else rest
                early = late = []
                n = (len(rest) + 7 - it) // (8 - it)
                plan.append([rest.pop(0) for _ in range(n)])
        for it in range(8):
            A, B = BUF[it & 1], BUF[it & 1] + 32
            mf = []
            endT = []
            for T in range(8):
                c = ar(ACC + 4 * T, 4)
                if it == 0:
                    mf.append(f'v_mfma_f32_16x16x32_bf16 {c}, {ar(AD, 4)}, {ar(B + 4 * T, 4)}, 0')
                for t in range(T + 1):
                    mf.append(f'v_mfma_f32_16x16x32_bf16 {c}, {ar(A + 4 * t, 4)}, {ar(B + 4 * (T - t), 4)}, {c}')
                endT.append(len(mf) - 1)
            fill = [[] for _ in mf]
            base = 8 if it == 0 else 0
            if it < 7:
                rd = [x for t in range(8) for x in (rdA(it + 1, t), rdB(it + 1, t))]
                for i, x in enumerate(rd):
                    fill[base + 2 * i].append(x)
            zw = [f'ds_write_b128 v{vG}, {ar(ACC + 4 * T, 4)} offset:{1024 * T}' for T in range(8)]
            if it == 7:
                for T in range(o.get('z_in', 7)):
                    fill[max(endT[T] + 5, 6 + 4 * T)].append(zw.pop(0))
            n = len(plan[it])
            pos = base
            for i, g in enumerate(plan[it]):
                p = max(base + ((i + 1) * 35) // n, pos)
                k = len(g) - 1
                for z, x in enumerate(g[:-1]):
                    fill[max(pos, p - (k - z + 1) // 2)].append(x)
                fill[p].append(g[-1])
                pos = p
            if it == 0:
                for i, x in enumerate(self.clear_pst(228)):
                    fill[i].append(x)
            if it == fx:
                fill[-1].append(f'buffer_load_dword v{vFl}, off, {WS}, s{sT3} sc1')
            if it == fx + 1:
                fill[-1].append(lambda: self.check(S_WS, f's{sT3}', 8, vFl))
            if it == 7:
                fill[0].append(f's_add_u32 s{sFW}, s{sT3}, {(C_FWR - C_FXR) * 256}')
                fill[1].append(f's_mov_b32 s{sSide}, 0')
                fill[-1].append(f'buffer_load_dword v{vFl}, off, {WS}, s{sFW} sc1')
            u0 = o.get('unp_it', 6)
            if u0 <= it < u0 + 2:
                ops = []
                T = it - u0
                for row in range(4):
                    src = XR + 8 * T + 2 * row
                    xf = XF + 16 * T + 4 * row
                    st = SR + 8 * T + 2 * row
                    ops += [f'v_lshlrev_b32 v{xf}, 16, v{src}', f'v_and_b32 v{xf + 1}, s{sT2}, v{src}',
                            f'v_lshlrev_b32 v{xf + 2}, 16, v{src + 1}', f'v_and_b32 v{xf + 3}, s{sT2}, v{src + 1}']
                    ops += [f'v_fma_f32 v{xf + 32 + c}, v{xf + c}, v{st}, v{st + 1}' for c in range(4)]
                for i, x in enumerate(ops):
                    fill[2 + i].append(x)
            self.stamp(f'it{it}')
            if it > 0:
                a.need(ar(A, 24 if it < 7 else 32), ar(B, 24))
            for m, f in zip(mf, fill):
                a(m)
                a(f)
        self.stamp(6)
        a(zw)
        a('s_waitcnt lgkmcnt(0)')
        a('s_barrier')
        self.stamp('zbar')
        Z = XR
        for T in range(2):
            for ch in range(4):
                a(f'ds_read_b128 {vr(Z + 16 * T + 4 * ch, 4)}, v{vZR2 if ch & 2 else vZR} offset:{(ch & 1) * GW + 1024 * T}')
        a(f's_mov_b32 s{sT0}, {HP4}')
        for T in range(2):
            for p in range(2):
                ho = XF + 32 + 16 * T + 8 * p
                for b in range(2):
                    row = 2 * p + b
                    for c in range(4):
                        x = XF + 16 * T + 4 * row + c
                        a(f'v_fmac_f32 v{x}, v{x + 32}, v{Z + 16 * T + 4 * c + row}')
                    for c2 in range(2):
                        x = XF + 16 * T + 4 * row + 2 * c2
                        a(f'v_cvt_pk_bf16_f32 v{ho + 2 * b + c2}, v{x}, v{x + 1}')
                a(f'buffer_store_dwordx4 {vr(ho, 4)}, v{vHS}, {WS}, s{sT0} offen offset:{2048 * T + 1024 * p} sc1')
        self.stamp(7)
        assert not wt
        a('.Ljoin:')

    def arrive_e2(self):
        a = self.a
        a(f's_lshl_b32 s{sT0}, s{sX}, 8')
        a(f's_add_u32 s{sT0}, s{sT0}, {C_B1 * 256}')
        with self.wave0():
            self.two_level(f's{sT0}', 31, C_B2, self.opt['arr'] == 's')

    def side(self):
        a = self.a
        a('.Lside:')
        a.fresh('role')
        self.stamp('sx_in')
        vTid = 1
        a(f's_sub_u32 s{sG}, s{sJ}, 20')
        a(f's_lshl3_add_u32 s{sG}, s{sG}, s{sX}')
        a(f's_cmp_ge_u32 s{sG}, 64')
        a.snapshot('s4')
        a('s_cbranch_scc1 .Ls4')
        XR, WR = 16, 56
        vA, vRow, vS8 = 2, 3, 4
        a(f'v_lshrrev_b32 v{vRow}, 3, v{vTid}')
        a(f'v_and_b32 v{vS8}, 7, v0')
        a(f's_lshr_b32 s{sT0}, s{sG}, 3')
        a(f's_lshl_b32 s{sT0}, s{sT0}, 8')
        a(f's_and_b32 s{sT1}, s{sG}, 3')
        a(f's_lshl2_add_u32 s{sT0}, s{sT1}, s{sT0}')
        a(f's_bfe_u32 s{sT1}, s{sG}, 0x10002')
        a(f's_lshl1_add_u32 s{sT0}, s{sT1}, s{sT0}')
        a(f'v_and_b32 v5, 0xf0, v{vTid}')
        a(f'v_and_b32 v6, 1, v{vRow}')
        a(f'v_add3_u32 v5, v5, v6, s{sT0}')
        a(f's_movk_i32 s{sT1}, 1280')
        a(f'v_lshlrev_b32 v6, 4, v{vS8}')
        a(f'v_mad_u32_u24 v5, v5, s{sT1}, v6')
        for j in range(10):
            a(f'buffer_load_dwordx4 {vr(XR + 4 * j, 4)}, v5, {sr(S_X, 4)}, 0 offen offset:{128 * j}')
        self.stamp('sx_issued')
        self.gemm_ids()
        self.w_addr()
        vW, vRd, vSt = 5, 6, 7
        a(f's_movk_i32 s{sT1}, 528')
        a(f'v_lshlrev_b32 v{vW}, 3, v{vRow}')
        a(f'v_mad_u32_u24 v{vW}, v{vS8}, s{sT1}, v{vW}')
        a(f'v_and_b32 v{vRd}, 31, v0')
        a(f'v_lshlrev_b32 v{vRd}, 4, v{vRd}')
        a(f'v_lshrrev_b32 v8, 5, v{vTid}')
        a(f'v_mad_u32_u24 v{vRd}, v8, s{sT1}, v{vRd}')
        a(f's_lshl_b32 s{sT0}, s{sG}, 8')
        a(f'v_and_b32 v{vSt}, 15, v0')
        a(f'v_lshl_add_u32 v{vSt}, v{vSt}, 4, s{sT0}')
        a(f'v_lshrrev_b32 v8, 4, v{vTid}')
        a(f's_mov_b32 s{sT1}, {QS}')
        a(f'v_mad_u32_u24 v{vSt}, v8, s{sT1}, v{vSt}')
        for j in range(10):
            for o_ in range(2):
                a(f'ds_write_b64 v{vW}, {vr(XR + 4 * j + 2 * o_, 2)} offset:{j * 4224 + o_ * 256}')
        self.stamp('sx_data')
        a('s_waitcnt lgkmcnt(0)')
        a('s_barrier')
        self.stamp('sx_bar')
        XO = 96
        for j in range(10):
            a(f'ds_read_b128 {vr(XO + 4 * j, 4)}, v{vRd} offset:{j * 4224}')
        a(f's_mov_b32 s{sT1}, {XP4}')
        a(f's_mov_b32 s{sOne}, 0x3f803f80')
        for i in range(4):
            a(f'v_mov_b32 v{8 + i}, 0')
        for j in range(10):
            a(f'buffer_store_dwordx4 {vr(XO + 4 * j, 4)}, v{vSt}, {WS}, s{sT1} offen sc1')
            a(f's_add_u32 s{sT1}, s{sT1}, {16 * QS}')
            for i in range(4 * j, 4 * j + 4):
                a(f'v_dot2c_f32_bf16 v{8 + (i & 1)}, s{sOne}, v{XR + i}')
                a(f'v_dot2c_f32_bf16 v{10 + (i & 1)}, v{XR + i}, v{XR + i}')
        a('v_add_f32 v8, v8, v9')
        a('v_add_f32 v10, v10, v11')
        for m in ('quad_perm:[1,0,3,2]', 'quad_perm:[2,3,0,1]', 'row_half_mirror'):
            a(f'v_add_f32_dpp v8, v8, v8 {m} row_mask:0xf bank_mask:0xf')
            a(f'v_add_f32_dpp v10, v10, v10 {m} row_mask:0xf bank_mask:0xf')
        a(f'v_mul_f32 v8, {f32(1 / 640)}, v8')
        a(f'v_mul_f32 v10, {f32(1 / 640)}, v10')
        a('v_fma_f32 v10, -v8, v8, v10')
        a('v_max_f32 v10, 0, v10')
        a(f'v_add_f32 v10, {f32(1e-5)}, v10')
        a('v_rsq_f32 v10, v10')
        a(f'v_lshl_add_u32 v12, v{vRow}, 3, s{sT0}')
        a('v_mul_f32 v11, -v8, v10')
        a(f's_mov_b32 s{sT1}, {ST1}')
        vFl = 13
        a(f'buffer_load_dword v{vFl}, off, {sr(S_DBG, 4)}, 0 sc1')
        a('s_mov_b32 exec_lo, 0x01010101')
        a('s_mov_b32 exec_hi, 0x01010101')
        a(f'buffer_store_dwordx2 v[10:11], v12, {WS}, s{sT1} offen sc1')
        a('s_mov_b64 exec, -1')
        a('s_branch .Lr1')
        a('.Ls4:')
        a.fresh('s4')
        T4 = 10240
        a(f's_sub_u32 s{sT4}, s{sG}, 64')
        a(f's_lshr_b32 s{sT5}, s{sT4}, 2')
        a(f's_and_b32 s{sT4}, s{sT4}, 3')
        a(f's_mul_i32 s{sT0}, s{sT4}, 160')
        a(f's_lshl3_add_u32 s{sT0}, s{S_W}, s{sT0}')
        a(f's_mul_i32 s{sT0}, s{sT0}, 3072')
        a(f's_mul_i32 s{sT1}, s{sT5}, 3')
        a(f's_add_u32 s{sT1}, s{sT1}, 1')
        self.real_line(sT1, sT2)
        a(f's_lshl_b32 s{sT1}, s{sT1}, 7')
        a(f's_add_u32 s{sT0}, s{sT0}, s{sT1}')
        a('v_lshrrev_b32 v3, 3, v0')
        a('v_and_b32 v4, 7, v0')
        a(f'v_lshl_add_u32 v2, v4, 4, s{sT0}')
        a(f's_movk_i32 s{sT1}, 3072')
        a(f'v_mad_u32_u24 v2, v3, s{sT1}, v2')
        a(f's_mov_b32 s{sT0}, 0')
        for i in range(10):
            a(f'buffer_load_dwordx4 {vr(XR + 4 * i, 4)}, v2, {sr(S_WU if i & 1 else S_WG, 4)}, s{sT0} offen')
            if i & 1:
                a(f's_add_u32 s{sT0}, s{sT0}, {32 * 3072}')
        self.stamp('sx_issued')
        self.gemm_ids()
        self.w_addr()
        a(f's_lshl_b32 s{sT0}, s{S_W}, 9')
        a(f'v_lshl_add_u32 v5, v3, 6, s{sT0}')
        a('v_and_b32 v6, 1, v0')
        a('v_lshl_add_u32 v5, v6, 4, v5')
        a('v_bfe_u32 v6, v0, 1, 2')
        a('v_lshlrev_b32 v7, 5, v6')
        a('v_xor_b32 v5, v5, v7')
        a(f's_movk_i32 s{sT0}, {T4}')
        a(f'v_mad_u32_u24 v5, v6, s{sT0}, v5')
        a('v_xor_b32 v6, 32, v5')
        a('v_lshrrev_b32 v7, 5, v0')
        a('v_bfe_u32 v8, v0, 2, 2')
        a('v_lshl_add_u32 v7, v7, 3, v8')
        a('v_lshlrev_b32 v7, 6, v7')
        a('v_and_b32 v8, 3, v0')
        a('v_lshl_add_u32 v7, v8, 4, v7')
        a('v_bfe_u32 v8, v0, 4, 1')
        a('v_lshl_add_u32 v7, v8, 3, v7')
        a(f's_lshl_b32 s{sT1}, s{S_W}, 5')
        a(f'v_xor_b32 v7, s{sT1}, v7')
        a(f's_mul_i32 s{sT1}, s{S_W}, {T4}')
        a(f'v_add_u32 v7, s{sT1}, v7')
        for i in range(10):
            a(f'ds_write_b128 v{6 if i & 1 else 5}, {vr(XR + 4 * i, 4)} offset:{(i >> 1) * 2048}')
        self.stamp('sx_data')
        a('s_waitcnt lgkmcnt(0)')
        a('s_barrier')
        self.stamp('sx_bar')
        for j in range(10):
            for e in range(2):
                a(f'ds_read_b64_tr_b16 {vr(XO + 4 * j + 2 * e, 2)}, v7 offset:{1024 * j + 256 * e}')
        a(f's_lshl2_add_u32 s{sT0}, s{sT5}, s{S_W}')
        a(f's_lshl2_add_u32 s{sT0}, s{sT0}, s{sT4}')
        a(f's_mul_i32 s{sT0}, s{sT0}, 10240')
        a(f's_add_u32 s{sT0}, s{sT0}, {W45F}')
        a('v_lshlrev_b32 v9, 4, v0')
        a(f'buffer_load_dword v{vFl}, off, {sr(S_DBG, 4)}, 0 sc1')
        for j in range(10):
            if j and j & 3 == 0:
                a(f's_add_u32 s{sT0}, s{sT0}, 4096')
            a(f'buffer_store_dwordx4 {vr(XO + 4 * j, 4)}, v9, {WS}, s{sT0} offen offset:{(j & 3) * 1024} sc1')
        a('.Lr1:')
        a.fresh()
        self.stamp('sx_st')

        def end_r1(younger):
            self.stamp('sx_ld2')
            a(f's_waitcnt vmcnt({younger})')
            a('s_barrier')
            self.stamp('sx_dr')
            a(f's_lshl_b32 s{sT5}, s{sX}, 8')
            a(f's_add_u32 s{sT5}, s{sT5}, {C_FX * 256}')
            with self.wave0():
                self.check(S_DBG, '0', 1, vFl)
                self.two_level(f's{sT5}', 11, C_FXR, True)
            self.stamp(1)
        if self.opt.get('pair', 1):
            a(f's_add_u32 s{sG}, s{sG}, 48')
            a(f's_sub_u32 s{sT0}, s{sG}, 96')
            a(f's_cselect_b32 s{sG}, s{sG}, s{sT0}')
        a(f's_cmp_ge_u32 s{sG}, 48')
        a('s_cbranch_scc1 .Ls2')
        WB = 49152
        a(f'v_lshrrev_b32 v{vRow}, 3, v{vTid}')
        a(f'v_and_b32 v{vS8}, 7, v0')
        a(f's_lshr_b32 s{sT0}, s{sG}, 1')
        self.real_line(sT0, sT2)
        a(f's_and_b32 s{sT2}, s{sG}, 1')
        a(f's_lshl1_add_u32 s{sT0}, s{sT0}, s{sT2}')
        a(f's_mul_i32 s{sT0}, s{sT0}, {32 * 1280}')
        a(f's_movk_i32 s{sT1}, 1280')
        a(f'v_lshl_add_u32 v{vA}, v{vS8}, 4, s{sT0}')
        a(f'v_mad_u32_u24 v{vA}, v{vRow}, s{sT1}, v{vA}')
        for j in range(10):
            a(f'buffer_load_dwordx4 {vr(WR + 4 * j, 4)}, v{vA}, {sr(S_WD, 4)}, 0 offen offset:{128 * j}')
        a(f's_movk_i32 s{sT1}, 1344')
        a(f'v_lshlrev_b32 v{vW}, 4, v{vS8}')
        a(f'v_mad_u32_u24 v{vW}, v{vRow}, s{sT1}, v{vW}')
        a('v_lshrrev_b32 v8, 4, v0')
        a('v_bfe_u32 v9, v0, 2, 2')
        a('v_lshl_add_u32 v8, v8, 3, v9')
        a(f's_mul_i32 s{sT0}, s{S_W}, 320')
        a(f'v_mov_b32 v9, s{sT0}')
        a(f'v_mad_u32_u24 v8, v8, s{sT1}, v9')
        a('v_and_b32 v9, 3, v0')
        a('v_lshl_add_u32 v10, v9, 3, v8')
        a('v_lshl_add_u32 v8, v9, 4, v8')
        end_r1(10)
        for j in range(10):
            a(f'ds_write_b128 v{vW}, {vr(WR + 4 * j, 4)} offset:{WB + 128 * j}')
        a('s_waitcnt lgkmcnt(0)')
        a('s_barrier')
        for cc in range(2):
            for nt in range(5):
                for e in range(2):
                    off = WB + cc * 160 + e * 4 * 1344 + ((nt >> 1) * 64 + (nt & 1) * 8)
                    a(f'ds_read_b64_tr_b16 {vr(XO + 4 * (5 * cc + nt) + 2 * e, 2)}, v{10 if nt == 4 else 8} offset:{off}')
        a(f's_mul_i32 s{sT0}, s{S_W}, 96')
        a(f's_add_u32 s{sT0}, s{sT0}, s{sG}')
        a(f's_mul_i32 s{sT0}, s{sT0}, 5120')
        a(f's_add_u32 s{sT0}, s{sT0}, {WDF}')
        a('v_lshlrev_b32 v9, 4, v0')
        for cc in range(2):
            for nt in range(5):
                if nt == 4:
                    a(f's_add_u32 s{sT0}, s{sT0}, 4096')
                a(f'buffer_store_dwordx4 {vr(XO + 4 * (5 * cc + nt), 4)}, v9, {WS}, s{sT0} offen offset:{(nt & 3) * 1024} sc1')
            a(f's_add_u32 s{sT0}, s{sT0}, {48 * 5120 - 4096}')
        a('s_branch .Lr2')
        a('.Ls2:')
        a.fresh()
        a(f's_sub_u32 s{sT0}, s{sG}, 48')
        a(f's_cmp_ge_u32 s{sT0}, 24')
        a(f's_cselect_b32 s{S_WD}, s{S_WU}, s{S_WG}')
        a(f's_cselect_b32 s{S_WD + 1}, s{S_WU + 1}, s{S_WG + 1}')
        a(f's_cselect_b32 s{sT1}, 24, 0')
        a(f's_sub_u32 s{sT1}, s{sT0}, s{sT1}')
        self.real_line(sT1, sT2)
        a(f's_lshl_b32 s{sT1}, s{sT1}, 7')
        a('v_and_b32 v2, 7, v0')
        a(f'v_lshrrev_b32 v3, 3, v{vTid}')
        a(f'v_lshl_add_u32 v4, v2, 4, s{sT1}')
        a(f's_movk_i32 s{sT2}, 3072')
        a(f'v_mad_u32_u24 v4, v3, s{sT2}, v4')
        a(f's_mov_b32 s{sT2}, 0')
        for i in range(8):
            a(f'v_mov_b32 v{16 + i}, 0')
        a(f's_mov_b32 s{sT4}, 0x3f80')
        a(f's_mov_b32 s{sT3}, 0x3f800000')
        LA = 12
        for i in range(20 + LA):
            if i < 20:
                a(f'buffer_load_dwordx4 {vr(32 + 4 * i, 4)}, v4, {sr(S_WD, 4)}, s{sT2} offen')
                a(f's_add_u32 s{sT2}, s{sT2}, {32 * 3072}')
            if i == self.opt.get('s2_pre', 8) - 1:
                end_r1(i + 1)
            if i >= LA:
                for d in range(4):
                    a(f'v_dot2c_f32_bf16 v{16 + 2 * d}, s{sT4}, v{32 + 4 * (i - LA) + d}')
                    a(f'v_dot2c_f32_bf16 v{17 + 2 * d}, s{sT3}, v{32 + 4 * (i - LA) + d}')
        a(f'v_lshlrev_b32 v5, 5, v{vTid}')
        a(f'ds_write_b128 v5, v[16:19] offset:{WB}')
        a(f'ds_write_b128 v5, v[20:23] offset:{WB + 16}')
        a('s_waitcnt lgkmcnt(0)')
        a('s_barrier')
        a('v_lshlrev_b32 v6, 2, v0')
        for i in range(16):
            a(f'ds_read2st64_b32 {vr(32 + 2 * i, 2)}, v6 offset0:{WB // 256 + 2 * i} offset1:{WB // 256 + 2 * i + 1}')
        for i in range(1, 16):
            a(f'v_pk_add_f32 v[32:33], v[32:33], {vr(32 + 2 * i, 2)}')
        a('v_add_f32 v32, v32, v33')
        a('v_cvt_pk_bf16_f32 v8, v32, v32')
        a('v_lshlrev_b32 v10, 16, v8')
        a('v_sub_f32 v10, v32, v10')
        a('v_cvt_pk_bf16_f32 v9, v10, v10')
        a(f's_lshl_b32 s{sT0}, s{sT0}, 9')
        a(f's_add_u32 s{sT0}, s{sT0}, {CSF}')
        a('v_lshrrev_b32 v6, 5, v0')
        a('v_lshlrev_b32 v6, 8, v6')
        a('v_and_b32 v7, 15, v0')
        a('v_lshl_add_u32 v6, v7, 4, v6')
        a('v_bfe_u32 v7, v0, 4, 1')
        a('v_lshl_add_u32 v6, v7, 3, v6')
        a(f'buffer_store_dwordx2 v[8:9], v6, {WS}, s{sT0} offen sc1')
        a('.Lr2:')
        a.fresh()
        self.stamp(2)
        a(f's_lshl_b32 s{sT0}, s{sG}, 8')
        a(f's_add_u32 s{sT0}, s{sT0}, {C_F3 * 256}')
        a('v_mov_b32 v4, 0')
        a('v_lshlrev_b32 v5, 2, v0')
        a(f'buffer_store_dword v4, v5, {WS}, s{sT0} offen sc1')
        a(self.clear_pst(2))
        self.w_select()
        wl = self.w_loads_main()
        n0 = self.opt.get('side_pre', 12)
        a(wl[:n0])
        a.drain_stores()
        a('s_waitcnt lgkmcnt(0)')
        a('s_barrier')
        self.stamp(6)
        lfw = a.label('nofw')
        a(f's_cmp_ge_u32 s{sG}, 48')
        a(f's_cbranch_scc1 {lfw}')
        a(f's_lshl_b32 s{sT0}, s{sX}, 8')
        a(f's_add_u32 s{sT0}, s{sT0}, {C_FW * 256}')
        with self.wave0():
            self.two_level(f's{sT0}', 5, C_FWR, True)
        a(f'{lfw}:')
        self.arrive_e2()
        a(f's_lshl_b32 s{sT4}, s{sX}, 8')
        a(f's_add_u32 s{sT4}, s{sT4}, {C_FXR * 256}')
        a(f'buffer_load_dword v1, off, {WS}, s{sT4} sc1')
        a(wl[n0:32])
        self.check(S_WS, f's{sT4}', 8, 1)
        a(self.w_loads_tail())
        a(f's_add_u32 s{sFW}, s{sT4}, {(C_FWR - C_FXR) * 256}')
        a(f's_mov_b32 s{sSide}, 1')
        a(f'buffer_load_dword v246, off, {WS}, s{sFW} sc1')
        a('s_waitcnt vmcnt(0)')
        self.stamp(7)
        if self.opt.get('outpf', 1):
            a(f's_cmp_ge_u32 s{sG}, 48')
            a('s_cbranch_scc1 .Ljoin')
            full = self.opt.get('outpf', 1) == 2
            a(f'v_lshl_add_u32 v1, s{S_W}, 6, v0')
            a(f's_lshr_b32 s{sT0}, s{sG}, 3')
            a(f's_and_b32 s{sT1}, s{sG}, 7')
            a(f's_mul_i32 s{sT1}, s{sT1}, {256 * 1280}')
            if full:
                a(f's_mul_i32 s{sT0}, s{sT0}, {428 * 128}')
                a(f's_add_u32 s{sT1}, s{sT1}, s{sT0}')
                a('v_min_u32 v1, 213, v1')
                a('v_lshlrev_b32 v1, 8, v1')
                a(f'buffer_load_dword a255, v1, {sr(S_OUT, 4)}, s{sT1} offen')
                a(f'buffer_load_dword a254, v1, {sr(S_OUT, 4)}, s{sT1} offen offset:128')
            else:
                a(f's_mul_i32 s{sT0}, s{sT0}, {171 * 320}')
                a(f's_add_u32 s{sT1}, s{sT1}, s{sT0}')
                a('v_min_u32 v1, 170, v1')
                a('v_mul_u32_u24 v1, 320, v1')
                a(f'buffer_load_dword a255, v1, {sr(S_OUT, 4)}, s{sT1} offen offset:160')
        a('s_branch .Ljoin')

    def signal(self, soff):
        a = self.a
        if self.opt['sig'] == 's':
            a(f's_atomic_add s{sU2}, {sr(S_WS, 2)}, {soff}')
        else:
            a('s_mov_b64 exec, 1')
            a(f'buffer_atomic_add v{self.vOne}, off, {WS}, {soff} sc1')
            a('s_mov_b64 exec, -1')

    def gemms(self):
        a = self.a
        o = self.opt
        t, t2 = self.vTmp, self.vTmp2
        L, AB = 0, 8
        vRD = 4
        vAL, vAS, vA2, vWD, vWD2, vCS, vFl = 1, 2, 3, 247, 255, 246, 254
        vW5 = 252
        vS = 232
        BP = 236
        TM = 242
        ACC = 168
        RING1, CS, RING2 = 124, 148, 240
        sF3s, sF3p = sQ, sM
        sRB2w = sG
        kap = [[3 * c + ((pi + 1) % 3 if c & 1 else pi) for c in range(4)] for pi in range(3)]
        wd = []
        for i in range(60):
            g = []
            if i % 5 == 0:
                g.append(f's_mov_b32 s{sWoff2}, {WDF + 5120 * kap[i // 20][i // 5 % 4]}')
            g.append(f'buffer_load_dwordx4 {ar(4 * i, 4)}, v{vWD2 if i % 5 == 4 else vWD}, {WS}, s{sWoff2} offen offset:{(i % 5 & 3) * 1024} sc1')
            wd.append(g)
        if o.get('nowd'):
            wd = [[] for _ in wd]
        self.w_write_addr()
        wl = self.w_loads_main()[32:]
        a(wl[0][:-1])
        wl[0] = wl[0][-1]
        if o['wd_pre']:
            self.check(S_WS, f's{sFW}', 8, vCS)
        a('s_barrier')
        self.stamp('hbar')
        real, setup0 = a, []
        a = setup0.append
        a(f's_and_b32 s{sT0}, s{sJ}, 7')
        a(f's_lshl2_add_u32 s{sT0}, s{sT0}, s{S_W}')
        a(f's_mul_i32 s{sT0}, s{sT0}, {12 * 5120}')
        a(f'v_lshl_add_u32 v{vWD}, v0, 4, s{sT0}')
        a(f'v_add_u32 v{vWD2}, 0x1000, v{vWD}')
        a(f'v_lshlrev_b32 v{vRD}, 4, v0')
        for s in range(1, 4):
            a(f'v_xor_b32 v{t}, {16 * s}, v{vRD}')
            a(f'v_add_u32 v{vRD + s}, {TILE * s}, v{t}')
        a(f's_lshl_b32 s{sT0}, s{S_W}, 10')
        a(f'v_add_u32 v{vW5}, s{sT0}, v{vRD}')
        a(f'v_add_u32 v{vW5 + 1}, s{sT0}, v{vRD + 1}')
        a(f's_lshl2_add_u32 s{sT0}, s{sRB}, s{S_W}')
        a(f's_lshl_b32 s{sT1}, s{sT0}, 8')
        a(f'v_and_b32 v{t}, 15, v0')
        a(f'v_lshlrev_b32 v{vA2}, 4, v{t}')
        a(f'v_add_u32 v{t}, s{sT1}, v{vA2}')
        a(f'v_lshrrev_b32 v{t2}, 4, v0')
        a(f's_mov_b32 s{sT1}, {QS}')
        a(f'v_mad_u32_u24 v{vAL}, v{t2}, s{sT1}, v{t}')
        a(f'v_lshl_add_u32 v{vA2}, v{t2}, 9, v{vA2}')
        a(f's_mul_i32 s{sT1}, s{sT0}, 98304')
        a(f'v_lshl_add_u32 v{vAS}, v0, 4, s{sT1}')
        a(f's_lshr_b32 s{sF3s}, s{sT0}, 1')
        a(f's_lshl_b32 s{sF3s}, s{sF3s}, 8')
        a(f's_add_u32 s{sF3s}, s{sF3s}, {C_F3 * 256}')
        a(f's_lshr_b32 s{sT1}, s{sJ}, 3')
        a(f's_lshl2_add_u32 s{sF3p}, s{sX}, s{sT1}')
        a(f's_lshl_b32 s{sRB2w}, s{sF3p}, 1')
        a(f's_lshl_b32 s{sF3p}, s{sF3p}, 8')
        a(f's_add_u32 s{sF3p}, s{sF3p}, {C_F3 * 256}')
        for i in range(4):
            a(f's_add_u32 s{sT0}, s{sRot}, {i}')
            a(f's_and_b32 s{sT0}, s{sT0}, 3')
            a(f's_mul_i32 s{sT0}, s{sT0}, {40 * QS}')
            a(f's_add_u32 s{sAB + i}, s{sT0}, {HP4}')
        a(f'v_and_b32 v{t}, 3, v0')
        a(f'v_bfe_u32 v{t2}, v0, 2, 1')
        a(f'v_lshl_add_u32 v{t}, v{t2}, 3, v{t}')
        a(f'v_bfe_u32 v{t2}, v0, 4, 1')
        a(f'v_lshl_add_u32 v{t}, v{t2}, 2, v{t}')
        a(f'v_lshlrev_b32 v{t}, 4, v{t}')
        a(f'v_bfe_u32 v{t2}, v0, 3, 1')
        a(f's_movk_i32 s{sT1}, 12288')
        a(f'v_mad_u32_u24 v{vCS}, v{t2}, s{sT1}, v{t}')
        for i in range(4):
            a(f'v_mov_b32 v{vS + i}, 0')
        a(f's_mov_b32 s{sOne}, 0x3f803f80')
        a(f's_mov_b32 s{sU2}, 1')
        a(f's_lshl_b32 s{sT2}, s{sA}, 7')
        a(f's_add_u32 s{sT2}, s{sT2}, {CSF}')
        a(f's_lshl_b32 s{sT3}, s{sB}, 7')
        a(f's_add_u32 s{sT3}, s{sT3}, {CSF}')
        a(f's_lshl_b32 s{sA}, s{sA}, 10')
        a(f's_add_u32 s{sA}, s{sA}, {ACT}')
        a(f's_lshl_b32 s{sB}, s{sB}, 10')
        a(f's_add_u32 s{sB}, s{sB}, {ACT}')
        a(f's_mul_i32 s{sT5}, s{S_W}, {12 * 2048}')
        for lam in range(4):
            a(f's_xor_b32 s{sT0}, s{S_W}, {lam}')
            a(f's_lshr_b32 s{sT1}, s{sT0}, 1')
            a(f's_add_u32 s{sT1}, s{sT1}, s{sRB2w}')
            a(f's_mul_i32 s{sT1}, s{sT1}, 98304')
            a(f's_and_b32 s{sT0}, s{sT0}, 1')
            a(f's_lshl_b32 s{sT0}, s{sT0}, 8')
            a(f's_add_u32 s{sT0}, s{sT0}, s{sT5}')
            a(f's_add_u32 s{sL[lam]}, s{sT1}, s{sT0}')
        sRes, sOutB, sQS = 20, 21, 22
        a(f's_lshr_b32 s{sT0}, s{S_W}, 1')
        a(f's_add_u32 s{sT0}, s{sT0}, s{sRB2w}')
        a(f's_lshl_b32 s{sRes}, s{sT0}, 8')
        a(f's_and_b32 s{sT4}, s{S_W}, 1')
        a(f's_lshl3_add_u32 s{sRes}, s{sT4}, s{sRes}')
        a(f's_and_b32 s{sT5}, s{sJ}, 7')
        a(f's_mul_i32 s{sT6}, s{sT5}, {20 * QS}')
        a(f's_add_u32 s{sRes}, s{sRes}, s{sT6}')
        a(f's_mov_b32 s{sQS}, {QS}')
        a(f's_lshr_b32 s{sOutB}, s{sRB2w}, 3')
        a(f's_lshl_b32 s{sOutB}, s{sOutB}, 8')
        a(f's_and_b32 s{sT6}, s{sT0}, 3')
        a(f's_lshl2_add_u32 s{sOutB}, s{sT6}, s{sOutB}')
        a(f's_bfe_u32 s{sT6}, s{sRB2w}, 0x10002')
        a(f's_lshl1_add_u32 s{sOutB}, s{sT6}, s{sOutB}')
        a(f's_add_u32 s{sOutB}, s{sOutB}, s{sT4}')
        a(f's_mul_i32 s{sOutB}, s{sOutB}, 1280')
        a(f's_mul_i32 s{sT6}, s{sT5}, 160')
        a(f's_add_u32 s{sOutB}, s{sOutB}, s{sT6}')
        a(f's_lshl_b32 s{sU0}, s{sCB}, 8')
        a(f's_add_u32 s{sU0}, s{sU0}, {PST}')
        a(f's_mov_b32 s{sU1}, {PST}')
        a(f's_and_b32 s{sCB}, s{sCB}, 3')
        a(f's_mul_i32 s{sCB}, s{sCB}, 10')
        a = real
        ww = self.w_writes_main()
        lq = wl + [wd.pop(0) for _ in range(o['wd_pre'])]
        n1, n2 = o.get('ww1', 13), o.get('ww2', 7)

        def some(n, nl):
            for i in range(n):
                a(ww.pop(0))
                for _ in range(6):
                    if setup0:
                        a(setup0.pop(0))
                for _ in range(((i + 1) * nl) // n - (i * nl) // n):
                    if lq:
                        a(lq.pop(0))
        some(4, 0)
        some(n1 - 4, o.get('l1', 8))
        self.stamp('hissued')
        a.drain_stores()
        self.stamp('hdrained')
        a('s_barrier')
        self.stamp('hbar2')
        lns = a.label('noarr')
        a(f's_mov_b32 s{sArr}, 1')
        a(f's_or_b32 s{sSide}, s{sSide}, s{S_W}')
        a(f's_cbranch_scc1 {lns}')
        with a.untracked():
            a(f's_lshl_b32 s{sSpin}, s{sX}, 8')
            a(f's_atomic_add s{sArr}, {sr(S_WS, 2)}, s{sSpin} offset:{C_B1 * 256} glc')
        a(f'{lns}:')
        some(n2, o.get('l2', 6))
        lns = a.label('notlast')
        a('s_waitcnt lgkmcnt(0)')
        a(f's_cmp_lg_u32 s{sArr}, 31')
        a(f's_cbranch_scc1 {lns}')
        with a.untracked():
            a('s_mov_b64 exec, 0xff')
            a(f'v_lshlrev_b32 v{TM}, 8, v0')
            a(f's_mov_b32 s{sT7}, {C_B2 * 256}')
            a(f'buffer_atomic_add v{self.vOne}, v{TM}, {WS}, s{sT7} offen sc1')
            a('s_mov_b64 exec, -1')
        a(f'{lns}:')
        self.stamp('arrived')
        some(40 - 8 * o.get('defer', 2) - n1 - n2, len(lq))
        a(setup0)
        a(lq)
        self.stamp('wwritten')
        a(f's_lshl_b32 s{sT0}, s{sX}, 8')
        a(f's_add_u32 s{sT0}, s{sT0}, {C_B2 * 256}')
        self.warm([[3, 6], [4, 7], [5]])
        with self.wave0():
            self.spin(S_WS, f's{sT0}', 8, t)
        self.stamp('polled')
        a('s_waitcnt lgkmcnt(0)')
        a('s_barrier')
        self.stamp(8)
        al = []
        for j in range(40):
            if j % 10 == 0:
                al.append([f'buffer_load_dwordx4 {vr(AB + 4 * j, 4)}, v{vAL}, {WS}, s{sAB + j // 10} offen sc1'])
            else:
                al.append([f's_add_u32 s{sT1}, s{sAB + j // 10}, {(j % 10) * 4 * QS}',
                           f'buffer_load_dwordx4 {vr(AB + 4 * j, 4)}, v{vAL}, {WS}, s{sT1} offen sc1'])
        al.append(f'buffer_load_dwordx4 {ar(CS, 4)}, v{vCS}, {WS}, s{sT2} offen sc1')
        al.append(f'buffer_load_dwordx4 {ar(CS + 4, 4)}, v{vCS}, {WS}, s{sT2} offen offset:256 sc1')
        al.append(f'buffer_load_dwordx4 {ar(CS + 8, 4)}, v{vCS}, {WS}, s{sT3} offen sc1')
        for _ in range(o['a_ahead']):
            a(al.pop(0))

        def rd(dst, slot, j):
            return f'ds_read_b128 {ar(dst, 4)}, v{vRD + slot} offset:{1024 * j}'

        def swaps(j):
            return [f'v_permlane16_swap_b32 v{AB + 4 * j + e}, v{AB + 4 * j + 2 + e}' for e in range(2)]

        def acc(slot):
            return vr(ACC + 16 * slot, 16)
        wtail = [f'ds_write_b128 v{vW5 + (i & 1)}, {ar(160 + 4 * i, 4)} offset:{(i >> 1) * 4096}' for i in range(20)]
        if o.get('nowt'):
            wtail = [[] for _ in wtail]
        C0, C1, R = vS, vS + 1, vS + 2
        c0 = -2.0 * 0.7978845608028654 * 1.4426950408889634
        G = ACC + 48
        gather = [f'buffer_load_dwordx2 {vr(G + 2 * s, 2)}, v{self.vPS}, {WS}, s{sU1} offen offset:{256 * s} sc1'
                  for s in range(8)]
        valid = [f'v_or3_b32 v{t}, v{G + 1}, v{G + 3}, v{G + 5}', f'v_or3_b32 v{t2}, v{G + 7}, v{G + 9}, v{G + 11}',
                 f'v_or3_b32 v{t}, v{t}, v{G + 13}, v{G + 15}', f'v_or_b32 v{t}, v{t}, v{t2}',
                 f'v_cmp_gt_i32 vcc, 0, v{t}']

        def chk_stats():
            slow, back = a.label('slow'), a.label('back')
            a('s_nop 1')
            a(f's_cbranch_vccnz {slow}')
            a(f'{back}:')

            def cold():
                top = a.label('top')
                a(f'{slow}:')
                with a.untracked():
                    a(f's_mov_b32 s{sSpin}, {SPIN}')
                    a(f'{top}:')
                    a(gather)
                    a('s_waitcnt vmcnt(0)')
                    a(valid)
                    a(f's_sub_u32 s{sSpin}, s{sSpin}, 1')
                    a(f's_cbranch_scc1 {back}')
                    a('s_nop 3')
                    a(f's_cbranch_vccnz {top}')
                    a(f's_branch {back}')
            self.cold.append(cold)
        halves = [
            f'v_add_f32 v{vS}, v{vS}, v{vS + 1}',
            f'v_add_f32 v{vS + 2}, v{vS + 2}, v{vS + 3}',
            f'v_mov_b32 v{vS + 1}, v{vS}',
            f'v_mov_b32 v{vS + 3}, v{vS + 2}',
            f'v_cmp_gt_u32 vcc, 32, v{L}',
            f'v_permlane32_swap_b32 v{vS}, v{vS + 1}',
            f'v_permlane32_swap_b32 v{vS + 2}, v{vS + 3}']
        pub = halves + [
            f'v_add_f32 v{G}, v{vS}, v{vS + 1}',
            f'v_add_f32 v{G + 1}, v{vS + 2}, v{vS + 3}',
            f'v_and_b32 v{G + 1}, 0x7fffffff, v{G + 1}',
            ['s_mov_b32 exec_hi, 0',
             f'buffer_store_dwordx2 {vr(G, 2)}, v{self.vPS}, {WS}, s{sU0} offen sc1',
             's_mov_b32 exec_hi, -1']]
        st = valid + [chk_stats]
        for w_ in range(2):
            g = G + w_
            st += [f'v_add_f32 v{g}, v{g}, v{g + 2}', f'v_add_f32 v{g + 4}, v{g + 4}, v{g + 6}',
                   f'v_add_f32 v{g + 8}, v{g + 8}, v{g + 10}', f'v_add_f32 v{g + 12}, v{g + 12}, v{g + 14}',
                   f'v_add_f32 v{vS + 2 * w_}, v{g}, v{g + 4}', f'v_add_f32 v{vS + 2 * w_ + 1}, v{g + 8}, v{g + 12}']
        st += halves + [
            f'v_add_f32 v{vS}, v{vS}, v{vS + 1}',
            f'v_add_f32 v{vS + 2}, v{vS + 2}, v{vS + 3}',
            f'v_mul_f32 v{vS}, {f32(-1 / 640)}, v{vS}',
            f'v_mul_f32 v{vS + 2}, {f32(1 / 640)}, v{vS + 2}',
            f'v_cvt_pk_bf16_f32 v{t}, v{vS}, v{vS}',
            f'v_fma_f32 v{R}, -v{vS}, v{vS}, v{R}',
            f'v_lshlrev_b32 v{t}, 16, v{t}',
            f'v_max_f32 v{R}, 0, v{R}',
            f'v_sub_f32 v{t2}, v{vS}, v{t}',
            f'v_add_f32 v{R}, {f32(1e-5)}, v{R}',
            f'v_cvt_pk_bf16_f32 v{t}, v{t}, v{t2}',
            f'v_rsq_f32 v{vS + 3}, v{R}',
            f'v_cndmask_b32 v{BP + 2}, 0, v{t}, vcc',
            f'v_cndmask_b32 v{BP + 3}, 0, v{t}, vcc',
            f'v_mul_f32 v{C0}, {f32(c0)}, v{vS + 3}',
            f'v_mul_f32 v{t}, v{vS + 3}, v{vS + 3}',
            f'v_mul_f32 v{t}, {f32(0.044715)}, v{t}',
            f'v_mul_f32 v{C1}, v{t}, v{C0}',
        ]

        def csm(tile, slot, first):
            b = vr(BP, 4) if tile & 1 else vr(BP + 2, 4)
            return f'v_mfma_f32_32x32x16_bf16 {acc(slot)}, {ar(CS + 4 * (tile >> 1), 4)}, {b}, {"0" if first else acc(slot)}'

        def pick(r0, r1):
            a(f's_set_gpr_idx_on s{sCB}, gpr_idx(SRC0)')
            a('s_nop 0')
            for r in range(r0, r1):
                a(f'v_mov_b32_e32 v{G + r}, v{AB + r}')
            a('s_set_gpr_idx_off')
        for j in range(2):
            for s in range(3):
                a(rd(RING1 + 12 * j + 4 * s, s, j))
        a(swaps(0))
        self.stamp('a0')
        p2 = [(3, 3, j) for j in range(40)] + [(4, 0, j) for j in range(40)] + [(5, 1, j) for j in range(40)]
        gq = list(gather)
        GJ, SJ = o.get('gather_j', 22), o.get('stat_j', 33)
        B1, B2 = 21, 33
        nwd1 = min(o.get('wd_p1', 6), 31 - o['wd_pre'])
        assert o['a_ahead'] <= 14
        for j in range(40):
            base = RING1 + 12 * (j & 1)
            self.stamp(f'p{j}')
            a.need(ar(base, 12))
            for s in range(3):
                c = '0' if j == 0 else acc(s)
                a(f'v_mfma_f32_32x32x16_bf16 {acc(s)}, {ar(base + 4 * s, 4)}, {vr(AB + 4 * j, 4)}, {c}')
                if j < 38:
                    a(rd(base + 4 * s, s, j + 2))
                else:
                    i = (j - 38) * 3 + s
                    if i < 4:
                        a(rd(RING2 + 4 * i, p2[i][1], p2[i][2]))
                if s == 0 and j < 39:
                    a(swaps(j + 1))
                if s == 1 and (B1 < j <= B1 + 10 or B2 < j):
                    a(wtail.pop(0))
                if s != 1 and j >= GJ and gq:
                    a(gq.pop(0))
                if s == 2:
                    if al:
                        a(al.pop(0))
                    elif nwd1 and not gq and j < SJ:
                        a(wd.pop(0))
                        nwd1 -= 1
                if j not in (8, 9) and ww:
                    if s == 0:
                        while len(ww[0]) > 1:
                            a(ww[0].pop(0))
                    if s == 1:
                        a(ww.pop(0))
                if s == 2 and j not in (7, 8) and ww:
                    a(ww[0].pop(0))
                    a(ww[0].pop(0))
                if j == 19 and s == 1:
                    assert not ww
                    for i in (0, 1, 4, 5):
                        a(f'v_mov_b32 v{BP + i}, 0')
                if j == 8 and s == 1:
                    pick(0, 4)
                if j == 9 and s == 1:
                    pick(4, 10)
                if j in (10, 11) and s != 1:
                    for _ in range(3):
                        if pub:
                            a(pub.pop(0))
                if j >= SJ:
                    for _ in range((3, 0 if j > B2 else 5, 4)[s]):
                        if st:
                            a(st.pop(0))
            if j in (B1, B2):
                a('s_barrier')
            if j == 9:
                for r in range(10):
                    a(f'v_dot2c_f32_bf16 v{vS + (r & 1)}, s{sOne}, v{G + r}')
                    a(f'v_dot2c_f32_bf16 v{vS + 2 + (r & 1)}, v{G + r}, v{G + r}')
        assert not pub and not al and not st
        a(st)
        RES, vRes, vRes2 = 200, vAL, vCS
        res_addr = [
            f'v_and_b32 v{vRes}, 15, v{L}',
            f'v_lshl_add_u32 v{vRes2}, v{vRes}, 4, s{sRes}',
            f'v_lshrrev_b32 v{vRes}, 4, v{L}',
            f'v_mad_u32_u24 v{vRes2}, v{vRes}, s{sQS}, v{vRes2}',
            f'v_mad_u32_u24 v{vRes}, v{vRes}, s{sQS}, v{vRes2}',
        ]
        a('s_barrier')
        for tl in range(3):
            a(csm(tl, tl, False))
            a(res_addr if tl == 0 else wtail.pop(0))
        self.stamp(9)

        def epi(tile, slot, packed=False):
            b = ACC + 16 * slot
            tm = [TM, TM + 1, TM + 2, TM + 3]
            ops = []
            for h in range(2):
                g, u = b + 8 * h, b + 8 * h + 4
                if packed:
                    P = lambda r, i: vr(r + 2 * i, 2)
                    cc, rr = vr(C0, 2), vr(R, 2)
                    ops += [(1, f'v_pk_mul_f32 {P(TM, i)}, {P(g, i)}, {P(g, i)}') for i in range(2)]
                    ops += [(1, f'v_pk_fma_f32 {P(TM, i)}, {P(TM, i)}, {cc}, {cc} op_sel:[0,1,0] op_sel_hi:[1,1,0]') for i in range(2)]
                    ops += [(1, f'v_pk_mul_f32 {P(u, i)}, {P(u, i)}, {P(g, i)}') for i in range(1)]
                    ops += [(1, f'v_pk_mul_f32 {P(TM, i)}, {P(TM, i)}, {P(g, i)}') for i in range(2)]
                    ops += [(2, f'v_exp_f32 v{tm[i]}, v{tm[i]}') for i in range(4)]
                    ops += [(1, f'v_pk_mul_f32 {P(u, i)}, {P(u, i)}, {P(g, i)}') for i in range(1, 2)]
                    ops += [(1, f'v_pk_fma_f32 {P(TM, i)}, {P(TM, i)}, {rr}, {rr} op_sel:[0,0,0] op_sel_hi:[1,0,0]') for i in range(2)]
                    ops += [(2, f'v_rcp_f32 v{tm[i]}, v{tm[i]}') for i in range(4)]
                    ops += [(1, f'v_pk_mul_f32 {P(u, i)}, {P(u, i)}, {P(TM, i)}') for i in range(2)]
                    ops += [(1, f'v_cvt_pk_bf16_f32 v{b + 2 * h + i}, v{u + 2 * i}, v{u + 2 * i + 1}') for i in range(2)]
                    continue
                ops += [(1, f'v_mul_f32 v{tm[i]}, v{g + i}, v{g + i}') for i in range(4)]
                ops += [(1, f'v_fma_f32 v{tm[i]}, v{tm[i]}, v{C1}, v{C0}') for i in range(4)]
                ops += [(1, f'v_mul_f32 v{tm[i]}, v{tm[i]}, v{g + i}') for i in range(4)]
                for i in range(4):
                    ops += [(2, f'v_exp_f32 v{tm[i]}, v{tm[i]}'), (1, f'v_mul_f32 v{u + i}, v{u + i}, v{g + i}')]
                ops += [(1, f'v_fma_f32 v{tm[i]}, v{tm[i]}, v{R}, v{R}') for i in range(4)]
                ops += [(2, f'v_rcp_f32 v{tm[i]}, v{tm[i]}') for i in range(4)]
                ops += [(1, f'v_mul_f32 v{u + i}, v{u + i}, v{tm[i]}') for i in range(4)]
                ops += [(1, f'v_cvt_pk_bf16_f32 v{b + 2 * h + i}, v{u + 2 * i}, v{u + 2 * i + 1}') for i in range(2)]
            so = sA if tile < 4 else sB
            txt = f'buffer_store_dwordx4 {vr(b, 4)}, v{vAS}, {WS}, s{so} offen offset:{(tile & 3) * 1024} sc1'
            ops.append((5, (lambda: a(txt, tag=f'act{tile}')) if not o.get('nost') else []))
            if o.get('noepi'):
                ops = [(c_, x if callable(x) else []) for c_, x in ops]
            return ops

        G2 = 72
        FR = [[8 + 4 * i for i in range(16)],
              [152 + 4 * i for i in range(4)] + [200 + 4 * i for i in range(8)] + [168 + 4 * i for i in range(4)],
              [8 + 4 * i for i in range(16)]]
        order = [[(c, lam) for lam in (3, 2, 1, 0) for c in range(4)]] * 3

        def act_ld(pi, n):
            c, lam = order[pi][n]
            if o.get('noact'):
                return []
            return [f's_add_u32 s{sT1}, s{sL[lam]}, {ACT + 2048 * kap[pi][c]}',
                    f'buffer_load_dwordx4 {vr(FR[pi][n], 4)}, v{vA2}, {WS}, s{sT1} offen sc1']

        def sig(pi, tag):
            def f():
                self.stamp(f'presig{pi}')
                a.need_tag(tag)
                self.signal(f's{sF3s}')
                self.stamp(f'sig{pi}')
                if pi < 2:
                    a(f's_add_u32 s{sF3s}, s{sF3s}, {32 * 256}')
            return f

        def poll_ld():
            return f'buffer_load_dword v{vFl}, off, {WS}, s{sF3p} sc1'

        def poll_chk(pi):
            def f():
                self.stamp(f'prechk{pi}')
                self.check(S_WS, f's{sF3p}', 32, vFl)
                self.stamp(f'chk{pi}')
                if pi < 2:
                    a(f's_add_u32 s{sF3p}, s{sF3p}, {32 * 256}')
            return f
        RES, vRes, vRes2 = 200, vAL, vCS
        res_addr = [
            f'v_and_b32 v{vRes}, 15, v{L}',
            f'v_lshl_add_u32 v{vRes2}, v{vRes}, 4, s{sRes}',
            f'v_lshrrev_b32 v{vRes}, 4, v{L}',
            f'v_mad_u32_u24 v{vRes2}, v{vRes}, s{sQS}, v{vRes2}',
            f'v_mad_u32_u24 v{vRes}, v{vRes}, s{sQS}, v{vRes2}',
        ]
        res_ld = []
        for nt in range(5):
            q = 8 * (nt >> 1) + (nt & 1)
            res_ld.append([f's_mov_b32 s{sT6}, {HP4 + q * QS}',
                           f'buffer_load_dwordx2 {vr(RES + 2 * nt, 2)}, v{vRes2 if nt == 4 else vRes}, {WS}, s{sT6} offen sc1'])
        slot_of = {0: 0, 1: 1, 2: 2, 3: 3, 4: 0, 5: 1}
        eq = epi(0, 0) + epi(1, 1) + epi(2, 2)
        budget = 0.0
        RATE = o['epi_rate']
        extra = {i: [] for i in range(120)}
        first_w = wtail.pop(0)
        for k in range(len(wtail)):
            extra[k].append(wtail[k])
        extra[30].append('s_barrier')
        nwd = len(wd) - o.get('wd_post', 12)
        done = 60 - len(wd)
        lo, hi = o.get('wd_lo', 4), o.get('wd_hi', 78)
        hold = None
        for k in range(nwd):
            g = wd.pop(0)
            p = lo + (k * (hi - lo)) // nwd
            fr = done + k
            if fr == 39:
                extra[81].append([f's_mov_b32 s{sT6}, {WDF + 5120 * kap[1][3]}', g[-1].replace(f's{sWoff2} offen', f's{sT6} offen')] if g else [])
                continue
            assert fr < 56 or p > 14
            extra[p].append(g)
        SA, SB = o.get('siga', 62), o.get('sigb', 104)
        extra[SA].append(sig(0, 'act1'))
        extra[o.get('lda', 86)].append(poll_ld())
        for k, x in enumerate(res_ld):
            extra[o.get('res_at', 86) + 2 * k].append(x)
        ca = o.get('chka', 105)
        extra[ca].append(poll_chk(0))
        na = o.get('a_in', 7)
        for n in range(na):
            extra[ca + 1 + (n * (119 - ca)) // na].append(act_ld(0, n))
        extra[SB].append(sig(1, 'act3'))
        extra[50].append('s_barrier')

        def cost(x):
            if callable(x):
                return 3
            if isinstance(x, (list, tuple)):
                return sum(cost(y) for y in x)
            return 5 if x.startswith('ds_write') else 2 if x.startswith('buffer') or x == 's_barrier' else 1
        CAP = o.get('cap', 6.6)
        for i, (tile, ls, j) in enumerate(p2):
            slot = slot_of[tile]
            self.stamp(f'q{i}')
            if j == 0:
                a(csm(tile, slot, True))
                if i == 0:
                    a(first_w)
                if i:
                    budget = 6
                    while eq and budget >= eq[0][0]:
                        cst, x = eq.pop(0)
                        budget -= cst
                        a(x)
            if i & 1 == 0:
                a.need(ar(RING2 + 4 * (i & 3), 8))
            a(f'v_mfma_f32_32x32x16_bf16 {acc(slot)}, {ar(RING2 + 4 * (i & 3), 4)}, {vr(AB + 4 * j, 4)}, {acc(slot)}')
            if i + 4 < len(p2):
                a(rd(RING2 + 4 * (i & 3), p2[i + 4][1], p2[i + 4][2]))
            a(extra[i])
            if i == 42:
                eq += epi(3, 3)
            if i == 82:
                eq += epi(4, 0)
            if i >= 1:
                budget = min(budget, 1.0) + CAP - 1 - (i & 1) - cost(extra[i])
                budget = max(budget, -1)
                while eq and budget >= min(eq[0][0], 2):
                    cst, x = eq.pop(0)
                    budget -= cst
                    a(x)
                    if callable(x) and o.get('verbose'):
                        print('store at gap', i)
                if i == 39:
                    assert len(eq) <= 2 * 69, len(eq)
                if i == SA - 1:
                    assert len(eq) <= 2 * 69, len(eq)
                if i == 79:
                    assert len(eq) <= 2 * 69, len(eq)
                if i == o.get('res_at', 86) - 1:
                    assert len(eq) <= 2 * 69, len(eq)
                if i == SB - 1:
                    assert len(eq) <= 69, len(eq)
            if j == 39:
                self.stamp(f't{tile}')
        for cst, x in eq:
            a(x)
        a(f's_mov_b32 s{sT0}, 0xffff0000')
        for i in range(10):
            a(f'v_lshlrev_b32 v{G2 + 2 * i}, 16, v{RES + i}')
            a(f'v_and_b32 v{G2 + 2 * i + 1}, s{sT0}, v{RES + i}')
        e5 = epi(5, 1, o.get('pk5', 1))
        LA = o.get('la2', 12)
        rest = [act_ld(0, n) for n in range(na, LA)]
        if o.get('ldb', -1) < 0:
            rest.append(poll_ld())
        k = 0
        for i, (cst, x) in enumerate(e5):
            while k < len(rest) and (k + 1) * (len(e5) - 1) <= i * len(rest):
                a(rest[k])
                k += 1
            a(x)
        assert k == len(rest)
        self.stamp(10)

        vOut, vRR, vRW, vTW, vTR = 4, 7, 232, 238, 242
        RED = 2 * TILE
        setup = [
            f's_movk_i32 s{sT6}, {16 * 1280 - 160}',
            f's_movk_i32 s{sT5}, 6554',
            f's_movk_i32 s{sT4}, 176',
            f's_mul_i32 s{sT3}, s{S_W}, {16 * 176}',
            f'v_and_b32 v{t}, 15, v{L}',
            f'v_lshrrev_b32 v{t2}, 4, v{L}',
            f'v_mov_b32 v{vTW + 1}, s{sT3}',
            f'v_mad_u32_u24 v{vTW + 1}, v{t}, s{sT4}, v{vTW + 1}',
            f'v_lshl_add_u32 v{vTW}, v{t2}, 4, v{vTW + 1}',
            f'v_lshl_add_u32 v{vTW + 1}, v{t2}, 3, v{vTW + 1}',
        ]
        setup += [f'v_mul_u32_u24 v{t2}, s{sT5}, v{L}',
                  f'v_lshrrev_b32 v{t2}, 16, v{t2}',
                  f'v_lshl_add_u32 v{vOut}, v{L}, 4, s{sOutB}',
                  f'v_mad_u32_u24 v{vOut}, v{t2}, s{sT6}, v{vOut}',
                  f'v_add_u32 v{t}, v{L}, v{t2}',
                  f'v_lshl_add_u32 v{vTR}, v{t}, 4, s{sT3}',
                  f's_mov_b32 s{sT4}, {6 * 16 * 1280}',
                  f's_mov_b32 s{sT5}, {12 * 16 * 1280}']
        for lam in range(4):
            setup += [f's_xor_b32 s{sT0}, s{S_W}, {lam}', f's_mul_i32 s{sT0}, s{sT0}, {15 * 1024}',
                      f's_add_u32 s{sT0}, s{sT0}, {RED + (lam - 1) * 5120 if lam else RED}',
                      f'v_lshl_add_u32 v{vRW + lam - 1 if lam else vRR}, v{L}, 4, s{sT0}']

        def mf2(pi, n, nt):
            c, lam = order[pi][n]
            d = vr(G2 + 4 * (5 * lam + nt), 4)
            cin = '0' if (pi == 0 and c == 0 and lam != 0) else d
            return f'v_mfma_f32_16x16x32_bf16 {d}, {ar(4 * (5 * (4 * pi + c) + nt), 4)}, {vr(FR[pi][n], 4)}, {cin}'
        ex = [{i: [] for i in range(80)} for _ in range(3)]
        for k, x in enumerate(setup):
            ex[0][k].append(x)
        def put(pos, x):
            ex[pos // 80][pos % 80].append(x)
        if o.get('ldb', -1) >= 0:
            put(o['ldb'], poll_ld())
        cb_, cc_ = o.get('chkb', 5 * (16 - LA)), 80 + o.get('chkc', 44)
        put(cb_, [poll_chk(1), lambda: self.stamp('chkb')])
        put(o.get('sigc', 40), [sig(2, 'act5'), lambda: self.stamp('sigc')])
        put(80 + o.get('ldc', 28), poll_ld())
        put(cc_, [lambda: self.stamp('chkc0'), poll_chk(2), lambda: self.stamp(11)])
        pos = 0
        for g in range(LA, 48):
            pos = max(pos + (o.get('burst', 2) if g >= 16 else 0), o.get('g_gap', 5) * (g - LA) if g < 32 else 5 * (g - LA),
                      cb_ if g >= 16 else 0, cc_ if g >= 32 else 0)
            assert pos < 20 * (g // 4)
            put(pos, act_ld(g // 16, g % 16))
            if g < 32 and wd and g >= o.get('wdp_from', 0):
                put(pos + 2, wd.pop(0))
        assert not wd
        chain = o.get('chain', 1)
        for blk, lam in enumerate((3, 2, 1)):
            for nt in range(5):
                ex[2][20 * blk + 4 * nt + 12 if chain else 20 * (blk + 1) + 5 + 2 * nt].append(
                    f'ds_write_b128 v{vRW + lam - 1}, {vr(G2 + 4 * (5 * lam + nt), 4)} offset:{1024 * nt}')
        for pi in range(3):
            for i in range(80):
                if chain:
                    a(mf2(pi, 4 * (i // 20) + (i & 3), i % 20 // 4))
                else:
                    a(mf2(pi, i // 5, i % 5))
                a(ex[pi][i])
            self.stamp('end' + 'ABC'[pi])
        a('s_waitcnt lgkmcnt(0)')
        a('s_barrier')
        self.stamp('redbar')
        RD, RR = 152, 8
        for nt in range(5):
            for s in range(3):
                a(f'ds_read_b128 {vr(RD + 12 * nt + 4 * s, 4)}, v{vRR} offset:{5120 * s + 1024 * nt}')
        sc = ' sc1' if o['out_sc1'] else ''
        for nt in range(5):
            b = RD + 12 * nt
            c = G2 + 4 * nt
            for p in range(2):
                a(f'v_pk_add_f32 {vr(c + 2 * p, 2)}, {vr(c + 2 * p, 2)}, {vr(b + 2 * p, 2)}')
                a(f'v_pk_add_f32 {vr(b + 4 + 2 * p, 2)}, {vr(b + 4 + 2 * p, 2)}, {vr(b + 8 + 2 * p, 2)}')
            for p in range(2):
                a(f'v_pk_add_f32 {vr(c + 2 * p, 2)}, {vr(c + 2 * p, 2)}, {vr(b + 4 + 2 * p, 2)}')
            for p in range(2):
                a(f'v_cvt_pk_bf16_f32 v{RR + 2 * nt + p}, v{c + 2 * p}, v{c + 2 * p + 1}')
            if nt & 1:
                a(f'ds_write_b128 v{vTW}, {vr(RR + 2 * nt - 2, 4)} offset:{64 * (nt >> 1)}')
            if nt == 4:
                a(f'ds_write_b64 v{vTW + 1}, {vr(RR + 8, 2)} offset:128')
        for k in range(3):
            a(f'ds_read_b128 {vr(RR + 12 + 4 * k, 4)}, v{vTR} offset:{6 * 176 * k}')
        a('s_mov_b32 exec_hi, 0xfffffff')
        for k in range(3):
            if k == 2:
                a('s_mov_b32 exec_hi, 0xff')
            a(f'buffer_store_dwordx4 {vr(RR + 12 + 4 * k, 4)}, v{vOut}, {sr(S_OUT, 4)}, {("0", f"s{sT4}", f"s{sT5}")[k]} offen{sc}')
        a('s_mov_b32 exec_hi, -1')
        lz = a.label('nz')
        a('s_cmp_lg_u32 s2, 0')
        a(f's_cbranch_scc1 {lz}')
        with a.untracked():
            a(f'buffer_store_dword v{BP}, off, {sr(S_DBG, 4)}, 0 sc1')
        a(f'{lz}:')
        if self.diag:
            self.stamp('outst')
            a('s_waitcnt vmcnt(0)')
            self.stamp(12)
            a('s_waitcnt lgkmcnt(0)')
            with self.wave0():
                a(f's_lshl_b32 s{sT0}, s2, 7')
                a(f's_add_u32 s{sT0}, s{sT0}, {STAMP}')
                for i in range(NSTAMP):
                    a(f'v_mov_b32 v0, s{S_STAMP + 2 * i}')
                    a(f'buffer_store_dword v0, off, {WS}, s{sT0} offset:{4 * i}')
        if self.opt.get('fixt'):
            with a.untracked():
                a(f's_cmp_lg_u32 s2, {self.opt.get("fixwg", 0)}')
                a('s_cbranch_scc1 .Lend')
                a(f's_cmp_lg_u32 s{S_W}, 0')
                a('s_cbranch_scc1 .Lend')
                a(f's_sub_u32 s{sT2}, s{S_STAMP + 2 * self.opt.get("fixs", 0)}, s{S_STAMP + 2 * self.opt.get("fixb", 0)}')
                a(f's_mul_i32 s{sT2}, s{sT2}, 10')
                a(f's_min_u32 s{sT2}, s{sT2}, 100000')
                a(f's_add_u32 s{sT2}, s{sT2}, {self.opt["fixt"]}')
                a('.Lfix:')
                a(f's_memrealtime {sr(sT0, 2)}')
                a('s_waitcnt lgkmcnt(0)')
                a(f's_sub_u32 s{sT0}, s{sT0}, s{S_STAMP}')
                a(f's_cmp_lt_u32 s{sT0}, s{sT2}')
                a('s_cbranch_scc1 .Lfix')
        a('.Lend:')
        a('s_endpgm')

    def build(self):
        a = self.a
        if self.diag:
            for i in range(2 * NSTAMP):
                a(f's_mov_b32 s{S_STAMP + i}, 0')
        self.prologue()
        self.conv()
        self.gemms()
        self.side()
        for c in self.cold:
            a.fresh()
            a('s_nop 7')
            c()
        a('.Lcode_end:')
        a('s_endpgm')
        pads = (self.opt.get('base', 0x300), NPAD, sr(sRet, 2), '.Lend', self.opt.get('pstride', 4096)) if self.opt['pads'] else None
        body = a.finish(verbose=True, align=self.opt.get('align', 1), pads=pads)
        body += '.p2align 12\n    s_endpgm\n'
        ref = open('cdna_kernels/' + NAME + '.s.ref').read().split('\n')
        head = [l for l in ref if l.startswith(';') and '@launch' not in l and 'Override' not in l and 'grid=ceil' not in l]
        txt = '\n'.join(head) + '\n'
        txt += '; One persistent launch: kv/transposition -> Toeplitz-MFMA long conv -> gate/up GEMM + GEGLU -> down GEMM.\n'
        txt += '; @launch grid=(256,1,1) block=(256,1,1) lds=163840\n'
        txt += f'''.amdgcn_target "amdgcn-amd-amdhsa--gfx950"
.text
.globl {NAME}_kernel
.p2align 8
.type {NAME}_kernel,@function
{NAME}_kernel:
{body}.section .rodata,"a"
.p2align 6
.amdhsa_kernel {NAME}_kernel
  .amdhsa_next_free_vgpr 512
  .amdhsa_next_free_sgpr 102
  .amdhsa_accum_offset 256
  .amdhsa_group_segment_fixed_size 0
  .amdhsa_kernarg_size 104
  .amdhsa_user_sgpr_count 2
  .amdhsa_user_sgpr_kernarg_segment_ptr 1
  .amdhsa_system_sgpr_workgroup_id_x 1
  .amdhsa_float_denorm_mode_32 3
.end_amdhsa_kernel
'''
        return txt


if __name__ == '__main__':
    out = sys.argv[1]
    diag = 'diag' in sys.argv[2:]
    opt = {}
    for x in sys.argv[2:]:
        if '=' in x:
            k, v = x.split('=')
            try:
                v = int(v)
            except ValueError:
                try:
                    v = float(v)
                except ValueError:
                    pass
            opt[k] = v
    open(out, 'w').write(Gen(diag, opt).build())
```

```python
import struct
import sys
from asmlib import Asm, vr, ar, sr

NAME = 'sequential_preLN__ssm_conv_h3__geglu_ffn__prompt'

QS = 16384
CNT = 0
ST1 = 49152
CSF = 65536
STAMP = 98304
PST = 131072
W45F = PST + 262144
KVX = W45F + 1310720
XP4 = KVX + 160 * QS
HP4 = XP4 + 160 * QS
WDF = HP4 + 160 * QS
ACT = WDF + 1966080
WS_END = ACT + 6291456
C_F1, C_FX, C_FW, C_FXR, C_B1, C_B2, C_FWR, C_F3 = 0, 10, 18, 26, 34, 42, 50, 64
SPIN = 100000

S_W = 3
S_K, S_V, S_SH, S_SK, S_X, S_WG, S_WU, S_WD, S_OUT, S_DBG, S_WS = 4, 8, 12, 16, 20, 24, 28, 32, 36, 40, 44
S_D = 48
sX, sJ, sG, sM, sQ, sRB, sCB, sA, sB, sRot = 50, 51, 52, 53, 54, 55, 56, 57, 58, 59
sT0, sT1, sT2, sT3, sT4, sT5, sT6, sT7 = 60, 61, 62, 63, 64, 65, 66, 67
sWoff, sWoff2, sSpin, sDv = 68, 69, 70, 71
sOne, sU0, sU1, sU2 = 72, 73, 74, 75
sRet = 48
NPAD = 8
S_STAMP = 76
NSTAMP = 13
sAB = 4
sL = [8, 9, 10, 11]
sPL, sPH, sFW, sSide, sArr = 16, 17, 18, 19, 23
sE = [None, 12, 13, 14]

GSTR = 4160
GW = 8 * GSTR
UBASE = 4 * GW
USTR = 4608
TILE = 40960
WS = sr(S_WS, 4)


def f32(x):
    return '0x%08x' % struct.unpack('<I', struct.pack('<f', x))[0]


class Gen:
    def __init__(self, diag=False, opt=None):
        self.a = Asm()
        self.diag = diag
        self.opt = dict(place=1, w_kv=0, w_e1=6, w_u=0, tb_pre=0, tb_mid=3, ssm=2, defer=0, wdp_from=24, a_ahead=14, sig='v', epi_rate=4.5,
                        fx_it=3, early_n=8, out_sc1=1, pads=1, wd_pre=20, wd_post=4, l2=10, wd_p1=11, wd_pre1=8, arr='s')
        if opt:
            self.opt.update(opt)
        self.cold = []

    PROF = {
        'main': [0, 1, 2, 3, 4, 5, 6, 7, 8, 9, 10, 11, 12],
        'front': [0, 'karg', 'issued', 1, 'kvdone', 2, 'tbpre', 'drained', 3, 'tbpost', 4, 'uload', 5],
        'e2': [0, 6, 'zbar', 7, 'hbar', 'hissued', 'hdrained', 'hbar2', 'arrived', 'wwritten', 'polled', 8, 'a0'],
        'g1': [0, 8, 'a0', 'p8', 'p16', 'p24', 'p32', 9, 't3', 't4', 't5', 10, 12],
        'sum': [0, 'x1', 'x2', 'x3', 'x4', 'x5', 'x6', 7, 8, 'x9', 'x10', 'x11', 12],
        'side': [0, 'sx_in', 'sx_issued', 'sx_data', 'sx_bar', 'sx_st', 'sx_ld2', 'sx_dr', 1, 2, 6, 7, 8],
        'loop': [0, 4, 5, 'it1', 'it2', 'it3', 'it4', 'it5', 'it6', 'it7', 6, 7, 8],
        'g1b': [0, 9, 'q10', 'q20', 't3', 'presig0', 'sig0', 't4', 'prechk0', 'chk0', 'presig1', 'sig1', 't5'],
        'g2': [0, 't5', 10, 'chkb', 'sigc', 'endA', 'chkc0', 11, 'endB', 'endC', 'redbar', 'outst', 12],
    }

    def stamp(self, i):
        prof = self.PROF[self.opt.get('prof', 'main')]
        if self.diag and i in prof:
            i = prof.index(i)
            self.a(f'{"s_memtime" if self.opt.get("cyc") else "s_memrealtime"} {sr(S_STAMP + 2 * i, 2)}')

    def spin(self, srd, soff, target, vt):
        a = self.a
        top, done = a.label('spin'), a.label('done')
        with a.untracked():
            a(f's_mov_b32 s{sSpin}, {SPIN}')
            a(f'{top}:')
            a(f'buffer_load_dword v{vt}, off, {sr(srd, 4)}, {soff} sc1')
            a('s_waitcnt vmcnt(0)')
            a(f'v_readfirstlane_b32 s{sT7}, v{vt}')
            a(f's_sub_u32 s{sSpin}, s{sSpin}, 1')
            a(f's_cbranch_scc1 {done}')
            a(f's_cmp_lt_u32 s{sT7}, {target}')
            a(f's_cbranch_scc1 {top}')
            a(f'{done}:')

    def check(self, srd, soff, target, vt):
        a = self.a
        slow, back = a.label('slow'), a.label('back')
        a(f'v_readfirstlane_b32 s{sT7}, v{vt}')
        a(f's_cmp_lt_u32 s{sT7}, {target}')
        a(f's_cbranch_scc1 {slow}')
        a(f'{back}:')

        def cold():
            a(f'{slow}:')
            self.spin(srd, soff, target, vt)
            a(f's_branch {back}')
        self.cold.append(cold)

    def wave0(self):
        g = self

        class W:
            def __enter__(s):
                s.l = g.a.label('nw0')
                g.a(f's_cmp_lg_u32 s{S_W}, 0')
                g.a(f's_cbranch_scc1 {s.l}')
                s.u = g.a.untracked()
                s.u.__enter__()
                g.a('s_mov_b64 exec, 1')

            def __exit__(s, *x):
                g.a('s_mov_b64 exec, -1')
                s.u.__exit__()
                g.a(f'{s.l}:')
        return W()

    def warm(self, sets):
        if not self.opt['pads']:
            return
        a = self.a
        for w, ks in enumerate(sets):
            if not ks:
                continue
            l = a.label('nw')
            a(f's_cmp_lg_u32 s{S_W}, {w + 1}')
            a(f's_cbranch_scc1 {l}')
            for k in ks:
                a(f's_call_b64 {sr(sRet, 2)}, .Lpad_{k}')
            a(f'{l}:')

    def arrive_start(self, items, pre=None):
        a = self.a
        l = a.label('noarr')
        for r, _ in items:
            a(f's_mov_b32 s{r}, 1')
        a(f's_cmp_lg_u32 s{S_W}, 0')
        a(f's_cbranch_scc1 {l}')
        with a.untracked():
            if pre:
                pre()
            a(f's_lshl_b32 s{sSpin}, s{sX}, 8')
            for r, line in items:
                a(f's_atomic_add s{r}, {sr(S_WS, 2)}, s{sSpin} offset:{line * 256} glc')
        a(f'{l}:')

    def arrive_finish(self, items, vt):
        a = self.a
        a('s_waitcnt lgkmcnt(0)')
        for r, last, rep in items:
            l = a.label('notlast')
            a(f's_cmp_lg_u32 s{r}, {last}')
            a(f's_cbranch_scc1 {l}')
            with a.untracked():
                a('s_mov_b64 exec, 0xff')
                a(f'v_lshlrev_b32 v{vt}, 8, v0')
                a(f's_mov_b32 s{sT7}, {rep * 256}')
                a(f'buffer_atomic_add v{self.vOne}, v{vt}, {WS}, s{sT7} offen sc1')
                a('s_mov_b64 exec, -1')
            a(f'{l}:')

    def two_level(self, soff, last, rep, scalar=False):
        a = self.a
        l = a.label('notlast')
        if scalar:
            a(f's_mov_b32 s{sT7}, 1')
            a(f's_atomic_add s{sT7}, {sr(S_WS, 2)}, {soff} glc')
            a('s_waitcnt lgkmcnt(0)')
        else:
            a(f'v_mov_b32 v{self.vTmp}, 1')
            a(f'buffer_atomic_add v{self.vTmp}, off, {WS}, {soff} sc0 sc1')
            a('s_waitcnt vmcnt(0)')
            a(f'v_readfirstlane_b32 s{sT7}, v{self.vTmp}')
        a(f's_cmp_lg_u32 s{sT7}, {last}')
        a(f's_cbranch_scc1 {l}')
        a('s_mov_b64 exec, 0xff')
        a(f'v_lshlrev_b32 v{self.vTmp}, 8, v0')
        a(f's_mov_b32 s{sT7}, {rep * 256}')
        a(f'buffer_atomic_add v{self.vOne}, v{self.vTmp}, {WS}, s{sT7} offen sc1')
        a(f'{l}:')

    def prologue(self):
        a = self.a
        a('s_cmp_ge_u32 s2, 0x100')
        a('s_cbranch_scc1 .Lend')
        self.stamp(0)
        for srd, off in ((S_K, 8), (S_WS, 96), (S_V, 16), (S_SH, 24), (S_SK, 32), (S_X, 0), (S_WG, 56), (S_WU, 64),
                         (S_WD, 72), (S_OUT, 80), (S_DBG, 88), (S_D, 40)):
            a(f's_load_dwordx2 {sr(srd, 2)}, s[0:1], {off}')
        a('v_lshrrev_b32 v1, 6, v0')
        a(f's_and_b32 s{sX}, s2, 7')
        a(f's_lshr_b32 s{sJ}, s2, 3')
        a(f'v_readfirstlane_b32 s{S_W}, v1')
        a('v_mov_b32 v1, v0')
        a('v_and_b32 v0, 63, v0')
        for srd, n in ((S_K, 2621440), (S_V, 2621440), (S_SH, 5120), (S_SK, 4096), (S_X, 2621440), (S_WG, 1966080),
                       (S_WU, 1966080), (S_WD, 1966080), (S_OUT, 2621440), (S_DBG, 256), (S_WS, WS_END)):
            a(f's_mov_b32 s{srd + 2}, {n}')
            a(f's_mov_b32 s{srd + 3}, 0x20000')
        a(f's_and_b32 s{sM}, s{sJ}, 15')
        a(f's_mov_b32 s{sG}, s{sX}')
        a(f's_cmp_lt_u32 s{sJ}, 16')
        a.snapshot('role')
        a('s_cbranch_scc1 .Lconv')
        a(f's_lshr_b32 s{sG}, s{sX}, 2')
        a(f's_add_u32 s{sG}, s{sG}, 8')
        a(f's_and_b32 s{sT0}, s{sX}, 3')
        a(f's_lshl2_add_u32 s{sM}, s{sT0}, s{sM}')
        a(f's_cmp_lt_u32 s{sJ}, 20')
        a('s_cbranch_scc1 .Lconv')
        with a.untracked():
            a(f's_cmp_lg_u32 s2, {self.opt.get("initwg", 208)}')
            a('s_cbranch_scc1 .Lnoinit')
            a('v_lshrrev_b32 v2, 3, v1')
            a('v_and_b32 v3, 7, v0')
            a('v_lshlrev_b32 v3, 4, v3')
            a('v_lshl_add_u32 v2, v2, 8, v3')
            for i in range(4):
                a(f'v_mov_b32 v{4 + i}, 0')
            a(f's_movk_i32 s{sT0}, 0x2000')
            a('s_waitcnt lgkmcnt(0)')
            a.fresh()
            a(f'buffer_store_dwordx4 v[4:7], v2, {WS}, 0 offen sc1')
            a(f'buffer_store_dwordx4 v[4:7], v2, {WS}, s{sT0} offen sc1')
            a('v_mov_b32 v3, 1')
            a('s_waitcnt vmcnt(0)')
            a('s_barrier')
            a(f's_cmp_lg_u32 s{S_W}, 0')
            a('s_cbranch_scc1 .Lside')
            a('s_mov_b64 exec, 1')
            a(f'buffer_store_dword v3, off, {sr(S_DBG, 4)}, 0 sc1')
            a('s_mov_b64 exec, -1')
            a('s_branch .Lside')
            a('.Lnoinit:')
            if self.opt.get('cpf', 1):
                a(f's_getpc_b64 {sr(sT0, 2)}')
                a('.Lpc:')
                a(f's_and_b32 s{sT2}, s{sJ}, 3')
                a(f's_lshl2_add_u32 s{sT2}, s{sT2}, s{S_W}')
                a(f's_mul_i32 s{sT2}, s{sT2}, {18 * 128}')
                a('v_min_u32 v2, 17, v0')
                a(f'v_lshl_add_u32 v2, v2, 7, s{sT2}')
                a('v_min_u32 v2, .Lcode_end-.Lpc-4, v2')
                a('v_mov_b32 v3, 0')
                a(f'v_lshl_add_u64 v[4:5], v[2:3], 0, {sr(sT0, 2)}')
                a('global_load_dword a253, v[4:5], off')
            a('s_branch .Lside')
        a('.Lconv:')
        a.fresh('role')

    def gemm_ids(self):
        a = self.a
        a(f's_lshr_b32 s{sRB}, s{sX}, 2')
        a(f's_lshr_b32 s{sT0}, s{sJ}, 2')
        a(f's_lshl3_add_u32 s{sRB}, s{sRB}, s{sT0}')
        a(f's_and_b32 s{sRot}, s{sX}, 3')
        a(f's_and_b32 s{sT0}, s{sJ}, 3')
        a(f's_lshl2_add_u32 s{sCB}, s{sRot}, s{sT0}')
        a(f's_and_b32 s{sT0}, s{sCB}, 1')
        a(f's_mul_i32 s{sA}, s{sCB}, 6')
        a(f's_add_u32 s{sB}, s{sA}, 4')
        a(f's_lshl1_add_u32 s{sA}, s{sT0}, s{sA}')
        a(f's_lshl_b32 s{sT1}, s{sT0}, 2')
        a(f's_sub_u32 s{sB}, s{sB}, s{sT1}')

    vWL, vWLb, vW45, vTmp, vTmp2, vOne, vPS = 254, 253, 252, 250, 249, 248, 251
    WRAW = [8, 40, 72, 104, 136]
    vWW = 236
    PT = 200

    def real_line(self, r, tmp):
        a = self.a
        if not self.opt.get('swz', 1):
            return
        a(f's_sub_u32 s{tmp}, s{r}, 3')
        a(f's_cmp_lt_u32 s{tmp}, 2')
        a(f's_cselect_b32 s{tmp}, 7, 0')
        a(f's_xor_b32 s{r}, s{r}, s{tmp}')
        a(f's_sub_u32 s{tmp}, s{r}, 10')
        a(f's_cmp_lt_u32 s{tmp}, 2')
        a(f's_cselect_b32 s{tmp}, 1, 0')
        a(f's_xor_b32 s{r}, s{r}, s{tmp}')

    def w_addr(self):
        a = self.a
        t = self.vTmp
        a(f's_lshr_b32 s{sT1}, s{sA}, 2')
        self.real_line(sT1, sT0)
        a(f's_lshl_b32 s{sT1}, s{sT1}, 7')
        a(f'v_and_b32 v{t}, 7, v0')
        a(f'v_lshl_add_u32 v{self.vWLb}, v{t}, 4, s{sT1}')
        a(f's_lshr_b32 s{sT0}, s{S_W}, 1')
        a(f's_lshl_b32 s{sT0}, s{sT0}, 6')
        a(f's_mul_i32 s{sWoff}, s{sRot}, 160')
        a(f's_add_u32 s{sWoff}, s{sWoff}, s{sT0}')
        a(f's_mul_i32 s{sT0}, s{sCB}, {80 * 1024}')
        a(f's_add_u32 s{sT0}, s{sT0}, {W45F}')
        a(f'v_lshl_add_u32 v{self.vW45}, v0, 4, s{sT0}')
        a(f's_mul_i32 s{sWoff2}, s{sRot}, 10')
        a(f's_add_u32 s{sWoff2}, s{sWoff2}, s{S_W}')
        a(f's_lshl_b32 s{sWoff2}, s{sWoff2}, 10')
        a(f'v_mov_b32 v{self.vOne}, 1')
        a(f's_lshl2_add_u32 s{sT0}, s{sRB}, s{S_W}')
        a(f's_lshl_b32 s{sT0}, s{sT0}, 12')
        a(f'v_and_b32 v{t}, 31, v0')
        a(f'v_lshl_add_u32 v{self.vPS}, v{t}, 3, s{sT0}')
        a(f'v_lshrrev_b32 v{t}, 5, v0')
        a(f'v_lshl_add_u32 v{self.vPS}, v{t}, 11, v{self.vPS}')

    def w_select(self):
        a = self.a
        a(f's_bitcmp1_b32 s{S_W}, 0')
        a(f's_cselect_b32 s{S_WG}, s{S_WU}, s{S_WG}')
        a(f's_cselect_b32 s{S_WG + 1}, s{S_WU + 1}, s{S_WG + 1}')
        for i in range(1, 4):
            a(f's_movk_i32 s{sE[i]}, {6144 * i}')
        a(f's_movk_i32 s15, 3072')

    def clear_pst(self, v2):
        return [f'v_mov_b32 v{v2}, -1', f'v_mov_b32 v{v2 + 1}, -1',
                f's_lshl_b32 s{sU0}, s{sCB}, 8', f's_add_u32 s{sU0}, s{sU0}, {PST}',
                ['s_mov_b32 exec_hi, 0',
                 f'buffer_store_dwordx2 {vr(v2, 2)}, v{self.vPS}, {WS}, s{sU0} offen sc1',
                 's_mov_b32 exec_hi, -1']]

    def w_loads_main(self, park=False):
        out = []
        t, t2 = self.vTmp, self.vTmp2
        for b in range(5):
            for e in range(8):
                g = []
                if e == 0:
                    g = [f'v_and_b32 v{t}, 56, v0', f'v_add_u32 v{t}, s{sWoff}, v{t}', f'v_subrev_u32 v{t2}, 640, v{t}',
                         f'v_min_u32 v{t}, v{t}, v{t2}', f'v_mad_u32_u24 v{self.vWL}, v{t}, s15, v{self.vWLb}',
                         f's_add_u32 s{sWoff}, s{sWoff}, 128']
                so = f's{sE[e >> 1]}' if e >> 1 else '0'
                dst = ar(208 + 4 * e, 4) if park and b == 4 else vr(self.WRAW[b] + 4 * e, 4)
                g.append(f'buffer_load_dwordx4 {dst}, v{self.vWL}, {sr(S_WG, 4)}, {so} offen offset:{3072 * (e & 1)}')
                out.append(g)
        return out

    def w_loads_tail(self):
        out = []
        for i in range(20):
            if i & 1:
                g = [f's_add_u32 s{sU1}, s{sWoff2}, {TILE}',
                     f'buffer_load_dwordx4 {ar(160 + 4 * i, 4)}, v{self.vW45}, {WS}, s{sU1} offen sc1']
            else:
                g = []
                if i:
                    g = [f's_add_u32 s{sWoff2}, s{sWoff2}, 4096',
                         [f's_sub_u32 s{sU1}, s{sWoff2}, {TILE}', f's_cselect_b32 s{sWoff2}, s{sWoff2}, s{sU1}']]
                g.append(f'buffer_load_dwordx4 {ar(160 + 4 * i, 4)}, v{self.vW45}, {WS}, s{sWoff2} offen sc1')
            out.append(g)
        return out

    def w_write_addr(self):
        a = self.a
        t, t2 = self.vTmp, self.vTmp2
        a(f's_lshr_b32 s{sT0}, s{S_W}, 1')
        a(f's_lshl_b32 s{sT0}, s{sT0}, 12')
        a(f's_and_b32 s{sT1}, s{S_W}, 1')
        a(f's_lshl_b32 s{sT1}, s{sT1}, 7')
        a(f's_add_u32 s{sT0}, s{sT0}, s{sT1}')
        a(f'v_lshrrev_b32 v{t}, 3, v0')
        a(f'v_lshl_add_u32 v{t}, v{t}, 9, s{sT0}')
        a(f'v_and_b32 v{t2}, 1, v0')
        a(f'v_lshl_add_u32 v{t}, v{t2}, 6, v{t}')
        a(f'v_bfe_u32 v{t2}, v0, 1, 2')
        a(f's_mov_b32 s{sT0}, {TILE + 16}')
        a(f'v_mad_u32_u24 v{self.vWW}, v{t2}, s{sT0}, v{t}')
        for q in range(1, 4):
            a(f'v_xor_b32 v{self.vWW + q}, {16 * q}, v{self.vWW}')
        a(f's_mov_b32 s{sPL}, 0x05040100')
        a(f's_mov_b32 s{sPH}, 0x07060302')

    def w_writes_main(self):
        out = []
        for b in range(5):
            for c8 in range(8):
                p = self.PT + 4 * (c8 & 3) if b < 5 - self.opt.get('defer', 2) else (228 if c8 & 1 else 242)
                r = self.WRAW[b] + (c8 >> 1)
                g = [f'v_perm_b32 v{p + d}, v{r + 8 * d + 4}, v{r + 8 * d}, s{sPH if c8 & 1 else sPL}' for d in range(4)]
                g.append(f'ds_write_b128 v{self.vWW + (c8 & 3)}, {vr(p, 4)} offset:{b * 8192 + (c8 >> 2) * 256}')
                out.append(g)
        return out

    def conv(self):
        a = self.a
        o = self.opt
        vK, vKh, vC, vR, vSHa, vL16 = 1, 2, 3, 4, 5, 6
        SH = 8
        KR = 16
        VR = 38
        WF = 56
        KF = 72
        O = 120
        SK = 136
        KV = 168
        VF = 200
        vSW, vSR, vKS, vG, vBa, vAa, vZR, vZR2, vUL, vUW, vI7, vGZ, vXS, vHS, vFl, vPrev = range(232, 248)
        ZERO, AD = 224, 240
        a(f's_lshl4_add_u32 s{sQ}, s{sG}, s{sM}')
        a(f'v_and_b32 v{vC}, 15, v0')
        a(f'v_lshrrev_b32 v{vR}, 4, v0')
        a(f's_lshl2_add_u32 s{sT0}, s{sM}, s{S_W}')
        a(f's_mul_i32 s{sT0}, s{sT0}, {32 * 1280}')
        a(f's_lshl_b32 s{sT1}, s{sG}, 7')
        a(f's_add_u32 s{sT0}, s{sT0}, s{sT1}')
        a(f's_movk_i32 s{sT2}, {8 * 1280}')
        a(f'v_lshl_add_u32 v{vK}, v{vC}, 3, s{sT0}')
        a(f'v_mad_u32_u24 v{vK}, v{vR}, s{sT2}, v{vK}')
        a(f'v_subrev_u32 v{vKh}, 3840, v{vK}')
        a(f's_lshl_b32 s{sT1}, s{sG}, 9')
        a(f'v_lshl_add_u32 v{vSHa}, v{vC}, 5, s{sT1}')
        a(f's_movk_i32 s{sT3}, 5120')
        a(f'v_lshlrev_b32 v{vL16}, 4, v0')

        def addr_phase_a():
            a(f'v_subrev_u32 v{vPrev}, 16, v{vL16}')
            a(f's_mul_i32 s{sT0}, s{S_W}, {USTR}')
            a(f's_add_u32 s{sT0}, s{sT0}, {UBASE}')
            a(f's_movk_i32 s{sT1}, 272')
            a(f'v_lshl_add_u32 v{vSW}, v{vR}, 4, s{sT0}')
            a(f'v_mad_u32_u24 v{vSW}, v{vC}, s{sT1}, v{vSW}')
            a(f'v_lshl_add_u32 v{vSR}, v{vC}, 4, s{sT0}')
            a(f'v_mad_u32_u24 v{vSR}, v{vR}, s{sT1}, v{vSR}')
            a(f'v_add_u32 v{vUW}, s{sT0}, v{vL16}')
            a(f's_add_u32 s{sT0}, s{sT0}, 32')
            a(f'v_lshl_add_u32 v{vBa}, v{vC}, 5, s{sT0}')
            a(f'v_lshl_add_u32 v{vBa}, v{vR}, 4, v{vBa}')
            a(f's_mul_i32 s{sT0}, s{sG}, {16 * QS}')
            a(f's_lshl2_add_u32 s{sT1}, s{sM}, s{S_W}')
            a(f's_lshl_b32 s{sT1}, s{sT1}, 8')
            a(f's_add_u32 s{sT0}, s{sT0}, s{sT1}')
            a(f's_mov_b32 s{sT1}, {QS}')
            a(f'v_lshl_add_u32 v{vKS}, v{vC}, 4, s{sT0}')
            a(f'v_mad_u32_u24 v{vKS}, v{vR}, s{sT1}, v{vKS}')

        def addr_rest():
            self.gemm_ids()
            self.w_addr()
            a(f's_mul_i32 s{sT5}, s{S_W}, {GW}')
            a(f'v_add_u32 v{vG}, s{sT5}, v{vL16}')
            a(f'v_bfe_u32 v{vAa}, v0, 3, 1')
            a(f'v_sub_u32 v{vAa}, v{vAa}, v{vR}')
            a(f's_add_u32 s{sT0}, s{sT5}, 48')
            a(f'v_lshl_add_u32 v{vAa}, v{vAa}, 4, s{sT0}')
            a(f'v_and_b32 v{vI7}, 7, v0')
            a(f's_movk_i32 s{sT1}, {GSTR}')
            a(f'v_mad_u32_u24 v{vAa}, v{vI7}, s{sT1}, v{vAa}')
            a(f'v_mov_b32 v{vGZ}, s{sT5}')
            a(f'v_mad_u32_u24 v{vGZ}, v{vI7}, s{sT1}, v{vGZ}')
            a(f's_mul_i32 s{sT6}, s{sQ}, {QS}')
            a(f's_lshl_b32 s{sT1}, s{S_W}, 6')
            a(f's_add_u32 s{sT0}, s{sT6}, s{sT1}')
            a(f'v_and_b32 v{vUL}, 3, v0')
            a(f'v_lshl_add_u32 v{vUL}, v{vUL}, 4, s{sT0}')
            a(f'v_lshrrev_b32 v{vXS}, 2, v0')
            a(f'v_lshl_add_u32 v{vUL}, v{vXS}, 8, v{vUL}')
            a(f's_lshl_b32 s{sT0}, s{S_W}, 12')
            a(f'v_add_u32 v{vXS}, s{sT0}, v{vL16}')
            a(f's_add_u32 s{sT0}, s{sT0}, s{sT6}')
            a(f'v_add_u32 v{vHS}, s{sT0}, v{vL16}')
            a(f's_lshl_b32 s{sT0}, s{S_W}, 11')
            a(f'v_add_u32 v{vZR}, s{sT0}, v{vL16}')
            a(f'v_add_u32 v{vZR2}, {2 * GW}, v{vZR}')
            for i in range(4):
                a(f'v_mov_b32 v{ZERO + i}, 0')
        if o.get('addr_early', 0) >= 1:
            addr_phase_a()
        if o.get('addr_early', 0) >= 2:
            addr_rest()
        a.need(sr(S_WS, 2))
        self.stamp('karg')
        a(f'buffer_load_dwordx4 {vr(SH, 4)}, v{vSHa}, {sr(S_SH, 4)}, 0 offen')
        a(f'buffer_load_dwordx4 {vr(SH + 4, 4)}, v{vSHa}, {sr(S_SH, 4)}, 0 offen offset:16')
        for r in range(3):
            a(f'buffer_load_dwordx2 {vr(KR + 2 * r, 2)}, v{vKh}, {sr(S_K, 4)}, 0 offen offset:{r * 1280}')
        for r in range(8):
            so = f's{sT3}' if r >= 4 else '0'
            a(f'buffer_load_dwordx2 {vr(KR + 6 + 2 * r, 2)}, v{vK}, {sr(S_K, 4)}, {so} offen offset:{(r & 3) * 1280}')
            a(f'buffer_load_dwordx2 {vr(VR + 2 * r, 2)}, v{vK}, {sr(S_V, 4)}, {so} offen offset:{(r & 3) * 1280}')
        self.stamp('issued')
        if o.get('tlb'):
            a(f'v_lshlrev_b32 v228, {o["tlb"]}, v0')
            a(f'buffer_load_dword v229, v228, {WS}, 0 offen sc1')
            a(f'buffer_load_dword v228, v228, {sr(S_OUT, 4)}, 0 offen sc1')
        if o.get('addr_early', 0) < 1:
            addr_phase_a()
        if o.get('addr_early', 0) < 2:
            addr_rest()
        a(f's_lshl2_add_u32 s{sT0}, s{sQ}, s{S_W}')
        a(f's_lshl_b32 s{sT1}, s{sT0}, 12')
        a(f's_add_u32 s{S_SK}, s{S_SK}, s{sT1}')
        a(f's_addc_u32 s{S_SK + 1}, s{S_SK + 1}, 0')
        a(f's_lshl_b32 s{sT0}, s{sT0}, 1')
        a(f's_and_b32 s{sT0}, s{sT0}, -4')
        a(f's_load_dword s{sDv}, {sr(S_D, 2)}, s{sT0}')
        ssm = []
        for j in range(4):
            if j == 0:
                ssm.append(f'buffer_load_dwordx4 {vr(SK, 4)}, v{vPrev}, {sr(S_SK, 4)}, 0 offen')
            else:
                ssm.append(f'buffer_load_dwordx4 {vr(SK + 8 * j, 4)}, v{vL16}, {sr(S_SK, 4)}, 0 offen offset:{1024 * j - 16}')
            ssm.append(f'buffer_load_dwordx4 {vr(SK + 8 * j + 4, 4)}, v{vL16}, {sr(S_SK, 4)}, 0 offen offset:{1024 * j}')
        if o.get('ssm', 1) == 0:
            a(ssm)
        self.w_select()
        self.warm([[0], [1], []])
        park = o.get('park', 1)
        wl = self.w_loads_main(park)

        def w_some(n):
            for _ in range(n):
                a(wl.pop(0))
        a(f's_mov_b32 s{sT2}, 0xffff0000')
        for ch in range(4):
            for j in range(4):
                src = SH + 2 * ch + (j >> 1)
                if j & 1:
                    a(f'v_and_b32 v{WF + 4 * j + ch}, s{sT2}, v{src}')
                else:
                    a(f'v_lshlrev_b32 v{WF + 4 * j + ch}, 16, v{src}')

        def unpack(dst, src):
            a(f'v_lshlrev_b32 v{dst}, 16, v{src}')
            a(f'v_and_b32 v{dst + 1}, s{sT2}, v{src}')
            a(f'v_lshlrev_b32 v{dst + 2}, 16, v{src + 1}')
            a(f'v_and_b32 v{dst + 3}, s{sT2}, v{src + 1}')
        for r in range(3):
            unpack(KF + 4 * r, KR + 2 * r)
        self.stamp(1)
        for r in range(8):
            unpack(KF + 4 * (r + 3), KR + 2 * (r + 3))
            vf = VF + 4 * (r & 1)
            for j in (3, 2, 1, 0):
                for p in range(2):
                    d = vr(KV + 4 * r + 2 * p, 2)
                    k = vr(KF + 4 * (r + 3 - j) + 2 * p, 2)
                    w = vr(WF + 4 * j + 2 * p, 2)
                    if j == 3:
                        a(f'v_pk_mul_f32 {d}, {k}, {w}')
                    else:
                        a(f'v_pk_fma_f32 {d}, {k}, {w}, {d}')
                if j == 3:
                    unpack(vf, VR + 2 * r)
            for p in range(2):
                d = vr(KV + 4 * r + 2 * p, 2)
                a(f'v_pk_mul_f32 {d}, {d}, {vr(vf + 2 * p, 2)}')
            if o.get('ssm', 1) == 1:
                a(ssm.pop(0))
            if r & 1:
                d = (7 - r) >> 1
                for ch in range(4):
                    a(f'v_cvt_pk_bf16_f32 v{O + 4 * ch + d}, v{KV + 4 * r + ch}, v{KV + 4 * (r - 1) + ch}')
        self.stamp('kvdone')
        for ch in range(4):
            a(f'ds_write_b128 v{vSW}, {vr(O + 4 * ch, 4)} offset:{ch * 64}')
        for j in range(4):
            a(f'ds_read_b128 {vr(KV + 4 * j, 4)}, v{vSR} offset:{j * 1088}')
        a(f'buffer_load_dword v{vFl}, off, {sr(S_DBG, 4)}, 0 sc1')
        a(f's_mov_b32 s{sT0}, {KVX}')
        for j in range(4):
            a(f'buffer_store_dwordx4 {vr(KV + 4 * j, 4)}, v{vKS}, {WS}, s{sT0} offen sc1')
            if j < 3:
                a(f's_add_u32 s{sT0}, s{sT0}, {4 * QS}')
        self.stamp(2)
        if o.get('ssm', 1) == 2:
            a(ssm)
        a(f'ds_write_b128 v{vUW}, {vr(ZERO, 4)}')
        a(f'ds_write_b128 v{vGZ}, {vr(ZERO, 4)}')

        def table(j):
            D = SK + 8 * j
            Ea, Eb, Db = 184 + 20 * (j & 1), 184 + 20 * (j & 1) + 8, 184 + 20 * (j & 1) + 14

            def wr(rho, reg):
                a(f'ds_write_b128 v{vG}, {vr(reg, 4)} offset:{rho * GSTR + 1024 * j + 16}')
            wr(7, D + 4)
            wr(3, D + 2)
            for i in range(3):
                a(f'v_pk_mov_b32 {vr(Db + 2 * i, 2)}, {vr(D + 2 * i, 2)}, {vr(D + 2 * i + 2, 2)} op_sel:[1,0]')
            for i in range(7):
                a(f'v_alignbit_b32 v{Ea + i}, v{D + i + 1}, v{D + i}, 16')
            wr(1, Db)
            wr(5, Db + 2)
            for i in range(3):
                a(f'v_pk_mov_b32 {vr(Eb + 2 * i, 2)}, {vr(Ea + 2 * i, 2)}, {vr(Ea + 2 * i + 2, 2)} op_sel:[1,0]')
            wr(0, Ea)
            wr(4, Ea + 2)
            wr(2, Eb)
            wr(6, Eb + 2)
        w_some(o['w_kv'])
        n1, n2 = o['tb_pre'], o['tb_pre'] + o['tb_mid']
        for j in range(n1):
            table(j)
        self.stamp('tbpre')
        a.drain_stores()
        self.stamp('drained')
        a('s_barrier')
        self.stamp(3)
        a(f's_lshl_b32 s{sT0}, s{sG}, 8')
        with self.wave0():
            self.check(S_DBG, '0', 1, vFl)
            a(f'buffer_atomic_add v{self.vOne}, off, {WS}, s{sT0} sc1')
        w_some(o['w_e1'])
        for j in range(n1, n2):
            table(j)
        a.need(f's{sDv}')
        a(f's_and_b32 s{sT1}, s{S_W}, 1')
        a(f's_lshl_b32 s{sT1}, s{sT1}, 4')
        a(f's_lshr_b32 s{sDv}, s{sDv}, s{sT1}')
        a(f's_and_b32 s{sDv}, s{sDv}, 0xffff')
        a(f'v_sub_u32 v5, 7, v{vI7}')
        a(f'v_and_b32 v7, 1, v5')
        a(f'v_lshlrev_b32 v7, 4, v7')
        a(f'v_lshlrev_b32 v7, v7, s{sDv}')
        a(f'v_bfe_u32 v1, v0, 3, 1')
        a(f'v_add_u32 v1, 2, v1')
        a(f'v_cmp_eq_u32 vcc, v1, v{vR}')
        a(f'v_cndmask_b32 v7, 0, v7, vcc')
        a(f'v_lshrrev_b32 v5, 1, v5')
        for d in range(4):
            a(f'v_cmp_eq_u32 vcc, {d}, v5')
            a(f'v_cndmask_b32 v1, 0, v7, vcc')
            a(f'v_accvgpr_write_b32 a{AD + d}, v1')
        ACC = 128
        BUF = (0, 64)
        XR, SR, XF = 136, 152, 168

        def rdA(it, t):
            return f'ds_read_b128 {ar(BUF[it & 1] + 4 * t, 4)}, v{vAa} offset:{64 * it + 512 * t}'

        def rdB(it, t):
            return f'ds_read_b128 {ar(BUF[it & 1] + 32 + 4 * t, 4)}, v{vBa} offset:{448 - 64 * it + 512 * t}'
        self.stamp('tbpost')
        self.warm([[2], [], []])
        with self.wave0():
            self.spin(S_WS, f's{sT0}', 16, vFl)
        a('s_barrier')
        self.stamp(4)
        a(f's_mov_b32 s{sT0}, {KVX}')
        for j in range(4):
            a(f'buffer_load_dwordx4 {ar(BUF[1] + 4 * j, 4)}, v{vUL}, {WS}, s{sT0} offen sc1')
            if j < 3:
                a(f's_add_u32 s{sT0}, s{sT0}, 4096')
        w_some(o['w_u'])
        for j in range(n2, 4):
            table(j)
        for t in range(8):
            a(rdA(0, t))
        a(f's_lshl_b32 s{sT3}, s{sX}, 8')
        a(f's_add_u32 s{sT3}, s{sT3}, {C_FXR * 256}')
        a(f's_mov_b32 s{sT4}, {ST1}')
        a(f's_add_u32 s{sT6}, s{sT6}, {XP4}')
        for j in range(4):
            a(f'ds_write_b128 v{vUW}, {ar(BUF[1] + 4 * j, 4)} offset:{512 + 1024 * j}')
            if j == 0:
                self.stamp('uload')
            a(rdB(0, 2 * j))
            a(rdB(0, 2 * j + 1))
        self.stamp(5)
        fx = o['fx_it']
        xl = []
        for T in range(2):
            for p in range(2):
                off = 2048 * T + 1024 * p
                xl.append([f'buffer_load_dwordx4 {vr(XR + 8 * T + 4 * p, 4)}, v{vXS}, {WS}, s{sT6} offen offset:{off} sc1'])
                xl.append([f'buffer_load_dwordx4 {vr(SR + 8 * T + 4 * p, 4)}, v{vXS}, {WS}, s{sT4} offen offset:{off} sc1'])
        if o.get('nowl'):
            wl = [g[:-1] + [[]] for g in wl]
        wt = self.w_loads_tail()
        if park:
            early, late = wl, xl + wt[:12]
            self.win_pre = [f'v_accvgpr_read_b32 v{self.WRAW[4] + i}, a{208 + i}' for i in range(32)]
            self.win_loads = wt[12:]
        else:
            early, late = wl[:-8], xl + wt
            self.win_pre = wl[-8][:-1]
            self.win_loads = [wl[-8][-1]] + wl[-7:]
        tot = len(early) + len(late)
        per = [(tot * (i + 1)) // 8 - (tot * i) // 8 for i in range(8)]
        plan = []
        for it in range(8):
            n = per[it]
            if it <= fx + 1:
                n = min(max(n, o.get('early_n', 0)), len(early))
                plan.append([early.pop(0) for _ in range(n)])
            else:
                rest = late[:8] + early + late[8:] if it == fx + 2 else rest
                early = late = []
                n = (len(rest) + 7 - it) // (8 - it)
                plan.append([rest.pop(0) for _ in range(n)])
        for it in range(8):
            A, B = BUF[it & 1], BUF[it & 1] + 32
            mf = []
            endT = []
            for T in range(8):
                c = ar(ACC + 4 * T, 4)
                if it == 0:
                    mf.append(f'v_mfma_f32_16x16x32_bf16 {c}, {ar(AD, 4)}, {ar(B + 4 * T, 4)}, 0')
                for t in range(T + 1):
                    mf.append(f'v_mfma_f32_16x16x32_bf16 {c}, {ar(A + 4 * t, 4)}, {ar(B + 4 * (T - t), 4)}, {c}')
                endT.append(len(mf) - 1)
            fill = [[] for _ in mf]
            base = 8 if it == 0 else 0
            if it < 7:
                rd = [x for t in range(8) for x in (rdA(it + 1, t), rdB(it + 1, t))]
                for i, x in enumerate(rd):
                    fill[base + 2 * i].append(x)
            zw = [f'ds_write_b128 v{vG}, {ar(ACC + 4 * T, 4)} offset:{1024 * T}' for T in range(8)]
            if it == 7:
                for T in range(o.get('z_in', 7)):
                    fill[max(endT[T] + 5, 6 + 4 * T)].append(zw.pop(0))
            n = len(plan[it])
            pos = base
            for i, g in enumerate(plan[it]):
                p = max(base + ((i + 1) * 35) // n, pos)
                k = len(g) - 1
                for z, x in enumerate(g[:-1]):
                    fill[max(pos, p - (k - z + 1) // 2)].append(x)
                fill[p].append(g[-1])
                pos = p
            if it == 0:
                for i, x in enumerate(self.clear_pst(228)):
                    fill[i].append(x)
            if it == fx:
                fill[-1].append(f'buffer_load_dword v{vFl}, off, {WS}, s{sT3} sc1')
            if it == fx + 1:
                fill[-1].append(lambda: self.check(S_WS, f's{sT3}', 8, vFl))
            if it == 7:
                fill[0].append(f's_add_u32 s{sFW}, s{sT3}, {(C_FWR - C_FXR) * 256}')

            if it == 0:
                unp = []
                for T in range(2):
                    for row in range(4):
                        src = XR + 8 * T + 2 * row
                        xf = XF + 16 * T + 4 * row
                        st = SR + 8 * T + 2 * row
                        unp += [f'v_lshlrev_b32 v{xf}, 16, v{src}', f'v_and_b32 v{xf + 1}, s{sT2}, v{src}',
                                f'v_lshlrev_b32 v{xf + 2}, 16, v{src + 1}', f'v_and_b32 v{xf + 3}, s{sT2}, v{src + 1}']
                        unp += [f'v_fma_f32 v{xf + 32 + c}, v{xf + c}, v{st}, v{st + 1}' for c in range(4)]
            u0 = o.get('unp_at', 36 * 6 + 14)
            for i, x in enumerate(unp):
                p = u0 + (i * (36 * 8 - u0)) // 64
                if p // 36 == it:
                    fill[p % 36].append(x)
            self.stamp(f'it{it}')
            if it > 0:
                a.need(ar(A, 24 if it < 7 else 32), ar(B, 24))
            for m, f in zip(mf, fill):
                a(m)
                a(f)
        self.stamp(6)
        a(zw)
        a('s_waitcnt lgkmcnt(0)')
        a('s_barrier')
        self.stamp('zbar')
        Z = XR
        for T in range(2):
            for ch in range(4):
                a(f'ds_read_b128 {vr(Z + 16 * T + 4 * ch, 4)}, v{vZR2 if ch & 2 else vZR} offset:{(ch & 1) * GW + 1024 * T}')
        a(f's_mov_b32 s{sT0}, {HP4}')
        for T in range(2):
            for p in range(2):
                ho = XF + 32 + 16 * T + 8 * p
                for b in range(2):
                    row = 2 * p + b
                    for c in range(4):
                        x = XF + 16 * T + 4 * row + c
                        a(f'v_fmac_f32 v{x}, v{x + 32}, v{Z + 16 * T + 4 * c + row}')
                    for c2 in range(2):
                        x = XF + 16 * T + 4 * row + 2 * c2
                        a(f'v_cvt_pk_bf16_f32 v{ho + 2 * b + c2}, v{x}, v{x + 1}')
                a(f'buffer_store_dwordx4 {vr(ho, 4)}, v{vHS}, {WS}, s{sT0} offen offset:{2048 * T + 1024 * p} sc1')
        self.stamp(7)

    def arrive_e2(self):
        a = self.a
        a(f's_lshl_b32 s{sT0}, s{sX}, 8')
        a(f's_add_u32 s{sT0}, s{sT0}, {C_B1 * 256}')
        with self.wave0():
            self.two_level(f's{sT0}', 31, C_B2, self.opt['arr'] == 's')

    def side(self):
        a = self.a
        a('.Lside:')
        a.fresh('role')
        self.stamp('sx_in')
        vTid = 1
        a(f's_sub_u32 s{sG}, s{sJ}, 20')
        a(f's_lshl3_add_u32 s{sG}, s{sG}, s{sX}')
        J2, vJ2, sG2, sJo, sJs = 136, 230, sQ, sDv, sM
        up = self.opt.get('up', 1)

        def job2_loads():
            a(f's_add_u32 s{sG2}, s{sG}, {48 if self.opt.get("pair", 1) else 0}')
            a(f's_sub_u32 s{sT0}, s{sG2}, 96')
            a(f's_cselect_b32 s{sG2}, s{sG2}, s{sT0}')
            a(f's_cmp_ge_u32 s{sG2}, 72')
            a(f's_cselect_b32 s{sT2}, s{S_WU}, s{S_WG}')
            a(f's_cselect_b32 s{sT3}, s{S_WU + 1}, s{S_WG + 1}')
            a(f's_cselect_b32 s{sT1}, 72, 48')
            a(f's_sub_u32 s{sT1}, s{sG2}, s{sT1}')
            a(f's_lshr_b32 s{sT0}, s{sG2}, 1')
            a(f's_cmp_ge_u32 s{sG2}, 48')
            a(f's_cselect_b32 s{S_WD}, s{sT2}, s{S_WD}')
            a(f's_cselect_b32 s{S_WD + 1}, s{sT3}, s{S_WD + 1}')
            a(f's_cselect_b32 s{sT0}, s{sT1}, s{sT0}')
            self.real_line(sT0, sT2)
            a(f's_and_b32 s{sT2}, s{sG2}, 1')
            a(f's_lshl1_add_u32 s{sT2}, s{sT0}, s{sT2}')
            a(f's_mul_i32 s{sT2}, s{sT2}, {32 * 1280}')
            a(f's_lshl_b32 s{sT0}, s{sT0}, 7')
            a(f's_movk_i32 s{sT1}, 1280')
            a(f's_movk_i32 s{sJs}, 128')
            a(f's_cmp_ge_u32 s{sG2}, 48')
            a(f's_cselect_b32 s{sJo}, s{sT0}, s{sT2}')
            a(f's_cselect_b32 s{sT1}, 3072, s{sT1}')
            a(f's_cselect_b32 s{sJs}, {32 * 3072}, s{sJs}')
            a(f'v_and_b32 v{vJ2}, 7, v0')
            a(f'v_lshlrev_b32 v{vJ2}, 4, v{vJ2}')
            a(f'v_lshrrev_b32 v15, 3, v{vTid}')
            a(f'v_mad_u32_u24 v{vJ2}, v15, s{sT1}, v{vJ2}')
            for j in range(10):
                a(f'buffer_load_dwordx4 {vr(J2 + 4 * j, 4)}, v{vJ2}, {sr(S_WD, 4)}, s{sJo} offen')
                a(f's_add_u32 s{sJo}, s{sJo}, s{sJs}')
        a(f's_cmp_ge_u32 s{sG}, 64')
        a.snapshot('s4')
        a('s_cbranch_scc1 .Ls4')
        XR, WR = 16, J2
        vA, vRow, vS8 = 2, 3, 4
        a(f'v_lshrrev_b32 v{vRow}, 3, v{vTid}')
        a(f'v_and_b32 v{vS8}, 7, v0')
        a(f's_lshr_b32 s{sT0}, s{sG}, 3')
        a(f's_lshl_b32 s{sT0}, s{sT0}, 8')
        a(f's_and_b32 s{sT1}, s{sG}, 3')
        a(f's_lshl2_add_u32 s{sT0}, s{sT1}, s{sT0}')
        a(f's_bfe_u32 s{sT1}, s{sG}, 0x10002')
        a(f's_lshl1_add_u32 s{sT0}, s{sT1}, s{sT0}')
        a(f'v_and_b32 v5, 0xf0, v{vTid}')
        a(f'v_and_b32 v6, 1, v{vRow}')
        a(f'v_add3_u32 v5, v5, v6, s{sT0}')
        a(f's_movk_i32 s{sT1}, 1280')
        a(f'v_lshlrev_b32 v6, 4, v{vS8}')
        a(f'v_mad_u32_u24 v5, v5, s{sT1}, v6')
        for j in range(10):
            a(f'buffer_load_dwordx4 {vr(XR + 4 * j, 4)}, v5, {sr(S_X, 4)}, 0 offen offset:{128 * j}')
        if up == 1:
            job2_loads()
        self.stamp('sx_issued')
        self.gemm_ids()
        self.w_addr()
        vW, vRd, vSt = 5, 6, 7
        a(f's_movk_i32 s{sT1}, 528')
        a(f'v_lshlrev_b32 v{vW}, 3, v{vRow}')
        a(f'v_mad_u32_u24 v{vW}, v{vS8}, s{sT1}, v{vW}')
        a(f'v_and_b32 v{vRd}, 31, v0')
        a(f'v_lshlrev_b32 v{vRd}, 4, v{vRd}')
        a(f'v_lshrrev_b32 v8, 5, v{vTid}')
        a(f'v_mad_u32_u24 v{vRd}, v8, s{sT1}, v{vRd}')
        a(f's_lshl_b32 s{sT0}, s{sG}, 8')
        a(f'v_and_b32 v{vSt}, 15, v0')
        a(f'v_lshl_add_u32 v{vSt}, v{vSt}, 4, s{sT0}')
        a(f'v_lshrrev_b32 v8, 4, v{vTid}')
        a(f's_mov_b32 s{sT1}, {QS}')
        a(f'v_mad_u32_u24 v{vSt}, v8, s{sT1}, v{vSt}')
        for j in range(10):
            for o_ in range(2):
                a(f'ds_write_b64 v{vW}, {vr(XR + 4 * j + 2 * o_, 2)} offset:{j * 4224 + o_ * 256}')
        self.stamp('sx_data')
        if up == 2:
            job2_loads()
            a(f's_lshl_b32 s{sT0}, s{sG}, 8')
        a('s_waitcnt lgkmcnt(0)')
        a('s_barrier')
        self.stamp('sx_bar')
        XO = 96
        for j in range(10):
            a(f'ds_read_b128 {vr(XO + 4 * j, 4)}, v{vRd} offset:{j * 4224}')
        a(f's_mov_b32 s{sT1}, {XP4}')
        a(f's_mov_b32 s{sOne}, 0x3f803f80')
        for i in range(4):
            a(f'v_mov_b32 v{8 + i}, 0')
        for j in range(10):
            a(f'buffer_store_dwordx4 {vr(XO + 4 * j, 4)}, v{vSt}, {WS}, s{sT1} offen sc1')
            a(f's_add_u32 s{sT1}, s{sT1}, {16 * QS}')
            for i in range(4 * j, 4 * j + 4):
                a(f'v_dot2c_f32_bf16 v{8 + (i & 1)}, s{sOne}, v{XR + i}')
                a(f'v_dot2c_f32_bf16 v{10 + (i & 1)}, v{XR + i}, v{XR + i}')
        a('v_add_f32 v8, v8, v9')
        a('v_add_f32 v10, v10, v11')
        for m in ('quad_perm:[1,0,3,2]', 'quad_perm:[2,3,0,1]', 'row_half_mirror'):
            a(f'v_add_f32_dpp v8, v8, v8 {m} row_mask:0xf bank_mask:0xf')
            a(f'v_add_f32_dpp v10, v10, v10 {m} row_mask:0xf bank_mask:0xf')
        a(f'v_mul_f32 v8, {f32(1 / 640)}, v8')
        a(f'v_mul_f32 v10, {f32(1 / 640)}, v10')
        a('v_fma_f32 v10, -v8, v8, v10')
        a('v_max_f32 v10, 0, v10')
        a(f'v_add_f32 v10, {f32(1e-5)}, v10')
        a('v_rsq_f32 v10, v10')
        a(f'v_lshl_add_u32 v12, v{vRow}, 3, s{sT0}')
        a('v_mul_f32 v11, -v8, v10')
        a(f's_mov_b32 s{sT1}, {ST1}')
        vFl = 231
        a(f'buffer_load_dword v{vFl}, off, {sr(S_DBG, 4)}, 0 sc1')
        a('s_mov_b32 exec_lo, 0x01010101')
        a('s_mov_b32 exec_hi, 0x01010101')
        a(f'buffer_store_dwordx2 v[10:11], v12, {WS}, s{sT1} offen sc1')
        a('s_mov_b64 exec, -1')
        a('s_branch .Lr1')
        a('.Ls4:')
        a.fresh('s4')
        T4 = 10240
        a(f's_sub_u32 s{sT4}, s{sG}, 64')
        a(f's_lshr_b32 s{sT5}, s{sT4}, 2')
        a(f's_and_b32 s{sT4}, s{sT4}, 3')
        a(f's_mul_i32 s{sT0}, s{sT4}, 160')
        a(f's_lshl3_add_u32 s{sT0}, s{S_W}, s{sT0}')
        a(f's_mul_i32 s{sT0}, s{sT0}, 3072')
        a(f's_mul_i32 s{sT1}, s{sT5}, 3')
        a(f's_add_u32 s{sT1}, s{sT1}, 1')
        self.real_line(sT1, sT2)
        a(f's_lshl_b32 s{sT1}, s{sT1}, 7')
        a(f's_add_u32 s{sT0}, s{sT0}, s{sT1}')
        a('v_lshrrev_b32 v3, 3, v0')
        a('v_and_b32 v4, 7, v0')
        a(f'v_lshl_add_u32 v2, v4, 4, s{sT0}')
        a(f's_movk_i32 s{sT1}, 3072')
        a(f'v_mad_u32_u24 v2, v3, s{sT1}, v2')
        a(f's_mov_b32 s{sT0}, 0')
        for i in range(10):
            a(f'buffer_load_dwordx4 {vr(XR + 4 * i, 4)}, v2, {sr(S_WU if i & 1 else S_WG, 4)}, s{sT0} offen')
            if i & 1:
                a(f's_add_u32 s{sT0}, s{sT0}, {32 * 3072}')
        if up == 1:
            job2_loads()
        self.stamp('sx_issued')
        self.gemm_ids()
        self.w_addr()
        a(f's_lshl_b32 s{sT0}, s{S_W}, 9')
        a(f'v_lshl_add_u32 v5, v3, 6, s{sT0}')
        a('v_and_b32 v6, 1, v0')
        a('v_lshl_add_u32 v5, v6, 4, v5')
        a('v_bfe_u32 v6, v0, 1, 2')
        a('v_lshlrev_b32 v7, 5, v6')
        a('v_xor_b32 v5, v5, v7')
        a(f's_movk_i32 s{sT0}, {T4}')
        a(f'v_mad_u32_u24 v5, v6, s{sT0}, v5')
        a('v_xor_b32 v6, 32, v5')
        a('v_lshrrev_b32 v7, 5, v0')
        a('v_bfe_u32 v8, v0, 2, 2')
        a('v_lshl_add_u32 v7, v7, 3, v8')
        a('v_lshlrev_b32 v7, 6, v7')
        a('v_and_b32 v8, 3, v0')
        a('v_lshl_add_u32 v7, v8, 4, v7')
        a('v_bfe_u32 v8, v0, 4, 1')
        a('v_lshl_add_u32 v7, v8, 3, v7')
        a(f's_lshl_b32 s{sT1}, s{S_W}, 5')
        a(f'v_xor_b32 v7, s{sT1}, v7')
        a(f's_mul_i32 s{sT1}, s{S_W}, {T4}')
        a(f'v_add_u32 v7, s{sT1}, v7')
        for i in range(10):
            a(f'ds_write_b128 v{6 if i & 1 else 5}, {vr(XR + 4 * i, 4)} offset:{(i >> 1) * 2048}')
        self.stamp('sx_data')
        if up == 2:
            job2_loads()
        a('s_waitcnt lgkmcnt(0)')
        a('s_barrier')
        self.stamp('sx_bar')
        for j in range(10):
            for e in range(2):
                a(f'ds_read_b64_tr_b16 {vr(XO + 4 * j + 2 * e, 2)}, v7 offset:{1024 * j + 256 * e}')
        a(f's_lshl2_add_u32 s{sT0}, s{sT5}, s{S_W}')
        a(f's_lshl2_add_u32 s{sT0}, s{sT0}, s{sT4}')
        a(f's_mul_i32 s{sT0}, s{sT0}, 10240')
        a(f's_add_u32 s{sT0}, s{sT0}, {W45F}')
        a('v_lshlrev_b32 v9, 4, v0')
        a(f'buffer_load_dword v{vFl}, off, {sr(S_DBG, 4)}, 0 sc1')
        for j in range(10):
            if j and j & 3 == 0:
                a(f's_add_u32 s{sT0}, s{sT0}, 4096')
            a(f'buffer_store_dwordx4 {vr(XO + 4 * j, 4)}, v9, {WS}, s{sT0} offen offset:{(j & 3) * 1024} sc1')
        a('.Lr1:')
        a.fresh()
        self.stamp('sx_st')
        o = self.opt
        assert up >= 1
        a(f's_mov_b32 s{sG}, s{sG2}')
        a(f's_mov_b32 s{sSide}, s{sG2}')
        self.w_select()
        WB = 49152
        T0 = 216
        na, nb, nc = o.get('sw_a', 10), o.get('sw_b', 10), o.get('sw_c', 12)
        assert na + nb + nc <= 32

        def end_r1(younger):
            self.stamp('sx_ld2')
            a(f's_waitcnt vmcnt({younger})')
            a('s_barrier')
            self.stamp('sx_dr')
            self.arrive_start([(sArr, C_FX)], lambda: self.check(S_DBG, '0', 1, vFl))
        a(f's_cmp_ge_u32 s{sG}, 48')
        a('s_cbranch_scc1 .Ls2')
        wl = self.w_loads_main()
        a(wl[:na])
        v8, v9, v10 = T0, T0 + 1, T0 + 2
        a(f'v_lshrrev_b32 v{vRow}, 3, v{vTid}')
        a(f'v_and_b32 v{vS8}, 7, v0')
        a(f's_movk_i32 s{sT1}, 1344')
        a(f'v_lshlrev_b32 v{vW}, 4, v{vS8}')
        a(f'v_mad_u32_u24 v{vW}, v{vRow}, s{sT1}, v{vW}')
        a(f'v_lshrrev_b32 v{v8}, 4, v0')
        a(f'v_bfe_u32 v{v9}, v0, 2, 2')
        a(f'v_lshl_add_u32 v{v8}, v{v8}, 3, v{v9}')
        a(f's_mul_i32 s{sT0}, s{S_W}, 320')
        a(f'v_mov_b32 v{v9}, s{sT0}')
        a(f'v_mad_u32_u24 v{v8}, v{v8}, s{sT1}, v{v9}')
        a(f'v_and_b32 v{v9}, 3, v0')
        a(f'v_lshl_add_u32 v{v10}, v{v9}, 3, v{v8}')
        a(f'v_lshl_add_u32 v{v8}, v{v9}, 4, v{v8}')
        end_r1(na)
        q = wl[na:na + nb]
        for j in range(10):
            a(f'ds_write_b128 v{vW}, {vr(WR + 4 * j, 4)} offset:{WB + 128 * j}')
            if q and j < o.get('sw_b1', 4):
                a(q.pop(0))
        self.arrive_finish([(sArr, 11, C_FXR)], v9)
        self.stamp(1)
        a(q)
        a('s_barrier')
        for cc in range(2):
            for nt in range(5):
                for e in range(2):
                    off = WB + cc * 160 + e * 4 * 1344 + ((nt >> 1) * 64 + (nt & 1) * 8)
                    a(f'ds_read_b64_tr_b16 {ar(4 * (5 * cc + nt) + 2 * e, 2)}, v{v10 if nt == 4 else v8} offset:{off}')
        a(f's_mul_i32 s{sT0}, s{S_W}, 96')
        a(f's_add_u32 s{sT0}, s{sT0}, s{sG}')
        a(f's_mul_i32 s{sT0}, s{sT0}, 5120')
        a(f's_add_u32 s{sT0}, s{sT0}, {WDF}')
        a(f'v_lshlrev_b32 v{v9}, 4, v0')
        for cc in range(2):
            for nt in range(5):
                if nt == 4:
                    a(f's_add_u32 s{sT0}, s{sT0}, 4096')
                a(f'buffer_store_dwordx4 {ar(4 * (5 * cc + nt), 4)}, v{v9}, {WS}, s{sT0} offen offset:{(nt & 3) * 1024} sc1')
            a(f's_add_u32 s{sT0}, s{sT0}, {48 * 5120 - 4096}')
        a('s_branch .Lr2')
        a('.Ls2:')
        a.fresh()
        AC = T0 + 4
        for i in range(10, 20):
            a(f'buffer_load_dwordx4 {vr(J2 + 4 * i, 4)}, v{vJ2}, {sr(S_WD, 4)}, s{sJo} offen')
            a(f's_add_u32 s{sJo}, s{sJo}, s{sJs}')
        for i in range(8):
            a(f'v_mov_b32 v{AC + i}, 0')
        a(f's_mov_b32 s{sT4}, 0x3f80')
        a(f's_mov_b32 s{sT3}, 0x3f800000')
        end_r1(10)
        q = self.w_loads_main()[:na + nb]
        for i in range(80):
            a(f'v_dot2c_f32_bf16 v{AC + 2 * (i & 3)}, s{sT4}, v{J2 + i}')
            a(f'v_dot2c_f32_bf16 v{AC + 1 + 2 * (i & 3)}, s{sT3}, v{J2 + i}')
            if i == 39:
                self.arrive_finish([(sArr, 11, C_FXR)], T0)
                self.stamp(1)
            if i & 1 and i > 39 and q:
                a(q.pop(0))
        a(q)
        a(f'v_lshlrev_b32 v5, 5, v{vTid}')
        a(f'ds_write_b128 v5, {vr(AC, 4)} offset:{WB}')
        a(f'ds_write_b128 v5, {vr(AC + 4, 4)} offset:{WB + 16}')
        a('s_waitcnt lgkmcnt(0)')
        a('s_barrier')
        a('v_bfe_u32 v6, v0, 1, 4')
        a('v_and_b32 v7, 32, v0')
        a('v_add_u32 v6, v6, v7')
        a('v_and_b32 v7, 1, v0')
        a('v_lshl_add_u32 v6, v7, 4, v6')
        a('v_lshlrev_b32 v6, 2, v6')
        for i in range(16):
            a(f'ds_read2st64_b32 {vr(J2 + 2 * i, 2)}, v6 offset0:{WB // 256 + 2 * i} offset1:{WB // 256 + 2 * i + 1}')
        for i in range(1, 16):
            a(f'v_pk_add_f32 {vr(J2, 2)}, {vr(J2, 2)}, {vr(J2 + 2 * i, 2)}')
        a(f'v_add_f32 v{J2}, v{J2}, v{J2 + 1}')
        a(f'v_cvt_pk_bf16_f32 v{T0}, v{J2}, v{J2}')
        a(f'v_lshlrev_b32 v7, 16, v{T0}')
        a(f'v_sub_f32 v7, v{J2}, v7')
        a(f'v_cvt_pk_bf16_f32 v{T0 + 1}, v7, v7')
        a(f's_sub_u32 s{sT0}, s{sG}, 48')
        a(f's_lshl_b32 s{sT0}, s{sT0}, 9')
        a(f's_add_u32 s{sT0}, s{sT0}, {CSF}')
        a('v_lshlrev_b32 v6, 3, v0')
        a(f'buffer_store_dwordx2 {vr(T0, 2)}, v6, {WS}, s{sT0} offen sc1')
        a('.Lr2:')
        a.fresh()
        self.stamp(2)
        a(f's_lshl_b32 s{sT0}, s{sG}, 8')
        a(f's_add_u32 s{sT0}, s{sT0}, {C_F3 * 256}')
        a('v_mov_b32 v4, 0')
        a('v_lshlrev_b32 v5, 2, v0')
        a(f'buffer_store_dword v4, v5, {WS}, s{sT0} offen sc1')
        a(self.clear_pst(2))
        n0 = na + nb + nc
        a(wl[na + nb:n0])
        a(f's_lshl_b32 s{sT4}, s{sX}, 8')
        a(f's_add_u32 s{sT4}, s{sT4}, {C_FXR * 256}')
        a(f's_add_u32 s{sFW}, s{sT4}, {(C_FWR - C_FXR) * 256}')
        a.drain_stores()
        a('s_waitcnt lgkmcnt(0)')
        a('s_barrier')
        self.stamp(6)
        self.arrive_start([(sArr, C_B1), (sJs, C_FW)])
        a(f'buffer_load_dword v1, off, {WS}, s{sT4} sc1')

        def mid():
            self.arrive_finish([(sJs, 11, C_FWR), (sArr, 31, C_B2)], T0)
            self.check(S_WS, f's{sT4}', 8, 1)
        self.side_window(wl[n0:], mid)
        a(f's_waitcnt vmcnt({self.opt["wd_pre"]})')
        self.stamp(7)
        a('s_branch .Ljoin')

    def signal(self, soff):
        a = self.a
        if self.opt['sig'] == 's':
            a(f's_atomic_add s{sU2}, {sr(S_WS, 2)}, {soff}')
        else:
            a('s_mov_b64 exec, 1')
            a(f'buffer_atomic_add v{self.vOne}, off, {WS}, {soff} sc1')
            a('s_mov_b64 exec, -1')

    def gemms(self):
        a = self.a
        o = self.opt
        t, t2 = self.vTmp, self.vTmp2
        L, AB = 0, 8
        vRD = 4
        vAL, vAS, vA2, vWD, vWD2, vCS, vFl = 1, 2, 3, 247, 255, 246, 254
        vW5 = 252
        vS = 232
        BP = 236
        TM = 242
        ACC = 168
        RING1, CS, RING2 = 124, 148, 240
        sF3s, sF3p = sQ, sM
        sRB2w = sG
        kap = [[3 * c + ((pi + 1) % 3 if c & 1 else pi) for c in range(4)] for pi in range(3)]
        wd = []
        for i in range(60):
            g = []
            if i % 5 == 0:
                g.append(f's_mov_b32 s{sWoff}, {WDF + 5120 * kap[i // 20][i // 5 % 4]}')
            g.append(f'buffer_load_dwordx4 {ar(4 * i, 4)}, v{vWD2 if i % 5 == 4 else vWD}, {WS}, s{sWoff} offen offset:{(i % 5 & 3) * 1024} sc1')
            wd.append(g)
        if o.get('nowd'):
            wd = [[] for _ in wd]
        real, setup0 = a, []
        a = setup0.append
        a(f's_and_b32 s{sT0}, s{sJ}, 7')
        a(f's_lshl2_add_u32 s{sT0}, s{sT0}, s{S_W}')
        a(f's_mul_i32 s{sT0}, s{sT0}, {12 * 5120}')
        a(f'v_lshl_add_u32 v{vWD}, v0, 4, s{sT0}')
        a(f'v_add_u32 v{vWD2}, 0x1000, v{vWD}')
        a(f'v_lshlrev_b32 v{vRD}, 4, v0')
        for s in range(1, 4):
            a(f'v_xor_b32 v{t}, {16 * s}, v{vRD}')
            a(f'v_add_u32 v{vRD + s}, {TILE * s}, v{t}')
        a(f'v_lshl_add_u32 v{vW5}, s{S_W}, 10, v{vRD}')
        a(f'v_lshl_add_u32 v{vW5 + 1}, s{S_W}, 10, v{vRD + 1}')
        a(f's_lshl2_add_u32 s{sT0}, s{sRB}, s{S_W}')
        a(f's_lshl_b32 s{sT1}, s{sT0}, 8')
        a(f'v_and_b32 v{t}, 15, v0')
        a(f'v_lshlrev_b32 v{vA2}, 4, v{t}')
        a(f'v_add_u32 v{t}, s{sT1}, v{vA2}')
        a(f'v_lshrrev_b32 v{t2}, 4, v0')
        a(f's_mov_b32 s{sT1}, {QS}')
        a(f'v_mad_u32_u24 v{vAL}, v{t2}, s{sT1}, v{t}')
        a(f'v_lshl_add_u32 v{vA2}, v{t2}, 9, v{vA2}')
        a(f's_mul_i32 s{sT1}, s{sT0}, 98304')
        a(f'v_lshl_add_u32 v{vAS}, v0, 4, s{sT1}')
        a(f's_lshr_b32 s{sF3s}, s{sT0}, 1')
        a(f's_lshl_b32 s{sF3s}, s{sF3s}, 8')
        a(f's_add_u32 s{sF3s}, s{sF3s}, {C_F3 * 256}')
        a(f's_lshr_b32 s{sT1}, s{sJ}, 3')
        a(f's_lshl2_add_u32 s{sF3p}, s{sX}, s{sT1}')
        a(f's_lshl_b32 s{sRB2w}, s{sF3p}, 1')
        a(f's_lshl_b32 s{sF3p}, s{sF3p}, 8')
        a(f's_add_u32 s{sF3p}, s{sF3p}, {C_F3 * 256}')
        for i in range(4):
            a(f's_add_u32 s{sT0}, s{sRot}, {i}')
            a(f's_and_b32 s{sT0}, s{sT0}, 3')
            a(f's_mul_i32 s{sT0}, s{sT0}, {40 * QS}')
            a(f's_add_u32 s{sAB + i}, s{sT0}, {HP4}')
        a(f'v_and_b32 v{t}, 3, v0')
        a(f'v_bfe_u32 v{t2}, v0, 2, 1')
        a(f'v_lshl_add_u32 v{t}, v{t2}, 3, v{t}')
        a(f'v_bfe_u32 v{t2}, v0, 4, 1')
        a(f'v_lshl_add_u32 v{t}, v{t2}, 2, v{t}')
        a(f'v_lshlrev_b32 v{t}, 4, v{t}')
        a(f'v_bfe_u32 v{t2}, v0, 3, 1')
        a(f's_movk_i32 s{sT1}, 12288')
        a(f'v_mad_u32_u24 v{vCS}, v{t2}, s{sT1}, v{t}')
        for i in range(4):
            a(f'v_mov_b32 v{vS + i}, 0')
        a(f's_mov_b32 s{sOne}, 0x3f803f80')
        a(f's_mov_b32 s{sU2}, 1')
        a(f's_lshl_b32 s{sT2}, s{sA}, 7')
        a(f's_add_u32 s{sT2}, s{sT2}, {CSF}')
        a(f's_lshl_b32 s{sT3}, s{sB}, 7')
        a(f's_add_u32 s{sT3}, s{sT3}, {CSF}')
        a(f's_lshl_b32 s{sA}, s{sA}, 10')
        a(f's_add_u32 s{sA}, s{sA}, {ACT}')
        a(f's_lshl_b32 s{sB}, s{sB}, 10')
        a(f's_add_u32 s{sB}, s{sB}, {ACT}')
        a(f's_mul_i32 s{sT5}, s{S_W}, {12 * 2048}')
        for lam in range(4):
            a(f's_xor_b32 s{sT0}, s{S_W}, {lam}')
            a(f's_lshr_b32 s{sT1}, s{sT0}, 1')
            a(f's_add_u32 s{sT1}, s{sT1}, s{sRB2w}')
            a(f's_mul_i32 s{sT1}, s{sT1}, 98304')
            a(f's_and_b32 s{sT0}, s{sT0}, 1')
            a(f's_lshl_b32 s{sT0}, s{sT0}, 8')
            a(f's_add_u32 s{sT0}, s{sT0}, s{sT5}')
            a(f's_add_u32 s{sL[lam]}, s{sT1}, s{sT0}')
        sRes, sOutB, sQS = 20, 21, 22
        a(f's_lshr_b32 s{sT0}, s{S_W}, 1')
        a(f's_add_u32 s{sT0}, s{sT0}, s{sRB2w}')
        a(f's_lshl_b32 s{sRes}, s{sT0}, 8')
        a(f's_and_b32 s{sT4}, s{S_W}, 1')
        a(f's_lshl3_add_u32 s{sRes}, s{sT4}, s{sRes}')
        a(f's_and_b32 s{sT5}, s{sJ}, 7')
        a(f's_mul_i32 s{sT6}, s{sT5}, {20 * QS}')
        a(f's_add_u32 s{sRes}, s{sRes}, s{sT6}')
        a(f's_mov_b32 s{sQS}, {QS}')
        a(f's_lshr_b32 s{sOutB}, s{sRB2w}, 3')
        a(f's_lshl_b32 s{sOutB}, s{sOutB}, 8')
        a(f's_and_b32 s{sT6}, s{sT0}, 3')
        a(f's_lshl2_add_u32 s{sOutB}, s{sT6}, s{sOutB}')
        a(f's_bfe_u32 s{sT6}, s{sRB2w}, 0x10002')
        a(f's_lshl1_add_u32 s{sOutB}, s{sT6}, s{sOutB}')
        a(f's_add_u32 s{sOutB}, s{sOutB}, s{sT4}')
        a(f's_mul_i32 s{sOutB}, s{sOutB}, 1280')
        a(f's_mul_i32 s{sT6}, s{sT5}, 160')
        a(f's_add_u32 s{sOutB}, s{sOutB}, s{sT6}')
        a(f's_lshl_b32 s{sU0}, s{sCB}, 8')
        a(f's_add_u32 s{sU0}, s{sU0}, {PST}')
        a(f's_mov_b32 s{sU1}, {PST}')
        a(f's_and_b32 s{sCB}, s{sCB}, 3')
        a(f's_mul_i32 s{sCB}, s{sCB}, 10')
        a = real
        nw = 40 - 8 * o.get('defer', 2)
        wdp = [wd.pop(0) for _ in range(o['wd_pre'])]

        def mixer(ww, setup, lq, per=6):
            def some(n, nl):
                for i in range(n):
                    a(ww.pop(0))
                    for _ in range(per):
                        if setup:
                            a(setup.pop(0))
                    for _ in range(((i + 1) * nl) // n - (i * nl) // n):
                        if lq:
                            a(lq.pop(0))
            return some

        def side_window(wl, fx_check):
            ww, setup = self.w_writes_main()[:nw], list(setup0)
            self.w_write_addr()
            lq = list(wl)
            hold = [x for x in setup if f'v{vW5},' in x or f's{sU1},' in x]
            setup = [x for x in setup if x not in hold]
            some = mixer(ww, [], lq)
            nl = len(lq)
            n_ = min(nl, nw - 8)
            assert all(40 - nl + (i * nl) // n_ >= 8 * (i // 8 + 1) for i in range(n_))
            some(n_, nl)
            fx_check()
            lq += self.w_loads_tail()
            if o.get('outpf', 1):
                a(f's_lshr_b32 s{sT0}, s{sSide}, 3')
                a(f's_lshl2_add_u32 s{sT0}, s{sT0}, s{S_W}')
                a(f's_mul_i32 s{sT0}, s{sT0}, {22 * 320}')
                a(f's_and_b32 s{sSide}, s{sSide}, 7')
                a(f's_mul_i32 s{sSide}, s{sSide}, {256 * 1280}')
                a(f's_add_u32 s{sSide}, s{sSide}, s{sT0}')
                a(f'v_min_u32 v{TM}, 21, v0')
                a(f'v_mul_u32_u24 v{TM}, 320, v{TM}')
                lq.insert(o.get('pf_pos', 20), f'buffer_load_dword a255, v{TM}, {sr(S_OUT, 4)}, s{sSide} offen offset:160')
            lq.append(f'buffer_load_dword v{TM + 1}, off, {WS}, s{sFW} sc1')
            mixer(ww, setup, lq)(len(ww), len(lq))
            a(setup)
            a(hold)
            if wdp:
                self.check(S_WS, f's{sFW}', 8, TM + 1)
            a(wdp)
        self.side_window = side_window
        ww = self.w_writes_main()
        setup = self.win_pre + setup0
        lq = list(self.win_loads)
        n1, n2 = o.get('ww1', 13), o.get('ww2', 7)
        self.w_write_addr()
        a('s_barrier')
        self.stamp('hbar')
        some = mixer(ww, setup, lq, o.get('su_per', 7))
        assert 5 * o.get('su_per', 7) >= len(self.win_pre)
        some(5, 0)
        fwe = o.get('fwe', 1)
        if wdp and fwe:
            a(f'buffer_load_dword v{TM + 1}, off, {WS}, s{sFW} sc1')
        hold = [x for x in setup if isinstance(x, str) and (f'v{vW5},' in x or f's{sU1},' in x)]
        setup[:] = [x for x in setup if x not in hold]
        some(n1 - 5, o.get('l1', 8))
        self.stamp('hissued')
        a.drain_stores()
        self.stamp('hdrained')
        a('s_barrier')
        self.stamp('hbar2')
        self.arrive_start([(sArr, C_B1)])
        if wdp and not fwe:
            a(f'buffer_load_dword v{TM + 1}, off, {WS}, s{sFW} sc1')
        if wdp and fwe:
            self.check(S_WS, f's{sFW}', 8, TM + 1)
            nl2 = len(lq) + o.get('l2', 8)
            lq += wdp
            some(n2, nl2)
        else:
            some(n2, len(lq))
        self.arrive_finish([(sArr, 31, C_B2)], TM)
        self.stamp('arrived')
        if wdp and not fwe:
            self.check(S_WS, f's{sFW}', 8, TM + 1)
            lq += wdp
        some(nw - n1 - n2, len(lq))
        a(setup)
        a(hold)
        a(lq)
        a('.Ljoin:')
        self.stamp('wwritten')
        a(f's_lshl_b32 s{sT0}, s{sX}, 8')
        a(f's_add_u32 s{sT0}, s{sT0}, {C_B2 * 256}')
        self.warm([[3, 6], [4, 7], [5]])
        with self.wave0():
            self.spin(S_WS, f's{sT0}', 8, t)
        self.stamp('polled')
        a('s_waitcnt lgkmcnt(0)')
        a('s_barrier')
        self.stamp(8)
        al = []
        for j in range(40):
            if j % 10 == 0:
                al.append([f'buffer_load_dwordx4 {vr(AB + 4 * j, 4)}, v{vAL}, {WS}, s{sAB + j // 10} offen sc1'])
            else:
                al.append([f's_add_u32 s{sT1}, s{sAB + j // 10}, {(j % 10) * 4 * QS}',
                           f'buffer_load_dwordx4 {vr(AB + 4 * j, 4)}, v{vAL}, {WS}, s{sT1} offen sc1'])
        al.append(f'buffer_load_dwordx4 {ar(CS, 4)}, v{vCS}, {WS}, s{sT2} offen sc1')
        al.append(f'buffer_load_dwordx4 {ar(CS + 4, 4)}, v{vCS}, {WS}, s{sT2} offen offset:256 sc1')
        al.append(f'buffer_load_dwordx4 {ar(CS + 8, 4)}, v{vCS}, {WS}, s{sT3} offen sc1')
        for _ in range(o['a_ahead']):
            a(al.pop(0))

        def rd(dst, slot, j):
            return f'ds_read_b128 {ar(dst, 4)}, v{vRD + slot} offset:{1024 * j}'

        def swaps(j):
            return [f'v_permlane16_swap_b32 v{AB + 4 * j + e}, v{AB + 4 * j + 2 + e}' for e in range(2)]

        def acc(slot):
            return vr(ACC + 16 * slot, 16)
        wtail = [f'ds_write_b128 v{vW5 + (i & 1)}, {ar(160 + 4 * i, 4)} offset:{(i >> 1) * 4096}' for i in range(20)]
        if o.get('nowt'):
            wtail = [[] for _ in wtail]
        C0, C1, R = vS, vS + 1, vS + 2
        c0 = -2.0 * 0.7978845608028654 * 1.4426950408889634
        G = ACC + 48
        gather = [f'buffer_load_dwordx2 {vr(G + 2 * s, 2)}, v{self.vPS}, {WS}, s{sU1} offen offset:{256 * s} sc1'
                  for s in range(8)]
        valid = [f'v_or3_b32 v{t}, v{G + 1}, v{G + 3}, v{G + 5}', f'v_or3_b32 v{t2}, v{G + 7}, v{G + 9}, v{G + 11}',
                 f'v_or3_b32 v{t}, v{t}, v{G + 13}, v{G + 15}', f'v_or_b32 v{t}, v{t}, v{t2}',
                 f'v_cmp_gt_i32 vcc, 0, v{t}']

        def chk_stats():
            slow, back = a.label('slow'), a.label('back')
            a('s_nop 1')
            a(f's_cbranch_vccnz {slow}')
            a(f'{back}:')

            def cold():
                top = a.label('top')
                a(f'{slow}:')
                with a.untracked():
                    a(f's_mov_b32 s{sSpin}, {SPIN}')
                    a(f'{top}:')
                    a(gather)
                    a('s_waitcnt vmcnt(0)')
                    a(valid)
                    a(f's_sub_u32 s{sSpin}, s{sSpin}, 1')
                    a(f's_cbranch_scc1 {back}')
                    a('s_nop 3')
                    a(f's_cbranch_vccnz {top}')
                    a(f's_branch {back}')
            self.cold.append(cold)
        halves = [
            f'v_add_f32 v{vS}, v{vS}, v{vS + 1}',
            f'v_add_f32 v{vS + 2}, v{vS + 2}, v{vS + 3}',
            f'v_mov_b32 v{vS + 1}, v{vS}',
            f'v_mov_b32 v{vS + 3}, v{vS + 2}',
            f'v_cmp_gt_u32 vcc, 32, v{L}',
            f'v_permlane32_swap_b32 v{vS}, v{vS + 1}',
            f'v_permlane32_swap_b32 v{vS + 2}, v{vS + 3}']
        pub = halves + [
            f'v_add_f32 v{G}, v{vS}, v{vS + 1}',
            f'v_add_f32 v{G + 1}, v{vS + 2}, v{vS + 3}',
            f'v_and_b32 v{G + 1}, 0x7fffffff, v{G + 1}',
            ['s_mov_b32 exec_hi, 0',
             f'buffer_store_dwordx2 {vr(G, 2)}, v{self.vPS}, {WS}, s{sU0} offen sc1',
             's_mov_b32 exec_hi, -1']]
        st = valid + [chk_stats]
        for w_ in range(2):
            g = G + w_
            st += [f'v_add_f32 v{g}, v{g}, v{g + 2}', f'v_add_f32 v{g + 4}, v{g + 4}, v{g + 6}',
                   f'v_add_f32 v{g + 8}, v{g + 8}, v{g + 10}', f'v_add_f32 v{g + 12}, v{g + 12}, v{g + 14}',
                   f'v_add_f32 v{vS + 2 * w_}, v{g}, v{g + 4}', f'v_add_f32 v{vS + 2 * w_ + 1}, v{g + 8}, v{g + 12}']
        st += halves + [
            f'v_add_f32 v{vS}, v{vS}, v{vS + 1}',
            f'v_add_f32 v{vS + 2}, v{vS + 2}, v{vS + 3}',
            f'v_mul_f32 v{vS}, {f32(-1 / 640)}, v{vS}',
            f'v_mul_f32 v{vS + 2}, {f32(1 / 640)}, v{vS + 2}',
            f'v_cvt_pk_bf16_f32 v{t}, v{vS}, v{vS}',
            f'v_fma_f32 v{R}, -v{vS}, v{vS}, v{R}',
            f'v_lshlrev_b32 v{t}, 16, v{t}',
            f'v_max_f32 v{R}, 0, v{R}',
            f'v_sub_f32 v{t2}, v{vS}, v{t}',
            f'v_add_f32 v{R}, {f32(1e-5)}, v{R}',
            f'v_cvt_pk_bf16_f32 v{t}, v{t}, v{t2}',
            f'v_rsq_f32 v{vS + 3}, v{R}',
            f'v_cndmask_b32 v{BP + 2}, 0, v{t}, vcc',
            f'v_cndmask_b32 v{BP + 3}, 0, v{t}, vcc',
            f'v_mul_f32 v{C0}, {f32(c0)}, v{vS + 3}',
            f'v_mul_f32 v{t}, v{vS + 3}, v{vS + 3}',
            f'v_mul_f32 v{t}, {f32(0.044715)}, v{t}',
            f'v_mul_f32 v{C1}, v{t}, v{C0}',
        ]

        def csm(tile, slot, first):
            b = vr(BP, 4) if tile & 1 else vr(BP + 2, 4)
            return f'v_mfma_f32_32x32x16_bf16 {acc(slot)}, {ar(CS + 4 * (tile >> 1), 4)}, {b}, {"0" if first else acc(slot)}'

        def pick(r0, r1):
            a(f's_set_gpr_idx_on s{sCB}, gpr_idx(SRC0)')
            a('s_nop 0')
            for r in range(r0, r1):
                a(f'v_mov_b32_e32 v{G + r}, v{AB + r}')
            a('s_set_gpr_idx_off')
        for j in range(2):
            for s in range(3):
                a(rd(RING1 + 12 * j + 4 * s, s, j))
        a(swaps(0))
        self.stamp('a0')
        p2 = [(3, 3, j) for j in range(40)] + [(4, 0, j) for j in range(40)] + [(5, 1, j) for j in range(40)]
        gq = list(gather)
        GJ, SJ = o.get('gather_j', 22), o.get('stat_j', 33)
        B1, B2 = 21, 33
        nwd1 = min(o.get('wd_p1', 6), 31 - o['wd_pre'])
        assert o['a_ahead'] <= (14 if o.get('defer', 2) == 2 else 23)
        for j in range(40):
            base = RING1 + 12 * (j & 1)
            self.stamp(f'p{j}')
            a.need(ar(base, 12))
            for s in range(3):
                c = '0' if j == 0 else acc(s)
                a(f'v_mfma_f32_32x32x16_bf16 {acc(s)}, {ar(base + 4 * s, 4)}, {vr(AB + 4 * j, 4)}, {c}')
                if j < 38:
                    a(rd(base + 4 * s, s, j + 2))
                else:
                    i = (j - 38) * 3 + s
                    if i < 4:
                        a(rd(RING2 + 4 * i, p2[i][1], p2[i][2]))
                if s == 0 and j < 39:
                    a(swaps(j + 1))
                if s == 1 and (B1 < j <= B1 + 10 or B2 < j):
                    a(wtail.pop(0))
                if s != 1 and j >= GJ and gq:
                    a(gq.pop(0))
                if s == 2:
                    if al:
                        a(al.pop(0))
                    elif nwd1 and not gq and j < o.get('wd1_hi', 40):
                        a(wd.pop(0))
                        nwd1 -= 1
                if j not in (8, 9) and ww:
                    if s == 0:
                        while len(ww[0]) > 1:
                            a(ww[0].pop(0))
                    if s == 1:
                        a(ww.pop(0))
                if s == 2 and j not in (7, 8) and ww:
                    a(ww[0].pop(0))
                    a(ww[0].pop(0))
                if j == 19 and s == 1:
                    assert not ww
                    for i in (0, 1, 4, 5):
                        a(f'v_mov_b32 v{BP + i}, 0')
                if j == 8 and s == 1:
                    pick(0, 4)
                if j == 9 and s == 1:
                    pick(4, 10)
                if j in (10, 11) and s != 1:
                    for _ in range(3):
                        if pub:
                            a(pub.pop(0))
                if j >= SJ:
                    for _ in range((3, 0 if j > B2 else 5, 4)[s]):
                        if st:
                            a(st.pop(0))
            if j in (B1, B2):
                a('s_barrier')
            if j == 9:
                for r in range(10):
                    a(f'v_dot2c_f32_bf16 v{vS + (r & 1)}, s{sOne}, v{G + r}')
                    a(f'v_dot2c_f32_bf16 v{vS + 2 + (r & 1)}, v{G + r}, v{G + r}')
        assert not pub and not al and not st
        a(st)
        RES, vRes, vRes2 = 200, vAL, vCS
        res_addr = [
            f'v_and_b32 v{vRes}, 15, v{L}',
            f'v_lshl_add_u32 v{vRes2}, v{vRes}, 4, s{sRes}',
            f'v_lshrrev_b32 v{vRes}, 4, v{L}',
            f'v_mad_u32_u24 v{vRes2}, v{vRes}, s{sQS}, v{vRes2}',
            f'v_mad_u32_u24 v{vRes}, v{vRes}, s{sQS}, v{vRes2}',
        ]
        a('s_barrier')
        for tl in range(3):
            a(csm(tl, tl, False))
            a(res_addr if tl == 0 else wtail.pop(0))
        self.stamp(9)

        def epi(tile, slot, packed=False):
            b = ACC + 16 * slot
            tm = [TM, TM + 1, TM + 2, TM + 3]
            ops = []
            for h in range(2):
                g, u = b + 8 * h, b + 8 * h + 4
                if packed:
                    P = lambda r, i: vr(r + 2 * i, 2)
                    cc, rr = vr(C0, 2), vr(R, 2)
                    ops += [(1, f'v_pk_mul_f32 {P(TM, i)}, {P(g, i)}, {P(g, i)}') for i in range(2)]
                    ops += [(1, f'v_pk_fma_f32 {P(TM, i)}, {P(TM, i)}, {cc}, {cc} op_sel:[0,1,0] op_sel_hi:[1,1,0]') for i in range(2)]
                    ops += [(1, f'v_pk_mul_f32 {P(u, i)}, {P(u, i)}, {P(g, i)}') for i in range(1)]
                    ops += [(1, f'v_pk_mul_f32 {P(TM, i)}, {P(TM, i)}, {P(g, i)}') for i in range(2)]
                    ops += [(2, f'v_exp_f32 v{tm[i]}, v{tm[i]}') for i in range(4)]
                    ops += [(1, f'v_pk_mul_f32 {P(u, i)}, {P(u, i)}, {P(g, i)}') for i in range(1, 2)]
                    ops += [(1, f'v_pk_fma_f32 {P(TM, i)}, {P(TM, i)}, {rr}, {rr} op_sel:[0,0,0] op_sel_hi:[1,0,0]') for i in range(2)]
                    ops += [(2, f'v_rcp_f32 v{tm[i]}, v{tm[i]}') for i in range(4)]
                    ops += [(1, f'v_pk_mul_f32 {P(u, i)}, {P(u, i)}, {P(TM, i)}') for i in range(2)]
                    ops += [(1, f'v_cvt_pk_bf16_f32 v{b + 2 * h + i}, v{u + 2 * i}, v{u + 2 * i + 1}') for i in range(2)]
                    continue
                ops += [(1, f'v_mul_f32 v{tm[i]}, v{g + i}, v{g + i}') for i in range(4)]
                ops += [(1, f'v_fma_f32 v{tm[i]}, v{tm[i]}, v{C1}, v{C0}') for i in range(4)]
                ops += [(1, f'v_mul_f32 v{tm[i]}, v{tm[i]}, v{g + i}') for i in range(4)]
                for i in range(4):
                    ops += [(2, f'v_exp_f32 v{tm[i]}, v{tm[i]}'), (1, f'v_mul_f32 v{u + i}, v{u + i}, v{g + i}')]
                ops += [(1, f'v_fma_f32 v{tm[i]}, v{tm[i]}, v{R}, v{R}') for i in range(4)]
                ops += [(2, f'v_rcp_f32 v{tm[i]}, v{tm[i]}') for i in range(4)]
                ops += [(1, f'v_mul_f32 v{u + i}, v{u + i}, v{tm[i]}') for i in range(4)]
                ops += [(1, f'v_cvt_pk_bf16_f32 v{b + 2 * h + i}, v{u + 2 * i}, v{u + 2 * i + 1}') for i in range(2)]
            so = sA if tile < 4 else sB
            txt = f'buffer_store_dwordx4 {vr(b, 4)}, v{vAS}, {WS}, s{so} offen offset:{(tile & 3) * 1024} sc1'
            ops.append((5, (lambda: a(txt, tag=f'act{tile}')) if not o.get('nost') else []))
            if o.get('noepi'):
                ops = [(c_, x if callable(x) else []) for c_, x in ops]
            return ops

        G2 = 72
        FR = [[8 + 4 * i for i in range(16)],
              [152 + 4 * i for i in range(4)] + [200 + 4 * i for i in range(8)] + [168 + 4 * i for i in range(4)],
              [8 + 4 * i for i in range(16)]]
        order = [[(c, lam) for lam in (3, 2, 1, 0) for c in range(4)]] * 3

        def act_ld(pi, n):
            c, lam = order[pi][n]
            if o.get('noact'):
                return []
            return [f's_add_u32 s{sT1}, s{sL[lam]}, {ACT + 2048 * kap[pi][c]}',
                    f'buffer_load_dwordx4 {vr(FR[pi][n], 4)}, v{vA2}, {WS}, s{sT1} offen sc1']

        def sig(pi, tag):
            def f():
                self.stamp(f'presig{pi}')
                a.need_tag(tag)
                self.signal(f's{sF3s}')
                self.stamp(f'sig{pi}')
                if pi < 2:
                    a(f's_add_u32 s{sF3s}, s{sF3s}, {32 * 256}')
            return f

        def poll_ld():
            return f'buffer_load_dword v{vFl}, off, {WS}, s{sF3p} sc1'

        def poll_chk(pi):
            def f():
                self.stamp(f'prechk{pi}')
                self.check(S_WS, f's{sF3p}', 32, vFl)
                self.stamp(f'chk{pi}')
                if pi < 2:
                    a(f's_add_u32 s{sF3p}, s{sF3p}, {32 * 256}')
            return f
        RES, vRes, vRes2 = 200, vAL, vCS
        res_addr = [
            f'v_and_b32 v{vRes}, 15, v{L}',
            f'v_lshl_add_u32 v{vRes2}, v{vRes}, 4, s{sRes}',
            f'v_lshrrev_b32 v{vRes}, 4, v{L}',
            f'v_mad_u32_u24 v{vRes2}, v{vRes}, s{sQS}, v{vRes2}',
            f'v_mad_u32_u24 v{vRes}, v{vRes}, s{sQS}, v{vRes2}',
        ]
        res_ld = []
        for nt in range(5):
            q = 8 * (nt >> 1) + (nt & 1)
            res_ld.append([f's_mov_b32 s{sT6}, {HP4 + q * QS}',
                           f'buffer_load_dwordx2 {vr(RES + 2 * nt, 2)}, v{vRes2 if nt == 4 else vRes}, {WS}, s{sT6} offen sc1'])
        slot_of = {0: 0, 1: 1, 2: 2, 3: 3, 4: 0, 5: 1}
        eq = epi(0, 0) + epi(1, 1) + epi(2, 2)
        budget = 0.0
        RATE = o['epi_rate']
        extra = {i: [] for i in range(120)}
        first_w = wtail.pop(0)
        for k in range(len(wtail)):
            extra[k].append(wtail[k])
        extra[30].append('s_barrier')
        nwd = len(wd) - o.get('wd_post', 12)
        done = 60 - len(wd)
        lo, hi = o.get('wd_lo', 4), o.get('wd_hi', 78)
        hold = None
        for k in range(nwd):
            g = wd.pop(0)
            p = lo + (k * (hi - lo)) // nwd
            fr = done + k
            if fr == 39:
                extra[81].append([f's_mov_b32 s{sT6}, {WDF + 5120 * kap[1][3]}', g[-1].replace(f's{sWoff} offen', f's{sT6} offen')] if g else [])
                continue
            assert fr < 56 or p > 14
            extra[p].append(g)
        SA, SB = o.get('siga', 62), o.get('sigb', 104)
        extra[SA].append(sig(0, 'act1'))
        extra[o.get('lda', 86)].append(poll_ld())
        for k, x in enumerate(res_ld):
            extra[o.get('res_at', 86) + 2 * k].append(x)
        ca = o.get('chka', 105)
        extra[ca].append(poll_chk(0))
        na = o.get('a_in', 7)
        for n in range(na):
            extra[ca + 1 + (n * (119 - ca)) // na].append(act_ld(0, n))
        extra[SB].append(sig(1, 'act3'))
        extra[50].append('s_barrier')

        def cost(x):
            if callable(x):
                return 3
            if isinstance(x, (list, tuple)):
                return sum(cost(y) for y in x)
            return 5 if x.startswith('ds_write') else 2 if x.startswith('buffer') or x == 's_barrier' else 1
        CAP = o.get('cap', 6.6)
        for i, (tile, ls, j) in enumerate(p2):
            slot = slot_of[tile]
            self.stamp(f'q{i}')
            if j == 0:
                a(csm(tile, slot, True))
                if i == 0:
                    a(first_w)
                if i:
                    budget = 6
                    while eq and budget >= eq[0][0]:
                        cst, x = eq.pop(0)
                        budget -= cst
                        a(x)
            if i & 1 == 0:
                a.need(ar(RING2 + 4 * (i & 3), 8))
            a(f'v_mfma_f32_32x32x16_bf16 {acc(slot)}, {ar(RING2 + 4 * (i & 3), 4)}, {vr(AB + 4 * j, 4)}, {acc(slot)}')
            if i + 4 < len(p2):
                a(rd(RING2 + 4 * (i & 3), p2[i + 4][1], p2[i + 4][2]))
            a(extra[i])
            if i == 42:
                eq += epi(3, 3)
            if i == 82:
                eq += epi(4, 0)
                if o.get('st4_late'):
                    st4 = eq.pop()[1]
            if i >= 1:
                budget = min(budget, 1.0) + CAP - 1 - (i & 1) - cost(extra[i])
                budget = max(budget, -1)
                while eq and budget >= min(eq[0][0], 2):
                    cst, x = eq.pop(0)
                    budget -= cst
                    a(x)
                    if callable(x) and o.get('verbose'):
                        print('store at gap', i)
                if i == 39:
                    assert len(eq) <= 2 * 69, len(eq)
                if i == SA - 1:
                    assert len(eq) <= 2 * 69, len(eq)
                if i == 79:
                    assert len(eq) <= 2 * 69, len(eq)
                if i == o.get('res_at', 86) - 1:
                    assert len(eq) <= 2 * 69, len(eq)
                if i == SB - 1:
                    assert len(eq) <= 69, len(eq)
            if j == 39:
                self.stamp(f't{tile}')
        for cst, x in eq:
            a(x)
        a(f's_mov_b32 s{sT0}, 0xffff0000')
        for i in range(10):
            a(f'v_lshlrev_b32 v{G2 + 2 * i}, 16, v{RES + i}')
            a(f'v_and_b32 v{G2 + 2 * i + 1}, s{sT0}, v{RES + i}')
        e5 = epi(5, 1, o.get('pk5', 1))
        LA = o.get('la2', 12)
        rest = [act_ld(0, n) for n in range(na, LA)]
        if o.get('ldb', -1) < 0:
            rest.append(poll_ld())
        if o.get('st4_late'):
            rest.append(st4)
        k = 0
        for i, (cst, x) in enumerate(e5):
            while k < len(rest) and (k + 1) * (len(e5) - 1) <= i * len(rest):
                a(rest[k])
                k += 1
            a(x)
        assert k == len(rest)
        self.stamp(10)

        vOut, vRR, vRW, vTW, vTR = 4, 7, 232, 238, 242
        RED = 2 * TILE
        setup = [
            f's_movk_i32 s{sT6}, {16 * 1280 - 160}',
            f's_movk_i32 s{sT5}, 6554',
            f's_movk_i32 s{sT4}, 176',
            f's_mul_i32 s{sT3}, s{S_W}, {16 * 176}',
            f'v_and_b32 v{t}, 15, v{L}',
            f'v_lshrrev_b32 v{t2}, 4, v{L}',
            f'v_mov_b32 v{vTW + 1}, s{sT3}',
            f'v_mad_u32_u24 v{vTW + 1}, v{t}, s{sT4}, v{vTW + 1}',
            f'v_lshl_add_u32 v{vTW}, v{t2}, 4, v{vTW + 1}',
            f'v_lshl_add_u32 v{vTW + 1}, v{t2}, 3, v{vTW + 1}',
        ]
        setup += [f'v_mul_u32_u24 v{t2}, s{sT5}, v{L}',
                  f'v_lshrrev_b32 v{t2}, 16, v{t2}',
                  f'v_lshl_add_u32 v{vOut}, v{L}, 4, s{sOutB}',
                  f'v_mad_u32_u24 v{vOut}, v{t2}, s{sT6}, v{vOut}',
                  f'v_add_u32 v{t}, v{L}, v{t2}',
                  f'v_lshl_add_u32 v{vTR}, v{t}, 4, s{sT3}',
                  f's_mov_b32 s{sT4}, {6 * 16 * 1280}',
                  f's_mov_b32 s{sT5}, {12 * 16 * 1280}']
        for lam in range(4):
            setup += [f's_xor_b32 s{sT0}, s{S_W}, {lam}', f's_mul_i32 s{sT0}, s{sT0}, {15 * 1024}',
                      f's_add_u32 s{sT0}, s{sT0}, {RED + (lam - 1) * 5120 if lam else RED}',
                      f'v_lshl_add_u32 v{vRW + lam - 1 if lam else vRR}, v{L}, 4, s{sT0}']

        def mf2(pi, n, nt):
            c, lam = order[pi][n]
            d = vr(G2 + 4 * (5 * lam + nt), 4)
            cin = '0' if (pi == 0 and c == 0 and lam != 0) else d
            return f'v_mfma_f32_16x16x32_bf16 {d}, {ar(4 * (5 * (4 * pi + c) + nt), 4)}, {vr(FR[pi][n], 4)}, {cin}'
        ex = [{i: [] for i in range(80)} for _ in range(3)]
        for k, x in enumerate(setup):
            ex[0][k].append(x)
        def put(pos, x):
            ex[pos // 80][pos % 80].append(x)
        if o.get('ldb', -1) >= 0:
            put(o['ldb'], poll_ld())
        cb_, cc_ = o.get('chkb', 5 * (16 - LA)), 80 + o.get('chkc', 44)
        put(cb_, [poll_chk(1), lambda: self.stamp('chkb')])
        put(o.get('sigc', 40), [sig(2, 'act5'), lambda: self.stamp('sigc')])
        put(80 + o.get('ldc', 28), poll_ld())
        put(cc_, [lambda: self.stamp('chkc0'), poll_chk(2), lambda: self.stamp(11)])
        pos = 0
        for g in range(LA, 48):
            pos = max(pos + (o.get('burst', 2) if g >= 16 else 0), o.get('g_gap', 5) * (g - LA) if g < 32 else 5 * (g - LA),
                      cb_ if g >= 16 else 0, cc_ if g >= 32 else 0)
            assert pos < 20 * (g // 4)
            put(pos, act_ld(g // 16, g % 16))
            if g < 32 and wd and 32 - g <= len(wd) + o.get('wdp_early', 0):
                put(pos + 2, wd.pop(0))
        assert not wd
        chain = o.get('chain', 1)
        for blk, lam in enumerate((3, 2, 1)):
            for nt in range(5):
                ex[2][20 * blk + 4 * nt + 12 if chain else 20 * (blk + 1) + 5 + 2 * nt].append(
                    f'ds_write_b128 v{vRW + lam - 1}, {vr(G2 + 4 * (5 * lam + nt), 4)} offset:{1024 * nt}')
        for pi in range(3):
            for i in range(80):
                if chain:
                    a(mf2(pi, 4 * (i // 20) + (i & 3), i % 20 // 4))
                else:
                    a(mf2(pi, i // 5, i % 5))
                a(ex[pi][i])
            self.stamp('end' + 'ABC'[pi])
        a('s_waitcnt lgkmcnt(0)')
        a('s_barrier')
        self.stamp('redbar')
        RD, RR = 152, 8
        for nt in range(5):
            for s in range(3):
                a(f'ds_read_b128 {vr(RD + 12 * nt + 4 * s, 4)}, v{vRR} offset:{5120 * s + 1024 * nt}')
        sc = ' sc1' if o['out_sc1'] else ''
        for nt in range(5):
            b = RD + 12 * nt
            c = G2 + 4 * nt
            for p in range(2):
                a(f'v_pk_add_f32 {vr(c + 2 * p, 2)}, {vr(c + 2 * p, 2)}, {vr(b + 2 * p, 2)}')
                a(f'v_pk_add_f32 {vr(b + 4 + 2 * p, 2)}, {vr(b + 4 + 2 * p, 2)}, {vr(b + 8 + 2 * p, 2)}')
            for p in range(2):
                a(f'v_pk_add_f32 {vr(c + 2 * p, 2)}, {vr(c + 2 * p, 2)}, {vr(b + 4 + 2 * p, 2)}')
            for p in range(2):
                a(f'v_cvt_pk_bf16_f32 v{RR + 2 * nt + p}, v{c + 2 * p}, v{c + 2 * p + 1}')
            if nt & 1:
                a(f'ds_write_b128 v{vTW}, {vr(RR + 2 * nt - 2, 4)} offset:{64 * (nt >> 1)}')
            if nt == 4:
                a(f'ds_write_b64 v{vTW + 1}, {vr(RR + 8, 2)} offset:128')
        for k in range(3):
            a(f'ds_read_b128 {vr(RR + 12 + 4 * k, 4)}, v{vTR} offset:{6 * 176 * k}')
        a('s_mov_b32 exec_hi, 0xfffffff')
        for k in range(3):
            if k == 2:
                a('s_mov_b32 exec_hi, 0xff')
            a(f'buffer_store_dwordx4 {vr(RR + 12 + 4 * k, 4)}, v{vOut}, {sr(S_OUT, 4)}, {("0", f"s{sT4}", f"s{sT5}")[k]} offen{sc}')
        a('s_mov_b32 exec_hi, -1')
        lz = a.label('nz')
        a('s_cmp_lg_u32 s2, 0')
        a(f's_cbranch_scc1 {lz}')
        with a.untracked():
            a(f'buffer_store_dword v{BP}, off, {sr(S_DBG, 4)}, 0 sc1')
        a(f'{lz}:')
        if self.diag:
            self.stamp('outst')
            a('s_waitcnt vmcnt(0)')
            self.stamp(12)
            a('s_waitcnt lgkmcnt(0)')
            with self.wave0():
                a(f's_lshl_b32 s{sT0}, s2, 7')
                a(f's_add_u32 s{sT0}, s{sT0}, {STAMP}')
                for i in range(NSTAMP):
                    a(f'v_mov_b32 v0, s{S_STAMP + 2 * i}')
                    a(f'buffer_store_dword v0, off, {WS}, s{sT0} offset:{4 * i}')
        if self.opt.get('fixt'):
            with a.untracked():
                a(f's_cmp_lg_u32 s2, {self.opt.get("fixwg", 0)}')
                a('s_cbranch_scc1 .Lend')
                a(f's_cmp_lg_u32 s{S_W}, 0')
                a('s_cbranch_scc1 .Lend')
                a(f's_sub_u32 s{sT2}, s{S_STAMP + 2 * self.opt.get("fixs", 0)}, s{S_STAMP + 2 * self.opt.get("fixb", 0)}')
                a(f's_mul_i32 s{sT2}, s{sT2}, 10')
                a(f's_min_u32 s{sT2}, s{sT2}, 100000')
                a(f's_add_u32 s{sT2}, s{sT2}, {self.opt["fixt"]}')
                a('.Lfix:')
                a(f's_memrealtime {sr(sT0, 2)}')
                a('s_waitcnt lgkmcnt(0)')
                a(f's_sub_u32 s{sT0}, s{sT0}, s{S_STAMP}')
                a(f's_cmp_lt_u32 s{sT0}, s{sT2}')
                a('s_cbranch_scc1 .Lfix')
        a('.Lend:')
        a('s_endpgm')

    def build(self):
        a = self.a
        if self.diag:
            for i in range(2 * NSTAMP):
                a(f's_mov_b32 s{S_STAMP + i}, 0')
        self.prologue()
        self.conv()
        self.gemms()
        self.side()
        for c in self.cold:
            a.fresh()
            a('s_nop 7')
            c()
        a('.Lcode_end:')
        a('s_endpgm')
        pads = (self.opt.get('base', 0x300), NPAD, sr(sRet, 2), '.Lend', self.opt.get('pstride', 4096)) if self.opt['pads'] else None
        body = a.finish(verbose=True, align=self.opt.get('align', 1), pads=pads)
        body += '.p2align 12\n    s_endpgm\n'
        ref = open('cdna_kernels/' + NAME + '.s.ref').read().split('\n')
        head = [l for l in ref if l.startswith(';') and '@launch' not in l and 'Override' not in l and 'grid=ceil' not in l]
        txt = '\n'.join(head) + '\n'
        txt += '; One persistent launch: kv/transposition -> Toeplitz-MFMA long conv -> gate/up GEMM + GEGLU -> down GEMM.\n'
        txt += '; @launch grid=(256,1,1) block=(256,1,1) lds=163840\n'
        txt += f'''.amdgcn_target "amdgcn-amd-amdhsa--gfx950"
.text
.globl {NAME}_kernel
.p2align 8
.type {NAME}_kernel,@function
{NAME}_kernel:
{body}.section .rodata,"a"
.p2align 6
.amdhsa_kernel {NAME}_kernel
  .amdhsa_next_free_vgpr 512
  .amdhsa_next_free_sgpr 102
  .amdhsa_accum_offset 256
  .amdhsa_group_segment_fixed_size 0
  .amdhsa_kernarg_size 104
  .amdhsa_user_sgpr_count 2
  .amdhsa_user_sgpr_kernarg_segment_ptr 1
  .amdhsa_system_sgpr_workgroup_id_x 1
  .amdhsa_float_denorm_mode_32 3
.end_amdhsa_kernel
'''
        return txt


if __name__ == '__main__':
    out = sys.argv[1]
    diag = 'diag' in sys.argv[2:]
    opt = {}
    for x in sys.argv[2:]:
        if '=' in x:
            k, v = x.split('=')
            try:
                v = int(v)
            except ValueError:
                try:
                    v = float(v)
                except ValueError:
                    pass
            opt[k] = v
    open(out, 'w').write(Gen(diag, opt).build())
```

```python
import struct
import sys
from asmlib import Asm, vr, ar, sr

NAME = 'sequential_preLN__ssm_conv_h3__geglu_ffn__prompt'

MB = 1 << 20
QS = 16384
CNT = 0
CF3 = 16384
PROBE = 32768
ST1 = 49152
CSF = 65536
STAMP = 98304
PST = 131072
W45F = PST + 262144
WDF = 2 * MB
KVX, KVXT = 4 * MB, 8 * MB
KVM = 36 * MB
XP4, XP4T = 12 * MB, 8 * MB + 524288
HP4, HP4T = 16 * MB, 9 * MB
ACT = 20 * MB
WS_END = 40 * MB
C_F1, C_F1B, C_FX, C_FW, C_FXR, C_B1, C_B2, C_FWR = [4 * i for i in range(8)]


def grp_base(g, main, tail):
    return (main + (g & 3) * 524288 + (g >> 2) * 8192) if g < 8 else tail + (g - 8) * 8192


SPIN = 100000

S_W = 3
S_K, S_V, S_SH, S_SK, S_X, S_WG, S_WU, S_WD, S_OUT, S_DBG, S_WS = 4, 8, 12, 16, 20, 24, 28, 32, 36, 40, 44
S_D = 48
sX, sJ, sG, sM, sQ, sRB, sCB, sA, sB, sRot = 50, 51, 52, 53, 54, 55, 56, 57, 58, 59
sT0, sT1, sT2, sT3, sT4, sT5, sT6, sT7 = 60, 61, 62, 63, 64, 65, 66, 67
sWoff, sWoff2, sSpin, sDv = 68, 69, 70, 71
sOne, sU0, sU1, sU2 = 72, 73, 74, 75
sXo = 1
sRet = 48
NPAD = 8
S_STAMP = 76
NSTAMP = 13
sAB = 4
sL = [8, 9, 10, 11]
sPL, sPH, sFW, sSide, sArr = 16, 17, 18, 19, 23
sE = [None, 12, 13, 14]

GSTR = 4128
GW = 4 * GSTR
UBASE = 4 * GW
USTR = 4608
TILE = 40960
WS = sr(S_WS, 4)


def f32(x):
    return '0x%08x' % struct.unpack('<I', struct.pack('<f', x))[0]


class Gen:
    def __init__(self, diag=False, opt=None):
        self.a = Asm()
        self.diag = diag
        self.opt = dict(place=1, w_kv=0, w_e1=10, apoll=9, w_u=0, tb_pre=4, tb_mid=0, ssm=1, defer=0, wdp_from=24, a_ahead=14, sig='v', epi_rate=4.5,
                        fx_it=3, early_n=0, out_sc1=1, pads=1, wd_pre=20, wd_post=4, l2=10, wd_p1=11, chkb=40, sigc=39, wd_pre1=8, arr='s')
        if opt:
            self.opt.update(opt)
        self.cold = []

    PROF = {
        'main': [0, 1, 2, 3, 4, 5, 6, 7, 8, 9, 10, 11, 12],
        'front': [0, 'karg', 'issued', 1, 'kvdone', 2, 'tbpre', 'drained', 3, 'tbpost', 4, 'uload', 5],
        'e2': [0, 6, 'zbar', 7, 'hbar', 'hissued', 'hdrained', 'hbar2', 'arrived', 'wwritten', 'polled', 8, 'a0'],
        'g1': [0, 8, 'a0', 'p8', 'p16', 'p24', 'p32', 9, 't3', 't4', 't5', 10, 12],
        'g2a': [0, 't5', 10, 'm4', 'prechk1', 'chk1', 'm24', 'presig2', 'sig2', 'm44', 'm64', 'endA', 'm84'],
        'sum': [0, 'x1', 'x2', 'x3', 'x4', 'x5', 'x6', 7, 8, 'x9', 'x10', 'x11', 12],
        'side': [0, 'sx_in', 'sx_issued', 'sx_data', 'sx_bar', 'sx_st', 'sx_ld2', 'sx_dr', 1, 2, 6, 7, 8],
        'loop': [0, 4, 5, 'it1', 'it2', 'it3', 'it4', 'it5', 'it6', 'it7', 6, 7, 8],
        'g1b': [0, 9, 'q10', 'q20', 't3', 'presig0', 'sig0', 't4', 'prechk0', 'chk0', 'presig1', 'sig1', 't5'],
        'g2': [0, 't5', 10, 'chkb', 'sigc', 'endA', 'chkc0', 11, 'endB', 'endC', 'redbar', 'outst', 12],
    }

    def stamp(self, i):
        prof = self.PROF[self.opt.get('prof', 'main')]
        if self.diag and i in prof:
            i = prof.index(i)
            self.a(f'{"s_memtime" if self.opt.get("cyc") else "s_memrealtime"} {sr(S_STAMP + 2 * i, 2)}')

    def spin_atomic(self, soff, target, depth, vt):
        a = self.a
        top, done = a.label('spin'), a.label('done')
        with a.untracked():
            a(f's_mov_b32 s{sSpin}, {SPIN}')
            for d in range(depth - 1):
                a(f'v_mov_b32 v{vt + d}, 0')
                a(f'buffer_atomic_add v{vt + d}, off, {WS}, {soff} sc0 sc1')
                a(f's_sleep {self.opt.get("pslp", 3)}')
            a(f'{top}:')
            for d in range(depth):
                n = (d + depth - 1) % depth
                a(f'v_mov_b32 v{vt + n}, 0')
                a(f'buffer_atomic_add v{vt + n}, off, {WS}, {soff} sc0 sc1')
                a(f's_waitcnt vmcnt({depth - 1})')
                a(f'v_readfirstlane_b32 s{sT7}, v{vt + d}')
                a(f's_cmp_ge_u32 s{sT7}, {target}')
                a(f's_cbranch_scc1 {done}')
            a(f's_sub_u32 s{sSpin}, s{sSpin}, 1')
            a(f's_cbranch_scc0 {top}')
            a(f'{done}:')

    def spin(self, srd, soff, target, vt):
        a = self.a
        top, done = a.label('spin'), a.label('done')
        with a.untracked():
            a(f's_mov_b32 s{sSpin}, {SPIN}')
            a(f'{top}:')
            a(f'buffer_load_dword v{vt}, off, {sr(srd, 4)}, {soff} sc1')
            a('s_waitcnt vmcnt(0)')
            a(f'v_readfirstlane_b32 s{sT7}, v{vt}')
            a(f's_sub_u32 s{sSpin}, s{sSpin}, 1')
            a(f's_cbranch_scc1 {done}')
            a(f's_cmp_lt_u32 s{sT7}, {target}')
            a(f's_cbranch_scc1 {top}')
            a(f'{done}:')

    def check(self, srd, soff, target, vt):
        a = self.a
        slow, back = a.label('slow'), a.label('back')
        a(f'v_readfirstlane_b32 s{sT7}, v{vt}')
        a(f's_cmp_lt_u32 s{sT7}, {target}')
        a(f's_cbranch_scc1 {slow}')
        a(f'{back}:')

        def cold():
            a(f'{slow}:')
            self.spin(srd, soff, target, vt)
            a(f's_branch {back}')
        self.cold.append(cold)

    def get_pol(self, vt):
        a = self.a
        self.check(S_DBG, '0 offset:128', 1, vt)
        a(f's_and_b32 s0, s{sT7}, 2')
        a('s_lshl_b32 s0, s0, 20')
        a(f's_add_u32 s{S_WS}, s{S_WS}, s0')
        a(f's_addc_u32 s{S_WS + 1}, s{S_WS + 1}, 0')

    def wave0(self):
        g = self

        class W:
            def __enter__(s):
                s.l = g.a.label('nw0')
                g.a(f's_cmp_lg_u32 s{S_W}, 0')
                g.a(f's_cbranch_scc1 {s.l}')
                s.u = g.a.untracked()
                s.u.__enter__()
                g.a('s_mov_b64 exec, 1')

            def __exit__(s, *x):
                g.a('s_mov_b64 exec, -1')
                s.u.__exit__()
                g.a(f'{s.l}:')
        return W()

    def warm(self, sets):
        if not self.opt['pads']:
            return
        a = self.a
        for w, ks in enumerate(sets):
            if not ks:
                continue
            l = a.label('nw')
            a(f's_cmp_lg_u32 s{S_W}, {w + 1}')
            a(f's_cbranch_scc1 {l}')
            for k in ks:
                a(f's_call_b64 {sr(sRet, 2)}, .Lpad_{k}')
            a(f'{l}:')

    def arrive_start(self, items, pre=None):
        a = self.a
        l = a.label('noarr')
        for r, _ in items:
            a(f's_mov_b32 s{r}, 1')
        a(f's_cmp_lg_u32 s{S_W}, 0')
        a(f's_cbranch_scc1 {l}')
        with a.untracked():
            if pre:
                pre()
            for r, line in items:
                a(f's_atomic_add s{r}, {sr(S_WS, 2)}, s{sXo} offset:{line * 256} glc')
        a(f'{l}:')

    def arrive_finish(self, items, vt):
        a = self.a
        a('s_waitcnt lgkmcnt(0)')
        for r, last, rep in items:
            l = a.label('notlast')
            a(f's_cmp_lg_u32 s{r}, {last}')
            a(f's_cbranch_scc1 {l}')
            with a.untracked():
                a('s_mov_b32 exec_lo, 15')
                a('s_mov_b32 exec_hi, 15')
                a(f'v_lshlrev_b32 v{vt}, 8, v0')
                a(f's_mov_b32 s{sT7}, {rep * 256}')
                a(f'buffer_atomic_add v{self.vOne}, v{vt}, {WS}, s{sT7} offen sc1')
                a('s_mov_b64 exec, -1')
            a(f'{l}:')

    def prologue(self):
        a = self.a
        a('s_cmp_ge_u32 s2, 0x100')
        a('s_cbranch_scc1 .Lend')
        self.stamp(0)
        for srd, off in ((S_K, 8), (S_WS, 96), (S_V, 16), (S_SH, 24), (S_SK, 32), (S_X, 0), (S_WG, 56), (S_WU, 64),
                         (S_WD, 72), (S_OUT, 80), (S_DBG, 88), (S_D, 40)):
            a(f's_load_dwordx2 {sr(srd, 2)}, s[0:1], {off}')
        a('v_lshrrev_b32 v1, 6, v0')
        a(f's_and_b32 s{sX}, s2, 7')
        a(f's_lshr_b32 s{sJ}, s2, 3')
        a(f'v_readfirstlane_b32 s{S_W}, v1')
        a('v_mov_b32 v1, v0')
        a('v_and_b32 v0, 63, v0')
        for srd, n in ((S_K, 2621440), (S_V, 2621440), (S_SH, 5120), (S_SK, 4096), (S_X, 2621440), (S_WG, 1966080),
                       (S_WU, 1966080), (S_WD, 1966080), (S_OUT, 2621440), (S_DBG, 256), (S_WS, WS_END)):
            a(f's_mov_b32 s{srd + 2}, {n}')
            a(f's_mov_b32 s{srd + 3}, 0x20000')
        a(f's_and_b32 s{sM}, s{sJ}, 15')
        a(f's_mov_b32 s{sG}, s{sX}')
        a(f's_cmp_lt_u32 s{sJ}, 16')
        a.snapshot('role')
        a('s_cbranch_scc1 .Lconv')
        a(f's_lshr_b32 s{sG}, s{sX}, 2')
        a(f's_add_u32 s{sG}, s{sG}, 8')
        a(f's_and_b32 s{sT0}, s{sX}, 3')
        a(f's_lshl2_add_u32 s{sM}, s{sT0}, s{sM}')
        a(f's_cmp_lt_u32 s{sJ}, 20')
        a('s_cbranch_scc1 .Lconv')
        with a.untracked():
            a(f's_cmp_lg_u32 s2, {self.opt.get("initwg", 208)}')
            a('s_cbranch_scc1 .Lnoinit')
            a('v_lshrrev_b32 v2, 3, v1')
            a('v_and_b32 v3, 7, v0')
            a('v_lshlrev_b32 v3, 4, v3')
            a('v_lshl_add_u32 v2, v2, 8, v3')
            for i in range(4):
                a(f'v_mov_b32 v{4 + i}, 0')
            a('s_waitcnt lgkmcnt(0)')
            a.fresh()
            a(f'buffer_store_dwordx4 v[4:7], v2, {WS}, 0 offen sc1')
            for off in (0x2000, 2 * MB, 2 * MB + 0x2000):
                a(f's_mov_b32 s{sT0}, {off}')
                a(f'buffer_store_dwordx4 v[4:7], v2, {WS}, s{sT0} offen sc1')
            a('v_mov_b32 v3, 1')
            a('s_waitcnt vmcnt(0)')
            a('s_barrier')
            a(f's_cmp_lg_u32 s{S_W}, 0')
            a('s_cbranch_scc1 .Lside')
            a('s_mov_b64 exec, 1')
            a(f'buffer_store_dword v3, off, {sr(S_DBG, 4)}, 0 sc1')
            a('s_mov_b64 exec, -1')
            a('s_branch .Lside')
            a('.Lnoinit:')
            a(f's_cmp_lg_u32 s2, {self.opt.get("polwg", 216)}')
            a('s_cbranch_scc1 .Lnopol')
            a(f's_and_b32 s{sT1}, s{S_W}, 1')
            a(f's_lshl_b32 s{sT0}, s{sT1}, 13')
            a(f's_lshl_b32 s{sT2}, s{S_W}, 8')
            a(f's_add_u32 s{sT0}, s{sT0}, s{sT2}')
            a(f's_add_u32 s{sT0}, s{sT0}, {PROBE}')
            if 'fpol' in self.opt:
                a(f's_mov_b32 s{sT1}, {self.opt["fpol"]}')
            a(f's_add_u32 s{sT1}, s{sT1}, 1')
            a(f'v_mov_b32 v4, s{sT1}')
            a('v_mov_b32 v5, 0')
            a('s_mov_b64 exec, 1')
            a('s_waitcnt lgkmcnt(0)')
            for i in range(1 + self.opt.get('hops', 1)):
                if self.opt.get('sprobe', 1):
                    a(f's_mov_b32 s{sT3}, 0')
                    a(f's_atomic_add s{sT3}, {sr(S_WS, 2)}, s{sT0} glc')
                    a('s_waitcnt lgkmcnt(0)')
                else:
                    a('v_mov_b32 v3, 0')
                    a(f'buffer_atomic_add v3, off, {WS}, s{sT0} sc0 sc1')
                    if i == 0:
                        a(f'buffer_atomic_add v5, off, {sr(S_DBG, 4)}, 0 offset:128 sc1')
                    a('s_waitcnt vmcnt(0)')
                if i == 0:
                    a('s_barrier')
            a(f'buffer_atomic_cmpswap v[4:5], off, {sr(S_DBG, 4)}, 0 offset:128 sc1')
            a('s_mov_b64 exec, -1')
            a('s_branch .Lside')
            a('.Lnopol:')
            if self.opt.get('cpf', 1):
                a(f's_getpc_b64 {sr(sT0, 2)}')
                a('.Lpc:')
                a(f's_and_b32 s{sT2}, s{sJ}, 3')
                a(f's_lshl2_add_u32 s{sT2}, s{sT2}, s{S_W}')
                a(f's_mul_i32 s{sT2}, s{sT2}, {18 * 128}')
                a('v_min_u32 v2, 17, v0')
                a(f'v_lshl_add_u32 v2, v2, 7, s{sT2}')
                a('v_min_u32 v2, .Lcode_end-.Lpc-4, v2')
                a('v_mov_b32 v3, 0')
                a(f'v_lshl_add_u64 v[4:5], v[2:3], 0, {sr(sT0, 2)}')
                a('global_load_dword a253, v[4:5], off')
            a('s_branch .Lside')
        a('.Lconv:')
        a.fresh('role')

    def gemm_ids(self):
        a = self.a
        a.need(sr(S_WS, 2))
        a(f's_lshr_b32 s{sT0}, s{sX}, 2')
        a(f's_lshl_b32 s{sT0}, s{sT0}, 5')
        a(f's_and_b32 s{sXo}, s{sX}, 3')
        a(f's_add_u32 s{sXo}, s{sXo}, s{sT0}')
        a(f's_lshl_b32 s{sXo}, s{sXo}, 8')
        a(f's_lshr_b32 s{sRB}, s{sX}, 2')
        a(f's_lshr_b32 s{sT0}, s{sJ}, 2')
        a(f's_lshl3_add_u32 s{sRB}, s{sRB}, s{sT0}')
        a(f's_and_b32 s{sRot}, s{sX}, 3')
        a(f's_and_b32 s{sT0}, s{sJ}, 3')
        a(f's_lshl2_add_u32 s{sCB}, s{sRot}, s{sT0}')
        a(f's_and_b32 s{sT0}, s{sCB}, 1')
        a(f's_mul_i32 s{sA}, s{sCB}, 6')
        a(f's_add_u32 s{sB}, s{sA}, 4')
        a(f's_lshl1_add_u32 s{sA}, s{sT0}, s{sA}')
        a(f's_lshl_b32 s{sT1}, s{sT0}, 2')
        a(f's_sub_u32 s{sB}, s{sB}, s{sT1}')

    vWL, vWLb, vW45, vTmp, vTmp2, vOne, vPS = 254, 253, 252, 250, 249, 248, 251
    WRAW = [8, 40, 72, 104, 136]
    vWW = 236
    PT = 200

    def real_line(self, r, tmp):
        a = self.a
        if not self.opt.get('swz', 1):
            return
        a(f's_sub_u32 s{tmp}, s{r}, 3')
        a(f's_cmp_lt_u32 s{tmp}, 2')
        a(f's_cselect_b32 s{tmp}, 7, 0')
        a(f's_xor_b32 s{r}, s{r}, s{tmp}')
        a(f's_sub_u32 s{tmp}, s{r}, 10')
        a(f's_cmp_lt_u32 s{tmp}, 2')
        a(f's_cselect_b32 s{tmp}, 1, 0')
        a(f's_xor_b32 s{r}, s{r}, s{tmp}')

    def w_addr(self):
        a = self.a
        t = self.vTmp
        a(f's_lshr_b32 s{sT1}, s{sA}, 2')
        self.real_line(sT1, sT0)
        a(f's_lshl_b32 s{sT1}, s{sT1}, 7')
        a(f'v_and_b32 v{t}, 7, v0')
        a(f'v_lshl_add_u32 v{self.vWLb}, v{t}, 4, s{sT1}')
        a(f's_lshr_b32 s{sT0}, s{S_W}, 1')
        a(f's_lshl_b32 s{sT0}, s{sT0}, 6')
        a(f's_mul_i32 s{sWoff}, s{sRot}, 160')
        a(f's_add_u32 s{sWoff}, s{sWoff}, s{sT0}')
        a(f's_mul_i32 s{sT0}, s{sCB}, {80 * 1024}')
        a(f's_add_u32 s{sT0}, s{sT0}, {W45F}')
        a(f'v_lshl_add_u32 v{self.vW45}, v0, 4, s{sT0}')
        a(f's_mul_i32 s{sWoff2}, s{sRot}, 10')
        a(f's_add_u32 s{sWoff2}, s{sWoff2}, s{S_W}')
        a(f's_lshl_b32 s{sWoff2}, s{sWoff2}, 10')
        a(f'v_mov_b32 v{self.vOne}, 1')
        a(f's_and_b32 s{sT0}, s{sRB}, 7')
        a(f's_lshr_b32 s{sT1}, s{S_W}, 1')
        a(f's_lshl1_add_u32 s{sT0}, s{sT0}, s{sT1}')
        a(f's_lshr_b32 s{sT1}, s{sRB}, 3')
        a(f's_lshl1_add_u32 s{sT0}, s{sT0}, s{sT1}')
        a(f's_and_b32 s{sT1}, s{S_W}, 1')
        a(f's_lshl1_add_u32 s{sT0}, s{sT0}, s{sT1}')
        a(f's_lshl_b32 s{sT0}, s{sT0}, 12')
        a(f'v_and_b32 v{t}, 31, v0')
        a(f'v_lshl_add_u32 v{self.vPS}, v{t}, 3, s{sT0}')
        a(f'v_lshrrev_b32 v{t}, 5, v0')
        a(f'v_lshl_add_u32 v{self.vPS}, v{t}, 11, v{self.vPS}')

    def w_select(self):
        a = self.a
        a(f's_bitcmp1_b32 s{S_W}, 0')
        a(f's_cselect_b32 s{S_WG}, s{S_WU}, s{S_WG}')
        a(f's_cselect_b32 s{S_WG + 1}, s{S_WU + 1}, s{S_WG + 1}')
        for i in range(1, 4):
            a(f's_movk_i32 s{sE[i]}, {6144 * i}')
        a(f's_movk_i32 s15, 3072')

    def clear_pst(self, v2):
        return [f'v_mov_b32 v{v2}, -1', f'v_mov_b32 v{v2 + 1}, -1',
                f's_lshl_b32 s{sU0}, s{sCB}, 8', f's_add_u32 s{sU0}, s{sU0}, {PST}',
                ['s_mov_b32 exec_hi, 0',
                 f'buffer_store_dwordx2 {vr(v2, 2)}, v{self.vPS}, {WS}, s{sU0} offen sc1',
                 's_mov_b32 exec_hi, -1']]

    def w_loads_main(self, park=False):
        out = []
        t, t2 = self.vTmp, self.vTmp2
        for b in range(5):
            for e in range(8):
                g = []
                if e == 0:
                    g = [f'v_and_b32 v{t}, 56, v0', f'v_add_u32 v{t}, s{sWoff}, v{t}', f'v_subrev_u32 v{t2}, 640, v{t}',
                         f'v_min_u32 v{t}, v{t}, v{t2}', f'v_mad_u32_u24 v{self.vWL}, v{t}, s15, v{self.vWLb}',
                         f's_add_u32 s{sWoff}, s{sWoff}, 128']
                so = f's{sE[e >> 1]}' if e >> 1 else '0'
                dst = ar(208 + 4 * e, 4) if park and b == 4 else vr(self.WRAW[b] + 4 * e, 4)
                g.append(f'buffer_load_dwordx4 {dst}, v{self.vWL}, {sr(S_WG, 4)}, {so} offen offset:{3072 * (e & 1)}')
                out.append(g)
        return out

    def w_loads_tail(self):
        out = []
        for i in range(20):
            if i & 1:
                g = [f's_add_u32 s{sU1}, s{sWoff2}, {TILE}',
                     f'buffer_load_dwordx4 {ar(160 + 4 * i, 4)}, v{self.vW45}, {WS}, s{sU1} offen sc1']
            else:
                g = []
                if i:
                    g = [f's_add_u32 s{sWoff2}, s{sWoff2}, 4096',
                         [f's_sub_u32 s{sU1}, s{sWoff2}, {TILE}', f's_cselect_b32 s{sWoff2}, s{sWoff2}, s{sU1}']]
                g.append(f'buffer_load_dwordx4 {ar(160 + 4 * i, 4)}, v{self.vW45}, {WS}, s{sWoff2} offen sc1')
            out.append(g)
        return out

    def w_write_addr(self):
        a = self.a
        t, t2 = self.vTmp, self.vTmp2
        a(f's_lshr_b32 s{sT0}, s{S_W}, 1')
        a(f's_lshl_b32 s{sT0}, s{sT0}, 12')
        a(f's_and_b32 s{sT1}, s{S_W}, 1')
        a(f's_lshl_b32 s{sT1}, s{sT1}, 7')
        a(f's_add_u32 s{sT0}, s{sT0}, s{sT1}')
        a(f'v_lshrrev_b32 v{t}, 3, v0')
        a(f'v_lshl_add_u32 v{t}, v{t}, 9, s{sT0}')
        a(f'v_and_b32 v{t2}, 1, v0')
        a(f'v_lshl_add_u32 v{t}, v{t2}, 6, v{t}')
        a(f'v_bfe_u32 v{t2}, v0, 1, 2')
        a(f's_mov_b32 s{sT0}, {TILE + 16}')
        a(f'v_mad_u32_u24 v{self.vWW}, v{t2}, s{sT0}, v{t}')
        for q in range(1, 4):
            a(f'v_xor_b32 v{self.vWW + q}, {16 * q}, v{self.vWW}')
        a(f's_mov_b32 s{sPL}, 0x05040100')
        a(f's_mov_b32 s{sPH}, 0x07060302')

    def w_writes_main(self):
        out = []
        for b in range(5):
            for c8 in range(8):
                p = self.PT + 4 * (c8 & 3) if b < 5 - self.opt.get('defer', 2) else (228 if c8 & 1 else 242)
                r = self.WRAW[b] + (c8 >> 1)
                g = [f'v_perm_b32 v{p + d}, v{r + 8 * d + 4}, v{r + 8 * d}, s{sPH if c8 & 1 else sPL}' for d in range(4)]
                g.append(f'ds_write_b128 v{self.vWW + (c8 & 3)}, {vr(p, 4)} offset:{b * 8192 + (c8 >> 2) * 256}')
                out.append(g)
        return out

    def conv(self):
        a = self.a
        o = self.opt
        vK, vKh, vC, vR, vSHa, vL16 = 1, 2, 3, 4, 5, 6
        SH = 8
        KR = 16
        VR = 38
        WF = 56
        KF = 72
        O = 120
        SK = 136
        KV = 168
        VF = 200
        vSW, vSR, vKS, vG, vBa, vAa, vZR, vZR2, vUL, vUW, vI7, vGZ, vXS, vHS, vFl, vPrev = range(232, 248)
        ZERO, AD = 224, 240
        vAa2 = vZR2
        kvmix = 0
        a(f's_lshl4_add_u32 s{sQ}, s{sG}, s{sM}')
        a(f'v_and_b32 v{vC}, 15, v0')
        a(f'v_lshrrev_b32 v{vR}, 4, v0')
        a(f's_lshl2_add_u32 s{sT0}, s{sM}, s{S_W}')
        a(f's_mul_i32 s{sT0}, s{sT0}, {32 * 1280}')
        a(f's_lshl_b32 s{sT1}, s{sG}, 7')
        a(f's_add_u32 s{sT0}, s{sT0}, s{sT1}')
        a(f's_movk_i32 s{sT2}, {8 * 1280}')
        a(f'v_lshl_add_u32 v{vK}, v{vC}, 3, s{sT0}')
        a(f'v_mad_u32_u24 v{vK}, v{vR}, s{sT2}, v{vK}')
        a(f'v_subrev_u32 v{vKh}, 3840, v{vK}')
        a(f's_lshl_b32 s{sT1}, s{sG}, 9')
        a(f'v_lshl_add_u32 v{vSHa}, v{vC}, 5, s{sT1}')
        a(f's_movk_i32 s{sT3}, 5120')
        a(f'v_lshlrev_b32 v{vL16}, 4, v0')

        def addr_phase_a():
            a(f'v_subrev_u32 v{vPrev}, 8, v{vL16}')
            a(f's_mul_i32 s{sT0}, s{S_W}, {USTR}')
            a(f's_add_u32 s{sT0}, s{sT0}, {UBASE}')
            a(f's_movk_i32 s{sT1}, 272')
            a(f'v_lshl_add_u32 v{vSW}, v{vR}, 4, s{sT0}')
            a(f'v_mad_u32_u24 v{vSW}, v{vC}, s{sT1}, v{vSW}')
            a(f'v_lshl_add_u32 v{vSR}, v{vC}, 4, s{sT0}')
            a(f'v_mad_u32_u24 v{vSR}, v{vR}, s{sT1}, v{vSR}')
            a(f'v_add_u32 v{vUW}, s{sT0}, v{vL16}')
            a(f's_add_u32 s{sT0}, s{sT0}, 32')
            a(f'v_lshl_add_u32 v{vBa}, v{vC}, 5, s{sT0}')
            a(f'v_lshl_add_u32 v{vBa}, v{vR}, 4, v{vBa}')
            a(f's_and_b32 s{sT0}, s{sG}, 3')
            a(f's_lshl_b32 s{sT0}, s{sT0}, 19')
            a(f's_cmp_lt_u32 s{sG}, 8')
            a(f's_cselect_b32 s{sT4}, s{sT0}, {KVXT - KVX}')
            a(f's_lshr_b32 s{sT0}, s{sX}, 2')
            a(f's_lshl_b32 s{sT0}, s{sT0}, 13')
            a(f's_add_u32 s{sT4}, s{sT4}, s{sT0}')
            a(f's_and_b32 s{sT0}, s{sM}, 8')
            a(f's_add_u32 s{sT0}, s{sT0}, s{sM}')
            a(f's_lshl2_add_u32 s{sT1}, s{sT0}, s{S_W}')
            a(f's_lshl_b32 s{sT1}, s{sT1}, 8')
            a(f's_add_u32 s{sT0}, s{sT4}, s{sT1}')
            a(f's_mov_b32 s{sT1}, {2 * QS}')
            if kvmix:
                a(f's_lshl2_add_u32 s{sT1}, s{sM}, s{S_W}')
                a(f's_lshl_b32 s{sT1}, s{sT1}, 8')
                a(f's_lshl_b32 s{sT0}, s{sG}, 18')
                a(f's_add_u32 s{sT0}, s{sT0}, s{sT1}')
                a(f's_mov_b32 s{sT1}, {QS}')
            a(f'v_lshl_add_u32 v{vKS}, v{vC}, 4, s{sT0}')
            a(f'v_mad_u32_u24 v{vKS}, v{vR}, s{sT1}, v{vKS}')

        def addr_rest():
            self.gemm_ids()
            self.w_addr()
            a(f's_mul_i32 s{sT5}, s{S_W}, {GW}')
            a(f'v_add_u32 v{vG}, s{sT5}, v{vL16}')
            a(f'v_bfe_u32 v{vAa}, v0, 2, 2')
            a(f'v_sub_u32 v{vAa}, v{vAa}, v{vR}')
            a(f'v_sub_u32 v{vAa}, v{vAa}, v{vR}')
            a(f's_add_u32 s{sT0}, s{sT5}, 56')
            a(f'v_lshl_add_u32 v{vAa}, v{vAa}, 3, s{sT0}')
            a(f'v_and_b32 v{vI7}, 3, v0')
            a(f's_movk_i32 s{sT1}, {GSTR}')
            a(f'v_mad_u32_u24 v{vAa}, v{vI7}, s{sT1}, v{vAa}')
            a(f'v_add_u32 v{vAa2}, 0x800, v{vAa}')
            a(f'v_and_b32 v{vGZ}, 16, v0')
            a(f'v_add_u32 v{vGZ}, s{sT5}, v{vGZ}')
            a(f'v_mad_u32_u24 v{vGZ}, v{vI7}, s{sT1}, v{vGZ}')
            a(f'v_and_b32 v{vI7}, 7, v0')
            a(f's_lshl_b32 s{sT6}, s{sM}, 15')
            a(f's_add_u32 s{sT6}, s{sT6}, s{sT4}')
            a(f's_lshl_b32 s{sT1}, s{S_W}, 6')
            a(f's_add_u32 s{sT0}, s{sT6}, s{sT1}')
            if kvmix:
                a(f's_lshl_b32 s{sT0}, s{sQ}, 14')
                a(f's_add_u32 s{sT0}, s{sT0}, s{sT1}')
            a(f'v_and_b32 v{vUL}, 3, v0')
            a(f'v_lshl_add_u32 v{vUL}, v{vUL}, 4, s{sT0}')
            a(f'v_lshrrev_b32 v{vXS}, 2, v0')
            a(f'v_lshl_add_u32 v{vUL}, v{vXS}, 8, v{vUL}')
            a(f's_lshl_b32 s{sT0}, s{S_W}, 12')
            a(f'v_add_u32 v{vXS}, s{sT0}, v{vL16}')
            a(f's_lshl_b32 s{sT1}, s{sQ}, 14')
            a(f's_add_u32 s{sT0}, s{sT0}, s{sT1}')
            a(f's_mov_b32 s{sT1}, {HP4}')
            a(f's_cmp_lt_u32 s{sQ}, 120')
            a(f's_cselect_b32 s{sT1}, s{sT1}, {HP4T - 120 * QS}')
            a(f's_add_u32 s{sT0}, s{sT0}, s{sT1}')
            a(f'v_add_u32 v{vHS}, s{sT0}, v{vL16}')
            a(f's_lshl_b32 s{sT0}, s{S_W}, 11')
            a(f'v_add_u32 v{vZR}, s{sT0}, v{vL16}')
            for i in range(4):
                a(f'v_mov_b32 v{ZERO + i}, 0')
        if o.get('addr_early', 0) >= 1:
            addr_phase_a()
        if o.get('addr_early', 0) >= 2:
            addr_rest()
        a.need(sr(S_WS, 2))
        self.stamp('karg')
        a(f'buffer_load_dwordx4 {vr(SH, 4)}, v{vSHa}, {sr(S_SH, 4)}, 0 offen')
        a(f'buffer_load_dwordx4 {vr(SH + 4, 4)}, v{vSHa}, {sr(S_SH, 4)}, 0 offen offset:16')
        for r in range(3):
            a(f'buffer_load_dwordx2 {vr(KR + 2 * r, 2)}, v{vKh}, {sr(S_K, 4)}, 0 offen offset:{r * 1280}')
        for r in range(8):
            so = f's{sT3}' if r >= 4 else '0'
            a(f'buffer_load_dwordx2 {vr(KR + 6 + 2 * r, 2)}, v{vK}, {sr(S_K, 4)}, {so} offen offset:{(r & 3) * 1280}')
            a(f'buffer_load_dwordx2 {vr(VR + 2 * r, 2)}, v{vK}, {sr(S_V, 4)}, {so} offen offset:{(r & 3) * 1280}')
        self.stamp('issued')
        if o.get('tlb'):
            a(f'v_lshlrev_b32 v228, {o["tlb"]}, v0')
            a(f'buffer_load_dword v229, v228, {WS}, 0 offen sc1')
            a(f'buffer_load_dword v228, v228, {sr(S_OUT, 4)}, 0 offen sc1')
        if o.get('addr_early', 0) < 1:
            addr_phase_a()
        if o.get('addr_early', 0) < 2:
            addr_rest()
        a(f's_lshl2_add_u32 s{sT0}, s{sQ}, s{S_W}')
        a(f's_lshl_b32 s{sT1}, s{sT0}, 12')
        a(f's_add_u32 s{S_SK}, s{S_SK}, s{sT1}')
        a(f's_addc_u32 s{S_SK + 1}, s{S_SK + 1}, 0')
        a(f's_lshl_b32 s{sT0}, s{sT0}, 1')
        a(f's_and_b32 s{sT0}, s{sT0}, -4')
        a(f's_load_dword s{sDv}, {sr(S_D, 2)}, s{sT0}')
        ssm = []
        for j in range(4):
            ssm.append(f'buffer_load_dwordx4 {vr(SK + 8 * j + 4, 4)}, v{vL16}, {sr(S_SK, 4)}, 0 offen offset:{1024 * j}')
            if j == 0:
                ssm.append(f'buffer_load_dwordx2 {vr(SK + 2, 2)}, v{vPrev}, {sr(S_SK, 4)}, 0 offen')
            else:
                ssm.append(f'buffer_load_dwordx2 {vr(SK + 8 * j + 2, 2)}, v{vL16}, {sr(S_SK, 4)}, 0 offen offset:{1024 * j - 8}')
        if o.get('ssm', 1) == 0:
            a(ssm)
        self.w_select()
        self.warm([[0], [1], []])
        park = o.get('park', 1)
        wl = self.w_loads_main(park)

        def w_some(n):
            for _ in range(n):
                a(wl.pop(0))
        a(f's_mov_b32 s{sT2}, 0xffff0000')
        for ch in range(4):
            for j in range(4):
                src = SH + 2 * ch + (j >> 1)
                if j & 1:
                    a(f'v_and_b32 v{WF + 4 * j + ch}, s{sT2}, v{src}')
                else:
                    a(f'v_lshlrev_b32 v{WF + 4 * j + ch}, 16, v{src}')

        def unpack(dst, src):
            a(f'v_lshlrev_b32 v{dst}, 16, v{src}')
            a(f'v_and_b32 v{dst + 1}, s{sT2}, v{src}')
            a(f'v_lshlrev_b32 v{dst + 2}, 16, v{src + 1}')
            a(f'v_and_b32 v{dst + 3}, s{sT2}, v{src + 1}')
        for r in range(3):
            unpack(KF + 4 * r, KR + 2 * r)
        self.stamp(1)
        for r in range(8):
            unpack(KF + 4 * (r + 3), KR + 2 * (r + 3))
            vf = VF + 4 * (r & 1)
            for j in (3, 2, 1, 0):
                for p in range(2):
                    d = vr(KV + 4 * r + 2 * p, 2)
                    k = vr(KF + 4 * (r + 3 - j) + 2 * p, 2)
                    w = vr(WF + 4 * j + 2 * p, 2)
                    if j == 3:
                        a(f'v_pk_mul_f32 {d}, {k}, {w}')
                    else:
                        a(f'v_pk_fma_f32 {d}, {k}, {w}, {d}')
                if j == 3:
                    unpack(vf, VR + 2 * r)
            for p in range(2):
                d = vr(KV + 4 * r + 2 * p, 2)
                a(f'v_pk_mul_f32 {d}, {d}, {vr(vf + 2 * p, 2)}')
            if r == o.get('pol_r', 3):
                a(f'buffer_load_dword v{vFl}, off, {sr(S_DBG, 4)}, 0 offset:128 sc1')
            if o.get('ssm', 1) == 1 and r >= o.get('ssm_r', 0):
                for _ in range((len(ssm) + 7 - r) // (8 - r)):
                    a(ssm.pop(0))
            if r & 1:
                d = (7 - r) >> 1
                for ch in range(4):
                    a(f'v_cvt_pk_bf16_f32 v{O + 4 * ch + d}, v{KV + 4 * r + ch}, v{KV + 4 * (r - 1) + ch}')
        self.stamp('kvdone')
        for ch in range(4):
            a(f'ds_write_b128 v{vSW}, {vr(O + 4 * ch, 4)} offset:{ch * 64}')
        for j in range(4):
            a(f'ds_read_b128 {vr(KV + 4 * j, 4)}, v{vSR} offset:{j * 1088}')
        assert not kvmix
        self.get_pol(vFl)
        a(f'buffer_load_dword v{vFl}, off, {sr(S_DBG, 4)}, 0 sc1')
        a(f's_mov_b32 s{sT0}, {KVM if kvmix else KVX}')
        for j in range(4):
            a(f'buffer_store_dwordx4 {vr(KV + 4 * j, 4)}, v{vKS}, {WS}, s{sT0} offen sc1')
            if j < 3:
                a(f's_add_u32 s{sT0}, s{sT0}, {4 * QS if kvmix else 8 * QS}')
        self.stamp(2)
        if kvmix and o.get('pol_l', 0) == 0:
            a(f'buffer_load_dword v{vFl}, off, {sr(S_DBG, 4)}, 0 sc1')
        if o.get('ssm', 1) == 2:
            a(ssm)
        a(f'ds_write_b128 v{vUW}, {vr(ZERO, 4)}')
        a(f'ds_write_b128 v{vGZ}, {vr(ZERO, 4)}')

        def table(j):
            D = SK + 8 * j
            Ea, Eb, Db = 184 + 12 * (j & 1), 184 + 12 * (j & 1) + 4, 184 + 12 * (j & 1) + 8

            def wr(rho, reg):
                a(f'ds_write_b128 v{vG}, {vr(reg, 4)} offset:{rho * GSTR + 1024 * j + 32}')
            wr(3, D + 4)
            for i in range(2):
                a(f'v_pk_mov_b32 {vr(Db + 2 * i, 2)}, {vr(D + 2 + 2 * i, 2)}, {vr(D + 4 + 2 * i, 2)} op_sel:[1,0]')
            for i in range(4):
                a(f'v_alignbit_b32 v{Ea + i}, v{D + 3 + i}, v{D + 2 + i}, 16')
            wr(1, Db)
            wr(0, Ea)
            for i in range(4):
                a(f'v_alignbit_b32 v{Eb + i}, v{D + 4 + i}, v{D + 3 + i}, 16')
            wr(2, Eb)
        w_some(o['w_kv'])
        n1, n2 = o['tb_pre'], o['tb_pre'] + o['tb_mid']
        for j in range(n1):
            table(j)
            if kvmix and o.get('pol_l', 0) == j + 1:
                a(f'buffer_load_dword v{vFl}, off, {sr(S_DBG, 4)}, 0 sc1')
        a.need(f's{sDv}')
        a(f's_and_b32 s{sT1}, s{S_W}, 1')
        a(f's_lshl_b32 s{sT1}, s{sT1}, 4')
        a(f's_lshr_b32 s{sDv}, s{sDv}, s{sT1}')
        a(f's_and_b32 s{sDv}, s{sDv}, 0xffff')
        a(f'v_sub_u32 v5, 7, v{vI7}')
        a(f'v_and_b32 v7, 1, v5')
        a(f'v_lshlrev_b32 v7, 4, v7')
        a(f'v_lshlrev_b32 v7, v7, s{sDv}')
        a(f'v_bfe_u32 v1, v0, 3, 1')
        a(f'v_add_u32 v1, 2, v1')
        a(f'v_cmp_eq_u32 vcc, v1, v{vR}')
        a(f'v_cndmask_b32 v7, 0, v7, vcc')
        a(f'v_lshrrev_b32 v5, 1, v5')
        for d in range(4):
            a(f'v_cmp_eq_u32 vcc, {d}, v5')
            a(f'v_cndmask_b32 v1, 0, v7, vcc')
            a(f'v_accvgpr_write_b32 a{AD + d}, v1')
        self.stamp('tbpre')
        a.drain_stores()
        if kvmix:
            self.get_pol(vFl)
        self.stamp('drained')
        a('s_barrier')
        self.stamp(3)
        a(f's_and_b32 s{sT0}, s{sXo}, 0x2000')
        a(f's_add_u32 s{sT0}, s{sT0}, {C_F1B * 256}')
        a(f's_cmp_lt_u32 s{sG}, 8')
        a(f's_cselect_b32 s{sT0}, s{sXo}, s{sT0}')
        with self.wave0():
            self.check(S_DBG, '0', 1, vFl)
            if o.get('apoll') == 9:
                a(f's_mov_b32 s{sU2}, 1')
                a(f's_atomic_add s{sU2}, {sr(S_WS, 2)}, s{sT0} glc')
            else:
                a(f'buffer_atomic_add v{self.vOne}, off, {WS}, s{sT0} sc1')
        w_some(o['w_e1'])
        for j in range(n1, n2):
            table(j)
        ACC = 128
        BUF = (0, 64)
        XR, SR, XF = 136, 152, 168

        def rdA(it, t):
            o0 = 8 * it + 64 * (t & 3)
            return f'ds_read2_b64 {ar(BUF[it & 1] + 4 * t, 4)}, v{vAa2 if t & 4 else vAa} offset0:{o0} offset1:{o0 + 1}'

        def rdB(it, t):
            return f'ds_read_b128 {ar(BUF[it & 1] + 32 + 4 * t, 4)}, v{vBa} offset:{448 - 64 * it + 512 * t}'
        if n2 == 4:
            for t in range(8):
                a(rdA(0, t))
        self.stamp('tbpost')
        self.warm([[2], [], []])
        with self.wave0():
            if o.get('apoll') == 9:
                top, done = a.label('spin'), a.label('done')
                a(f's_mov_b32 s{sSpin}, {SPIN}')
                a('s_waitcnt lgkmcnt(0)')
                a(f's_cmp_ge_u32 s{sU2}, 15')
                a(f's_cbranch_scc1 {done}')
                a(f'{top}:')
                a(f's_mov_b32 s{sU2}, 0')
                a(f's_atomic_add s{sU2}, {sr(S_WS, 2)}, s{sT0} glc')
                a(f's_sub_u32 s{sSpin}, s{sSpin}, 1')
                a(f's_cbranch_scc1 {done}')
                a('s_waitcnt lgkmcnt(0)')
                a(f's_cmp_lt_u32 s{sU2}, 16')
                a(f's_cbranch_scc1 {top}')
                a(f'{done}:')
                a('s_waitcnt lgkmcnt(0)')
            elif o.get('apoll'):
                self.spin_atomic(f's{sT0}', 16, o['apoll'], 1)
            else:
                self.spin(S_WS, f's{sT0}', 0 if o.get('noe1') else 16, vFl)
        a('s_barrier')
        self.stamp(4)
        a(f's_sub_u32 s{sT0}, {KVM}, s0' if kvmix else f's_mov_b32 s{sT0}, {KVX}')
        for j in range(4):
            a(f'buffer_load_dwordx4 {ar(BUF[1] + 4 * j, 4)}, v{vUL}, {WS}, s{sT0} offen sc1')
            if j < 3:
                a(f's_add_u32 s{sT0}, s{sT0}, {12288 if j == 1 and not kvmix else 4096}')
        w_some(o['w_u'])
        for j in range(n2, 4):
            table(j)
        if n2 < 4:
            for t in range(8):
                a(rdA(0, t))
        a(f's_add_u32 s{sT3}, s{sXo}, {C_FXR * 256}')
        a(f's_mov_b32 s{sT4}, {XP4}')
        a(f's_cmp_lt_u32 s{sG}, 8')
        a(f's_cselect_b32 s{sT4}, s{sT4}, {XP4T - (KVXT - KVX)}')
        a(f's_add_u32 s{sT6}, s{sT6}, s{sT4}')
        a(f's_lshr_b32 s{sT4}, s{S_W}, 1')
        a(f's_lshl_b32 s{sT4}, s{sT4}, 13')
        a(f's_add_u32 s{sT6}, s{sT6}, s{sT4}')
        a(f's_mov_b32 s{sT4}, {ST1}')
        for j in range(4):
            a(f'ds_write_b128 v{vUW}, {ar(BUF[1] + 4 * j, 4)} offset:{512 + 1024 * j}')
            if j == 0:
                self.stamp('uload')
            a(rdB(0, 2 * j))
            a(rdB(0, 2 * j + 1))
        self.stamp(5)
        fx = o['fx_it']
        xl = []
        for T in range(2):
            for p in range(2):
                off = 2048 * T + 1024 * p
                xl.append([f'buffer_load_dwordx4 {vr(XR + 8 * T + 4 * p, 4)}, v{vXS}, {WS}, s{sT6} offen offset:{off} sc1'])
                xl.append([f'buffer_load_dwordx4 {vr(SR + 8 * T + 4 * p, 4)}, v{vXS}, {WS}, s{sT4} offen offset:{off} sc1'])
        if o.get('nowl'):
            wl = [g[:-1] + [[]] for g in wl]
        wt = self.w_loads_tail()
        if park:
            early, late = wl, xl + wt[:12]
            self.win_pre = [f'v_accvgpr_read_b32 v{self.WRAW[4] + i}, a{208 + i}' for i in range(32)]
            self.win_loads = wt[12:]
        else:
            early, late = wl[:-8], xl + wt
            self.win_pre = wl[-8][:-1]
            self.win_loads = [wl[-8][-1]] + wl[-7:]
        tot = len(early) + len(late)
        per = [(tot * (i + 1)) // 8 - (tot * i) // 8 for i in range(8)]
        plan = []
        for it in range(8):
            n = per[it]
            if it <= fx + 1:
                n = min(max(n, o.get('early_n', 0)), len(early))
                plan.append([early.pop(0) for _ in range(n)])
            else:
                rest = late[:8] + early + late[8:] if it == fx + 2 else rest
                early = late = []
                n = (len(rest) + 7 - it) // (8 - it)
                plan.append([rest.pop(0) for _ in range(n)])
        for it in range(8):
            A, B = BUF[it & 1], BUF[it & 1] + 32
            mf = []
            endT = []
            for T in range(8):
                c = ar(ACC + 4 * T, 4)
                if it == 0:
                    mf.append(f'v_mfma_f32_16x16x32_bf16 {c}, {ar(AD, 4)}, {ar(B + 4 * T, 4)}, 0')
                for t in range(T + 1):
                    mf.append(f'v_mfma_f32_16x16x32_bf16 {c}, {ar(A + 4 * t, 4)}, {ar(B + 4 * (T - t), 4)}, {c}')
                endT.append(len(mf) - 1)
            fill = [[] for _ in mf]
            base = 8 if it == 0 else 0
            if it < 7:
                rd = [x for t in range(8) for x in (rdA(it + 1, t), rdB(it + 1, t))]
                for i, x in enumerate(rd):
                    fill[base + 2 * i].append(x)
            zw = [f'ds_write_b128 v{vG}, {ar(ACC + 4 * T, 4)} offset:{1024 * T}' for T in range(8)]
            if it == 7:
                for T in range(o.get('z_in', 7)):
                    fill[max(endT[T] + 5, 6 + 4 * T)].append(zw.pop(0))
            n = len(plan[it])
            pos = base
            for i, g in enumerate(plan[it]):
                p = max(base + ((i + 1) * 35) // n, pos)
                k = len(g) - 1
                for z, x in enumerate(g[:-1]):
                    fill[max(pos, p - (k - z + 1) // 2)].append(x)
                fill[p].append(g[-1])
                pos = p
            if it == 0:
                for i, x in enumerate(self.clear_pst(228)):
                    fill[i].append(x)
            if it == fx:
                fill[-1].append(f'buffer_load_dword v{vFl}, off, {WS}, s{sT3} sc1')
            if it == fx + 1:
                fill[-1].append(lambda: self.check(S_WS, f's{sT3}', 0 if o.get('nofx') else 8, vFl))
            if it == 7:
                fill[0].append(f's_add_u32 s{sFW}, s{sT3}, {(C_FWR - C_FXR) * 256}')

            if it == 0:
                unp = []
                for T in range(2):
                    for row in range(4):
                        src = XR + 8 * T + 2 * row
                        xf = XF + 16 * T + 4 * row
                        st = SR + 8 * T + 2 * row
                        unp += [f'v_lshlrev_b32 v{xf}, 16, v{src}', f'v_and_b32 v{xf + 1}, s{sT2}, v{src}',
                                f'v_lshlrev_b32 v{xf + 2}, 16, v{src + 1}', f'v_and_b32 v{xf + 3}, s{sT2}, v{src + 1}']
                        unp += [f'v_fma_f32 v{xf + 32 + c}, v{xf + c}, v{st}, v{st + 1}' for c in range(4)]
            u0 = o.get('unp_at', 36 * 6 + 14)
            for i, x in enumerate(unp):
                p = u0 + (i * (36 * 8 - u0)) // 64
                if p // 36 == it:
                    fill[p % 36].append(x)
            self.stamp(f'it{it}')
            if it > 0:
                a.need(ar(A, 24 if it < 7 else 32), ar(B, 24))
            for m, f in zip(mf, fill):
                a(m)
                a(f)
        self.stamp(6)
        a(zw)
        a('s_waitcnt lgkmcnt(0)')
        a('s_barrier')
        self.stamp('zbar')
        Z = XR
        for T in range(2):
            for ch in range(4):
                a(f'ds_read_b128 {vr(Z + 16 * T + 4 * ch, 4)}, v{vZR} offset:{ch * GW + 1024 * T}')
        for T in range(2):
            for p in range(2):
                ho = XF + 32 + 16 * T + 8 * p
                for b in range(2):
                    row = 2 * p + b
                    for c in range(4):
                        x = XF + 16 * T + 4 * row + c
                        a(f'v_fmac_f32 v{x}, v{x + 32}, v{Z + 16 * T + 4 * c + row}')
                    for c2 in range(2):
                        x = XF + 16 * T + 4 * row + 2 * c2
                        a(f'v_cvt_pk_bf16_f32 v{ho + 2 * b + c2}, v{x}, v{x + 1}')
                a(f'buffer_store_dwordx4 {vr(ho, 4)}, v{vHS}, {WS}, 0 offen offset:{2048 * T + 1024 * p} sc1')
        self.stamp(7)

    def side(self):
        a = self.a
        a('.Lside:')
        a.fresh('role')
        self.stamp('sx_in')
        vTid = 1
        a(f's_sub_u32 s{sG}, s{sJ}, 20')
        a(f's_lshl3_add_u32 s{sG}, s{sG}, s{sX}')
        J2, vJ2, sG2, sJo, sJs = 136, 230, sQ, sDv, sM
        vFl = 231
        up = self.opt.get('up', 1)

        def job2_loads():
            a(f's_add_u32 s{sG2}, s{sG}, {48 if self.opt.get("pair", 1) else 0}')
            a(f's_sub_u32 s{sT0}, s{sG2}, 96')
            a(f's_cselect_b32 s{sG2}, s{sG2}, s{sT0}')
            a(f's_cmp_ge_u32 s{sG2}, 72')
            a(f's_cselect_b32 s{sT2}, s{S_WU}, s{S_WG}')
            a(f's_cselect_b32 s{sT3}, s{S_WU + 1}, s{S_WG + 1}')
            a(f's_cselect_b32 s{sT1}, 72, 48')
            a(f's_sub_u32 s{sT1}, s{sG2}, s{sT1}')
            a(f's_lshr_b32 s{sT0}, s{sG2}, 1')
            a(f's_cmp_ge_u32 s{sG2}, 48')
            a(f's_cselect_b32 s{S_WD}, s{sT2}, s{S_WD}')
            a(f's_cselect_b32 s{S_WD + 1}, s{sT3}, s{S_WD + 1}')
            a(f's_cselect_b32 s{sT0}, s{sT1}, s{sT0}')
            self.real_line(sT0, sT2)
            a(f's_and_b32 s{sT2}, s{sG2}, 1')
            a(f's_lshl1_add_u32 s{sT2}, s{sT0}, s{sT2}')
            a(f's_mul_i32 s{sT2}, s{sT2}, {32 * 1280}')
            a(f's_lshl_b32 s{sT0}, s{sT0}, 7')
            a(f's_movk_i32 s{sT1}, 1280')
            a(f's_movk_i32 s{sJs}, 128')
            a(f's_cmp_ge_u32 s{sG2}, 48')
            a(f's_cselect_b32 s{sJo}, s{sT0}, s{sT2}')
            a(f's_cselect_b32 s{sT1}, 3072, s{sT1}')
            a(f's_cselect_b32 s{sJs}, {32 * 3072}, s{sJs}')
            a(f'v_and_b32 v{vJ2}, 7, v0')
            a(f'v_lshlrev_b32 v{vJ2}, 4, v{vJ2}')
            a(f'v_lshrrev_b32 v15, 3, v{vTid}')
            a(f'v_mad_u32_u24 v{vJ2}, v15, s{sT1}, v{vJ2}')
            for j in range(10):
                a(f'buffer_load_dwordx4 {vr(J2 + 4 * j, 4)}, v{vJ2}, {sr(S_WD, 4)}, s{sJo} offen')
                a(f's_add_u32 s{sJo}, s{sJo}, s{sJs}')
        a(f's_cmp_ge_u32 s{sG}, 64')
        a.snapshot('s4')
        a('s_cbranch_scc1 .Ls4')
        XR, WR = 16, J2
        vA, vRow, vS8 = 2, 3, 4
        a(f'v_lshrrev_b32 v{vRow}, 3, v{vTid}')
        a(f'v_and_b32 v{vS8}, 7, v0')
        a(f's_lshr_b32 s{sT0}, s{sG}, 3')
        a(f's_lshl_b32 s{sT0}, s{sT0}, 8')
        a(f's_and_b32 s{sT1}, s{sG}, 3')
        a(f's_lshl2_add_u32 s{sT0}, s{sT1}, s{sT0}')
        a(f's_bfe_u32 s{sT1}, s{sG}, 0x10002')
        a(f's_lshl1_add_u32 s{sT0}, s{sT1}, s{sT0}')
        a(f'v_and_b32 v5, 0xf0, v{vTid}')
        a(f'v_and_b32 v6, 1, v{vRow}')
        a(f'v_add3_u32 v5, v5, v6, s{sT0}')
        a(f's_movk_i32 s{sT1}, 1280')
        a(f'v_lshlrev_b32 v6, 4, v{vS8}')
        a(f'v_mad_u32_u24 v5, v5, s{sT1}, v6')
        for j in range(10):
            a(f'buffer_load_dwordx4 {vr(XR + 4 * j, 4)}, v5, {sr(S_X, 4)}, 0 offen offset:{128 * j}')
        if up == 1:
            job2_loads()
        self.stamp('sx_issued')
        self.gemm_ids()
        self.w_addr()
        vW, vRd, vSt = 5, 6, 7
        a(f's_movk_i32 s{sT1}, 528')
        a(f'v_lshlrev_b32 v{vW}, 3, v{vRow}')
        a(f'v_mad_u32_u24 v{vW}, v{vS8}, s{sT1}, v{vW}')
        a(f'v_and_b32 v{vRd}, 31, v0')
        a(f'v_lshlrev_b32 v{vRd}, 4, v{vRd}')
        a(f'v_lshrrev_b32 v8, 5, v{vTid}')
        a(f'v_mad_u32_u24 v{vRd}, v8, s{sT1}, v{vRd}')
        a(f's_lshl_b32 s{sT0}, s{sG}, 8')
        a(f'v_and_b32 v{vSt}, 15, v0')
        a(f's_and_b32 s{sT1}, s{sT0}, 0x2000')
        a(f's_add_u32 s{sT1}, s{sT1}, s{sT0}')
        a(f'v_lshl_add_u32 v{vSt}, v{vSt}, 4, s{sT1}')
        a(f'v_lshrrev_b32 v8, 4, v{vTid}')
        a(f's_mov_b32 s{sT1}, {2 * QS}')
        a(f'v_mad_u32_u24 v{vSt}, v8, s{sT1}, v{vSt}')
        for j in range(10):
            for o_ in range(2):
                a(f'ds_write_b64 v{vW}, {vr(XR + 4 * j + 2 * o_, 2)} offset:{j * 4224 + o_ * 256}')
        self.stamp('sx_data')
        a(f'buffer_load_dword v{vFl}, off, {sr(S_DBG, 4)}, 0 offset:128 sc1')
        a(f'buffer_load_dword v{vFl - 2}, off, {sr(S_DBG, 4)}, 0 sc1')
        if up == 2:
            job2_loads()
            a(f's_lshl_b32 s{sT0}, s{sG}, 8')
        a('s_waitcnt lgkmcnt(0)')
        a('s_barrier')
        self.stamp('sx_bar')
        XO = 96
        for j in range(10):
            a(f'ds_read_b128 {vr(XO + 4 * j, 4)}, v{vRd} offset:{j * 4224}')
        self.get_pol(vFl)
        self.check(S_DBG, '0', 1, vFl - 2)
        a(f's_mov_b32 s{sOne}, 0x3f803f80')
        for i in range(4):
            a(f'v_mov_b32 v{8 + i}, 0')
        for j in range(10):
            a(f's_mov_b32 s{sT1}, {grp_base(j, XP4, XP4T)}')
            a(f'buffer_store_dwordx4 {vr(XO + 4 * j, 4)}, v{vSt}, {WS}, s{sT1} offen sc1')
            for i in range(4 * j, 4 * j + 4):
                a(f'v_dot2c_f32_bf16 v{8 + (i & 1)}, s{sOne}, v{XR + i}')
                a(f'v_dot2c_f32_bf16 v{10 + (i & 1)}, v{XR + i}, v{XR + i}')
        a('v_add_f32 v8, v8, v9')
        a('v_add_f32 v10, v10, v11')
        for m in ('quad_perm:[1,0,3,2]', 'quad_perm:[2,3,0,1]', 'row_half_mirror'):
            a(f'v_add_f32_dpp v8, v8, v8 {m} row_mask:0xf bank_mask:0xf')
            a(f'v_add_f32_dpp v10, v10, v10 {m} row_mask:0xf bank_mask:0xf')
        a(f'v_mul_f32 v8, {f32(1 / 640)}, v8')
        a(f'v_mul_f32 v10, {f32(1 / 640)}, v10')
        a('v_fma_f32 v10, -v8, v8, v10')
        a('v_max_f32 v10, 0, v10')
        a(f'v_add_f32 v10, {f32(1e-5)}, v10')
        a('v_rsq_f32 v10, v10')
        a(f'v_lshl_add_u32 v12, v{vRow}, 3, s{sT0}')
        a('v_mul_f32 v11, -v8, v10')
        a(f's_mov_b32 s{sT1}, {ST1}')
        a('s_mov_b32 exec_lo, 0x01010101')
        a('s_mov_b32 exec_hi, 0x01010101')
        a(f'buffer_store_dwordx2 v[10:11], v12, {WS}, s{sT1} offen sc1')
        a('s_mov_b64 exec, -1')
        a('s_branch .Lr1')
        a('.Ls4:')
        a.fresh('s4')
        T4 = 10240
        a(f's_sub_u32 s{sT4}, s{sG}, 64')
        a(f's_lshr_b32 s{sT5}, s{sT4}, 2')
        a(f's_and_b32 s{sT4}, s{sT4}, 3')
        a(f's_mul_i32 s{sT0}, s{sT4}, 160')
        a(f's_lshl3_add_u32 s{sT0}, s{S_W}, s{sT0}')
        a(f's_mul_i32 s{sT0}, s{sT0}, 3072')
        a(f's_mul_i32 s{sT1}, s{sT5}, 3')
        a(f's_add_u32 s{sT1}, s{sT1}, 1')
        self.real_line(sT1, sT2)
        a(f's_lshl_b32 s{sT1}, s{sT1}, 7')
        a(f's_add_u32 s{sT0}, s{sT0}, s{sT1}')
        a('v_lshrrev_b32 v3, 3, v0')
        a('v_and_b32 v4, 7, v0')
        a(f'v_lshl_add_u32 v2, v4, 4, s{sT0}')
        a(f's_movk_i32 s{sT1}, 3072')
        a(f'v_mad_u32_u24 v2, v3, s{sT1}, v2')
        a(f's_mov_b32 s{sT0}, 0')
        for i in range(10):
            a(f'buffer_load_dwordx4 {vr(XR + 4 * i, 4)}, v2, {sr(S_WU if i & 1 else S_WG, 4)}, s{sT0} offen')
            if i & 1:
                a(f's_add_u32 s{sT0}, s{sT0}, {32 * 3072}')
        if up == 1:
            job2_loads()
        self.stamp('sx_issued')
        self.gemm_ids()
        self.w_addr()
        a(f's_lshl_b32 s{sT0}, s{S_W}, 9')
        a(f'v_lshl_add_u32 v5, v3, 6, s{sT0}')
        a('v_and_b32 v6, 1, v0')
        a('v_lshl_add_u32 v5, v6, 4, v5')
        a('v_bfe_u32 v6, v0, 1, 2')
        a('v_lshlrev_b32 v7, 5, v6')
        a('v_xor_b32 v5, v5, v7')
        a(f's_movk_i32 s{sT0}, {T4}')
        a(f'v_mad_u32_u24 v5, v6, s{sT0}, v5')
        a('v_xor_b32 v6, 32, v5')
        a('v_lshrrev_b32 v7, 5, v0')
        a('v_bfe_u32 v8, v0, 2, 2')
        a('v_lshl_add_u32 v7, v7, 3, v8')
        a('v_lshlrev_b32 v7, 6, v7')
        a('v_and_b32 v8, 3, v0')
        a('v_lshl_add_u32 v7, v8, 4, v7')
        a('v_bfe_u32 v8, v0, 4, 1')
        a('v_lshl_add_u32 v7, v8, 3, v7')
        a(f's_lshl_b32 s{sT1}, s{S_W}, 5')
        a(f'v_xor_b32 v7, s{sT1}, v7')
        a(f's_mul_i32 s{sT1}, s{S_W}, {T4}')
        a(f'v_add_u32 v7, s{sT1}, v7')
        for i in range(10):
            a(f'ds_write_b128 v{6 if i & 1 else 5}, {vr(XR + 4 * i, 4)} offset:{(i >> 1) * 2048}')
        self.stamp('sx_data')
        a(f'buffer_load_dword v{vFl}, off, {sr(S_DBG, 4)}, 0 offset:128 sc1')
        a(f'buffer_load_dword v{vFl - 2}, off, {sr(S_DBG, 4)}, 0 sc1')
        if up == 2:
            job2_loads()
        a('s_waitcnt lgkmcnt(0)')
        a('s_barrier')
        self.stamp('sx_bar')
        for j in range(10):
            for e in range(2):
                a(f'ds_read_b64_tr_b16 {vr(XO + 4 * j + 2 * e, 2)}, v7 offset:{1024 * j + 256 * e}')
        a(f's_lshl2_add_u32 s{sT0}, s{sT5}, s{S_W}')
        a(f's_lshl2_add_u32 s{sT0}, s{sT0}, s{sT4}')
        a(f's_mul_i32 s{sT0}, s{sT0}, 10240')
        a(f's_add_u32 s{sT0}, s{sT0}, {W45F}')
        a('v_lshlrev_b32 v9, 4, v0')
        self.get_pol(vFl)
        self.check(S_DBG, '0', 1, vFl - 2)
        for j in range(10):
            if j and j & 3 == 0:
                a(f's_add_u32 s{sT0}, s{sT0}, 4096')
            a(f'buffer_store_dwordx4 {vr(XO + 4 * j, 4)}, v9, {WS}, s{sT0} offen offset:{(j & 3) * 1024} sc1')
        a('.Lr1:')
        a.fresh()
        self.stamp('sx_st')
        o = self.opt
        assert up >= 1
        a(f's_mov_b32 s{sG}, s{sG2}')
        a(f's_mov_b32 s{sSide}, s{sG2}')
        self.w_select()
        WB = 49152
        T0 = 216
        na, nb, nc = o.get('sw_a', 10), o.get('sw_b', 10), o.get('sw_c', 12)
        assert na + nb + nc <= 32

        def end_r1(younger):
            self.stamp('sx_ld2')
            a(f's_waitcnt vmcnt({younger})')
            a('s_barrier')
            self.stamp('sx_dr')
            self.arrive_start([(sArr, C_FX)])
        a(f's_cmp_ge_u32 s{sG}, 48')
        a('s_cbranch_scc1 .Ls2')
        wl = self.w_loads_main()
        a(wl[:na])
        v8, v9, v10 = T0, T0 + 1, T0 + 2
        a(f'v_lshrrev_b32 v{vRow}, 3, v{vTid}')
        a(f'v_and_b32 v{vS8}, 7, v0')
        a(f's_movk_i32 s{sT1}, 1344')
        a(f'v_lshlrev_b32 v{vW}, 4, v{vS8}')
        a(f'v_mad_u32_u24 v{vW}, v{vRow}, s{sT1}, v{vW}')
        a(f'v_lshrrev_b32 v{v8}, 4, v0')
        a(f'v_bfe_u32 v{v9}, v0, 2, 2')
        a(f'v_lshl_add_u32 v{v8}, v{v8}, 3, v{v9}')
        a(f's_mul_i32 s{sT0}, s{S_W}, 320')
        a(f'v_mov_b32 v{v9}, s{sT0}')
        a(f'v_mad_u32_u24 v{v8}, v{v8}, s{sT1}, v{v9}')
        a(f'v_and_b32 v{v9}, 3, v0')
        a(f'v_lshl_add_u32 v{v10}, v{v9}, 3, v{v8}')
        a(f'v_lshl_add_u32 v{v8}, v{v9}, 4, v{v8}')
        end_r1(na)
        q = wl[na:na + nb]
        for j in range(10):
            a(f'ds_write_b128 v{vW}, {vr(WR + 4 * j, 4)} offset:{WB + 128 * j}')
            if q and j < o.get('sw_b1', 4):
                a(q.pop(0))
        self.arrive_finish([(sArr, 11, C_FXR)], v9)
        self.stamp(1)
        a(q)
        a('s_barrier')
        for cc in range(2):
            for nt in range(5):
                for e in range(2):
                    off = WB + cc * 160 + e * 4 * 1344 + ((nt >> 1) * 64 + (nt & 1) * 8)
                    a(f'ds_read_b64_tr_b16 {ar(4 * (5 * cc + nt) + 2 * e, 2)}, v{v10 if nt == 4 else v8} offset:{off}')
        a(f's_mul_i32 s{sT0}, s{S_W}, 96')
        a(f's_add_u32 s{sT0}, s{sT0}, s{sG}')
        a(f's_mul_i32 s{sT0}, s{sT0}, 5120')
        a(f's_add_u32 s{sT0}, s{sT0}, {WDF}')
        a(f'v_lshlrev_b32 v{v9}, 4, v0')
        for cc in range(2):
            for nt in range(5):
                if nt == 4:
                    a(f's_add_u32 s{sT0}, s{sT0}, 4096')
                a(f'buffer_store_dwordx4 {ar(4 * (5 * cc + nt), 4)}, v{v9}, {WS}, s{sT0} offen offset:{(nt & 3) * 1024} sc1')
            a(f's_add_u32 s{sT0}, s{sT0}, {48 * 5120 - 4096}')
        a('s_branch .Lr2')
        a('.Ls2:')
        a.fresh()
        AC = T0 + 4
        for i in range(10, 20):
            a(f'buffer_load_dwordx4 {vr(J2 + 4 * i, 4)}, v{vJ2}, {sr(S_WD, 4)}, s{sJo} offen')
            a(f's_add_u32 s{sJo}, s{sJo}, s{sJs}')
        for i in range(8):
            a(f'v_mov_b32 v{AC + i}, 0')
        a(f's_mov_b32 s{sT4}, 0x3f80')
        a(f's_mov_b32 s{sT3}, 0x3f800000')
        end_r1(10)
        q = self.w_loads_main()[:na + nb]
        for i in range(80):
            a(f'v_dot2c_f32_bf16 v{AC + 2 * (i & 3)}, s{sT4}, v{J2 + i}')
            a(f'v_dot2c_f32_bf16 v{AC + 1 + 2 * (i & 3)}, s{sT3}, v{J2 + i}')
            if i == 39:
                self.arrive_finish([(sArr, 11, C_FXR)], T0)
                self.stamp(1)
            if i & 1 and i > 39 and q:
                a(q.pop(0))
        a(q)
        a(f'v_lshlrev_b32 v5, 5, v{vTid}')
        a(f'ds_write_b128 v5, {vr(AC, 4)} offset:{WB}')
        a(f'ds_write_b128 v5, {vr(AC + 4, 4)} offset:{WB + 16}')
        a('s_waitcnt lgkmcnt(0)')
        a('s_barrier')
        a('v_bfe_u32 v6, v0, 1, 4')
        a('v_and_b32 v7, 32, v0')
        a('v_add_u32 v6, v6, v7')
        a('v_and_b32 v7, 1, v0')
        a('v_lshl_add_u32 v6, v7, 4, v6')
        a('v_lshlrev_b32 v6, 2, v6')
        for i in range(16):
            a(f'ds_read2st64_b32 {vr(J2 + 2 * i, 2)}, v6 offset0:{WB // 256 + 2 * i} offset1:{WB // 256 + 2 * i + 1}')
        for i in range(1, 16):
            a(f'v_pk_add_f32 {vr(J2, 2)}, {vr(J2, 2)}, {vr(J2 + 2 * i, 2)}')
        a(f'v_add_f32 v{J2}, v{J2}, v{J2 + 1}')
        a(f'v_cvt_pk_bf16_f32 v{T0}, v{J2}, v{J2}')
        a(f'v_lshlrev_b32 v7, 16, v{T0}')
        a(f'v_sub_f32 v7, v{J2}, v7')
        a(f'v_cvt_pk_bf16_f32 v{T0 + 1}, v7, v7')
        a(f's_sub_u32 s{sT0}, s{sG}, 48')
        a(f's_lshl_b32 s{sT0}, s{sT0}, 9')
        a(f's_add_u32 s{sT0}, s{sT0}, {CSF}')
        a('v_lshlrev_b32 v6, 3, v0')
        a(f'buffer_store_dwordx2 {vr(T0, 2)}, v6, {WS}, s{sT0} offen sc1')
        a('.Lr2:')
        a.fresh()
        self.stamp(2)
        a(f's_lshr_b32 s{sT0}, s{sG}, 5')
        a(f's_and_b32 s{sT1}, s{sG}, 15')
        a(f's_lshl4_add_u32 s{sT0}, s{sT0}, s{sT1}')
        a(f's_and_b32 s{sT1}, s{sG}, 16')
        a(f's_lshl2_add_u32 s{sT0}, s{sT1}, s{sT0}')
        a(f's_lshl_b32 s{sT0}, s{sT0}, 7')
        a(f's_add_u32 s{sT0}, s{sT0}, {CF3}')
        a('v_mov_b32 v4, 0')
        a('v_and_b32 v5, 31, v0')
        a('v_lshlrev_b32 v5, 2, v5')
        a(f'buffer_store_dword v4, v5, {WS}, s{sT0} offen sc1')
        a(self.clear_pst(2))
        n0 = na + nb + nc
        a(wl[na + nb:n0])
        a(f's_add_u32 s{sT4}, s{sXo}, {C_FXR * 256}')
        a(f's_add_u32 s{sFW}, s{sT4}, {(C_FWR - C_FXR) * 256}')
        a.drain_stores()
        a('s_waitcnt lgkmcnt(0)')
        a('s_barrier')
        self.stamp(6)
        self.arrive_start([(sArr, C_B1), (sJs, C_FW)])
        a(f'buffer_load_dword v1, off, {WS}, s{sT4} sc1')

        def mid():
            self.arrive_finish([(sJs, 11, C_FWR), (sArr, 31, C_B2)], T0)
            self.check(S_WS, f's{sT4}', 8, 1)
        self.side_window(wl[n0:], mid)
        a(f's_waitcnt vmcnt({self.opt["wd_pre"]})')
        self.stamp(7)
        a('s_branch .Ljoin')

    def signal(self, soff):
        a = self.a
        if self.opt['sig'] == 's':
            a(f's_atomic_add s{sU2}, {sr(S_WS, 2)}, {soff}')
        else:
            a('s_mov_b64 exec, 1')
            a(f'buffer_atomic_add v{self.vOne}, off, {WS}, {soff} sc1')
            a('s_mov_b64 exec, -1')

    def gemms(self):
        a = self.a
        o = self.opt
        t, t2 = self.vTmp, self.vTmp2
        L, AB = 0, 8
        vRD = 4
        vAL, vAS, vA2, vWD, vWD2, vCS, vFl = 1, 2, 3, 247, 255, 246, 254
        vW5 = 252
        vS = 232
        BP = 236
        TM = 242
        ACC = 168
        RING1, CS, RING2 = 124, 148, 240
        sF3s, sF3p = sQ, sM
        sRB2w = sG
        kap = [[3 * c + ((pi + 1) % 3 if c & 1 else pi) for c in range(4)] for pi in range(3)]
        wd = []
        for i in range(60):
            g = []
            if i % 5 == 0:
                g.append(f's_mov_b32 s{sWoff}, {WDF + 5120 * kap[i // 20][i // 5 % 4]}')
            g.append(f'buffer_load_dwordx4 {ar(4 * i, 4)}, v{vWD2 if i % 5 == 4 else vWD}, {WS}, s{sWoff} offen offset:{(i % 5 & 3) * 1024} sc1')
            wd.append(g)
        if o.get('nowd'):
            wd = [[] for _ in wd]
        real, setup0 = a, []
        a = setup0.append
        a(f's_and_b32 s{sT0}, s{sJ}, 7')
        a(f's_lshl2_add_u32 s{sT0}, s{sT0}, s{S_W}')
        a(f's_mul_i32 s{sT0}, s{sT0}, {12 * 5120}')
        a(f'v_lshl_add_u32 v{vWD}, v0, 4, s{sT0}')
        a(f'v_add_u32 v{vWD2}, 0x1000, v{vWD}')
        a(f'v_lshlrev_b32 v{vRD}, 4, v0')
        for s in range(1, 4):
            a(f'v_xor_b32 v{t}, {16 * s}, v{vRD}')
            a(f'v_add_u32 v{vRD + s}, {TILE * s}, v{t}')
        a(f'v_lshl_add_u32 v{vW5}, s{S_W}, 10, v{vRD}')
        a(f'v_lshl_add_u32 v{vW5 + 1}, s{S_W}, 10, v{vRD + 1}')
        a(f's_lshl2_add_u32 s{sT0}, s{sRB}, s{S_W}')
        a(f's_lshl_b32 s{sT1}, s{sT0}, 8')
        a(f'v_and_b32 v{t}, 15, v0')
        a(f'v_lshlrev_b32 v{vA2}, 4, v{t}')
        a(f'v_add_u32 v{t}, s{sT1}, v{vA2}')
        a(f'v_lshrrev_b32 v{t2}, 4, v0')
        a(f's_mov_b32 s{sT1}, {QS}')
        a(f'v_mad_u32_u24 v{vAL}, v{t2}, s{sT1}, v{t}')
        a(f'v_lshl_add_u32 v{vA2}, v{t2}, 9, v{vA2}')
        def act_blk(dst, n, tmp):
            a(f's_and_b32 s{tmp}, s{n}, 7')
            a(f's_mul_i32 s{dst}, s{tmp}, 196608')
            a(f's_bfe_u32 s{tmp}, s{n}, 0x20003')
            a(f's_lshl_b32 s{tmp}, s{tmp}, 22')
            a(f's_add_u32 s{dst}, s{dst}, s{tmp}')
            a(f's_lshr_b32 s{tmp}, s{n}, 5')
            a(f's_lshl_b32 s{tmp}, s{tmp}, 13')
            a(f's_add_u32 s{dst}, s{dst}, s{tmp}')

        def f3_line(r, tmp):
            a(f's_and_b32 s{tmp}, s{r}, 16')
            a(f's_mul_i32 s{tmp}, s{tmp}, 3')
            a(f's_add_u32 s{r}, s{r}, s{tmp}')
            a(f's_lshl_b32 s{r}, s{r}, 7')
            a(f's_add_u32 s{r}, s{r}, {CF3}')
        act_blk(sT1, sT0, sT4)
        a(f'v_lshl_add_u32 v{vAS}, v0, 4, s{sT1}')
        a(f's_lshr_b32 s{sF3s}, s{sT0}, 1')
        f3_line(sF3s, sT4)
        a(f's_lshr_b32 s{sT1}, s{sJ}, 3')
        a(f's_lshl2_add_u32 s{sF3p}, s{sX}, s{sT1}')
        a(f's_lshl_b32 s{sRB2w}, s{sF3p}, 1')
        f3_line(sF3p, sT4)
        for i in range(4):
            a(f's_add_u32 s{sT0}, s{sRot}, {i}')
            a(f's_and_b32 s{sT0}, s{sT0}, 3')
            a(f's_mul_i32 s{sT1}, s{sT0}, {40 * QS}')
            a(f's_add_u32 s{sT1}, s{sT1}, {HP4}')
            a([f's_cmp_lt_u32 s{sT0}, 3', f's_cselect_b32 s{sAB + i}, s{sT1}, {HP4T}'])
        a(f'v_and_b32 v{t}, 3, v0')
        a(f'v_bfe_u32 v{t2}, v0, 2, 1')
        a(f'v_lshl_add_u32 v{t}, v{t2}, 3, v{t}')
        a(f'v_bfe_u32 v{t2}, v0, 4, 1')
        a(f'v_lshl_add_u32 v{t}, v{t2}, 2, v{t}')
        a(f'v_lshlrev_b32 v{t}, 4, v{t}')
        a(f'v_bfe_u32 v{t2}, v0, 3, 1')
        a(f's_movk_i32 s{sT1}, 12288')
        a(f'v_mad_u32_u24 v{vCS}, v{t2}, s{sT1}, v{t}')
        for i in range(4):
            a(f'v_mov_b32 v{vS + i}, 0')
        a(f's_mov_b32 s{sOne}, 0x3f803f80')
        a(f's_mov_b32 s{sU2}, 1')
        a(f's_lshl_b32 s{sT2}, s{sA}, 7')
        a(f's_add_u32 s{sT2}, s{sT2}, {CSF}')
        a(f's_lshl_b32 s{sT3}, s{sB}, 7')
        a(f's_add_u32 s{sT3}, s{sT3}, {CSF}')
        for r in (sA, sB):
            a(f's_and_b32 s{sT0}, s{r}, -8')
            a(f's_add_u32 s{r}, s{r}, s{sT0}')
            a(f's_lshl_b32 s{r}, s{r}, 10')
            a(f's_add_u32 s{r}, s{r}, {ACT}')
        act_blk(sT6, sRB2w, sT4)
        a(f's_mul_i32 s{sT5}, s{S_W}, 49152')
        a(f's_add_u32 s{sT5}, s{sT5}, s{sT6}')
        for lam in range(4):
            a(f's_xor_b32 s{sT0}, s{S_W}, {lam}')
            a(f's_lshr_b32 s{sT1}, s{sT0}, 1')
            a(f's_mul_i32 s{sT1}, s{sT1}, 196608')
            a(f's_and_b32 s{sT0}, s{sT0}, 1')
            a(f's_lshl_b32 s{sT0}, s{sT0}, 8')
            a(f's_add_u32 s{sT0}, s{sT0}, s{sT5}')
            a(f's_add_u32 s{sL[lam]}, s{sT1}, s{sT0}')
        sRes, sOutB, sQS = 20, 21, 22
        a(f's_lshr_b32 s{sT0}, s{S_W}, 1')
        a(f's_add_u32 s{sT0}, s{sT0}, s{sRB2w}')
        a(f's_lshl_b32 s{sRes}, s{sT0}, 8')
        a(f's_and_b32 s{sT4}, s{S_W}, 1')
        a(f's_lshl3_add_u32 s{sRes}, s{sT4}, s{sRes}')
        a(f's_and_b32 s{sT5}, s{sJ}, 7')
        a(f's_mul_i32 s{sT6}, s{sT5}, {20 * QS}')
        a(f's_add_u32 s{sRes}, s{sRes}, s{sT6}')
        a(f's_mov_b32 s{sT6}, {HP4}')
        a([f's_cmp_lt_u32 s{sT5}, 6', f's_cselect_b32 s{sT6}, s{sT6}, {HP4T - 120 * QS}'])
        a(f's_add_u32 s{sRes}, s{sRes}, s{sT6}')
        a(f's_mov_b32 s{sQS}, {QS}')
        a(f's_lshr_b32 s{sOutB}, s{sRB2w}, 3')
        a(f's_lshl_b32 s{sOutB}, s{sOutB}, 8')
        a(f's_and_b32 s{sT6}, s{sT0}, 3')
        a(f's_lshl2_add_u32 s{sOutB}, s{sT6}, s{sOutB}')
        a(f's_bfe_u32 s{sT6}, s{sRB2w}, 0x10002')
        a(f's_lshl1_add_u32 s{sOutB}, s{sT6}, s{sOutB}')
        a(f's_add_u32 s{sOutB}, s{sOutB}, s{sT4}')
        a(f's_mul_i32 s{sOutB}, s{sOutB}, 1280')
        a(f's_mul_i32 s{sT6}, s{sT5}, 160')
        a(f's_add_u32 s{sOutB}, s{sOutB}, s{sT6}')
        a(f's_lshl_b32 s{sU0}, s{sCB}, 8')
        a(f's_add_u32 s{sU0}, s{sU0}, {PST}')
        a(f's_mov_b32 s{sU1}, {PST}')
        a(f's_and_b32 s{sCB}, s{sCB}, 3')
        a(f's_mul_i32 s{sCB}, s{sCB}, 10')
        a = real
        nw = 40 - 8 * o.get('defer', 2)
        wdp = [wd.pop(0) for _ in range(o['wd_pre'])]

        def mixer(ww, setup, lq, per=6):
            def some(n, nl):
                for i in range(n):
                    a(ww.pop(0))
                    for _ in range(per):
                        if setup:
                            a(setup.pop(0))
                    for _ in range(((i + 1) * nl) // n - (i * nl) // n):
                        if lq:
                            a(lq.pop(0))
            return some

        def side_window(wl, fx_check):
            ww, setup = self.w_writes_main()[:nw], list(setup0)
            self.w_write_addr()
            lq = list(wl)
            hold = [x for x in setup if isinstance(x, str) and (f'v{vW5},' in x or f's{sU1},' in x)]
            setup = [x for x in setup if x not in hold]
            some = mixer(ww, [], lq)
            nl = len(lq)
            n_ = min(nl, nw - 8)
            assert all(40 - nl + (i * nl) // n_ >= 8 * (i // 8 + 1) for i in range(n_))
            some(n_, nl)
            fx_check()
            lq += self.w_loads_tail()
            if o.get('outpf', 1):
                a(f's_lshr_b32 s{sT0}, s{sSide}, 3')
                a(f's_lshl2_add_u32 s{sT0}, s{sT0}, s{S_W}')
                a(f's_mul_i32 s{sT0}, s{sT0}, {22 * 320}')
                a(f's_and_b32 s{sSide}, s{sSide}, 7')
                a(f's_mul_i32 s{sSide}, s{sSide}, {256 * 1280}')
                a(f's_add_u32 s{sSide}, s{sSide}, s{sT0}')
                a(f'v_min_u32 v{TM}, 21, v0')
                a(f'v_mul_u32_u24 v{TM}, 320, v{TM}')
                lq.insert(o.get('pf_pos', 20), f'buffer_load_dword a255, v{TM}, {sr(S_OUT, 4)}, s{sSide} offen offset:160')
            lq.append(f'buffer_load_dword v{TM + 1}, off, {WS}, s{sFW} sc1')
            mixer(ww, setup, lq)(len(ww), len(lq))
            a(setup)
            a(hold)
            if wdp:
                self.check(S_WS, f's{sFW}', 0 if o.get('nofw') else 8, TM + 1)
            a(wdp)
        self.side_window = side_window
        ww = self.w_writes_main()
        setup = self.win_pre + setup0
        lq = list(self.win_loads)
        n1, n2 = o.get('ww1', 13), o.get('ww2', 7)
        self.w_write_addr()
        a('s_barrier')
        self.stamp('hbar')
        some = mixer(ww, setup, lq, o.get('su_per', 7))
        assert 5 * o.get('su_per', 7) >= len(self.win_pre)
        some(5, 0)
        fwe = o.get('fwe', 1)
        if wdp and fwe:
            a(f'buffer_load_dword v{TM + 1}, off, {WS}, s{sFW} sc1')
        hold = [x for x in setup if isinstance(x, str) and (f'v{vW5},' in x or f's{sU1},' in x)]
        setup[:] = [x for x in setup if x not in hold]
        some(n1 - 5, o.get('l1', 8))
        self.stamp('hissued')
        a.drain_stores()
        self.stamp('hdrained')
        a('s_barrier')
        self.stamp('hbar2')
        self.arrive_start([(sArr, C_B1)])
        if wdp and not fwe:
            a(f'buffer_load_dword v{TM + 1}, off, {WS}, s{sFW} sc1')
        if wdp and fwe:
            self.check(S_WS, f's{sFW}', 0 if o.get('nofw') else 8, TM + 1)
            nl2 = len(lq) + o.get('l2', 8)
            lq += wdp
            some(n2, nl2)
        else:
            some(n2, len(lq))
        self.arrive_finish([(sArr, 31, C_B2)], TM)
        self.stamp('arrived')
        if wdp and not fwe:
            self.check(S_WS, f's{sFW}', 0 if o.get('nofw') else 8, TM + 1)
            lq += wdp
        some(nw - n1 - n2, len(lq))
        a(setup)
        a(hold)
        a(lq)
        a('.Ljoin:')
        self.stamp('wwritten')
        a(f's_add_u32 s{sT0}, s{sXo}, {C_B2 * 256}')
        self.warm([[3, 6], [4, 7], [5]])
        with self.wave0():
            self.spin(S_WS, f's{sT0}', 0 if o.get('noe2') else 8, t)
        self.stamp('polled')
        a('s_waitcnt lgkmcnt(0)')
        a('s_barrier')
        self.stamp(8)
        al = []
        for j in range(40):
            if j % 10 == 0:
                al.append([f'buffer_load_dwordx4 {vr(AB + 4 * j, 4)}, v{vAL}, {WS}, s{sAB + j // 10} offen sc1'])
            else:
                al.append([f's_add_u32 s{sT1}, s{sAB + j // 10}, {(j % 10) * 4 * QS}',
                           f'buffer_load_dwordx4 {vr(AB + 4 * j, 4)}, v{vAL}, {WS}, s{sT1} offen sc1'])
        al.append(f'buffer_load_dwordx4 {ar(CS, 4)}, v{vCS}, {WS}, s{sT2} offen sc1')
        al.append(f'buffer_load_dwordx4 {ar(CS + 4, 4)}, v{vCS}, {WS}, s{sT2} offen offset:256 sc1')
        al.append(f'buffer_load_dwordx4 {ar(CS + 8, 4)}, v{vCS}, {WS}, s{sT3} offen sc1')
        for _ in range(o['a_ahead']):
            a(al.pop(0))

        def rd(dst, slot, j):
            return f'ds_read_b128 {ar(dst, 4)}, v{vRD + slot} offset:{1024 * j}'

        def swaps(j):
            return [f'v_permlane16_swap_b32 v{AB + 4 * j + e}, v{AB + 4 * j + 2 + e}' for e in range(2)]

        def acc(slot):
            return vr(ACC + 16 * slot, 16)
        wtail = [f'ds_write_b128 v{vW5 + (i & 1)}, {ar(160 + 4 * i, 4)} offset:{(i >> 1) * 4096}' for i in range(20)]
        if o.get('nowt'):
            wtail = [[] for _ in wtail]
        C0, C1, R = vS, vS + 1, vS + 2
        c0 = -2.0 * 0.7978845608028654 * 1.4426950408889634
        G = ACC + 48
        gather = [f'buffer_load_dwordx2 {vr(G + 2 * s, 2)}, v{self.vPS}, {WS}, s{sU1} offen offset:{256 * s} sc1'
                  for s in range(8)]
        valid = [f'v_or3_b32 v{t}, v{G + 1}, v{G + 3}, v{G + 5}', f'v_or3_b32 v{t2}, v{G + 7}, v{G + 9}, v{G + 11}',
                 f'v_or3_b32 v{t}, v{t}, v{G + 13}, v{G + 15}', f'v_or_b32 v{t}, v{t}, v{t2}',
                 f'v_cmp_gt_i32 vcc, 0, v{t}']

        def chk_stats():
            slow, back = a.label('slow'), a.label('back')
            a('s_nop 1')
            a(f's_cbranch_vccnz {slow}')
            a(f'{back}:')

            def cold():
                top = a.label('top')
                a(f'{slow}:')
                with a.untracked():
                    a(f's_mov_b32 s{sSpin}, {SPIN}')
                    a(f'{top}:')
                    a(gather)
                    a('s_waitcnt vmcnt(0)')
                    a(valid)
                    a(f's_sub_u32 s{sSpin}, s{sSpin}, 1')
                    a(f's_cbranch_scc1 {back}')
                    a('s_nop 3')
                    a(f's_cbranch_vccnz {top}')
                    a(f's_branch {back}')
            self.cold.append(cold)
        halves = [
            f'v_add_f32 v{vS}, v{vS}, v{vS + 1}',
            f'v_add_f32 v{vS + 2}, v{vS + 2}, v{vS + 3}',
            f'v_mov_b32 v{vS + 1}, v{vS}',
            f'v_mov_b32 v{vS + 3}, v{vS + 2}',
            f'v_cmp_gt_u32 vcc, 32, v{L}',
            f'v_permlane32_swap_b32 v{vS}, v{vS + 1}',
            f'v_permlane32_swap_b32 v{vS + 2}, v{vS + 3}']
        pub = halves + [
            f'v_add_f32 v{G}, v{vS}, v{vS + 1}',
            f'v_add_f32 v{G + 1}, v{vS + 2}, v{vS + 3}',
            f'v_and_b32 v{G + 1}, 0x7fffffff, v{G + 1}',
            ['s_mov_b32 exec_hi, 0',
             f'buffer_store_dwordx2 {vr(G, 2)}, v{self.vPS}, {WS}, s{sU0} offen sc1',
             's_mov_b32 exec_hi, -1']]
        st = valid + [chk_stats]
        for w_ in range(2):
            g = G + w_
            st += [f'v_add_f32 v{g}, v{g}, v{g + 2}', f'v_add_f32 v{g + 4}, v{g + 4}, v{g + 6}',
                   f'v_add_f32 v{g + 8}, v{g + 8}, v{g + 10}', f'v_add_f32 v{g + 12}, v{g + 12}, v{g + 14}',
                   f'v_add_f32 v{vS + 2 * w_}, v{g}, v{g + 4}', f'v_add_f32 v{vS + 2 * w_ + 1}, v{g + 8}, v{g + 12}']
        st += halves + [
            f'v_add_f32 v{vS}, v{vS}, v{vS + 1}',
            f'v_add_f32 v{vS + 2}, v{vS + 2}, v{vS + 3}',
            f'v_mul_f32 v{vS}, {f32(-1 / 640)}, v{vS}',
            f'v_mul_f32 v{vS + 2}, {f32(1 / 640)}, v{vS + 2}',
            f'v_cvt_pk_bf16_f32 v{t}, v{vS}, v{vS}',
            f'v_fma_f32 v{R}, -v{vS}, v{vS}, v{R}',
            f'v_lshlrev_b32 v{t}, 16, v{t}',
            f'v_max_f32 v{R}, 0, v{R}',
            f'v_sub_f32 v{t2}, v{vS}, v{t}',
            f'v_add_f32 v{R}, {f32(1e-5)}, v{R}',
            f'v_cvt_pk_bf16_f32 v{t}, v{t}, v{t2}',
            f'v_rsq_f32 v{vS + 3}, v{R}',
            f'v_cndmask_b32 v{BP + 2}, 0, v{t}, vcc',
            f'v_cndmask_b32 v{BP + 3}, 0, v{t}, vcc',
            f'v_mul_f32 v{C0}, {f32(c0)}, v{vS + 3}',
            f'v_mul_f32 v{t}, v{vS + 3}, v{vS + 3}',
            f'v_mul_f32 v{t}, {f32(0.044715)}, v{t}',
            f'v_mul_f32 v{C1}, v{t}, v{C0}',
        ]

        def csm(tile, slot, first):
            b = vr(BP, 4) if tile & 1 else vr(BP + 2, 4)
            return f'v_mfma_f32_32x32x16_bf16 {acc(slot)}, {ar(CS + 4 * (tile >> 1), 4)}, {b}, {"0" if first else acc(slot)}'

        def pick(r0, r1):
            a(f's_set_gpr_idx_on s{sCB}, gpr_idx(SRC0)')
            a('s_nop 0')
            for r in range(r0, r1):
                a(f'v_mov_b32_e32 v{G + r}, v{AB + r}')
            a('s_set_gpr_idx_off')
        for j in range(2):
            for s in range(3):
                a(rd(RING1 + 12 * j + 4 * s, s, j))
        a(swaps(0))
        self.stamp('a0')
        p2 = [(3, 3, j) for j in range(40)] + [(4, 0, j) for j in range(40)] + [(5, 1, j) for j in range(40)]
        gq = list(gather)
        GJ, SJ = o.get('gather_j', 22), o.get('stat_j', 33)
        B1, B2 = 21, 33
        nwd1 = min(o.get('wd_p1', 6), 31 - o['wd_pre'])
        assert o['a_ahead'] <= (14 if o.get('defer', 2) == 2 else 23)
        for j in range(40):
            base = RING1 + 12 * (j & 1)
            self.stamp(f'p{j}')
            a.need(ar(base, 12))
            for s in range(3):
                c = '0' if j == 0 else acc(s)
                a(f'v_mfma_f32_32x32x16_bf16 {acc(s)}, {ar(base + 4 * s, 4)}, {vr(AB + 4 * j, 4)}, {c}')
                if j < 38:
                    a(rd(base + 4 * s, s, j + 2))
                else:
                    i = (j - 38) * 3 + s
                    if i < 4:
                        a(rd(RING2 + 4 * i, p2[i][1], p2[i][2]))
                if s == 0 and j < 39:
                    a(swaps(j + 1))
                if s == 1 and (B1 < j <= B1 + 10 or B2 < j):
                    a(wtail.pop(0))
                if s != 1 and j >= GJ and gq:
                    a(gq.pop(0))
                if s == 2:
                    if al:
                        a(al.pop(0))
                    elif nwd1 and not gq and j < o.get('wd1_hi', 40):
                        a(wd.pop(0))
                        nwd1 -= 1
                if j not in (8, 9) and ww:
                    if s == 0:
                        while len(ww[0]) > 1:
                            a(ww[0].pop(0))
                    if s == 1:
                        a(ww.pop(0))
                if s == 2 and j not in (7, 8) and ww:
                    a(ww[0].pop(0))
                    a(ww[0].pop(0))
                if j == 19 and s == 1:
                    assert not ww
                    for i in (0, 1, 4, 5):
                        a(f'v_mov_b32 v{BP + i}, 0')
                if j == 8 and s == 1:
                    pick(0, 4)
                if j == 9 and s == 1:
                    pick(4, 10)
                if j in (10, 11) and s != 1:
                    for _ in range(3):
                        if pub:
                            a(pub.pop(0))
                if j >= SJ:
                    for _ in range((3, 0 if j > B2 else 5, 4)[s]):
                        if st:
                            a(st.pop(0))
            if j in (B1, B2):
                a('s_barrier')
            if j == 9:
                for r in range(10):
                    a(f'v_dot2c_f32_bf16 v{vS + (r & 1)}, s{sOne}, v{G + r}')
                    a(f'v_dot2c_f32_bf16 v{vS + 2 + (r & 1)}, v{G + r}, v{G + r}')
        assert not pub and not al and not st
        a(st)
        RES, vRes, vRes2 = 200, vAL, vCS
        res_addr = [
            f'v_and_b32 v{vRes}, 15, v{L}',
            f'v_lshl_add_u32 v{vRes2}, v{vRes}, 4, s{sRes}',
            f'v_lshrrev_b32 v{vRes}, 4, v{L}',
            f'v_mad_u32_u24 v{vRes2}, v{vRes}, s{sQS}, v{vRes2}',
            f'v_mad_u32_u24 v{vRes}, v{vRes}, s{sQS}, v{vRes2}',
        ]
        a('s_barrier')
        for tl in range(3):
            a(csm(tl, tl, False))
            a(res_addr if tl == 0 else wtail.pop(0))
        self.stamp(9)

        def epi(tile, slot, packed=False):
            b = ACC + 16 * slot
            tm = [TM, TM + 1, TM + 2, TM + 3]
            ops = []
            for h in range(2):
                g, u = b + 8 * h, b + 8 * h + 4
                if packed:
                    P = lambda r, i: vr(r + 2 * i, 2)
                    cc, rr = vr(C0, 2), vr(R, 2)
                    ops += [(1, f'v_pk_mul_f32 {P(TM, i)}, {P(g, i)}, {P(g, i)}') for i in range(2)]
                    ops += [(1, f'v_pk_fma_f32 {P(TM, i)}, {P(TM, i)}, {cc}, {cc} op_sel:[0,1,0] op_sel_hi:[1,1,0]') for i in range(2)]
                    ops += [(1, f'v_pk_mul_f32 {P(u, i)}, {P(u, i)}, {P(g, i)}') for i in range(1)]
                    ops += [(1, f'v_pk_mul_f32 {P(TM, i)}, {P(TM, i)}, {P(g, i)}') for i in range(2)]
                    ops += [(2, f'v_exp_f32 v{tm[i]}, v{tm[i]}') for i in range(4)]
                    ops += [(1, f'v_pk_mul_f32 {P(u, i)}, {P(u, i)}, {P(g, i)}') for i in range(1, 2)]
                    ops += [(1, f'v_pk_fma_f32 {P(TM, i)}, {P(TM, i)}, {rr}, {rr} op_sel:[0,0,0] op_sel_hi:[1,0,0]') for i in range(2)]
                    ops += [(2, f'v_rcp_f32 v{tm[i]}, v{tm[i]}') for i in range(4)]
                    ops += [(1, f'v_pk_mul_f32 {P(u, i)}, {P(u, i)}, {P(TM, i)}') for i in range(2)]
                    ops += [(1, f'v_cvt_pk_bf16_f32 v{b + 2 * h + i}, v{u + 2 * i}, v{u + 2 * i + 1}') for i in range(2)]
                    continue
                ops += [(1, f'v_mul_f32 v{tm[i]}, v{g + i}, v{g + i}') for i in range(4)]
                ops += [(1, f'v_fma_f32 v{tm[i]}, v{tm[i]}, v{C1}, v{C0}') for i in range(4)]
                ops += [(1, f'v_mul_f32 v{tm[i]}, v{tm[i]}, v{g + i}') for i in range(4)]
                for i in range(4):
                    ops += [(2, f'v_exp_f32 v{tm[i]}, v{tm[i]}'), (1, f'v_mul_f32 v{u + i}, v{u + i}, v{g + i}')]
                ops += [(1, f'v_fma_f32 v{tm[i]}, v{tm[i]}, v{R}, v{R}') for i in range(4)]
                ops += [(2, f'v_rcp_f32 v{tm[i]}, v{tm[i]}') for i in range(4)]
                ops += [(1, f'v_mul_f32 v{u + i}, v{u + i}, v{tm[i]}') for i in range(4)]
                ops += [(1, f'v_cvt_pk_bf16_f32 v{b + 2 * h + i}, v{u + 2 * i}, v{u + 2 * i + 1}') for i in range(2)]
            so = sA if tile < 4 else sB
            txt = f'buffer_store_dwordx4 {vr(b, 4)}, v{vAS}, {WS}, s{so} offen offset:{(tile & 3) * 1024} sc1'
            ops.append((5, (lambda: a(txt, tag=f'act{tile}')) if not o.get('nost') else []))
            if o.get('noepi'):
                ops = [(c_, x if callable(x) else []) for c_, x in ops]
            return ops

        G2 = 72
        FR = [[8 + 4 * i for i in range(16)],
              [152 + 4 * i for i in range(4)] + [200 + 4 * i for i in range(8)] + [168 + 4 * i for i in range(4)],
              [8 + 4 * i for i in range(16)]]
        order = [[(c, lam) for lam in (3, 2, 1, 0) for c in range(4)]] * 3

        def act_ld(pi, n):
            c, lam = order[pi][n]
            if o.get('noact'):
                return []
            return [f's_add_u32 s{sT1}, s{sL[lam]}, {ACT + 16384 * (kap[pi][c] >> 2) + 2048 * (kap[pi][c] & 3)}',
                    f'buffer_load_dwordx4 {vr(FR[pi][n], 4)}, v{vA2}, {WS}, s{sT1} offen sc1']

        def sig(pi, tag):
            def f():
                self.stamp(f'presig{pi}')
                a.need_tag(tag)
                if o.get('wgsig', 0) >> pi & 1:
                    l = a.label('nosig')
                    a('s_barrier')
                    a(f's_bitcmp1_b32 s{S_W}, 0')
                    a(f's_cbranch_scc1 {l}')
                    with a.untracked():
                        self.signal(f's{sF3s}')
                    a(f'{l}:')
                else:
                    self.signal(f's{sF3s}')
                self.stamp(f'sig{pi}')
                if pi < 2:
                    a(f's_add_u32 s{sF3s}, s{sF3s}, 2048')
            return f

        def poll_ld():
            return f'buffer_load_dword v{vFl}, off, {WS}, s{sF3p} sc1'

        def poll_chk(pi):
            def f():
                self.stamp(f'prechk{pi}')
                self.check(S_WS, f's{sF3p}', 0 if o.get('noe3', 0) >> pi & 1 else 16 if o.get('wgsig', 0) >> pi & 1 else 32, vFl)
                self.stamp(f'chk{pi}')
                if pi < 2:
                    a(f's_add_u32 s{sF3p}, s{sF3p}, 2048')
            return f
        RES, vRes, vRes2 = 200, vAL, vCS
        res_addr = [
            f'v_and_b32 v{vRes}, 15, v{L}',
            f'v_lshl_add_u32 v{vRes2}, v{vRes}, 4, s{sRes}',
            f'v_lshrrev_b32 v{vRes}, 4, v{L}',
            f'v_mad_u32_u24 v{vRes2}, v{vRes}, s{sQS}, v{vRes2}',
            f'v_mad_u32_u24 v{vRes}, v{vRes}, s{sQS}, v{vRes2}',
        ]
        res_ld = []
        for nt in range(5):
            q = 8 * (nt >> 1) + (nt & 1)
            res_ld.append([f's_mov_b32 s{sT6}, {q * QS}',
                           f'buffer_load_dwordx2 {vr(RES + 2 * nt, 2)}, v{vRes2 if nt == 4 else vRes}, {WS}, s{sT6} offen sc1'])
        slot_of = {0: 0, 1: 1, 2: 2, 3: 3, 4: 0, 5: 1}
        eq = epi(0, 0) + epi(1, 1) + epi(2, 2)
        budget = 0.0
        RATE = o['epi_rate']
        extra = {i: [] for i in range(120)}
        first_w = wtail.pop(0)
        for k in range(len(wtail)):
            extra[k].append(wtail[k])
        extra[30].append('s_barrier')
        nwd = len(wd) - o.get('wd_post', 12)
        done = 60 - len(wd)
        lo, hi = o.get('wd_lo', 4), o.get('wd_hi', 78)
        hold = None
        for k in range(nwd):
            g = wd.pop(0)
            p = lo + (k * (hi - lo)) // nwd
            fr = done + k
            if fr == 39:
                extra[81].append([f's_mov_b32 s{sT6}, {WDF + 5120 * kap[1][3]}', g[-1].replace(f's{sWoff} offen', f's{sT6} offen')] if g else [])
                continue
            assert fr < 56 or p > 14
            extra[p].append(g)
        SA, SB = o.get('siga', 62), o.get('sigb', 104)
        extra[SA].append(sig(0, 'act1'))
        extra[o.get('lda', 86)].append(poll_ld())
        for k, x in enumerate(res_ld):
            extra[o.get('res_at', 86) + 2 * k].append(x)
        ca = o.get('chka', 105)
        extra[ca].append(poll_chk(0))
        na = o.get('a_in', 7)
        for n in range(na):
            extra[ca + 1 + (n * (119 - ca)) // na].append(act_ld(0, n))
        extra[SB].append(sig(1, 'act3'))
        extra[50].append('s_barrier')

        def cost(x):
            if callable(x):
                return 3
            if isinstance(x, (list, tuple)):
                return sum(cost(y) for y in x)
            return 5 if x.startswith('ds_write') else 2 if x.startswith('buffer') or x == 's_barrier' else 1
        CAP = o.get('cap', 6.6)
        for i, (tile, ls, j) in enumerate(p2):
            slot = slot_of[tile]
            self.stamp(f'q{i}')
            if j == 0:
                a(csm(tile, slot, True))
                if i == 0:
                    a(first_w)
                if i:
                    budget = 6
                    while eq and budget >= eq[0][0]:
                        cst, x = eq.pop(0)
                        budget -= cst
                        a(x)
            if i & 1 == 0:
                a.need(ar(RING2 + 4 * (i & 3), 8))
            a(f'v_mfma_f32_32x32x16_bf16 {acc(slot)}, {ar(RING2 + 4 * (i & 3), 4)}, {vr(AB + 4 * j, 4)}, {acc(slot)}')
            if i + 4 < len(p2):
                a(rd(RING2 + 4 * (i & 3), p2[i + 4][1], p2[i + 4][2]))
            a(extra[i])
            if i == 42:
                eq += epi(3, 3)
            if i == 82:
                eq += epi(4, 0)
                if o.get('st4_late'):
                    st4 = eq.pop()[1]
            if i >= 1:
                budget = min(budget, 1.0) + CAP - 1 - (i & 1) - cost(extra[i])
                budget = max(budget, -1)
                while eq and budget >= min(eq[0][0], 2):
                    cst, x = eq.pop(0)
                    budget -= cst
                    a(x)
                    if callable(x) and o.get('verbose'):
                        print('store at gap', i)
                if i == 39:
                    assert len(eq) <= 2 * 69, len(eq)
                if i == SA - 1:
                    assert len(eq) <= 2 * 69, len(eq)
                if i == 79:
                    assert len(eq) <= 2 * 69, len(eq)
                if i == o.get('res_at', 86) - 1:
                    assert len(eq) <= 2 * 69, len(eq)
                if i == SB - 1:
                    assert len(eq) <= 69, len(eq)
            if j == 39:
                self.stamp(f't{tile}')
        for cst, x in eq:
            a(x)
        a(f's_mov_b32 s{sT0}, 0xffff0000')
        for i in range(10):
            a(f'v_lshlrev_b32 v{G2 + 2 * i}, 16, v{RES + i}')
            a(f'v_and_b32 v{G2 + 2 * i + 1}, s{sT0}, v{RES + i}')
        e5 = epi(5, 1, o.get('pk5', 1))
        LA = o.get('la2', 12)
        rest = [act_ld(0, n) for n in range(na, LA)]
        if o.get('ldb', -1) < 0:
            rest.append(poll_ld())
        if o.get('st4_late'):
            rest.append(st4)
        k = 0
        for i, (cst, x) in enumerate(e5):
            while k < len(rest) and (k + 1) * (len(e5) - 1) <= i * len(rest):
                a(rest[k])
                k += 1
            a(x)
        assert k == len(rest)
        self.stamp(10)

        vOut, vRR, vRW, vTW, vTR = 4, 7, 232, 238, 242
        RED = 2 * TILE
        setup = [
            f's_movk_i32 s{sT6}, {16 * 1280 - 160}',
            f's_movk_i32 s{sT5}, 6554',
            f's_movk_i32 s{sT4}, 176',
            f's_mul_i32 s{sT3}, s{S_W}, {16 * 176}',
            f'v_and_b32 v{t}, 15, v{L}',
            f'v_lshrrev_b32 v{t2}, 4, v{L}',
            f'v_mov_b32 v{vTW + 1}, s{sT3}',
            f'v_mad_u32_u24 v{vTW + 1}, v{t}, s{sT4}, v{vTW + 1}',
            f'v_lshl_add_u32 v{vTW}, v{t2}, 4, v{vTW + 1}',
            f'v_lshl_add_u32 v{vTW + 1}, v{t2}, 3, v{vTW + 1}',
        ]
        setup += [f'v_mul_u32_u24 v{t2}, s{sT5}, v{L}',
                  f'v_lshrrev_b32 v{t2}, 16, v{t2}',
                  f'v_lshl_add_u32 v{vOut}, v{L}, 4, s{sOutB}',
                  f'v_mad_u32_u24 v{vOut}, v{t2}, s{sT6}, v{vOut}',
                  f'v_add_u32 v{t}, v{L}, v{t2}',
                  f'v_lshl_add_u32 v{vTR}, v{t}, 4, s{sT3}',
                  f's_mov_b32 s{sT4}, {6 * 16 * 1280}',
                  f's_mov_b32 s{sT5}, {12 * 16 * 1280}']
        for lam in range(4):
            setup += [f's_xor_b32 s{sT0}, s{S_W}, {lam}', f's_mul_i32 s{sT0}, s{sT0}, {15 * 1024}',
                      f's_add_u32 s{sT0}, s{sT0}, {RED + (lam - 1) * 5120 if lam else RED}',
                      f'v_lshl_add_u32 v{vRW + lam - 1 if lam else vRR}, v{L}, 4, s{sT0}']

        def mf2(pi, n, nt):
            c, lam = order[pi][n]
            d = vr(G2 + 4 * (5 * lam + nt), 4)
            cin = '0' if (pi == 0 and c == 0 and lam != 0) else d
            return f'v_mfma_f32_16x16x32_bf16 {d}, {ar(4 * (5 * (4 * pi + c) + nt), 4)}, {vr(FR[pi][n], 4)}, {cin}'
        ex = [{i: [] for i in range(80)} for _ in range(3)]
        for k, x in enumerate(setup):
            ex[0][k].append(x)
        def put(pos, x):
            ex[pos // 80][pos % 80].append(x)
        if o.get('ldb', -1) >= 0:
            put(o['ldb'], poll_ld())
        cb_, cc_ = o.get('chkb', 5 * (16 - LA)), 80 + o.get('chkc', 44)
        put(cb_, [poll_chk(1), lambda: self.stamp('chkb')])
        put(o.get('sigc', 40), [sig(2, 'act5'), lambda: self.stamp('sigc')])
        put(80 + o.get('ldc', 28), poll_ld())
        put(cc_, [lambda: self.stamp('chkc0'), poll_chk(2), lambda: self.stamp(11)])
        pos = 0
        for g in range(LA, 48):
            pos = max(pos + (o.get('burst', 2) if g >= 16 else 0), o.get('g_gap', 5) * (g - LA) if g < 32 else 5 * (g - LA),
                      cb_ if g >= 16 else 0, cc_ if g >= 32 else 0)
            assert pos < 20 * (g // 4)
            put(pos, act_ld(g // 16, g % 16))
            if g < 32 and wd and 32 - g <= len(wd) + o.get('wdp_early', 0):
                put(pos + 2, wd.pop(0))
        assert not wd
        chain = o.get('chain', 1)
        for blk, lam in enumerate((3, 2, 1)):
            for nt in range(5):
                ex[2][20 * blk + 4 * nt + 12 if chain else 20 * (blk + 1) + 5 + 2 * nt].append(
                    f'ds_write_b128 v{vRW + lam - 1}, {vr(G2 + 4 * (5 * lam + nt), 4)} offset:{1024 * nt}')
        for pi in range(3):
            for i in range(80):
                if chain:
                    a(mf2(pi, 4 * (i // 20) + (i & 3), i % 20 // 4))
                else:
                    a(mf2(pi, i // 5, i % 5))
                self.stamp(f'm{80 * pi + i}')
                a(ex[pi][i])
            self.stamp('end' + 'ABC'[pi])
        a('s_waitcnt lgkmcnt(0)')
        a('s_barrier')
        self.stamp('redbar')
        RD, RR = 152, 8
        for nt in range(5):
            for s in range(3):
                a(f'ds_read_b128 {vr(RD + 12 * nt + 4 * s, 4)}, v{vRR} offset:{5120 * s + 1024 * nt}')
        sc = ' sc1' if o['out_sc1'] else ''
        for nt in range(5):
            b = RD + 12 * nt
            c = G2 + 4 * nt
            for p in range(2):
                a(f'v_pk_add_f32 {vr(c + 2 * p, 2)}, {vr(c + 2 * p, 2)}, {vr(b + 2 * p, 2)}')
                a(f'v_pk_add_f32 {vr(b + 4 + 2 * p, 2)}, {vr(b + 4 + 2 * p, 2)}, {vr(b + 8 + 2 * p, 2)}')
            for p in range(2):
                a(f'v_pk_add_f32 {vr(c + 2 * p, 2)}, {vr(c + 2 * p, 2)}, {vr(b + 4 + 2 * p, 2)}')
            for p in range(2):
                a(f'v_cvt_pk_bf16_f32 v{RR + 2 * nt + p}, v{c + 2 * p}, v{c + 2 * p + 1}')
            if nt & 1:
                a(f'ds_write_b128 v{vTW}, {vr(RR + 2 * nt - 2, 4)} offset:{64 * (nt >> 1)}')
            if nt == 4:
                a(f'ds_write_b64 v{vTW + 1}, {vr(RR + 8, 2)} offset:128')
        for k in range(3):
            a(f'ds_read_b128 {vr(RR + 12 + 4 * k, 4)}, v{vTR} offset:{6 * 176 * k}')
        a('s_mov_b32 exec_hi, 0xfffffff')
        for k in range(3):
            if k == 2:
                a('s_mov_b32 exec_hi, 0xff')
            a(f'buffer_store_dwordx4 {vr(RR + 12 + 4 * k, 4)}, v{vOut}, {sr(S_OUT, 4)}, {("0", f"s{sT4}", f"s{sT5}")[k]} offen{sc}')
        a('s_mov_b32 exec_hi, -1')
        lz = a.label('nz')
        a('s_cmp_lg_u32 s2, 0')
        a(f's_cbranch_scc1 {lz}')
        with a.untracked():
            a(f'buffer_store_dword v{BP}, off, {sr(S_DBG, 4)}, 0 sc1')
            a(f'buffer_store_dword v{BP}, off, {sr(S_DBG, 4)}, 0 offset:128 sc1')
        a(f'{lz}:')
        if self.diag:
            self.stamp('outst')
            a('s_waitcnt vmcnt(0)')
            self.stamp(12)
            a('s_waitcnt lgkmcnt(0)')
            with self.wave0():
                a(f's_lshl_b32 s{sT0}, s2, 7')
                a(f's_add_u32 s{sT0}, s{sT0}, {STAMP}')
                a(f's_sub_u32 s{S_WS}, s{S_WS}, s0')
                a(f's_subb_u32 s{S_WS + 1}, s{S_WS + 1}, 0')
                a('v_mov_b32 v0, s0')
                a(f'buffer_store_dword v0, off, {WS}, s{sT0} offset:60')
                for i in range(NSTAMP):
                    a(f'v_mov_b32 v0, s{S_STAMP + 2 * i}')
                    a(f'buffer_store_dword v0, off, {WS}, s{sT0} offset:{4 * i}')
        if self.opt.get('fixt'):
            with a.untracked():
                a(f's_cmp_lg_u32 s2, {self.opt.get("fixwg", 0)}')
                a('s_cbranch_scc1 .Lend')
                a(f's_cmp_lg_u32 s{S_W}, 0')
                a('s_cbranch_scc1 .Lend')
                a(f's_sub_u32 s{sT2}, s{S_STAMP + 2 * self.opt.get("fixs", 0)}, s{S_STAMP + 2 * self.opt.get("fixb", 0)}')
                a(f's_mul_i32 s{sT2}, s{sT2}, 10')
                a(f's_min_u32 s{sT2}, s{sT2}, 100000')
                a(f's_add_u32 s{sT2}, s{sT2}, {self.opt["fixt"]}')
                a('.Lfix:')
                a(f's_memrealtime {sr(sT0, 2)}')
                a('s_waitcnt lgkmcnt(0)')
                a(f's_sub_u32 s{sT0}, s{sT0}, s{S_STAMP}')
                a(f's_cmp_lt_u32 s{sT0}, s{sT2}')
                a('s_cbranch_scc1 .Lfix')
        a('.Lend:')
        a('s_endpgm')

    def build(self):
        a = self.a
        if self.diag:
            for i in range(2 * NSTAMP):
                a(f's_mov_b32 s{S_STAMP + i}, 0')
        self.prologue()
        self.conv()
        self.gemms()
        self.side()
        for c in self.cold:
            a.fresh()
            a('s_nop 7')
            c()
        a('.Lcode_end:')
        a('s_endpgm')
        pads = (self.opt.get('base', 0x300), NPAD, sr(sRet, 2), '.Lend', self.opt.get('pstride', 4096)) if self.opt['pads'] else None
        body = a.finish(verbose=True, align=self.opt.get('align', 1), pads=pads)
        body += '.p2align 12\n    s_endpgm\n'
        ref = open('cdna_kernels/' + NAME + '.s.ref').read().split('\n')
        head = [l for l in ref if l.startswith(';') and '@launch' not in l and 'Override' not in l and 'grid=ceil' not in l]
        txt = '\n'.join(head) + '\n'
        txt += '; One persistent launch: kv/transposition -> Toeplitz-MFMA long conv -> gate/up GEMM + GEGLU -> down GEMM.\n'
        txt += '; @launch grid=(256,1,1) block=(256,1,1) lds=163840\n'
        txt += f'''.amdgcn_target "amdgcn-amd-amdhsa--gfx950"
.text
.globl {NAME}_kernel
.p2align 8
.type {NAME}_kernel,@function
{NAME}_kernel:
{body}.section .rodata,"a"
.p2align 6
.amdhsa_kernel {NAME}_kernel
  .amdhsa_next_free_vgpr 512
  .amdhsa_next_free_sgpr 102
  .amdhsa_accum_offset 256
  .amdhsa_group_segment_fixed_size 0
  .amdhsa_kernarg_size 104
  .amdhsa_user_sgpr_count 2
  .amdhsa_user_sgpr_kernarg_segment_ptr 1
  .amdhsa_system_sgpr_workgroup_id_x 1
  .amdhsa_float_denorm_mode_32 3
.end_amdhsa_kernel
'''
        return txt


if __name__ == '__main__':
    out = sys.argv[1]
    diag = 'diag' in sys.argv[2:]
    opt = {}
    for x in sys.argv[2:]:
        if '=' in x:
            k, v = x.split('=')
            try:
                v = int(v)
            except ValueError:
                try:
                    v = float(v)
                except ValueError:
                    pass
            opt[k] = v
    open(out, 'w').write(Gen(diag, opt).build())
```

```python
import struct
import sys
from asmlib import Asm, vr, ar, sr

NAME = 'sequential_preLN__ssm_conv_h3__geglu_ffn__prompt'

QS = 16384
CNT = 0
ST1 = 49152
CSF = 65536
STAMP = 98304
PST = 131072
W45F = PST + 262144
KVX = W45F + 1310720
XP4 = KVX + 160 * QS
HP4 = XP4 + 160 * QS
WDF = HP4 + 160 * QS
ACT = WDF + 1966080
WS_END = ACT + 6291456
C_F1, C_FX, C_FW, C_FXR, C_B1, C_B2, C_FWR, C_F3 = 0, 10, 18, 26, 34, 42, 50, 64
SPIN = 100000

S_W = 3
S_K, S_V, S_SH, S_SK, S_X, S_WG, S_WU, S_WD, S_OUT, S_DBG, S_WS = 4, 8, 12, 16, 20, 24, 28, 32, 36, 40, 44
S_D = 48
sX, sJ, sG, sM, sQ, sRB, sCB, sA, sB, sRot = 50, 51, 52, 53, 54, 55, 56, 57, 58, 59
sT0, sT1, sT2, sT3, sT4, sT5, sT6, sT7 = 60, 61, 62, 63, 64, 65, 66, 67
sWoff, sWoff2, sSpin, sDv = 68, 69, 70, 71
sOne, sU0, sU1, sU2 = 72, 73, 74, 75
sRet = 48
NPAD = 8
S_STAMP = 76
NSTAMP = 13
sAB = 4
sL = [8, 9, 10, 11]
sPL, sPH, sFW, sSide, sArr = 16, 17, 18, 19, 23
sE = [None, 12, 13, 14]

GSTR = 4128
GW = 4 * GSTR
UBASE = 4 * GW
USTR = 4608
TILE = 40960
WS = sr(S_WS, 4)


def f32(x):
    return '0x%08x' % struct.unpack('<I', struct.pack('<f', x))[0]


class Gen:
    def __init__(self, diag=False, opt=None):
        self.a = Asm()
        self.diag = diag
        self.opt = dict(place=1, w_kv=0, w_e1=10, apoll=9, w_u=0, tb_pre=4, tb_mid=0, ssm=1, defer=0, wdp_from=24, a_ahead=14, sig='v', epi_rate=4.5,
                        fx_it=3, early_n=0, out_sc1=1, pads=1, wd_pre=20, wd_post=4, l2=10, wd_p1=11, chkb=40, sigc=39, wd_pre1=8, arr='s')
        if opt:
            self.opt.update(opt)
        self.cold = []

    PROF = {
        'main': [0, 1, 2, 3, 4, 5, 6, 7, 8, 9, 10, 11, 12],
        'front': [0, 'karg', 'issued', 1, 'kvdone', 2, 'tbpre', 'drained', 3, 'tbpost', 4, 'uload', 5],
        'e2': [0, 6, 'zbar', 7, 'hbar', 'hissued', 'hdrained', 'hbar2', 'arrived', 'wwritten', 'polled', 8, 'a0'],
        'g1': [0, 8, 'a0', 'p8', 'p16', 'p24', 'p32', 9, 't3', 't4', 't5', 10, 12],
        'g2a': [0, 't5', 10, 'm4', 'prechk1', 'chk1', 'm24', 'presig2', 'sig2', 'm44', 'm64', 'endA', 'm84'],
        'sum': [0, 'x1', 'x2', 'x3', 'x4', 'x5', 'x6', 7, 8, 'x9', 'x10', 'x11', 12],
        'side': [0, 'sx_in', 'sx_issued', 'sx_data', 'sx_bar', 'sx_st', 'sx_ld2', 'sx_dr', 1, 2, 6, 7, 8],
        'loop': [0, 4, 5, 'it1', 'it2', 'it3', 'it4', 'it5', 'it6', 'it7', 6, 7, 8],
        'g1b': [0, 9, 'q10', 'q20', 't3', 'presig0', 'sig0', 't4', 'prechk0', 'chk0', 'presig1', 'sig1', 't5'],
        'g2': [0, 't5', 10, 'chkb', 'sigc', 'endA', 'chkc0', 11, 'endB', 'endC', 'redbar', 'outst', 12],
    }

    def stamp(self, i):
        prof = self.PROF[self.opt.get('prof', 'main')]
        if self.diag and i in prof:
            i = prof.index(i)
            self.a(f'{"s_memtime" if self.opt.get("cyc") else "s_memrealtime"} {sr(S_STAMP + 2 * i, 2)}')

    def spin_atomic(self, soff, target, depth, vt):
        a = self.a
        top, done = a.label('spin'), a.label('done')
        with a.untracked():
            a(f's_mov_b32 s{sSpin}, {SPIN}')
            for d in range(depth - 1):
                a(f'v_mov_b32 v{vt + d}, 0')
                a(f'buffer_atomic_add v{vt + d}, off, {WS}, {soff} sc0 sc1')
                a(f's_sleep {self.opt.get("pslp", 3)}')
            a(f'{top}:')
            for d in range(depth):
                n = (d + depth - 1) % depth
                a(f'v_mov_b32 v{vt + n}, 0')
                a(f'buffer_atomic_add v{vt + n}, off, {WS}, {soff} sc0 sc1')
                a(f's_waitcnt vmcnt({depth - 1})')
                a(f'v_readfirstlane_b32 s{sT7}, v{vt + d}')
                a(f's_cmp_ge_u32 s{sT7}, {target}')
                a(f's_cbranch_scc1 {done}')
            a(f's_sub_u32 s{sSpin}, s{sSpin}, 1')
            a(f's_cbranch_scc0 {top}')
            a(f'{done}:')

    def spin(self, srd, soff, target, vt):
        a = self.a
        top, done = a.label('spin'), a.label('done')
        with a.untracked():
            a(f's_mov_b32 s{sSpin}, {SPIN}')
            a(f'{top}:')
            a(f'buffer_load_dword v{vt}, off, {sr(srd, 4)}, {soff} sc1')
            a('s_waitcnt vmcnt(0)')
            a(f'v_readfirstlane_b32 s{sT7}, v{vt}')
            a(f's_sub_u32 s{sSpin}, s{sSpin}, 1')
            a(f's_cbranch_scc1 {done}')
            a(f's_cmp_lt_u32 s{sT7}, {target}')
            a(f's_cbranch_scc1 {top}')
            a(f'{done}:')

    def check(self, srd, soff, target, vt):
        a = self.a
        slow, back = a.label('slow'), a.label('back')
        a(f'v_readfirstlane_b32 s{sT7}, v{vt}')
        a(f's_cmp_lt_u32 s{sT7}, {target}')
        a(f's_cbranch_scc1 {slow}')
        a(f'{back}:')

        def cold():
            a(f'{slow}:')
            self.spin(srd, soff, target, vt)
            a(f's_branch {back}')
        self.cold.append(cold)

    def wave0(self):
        g = self

        class W:
            def __enter__(s):
                s.l = g.a.label('nw0')
                g.a(f's_cmp_lg_u32 s{S_W}, 0')
                g.a(f's_cbranch_scc1 {s.l}')
                s.u = g.a.untracked()
                s.u.__enter__()
                g.a('s_mov_b64 exec, 1')

            def __exit__(s, *x):
                g.a('s_mov_b64 exec, -1')
                s.u.__exit__()
                g.a(f'{s.l}:')
        return W()

    def warm(self, sets):
        if not self.opt['pads']:
            return
        a = self.a
        for w, ks in enumerate(sets):
            if not ks:
                continue
            l = a.label('nw')
            a(f's_cmp_lg_u32 s{S_W}, {w + 1}')
            a(f's_cbranch_scc1 {l}')
            for k in ks:
                a(f's_call_b64 {sr(sRet, 2)}, .Lpad_{k}')
            a(f'{l}:')

    def arrive_start(self, items, pre=None):
        a = self.a
        l = a.label('noarr')
        for r, _ in items:
            a(f's_mov_b32 s{r}, 1')
        a(f's_cmp_lg_u32 s{S_W}, 0')
        a(f's_cbranch_scc1 {l}')
        with a.untracked():
            if pre:
                pre()
            a(f's_lshl_b32 s{sSpin}, s{sX}, 8')
            for r, line in items:
                a(f's_atomic_add s{r}, {sr(S_WS, 2)}, s{sSpin} offset:{line * 256} glc')
        a(f'{l}:')

    def arrive_finish(self, items, vt):
        a = self.a
        a('s_waitcnt lgkmcnt(0)')
        for r, last, rep in items:
            l = a.label('notlast')
            a(f's_cmp_lg_u32 s{r}, {last}')
            a(f's_cbranch_scc1 {l}')
            with a.untracked():
                a('s_mov_b64 exec, 0xff')
                a(f'v_lshlrev_b32 v{vt}, 8, v0')
                a(f's_mov_b32 s{sT7}, {rep * 256}')
                a(f'buffer_atomic_add v{self.vOne}, v{vt}, {WS}, s{sT7} offen sc1')
                a('s_mov_b64 exec, -1')
            a(f'{l}:')

    def two_level(self, soff, last, rep, scalar=False):
        a = self.a
        l = a.label('notlast')
        if scalar:
            a(f's_mov_b32 s{sT7}, 1')
            a(f's_atomic_add s{sT7}, {sr(S_WS, 2)}, {soff} glc')
            a('s_waitcnt lgkmcnt(0)')
        else:
            a(f'v_mov_b32 v{self.vTmp}, 1')
            a(f'buffer_atomic_add v{self.vTmp}, off, {WS}, {soff} sc0 sc1')
            a('s_waitcnt vmcnt(0)')
            a(f'v_readfirstlane_b32 s{sT7}, v{self.vTmp}')
        a(f's_cmp_lg_u32 s{sT7}, {last}')
        a(f's_cbranch_scc1 {l}')
        a('s_mov_b64 exec, 0xff')
        a(f'v_lshlrev_b32 v{self.vTmp}, 8, v0')
        a(f's_mov_b32 s{sT7}, {rep * 256}')
        a(f'buffer_atomic_add v{self.vOne}, v{self.vTmp}, {WS}, s{sT7} offen sc1')
        a(f'{l}:')

    def prologue(self):
        a = self.a
        a('s_cmp_ge_u32 s2, 0x100')
        a('s_cbranch_scc1 .Lend')
        self.stamp(0)
        for srd, off in ((S_K, 8), (S_WS, 96), (S_V, 16), (S_SH, 24), (S_SK, 32), (S_X, 0), (S_WG, 56), (S_WU, 64),
                         (S_WD, 72), (S_OUT, 80), (S_DBG, 88), (S_D, 40)):
            a(f's_load_dwordx2 {sr(srd, 2)}, s[0:1], {off}')
        a('v_lshrrev_b32 v1, 6, v0')
        a(f's_and_b32 s{sX}, s2, 7')
        a(f's_lshr_b32 s{sJ}, s2, 3')
        a(f'v_readfirstlane_b32 s{S_W}, v1')
        a('v_mov_b32 v1, v0')
        a('v_and_b32 v0, 63, v0')
        for srd, n in ((S_K, 2621440), (S_V, 2621440), (S_SH, 5120), (S_SK, 4096), (S_X, 2621440), (S_WG, 1966080),
                       (S_WU, 1966080), (S_WD, 1966080), (S_OUT, 2621440), (S_DBG, 256), (S_WS, WS_END)):
            a(f's_mov_b32 s{srd + 2}, {n}')
            a(f's_mov_b32 s{srd + 3}, 0x20000')
        a(f's_and_b32 s{sM}, s{sJ}, 15')
        a(f's_mov_b32 s{sG}, s{sX}')
        a(f's_cmp_lt_u32 s{sJ}, 16')
        a.snapshot('role')
        a('s_cbranch_scc1 .Lconv')
        a(f's_lshr_b32 s{sG}, s{sX}, 2')
        a(f's_add_u32 s{sG}, s{sG}, 8')
        a(f's_and_b32 s{sT0}, s{sX}, 3')
        a(f's_lshl2_add_u32 s{sM}, s{sT0}, s{sM}')
        a(f's_cmp_lt_u32 s{sJ}, 20')
        a('s_cbranch_scc1 .Lconv')
        with a.untracked():
            a(f's_cmp_lg_u32 s2, {self.opt.get("initwg", 208)}')
            a('s_cbranch_scc1 .Lnoinit')
            a('v_lshrrev_b32 v2, 3, v1')
            a('v_and_b32 v3, 7, v0')
            a('v_lshlrev_b32 v3, 4, v3')
            a('v_lshl_add_u32 v2, v2, 8, v3')
            for i in range(4):
                a(f'v_mov_b32 v{4 + i}, 0')
            a(f's_movk_i32 s{sT0}, 0x2000')
            a('s_waitcnt lgkmcnt(0)')
            a.fresh()
            a(f'buffer_store_dwordx4 v[4:7], v2, {WS}, 0 offen sc1')
            a(f'buffer_store_dwordx4 v[4:7], v2, {WS}, s{sT0} offen sc1')
            a('v_mov_b32 v3, 1')
            a('s_waitcnt vmcnt(0)')
            a('s_barrier')
            a(f's_cmp_lg_u32 s{S_W}, 0')
            a('s_cbranch_scc1 .Lside')
            a('s_mov_b64 exec, 1')
            a(f'buffer_store_dword v3, off, {sr(S_DBG, 4)}, 0 sc1')
            a('s_mov_b64 exec, -1')
            a('s_branch .Lside')
            a('.Lnoinit:')
            if self.opt.get('cpf', 1):
                a(f's_getpc_b64 {sr(sT0, 2)}')
                a('.Lpc:')
                a(f's_and_b32 s{sT2}, s{sJ}, 3')
                a(f's_lshl2_add_u32 s{sT2}, s{sT2}, s{S_W}')
                a(f's_mul_i32 s{sT2}, s{sT2}, {18 * 128}')
                a('v_min_u32 v2, 17, v0')
                a(f'v_lshl_add_u32 v2, v2, 7, s{sT2}')
                a('v_min_u32 v2, .Lcode_end-.Lpc-4, v2')
                a('v_mov_b32 v3, 0')
                a(f'v_lshl_add_u64 v[4:5], v[2:3], 0, {sr(sT0, 2)}')
                a('global_load_dword a253, v[4:5], off')
            a('s_branch .Lside')
        a('.Lconv:')
        a.fresh('role')

    def gemm_ids(self):
        a = self.a
        a(f's_lshr_b32 s{sRB}, s{sX}, 2')
        a(f's_lshr_b32 s{sT0}, s{sJ}, 2')
        a(f's_lshl3_add_u32 s{sRB}, s{sRB}, s{sT0}')
        a(f's_and_b32 s{sRot}, s{sX}, 3')
        a(f's_and_b32 s{sT0}, s{sJ}, 3')
        a(f's_lshl2_add_u32 s{sCB}, s{sRot}, s{sT0}')
        a(f's_and_b32 s{sT0}, s{sCB}, 1')
        a(f's_mul_i32 s{sA}, s{sCB}, 6')
        a(f's_add_u32 s{sB}, s{sA}, 4')
        a(f's_lshl1_add_u32 s{sA}, s{sT0}, s{sA}')
        a(f's_lshl_b32 s{sT1}, s{sT0}, 2')
        a(f's_sub_u32 s{sB}, s{sB}, s{sT1}')

    vWL, vWLb, vW45, vTmp, vTmp2, vOne, vPS = 254, 253, 252, 250, 249, 248, 251
    WRAW = [8, 40, 72, 104, 136]
    vWW = 236
    PT = 200

    def real_line(self, r, tmp):
        a = self.a
        if not self.opt.get('swz', 1):
            return
        a(f's_sub_u32 s{tmp}, s{r}, 3')
        a(f's_cmp_lt_u32 s{tmp}, 2')
        a(f's_cselect_b32 s{tmp}, 7, 0')
        a(f's_xor_b32 s{r}, s{r}, s{tmp}')
        a(f's_sub_u32 s{tmp}, s{r}, 10')
        a(f's_cmp_lt_u32 s{tmp}, 2')
        a(f's_cselect_b32 s{tmp}, 1, 0')
        a(f's_xor_b32 s{r}, s{r}, s{tmp}')

    def w_addr(self):
        a = self.a
        t = self.vTmp
        a(f's_lshr_b32 s{sT1}, s{sA}, 2')
        self.real_line(sT1, sT0)
        a(f's_lshl_b32 s{sT1}, s{sT1}, 7')
        a(f'v_and_b32 v{t}, 7, v0')
        a(f'v_lshl_add_u32 v{self.vWLb}, v{t}, 4, s{sT1}')
        a(f's_lshr_b32 s{sT0}, s{S_W}, 1')
        a(f's_lshl_b32 s{sT0}, s{sT0}, 6')
        a(f's_mul_i32 s{sWoff}, s{sRot}, 160')
        a(f's_add_u32 s{sWoff}, s{sWoff}, s{sT0}')
        a(f's_mul_i32 s{sT0}, s{sCB}, {80 * 1024}')
        a(f's_add_u32 s{sT0}, s{sT0}, {W45F}')
        a(f'v_lshl_add_u32 v{self.vW45}, v0, 4, s{sT0}')
        a(f's_mul_i32 s{sWoff2}, s{sRot}, 10')
        a(f's_add_u32 s{sWoff2}, s{sWoff2}, s{S_W}')
        a(f's_lshl_b32 s{sWoff2}, s{sWoff2}, 10')
        a(f'v_mov_b32 v{self.vOne}, 1')
        a(f's_lshl2_add_u32 s{sT0}, s{sRB}, s{S_W}')
        a(f's_lshl_b32 s{sT0}, s{sT0}, 12')
        a(f'v_and_b32 v{t}, 31, v0')
        a(f'v_lshl_add_u32 v{self.vPS}, v{t}, 3, s{sT0}')
        a(f'v_lshrrev_b32 v{t}, 5, v0')
        a(f'v_lshl_add_u32 v{self.vPS}, v{t}, 11, v{self.vPS}')

    def w_select(self):
        a = self.a
        a(f's_bitcmp1_b32 s{S_W}, 0')
        a(f's_cselect_b32 s{S_WG}, s{S_WU}, s{S_WG}')
        a(f's_cselect_b32 s{S_WG + 1}, s{S_WU + 1}, s{S_WG + 1}')
        for i in range(1, 4):
            a(f's_movk_i32 s{sE[i]}, {6144 * i}')
        a(f's_movk_i32 s15, 3072')

    def clear_pst(self, v2):
        return [f'v_mov_b32 v{v2}, -1', f'v_mov_b32 v{v2 + 1}, -1',
                f's_lshl_b32 s{sU0}, s{sCB}, 8', f's_add_u32 s{sU0}, s{sU0}, {PST}',
                ['s_mov_b32 exec_hi, 0',
                 f'buffer_store_dwordx2 {vr(v2, 2)}, v{self.vPS}, {WS}, s{sU0} offen sc1',
                 's_mov_b32 exec_hi, -1']]

    def w_loads_main(self, park=False):
        out = []
        t, t2 = self.vTmp, self.vTmp2
        for b in range(5):
            for e in range(8):
                g = []
                if e == 0:
                    g = [f'v_and_b32 v{t}, 56, v0', f'v_add_u32 v{t}, s{sWoff}, v{t}', f'v_subrev_u32 v{t2}, 640, v{t}',
                         f'v_min_u32 v{t}, v{t}, v{t2}', f'v_mad_u32_u24 v{self.vWL}, v{t}, s15, v{self.vWLb}',
                         f's_add_u32 s{sWoff}, s{sWoff}, 128']
                so = f's{sE[e >> 1]}' if e >> 1 else '0'
                dst = ar(208 + 4 * e, 4) if park and b == 4 else vr(self.WRAW[b] + 4 * e, 4)
                g.append(f'buffer_load_dwordx4 {dst}, v{self.vWL}, {sr(S_WG, 4)}, {so} offen offset:{3072 * (e & 1)}')
                out.append(g)
        return out

    def w_loads_tail(self):
        out = []
        for i in range(20):
            if i & 1:
                g = [f's_add_u32 s{sU1}, s{sWoff2}, {TILE}',
                     f'buffer_load_dwordx4 {ar(160 + 4 * i, 4)}, v{self.vW45}, {WS}, s{sU1} offen sc1']
            else:
                g = []
                if i:
                    g = [f's_add_u32 s{sWoff2}, s{sWoff2}, 4096',
                         [f's_sub_u32 s{sU1}, s{sWoff2}, {TILE}', f's_cselect_b32 s{sWoff2}, s{sWoff2}, s{sU1}']]
                g.append(f'buffer_load_dwordx4 {ar(160 + 4 * i, 4)}, v{self.vW45}, {WS}, s{sWoff2} offen sc1')
            out.append(g)
        return out

    def w_write_addr(self):
        a = self.a
        t, t2 = self.vTmp, self.vTmp2
        a(f's_lshr_b32 s{sT0}, s{S_W}, 1')
        a(f's_lshl_b32 s{sT0}, s{sT0}, 12')
        a(f's_and_b32 s{sT1}, s{S_W}, 1')
        a(f's_lshl_b32 s{sT1}, s{sT1}, 7')
        a(f's_add_u32 s{sT0}, s{sT0}, s{sT1}')
        a(f'v_lshrrev_b32 v{t}, 3, v0')
        a(f'v_lshl_add_u32 v{t}, v{t}, 9, s{sT0}')
        a(f'v_and_b32 v{t2}, 1, v0')
        a(f'v_lshl_add_u32 v{t}, v{t2}, 6, v{t}')
        a(f'v_bfe_u32 v{t2}, v0, 1, 2')
        a(f's_mov_b32 s{sT0}, {TILE + 16}')
        a(f'v_mad_u32_u24 v{self.vWW}, v{t2}, s{sT0}, v{t}')
        for q in range(1, 4):
            a(f'v_xor_b32 v{self.vWW + q}, {16 * q}, v{self.vWW}')
        a(f's_mov_b32 s{sPL}, 0x05040100')
        a(f's_mov_b32 s{sPH}, 0x07060302')

    def w_writes_main(self):
        out = []
        for b in range(5):
            for c8 in range(8):
                p = self.PT + 4 * (c8 & 3) if b < 5 - self.opt.get('defer', 2) else (228 if c8 & 1 else 242)
                r = self.WRAW[b] + (c8 >> 1)
                g = [f'v_perm_b32 v{p + d}, v{r + 8 * d + 4}, v{r + 8 * d}, s{sPH if c8 & 1 else sPL}' for d in range(4)]
                g.append(f'ds_write_b128 v{self.vWW + (c8 & 3)}, {vr(p, 4)} offset:{b * 8192 + (c8 >> 2) * 256}')
                out.append(g)
        return out

    def conv(self):
        a = self.a
        o = self.opt
        vK, vKh, vC, vR, vSHa, vL16 = 1, 2, 3, 4, 5, 6
        SH = 8
        KR = 16
        VR = 38
        WF = 56
        KF = 72
        O = 120
        SK = 136
        KV = 168
        VF = 200
        vSW, vSR, vKS, vG, vBa, vAa, vZR, vZR2, vUL, vUW, vI7, vGZ, vXS, vHS, vFl, vPrev = range(232, 248)
        ZERO, AD = 224, 240
        vAa2 = vZR2
        a(f's_lshl4_add_u32 s{sQ}, s{sG}, s{sM}')
        a(f'v_and_b32 v{vC}, 15, v0')
        a(f'v_lshrrev_b32 v{vR}, 4, v0')
        a(f's_lshl2_add_u32 s{sT0}, s{sM}, s{S_W}')
        a(f's_mul_i32 s{sT0}, s{sT0}, {32 * 1280}')
        a(f's_lshl_b32 s{sT1}, s{sG}, 7')
        a(f's_add_u32 s{sT0}, s{sT0}, s{sT1}')
        a(f's_movk_i32 s{sT2}, {8 * 1280}')
        a(f'v_lshl_add_u32 v{vK}, v{vC}, 3, s{sT0}')
        a(f'v_mad_u32_u24 v{vK}, v{vR}, s{sT2}, v{vK}')
        a(f'v_subrev_u32 v{vKh}, 3840, v{vK}')
        a(f's_lshl_b32 s{sT1}, s{sG}, 9')
        a(f'v_lshl_add_u32 v{vSHa}, v{vC}, 5, s{sT1}')
        a(f's_movk_i32 s{sT3}, 5120')
        a(f'v_lshlrev_b32 v{vL16}, 4, v0')

        def addr_phase_a():
            a(f'v_subrev_u32 v{vPrev}, 8, v{vL16}')
            a(f's_mul_i32 s{sT0}, s{S_W}, {USTR}')
            a(f's_add_u32 s{sT0}, s{sT0}, {UBASE}')
            a(f's_movk_i32 s{sT1}, 272')
            a(f'v_lshl_add_u32 v{vSW}, v{vR}, 4, s{sT0}')
            a(f'v_mad_u32_u24 v{vSW}, v{vC}, s{sT1}, v{vSW}')
            a(f'v_lshl_add_u32 v{vSR}, v{vC}, 4, s{sT0}')
            a(f'v_mad_u32_u24 v{vSR}, v{vR}, s{sT1}, v{vSR}')
            a(f'v_add_u32 v{vUW}, s{sT0}, v{vL16}')
            a(f's_add_u32 s{sT0}, s{sT0}, 32')
            a(f'v_lshl_add_u32 v{vBa}, v{vC}, 5, s{sT0}')
            a(f'v_lshl_add_u32 v{vBa}, v{vR}, 4, v{vBa}')
            a(f's_mul_i32 s{sT0}, s{sG}, {16 * QS}')
            a(f's_lshl2_add_u32 s{sT1}, s{sM}, s{S_W}')
            a(f's_lshl_b32 s{sT1}, s{sT1}, 8')
            a(f's_add_u32 s{sT0}, s{sT0}, s{sT1}')
            a(f's_mov_b32 s{sT1}, {QS}')
            a(f'v_lshl_add_u32 v{vKS}, v{vC}, 4, s{sT0}')
            a(f'v_mad_u32_u24 v{vKS}, v{vR}, s{sT1}, v{vKS}')

        def addr_rest():
            self.gemm_ids()
            self.w_addr()
            a(f's_mul_i32 s{sT5}, s{S_W}, {GW}')
            a(f'v_add_u32 v{vG}, s{sT5}, v{vL16}')
            a(f'v_bfe_u32 v{vAa}, v0, 2, 2')
            a(f'v_sub_u32 v{vAa}, v{vAa}, v{vR}')
            a(f'v_sub_u32 v{vAa}, v{vAa}, v{vR}')
            a(f's_add_u32 s{sT0}, s{sT5}, 56')
            a(f'v_lshl_add_u32 v{vAa}, v{vAa}, 3, s{sT0}')
            a(f'v_and_b32 v{vI7}, 3, v0')
            a(f's_movk_i32 s{sT1}, {GSTR}')
            a(f'v_mad_u32_u24 v{vAa}, v{vI7}, s{sT1}, v{vAa}')
            a(f'v_add_u32 v{vAa2}, 0x800, v{vAa}')
            a(f'v_and_b32 v{vGZ}, 16, v0')
            a(f'v_add_u32 v{vGZ}, s{sT5}, v{vGZ}')
            a(f'v_mad_u32_u24 v{vGZ}, v{vI7}, s{sT1}, v{vGZ}')
            a(f'v_and_b32 v{vI7}, 7, v0')
            a(f's_mul_i32 s{sT6}, s{sQ}, {QS}')
            a(f's_lshl_b32 s{sT1}, s{S_W}, 6')
            a(f's_add_u32 s{sT0}, s{sT6}, s{sT1}')
            a(f'v_and_b32 v{vUL}, 3, v0')
            a(f'v_lshl_add_u32 v{vUL}, v{vUL}, 4, s{sT0}')
            a(f'v_lshrrev_b32 v{vXS}, 2, v0')
            a(f'v_lshl_add_u32 v{vUL}, v{vXS}, 8, v{vUL}')
            a(f's_lshl_b32 s{sT0}, s{S_W}, 12')
            a(f'v_add_u32 v{vXS}, s{sT0}, v{vL16}')
            a(f's_add_u32 s{sT0}, s{sT0}, s{sT6}')
            a(f'v_add_u32 v{vHS}, s{sT0}, v{vL16}')
            a(f's_lshl_b32 s{sT0}, s{S_W}, 11')
            a(f'v_add_u32 v{vZR}, s{sT0}, v{vL16}')
            for i in range(4):
                a(f'v_mov_b32 v{ZERO + i}, 0')
        if o.get('addr_early', 0) >= 1:
            addr_phase_a()
        if o.get('addr_early', 0) >= 2:
            addr_rest()
        a.need(sr(S_WS, 2))
        self.stamp('karg')
        a(f'buffer_load_dwordx4 {vr(SH, 4)}, v{vSHa}, {sr(S_SH, 4)}, 0 offen')
        a(f'buffer_load_dwordx4 {vr(SH + 4, 4)}, v{vSHa}, {sr(S_SH, 4)}, 0 offen offset:16')
        for r in range(3):
            a(f'buffer_load_dwordx2 {vr(KR + 2 * r, 2)}, v{vKh}, {sr(S_K, 4)}, 0 offen offset:{r * 1280}')
        for r in range(8):
            so = f's{sT3}' if r >= 4 else '0'
            a(f'buffer_load_dwordx2 {vr(KR + 6 + 2 * r, 2)}, v{vK}, {sr(S_K, 4)}, {so} offen offset:{(r & 3) * 1280}')
            a(f'buffer_load_dwordx2 {vr(VR + 2 * r, 2)}, v{vK}, {sr(S_V, 4)}, {so} offen offset:{(r & 3) * 1280}')
        self.stamp('issued')
        if o.get('tlb'):
            a(f'v_lshlrev_b32 v228, {o["tlb"]}, v0')
            a(f'buffer_load_dword v229, v228, {WS}, 0 offen sc1')
            a(f'buffer_load_dword v228, v228, {sr(S_OUT, 4)}, 0 offen sc1')
        if o.get('addr_early', 0) < 1:
            addr_phase_a()
        if o.get('addr_early', 0) < 2:
            addr_rest()
        a(f's_lshl2_add_u32 s{sT0}, s{sQ}, s{S_W}')
        a(f's_lshl_b32 s{sT1}, s{sT0}, 12')
        a(f's_add_u32 s{S_SK}, s{S_SK}, s{sT1}')
        a(f's_addc_u32 s{S_SK + 1}, s{S_SK + 1}, 0')
        a(f's_lshl_b32 s{sT0}, s{sT0}, 1')
        a(f's_and_b32 s{sT0}, s{sT0}, -4')
        a(f's_load_dword s{sDv}, {sr(S_D, 2)}, s{sT0}')
        ssm = []
        for j in range(4):
            ssm.append(f'buffer_load_dwordx4 {vr(SK + 8 * j + 4, 4)}, v{vL16}, {sr(S_SK, 4)}, 0 offen offset:{1024 * j}')
            if j == 0:
                ssm.append(f'buffer_load_dwordx2 {vr(SK + 2, 2)}, v{vPrev}, {sr(S_SK, 4)}, 0 offen')
            else:
                ssm.append(f'buffer_load_dwordx2 {vr(SK + 8 * j + 2, 2)}, v{vL16}, {sr(S_SK, 4)}, 0 offen offset:{1024 * j - 8}')
        if o.get('ssm', 1) == 0:
            a(ssm)
        self.w_select()
        self.warm([[0], [1], []])
        park = o.get('park', 1)
        wl = self.w_loads_main(park)

        def w_some(n):
            for _ in range(n):
                a(wl.pop(0))
        a(f's_mov_b32 s{sT2}, 0xffff0000')
        for ch in range(4):
            for j in range(4):
                src = SH + 2 * ch + (j >> 1)
                if j & 1:
                    a(f'v_and_b32 v{WF + 4 * j + ch}, s{sT2}, v{src}')
                else:
                    a(f'v_lshlrev_b32 v{WF + 4 * j + ch}, 16, v{src}')

        def unpack(dst, src):
            a(f'v_lshlrev_b32 v{dst}, 16, v{src}')
            a(f'v_and_b32 v{dst + 1}, s{sT2}, v{src}')
            a(f'v_lshlrev_b32 v{dst + 2}, 16, v{src + 1}')
            a(f'v_and_b32 v{dst + 3}, s{sT2}, v{src + 1}')
        for r in range(3):
            unpack(KF + 4 * r, KR + 2 * r)
        self.stamp(1)
        for r in range(8):
            unpack(KF + 4 * (r + 3), KR + 2 * (r + 3))
            vf = VF + 4 * (r & 1)
            for j in (3, 2, 1, 0):
                for p in range(2):
                    d = vr(KV + 4 * r + 2 * p, 2)
                    k = vr(KF + 4 * (r + 3 - j) + 2 * p, 2)
                    w = vr(WF + 4 * j + 2 * p, 2)
                    if j == 3:
                        a(f'v_pk_mul_f32 {d}, {k}, {w}')
                    else:
                        a(f'v_pk_fma_f32 {d}, {k}, {w}, {d}')
                if j == 3:
                    unpack(vf, VR + 2 * r)
            for p in range(2):
                d = vr(KV + 4 * r + 2 * p, 2)
                a(f'v_pk_mul_f32 {d}, {d}, {vr(vf + 2 * p, 2)}')
            if o.get('ssm', 1) == 1:
                a(ssm.pop(0))
            if r & 1:
                d = (7 - r) >> 1
                for ch in range(4):
                    a(f'v_cvt_pk_bf16_f32 v{O + 4 * ch + d}, v{KV + 4 * r + ch}, v{KV + 4 * (r - 1) + ch}')
        self.stamp('kvdone')
        for ch in range(4):
            a(f'ds_write_b128 v{vSW}, {vr(O + 4 * ch, 4)} offset:{ch * 64}')
        for j in range(4):
            a(f'ds_read_b128 {vr(KV + 4 * j, 4)}, v{vSR} offset:{j * 1088}')
        a(f'buffer_load_dword v{vFl}, off, {sr(S_DBG, 4)}, 0 sc1')
        a(f's_mov_b32 s{sT0}, {KVX}')
        for j in range(4):
            a(f'buffer_store_dwordx4 {vr(KV + 4 * j, 4)}, v{vKS}, {WS}, s{sT0} offen sc1')
            if j < 3:
                a(f's_add_u32 s{sT0}, s{sT0}, {4 * QS}')
        self.stamp(2)
        if o.get('ssm', 1) == 2:
            a(ssm)
        a(f'ds_write_b128 v{vUW}, {vr(ZERO, 4)}')
        a(f'ds_write_b128 v{vGZ}, {vr(ZERO, 4)}')

        def table(j):
            D = SK + 8 * j
            Ea, Eb, Db = 184 + 12 * (j & 1), 184 + 12 * (j & 1) + 4, 184 + 12 * (j & 1) + 8

            def wr(rho, reg):
                a(f'ds_write_b128 v{vG}, {vr(reg, 4)} offset:{rho * GSTR + 1024 * j + 32}')
            wr(3, D + 4)
            for i in range(2):
                a(f'v_pk_mov_b32 {vr(Db + 2 * i, 2)}, {vr(D + 2 + 2 * i, 2)}, {vr(D + 4 + 2 * i, 2)} op_sel:[1,0]')
            for i in range(4):
                a(f'v_alignbit_b32 v{Ea + i}, v{D + 3 + i}, v{D + 2 + i}, 16')
            wr(1, Db)
            wr(0, Ea)
            for i in range(4):
                a(f'v_alignbit_b32 v{Eb + i}, v{D + 4 + i}, v{D + 3 + i}, 16')
            wr(2, Eb)
        w_some(o['w_kv'])
        n1, n2 = o['tb_pre'], o['tb_pre'] + o['tb_mid']
        for j in range(n1):
            table(j)
        a.need(f's{sDv}')
        a(f's_and_b32 s{sT1}, s{S_W}, 1')
        a(f's_lshl_b32 s{sT1}, s{sT1}, 4')
        a(f's_lshr_b32 s{sDv}, s{sDv}, s{sT1}')
        a(f's_and_b32 s{sDv}, s{sDv}, 0xffff')
        a(f'v_sub_u32 v5, 7, v{vI7}')
        a(f'v_and_b32 v7, 1, v5')
        a(f'v_lshlrev_b32 v7, 4, v7')
        a(f'v_lshlrev_b32 v7, v7, s{sDv}')
        a(f'v_bfe_u32 v1, v0, 3, 1')
        a(f'v_add_u32 v1, 2, v1')
        a(f'v_cmp_eq_u32 vcc, v1, v{vR}')
        a(f'v_cndmask_b32 v7, 0, v7, vcc')
        a(f'v_lshrrev_b32 v5, 1, v5')
        for d in range(4):
            a(f'v_cmp_eq_u32 vcc, {d}, v5')
            a(f'v_cndmask_b32 v1, 0, v7, vcc')
            a(f'v_accvgpr_write_b32 a{AD + d}, v1')
        self.stamp('tbpre')
        a.drain_stores()
        self.stamp('drained')
        a('s_barrier')
        self.stamp(3)
        a(f's_lshl_b32 s{sT0}, s{sG}, 8')
        with self.wave0():
            self.check(S_DBG, '0', 1, vFl)
            if o.get('apoll') == 9:
                a(f's_mov_b32 s{sU2}, 1')
                a(f's_atomic_add s{sU2}, {sr(S_WS, 2)}, s{sT0} glc')
            else:
                a(f'buffer_atomic_add v{self.vOne}, off, {WS}, s{sT0} sc1')
        w_some(o['w_e1'])
        for j in range(n1, n2):
            table(j)
        ACC = 128
        BUF = (0, 64)
        XR, SR, XF = 136, 152, 168

        def rdA(it, t):
            o0 = 8 * it + 64 * (t & 3)
            return f'ds_read2_b64 {ar(BUF[it & 1] + 4 * t, 4)}, v{vAa2 if t & 4 else vAa} offset0:{o0} offset1:{o0 + 1}'

        def rdB(it, t):
            return f'ds_read_b128 {ar(BUF[it & 1] + 32 + 4 * t, 4)}, v{vBa} offset:{448 - 64 * it + 512 * t}'
        if n2 == 4:
            for t in range(8):
                a(rdA(0, t))
        self.stamp('tbpost')
        self.warm([[2], [], []])
        with self.wave0():
            if o.get('apoll') == 9:
                top, done = a.label('spin'), a.label('done')
                a(f's_mov_b32 s{sSpin}, {SPIN}')
                a('s_waitcnt lgkmcnt(0)')
                a(f's_cmp_ge_u32 s{sU2}, 15')
                a(f's_cbranch_scc1 {done}')
                a(f'{top}:')
                a(f's_mov_b32 s{sU2}, 0')
                a(f's_atomic_add s{sU2}, {sr(S_WS, 2)}, s{sT0} glc')
                a(f's_sub_u32 s{sSpin}, s{sSpin}, 1')
                a(f's_cbranch_scc1 {done}')
                a('s_waitcnt lgkmcnt(0)')
                a(f's_cmp_lt_u32 s{sU2}, 16')
                a(f's_cbranch_scc1 {top}')
                a(f'{done}:')
                a('s_waitcnt lgkmcnt(0)')
            elif o.get('apoll'):
                self.spin_atomic(f's{sT0}', 16, o['apoll'], 1)
            else:
                self.spin(S_WS, f's{sT0}', 0 if o.get('noe1') else 16, vFl)
        a('s_barrier')
        self.stamp(4)
        a(f's_mov_b32 s{sT0}, {KVX}')
        for j in range(4):
            a(f'buffer_load_dwordx4 {ar(BUF[1] + 4 * j, 4)}, v{vUL}, {WS}, s{sT0} offen sc1')
            if j < 3:
                a(f's_add_u32 s{sT0}, s{sT0}, 4096')
        w_some(o['w_u'])
        for j in range(n2, 4):
            table(j)
        if n2 < 4:
            for t in range(8):
                a(rdA(0, t))
        a(f's_lshl_b32 s{sT3}, s{sX}, 8')
        a(f's_add_u32 s{sT3}, s{sT3}, {C_FXR * 256}')
        a(f's_mov_b32 s{sT4}, {ST1}')
        a(f's_add_u32 s{sT6}, s{sT6}, {XP4}')
        for j in range(4):
            a(f'ds_write_b128 v{vUW}, {ar(BUF[1] + 4 * j, 4)} offset:{512 + 1024 * j}')
            if j == 0:
                self.stamp('uload')
            a(rdB(0, 2 * j))
            a(rdB(0, 2 * j + 1))
        self.stamp(5)
        fx = o['fx_it']
        xl = []
        for T in range(2):
            for p in range(2):
                off = 2048 * T + 1024 * p
                xl.append([f'buffer_load_dwordx4 {vr(XR + 8 * T + 4 * p, 4)}, v{vXS}, {WS}, s{sT6} offen offset:{off} sc1'])
                xl.append([f'buffer_load_dwordx4 {vr(SR + 8 * T + 4 * p, 4)}, v{vXS}, {WS}, s{sT4} offen offset:{off} sc1'])
        if o.get('nowl'):
            wl = [g[:-1] + [[]] for g in wl]
        wt = self.w_loads_tail()
        if park:
            early, late = wl, xl + wt[:12]
            self.win_pre = [f'v_accvgpr_read_b32 v{self.WRAW[4] + i}, a{208 + i}' for i in range(32)]
            self.win_loads = wt[12:]
        else:
            early, late = wl[:-8], xl + wt
            self.win_pre = wl[-8][:-1]
            self.win_loads = [wl[-8][-1]] + wl[-7:]
        tot = len(early) + len(late)
        per = [(tot * (i + 1)) // 8 - (tot * i) // 8 for i in range(8)]
        plan = []
        for it in range(8):
            n = per[it]
            if it <= fx + 1:
                n = min(max(n, o.get('early_n', 0)), len(early))
                plan.append([early.pop(0) for _ in range(n)])
            else:
                rest = late[:8] + early + late[8:] if it == fx + 2 else rest
                early = late = []
                n = (len(rest) + 7 - it) // (8 - it)
                plan.append([rest.pop(0) for _ in range(n)])
        for it in range(8):
            A, B = BUF[it & 1], BUF[it & 1] + 32
            mf = []
            endT = []
            for T in range(8):
                c = ar(ACC + 4 * T, 4)
                if it == 0:
                    mf.append(f'v_mfma_f32_16x16x32_bf16 {c}, {ar(AD, 4)}, {ar(B + 4 * T, 4)}, 0')
                for t in range(T + 1):
                    mf.append(f'v_mfma_f32_16x16x32_bf16 {c}, {ar(A + 4 * t, 4)}, {ar(B + 4 * (T - t), 4)}, {c}')
                endT.append(len(mf) - 1)
            fill = [[] for _ in mf]
            base = 8 if it == 0 else 0
            if it < 7:
                rd = [x for t in range(8) for x in (rdA(it + 1, t), rdB(it + 1, t))]
                for i, x in enumerate(rd):
                    fill[base + 2 * i].append(x)
            zw = [f'ds_write_b128 v{vG}, {ar(ACC + 4 * T, 4)} offset:{1024 * T}' for T in range(8)]
            if it == 7:
                for T in range(o.get('z_in', 7)):
                    fill[max(endT[T] + 5, 6 + 4 * T)].append(zw.pop(0))
            n = len(plan[it])
            pos = base
            for i, g in enumerate(plan[it]):
                p = max(base + ((i + 1) * 35) // n, pos)
                k = len(g) - 1
                for z, x in enumerate(g[:-1]):
                    fill[max(pos, p - (k - z + 1) // 2)].append(x)
                fill[p].append(g[-1])
                pos = p
            if it == 0:
                for i, x in enumerate(self.clear_pst(228)):
                    fill[i].append(x)
            if it == fx:
                fill[-1].append(f'buffer_load_dword v{vFl}, off, {WS}, s{sT3} sc1')
            if it == fx + 1:
                fill[-1].append(lambda: self.check(S_WS, f's{sT3}', 0 if o.get('nofx') else 8, vFl))
            if it == 7:
                fill[0].append(f's_add_u32 s{sFW}, s{sT3}, {(C_FWR - C_FXR) * 256}')

            if it == 0:
                unp = []
                for T in range(2):
                    for row in range(4):
                        src = XR + 8 * T + 2 * row
                        xf = XF + 16 * T + 4 * row
                        st = SR + 8 * T + 2 * row
                        unp += [f'v_lshlrev_b32 v{xf}, 16, v{src}', f'v_and_b32 v{xf + 1}, s{sT2}, v{src}',
                                f'v_lshlrev_b32 v{xf + 2}, 16, v{src + 1}', f'v_and_b32 v{xf + 3}, s{sT2}, v{src + 1}']
                        unp += [f'v_fma_f32 v{xf + 32 + c}, v{xf + c}, v{st}, v{st + 1}' for c in range(4)]
            u0 = o.get('unp_at', 36 * 6 + 14)
            for i, x in enumerate(unp):
                p = u0 + (i * (36 * 8 - u0)) // 64
                if p // 36 == it:
                    fill[p % 36].append(x)
            self.stamp(f'it{it}')
            if it > 0:
                a.need(ar(A, 24 if it < 7 else 32), ar(B, 24))
            for m, f in zip(mf, fill):
                a(m)
                a(f)
        self.stamp(6)
        a(zw)
        a('s_waitcnt lgkmcnt(0)')
        a('s_barrier')
        self.stamp('zbar')
        Z = XR
        for T in range(2):
            for ch in range(4):
                a(f'ds_read_b128 {vr(Z + 16 * T + 4 * ch, 4)}, v{vZR} offset:{ch * GW + 1024 * T}')
        a(f's_mov_b32 s{sT0}, {HP4}')
        for T in range(2):
            for p in range(2):
                ho = XF + 32 + 16 * T + 8 * p
                for b in range(2):
                    row = 2 * p + b
                    for c in range(4):
                        x = XF + 16 * T + 4 * row + c
                        a(f'v_fmac_f32 v{x}, v{x + 32}, v{Z + 16 * T + 4 * c + row}')
                    for c2 in range(2):
                        x = XF + 16 * T + 4 * row + 2 * c2
                        a(f'v_cvt_pk_bf16_f32 v{ho + 2 * b + c2}, v{x}, v{x + 1}')
                a(f'buffer_store_dwordx4 {vr(ho, 4)}, v{vHS}, {WS}, s{sT0} offen offset:{2048 * T + 1024 * p} sc1')
        self.stamp(7)

    def arrive_e2(self):
        a = self.a
        a(f's_lshl_b32 s{sT0}, s{sX}, 8')
        a(f's_add_u32 s{sT0}, s{sT0}, {C_B1 * 256}')
        with self.wave0():
            self.two_level(f's{sT0}', 31, C_B2, self.opt['arr'] == 's')

    def side(self):
        a = self.a
        a('.Lside:')
        a.fresh('role')
        self.stamp('sx_in')
        vTid = 1
        a(f's_sub_u32 s{sG}, s{sJ}, 20')
        a(f's_lshl3_add_u32 s{sG}, s{sG}, s{sX}')
        J2, vJ2, sG2, sJo, sJs = 136, 230, sQ, sDv, sM
        up = self.opt.get('up', 1)

        def job2_loads():
            a(f's_add_u32 s{sG2}, s{sG}, {48 if self.opt.get("pair", 1) else 0}')
            a(f's_sub_u32 s{sT0}, s{sG2}, 96')
            a(f's_cselect_b32 s{sG2}, s{sG2}, s{sT0}')
            a(f's_cmp_ge_u32 s{sG2}, 72')
            a(f's_cselect_b32 s{sT2}, s{S_WU}, s{S_WG}')
            a(f's_cselect_b32 s{sT3}, s{S_WU + 1}, s{S_WG + 1}')
            a(f's_cselect_b32 s{sT1}, 72, 48')
            a(f's_sub_u32 s{sT1}, s{sG2}, s{sT1}')
            a(f's_lshr_b32 s{sT0}, s{sG2}, 1')
            a(f's_cmp_ge_u32 s{sG2}, 48')
            a(f's_cselect_b32 s{S_WD}, s{sT2}, s{S_WD}')
            a(f's_cselect_b32 s{S_WD + 1}, s{sT3}, s{S_WD + 1}')
            a(f's_cselect_b32 s{sT0}, s{sT1}, s{sT0}')
            self.real_line(sT0, sT2)
            a(f's_and_b32 s{sT2}, s{sG2}, 1')
            a(f's_lshl1_add_u32 s{sT2}, s{sT0}, s{sT2}')
            a(f's_mul_i32 s{sT2}, s{sT2}, {32 * 1280}')
            a(f's_lshl_b32 s{sT0}, s{sT0}, 7')
            a(f's_movk_i32 s{sT1}, 1280')
            a(f's_movk_i32 s{sJs}, 128')
            a(f's_cmp_ge_u32 s{sG2}, 48')
            a(f's_cselect_b32 s{sJo}, s{sT0}, s{sT2}')
            a(f's_cselect_b32 s{sT1}, 3072, s{sT1}')
            a(f's_cselect_b32 s{sJs}, {32 * 3072}, s{sJs}')
            a(f'v_and_b32 v{vJ2}, 7, v0')
            a(f'v_lshlrev_b32 v{vJ2}, 4, v{vJ2}')
            a(f'v_lshrrev_b32 v15, 3, v{vTid}')
            a(f'v_mad_u32_u24 v{vJ2}, v15, s{sT1}, v{vJ2}')
            for j in range(10):
                a(f'buffer_load_dwordx4 {vr(J2 + 4 * j, 4)}, v{vJ2}, {sr(S_WD, 4)}, s{sJo} offen')
                a(f's_add_u32 s{sJo}, s{sJo}, s{sJs}')
        a(f's_cmp_ge_u32 s{sG}, 64')
        a.snapshot('s4')
        a('s_cbranch_scc1 .Ls4')
        XR, WR = 16, J2
        vA, vRow, vS8 = 2, 3, 4
        a(f'v_lshrrev_b32 v{vRow}, 3, v{vTid}')
        a(f'v_and_b32 v{vS8}, 7, v0')
        a(f's_lshr_b32 s{sT0}, s{sG}, 3')
        a(f's_lshl_b32 s{sT0}, s{sT0}, 8')
        a(f's_and_b32 s{sT1}, s{sG}, 3')
        a(f's_lshl2_add_u32 s{sT0}, s{sT1}, s{sT0}')
        a(f's_bfe_u32 s{sT1}, s{sG}, 0x10002')
        a(f's_lshl1_add_u32 s{sT0}, s{sT1}, s{sT0}')
        a(f'v_and_b32 v5, 0xf0, v{vTid}')
        a(f'v_and_b32 v6, 1, v{vRow}')
        a(f'v_add3_u32 v5, v5, v6, s{sT0}')
        a(f's_movk_i32 s{sT1}, 1280')
        a(f'v_lshlrev_b32 v6, 4, v{vS8}')
        a(f'v_mad_u32_u24 v5, v5, s{sT1}, v6')
        for j in range(10):
            a(f'buffer_load_dwordx4 {vr(XR + 4 * j, 4)}, v5, {sr(S_X, 4)}, 0 offen offset:{128 * j}')
        if up == 1:
            job2_loads()
        self.stamp('sx_issued')
        self.gemm_ids()
        self.w_addr()
        vW, vRd, vSt = 5, 6, 7
        a(f's_movk_i32 s{sT1}, 528')
        a(f'v_lshlrev_b32 v{vW}, 3, v{vRow}')
        a(f'v_mad_u32_u24 v{vW}, v{vS8}, s{sT1}, v{vW}')
        a(f'v_and_b32 v{vRd}, 31, v0')
        a(f'v_lshlrev_b32 v{vRd}, 4, v{vRd}')
        a(f'v_lshrrev_b32 v8, 5, v{vTid}')
        a(f'v_mad_u32_u24 v{vRd}, v8, s{sT1}, v{vRd}')
        a(f's_lshl_b32 s{sT0}, s{sG}, 8')
        a(f'v_and_b32 v{vSt}, 15, v0')
        a(f'v_lshl_add_u32 v{vSt}, v{vSt}, 4, s{sT0}')
        a(f'v_lshrrev_b32 v8, 4, v{vTid}')
        a(f's_mov_b32 s{sT1}, {QS}')
        a(f'v_mad_u32_u24 v{vSt}, v8, s{sT1}, v{vSt}')
        for j in range(10):
            for o_ in range(2):
                a(f'ds_write_b64 v{vW}, {vr(XR + 4 * j + 2 * o_, 2)} offset:{j * 4224 + o_ * 256}')
        self.stamp('sx_data')
        if up == 2:
            job2_loads()
            a(f's_lshl_b32 s{sT0}, s{sG}, 8')
        a('s_waitcnt lgkmcnt(0)')
        a('s_barrier')
        self.stamp('sx_bar')
        XO = 96
        for j in range(10):
            a(f'ds_read_b128 {vr(XO + 4 * j, 4)}, v{vRd} offset:{j * 4224}')
        a(f's_mov_b32 s{sT1}, {XP4}')
        a(f's_mov_b32 s{sOne}, 0x3f803f80')
        for i in range(4):
            a(f'v_mov_b32 v{8 + i}, 0')
        for j in range(10):
            a(f'buffer_store_dwordx4 {vr(XO + 4 * j, 4)}, v{vSt}, {WS}, s{sT1} offen sc1')
            a(f's_add_u32 s{sT1}, s{sT1}, {16 * QS}')
            for i in range(4 * j, 4 * j + 4):
                a(f'v_dot2c_f32_bf16 v{8 + (i & 1)}, s{sOne}, v{XR + i}')
                a(f'v_dot2c_f32_bf16 v{10 + (i & 1)}, v{XR + i}, v{XR + i}')
        a('v_add_f32 v8, v8, v9')
        a('v_add_f32 v10, v10, v11')
        for m in ('quad_perm:[1,0,3,2]', 'quad_perm:[2,3,0,1]', 'row_half_mirror'):
            a(f'v_add_f32_dpp v8, v8, v8 {m} row_mask:0xf bank_mask:0xf')
            a(f'v_add_f32_dpp v10, v10, v10 {m} row_mask:0xf bank_mask:0xf')
        a(f'v_mul_f32 v8, {f32(1 / 640)}, v8')
        a(f'v_mul_f32 v10, {f32(1 / 640)}, v10')
        a('v_fma_f32 v10, -v8, v8, v10')
        a('v_max_f32 v10, 0, v10')
        a(f'v_add_f32 v10, {f32(1e-5)}, v10')
        a('v_rsq_f32 v10, v10')
        a(f'v_lshl_add_u32 v12, v{vRow}, 3, s{sT0}')
        a('v_mul_f32 v11, -v8, v10')
        a(f's_mov_b32 s{sT1}, {ST1}')
        vFl = 231
        a(f'buffer_load_dword v{vFl}, off, {sr(S_DBG, 4)}, 0 sc1')
        a('s_mov_b32 exec_lo, 0x01010101')
        a('s_mov_b32 exec_hi, 0x01010101')
        a(f'buffer_store_dwordx2 v[10:11], v12, {WS}, s{sT1} offen sc1')
        a('s_mov_b64 exec, -1')
        a('s_branch .Lr1')
        a('.Ls4:')
        a.fresh('s4')
        T4 = 10240
        a(f's_sub_u32 s{sT4}, s{sG}, 64')
        a(f's_lshr_b32 s{sT5}, s{sT4}, 2')
        a(f's_and_b32 s{sT4}, s{sT4}, 3')
        a(f's_mul_i32 s{sT0}, s{sT4}, 160')
        a(f's_lshl3_add_u32 s{sT0}, s{S_W}, s{sT0}')
        a(f's_mul_i32 s{sT0}, s{sT0}, 3072')
        a(f's_mul_i32 s{sT1}, s{sT5}, 3')
        a(f's_add_u32 s{sT1}, s{sT1}, 1')
        self.real_line(sT1, sT2)
        a(f's_lshl_b32 s{sT1}, s{sT1}, 7')
        a(f's_add_u32 s{sT0}, s{sT0}, s{sT1}')
        a('v_lshrrev_b32 v3, 3, v0')
        a('v_and_b32 v4, 7, v0')
        a(f'v_lshl_add_u32 v2, v4, 4, s{sT0}')
        a(f's_movk_i32 s{sT1}, 3072')
        a(f'v_mad_u32_u24 v2, v3, s{sT1}, v2')
        a(f's_mov_b32 s{sT0}, 0')
        for i in range(10):
            a(f'buffer_load_dwordx4 {vr(XR + 4 * i, 4)}, v2, {sr(S_WU if i & 1 else S_WG, 4)}, s{sT0} offen')
            if i & 1:
                a(f's_add_u32 s{sT0}, s{sT0}, {32 * 3072}')
        if up == 1:
            job2_loads()
        self.stamp('sx_issued')
        self.gemm_ids()
        self.w_addr()
        a(f's_lshl_b32 s{sT0}, s{S_W}, 9')
        a(f'v_lshl_add_u32 v5, v3, 6, s{sT0}')
        a('v_and_b32 v6, 1, v0')
        a('v_lshl_add_u32 v5, v6, 4, v5')
        a('v_bfe_u32 v6, v0, 1, 2')
        a('v_lshlrev_b32 v7, 5, v6')
        a('v_xor_b32 v5, v5, v7')
        a(f's_movk_i32 s{sT0}, {T4}')
        a(f'v_mad_u32_u24 v5, v6, s{sT0}, v5')
        a('v_xor_b32 v6, 32, v5')
        a('v_lshrrev_b32 v7, 5, v0')
        a('v_bfe_u32 v8, v0, 2, 2')
        a('v_lshl_add_u32 v7, v7, 3, v8')
        a('v_lshlrev_b32 v7, 6, v7')
        a('v_and_b32 v8, 3, v0')
        a('v_lshl_add_u32 v7, v8, 4, v7')
        a('v_bfe_u32 v8, v0, 4, 1')
        a('v_lshl_add_u32 v7, v8, 3, v7')
        a(f's_lshl_b32 s{sT1}, s{S_W}, 5')
        a(f'v_xor_b32 v7, s{sT1}, v7')
        a(f's_mul_i32 s{sT1}, s{S_W}, {T4}')
        a(f'v_add_u32 v7, s{sT1}, v7')
        for i in range(10):
            a(f'ds_write_b128 v{6 if i & 1 else 5}, {vr(XR + 4 * i, 4)} offset:{(i >> 1) * 2048}')
        self.stamp('sx_data')
        if up == 2:
            job2_loads()
        a('s_waitcnt lgkmcnt(0)')
        a('s_barrier')
        self.stamp('sx_bar')
        for j in range(10):
            for e in range(2):
                a(f'ds_read_b64_tr_b16 {vr(XO + 4 * j + 2 * e, 2)}, v7 offset:{1024 * j + 256 * e}')
        a(f's_lshl2_add_u32 s{sT0}, s{sT5}, s{S_W}')
        a(f's_lshl2_add_u32 s{sT0}, s{sT0}, s{sT4}')
        a(f's_mul_i32 s{sT0}, s{sT0}, 10240')
        a(f's_add_u32 s{sT0}, s{sT0}, {W45F}')
        a('v_lshlrev_b32 v9, 4, v0')
        a(f'buffer_load_dword v{vFl}, off, {sr(S_DBG, 4)}, 0 sc1')
        for j in range(10):
            if j and j & 3 == 0:
                a(f's_add_u32 s{sT0}, s{sT0}, 4096')
            a(f'buffer_store_dwordx4 {vr(XO + 4 * j, 4)}, v9, {WS}, s{sT0} offen offset:{(j & 3) * 1024} sc1')
        a('.Lr1:')
        a.fresh()
        self.stamp('sx_st')
        o = self.opt
        assert up >= 1
        a(f's_mov_b32 s{sG}, s{sG2}')
        a(f's_mov_b32 s{sSide}, s{sG2}')
        self.w_select()
        WB = 49152
        T0 = 216
        na, nb, nc = o.get('sw_a', 10), o.get('sw_b', 10), o.get('sw_c', 12)
        assert na + nb + nc <= 32

        def end_r1(younger):
            self.stamp('sx_ld2')
            a(f's_waitcnt vmcnt({younger})')
            a('s_barrier')
            self.stamp('sx_dr')
            self.arrive_start([(sArr, C_FX)], lambda: self.check(S_DBG, '0', 1, vFl))
        a(f's_cmp_ge_u32 s{sG}, 48')
        a('s_cbranch_scc1 .Ls2')
        wl = self.w_loads_main()
        a(wl[:na])
        v8, v9, v10 = T0, T0 + 1, T0 + 2
        a(f'v_lshrrev_b32 v{vRow}, 3, v{vTid}')
        a(f'v_and_b32 v{vS8}, 7, v0')
        a(f's_movk_i32 s{sT1}, 1344')
        a(f'v_lshlrev_b32 v{vW}, 4, v{vS8}')
        a(f'v_mad_u32_u24 v{vW}, v{vRow}, s{sT1}, v{vW}')
        a(f'v_lshrrev_b32 v{v8}, 4, v0')
        a(f'v_bfe_u32 v{v9}, v0, 2, 2')
        a(f'v_lshl_add_u32 v{v8}, v{v8}, 3, v{v9}')
        a(f's_mul_i32 s{sT0}, s{S_W}, 320')
        a(f'v_mov_b32 v{v9}, s{sT0}')
        a(f'v_mad_u32_u24 v{v8}, v{v8}, s{sT1}, v{v9}')
        a(f'v_and_b32 v{v9}, 3, v0')
        a(f'v_lshl_add_u32 v{v10}, v{v9}, 3, v{v8}')
        a(f'v_lshl_add_u32 v{v8}, v{v9}, 4, v{v8}')
        end_r1(na)
        q = wl[na:na + nb]
        for j in range(10):
            a(f'ds_write_b128 v{vW}, {vr(WR + 4 * j, 4)} offset:{WB + 128 * j}')
            if q and j < o.get('sw_b1', 4):
                a(q.pop(0))
        self.arrive_finish([(sArr, 11, C_FXR)], v9)
        self.stamp(1)
        a(q)
        a('s_barrier')
        for cc in range(2):
            for nt in range(5):
                for e in range(2):
                    off = WB + cc * 160 + e * 4 * 1344 + ((nt >> 1) * 64 + (nt & 1) * 8)
                    a(f'ds_read_b64_tr_b16 {ar(4 * (5 * cc + nt) + 2 * e, 2)}, v{v10 if nt == 4 else v8} offset:{off}')
        a(f's_mul_i32 s{sT0}, s{S_W}, 96')
        a(f's_add_u32 s{sT0}, s{sT0}, s{sG}')
        a(f's_mul_i32 s{sT0}, s{sT0}, 5120')
        a(f's_add_u32 s{sT0}, s{sT0}, {WDF}')
        a(f'v_lshlrev_b32 v{v9}, 4, v0')
        for cc in range(2):
            for nt in range(5):
                if nt == 4:
                    a(f's_add_u32 s{sT0}, s{sT0}, 4096')
                a(f'buffer_store_dwordx4 {ar(4 * (5 * cc + nt), 4)}, v{v9}, {WS}, s{sT0} offen offset:{(nt & 3) * 1024} sc1')
            a(f's_add_u32 s{sT0}, s{sT0}, {48 * 5120 - 4096}')
        a('s_branch .Lr2')
        a('.Ls2:')
        a.fresh()
        AC = T0 + 4
        for i in range(10, 20):
            a(f'buffer_load_dwordx4 {vr(J2 + 4 * i, 4)}, v{vJ2}, {sr(S_WD, 4)}, s{sJo} offen')
            a(f's_add_u32 s{sJo}, s{sJo}, s{sJs}')
        for i in range(8):
            a(f'v_mov_b32 v{AC + i}, 0')
        a(f's_mov_b32 s{sT4}, 0x3f80')
        a(f's_mov_b32 s{sT3}, 0x3f800000')
        end_r1(10)
        q = self.w_loads_main()[:na + nb]
        for i in range(80):
            a(f'v_dot2c_f32_bf16 v{AC + 2 * (i & 3)}, s{sT4}, v{J2 + i}')
            a(f'v_dot2c_f32_bf16 v{AC + 1 + 2 * (i & 3)}, s{sT3}, v{J2 + i}')
            if i == 39:
                self.arrive_finish([(sArr, 11, C_FXR)], T0)
                self.stamp(1)
            if i & 1 and i > 39 and q:
                a(q.pop(0))
        a(q)
        a(f'v_lshlrev_b32 v5, 5, v{vTid}')
        a(f'ds_write_b128 v5, {vr(AC, 4)} offset:{WB}')
        a(f'ds_write_b128 v5, {vr(AC + 4, 4)} offset:{WB + 16}')
        a('s_waitcnt lgkmcnt(0)')
        a('s_barrier')
        a('v_bfe_u32 v6, v0, 1, 4')
        a('v_and_b32 v7, 32, v0')
        a('v_add_u32 v6, v6, v7')
        a('v_and_b32 v7, 1, v0')
        a('v_lshl_add_u32 v6, v7, 4, v6')
        a('v_lshlrev_b32 v6, 2, v6')
        for i in range(16):
            a(f'ds_read2st64_b32 {vr(J2 + 2 * i, 2)}, v6 offset0:{WB // 256 + 2 * i} offset1:{WB // 256 + 2 * i + 1}')
        for i in range(1, 16):
            a(f'v_pk_add_f32 {vr(J2, 2)}, {vr(J2, 2)}, {vr(J2 + 2 * i, 2)}')
        a(f'v_add_f32 v{J2}, v{J2}, v{J2 + 1}')
        a(f'v_cvt_pk_bf16_f32 v{T0}, v{J2}, v{J2}')
        a(f'v_lshlrev_b32 v7, 16, v{T0}')
        a(f'v_sub_f32 v7, v{J2}, v7')
        a(f'v_cvt_pk_bf16_f32 v{T0 + 1}, v7, v7')
        a(f's_sub_u32 s{sT0}, s{sG}, 48')
        a(f's_lshl_b32 s{sT0}, s{sT0}, 9')
        a(f's_add_u32 s{sT0}, s{sT0}, {CSF}')
        a('v_lshlrev_b32 v6, 3, v0')
        a(f'buffer_store_dwordx2 {vr(T0, 2)}, v6, {WS}, s{sT0} offen sc1')
        a('.Lr2:')
        a.fresh()
        self.stamp(2)
        a(f's_lshl_b32 s{sT0}, s{sG}, 8')
        a(f's_add_u32 s{sT0}, s{sT0}, {C_F3 * 256}')
        a('v_mov_b32 v4, 0')
        a('v_lshlrev_b32 v5, 2, v0')
        a(f'buffer_store_dword v4, v5, {WS}, s{sT0} offen sc1')
        a(self.clear_pst(2))
        n0 = na + nb + nc
        a(wl[na + nb:n0])
        a(f's_lshl_b32 s{sT4}, s{sX}, 8')
        a(f's_add_u32 s{sT4}, s{sT4}, {C_FXR * 256}')
        a(f's_add_u32 s{sFW}, s{sT4}, {(C_FWR - C_FXR) * 256}')
        a.drain_stores()
        a('s_waitcnt lgkmcnt(0)')
        a('s_barrier')
        self.stamp(6)
        self.arrive_start([(sArr, C_B1), (sJs, C_FW)])
        a(f'buffer_load_dword v1, off, {WS}, s{sT4} sc1')

        def mid():
            self.arrive_finish([(sJs, 11, C_FWR), (sArr, 31, C_B2)], T0)
            self.check(S_WS, f's{sT4}', 8, 1)
        self.side_window(wl[n0:], mid)
        a(f's_waitcnt vmcnt({self.opt["wd_pre"]})')
        self.stamp(7)
        a('s_branch .Ljoin')

    def signal(self, soff):
        a = self.a
        if self.opt['sig'] == 's':
            a(f's_atomic_add s{sU2}, {sr(S_WS, 2)}, {soff}')
        else:
            a('s_mov_b64 exec, 1')
            a(f'buffer_atomic_add v{self.vOne}, off, {WS}, {soff} sc1')
            a('s_mov_b64 exec, -1')

    def gemms(self):
        a = self.a
        o = self.opt
        t, t2 = self.vTmp, self.vTmp2
        L, AB = 0, 8
        vRD = 4
        vAL, vAS, vA2, vWD, vWD2, vCS, vFl = 1, 2, 3, 247, 255, 246, 254
        vW5 = 252
        vS = 232
        BP = 236
        TM = 242
        ACC = 168
        RING1, CS, RING2 = 124, 148, 240
        sF3s, sF3p = sQ, sM
        sRB2w = sG
        kap = [[3 * c + ((pi + 1) % 3 if c & 1 else pi) for c in range(4)] for pi in range(3)]
        wd = []
        for i in range(60):
            g = []
            if i % 5 == 0:
                g.append(f's_mov_b32 s{sWoff}, {WDF + 5120 * kap[i // 20][i // 5 % 4]}')
            g.append(f'buffer_load_dwordx4 {ar(4 * i, 4)}, v{vWD2 if i % 5 == 4 else vWD}, {WS}, s{sWoff} offen offset:{(i % 5 & 3) * 1024} sc1')
            wd.append(g)
        if o.get('nowd'):
            wd = [[] for _ in wd]
        real, setup0 = a, []
        a = setup0.append
        a(f's_and_b32 s{sT0}, s{sJ}, 7')
        a(f's_lshl2_add_u32 s{sT0}, s{sT0}, s{S_W}')
        a(f's_mul_i32 s{sT0}, s{sT0}, {12 * 5120}')
        a(f'v_lshl_add_u32 v{vWD}, v0, 4, s{sT0}')
        a(f'v_add_u32 v{vWD2}, 0x1000, v{vWD}')
        a(f'v_lshlrev_b32 v{vRD}, 4, v0')
        for s in range(1, 4):
            a(f'v_xor_b32 v{t}, {16 * s}, v{vRD}')
            a(f'v_add_u32 v{vRD + s}, {TILE * s}, v{t}')
        a(f'v_lshl_add_u32 v{vW5}, s{S_W}, 10, v{vRD}')
        a(f'v_lshl_add_u32 v{vW5 + 1}, s{S_W}, 10, v{vRD + 1}')
        a(f's_lshl2_add_u32 s{sT0}, s{sRB}, s{S_W}')
        a(f's_lshl_b32 s{sT1}, s{sT0}, 8')
        a(f'v_and_b32 v{t}, 15, v0')
        a(f'v_lshlrev_b32 v{vA2}, 4, v{t}')
        a(f'v_add_u32 v{t}, s{sT1}, v{vA2}')
        a(f'v_lshrrev_b32 v{t2}, 4, v0')
        a(f's_mov_b32 s{sT1}, {QS}')
        a(f'v_mad_u32_u24 v{vAL}, v{t2}, s{sT1}, v{t}')
        a(f'v_lshl_add_u32 v{vA2}, v{t2}, 9, v{vA2}')
        a(f's_mul_i32 s{sT1}, s{sT0}, 98304')
        a(f'v_lshl_add_u32 v{vAS}, v0, 4, s{sT1}')
        a(f's_lshr_b32 s{sF3s}, s{sT0}, 1')
        a(f's_lshl_b32 s{sF3s}, s{sF3s}, 8')
        a(f's_add_u32 s{sF3s}, s{sF3s}, {C_F3 * 256}')
        a(f's_lshr_b32 s{sT1}, s{sJ}, 3')
        a(f's_lshl2_add_u32 s{sF3p}, s{sX}, s{sT1}')
        a(f's_lshl_b32 s{sRB2w}, s{sF3p}, 1')
        a(f's_lshl_b32 s{sF3p}, s{sF3p}, 8')
        a(f's_add_u32 s{sF3p}, s{sF3p}, {C_F3 * 256}')
        for i in range(4):
            a(f's_add_u32 s{sT0}, s{sRot}, {i}')
            a(f's_and_b32 s{sT0}, s{sT0}, 3')
            a(f's_mul_i32 s{sT0}, s{sT0}, {40 * QS}')
            a(f's_add_u32 s{sAB + i}, s{sT0}, {HP4}')
        a(f'v_and_b32 v{t}, 3, v0')
        a(f'v_bfe_u32 v{t2}, v0, 2, 1')
        a(f'v_lshl_add_u32 v{t}, v{t2}, 3, v{t}')
        a(f'v_bfe_u32 v{t2}, v0, 4, 1')
        a(f'v_lshl_add_u32 v{t}, v{t2}, 2, v{t}')
        a(f'v_lshlrev_b32 v{t}, 4, v{t}')
        a(f'v_bfe_u32 v{t2}, v0, 3, 1')
        a(f's_movk_i32 s{sT1}, 12288')
        a(f'v_mad_u32_u24 v{vCS}, v{t2}, s{sT1}, v{t}')
        for i in range(4):
            a(f'v_mov_b32 v{vS + i}, 0')
        a(f's_mov_b32 s{sOne}, 0x3f803f80')
        a(f's_mov_b32 s{sU2}, 1')
        a(f's_lshl_b32 s{sT2}, s{sA}, 7')
        a(f's_add_u32 s{sT2}, s{sT2}, {CSF}')
        a(f's_lshl_b32 s{sT3}, s{sB}, 7')
        a(f's_add_u32 s{sT3}, s{sT3}, {CSF}')
        a(f's_lshl_b32 s{sA}, s{sA}, 10')
        a(f's_add_u32 s{sA}, s{sA}, {ACT}')
        a(f's_lshl_b32 s{sB}, s{sB}, 10')
        a(f's_add_u32 s{sB}, s{sB}, {ACT}')
        a(f's_mul_i32 s{sT5}, s{S_W}, {12 * 2048}')
        for lam in range(4):
            a(f's_xor_b32 s{sT0}, s{S_W}, {lam}')
            a(f's_lshr_b32 s{sT1}, s{sT0}, 1')
            a(f's_add_u32 s{sT1}, s{sT1}, s{sRB2w}')
            a(f's_mul_i32 s{sT1}, s{sT1}, 98304')
            a(f's_and_b32 s{sT0}, s{sT0}, 1')
            a(f's_lshl_b32 s{sT0}, s{sT0}, 8')
            a(f's_add_u32 s{sT0}, s{sT0}, s{sT5}')
            a(f's_add_u32 s{sL[lam]}, s{sT1}, s{sT0}')
        sRes, sOutB, sQS = 20, 21, 22
        a(f's_lshr_b32 s{sT0}, s{S_W}, 1')
        a(f's_add_u32 s{sT0}, s{sT0}, s{sRB2w}')
        a(f's_lshl_b32 s{sRes}, s{sT0}, 8')
        a(f's_and_b32 s{sT4}, s{S_W}, 1')
        a(f's_lshl3_add_u32 s{sRes}, s{sT4}, s{sRes}')
        a(f's_and_b32 s{sT5}, s{sJ}, 7')
        a(f's_mul_i32 s{sT6}, s{sT5}, {20 * QS}')
        a(f's_add_u32 s{sRes}, s{sRes}, s{sT6}')
        a(f's_mov_b32 s{sQS}, {QS}')
        a(f's_lshr_b32 s{sOutB}, s{sRB2w}, 3')
        a(f's_lshl_b32 s{sOutB}, s{sOutB}, 8')
        a(f's_and_b32 s{sT6}, s{sT0}, 3')
        a(f's_lshl2_add_u32 s{sOutB}, s{sT6}, s{sOutB}')
        a(f's_bfe_u32 s{sT6}, s{sRB2w}, 0x10002')
        a(f's_lshl1_add_u32 s{sOutB}, s{sT6}, s{sOutB}')
        a(f's_add_u32 s{sOutB}, s{sOutB}, s{sT4}')
        a(f's_mul_i32 s{sOutB}, s{sOutB}, 1280')
        a(f's_mul_i32 s{sT6}, s{sT5}, 160')
        a(f's_add_u32 s{sOutB}, s{sOutB}, s{sT6}')
        a(f's_lshl_b32 s{sU0}, s{sCB}, 8')
        a(f's_add_u32 s{sU0}, s{sU0}, {PST}')
        a(f's_mov_b32 s{sU1}, {PST}')
        a(f's_and_b32 s{sCB}, s{sCB}, 3')
        a(f's_mul_i32 s{sCB}, s{sCB}, 10')
        a = real
        nw = 40 - 8 * o.get('defer', 2)
        wdp = [wd.pop(0) for _ in range(o['wd_pre'])]

        def mixer(ww, setup, lq, per=6):
            def some(n, nl):
                for i in range(n):
                    a(ww.pop(0))
                    for _ in range(per):
                        if setup:
                            a(setup.pop(0))
                    for _ in range(((i + 1) * nl) // n - (i * nl) // n):
                        if lq:
                            a(lq.pop(0))
            return some

        def side_window(wl, fx_check):
            ww, setup = self.w_writes_main()[:nw], list(setup0)
            self.w_write_addr()
            lq = list(wl)
            hold = [x for x in setup if f'v{vW5},' in x or f's{sU1},' in x]
            setup = [x for x in setup if x not in hold]
            some = mixer(ww, [], lq)
            nl = len(lq)
            n_ = min(nl, nw - 8)
            assert all(40 - nl + (i * nl) // n_ >= 8 * (i // 8 + 1) for i in range(n_))
            some(n_, nl)
            fx_check()
            lq += self.w_loads_tail()
            if o.get('outpf', 1):
                a(f's_lshr_b32 s{sT0}, s{sSide}, 3')
                a(f's_lshl2_add_u32 s{sT0}, s{sT0}, s{S_W}')
                a(f's_mul_i32 s{sT0}, s{sT0}, {22 * 320}')
                a(f's_and_b32 s{sSide}, s{sSide}, 7')
                a(f's_mul_i32 s{sSide}, s{sSide}, {256 * 1280}')
                a(f's_add_u32 s{sSide}, s{sSide}, s{sT0}')
                a(f'v_min_u32 v{TM}, 21, v0')
                a(f'v_mul_u32_u24 v{TM}, 320, v{TM}')
                lq.insert(o.get('pf_pos', 20), f'buffer_load_dword a255, v{TM}, {sr(S_OUT, 4)}, s{sSide} offen offset:160')
            lq.append(f'buffer_load_dword v{TM + 1}, off, {WS}, s{sFW} sc1')
            mixer(ww, setup, lq)(len(ww), len(lq))
            a(setup)
            a(hold)
            if wdp:
                self.check(S_WS, f's{sFW}', 0 if o.get('nofw') else 8, TM + 1)
            a(wdp)
        self.side_window = side_window
        ww = self.w_writes_main()
        setup = self.win_pre + setup0
        lq = list(self.win_loads)
        n1, n2 = o.get('ww1', 13), o.get('ww2', 7)
        self.w_write_addr()
        a('s_barrier')
        self.stamp('hbar')
        some = mixer(ww, setup, lq, o.get('su_per', 7))
        assert 5 * o.get('su_per', 7) >= len(self.win_pre)
        some(5, 0)
        fwe = o.get('fwe', 1)
        if wdp and fwe:
            a(f'buffer_load_dword v{TM + 1}, off, {WS}, s{sFW} sc1')
        hold = [x for x in setup if isinstance(x, str) and (f'v{vW5},' in x or f's{sU1},' in x)]
        setup[:] = [x for x in setup if x not in hold]
        some(n1 - 5, o.get('l1', 8))
        self.stamp('hissued')
        a.drain_stores()
        self.stamp('hdrained')
        a('s_barrier')
        self.stamp('hbar2')
        self.arrive_start([(sArr, C_B1)])
        if wdp and not fwe:
            a(f'buffer_load_dword v{TM + 1}, off, {WS}, s{sFW} sc1')
        if wdp and fwe:
            self.check(S_WS, f's{sFW}', 0 if o.get('nofw') else 8, TM + 1)
            nl2 = len(lq) + o.get('l2', 8)
            lq += wdp
            some(n2, nl2)
        else:
            some(n2, len(lq))
        self.arrive_finish([(sArr, 31, C_B2)], TM)
        self.stamp('arrived')
        if wdp and not fwe:
            self.check(S_WS, f's{sFW}', 0 if o.get('nofw') else 8, TM + 1)
            lq += wdp
        some(nw - n1 - n2, len(lq))
        a(setup)
        a(hold)
        a(lq)
        a('.Ljoin:')
        self.stamp('wwritten')
        a(f's_lshl_b32 s{sT0}, s{sX}, 8')
        a(f's_add_u32 s{sT0}, s{sT0}, {C_B2 * 256}')
        self.warm([[3, 6], [4, 7], [5]])
        with self.wave0():
            self.spin(S_WS, f's{sT0}', 0 if o.get('noe2') else 8, t)
        self.stamp('polled')
        a('s_waitcnt lgkmcnt(0)')
        a('s_barrier')
        self.stamp(8)
        al = []
        for j in range(40):
            if j % 10 == 0:
                al.append([f'buffer_load_dwordx4 {vr(AB + 4 * j, 4)}, v{vAL}, {WS}, s{sAB + j // 10} offen sc1'])
            else:
                al.append([f's_add_u32 s{sT1}, s{sAB + j // 10}, {(j % 10) * 4 * QS}',
                           f'buffer_load_dwordx4 {vr(AB + 4 * j, 4)}, v{vAL}, {WS}, s{sT1} offen sc1'])
        al.append(f'buffer_load_dwordx4 {ar(CS, 4)}, v{vCS}, {WS}, s{sT2} offen sc1')
        al.append(f'buffer_load_dwordx4 {ar(CS + 4, 4)}, v{vCS}, {WS}, s{sT2} offen offset:256 sc1')
        al.append(f'buffer_load_dwordx4 {ar(CS + 8, 4)}, v{vCS}, {WS}, s{sT3} offen sc1')
        for _ in range(o['a_ahead']):
            a(al.pop(0))

        def rd(dst, slot, j):
            return f'ds_read_b128 {ar(dst, 4)}, v{vRD + slot} offset:{1024 * j}'

        def swaps(j):
            return [f'v_permlane16_swap_b32 v{AB + 4 * j + e}, v{AB + 4 * j + 2 + e}' for e in range(2)]

        def acc(slot):
            return vr(ACC + 16 * slot, 16)
        wtail = [f'ds_write_b128 v{vW5 + (i & 1)}, {ar(160 + 4 * i, 4)} offset:{(i >> 1) * 4096}' for i in range(20)]
        if o.get('nowt'):
            wtail = [[] for _ in wtail]
        C0, C1, R = vS, vS + 1, vS + 2
        c0 = -2.0 * 0.7978845608028654 * 1.4426950408889634
        G = ACC + 48
        gather = [f'buffer_load_dwordx2 {vr(G + 2 * s, 2)}, v{self.vPS}, {WS}, s{sU1} offen offset:{256 * s} sc1'
                  for s in range(8)]
        valid = [f'v_or3_b32 v{t}, v{G + 1}, v{G + 3}, v{G + 5}', f'v_or3_b32 v{t2}, v{G + 7}, v{G + 9}, v{G + 11}',
                 f'v_or3_b32 v{t}, v{t}, v{G + 13}, v{G + 15}', f'v_or_b32 v{t}, v{t}, v{t2}',
                 f'v_cmp_gt_i32 vcc, 0, v{t}']

        def chk_stats():
            slow, back = a.label('slow'), a.label('back')
            a('s_nop 1')
            a(f's_cbranch_vccnz {slow}')
            a(f'{back}:')

            def cold():
                top = a.label('top')
                a(f'{slow}:')
                with a.untracked():
                    a(f's_mov_b32 s{sSpin}, {SPIN}')
                    a(f'{top}:')
                    a(gather)
                    a('s_waitcnt vmcnt(0)')
                    a(valid)
                    a(f's_sub_u32 s{sSpin}, s{sSpin}, 1')
                    a(f's_cbranch_scc1 {back}')
                    a('s_nop 3')
                    a(f's_cbranch_vccnz {top}')
                    a(f's_branch {back}')
            self.cold.append(cold)
        halves = [
            f'v_add_f32 v{vS}, v{vS}, v{vS + 1}',
            f'v_add_f32 v{vS + 2}, v{vS + 2}, v{vS + 3}',
            f'v_mov_b32 v{vS + 1}, v{vS}',
            f'v_mov_b32 v{vS + 3}, v{vS + 2}',
            f'v_cmp_gt_u32 vcc, 32, v{L}',
            f'v_permlane32_swap_b32 v{vS}, v{vS + 1}',
            f'v_permlane32_swap_b32 v{vS + 2}, v{vS + 3}']
        pub = halves + [
            f'v_add_f32 v{G}, v{vS}, v{vS + 1}',
            f'v_add_f32 v{G + 1}, v{vS + 2}, v{vS + 3}',
            f'v_and_b32 v{G + 1}, 0x7fffffff, v{G + 1}',
            ['s_mov_b32 exec_hi, 0',
             f'buffer_store_dwordx2 {vr(G, 2)}, v{self.vPS}, {WS}, s{sU0} offen sc1',
             's_mov_b32 exec_hi, -1']]
        st = valid + [chk_stats]
        for w_ in range(2):
            g = G + w_
            st += [f'v_add_f32 v{g}, v{g}, v{g + 2}', f'v_add_f32 v{g + 4}, v{g + 4}, v{g + 6}',
                   f'v_add_f32 v{g + 8}, v{g + 8}, v{g + 10}', f'v_add_f32 v{g + 12}, v{g + 12}, v{g + 14}',
                   f'v_add_f32 v{vS + 2 * w_}, v{g}, v{g + 4}', f'v_add_f32 v{vS + 2 * w_ + 1}, v{g + 8}, v{g + 12}']
        st += halves + [
            f'v_add_f32 v{vS}, v{vS}, v{vS + 1}',
            f'v_add_f32 v{vS + 2}, v{vS + 2}, v{vS + 3}',
            f'v_mul_f32 v{vS}, {f32(-1 / 640)}, v{vS}',
            f'v_mul_f32 v{vS + 2}, {f32(1 / 640)}, v{vS + 2}',
            f'v_cvt_pk_bf16_f32 v{t}, v{vS}, v{vS}',
            f'v_fma_f32 v{R}, -v{vS}, v{vS}, v{R}',
            f'v_lshlrev_b32 v{t}, 16, v{t}',
            f'v_max_f32 v{R}, 0, v{R}',
            f'v_sub_f32 v{t2}, v{vS}, v{t}',
            f'v_add_f32 v{R}, {f32(1e-5)}, v{R}',
            f'v_cvt_pk_bf16_f32 v{t}, v{t}, v{t2}',
            f'v_rsq_f32 v{vS + 3}, v{R}',
            f'v_cndmask_b32 v{BP + 2}, 0, v{t}, vcc',
            f'v_cndmask_b32 v{BP + 3}, 0, v{t}, vcc',
            f'v_mul_f32 v{C0}, {f32(c0)}, v{vS + 3}',
            f'v_mul_f32 v{t}, v{vS + 3}, v{vS + 3}',
            f'v_mul_f32 v{t}, {f32(0.044715)}, v{t}',
            f'v_mul_f32 v{C1}, v{t}, v{C0}',
        ]

        def csm(tile, slot, first):
            b = vr(BP, 4) if tile & 1 else vr(BP + 2, 4)
            return f'v_mfma_f32_32x32x16_bf16 {acc(slot)}, {ar(CS + 4 * (tile >> 1), 4)}, {b}, {"0" if first else acc(slot)}'

        def pick(r0, r1):
            a(f's_set_gpr_idx_on s{sCB}, gpr_idx(SRC0)')
            a('s_nop 0')
            for r in range(r0, r1):
                a(f'v_mov_b32_e32 v{G + r}, v{AB + r}')
            a('s_set_gpr_idx_off')
        for j in range(2):
            for s in range(3):
                a(rd(RING1 + 12 * j + 4 * s, s, j))
        a(swaps(0))
        self.stamp('a0')
        p2 = [(3, 3, j) for j in range(40)] + [(4, 0, j) for j in range(40)] + [(5, 1, j) for j in range(40)]
        gq = list(gather)
        GJ, SJ = o.get('gather_j', 22), o.get('stat_j', 33)
        B1, B2 = 21, 33
        nwd1 = min(o.get('wd_p1', 6), 31 - o['wd_pre'])
        assert o['a_ahead'] <= (14 if o.get('defer', 2) == 2 else 23)
        for j in range(40):
            base = RING1 + 12 * (j & 1)
            self.stamp(f'p{j}')
            a.need(ar(base, 12))
            for s in range(3):
                c = '0' if j == 0 else acc(s)
                a(f'v_mfma_f32_32x32x16_bf16 {acc(s)}, {ar(base + 4 * s, 4)}, {vr(AB + 4 * j, 4)}, {c}')
                if j < 38:
                    a(rd(base + 4 * s, s, j + 2))
                else:
                    i = (j - 38) * 3 + s
                    if i < 4:
                        a(rd(RING2 + 4 * i, p2[i][1], p2[i][2]))
                if s == 0 and j < 39:
                    a(swaps(j + 1))
                if s == 1 and (B1 < j <= B1 + 10 or B2 < j):
                    a(wtail.pop(0))
                if s != 1 and j >= GJ and gq:
                    a(gq.pop(0))
                if s == 2:
                    if al:
                        a(al.pop(0))
                    elif nwd1 and not gq and j < o.get('wd1_hi', 40):
                        a(wd.pop(0))
                        nwd1 -= 1
                if j not in (8, 9) and ww:
                    if s == 0:
                        while len(ww[0]) > 1:
                            a(ww[0].pop(0))
                    if s == 1:
                        a(ww.pop(0))
                if s == 2 and j not in (7, 8) and ww:
                    a(ww[0].pop(0))
                    a(ww[0].pop(0))
                if j == 19 and s == 1:
                    assert not ww
                    for i in (0, 1, 4, 5):
                        a(f'v_mov_b32 v{BP + i}, 0')
                if j == 8 and s == 1:
                    pick(0, 4)
                if j == 9 and s == 1:
                    pick(4, 10)
                if j in (10, 11) and s != 1:
                    for _ in range(3):
                        if pub:
                            a(pub.pop(0))
                if j >= SJ:
                    for _ in range((3, 0 if j > B2 else 5, 4)[s]):
                        if st:
                            a(st.pop(0))
            if j in (B1, B2):
                a('s_barrier')
            if j == 9:
                for r in range(10):
                    a(f'v_dot2c_f32_bf16 v{vS + (r & 1)}, s{sOne}, v{G + r}')
                    a(f'v_dot2c_f32_bf16 v{vS + 2 + (r & 1)}, v{G + r}, v{G + r}')
        assert not pub and not al and not st
        a(st)
        RES, vRes, vRes2 = 200, vAL, vCS
        res_addr = [
            f'v_and_b32 v{vRes}, 15, v{L}',
            f'v_lshl_add_u32 v{vRes2}, v{vRes}, 4, s{sRes}',
            f'v_lshrrev_b32 v{vRes}, 4, v{L}',
            f'v_mad_u32_u24 v{vRes2}, v{vRes}, s{sQS}, v{vRes2}',
            f'v_mad_u32_u24 v{vRes}, v{vRes}, s{sQS}, v{vRes2}',
        ]
        a('s_barrier')
        for tl in range(3):
            a(csm(tl, tl, False))
            a(res_addr if tl == 0 else wtail.pop(0))
        self.stamp(9)

        def epi(tile, slot, packed=False):
            b = ACC + 16 * slot
            tm = [TM, TM + 1, TM + 2, TM + 3]
            ops = []
            for h in range(2):
                g, u = b + 8 * h, b + 8 * h + 4
                if packed:
                    P = lambda r, i: vr(r + 2 * i, 2)
                    cc, rr = vr(C0, 2), vr(R, 2)
                    ops += [(1, f'v_pk_mul_f32 {P(TM, i)}, {P(g, i)}, {P(g, i)}') for i in range(2)]
                    ops += [(1, f'v_pk_fma_f32 {P(TM, i)}, {P(TM, i)}, {cc}, {cc} op_sel:[0,1,0] op_sel_hi:[1,1,0]') for i in range(2)]
                    ops += [(1, f'v_pk_mul_f32 {P(u, i)}, {P(u, i)}, {P(g, i)}') for i in range(1)]
                    ops += [(1, f'v_pk_mul_f32 {P(TM, i)}, {P(TM, i)}, {P(g, i)}') for i in range(2)]
                    ops += [(2, f'v_exp_f32 v{tm[i]}, v{tm[i]}') for i in range(4)]
                    ops += [(1, f'v_pk_mul_f32 {P(u, i)}, {P(u, i)}, {P(g, i)}') for i in range(1, 2)]
                    ops += [(1, f'v_pk_fma_f32 {P(TM, i)}, {P(TM, i)}, {rr}, {rr} op_sel:[0,0,0] op_sel_hi:[1,0,0]') for i in range(2)]
                    ops += [(2, f'v_rcp_f32 v{tm[i]}, v{tm[i]}') for i in range(4)]
                    ops += [(1, f'v_pk_mul_f32 {P(u, i)}, {P(u, i)}, {P(TM, i)}') for i in range(2)]
                    ops += [(1, f'v_cvt_pk_bf16_f32 v{b + 2 * h + i}, v{u + 2 * i}, v{u + 2 * i + 1}') for i in range(2)]
                    continue
                ops += [(1, f'v_mul_f32 v{tm[i]}, v{g + i}, v{g + i}') for i in range(4)]
                ops += [(1, f'v_fma_f32 v{tm[i]}, v{tm[i]}, v{C1}, v{C0}') for i in range(4)]
                ops += [(1, f'v_mul_f32 v{tm[i]}, v{tm[i]}, v{g + i}') for i in range(4)]
                for i in range(4):
                    ops += [(2, f'v_exp_f32 v{tm[i]}, v{tm[i]}'), (1, f'v_mul_f32 v{u + i}, v{u + i}, v{g + i}')]
                ops += [(1, f'v_fma_f32 v{tm[i]}, v{tm[i]}, v{R}, v{R}') for i in range(4)]
                ops += [(2, f'v_rcp_f32 v{tm[i]}, v{tm[i]}') for i in range(4)]
                ops += [(1, f'v_mul_f32 v{u + i}, v{u + i}, v{tm[i]}') for i in range(4)]
                ops += [(1, f'v_cvt_pk_bf16_f32 v{b + 2 * h + i}, v{u + 2 * i}, v{u + 2 * i + 1}') for i in range(2)]
            so = sA if tile < 4 else sB
            txt = f'buffer_store_dwordx4 {vr(b, 4)}, v{vAS}, {WS}, s{so} offen offset:{(tile & 3) * 1024} sc1'
            ops.append((5, (lambda: a(txt, tag=f'act{tile}')) if not o.get('nost') else []))
            if o.get('noepi'):
                ops = [(c_, x if callable(x) else []) for c_, x in ops]
            return ops

        G2 = 72
        FR = [[8 + 4 * i for i in range(16)],
              [152 + 4 * i for i in range(4)] + [200 + 4 * i for i in range(8)] + [168 + 4 * i for i in range(4)],
              [8 + 4 * i for i in range(16)]]
        order = [[(c, lam) for lam in (3, 2, 1, 0) for c in range(4)]] * 3

        def act_ld(pi, n):
            c, lam = order[pi][n]
            if o.get('noact'):
                return []
            return [f's_add_u32 s{sT1}, s{sL[lam]}, {ACT + 2048 * kap[pi][c]}',
                    f'buffer_load_dwordx4 {vr(FR[pi][n], 4)}, v{vA2}, {WS}, s{sT1} offen sc1']

        def sig(pi, tag):
            def f():
                self.stamp(f'presig{pi}')
                a.need_tag(tag)
                if o.get('wgsig', 0) >> pi & 1:
                    l = a.label('nosig')
                    a('s_barrier')
                    a(f's_bitcmp1_b32 s{S_W}, 0')
                    a(f's_cbranch_scc1 {l}')
                    with a.untracked():
                        self.signal(f's{sF3s}')
                    a(f'{l}:')
                else:
                    self.signal(f's{sF3s}')
                self.stamp(f'sig{pi}')
                if pi < 2:
                    a(f's_add_u32 s{sF3s}, s{sF3s}, {32 * 256}')
            return f

        def poll_ld():
            return f'buffer_load_dword v{vFl}, off, {WS}, s{sF3p} sc1'

        def poll_chk(pi):
            def f():
                self.stamp(f'prechk{pi}')
                self.check(S_WS, f's{sF3p}', 0 if o.get('noe3', 0) >> pi & 1 else 16 if o.get('wgsig', 0) >> pi & 1 else 32, vFl)
                self.stamp(f'chk{pi}')
                if pi < 2:
                    a(f's_add_u32 s{sF3p}, s{sF3p}, {32 * 256}')
            return f
        RES, vRes, vRes2 = 200, vAL, vCS
        res_addr = [
            f'v_and_b32 v{vRes}, 15, v{L}',
            f'v_lshl_add_u32 v{vRes2}, v{vRes}, 4, s{sRes}',
            f'v_lshrrev_b32 v{vRes}, 4, v{L}',
            f'v_mad_u32_u24 v{vRes2}, v{vRes}, s{sQS}, v{vRes2}',
            f'v_mad_u32_u24 v{vRes}, v{vRes}, s{sQS}, v{vRes2}',
        ]
        res_ld = []
        for nt in range(5):
            q = 8 * (nt >> 1) + (nt & 1)
            res_ld.append([f's_mov_b32 s{sT6}, {HP4 + q * QS}',
                           f'buffer_load_dwordx2 {vr(RES + 2 * nt, 2)}, v{vRes2 if nt == 4 else vRes}, {WS}, s{sT6} offen sc1'])
        slot_of = {0: 0, 1: 1, 2: 2, 3: 3, 4: 0, 5: 1}
        eq = epi(0, 0) + epi(1, 1) + epi(2, 2)
        budget = 0.0
        RATE = o['epi_rate']
        extra = {i: [] for i in range(120)}
        first_w = wtail.pop(0)
        for k in range(len(wtail)):
            extra[k].append(wtail[k])
        extra[30].append('s_barrier')
        nwd = len(wd) - o.get('wd_post', 12)
        done = 60 - len(wd)
        lo, hi = o.get('wd_lo', 4), o.get('wd_hi', 78)
        hold = None
        for k in range(nwd):
            g = wd.pop(0)
            p = lo + (k * (hi - lo)) // nwd
            fr = done + k
            if fr == 39:
                extra[81].append([f's_mov_b32 s{sT6}, {WDF + 5120 * kap[1][3]}', g[-1].replace(f's{sWoff} offen', f's{sT6} offen')] if g else [])
                continue
            assert fr < 56 or p > 14
            extra[p].append(g)
        SA, SB = o.get('siga', 62), o.get('sigb', 104)
        extra[SA].append(sig(0, 'act1'))
        extra[o.get('lda', 86)].append(poll_ld())
        for k, x in enumerate(res_ld):
            extra[o.get('res_at', 86) + 2 * k].append(x)
        ca = o.get('chka', 105)
        extra[ca].append(poll_chk(0))
        na = o.get('a_in', 7)
        for n in range(na):
            extra[ca + 1 + (n * (119 - ca)) // na].append(act_ld(0, n))
        extra[SB].append(sig(1, 'act3'))
        extra[50].append('s_barrier')

        def cost(x):
            if callable(x):
                return 3
            if isinstance(x, (list, tuple)):
                return sum(cost(y) for y in x)
            return 5 if x.startswith('ds_write') else 2 if x.startswith('buffer') or x == 's_barrier' else 1
        CAP = o.get('cap', 6.6)
        for i, (tile, ls, j) in enumerate(p2):
            slot = slot_of[tile]
            self.stamp(f'q{i}')
            if j == 0:
                a(csm(tile, slot, True))
                if i == 0:
                    a(first_w)
                if i:
                    budget = 6
                    while eq and budget >= eq[0][0]:
                        cst, x = eq.pop(0)
                        budget -= cst
                        a(x)
            if i & 1 == 0:
                a.need(ar(RING2 + 4 * (i & 3), 8))
            a(f'v_mfma_f32_32x32x16_bf16 {acc(slot)}, {ar(RING2 + 4 * (i & 3), 4)}, {vr(AB + 4 * j, 4)}, {acc(slot)}')
            if i + 4 < len(p2):
                a(rd(RING2 + 4 * (i & 3), p2[i + 4][1], p2[i + 4][2]))
            a(extra[i])
            if i == 42:
                eq += epi(3, 3)
            if i == 82:
                eq += epi(4, 0)
                if o.get('st4_late'):
                    st4 = eq.pop()[1]
            if i >= 1:
                budget = min(budget, 1.0) + CAP - 1 - (i & 1) - cost(extra[i])
                budget = max(budget, -1)
                while eq and budget >= min(eq[0][0], 2):
                    cst, x = eq.pop(0)
                    budget -= cst
                    a(x)
                    if callable(x) and o.get('verbose'):
                        print('store at gap', i)
                if i == 39:
                    assert len(eq) <= 2 * 69, len(eq)
                if i == SA - 1:
                    assert len(eq) <= 2 * 69, len(eq)
                if i == 79:
                    assert len(eq) <= 2 * 69, len(eq)
                if i == o.get('res_at', 86) - 1:
                    assert len(eq) <= 2 * 69, len(eq)
                if i == SB - 1:
                    assert len(eq) <= 69, len(eq)
            if j == 39:
                self.stamp(f't{tile}')
        for cst, x in eq:
            a(x)
        a(f's_mov_b32 s{sT0}, 0xffff0000')
        for i in range(10):
            a(f'v_lshlrev_b32 v{G2 + 2 * i}, 16, v{RES + i}')
            a(f'v_and_b32 v{G2 + 2 * i + 1}, s{sT0}, v{RES + i}')
        e5 = epi(5, 1, o.get('pk5', 1))
        LA = o.get('la2', 12)
        rest = [act_ld(0, n) for n in range(na, LA)]
        if o.get('ldb', -1) < 0:
            rest.append(poll_ld())
        if o.get('st4_late'):
            rest.append(st4)
        k = 0
        for i, (cst, x) in enumerate(e5):
            while k < len(rest) and (k + 1) * (len(e5) - 1) <= i * len(rest):
                a(rest[k])
                k += 1
            a(x)
        assert k == len(rest)
        self.stamp(10)

        vOut, vRR, vRW, vTW, vTR = 4, 7, 232, 238, 242
        RED = 2 * TILE
        setup = [
            f's_movk_i32 s{sT6}, {16 * 1280 - 160}',
            f's_movk_i32 s{sT5}, 6554',
            f's_movk_i32 s{sT4}, 176',
            f's_mul_i32 s{sT3}, s{S_W}, {16 * 176}',
            f'v_and_b32 v{t}, 15, v{L}',
            f'v_lshrrev_b32 v{t2}, 4, v{L}',
            f'v_mov_b32 v{vTW + 1}, s{sT3}',
            f'v_mad_u32_u24 v{vTW + 1}, v{t}, s{sT4}, v{vTW + 1}',
            f'v_lshl_add_u32 v{vTW}, v{t2}, 4, v{vTW + 1}',
            f'v_lshl_add_u32 v{vTW + 1}, v{t2}, 3, v{vTW + 1}',
        ]
        setup += [f'v_mul_u32_u24 v{t2}, s{sT5}, v{L}',
                  f'v_lshrrev_b32 v{t2}, 16, v{t2}',
                  f'v_lshl_add_u32 v{vOut}, v{L}, 4, s{sOutB}',
                  f'v_mad_u32_u24 v{vOut}, v{t2}, s{sT6}, v{vOut}',
                  f'v_add_u32 v{t}, v{L}, v{t2}',
                  f'v_lshl_add_u32 v{vTR}, v{t}, 4, s{sT3}',
                  f's_mov_b32 s{sT4}, {6 * 16 * 1280}',
                  f's_mov_b32 s{sT5}, {12 * 16 * 1280}']
        for lam in range(4):
            setup += [f's_xor_b32 s{sT0}, s{S_W}, {lam}', f's_mul_i32 s{sT0}, s{sT0}, {15 * 1024}',
                      f's_add_u32 s{sT0}, s{sT0}, {RED + (lam - 1) * 5120 if lam else RED}',
                      f'v_lshl_add_u32 v{vRW + lam - 1 if lam else vRR}, v{L}, 4, s{sT0}']

        def mf2(pi, n, nt):
            c, lam = order[pi][n]
            d = vr(G2 + 4 * (5 * lam + nt), 4)
            cin = '0' if (pi == 0 and c == 0 and lam != 0) else d
            return f'v_mfma_f32_16x16x32_bf16 {d}, {ar(4 * (5 * (4 * pi + c) + nt), 4)}, {vr(FR[pi][n], 4)}, {cin}'
        ex = [{i: [] for i in range(80)} for _ in range(3)]
        for k, x in enumerate(setup):
            ex[0][k].append(x)
        def put(pos, x):
            ex[pos // 80][pos % 80].append(x)
        if o.get('ldb', -1) >= 0:
            put(o['ldb'], poll_ld())
        cb_, cc_ = o.get('chkb', 5 * (16 - LA)), 80 + o.get('chkc', 44)
        put(cb_, [poll_chk(1), lambda: self.stamp('chkb')])
        put(o.get('sigc', 40), [sig(2, 'act5'), lambda: self.stamp('sigc')])
        put(80 + o.get('ldc', 28), poll_ld())
        put(cc_, [lambda: self.stamp('chkc0'), poll_chk(2), lambda: self.stamp(11)])
        pos = 0
        for g in range(LA, 48):
            pos = max(pos + (o.get('burst', 2) if g >= 16 else 0), o.get('g_gap', 5) * (g - LA) if g < 32 else 5 * (g - LA),
                      cb_ if g >= 16 else 0, cc_ if g >= 32 else 0)
            assert pos < 20 * (g // 4)
            put(pos, act_ld(g // 16, g % 16))
            if g < 32 and wd and 32 - g <= len(wd) + o.get('wdp_early', 0):
                put(pos + 2, wd.pop(0))
        assert not wd
        chain = o.get('chain', 1)
        for blk, lam in enumerate((3, 2, 1)):
            for nt in range(5):
                ex[2][20 * blk + 4 * nt + 12 if chain else 20 * (blk + 1) + 5 + 2 * nt].append(
                    f'ds_write_b128 v{vRW + lam - 1}, {vr(G2 + 4 * (5 * lam + nt), 4)} offset:{1024 * nt}')
        for pi in range(3):
            for i in range(80):
                if chain:
                    a(mf2(pi, 4 * (i // 20) + (i & 3), i % 20 // 4))
                else:
                    a(mf2(pi, i // 5, i % 5))
                self.stamp(f'm{80 * pi + i}')
                a(ex[pi][i])
            self.stamp('end' + 'ABC'[pi])
        a('s_waitcnt lgkmcnt(0)')
        a('s_barrier')
        self.stamp('redbar')
        RD, RR = 152, 8
        for nt in range(5):
            for s in range(3):
                a(f'ds_read_b128 {vr(RD + 12 * nt + 4 * s, 4)}, v{vRR} offset:{5120 * s + 1024 * nt}')
        sc = ' sc1' if o['out_sc1'] else ''
        for nt in range(5):
            b = RD + 12 * nt
            c = G2 + 4 * nt
            for p in range(2):
                a(f'v_pk_add_f32 {vr(c + 2 * p, 2)}, {vr(c + 2 * p, 2)}, {vr(b + 2 * p, 2)}')
                a(f'v_pk_add_f32 {vr(b + 4 + 2 * p, 2)}, {vr(b + 4 + 2 * p, 2)}, {vr(b + 8 + 2 * p, 2)}')
            for p in range(2):
                a(f'v_pk_add_f32 {vr(c + 2 * p, 2)}, {vr(c + 2 * p, 2)}, {vr(b + 4 + 2 * p, 2)}')
            for p in range(2):
                a(f'v_cvt_pk_bf16_f32 v{RR + 2 * nt + p}, v{c + 2 * p}, v{c + 2 * p + 1}')
            if nt & 1:
                a(f'ds_write_b128 v{vTW}, {vr(RR + 2 * nt - 2, 4)} offset:{64 * (nt >> 1)}')
            if nt == 4:
                a(f'ds_write_b64 v{vTW + 1}, {vr(RR + 8, 2)} offset:128')
        for k in range(3):
            a(f'ds_read_b128 {vr(RR + 12 + 4 * k, 4)}, v{vTR} offset:{6 * 176 * k}')
        a('s_mov_b32 exec_hi, 0xfffffff')
        for k in range(3):
            if k == 2:
                a('s_mov_b32 exec_hi, 0xff')
            a(f'buffer_store_dwordx4 {vr(RR + 12 + 4 * k, 4)}, v{vOut}, {sr(S_OUT, 4)}, {("0", f"s{sT4}", f"s{sT5}")[k]} offen{sc}')
        a('s_mov_b32 exec_hi, -1')
        lz = a.label('nz')
        a('s_cmp_lg_u32 s2, 0')
        a(f's_cbranch_scc1 {lz}')
        with a.untracked():
            a(f'buffer_store_dword v{BP}, off, {sr(S_DBG, 4)}, 0 sc1')
        a(f'{lz}:')
        if self.diag:
            self.stamp('outst')
            a('s_waitcnt vmcnt(0)')
            self.stamp(12)
            a('s_waitcnt lgkmcnt(0)')
            with self.wave0():
                a(f's_lshl_b32 s{sT0}, s2, 7')
                a(f's_add_u32 s{sT0}, s{sT0}, {STAMP}')
                for i in range(NSTAMP):
                    a(f'v_mov_b32 v0, s{S_STAMP + 2 * i}')
                    a(f'buffer_store_dword v0, off, {WS}, s{sT0} offset:{4 * i}')
        if self.opt.get('fixt'):
            with a.untracked():
                a(f's_cmp_lg_u32 s2, {self.opt.get("fixwg", 0)}')
                a('s_cbranch_scc1 .Lend')
                a(f's_cmp_lg_u32 s{S_W}, 0')
                a('s_cbranch_scc1 .Lend')
                a(f's_sub_u32 s{sT2}, s{S_STAMP + 2 * self.opt.get("fixs", 0)}, s{S_STAMP + 2 * self.opt.get("fixb", 0)}')
                a(f's_mul_i32 s{sT2}, s{sT2}, 10')
                if 'xcc' in self.opt:
                    a(f's_getreg_b32 s{sT2}, hwreg(HW_REG_XCC_ID)')
                    a(f's_add_u32 s{sT2}, s{sT2}, {self.opt["xcc"]}')
                    a(f's_and_b32 s{sT2}, s{sT2}, 7')
                    a(f's_mul_i32 s{sT2}, s{sT2}, 1000')
                a(f's_min_u32 s{sT2}, s{sT2}, 100000')
                a(f's_add_u32 s{sT2}, s{sT2}, {self.opt["fixt"]}')
                a('.Lfix:')
                a(f's_memrealtime {sr(sT0, 2)}')
                a('s_waitcnt lgkmcnt(0)')
                a(f's_sub_u32 s{sT0}, s{sT0}, s{S_STAMP}')
                a(f's_cmp_lt_u32 s{sT0}, s{sT2}')
                a('s_cbranch_scc1 .Lfix')
        a('.Lend:')
        a('s_endpgm')

    def build(self):
        a = self.a
        if self.diag:
            for i in range(2 * NSTAMP):
                a(f's_mov_b32 s{S_STAMP + i}, 0')
        self.prologue()
        self.conv()
        self.gemms()
        self.side()
        for c in self.cold:
            a.fresh()
            a('s_nop 7')
            c()
        a('.Lcode_end:')
        a('s_endpgm')
        pads = (self.opt.get('base', 0x300), NPAD, sr(sRet, 2), '.Lend', self.opt.get('pstride', 4096)) if self.opt['pads'] else None
        body = a.finish(verbose=True, align=self.opt.get('align', 1), pads=pads)
        body += '.p2align 12\n    s_endpgm\n'
        ref = open('cdna_kernels/' + NAME + '.s.ref').read().split('\n')
        head = [l for l in ref if l.startswith(';') and '@launch' not in l and 'Override' not in l and 'grid=ceil' not in l]
        txt = '\n'.join(head) + '\n'
        txt += '; One persistent launch: kv/transposition -> Toeplitz-MFMA long conv -> gate/up GEMM + GEGLU -> down GEMM.\n'
        txt += '; @launch grid=(256,1,1) block=(256,1,1) lds=163840\n'
        txt += f'''.amdgcn_target "amdgcn-amd-amdhsa--gfx950"
.text
.globl {NAME}_kernel
.p2align 8
.type {NAME}_kernel,@function
{NAME}_kernel:
{body}.section .rodata,"a"
.p2align 6
.amdhsa_kernel {NAME}_kernel
  .amdhsa_next_free_vgpr 512
  .amdhsa_next_free_sgpr 102
  .amdhsa_accum_offset 256
  .amdhsa_group_segment_fixed_size 0
  .amdhsa_kernarg_size 104
  .amdhsa_user_sgpr_count 2
  .amdhsa_user_sgpr_kernarg_segment_ptr 1
  .amdhsa_system_sgpr_workgroup_id_x 1
  .amdhsa_float_denorm_mode_32 3
.end_amdhsa_kernel
'''
        return txt


if __name__ == '__main__':
    out = sys.argv[1]
    diag = 'diag' in sys.argv[2:]
    opt = {}
    for x in sys.argv[2:]:
        if '=' in x:
            k, v = x.split('=')
            try:
                v = int(v)
            except ValueError:
                try:
                    v = float(v)
                except ValueError:
                    pass
            opt[k] = v
    open(out, 'w').write(Gen(diag, opt).build())
```

```python
import struct
import sys
from asmlib import Asm, vr, ar, sr

NAME = 'sequential_preLN__ssm_conv_h3__geglu_ffn__prompt'

QS = 16384
CNT = 0
ST1 = 49152
CSF = 65536
STAMP = 98304
PST = 131072
W45F = PST + 262144
KVX = W45F + 1310720
XP4 = KVX + 160 * QS
HP4 = XP4 + 160 * QS
WDF = HP4 + 160 * QS
ACT = WDF + 1966080
WS_END = ACT + 6291456
C_F1, C_FX, C_FW, C_FXR, C_B1, C_B2, C_FWR, C_F3 = 0, 10, 18, 26, 34, 42, 50, 64
SPIN = 100000

S_W = 3
S_K, S_V, S_SH, S_SK, S_X, S_WG, S_WU, S_WD, S_OUT, S_DBG, S_WS = 4, 8, 12, 16, 20, 24, 28, 32, 36, 40, 44
S_D = 48
sX, sJ, sG, sM, sQ, sRB, sCB, sA, sB, sRot = 50, 51, 52, 53, 54, 55, 56, 57, 58, 59
sT0, sT1, sT2, sT3, sT4, sT5, sT6, sT7 = 60, 61, 62, 63, 64, 65, 66, 67
sWoff, sWoff2, sSpin, sDv = 68, 69, 70, 71
sOne, sU0, sU1, sU2 = 72, 73, 74, 75
sRet = 48
NPAD = 8
S_STAMP = 76
NSTAMP = 13
sAB = 4
sL = [8, 9, 10, 11]
sPL, sPH, sFW, sSide, sArr = 16, 17, 18, 19, 23
sE = [None, 12, 13, 14]

GSTR = 4128
GW = 4 * GSTR
UBASE = 4 * GW
USTR = 4608
TILE = 40960
WS = sr(S_WS, 4)


def f32(x):
    return '0x%08x' % struct.unpack('<I', struct.pack('<f', x))[0]


class Gen:
    def __init__(self, diag=False, opt=None):
        self.a = Asm()
        self.diag = diag
        self.opt = dict(place=1, w_kv=0, w_e1=10, apoll=9, w_u=0, tb_pre=4, tb_mid=0, ssm=1, defer=0, wdp_from=24, a_ahead=14, sig='v', epi_rate=4.5,
                        fx_it=3, early_n=0, out_sc1=1, pads=1, wd_pre=20, wd_post=4, l2=10, wd_p1=11, chkb=40, sigc=39, wd_pre1=8, arr='s')
        if opt:
            self.opt.update(opt)
        self.cold = []

    PROF = {
        'main': [0, 1, 2, 3, 4, 5, 6, 7, 8, 9, 10, 11, 12],
        'front': [0, 'karg', 'issued', 1, 'kvdone', 2, 'tbpre', 'drained', 3, 'tbpost', 4, 'uload', 5],
        'e2': [0, 6, 'zbar', 7, 'hbar', 'hissued', 'hdrained', 'hbar2', 'arrived', 'wwritten', 'polled', 8, 'a0'],
        'g1': [0, 8, 'a0', 'p8', 'p16', 'p24', 'p32', 9, 't3', 't4', 't5', 10, 12],
        'g2a': [0, 't5', 10, 'm4', 'prechk1', 'chk1', 'm24', 'presig2', 'sig2', 'm44', 'm64', 'endA', 'm84'],
        'sum': [0, 'x1', 'x2', 'x3', 'x4', 'x5', 'x6', 7, 8, 'x9', 'x10', 'x11', 12],
        'side': [0, 'sx_in', 'sx_issued', 'sx_data', 'sx_bar', 'sx_st', 'sx_ld2', 'sx_dr', 1, 2, 6, 7, 8],
        'loop': [0, 4, 5, 'it1', 'it2', 'it3', 'it4', 'it5', 'it6', 'it7', 6, 7, 8],
        'g1b': [0, 9, 'q10', 'q20', 't3', 'presig0', 'sig0', 't4', 'prechk0', 'chk0', 'presig1', 'sig1', 't5'],
        'g2': [0, 't5', 10, 'chkb', 'sigc', 'endA', 'chkc0', 11, 'endB', 'endC', 'redbar', 'outst', 12],
    }

    def stamp(self, i):
        prof = self.PROF[self.opt.get('prof', 'main')]
        if self.diag and i in prof:
            i = prof.index(i)
            self.a(f'{"s_memtime" if self.opt.get("cyc") else "s_memrealtime"} {sr(S_STAMP + 2 * i, 2)}')

    def spin_atomic(self, soff, target, depth, vt):
        a = self.a
        top, done = a.label('spin'), a.label('done')
        with a.untracked():
            a(f's_mov_b32 s{sSpin}, {SPIN}')
            for d in range(depth - 1):
                a(f'v_mov_b32 v{vt + d}, 0')
                a(f'buffer_atomic_add v{vt + d}, off, {WS}, {soff} sc0 sc1')
                a(f's_sleep {self.opt.get("pslp", 3)}')
            a(f'{top}:')
            for d in range(depth):
                n = (d + depth - 1) % depth
                a(f'v_mov_b32 v{vt + n}, 0')
                a(f'buffer_atomic_add v{vt + n}, off, {WS}, {soff} sc0 sc1')
                a(f's_waitcnt vmcnt({depth - 1})')
                a(f'v_readfirstlane_b32 s{sT7}, v{vt + d}')
                a(f's_cmp_ge_u32 s{sT7}, {target}')
                a(f's_cbranch_scc1 {done}')
            a(f's_sub_u32 s{sSpin}, s{sSpin}, 1')
            a(f's_cbranch_scc0 {top}')
            a(f'{done}:')

    def spin(self, srd, soff, target, vt):
        a = self.a
        top, done = a.label('spin'), a.label('done')
        with a.untracked():
            a(f's_mov_b32 s{sSpin}, {SPIN}')
            a(f'{top}:')
            a(f'buffer_load_dword v{vt}, off, {sr(srd, 4)}, {soff} sc1')
            a('s_waitcnt vmcnt(0)')
            a(f'v_readfirstlane_b32 s{sT7}, v{vt}')
            a(f's_sub_u32 s{sSpin}, s{sSpin}, 1')
            a(f's_cbranch_scc1 {done}')
            a(f's_cmp_lt_u32 s{sT7}, {target}')
            a(f's_cbranch_scc1 {top}')
            a(f'{done}:')

    def check(self, srd, soff, target, vt):
        a = self.a
        slow, back = a.label('slow'), a.label('back')
        a(f'v_readfirstlane_b32 s{sT7}, v{vt}')
        a(f's_cmp_lt_u32 s{sT7}, {target}')
        a(f's_cbranch_scc1 {slow}')
        a(f'{back}:')

        def cold():
            a(f'{slow}:')
            self.spin(srd, soff, target, vt)
            a(f's_branch {back}')
        self.cold.append(cold)

    def wave0(self):
        g = self

        class W:
            def __enter__(s):
                s.l = g.a.label('nw0')
                g.a(f's_cmp_lg_u32 s{S_W}, 0')
                g.a(f's_cbranch_scc1 {s.l}')
                s.u = g.a.untracked()
                s.u.__enter__()
                g.a('s_mov_b64 exec, 1')

            def __exit__(s, *x):
                g.a('s_mov_b64 exec, -1')
                s.u.__exit__()
                g.a(f'{s.l}:')
        return W()

    def warm(self, sets):
        if not self.opt['pads']:
            return
        a = self.a
        for w, ks in enumerate(sets):
            if not ks:
                continue
            l = a.label('nw')
            a(f's_cmp_lg_u32 s{S_W}, {w + 1}')
            a(f's_cbranch_scc1 {l}')
            for k in ks:
                a(f's_call_b64 {sr(sRet, 2)}, .Lpad_{k}')
            a(f'{l}:')

    def arrive_start(self, items, pre=None):
        a = self.a
        l = a.label('noarr')
        for r, _ in items:
            a(f's_mov_b32 s{r}, 1')
        a(f's_cmp_lg_u32 s{S_W}, 0')
        a(f's_cbranch_scc1 {l}')
        with a.untracked():
            if pre:
                pre()
            a(f's_lshl_b32 s{sSpin}, s{sX}, 8')
            for r, line in items:
                a(f's_atomic_add s{r}, {sr(S_WS, 2)}, s{sSpin} offset:{line * 256} glc')
        a(f'{l}:')

    def arrive_finish(self, items, vt):
        a = self.a
        a('s_waitcnt lgkmcnt(0)')
        for r, last, rep in items:
            l = a.label('notlast')
            a(f's_cmp_lg_u32 s{r}, {last}')
            a(f's_cbranch_scc1 {l}')
            with a.untracked():
                a('s_mov_b64 exec, 0xff')
                a(f'v_lshlrev_b32 v{vt}, 8, v0')
                a(f's_mov_b32 s{sT7}, {rep * 256}')
                a(f'buffer_atomic_add v{self.vOne}, v{vt}, {WS}, s{sT7} offen sc1')
                a('s_mov_b64 exec, -1')
            a(f'{l}:')

    def two_level(self, soff, last, rep, scalar=False):
        a = self.a
        l = a.label('notlast')
        if scalar:
            a(f's_mov_b32 s{sT7}, 1')
            a(f's_atomic_add s{sT7}, {sr(S_WS, 2)}, {soff} glc')
            a('s_waitcnt lgkmcnt(0)')
        else:
            a(f'v_mov_b32 v{self.vTmp}, 1')
            a(f'buffer_atomic_add v{self.vTmp}, off, {WS}, {soff} sc0 sc1')
            a('s_waitcnt vmcnt(0)')
            a(f'v_readfirstlane_b32 s{sT7}, v{self.vTmp}')
        a(f's_cmp_lg_u32 s{sT7}, {last}')
        a(f's_cbranch_scc1 {l}')
        a('s_mov_b64 exec, 0xff')
        a(f'v_lshlrev_b32 v{self.vTmp}, 8, v0')
        a(f's_mov_b32 s{sT7}, {rep * 256}')
        a(f'buffer_atomic_add v{self.vOne}, v{self.vTmp}, {WS}, s{sT7} offen sc1')
        a(f'{l}:')

    def prologue(self):
        a = self.a
        a('s_cmp_ge_u32 s2, 0x100')
        a('s_cbranch_scc1 .Lend')
        self.stamp(0)
        for srd, off in ((S_K, 8), (S_WS, 96), (S_V, 16), (S_SH, 24), (S_SK, 32), (S_X, 0), (S_WG, 56), (S_WU, 64),
                         (S_WD, 72), (S_OUT, 80), (S_DBG, 88), (S_D, 40)):
            a(f's_load_dwordx2 {sr(srd, 2)}, s[0:1], {off}')
        a('v_lshrrev_b32 v1, 6, v0')
        a(f's_and_b32 s{sX}, s2, 7')
        a(f's_lshr_b32 s{sJ}, s2, 3')
        a(f'v_readfirstlane_b32 s{S_W}, v1')
        a('v_mov_b32 v1, v0')
        a('v_and_b32 v0, 63, v0')
        for srd, n in ((S_K, 2621440), (S_V, 2621440), (S_SH, 5120), (S_SK, 4096), (S_X, 2621440), (S_WG, 1966080),
                       (S_WU, 1966080), (S_WD, 1966080), (S_OUT, 2621440), (S_DBG, 256), (S_WS, WS_END)):
            a(f's_mov_b32 s{srd + 2}, {n}')
            a(f's_mov_b32 s{srd + 3}, 0x20000')
        a(f's_and_b32 s{sM}, s{sJ}, 15')
        a(f's_mov_b32 s{sG}, s{sX}')
        a(f's_cmp_lt_u32 s{sJ}, 16')
        a.snapshot('role')
        a('s_cbranch_scc1 .Lconv')
        a(f's_lshr_b32 s{sG}, s{sX}, 2')
        a(f's_add_u32 s{sG}, s{sG}, 8')
        a(f's_and_b32 s{sT0}, s{sX}, 3')
        a(f's_lshl2_add_u32 s{sM}, s{sT0}, s{sM}')
        a(f's_cmp_lt_u32 s{sJ}, 20')
        a('s_cbranch_scc1 .Lconv')
        with a.untracked():
            a(f's_cmp_lg_u32 s2, {self.opt.get("initwg", 208)}')
            a('s_cbranch_scc1 .Lnoinit')
            a('v_lshrrev_b32 v2, 3, v1')
            a('v_and_b32 v3, 7, v0')
            a('v_lshlrev_b32 v3, 4, v3')
            a('v_lshl_add_u32 v2, v2, 8, v3')
            for i in range(4):
                a(f'v_mov_b32 v{4 + i}, 0')
            a(f's_movk_i32 s{sT0}, 0x2000')
            a('s_waitcnt lgkmcnt(0)')
            a.fresh()
            a(f'buffer_store_dwordx4 v[4:7], v2, {WS}, 0 offen sc1')
            a(f'buffer_store_dwordx4 v[4:7], v2, {WS}, s{sT0} offen sc1')
            a('v_mov_b32 v3, 1')
            a('s_waitcnt vmcnt(0)')
            a('s_barrier')
            a(f's_cmp_lg_u32 s{S_W}, 0')
            a('s_cbranch_scc1 .Lside')
            a('s_mov_b64 exec, 1')
            a(f'buffer_store_dword v3, off, {sr(S_DBG, 4)}, 0 sc1')
            a('s_mov_b64 exec, -1')
            a('s_branch .Lside')
            a('.Lnoinit:')
            if self.opt.get('cpf', 1):
                a(f's_getpc_b64 {sr(sT0, 2)}')
                a('.Lpc:')
                a(f's_and_b32 s{sT2}, s{sJ}, 3')
                a(f's_lshl2_add_u32 s{sT2}, s{sT2}, s{S_W}')
                a(f's_mul_i32 s{sT2}, s{sT2}, {18 * 128}')
                a('v_min_u32 v2, 17, v0')
                a(f'v_lshl_add_u32 v2, v2, 7, s{sT2}')
                a('v_min_u32 v2, .Lcode_end-.Lpc-4, v2')
                a('v_mov_b32 v3, 0')
                a(f'v_lshl_add_u64 v[4:5], v[2:3], 0, {sr(sT0, 2)}')
                a('global_load_dword a253, v[4:5], off')
            a('s_branch .Lside')
        a('.Lconv:')
        a.fresh('role')

    def gemm_ids(self):
        a = self.a
        a(f's_lshr_b32 s{sRB}, s{sX}, 2')
        a(f's_lshr_b32 s{sT0}, s{sJ}, 2')
        a(f's_lshl3_add_u32 s{sRB}, s{sRB}, s{sT0}')
        a(f's_and_b32 s{sRot}, s{sX}, 3')
        a(f's_and_b32 s{sT0}, s{sJ}, 3')
        a(f's_lshl2_add_u32 s{sCB}, s{sRot}, s{sT0}')
        a(f's_and_b32 s{sT0}, s{sCB}, 1')
        a(f's_mul_i32 s{sA}, s{sCB}, 6')
        a(f's_add_u32 s{sB}, s{sA}, 4')
        a(f's_lshl1_add_u32 s{sA}, s{sT0}, s{sA}')
        a(f's_lshl_b32 s{sT1}, s{sT0}, 2')
        a(f's_sub_u32 s{sB}, s{sB}, s{sT1}')

    vWL, vWLb, vW45, vTmp, vTmp2, vOne, vPS = 254, 253, 252, 250, 249, 248, 251
    WRAW = [8, 40, 72, 104, 136]
    vWW = 236
    PT = 200

    def real_line(self, r, tmp):
        a = self.a
        if not self.opt.get('swz', 1):
            return
        a(f's_sub_u32 s{tmp}, s{r}, 3')
        a(f's_cmp_lt_u32 s{tmp}, 2')
        a(f's_cselect_b32 s{tmp}, 7, 0')
        a(f's_xor_b32 s{r}, s{r}, s{tmp}')
        a(f's_sub_u32 s{tmp}, s{r}, 10')
        a(f's_cmp_lt_u32 s{tmp}, 2')
        a(f's_cselect_b32 s{tmp}, 1, 0')
        a(f's_xor_b32 s{r}, s{r}, s{tmp}')

    def w_addr(self):
        a = self.a
        t = self.vTmp
        a(f's_lshr_b32 s{sT1}, s{sA}, 2')
        self.real_line(sT1, sT0)
        a(f's_lshl_b32 s{sT1}, s{sT1}, 7')
        a(f'v_and_b32 v{t}, 7, v0')
        a(f'v_lshl_add_u32 v{self.vWLb}, v{t}, 4, s{sT1}')
        a(f's_lshr_b32 s{sT0}, s{S_W}, 1')
        a(f's_lshl_b32 s{sT0}, s{sT0}, 6')
        a(f's_mul_i32 s{sWoff}, s{sRot}, 160')
        a(f's_add_u32 s{sWoff}, s{sWoff}, s{sT0}')
        a(f's_mul_i32 s{sT0}, s{sCB}, {80 * 1024}')
        a(f's_add_u32 s{sT0}, s{sT0}, {W45F}')
        a(f'v_lshl_add_u32 v{self.vW45}, v0, 4, s{sT0}')
        a(f's_mul_i32 s{sWoff2}, s{sRot}, 10')
        a(f's_add_u32 s{sWoff2}, s{sWoff2}, s{S_W}')
        a(f's_lshl_b32 s{sWoff2}, s{sWoff2}, 10')
        a(f'v_mov_b32 v{self.vOne}, 1')
        a(f's_lshl2_add_u32 s{sT0}, s{sRB}, s{S_W}')
        a(f's_lshl_b32 s{sT0}, s{sT0}, 12')
        a(f'v_and_b32 v{t}, 31, v0')
        a(f'v_lshl_add_u32 v{self.vPS}, v{t}, 3, s{sT0}')
        a(f'v_lshrrev_b32 v{t}, 5, v0')
        a(f'v_lshl_add_u32 v{self.vPS}, v{t}, 11, v{self.vPS}')

    def w_select(self):
        a = self.a
        a(f's_bitcmp1_b32 s{S_W}, 0')
        a(f's_cselect_b32 s{S_WG}, s{S_WU}, s{S_WG}')
        a(f's_cselect_b32 s{S_WG + 1}, s{S_WU + 1}, s{S_WG + 1}')
        for i in range(1, 4):
            a(f's_movk_i32 s{sE[i]}, {6144 * i}')
        a(f's_movk_i32 s15, 3072')

    def clear_pst(self, v2):
        return [f'v_mov_b32 v{v2}, -1', f'v_mov_b32 v{v2 + 1}, -1',
                f's_lshl_b32 s{sU0}, s{sCB}, 8', f's_add_u32 s{sU0}, s{sU0}, {PST}',
                ['s_mov_b32 exec_hi, 0',
                 f'buffer_store_dwordx2 {vr(v2, 2)}, v{self.vPS}, {WS}, s{sU0} offen sc1',
                 's_mov_b32 exec_hi, -1']]

    def w_loads_main(self, park=False):
        out = []
        t, t2 = self.vTmp, self.vTmp2
        for b in range(5):
            for e in range(8):
                g = []
                if e == 0:
                    g = [f'v_and_b32 v{t}, 56, v0', f'v_add_u32 v{t}, s{sWoff}, v{t}', f'v_subrev_u32 v{t2}, 640, v{t}',
                         f'v_min_u32 v{t}, v{t}, v{t2}', f'v_mad_u32_u24 v{self.vWL}, v{t}, s15, v{self.vWLb}',
                         f's_add_u32 s{sWoff}, s{sWoff}, 128']
                so = f's{sE[e >> 1]}' if e >> 1 else '0'
                dst = ar(208 + 4 * e, 4) if park and b == 4 else vr(self.WRAW[b] + 4 * e, 4)
                g.append(f'buffer_load_dwordx4 {dst}, v{self.vWL}, {sr(S_WG, 4)}, {so} offen offset:{3072 * (e & 1)}')
                out.append(g)
        return out

    def w_loads_tail(self):
        out = []
        for i in range(20):
            if i & 1:
                g = [f's_add_u32 s{sU1}, s{sWoff2}, {TILE}',
                     f'buffer_load_dwordx4 {ar(160 + 4 * i, 4)}, v{self.vW45}, {WS}, s{sU1} offen sc1']
            else:
                g = []
                if i:
                    g = [f's_add_u32 s{sWoff2}, s{sWoff2}, 4096',
                         [f's_sub_u32 s{sU1}, s{sWoff2}, {TILE}', f's_cselect_b32 s{sWoff2}, s{sWoff2}, s{sU1}']]
                g.append(f'buffer_load_dwordx4 {ar(160 + 4 * i, 4)}, v{self.vW45}, {WS}, s{sWoff2} offen sc1')
            out.append(g)
        return out

    def w_write_addr(self):
        a = self.a
        t, t2 = self.vTmp, self.vTmp2
        a(f's_lshr_b32 s{sT0}, s{S_W}, 1')
        a(f's_lshl_b32 s{sT0}, s{sT0}, 12')
        a(f's_and_b32 s{sT1}, s{S_W}, 1')
        a(f's_lshl_b32 s{sT1}, s{sT1}, 7')
        a(f's_add_u32 s{sT0}, s{sT0}, s{sT1}')
        a(f'v_lshrrev_b32 v{t}, 3, v0')
        a(f'v_lshl_add_u32 v{t}, v{t}, 9, s{sT0}')
        a(f'v_and_b32 v{t2}, 1, v0')
        a(f'v_lshl_add_u32 v{t}, v{t2}, 6, v{t}')
        a(f'v_bfe_u32 v{t2}, v0, 1, 2')
        a(f's_mov_b32 s{sT0}, {TILE + 16}')
        a(f'v_mad_u32_u24 v{self.vWW}, v{t2}, s{sT0}, v{t}')
        for q in range(1, 4):
            a(f'v_xor_b32 v{self.vWW + q}, {16 * q}, v{self.vWW}')
        a(f's_mov_b32 s{sPL}, 0x05040100')
        a(f's_mov_b32 s{sPH}, 0x07060302')

    def w_writes_main(self):
        out = []
        for b in range(5):
            for c8 in range(8):
                p = self.PT + 4 * (c8 & 3) if b < 5 - self.opt.get('defer', 2) else (228 if c8 & 1 else 242)
                r = self.WRAW[b] + (c8 >> 1)
                g = [f'v_perm_b32 v{p + d}, v{r + 8 * d + 4}, v{r + 8 * d}, s{sPH if c8 & 1 else sPL}' for d in range(4)]
                g.append(f'ds_write_b128 v{self.vWW + (c8 & 3)}, {vr(p, 4)} offset:{b * 8192 + (c8 >> 2) * 256}')
                out.append(g)
        return out

    def conv(self):
        a = self.a
        o = self.opt
        vK, vKh, vC, vR, vSHa, vL16 = 1, 2, 3, 4, 5, 6
        SH = 8
        KR = 16
        VR = 38
        WF = 56
        KF = 72
        O = 120
        SK = 136
        KV = 168
        VF = 200
        vSW, vSR, vKS, vG, vBa, vAa, vZR, vZR2, vUL, vUW, vI7, vGZ, vXS, vHS, vFl, vPrev = range(232, 248)
        ZERO, AD = 224, 240
        vAa2 = vZR2
        a(f's_lshl4_add_u32 s{sQ}, s{sG}, s{sM}')
        a(f'v_and_b32 v{vC}, 15, v0')
        a(f'v_lshrrev_b32 v{vR}, 4, v0')
        a(f's_lshl2_add_u32 s{sT0}, s{sM}, s{S_W}')
        a(f's_mul_i32 s{sT0}, s{sT0}, {32 * 1280}')
        a(f's_lshl_b32 s{sT1}, s{sG}, 7')
        a(f's_add_u32 s{sT0}, s{sT0}, s{sT1}')
        a(f's_movk_i32 s{sT2}, {8 * 1280}')
        a(f'v_lshl_add_u32 v{vK}, v{vC}, 3, s{sT0}')
        a(f'v_mad_u32_u24 v{vK}, v{vR}, s{sT2}, v{vK}')
        a(f'v_subrev_u32 v{vKh}, 3840, v{vK}')
        a(f's_lshl_b32 s{sT1}, s{sG}, 9')
        a(f'v_lshl_add_u32 v{vSHa}, v{vC}, 5, s{sT1}')
        a(f's_movk_i32 s{sT3}, 5120')
        a(f'v_lshlrev_b32 v{vL16}, 4, v0')

        def addr_phase_a():
            a(f'v_subrev_u32 v{vPrev}, 8, v{vL16}')
            a(f's_mul_i32 s{sT0}, s{S_W}, {USTR}')
            a(f's_add_u32 s{sT0}, s{sT0}, {UBASE}')
            a(f's_movk_i32 s{sT1}, 272')
            a(f'v_lshl_add_u32 v{vSW}, v{vR}, 4, s{sT0}')
            a(f'v_mad_u32_u24 v{vSW}, v{vC}, s{sT1}, v{vSW}')
            a(f'v_lshl_add_u32 v{vSR}, v{vC}, 4, s{sT0}')
            a(f'v_mad_u32_u24 v{vSR}, v{vR}, s{sT1}, v{vSR}')
            a(f'v_add_u32 v{vUW}, s{sT0}, v{vL16}')
            a(f's_add_u32 s{sT0}, s{sT0}, 32')
            a(f'v_lshl_add_u32 v{vBa}, v{vC}, 5, s{sT0}')
            a(f'v_lshl_add_u32 v{vBa}, v{vR}, 4, v{vBa}')
            a(f's_mul_i32 s{sT0}, s{sG}, {16 * QS}')
            a(f's_lshl2_add_u32 s{sT1}, s{sM}, s{S_W}')
            a(f's_lshl_b32 s{sT1}, s{sT1}, 8')
            a(f's_add_u32 s{sT0}, s{sT0}, s{sT1}')
            a(f's_mov_b32 s{sT1}, {QS}')
            a(f'v_lshl_add_u32 v{vKS}, v{vC}, 4, s{sT0}')
            a(f'v_mad_u32_u24 v{vKS}, v{vR}, s{sT1}, v{vKS}')

        def addr_rest():
            self.gemm_ids()
            self.w_addr()
            a(f's_mul_i32 s{sT5}, s{S_W}, {GW}')
            a(f'v_add_u32 v{vG}, s{sT5}, v{vL16}')
            a(f'v_bfe_u32 v{vAa}, v0, 2, 2')
            a(f'v_sub_u32 v{vAa}, v{vAa}, v{vR}')
            a(f'v_sub_u32 v{vAa}, v{vAa}, v{vR}')
            a(f's_add_u32 s{sT0}, s{sT5}, 56')
            a(f'v_lshl_add_u32 v{vAa}, v{vAa}, 3, s{sT0}')
            a(f'v_and_b32 v{vI7}, 3, v0')
            a(f's_movk_i32 s{sT1}, {GSTR}')
            a(f'v_mad_u32_u24 v{vAa}, v{vI7}, s{sT1}, v{vAa}')
            a(f'v_add_u32 v{vAa2}, 0x800, v{vAa}')
            a(f'v_and_b32 v{vGZ}, 16, v0')
            a(f'v_add_u32 v{vGZ}, s{sT5}, v{vGZ}')
            a(f'v_mad_u32_u24 v{vGZ}, v{vI7}, s{sT1}, v{vGZ}')
            a(f'v_and_b32 v{vI7}, 7, v0')
            a(f's_mul_i32 s{sT6}, s{sQ}, {QS}')
            a(f's_lshl_b32 s{sT1}, s{S_W}, 6')
            a(f's_add_u32 s{sT0}, s{sT6}, s{sT1}')
            a(f'v_and_b32 v{vUL}, 3, v0')
            a(f'v_lshl_add_u32 v{vUL}, v{vUL}, 4, s{sT0}')
            a(f'v_lshrrev_b32 v{vXS}, 2, v0')
            a(f'v_lshl_add_u32 v{vUL}, v{vXS}, 8, v{vUL}')
            a(f's_lshl_b32 s{sT0}, s{S_W}, 12')
            a(f'v_add_u32 v{vXS}, s{sT0}, v{vL16}')
            a(f's_add_u32 s{sT0}, s{sT0}, s{sT6}')
            a(f'v_add_u32 v{vHS}, s{sT0}, v{vL16}')
            a(f's_lshl_b32 s{sT0}, s{S_W}, 11')
            a(f'v_add_u32 v{vZR}, s{sT0}, v{vL16}')
            for i in range(4):
                a(f'v_mov_b32 v{ZERO + i}, 0')
        if o.get('addr_early', 0) >= 1:
            addr_phase_a()
        if o.get('addr_early', 0) >= 2:
            addr_rest()
        a.need(sr(S_WS, 2))
        self.stamp('karg')
        a(f'buffer_load_dwordx4 {vr(SH, 4)}, v{vSHa}, {sr(S_SH, 4)}, 0 offen')
        a(f'buffer_load_dwordx4 {vr(SH + 4, 4)}, v{vSHa}, {sr(S_SH, 4)}, 0 offen offset:16')
        for r in range(3):
            a(f'buffer_load_dwordx2 {vr(KR + 2 * r, 2)}, v{vKh}, {sr(S_K, 4)}, 0 offen offset:{r * 1280}')
        for r in range(8):
            so = f's{sT3}' if r >= 4 else '0'
            a(f'buffer_load_dwordx2 {vr(KR + 6 + 2 * r, 2)}, v{vK}, {sr(S_K, 4)}, {so} offen offset:{(r & 3) * 1280}')
            a(f'buffer_load_dwordx2 {vr(VR + 2 * r, 2)}, v{vK}, {sr(S_V, 4)}, {so} offen offset:{(r & 3) * 1280}')
        self.stamp('issued')
        if o.get('tlb'):
            a(f'v_lshlrev_b32 v228, {o["tlb"]}, v0')
            a(f'buffer_load_dword v229, v228, {WS}, 0 offen sc1')
            a(f'buffer_load_dword v228, v228, {sr(S_OUT, 4)}, 0 offen sc1')
        if o.get('addr_early', 0) < 1:
            addr_phase_a()
        if o.get('addr_early', 0) < 2:
            addr_rest()
        a(f's_lshl2_add_u32 s{sT0}, s{sQ}, s{S_W}')
        a(f's_lshl_b32 s{sT1}, s{sT0}, 12')
        a(f's_add_u32 s{S_SK}, s{S_SK}, s{sT1}')
        a(f's_addc_u32 s{S_SK + 1}, s{S_SK + 1}, 0')
        a(f's_lshl_b32 s{sT0}, s{sT0}, 1')
        a(f's_and_b32 s{sT0}, s{sT0}, -4')
        a(f's_load_dword s{sDv}, {sr(S_D, 2)}, s{sT0}')
        ssm = []
        for j in range(4):
            ssm.append(f'buffer_load_dwordx4 {vr(SK + 8 * j + 4, 4)}, v{vL16}, {sr(S_SK, 4)}, 0 offen offset:{1024 * j}')
            if j == 0:
                ssm.append(f'buffer_load_dwordx2 {vr(SK + 2, 2)}, v{vPrev}, {sr(S_SK, 4)}, 0 offen')
            else:
                ssm.append(f'buffer_load_dwordx2 {vr(SK + 8 * j + 2, 2)}, v{vL16}, {sr(S_SK, 4)}, 0 offen offset:{1024 * j - 8}')
        if o.get('ssm', 1) == 0:
            a(ssm)
        self.w_select()
        self.warm([[0], [1], []])
        park = o.get('park', 1)
        wl = self.w_loads_main(park)

        def w_some(n):
            for _ in range(n):
                a(wl.pop(0))
        a(f's_mov_b32 s{sT2}, 0xffff0000')
        for ch in range(4):
            for j in range(4):
                src = SH + 2 * ch + (j >> 1)
                if j & 1:
                    a(f'v_and_b32 v{WF + 4 * j + ch}, s{sT2}, v{src}')
                else:
                    a(f'v_lshlrev_b32 v{WF + 4 * j + ch}, 16, v{src}')

        def unpack(dst, src):
            a(f'v_lshlrev_b32 v{dst}, 16, v{src}')
            a(f'v_and_b32 v{dst + 1}, s{sT2}, v{src}')
            a(f'v_lshlrev_b32 v{dst + 2}, 16, v{src + 1}')
            a(f'v_and_b32 v{dst + 3}, s{sT2}, v{src + 1}')
        for r in range(3):
            unpack(KF + 4 * r, KR + 2 * r)
        self.stamp(1)
        for r in range(8):
            unpack(KF + 4 * (r + 3), KR + 2 * (r + 3))
            vf = VF + 4 * (r & 1)
            for j in (3, 2, 1, 0):
                for p in range(2):
                    d = vr(KV + 4 * r + 2 * p, 2)
                    k = vr(KF + 4 * (r + 3 - j) + 2 * p, 2)
                    w = vr(WF + 4 * j + 2 * p, 2)
                    if j == 3:
                        a(f'v_pk_mul_f32 {d}, {k}, {w}')
                    else:
                        a(f'v_pk_fma_f32 {d}, {k}, {w}, {d}')
                if j == 3:
                    unpack(vf, VR + 2 * r)
            for p in range(2):
                d = vr(KV + 4 * r + 2 * p, 2)
                a(f'v_pk_mul_f32 {d}, {d}, {vr(vf + 2 * p, 2)}')
            if o.get('ssm', 1) == 1:
                a(ssm.pop(0))
            if r & 1:
                d = (7 - r) >> 1
                for ch in range(4):
                    a(f'v_cvt_pk_bf16_f32 v{O + 4 * ch + d}, v{KV + 4 * r + ch}, v{KV + 4 * (r - 1) + ch}')
        self.stamp('kvdone')
        for ch in range(4):
            a(f'ds_write_b128 v{vSW}, {vr(O + 4 * ch, 4)} offset:{ch * 64}')
        for j in range(4):
            a(f'ds_read_b128 {vr(KV + 4 * j, 4)}, v{vSR} offset:{j * 1088}')
        a(f'buffer_load_dword v{vFl}, off, {sr(S_DBG, 4)}, 0 sc1')
        a(f's_mov_b32 s{sT0}, {KVX}')
        for j in range(4):
            a(f'buffer_store_dwordx4 {vr(KV + 4 * j, 4)}, v{vKS}, {WS}, s{sT0} offen sc1')
            if j < 3:
                a(f's_add_u32 s{sT0}, s{sT0}, {4 * QS}')
        self.stamp(2)
        if o.get('ssm', 1) == 2:
            a(ssm)
        a(f'ds_write_b128 v{vUW}, {vr(ZERO, 4)}')
        a(f'ds_write_b128 v{vGZ}, {vr(ZERO, 4)}')

        def table(j):
            D = SK + 8 * j
            Ea, Eb, Db = 184 + 12 * (j & 1), 184 + 12 * (j & 1) + 4, 184 + 12 * (j & 1) + 8

            def wr(rho, reg):
                a(f'ds_write_b128 v{vG}, {vr(reg, 4)} offset:{rho * GSTR + 1024 * j + 32}')
            wr(3, D + 4)
            for i in range(2):
                a(f'v_pk_mov_b32 {vr(Db + 2 * i, 2)}, {vr(D + 2 + 2 * i, 2)}, {vr(D + 4 + 2 * i, 2)} op_sel:[1,0]')
            for i in range(4):
                a(f'v_alignbit_b32 v{Ea + i}, v{D + 3 + i}, v{D + 2 + i}, 16')
            wr(1, Db)
            wr(0, Ea)
            for i in range(4):
                a(f'v_alignbit_b32 v{Eb + i}, v{D + 4 + i}, v{D + 3 + i}, 16')
            wr(2, Eb)
        w_some(o['w_kv'])
        n1, n2 = o['tb_pre'], o['tb_pre'] + o['tb_mid']
        for j in range(n1):
            table(j)
        a.need(f's{sDv}')
        a(f's_and_b32 s{sT1}, s{S_W}, 1')
        a(f's_lshl_b32 s{sT1}, s{sT1}, 4')
        a(f's_lshr_b32 s{sDv}, s{sDv}, s{sT1}')
        a(f's_and_b32 s{sDv}, s{sDv}, 0xffff')
        a(f'v_sub_u32 v5, 7, v{vI7}')
        a(f'v_and_b32 v7, 1, v5')
        a(f'v_lshlrev_b32 v7, 4, v7')
        a(f'v_lshlrev_b32 v7, v7, s{sDv}')
        a(f'v_bfe_u32 v1, v0, 3, 1')
        a(f'v_add_u32 v1, 2, v1')
        a(f'v_cmp_eq_u32 vcc, v1, v{vR}')
        a(f'v_cndmask_b32 v7, 0, v7, vcc')
        a(f'v_lshrrev_b32 v5, 1, v5')
        for d in range(4):
            a(f'v_cmp_eq_u32 vcc, {d}, v5')
            a(f'v_cndmask_b32 v1, 0, v7, vcc')
            a(f'v_accvgpr_write_b32 a{AD + d}, v1')
        self.stamp('tbpre')
        a.drain_stores()
        self.stamp('drained')
        a('s_barrier')
        self.stamp(3)
        a(f's_lshl_b32 s{sT0}, s{sG}, 8')
        with self.wave0():
            self.check(S_DBG, '0', 1, vFl)
            if o.get('apoll') == 9:
                a(f's_mov_b32 s{sU2}, 1')
                a(f's_atomic_add s{sU2}, {sr(S_WS, 2)}, s{sT0} glc')
            else:
                a(f'buffer_atomic_add v{self.vOne}, off, {WS}, s{sT0} sc1')
        w_some(o['w_e1'])
        for j in range(n1, n2):
            table(j)
        ACC = 128
        BUF = (0, 64)
        XR, SR, XF = 136, 152, 168

        def rdA(it, t):
            o0 = 8 * it + 64 * (t & 3)
            return f'ds_read2_b64 {ar(BUF[it & 1] + 4 * t, 4)}, v{vAa2 if t & 4 else vAa} offset0:{o0} offset1:{o0 + 1}'

        def rdB(it, t):
            return f'ds_read_b128 {ar(BUF[it & 1] + 32 + 4 * t, 4)}, v{vBa} offset:{448 - 64 * it + 512 * t}'
        if n2 == 4:
            for t in range(8):
                a(rdA(0, t))
        self.stamp('tbpost')
        self.warm([[2], [], []])
        with self.wave0():
            if o.get('apoll') == 9:
                top, done = a.label('spin'), a.label('done')
                a(f's_mov_b32 s{sSpin}, {SPIN}')
                a('s_waitcnt lgkmcnt(0)')
                a(f's_cmp_ge_u32 s{sU2}, 15')
                a(f's_cbranch_scc1 {done}')
                a(f'{top}:')
                a(f's_mov_b32 s{sU2}, 0')
                a(f's_atomic_add s{sU2}, {sr(S_WS, 2)}, s{sT0} glc')
                a(f's_sub_u32 s{sSpin}, s{sSpin}, 1')
                a(f's_cbranch_scc1 {done}')
                a('s_waitcnt lgkmcnt(0)')
                a(f's_cmp_lt_u32 s{sU2}, 16')
                a(f's_cbranch_scc1 {top}')
                a(f'{done}:')
                a('s_waitcnt lgkmcnt(0)')
            elif o.get('apoll'):
                self.spin_atomic(f's{sT0}', 16, o['apoll'], 1)
            else:
                self.spin(S_WS, f's{sT0}', 0 if o.get('noe1') else 16, vFl)
        a('s_barrier')
        self.stamp(4)
        a(f's_mov_b32 s{sT0}, {KVX}')
        for j in range(4):
            a(f'buffer_load_dwordx4 {ar(BUF[1] + 4 * j, 4)}, v{vUL}, {WS}, s{sT0} offen sc1')
            if j < 3:
                a(f's_add_u32 s{sT0}, s{sT0}, 4096')
        w_some(o['w_u'])
        for j in range(n2, 4):
            table(j)
        if n2 < 4:
            for t in range(8):
                a(rdA(0, t))
        a(f's_lshl_b32 s{sT3}, s{sX}, 8')
        a(f's_add_u32 s{sT3}, s{sT3}, {C_FXR * 256}')
        a(f's_mov_b32 s{sT4}, {ST1}')
        a(f's_add_u32 s{sT6}, s{sT6}, {XP4}')
        for j in range(4):
            a(f'ds_write_b128 v{vUW}, {ar(BUF[1] + 4 * j, 4)} offset:{512 + 1024 * j}')
            if j == 0:
                self.stamp('uload')
            a(rdB(0, 2 * j))
            a(rdB(0, 2 * j + 1))
        self.stamp(5)
        fx = o['fx_it']
        xl = []
        for T in range(2):
            for p in range(2):
                off = 2048 * T + 1024 * p
                xl.append([f'buffer_load_dwordx4 {vr(XR + 8 * T + 4 * p, 4)}, v{vXS}, {WS}, s{sT6} offen offset:{off} sc1'])
                xl.append([f'buffer_load_dwordx4 {vr(SR + 8 * T + 4 * p, 4)}, v{vXS}, {WS}, s{sT4} offen offset:{off} sc1'])
        if o.get('nowl'):
            wl = [g[:-1] + [[]] for g in wl]
        wt = self.w_loads_tail()
        if park:
            early, late = wl, xl + wt[:12]
            self.win_pre = [f'v_accvgpr_read_b32 v{self.WRAW[4] + i}, a{208 + i}' for i in range(32)]
            self.win_loads = wt[12:]
        else:
            early, late = wl[:-8], xl + wt
            self.win_pre = wl[-8][:-1]
            self.win_loads = [wl[-8][-1]] + wl[-7:]
        tot = len(early) + len(late)
        per = [(tot * (i + 1)) // 8 - (tot * i) // 8 for i in range(8)]
        plan = []
        for it in range(8):
            n = per[it]
            if it <= fx + 1:
                n = min(max(n, o.get('early_n', 0)), len(early))
                plan.append([early.pop(0) for _ in range(n)])
            else:
                rest = late[:8] + early + late[8:] if it == fx + 2 else rest
                early = late = []
                n = (len(rest) + 7 - it) // (8 - it)
                plan.append([rest.pop(0) for _ in range(n)])
        for it in range(8):
            A, B = BUF[it & 1], BUF[it & 1] + 32
            mf = []
            endT = []
            for T in range(8):
                c = ar(ACC + 4 * T, 4)
                if it == 0:
                    mf.append(f'v_mfma_f32_16x16x32_bf16 {c}, {ar(AD, 4)}, {ar(B + 4 * T, 4)}, 0')
                for t in range(T + 1):
                    mf.append(f'v_mfma_f32_16x16x32_bf16 {c}, {ar(A + 4 * t, 4)}, {ar(B + 4 * (T - t), 4)}, {c}')
                endT.append(len(mf) - 1)
            fill = [[] for _ in mf]
            base = 8 if it == 0 else 0
            if it < 7:
                rd = [x for t in range(8) for x in (rdA(it + 1, t), rdB(it + 1, t))]
                for i, x in enumerate(rd):
                    fill[base + 2 * i].append(x)
            zw = [f'ds_write_b128 v{vG}, {ar(ACC + 4 * T, 4)} offset:{1024 * T}' for T in range(8)]
            if it == 7:
                for T in range(o.get('z_in', 7)):
                    fill[max(endT[T] + 5, 6 + 4 * T)].append(zw.pop(0))
            n = len(plan[it])
            pos = base
            for i, g in enumerate(plan[it]):
                p = max(base + ((i + 1) * 35) // n, pos)
                k = len(g) - 1
                for z, x in enumerate(g[:-1]):
                    fill[max(pos, p - (k - z + 1) // 2)].append(x)
                fill[p].append(g[-1])
                pos = p
            if it == 0:
                for i, x in enumerate(self.clear_pst(228)):
                    fill[i].append(x)
            if it == fx:
                fill[-1].append(f'buffer_load_dword v{vFl}, off, {WS}, s{sT3} sc1')
            if it == fx + 1:
                fill[-1].append(lambda: self.check(S_WS, f's{sT3}', 0 if o.get('nofx') else 8, vFl))
            if it == 7:
                fill[0].append(f's_add_u32 s{sFW}, s{sT3}, {(C_FWR - C_FXR) * 256}')

            if it == 0:
                unp = []
                for T in range(2):
                    for row in range(4):
                        src = XR + 8 * T + 2 * row
                        xf = XF + 16 * T + 4 * row
                        st = SR + 8 * T + 2 * row
                        unp += [f'v_lshlrev_b32 v{xf}, 16, v{src}', f'v_and_b32 v{xf + 1}, s{sT2}, v{src}',
                                f'v_lshlrev_b32 v{xf + 2}, 16, v{src + 1}', f'v_and_b32 v{xf + 3}, s{sT2}, v{src + 1}']
                        unp += [f'v_fma_f32 v{xf + 32 + c}, v{xf + c}, v{st}, v{st + 1}' for c in range(4)]
            u0 = o.get('unp_at', 36 * 6 + 14)
            for i, x in enumerate(unp):
                p = u0 + (i * (36 * 8 - u0)) // 64
                if p // 36 == it:
                    fill[p % 36].append(x)
            self.stamp(f'it{it}')
            if it > 0:
                a.need(ar(A, 24 if it < 7 else 32), ar(B, 24))
            for m, f in zip(mf, fill):
                a(m)
                a(f)
        self.stamp(6)
        a(zw)
        a('s_waitcnt lgkmcnt(0)')
        a('s_barrier')
        self.stamp('zbar')
        Z = XR
        for T in range(2):
            for ch in range(4):
                a(f'ds_read_b128 {vr(Z + 16 * T + 4 * ch, 4)}, v{vZR} offset:{ch * GW + 1024 * T}')
        a(f's_mov_b32 s{sT0}, {HP4}')
        for T in range(2):
            for p in range(2):
                ho = XF + 32 + 16 * T + 8 * p
                for b in range(2):
                    row = 2 * p + b
                    for c in range(4):
                        x = XF + 16 * T + 4 * row + c
                        a(f'v_fmac_f32 v{x}, v{x + 32}, v{Z + 16 * T + 4 * c + row}')
                    for c2 in range(2):
                        x = XF + 16 * T + 4 * row + 2 * c2
                        a(f'v_cvt_pk_bf16_f32 v{ho + 2 * b + c2}, v{x}, v{x + 1}')
                a(f'buffer_store_dwordx4 {vr(ho, 4)}, v{vHS}, {WS}, s{sT0} offen offset:{2048 * T + 1024 * p} sc1')
        self.stamp(7)

    def arrive_e2(self):
        a = self.a
        a(f's_lshl_b32 s{sT0}, s{sX}, 8')
        a(f's_add_u32 s{sT0}, s{sT0}, {C_B1 * 256}')
        with self.wave0():
            self.two_level(f's{sT0}', 31, C_B2, self.opt['arr'] == 's')

    def side(self):
        a = self.a
        a('.Lside:')
        a.fresh('role')
        self.stamp('sx_in')
        vTid = 1
        a(f's_sub_u32 s{sG}, s{sJ}, 20')
        a(f's_lshl3_add_u32 s{sG}, s{sG}, s{sX}')
        J2, vJ2, sG2, sJo, sJs = 136, 230, sQ, sDv, sM
        up = self.opt.get('up', 1)

        def job2_loads():
            a(f's_add_u32 s{sG2}, s{sG}, {48 if self.opt.get("pair", 1) else 0}')
            a(f's_sub_u32 s{sT0}, s{sG2}, 96')
            a(f's_cselect_b32 s{sG2}, s{sG2}, s{sT0}')
            a(f's_cmp_ge_u32 s{sG2}, 72')
            a(f's_cselect_b32 s{sT2}, s{S_WU}, s{S_WG}')
            a(f's_cselect_b32 s{sT3}, s{S_WU + 1}, s{S_WG + 1}')
            a(f's_cselect_b32 s{sT1}, 72, 48')
            a(f's_sub_u32 s{sT1}, s{sG2}, s{sT1}')
            a(f's_lshr_b32 s{sT0}, s{sG2}, 1')
            a(f's_cmp_ge_u32 s{sG2}, 48')
            a(f's_cselect_b32 s{S_WD}, s{sT2}, s{S_WD}')
            a(f's_cselect_b32 s{S_WD + 1}, s{sT3}, s{S_WD + 1}')
            a(f's_cselect_b32 s{sT0}, s{sT1}, s{sT0}')
            self.real_line(sT0, sT2)
            a(f's_and_b32 s{sT2}, s{sG2}, 1')
            a(f's_lshl1_add_u32 s{sT2}, s{sT0}, s{sT2}')
            a(f's_mul_i32 s{sT2}, s{sT2}, {32 * 1280}')
            a(f's_lshl_b32 s{sT0}, s{sT0}, 7')
            a(f's_movk_i32 s{sT1}, 1280')
            a(f's_movk_i32 s{sJs}, 128')
            a(f's_cmp_ge_u32 s{sG2}, 48')
            a(f's_cselect_b32 s{sJo}, s{sT0}, s{sT2}')
            a(f's_cselect_b32 s{sT1}, 3072, s{sT1}')
            a(f's_cselect_b32 s{sJs}, {32 * 3072}, s{sJs}')
            a(f'v_and_b32 v{vJ2}, 7, v0')
            a(f'v_lshlrev_b32 v{vJ2}, 4, v{vJ2}')
            a(f'v_lshrrev_b32 v15, 3, v{vTid}')
            a(f'v_mad_u32_u24 v{vJ2}, v15, s{sT1}, v{vJ2}')
            for j in range(10):
                a(f'buffer_load_dwordx4 {vr(J2 + 4 * j, 4)}, v{vJ2}, {sr(S_WD, 4)}, s{sJo} offen')
                a(f's_add_u32 s{sJo}, s{sJo}, s{sJs}')
        a(f's_cmp_ge_u32 s{sG}, 64')
        a.snapshot('s4')
        a('s_cbranch_scc1 .Ls4')
        XR, WR = 16, J2
        vA, vRow, vS8 = 2, 3, 4
        a(f'v_lshrrev_b32 v{vRow}, 3, v{vTid}')
        a(f'v_and_b32 v{vS8}, 7, v0')
        a(f's_lshr_b32 s{sT0}, s{sG}, 3')
        a(f's_lshl_b32 s{sT0}, s{sT0}, 8')
        a(f's_and_b32 s{sT1}, s{sG}, 3')
        a(f's_lshl2_add_u32 s{sT0}, s{sT1}, s{sT0}')
        a(f's_bfe_u32 s{sT1}, s{sG}, 0x10002')
        a(f's_lshl1_add_u32 s{sT0}, s{sT1}, s{sT0}')
        a(f'v_and_b32 v5, 0xf0, v{vTid}')
        a(f'v_and_b32 v6, 1, v{vRow}')
        a(f'v_add3_u32 v5, v5, v6, s{sT0}')
        a(f's_movk_i32 s{sT1}, 1280')
        a(f'v_lshlrev_b32 v6, 4, v{vS8}')
        a(f'v_mad_u32_u24 v5, v5, s{sT1}, v6')
        for j in range(10):
            a(f'buffer_load_dwordx4 {vr(XR + 4 * j, 4)}, v5, {sr(S_X, 4)}, 0 offen offset:{128 * j}')
        if up == 1:
            job2_loads()
        self.stamp('sx_issued')
        self.gemm_ids()
        self.w_addr()
        vW, vRd, vSt = 5, 6, 7
        a(f's_movk_i32 s{sT1}, 528')
        a(f'v_lshlrev_b32 v{vW}, 3, v{vRow}')
        a(f'v_mad_u32_u24 v{vW}, v{vS8}, s{sT1}, v{vW}')
        a(f'v_and_b32 v{vRd}, 31, v0')
        a(f'v_lshlrev_b32 v{vRd}, 4, v{vRd}')
        a(f'v_lshrrev_b32 v8, 5, v{vTid}')
        a(f'v_mad_u32_u24 v{vRd}, v8, s{sT1}, v{vRd}')
        a(f's_lshl_b32 s{sT0}, s{sG}, 8')
        a(f'v_and_b32 v{vSt}, 15, v0')
        a(f'v_lshl_add_u32 v{vSt}, v{vSt}, 4, s{sT0}')
        a(f'v_lshrrev_b32 v8, 4, v{vTid}')
        a(f's_mov_b32 s{sT1}, {QS}')
        a(f'v_mad_u32_u24 v{vSt}, v8, s{sT1}, v{vSt}')
        for j in range(10):
            for o_ in range(2):
                a(f'ds_write_b64 v{vW}, {vr(XR + 4 * j + 2 * o_, 2)} offset:{j * 4224 + o_ * 256}')
        self.stamp('sx_data')
        if up == 2:
            job2_loads()
            a(f's_lshl_b32 s{sT0}, s{sG}, 8')
        a('s_waitcnt lgkmcnt(0)')
        a('s_barrier')
        self.stamp('sx_bar')
        XO = 96
        for j in range(10):
            a(f'ds_read_b128 {vr(XO + 4 * j, 4)}, v{vRd} offset:{j * 4224}')
        a(f's_mov_b32 s{sT1}, {XP4}')
        a(f's_mov_b32 s{sOne}, 0x3f803f80')
        for i in range(4):
            a(f'v_mov_b32 v{8 + i}, 0')
        for j in range(10):
            a(f'buffer_store_dwordx4 {vr(XO + 4 * j, 4)}, v{vSt}, {WS}, s{sT1} offen sc1')
            a(f's_add_u32 s{sT1}, s{sT1}, {16 * QS}')
            for i in range(4 * j, 4 * j + 4):
                a(f'v_dot2c_f32_bf16 v{8 + (i & 1)}, s{sOne}, v{XR + i}')
                a(f'v_dot2c_f32_bf16 v{10 + (i & 1)}, v{XR + i}, v{XR + i}')
        a('v_add_f32 v8, v8, v9')
        a('v_add_f32 v10, v10, v11')
        for m in ('quad_perm:[1,0,3,2]', 'quad_perm:[2,3,0,1]', 'row_half_mirror'):
            a(f'v_add_f32_dpp v8, v8, v8 {m} row_mask:0xf bank_mask:0xf')
            a(f'v_add_f32_dpp v10, v10, v10 {m} row_mask:0xf bank_mask:0xf')
        a(f'v_mul_f32 v8, {f32(1 / 640)}, v8')
        a(f'v_mul_f32 v10, {f32(1 / 640)}, v10')
        a('v_fma_f32 v10, -v8, v8, v10')
        a('v_max_f32 v10, 0, v10')
        a(f'v_add_f32 v10, {f32(1e-5)}, v10')
        a('v_rsq_f32 v10, v10')
        a(f'v_lshl_add_u32 v12, v{vRow}, 3, s{sT0}')
        a('v_mul_f32 v11, -v8, v10')
        a(f's_mov_b32 s{sT1}, {ST1}')
        vFl = 231
        a(f'buffer_load_dword v{vFl}, off, {sr(S_DBG, 4)}, 0 sc1')
        a('s_mov_b32 exec_lo, 0x01010101')
        a('s_mov_b32 exec_hi, 0x01010101')
        a(f'buffer_store_dwordx2 v[10:11], v12, {WS}, s{sT1} offen sc1')
        a('s_mov_b64 exec, -1')
        a('s_branch .Lr1')
        a('.Ls4:')
        a.fresh('s4')
        T4 = 10240
        a(f's_sub_u32 s{sT4}, s{sG}, 64')
        a(f's_lshr_b32 s{sT5}, s{sT4}, 2')
        a(f's_and_b32 s{sT4}, s{sT4}, 3')
        a(f's_mul_i32 s{sT0}, s{sT4}, 160')
        a(f's_lshl3_add_u32 s{sT0}, s{S_W}, s{sT0}')
        a(f's_mul_i32 s{sT0}, s{sT0}, 3072')
        a(f's_mul_i32 s{sT1}, s{sT5}, 3')
        a(f's_add_u32 s{sT1}, s{sT1}, 1')
        self.real_line(sT1, sT2)
        a(f's_lshl_b32 s{sT1}, s{sT1}, 7')
        a(f's_add_u32 s{sT0}, s{sT0}, s{sT1}')
        a('v_lshrrev_b32 v3, 3, v0')
        a('v_and_b32 v4, 7, v0')
        a(f'v_lshl_add_u32 v2, v4, 4, s{sT0}')
        a(f's_movk_i32 s{sT1}, 3072')
        a(f'v_mad_u32_u24 v2, v3, s{sT1}, v2')
        a(f's_mov_b32 s{sT0}, 0')
        for i in range(10):
            a(f'buffer_load_dwordx4 {vr(XR + 4 * i, 4)}, v2, {sr(S_WU if i & 1 else S_WG, 4)}, s{sT0} offen')
            if i & 1:
                a(f's_add_u32 s{sT0}, s{sT0}, {32 * 3072}')
        if up == 1:
            job2_loads()
        self.stamp('sx_issued')
        self.gemm_ids()
        self.w_addr()
        a(f's_lshl_b32 s{sT0}, s{S_W}, 9')
        a(f'v_lshl_add_u32 v5, v3, 6, s{sT0}')
        a('v_and_b32 v6, 1, v0')
        a('v_lshl_add_u32 v5, v6, 4, v5')
        a('v_bfe_u32 v6, v0, 1, 2')
        a('v_lshlrev_b32 v7, 5, v6')
        a('v_xor_b32 v5, v5, v7')
        a(f's_movk_i32 s{sT0}, {T4}')
        a(f'v_mad_u32_u24 v5, v6, s{sT0}, v5')
        a('v_xor_b32 v6, 32, v5')
        a('v_lshrrev_b32 v7, 5, v0')
        a('v_bfe_u32 v8, v0, 2, 2')
        a('v_lshl_add_u32 v7, v7, 3, v8')
        a('v_lshlrev_b32 v7, 6, v7')
        a('v_and_b32 v8, 3, v0')
        a('v_lshl_add_u32 v7, v8, 4, v7')
        a('v_bfe_u32 v8, v0, 4, 1')
        a('v_lshl_add_u32 v7, v8, 3, v7')
        a(f's_lshl_b32 s{sT1}, s{S_W}, 5')
        a(f'v_xor_b32 v7, s{sT1}, v7')
        a(f's_mul_i32 s{sT1}, s{S_W}, {T4}')
        a(f'v_add_u32 v7, s{sT1}, v7')
        for i in range(10):
            a(f'ds_write_b128 v{6 if i & 1 else 5}, {vr(XR + 4 * i, 4)} offset:{(i >> 1) * 2048}')
        self.stamp('sx_data')
        if up == 2:
            job2_loads()
        a('s_waitcnt lgkmcnt(0)')
        a('s_barrier')
        self.stamp('sx_bar')
        for j in range(10):
            for e in range(2):
                a(f'ds_read_b64_tr_b16 {vr(XO + 4 * j + 2 * e, 2)}, v7 offset:{1024 * j + 256 * e}')
        a(f's_lshl2_add_u32 s{sT0}, s{sT5}, s{S_W}')
        a(f's_lshl2_add_u32 s{sT0}, s{sT0}, s{sT4}')
        a(f's_mul_i32 s{sT0}, s{sT0}, 10240')
        a(f's_add_u32 s{sT0}, s{sT0}, {W45F}')
        a('v_lshlrev_b32 v9, 4, v0')
        a(f'buffer_load_dword v{vFl}, off, {sr(S_DBG, 4)}, 0 sc1')
        for j in range(10):
            if j and j & 3 == 0:
                a(f's_add_u32 s{sT0}, s{sT0}, 4096')
            a(f'buffer_store_dwordx4 {vr(XO + 4 * j, 4)}, v9, {WS}, s{sT0} offen offset:{(j & 3) * 1024} sc1')
        a('.Lr1:')
        a.fresh()
        self.stamp('sx_st')
        o = self.opt
        assert up >= 1
        a(f's_mov_b32 s{sG}, s{sG2}')
        a(f's_mov_b32 s{sSide}, s{sG2}')
        self.w_select()
        WB = 49152
        T0 = 216
        na, nb, nc = o.get('sw_a', 10), o.get('sw_b', 10), o.get('sw_c', 12)
        assert na + nb + nc <= 32

        def end_r1(younger):
            self.stamp('sx_ld2')
            a(f's_waitcnt vmcnt({younger})')
            a('s_barrier')
            self.stamp('sx_dr')
            self.arrive_start([(sArr, C_FX)], lambda: self.check(S_DBG, '0', 1, vFl))
        a(f's_cmp_ge_u32 s{sG}, 48')
        a('s_cbranch_scc1 .Ls2')
        wl = self.w_loads_main()
        a(wl[:na])
        v8, v9, v10 = T0, T0 + 1, T0 + 2
        a(f'v_lshrrev_b32 v{vRow}, 3, v{vTid}')
        a(f'v_and_b32 v{vS8}, 7, v0')
        a(f's_movk_i32 s{sT1}, 1344')
        a(f'v_lshlrev_b32 v{vW}, 4, v{vS8}')
        a(f'v_mad_u32_u24 v{vW}, v{vRow}, s{sT1}, v{vW}')
        a(f'v_lshrrev_b32 v{v8}, 4, v0')
        a(f'v_bfe_u32 v{v9}, v0, 2, 2')
        a(f'v_lshl_add_u32 v{v8}, v{v8}, 3, v{v9}')
        a(f's_mul_i32 s{sT0}, s{S_W}, 320')
        a(f'v_mov_b32 v{v9}, s{sT0}')
        a(f'v_mad_u32_u24 v{v8}, v{v8}, s{sT1}, v{v9}')
        a(f'v_and_b32 v{v9}, 3, v0')
        a(f'v_lshl_add_u32 v{v10}, v{v9}, 3, v{v8}')
        a(f'v_lshl_add_u32 v{v8}, v{v9}, 4, v{v8}')
        end_r1(na)
        q = wl[na:na + nb]
        for j in range(10):
            a(f'ds_write_b128 v{vW}, {vr(WR + 4 * j, 4)} offset:{WB + 128 * j}')
            if q and j < o.get('sw_b1', 4):
                a(q.pop(0))
        self.arrive_finish([(sArr, 11, C_FXR)], v9)
        self.stamp(1)
        a(q)
        a('s_barrier')
        for cc in range(2):
            for nt in range(5):
                for e in range(2):
                    off = WB + cc * 160 + e * 4 * 1344 + ((nt >> 1) * 64 + (nt & 1) * 8)
                    a(f'ds_read_b64_tr_b16 {ar(4 * (5 * cc + nt) + 2 * e, 2)}, v{v10 if nt == 4 else v8} offset:{off}')
        a(f's_mul_i32 s{sT0}, s{S_W}, 96')
        a(f's_add_u32 s{sT0}, s{sT0}, s{sG}')
        a(f's_mul_i32 s{sT0}, s{sT0}, 5120')
        a(f's_add_u32 s{sT0}, s{sT0}, {WDF}')
        a(f'v_lshlrev_b32 v{v9}, 4, v0')
        for cc in range(2):
            for nt in range(5):
                if nt == 4:
                    a(f's_add_u32 s{sT0}, s{sT0}, 4096')
                a(f'buffer_store_dwordx4 {ar(4 * (5 * cc + nt), 4)}, v{v9}, {WS}, s{sT0} offen offset:{(nt & 3) * 1024} sc1')
            a(f's_add_u32 s{sT0}, s{sT0}, {48 * 5120 - 4096}')
        a('s_branch .Lr2')
        a('.Ls2:')
        a.fresh()
        AC = T0 + 4
        for i in range(10, 20):
            a(f'buffer_load_dwordx4 {vr(J2 + 4 * i, 4)}, v{vJ2}, {sr(S_WD, 4)}, s{sJo} offen')
            a(f's_add_u32 s{sJo}, s{sJo}, s{sJs}')
        for i in range(8):
            a(f'v_mov_b32 v{AC + i}, 0')
        a(f's_mov_b32 s{sT4}, 0x3f80')
        a(f's_mov_b32 s{sT3}, 0x3f800000')
        end_r1(10)
        q = self.w_loads_main()[:na + nb]
        for i in range(80):
            a(f'v_dot2c_f32_bf16 v{AC + 2 * (i & 3)}, s{sT4}, v{J2 + i}')
            a(f'v_dot2c_f32_bf16 v{AC + 1 + 2 * (i & 3)}, s{sT3}, v{J2 + i}')
            if i == 39:
                self.arrive_finish([(sArr, 11, C_FXR)], T0)
                self.stamp(1)
            if i & 1 and i > 39 and q:
                a(q.pop(0))
        a(q)
        a(f'v_lshlrev_b32 v5, 5, v{vTid}')
        a(f'ds_write_b128 v5, {vr(AC, 4)} offset:{WB}')
        a(f'ds_write_b128 v5, {vr(AC + 4, 4)} offset:{WB + 16}')
        a('s_waitcnt lgkmcnt(0)')
        a('s_barrier')
        a('v_bfe_u32 v6, v0, 1, 4')
        a('v_and_b32 v7, 32, v0')
        a('v_add_u32 v6, v6, v7')
        a('v_and_b32 v7, 1, v0')
        a('v_lshl_add_u32 v6, v7, 4, v6')
        a('v_lshlrev_b32 v6, 2, v6')
        for i in range(16):
            a(f'ds_read2st64_b32 {vr(J2 + 2 * i, 2)}, v6 offset0:{WB // 256 + 2 * i} offset1:{WB // 256 + 2 * i + 1}')
        for i in range(1, 16):
            a(f'v_pk_add_f32 {vr(J2, 2)}, {vr(J2, 2)}, {vr(J2 + 2 * i, 2)}')
        a(f'v_add_f32 v{J2}, v{J2}, v{J2 + 1}')
        a(f'v_cvt_pk_bf16_f32 v{T0}, v{J2}, v{J2}')
        a(f'v_lshlrev_b32 v7, 16, v{T0}')
        a(f'v_sub_f32 v7, v{J2}, v7')
        a(f'v_cvt_pk_bf16_f32 v{T0 + 1}, v7, v7')
        a(f's_sub_u32 s{sT0}, s{sG}, 48')
        a(f's_lshl_b32 s{sT0}, s{sT0}, 9')
        a(f's_add_u32 s{sT0}, s{sT0}, {CSF}')
        a('v_lshlrev_b32 v6, 3, v0')
        a(f'buffer_store_dwordx2 {vr(T0, 2)}, v6, {WS}, s{sT0} offen sc1')
        a('.Lr2:')
        a.fresh()
        self.stamp(2)
        a(f's_lshl_b32 s{sT0}, s{sG}, 8')
        a(f's_add_u32 s{sT0}, s{sT0}, {C_F3 * 256}')
        a('v_mov_b32 v4, 0')
        a('v_lshlrev_b32 v5, 2, v0')
        a(f'buffer_store_dword v4, v5, {WS}, s{sT0} offen sc1')
        a(self.clear_pst(2))
        n0 = na + nb + nc
        a(wl[na + nb:n0])
        a(f's_lshl_b32 s{sT4}, s{sX}, 8')
        a(f's_add_u32 s{sT4}, s{sT4}, {C_FXR * 256}')
        a(f's_add_u32 s{sFW}, s{sT4}, {(C_FWR - C_FXR) * 256}')
        a.drain_stores()
        a('s_waitcnt lgkmcnt(0)')
        a('s_barrier')
        self.stamp(6)
        self.arrive_start([(sArr, C_B1), (sJs, C_FW)])
        a(f'buffer_load_dword v1, off, {WS}, s{sT4} sc1')

        def mid():
            self.arrive_finish([(sJs, 11, C_FWR), (sArr, 31, C_B2)], T0)
            self.check(S_WS, f's{sT4}', 8, 1)
        self.side_window(wl[n0:], mid)
        a(f's_waitcnt vmcnt({self.opt["wd_pre"]})')
        self.stamp(7)
        a('s_branch .Ljoin')

    def signal(self, soff):
        a = self.a
        if self.opt['sig'] == 's':
            a(f's_atomic_add s{sU2}, {sr(S_WS, 2)}, {soff}')
        else:
            a('s_mov_b64 exec, 1')
            a(f'buffer_atomic_add v{self.vOne}, off, {WS}, {soff} sc1')
            a('s_mov_b64 exec, -1')

    def gemms(self):
        a = self.a
        o = self.opt
        t, t2 = self.vTmp, self.vTmp2
        L, AB = 0, 8
        vRD = 4
        vAL, vAS, vA2, vWD, vWD2, vCS, vFl = 1, 2, 3, 247, 255, 246, 254
        vW5 = 252
        vS = 232
        BP = 236
        TM = 242
        ACC = 168
        RING1, CS, RING2 = 124, 148, 240
        sF3s, sF3p = sQ, sM
        sRB2w = sG
        kap = [[3 * c + ((pi + 1) % 3 if c & 1 else pi) for c in range(4)] for pi in range(3)]
        wd = []
        for i in range(60):
            g = []
            if i % 5 == 0:
                g.append(f's_mov_b32 s{sWoff}, {WDF + 5120 * kap[i // 20][i // 5 % 4]}')
            g.append(f'buffer_load_dwordx4 {ar(4 * i, 4)}, v{vWD2 if i % 5 == 4 else vWD}, {WS}, s{sWoff} offen offset:{(i % 5 & 3) * 1024} sc1')
            wd.append(g)
        if o.get('nowd'):
            wd = [[] for _ in wd]
        real, setup0 = a, []
        a = setup0.append
        a(f's_and_b32 s{sT0}, s{sJ}, 7')
        a(f's_lshl2_add_u32 s{sT0}, s{sT0}, s{S_W}')
        a(f's_mul_i32 s{sT0}, s{sT0}, {12 * 5120}')
        a(f'v_lshl_add_u32 v{vWD}, v0, 4, s{sT0}')
        a(f'v_add_u32 v{vWD2}, 0x1000, v{vWD}')
        a(f'v_lshlrev_b32 v{vRD}, 4, v0')
        for s in range(1, 4):
            a(f'v_xor_b32 v{t}, {16 * s}, v{vRD}')
            a(f'v_add_u32 v{vRD + s}, {TILE * s}, v{t}')
        a(f'v_lshl_add_u32 v{vW5}, s{S_W}, 10, v{vRD}')
        a(f'v_lshl_add_u32 v{vW5 + 1}, s{S_W}, 10, v{vRD + 1}')
        a(f's_lshl2_add_u32 s{sT0}, s{sRB}, s{S_W}')
        a(f's_lshl_b32 s{sT1}, s{sT0}, 8')
        a(f'v_and_b32 v{t}, 15, v0')
        a(f'v_lshlrev_b32 v{vA2}, 4, v{t}')
        a(f'v_add_u32 v{t}, s{sT1}, v{vA2}')
        a(f'v_lshrrev_b32 v{t2}, 4, v0')
        a(f's_mov_b32 s{sT1}, {QS}')
        a(f'v_mad_u32_u24 v{vAL}, v{t2}, s{sT1}, v{t}')
        a(f'v_lshl_add_u32 v{vA2}, v{t2}, 9, v{vA2}')
        a(f's_mul_i32 s{sT1}, s{sT0}, 98304')
        a(f'v_lshl_add_u32 v{vAS}, v0, 4, s{sT1}')
        a(f's_lshr_b32 s{sF3s}, s{sT0}, 1')
        a(f's_lshl_b32 s{sF3s}, s{sF3s}, 8')
        a(f's_add_u32 s{sF3s}, s{sF3s}, {C_F3 * 256}')
        a(f's_lshr_b32 s{sT1}, s{sJ}, 3')
        a(f's_lshl2_add_u32 s{sF3p}, s{sX}, s{sT1}')
        a(f's_lshl_b32 s{sRB2w}, s{sF3p}, 1')
        a(f's_lshl_b32 s{sF3p}, s{sF3p}, 8')
        a(f's_add_u32 s{sF3p}, s{sF3p}, {C_F3 * 256}')
        for i in range(4):
            a(f's_add_u32 s{sT0}, s{sRot}, {i}')
            a(f's_and_b32 s{sT0}, s{sT0}, 3')
            a(f's_mul_i32 s{sT0}, s{sT0}, {40 * QS}')
            a(f's_add_u32 s{sAB + i}, s{sT0}, {HP4}')
        a(f'v_and_b32 v{t}, 3, v0')
        a(f'v_bfe_u32 v{t2}, v0, 2, 1')
        a(f'v_lshl_add_u32 v{t}, v{t2}, 3, v{t}')
        a(f'v_bfe_u32 v{t2}, v0, 4, 1')
        a(f'v_lshl_add_u32 v{t}, v{t2}, 2, v{t}')
        a(f'v_lshlrev_b32 v{t}, 4, v{t}')
        a(f'v_bfe_u32 v{t2}, v0, 3, 1')
        a(f's_movk_i32 s{sT1}, 12288')
        a(f'v_mad_u32_u24 v{vCS}, v{t2}, s{sT1}, v{t}')
        for i in range(4):
            a(f'v_mov_b32 v{vS + i}, 0')
        a(f's_mov_b32 s{sOne}, 0x3f803f80')
        a(f's_mov_b32 s{sU2}, 1')
        a(f's_lshl_b32 s{sT2}, s{sA}, 7')
        a(f's_add_u32 s{sT2}, s{sT2}, {CSF}')
        a(f's_lshl_b32 s{sT3}, s{sB}, 7')
        a(f's_add_u32 s{sT3}, s{sT3}, {CSF}')
        a(f's_lshl_b32 s{sA}, s{sA}, 10')
        a(f's_add_u32 s{sA}, s{sA}, {ACT}')
        a(f's_lshl_b32 s{sB}, s{sB}, 10')
        a(f's_add_u32 s{sB}, s{sB}, {ACT}')
        a(f's_mul_i32 s{sT5}, s{S_W}, {12 * 2048}')
        for lam in range(4):
            a(f's_xor_b32 s{sT0}, s{S_W}, {lam}')
            a(f's_lshr_b32 s{sT1}, s{sT0}, 1')
            a(f's_add_u32 s{sT1}, s{sT1}, s{sRB2w}')
            a(f's_mul_i32 s{sT1}, s{sT1}, 98304')
            a(f's_and_b32 s{sT0}, s{sT0}, 1')
            a(f's_lshl_b32 s{sT0}, s{sT0}, 8')
            a(f's_add_u32 s{sT0}, s{sT0}, s{sT5}')
            a(f's_add_u32 s{sL[lam]}, s{sT1}, s{sT0}')
        sRes, sOutB, sQS = 20, 21, 22
        a(f's_lshr_b32 s{sT0}, s{S_W}, 1')
        a(f's_add_u32 s{sT0}, s{sT0}, s{sRB2w}')
        a(f's_lshl_b32 s{sRes}, s{sT0}, 8')
        a(f's_and_b32 s{sT4}, s{S_W}, 1')
        a(f's_lshl3_add_u32 s{sRes}, s{sT4}, s{sRes}')
        a(f's_and_b32 s{sT5}, s{sJ}, 7')
        a(f's_mul_i32 s{sT6}, s{sT5}, {20 * QS}')
        a(f's_add_u32 s{sRes}, s{sRes}, s{sT6}')
        a(f's_mov_b32 s{sQS}, {QS}')
        a(f's_lshr_b32 s{sOutB}, s{sRB2w}, 3')
        a(f's_lshl_b32 s{sOutB}, s{sOutB}, 8')
        a(f's_and_b32 s{sT6}, s{sT0}, 3')
        a(f's_lshl2_add_u32 s{sOutB}, s{sT6}, s{sOutB}')
        a(f's_bfe_u32 s{sT6}, s{sRB2w}, 0x10002')
        a(f's_lshl1_add_u32 s{sOutB}, s{sT6}, s{sOutB}')
        a(f's_add_u32 s{sOutB}, s{sOutB}, s{sT4}')
        a(f's_mul_i32 s{sOutB}, s{sOutB}, 1280')
        a(f's_mul_i32 s{sT6}, s{sT5}, 160')
        a(f's_add_u32 s{sOutB}, s{sOutB}, s{sT6}')
        a(f's_lshl_b32 s{sU0}, s{sCB}, 8')
        a(f's_add_u32 s{sU0}, s{sU0}, {PST}')
        a(f's_mov_b32 s{sU1}, {PST}')
        a(f's_and_b32 s{sCB}, s{sCB}, 3')
        a(f's_mul_i32 s{sCB}, s{sCB}, 10')
        a = real
        nw = 40 - 8 * o.get('defer', 2)
        wdp = [wd.pop(0) for _ in range(o['wd_pre'])]

        def mixer(ww, setup, lq, per=6):
            def some(n, nl):
                for i in range(n):
                    a(ww.pop(0))
                    for _ in range(per):
                        if setup:
                            a(setup.pop(0))
                    for _ in range(((i + 1) * nl) // n - (i * nl) // n):
                        if lq:
                            a(lq.pop(0))
            return some

        def side_window(wl, fx_check):
            ww, setup = self.w_writes_main()[:nw], list(setup0)
            self.w_write_addr()
            lq = list(wl)
            hold = [x for x in setup if f'v{vW5},' in x or f's{sU1},' in x]
            setup = [x for x in setup if x not in hold]
            some = mixer(ww, [], lq)
            nl = len(lq)
            n_ = min(nl, nw - 8)
            assert all(40 - nl + (i * nl) // n_ >= 8 * (i // 8 + 1) for i in range(n_))
            some(n_, nl)
            fx_check()
            lq += self.w_loads_tail()
            if o.get('outpf', 1):
                a(f's_lshr_b32 s{sT0}, s{sSide}, 3')
                a(f's_lshl2_add_u32 s{sT0}, s{sT0}, s{S_W}')
                a(f's_mul_i32 s{sT0}, s{sT0}, {22 * 320}')
                a(f's_and_b32 s{sSide}, s{sSide}, 7')
                a(f's_mul_i32 s{sSide}, s{sSide}, {256 * 1280}')
                a(f's_add_u32 s{sSide}, s{sSide}, s{sT0}')
                a(f'v_min_u32 v{TM}, 21, v0')
                a(f'v_mul_u32_u24 v{TM}, 320, v{TM}')
                lq.insert(o.get('pf_pos', 20), f'buffer_load_dword a255, v{TM}, {sr(S_OUT, 4)}, s{sSide} offen offset:160')
            lq.append(f'buffer_load_dword v{TM + 1}, off, {WS}, s{sFW} sc1')
            mixer(ww, setup, lq)(len(ww), len(lq))
            a(setup)
            a(hold)
            if wdp:
                self.check(S_WS, f's{sFW}', 0 if o.get('nofw') else 8, TM + 1)
            a(wdp)
        self.side_window = side_window
        ww = self.w_writes_main()
        setup = self.win_pre + setup0
        lq = list(self.win_loads)
        n1, n2 = o.get('ww1', 13), o.get('ww2', 7)
        self.w_write_addr()
        a('s_barrier')
        self.stamp('hbar')
        some = mixer(ww, setup, lq, o.get('su_per', 7))
        assert 5 * o.get('su_per', 7) >= len(self.win_pre)
        some(5, 0)
        fwe = o.get('fwe', 1)
        if wdp and fwe:
            a(f'buffer_load_dword v{TM + 1}, off, {WS}, s{sFW} sc1')
        hold = [x for x in setup if isinstance(x, str) and (f'v{vW5},' in x or f's{sU1},' in x)]
        setup[:] = [x for x in setup if x not in hold]
        some(n1 - 5, o.get('l1', 8))
        self.stamp('hissued')
        a.drain_stores()
        self.stamp('hdrained')
        a('s_barrier')
        self.stamp('hbar2')
        self.arrive_start([(sArr, C_B1)])
        if wdp and not fwe:
            a(f'buffer_load_dword v{TM + 1}, off, {WS}, s{sFW} sc1')
        if wdp and fwe:
            self.check(S_WS, f's{sFW}', 0 if o.get('nofw') else 8, TM + 1)
            nl2 = len(lq) + o.get('l2', 8)
            lq += wdp
            some(n2, nl2)
        else:
            some(n2, len(lq))
        self.arrive_finish([(sArr, 31, C_B2)], TM)
        self.stamp('arrived')
        if wdp and not fwe:
            self.check(S_WS, f's{sFW}', 0 if o.get('nofw') else 8, TM + 1)
            lq += wdp
        some(nw - n1 - n2, len(lq))
        a(setup)
        a(hold)
        a(lq)
        a('.Ljoin:')
        self.stamp('wwritten')
        a(f's_lshl_b32 s{sT0}, s{sX}, 8')
        a(f's_add_u32 s{sT0}, s{sT0}, {C_B2 * 256}')
        self.warm([[3, 6], [4, 7], [5]])
        with self.wave0():
            self.spin(S_WS, f's{sT0}', 0 if o.get('noe2') else 8, t)
        self.stamp('polled')
        a('s_waitcnt lgkmcnt(0)')
        a('s_barrier')
        self.stamp(8)
        al = []
        for j in range(40):
            if j % 10 == 0:
                al.append([f'buffer_load_dwordx4 {vr(AB + 4 * j, 4)}, v{vAL}, {WS}, s{sAB + j // 10} offen sc1'])
            else:
                al.append([f's_add_u32 s{sT1}, s{sAB + j // 10}, {(j % 10) * 4 * QS}',
                           f'buffer_load_dwordx4 {vr(AB + 4 * j, 4)}, v{vAL}, {WS}, s{sT1} offen sc1'])
        al.append(f'buffer_load_dwordx4 {ar(CS, 4)}, v{vCS}, {WS}, s{sT2} offen sc1')
        al.append(f'buffer_load_dwordx4 {ar(CS + 4, 4)}, v{vCS}, {WS}, s{sT2} offen offset:256 sc1')
        al.append(f'buffer_load_dwordx4 {ar(CS + 8, 4)}, v{vCS}, {WS}, s{sT3} offen sc1')
        for _ in range(o['a_ahead']):
            a(al.pop(0))

        def rd(dst, slot, j):
            return f'ds_read_b128 {ar(dst, 4)}, v{vRD + slot} offset:{1024 * j}'

        def swaps(j):
            return [f'v_permlane16_swap_b32 v{AB + 4 * j + e}, v{AB + 4 * j + 2 + e}' for e in range(2)]

        def acc(slot):
            return vr(ACC + 16 * slot, 16)
        wtail = [f'ds_write_b128 v{vW5 + (i & 1)}, {ar(160 + 4 * i, 4)} offset:{(i >> 1) * 4096}' for i in range(20)]
        if o.get('nowt'):
            wtail = [[] for _ in wtail]
        C0, C1, R = vS, vS + 1, vS + 2
        c0 = -2.0 * 0.7978845608028654 * 1.4426950408889634
        G = ACC + 48
        gather = [f'buffer_load_dwordx2 {vr(G + 2 * s, 2)}, v{self.vPS}, {WS}, s{sU1} offen offset:{256 * s} sc1'
                  for s in range(8)]
        valid = [f'v_or3_b32 v{t}, v{G + 1}, v{G + 3}, v{G + 5}', f'v_or3_b32 v{t2}, v{G + 7}, v{G + 9}, v{G + 11}',
                 f'v_or3_b32 v{t}, v{t}, v{G + 13}, v{G + 15}', f'v_or_b32 v{t}, v{t}, v{t2}',
                 f'v_cmp_gt_i32 vcc, 0, v{t}']

        def chk_stats():
            slow, back = a.label('slow'), a.label('back')
            a('s_nop 1')
            a(f's_cbranch_vccnz {slow}')
            a(f'{back}:')

            def cold():
                top = a.label('top')
                a(f'{slow}:')
                with a.untracked():
                    a(f's_mov_b32 s{sSpin}, {SPIN}')
                    a(f'{top}:')
                    a(gather)
                    a('s_waitcnt vmcnt(0)')
                    a(valid)
                    a(f's_sub_u32 s{sSpin}, s{sSpin}, 1')
                    a(f's_cbranch_scc1 {back}')
                    a('s_nop 3')
                    a(f's_cbranch_vccnz {top}')
                    a(f's_branch {back}')
            self.cold.append(cold)
        halves = [
            f'v_add_f32 v{vS}, v{vS}, v{vS + 1}',
            f'v_add_f32 v{vS + 2}, v{vS + 2}, v{vS + 3}',
            f'v_mov_b32 v{vS + 1}, v{vS}',
            f'v_mov_b32 v{vS + 3}, v{vS + 2}',
            f'v_cmp_gt_u32 vcc, 32, v{L}',
            f'v_permlane32_swap_b32 v{vS}, v{vS + 1}',
            f'v_permlane32_swap_b32 v{vS + 2}, v{vS + 3}']
        pub = halves + [
            f'v_add_f32 v{G}, v{vS}, v{vS + 1}',
            f'v_add_f32 v{G + 1}, v{vS + 2}, v{vS + 3}',
            f'v_and_b32 v{G + 1}, 0x7fffffff, v{G + 1}',
            ['s_mov_b32 exec_hi, 0',
             f'buffer_store_dwordx2 {vr(G, 2)}, v{self.vPS}, {WS}, s{sU0} offen sc1',
             's_mov_b32 exec_hi, -1']]
        st = valid + [chk_stats]
        for w_ in range(2):
            g = G + w_
            st += [f'v_add_f32 v{g}, v{g}, v{g + 2}', f'v_add_f32 v{g + 4}, v{g + 4}, v{g + 6}',
                   f'v_add_f32 v{g + 8}, v{g + 8}, v{g + 10}', f'v_add_f32 v{g + 12}, v{g + 12}, v{g + 14}',
                   f'v_add_f32 v{vS + 2 * w_}, v{g}, v{g + 4}', f'v_add_f32 v{vS + 2 * w_ + 1}, v{g + 8}, v{g + 12}']
        st += halves + [
            f'v_add_f32 v{vS}, v{vS}, v{vS + 1}',
            f'v_add_f32 v{vS + 2}, v{vS + 2}, v{vS + 3}',
            f'v_mul_f32 v{vS}, {f32(-1 / 640)}, v{vS}',
            f'v_mul_f32 v{vS + 2}, {f32(1 / 640)}, v{vS + 2}',
            f'v_cvt_pk_bf16_f32 v{t}, v{vS}, v{vS}',
            f'v_fma_f32 v{R}, -v{vS}, v{vS}, v{R}',
            f'v_lshlrev_b32 v{t}, 16, v{t}',
            f'v_max_f32 v{R}, 0, v{R}',
            f'v_sub_f32 v{t2}, v{vS}, v{t}',
            f'v_add_f32 v{R}, {f32(1e-5)}, v{R}',
            f'v_cvt_pk_bf16_f32 v{t}, v{t}, v{t2}',
            f'v_rsq_f32 v{vS + 3}, v{R}',
            f'v_cndmask_b32 v{BP + 2}, 0, v{t}, vcc',
            f'v_cndmask_b32 v{BP + 3}, 0, v{t}, vcc',
            f'v_mul_f32 v{C0}, {f32(c0)}, v{vS + 3}',
            f'v_mul_f32 v{t}, v{vS + 3}, v{vS + 3}',
            f'v_mul_f32 v{t}, {f32(0.044715)}, v{t}',
            f'v_mul_f32 v{C1}, v{t}, v{C0}',
        ]

        def csm(tile, slot, first):
            b = vr(BP, 4) if tile & 1 else vr(BP + 2, 4)
            return f'v_mfma_f32_32x32x16_bf16 {acc(slot)}, {ar(CS + 4 * (tile >> 1), 4)}, {b}, {"0" if first else acc(slot)}'

        def pick(r0, r1):
            a(f's_set_gpr_idx_on s{sCB}, gpr_idx(SRC0)')
            a('s_nop 0')
            for r in range(r0, r1):
                a(f'v_mov_b32_e32 v{G + r}, v{AB + r}')
            a('s_set_gpr_idx_off')
        for j in range(2):
            for s in range(3):
                a(rd(RING1 + 12 * j + 4 * s, s, j))
        a(swaps(0))
        self.stamp('a0')
        p2 = [(3, 3, j) for j in range(40)] + [(4, 0, j) for j in range(40)] + [(5, 1, j) for j in range(40)]
        gq = list(gather)
        GJ, SJ = o.get('gather_j', 22), o.get('stat_j', 33)
        B1, B2 = 21, 33
        nwd1 = min(o.get('wd_p1', 6), 31 - o['wd_pre'])
        assert o['a_ahead'] <= (14 if o.get('defer', 2) == 2 else 23)
        for j in range(40):
            base = RING1 + 12 * (j & 1)
            self.stamp(f'p{j}')
            a.need(ar(base, 12))
            for s in range(3):
                c = '0' if j == 0 else acc(s)
                a(f'v_mfma_f32_32x32x16_bf16 {acc(s)}, {ar(base + 4 * s, 4)}, {vr(AB + 4 * j, 4)}, {c}')
                if j < 38:
                    a(rd(base + 4 * s, s, j + 2))
                else:
                    i = (j - 38) * 3 + s
                    if i < 4:
                        a(rd(RING2 + 4 * i, p2[i][1], p2[i][2]))
                if s == 0 and j < 39:
                    a(swaps(j + 1))
                if s == 1 and (B1 < j <= B1 + 10 or B2 < j):
                    a(wtail.pop(0))
                if s != 1 and j >= GJ and gq:
                    a(gq.pop(0))
                if s == 2:
                    if al:
                        a(al.pop(0))
                    elif nwd1 and not gq and j < o.get('wd1_hi', 40):
                        a(wd.pop(0))
                        nwd1 -= 1
                if j not in (8, 9) and ww:
                    if s == 0:
                        while len(ww[0]) > 1:
                            a(ww[0].pop(0))
                    if s == 1:
                        a(ww.pop(0))
                if s == 2 and j not in (7, 8) and ww:
                    a(ww[0].pop(0))
                    a(ww[0].pop(0))
                if j == 19 and s == 1:
                    assert not ww
                    for i in (0, 1, 4, 5):
                        a(f'v_mov_b32 v{BP + i}, 0')
                if j == 8 and s == 1:
                    pick(0, 4)
                if j == 9 and s == 1:
                    pick(4, 10)
                if j in (10, 11) and s != 1:
                    for _ in range(3):
                        if pub:
                            a(pub.pop(0))
                if j >= SJ:
                    for _ in range((3, 0 if j > B2 else 5, 4)[s]):
                        if st:
                            a(st.pop(0))
            if j in (B1, B2):
                a('s_barrier')
            if j == 9:
                for r in range(10):
                    a(f'v_dot2c_f32_bf16 v{vS + (r & 1)}, s{sOne}, v{G + r}')
                    a(f'v_dot2c_f32_bf16 v{vS + 2 + (r & 1)}, v{G + r}, v{G + r}')
        assert not pub and not al and not st
        a(st)
        RES, vRes, vRes2 = 200, vAL, vCS
        res_addr = [
            f'v_and_b32 v{vRes}, 15, v{L}',
            f'v_lshl_add_u32 v{vRes2}, v{vRes}, 4, s{sRes}',
            f'v_lshrrev_b32 v{vRes}, 4, v{L}',
            f'v_mad_u32_u24 v{vRes2}, v{vRes}, s{sQS}, v{vRes2}',
            f'v_mad_u32_u24 v{vRes}, v{vRes}, s{sQS}, v{vRes2}',
        ]
        a('s_barrier')
        for tl in range(3):
            a(csm(tl, tl, False))
            a(res_addr if tl == 0 else wtail.pop(0))
        self.stamp(9)

        def epi(tile, slot, packed=False):
            b = ACC + 16 * slot
            tm = [TM, TM + 1, TM + 2, TM + 3]
            ops = []
            for h in range(2):
                g, u = b + 8 * h, b + 8 * h + 4
                if packed:
                    P = lambda r, i: vr(r + 2 * i, 2)
                    cc, rr = vr(C0, 2), vr(R, 2)
                    ops += [(1, f'v_pk_mul_f32 {P(TM, i)}, {P(g, i)}, {P(g, i)}') for i in range(2)]
                    ops += [(1, f'v_pk_fma_f32 {P(TM, i)}, {P(TM, i)}, {cc}, {cc} op_sel:[0,1,0] op_sel_hi:[1,1,0]') for i in range(2)]
                    ops += [(1, f'v_pk_mul_f32 {P(u, i)}, {P(u, i)}, {P(g, i)}') for i in range(1)]
                    ops += [(1, f'v_pk_mul_f32 {P(TM, i)}, {P(TM, i)}, {P(g, i)}') for i in range(2)]
                    ops += [(2, f'v_exp_f32 v{tm[i]}, v{tm[i]}') for i in range(4)]
                    ops += [(1, f'v_pk_mul_f32 {P(u, i)}, {P(u, i)}, {P(g, i)}') for i in range(1, 2)]
                    ops += [(1, f'v_pk_fma_f32 {P(TM, i)}, {P(TM, i)}, {rr}, {rr} op_sel:[0,0,0] op_sel_hi:[1,0,0]') for i in range(2)]
                    ops += [(2, f'v_rcp_f32 v{tm[i]}, v{tm[i]}') for i in range(4)]
                    ops += [(1, f'v_pk_mul_f32 {P(u, i)}, {P(u, i)}, {P(TM, i)}') for i in range(2)]
                    ops += [(1, f'v_cvt_pk_bf16_f32 v{b + 2 * h + i}, v{u + 2 * i}, v{u + 2 * i + 1}') for i in range(2)]
                    continue
                ops += [(1, f'v_mul_f32 v{tm[i]}, v{g + i}, v{g + i}') for i in range(4)]
                ops += [(1, f'v_fma_f32 v{tm[i]}, v{tm[i]}, v{C1}, v{C0}') for i in range(4)]
                ops += [(1, f'v_mul_f32 v{tm[i]}, v{tm[i]}, v{g + i}') for i in range(4)]
                for i in range(4):
                    ops += [(2, f'v_exp_f32 v{tm[i]}, v{tm[i]}'), (1, f'v_mul_f32 v{u + i}, v{u + i}, v{g + i}')]
                ops += [(1, f'v_fma_f32 v{tm[i]}, v{tm[i]}, v{R}, v{R}') for i in range(4)]
                ops += [(2, f'v_rcp_f32 v{tm[i]}, v{tm[i]}') for i in range(4)]
                ops += [(1, f'v_mul_f32 v{u + i}, v{u + i}, v{tm[i]}') for i in range(4)]
                ops += [(1, f'v_cvt_pk_bf16_f32 v{b + 2 * h + i}, v{u + 2 * i}, v{u + 2 * i + 1}') for i in range(2)]
            so = sA if tile < 4 else sB
            txt = f'buffer_store_dwordx4 {vr(b, 4)}, v{vAS}, {WS}, s{so} offen offset:{(tile & 3) * 1024} sc1'
            ops.append((5, (lambda: a(txt, tag=f'act{tile}')) if not o.get('nost') else []))
            if o.get('noepi'):
                ops = [(c_, x if callable(x) else []) for c_, x in ops]
            return ops

        G2 = 72
        FR = [[8 + 4 * i for i in range(16)],
              [152 + 4 * i for i in range(4)] + [200 + 4 * i for i in range(8)] + [168 + 4 * i for i in range(4)],
              [8 + 4 * i for i in range(16)]]
        order = [[(c, lam) for lam in (3, 2, 1, 0) for c in range(4)]] * 3

        def act_ld(pi, n):
            c, lam = order[pi][n]
            if o.get('noact'):
                return []
            return [f's_add_u32 s{sT1}, s{sL[lam]}, {ACT + 2048 * kap[pi][c]}',
                    f'buffer_load_dwordx4 {vr(FR[pi][n], 4)}, v{vA2}, {WS}, s{sT1} offen sc1']

        def sig(pi, tag):
            def f():
                self.stamp(f'presig{pi}')
                a.need_tag(tag)
                if o.get('wgsig', 0) >> pi & 1:
                    l = a.label('nosig')
                    a('s_barrier')
                    a(f's_bitcmp1_b32 s{S_W}, 0')
                    a(f's_cbranch_scc1 {l}')
                    with a.untracked():
                        self.signal(f's{sF3s}')
                    a(f'{l}:')
                else:
                    self.signal(f's{sF3s}')
                self.stamp(f'sig{pi}')
                if pi < 2:
                    a(f's_add_u32 s{sF3s}, s{sF3s}, {32 * 256}')
            return f

        def poll_ld():
            return f'buffer_load_dword v{vFl}, off, {WS}, s{sF3p} sc1'

        def poll_chk(pi):
            def f():
                self.stamp(f'prechk{pi}')
                self.check(S_WS, f's{sF3p}', 0 if o.get('noe3', 0) >> pi & 1 else 16 if o.get('wgsig', 0) >> pi & 1 else 32, vFl)
                self.stamp(f'chk{pi}')
                if pi < 2:
                    a(f's_add_u32 s{sF3p}, s{sF3p}, {32 * 256}')
            return f
        RES, vRes, vRes2 = 200, vAL, vCS
        res_addr = [
            f'v_and_b32 v{vRes}, 15, v{L}',
            f'v_lshl_add_u32 v{vRes2}, v{vRes}, 4, s{sRes}',
            f'v_lshrrev_b32 v{vRes}, 4, v{L}',
            f'v_mad_u32_u24 v{vRes2}, v{vRes}, s{sQS}, v{vRes2}',
            f'v_mad_u32_u24 v{vRes}, v{vRes}, s{sQS}, v{vRes2}',
        ]
        res_ld = []
        for nt in range(5):
            q = 8 * (nt >> 1) + (nt & 1)
            res_ld.append([f's_mov_b32 s{sT6}, {HP4 + q * QS}',
                           f'buffer_load_dwordx2 {vr(RES + 2 * nt, 2)}, v{vRes2 if nt == 4 else vRes}, {WS}, s{sT6} offen sc1'])
        slot_of = {0: 0, 1: 1, 2: 2, 3: 3, 4: 0, 5: 1}
        eq = epi(0, 0) + epi(1, 1) + epi(2, 2)
        budget = 0.0
        RATE = o['epi_rate']
        extra = {i: [] for i in range(120)}
        first_w = wtail.pop(0)
        for k in range(len(wtail)):
            extra[k].append(wtail[k])
        extra[30].append('s_barrier')
        nwd = len(wd) - o.get('wd_post', 12)
        done = 60 - len(wd)
        lo, hi = o.get('wd_lo', 4), o.get('wd_hi', 78)
        hold = None
        for k in range(nwd):
            g = wd.pop(0)
            p = lo + (k * (hi - lo)) // nwd
            fr = done + k
            if fr == 39:
                extra[81].append([f's_mov_b32 s{sT6}, {WDF + 5120 * kap[1][3]}', g[-1].replace(f's{sWoff} offen', f's{sT6} offen')] if g else [])
                continue
            assert fr < 56 or p > 14
            extra[p].append(g)
        SA, SB = o.get('siga', 62), o.get('sigb', 104)
        extra[SA].append(sig(0, 'act1'))
        extra[o.get('lda', 86)].append(poll_ld())
        for k, x in enumerate(res_ld):
            extra[o.get('res_at', 86) + 2 * k].append(x)
        ca = o.get('chka', 105)
        extra[ca].append(poll_chk(0))
        na = o.get('a_in', 7)
        for n in range(na):
            extra[ca + 1 + (n * (119 - ca)) // na].append(act_ld(0, n))
        extra[SB].append(sig(1, 'act3'))
        extra[50].append('s_barrier')

        def cost(x):
            if callable(x):
                return 3
            if isinstance(x, (list, tuple)):
                return sum(cost(y) for y in x)
            return 5 if x.startswith('ds_write') else 2 if x.startswith('buffer') or x == 's_barrier' else 1
        CAP = o.get('cap', 6.6)
        for i, (tile, ls, j) in enumerate(p2):
            slot = slot_of[tile]
            self.stamp(f'q{i}')
            if j == 0:
                a(csm(tile, slot, True))
                if i == 0:
                    a(first_w)
                if i:
                    budget = 6
                    while eq and budget >= eq[0][0]:
                        cst, x = eq.pop(0)
                        budget -= cst
                        a(x)
            if i & 1 == 0:
                a.need(ar(RING2 + 4 * (i & 3), 8))
            a(f'v_mfma_f32_32x32x16_bf16 {acc(slot)}, {ar(RING2 + 4 * (i & 3), 4)}, {vr(AB + 4 * j, 4)}, {acc(slot)}')
            if i + 4 < len(p2):
                a(rd(RING2 + 4 * (i & 3), p2[i + 4][1], p2[i + 4][2]))
            a(extra[i])
            if i == 42:
                eq += epi(3, 3)
            if i == 82:
                eq += epi(4, 0)
                if o.get('st4_late'):
                    st4 = eq.pop()[1]
            if i >= 1:
                budget = min(budget, 1.0) + CAP - 1 - (i & 1) - cost(extra[i])
                budget = max(budget, -1)
                while eq and budget >= min(eq[0][0], 2):
                    cst, x = eq.pop(0)
                    budget -= cst
                    a(x)
                    if callable(x) and o.get('verbose'):
                        print('store at gap', i)
                if i == 39:
                    assert len(eq) <= 2 * 69, len(eq)
                if i == SA - 1:
                    assert len(eq) <= 2 * 69, len(eq)
                if i == 79:
                    assert len(eq) <= 2 * 69, len(eq)
                if i == o.get('res_at', 86) - 1:
                    assert len(eq) <= 2 * 69, len(eq)
                if i == SB - 1:
                    assert len(eq) <= 69, len(eq)
            if j == 39:
                self.stamp(f't{tile}')
        for cst, x in eq:
            a(x)
        a(f's_mov_b32 s{sT0}, 0xffff0000')
        for i in range(10):
            a(f'v_lshlrev_b32 v{G2 + 2 * i}, 16, v{RES + i}')
            a(f'v_and_b32 v{G2 + 2 * i + 1}, s{sT0}, v{RES + i}')
        e5 = epi(5, 1, o.get('pk5', 1))
        LA = o.get('la2', 12)
        rest = [act_ld(0, n) for n in range(na, LA)]
        if o.get('ldb', -1) < 0:
            rest.append(poll_ld())
        if o.get('st4_late'):
            rest.append(st4)
        k = 0
        for i, (cst, x) in enumerate(e5):
            while k < len(rest) and (k + 1) * (len(e5) - 1) <= i * len(rest):
                a(rest[k])
                k += 1
            a(x)
        assert k == len(rest)
        self.stamp(10)

        vOut, vRR, vRW, vTW, vTR = 4, 7, 232, 238, 242
        RED = 2 * TILE
        setup = [
            f's_movk_i32 s{sT6}, {16 * 1280 - 160}',
            f's_movk_i32 s{sT5}, 6554',
            f's_movk_i32 s{sT4}, 176',
            f's_mul_i32 s{sT3}, s{S_W}, {16 * 176}',
            f'v_and_b32 v{t}, 15, v{L}',
            f'v_lshrrev_b32 v{t2}, 4, v{L}',
            f'v_mov_b32 v{vTW + 1}, s{sT3}',
            f'v_mad_u32_u24 v{vTW + 1}, v{t}, s{sT4}, v{vTW + 1}',
            f'v_lshl_add_u32 v{vTW}, v{t2}, 4, v{vTW + 1}',
            f'v_lshl_add_u32 v{vTW + 1}, v{t2}, 3, v{vTW + 1}',
        ]
        setup += [f'v_mul_u32_u24 v{t2}, s{sT5}, v{L}',
                  f'v_lshrrev_b32 v{t2}, 16, v{t2}',
                  f'v_lshl_add_u32 v{vOut}, v{L}, 4, s{sOutB}',
                  f'v_mad_u32_u24 v{vOut}, v{t2}, s{sT6}, v{vOut}',
                  f'v_add_u32 v{t}, v{L}, v{t2}',
                  f'v_lshl_add_u32 v{vTR}, v{t}, 4, s{sT3}',
                  f's_mov_b32 s{sT4}, {6 * 16 * 1280}',
                  f's_mov_b32 s{sT5}, {12 * 16 * 1280}']
        for lam in range(4):
            setup += [f's_xor_b32 s{sT0}, s{S_W}, {lam}', f's_mul_i32 s{sT0}, s{sT0}, {15 * 1024}',
                      f's_add_u32 s{sT0}, s{sT0}, {RED + (lam - 1) * 5120 if lam else RED}',
                      f'v_lshl_add_u32 v{vRW + lam - 1 if lam else vRR}, v{L}, 4, s{sT0}']

        def mf2(pi, n, nt):
            c, lam = order[pi][n]
            d = vr(G2 + 4 * (5 * lam + nt), 4)
            cin = '0' if (pi == 0 and c == 0 and lam != 0) else d
            return f'v_mfma_f32_16x16x32_bf16 {d}, {ar(4 * (5 * (4 * pi + c) + nt), 4)}, {vr(FR[pi][n], 4)}, {cin}'
        ex = [{i: [] for i in range(80)} for _ in range(3)]
        for k, x in enumerate(setup):
            ex[0][k].append(x)
        def put(pos, x):
            ex[pos // 80][pos % 80].append(x)
        if o.get('ldb', -1) >= 0:
            put(o['ldb'], poll_ld())
        cb_, cc_ = o.get('chkb', 5 * (16 - LA)), 80 + o.get('chkc', 44)
        put(cb_, [poll_chk(1), lambda: self.stamp('chkb')])
        put(o.get('sigc', 40), [sig(2, 'act5'), lambda: self.stamp('sigc')])
        put(80 + o.get('ldc', 28), poll_ld())
        put(cc_, [lambda: self.stamp('chkc0'), poll_chk(2), lambda: self.stamp(11)])
        pos = 0
        for g in range(LA, 48):
            pos = max(pos + (o.get('burst', 2) if g >= 16 else 0), o.get('g_gap', 5) * (g - LA) if g < 32 else 5 * (g - LA),
                      cb_ if g >= 16 else 0, cc_ if g >= 32 else 0)
            assert pos < 20 * (g // 4)
            put(pos, act_ld(g // 16, g % 16))
            if g < 32 and wd and 32 - g <= len(wd) + o.get('wdp_early', 0):
                put(pos + 2, wd.pop(0))
        assert not wd
        chain = o.get('chain', 1)
        for blk, lam in enumerate((3, 2, 1)):
            for nt in range(5):
                ex[2][20 * blk + 4 * nt + 12 if chain else 20 * (blk + 1) + 5 + 2 * nt].append(
                    f'ds_write_b128 v{vRW + lam - 1}, {vr(G2 + 4 * (5 * lam + nt), 4)} offset:{1024 * nt}')
        for pi in range(3):
            for i in range(80):
                if chain:
                    a(mf2(pi, 4 * (i // 20) + (i & 3), i % 20 // 4))
                else:
                    a(mf2(pi, i // 5, i % 5))
                self.stamp(f'm{80 * pi + i}')
                a(ex[pi][i])
            self.stamp('end' + 'ABC'[pi])
        a('s_waitcnt lgkmcnt(0)')
        a('s_barrier')
        self.stamp('redbar')
        RD, RR = 152, 8
        for nt in range(5):
            for s in range(3):
                a(f'ds_read_b128 {vr(RD + 12 * nt + 4 * s, 4)}, v{vRR} offset:{5120 * s + 1024 * nt}')
        sc = ' sc1' if o['out_sc1'] else ''
        for nt in range(5):
            b = RD + 12 * nt
            c = G2 + 4 * nt
            for p in range(2):
                a(f'v_pk_add_f32 {vr(c + 2 * p, 2)}, {vr(c + 2 * p, 2)}, {vr(b + 2 * p, 2)}')
                a(f'v_pk_add_f32 {vr(b + 4 + 2 * p, 2)}, {vr(b + 4 + 2 * p, 2)}, {vr(b + 8 + 2 * p, 2)}')
            for p in range(2):
                a(f'v_pk_add_f32 {vr(c + 2 * p, 2)}, {vr(c + 2 * p, 2)}, {vr(b + 4 + 2 * p, 2)}')
            for p in range(2):
                a(f'v_cvt_pk_bf16_f32 v{RR + 2 * nt + p}, v{c + 2 * p}, v{c + 2 * p + 1}')
            if nt & 1:
                a(f'ds_write_b128 v{vTW}, {vr(RR + 2 * nt - 2, 4)} offset:{64 * (nt >> 1)}')
            if nt == 4:
                a(f'ds_write_b64 v{vTW + 1}, {vr(RR + 8, 2)} offset:128')
        for k in range(3):
            a(f'ds_read_b128 {vr(RR + 12 + 4 * k, 4)}, v{vTR} offset:{6 * 176 * k}')
        a('s_mov_b32 exec_hi, 0xfffffff')
        for k in range(3):
            if k == 2:
                a('s_mov_b32 exec_hi, 0xff')
            a(f'buffer_store_dwordx4 {vr(RR + 12 + 4 * k, 4)}, v{vOut}, {sr(S_OUT, 4)}, {("0", f"s{sT4}", f"s{sT5}")[k]} offen{sc}')
        a('s_mov_b32 exec_hi, -1')
        lz = a.label('nz')
        a('s_cmp_lg_u32 s2, 0')
        a(f's_cbranch_scc1 {lz}')
        with a.untracked():
            a(f'buffer_store_dword v{BP}, off, {sr(S_DBG, 4)}, 0 sc1')
            a('s_load_dwordx16 s[4:19], s[0:1], 40')
            a('s_waitcnt lgkmcnt(0)')
            for i in range(8):
                a(f'v_mov_b32 v1, s{4 + 2 * i}')
                a(f'buffer_store_dword v1, off, {sr(S_DBG, 4)}, 0 offset:{4 + 4 * i}')
        a(f'{lz}:')
        if self.diag:
            self.stamp('outst')
            a('s_waitcnt vmcnt(0)')
            self.stamp(12)
            a('s_waitcnt lgkmcnt(0)')
            with self.wave0():
                a(f's_lshl_b32 s{sT0}, s2, 7')
                a(f's_add_u32 s{sT0}, s{sT0}, {STAMP}')
                for i in range(NSTAMP):
                    a(f'v_mov_b32 v0, s{S_STAMP + 2 * i}')
                    a(f'buffer_store_dword v0, off, {WS}, s{sT0} offset:{4 * i}')
        if self.opt.get('fixt'):
            with a.untracked():
                a(f's_cmp_lg_u32 s2, {self.opt.get("fixwg", 0)}')
                a('s_cbranch_scc1 .Lend')
                a(f's_cmp_lg_u32 s{S_W}, 0')
                a('s_cbranch_scc1 .Lend')
                a(f's_sub_u32 s{sT2}, s{S_STAMP + 2 * self.opt.get("fixs", 0)}, s{S_STAMP + 2 * self.opt.get("fixb", 0)}')
                a(f's_mul_i32 s{sT2}, s{sT2}, 10')
                if 'wsb' in self.opt:
                    a(f's_lshr_b32 s{sT2}, s{S_WS}, {self.opt["wsb"]}')
                    a(f's_and_b32 s{sT2}, s{sT2}, 31')
                    a(f's_mul_i32 s{sT2}, s{sT2}, 500')
                if 'xcc' in self.opt:
                    a(f's_getreg_b32 s{sT2}, hwreg(HW_REG_XCC_ID)')
                    a(f's_add_u32 s{sT2}, s{sT2}, {self.opt["xcc"]}')
                    a(f's_and_b32 s{sT2}, s{sT2}, 7')
                    a(f's_mul_i32 s{sT2}, s{sT2}, 1000')
                a(f's_min_u32 s{sT2}, s{sT2}, 100000')
                a(f's_add_u32 s{sT2}, s{sT2}, {self.opt["fixt"]}')
                a('.Lfix:')
                a(f's_memrealtime {sr(sT0, 2)}')
                a('s_waitcnt lgkmcnt(0)')
                a(f's_sub_u32 s{sT0}, s{sT0}, s{S_STAMP}')
                a(f's_cmp_lt_u32 s{sT0}, s{sT2}')
                a('s_cbranch_scc1 .Lfix')
        a('.Lend:')
        a('s_endpgm')

    def build(self):
        a = self.a
        if self.diag:
            for i in range(2 * NSTAMP):
                a(f's_mov_b32 s{S_STAMP + i}, 0')
        self.prologue()
        self.conv()
        self.gemms()
        self.side()
        for c in self.cold:
            a.fresh()
            a('s_nop 7')
            c()
        a('.Lcode_end:')
        a('s_endpgm')
        pads = (self.opt.get('base', 0x300), NPAD, sr(sRet, 2), '.Lend', self.opt.get('pstride', 4096)) if self.opt['pads'] else None
        body = a.finish(verbose=True, align=self.opt.get('align', 1), pads=pads)
        body += '.p2align 12\n    s_endpgm\n'
        ref = open('cdna_kernels/' + NAME + '.s.ref').read().split('\n')
        head = [l for l in ref if l.startswith(';') and '@launch' not in l and 'Override' not in l and 'grid=ceil' not in l]
        txt = '\n'.join(head) + '\n'
        txt += '; One persistent launch: kv/transposition -> Toeplitz-MFMA long conv -> gate/up GEMM + GEGLU -> down GEMM.\n'
        txt += '; @launch grid=(256,1,1) block=(256,1,1) lds=163840\n'
        txt += f'''.amdgcn_target "amdgcn-amd-amdhsa--gfx950"
.text
.globl {NAME}_kernel
.p2align 8
.type {NAME}_kernel,@function
{NAME}_kernel:
{body}.section .rodata,"a"
.p2align 6
.amdhsa_kernel {NAME}_kernel
  .amdhsa_next_free_vgpr 512
  .amdhsa_next_free_sgpr 102
  .amdhsa_accum_offset 256
  .amdhsa_group_segment_fixed_size 0
  .amdhsa_kernarg_size 104
  .amdhsa_user_sgpr_count 2
  .amdhsa_user_sgpr_kernarg_segment_ptr 1
  .amdhsa_system_sgpr_workgroup_id_x 1
  .amdhsa_float_denorm_mode_32 3
.end_amdhsa_kernel
'''
        return txt


if __name__ == '__main__':
    out = sys.argv[1]
    diag = 'diag' in sys.argv[2:]
    opt = {}
    for x in sys.argv[2:]:
        if '=' in x:
            k, v = x.split('=')
            try:
                v = int(v)
            except ValueError:
                try:
                    v = float(v)
                except ValueError:
                    pass
            opt[k] = v
    open(out, 'w').write(Gen(diag, opt).build())
```

```python
import struct
import sys
from asmlib import Asm, vr, ar, sr

NAME = 'sequential_preLN__ssm_conv_h3__geglu_ffn__prompt'

QS = 16384
CNT = 0
ST1 = 49152
CSF = 65536
STAMP = 98304
PST = 131072
W45F = PST + 262144
KVX = W45F + 1310720
XP4 = KVX + 160 * QS
HP4 = XP4 + 160 * QS
WDF = HP4 + 160 * QS
ACT = WDF + 1966080
WS_END = ACT + 6291456
C_F1, C_FX, C_FW, C_FXR, C_B1, C_B2, C_FWR, C_F3 = 0, 10, 18, 26, 34, 42, 50, 64
SPIN = 100000

S_W = 3
S_K, S_V, S_SH, S_SK, S_X, S_WG, S_WU, S_WD, S_OUT, S_DBG, S_WS = 4, 8, 12, 16, 20, 24, 28, 32, 36, 40, 44
S_D = 48
sX, sJ, sG, sM, sQ, sRB, sCB, sA, sB, sRot = 50, 51, 52, 53, 54, 55, 56, 57, 58, 59
sT0, sT1, sT2, sT3, sT4, sT5, sT6, sT7 = 60, 61, 62, 63, 64, 65, 66, 67
sWoff, sWoff2, sSpin, sDv = 68, 69, 70, 71
sOne, sU0, sU1, sU2 = 72, 73, 74, 75
sRet = 48
NPAD = 8
S_STAMP = 76
NSTAMP = 13
sAB = 4
sL = [8, 9, 10, 11]
sPL, sPH, sFW, sSide, sArr = 16, 17, 18, 19, 23
sE = [None, 12, 13, 14]

GSTR = 4128
GW = 4 * GSTR
UBASE = 4 * GW
USTR = 4608
TILE = 40960
WS = sr(S_WS, 4)


def f32(x):
    return '0x%08x' % struct.unpack('<I', struct.pack('<f', x))[0]


class Gen:
    def __init__(self, diag=False, opt=None):
        self.a = Asm()
        self.diag = diag
        self.opt = dict(place=1, w_kv=0, w_e1=10, apoll=9, w_u=0, tb_pre=4, tb_mid=0, ssm=1, defer=0, wdp_from=24, a_ahead=14, sig='v', epi_rate=4.5,
                        fx_it=3, early_n=0, out_sc1=1, pads=1, wd_pre=20, wd_post=4, l2=10, wd_p1=11, chkb=40, sigc=39, wd_pre1=8, arr='s')
        if opt:
            self.opt.update(opt)
        self.cold = []

    PROF = {
        'main': [0, 1, 2, 3, 4, 5, 6, 7, 8, 9, 10, 11, 12],
        'front': [0, 'karg', 'issued', 1, 'kvdone', 2, 'tbpre', 'drained', 3, 'tbpost', 4, 'uload', 5],
        'e2': [0, 6, 'zbar', 7, 'hbar', 'hissued', 'hdrained', 'hbar2', 'arrived', 'wwritten', 'polled', 8, 'a0'],
        'g1': [0, 8, 'a0', 'p8', 'p16', 'p24', 'p32', 9, 't3', 't4', 't5', 10, 12],
        'g2a': [0, 't5', 10, 'm4', 'prechk1', 'chk1', 'm24', 'presig2', 'sig2', 'm44', 'm64', 'endA', 'm84'],
        'sum': [0, 'x1', 'x2', 'x3', 'x4', 'x5', 'x6', 7, 8, 'x9', 'x10', 'x11', 12],
        'side': [0, 'sx_in', 'sx_issued', 'sx_data', 'sx_bar', 'sx_st', 'sx_ld2', 'sx_dr', 1, 2, 6, 7, 8],
        'loop': [0, 4, 5, 'it1', 'it2', 'it3', 'it4', 'it5', 'it6', 'it7', 6, 7, 8],
        'g1b': [0, 9, 'q10', 'q20', 't3', 'presig0', 'sig0', 't4', 'prechk0', 'chk0', 'presig1', 'sig1', 't5'],
        'g2': [0, 't5', 10, 'chkb', 'sigc', 'endA', 'chkc0', 11, 'endB', 'endC', 'redbar', 'outst', 12],
    }

    def stamp(self, i):
        prof = self.PROF[self.opt.get('prof', 'main')]
        if self.diag and i in prof:
            i = prof.index(i)
            self.a(f'{"s_memtime" if self.opt.get("cyc") else "s_memrealtime"} {sr(S_STAMP + 2 * i, 2)}')

    def spin_atomic(self, soff, target, depth, vt):
        a = self.a
        top, done = a.label('spin'), a.label('done')
        with a.untracked():
            a(f's_mov_b32 s{sSpin}, {SPIN}')
            for d in range(depth - 1):
                a(f'v_mov_b32 v{vt + d}, 0')
                a(f'buffer_atomic_add v{vt + d}, off, {WS}, {soff} sc0 sc1')
                a(f's_sleep {self.opt.get("pslp", 3)}')
            a(f'{top}:')
            for d in range(depth):
                n = (d + depth - 1) % depth
                a(f'v_mov_b32 v{vt + n}, 0')
                a(f'buffer_atomic_add v{vt + n}, off, {WS}, {soff} sc0 sc1')
                a(f's_waitcnt vmcnt({depth - 1})')
                a(f'v_readfirstlane_b32 s{sT7}, v{vt + d}')
                a(f's_cmp_ge_u32 s{sT7}, {target}')
                a(f's_cbranch_scc1 {done}')
            a(f's_sub_u32 s{sSpin}, s{sSpin}, 1')
            a(f's_cbranch_scc0 {top}')
            a(f'{done}:')

    def spin(self, srd, soff, target, vt):
        a = self.a
        top, done = a.label('spin'), a.label('done')
        with a.untracked():
            a(f's_mov_b32 s{sSpin}, {SPIN}')
            a(f'{top}:')
            a(f'buffer_load_dword v{vt}, off, {sr(srd, 4)}, {soff} sc1')
            a('s_waitcnt vmcnt(0)')
            a(f'v_readfirstlane_b32 s{sT7}, v{vt}')
            a(f's_sub_u32 s{sSpin}, s{sSpin}, 1')
            a(f's_cbranch_scc1 {done}')
            a(f's_cmp_lt_u32 s{sT7}, {target}')
            a(f's_cbranch_scc1 {top}')
            a(f'{done}:')

    def check(self, srd, soff, target, vt):
        a = self.a
        slow, back = a.label('slow'), a.label('back')
        a(f'v_readfirstlane_b32 s{sT7}, v{vt}')
        a(f's_cmp_lt_u32 s{sT7}, {target}')
        a(f's_cbranch_scc1 {slow}')
        a(f'{back}:')

        def cold():
            a(f'{slow}:')
            self.spin(srd, soff, target, vt)
            a(f's_branch {back}')
        self.cold.append(cold)

    def wave0(self):
        g = self

        class W:
            def __enter__(s):
                s.l = g.a.label('nw0')
                g.a(f's_cmp_lg_u32 s{S_W}, 0')
                g.a(f's_cbranch_scc1 {s.l}')
                s.u = g.a.untracked()
                s.u.__enter__()
                g.a('s_mov_b64 exec, 1')

            def __exit__(s, *x):
                g.a('s_mov_b64 exec, -1')
                s.u.__exit__()
                g.a(f'{s.l}:')
        return W()

    def warm(self, sets):
        if not self.opt['pads']:
            return
        a = self.a
        for w, ks in enumerate(sets):
            if not ks:
                continue
            l = a.label('nw')
            a(f's_cmp_lg_u32 s{S_W}, {w + 1}')
            a(f's_cbranch_scc1 {l}')
            for k in ks:
                a(f's_call_b64 {sr(sRet, 2)}, .Lpad_{k}')
            a(f'{l}:')

    def arrive_start(self, items, pre=None):
        a = self.a
        l = a.label('noarr')
        for r, _ in items:
            a(f's_mov_b32 s{r}, 1')
        a(f's_cmp_lg_u32 s{S_W}, 0')
        a(f's_cbranch_scc1 {l}')
        with a.untracked():
            if pre:
                pre()
            a(f's_lshl_b32 s{sSpin}, s{sX}, 8')
            for r, line in items:
                a(f's_atomic_add s{r}, {sr(S_WS, 2)}, s{sSpin} offset:{line * 256} glc')
        a(f'{l}:')

    def arrive_finish(self, items, vt):
        a = self.a
        a('s_waitcnt lgkmcnt(0)')
        for r, last, rep in items:
            l = a.label('notlast')
            a(f's_cmp_lg_u32 s{r}, {last}')
            a(f's_cbranch_scc1 {l}')
            with a.untracked():
                a('s_mov_b64 exec, 0xff')
                a(f'v_lshlrev_b32 v{vt}, 8, v0')
                a(f's_mov_b32 s{sT7}, {rep * 256}')
                a(f'buffer_atomic_add v{self.vOne}, v{vt}, {WS}, s{sT7} offen sc1')
                a('s_mov_b64 exec, -1')
            a(f'{l}:')

    def two_level(self, soff, last, rep, scalar=False):
        a = self.a
        l = a.label('notlast')
        if scalar:
            a(f's_mov_b32 s{sT7}, 1')
            a(f's_atomic_add s{sT7}, {sr(S_WS, 2)}, {soff} glc')
            a('s_waitcnt lgkmcnt(0)')
        else:
            a(f'v_mov_b32 v{self.vTmp}, 1')
            a(f'buffer_atomic_add v{self.vTmp}, off, {WS}, {soff} sc0 sc1')
            a('s_waitcnt vmcnt(0)')
            a(f'v_readfirstlane_b32 s{sT7}, v{self.vTmp}')
        a(f's_cmp_lg_u32 s{sT7}, {last}')
        a(f's_cbranch_scc1 {l}')
        a('s_mov_b64 exec, 0xff')
        a(f'v_lshlrev_b32 v{self.vTmp}, 8, v0')
        a(f's_mov_b32 s{sT7}, {rep * 256}')
        a(f'buffer_atomic_add v{self.vOne}, v{self.vTmp}, {WS}, s{sT7} offen sc1')
        a(f'{l}:')

    def prologue(self):
        a = self.a
        a('s_cmp_ge_u32 s2, 0x100')
        a('s_cbranch_scc1 .Lend')
        self.stamp(0)
        for srd, off in ((S_K, 8), (S_WS, 96), (S_V, 16), (S_SH, 24), (S_SK, 32), (S_X, 0), (S_WG, 56), (S_WU, 64),
                         (S_WD, 72), (S_OUT, 80), (S_DBG, 88), (S_D, 40)):
            a(f's_load_dwordx2 {sr(srd, 2)}, s[0:1], {off}')
        a('v_lshrrev_b32 v1, 6, v0')
        a(f's_and_b32 s{sX}, s2, 7')
        a(f's_lshr_b32 s{sJ}, s2, 3')
        a(f'v_readfirstlane_b32 s{S_W}, v1')
        a('v_mov_b32 v1, v0')
        a('v_and_b32 v0, 63, v0')
        for srd, n in ((S_K, 2621440), (S_V, 2621440), (S_SH, 5120), (S_SK, 4096), (S_X, 2621440), (S_WG, 1966080),
                       (S_WU, 1966080), (S_WD, 1966080), (S_OUT, 2621440), (S_DBG, 256), (S_WS, WS_END)):
            a(f's_mov_b32 s{srd + 2}, {n}')
            a(f's_mov_b32 s{srd + 3}, 0x20000')
        a(f's_and_b32 s{sM}, s{sJ}, 15')
        a(f's_mov_b32 s{sG}, s{sX}')
        a(f's_cmp_lt_u32 s{sJ}, 16')
        a.snapshot('role')
        a('s_cbranch_scc1 .Lconv')
        a(f's_lshr_b32 s{sG}, s{sX}, 2')
        a(f's_add_u32 s{sG}, s{sG}, 8')
        a(f's_and_b32 s{sT0}, s{sX}, 3')
        a(f's_lshl2_add_u32 s{sM}, s{sT0}, s{sM}')
        a(f's_cmp_lt_u32 s{sJ}, 20')
        a('s_cbranch_scc1 .Lconv')
        with a.untracked():
            a(f's_cmp_lg_u32 s2, {self.opt.get("initwg", 208)}')
            a('s_cbranch_scc1 .Lnoinit')
            a('v_lshrrev_b32 v2, 3, v1')
            a('v_and_b32 v3, 7, v0')
            a('v_lshlrev_b32 v3, 4, v3')
            a('v_lshl_add_u32 v2, v2, 8, v3')
            for i in range(4):
                a(f'v_mov_b32 v{4 + i}, 0')
            a(f's_movk_i32 s{sT0}, 0x2000')
            a('s_waitcnt lgkmcnt(0)')
            a.fresh()
            a(f'buffer_store_dwordx4 v[4:7], v2, {WS}, 0 offen sc1')
            a(f'buffer_store_dwordx4 v[4:7], v2, {WS}, s{sT0} offen sc1')
            a('v_mov_b32 v3, 1')
            a('s_waitcnt vmcnt(0)')
            a('s_barrier')
            a(f's_cmp_lg_u32 s{S_W}, 0')
            a('s_cbranch_scc1 .Lside')
            a('s_mov_b64 exec, 1')
            a(f'buffer_store_dword v3, off, {sr(S_DBG, 4)}, 0 sc1')
            a('s_mov_b64 exec, -1')
            a('s_branch .Lside')
            a('.Lnoinit:')
            if self.opt.get('cpf', 1):
                a(f's_getpc_b64 {sr(sT0, 2)}')
                a('.Lpc:')
                a(f's_and_b32 s{sT2}, s{sJ}, 3')
                a(f's_lshl2_add_u32 s{sT2}, s{sT2}, s{S_W}')
                a(f's_mul_i32 s{sT2}, s{sT2}, {18 * 128}')
                a('v_min_u32 v2, 17, v0')
                a(f'v_lshl_add_u32 v2, v2, 7, s{sT2}')
                a('v_min_u32 v2, .Lcode_end-.Lpc-4, v2')
                a('v_mov_b32 v3, 0')
                a(f'v_lshl_add_u64 v[4:5], v[2:3], 0, {sr(sT0, 2)}')
                a('global_load_dword a253, v[4:5], off')
            a('s_branch .Lside')
        a('.Lconv:')
        a.fresh('role')

    def gemm_ids(self):
        a = self.a
        a(f's_lshr_b32 s{sRB}, s{sX}, 2')
        a(f's_lshr_b32 s{sT0}, s{sJ}, 2')
        a(f's_lshl3_add_u32 s{sRB}, s{sRB}, s{sT0}')
        a(f's_and_b32 s{sRot}, s{sX}, 3')
        a(f's_and_b32 s{sT0}, s{sJ}, 3')
        a(f's_lshl2_add_u32 s{sCB}, s{sRot}, s{sT0}')
        a(f's_and_b32 s{sT0}, s{sCB}, 1')
        a(f's_mul_i32 s{sA}, s{sCB}, 6')
        a(f's_add_u32 s{sB}, s{sA}, 4')
        a(f's_lshl1_add_u32 s{sA}, s{sT0}, s{sA}')
        a(f's_lshl_b32 s{sT1}, s{sT0}, 2')
        a(f's_sub_u32 s{sB}, s{sB}, s{sT1}')

    vWL, vWLb, vW45, vTmp, vTmp2, vOne, vPS = 254, 253, 252, 250, 249, 248, 251
    WRAW = [8, 40, 72, 104, 136]
    vWW = 236
    PT = 200

    def real_line(self, r, tmp):
        a = self.a
        if not self.opt.get('swz', 1):
            return
        a(f's_sub_u32 s{tmp}, s{r}, 3')
        a(f's_cmp_lt_u32 s{tmp}, 2')
        a(f's_cselect_b32 s{tmp}, 7, 0')
        a(f's_xor_b32 s{r}, s{r}, s{tmp}')
        a(f's_sub_u32 s{tmp}, s{r}, 10')
        a(f's_cmp_lt_u32 s{tmp}, 2')
        a(f's_cselect_b32 s{tmp}, 1, 0')
        a(f's_xor_b32 s{r}, s{r}, s{tmp}')

    def w_addr(self):
        a = self.a
        t = self.vTmp
        a(f's_lshr_b32 s{sT1}, s{sA}, 2')
        self.real_line(sT1, sT0)
        a(f's_lshl_b32 s{sT1}, s{sT1}, 7')
        a(f'v_and_b32 v{t}, 7, v0')
        a(f'v_lshl_add_u32 v{self.vWLb}, v{t}, 4, s{sT1}')
        a(f's_lshr_b32 s{sT0}, s{S_W}, 1')
        a(f's_lshl_b32 s{sT0}, s{sT0}, 6')
        a(f's_mul_i32 s{sWoff}, s{sRot}, 160')
        a(f's_add_u32 s{sWoff}, s{sWoff}, s{sT0}')
        a(f's_mul_i32 s{sT0}, s{sCB}, {80 * 1024}')
        a(f's_add_u32 s{sT0}, s{sT0}, {W45F}')
        a(f'v_lshl_add_u32 v{self.vW45}, v0, 4, s{sT0}')
        a(f's_mul_i32 s{sWoff2}, s{sRot}, 10')
        a(f's_add_u32 s{sWoff2}, s{sWoff2}, s{S_W}')
        a(f's_lshl_b32 s{sWoff2}, s{sWoff2}, 10')
        a(f'v_mov_b32 v{self.vOne}, 1')
        a(f's_lshl2_add_u32 s{sT0}, s{sRB}, s{S_W}')
        a(f's_lshl_b32 s{sT0}, s{sT0}, 12')
        a(f'v_and_b32 v{t}, 31, v0')
        a(f'v_lshl_add_u32 v{self.vPS}, v{t}, 3, s{sT0}')
        a(f'v_lshrrev_b32 v{t}, 5, v0')
        a(f'v_lshl_add_u32 v{self.vPS}, v{t}, 11, v{self.vPS}')

    def w_select(self):
        a = self.a
        a(f's_bitcmp1_b32 s{S_W}, 0')
        a(f's_cselect_b32 s{S_WG}, s{S_WU}, s{S_WG}')
        a(f's_cselect_b32 s{S_WG + 1}, s{S_WU + 1}, s{S_WG + 1}')
        for i in range(1, 4):
            a(f's_movk_i32 s{sE[i]}, {6144 * i}')
        a(f's_movk_i32 s15, 3072')

    def clear_pst(self, v2):
        return [f'v_mov_b32 v{v2}, -1', f'v_mov_b32 v{v2 + 1}, -1',
                f's_lshl_b32 s{sU0}, s{sCB}, 8', f's_add_u32 s{sU0}, s{sU0}, {PST}',
                ['s_mov_b32 exec_hi, 0',
                 f'buffer_store_dwordx2 {vr(v2, 2)}, v{self.vPS}, {WS}, s{sU0} offen sc1',
                 's_mov_b32 exec_hi, -1']]

    def w_loads_main(self, park=False):
        out = []
        t, t2 = self.vTmp, self.vTmp2
        for b in range(5):
            for e in range(8):
                g = []
                if e == 0:
                    g = [f'v_and_b32 v{t}, 56, v0', f'v_add_u32 v{t}, s{sWoff}, v{t}', f'v_subrev_u32 v{t2}, 640, v{t}',
                         f'v_min_u32 v{t}, v{t}, v{t2}', f'v_mad_u32_u24 v{self.vWL}, v{t}, s15, v{self.vWLb}',
                         f's_add_u32 s{sWoff}, s{sWoff}, 128']
                so = f's{sE[e >> 1]}' if e >> 1 else '0'
                dst = ar(208 + 4 * e, 4) if park and b == 4 else vr(self.WRAW[b] + 4 * e, 4)
                g.append(f'buffer_load_dwordx4 {dst}, v{self.vWL}, {sr(S_WG, 4)}, {so} offen offset:{3072 * (e & 1)}')
                out.append(g)
        return out

    def w_loads_tail(self):
        out = []
        for i in range(20):
            if i & 1:
                g = [f's_add_u32 s{sU1}, s{sWoff2}, {TILE}',
                     f'buffer_load_dwordx4 {ar(160 + 4 * i, 4)}, v{self.vW45}, {WS}, s{sU1} offen sc1']
            else:
                g = []
                if i:
                    g = [f's_add_u32 s{sWoff2}, s{sWoff2}, 4096',
                         [f's_sub_u32 s{sU1}, s{sWoff2}, {TILE}', f's_cselect_b32 s{sWoff2}, s{sWoff2}, s{sU1}']]
                g.append(f'buffer_load_dwordx4 {ar(160 + 4 * i, 4)}, v{self.vW45}, {WS}, s{sWoff2} offen sc1')
            out.append(g)
        return out

    def w_write_addr(self):
        a = self.a
        t, t2 = self.vTmp, self.vTmp2
        a(f's_lshr_b32 s{sT0}, s{S_W}, 1')
        a(f's_lshl_b32 s{sT0}, s{sT0}, 12')
        a(f's_and_b32 s{sT1}, s{S_W}, 1')
        a(f's_lshl_b32 s{sT1}, s{sT1}, 7')
        a(f's_add_u32 s{sT0}, s{sT0}, s{sT1}')
        a(f'v_lshrrev_b32 v{t}, 3, v0')
        a(f'v_lshl_add_u32 v{t}, v{t}, 9, s{sT0}')
        a(f'v_and_b32 v{t2}, 1, v0')
        a(f'v_lshl_add_u32 v{t}, v{t2}, 6, v{t}')
        a(f'v_bfe_u32 v{t2}, v0, 1, 2')
        a(f's_mov_b32 s{sT0}, {TILE + 16}')
        a(f'v_mad_u32_u24 v{self.vWW}, v{t2}, s{sT0}, v{t}')
        for q in range(1, 4):
            a(f'v_xor_b32 v{self.vWW + q}, {16 * q}, v{self.vWW}')
        a(f's_mov_b32 s{sPL}, 0x05040100')
        a(f's_mov_b32 s{sPH}, 0x07060302')

    def w_writes_main(self):
        out = []
        for b in range(5):
            for c8 in range(8):
                p = self.PT + 4 * (c8 & 3) if b < 5 - self.opt.get('defer', 2) else (228 if c8 & 1 else 242)
                r = self.WRAW[b] + (c8 >> 1)
                g = [f'v_perm_b32 v{p + d}, v{r + 8 * d + 4}, v{r + 8 * d}, s{sPH if c8 & 1 else sPL}' for d in range(4)]
                g.append(f'ds_write_b128 v{self.vWW + (c8 & 3)}, {vr(p, 4)} offset:{b * 8192 + (c8 >> 2) * 256}')
                out.append(g)
        return out

    def conv(self):
        a = self.a
        o = self.opt
        vK, vKh, vC, vR, vSHa, vL16 = 1, 2, 3, 4, 5, 6
        SH = 8
        KR = 16
        VR = 38
        WF = 56
        KF = 72
        O = 120
        SK = 136
        KV = 168
        VF = 200
        vSW, vSR, vKS, vG, vBa, vAa, vZR, vZR2, vUL, vUW, vI7, vGZ, vXS, vHS, vFl, vPrev = range(232, 248)
        ZERO, AD = 224, 240
        vAa2 = vZR2
        a(f's_lshl4_add_u32 s{sQ}, s{sG}, s{sM}')
        a(f'v_and_b32 v{vC}, 15, v0')
        a(f'v_lshrrev_b32 v{vR}, 4, v0')
        a(f's_lshl2_add_u32 s{sT0}, s{sM}, s{S_W}')
        a(f's_mul_i32 s{sT0}, s{sT0}, {32 * 1280}')
        a(f's_lshl_b32 s{sT1}, s{sG}, 7')
        a(f's_add_u32 s{sT0}, s{sT0}, s{sT1}')
        a(f's_movk_i32 s{sT2}, {8 * 1280}')
        a(f'v_lshl_add_u32 v{vK}, v{vC}, 3, s{sT0}')
        a(f'v_mad_u32_u24 v{vK}, v{vR}, s{sT2}, v{vK}')
        a(f'v_subrev_u32 v{vKh}, 3840, v{vK}')
        a(f's_lshl_b32 s{sT1}, s{sG}, 9')
        a(f'v_lshl_add_u32 v{vSHa}, v{vC}, 5, s{sT1}')
        a(f's_movk_i32 s{sT3}, 5120')
        a(f'v_lshlrev_b32 v{vL16}, 4, v0')

        def addr_phase_a():
            a(f'v_subrev_u32 v{vPrev}, 8, v{vL16}')
            a(f's_mul_i32 s{sT0}, s{S_W}, {USTR}')
            a(f's_add_u32 s{sT0}, s{sT0}, {UBASE}')
            a(f's_movk_i32 s{sT1}, 272')
            a(f'v_lshl_add_u32 v{vSW}, v{vR}, 4, s{sT0}')
            a(f'v_mad_u32_u24 v{vSW}, v{vC}, s{sT1}, v{vSW}')
            a(f'v_lshl_add_u32 v{vSR}, v{vC}, 4, s{sT0}')
            a(f'v_mad_u32_u24 v{vSR}, v{vR}, s{sT1}, v{vSR}')
            a(f'v_add_u32 v{vUW}, s{sT0}, v{vL16}')
            a(f's_add_u32 s{sT0}, s{sT0}, 32')
            a(f'v_lshl_add_u32 v{vBa}, v{vC}, 5, s{sT0}')
            a(f'v_lshl_add_u32 v{vBa}, v{vR}, 4, v{vBa}')
            a(f's_mul_i32 s{sT0}, s{sG}, {16 * QS}')
            a(f's_lshl2_add_u32 s{sT1}, s{sM}, s{S_W}')
            a(f's_lshl_b32 s{sT1}, s{sT1}, 8')
            a(f's_add_u32 s{sT0}, s{sT0}, s{sT1}')
            a(f's_mov_b32 s{sT1}, {QS}')
            a(f'v_lshl_add_u32 v{vKS}, v{vC}, 4, s{sT0}')
            a(f'v_mad_u32_u24 v{vKS}, v{vR}, s{sT1}, v{vKS}')

        def addr_rest():
            self.gemm_ids()
            self.w_addr()
            a(f's_mul_i32 s{sT5}, s{S_W}, {GW}')
            a(f'v_add_u32 v{vG}, s{sT5}, v{vL16}')
            a(f'v_bfe_u32 v{vAa}, v0, 2, 2')
            a(f'v_sub_u32 v{vAa}, v{vAa}, v{vR}')
            a(f'v_sub_u32 v{vAa}, v{vAa}, v{vR}')
            a(f's_add_u32 s{sT0}, s{sT5}, 56')
            a(f'v_lshl_add_u32 v{vAa}, v{vAa}, 3, s{sT0}')
            a(f'v_and_b32 v{vI7}, 3, v0')
            a(f's_movk_i32 s{sT1}, {GSTR}')
            a(f'v_mad_u32_u24 v{vAa}, v{vI7}, s{sT1}, v{vAa}')
            a(f'v_add_u32 v{vAa2}, 0x800, v{vAa}')
            a(f'v_and_b32 v{vGZ}, 16, v0')
            a(f'v_add_u32 v{vGZ}, s{sT5}, v{vGZ}')
            a(f'v_mad_u32_u24 v{vGZ}, v{vI7}, s{sT1}, v{vGZ}')
            a(f'v_and_b32 v{vI7}, 7, v0')
            a(f's_mul_i32 s{sT6}, s{sQ}, {QS}')
            a(f's_lshl_b32 s{sT1}, s{S_W}, 6')
            a(f's_add_u32 s{sT0}, s{sT6}, s{sT1}')
            a(f'v_and_b32 v{vUL}, 3, v0')
            a(f'v_lshl_add_u32 v{vUL}, v{vUL}, 4, s{sT0}')
            a(f'v_lshrrev_b32 v{vXS}, 2, v0')
            a(f'v_lshl_add_u32 v{vUL}, v{vXS}, 8, v{vUL}')
            a(f's_lshl_b32 s{sT0}, s{S_W}, 12')
            a(f'v_add_u32 v{vXS}, s{sT0}, v{vL16}')
            a(f's_add_u32 s{sT0}, s{sT0}, s{sT6}')
            a(f'v_add_u32 v{vHS}, s{sT0}, v{vL16}')
            a(f's_lshl_b32 s{sT0}, s{S_W}, 11')
            a(f'v_add_u32 v{vZR}, s{sT0}, v{vL16}')
            for i in range(4):
                a(f'v_mov_b32 v{ZERO + i}, 0')
        if o.get('addr_early', 0) >= 1:
            addr_phase_a()
        if o.get('addr_early', 0) >= 2:
            addr_rest()
        a.need(sr(S_WS, 2))
        self.stamp('karg')
        a(f'buffer_load_dwordx4 {vr(SH, 4)}, v{vSHa}, {sr(S_SH, 4)}, 0 offen')
        a(f'buffer_load_dwordx4 {vr(SH + 4, 4)}, v{vSHa}, {sr(S_SH, 4)}, 0 offen offset:16')
        for r in range(3):
            a(f'buffer_load_dwordx2 {vr(KR + 2 * r, 2)}, v{vKh}, {sr(S_K, 4)}, 0 offen offset:{r * 1280}')
        for r in range(8):
            so = f's{sT3}' if r >= 4 else '0'
            a(f'buffer_load_dwordx2 {vr(KR + 6 + 2 * r, 2)}, v{vK}, {sr(S_K, 4)}, {so} offen offset:{(r & 3) * 1280}')
            a(f'buffer_load_dwordx2 {vr(VR + 2 * r, 2)}, v{vK}, {sr(S_V, 4)}, {so} offen offset:{(r & 3) * 1280}')
        self.stamp('issued')
        if o.get('tlb'):
            a(f'v_lshlrev_b32 v228, {o["tlb"]}, v0')
            a(f'buffer_load_dword v229, v228, {WS}, 0 offen sc1')
            a(f'buffer_load_dword v228, v228, {sr(S_OUT, 4)}, 0 offen sc1')
        if o.get('addr_early', 0) < 1:
            addr_phase_a()
        if o.get('addr_early', 0) < 2:
            addr_rest()
        a(f's_lshl2_add_u32 s{sT0}, s{sQ}, s{S_W}')
        a(f's_lshl_b32 s{sT1}, s{sT0}, 12')
        a(f's_add_u32 s{S_SK}, s{S_SK}, s{sT1}')
        a(f's_addc_u32 s{S_SK + 1}, s{S_SK + 1}, 0')
        a(f's_lshl_b32 s{sT0}, s{sT0}, 1')
        a(f's_and_b32 s{sT0}, s{sT0}, -4')
        a(f's_load_dword s{sDv}, {sr(S_D, 2)}, s{sT0}')
        ssm = []
        for j in range(4):
            ssm.append(f'buffer_load_dwordx4 {vr(SK + 8 * j + 4, 4)}, v{vL16}, {sr(S_SK, 4)}, 0 offen offset:{1024 * j}')
            if j == 0:
                ssm.append(f'buffer_load_dwordx2 {vr(SK + 2, 2)}, v{vPrev}, {sr(S_SK, 4)}, 0 offen')
            else:
                ssm.append(f'buffer_load_dwordx2 {vr(SK + 8 * j + 2, 2)}, v{vL16}, {sr(S_SK, 4)}, 0 offen offset:{1024 * j - 8}')
        if o.get('ssm', 1) == 0:
            a(ssm)
        self.w_select()
        self.warm([[0], [1], []])
        park = o.get('park', 1)
        wl = self.w_loads_main(park)

        def w_some(n):
            for _ in range(n):
                a(wl.pop(0))
        a(f's_mov_b32 s{sT2}, 0xffff0000')
        for ch in range(4):
            for j in range(4):
                src = SH + 2 * ch + (j >> 1)
                if j & 1:
                    a(f'v_and_b32 v{WF + 4 * j + ch}, s{sT2}, v{src}')
                else:
                    a(f'v_lshlrev_b32 v{WF + 4 * j + ch}, 16, v{src}')

        def unpack(dst, src):
            a(f'v_lshlrev_b32 v{dst}, 16, v{src}')
            a(f'v_and_b32 v{dst + 1}, s{sT2}, v{src}')
            a(f'v_lshlrev_b32 v{dst + 2}, 16, v{src + 1}')
            a(f'v_and_b32 v{dst + 3}, s{sT2}, v{src + 1}')
        for r in range(3):
            unpack(KF + 4 * r, KR + 2 * r)
        self.stamp(1)
        for r in range(8):
            unpack(KF + 4 * (r + 3), KR + 2 * (r + 3))
            vf = VF + 4 * (r & 1)
            for j in (3, 2, 1, 0):
                for p in range(2):
                    d = vr(KV + 4 * r + 2 * p, 2)
                    k = vr(KF + 4 * (r + 3 - j) + 2 * p, 2)
                    w = vr(WF + 4 * j + 2 * p, 2)
                    if j == 3:
                        a(f'v_pk_mul_f32 {d}, {k}, {w}')
                    else:
                        a(f'v_pk_fma_f32 {d}, {k}, {w}, {d}')
                if j == 3:
                    unpack(vf, VR + 2 * r)
            for p in range(2):
                d = vr(KV + 4 * r + 2 * p, 2)
                a(f'v_pk_mul_f32 {d}, {d}, {vr(vf + 2 * p, 2)}')
            if o.get('ssm', 1) == 1:
                a(ssm.pop(0))
            if r & 1:
                d = (7 - r) >> 1
                for ch in range(4):
                    a(f'v_cvt_pk_bf16_f32 v{O + 4 * ch + d}, v{KV + 4 * r + ch}, v{KV + 4 * (r - 1) + ch}')
        self.stamp('kvdone')
        for ch in range(4):
            a(f'ds_write_b128 v{vSW}, {vr(O + 4 * ch, 4)} offset:{ch * 64}')
        for j in range(4):
            a(f'ds_read_b128 {vr(KV + 4 * j, 4)}, v{vSR} offset:{j * 1088}')
        a(f'buffer_load_dword v{vFl}, off, {sr(S_DBG, 4)}, 0 sc1')
        a(f's_mov_b32 s{sT0}, {KVX}')
        for j in range(4):
            a(f'buffer_store_dwordx4 {vr(KV + 4 * j, 4)}, v{vKS}, {WS}, s{sT0} offen sc1')
            if j < 3:
                a(f's_add_u32 s{sT0}, s{sT0}, {4 * QS}')
        self.stamp(2)
        if o.get('ssm', 1) == 2:
            a(ssm)
        a(f'ds_write_b128 v{vUW}, {vr(ZERO, 4)}')
        a(f'ds_write_b128 v{vGZ}, {vr(ZERO, 4)}')

        def table(j):
            D = SK + 8 * j
            Ea, Eb, Db = 184 + 12 * (j & 1), 184 + 12 * (j & 1) + 4, 184 + 12 * (j & 1) + 8

            def wr(rho, reg):
                a(f'ds_write_b128 v{vG}, {vr(reg, 4)} offset:{rho * GSTR + 1024 * j + 32}')
            wr(3, D + 4)
            for i in range(2):
                a(f'v_pk_mov_b32 {vr(Db + 2 * i, 2)}, {vr(D + 2 + 2 * i, 2)}, {vr(D + 4 + 2 * i, 2)} op_sel:[1,0]')
            for i in range(4):
                a(f'v_alignbit_b32 v{Ea + i}, v{D + 3 + i}, v{D + 2 + i}, 16')
            wr(1, Db)
            wr(0, Ea)
            for i in range(4):
                a(f'v_alignbit_b32 v{Eb + i}, v{D + 4 + i}, v{D + 3 + i}, 16')
            wr(2, Eb)
        w_some(o['w_kv'])
        n1, n2 = o['tb_pre'], o['tb_pre'] + o['tb_mid']
        for j in range(n1):
            table(j)
        a.need(f's{sDv}')
        a(f's_and_b32 s{sT1}, s{S_W}, 1')
        a(f's_lshl_b32 s{sT1}, s{sT1}, 4')
        a(f's_lshr_b32 s{sDv}, s{sDv}, s{sT1}')
        a(f's_and_b32 s{sDv}, s{sDv}, 0xffff')
        a(f'v_sub_u32 v5, 7, v{vI7}')
        a(f'v_and_b32 v7, 1, v5')
        a(f'v_lshlrev_b32 v7, 4, v7')
        a(f'v_lshlrev_b32 v7, v7, s{sDv}')
        a(f'v_bfe_u32 v1, v0, 3, 1')
        a(f'v_add_u32 v1, 2, v1')
        a(f'v_cmp_eq_u32 vcc, v1, v{vR}')
        a(f'v_cndmask_b32 v7, 0, v7, vcc')
        a(f'v_lshrrev_b32 v5, 1, v5')
        for d in range(4):
            a(f'v_cmp_eq_u32 vcc, {d}, v5')
            a(f'v_cndmask_b32 v1, 0, v7, vcc')
            a(f'v_accvgpr_write_b32 a{AD + d}, v1')
        self.stamp('tbpre')
        a.drain_stores()
        self.stamp('drained')
        a('s_barrier')
        self.stamp(3)
        a(f's_lshl_b32 s{sT0}, s{sG}, 8')
        with self.wave0():
            self.check(S_DBG, '0', 1, vFl)
            if o.get('apoll') == 9:
                a(f's_mov_b32 s{sU2}, 1')
                a(f's_atomic_add s{sU2}, {sr(S_WS, 2)}, s{sT0} glc')
            else:
                a(f'buffer_atomic_add v{self.vOne}, off, {WS}, s{sT0} sc1')
        w_some(o['w_e1'])
        for j in range(n1, n2):
            table(j)
        ACC = 128
        BUF = (0, 64)
        XR, SR, XF = 136, 152, 168

        def rdA(it, t):
            o0 = 8 * it + 64 * (t & 3)
            return f'ds_read2_b64 {ar(BUF[it & 1] + 4 * t, 4)}, v{vAa2 if t & 4 else vAa} offset0:{o0} offset1:{o0 + 1}'

        def rdB(it, t):
            return f'ds_read_b128 {ar(BUF[it & 1] + 32 + 4 * t, 4)}, v{vBa} offset:{448 - 64 * it + 512 * t}'
        if n2 == 4:
            for t in range(8):
                a(rdA(0, t))
        self.stamp('tbpost')
        self.warm([[2], [], []])
        with self.wave0():
            if o.get('apoll') == 9:
                top, done = a.label('spin'), a.label('done')
                a(f's_mov_b32 s{sSpin}, {SPIN}')
                a('s_waitcnt lgkmcnt(0)')
                a(f's_cmp_ge_u32 s{sU2}, 15')
                a(f's_cbranch_scc1 {done}')
                a(f'{top}:')
                a(f's_mov_b32 s{sU2}, 0')
                a(f's_atomic_add s{sU2}, {sr(S_WS, 2)}, s{sT0} glc')
                a(f's_sub_u32 s{sSpin}, s{sSpin}, 1')
                a(f's_cbranch_scc1 {done}')
                a('s_waitcnt lgkmcnt(0)')
                a(f's_cmp_lt_u32 s{sU2}, 16')
                a(f's_cbranch_scc1 {top}')
                a(f'{done}:')
                a('s_waitcnt lgkmcnt(0)')
            elif o.get('apoll'):
                self.spin_atomic(f's{sT0}', 16, o['apoll'], 1)
            else:
                self.spin(S_WS, f's{sT0}', 0 if o.get('noe1') else 16, vFl)
        a('s_barrier')
        self.stamp(4)
        a(f's_mov_b32 s{sT0}, {KVX}')
        for j in range(4):
            a(f'buffer_load_dwordx4 {ar(BUF[1] + 4 * j, 4)}, v{vUL}, {WS}, s{sT0} offen sc1')
            if j < 3:
                a(f's_add_u32 s{sT0}, s{sT0}, 4096')
        w_some(o['w_u'])
        for j in range(n2, 4):
            table(j)
        if n2 < 4:
            for t in range(8):
                a(rdA(0, t))
        a(f's_lshl_b32 s{sT3}, s{sX}, 8')
        a(f's_add_u32 s{sT3}, s{sT3}, {C_FXR * 256}')
        a(f's_mov_b32 s{sT4}, {ST1}')
        a(f's_add_u32 s{sT6}, s{sT6}, {XP4}')
        for j in range(4):
            a(f'ds_write_b128 v{vUW}, {ar(BUF[1] + 4 * j, 4)} offset:{512 + 1024 * j}')
            if j == 0:
                self.stamp('uload')
            a(rdB(0, 2 * j))
            a(rdB(0, 2 * j + 1))
        self.stamp(5)
        fx = o['fx_it']
        xl = []
        for T in range(2):
            for p in range(2):
                off = 2048 * T + 1024 * p
                xl.append([f'buffer_load_dwordx4 {vr(XR + 8 * T + 4 * p, 4)}, v{vXS}, {WS}, s{sT6} offen offset:{off} sc1'])
                xl.append([f'buffer_load_dwordx4 {vr(SR + 8 * T + 4 * p, 4)}, v{vXS}, {WS}, s{sT4} offen offset:{off} sc1'])
        if o.get('nowl'):
            wl = [g[:-1] + [[]] for g in wl]
        wt = self.w_loads_tail()
        if park:
            early, late = wl, xl + wt[:12]
            self.win_pre = [f'v_accvgpr_read_b32 v{self.WRAW[4] + i}, a{208 + i}' for i in range(32)]
            self.win_loads = wt[12:]
        else:
            early, late = wl[:-8], xl + wt
            self.win_pre = wl[-8][:-1]
            self.win_loads = [wl[-8][-1]] + wl[-7:]
        tot = len(early) + len(late)
        per = [(tot * (i + 1)) // 8 - (tot * i) // 8 for i in range(8)]
        plan = []
        for it in range(8):
            n = per[it]
            if it <= fx + 1:
                n = min(max(n, o.get('early_n', 0)), len(early))
                plan.append([early.pop(0) for _ in range(n)])
            else:
                rest = late[:8] + early + late[8:] if it == fx + 2 else rest
                early = late = []
                n = (len(rest) + 7 - it) // (8 - it)
                plan.append([rest.pop(0) for _ in range(n)])
        for it in range(8):
            A, B = BUF[it & 1], BUF[it & 1] + 32
            mf = []
            endT = []
            for T in range(8):
                c = ar(ACC + 4 * T, 4)
                if it == 0:
                    mf.append(f'v_mfma_f32_16x16x32_bf16 {c}, {ar(AD, 4)}, {ar(B + 4 * T, 4)}, 0')
                for t in range(T + 1):
                    mf.append(f'v_mfma_f32_16x16x32_bf16 {c}, {ar(A + 4 * t, 4)}, {ar(B + 4 * (T - t), 4)}, {c}')
                endT.append(len(mf) - 1)
            fill = [[] for _ in mf]
            base = 8 if it == 0 else 0
            if it < 7:
                rd = [x for t in range(8) for x in (rdA(it + 1, t), rdB(it + 1, t))]
                for i, x in enumerate(rd):
                    fill[base + 2 * i].append(x)
            zw = [f'ds_write_b128 v{vG}, {ar(ACC + 4 * T, 4)} offset:{1024 * T}' for T in range(8)]
            if it == 7:
                for T in range(o.get('z_in', 7)):
                    fill[max(endT[T] + 5, 6 + 4 * T)].append(zw.pop(0))
            n = len(plan[it])
            pos = base
            for i, g in enumerate(plan[it]):
                p = max(base + ((i + 1) * 35) // n, pos)
                k = len(g) - 1
                for z, x in enumerate(g[:-1]):
                    fill[max(pos, p - (k - z + 1) // 2)].append(x)
                fill[p].append(g[-1])
                pos = p
            if it == 0:
                for i, x in enumerate(self.clear_pst(228)):
                    fill[i].append(x)
            if it == fx:
                fill[-1].append(f'buffer_load_dword v{vFl}, off, {WS}, s{sT3} sc1')
            if it == fx + 1:
                fill[-1].append(lambda: self.check(S_WS, f's{sT3}', 0 if o.get('nofx') else 8, vFl))
            if it == 7:
                fill[0].append(f's_add_u32 s{sFW}, s{sT3}, {(C_FWR - C_FXR) * 256}')

            if it == 0:
                unp = []
                for T in range(2):
                    for row in range(4):
                        src = XR + 8 * T + 2 * row
                        xf = XF + 16 * T + 4 * row
                        st = SR + 8 * T + 2 * row
                        unp += [f'v_lshlrev_b32 v{xf}, 16, v{src}', f'v_and_b32 v{xf + 1}, s{sT2}, v{src}',
                                f'v_lshlrev_b32 v{xf + 2}, 16, v{src + 1}', f'v_and_b32 v{xf + 3}, s{sT2}, v{src + 1}']
                        unp += [f'v_fma_f32 v{xf + 32 + c}, v{xf + c}, v{st}, v{st + 1}' for c in range(4)]
            u0 = o.get('unp_at', 36 * 6 + 14)
            for i, x in enumerate(unp):
                p = u0 + (i * (36 * 8 - u0)) // 64
                if p // 36 == it:
                    fill[p % 36].append(x)
            self.stamp(f'it{it}')
            if it > 0:
                a.need(ar(A, 24 if it < 7 else 32), ar(B, 24))
            for m, f in zip(mf, fill):
                a(m)
                a(f)
        self.stamp(6)
        a(zw)
        a('s_waitcnt lgkmcnt(0)')
        a('s_barrier')
        self.stamp('zbar')
        Z = XR
        for T in range(2):
            for ch in range(4):
                a(f'ds_read_b128 {vr(Z + 16 * T + 4 * ch, 4)}, v{vZR} offset:{ch * GW + 1024 * T}')
        a(f's_mov_b32 s{sT0}, {HP4}')
        for T in range(2):
            for p in range(2):
                ho = XF + 32 + 16 * T + 8 * p
                for b in range(2):
                    row = 2 * p + b
                    for c in range(4):
                        x = XF + 16 * T + 4 * row + c
                        a(f'v_fmac_f32 v{x}, v{x + 32}, v{Z + 16 * T + 4 * c + row}')
                    for c2 in range(2):
                        x = XF + 16 * T + 4 * row + 2 * c2
                        a(f'v_cvt_pk_bf16_f32 v{ho + 2 * b + c2}, v{x}, v{x + 1}')
                a(f'buffer_store_dwordx4 {vr(ho, 4)}, v{vHS}, {WS}, s{sT0} offen offset:{2048 * T + 1024 * p} sc1')
        self.stamp(7)

    def arrive_e2(self):
        a = self.a
        a(f's_lshl_b32 s{sT0}, s{sX}, 8')
        a(f's_add_u32 s{sT0}, s{sT0}, {C_B1 * 256}')
        with self.wave0():
            self.two_level(f's{sT0}', 31, C_B2, self.opt['arr'] == 's')

    def side(self):
        a = self.a
        a('.Lside:')
        a.fresh('role')
        self.stamp('sx_in')
        vTid = 1
        a(f's_sub_u32 s{sG}, s{sJ}, 20')
        a(f's_lshl3_add_u32 s{sG}, s{sG}, s{sX}')
        J2, vJ2, sG2, sJo, sJs = 136, 230, sQ, sDv, sM
        up = self.opt.get('up', 1)

        def job2_loads():
            a(f's_add_u32 s{sG2}, s{sG}, {48 if self.opt.get("pair", 1) else 0}')
            a(f's_sub_u32 s{sT0}, s{sG2}, 96')
            a(f's_cselect_b32 s{sG2}, s{sG2}, s{sT0}')
            a(f's_cmp_ge_u32 s{sG2}, 72')
            a(f's_cselect_b32 s{sT2}, s{S_WU}, s{S_WG}')
            a(f's_cselect_b32 s{sT3}, s{S_WU + 1}, s{S_WG + 1}')
            a(f's_cselect_b32 s{sT1}, 72, 48')
            a(f's_sub_u32 s{sT1}, s{sG2}, s{sT1}')
            a(f's_lshr_b32 s{sT0}, s{sG2}, 1')
            a(f's_cmp_ge_u32 s{sG2}, 48')
            a(f's_cselect_b32 s{S_WD}, s{sT2}, s{S_WD}')
            a(f's_cselect_b32 s{S_WD + 1}, s{sT3}, s{S_WD + 1}')
            a(f's_cselect_b32 s{sT0}, s{sT1}, s{sT0}')
            self.real_line(sT0, sT2)
            a(f's_and_b32 s{sT2}, s{sG2}, 1')
            a(f's_lshl1_add_u32 s{sT2}, s{sT0}, s{sT2}')
            a(f's_mul_i32 s{sT2}, s{sT2}, {32 * 1280}')
            a(f's_lshl_b32 s{sT0}, s{sT0}, 7')
            a(f's_movk_i32 s{sT1}, 1280')
            a(f's_movk_i32 s{sJs}, 128')
            a(f's_cmp_ge_u32 s{sG2}, 48')
            a(f's_cselect_b32 s{sJo}, s{sT0}, s{sT2}')
            a(f's_cselect_b32 s{sT1}, 3072, s{sT1}')
            a(f's_cselect_b32 s{sJs}, {32 * 3072}, s{sJs}')
            a(f'v_and_b32 v{vJ2}, 7, v0')
            a(f'v_lshlrev_b32 v{vJ2}, 4, v{vJ2}')
            a(f'v_lshrrev_b32 v15, 3, v{vTid}')
            a(f'v_mad_u32_u24 v{vJ2}, v15, s{sT1}, v{vJ2}')
            for j in range(10):
                a(f'buffer_load_dwordx4 {vr(J2 + 4 * j, 4)}, v{vJ2}, {sr(S_WD, 4)}, s{sJo} offen')
                a(f's_add_u32 s{sJo}, s{sJo}, s{sJs}')
        a(f's_cmp_ge_u32 s{sG}, 64')
        a.snapshot('s4')
        a('s_cbranch_scc1 .Ls4')
        XR, WR = 16, J2
        vA, vRow, vS8 = 2, 3, 4
        a(f'v_lshrrev_b32 v{vRow}, 3, v{vTid}')
        a(f'v_and_b32 v{vS8}, 7, v0')
        a(f's_lshr_b32 s{sT0}, s{sG}, 3')
        a(f's_lshl_b32 s{sT0}, s{sT0}, 8')
        a(f's_and_b32 s{sT1}, s{sG}, 3')
        a(f's_lshl2_add_u32 s{sT0}, s{sT1}, s{sT0}')
        a(f's_bfe_u32 s{sT1}, s{sG}, 0x10002')
        a(f's_lshl1_add_u32 s{sT0}, s{sT1}, s{sT0}')
        a(f'v_and_b32 v5, 0xf0, v{vTid}')
        a(f'v_and_b32 v6, 1, v{vRow}')
        a(f'v_add3_u32 v5, v5, v6, s{sT0}')
        a(f's_movk_i32 s{sT1}, 1280')
        a(f'v_lshlrev_b32 v6, 4, v{vS8}')
        a(f'v_mad_u32_u24 v5, v5, s{sT1}, v6')
        for j in range(10):
            a(f'buffer_load_dwordx4 {vr(XR + 4 * j, 4)}, v5, {sr(S_X, 4)}, 0 offen offset:{128 * j}')
        if up == 1:
            job2_loads()
        self.stamp('sx_issued')
        self.gemm_ids()
        self.w_addr()
        vW, vRd, vSt = 5, 6, 7
        a(f's_movk_i32 s{sT1}, 528')
        a(f'v_lshlrev_b32 v{vW}, 3, v{vRow}')
        a(f'v_mad_u32_u24 v{vW}, v{vS8}, s{sT1}, v{vW}')
        a(f'v_and_b32 v{vRd}, 31, v0')
        a(f'v_lshlrev_b32 v{vRd}, 4, v{vRd}')
        a(f'v_lshrrev_b32 v8, 5, v{vTid}')
        a(f'v_mad_u32_u24 v{vRd}, v8, s{sT1}, v{vRd}')
        a(f's_lshl_b32 s{sT0}, s{sG}, 8')
        a(f'v_and_b32 v{vSt}, 15, v0')
        a(f'v_lshl_add_u32 v{vSt}, v{vSt}, 4, s{sT0}')
        a(f'v_lshrrev_b32 v8, 4, v{vTid}')
        a(f's_mov_b32 s{sT1}, {QS}')
        a(f'v_mad_u32_u24 v{vSt}, v8, s{sT1}, v{vSt}')
        for j in range(10):
            for o_ in range(2):
                a(f'ds_write_b64 v{vW}, {vr(XR + 4 * j + 2 * o_, 2)} offset:{j * 4224 + o_ * 256}')
        self.stamp('sx_data')
        if up == 2:
            job2_loads()
            a(f's_lshl_b32 s{sT0}, s{sG}, 8')
        a('s_waitcnt lgkmcnt(0)')
        a('s_barrier')
        self.stamp('sx_bar')
        XO = 96
        for j in range(10):
            a(f'ds_read_b128 {vr(XO + 4 * j, 4)}, v{vRd} offset:{j * 4224}')
        a(f's_mov_b32 s{sT1}, {XP4}')
        a(f's_mov_b32 s{sOne}, 0x3f803f80')
        for i in range(4):
            a(f'v_mov_b32 v{8 + i}, 0')
        for j in range(10):
            a(f'buffer_store_dwordx4 {vr(XO + 4 * j, 4)}, v{vSt}, {WS}, s{sT1} offen sc1')
            a(f's_add_u32 s{sT1}, s{sT1}, {16 * QS}')
            for i in range(4 * j, 4 * j + 4):
                a(f'v_dot2c_f32_bf16 v{8 + (i & 1)}, s{sOne}, v{XR + i}')
                a(f'v_dot2c_f32_bf16 v{10 + (i & 1)}, v{XR + i}, v{XR + i}')
        a('v_add_f32 v8, v8, v9')
        a('v_add_f32 v10, v10, v11')
        for m in ('quad_perm:[1,0,3,2]', 'quad_perm:[2,3,0,1]', 'row_half_mirror'):
            a(f'v_add_f32_dpp v8, v8, v8 {m} row_mask:0xf bank_mask:0xf')
            a(f'v_add_f32_dpp v10, v10, v10 {m} row_mask:0xf bank_mask:0xf')
        a(f'v_mul_f32 v8, {f32(1 / 640)}, v8')
        a(f'v_mul_f32 v10, {f32(1 / 640)}, v10')
        a('v_fma_f32 v10, -v8, v8, v10')
        a('v_max_f32 v10, 0, v10')
        a(f'v_add_f32 v10, {f32(1e-5)}, v10')
        a('v_rsq_f32 v10, v10')
        a(f'v_lshl_add_u32 v12, v{vRow}, 3, s{sT0}')
        a('v_mul_f32 v11, -v8, v10')
        a(f's_mov_b32 s{sT1}, {ST1}')
        vFl = 231
        a(f'buffer_load_dword v{vFl}, off, {sr(S_DBG, 4)}, 0 sc1')
        a('s_mov_b32 exec_lo, 0x01010101')
        a('s_mov_b32 exec_hi, 0x01010101')
        a(f'buffer_store_dwordx2 v[10:11], v12, {WS}, s{sT1} offen sc1')
        a('s_mov_b64 exec, -1')
        a('s_branch .Lr1')
        a('.Ls4:')
        a.fresh('s4')
        T4 = 10240
        a(f's_sub_u32 s{sT4}, s{sG}, 64')
        a(f's_lshr_b32 s{sT5}, s{sT4}, 2')
        a(f's_and_b32 s{sT4}, s{sT4}, 3')
        a(f's_mul_i32 s{sT0}, s{sT4}, 160')
        a(f's_lshl3_add_u32 s{sT0}, s{S_W}, s{sT0}')
        a(f's_mul_i32 s{sT0}, s{sT0}, 3072')
        a(f's_mul_i32 s{sT1}, s{sT5}, 3')
        a(f's_add_u32 s{sT1}, s{sT1}, 1')
        self.real_line(sT1, sT2)
        a(f's_lshl_b32 s{sT1}, s{sT1}, 7')
        a(f's_add_u32 s{sT0}, s{sT0}, s{sT1}')
        a('v_lshrrev_b32 v3, 3, v0')
        a('v_and_b32 v4, 7, v0')
        a(f'v_lshl_add_u32 v2, v4, 4, s{sT0}')
        a(f's_movk_i32 s{sT1}, 3072')
        a(f'v_mad_u32_u24 v2, v3, s{sT1}, v2')
        a(f's_mov_b32 s{sT0}, 0')
        for i in range(10):
            a(f'buffer_load_dwordx4 {vr(XR + 4 * i, 4)}, v2, {sr(S_WU if i & 1 else S_WG, 4)}, s{sT0} offen')
            if i & 1:
                a(f's_add_u32 s{sT0}, s{sT0}, {32 * 3072}')
        if up == 1:
            job2_loads()
        self.stamp('sx_issued')
        self.gemm_ids()
        self.w_addr()
        a(f's_lshl_b32 s{sT0}, s{S_W}, 9')
        a(f'v_lshl_add_u32 v5, v3, 6, s{sT0}')
        a('v_and_b32 v6, 1, v0')
        a('v_lshl_add_u32 v5, v6, 4, v5')
        a('v_bfe_u32 v6, v0, 1, 2')
        a('v_lshlrev_b32 v7, 5, v6')
        a('v_xor_b32 v5, v5, v7')
        a(f's_movk_i32 s{sT0}, {T4}')
        a(f'v_mad_u32_u24 v5, v6, s{sT0}, v5')
        a('v_xor_b32 v6, 32, v5')
        a('v_lshrrev_b32 v7, 5, v0')
        a('v_bfe_u32 v8, v0, 2, 2')
        a('v_lshl_add_u32 v7, v7, 3, v8')
        a('v_lshlrev_b32 v7, 6, v7')
        a('v_and_b32 v8, 3, v0')
        a('v_lshl_add_u32 v7, v8, 4, v7')
        a('v_bfe_u32 v8, v0, 4, 1')
        a('v_lshl_add_u32 v7, v8, 3, v7')
        a(f's_lshl_b32 s{sT1}, s{S_W}, 5')
        a(f'v_xor_b32 v7, s{sT1}, v7')
        a(f's_mul_i32 s{sT1}, s{S_W}, {T4}')
        a(f'v_add_u32 v7, s{sT1}, v7')
        for i in range(10):
            a(f'ds_write_b128 v{6 if i & 1 else 5}, {vr(XR + 4 * i, 4)} offset:{(i >> 1) * 2048}')
        self.stamp('sx_data')
        if up == 2:
            job2_loads()
        a('s_waitcnt lgkmcnt(0)')
        a('s_barrier')
        self.stamp('sx_bar')
        for j in range(10):
            for e in range(2):
                a(f'ds_read_b64_tr_b16 {vr(XO + 4 * j + 2 * e, 2)}, v7 offset:{1024 * j + 256 * e}')
        a(f's_lshl2_add_u32 s{sT0}, s{sT5}, s{S_W}')
        a(f's_lshl2_add_u32 s{sT0}, s{sT0}, s{sT4}')
        a(f's_mul_i32 s{sT0}, s{sT0}, 10240')
        a(f's_add_u32 s{sT0}, s{sT0}, {W45F}')
        a('v_lshlrev_b32 v9, 4, v0')
        a(f'buffer_load_dword v{vFl}, off, {sr(S_DBG, 4)}, 0 sc1')
        for j in range(10):
            if j and j & 3 == 0:
                a(f's_add_u32 s{sT0}, s{sT0}, 4096')
            a(f'buffer_store_dwordx4 {vr(XO + 4 * j, 4)}, v9, {WS}, s{sT0} offen offset:{(j & 3) * 1024} sc1')
        a('.Lr1:')
        a.fresh()
        self.stamp('sx_st')
        o = self.opt
        assert up >= 1
        a(f's_mov_b32 s{sG}, s{sG2}')
        a(f's_mov_b32 s{sSide}, s{sG2}')
        self.w_select()
        WB = 49152
        T0 = 216
        na, nb, nc = o.get('sw_a', 10), o.get('sw_b', 10), o.get('sw_c', 12)
        assert na + nb + nc <= 32

        def end_r1(younger):
            self.stamp('sx_ld2')
            a(f's_waitcnt vmcnt({younger})')
            a('s_barrier')
            self.stamp('sx_dr')
            self.arrive_start([(sArr, C_FX)], lambda: self.check(S_DBG, '0', 1, vFl))
        a(f's_cmp_ge_u32 s{sG}, 48')
        a('s_cbranch_scc1 .Ls2')
        wl = self.w_loads_main()
        a(wl[:na])
        v8, v9, v10 = T0, T0 + 1, T0 + 2
        a(f'v_lshrrev_b32 v{vRow}, 3, v{vTid}')
        a(f'v_and_b32 v{vS8}, 7, v0')
        a(f's_movk_i32 s{sT1}, 1344')
        a(f'v_lshlrev_b32 v{vW}, 4, v{vS8}')
        a(f'v_mad_u32_u24 v{vW}, v{vRow}, s{sT1}, v{vW}')
        a(f'v_lshrrev_b32 v{v8}, 4, v0')
        a(f'v_bfe_u32 v{v9}, v0, 2, 2')
        a(f'v_lshl_add_u32 v{v8}, v{v8}, 3, v{v9}')
        a(f's_mul_i32 s{sT0}, s{S_W}, 320')
        a(f'v_mov_b32 v{v9}, s{sT0}')
        a(f'v_mad_u32_u24 v{v8}, v{v8}, s{sT1}, v{v9}')
        a(f'v_and_b32 v{v9}, 3, v0')
        a(f'v_lshl_add_u32 v{v10}, v{v9}, 3, v{v8}')
        a(f'v_lshl_add_u32 v{v8}, v{v9}, 4, v{v8}')
        end_r1(na)
        q = wl[na:na + nb]
        for j in range(10):
            a(f'ds_write_b128 v{vW}, {vr(WR + 4 * j, 4)} offset:{WB + 128 * j}')
            if q and j < o.get('sw_b1', 4):
                a(q.pop(0))
        self.arrive_finish([(sArr, 11, C_FXR)], v9)
        self.stamp(1)
        a(q)
        a('s_barrier')
        for cc in range(2):
            for nt in range(5):
                for e in range(2):
                    off = WB + cc * 160 + e * 4 * 1344 + ((nt >> 1) * 64 + (nt & 1) * 8)
                    a(f'ds_read_b64_tr_b16 {ar(4 * (5 * cc + nt) + 2 * e, 2)}, v{v10 if nt == 4 else v8} offset:{off}')
        a(f's_mul_i32 s{sT0}, s{S_W}, 96')
        a(f's_add_u32 s{sT0}, s{sT0}, s{sG}')
        a(f's_mul_i32 s{sT0}, s{sT0}, 5120')
        a(f's_add_u32 s{sT0}, s{sT0}, {WDF}')
        a(f'v_lshlrev_b32 v{v9}, 4, v0')
        for cc in range(2):
            for nt in range(5):
                if nt == 4:
                    a(f's_add_u32 s{sT0}, s{sT0}, 4096')
                a(f'buffer_store_dwordx4 {ar(4 * (5 * cc + nt), 4)}, v{v9}, {WS}, s{sT0} offen offset:{(nt & 3) * 1024} sc1')
            a(f's_add_u32 s{sT0}, s{sT0}, {48 * 5120 - 4096}')
        a('s_branch .Lr2')
        a('.Ls2:')
        a.fresh()
        AC = T0 + 4
        for i in range(10, 20):
            a(f'buffer_load_dwordx4 {vr(J2 + 4 * i, 4)}, v{vJ2}, {sr(S_WD, 4)}, s{sJo} offen')
            a(f's_add_u32 s{sJo}, s{sJo}, s{sJs}')
        for i in range(8):
            a(f'v_mov_b32 v{AC + i}, 0')
        a(f's_mov_b32 s{sT4}, 0x3f80')
        a(f's_mov_b32 s{sT3}, 0x3f800000')
        end_r1(10)
        q = self.w_loads_main()[:na + nb]
        for i in range(80):
            a(f'v_dot2c_f32_bf16 v{AC + 2 * (i & 3)}, s{sT4}, v{J2 + i}')
            a(f'v_dot2c_f32_bf16 v{AC + 1 + 2 * (i & 3)}, s{sT3}, v{J2 + i}')
            if i == 39:
                self.arrive_finish([(sArr, 11, C_FXR)], T0)
                self.stamp(1)
            if i & 1 and i > 39 and q:
                a(q.pop(0))
        a(q)
        a(f'v_lshlrev_b32 v5, 5, v{vTid}')
        a(f'ds_write_b128 v5, {vr(AC, 4)} offset:{WB}')
        a(f'ds_write_b128 v5, {vr(AC + 4, 4)} offset:{WB + 16}')
        a('s_waitcnt lgkmcnt(0)')
        a('s_barrier')
        a('v_bfe_u32 v6, v0, 1, 4')
        a('v_and_b32 v7, 32, v0')
        a('v_add_u32 v6, v6, v7')
        a('v_and_b32 v7, 1, v0')
        a('v_lshl_add_u32 v6, v7, 4, v6')
        a('v_lshlrev_b32 v6, 2, v6')
        for i in range(16):
            a(f'ds_read2st64_b32 {vr(J2 + 2 * i, 2)}, v6 offset0:{WB // 256 + 2 * i} offset1:{WB // 256 + 2 * i + 1}')
        for i in range(1, 16):
            a(f'v_pk_add_f32 {vr(J2, 2)}, {vr(J2, 2)}, {vr(J2 + 2 * i, 2)}')
        a(f'v_add_f32 v{J2}, v{J2}, v{J2 + 1}')
        a(f'v_cvt_pk_bf16_f32 v{T0}, v{J2}, v{J2}')
        a(f'v_lshlrev_b32 v7, 16, v{T0}')
        a(f'v_sub_f32 v7, v{J2}, v7')
        a(f'v_cvt_pk_bf16_f32 v{T0 + 1}, v7, v7')
        a(f's_sub_u32 s{sT0}, s{sG}, 48')
        a(f's_lshl_b32 s{sT0}, s{sT0}, 9')
        a(f's_add_u32 s{sT0}, s{sT0}, {CSF}')
        a('v_lshlrev_b32 v6, 3, v0')
        a(f'buffer_store_dwordx2 {vr(T0, 2)}, v6, {WS}, s{sT0} offen sc1')
        a('.Lr2:')
        a.fresh()
        self.stamp(2)
        a(f's_lshl_b32 s{sT0}, s{sG}, 8')
        a(f's_add_u32 s{sT0}, s{sT0}, {C_F3 * 256}')
        a('v_mov_b32 v4, 0')
        a('v_lshlrev_b32 v5, 2, v0')
        a(f'buffer_store_dword v4, v5, {WS}, s{sT0} offen sc1')
        a(self.clear_pst(2))
        n0 = na + nb + nc
        a(wl[na + nb:n0])
        a(f's_lshl_b32 s{sT4}, s{sX}, 8')
        a(f's_add_u32 s{sT4}, s{sT4}, {C_FXR * 256}')
        a(f's_add_u32 s{sFW}, s{sT4}, {(C_FWR - C_FXR) * 256}')
        a.drain_stores()
        a('s_waitcnt lgkmcnt(0)')
        a('s_barrier')
        self.stamp(6)
        self.arrive_start([(sArr, C_B1), (sJs, C_FW)])
        a(f'buffer_load_dword v1, off, {WS}, s{sT4} sc1')

        def mid():
            self.arrive_finish([(sJs, 11, C_FWR), (sArr, 31, C_B2)], T0)
            self.check(S_WS, f's{sT4}', 8, 1)
        self.side_window(wl[n0:], mid)
        a(f's_waitcnt vmcnt({self.opt["wd_pre"]})')
        self.stamp(7)
        a('s_branch .Ljoin')

    def signal(self, soff):
        a = self.a
        if self.opt['sig'] == 's':
            a(f's_atomic_add s{sU2}, {sr(S_WS, 2)}, {soff}')
        else:
            a('s_mov_b64 exec, 1')
            a(f'buffer_atomic_add v{self.vOne}, off, {WS}, {soff} sc1')
            a('s_mov_b64 exec, -1')

    def gemms(self):
        a = self.a
        o = self.opt
        t, t2 = self.vTmp, self.vTmp2
        L, AB = 0, 8
        vRD = 4
        vAL, vAS, vA2, vWD, vWD2, vCS, vFl = 1, 2, 3, 247, 255, 246, 254
        vW5 = 252
        vS = 232
        BP = 236
        TM = 242
        ACC = 168
        RING1, CS, RING2 = 124, 148, 240
        sF3s, sF3p = sQ, sM
        sRB2w = sG
        kap = [[3 * c + ((pi + 1) % 3 if c & 1 else pi) for c in range(4)] for pi in range(3)]
        wd = []
        for i in range(60):
            g = []
            if i % 5 == 0:
                g.append(f's_mov_b32 s{sWoff}, {WDF + 5120 * kap[i // 20][i // 5 % 4]}')
            g.append(f'buffer_load_dwordx4 {ar(4 * i, 4)}, v{vWD2 if i % 5 == 4 else vWD}, {WS}, s{sWoff} offen offset:{(i % 5 & 3) * 1024} sc1')
            wd.append(g)
        if o.get('nowd'):
            wd = [[] for _ in wd]
        real, setup0 = a, []
        a = setup0.append
        a(f's_and_b32 s{sT0}, s{sJ}, 7')
        a(f's_lshl2_add_u32 s{sT0}, s{sT0}, s{S_W}')
        a(f's_mul_i32 s{sT0}, s{sT0}, {12 * 5120}')
        a(f'v_lshl_add_u32 v{vWD}, v0, 4, s{sT0}')
        a(f'v_add_u32 v{vWD2}, 0x1000, v{vWD}')
        a(f'v_lshlrev_b32 v{vRD}, 4, v0')
        for s in range(1, 4):
            a(f'v_xor_b32 v{t}, {16 * s}, v{vRD}')
            a(f'v_add_u32 v{vRD + s}, {TILE * s}, v{t}')
        a(f'v_lshl_add_u32 v{vW5}, s{S_W}, 10, v{vRD}')
        a(f'v_lshl_add_u32 v{vW5 + 1}, s{S_W}, 10, v{vRD + 1}')
        a(f's_lshl2_add_u32 s{sT0}, s{sRB}, s{S_W}')
        a(f's_lshl_b32 s{sT1}, s{sT0}, 8')
        a(f'v_and_b32 v{t}, 15, v0')
        a(f'v_lshlrev_b32 v{vA2}, 4, v{t}')
        a(f'v_add_u32 v{t}, s{sT1}, v{vA2}')
        a(f'v_lshrrev_b32 v{t2}, 4, v0')
        a(f's_mov_b32 s{sT1}, {QS}')
        a(f'v_mad_u32_u24 v{vAL}, v{t2}, s{sT1}, v{t}')
        a(f'v_lshl_add_u32 v{vA2}, v{t2}, 9, v{vA2}')
        a(f's_mul_i32 s{sT1}, s{sT0}, 98304')
        a(f'v_lshl_add_u32 v{vAS}, v0, 4, s{sT1}')
        a(f's_lshr_b32 s{sF3s}, s{sT0}, 1')
        a(f's_lshl_b32 s{sF3s}, s{sF3s}, 8')
        a(f's_add_u32 s{sF3s}, s{sF3s}, {C_F3 * 256}')
        a(f's_lshr_b32 s{sT1}, s{sJ}, 3')
        a(f's_lshl2_add_u32 s{sF3p}, s{sX}, s{sT1}')
        a(f's_lshl_b32 s{sRB2w}, s{sF3p}, 1')
        a(f's_lshl_b32 s{sF3p}, s{sF3p}, 8')
        a(f's_add_u32 s{sF3p}, s{sF3p}, {C_F3 * 256}')
        for i in range(4):
            a(f's_add_u32 s{sT0}, s{sRot}, {i}')
            a(f's_and_b32 s{sT0}, s{sT0}, 3')
            a(f's_mul_i32 s{sT0}, s{sT0}, {40 * QS}')
            a(f's_add_u32 s{sAB + i}, s{sT0}, {HP4}')
        a(f'v_and_b32 v{t}, 3, v0')
        a(f'v_bfe_u32 v{t2}, v0, 2, 1')
        a(f'v_lshl_add_u32 v{t}, v{t2}, 3, v{t}')
        a(f'v_bfe_u32 v{t2}, v0, 4, 1')
        a(f'v_lshl_add_u32 v{t}, v{t2}, 2, v{t}')
        a(f'v_lshlrev_b32 v{t}, 4, v{t}')
        a(f'v_bfe_u32 v{t2}, v0, 3, 1')
        a(f's_movk_i32 s{sT1}, 12288')
        a(f'v_mad_u32_u24 v{vCS}, v{t2}, s{sT1}, v{t}')
        for i in range(4):
            a(f'v_mov_b32 v{vS + i}, 0')
        a(f's_mov_b32 s{sOne}, 0x3f803f80')
        a(f's_mov_b32 s{sU2}, 1')
        a(f's_lshl_b32 s{sT2}, s{sA}, 7')
        a(f's_add_u32 s{sT2}, s{sT2}, {CSF}')
        a(f's_lshl_b32 s{sT3}, s{sB}, 7')
        a(f's_add_u32 s{sT3}, s{sT3}, {CSF}')
        a(f's_lshl_b32 s{sA}, s{sA}, 10')
        a(f's_add_u32 s{sA}, s{sA}, {ACT}')
        a(f's_lshl_b32 s{sB}, s{sB}, 10')
        a(f's_add_u32 s{sB}, s{sB}, {ACT}')
        a(f's_mul_i32 s{sT5}, s{S_W}, {12 * 2048}')
        for lam in range(4):
            a(f's_xor_b32 s{sT0}, s{S_W}, {lam}')
            a(f's_lshr_b32 s{sT1}, s{sT0}, 1')
            a(f's_add_u32 s{sT1}, s{sT1}, s{sRB2w}')
            a(f's_mul_i32 s{sT1}, s{sT1}, 98304')
            a(f's_and_b32 s{sT0}, s{sT0}, 1')
            a(f's_lshl_b32 s{sT0}, s{sT0}, 8')
            a(f's_add_u32 s{sT0}, s{sT0}, s{sT5}')
            a(f's_add_u32 s{sL[lam]}, s{sT1}, s{sT0}')
        sRes, sOutB, sQS = 20, 21, 22
        a(f's_lshr_b32 s{sT0}, s{S_W}, 1')
        a(f's_add_u32 s{sT0}, s{sT0}, s{sRB2w}')
        a(f's_lshl_b32 s{sRes}, s{sT0}, 8')
        a(f's_and_b32 s{sT4}, s{S_W}, 1')
        a(f's_lshl3_add_u32 s{sRes}, s{sT4}, s{sRes}')
        a(f's_and_b32 s{sT5}, s{sJ}, 7')
        a(f's_mul_i32 s{sT6}, s{sT5}, {20 * QS}')
        a(f's_add_u32 s{sRes}, s{sRes}, s{sT6}')
        a(f's_mov_b32 s{sQS}, {QS}')
        a(f's_lshr_b32 s{sOutB}, s{sRB2w}, 3')
        a(f's_lshl_b32 s{sOutB}, s{sOutB}, 8')
        a(f's_and_b32 s{sT6}, s{sT0}, 3')
        a(f's_lshl2_add_u32 s{sOutB}, s{sT6}, s{sOutB}')
        a(f's_bfe_u32 s{sT6}, s{sRB2w}, 0x10002')
        a(f's_lshl1_add_u32 s{sOutB}, s{sT6}, s{sOutB}')
        a(f's_add_u32 s{sOutB}, s{sOutB}, s{sT4}')
        a(f's_mul_i32 s{sOutB}, s{sOutB}, 1280')
        a(f's_mul_i32 s{sT6}, s{sT5}, 160')
        a(f's_add_u32 s{sOutB}, s{sOutB}, s{sT6}')
        a(f's_lshl_b32 s{sU0}, s{sCB}, 8')
        a(f's_add_u32 s{sU0}, s{sU0}, {PST}')
        a(f's_mov_b32 s{sU1}, {PST}')
        a(f's_and_b32 s{sCB}, s{sCB}, 3')
        a(f's_mul_i32 s{sCB}, s{sCB}, 10')
        a = real
        nw = 40 - 8 * o.get('defer', 2)
        wdp = [wd.pop(0) for _ in range(o['wd_pre'])]

        def mixer(ww, setup, lq, per=6):
            def some(n, nl):
                for i in range(n):
                    a(ww.pop(0))
                    for _ in range(per):
                        if setup:
                            a(setup.pop(0))
                    for _ in range(((i + 1) * nl) // n - (i * nl) // n):
                        if lq:
                            a(lq.pop(0))
            return some

        def side_window(wl, fx_check):
            ww, setup = self.w_writes_main()[:nw], list(setup0)
            self.w_write_addr()
            lq = list(wl)
            hold = [x for x in setup if f'v{vW5},' in x or f's{sU1},' in x]
            setup = [x for x in setup if x not in hold]
            some = mixer(ww, [], lq)
            nl = len(lq)
            n_ = min(nl, nw - 8)
            assert all(40 - nl + (i * nl) // n_ >= 8 * (i // 8 + 1) for i in range(n_))
            some(n_, nl)
            fx_check()
            lq += self.w_loads_tail()
            if o.get('outpf', 1):
                a(f's_lshr_b32 s{sT0}, s{sSide}, 3')
                a(f's_lshl2_add_u32 s{sT0}, s{sT0}, s{S_W}')
                a(f's_mul_i32 s{sT0}, s{sT0}, {22 * 320}')
                a(f's_and_b32 s{sSide}, s{sSide}, 7')
                a(f's_mul_i32 s{sSide}, s{sSide}, {256 * 1280}')
                a(f's_add_u32 s{sSide}, s{sSide}, s{sT0}')
                a(f'v_min_u32 v{TM}, 21, v0')
                a(f'v_mul_u32_u24 v{TM}, 320, v{TM}')
                lq.insert(o.get('pf_pos', 20), f'buffer_load_dword a255, v{TM}, {sr(S_OUT, 4)}, s{sSide} offen offset:160')
            lq.append(f'buffer_load_dword v{TM + 1}, off, {WS}, s{sFW} sc1')
            mixer(ww, setup, lq)(len(ww), len(lq))
            a(setup)
            a(hold)
            if wdp:
                self.check(S_WS, f's{sFW}', 0 if o.get('nofw') else 8, TM + 1)
            a(wdp)
        self.side_window = side_window
        ww = self.w_writes_main()
        setup = self.win_pre + setup0
        lq = list(self.win_loads)
        n1, n2 = o.get('ww1', 13), o.get('ww2', 7)
        self.w_write_addr()
        a('s_barrier')
        self.stamp('hbar')
        some = mixer(ww, setup, lq, o.get('su_per', 7))
        assert 5 * o.get('su_per', 7) >= len(self.win_pre)
        some(5, 0)
        fwe = o.get('fwe', 1)
        if wdp and fwe:
            a(f'buffer_load_dword v{TM + 1}, off, {WS}, s{sFW} sc1')
        hold = [x for x in setup if isinstance(x, str) and (f'v{vW5},' in x or f's{sU1},' in x)]
        setup[:] = [x for x in setup if x not in hold]
        some(n1 - 5, o.get('l1', 8))
        self.stamp('hissued')
        a.drain_stores()
        self.stamp('hdrained')
        a('s_barrier')
        self.stamp('hbar2')
        self.arrive_start([(sArr, C_B1)])
        if wdp and not fwe:
            a(f'buffer_load_dword v{TM + 1}, off, {WS}, s{sFW} sc1')
        if wdp and fwe:
            self.check(S_WS, f's{sFW}', 0 if o.get('nofw') else 8, TM + 1)
            nl2 = len(lq) + o.get('l2', 8)
            lq += wdp
            some(n2, nl2)
        else:
            some(n2, len(lq))
        self.arrive_finish([(sArr, 31, C_B2)], TM)
        self.stamp('arrived')
        if wdp and not fwe:
            self.check(S_WS, f's{sFW}', 0 if o.get('nofw') else 8, TM + 1)
            lq += wdp
        some(nw - n1 - n2, len(lq))
        a(setup)
        a(hold)
        a(lq)
        a('.Ljoin:')
        self.stamp('wwritten')
        a(f's_lshl_b32 s{sT0}, s{sX}, 8')
        a(f's_add_u32 s{sT0}, s{sT0}, {C_B2 * 256}')
        self.warm([[3, 6], [4, 7], [5]])
        with self.wave0():
            self.spin(S_WS, f's{sT0}', 0 if o.get('noe2') else 8, t)
        self.stamp('polled')
        a('s_waitcnt lgkmcnt(0)')
        a('s_barrier')
        self.stamp(8)
        al = []
        for j in range(40):
            if j % 10 == 0:
                al.append([f'buffer_load_dwordx4 {vr(AB + 4 * j, 4)}, v{vAL}, {WS}, s{sAB + j // 10} offen sc1'])
            else:
                al.append([f's_add_u32 s{sT1}, s{sAB + j // 10}, {(j % 10) * 4 * QS}',
                           f'buffer_load_dwordx4 {vr(AB + 4 * j, 4)}, v{vAL}, {WS}, s{sT1} offen sc1'])
        al.append(f'buffer_load_dwordx4 {ar(CS, 4)}, v{vCS}, {WS}, s{sT2} offen sc1')
        al.append(f'buffer_load_dwordx4 {ar(CS + 4, 4)}, v{vCS}, {WS}, s{sT2} offen offset:256 sc1')
        al.append(f'buffer_load_dwordx4 {ar(CS + 8, 4)}, v{vCS}, {WS}, s{sT3} offen sc1')
        for _ in range(o['a_ahead']):
            a(al.pop(0))

        def rd(dst, slot, j):
            return f'ds_read_b128 {ar(dst, 4)}, v{vRD + slot} offset:{1024 * j}'

        def swaps(j):
            return [f'v_permlane16_swap_b32 v{AB + 4 * j + e}, v{AB + 4 * j + 2 + e}' for e in range(2)]

        def acc(slot):
            return vr(ACC + 16 * slot, 16)
        wtail = [f'ds_write_b128 v{vW5 + (i & 1)}, {ar(160 + 4 * i, 4)} offset:{(i >> 1) * 4096}' for i in range(20)]
        if o.get('nowt'):
            wtail = [[] for _ in wtail]
        C0, C1, R = vS, vS + 1, vS + 2
        c0 = -2.0 * 0.7978845608028654 * 1.4426950408889634
        G = ACC + 48
        gather = [f'buffer_load_dwordx2 {vr(G + 2 * s, 2)}, v{self.vPS}, {WS}, s{sU1} offen offset:{256 * s} sc1'
                  for s in range(8)]
        valid = [f'v_or3_b32 v{t}, v{G + 1}, v{G + 3}, v{G + 5}', f'v_or3_b32 v{t2}, v{G + 7}, v{G + 9}, v{G + 11}',
                 f'v_or3_b32 v{t}, v{t}, v{G + 13}, v{G + 15}', f'v_or_b32 v{t}, v{t}, v{t2}',
                 f'v_cmp_gt_i32 vcc, 0, v{t}']

        def chk_stats():
            slow, back = a.label('slow'), a.label('back')
            a('s_nop 1')
            a(f's_cbranch_vccnz {slow}')
            a(f'{back}:')

            def cold():
                top = a.label('top')
                a(f'{slow}:')
                with a.untracked():
                    a(f's_mov_b32 s{sSpin}, {SPIN}')
                    a(f'{top}:')
                    a(gather)
                    a('s_waitcnt vmcnt(0)')
                    a(valid)
                    a(f's_sub_u32 s{sSpin}, s{sSpin}, 1')
                    a(f's_cbranch_scc1 {back}')
                    a('s_nop 3')
                    a(f's_cbranch_vccnz {top}')
                    a(f's_branch {back}')
            self.cold.append(cold)
        halves = [
            f'v_add_f32 v{vS}, v{vS}, v{vS + 1}',
            f'v_add_f32 v{vS + 2}, v{vS + 2}, v{vS + 3}',
            f'v_mov_b32 v{vS + 1}, v{vS}',
            f'v_mov_b32 v{vS + 3}, v{vS + 2}',
            f'v_cmp_gt_u32 vcc, 32, v{L}',
            f'v_permlane32_swap_b32 v{vS}, v{vS + 1}',
            f'v_permlane32_swap_b32 v{vS + 2}, v{vS + 3}']
        pub = halves + [
            f'v_add_f32 v{G}, v{vS}, v{vS + 1}',
            f'v_add_f32 v{G + 1}, v{vS + 2}, v{vS + 3}',
            f'v_and_b32 v{G + 1}, 0x7fffffff, v{G + 1}',
            ['s_mov_b32 exec_hi, 0',
             f'buffer_store_dwordx2 {vr(G, 2)}, v{self.vPS}, {WS}, s{sU0} offen sc1',
             's_mov_b32 exec_hi, -1']]
        st = valid + [chk_stats]
        for w_ in range(2):
            g = G + w_
            st += [f'v_add_f32 v{g}, v{g}, v{g + 2}', f'v_add_f32 v{g + 4}, v{g + 4}, v{g + 6}',
                   f'v_add_f32 v{g + 8}, v{g + 8}, v{g + 10}', f'v_add_f32 v{g + 12}, v{g + 12}, v{g + 14}',
                   f'v_add_f32 v{vS + 2 * w_}, v{g}, v{g + 4}', f'v_add_f32 v{vS + 2 * w_ + 1}, v{g + 8}, v{g + 12}']
        st += halves + [
            f'v_add_f32 v{vS}, v{vS}, v{vS + 1}',
            f'v_add_f32 v{vS + 2}, v{vS + 2}, v{vS + 3}',
            f'v_mul_f32 v{vS}, {f32(-1 / 640)}, v{vS}',
            f'v_mul_f32 v{vS + 2}, {f32(1 / 640)}, v{vS + 2}',
            f'v_cvt_pk_bf16_f32 v{t}, v{vS}, v{vS}',
            f'v_fma_f32 v{R}, -v{vS}, v{vS}, v{R}',
            f'v_lshlrev_b32 v{t}, 16, v{t}',
            f'v_max_f32 v{R}, 0, v{R}',
            f'v_sub_f32 v{t2}, v{vS}, v{t}',
            f'v_add_f32 v{R}, {f32(1e-5)}, v{R}',
            f'v_cvt_pk_bf16_f32 v{t}, v{t}, v{t2}',
            f'v_rsq_f32 v{vS + 3}, v{R}',
            f'v_cndmask_b32 v{BP + 2}, 0, v{t}, vcc',
            f'v_cndmask_b32 v{BP + 3}, 0, v{t}, vcc',
            f'v_mul_f32 v{C0}, {f32(c0)}, v{vS + 3}',
            f'v_mul_f32 v{t}, v{vS + 3}, v{vS + 3}',
            f'v_mul_f32 v{t}, {f32(0.044715)}, v{t}',
            f'v_mul_f32 v{C1}, v{t}, v{C0}',
        ]

        def csm(tile, slot, first):
            b = vr(BP, 4) if tile & 1 else vr(BP + 2, 4)
            return f'v_mfma_f32_32x32x16_bf16 {acc(slot)}, {ar(CS + 4 * (tile >> 1), 4)}, {b}, {"0" if first else acc(slot)}'

        def pick(r0, r1):
            a(f's_set_gpr_idx_on s{sCB}, gpr_idx(SRC0)')
            a('s_nop 0')
            for r in range(r0, r1):
                a(f'v_mov_b32_e32 v{G + r}, v{AB + r}')
            a('s_set_gpr_idx_off')
        for j in range(2):
            for s in range(3):
                a(rd(RING1 + 12 * j + 4 * s, s, j))
        a(swaps(0))
        self.stamp('a0')
        p2 = [(3, 3, j) for j in range(40)] + [(4, 0, j) for j in range(40)] + [(5, 1, j) for j in range(40)]
        gq = list(gather)
        GJ, SJ = o.get('gather_j', 22), o.get('stat_j', 33)
        B1, B2 = 21, 33
        nwd1 = min(o.get('wd_p1', 6), 31 - o['wd_pre'])
        assert o['a_ahead'] <= (14 if o.get('defer', 2) == 2 else 23)
        for j in range(40):
            base = RING1 + 12 * (j & 1)
            self.stamp(f'p{j}')
            a.need(ar(base, 12))
            for s in range(3):
                c = '0' if j == 0 else acc(s)
                a(f'v_mfma_f32_32x32x16_bf16 {acc(s)}, {ar(base + 4 * s, 4)}, {vr(AB + 4 * j, 4)}, {c}')
                if j < 38:
                    a(rd(base + 4 * s, s, j + 2))
                else:
                    i = (j - 38) * 3 + s
                    if i < 4:
                        a(rd(RING2 + 4 * i, p2[i][1], p2[i][2]))
                if s == 0 and j < 39:
                    a(swaps(j + 1))
                if s == 1 and (B1 < j <= B1 + 10 or B2 < j):
                    a(wtail.pop(0))
                if s != 1 and j >= GJ and gq:
                    a(gq.pop(0))
                if s == 2:
                    if al:
                        a(al.pop(0))
                    elif nwd1 and not gq and j < o.get('wd1_hi', 40):
                        a(wd.pop(0))
                        nwd1 -= 1
                if j not in (8, 9) and ww:
                    if s == 0:
                        while len(ww[0]) > 1:
                            a(ww[0].pop(0))
                    if s == 1:
                        a(ww.pop(0))
                if s == 2 and j not in (7, 8) and ww:
                    a(ww[0].pop(0))
                    a(ww[0].pop(0))
                if j == 19 and s == 1:
                    assert not ww
                    for i in (0, 1, 4, 5):
                        a(f'v_mov_b32 v{BP + i}, 0')
                if j == 8 and s == 1:
                    pick(0, 4)
                if j == 9 and s == 1:
                    pick(4, 10)
                if j in (10, 11) and s != 1:
                    for _ in range(3):
                        if pub:
                            a(pub.pop(0))
                if j >= SJ:
                    for _ in range((3, 0 if j > B2 else 5, 4)[s]):
                        if st:
                            a(st.pop(0))
            if j in (B1, B2):
                a('s_barrier')
            if j == 9:
                for r in range(10):
                    a(f'v_dot2c_f32_bf16 v{vS + (r & 1)}, s{sOne}, v{G + r}')
                    a(f'v_dot2c_f32_bf16 v{vS + 2 + (r & 1)}, v{G + r}, v{G + r}')
        assert not pub and not al and not st
        a(st)
        RES, vRes, vRes2 = 200, vAL, vCS
        res_addr = [
            f'v_and_b32 v{vRes}, 15, v{L}',
            f'v_lshl_add_u32 v{vRes2}, v{vRes}, 4, s{sRes}',
            f'v_lshrrev_b32 v{vRes}, 4, v{L}',
            f'v_mad_u32_u24 v{vRes2}, v{vRes}, s{sQS}, v{vRes2}',
            f'v_mad_u32_u24 v{vRes}, v{vRes}, s{sQS}, v{vRes2}',
        ]
        a('s_barrier')
        for tl in range(3):
            a(csm(tl, tl, False))
            a(res_addr if tl == 0 else wtail.pop(0))
        self.stamp(9)

        def epi(tile, slot, packed=False):
            b = ACC + 16 * slot
            tm = [TM, TM + 1, TM + 2, TM + 3]
            ops = []
            for h in range(2):
                g, u = b + 8 * h, b + 8 * h + 4
                if packed:
                    P = lambda r, i: vr(r + 2 * i, 2)
                    cc, rr = vr(C0, 2), vr(R, 2)
                    ops += [(1, f'v_pk_mul_f32 {P(TM, i)}, {P(g, i)}, {P(g, i)}') for i in range(2)]
                    ops += [(1, f'v_pk_fma_f32 {P(TM, i)}, {P(TM, i)}, {cc}, {cc} op_sel:[0,1,0] op_sel_hi:[1,1,0]') for i in range(2)]
                    ops += [(1, f'v_pk_mul_f32 {P(u, i)}, {P(u, i)}, {P(g, i)}') for i in range(1)]
                    ops += [(1, f'v_pk_mul_f32 {P(TM, i)}, {P(TM, i)}, {P(g, i)}') for i in range(2)]
                    ops += [(2, f'v_exp_f32 v{tm[i]}, v{tm[i]}') for i in range(4)]
                    ops += [(1, f'v_pk_mul_f32 {P(u, i)}, {P(u, i)}, {P(g, i)}') for i in range(1, 2)]
                    ops += [(1, f'v_pk_fma_f32 {P(TM, i)}, {P(TM, i)}, {rr}, {rr} op_sel:[0,0,0] op_sel_hi:[1,0,0]') for i in range(2)]
                    ops += [(2, f'v_rcp_f32 v{tm[i]}, v{tm[i]}') for i in range(4)]
                    ops += [(1, f'v_pk_mul_f32 {P(u, i)}, {P(u, i)}, {P(TM, i)}') for i in range(2)]
                    ops += [(1, f'v_cvt_pk_bf16_f32 v{b + 2 * h + i}, v{u + 2 * i}, v{u + 2 * i + 1}') for i in range(2)]
                    continue
                ops += [(1, f'v_mul_f32 v{tm[i]}, v{g + i}, v{g + i}') for i in range(4)]
                ops += [(1, f'v_fma_f32 v{tm[i]}, v{tm[i]}, v{C1}, v{C0}') for i in range(4)]
                ops += [(1, f'v_mul_f32 v{tm[i]}, v{tm[i]}, v{g + i}') for i in range(4)]
                for i in range(4):
                    ops += [(2, f'v_exp_f32 v{tm[i]}, v{tm[i]}'), (1, f'v_mul_f32 v{u + i}, v{u + i}, v{g + i}')]
                ops += [(1, f'v_fma_f32 v{tm[i]}, v{tm[i]}, v{R}, v{R}') for i in range(4)]
                ops += [(2, f'v_rcp_f32 v{tm[i]}, v{tm[i]}') for i in range(4)]
                ops += [(1, f'v_mul_f32 v{u + i}, v{u + i}, v{tm[i]}') for i in range(4)]
                ops += [(1, f'v_cvt_pk_bf16_f32 v{b + 2 * h + i}, v{u + 2 * i}, v{u + 2 * i + 1}') for i in range(2)]
            so = sA if tile < 4 else sB
            txt = f'buffer_store_dwordx4 {vr(b, 4)}, v{vAS}, {WS}, s{so} offen offset:{(tile & 3) * 1024} sc1'
            ops.append((5, (lambda: a(txt, tag=f'act{tile}')) if not o.get('nost') else []))
            if o.get('noepi'):
                ops = [(c_, x if callable(x) else []) for c_, x in ops]
            return ops

        G2 = 72
        FR = [[8 + 4 * i for i in range(16)],
              [152 + 4 * i for i in range(4)] + [200 + 4 * i for i in range(8)] + [168 + 4 * i for i in range(4)],
              [8 + 4 * i for i in range(16)]]
        order = [[(c, lam) for lam in (3, 2, 1, 0) for c in range(4)]] * 3

        def act_ld(pi, n):
            c, lam = order[pi][n]
            if o.get('noact'):
                return []
            return [f's_add_u32 s{sT1}, s{sL[lam]}, {ACT + 2048 * kap[pi][c]}',
                    f'buffer_load_dwordx4 {vr(FR[pi][n], 4)}, v{vA2}, {WS}, s{sT1} offen sc1']

        def sig(pi, tag):
            def f():
                self.stamp(f'presig{pi}')
                a.need_tag(tag)
                if o.get('wgsig', 0) >> pi & 1:
                    l = a.label('nosig')
                    a('s_barrier')
                    a(f's_bitcmp1_b32 s{S_W}, 0')
                    a(f's_cbranch_scc1 {l}')
                    with a.untracked():
                        self.signal(f's{sF3s}')
                    a(f'{l}:')
                else:
                    self.signal(f's{sF3s}')
                self.stamp(f'sig{pi}')
                if pi < 2:
                    a(f's_add_u32 s{sF3s}, s{sF3s}, {32 * 256}')
            return f

        def poll_ld():
            return f'buffer_load_dword v{vFl}, off, {WS}, s{sF3p} sc1'

        def poll_chk(pi):
            def f():
                self.stamp(f'prechk{pi}')
                self.check(S_WS, f's{sF3p}', 0 if o.get('noe3', 0) >> pi & 1 else 16 if o.get('wgsig', 0) >> pi & 1 else 32, vFl)
                self.stamp(f'chk{pi}')
                if pi < 2:
                    a(f's_add_u32 s{sF3p}, s{sF3p}, {32 * 256}')
            return f
        RES, vRes, vRes2 = 200, vAL, vCS
        res_addr = [
            f'v_and_b32 v{vRes}, 15, v{L}',
            f'v_lshl_add_u32 v{vRes2}, v{vRes}, 4, s{sRes}',
            f'v_lshrrev_b32 v{vRes}, 4, v{L}',
            f'v_mad_u32_u24 v{vRes2}, v{vRes}, s{sQS}, v{vRes2}',
            f'v_mad_u32_u24 v{vRes}, v{vRes}, s{sQS}, v{vRes2}',
        ]
        res_ld = []
        for nt in range(5):
            q = 8 * (nt >> 1) + (nt & 1)
            res_ld.append([f's_mov_b32 s{sT6}, {HP4 + q * QS}',
                           f'buffer_load_dwordx2 {vr(RES + 2 * nt, 2)}, v{vRes2 if nt == 4 else vRes}, {WS}, s{sT6} offen sc1'])
        slot_of = {0: 0, 1: 1, 2: 2, 3: 3, 4: 0, 5: 1}
        eq = epi(0, 0) + epi(1, 1) + epi(2, 2)
        budget = 0.0
        RATE = o['epi_rate']
        extra = {i: [] for i in range(120)}
        first_w = wtail.pop(0)
        for k in range(len(wtail)):
            extra[k].append(wtail[k])
        extra[30].append('s_barrier')
        nwd = len(wd) - o.get('wd_post', 12)
        done = 60 - len(wd)
        lo, hi = o.get('wd_lo', 4), o.get('wd_hi', 78)
        hold = None
        for k in range(nwd):
            g = wd.pop(0)
            p = lo + (k * (hi - lo)) // nwd
            fr = done + k
            if fr == 39:
                extra[81].append([f's_mov_b32 s{sT6}, {WDF + 5120 * kap[1][3]}', g[-1].replace(f's{sWoff} offen', f's{sT6} offen')] if g else [])
                continue
            assert fr < 56 or p > 14
            extra[p].append(g)
        SA, SB = o.get('siga', 62), o.get('sigb', 104)
        extra[SA].append(sig(0, 'act1'))
        extra[o.get('lda', 86)].append(poll_ld())
        for k, x in enumerate(res_ld):
            extra[o.get('res_at', 86) + 2 * k].append(x)
        ca = o.get('chka', 105)
        extra[ca].append(poll_chk(0))
        na = o.get('a_in', 7)
        for n in range(na):
            extra[ca + 1 + (n * (119 - ca)) // na].append(act_ld(0, n))
        extra[SB].append(sig(1, 'act3'))
        extra[50].append('s_barrier')

        def cost(x):
            if callable(x):
                return 3
            if isinstance(x, (list, tuple)):
                return sum(cost(y) for y in x)
            return 5 if x.startswith('ds_write') else 2 if x.startswith('buffer') or x == 's_barrier' else 1
        CAP = o.get('cap', 6.6)
        for i, (tile, ls, j) in enumerate(p2):
            slot = slot_of[tile]
            self.stamp(f'q{i}')
            if j == 0:
                a(csm(tile, slot, True))
                if i == 0:
                    a(first_w)
                if i:
                    budget = 6
                    while eq and budget >= eq[0][0]:
                        cst, x = eq.pop(0)
                        budget -= cst
                        a(x)
            if i & 1 == 0:
                a.need(ar(RING2 + 4 * (i & 3), 8))
            a(f'v_mfma_f32_32x32x16_bf16 {acc(slot)}, {ar(RING2 + 4 * (i & 3), 4)}, {vr(AB + 4 * j, 4)}, {acc(slot)}')
            if i + 4 < len(p2):
                a(rd(RING2 + 4 * (i & 3), p2[i + 4][1], p2[i + 4][2]))
            a(extra[i])
            if i == 42:
                eq += epi(3, 3)
            if i == 82:
                eq += epi(4, 0)
                if o.get('st4_late'):
                    st4 = eq.pop()[1]
            if i >= 1:
                budget = min(budget, 1.0) + CAP - 1 - (i & 1) - cost(extra[i])
                budget = max(budget, -1)
                while eq and budget >= min(eq[0][0], 2):
                    cst, x = eq.pop(0)
                    budget -= cst
                    a(x)
                    if callable(x) and o.get('verbose'):
                        print('store at gap', i)
                if i == 39:
                    assert len(eq) <= 2 * 69, len(eq)
                if i == SA - 1:
                    assert len(eq) <= 2 * 69, len(eq)
                if i == 79:
                    assert len(eq) <= 2 * 69, len(eq)
                if i == o.get('res_at', 86) - 1:
                    assert len(eq) <= 2 * 69, len(eq)
                if i == SB - 1:
                    assert len(eq) <= 69, len(eq)
            if j == 39:
                self.stamp(f't{tile}')
        for cst, x in eq:
            a(x)
        a(f's_mov_b32 s{sT0}, 0xffff0000')
        for i in range(10):
            a(f'v_lshlrev_b32 v{G2 + 2 * i}, 16, v{RES + i}')
            a(f'v_and_b32 v{G2 + 2 * i + 1}, s{sT0}, v{RES + i}')
        e5 = epi(5, 1, o.get('pk5', 1))
        LA = o.get('la2', 12)
        rest = [act_ld(0, n) for n in range(na, LA)]
        if o.get('ldb', -1) < 0:
            rest.append(poll_ld())
        if o.get('st4_late'):
            rest.append(st4)
        k = 0
        for i, (cst, x) in enumerate(e5):
            while k < len(rest) and (k + 1) * (len(e5) - 1) <= i * len(rest):
                a(rest[k])
                k += 1
            a(x)
        assert k == len(rest)
        self.stamp(10)

        vOut, vRR, vRW, vTW, vTR = 4, 7, 232, 238, 242
        RED = 2 * TILE
        setup = [
            f's_movk_i32 s{sT6}, {16 * 1280 - 160}',
            f's_movk_i32 s{sT5}, 6554',
            f's_movk_i32 s{sT4}, 176',
            f's_mul_i32 s{sT3}, s{S_W}, {16 * 176}',
            f'v_and_b32 v{t}, 15, v{L}',
            f'v_lshrrev_b32 v{t2}, 4, v{L}',
            f'v_mov_b32 v{vTW + 1}, s{sT3}',
            f'v_mad_u32_u24 v{vTW + 1}, v{t}, s{sT4}, v{vTW + 1}',
            f'v_lshl_add_u32 v{vTW}, v{t2}, 4, v{vTW + 1}',
            f'v_lshl_add_u32 v{vTW + 1}, v{t2}, 3, v{vTW + 1}',
        ]
        setup += [f'v_mul_u32_u24 v{t2}, s{sT5}, v{L}',
                  f'v_lshrrev_b32 v{t2}, 16, v{t2}',
                  f'v_lshl_add_u32 v{vOut}, v{L}, 4, s{sOutB}',
                  f'v_mad_u32_u24 v{vOut}, v{t2}, s{sT6}, v{vOut}',
                  f'v_add_u32 v{t}, v{L}, v{t2}',
                  f'v_lshl_add_u32 v{vTR}, v{t}, 4, s{sT3}',
                  f's_mov_b32 s{sT4}, {6 * 16 * 1280}',
                  f's_mov_b32 s{sT5}, {12 * 16 * 1280}']
        for lam in range(4):
            setup += [f's_xor_b32 s{sT0}, s{S_W}, {lam}', f's_mul_i32 s{sT0}, s{sT0}, {15 * 1024}',
                      f's_add_u32 s{sT0}, s{sT0}, {RED + (lam - 1) * 5120 if lam else RED}',
                      f'v_lshl_add_u32 v{vRW + lam - 1 if lam else vRR}, v{L}, 4, s{sT0}']

        def mf2(pi, n, nt):
            c, lam = order[pi][n]
            d = vr(G2 + 4 * (5 * lam + nt), 4)
            cin = '0' if (pi == 0 and c == 0 and lam != 0) else d
            return f'v_mfma_f32_16x16x32_bf16 {d}, {ar(4 * (5 * (4 * pi + c) + nt), 4)}, {vr(FR[pi][n], 4)}, {cin}'
        ex = [{i: [] for i in range(80)} for _ in range(3)]
        for k, x in enumerate(setup):
            ex[0][k].append(x)
        def put(pos, x):
            ex[pos // 80][pos % 80].append(x)
        if o.get('ldb', -1) >= 0:
            put(o['ldb'], poll_ld())
        cb_, cc_ = o.get('chkb', 5 * (16 - LA)), 80 + o.get('chkc', 44)
        put(cb_, [poll_chk(1), lambda: self.stamp('chkb')])
        put(o.get('sigc', 40), [sig(2, 'act5'), lambda: self.stamp('sigc')])
        put(80 + o.get('ldc', 28), poll_ld())
        put(cc_, [lambda: self.stamp('chkc0'), poll_chk(2), lambda: self.stamp(11)])
        pos = 0
        for g in range(LA, 48):
            pos = max(pos + (o.get('burst', 2) if g >= 16 else 0), o.get('g_gap', 5) * (g - LA) if g < 32 else 5 * (g - LA),
                      cb_ if g >= 16 else 0, cc_ if g >= 32 else 0)
            assert pos < 20 * (g // 4)
            put(pos, act_ld(g // 16, g % 16))
            if g < 32 and wd and 32 - g <= len(wd) + o.get('wdp_early', 0):
                put(pos + 2, wd.pop(0))
        assert not wd
        chain = o.get('chain', 1)
        for blk, lam in enumerate((3, 2, 1)):
            for nt in range(5):
                ex[2][20 * blk + 4 * nt + 12 if chain else 20 * (blk + 1) + 5 + 2 * nt].append(
                    f'ds_write_b128 v{vRW + lam - 1}, {vr(G2 + 4 * (5 * lam + nt), 4)} offset:{1024 * nt}')
        for pi in range(3):
            for i in range(80):
                if chain:
                    a(mf2(pi, 4 * (i // 20) + (i & 3), i % 20 // 4))
                else:
                    a(mf2(pi, i // 5, i % 5))
                self.stamp(f'm{80 * pi + i}')
                a(ex[pi][i])
            self.stamp('end' + 'ABC'[pi])
        a('s_waitcnt lgkmcnt(0)')
        a('s_barrier')
        self.stamp('redbar')
        RD, RR = 152, 8
        for nt in range(5):
            for s in range(3):
                a(f'ds_read_b128 {vr(RD + 12 * nt + 4 * s, 4)}, v{vRR} offset:{5120 * s + 1024 * nt}')
        sc = ' sc1' if o['out_sc1'] else ''
        for nt in range(5):
            b = RD + 12 * nt
            c = G2 + 4 * nt
            for p in range(2):
                a(f'v_pk_add_f32 {vr(c + 2 * p, 2)}, {vr(c + 2 * p, 2)}, {vr(b + 2 * p, 2)}')
                a(f'v_pk_add_f32 {vr(b + 4 + 2 * p, 2)}, {vr(b + 4 + 2 * p, 2)}, {vr(b + 8 + 2 * p, 2)}')
            for p in range(2):
                a(f'v_pk_add_f32 {vr(c + 2 * p, 2)}, {vr(c + 2 * p, 2)}, {vr(b + 4 + 2 * p, 2)}')
            for p in range(2):
                a(f'v_cvt_pk_bf16_f32 v{RR + 2 * nt + p}, v{c + 2 * p}, v{c + 2 * p + 1}')
            if nt & 1:
                a(f'ds_write_b128 v{vTW}, {vr(RR + 2 * nt - 2, 4)} offset:{64 * (nt >> 1)}')
            if nt == 4:
                a(f'ds_write_b64 v{vTW + 1}, {vr(RR + 8, 2)} offset:128')
        for k in range(3):
            a(f'ds_read_b128 {vr(RR + 12 + 4 * k, 4)}, v{vTR} offset:{6 * 176 * k}')
        a('s_mov_b32 exec_hi, 0xfffffff')
        for k in range(3):
            if k == 2:
                a('s_mov_b32 exec_hi, 0xff')
            a(f'buffer_store_dwordx4 {vr(RR + 12 + 4 * k, 4)}, v{vOut}, {sr(S_OUT, 4)}, {("0", f"s{sT4}", f"s{sT5}")[k]} offen{sc}')
        a('s_mov_b32 exec_hi, -1')
        lz = a.label('nz')
        a('s_cmp_lg_u32 s2, 0')
        a(f's_cbranch_scc1 {lz}')
        with a.untracked():
            a(f'buffer_store_dword v{BP}, off, {sr(S_DBG, 4)}, 0 sc1')
        a(f'{lz}:')
        if self.diag:
            self.stamp('outst')
            a('s_waitcnt vmcnt(0)')
            self.stamp(12)
            a('s_waitcnt lgkmcnt(0)')
            with self.wave0():
                a(f's_lshl_b32 s{sT0}, s2, 7')
                a(f's_add_u32 s{sT0}, s{sT0}, {STAMP}')
                for i in range(NSTAMP):
                    a(f'v_mov_b32 v0, s{S_STAMP + 2 * i}')
                    a(f'buffer_store_dword v0, off, {WS}, s{sT0} offset:{4 * i}')
        if self.opt.get('fixt'):
            with a.untracked():
                a(f's_cmp_lg_u32 s2, {self.opt.get("fixwg", 0)}')
                a('s_cbranch_scc1 .Lend')
                a(f's_cmp_lg_u32 s{S_W}, 0')
                a('s_cbranch_scc1 .Lend')
                a(f's_sub_u32 s{sT2}, s{S_STAMP + 2 * self.opt.get("fixs", 0)}, s{S_STAMP + 2 * self.opt.get("fixb", 0)}')
                a(f's_mul_i32 s{sT2}, s{sT2}, 10')
                a(f's_min_u32 s{sT2}, s{sT2}, 100000')
                a(f's_add_u32 s{sT2}, s{sT2}, {self.opt["fixt"]}')
                a('.Lfix:')
                a(f's_memrealtime {sr(sT0, 2)}')
                a('s_waitcnt lgkmcnt(0)')
                a(f's_sub_u32 s{sT0}, s{sT0}, s{S_STAMP}')
                a(f's_cmp_lt_u32 s{sT0}, s{sT2}')
                a('s_cbranch_scc1 .Lfix')
        a('.Lend:')
        a('s_endpgm')

    def build(self):
        a = self.a
        if self.diag:
            for i in range(2 * NSTAMP):
                a(f's_mov_b32 s{S_STAMP + i}, 0')
        self.prologue()
        self.conv()
        self.gemms()
        self.side()
        for c in self.cold:
            a.fresh()
            a('s_nop 7')
            c()
        a('.Lcode_end:')
        a('s_endpgm')
        pads = (self.opt.get('base', 0x300), NPAD, sr(sRet, 2), '.Lend', self.opt.get('pstride', 4096)) if self.opt['pads'] else None
        body = a.finish(verbose=True, align=self.opt.get('align', 1), pads=pads)
        body += '.p2align 12\n    s_endpgm\n'
        ref = open('cdna_kernels/' + NAME + '.s.ref').read().split('\n')
        head = [l for l in ref if l.startswith(';') and '@launch' not in l and 'Override' not in l and 'grid=ceil' not in l]
        txt = '\n'.join(head) + '\n'
        txt += '; One persistent launch: kv/transposition -> Toeplitz-MFMA long conv -> gate/up GEMM + GEGLU -> down GEMM.\n'
        txt += '; @launch grid=(256,1,1) block=(256,1,1) lds=163840\n'
        txt += f'''.amdgcn_target "amdgcn-amd-amdhsa--gfx950"
.text
.globl {NAME}_kernel
.p2align 8
.type {NAME}_kernel,@function
{NAME}_kernel:
{body}.section .rodata,"a"
.p2align 6
.amdhsa_kernel {NAME}_kernel
  .amdhsa_next_free_vgpr 512
  .amdhsa_next_free_sgpr 102
  .amdhsa_accum_offset 256
  .amdhsa_group_segment_fixed_size 0
  .amdhsa_kernarg_size 104
  .amdhsa_user_sgpr_count 2
  .amdhsa_user_sgpr_kernarg_segment_ptr 1
  .amdhsa_system_sgpr_workgroup_id_x 1
  .amdhsa_float_denorm_mode_32 3
.end_amdhsa_kernel
'''
        return txt


if __name__ == '__main__':
    out = sys.argv[1]
    diag = 'diag' in sys.argv[2:]
    opt = {}
    for x in sys.argv[2:]:
        if '=' in x:
            k, v = x.split('=')
            try:
                v = int(v)
            except ValueError:
                try:
                    v = float(v)
                except ValueError:
                    pass
            opt[k] = v
    open(out, 'w').write(Gen(diag, opt).build())
```

```python
import struct
import sys
from asmlib import Asm, vr, ar, sr

NAME = 'sequential_preLN__ssm_conv_h3__geglu_ffn__prompt'

QS = 16384
CNT = 0
ST1 = 49152
CSF = 65536
STAMP = 98304
PST = 131072
W45F = PST + 262144
KVX = W45F + 1310720
XP4 = KVX + 160 * QS
HP4 = XP4 + 160 * QS
WDF = HP4 + 160 * QS
ACT = WDF + 1966080
WS_END = ACT + 6291456
C_F1, C_FX, C_FW, C_FXR, C_B1, C_B2, C_FWR, C_F3 = 0, 10, 18, 26, 34, 42, 50, 64
SPIN = 100000

S_W = 3
S_K, S_V, S_SH, S_SK, S_X, S_WG, S_WU, S_WD, S_OUT, S_DBG, S_WS = 4, 8, 12, 16, 20, 24, 28, 32, 36, 40, 44
S_D = 48
sX, sJ, sG, sM, sQ, sRB, sCB, sA, sB, sRot = 50, 51, 52, 53, 54, 55, 56, 57, 58, 59
sT0, sT1, sT2, sT3, sT4, sT5, sT6, sT7 = 60, 61, 62, 63, 64, 65, 66, 67
sWoff, sWoff2, sSpin, sDv = 68, 69, 70, 71
sOne, sU0, sU1, sU2 = 72, 73, 74, 75
sRet = 48
NPAD = 8
S_STAMP = 76
NSTAMP = 13
sAB = 4
sL = [8, 9, 10, 11]
sPL, sPH, sFW, sSide, sArr = 16, 17, 18, 19, 23
sE = [None, 12, 13, 14]

GSTR = 4128
GW = 4 * GSTR
UBASE = 4 * GW
USTR = 4608
TILE = 40960
WS = sr(S_WS, 4)


def f32(x):
    return '0x%08x' % struct.unpack('<I', struct.pack('<f', x))[0]


class Gen:
    def __init__(self, diag=False, opt=None):
        self.a = Asm()
        self.diag = diag
        self.opt = dict(place=1, w_kv=0, w_e1=10, apoll=9, w_u=0, tb_pre=4, tb_mid=0, ssm=1, defer=0, wdp_from=24, a_ahead=14, sig='v', epi_rate=4.5,
                        fx_it=3, early_n=0, out_sc1=1, pads=1, wd_pre=20, wd_post=4, l2=10, wd_p1=11, chkb=40, sigc=39, wd_pre1=8, arr='s')
        if opt:
            self.opt.update(opt)
        self.cold = []

    PROF = {
        'main': [0, 1, 2, 3, 4, 5, 6, 7, 8, 9, 10, 11, 12],
        'front': [0, 'karg', 'issued', 1, 'kvdone', 2, 'tbpre', 'drained', 3, 'tbpost', 4, 'uload', 5],
        'e2': [0, 6, 'zbar', 7, 'hbar', 'hissued', 'hdrained', 'hbar2', 'arrived', 'wwritten', 'polled', 8, 'a0'],
        'g1': [0, 8, 'a0', 'p8', 'p16', 'p24', 'p32', 9, 't3', 't4', 't5', 10, 12],
        'g2a': [0, 't5', 10, 'm4', 'prechk1', 'chk1', 'm24', 'presig2', 'sig2', 'm44', 'm64', 'endA', 'm84'],
        'sum': [0, 'x1', 'x2', 'x3', 'x4', 'x5', 'x6', 7, 8, 'x9', 'x10', 'x11', 12],
        'side': [0, 'sx_in', 'sx_issued', 'sx_data', 'sx_bar', 'sx_st', 'sx_ld2', 'sx_dr', 1, 2, 6, 7, 8],
        'loop': [0, 4, 5, 'it1', 'it2', 'it3', 'it4', 'it5', 'it6', 'it7', 6, 7, 8],
        'g1b': [0, 9, 'q10', 'q20', 't3', 'presig0', 'sig0', 't4', 'prechk0', 'chk0', 'presig1', 'sig1', 't5'],
        'g2': [0, 't5', 10, 'chkb', 'sigc', 'endA', 'chkc0', 11, 'endB', 'endC', 'redbar', 'outst', 12],
    }

    def stamp(self, i):
        prof = self.PROF[self.opt.get('prof', 'main')]
        if self.diag and i in prof:
            i = prof.index(i)
            self.a(f'{"s_memtime" if self.opt.get("cyc") else "s_memrealtime"} {sr(S_STAMP + 2 * i, 2)}')

    def spin_atomic(self, soff, target, depth, vt):
        a = self.a
        top, done = a.label('spin'), a.label('done')
        with a.untracked():
            a(f's_mov_b32 s{sSpin}, {SPIN}')
            for d in range(depth - 1):
                a(f'v_mov_b32 v{vt + d}, 0')
                a(f'buffer_atomic_add v{vt + d}, off, {WS}, {soff} sc0 sc1')
                a(f's_sleep {self.opt.get("pslp", 3)}')
            a(f'{top}:')
            for d in range(depth):
                n = (d + depth - 1) % depth
                a(f'v_mov_b32 v{vt + n}, 0')
                a(f'buffer_atomic_add v{vt + n}, off, {WS}, {soff} sc0 sc1')
                a(f's_waitcnt vmcnt({depth - 1})')
                a(f'v_readfirstlane_b32 s{sT7}, v{vt + d}')
                a(f's_cmp_ge_u32 s{sT7}, {target}')
                a(f's_cbranch_scc1 {done}')
            a(f's_sub_u32 s{sSpin}, s{sSpin}, 1')
            a(f's_cbranch_scc0 {top}')
            a(f'{done}:')

    def spin(self, srd, soff, target, vt):
        a = self.a
        top, done = a.label('spin'), a.label('done')
        with a.untracked():
            a(f's_mov_b32 s{sSpin}, {SPIN}')
            a(f'{top}:')
            a(f'buffer_load_dword v{vt}, off, {sr(srd, 4)}, {soff} sc1')
            a('s_waitcnt vmcnt(0)')
            a(f'v_readfirstlane_b32 s{sT7}, v{vt}')
            a(f's_sub_u32 s{sSpin}, s{sSpin}, 1')
            a(f's_cbranch_scc1 {done}')
            a(f's_cmp_lt_u32 s{sT7}, {target}')
            a(f's_cbranch_scc1 {top}')
            a(f'{done}:')

    def check(self, srd, soff, target, vt):
        a = self.a
        slow, back = a.label('slow'), a.label('back')
        a(f'v_readfirstlane_b32 s{sT7}, v{vt}')
        a(f's_cmp_lt_u32 s{sT7}, {target}')
        a(f's_cbranch_scc1 {slow}')
        a(f'{back}:')

        def cold():
            a(f'{slow}:')
            self.spin(srd, soff, target, vt)
            a(f's_branch {back}')
        self.cold.append(cold)

    def wave0(self):
        g = self

        class W:
            def __enter__(s):
                s.l = g.a.label('nw0')
                g.a(f's_cmp_lg_u32 s{S_W}, 0')
                g.a(f's_cbranch_scc1 {s.l}')
                s.u = g.a.untracked()
                s.u.__enter__()
                g.a('s_mov_b64 exec, 1')

            def __exit__(s, *x):
                g.a('s_mov_b64 exec, -1')
                s.u.__exit__()
                g.a(f'{s.l}:')
        return W()

    def warm(self, sets):
        if not self.opt['pads']:
            return
        a = self.a
        for w, ks in enumerate(sets):
            if not ks:
                continue
            l = a.label('nw')
            a(f's_cmp_lg_u32 s{S_W}, {w + 1}')
            a(f's_cbranch_scc1 {l}')
            for k in ks:
                a(f's_call_b64 {sr(sRet, 2)}, .Lpad_{k}')
            a(f'{l}:')

    def arrive_start(self, items, pre=None):
        a = self.a
        l = a.label('noarr')
        for r, _ in items:
            a(f's_mov_b32 s{r}, 1')
        a(f's_cmp_lg_u32 s{S_W}, 0')
        a(f's_cbranch_scc1 {l}')
        with a.untracked():
            if pre:
                pre()
            a(f's_lshl_b32 s{sSpin}, s{sX}, 8')
            for r, line in items:
                a(f's_atomic_add s{r}, {sr(S_WS, 2)}, s{sSpin} offset:{line * 256} glc')
        a(f'{l}:')

    def arrive_finish(self, items, vt):
        a = self.a
        a('s_waitcnt lgkmcnt(0)')
        for r, last, rep in items:
            l = a.label('notlast')
            a(f's_cmp_lg_u32 s{r}, {last}')
            a(f's_cbranch_scc1 {l}')
            with a.untracked():
                a('s_mov_b64 exec, 0xff')
                a(f'v_lshlrev_b32 v{vt}, 8, v0')
                a(f's_mov_b32 s{sT7}, {rep * 256}')
                a(f'buffer_atomic_add v{self.vOne}, v{vt}, {WS}, s{sT7} offen sc1')
                a('s_mov_b64 exec, -1')
            a(f'{l}:')

    def two_level(self, soff, last, rep, scalar=False):
        a = self.a
        l = a.label('notlast')
        if scalar:
            a(f's_mov_b32 s{sT7}, 1')
            a(f's_atomic_add s{sT7}, {sr(S_WS, 2)}, {soff} glc')
            a('s_waitcnt lgkmcnt(0)')
        else:
            a(f'v_mov_b32 v{self.vTmp}, 1')
            a(f'buffer_atomic_add v{self.vTmp}, off, {WS}, {soff} sc0 sc1')
            a('s_waitcnt vmcnt(0)')
            a(f'v_readfirstlane_b32 s{sT7}, v{self.vTmp}')
        a(f's_cmp_lg_u32 s{sT7}, {last}')
        a(f's_cbranch_scc1 {l}')
        a('s_mov_b64 exec, 0xff')
        a(f'v_lshlrev_b32 v{self.vTmp}, 8, v0')
        a(f's_mov_b32 s{sT7}, {rep * 256}')
        a(f'buffer_atomic_add v{self.vOne}, v{self.vTmp}, {WS}, s{sT7} offen sc1')
        a(f'{l}:')

    def prologue(self):
        a = self.a
        a('s_cmp_ge_u32 s2, 0x100')
        a('s_cbranch_scc1 .Lend')
        self.stamp(0)
        for srd, off in ((S_K, 8), (S_WS, 96), (S_V, 16), (S_SH, 24), (S_SK, 32), (S_X, 0), (S_WG, 56), (S_WU, 64),
                         (S_WD, 72), (S_OUT, 80), (S_DBG, 88), (S_D, 40)):
            a(f's_load_dwordx2 {sr(srd, 2)}, s[0:1], {off}')
        a('v_lshrrev_b32 v1, 6, v0')
        a(f's_and_b32 s{sX}, s2, 7')
        a(f's_lshr_b32 s{sJ}, s2, 3')
        a(f'v_readfirstlane_b32 s{S_W}, v1')
        a('v_mov_b32 v1, v0')
        a('v_and_b32 v0, 63, v0')
        for srd, n in ((S_K, 2621440), (S_V, 2621440), (S_SH, 5120), (S_SK, 4096), (S_X, 2621440), (S_WG, 1966080),
                       (S_WU, 1966080), (S_WD, 1966080), (S_OUT, 2621440), (S_DBG, 256), (S_WS, WS_END)):
            a(f's_mov_b32 s{srd + 2}, {n}')
            a(f's_mov_b32 s{srd + 3}, 0x20000')
        a(f's_and_b32 s{sM}, s{sJ}, 15')
        a(f's_mov_b32 s{sG}, s{sX}')
        a(f's_cmp_lt_u32 s{sJ}, 16')
        a.snapshot('role')
        a('s_cbranch_scc1 .Lconv')
        a(f's_lshr_b32 s{sG}, s{sX}, 2')
        a(f's_add_u32 s{sG}, s{sG}, 8')
        a(f's_and_b32 s{sT0}, s{sX}, 3')
        a(f's_lshl2_add_u32 s{sM}, s{sT0}, s{sM}')
        a(f's_cmp_lt_u32 s{sJ}, 20')
        a('s_cbranch_scc1 .Lconv')
        with a.untracked():
            a(f's_cmp_lg_u32 s2, {self.opt.get("initwg", 208)}')
            a('s_cbranch_scc1 .Lnoinit')
            a('v_lshrrev_b32 v2, 3, v1')
            a('v_and_b32 v3, 7, v0')
            a('v_lshlrev_b32 v3, 4, v3')
            a('v_lshl_add_u32 v2, v2, 8, v3')
            for i in range(4):
                a(f'v_mov_b32 v{4 + i}, 0')
            a(f's_movk_i32 s{sT0}, 0x2000')
            a('s_waitcnt lgkmcnt(0)')
            a.fresh()
            a(f'buffer_store_dwordx4 v[4:7], v2, {WS}, 0 offen sc1')
            a(f'buffer_store_dwordx4 v[4:7], v2, {WS}, s{sT0} offen sc1')
            a('v_mov_b32 v3, 1')
            a('s_waitcnt vmcnt(0)')
            a('s_barrier')
            a(f's_cmp_lg_u32 s{S_W}, 0')
            a('s_cbranch_scc1 .Lside')
            a('s_mov_b64 exec, 1')
            a(f'buffer_store_dword v3, off, {sr(S_DBG, 4)}, 0 sc1')
            a('s_mov_b64 exec, -1')
            a('s_branch .Lside')
            a('.Lnoinit:')
            if self.opt.get('cpf', 1):
                a(f's_getpc_b64 {sr(sT0, 2)}')
                a('.Lpc:')
                a(f's_and_b32 s{sT2}, s{sJ}, 3')
                a(f's_lshl2_add_u32 s{sT2}, s{sT2}, s{S_W}')
                a(f's_mul_i32 s{sT2}, s{sT2}, {18 * 128}')
                a('v_min_u32 v2, 17, v0')
                a(f'v_lshl_add_u32 v2, v2, 7, s{sT2}')
                a('v_min_u32 v2, .Lcode_end-.Lpc-4, v2')
                a('v_mov_b32 v3, 0')
                a(f'v_lshl_add_u64 v[4:5], v[2:3], 0, {sr(sT0, 2)}')
                a('global_load_dword a253, v[4:5], off')
            a('s_branch .Lside')
        a('.Lconv:')
        a.fresh('role')

    def gemm_ids(self):
        a = self.a
        a(f's_lshr_b32 s{sRB}, s{sX}, 2')
        a(f's_lshr_b32 s{sT0}, s{sJ}, 2')
        a(f's_lshl3_add_u32 s{sRB}, s{sRB}, s{sT0}')
        a(f's_and_b32 s{sRot}, s{sX}, 3')
        a(f's_and_b32 s{sT0}, s{sJ}, 3')
        a(f's_lshl2_add_u32 s{sCB}, s{sRot}, s{sT0}')
        a(f's_and_b32 s{sT0}, s{sCB}, 1')
        a(f's_mul_i32 s{sA}, s{sCB}, 6')
        a(f's_add_u32 s{sB}, s{sA}, 4')
        a(f's_lshl1_add_u32 s{sA}, s{sT0}, s{sA}')
        a(f's_lshl_b32 s{sT1}, s{sT0}, 2')
        a(f's_sub_u32 s{sB}, s{sB}, s{sT1}')

    vWL, vWLb, vW45, vTmp, vTmp2, vOne, vPS = 254, 253, 252, 250, 249, 248, 251
    WRAW = [8, 40, 72, 104, 136]
    vWW = 236
    PT = 200

    def real_line(self, r, tmp):
        a = self.a
        if not self.opt.get('swz', 1):
            return
        a(f's_sub_u32 s{tmp}, s{r}, 3')
        a(f's_cmp_lt_u32 s{tmp}, 2')
        a(f's_cselect_b32 s{tmp}, 7, 0')
        a(f's_xor_b32 s{r}, s{r}, s{tmp}')
        a(f's_sub_u32 s{tmp}, s{r}, 10')
        a(f's_cmp_lt_u32 s{tmp}, 2')
        a(f's_cselect_b32 s{tmp}, 1, 0')
        a(f's_xor_b32 s{r}, s{r}, s{tmp}')

    def w_addr(self):
        a = self.a
        t = self.vTmp
        a(f's_lshr_b32 s{sT1}, s{sA}, 2')
        self.real_line(sT1, sT0)
        a(f's_lshl_b32 s{sT1}, s{sT1}, 7')
        a(f'v_and_b32 v{t}, 7, v0')
        a(f'v_lshl_add_u32 v{self.vWLb}, v{t}, 4, s{sT1}')
        a(f's_lshr_b32 s{sT0}, s{S_W}, 1')
        a(f's_lshl_b32 s{sT0}, s{sT0}, 6')
        a(f's_mul_i32 s{sWoff}, s{sRot}, 160')
        a(f's_add_u32 s{sWoff}, s{sWoff}, s{sT0}')
        a(f's_mul_i32 s{sT0}, s{sCB}, {80 * 1024}')
        a(f's_add_u32 s{sT0}, s{sT0}, {W45F}')
        a(f'v_lshl_add_u32 v{self.vW45}, v0, 4, s{sT0}')
        a(f's_mul_i32 s{sWoff2}, s{sRot}, 10')
        a(f's_add_u32 s{sWoff2}, s{sWoff2}, s{S_W}')
        a(f's_lshl_b32 s{sWoff2}, s{sWoff2}, 10')
        a(f'v_mov_b32 v{self.vOne}, 1')
        a(f's_lshl2_add_u32 s{sT0}, s{sRB}, s{S_W}')
        a(f's_lshl_b32 s{sT0}, s{sT0}, 12')
        a(f'v_and_b32 v{t}, 31, v0')
        a(f'v_lshl_add_u32 v{self.vPS}, v{t}, 3, s{sT0}')
        a(f'v_lshrrev_b32 v{t}, 5, v0')
        a(f'v_lshl_add_u32 v{self.vPS}, v{t}, 11, v{self.vPS}')

    def w_select(self):
        a = self.a
        a(f's_bitcmp1_b32 s{S_W}, 0')
        a(f's_cselect_b32 s{S_WG}, s{S_WU}, s{S_WG}')
        a(f's_cselect_b32 s{S_WG + 1}, s{S_WU + 1}, s{S_WG + 1}')
        for i in range(1, 4):
            a(f's_movk_i32 s{sE[i]}, {6144 * i}')
        a(f's_movk_i32 s15, 3072')

    def clear_pst(self, v2):
        return [f'v_mov_b32 v{v2}, -1', f'v_mov_b32 v{v2 + 1}, -1',
                f's_lshl_b32 s{sU0}, s{sCB}, 8', f's_add_u32 s{sU0}, s{sU0}, {PST}',
                ['s_mov_b32 exec_hi, 0',
                 f'buffer_store_dwordx2 {vr(v2, 2)}, v{self.vPS}, {WS}, s{sU0} offen sc1',
                 's_mov_b32 exec_hi, -1']]

    def w_loads_main(self, park=False):
        out = []
        t, t2 = self.vTmp, self.vTmp2
        for b in range(5):
            for e in range(8):
                g = []
                if e == 0:
                    g = [f'v_and_b32 v{t}, 56, v0', f'v_add_u32 v{t}, s{sWoff}, v{t}', f'v_subrev_u32 v{t2}, 640, v{t}',
                         f'v_min_u32 v{t}, v{t}, v{t2}', f'v_mad_u32_u24 v{self.vWL}, v{t}, s15, v{self.vWLb}',
                         f's_add_u32 s{sWoff}, s{sWoff}, 128']
                so = f's{sE[e >> 1]}' if e >> 1 else '0'
                dst = ar(208 + 4 * e, 4) if park and b == 4 else vr(self.WRAW[b] + 4 * e, 4)
                g.append(f'buffer_load_dwordx4 {dst}, v{self.vWL}, {sr(S_WG, 4)}, {so} offen offset:{3072 * (e & 1)}')
                out.append(g)
        return out

    def w_loads_tail(self):
        out = []
        for i in range(20):
            if i & 1:
                g = [f's_add_u32 s{sU1}, s{sWoff2}, {TILE}',
                     f'buffer_load_dwordx4 {ar(160 + 4 * i, 4)}, v{self.vW45}, {WS}, s{sU1} offen sc1']
            else:
                g = []
                if i:
                    g = [f's_add_u32 s{sWoff2}, s{sWoff2}, 4096',
                         [f's_sub_u32 s{sU1}, s{sWoff2}, {TILE}', f's_cselect_b32 s{sWoff2}, s{sWoff2}, s{sU1}']]
                g.append(f'buffer_load_dwordx4 {ar(160 + 4 * i, 4)}, v{self.vW45}, {WS}, s{sWoff2} offen sc1')
            out.append(g)
        return out

    def w_write_addr(self):
        a = self.a
        t, t2 = self.vTmp, self.vTmp2
        a(f's_lshr_b32 s{sT0}, s{S_W}, 1')
        a(f's_lshl_b32 s{sT0}, s{sT0}, 12')
        a(f's_and_b32 s{sT1}, s{S_W}, 1')
        a(f's_lshl_b32 s{sT1}, s{sT1}, 7')
        a(f's_add_u32 s{sT0}, s{sT0}, s{sT1}')
        a(f'v_lshrrev_b32 v{t}, 3, v0')
        a(f'v_lshl_add_u32 v{t}, v{t}, 9, s{sT0}')
        a(f'v_and_b32 v{t2}, 1, v0')
        a(f'v_lshl_add_u32 v{t}, v{t2}, 6, v{t}')
        a(f'v_bfe_u32 v{t2}, v0, 1, 2')
        a(f's_mov_b32 s{sT0}, {TILE + 16}')
        a(f'v_mad_u32_u24 v{self.vWW}, v{t2}, s{sT0}, v{t}')
        for q in range(1, 4):
            a(f'v_xor_b32 v{self.vWW + q}, {16 * q}, v{self.vWW}')
        a(f's_mov_b32 s{sPL}, 0x05040100')
        a(f's_mov_b32 s{sPH}, 0x07060302')

    def w_writes_main(self):
        out = []
        for b in range(5):
            for c8 in range(8):
                p = self.PT + 4 * (c8 & 3) if b < 5 - self.opt.get('defer', 2) else (228 if c8 & 1 else 242)
                r = self.WRAW[b] + (c8 >> 1)
                g = [f'v_perm_b32 v{p + d}, v{r + 8 * d + 4}, v{r + 8 * d}, s{sPH if c8 & 1 else sPL}' for d in range(4)]
                g.append(f'ds_write_b128 v{self.vWW + (c8 & 3)}, {vr(p, 4)} offset:{b * 8192 + (c8 >> 2) * 256}')
                out.append(g)
        return out

    def conv(self):
        a = self.a
        o = self.opt
        vK, vKh, vC, vR, vSHa, vL16 = 1, 2, 3, 4, 5, 6
        SH = 8
        KR = 16
        VR = 38
        WF = 56
        KF = 72
        O = 120
        SK = 136
        KV = 168
        VF = 200
        vSW, vSR, vKS, vG, vBa, vAa, vZR, vZR2, vUL, vUW, vI7, vGZ, vXS, vHS, vFl, vPrev = range(232, 248)
        ZERO, AD = 224, 240
        vAa2 = vZR2
        a(f's_lshl4_add_u32 s{sQ}, s{sG}, s{sM}')
        a(f'v_and_b32 v{vC}, 15, v0')
        a(f'v_lshrrev_b32 v{vR}, 4, v0')
        a(f's_lshl2_add_u32 s{sT0}, s{sM}, s{S_W}')
        a(f's_mul_i32 s{sT0}, s{sT0}, {32 * 1280}')
        a(f's_lshl_b32 s{sT1}, s{sG}, 7')
        a(f's_add_u32 s{sT0}, s{sT0}, s{sT1}')
        a(f's_movk_i32 s{sT2}, {8 * 1280}')
        a(f'v_lshl_add_u32 v{vK}, v{vC}, 3, s{sT0}')
        a(f'v_mad_u32_u24 v{vK}, v{vR}, s{sT2}, v{vK}')
        a(f'v_subrev_u32 v{vKh}, 3840, v{vK}')
        a(f's_lshl_b32 s{sT1}, s{sG}, 9')
        a(f'v_lshl_add_u32 v{vSHa}, v{vC}, 5, s{sT1}')
        a(f's_movk_i32 s{sT3}, 5120')
        a(f'v_lshlrev_b32 v{vL16}, 4, v0')

        def addr_phase_a():
            a(f'v_subrev_u32 v{vPrev}, 8, v{vL16}')
            a(f's_mul_i32 s{sT0}, s{S_W}, {USTR}')
            a(f's_add_u32 s{sT0}, s{sT0}, {UBASE}')
            a(f's_movk_i32 s{sT1}, 272')
            a(f'v_lshl_add_u32 v{vSW}, v{vR}, 4, s{sT0}')
            a(f'v_mad_u32_u24 v{vSW}, v{vC}, s{sT1}, v{vSW}')
            a(f'v_lshl_add_u32 v{vSR}, v{vC}, 4, s{sT0}')
            a(f'v_mad_u32_u24 v{vSR}, v{vR}, s{sT1}, v{vSR}')
            a(f'v_add_u32 v{vUW}, s{sT0}, v{vL16}')
            a(f's_add_u32 s{sT0}, s{sT0}, 32')
            a(f'v_lshl_add_u32 v{vBa}, v{vC}, 5, s{sT0}')
            a(f'v_lshl_add_u32 v{vBa}, v{vR}, 4, v{vBa}')
            a(f's_mul_i32 s{sT0}, s{sG}, {16 * QS}')
            a(f's_lshl2_add_u32 s{sT1}, s{sM}, s{S_W}')
            a(f's_lshl_b32 s{sT1}, s{sT1}, 8')
            a(f's_add_u32 s{sT0}, s{sT0}, s{sT1}')
            a(f's_mov_b32 s{sT1}, {QS}')
            a(f'v_lshl_add_u32 v{vKS}, v{vC}, 4, s{sT0}')
            a(f'v_mad_u32_u24 v{vKS}, v{vR}, s{sT1}, v{vKS}')

        def addr_rest():
            self.gemm_ids()
            self.w_addr()
            a(f's_mul_i32 s{sT5}, s{S_W}, {GW}')
            a(f'v_add_u32 v{vG}, s{sT5}, v{vL16}')
            a(f'v_bfe_u32 v{vAa}, v0, 2, 2')
            a(f'v_sub_u32 v{vAa}, v{vAa}, v{vR}')
            a(f'v_sub_u32 v{vAa}, v{vAa}, v{vR}')
            a(f's_add_u32 s{sT0}, s{sT5}, 56')
            a(f'v_lshl_add_u32 v{vAa}, v{vAa}, 3, s{sT0}')
            a(f'v_and_b32 v{vI7}, 3, v0')
            a(f's_movk_i32 s{sT1}, {GSTR}')
            a(f'v_mad_u32_u24 v{vAa}, v{vI7}, s{sT1}, v{vAa}')
            a(f'v_add_u32 v{vAa2}, 0x800, v{vAa}')
            a(f'v_and_b32 v{vGZ}, 16, v0')
            a(f'v_add_u32 v{vGZ}, s{sT5}, v{vGZ}')
            a(f'v_mad_u32_u24 v{vGZ}, v{vI7}, s{sT1}, v{vGZ}')
            a(f'v_and_b32 v{vI7}, 7, v0')
            a(f's_mul_i32 s{sT6}, s{sQ}, {QS}')
            a(f's_lshl_b32 s{sT1}, s{S_W}, 6')
            a(f's_add_u32 s{sT0}, s{sT6}, s{sT1}')
            a(f'v_and_b32 v{vUL}, 3, v0')
            a(f'v_lshl_add_u32 v{vUL}, v{vUL}, 4, s{sT0}')
            a(f'v_lshrrev_b32 v{vXS}, 2, v0')
            a(f'v_lshl_add_u32 v{vUL}, v{vXS}, 8, v{vUL}')
            a(f's_lshl_b32 s{sT0}, s{S_W}, 12')
            a(f'v_add_u32 v{vXS}, s{sT0}, v{vL16}')
            a(f's_add_u32 s{sT0}, s{sT0}, s{sT6}')
            a(f'v_add_u32 v{vHS}, s{sT0}, v{vL16}')
            a(f's_lshl_b32 s{sT0}, s{S_W}, 11')
            a(f'v_add_u32 v{vZR}, s{sT0}, v{vL16}')
            for i in range(4):
                a(f'v_mov_b32 v{ZERO + i}, 0')
        if o.get('addr_early', 0) >= 1:
            addr_phase_a()
        if o.get('addr_early', 0) >= 2:
            addr_rest()
        a.need(sr(S_WS, 2))
        self.stamp('karg')
        a(f'buffer_load_dwordx4 {vr(SH, 4)}, v{vSHa}, {sr(S_SH, 4)}, 0 offen')
        a(f'buffer_load_dwordx4 {vr(SH + 4, 4)}, v{vSHa}, {sr(S_SH, 4)}, 0 offen offset:16')
        for r in range(3):
            a(f'buffer_load_dwordx2 {vr(KR + 2 * r, 2)}, v{vKh}, {sr(S_K, 4)}, 0 offen offset:{r * 1280}')
        for r in range(8):
            so = f's{sT3}' if r >= 4 else '0'
            a(f'buffer_load_dwordx2 {vr(KR + 6 + 2 * r, 2)}, v{vK}, {sr(S_K, 4)}, {so} offen offset:{(r & 3) * 1280}')
            a(f'buffer_load_dwordx2 {vr(VR + 2 * r, 2)}, v{vK}, {sr(S_V, 4)}, {so} offen offset:{(r & 3) * 1280}')
        self.stamp('issued')
        if o.get('tlb'):
            a(f'v_lshlrev_b32 v228, {o["tlb"]}, v0')
            a(f'buffer_load_dword v229, v228, {WS}, 0 offen sc1')
            a(f'buffer_load_dword v228, v228, {sr(S_OUT, 4)}, 0 offen sc1')
        if o.get('addr_early', 0) < 1:
            addr_phase_a()
        if o.get('addr_early', 0) < 2:
            addr_rest()
        a(f's_lshl2_add_u32 s{sT0}, s{sQ}, s{S_W}')
        a(f's_lshl_b32 s{sT1}, s{sT0}, 12')
        a(f's_add_u32 s{S_SK}, s{S_SK}, s{sT1}')
        a(f's_addc_u32 s{S_SK + 1}, s{S_SK + 1}, 0')
        a(f's_lshl_b32 s{sT0}, s{sT0}, 1')
        a(f's_and_b32 s{sT0}, s{sT0}, -4')
        a(f's_load_dword s{sDv}, {sr(S_D, 2)}, s{sT0}')
        ssm = []
        for j in range(4):
            ssm.append(f'buffer_load_dwordx4 {vr(SK + 8 * j + 4, 4)}, v{vL16}, {sr(S_SK, 4)}, 0 offen offset:{1024 * j}')
            if j == 0:
                ssm.append(f'buffer_load_dwordx2 {vr(SK + 2, 2)}, v{vPrev}, {sr(S_SK, 4)}, 0 offen')
            else:
                ssm.append(f'buffer_load_dwordx2 {vr(SK + 8 * j + 2, 2)}, v{vL16}, {sr(S_SK, 4)}, 0 offen offset:{1024 * j - 8}')
        if o.get('ssm', 1) == 0:
            a(ssm)
        self.w_select()
        self.warm([[0], [1], []])
        park = o.get('park', 1)
        wl = self.w_loads_main(park)

        def w_some(n):
            for _ in range(n):
                a(wl.pop(0))
        a(f's_mov_b32 s{sT2}, 0xffff0000')
        for ch in range(4):
            for j in range(4):
                src = SH + 2 * ch + (j >> 1)
                if j & 1:
                    a(f'v_and_b32 v{WF + 4 * j + ch}, s{sT2}, v{src}')
                else:
                    a(f'v_lshlrev_b32 v{WF + 4 * j + ch}, 16, v{src}')

        def unpack(dst, src):
            a(f'v_lshlrev_b32 v{dst}, 16, v{src}')
            a(f'v_and_b32 v{dst + 1}, s{sT2}, v{src}')
            a(f'v_lshlrev_b32 v{dst + 2}, 16, v{src + 1}')
            a(f'v_and_b32 v{dst + 3}, s{sT2}, v{src + 1}')
        for r in range(3):
            unpack(KF + 4 * r, KR + 2 * r)
        self.stamp(1)
        for r in range(8):
            unpack(KF + 4 * (r + 3), KR + 2 * (r + 3))
            vf = VF + 4 * (r & 1)
            for j in (3, 2, 1, 0):
                for p in range(2):
                    d = vr(KV + 4 * r + 2 * p, 2)
                    k = vr(KF + 4 * (r + 3 - j) + 2 * p, 2)
                    w = vr(WF + 4 * j + 2 * p, 2)
                    if j == 3:
                        a(f'v_pk_mul_f32 {d}, {k}, {w}')
                    else:
                        a(f'v_pk_fma_f32 {d}, {k}, {w}, {d}')
                if j == 3:
                    unpack(vf, VR + 2 * r)
            for p in range(2):
                d = vr(KV + 4 * r + 2 * p, 2)
                a(f'v_pk_mul_f32 {d}, {d}, {vr(vf + 2 * p, 2)}')
            if o.get('ssm', 1) == 1:
                a(ssm.pop(0))
            if r & 1:
                d = (7 - r) >> 1
                for ch in range(4):
                    a(f'v_cvt_pk_bf16_f32 v{O + 4 * ch + d}, v{KV + 4 * r + ch}, v{KV + 4 * (r - 1) + ch}')
        self.stamp('kvdone')
        for ch in range(4):
            a(f'ds_write_b128 v{vSW}, {vr(O + 4 * ch, 4)} offset:{ch * 64}')
        for j in range(4):
            a(f'ds_read_b128 {vr(KV + 4 * j, 4)}, v{vSR} offset:{j * 1088}')
        a(f'buffer_load_dword v{vFl}, off, {sr(S_DBG, 4)}, 0 sc1')
        a(f's_mov_b32 s{sT0}, {KVX}')
        for j in range(4):
            a(f'buffer_store_dwordx4 {vr(KV + 4 * j, 4)}, v{vKS}, {WS}, s{sT0} offen sc1')
            if j < 3:
                a(f's_add_u32 s{sT0}, s{sT0}, {4 * QS}')
        self.stamp(2)
        if o.get('ssm', 1) == 2:
            a(ssm)
        a(f'ds_write_b128 v{vUW}, {vr(ZERO, 4)}')
        a(f'ds_write_b128 v{vGZ}, {vr(ZERO, 4)}')

        def table(j):
            D = SK + 8 * j
            Ea, Eb, Db = 184 + 12 * (j & 1), 184 + 12 * (j & 1) + 4, 184 + 12 * (j & 1) + 8

            def wr(rho, reg):
                a(f'ds_write_b128 v{vG}, {vr(reg, 4)} offset:{rho * GSTR + 1024 * j + 32}')
            wr(3, D + 4)
            for i in range(2):
                a(f'v_pk_mov_b32 {vr(Db + 2 * i, 2)}, {vr(D + 2 + 2 * i, 2)}, {vr(D + 4 + 2 * i, 2)} op_sel:[1,0]')
            for i in range(4):
                a(f'v_alignbit_b32 v{Ea + i}, v{D + 3 + i}, v{D + 2 + i}, 16')
            wr(1, Db)
            wr(0, Ea)
            for i in range(4):
                a(f'v_alignbit_b32 v{Eb + i}, v{D + 4 + i}, v{D + 3 + i}, 16')
            wr(2, Eb)
        w_some(o['w_kv'])
        n1, n2 = o['tb_pre'], o['tb_pre'] + o['tb_mid']
        for j in range(n1):
            table(j)
        a.need(f's{sDv}')
        a(f's_and_b32 s{sT1}, s{S_W}, 1')
        a(f's_lshl_b32 s{sT1}, s{sT1}, 4')
        a(f's_lshr_b32 s{sDv}, s{sDv}, s{sT1}')
        a(f's_and_b32 s{sDv}, s{sDv}, 0xffff')
        a(f'v_sub_u32 v5, 7, v{vI7}')
        a(f'v_and_b32 v7, 1, v5')
        a(f'v_lshlrev_b32 v7, 4, v7')
        a(f'v_lshlrev_b32 v7, v7, s{sDv}')
        a(f'v_bfe_u32 v1, v0, 3, 1')
        a(f'v_add_u32 v1, 2, v1')
        a(f'v_cmp_eq_u32 vcc, v1, v{vR}')
        a(f'v_cndmask_b32 v7, 0, v7, vcc')
        a(f'v_lshrrev_b32 v5, 1, v5')
        for d in range(4):
            a(f'v_cmp_eq_u32 vcc, {d}, v5')
            a(f'v_cndmask_b32 v1, 0, v7, vcc')
            a(f'v_accvgpr_write_b32 a{AD + d}, v1')
        self.stamp('tbpre')
        a.drain_stores()
        self.stamp('drained')
        a('s_barrier')
        self.stamp(3)
        a(f's_lshl_b32 s{sT0}, s{sG}, 8')
        with self.wave0():
            self.check(S_DBG, '0', 1, vFl)
            if o.get('apoll') == 9:
                a(f's_mov_b32 s{sU2}, 1')
                a(f's_atomic_add s{sU2}, {sr(S_WS, 2)}, s{sT0} glc')
            else:
                a(f'buffer_atomic_add v{self.vOne}, off, {WS}, s{sT0} sc1')
        w_some(o['w_e1'])
        for j in range(n1, n2):
            table(j)
        ACC = 128
        BUF = (0, 64)
        XR, SR, XF = 136, 152, 168

        def rdA(it, t):
            o0 = 8 * it + 64 * (t & 3)
            return f'ds_read2_b64 {ar(BUF[it & 1] + 4 * t, 4)}, v{vAa2 if t & 4 else vAa} offset0:{o0} offset1:{o0 + 1}'

        def rdB(it, t):
            return f'ds_read_b128 {ar(BUF[it & 1] + 32 + 4 * t, 4)}, v{vBa} offset:{448 - 64 * it + 512 * t}'
        if n2 == 4:
            for t in range(8):
                a(rdA(0, t))
        self.stamp('tbpost')
        self.warm([[2], [], []])
        with self.wave0():
            if o.get('apoll') == 9:
                top, done = a.label('spin'), a.label('done')
                a(f's_mov_b32 s{sSpin}, {SPIN}')
                a('s_waitcnt lgkmcnt(0)')
                a(f's_cmp_ge_u32 s{sU2}, 15')
                a(f's_cbranch_scc1 {done}')
                a(f'{top}:')
                a(f's_mov_b32 s{sU2}, 0')
                a(f's_atomic_add s{sU2}, {sr(S_WS, 2)}, s{sT0} glc')
                a(f's_sub_u32 s{sSpin}, s{sSpin}, 1')
                a(f's_cbranch_scc1 {done}')
                a('s_waitcnt lgkmcnt(0)')
                a(f's_cmp_lt_u32 s{sU2}, 16')
                a(f's_cbranch_scc1 {top}')
                a(f'{done}:')
                a('s_waitcnt lgkmcnt(0)')
            elif o.get('apoll'):
                self.spin_atomic(f's{sT0}', 16, o['apoll'], 1)
            else:
                self.spin(S_WS, f's{sT0}', 0 if o.get('noe1') else 16, vFl)
        a('s_barrier')
        self.stamp(4)
        a(f's_mov_b32 s{sT0}, {KVX}')
        for j in range(4):
            a(f'buffer_load_dwordx4 {ar(BUF[1] + 4 * j, 4)}, v{vUL}, {WS}, s{sT0} offen sc1')
            if j < 3:
                a(f's_add_u32 s{sT0}, s{sT0}, 4096')
        w_some(o['w_u'])
        for j in range(n2, 4):
            table(j)
        if n2 < 4:
            for t in range(8):
                a(rdA(0, t))
        a(f's_lshl_b32 s{sT3}, s{sX}, 8')
        a(f's_add_u32 s{sT3}, s{sT3}, {C_FXR * 256}')
        a(f's_mov_b32 s{sT4}, {ST1}')
        a(f's_add_u32 s{sT6}, s{sT6}, {XP4}')
        for j in range(4):
            a(f'ds_write_b128 v{vUW}, {ar(BUF[1] + 4 * j, 4)} offset:{512 + 1024 * j}')
            if j == 0:
                self.stamp('uload')
            a(rdB(0, 2 * j))
            a(rdB(0, 2 * j + 1))
        self.stamp(5)
        fx = o['fx_it']
        xl = []
        for T in range(2):
            for p in range(2):
                off = 2048 * T + 1024 * p
                xl.append([f'buffer_load_dwordx4 {vr(XR + 8 * T + 4 * p, 4)}, v{vXS}, {WS}, s{sT6} offen offset:{off} sc1'])
                xl.append([f'buffer_load_dwordx4 {vr(SR + 8 * T + 4 * p, 4)}, v{vXS}, {WS}, s{sT4} offen offset:{off} sc1'])
        if o.get('nowl'):
            wl = [g[:-1] + [[]] for g in wl]
        wt = self.w_loads_tail()
        if park:
            early, late = wl, xl + wt[:12]
            self.win_pre = [f'v_accvgpr_read_b32 v{self.WRAW[4] + i}, a{208 + i}' for i in range(32)]
            self.win_loads = wt[12:]
        else:
            early, late = wl[:-8], xl + wt
            self.win_pre = wl[-8][:-1]
            self.win_loads = [wl[-8][-1]] + wl[-7:]
        tot = len(early) + len(late)
        per = [(tot * (i + 1)) // 8 - (tot * i) // 8 for i in range(8)]
        plan = []
        for it in range(8):
            n = per[it]
            if it <= fx + 1:
                n = min(max(n, o.get('early_n', 0)), len(early))
                plan.append([early.pop(0) for _ in range(n)])
            else:
                rest = late[:8] + early + late[8:] if it == fx + 2 else rest
                early = late = []
                n = (len(rest) + 7 - it) // (8 - it)
                plan.append([rest.pop(0) for _ in range(n)])
        for it in range(8):
            A, B = BUF[it & 1], BUF[it & 1] + 32
            mf = []
            endT = []
            for T in range(8):
                c = ar(ACC + 4 * T, 4)
                if it == 0:
                    mf.append(f'v_mfma_f32_16x16x32_bf16 {c}, {ar(AD, 4)}, {ar(B + 4 * T, 4)}, 0')
                for t in range(T + 1):
                    mf.append(f'v_mfma_f32_16x16x32_bf16 {c}, {ar(A + 4 * t, 4)}, {ar(B + 4 * (T - t), 4)}, {c}')
                endT.append(len(mf) - 1)
            fill = [[] for _ in mf]
            base = 8 if it == 0 else 0
            if it < 7:
                rd = [x for t in range(8) for x in (rdA(it + 1, t), rdB(it + 1, t))]
                for i, x in enumerate(rd):
                    fill[base + 2 * i].append(x)
            zw = [f'ds_write_b128 v{vG}, {ar(ACC + 4 * T, 4)} offset:{1024 * T}' for T in range(8)]
            if it == 7:
                for T in range(o.get('z_in', 7)):
                    fill[max(endT[T] + 5, 6 + 4 * T)].append(zw.pop(0))
            n = len(plan[it])
            pos = base
            for i, g in enumerate(plan[it]):
                p = max(base + ((i + 1) * 35) // n, pos)
                k = len(g) - 1
                for z, x in enumerate(g[:-1]):
                    fill[max(pos, p - (k - z + 1) // 2)].append(x)
                fill[p].append(g[-1])
                pos = p
            if it == 0:
                for i, x in enumerate(self.clear_pst(228)):
                    fill[i].append(x)
            if it == fx:
                fill[-1].append(f'buffer_load_dword v{vFl}, off, {WS}, s{sT3} sc1')
            if it == fx + 1:
                fill[-1].append(lambda: self.check(S_WS, f's{sT3}', 0 if o.get('nofx') else 8, vFl))
            if it == 7:
                fill[0].append(f's_add_u32 s{sFW}, s{sT3}, {(C_FWR - C_FXR) * 256}')

            if it == 0:
                unp = []
                for T in range(2):
                    for row in range(4):
                        src = XR + 8 * T + 2 * row
                        xf = XF + 16 * T + 4 * row
                        st = SR + 8 * T + 2 * row
                        unp += [f'v_lshlrev_b32 v{xf}, 16, v{src}', f'v_and_b32 v{xf + 1}, s{sT2}, v{src}',
                                f'v_lshlrev_b32 v{xf + 2}, 16, v{src + 1}', f'v_and_b32 v{xf + 3}, s{sT2}, v{src + 1}']
                        unp += [f'v_fma_f32 v{xf + 32 + c}, v{xf + c}, v{st}, v{st + 1}' for c in range(4)]
            u0 = o.get('unp_at', 36 * 6 + 14)
            for i, x in enumerate(unp):
                p = u0 + (i * (36 * 8 - u0)) // 64
                if p // 36 == it:
                    fill[p % 36].append(x)
            self.stamp(f'it{it}')
            if it > 0:
                a.need(ar(A, 24 if it < 7 else 32), ar(B, 24))
            for m, f in zip(mf, fill):
                a(m)
                a(f)
        self.stamp(6)
        a(zw)
        a('s_waitcnt lgkmcnt(0)')
        a('s_barrier')
        self.stamp('zbar')
        Z = XR
        for T in range(2):
            for ch in range(4):
                a(f'ds_read_b128 {vr(Z + 16 * T + 4 * ch, 4)}, v{vZR} offset:{ch * GW + 1024 * T}')
        a(f's_mov_b32 s{sT0}, {HP4}')
        for T in range(2):
            for p in range(2):
                ho = XF + 32 + 16 * T + 8 * p
                for b in range(2):
                    row = 2 * p + b
                    for c in range(4):
                        x = XF + 16 * T + 4 * row + c
                        a(f'v_fmac_f32 v{x}, v{x + 32}, v{Z + 16 * T + 4 * c + row}')
                    for c2 in range(2):
                        x = XF + 16 * T + 4 * row + 2 * c2
                        a(f'v_cvt_pk_bf16_f32 v{ho + 2 * b + c2}, v{x}, v{x + 1}')
                a(f'buffer_store_dwordx4 {vr(ho, 4)}, v{vHS}, {WS}, s{sT0} offen offset:{2048 * T + 1024 * p} sc1')
        self.stamp(7)

    def arrive_e2(self):
        a = self.a
        a(f's_lshl_b32 s{sT0}, s{sX}, 8')
        a(f's_add_u32 s{sT0}, s{sT0}, {C_B1 * 256}')
        with self.wave0():
            self.two_level(f's{sT0}', 31, C_B2, self.opt['arr'] == 's')

    def side(self):
        a = self.a
        a('.Lside:')
        a.fresh('role')
        self.stamp('sx_in')
        vTid = 1
        a(f's_sub_u32 s{sG}, s{sJ}, 20')
        a(f's_lshl3_add_u32 s{sG}, s{sG}, s{sX}')
        J2, vJ2, sG2, sJo, sJs = 136, 230, sQ, sDv, sM
        up = self.opt.get('up', 1)

        def job2_loads():
            a(f's_add_u32 s{sG2}, s{sG}, {48 if self.opt.get("pair", 1) else 0}')
            a(f's_sub_u32 s{sT0}, s{sG2}, 96')
            a(f's_cselect_b32 s{sG2}, s{sG2}, s{sT0}')
            a(f's_cmp_ge_u32 s{sG2}, 72')
            a(f's_cselect_b32 s{sT2}, s{S_WU}, s{S_WG}')
            a(f's_cselect_b32 s{sT3}, s{S_WU + 1}, s{S_WG + 1}')
            a(f's_cselect_b32 s{sT1}, 72, 48')
            a(f's_sub_u32 s{sT1}, s{sG2}, s{sT1}')
            a(f's_lshr_b32 s{sT0}, s{sG2}, 1')
            a(f's_cmp_ge_u32 s{sG2}, 48')
            a(f's_cselect_b32 s{S_WD}, s{sT2}, s{S_WD}')
            a(f's_cselect_b32 s{S_WD + 1}, s{sT3}, s{S_WD + 1}')
            a(f's_cselect_b32 s{sT0}, s{sT1}, s{sT0}')
            self.real_line(sT0, sT2)
            a(f's_and_b32 s{sT2}, s{sG2}, 1')
            a(f's_lshl1_add_u32 s{sT2}, s{sT0}, s{sT2}')
            a(f's_mul_i32 s{sT2}, s{sT2}, {32 * 1280}')
            a(f's_lshl_b32 s{sT0}, s{sT0}, 7')
            a(f's_movk_i32 s{sT1}, 1280')
            a(f's_movk_i32 s{sJs}, 128')
            a(f's_cmp_ge_u32 s{sG2}, 48')
            a(f's_cselect_b32 s{sJo}, s{sT0}, s{sT2}')
            a(f's_cselect_b32 s{sT1}, 3072, s{sT1}')
            a(f's_cselect_b32 s{sJs}, {32 * 3072}, s{sJs}')
            a(f'v_and_b32 v{vJ2}, 7, v0')
            a(f'v_lshlrev_b32 v{vJ2}, 4, v{vJ2}')
            a(f'v_lshrrev_b32 v15, 3, v{vTid}')
            a(f'v_mad_u32_u24 v{vJ2}, v15, s{sT1}, v{vJ2}')
            for j in range(10):
                a(f'buffer_load_dwordx4 {vr(J2 + 4 * j, 4)}, v{vJ2}, {sr(S_WD, 4)}, s{sJo} offen')
                a(f's_add_u32 s{sJo}, s{sJo}, s{sJs}')
        a(f's_cmp_ge_u32 s{sG}, 64')
        a.snapshot('s4')
        a('s_cbranch_scc1 .Ls4')
        XR, WR = 16, J2
        vA, vRow, vS8 = 2, 3, 4
        a(f'v_lshrrev_b32 v{vRow}, 3, v{vTid}')
        a(f'v_and_b32 v{vS8}, 7, v0')
        a(f's_lshr_b32 s{sT0}, s{sG}, 3')
        a(f's_lshl_b32 s{sT0}, s{sT0}, 8')
        a(f's_and_b32 s{sT1}, s{sG}, 3')
        a(f's_lshl2_add_u32 s{sT0}, s{sT1}, s{sT0}')
        a(f's_bfe_u32 s{sT1}, s{sG}, 0x10002')
        a(f's_lshl1_add_u32 s{sT0}, s{sT1}, s{sT0}')
        a(f'v_and_b32 v5, 0xf0, v{vTid}')
        a(f'v_and_b32 v6, 1, v{vRow}')
        a(f'v_add3_u32 v5, v5, v6, s{sT0}')
        a(f's_movk_i32 s{sT1}, 1280')
        a(f'v_lshlrev_b32 v6, 4, v{vS8}')
        a(f'v_mad_u32_u24 v5, v5, s{sT1}, v6')
        for j in range(10):
            a(f'buffer_load_dwordx4 {vr(XR + 4 * j, 4)}, v5, {sr(S_X, 4)}, 0 offen offset:{128 * j}')
        if up == 1:
            job2_loads()
        self.stamp('sx_issued')
        self.gemm_ids()
        self.w_addr()
        vW, vRd, vSt = 5, 6, 7
        a(f's_movk_i32 s{sT1}, 528')
        a(f'v_lshlrev_b32 v{vW}, 3, v{vRow}')
        a(f'v_mad_u32_u24 v{vW}, v{vS8}, s{sT1}, v{vW}')
        a(f'v_and_b32 v{vRd}, 31, v0')
        a(f'v_lshlrev_b32 v{vRd}, 4, v{vRd}')
        a(f'v_lshrrev_b32 v8, 5, v{vTid}')
        a(f'v_mad_u32_u24 v{vRd}, v8, s{sT1}, v{vRd}')
        a(f's_lshl_b32 s{sT0}, s{sG}, 8')
        a(f'v_and_b32 v{vSt}, 15, v0')
        a(f'v_lshl_add_u32 v{vSt}, v{vSt}, 4, s{sT0}')
        a(f'v_lshrrev_b32 v8, 4, v{vTid}')
        a(f's_mov_b32 s{sT1}, {QS}')
        a(f'v_mad_u32_u24 v{vSt}, v8, s{sT1}, v{vSt}')
        for j in range(10):
            for o_ in range(2):
                a(f'ds_write_b64 v{vW}, {vr(XR + 4 * j + 2 * o_, 2)} offset:{j * 4224 + o_ * 256}')
        self.stamp('sx_data')
        if up == 2:
            job2_loads()
            a(f's_lshl_b32 s{sT0}, s{sG}, 8')
        a('s_waitcnt lgkmcnt(0)')
        a('s_barrier')
        self.stamp('sx_bar')
        XO = 96
        for j in range(10):
            a(f'ds_read_b128 {vr(XO + 4 * j, 4)}, v{vRd} offset:{j * 4224}')
        a(f's_mov_b32 s{sT1}, {XP4}')
        a(f's_mov_b32 s{sOne}, 0x3f803f80')
        for i in range(4):
            a(f'v_mov_b32 v{8 + i}, 0')
        for j in range(10):
            a(f'buffer_store_dwordx4 {vr(XO + 4 * j, 4)}, v{vSt}, {WS}, s{sT1} offen sc1')
            a(f's_add_u32 s{sT1}, s{sT1}, {16 * QS}')
            for i in range(4 * j, 4 * j + 4):
                a(f'v_dot2c_f32_bf16 v{8 + (i & 1)}, s{sOne}, v{XR + i}')
                a(f'v_dot2c_f32_bf16 v{10 + (i & 1)}, v{XR + i}, v{XR + i}')
        a('v_add_f32 v8, v8, v9')
        a('v_add_f32 v10, v10, v11')
        for m in ('quad_perm:[1,0,3,2]', 'quad_perm:[2,3,0,1]', 'row_half_mirror'):
            a(f'v_add_f32_dpp v8, v8, v8 {m} row_mask:0xf bank_mask:0xf')
            a(f'v_add_f32_dpp v10, v10, v10 {m} row_mask:0xf bank_mask:0xf')
        a(f'v_mul_f32 v8, {f32(1 / 640)}, v8')
        a(f'v_mul_f32 v10, {f32(1 / 640)}, v10')
        a('v_fma_f32 v10, -v8, v8, v10')
        a('v_max_f32 v10, 0, v10')
        a(f'v_add_f32 v10, {f32(1e-5)}, v10')
        a('v_rsq_f32 v10, v10')
        a(f'v_lshl_add_u32 v12, v{vRow}, 3, s{sT0}')
        a('v_mul_f32 v11, -v8, v10')
        a(f's_mov_b32 s{sT1}, {ST1}')
        vFl = 231
        a(f'buffer_load_dword v{vFl}, off, {sr(S_DBG, 4)}, 0 sc1')
        a('s_mov_b32 exec_lo, 0x01010101')
        a('s_mov_b32 exec_hi, 0x01010101')
        a(f'buffer_store_dwordx2 v[10:11], v12, {WS}, s{sT1} offen sc1')
        a('s_mov_b64 exec, -1')
        a('s_branch .Lr1')
        a('.Ls4:')
        a.fresh('s4')
        T4 = 10240
        a(f's_sub_u32 s{sT4}, s{sG}, 64')
        a(f's_lshr_b32 s{sT5}, s{sT4}, 2')
        a(f's_and_b32 s{sT4}, s{sT4}, 3')
        a(f's_mul_i32 s{sT0}, s{sT4}, 160')
        a(f's_lshl3_add_u32 s{sT0}, s{S_W}, s{sT0}')
        a(f's_mul_i32 s{sT0}, s{sT0}, 3072')
        a(f's_mul_i32 s{sT1}, s{sT5}, 3')
        a(f's_add_u32 s{sT1}, s{sT1}, 1')
        self.real_line(sT1, sT2)
        a(f's_lshl_b32 s{sT1}, s{sT1}, 7')
        a(f's_add_u32 s{sT0}, s{sT0}, s{sT1}')
        a('v_lshrrev_b32 v3, 3, v0')
        a('v_and_b32 v4, 7, v0')
        a(f'v_lshl_add_u32 v2, v4, 4, s{sT0}')
        a(f's_movk_i32 s{sT1}, 3072')
        a(f'v_mad_u32_u24 v2, v3, s{sT1}, v2')
        a(f's_mov_b32 s{sT0}, 0')
        for i in range(10):
            a(f'buffer_load_dwordx4 {vr(XR + 4 * i, 4)}, v2, {sr(S_WU if i & 1 else S_WG, 4)}, s{sT0} offen')
            if i & 1:
                a(f's_add_u32 s{sT0}, s{sT0}, {32 * 3072}')
        if up == 1:
            job2_loads()
        self.stamp('sx_issued')
        self.gemm_ids()
        self.w_addr()
        a(f's_lshl_b32 s{sT0}, s{S_W}, 9')
        a(f'v_lshl_add_u32 v5, v3, 6, s{sT0}')
        a('v_and_b32 v6, 1, v0')
        a('v_lshl_add_u32 v5, v6, 4, v5')
        a('v_bfe_u32 v6, v0, 1, 2')
        a('v_lshlrev_b32 v7, 5, v6')
        a('v_xor_b32 v5, v5, v7')
        a(f's_movk_i32 s{sT0}, {T4}')
        a(f'v_mad_u32_u24 v5, v6, s{sT0}, v5')
        a('v_xor_b32 v6, 32, v5')
        a('v_lshrrev_b32 v7, 5, v0')
        a('v_bfe_u32 v8, v0, 2, 2')
        a('v_lshl_add_u32 v7, v7, 3, v8')
        a('v_lshlrev_b32 v7, 6, v7')
        a('v_and_b32 v8, 3, v0')
        a('v_lshl_add_u32 v7, v8, 4, v7')
        a('v_bfe_u32 v8, v0, 4, 1')
        a('v_lshl_add_u32 v7, v8, 3, v7')
        a(f's_lshl_b32 s{sT1}, s{S_W}, 5')
        a(f'v_xor_b32 v7, s{sT1}, v7')
        a(f's_mul_i32 s{sT1}, s{S_W}, {T4}')
        a(f'v_add_u32 v7, s{sT1}, v7')
        for i in range(10):
            a(f'ds_write_b128 v{6 if i & 1 else 5}, {vr(XR + 4 * i, 4)} offset:{(i >> 1) * 2048}')
        self.stamp('sx_data')
        if up == 2:
            job2_loads()
        a('s_waitcnt lgkmcnt(0)')
        a('s_barrier')
        self.stamp('sx_bar')
        for j in range(10):
            for e in range(2):
                a(f'ds_read_b64_tr_b16 {vr(XO + 4 * j + 2 * e, 2)}, v7 offset:{1024 * j + 256 * e}')
        a(f's_lshl2_add_u32 s{sT0}, s{sT5}, s{S_W}')
        a(f's_lshl2_add_u32 s{sT0}, s{sT0}, s{sT4}')
        a(f's_mul_i32 s{sT0}, s{sT0}, 10240')
        a(f's_add_u32 s{sT0}, s{sT0}, {W45F}')
        a('v_lshlrev_b32 v9, 4, v0')
        a(f'buffer_load_dword v{vFl}, off, {sr(S_DBG, 4)}, 0 sc1')
        for j in range(10):
            if j and j & 3 == 0:
                a(f's_add_u32 s{sT0}, s{sT0}, 4096')
            a(f'buffer_store_dwordx4 {vr(XO + 4 * j, 4)}, v9, {WS}, s{sT0} offen offset:{(j & 3) * 1024} sc1')
        a('.Lr1:')
        a.fresh()
        self.stamp('sx_st')
        o = self.opt
        assert up >= 1
        a(f's_mov_b32 s{sG}, s{sG2}')
        a(f's_mov_b32 s{sSide}, s{sG2}')
        self.w_select()
        WB = 49152
        T0 = 216
        na, nb, nc = o.get('sw_a', 10), o.get('sw_b', 10), o.get('sw_c', 12)
        assert na + nb + nc <= 32

        def end_r1(younger):
            self.stamp('sx_ld2')
            a(f's_waitcnt vmcnt({younger})')
            a('s_barrier')
            self.stamp('sx_dr')
            self.arrive_start([(sArr, C_FX)], lambda: self.check(S_DBG, '0', 1, vFl))
        a(f's_cmp_ge_u32 s{sG}, 48')
        a('s_cbranch_scc1 .Ls2')
        wl = self.w_loads_main()
        a(wl[:na])
        v8, v9, v10 = T0, T0 + 1, T0 + 2
        a(f'v_lshrrev_b32 v{vRow}, 3, v{vTid}')
        a(f'v_and_b32 v{vS8}, 7, v0')
        a(f's_movk_i32 s{sT1}, 1344')
        a(f'v_lshlrev_b32 v{vW}, 4, v{vS8}')
        a(f'v_mad_u32_u24 v{vW}, v{vRow}, s{sT1}, v{vW}')
        a(f'v_lshrrev_b32 v{v8}, 4, v0')
        a(f'v_bfe_u32 v{v9}, v0, 2, 2')
        a(f'v_lshl_add_u32 v{v8}, v{v8}, 3, v{v9}')
        a(f's_mul_i32 s{sT0}, s{S_W}, 320')
        a(f'v_mov_b32 v{v9}, s{sT0}')
        a(f'v_mad_u32_u24 v{v8}, v{v8}, s{sT1}, v{v9}')
        a(f'v_and_b32 v{v9}, 3, v0')
        a(f'v_lshl_add_u32 v{v10}, v{v9}, 3, v{v8}')
        a(f'v_lshl_add_u32 v{v8}, v{v9}, 4, v{v8}')
        end_r1(na)
        q = wl[na:na + nb]
        for j in range(10):
            a(f'ds_write_b128 v{vW}, {vr(WR + 4 * j, 4)} offset:{WB + 128 * j}')
            if q and j < o.get('sw_b1', 4):
                a(q.pop(0))
        self.arrive_finish([(sArr, 11, C_FXR)], v9)
        self.stamp(1)
        a(q)
        a('s_barrier')
        for cc in range(2):
            for nt in range(5):
                for e in range(2):
                    off = WB + cc * 160 + e * 4 * 1344 + ((nt >> 1) * 64 + (nt & 1) * 8)
                    a(f'ds_read_b64_tr_b16 {ar(4 * (5 * cc + nt) + 2 * e, 2)}, v{v10 if nt == 4 else v8} offset:{off}')
        a(f's_mul_i32 s{sT0}, s{S_W}, 96')
        a(f's_add_u32 s{sT0}, s{sT0}, s{sG}')
        a(f's_mul_i32 s{sT0}, s{sT0}, 5120')
        a(f's_add_u32 s{sT0}, s{sT0}, {WDF}')
        a(f'v_lshlrev_b32 v{v9}, 4, v0')
        for cc in range(2):
            for nt in range(5):
                if nt == 4:
                    a(f's_add_u32 s{sT0}, s{sT0}, 4096')
                a(f'buffer_store_dwordx4 {ar(4 * (5 * cc + nt), 4)}, v{v9}, {WS}, s{sT0} offen offset:{(nt & 3) * 1024} sc1')
            a(f's_add_u32 s{sT0}, s{sT0}, {48 * 5120 - 4096}')
        a('s_branch .Lr2')
        a('.Ls2:')
        a.fresh()
        AC = T0 + 4
        for i in range(10, 20):
            a(f'buffer_load_dwordx4 {vr(J2 + 4 * i, 4)}, v{vJ2}, {sr(S_WD, 4)}, s{sJo} offen')
            a(f's_add_u32 s{sJo}, s{sJo}, s{sJs}')
        for i in range(8):
            a(f'v_mov_b32 v{AC + i}, 0')
        a(f's_mov_b32 s{sT4}, 0x3f80')
        a(f's_mov_b32 s{sT3}, 0x3f800000')
        end_r1(10)
        q = self.w_loads_main()[:na + nb]
        for i in range(80):
            a(f'v_dot2c_f32_bf16 v{AC + 2 * (i & 3)}, s{sT4}, v{J2 + i}')
            a(f'v_dot2c_f32_bf16 v{AC + 1 + 2 * (i & 3)}, s{sT3}, v{J2 + i}')
            if i == 39:
                self.arrive_finish([(sArr, 11, C_FXR)], T0)
                self.stamp(1)
            if i & 1 and i > 39 and q:
                a(q.pop(0))
        a(q)
        a(f'v_lshlrev_b32 v5, 5, v{vTid}')
        a(f'ds_write_b128 v5, {vr(AC, 4)} offset:{WB}')
        a(f'ds_write_b128 v5, {vr(AC + 4, 4)} offset:{WB + 16}')
        a('s_waitcnt lgkmcnt(0)')
        a('s_barrier')
        a('v_bfe_u32 v6, v0, 1, 4')
        a('v_and_b32 v7, 32, v0')
        a('v_add_u32 v6, v6, v7')
        a('v_and_b32 v7, 1, v0')
        a('v_lshl_add_u32 v6, v7, 4, v6')
        a('v_lshlrev_b32 v6, 2, v6')
        for i in range(16):
            a(f'ds_read2st64_b32 {vr(J2 + 2 * i, 2)}, v6 offset0:{WB // 256 + 2 * i} offset1:{WB // 256 + 2 * i + 1}')
        for i in range(1, 16):
            a(f'v_pk_add_f32 {vr(J2, 2)}, {vr(J2, 2)}, {vr(J2 + 2 * i, 2)}')
        a(f'v_add_f32 v{J2}, v{J2}, v{J2 + 1}')
        a(f'v_cvt_pk_bf16_f32 v{T0}, v{J2}, v{J2}')
        a(f'v_lshlrev_b32 v7, 16, v{T0}')
        a(f'v_sub_f32 v7, v{J2}, v7')
        a(f'v_cvt_pk_bf16_f32 v{T0 + 1}, v7, v7')
        a(f's_sub_u32 s{sT0}, s{sG}, 48')
        a(f's_lshl_b32 s{sT0}, s{sT0}, 9')
        a(f's_add_u32 s{sT0}, s{sT0}, {CSF}')
        a('v_lshlrev_b32 v6, 3, v0')
        a(f'buffer_store_dwordx2 {vr(T0, 2)}, v6, {WS}, s{sT0} offen sc1')
        a('.Lr2:')
        a.fresh()
        self.stamp(2)
        a(f's_lshl_b32 s{sT0}, s{sG}, 8')
        a(f's_add_u32 s{sT0}, s{sT0}, {C_F3 * 256}')
        a('v_mov_b32 v4, 0')
        a('v_lshlrev_b32 v5, 2, v0')
        a(f'buffer_store_dword v4, v5, {WS}, s{sT0} offen sc1')
        a(self.clear_pst(2))
        n0 = na + nb + nc
        a(wl[na + nb:n0])
        a(f's_lshl_b32 s{sT4}, s{sX}, 8')
        a(f's_add_u32 s{sT4}, s{sT4}, {C_FXR * 256}')
        a(f's_add_u32 s{sFW}, s{sT4}, {(C_FWR - C_FXR) * 256}')
        a.drain_stores()
        a('s_waitcnt lgkmcnt(0)')
        a('s_barrier')
        self.stamp(6)
        self.arrive_start([(sArr, C_B1), (sJs, C_FW)])
        a(f'buffer_load_dword v1, off, {WS}, s{sT4} sc1')

        def mid():
            self.arrive_finish([(sJs, 11, C_FWR), (sArr, 31, C_B2)], T0)
            self.check(S_WS, f's{sT4}', 8, 1)
        self.side_window(wl[n0:], mid)
        a(f's_waitcnt vmcnt({self.opt["wd_pre"]})')
        self.stamp(7)
        a('s_branch .Ljoin')

    def signal(self, soff):
        a = self.a
        if self.opt['sig'] == 's':
            a(f's_atomic_add s{sU2}, {sr(S_WS, 2)}, {soff}')
        else:
            a('s_mov_b64 exec, 1')
            a(f'buffer_atomic_add v{self.vOne}, off, {WS}, {soff} sc1')
            a('s_mov_b64 exec, -1')

    def gemms(self):
        a = self.a
        o = self.opt
        t, t2 = self.vTmp, self.vTmp2
        L, AB = 0, 8
        vRD = 4
        vAL, vAS, vA2, vWD, vWD2, vCS, vFl = 1, 2, 3, 247, 255, 246, 254
        vW5 = 252
        vS = 232
        BP = 236
        TM = 242
        ACC = 168
        RING1, CS, RING2 = 124, 148, 240
        sF3s, sF3p = sQ, sM
        sRB2w = sG
        kap = [[3 * c + ((pi + 1) % 3 if c & 1 else pi) for c in range(4)] for pi in range(3)]
        wd = []
        for i in range(60):
            g = []
            if i % 5 == 0:
                g.append(f's_mov_b32 s{sWoff}, {WDF + 5120 * kap[i // 20][i // 5 % 4]}')
            g.append(f'buffer_load_dwordx4 {ar(4 * i, 4)}, v{vWD2 if i % 5 == 4 else vWD}, {WS}, s{sWoff} offen offset:{(i % 5 & 3) * 1024} sc1')
            wd.append(g)
        if o.get('nowd'):
            wd = [[] for _ in wd]
        real, setup0 = a, []
        a = setup0.append
        a(f's_and_b32 s{sT0}, s{sJ}, 7')
        a(f's_lshl2_add_u32 s{sT0}, s{sT0}, s{S_W}')
        a(f's_mul_i32 s{sT0}, s{sT0}, {12 * 5120}')
        a(f'v_lshl_add_u32 v{vWD}, v0, 4, s{sT0}')
        a(f'v_add_u32 v{vWD2}, 0x1000, v{vWD}')
        a(f'v_lshlrev_b32 v{vRD}, 4, v0')
        for s in range(1, 4):
            a(f'v_xor_b32 v{t}, {16 * s}, v{vRD}')
            a(f'v_add_u32 v{vRD + s}, {TILE * s}, v{t}')
        a(f'v_lshl_add_u32 v{vW5}, s{S_W}, 10, v{vRD}')
        a(f'v_lshl_add_u32 v{vW5 + 1}, s{S_W}, 10, v{vRD + 1}')
        a(f's_lshl2_add_u32 s{sT0}, s{sRB}, s{S_W}')
        a(f's_lshl_b32 s{sT1}, s{sT0}, 8')
        a(f'v_and_b32 v{t}, 15, v0')
        a(f'v_lshlrev_b32 v{vA2}, 4, v{t}')
        a(f'v_add_u32 v{t}, s{sT1}, v{vA2}')
        a(f'v_lshrrev_b32 v{t2}, 4, v0')
        a(f's_mov_b32 s{sT1}, {QS}')
        a(f'v_mad_u32_u24 v{vAL}, v{t2}, s{sT1}, v{t}')
        a(f'v_lshl_add_u32 v{vA2}, v{t2}, 9, v{vA2}')
        a(f's_mul_i32 s{sT1}, s{sT0}, 98304')
        a(f'v_lshl_add_u32 v{vAS}, v0, 4, s{sT1}')
        a(f's_lshr_b32 s{sF3s}, s{sT0}, 1')
        a(f's_lshl_b32 s{sF3s}, s{sF3s}, 8')
        a(f's_add_u32 s{sF3s}, s{sF3s}, {C_F3 * 256}')
        a(f's_lshr_b32 s{sT1}, s{sJ}, 3')
        a(f's_lshl2_add_u32 s{sF3p}, s{sX}, s{sT1}')
        a(f's_lshl_b32 s{sRB2w}, s{sF3p}, 1')
        a(f's_lshl_b32 s{sF3p}, s{sF3p}, 8')
        a(f's_add_u32 s{sF3p}, s{sF3p}, {C_F3 * 256}')
        for i in range(4):
            a(f's_add_u32 s{sT0}, s{sRot}, {i}')
            a(f's_and_b32 s{sT0}, s{sT0}, 3')
            a(f's_mul_i32 s{sT0}, s{sT0}, {40 * QS}')
            a(f's_add_u32 s{sAB + i}, s{sT0}, {HP4}')
        a(f'v_and_b32 v{t}, 3, v0')
        a(f'v_bfe_u32 v{t2}, v0, 2, 1')
        a(f'v_lshl_add_u32 v{t}, v{t2}, 3, v{t}')
        a(f'v_bfe_u32 v{t2}, v0, 4, 1')
        a(f'v_lshl_add_u32 v{t}, v{t2}, 2, v{t}')
        a(f'v_lshlrev_b32 v{t}, 4, v{t}')
        a(f'v_bfe_u32 v{t2}, v0, 3, 1')
        a(f's_movk_i32 s{sT1}, 12288')
        a(f'v_mad_u32_u24 v{vCS}, v{t2}, s{sT1}, v{t}')
        for i in range(4):
            a(f'v_mov_b32 v{vS + i}, 0')
        a(f's_mov_b32 s{sOne}, 0x3f803f80')
        a(f's_mov_b32 s{sU2}, 1')
        a(f's_lshl_b32 s{sT2}, s{sA}, 7')
        a(f's_add_u32 s{sT2}, s{sT2}, {CSF}')
        a(f's_lshl_b32 s{sT3}, s{sB}, 7')
        a(f's_add_u32 s{sT3}, s{sT3}, {CSF}')
        a(f's_lshl_b32 s{sA}, s{sA}, 10')
        a(f's_add_u32 s{sA}, s{sA}, {ACT}')
        a(f's_lshl_b32 s{sB}, s{sB}, 10')
        a(f's_add_u32 s{sB}, s{sB}, {ACT}')
        a(f's_mul_i32 s{sT5}, s{S_W}, {12 * 2048}')
        for lam in range(4):
            a(f's_xor_b32 s{sT0}, s{S_W}, {lam}')
            a(f's_lshr_b32 s{sT1}, s{sT0}, 1')
            a(f's_add_u32 s{sT1}, s{sT1}, s{sRB2w}')
            a(f's_mul_i32 s{sT1}, s{sT1}, 98304')
            a(f's_and_b32 s{sT0}, s{sT0}, 1')
            a(f's_lshl_b32 s{sT0}, s{sT0}, 8')
            a(f's_add_u32 s{sT0}, s{sT0}, s{sT5}')
            a(f's_add_u32 s{sL[lam]}, s{sT1}, s{sT0}')
        sRes, sOutB, sQS = 20, 21, 22
        a(f's_lshr_b32 s{sT0}, s{S_W}, 1')
        a(f's_add_u32 s{sT0}, s{sT0}, s{sRB2w}')
        a(f's_lshl_b32 s{sRes}, s{sT0}, 8')
        a(f's_and_b32 s{sT4}, s{S_W}, 1')
        a(f's_lshl3_add_u32 s{sRes}, s{sT4}, s{sRes}')
        a(f's_and_b32 s{sT5}, s{sJ}, 7')
        a(f's_mul_i32 s{sT6}, s{sT5}, {20 * QS}')
        a(f's_add_u32 s{sRes}, s{sRes}, s{sT6}')
        a(f's_mov_b32 s{sQS}, {QS}')
        a(f's_lshr_b32 s{sOutB}, s{sRB2w}, 3')
        a(f's_lshl_b32 s{sOutB}, s{sOutB}, 8')
        a(f's_and_b32 s{sT6}, s{sT0}, 3')
        a(f's_lshl2_add_u32 s{sOutB}, s{sT6}, s{sOutB}')
        a(f's_bfe_u32 s{sT6}, s{sRB2w}, 0x10002')
        a(f's_lshl1_add_u32 s{sOutB}, s{sT6}, s{sOutB}')
        a(f's_add_u32 s{sOutB}, s{sOutB}, s{sT4}')
        a(f's_mul_i32 s{sOutB}, s{sOutB}, 1280')
        a(f's_mul_i32 s{sT6}, s{sT5}, 160')
        a(f's_add_u32 s{sOutB}, s{sOutB}, s{sT6}')
        a(f's_lshl_b32 s{sU0}, s{sCB}, 8')
        a(f's_add_u32 s{sU0}, s{sU0}, {PST}')
        a(f's_mov_b32 s{sU1}, {PST}')
        a(f's_and_b32 s{sCB}, s{sCB}, 3')
        a(f's_mul_i32 s{sCB}, s{sCB}, 10')
        a = real
        nw = 40 - 8 * o.get('defer', 2)
        wdp = [wd.pop(0) for _ in range(o['wd_pre'])]

        def mixer(ww, setup, lq, per=6):
            def some(n, nl):
                for i in range(n):
                    a(ww.pop(0))
                    for _ in range(per):
                        if setup:
                            a(setup.pop(0))
                    for _ in range(((i + 1) * nl) // n - (i * nl) // n):
                        if lq:
                            a(lq.pop(0))
            return some

        def side_window(wl, fx_check):
            ww, setup = self.w_writes_main()[:nw], list(setup0)
            self.w_write_addr()
            lq = list(wl)
            hold = [x for x in setup if f'v{vW5},' in x or f's{sU1},' in x]
            setup = [x for x in setup if x not in hold]
            some = mixer(ww, [], lq)
            nl = len(lq)
            n_ = min(nl, nw - 8)
            assert all(40 - nl + (i * nl) // n_ >= 8 * (i // 8 + 1) for i in range(n_))
            some(n_, nl)
            fx_check()
            lq += self.w_loads_tail()
            if o.get('outpf', 1):
                a(f's_lshr_b32 s{sT0}, s{sSide}, 3')
                a(f's_lshl2_add_u32 s{sT0}, s{sT0}, s{S_W}')
                a(f's_mul_i32 s{sT0}, s{sT0}, {22 * 320}')
                a(f's_and_b32 s{sSide}, s{sSide}, 7')
                a(f's_mul_i32 s{sSide}, s{sSide}, {256 * 1280}')
                a(f's_add_u32 s{sSide}, s{sSide}, s{sT0}')
                a(f'v_min_u32 v{TM}, 21, v0')
                a(f'v_mul_u32_u24 v{TM}, 320, v{TM}')
                lq.insert(o.get('pf_pos', 20), f'buffer_load_dword a255, v{TM}, {sr(S_OUT, 4)}, s{sSide} offen offset:160')
            lq.append(f'buffer_load_dword v{TM + 1}, off, {WS}, s{sFW} sc1')
            mixer(ww, setup, lq)(len(ww), len(lq))
            a(setup)
            a(hold)
            if wdp:
                self.check(S_WS, f's{sFW}', 0 if o.get('nofw') else 8, TM + 1)
            a(wdp)
        self.side_window = side_window
        ww = self.w_writes_main()
        setup = self.win_pre + setup0
        lq = list(self.win_loads)
        n1, n2 = o.get('ww1', 13), o.get('ww2', 7)
        self.w_write_addr()
        a('s_barrier')
        self.stamp('hbar')
        some = mixer(ww, setup, lq, o.get('su_per', 7))
        assert 5 * o.get('su_per', 7) >= len(self.win_pre)
        some(5, 0)
        fwe = o.get('fwe', 1)
        if wdp and fwe:
            a(f'buffer_load_dword v{TM + 1}, off, {WS}, s{sFW} sc1')
        hold = [x for x in setup if isinstance(x, str) and (f'v{vW5},' in x or f's{sU1},' in x)]
        setup[:] = [x for x in setup if x not in hold]
        some(n1 - 5, o.get('l1', 8))
        self.stamp('hissued')
        a.drain_stores()
        self.stamp('hdrained')
        a('s_barrier')
        self.stamp('hbar2')
        self.arrive_start([(sArr, C_B1)])
        if wdp and not fwe:
            a(f'buffer_load_dword v{TM + 1}, off, {WS}, s{sFW} sc1')
        if wdp and fwe:
            self.check(S_WS, f's{sFW}', 0 if o.get('nofw') else 8, TM + 1)
            nl2 = len(lq) + o.get('l2', 8)
            lq += wdp
            some(n2, nl2)
        else:
            some(n2, len(lq))
        self.arrive_finish([(sArr, 31, C_B2)], TM)
        self.stamp('arrived')
        if wdp and not fwe:
            self.check(S_WS, f's{sFW}', 0 if o.get('nofw') else 8, TM + 1)
            lq += wdp
        some(nw - n1 - n2, len(lq))
        a(setup)
        a(hold)
        a(lq)
        a('.Ljoin:')
        self.stamp('wwritten')
        a(f's_lshl_b32 s{sT0}, s{sX}, 8')
        a(f's_add_u32 s{sT0}, s{sT0}, {C_B2 * 256}')
        self.warm([[3, 6], [4, 7], [5]])
        with self.wave0():
            self.spin(S_WS, f's{sT0}', 0 if o.get('noe2') else 8, t)
        self.stamp('polled')
        a('s_waitcnt lgkmcnt(0)')
        a('s_barrier')
        self.stamp(8)
        al = []
        for j in range(40):
            if j % 10 == 0:
                al.append([f'buffer_load_dwordx4 {vr(AB + 4 * j, 4)}, v{vAL}, {WS}, s{sAB + j // 10} offen sc1'])
            else:
                al.append([f's_add_u32 s{sT1}, s{sAB + j // 10}, {(j % 10) * 4 * QS}',
                           f'buffer_load_dwordx4 {vr(AB + 4 * j, 4)}, v{vAL}, {WS}, s{sT1} offen sc1'])
        al.append(f'buffer_load_dwordx4 {ar(CS, 4)}, v{vCS}, {WS}, s{sT2} offen sc1')
        al.append(f'buffer_load_dwordx4 {ar(CS + 4, 4)}, v{vCS}, {WS}, s{sT2} offen offset:256 sc1')
        al.append(f'buffer_load_dwordx4 {ar(CS + 8, 4)}, v{vCS}, {WS}, s{sT3} offen sc1')
        for _ in range(o['a_ahead']):
            a(al.pop(0))

        def rd(dst, slot, j):
            return f'ds_read_b128 {ar(dst, 4)}, v{vRD + slot} offset:{1024 * j}'

        def swaps(j):
            return [f'v_permlane16_swap_b32 v{AB + 4 * j + e}, v{AB + 4 * j + 2 + e}' for e in range(2)]

        def acc(slot):
            return vr(ACC + 16 * slot, 16)
        wtail = [f'ds_write_b128 v{vW5 + (i & 1)}, {ar(160 + 4 * i, 4)} offset:{(i >> 1) * 4096}' for i in range(20)]
        if o.get('nowt'):
            wtail = [[] for _ in wtail]
        C0, C1, R = vS, vS + 1, vS + 2
        c0 = -2.0 * 0.7978845608028654 * 1.4426950408889634
        G = ACC + 48
        gather = [f'buffer_load_dwordx2 {vr(G + 2 * s, 2)}, v{self.vPS}, {WS}, s{sU1} offen offset:{256 * s} sc1'
                  for s in range(8)]
        valid = [f'v_or3_b32 v{t}, v{G + 1}, v{G + 3}, v{G + 5}', f'v_or3_b32 v{t2}, v{G + 7}, v{G + 9}, v{G + 11}',
                 f'v_or3_b32 v{t}, v{t}, v{G + 13}, v{G + 15}', f'v_or_b32 v{t}, v{t}, v{t2}',
                 f'v_cmp_gt_i32 vcc, 0, v{t}']

        def chk_stats():
            slow, back = a.label('slow'), a.label('back')
            a('s_nop 1')
            a(f's_cbranch_vccnz {slow}')
            a(f'{back}:')

            def cold():
                top = a.label('top')
                a(f'{slow}:')
                with a.untracked():
                    a(f's_mov_b32 s{sSpin}, {SPIN}')
                    a(f'{top}:')
                    a(gather)
                    a('s_waitcnt vmcnt(0)')
                    a(valid)
                    a(f's_sub_u32 s{sSpin}, s{sSpin}, 1')
                    a(f's_cbranch_scc1 {back}')
                    a('s_nop 3')
                    a(f's_cbranch_vccnz {top}')
                    a(f's_branch {back}')
            self.cold.append(cold)
        halves = [
            f'v_add_f32 v{vS}, v{vS}, v{vS + 1}',
            f'v_add_f32 v{vS + 2}, v{vS + 2}, v{vS + 3}',
            f'v_mov_b32 v{vS + 1}, v{vS}',
            f'v_mov_b32 v{vS + 3}, v{vS + 2}',
            f'v_cmp_gt_u32 vcc, 32, v{L}',
            f'v_permlane32_swap_b32 v{vS}, v{vS + 1}',
            f'v_permlane32_swap_b32 v{vS + 2}, v{vS + 3}']
        pub = halves + [
            f'v_add_f32 v{G}, v{vS}, v{vS + 1}',
            f'v_add_f32 v{G + 1}, v{vS + 2}, v{vS + 3}',
            f'v_and_b32 v{G + 1}, 0x7fffffff, v{G + 1}',
            ['s_mov_b32 exec_hi, 0',
             f'buffer_store_dwordx2 {vr(G, 2)}, v{self.vPS}, {WS}, s{sU0} offen sc1',
             's_mov_b32 exec_hi, -1']]
        st = valid + [chk_stats]
        for w_ in range(2):
            g = G + w_
            st += [f'v_add_f32 v{g}, v{g}, v{g + 2}', f'v_add_f32 v{g + 4}, v{g + 4}, v{g + 6}',
                   f'v_add_f32 v{g + 8}, v{g + 8}, v{g + 10}', f'v_add_f32 v{g + 12}, v{g + 12}, v{g + 14}',
                   f'v_add_f32 v{vS + 2 * w_}, v{g}, v{g + 4}', f'v_add_f32 v{vS + 2 * w_ + 1}, v{g + 8}, v{g + 12}']
        st += halves + [
            f'v_add_f32 v{vS}, v{vS}, v{vS + 1}',
            f'v_add_f32 v{vS + 2}, v{vS + 2}, v{vS + 3}',
            f'v_mul_f32 v{vS}, {f32(-1 / 640)}, v{vS}',
            f'v_mul_f32 v{vS + 2}, {f32(1 / 640)}, v{vS + 2}',
            f'v_cvt_pk_bf16_f32 v{t}, v{vS}, v{vS}',
            f'v_fma_f32 v{R}, -v{vS}, v{vS}, v{R}',
            f'v_lshlrev_b32 v{t}, 16, v{t}',
            f'v_max_f32 v{R}, 0, v{R}',
            f'v_sub_f32 v{t2}, v{vS}, v{t}',
            f'v_add_f32 v{R}, {f32(1e-5)}, v{R}',
            f'v_cvt_pk_bf16_f32 v{t}, v{t}, v{t2}',
            f'v_rsq_f32 v{vS + 3}, v{R}',
            f'v_cndmask_b32 v{BP + 2}, 0, v{t}, vcc',
            f'v_cndmask_b32 v{BP + 3}, 0, v{t}, vcc',
            f'v_mul_f32 v{C0}, {f32(c0)}, v{vS + 3}',
            f'v_mul_f32 v{t}, v{vS + 3}, v{vS + 3}',
            f'v_mul_f32 v{t}, {f32(0.044715)}, v{t}',
            f'v_mul_f32 v{C1}, v{t}, v{C0}',
        ]

        def csm(tile, slot, first):
            b = vr(BP, 4) if tile & 1 else vr(BP + 2, 4)
            return f'v_mfma_f32_32x32x16_bf16 {acc(slot)}, {ar(CS + 4 * (tile >> 1), 4)}, {b}, {"0" if first else acc(slot)}'

        def pick(r0, r1):
            a(f's_set_gpr_idx_on s{sCB}, gpr_idx(SRC0)')
            a('s_nop 0')
            for r in range(r0, r1):
                a(f'v_mov_b32_e32 v{G + r}, v{AB + r}')
            a('s_set_gpr_idx_off')
        for j in range(2):
            for s in range(3):
                a(rd(RING1 + 12 * j + 4 * s, s, j))
        a(swaps(0))
        self.stamp('a0')
        p2 = [(3, 3, j) for j in range(40)] + [(4, 0, j) for j in range(40)] + [(5, 1, j) for j in range(40)]
        gq = list(gather)
        GJ, SJ = o.get('gather_j', 22), o.get('stat_j', 33)
        B1, B2 = 21, 33
        nwd1 = min(o.get('wd_p1', 6), 31 - o['wd_pre'])
        assert o['a_ahead'] <= (14 if o.get('defer', 2) == 2 else 23)
        for j in range(40):
            base = RING1 + 12 * (j & 1)
            self.stamp(f'p{j}')
            a.need(ar(base, 12))
            for s in range(3):
                c = '0' if j == 0 else acc(s)
                a(f'v_mfma_f32_32x32x16_bf16 {acc(s)}, {ar(base + 4 * s, 4)}, {vr(AB + 4 * j, 4)}, {c}')
                if j < 38:
                    a(rd(base + 4 * s, s, j + 2))
                else:
                    i = (j - 38) * 3 + s
                    if i < 4:
                        a(rd(RING2 + 4 * i, p2[i][1], p2[i][2]))
                if s == 0 and j < 39:
                    a(swaps(j + 1))
                if s == 1 and (B1 < j <= B1 + 10 or B2 < j):
                    a(wtail.pop(0))
                if s != 1 and j >= GJ and gq:
                    a(gq.pop(0))
                if s == 2:
                    if al:
                        a(al.pop(0))
                    elif nwd1 and not gq and j < o.get('wd1_hi', 40):
                        a(wd.pop(0))
                        nwd1 -= 1
                if j not in (8, 9) and ww:
                    if s == 0:
                        while len(ww[0]) > 1:
                            a(ww[0].pop(0))
                    if s == 1:
                        a(ww.pop(0))
                if s == 2 and j not in (7, 8) and ww:
                    a(ww[0].pop(0))
                    a(ww[0].pop(0))
                if j == 19 and s == 1:
                    assert not ww
                    for i in (0, 1, 4, 5):
                        a(f'v_mov_b32 v{BP + i}, 0')
                if j == 8 and s == 1:
                    pick(0, 4)
                if j == 9 and s == 1:
                    pick(4, 10)
                if j in (10, 11) and s != 1:
                    for _ in range(3):
                        if pub:
                            a(pub.pop(0))
                if j >= SJ:
                    for _ in range((3, 0 if j > B2 else 5, 4)[s]):
                        if st:
                            a(st.pop(0))
            if j in (B1, B2):
                a('s_barrier')
            if j == 9:
                for r in range(10):
                    a(f'v_dot2c_f32_bf16 v{vS + (r & 1)}, s{sOne}, v{G + r}')
                    a(f'v_dot2c_f32_bf16 v{vS + 2 + (r & 1)}, v{G + r}, v{G + r}')
        assert not pub and not al and not st
        a(st)
        RES, vRes, vRes2 = 200, vAL, vCS
        res_addr = [
            f'v_and_b32 v{vRes}, 15, v{L}',
            f'v_lshl_add_u32 v{vRes2}, v{vRes}, 4, s{sRes}',
            f'v_lshrrev_b32 v{vRes}, 4, v{L}',
            f'v_mad_u32_u24 v{vRes2}, v{vRes}, s{sQS}, v{vRes2}',
            f'v_mad_u32_u24 v{vRes}, v{vRes}, s{sQS}, v{vRes2}',
        ]
        a('s_barrier')
        for tl in range(3):
            a(csm(tl, tl, False))
            a(res_addr if tl == 0 else wtail.pop(0))
        self.stamp(9)

        def epi(tile, slot, packed=False):
            b = ACC + 16 * slot
            tm = [TM, TM + 1, TM + 2, TM + 3]
            ops = []
            for h in range(2):
                g, u = b + 8 * h, b + 8 * h + 4
                if packed:
                    P = lambda r, i: vr(r + 2 * i, 2)
                    cc, rr = vr(C0, 2), vr(R, 2)
                    ops += [(1, f'v_pk_mul_f32 {P(TM, i)}, {P(g, i)}, {P(g, i)}') for i in range(2)]
                    ops += [(1, f'v_pk_fma_f32 {P(TM, i)}, {P(TM, i)}, {cc}, {cc} op_sel:[0,1,0] op_sel_hi:[1,1,0]') for i in range(2)]
                    ops += [(1, f'v_pk_mul_f32 {P(u, i)}, {P(u, i)}, {P(g, i)}') for i in range(1)]
                    ops += [(1, f'v_pk_mul_f32 {P(TM, i)}, {P(TM, i)}, {P(g, i)}') for i in range(2)]
                    ops += [(2, f'v_exp_f32 v{tm[i]}, v{tm[i]}') for i in range(4)]
                    ops += [(1, f'v_pk_mul_f32 {P(u, i)}, {P(u, i)}, {P(g, i)}') for i in range(1, 2)]
                    ops += [(1, f'v_pk_fma_f32 {P(TM, i)}, {P(TM, i)}, {rr}, {rr} op_sel:[0,0,0] op_sel_hi:[1,0,0]') for i in range(2)]
                    ops += [(2, f'v_rcp_f32 v{tm[i]}, v{tm[i]}') for i in range(4)]
                    ops += [(1, f'v_pk_mul_f32 {P(u, i)}, {P(u, i)}, {P(TM, i)}') for i in range(2)]
                    ops += [(1, f'v_cvt_pk_bf16_f32 v{b + 2 * h + i}, v{u + 2 * i}, v{u + 2 * i + 1}') for i in range(2)]
                    continue
                ops += [(1, f'v_mul_f32 v{tm[i]}, v{g + i}, v{g + i}') for i in range(4)]
                ops += [(1, f'v_fma_f32 v{tm[i]}, v{tm[i]}, v{C1}, v{C0}') for i in range(4)]
                ops += [(1, f'v_mul_f32 v{tm[i]}, v{tm[i]}, v{g + i}') for i in range(4)]
                for i in range(4):
                    ops += [(2, f'v_exp_f32 v{tm[i]}, v{tm[i]}'), (1, f'v_mul_f32 v{u + i}, v{u + i}, v{g + i}')]
                ops += [(1, f'v_fma_f32 v{tm[i]}, v{tm[i]}, v{R}, v{R}') for i in range(4)]
                ops += [(2, f'v_rcp_f32 v{tm[i]}, v{tm[i]}') for i in range(4)]
                ops += [(1, f'v_mul_f32 v{u + i}, v{u + i}, v{tm[i]}') for i in range(4)]
                ops += [(1, f'v_cvt_pk_bf16_f32 v{b + 2 * h + i}, v{u + 2 * i}, v{u + 2 * i + 1}') for i in range(2)]
            so = sA if tile < 4 else sB
            txt = f'buffer_store_dwordx4 {vr(b, 4)}, v{vAS}, {WS}, s{so} offen offset:{(tile & 3) * 1024} sc1'
            ops.append((5, (lambda: a(txt, tag=f'act{tile}')) if not o.get('nost') else []))
            if o.get('noepi'):
                ops = [(c_, x if callable(x) else []) for c_, x in ops]
            return ops

        G2 = 72
        FR = [[8 + 4 * i for i in range(16)],
              [152 + 4 * i for i in range(4)] + [200 + 4 * i for i in range(8)] + [168 + 4 * i for i in range(4)],
              [8 + 4 * i for i in range(16)]]
        order = [[(c, lam) for lam in (3, 2, 1, 0) for c in range(4)]] * 3

        def act_ld(pi, n):
            c, lam = order[pi][n]
            if o.get('noact'):
                return []
            return [f's_add_u32 s{sT1}, s{sL[lam]}, {ACT + 2048 * kap[pi][c]}',
                    f'buffer_load_dwordx4 {vr(FR[pi][n], 4)}, v{vA2}, {WS}, s{sT1} offen sc1']

        def sig(pi, tag):
            def f():
                self.stamp(f'presig{pi}')
                a.need_tag(tag)
                if o.get('wgsig', 0) >> pi & 1:
                    l = a.label('nosig')
                    a('s_barrier')
                    a(f's_bitcmp1_b32 s{S_W}, 0')
                    a(f's_cbranch_scc1 {l}')
                    with a.untracked():
                        self.signal(f's{sF3s}')
                    a(f'{l}:')
                else:
                    self.signal(f's{sF3s}')
                self.stamp(f'sig{pi}')
                if pi < 2:
                    a(f's_add_u32 s{sF3s}, s{sF3s}, {32 * 256}')
            return f

        def poll_ld():
            return f'buffer_load_dword v{vFl}, off, {WS}, s{sF3p} sc1'

        def poll_chk(pi):
            def f():
                self.stamp(f'prechk{pi}')
                self.check(S_WS, f's{sF3p}', 0 if o.get('noe3', 0) >> pi & 1 else 16 if o.get('wgsig', 0) >> pi & 1 else 32, vFl)
                self.stamp(f'chk{pi}')
                if pi < 2:
                    a(f's_add_u32 s{sF3p}, s{sF3p}, {32 * 256}')
            return f
        RES, vRes, vRes2 = 200, vAL, vCS
        res_addr = [
            f'v_and_b32 v{vRes}, 15, v{L}',
            f'v_lshl_add_u32 v{vRes2}, v{vRes}, 4, s{sRes}',
            f'v_lshrrev_b32 v{vRes}, 4, v{L}',
            f'v_mad_u32_u24 v{vRes2}, v{vRes}, s{sQS}, v{vRes2}',
            f'v_mad_u32_u24 v{vRes}, v{vRes}, s{sQS}, v{vRes2}',
        ]
        res_ld = []
        for nt in range(5):
            q = 8 * (nt >> 1) + (nt & 1)
            res_ld.append([f's_mov_b32 s{sT6}, {HP4 + q * QS}',
                           f'buffer_load_dwordx2 {vr(RES + 2 * nt, 2)}, v{vRes2 if nt == 4 else vRes}, {WS}, s{sT6} offen sc1'])
        slot_of = {0: 0, 1: 1, 2: 2, 3: 3, 4: 0, 5: 1}
        eq = epi(0, 0) + epi(1, 1) + epi(2, 2)
        budget = 0.0
        RATE = o['epi_rate']
        extra = {i: [] for i in range(120)}
        first_w = wtail.pop(0)
        for k in range(len(wtail)):
            extra[k].append(wtail[k])
        extra[30].append('s_barrier')
        nwd = len(wd) - o.get('wd_post', 12)
        done = 60 - len(wd)
        lo, hi = o.get('wd_lo', 4), o.get('wd_hi', 78)
        hold = None
        for k in range(nwd):
            g = wd.pop(0)
            p = lo + (k * (hi - lo)) // nwd
            fr = done + k
            if fr == 39:
                extra[81].append([f's_mov_b32 s{sT6}, {WDF + 5120 * kap[1][3]}', g[-1].replace(f's{sWoff} offen', f's{sT6} offen')] if g else [])
                continue
            assert fr < 56 or p > 14
            extra[p].append(g)
        SA, SB = o.get('siga', 62), o.get('sigb', 104)
        extra[SA].append(sig(0, 'act1'))
        extra[o.get('lda', 86)].append(poll_ld())
        for k, x in enumerate(res_ld):
            extra[o.get('res_at', 86) + 2 * k].append(x)
        ca = o.get('chka', 105)
        extra[ca].append(poll_chk(0))
        na = o.get('a_in', 7)
        for n in range(na):
            extra[ca + 1 + (n * (119 - ca)) // na].append(act_ld(0, n))
        extra[SB].append(sig(1, 'act3'))
        extra[50].append('s_barrier')

        def cost(x):
            if callable(x):
                return 3
            if isinstance(x, (list, tuple)):
                return sum(cost(y) for y in x)
            return 5 if x.startswith('ds_write') else 2 if x.startswith('buffer') or x == 's_barrier' else 1
        CAP = o.get('cap', 6.6)
        for i, (tile, ls, j) in enumerate(p2):
            slot = slot_of[tile]
            self.stamp(f'q{i}')
            if j == 0:
                a(csm(tile, slot, True))
                if i == 0:
                    a(first_w)
                if i:
                    budget = 6
                    while eq and budget >= eq[0][0]:
                        cst, x = eq.pop(0)
                        budget -= cst
                        a(x)
            if i & 1 == 0:
                a.need(ar(RING2 + 4 * (i & 3), 8))
            a(f'v_mfma_f32_32x32x16_bf16 {acc(slot)}, {ar(RING2 + 4 * (i & 3), 4)}, {vr(AB + 4 * j, 4)}, {acc(slot)}')
            if i + 4 < len(p2):
                a(rd(RING2 + 4 * (i & 3), p2[i + 4][1], p2[i + 4][2]))
            a(extra[i])
            if i == 42:
                eq += epi(3, 3)
            if i == 82:
                eq += epi(4, 0)
                if o.get('st4_late'):
                    st4 = eq.pop()[1]
            if i >= 1:
                budget = min(budget, 1.0) + CAP - 1 - (i & 1) - cost(extra[i])
                budget = max(budget, -1)
                while eq and budget >= min(eq[0][0], 2):
                    cst, x = eq.pop(0)
                    budget -= cst
                    a(x)
                    if callable(x) and o.get('verbose'):
                        print('store at gap', i)
                if i == 39:
                    assert len(eq) <= 2 * 69, len(eq)
                if i == SA - 1:
                    assert len(eq) <= 2 * 69, len(eq)
                if i == 79:
                    assert len(eq) <= 2 * 69, len(eq)
                if i == o.get('res_at', 86) - 1:
                    assert len(eq) <= 2 * 69, len(eq)
                if i == SB - 1:
                    assert len(eq) <= 69, len(eq)
            if j == 39:
                self.stamp(f't{tile}')
        for cst, x in eq:
            a(x)
        a(f's_mov_b32 s{sT0}, 0xffff0000')
        for i in range(10):
            a(f'v_lshlrev_b32 v{G2 + 2 * i}, 16, v{RES + i}')
            a(f'v_and_b32 v{G2 + 2 * i + 1}, s{sT0}, v{RES + i}')
        e5 = epi(5, 1, o.get('pk5', 1))
        LA = o.get('la2', 12)
        rest = [act_ld(0, n) for n in range(na, LA)]
        if o.get('ldb', -1) < 0:
            rest.append(poll_ld())
        if o.get('st4_late'):
            rest.append(st4)
        k = 0
        for i, (cst, x) in enumerate(e5):
            while k < len(rest) and (k + 1) * (len(e5) - 1) <= i * len(rest):
                a(rest[k])
                k += 1
            a(x)
        assert k == len(rest)
        self.stamp(10)

        vOut, vRR, vRW, vTW, vTR = 4, 7, 232, 238, 242
        RED = 2 * TILE
        setup = [
            f's_movk_i32 s{sT6}, {16 * 1280 - 160}',
            f's_movk_i32 s{sT5}, 6554',
            f's_movk_i32 s{sT4}, 176',
            f's_mul_i32 s{sT3}, s{S_W}, {16 * 176}',
            f'v_and_b32 v{t}, 15, v{L}',
            f'v_lshrrev_b32 v{t2}, 4, v{L}',
            f'v_mov_b32 v{vTW + 1}, s{sT3}',
            f'v_mad_u32_u24 v{vTW + 1}, v{t}, s{sT4}, v{vTW + 1}',
            f'v_lshl_add_u32 v{vTW}, v{t2}, 4, v{vTW + 1}',
            f'v_lshl_add_u32 v{vTW + 1}, v{t2}, 3, v{vTW + 1}',
        ]
        setup += [f'v_mul_u32_u24 v{t2}, s{sT5}, v{L}',
                  f'v_lshrrev_b32 v{t2}, 16, v{t2}',
                  f'v_lshl_add_u32 v{vOut}, v{L}, 4, s{sOutB}',
                  f'v_mad_u32_u24 v{vOut}, v{t2}, s{sT6}, v{vOut}',
                  f'v_add_u32 v{t}, v{L}, v{t2}',
                  f'v_lshl_add_u32 v{vTR}, v{t}, 4, s{sT3}',
                  f's_mov_b32 s{sT4}, {6 * 16 * 1280}',
                  f's_mov_b32 s{sT5}, {12 * 16 * 1280}']
        for lam in range(4):
            setup += [f's_xor_b32 s{sT0}, s{S_W}, {lam}', f's_mul_i32 s{sT0}, s{sT0}, {15 * 1024}',
                      f's_add_u32 s{sT0}, s{sT0}, {RED + (lam - 1) * 5120 if lam else RED}',
                      f'v_lshl_add_u32 v{vRW + lam - 1 if lam else vRR}, v{L}, 4, s{sT0}']

        def mf2(pi, n, nt):
            c, lam = order[pi][n]
            d = vr(G2 + 4 * (5 * lam + nt), 4)
            cin = '0' if (pi == 0 and c == 0 and lam != 0) else d
            return f'v_mfma_f32_16x16x32_bf16 {d}, {ar(4 * (5 * (4 * pi + c) + nt), 4)}, {vr(FR[pi][n], 4)}, {cin}'
        ex = [{i: [] for i in range(80)} for _ in range(3)]
        for k, x in enumerate(setup):
            ex[0][k].append(x)
        def put(pos, x):
            ex[pos // 80][pos % 80].append(x)
        if o.get('ldb', -1) >= 0:
            put(o['ldb'], poll_ld())
        cb_, cc_ = o.get('chkb', 5 * (16 - LA)), 80 + o.get('chkc', 44)
        put(cb_, [poll_chk(1), lambda: self.stamp('chkb')])
        put(o.get('sigc', 40), [sig(2, 'act5'), lambda: self.stamp('sigc')])
        put(80 + o.get('ldc', 28), poll_ld())
        put(cc_, [lambda: self.stamp('chkc0'), poll_chk(2), lambda: self.stamp(11)])
        pos = 0
        for g in range(LA, 48):
            pos = max(pos + (o.get('burst', 2) if g >= 16 else 0), o.get('g_gap', 5) * (g - LA) if g < 32 else 5 * (g - LA),
                      cb_ if g >= 16 else 0, cc_ if g >= 32 else 0)
            assert pos < 20 * (g // 4)
            put(pos, act_ld(g // 16, g % 16))
            if g < 32 and wd and 32 - g <= len(wd) + o.get('wdp_early', 0):
                put(pos + 2, wd.pop(0))
        assert not wd
        chain = o.get('chain', 1)
        for blk, lam in enumerate((3, 2, 1)):
            for nt in range(5):
                ex[2][20 * blk + 4 * nt + 12 if chain else 20 * (blk + 1) + 5 + 2 * nt].append(
                    f'ds_write_b128 v{vRW + lam - 1}, {vr(G2 + 4 * (5 * lam + nt), 4)} offset:{1024 * nt}')
        for pi in range(3):
            for i in range(80):
                if chain:
                    a(mf2(pi, 4 * (i // 20) + (i & 3), i % 20 // 4))
                else:
                    a(mf2(pi, i // 5, i % 5))
                self.stamp(f'm{80 * pi + i}')
                a(ex[pi][i])
            self.stamp('end' + 'ABC'[pi])
        a('s_waitcnt lgkmcnt(0)')
        a('s_barrier')
        self.stamp('redbar')
        RD, RR = 152, 8
        for nt in range(5):
            for s in range(3):
                a(f'ds_read_b128 {vr(RD + 12 * nt + 4 * s, 4)}, v{vRR} offset:{5120 * s + 1024 * nt}')
        sc = ' sc1' if o['out_sc1'] else ''
        for nt in range(5):
            b = RD + 12 * nt
            c = G2 + 4 * nt
            for p in range(2):
                a(f'v_pk_add_f32 {vr(c + 2 * p, 2)}, {vr(c + 2 * p, 2)}, {vr(b + 2 * p, 2)}')
                a(f'v_pk_add_f32 {vr(b + 4 + 2 * p, 2)}, {vr(b + 4 + 2 * p, 2)}, {vr(b + 8 + 2 * p, 2)}')
            for p in range(2):
                a(f'v_pk_add_f32 {vr(c + 2 * p, 2)}, {vr(c + 2 * p, 2)}, {vr(b + 4 + 2 * p, 2)}')
            for p in range(2):
                a(f'v_cvt_pk_bf16_f32 v{RR + 2 * nt + p}, v{c + 2 * p}, v{c + 2 * p + 1}')
            if nt & 1:
                a(f'ds_write_b128 v{vTW}, {vr(RR + 2 * nt - 2, 4)} offset:{64 * (nt >> 1)}')
            if nt == 4:
                a(f'ds_write_b64 v{vTW + 1}, {vr(RR + 8, 2)} offset:128')
        for k in range(3):
            a(f'ds_read_b128 {vr(RR + 12 + 4 * k, 4)}, v{vTR} offset:{6 * 176 * k}')
        a('s_mov_b32 exec_hi, 0xfffffff')
        for k in range(3):
            if k == 2:
                a('s_mov_b32 exec_hi, 0xff')
            a(f'buffer_store_dwordx4 {vr(RR + 12 + 4 * k, 4)}, v{vOut}, {sr(S_OUT, 4)}, {("0", f"s{sT4}", f"s{sT5}")[k]} offen{sc}')
        a('s_mov_b32 exec_hi, -1')
        lz = a.label('nz')
        a('s_cmp_lg_u32 s2, 0')
        a(f's_cbranch_scc1 {lz}')
        with a.untracked():
            a(f'buffer_store_dword v{BP}, off, {sr(S_DBG, 4)}, 0 sc1')
            a(f's_cmp_lg_u32 s{S_W}, 0')
            a(f's_cbranch_scc1 {lz}')
            a('s_sleep 127')
            a('s_mov_b32 s12, 0')
            for pg in range(20):
                for h in range(2):
                    a(f's_mov_b32 s6, {pg * (2 << 20) + 0x1fc000 + h * 8192}')
                    for rep in range(2):
                        a('s_mov_b32 s7, 0')
                        a('s_memtime s[60:61]')
                        a('s_waitcnt lgkmcnt(0)')
                        a(f's_atomic_add s7, {sr(S_WS, 2)}, s6 glc')
                        a('s_waitcnt lgkmcnt(0)')
                        a('s_memtime s[62:63]')
                        a('s_waitcnt lgkmcnt(0)')
                    a(f's_sub_u32 s{10 + h}, s62, s60')
                a('s_cmp_gt_u32 s10, s11')
                a(f's_cselect_b32 s13, {10 ** (pg % 8)}, 0')
                a('s_add_u32 s12, s12, s13')
                if pg % 8 == 7 or pg == 19:
                    a('s_add_u32 s12, s12, 200000000')
                    a('v_mov_b32 v1, s12')
                    a(f'buffer_store_dword v1, off, {sr(S_DBG, 4)}, 0 offset:{4 + 4 * (pg // 8)}')
                    a('s_mov_b32 s12, 0')
        a(f'{lz}:')
        if self.diag:
            self.stamp('outst')
            a('s_waitcnt vmcnt(0)')
            self.stamp(12)
            a('s_waitcnt lgkmcnt(0)')
            with self.wave0():
                a(f's_lshl_b32 s{sT0}, s2, 7')
                a(f's_add_u32 s{sT0}, s{sT0}, {STAMP}')
                for i in range(NSTAMP):
                    a(f'v_mov_b32 v0, s{S_STAMP + 2 * i}')
                    a(f'buffer_store_dword v0, off, {WS}, s{sT0} offset:{4 * i}')
        if self.opt.get('fixt'):
            with a.untracked():
                a(f's_cmp_lg_u32 s2, {self.opt.get("fixwg", 0)}')
                a('s_cbranch_scc1 .Lend')
                a(f's_cmp_lg_u32 s{S_W}, 0')
                a('s_cbranch_scc1 .Lend')
                a(f's_sub_u32 s{sT2}, s{S_STAMP + 2 * self.opt.get("fixs", 0)}, s{S_STAMP + 2 * self.opt.get("fixb", 0)}')
                a(f's_mul_i32 s{sT2}, s{sT2}, 10')
                a(f's_min_u32 s{sT2}, s{sT2}, 100000')
                a(f's_add_u32 s{sT2}, s{sT2}, {self.opt["fixt"]}')
                a('.Lfix:')
                a(f's_memrealtime {sr(sT0, 2)}')
                a('s_waitcnt lgkmcnt(0)')
                a(f's_sub_u32 s{sT0}, s{sT0}, s{S_STAMP}')
                a(f's_cmp_lt_u32 s{sT0}, s{sT2}')
                a('s_cbranch_scc1 .Lfix')
        a('.Lend:')
        a('s_endpgm')

    def build(self):
        a = self.a
        if self.diag:
            for i in range(2 * NSTAMP):
                a(f's_mov_b32 s{S_STAMP + i}, 0')
        self.prologue()
        self.conv()
        self.gemms()
        self.side()
        for c in self.cold:
            a.fresh()
            a('s_nop 7')
            c()
        a('.Lcode_end:')
        a('s_endpgm')
        pads = (self.opt.get('base', 0x300), NPAD, sr(sRet, 2), '.Lend', self.opt.get('pstride', 4096)) if self.opt['pads'] else None
        body = a.finish(verbose=True, align=self.opt.get('align', 1), pads=pads)
        body += '.p2align 12\n    s_endpgm\n'
        ref = open('cdna_kernels/' + NAME + '.s.ref').read().split('\n')
        head = [l for l in ref if l.startswith(';') and '@launch' not in l and 'Override' not in l and 'grid=ceil' not in l]
        txt = '\n'.join(head) + '\n'
        txt += '; One persistent launch: kv/transposition -> Toeplitz-MFMA long conv -> gate/up GEMM + GEGLU -> down GEMM.\n'
        txt += '; @launch grid=(256,1,1) block=(256,1,1) lds=163840\n'
        txt += f'''.amdgcn_target "amdgcn-amd-amdhsa--gfx950"
.text
.globl {NAME}_kernel
.p2align 8
.type {NAME}_kernel,@function
{NAME}_kernel:
{body}.section .rodata,"a"
.p2align 6
.amdhsa_kernel {NAME}_kernel
  .amdhsa_next_free_vgpr 512
  .amdhsa_next_free_sgpr 102
  .amdhsa_accum_offset 256
  .amdhsa_group_segment_fixed_size 0
  .amdhsa_kernarg_size 104
  .amdhsa_user_sgpr_count 2
  .amdhsa_user_sgpr_kernarg_segment_ptr 1
  .amdhsa_system_sgpr_workgroup_id_x 1
  .amdhsa_float_denorm_mode_32 3
.end_amdhsa_kernel
'''
        return txt


if __name__ == '__main__':
    out = sys.argv[1]
    diag = 'diag' in sys.argv[2:]
    opt = {}
    for x in sys.argv[2:]:
        if '=' in x:
            k, v = x.split('=')
            try:
                v = int(v)
            except ValueError:
                try:
                    v = float(v)
                except ValueError:
                    pass
            opt[k] = v
    open(out, 'w').write(Gen(diag, opt).build())
```

```python
import struct
import sys
from asmlib import Asm, vr, ar, sr

NAME = 'sequential_preLN__ssm_conv_h3__geglu_ffn__prompt'

MB = 1 << 20
QS = 16384
CNT = 0
CF3 = 16384
PROBE = 32768
ST1 = 49152
CSF = 65536
STAMP = 98304
PST = 131072
W45F = PST + 262144
WDF = 2 * MB
KVX, KVXT = 4 * MB, 8 * MB
KVM = 36 * MB
XP4, XP4T = 12 * MB, 8 * MB + 524288
HP4, HP4T = 16 * MB, 9 * MB
ACT = 20 * MB
WS_END = 40 * MB
C_F1, C_F1B, C_FX, C_FW, C_FXR, C_B1, C_B2, C_FWR = [4 * i for i in range(8)]


def grp_base(g, main, tail):
    return (main + (g & 3) * 524288 + (g >> 2) * 8192) if g < 8 else tail + (g - 8) * 8192


SPIN = 100000

S_W = 3
S_K, S_V, S_SH, S_SK, S_X, S_WG, S_WU, S_WD, S_OUT, S_DBG, S_WS = 4, 8, 12, 16, 20, 24, 28, 32, 36, 40, 44
S_D = 48
sX, sJ, sG, sM, sQ, sRB, sCB, sA, sB, sRot = 50, 51, 52, 53, 54, 55, 56, 57, 58, 59
sT0, sT1, sT2, sT3, sT4, sT5, sT6, sT7 = 60, 61, 62, 63, 64, 65, 66, 67
sWoff, sWoff2, sSpin, sDv = 68, 69, 70, 71
sOne, sU0, sU1, sU2 = 72, 73, 74, 75
sXo = 1
sRet = 48
NPAD = 8
S_STAMP = 76
NSTAMP = 13
sAB = 4
sL = [8, 9, 10, 11]
sPL, sPH, sFW, sSide, sArr = 16, 17, 18, 19, 23
sE = [None, 12, 13, 14]

GSTR = 4128
GW = 4 * GSTR
UBASE = 4 * GW
USTR = 4608
TILE = 40960
WS = sr(S_WS, 4)


def f32(x):
    return '0x%08x' % struct.unpack('<I', struct.pack('<f', x))[0]


class Gen:
    def __init__(self, diag=False, opt=None):
        self.a = Asm()
        self.diag = diag
        self.opt = dict(place=1, w_kv=0, w_e1=10, apoll=9, w_u=0, tb_pre=4, tb_mid=0, ssm=1, defer=0, wdp_from=24, a_ahead=14, sig='v', epi_rate=4.5,
                        fx_it=3, early_n=0, out_sc1=1, pads=1, wd_pre=20, wd_post=4, l2=10, wd_p1=11, chkb=40, sigc=39, wd_pre1=8, arr='s')
        if opt:
            self.opt.update(opt)
        self.cold = []

    PROF = {
        'main': [0, 1, 2, 3, 4, 5, 6, 7, 8, 9, 10, 11, 12],
        'front': [0, 'karg', 'issued', 1, 'kvdone', 2, 'tbpre', 'drained', 3, 'tbpost', 4, 'uload', 5],
        'e2': [0, 6, 'zbar', 7, 'hbar', 'hissued', 'hdrained', 'hbar2', 'arrived', 'wwritten', 'polled', 8, 'a0'],
        'g1': [0, 8, 'a0', 'p8', 'p16', 'p24', 'p32', 9, 't3', 't4', 't5', 10, 12],
        'g2a': [0, 't5', 10, 'm4', 'prechk1', 'chk1', 'm24', 'presig2', 'sig2', 'm44', 'm64', 'endA', 'm84'],
        'sum': [0, 'x1', 'x2', 'x3', 'x4', 'x5', 'x6', 7, 8, 'x9', 'x10', 'x11', 12],
        'side': [0, 'sx_in', 'sx_issued', 'sx_data', 'sx_bar', 'sx_st', 'sx_ld2', 'sx_dr', 1, 2, 6, 7, 8],
        'loop': [0, 4, 5, 'it1', 'it2', 'it3', 'it4', 'it5', 'it6', 'it7', 6, 7, 8],
        'g1b': [0, 9, 'q10', 'q20', 't3', 'presig0', 'sig0', 't4', 'prechk0', 'chk0', 'presig1', 'sig1', 't5'],
        'g2': [0, 't5', 10, 'chkb', 'sigc', 'endA', 'chkc0', 11, 'endB', 'endC', 'redbar', 'outst', 12],
    }

    def stamp(self, i):
        prof = self.PROF[self.opt.get('prof', 'main')]
        if self.diag and i in prof:
            i = prof.index(i)
            self.a(f'{"s_memtime" if self.opt.get("cyc") else "s_memrealtime"} {sr(S_STAMP + 2 * i, 2)}')

    def spin_atomic(self, soff, target, depth, vt):
        a = self.a
        top, done = a.label('spin'), a.label('done')
        with a.untracked():
            a(f's_mov_b32 s{sSpin}, {SPIN}')
            for d in range(depth - 1):
                a(f'v_mov_b32 v{vt + d}, 0')
                a(f'buffer_atomic_add v{vt + d}, off, {WS}, {soff} sc0 sc1')
                a(f's_sleep {self.opt.get("pslp", 3)}')
            a(f'{top}:')
            for d in range(depth):
                n = (d + depth - 1) % depth
                a(f'v_mov_b32 v{vt + n}, 0')
                a(f'buffer_atomic_add v{vt + n}, off, {WS}, {soff} sc0 sc1')
                a(f's_waitcnt vmcnt({depth - 1})')
                a(f'v_readfirstlane_b32 s{sT7}, v{vt + d}')
                a(f's_cmp_ge_u32 s{sT7}, {target}')
                a(f's_cbranch_scc1 {done}')
            a(f's_sub_u32 s{sSpin}, s{sSpin}, 1')
            a(f's_cbranch_scc0 {top}')
            a(f'{done}:')

    def spin(self, srd, soff, target, vt):
        a = self.a
        top, done = a.label('spin'), a.label('done')
        with a.untracked():
            a(f's_mov_b32 s{sSpin}, {SPIN}')
            a(f'{top}:')
            a(f'buffer_load_dword v{vt}, off, {sr(srd, 4)}, {soff} sc1')
            a('s_waitcnt vmcnt(0)')
            a(f'v_readfirstlane_b32 s{sT7}, v{vt}')
            a(f's_sub_u32 s{sSpin}, s{sSpin}, 1')
            a(f's_cbranch_scc1 {done}')
            a(f's_cmp_lt_u32 s{sT7}, {target}')
            a(f's_cbranch_scc1 {top}')
            a(f'{done}:')

    def check(self, srd, soff, target, vt):
        a = self.a
        slow, back = a.label('slow'), a.label('back')
        a(f'v_readfirstlane_b32 s{sT7}, v{vt}')
        a(f's_cmp_lt_u32 s{sT7}, {target}')
        a(f's_cbranch_scc1 {slow}')
        a(f'{back}:')

        def cold():
            a(f'{slow}:')
            self.spin(srd, soff, target, vt)
            a(f's_branch {back}')
        self.cold.append(cold)

    def get_pol(self, vt):
        a = self.a
        self.check(S_DBG, '0 offset:128', 1, vt)
        a(f's_and_b32 s0, s{sT7}, 2')
        a('s_lshl_b32 s0, s0, 20')
        a(f's_add_u32 s{S_WS}, s{S_WS}, s0')
        a(f's_addc_u32 s{S_WS + 1}, s{S_WS + 1}, 0')

    def wave0(self):
        g = self

        class W:
            def __enter__(s):
                s.l = g.a.label('nw0')
                g.a(f's_cmp_lg_u32 s{S_W}, 0')
                g.a(f's_cbranch_scc1 {s.l}')
                s.u = g.a.untracked()
                s.u.__enter__()
                g.a('s_mov_b64 exec, 1')

            def __exit__(s, *x):
                g.a('s_mov_b64 exec, -1')
                s.u.__exit__()
                g.a(f'{s.l}:')
        return W()

    def warm(self, sets):
        if not self.opt['pads']:
            return
        a = self.a
        for w, ks in enumerate(sets):
            if not ks:
                continue
            l = a.label('nw')
            a(f's_cmp_lg_u32 s{S_W}, {w + 1}')
            a(f's_cbranch_scc1 {l}')
            for k in ks:
                a(f's_call_b64 {sr(sRet, 2)}, .Lpad_{k}')
            a(f'{l}:')

    def arrive_start(self, items, pre=None):
        a = self.a
        l = a.label('noarr')
        for r, _ in items:
            a(f's_mov_b32 s{r}, 1')
        a(f's_cmp_lg_u32 s{S_W}, 0')
        a(f's_cbranch_scc1 {l}')
        with a.untracked():
            if pre:
                pre()
            for r, line in items:
                a(f's_atomic_add s{r}, {sr(S_WS, 2)}, s{sXo} offset:{line * 256} glc')
        a(f'{l}:')

    def arrive_finish(self, items, vt):
        a = self.a
        a('s_waitcnt lgkmcnt(0)')
        for r, last, rep in items:
            l = a.label('notlast')
            a(f's_cmp_lg_u32 s{r}, {last}')
            a(f's_cbranch_scc1 {l}')
            with a.untracked():
                a('s_mov_b32 exec_lo, 15')
                a('s_mov_b32 exec_hi, 15')
                a(f'v_lshlrev_b32 v{vt}, 8, v0')
                a(f's_mov_b32 s{sT7}, {rep * 256}')
                a(f'buffer_atomic_add v{self.vOne}, v{vt}, {WS}, s{sT7} offen sc1')
                a('s_mov_b64 exec, -1')
            a(f'{l}:')

    def prologue(self):
        a = self.a
        a('s_cmp_ge_u32 s2, 0x100')
        a('s_cbranch_scc1 .Lend')
        self.stamp(0)
        for srd, off in ((S_K, 8), (S_WS, 96), (S_V, 16), (S_SH, 24), (S_SK, 32), (S_X, 0), (S_WG, 56), (S_WU, 64),
                         (S_WD, 72), (S_OUT, 80), (S_DBG, 88), (S_D, 40)):
            a(f's_load_dwordx2 {sr(srd, 2)}, s[0:1], {off}')
        a('v_lshrrev_b32 v1, 6, v0')
        a(f's_and_b32 s{sX}, s2, 7')
        a(f's_lshr_b32 s{sJ}, s2, 3')
        a(f'v_readfirstlane_b32 s{S_W}, v1')
        a('v_mov_b32 v1, v0')
        a('v_and_b32 v0, 63, v0')
        for srd, n in ((S_K, 2621440), (S_V, 2621440), (S_SH, 5120), (S_SK, 4096), (S_X, 2621440), (S_WG, 1966080),
                       (S_WU, 1966080), (S_WD, 1966080), (S_OUT, 2621440), (S_DBG, 256), (S_WS, WS_END)):
            a(f's_mov_b32 s{srd + 2}, {n}')
            a(f's_mov_b32 s{srd + 3}, 0x20000')
        a(f's_and_b32 s{sM}, s{sJ}, 15')
        a(f's_mov_b32 s{sG}, s{sX}')
        a(f's_cmp_lt_u32 s{sJ}, 16')
        a.snapshot('role')
        a('s_cbranch_scc1 .Lconv')
        a(f's_lshr_b32 s{sG}, s{sX}, 2')
        a(f's_add_u32 s{sG}, s{sG}, 8')
        a(f's_and_b32 s{sT0}, s{sX}, 3')
        a(f's_lshl2_add_u32 s{sM}, s{sT0}, s{sM}')
        a(f's_cmp_lt_u32 s{sJ}, 20')
        a('s_cbranch_scc1 .Lconv')
        with a.untracked():
            a(f's_cmp_lg_u32 s2, {self.opt.get("initwg", 208)}')
            a('s_cbranch_scc1 .Lnoinit')
            a('v_lshrrev_b32 v2, 3, v1')
            a('v_and_b32 v3, 7, v0')
            a('v_lshlrev_b32 v3, 4, v3')
            a('v_lshl_add_u32 v2, v2, 8, v3')
            for i in range(4):
                a(f'v_mov_b32 v{4 + i}, 0')
            a('s_waitcnt lgkmcnt(0)')
            a.fresh()
            a(f'buffer_store_dwordx4 v[4:7], v2, {WS}, 0 offen sc1')
            for off in (0x2000, 2 * MB, 2 * MB + 0x2000):
                a(f's_mov_b32 s{sT0}, {off}')
                a(f'buffer_store_dwordx4 v[4:7], v2, {WS}, s{sT0} offen sc1')
            a('v_mov_b32 v3, 1')
            a('s_waitcnt vmcnt(0)')
            a('s_barrier')
            a(f's_cmp_lg_u32 s{S_W}, 0')
            a('s_cbranch_scc1 .Lside')
            a('s_mov_b64 exec, 1')
            a(f'buffer_store_dword v3, off, {sr(S_DBG, 4)}, 0 sc1')
            a('s_mov_b64 exec, -1')
            a('s_branch .Lside')
            a('.Lnoinit:')
            a(f's_cmp_lg_u32 s2, {self.opt.get("polwg", 216)}')
            a('s_cbranch_scc1 .Lnopol')
            a(f's_and_b32 s{sT1}, s{S_W}, 1')
            a(f's_lshl_b32 s{sT0}, s{sT1}, 13')
            a(f's_lshl_b32 s{sT2}, s{S_W}, 8')
            a(f's_add_u32 s{sT0}, s{sT0}, s{sT2}')
            a(f's_add_u32 s{sT0}, s{sT0}, {PROBE}')
            if 'fpol' in self.opt:
                a(f's_mov_b32 s{sT1}, {self.opt["fpol"]}')
            a(f's_add_u32 s{sT1}, s{sT1}, 1')
            a(f'v_mov_b32 v4, s{sT1}')
            a('v_mov_b32 v5, 0')
            a('v_lshlrev_b32 v2, 2, v0')
            a('s_waitcnt lgkmcnt(0)')
            wu = self.opt.get('pwarm', 1)
            if wu == 1:
                a(f'buffer_store_dword v5, v2, {WS}, s{sT0} offen sc1')
                a('s_waitcnt vmcnt(0)')
            a('s_mov_b64 exec, 1')
            for i in range(0 if wu == 2 else 1, 1 + self.opt.get('hops', 1)):
                if i == 1:
                    a('s_barrier')
                a(f's_mov_b32 s{sT3}, 0')
                a(f's_atomic_add s{sT3}, {sr(S_WS, 2)}, s{sT0} glc')
                a('s_waitcnt lgkmcnt(0)')
            a(f'buffer_atomic_cmpswap v[4:5], off, {sr(S_DBG, 4)}, 0 offset:128 sc1')
            a('s_mov_b64 exec, -1')
            a('s_branch .Lside')
            a('.Lnopol:')
            if self.opt.get('cpf', 1):
                a(f's_getpc_b64 {sr(sT0, 2)}')
                a('.Lpc:')
                a(f's_and_b32 s{sT2}, s{sJ}, 3')
                a(f's_lshl2_add_u32 s{sT2}, s{sT2}, s{S_W}')
                a(f's_mul_i32 s{sT2}, s{sT2}, {18 * 128}')
                a('v_min_u32 v2, 17, v0')
                a(f'v_lshl_add_u32 v2, v2, 7, s{sT2}')
                a('v_min_u32 v2, .Lcode_end-.Lpc-4, v2')
                a('v_mov_b32 v3, 0')
                a(f'v_lshl_add_u64 v[4:5], v[2:3], 0, {sr(sT0, 2)}')
                a('global_load_dword a253, v[4:5], off')
            a('s_branch .Lside')
        a('.Lconv:')
        a.fresh('role')

    def gemm_ids(self):
        a = self.a
        a.need(sr(S_WS, 2))
        a(f's_lshr_b32 s{sT0}, s{sX}, 2')
        a(f's_lshl_b32 s{sT0}, s{sT0}, 5')
        a(f's_and_b32 s{sXo}, s{sX}, 3')
        a(f's_add_u32 s{sXo}, s{sXo}, s{sT0}')
        a(f's_lshl_b32 s{sXo}, s{sXo}, 8')
        a(f's_lshr_b32 s{sRB}, s{sX}, 2')
        a(f's_lshr_b32 s{sT0}, s{sJ}, 2')
        a(f's_lshl3_add_u32 s{sRB}, s{sRB}, s{sT0}')
        a(f's_and_b32 s{sRot}, s{sX}, 3')
        a(f's_and_b32 s{sT0}, s{sJ}, 3')
        a(f's_lshl2_add_u32 s{sCB}, s{sRot}, s{sT0}')
        a(f's_and_b32 s{sT0}, s{sCB}, 1')
        a(f's_mul_i32 s{sA}, s{sCB}, 6')
        a(f's_add_u32 s{sB}, s{sA}, 4')
        a(f's_lshl1_add_u32 s{sA}, s{sT0}, s{sA}')
        a(f's_lshl_b32 s{sT1}, s{sT0}, 2')
        a(f's_sub_u32 s{sB}, s{sB}, s{sT1}')

    vWL, vWLb, vW45, vTmp, vTmp2, vOne, vPS = 254, 253, 252, 250, 249, 248, 251
    WRAW = [8, 40, 72, 104, 136]
    vWW = 236
    PT = 200

    def real_line(self, r, tmp):
        a = self.a
        if not self.opt.get('swz', 1):
            return
        a(f's_sub_u32 s{tmp}, s{r}, 3')
        a(f's_cmp_lt_u32 s{tmp}, 2')
        a(f's_cselect_b32 s{tmp}, 7, 0')
        a(f's_xor_b32 s{r}, s{r}, s{tmp}')
        a(f's_sub_u32 s{tmp}, s{r}, 10')
        a(f's_cmp_lt_u32 s{tmp}, 2')
        a(f's_cselect_b32 s{tmp}, 1, 0')
        a(f's_xor_b32 s{r}, s{r}, s{tmp}')

    def w_addr(self):
        a = self.a
        t = self.vTmp
        a(f's_lshr_b32 s{sT1}, s{sA}, 2')
        self.real_line(sT1, sT0)
        a(f's_lshl_b32 s{sT1}, s{sT1}, 7')
        a(f'v_and_b32 v{t}, 7, v0')
        a(f'v_lshl_add_u32 v{self.vWLb}, v{t}, 4, s{sT1}')
        a(f's_lshr_b32 s{sT0}, s{S_W}, 1')
        a(f's_lshl_b32 s{sT0}, s{sT0}, 6')
        a(f's_mul_i32 s{sWoff}, s{sRot}, 160')
        a(f's_add_u32 s{sWoff}, s{sWoff}, s{sT0}')
        a(f's_mul_i32 s{sT0}, s{sCB}, {80 * 1024}')
        a(f's_add_u32 s{sT0}, s{sT0}, {W45F}')
        a(f'v_lshl_add_u32 v{self.vW45}, v0, 4, s{sT0}')
        a(f's_mul_i32 s{sWoff2}, s{sRot}, 10')
        a(f's_add_u32 s{sWoff2}, s{sWoff2}, s{S_W}')
        a(f's_lshl_b32 s{sWoff2}, s{sWoff2}, 10')
        a(f'v_mov_b32 v{self.vOne}, 1')
        a(f's_and_b32 s{sT0}, s{sRB}, 7')
        a(f's_lshr_b32 s{sT1}, s{S_W}, 1')
        a(f's_lshl1_add_u32 s{sT0}, s{sT0}, s{sT1}')
        a(f's_lshr_b32 s{sT1}, s{sRB}, 3')
        a(f's_lshl1_add_u32 s{sT0}, s{sT0}, s{sT1}')
        a(f's_and_b32 s{sT1}, s{S_W}, 1')
        a(f's_lshl1_add_u32 s{sT0}, s{sT0}, s{sT1}')
        a(f's_lshl_b32 s{sT0}, s{sT0}, 12')
        a(f'v_and_b32 v{t}, 31, v0')
        a(f'v_lshl_add_u32 v{self.vPS}, v{t}, 3, s{sT0}')
        a(f'v_lshrrev_b32 v{t}, 5, v0')
        a(f'v_lshl_add_u32 v{self.vPS}, v{t}, 11, v{self.vPS}')

    def w_select(self):
        a = self.a
        a(f's_bitcmp1_b32 s{S_W}, 0')
        a(f's_cselect_b32 s{S_WG}, s{S_WU}, s{S_WG}')
        a(f's_cselect_b32 s{S_WG + 1}, s{S_WU + 1}, s{S_WG + 1}')
        for i in range(1, 4):
            a(f's_movk_i32 s{sE[i]}, {6144 * i}')
        a(f's_movk_i32 s15, 3072')

    def clear_pst(self, v2):
        return [f'v_mov_b32 v{v2}, -1', f'v_mov_b32 v{v2 + 1}, -1',
                f's_lshl_b32 s{sU0}, s{sCB}, 8', f's_add_u32 s{sU0}, s{sU0}, {PST}',
                ['s_mov_b32 exec_hi, 0',
                 f'buffer_store_dwordx2 {vr(v2, 2)}, v{self.vPS}, {WS}, s{sU0} offen sc1',
                 's_mov_b32 exec_hi, -1']]

    def w_loads_main(self, park=False):
        out = []
        t, t2 = self.vTmp, self.vTmp2
        for b in range(5):
            for e in range(8):
                g = []
                if e == 0:
                    g = [f'v_and_b32 v{t}, 56, v0', f'v_add_u32 v{t}, s{sWoff}, v{t}', f'v_subrev_u32 v{t2}, 640, v{t}',
                         f'v_min_u32 v{t}, v{t}, v{t2}', f'v_mad_u32_u24 v{self.vWL}, v{t}, s15, v{self.vWLb}',
                         f's_add_u32 s{sWoff}, s{sWoff}, 128']
                so = f's{sE[e >> 1]}' if e >> 1 else '0'
                dst = ar(208 + 4 * e, 4) if park and b == 4 else vr(self.WRAW[b] + 4 * e, 4)
                g.append(f'buffer_load_dwordx4 {dst}, v{self.vWL}, {sr(S_WG, 4)}, {so} offen offset:{3072 * (e & 1)}')
                out.append(g)
        return out

    def w_loads_tail(self):
        out = []
        for i in range(20):
            if i & 1:
                g = [f's_add_u32 s{sU1}, s{sWoff2}, {TILE}',
                     f'buffer_load_dwordx4 {ar(160 + 4 * i, 4)}, v{self.vW45}, {WS}, s{sU1} offen sc1']
            else:
                g = []
                if i:
                    g = [f's_add_u32 s{sWoff2}, s{sWoff2}, 4096',
                         [f's_sub_u32 s{sU1}, s{sWoff2}, {TILE}', f's_cselect_b32 s{sWoff2}, s{sWoff2}, s{sU1}']]
                g.append(f'buffer_load_dwordx4 {ar(160 + 4 * i, 4)}, v{self.vW45}, {WS}, s{sWoff2} offen sc1')
            out.append(g)
        return out

    def w_write_addr(self):
        a = self.a
        t, t2 = self.vTmp, self.vTmp2
        a(f's_lshr_b32 s{sT0}, s{S_W}, 1')
        a(f's_lshl_b32 s{sT0}, s{sT0}, 12')
        a(f's_and_b32 s{sT1}, s{S_W}, 1')
        a(f's_lshl_b32 s{sT1}, s{sT1}, 7')
        a(f's_add_u32 s{sT0}, s{sT0}, s{sT1}')
        a(f'v_lshrrev_b32 v{t}, 3, v0')
        a(f'v_lshl_add_u32 v{t}, v{t}, 9, s{sT0}')
        a(f'v_and_b32 v{t2}, 1, v0')
        a(f'v_lshl_add_u32 v{t}, v{t2}, 6, v{t}')
        a(f'v_bfe_u32 v{t2}, v0, 1, 2')
        a(f's_mov_b32 s{sT0}, {TILE + 16}')
        a(f'v_mad_u32_u24 v{self.vWW}, v{t2}, s{sT0}, v{t}')
        for q in range(1, 4):
            a(f'v_xor_b32 v{self.vWW + q}, {16 * q}, v{self.vWW}')
        a(f's_mov_b32 s{sPL}, 0x05040100')
        a(f's_mov_b32 s{sPH}, 0x07060302')

    def w_writes_main(self):
        out = []
        for b in range(5):
            for c8 in range(8):
                p = self.PT + 4 * (c8 & 3) if b < 5 - self.opt.get('defer', 2) else (228 if c8 & 1 else 242)
                r = self.WRAW[b] + (c8 >> 1)
                g = [f'v_perm_b32 v{p + d}, v{r + 8 * d + 4}, v{r + 8 * d}, s{sPH if c8 & 1 else sPL}' for d in range(4)]
                g.append(f'ds_write_b128 v{self.vWW + (c8 & 3)}, {vr(p, 4)} offset:{b * 8192 + (c8 >> 2) * 256}')
                out.append(g)
        return out

    def conv(self):
        a = self.a
        o = self.opt
        vK, vKh, vC, vR, vSHa, vL16 = 1, 2, 3, 4, 5, 6
        SH = 8
        KR = 16
        VR = 38
        WF = 56
        KF = 72
        O = 120
        SK = 136
        KV = 168
        VF = 200
        vSW, vSR, vKS, vG, vBa, vAa, vZR, vZR2, vUL, vUW, vI7, vGZ, vXS, vHS, vFl, vPrev = range(232, 248)
        ZERO, AD = 224, 240
        vAa2 = vZR2
        kvmix = 0
        a(f's_lshl4_add_u32 s{sQ}, s{sG}, s{sM}')
        a(f'v_and_b32 v{vC}, 15, v0')
        a(f'v_lshrrev_b32 v{vR}, 4, v0')
        a(f's_lshl2_add_u32 s{sT0}, s{sM}, s{S_W}')
        a(f's_mul_i32 s{sT0}, s{sT0}, {32 * 1280}')
        a(f's_lshl_b32 s{sT1}, s{sG}, 7')
        a(f's_add_u32 s{sT0}, s{sT0}, s{sT1}')
        a(f's_movk_i32 s{sT2}, {8 * 1280}')
        a(f'v_lshl_add_u32 v{vK}, v{vC}, 3, s{sT0}')
        a(f'v_mad_u32_u24 v{vK}, v{vR}, s{sT2}, v{vK}')
        a(f'v_subrev_u32 v{vKh}, 3840, v{vK}')
        a(f's_lshl_b32 s{sT1}, s{sG}, 9')
        a(f'v_lshl_add_u32 v{vSHa}, v{vC}, 5, s{sT1}')
        a(f's_movk_i32 s{sT3}, 5120')
        a(f'v_lshlrev_b32 v{vL16}, 4, v0')

        def addr_phase_a():
            a(f'v_subrev_u32 v{vPrev}, 8, v{vL16}')
            a(f's_mul_i32 s{sT0}, s{S_W}, {USTR}')
            a(f's_add_u32 s{sT0}, s{sT0}, {UBASE}')
            a(f's_movk_i32 s{sT1}, 272')
            a(f'v_lshl_add_u32 v{vSW}, v{vR}, 4, s{sT0}')
            a(f'v_mad_u32_u24 v{vSW}, v{vC}, s{sT1}, v{vSW}')
            a(f'v_lshl_add_u32 v{vSR}, v{vC}, 4, s{sT0}')
            a(f'v_mad_u32_u24 v{vSR}, v{vR}, s{sT1}, v{vSR}')
            a(f'v_add_u32 v{vUW}, s{sT0}, v{vL16}')
            a(f's_add_u32 s{sT0}, s{sT0}, 32')
            a(f'v_lshl_add_u32 v{vBa}, v{vC}, 5, s{sT0}')
            a(f'v_lshl_add_u32 v{vBa}, v{vR}, 4, v{vBa}')
            a(f's_and_b32 s{sT0}, s{sG}, 3')
            a(f's_lshl_b32 s{sT0}, s{sT0}, 19')
            a(f's_cmp_lt_u32 s{sG}, 8')
            a(f's_cselect_b32 s{sT4}, s{sT0}, {KVXT - KVX}')
            a(f's_lshr_b32 s{sT0}, s{sX}, 2')
            a(f's_lshl_b32 s{sT0}, s{sT0}, 13')
            a(f's_add_u32 s{sT4}, s{sT4}, s{sT0}')
            a(f's_and_b32 s{sT0}, s{sM}, 8')
            a(f's_add_u32 s{sT0}, s{sT0}, s{sM}')
            a(f's_lshl2_add_u32 s{sT1}, s{sT0}, s{S_W}')
            a(f's_lshl_b32 s{sT1}, s{sT1}, 8')
            a(f's_add_u32 s{sT0}, s{sT4}, s{sT1}')
            a(f's_mov_b32 s{sT1}, {2 * QS}')
            if kvmix:
                a(f's_lshl2_add_u32 s{sT1}, s{sM}, s{S_W}')
                a(f's_lshl_b32 s{sT1}, s{sT1}, 8')
                a(f's_lshl_b32 s{sT0}, s{sG}, 18')
                a(f's_add_u32 s{sT0}, s{sT0}, s{sT1}')
                a(f's_mov_b32 s{sT1}, {QS}')
            a(f'v_lshl_add_u32 v{vKS}, v{vC}, 4, s{sT0}')
            a(f'v_mad_u32_u24 v{vKS}, v{vR}, s{sT1}, v{vKS}')

        def addr_rest():
            self.gemm_ids()
            self.w_addr()
            a(f's_mul_i32 s{sT5}, s{S_W}, {GW}')
            a(f'v_add_u32 v{vG}, s{sT5}, v{vL16}')
            a(f'v_bfe_u32 v{vAa}, v0, 2, 2')
            a(f'v_sub_u32 v{vAa}, v{vAa}, v{vR}')
            a(f'v_sub_u32 v{vAa}, v{vAa}, v{vR}')
            a(f's_add_u32 s{sT0}, s{sT5}, 56')
            a(f'v_lshl_add_u32 v{vAa}, v{vAa}, 3, s{sT0}')
            a(f'v_and_b32 v{vI7}, 3, v0')
            a(f's_movk_i32 s{sT1}, {GSTR}')
            a(f'v_mad_u32_u24 v{vAa}, v{vI7}, s{sT1}, v{vAa}')
            a(f'v_add_u32 v{vAa2}, 0x800, v{vAa}')
            a(f'v_and_b32 v{vGZ}, 16, v0')
            a(f'v_add_u32 v{vGZ}, s{sT5}, v{vGZ}')
            a(f'v_mad_u32_u24 v{vGZ}, v{vI7}, s{sT1}, v{vGZ}')
            a(f'v_and_b32 v{vI7}, 7, v0')
            a(f's_lshl_b32 s{sT6}, s{sM}, 15')
            a(f's_add_u32 s{sT6}, s{sT6}, s{sT4}')
            a(f's_lshl_b32 s{sT1}, s{S_W}, 6')
            a(f's_add_u32 s{sT0}, s{sT6}, s{sT1}')
            if kvmix:
                a(f's_lshl_b32 s{sT0}, s{sQ}, 14')
                a(f's_add_u32 s{sT0}, s{sT0}, s{sT1}')
            a(f'v_and_b32 v{vUL}, 3, v0')
            a(f'v_lshl_add_u32 v{vUL}, v{vUL}, 4, s{sT0}')
            a(f'v_lshrrev_b32 v{vXS}, 2, v0')
            a(f'v_lshl_add_u32 v{vUL}, v{vXS}, 8, v{vUL}')
            a(f's_lshl_b32 s{sT0}, s{S_W}, 12')
            a(f'v_add_u32 v{vXS}, s{sT0}, v{vL16}')
            a(f's_lshl_b32 s{sT1}, s{sQ}, 14')
            a(f's_add_u32 s{sT0}, s{sT0}, s{sT1}')
            a(f's_mov_b32 s{sT1}, {HP4}')
            a(f's_cmp_lt_u32 s{sQ}, 120')
            a(f's_cselect_b32 s{sT1}, s{sT1}, {HP4T - 120 * QS}')
            a(f's_add_u32 s{sT0}, s{sT0}, s{sT1}')
            a(f'v_add_u32 v{vHS}, s{sT0}, v{vL16}')
            a(f's_lshl_b32 s{sT0}, s{S_W}, 11')
            a(f'v_add_u32 v{vZR}, s{sT0}, v{vL16}')
            for i in range(4):
                a(f'v_mov_b32 v{ZERO + i}, 0')
        if o.get('addr_early', 0) >= 1:
            addr_phase_a()
        if o.get('addr_early', 0) >= 2:
            addr_rest()
        a.need(sr(S_WS, 2))
        self.stamp('karg')
        a(f'buffer_load_dwordx4 {vr(SH, 4)}, v{vSHa}, {sr(S_SH, 4)}, 0 offen')
        a(f'buffer_load_dwordx4 {vr(SH + 4, 4)}, v{vSHa}, {sr(S_SH, 4)}, 0 offen offset:16')
        for r in range(3):
            a(f'buffer_load_dwordx2 {vr(KR + 2 * r, 2)}, v{vKh}, {sr(S_K, 4)}, 0 offen offset:{r * 1280}')
        for r in range(8):
            so = f's{sT3}' if r >= 4 else '0'
            a(f'buffer_load_dwordx2 {vr(KR + 6 + 2 * r, 2)}, v{vK}, {sr(S_K, 4)}, {so} offen offset:{(r & 3) * 1280}')
            a(f'buffer_load_dwordx2 {vr(VR + 2 * r, 2)}, v{vK}, {sr(S_V, 4)}, {so} offen offset:{(r & 3) * 1280}')
        self.stamp('issued')
        if o.get('tlb'):
            a(f'v_lshlrev_b32 v228, {o["tlb"]}, v0')
            a(f'buffer_load_dword v229, v228, {WS}, 0 offen sc1')
            a(f'buffer_load_dword v228, v228, {sr(S_OUT, 4)}, 0 offen sc1')
        if o.get('addr_early', 0) < 1:
            addr_phase_a()
        if o.get('addr_early', 0) < 2:
            addr_rest()
        a(f's_lshl2_add_u32 s{sT0}, s{sQ}, s{S_W}')
        a(f's_lshl_b32 s{sT1}, s{sT0}, 12')
        a(f's_add_u32 s{S_SK}, s{S_SK}, s{sT1}')
        a(f's_addc_u32 s{S_SK + 1}, s{S_SK + 1}, 0')
        a(f's_lshl_b32 s{sT0}, s{sT0}, 1')
        a(f's_and_b32 s{sT0}, s{sT0}, -4')
        a(f's_load_dword s{sDv}, {sr(S_D, 2)}, s{sT0}')
        ssm = []
        for j in range(4):
            ssm.append(f'buffer_load_dwordx4 {vr(SK + 8 * j + 4, 4)}, v{vL16}, {sr(S_SK, 4)}, 0 offen offset:{1024 * j}')
            if j == 0:
                ssm.append(f'buffer_load_dwordx2 {vr(SK + 2, 2)}, v{vPrev}, {sr(S_SK, 4)}, 0 offen')
            else:
                ssm.append(f'buffer_load_dwordx2 {vr(SK + 8 * j + 2, 2)}, v{vL16}, {sr(S_SK, 4)}, 0 offen offset:{1024 * j - 8}')
        if o.get('ssm', 1) == 0:
            a(ssm)
        self.w_select()
        self.warm([[0], [1], []])
        park = o.get('park', 1)
        wl = self.w_loads_main(park)

        def w_some(n):
            for _ in range(n):
                a(wl.pop(0))
        a(f's_mov_b32 s{sT2}, 0xffff0000')
        for ch in range(4):
            for j in range(4):
                src = SH + 2 * ch + (j >> 1)
                if j & 1:
                    a(f'v_and_b32 v{WF + 4 * j + ch}, s{sT2}, v{src}')
                else:
                    a(f'v_lshlrev_b32 v{WF + 4 * j + ch}, 16, v{src}')

        def unpack(dst, src):
            a(f'v_lshlrev_b32 v{dst}, 16, v{src}')
            a(f'v_and_b32 v{dst + 1}, s{sT2}, v{src}')
            a(f'v_lshlrev_b32 v{dst + 2}, 16, v{src + 1}')
            a(f'v_and_b32 v{dst + 3}, s{sT2}, v{src + 1}')
        for r in range(3):
            unpack(KF + 4 * r, KR + 2 * r)
        self.stamp(1)
        for r in range(8):
            unpack(KF + 4 * (r + 3), KR + 2 * (r + 3))
            vf = VF + 4 * (r & 1)
            for j in (3, 2, 1, 0):
                for p in range(2):
                    d = vr(KV + 4 * r + 2 * p, 2)
                    k = vr(KF + 4 * (r + 3 - j) + 2 * p, 2)
                    w = vr(WF + 4 * j + 2 * p, 2)
                    if j == 3:
                        a(f'v_pk_mul_f32 {d}, {k}, {w}')
                    else:
                        a(f'v_pk_fma_f32 {d}, {k}, {w}, {d}')
                if j == 3:
                    unpack(vf, VR + 2 * r)
            for p in range(2):
                d = vr(KV + 4 * r + 2 * p, 2)
                a(f'v_pk_mul_f32 {d}, {d}, {vr(vf + 2 * p, 2)}')
            if r == o.get('pol_r', 6):
                a(f'buffer_load_dword v{vFl}, off, {sr(S_DBG, 4)}, 0 offset:128 sc1')
            if o.get('ssm', 1) == 1 and r >= o.get('ssm_r', 7):
                for _ in range((len(ssm) + 7 - r) // (8 - r)):
                    a(ssm.pop(0))
            if r & 1:
                d = (7 - r) >> 1
                for ch in range(4):
                    a(f'v_cvt_pk_bf16_f32 v{O + 4 * ch + d}, v{KV + 4 * r + ch}, v{KV + 4 * (r - 1) + ch}')
        self.stamp('kvdone')
        if o.get('pol_r', 6) == 8:
            a(f'buffer_load_dword v{vFl}, off, {sr(S_DBG, 4)}, 0 offset:128 sc1')
        for ch in range(4):
            a(f'ds_write_b128 v{vSW}, {vr(O + 4 * ch, 4)} offset:{ch * 64}')
        for j in range(4):
            a(f'ds_read_b128 {vr(KV + 4 * j, 4)}, v{vSR} offset:{j * 1088}')
        assert not kvmix
        self.get_pol(vFl)
        a(f'buffer_load_dword v{vFl}, off, {sr(S_DBG, 4)}, 0 sc1')
        a(f's_mov_b32 s{sT0}, {KVM if kvmix else KVX}')
        for j in range(4):
            a(f'buffer_store_dwordx4 {vr(KV + 4 * j, 4)}, v{vKS}, {WS}, s{sT0} offen sc1')
            if j < 3:
                a(f's_add_u32 s{sT0}, s{sT0}, {4 * QS if kvmix else 8 * QS}')
        self.stamp(2)
        if kvmix and o.get('pol_l', 0) == 0:
            a(f'buffer_load_dword v{vFl}, off, {sr(S_DBG, 4)}, 0 sc1')
        if o.get('ssm', 1) == 2:
            a(ssm)
        a(f'ds_write_b128 v{vUW}, {vr(ZERO, 4)}')
        a(f'ds_write_b128 v{vGZ}, {vr(ZERO, 4)}')

        def table(j):
            D = SK + 8 * j
            Ea, Eb, Db = 184 + 12 * (j & 1), 184 + 12 * (j & 1) + 4, 184 + 12 * (j & 1) + 8

            def wr(rho, reg):
                a(f'ds_write_b128 v{vG}, {vr(reg, 4)} offset:{rho * GSTR + 1024 * j + 32}')
            wr(3, D + 4)
            for i in range(2):
                a(f'v_pk_mov_b32 {vr(Db + 2 * i, 2)}, {vr(D + 2 + 2 * i, 2)}, {vr(D + 4 + 2 * i, 2)} op_sel:[1,0]')
            for i in range(4):
                a(f'v_alignbit_b32 v{Ea + i}, v{D + 3 + i}, v{D + 2 + i}, 16')
            wr(1, Db)
            wr(0, Ea)
            for i in range(4):
                a(f'v_alignbit_b32 v{Eb + i}, v{D + 4 + i}, v{D + 3 + i}, 16')
            wr(2, Eb)
        w_some(o['w_kv'])
        n1, n2 = o['tb_pre'], o['tb_pre'] + o['tb_mid']
        for j in range(n1):
            table(j)
            if kvmix and o.get('pol_l', 0) == j + 1:
                a(f'buffer_load_dword v{vFl}, off, {sr(S_DBG, 4)}, 0 sc1')
        a.need(f's{sDv}')
        a(f's_and_b32 s{sT1}, s{S_W}, 1')
        a(f's_lshl_b32 s{sT1}, s{sT1}, 4')
        a(f's_lshr_b32 s{sDv}, s{sDv}, s{sT1}')
        a(f's_and_b32 s{sDv}, s{sDv}, 0xffff')
        a(f'v_sub_u32 v5, 7, v{vI7}')
        a(f'v_and_b32 v7, 1, v5')
        a(f'v_lshlrev_b32 v7, 4, v7')
        a(f'v_lshlrev_b32 v7, v7, s{sDv}')
        a(f'v_bfe_u32 v1, v0, 3, 1')
        a(f'v_add_u32 v1, 2, v1')
        a(f'v_cmp_eq_u32 vcc, v1, v{vR}')
        a(f'v_cndmask_b32 v7, 0, v7, vcc')
        a(f'v_lshrrev_b32 v5, 1, v5')
        for d in range(4):
            a(f'v_cmp_eq_u32 vcc, {d}, v5')
            a(f'v_cndmask_b32 v1, 0, v7, vcc')
            a(f'v_accvgpr_write_b32 a{AD + d}, v1')
        self.stamp('tbpre')
        a.drain_stores()
        if kvmix:
            self.get_pol(vFl)
        self.stamp('drained')
        a('s_barrier')
        self.stamp(3)
        a(f's_and_b32 s{sT0}, s{sXo}, 0x2000')
        a(f's_add_u32 s{sT0}, s{sT0}, {C_F1B * 256}')
        a(f's_cmp_lt_u32 s{sG}, 8')
        a(f's_cselect_b32 s{sT0}, s{sXo}, s{sT0}')
        with self.wave0():
            self.check(S_DBG, '0', 1, vFl)
            if o.get('apoll') == 9:
                a(f's_mov_b32 s{sU2}, 1')
                a(f's_atomic_add s{sU2}, {sr(S_WS, 2)}, s{sT0} glc')
            else:
                a(f'buffer_atomic_add v{self.vOne}, off, {WS}, s{sT0} sc1')
        w_some(o['w_e1'])
        for j in range(n1, n2):
            table(j)
        ACC = 128
        BUF = (0, 64)
        XR, SR, XF = 136, 152, 168

        def rdA(it, t):
            o0 = 8 * it + 64 * (t & 3)
            return f'ds_read2_b64 {ar(BUF[it & 1] + 4 * t, 4)}, v{vAa2 if t & 4 else vAa} offset0:{o0} offset1:{o0 + 1}'

        def rdB(it, t):
            return f'ds_read_b128 {ar(BUF[it & 1] + 32 + 4 * t, 4)}, v{vBa} offset:{448 - 64 * it + 512 * t}'
        if n2 == 4:
            for t in range(8):
                a(rdA(0, t))
        self.stamp('tbpost')
        self.warm([[2], [], []])
        with self.wave0():
            if o.get('apoll') == 9:
                top, done = a.label('spin'), a.label('done')
                a(f's_mov_b32 s{sSpin}, {SPIN}')
                a('s_waitcnt lgkmcnt(0)')
                a(f's_cmp_ge_u32 s{sU2}, 15')
                a(f's_cbranch_scc1 {done}')
                a(f'{top}:')
                a(f's_mov_b32 s{sU2}, 0')
                a(f's_atomic_add s{sU2}, {sr(S_WS, 2)}, s{sT0} glc')
                a(f's_sub_u32 s{sSpin}, s{sSpin}, 1')
                a(f's_cbranch_scc1 {done}')
                a('s_waitcnt lgkmcnt(0)')
                a(f's_cmp_lt_u32 s{sU2}, 16')
                a(f's_cbranch_scc1 {top}')
                a(f'{done}:')
                a('s_waitcnt lgkmcnt(0)')
            elif o.get('apoll'):
                self.spin_atomic(f's{sT0}', 16, o['apoll'], 1)
            else:
                self.spin(S_WS, f's{sT0}', 0 if o.get('noe1') else 16, vFl)
        a('s_barrier')
        self.stamp(4)
        a(f's_sub_u32 s{sT0}, {KVM}, s0' if kvmix else f's_mov_b32 s{sT0}, {KVX}')
        for j in range(4):
            a(f'buffer_load_dwordx4 {ar(BUF[1] + 4 * j, 4)}, v{vUL}, {WS}, s{sT0} offen sc1')
            if j < 3:
                a(f's_add_u32 s{sT0}, s{sT0}, {12288 if j == 1 and not kvmix else 4096}')
        w_some(o['w_u'])
        for j in range(n2, 4):
            table(j)
        if n2 < 4:
            for t in range(8):
                a(rdA(0, t))
        a(f's_add_u32 s{sT3}, s{sXo}, {C_FXR * 256}')
        a(f's_mov_b32 s{sT4}, {XP4}')
        a(f's_cmp_lt_u32 s{sG}, 8')
        a(f's_cselect_b32 s{sT4}, s{sT4}, {XP4T - (KVXT - KVX)}')
        a(f's_add_u32 s{sT6}, s{sT6}, s{sT4}')
        a(f's_lshr_b32 s{sT4}, s{S_W}, 1')
        a(f's_lshl_b32 s{sT4}, s{sT4}, 13')
        a(f's_add_u32 s{sT6}, s{sT6}, s{sT4}')
        a(f's_mov_b32 s{sT4}, {ST1}')
        for j in range(4):
            a(f'ds_write_b128 v{vUW}, {ar(BUF[1] + 4 * j, 4)} offset:{512 + 1024 * j}')
            if j == 0:
                self.stamp('uload')
            a(rdB(0, 2 * j))
            a(rdB(0, 2 * j + 1))
        self.stamp(5)
        fx = o['fx_it']
        xl = []
        for T in range(2):
            for p in range(2):
                off = 2048 * T + 1024 * p
                xl.append([f'buffer_load_dwordx4 {vr(XR + 8 * T + 4 * p, 4)}, v{vXS}, {WS}, s{sT6} offen offset:{off} sc1'])
                xl.append([f'buffer_load_dwordx4 {vr(SR + 8 * T + 4 * p, 4)}, v{vXS}, {WS}, s{sT4} offen offset:{off} sc1'])
        if o.get('nowl'):
            wl = [g[:-1] + [[]] for g in wl]
        wt = self.w_loads_tail()
        if park:
            early, late = wl, xl + wt[:12]
            self.win_pre = [f'v_accvgpr_read_b32 v{self.WRAW[4] + i}, a{208 + i}' for i in range(32)]
            self.win_loads = wt[12:]
        else:
            early, late = wl[:-8], xl + wt
            self.win_pre = wl[-8][:-1]
            self.win_loads = [wl[-8][-1]] + wl[-7:]
        tot = len(early) + len(late)
        per = [(tot * (i + 1)) // 8 - (tot * i) // 8 for i in range(8)]
        plan = []
        for it in range(8):
            n = per[it]
            if it <= fx + 1:
                n = min(max(n, o.get('early_n', 0)), len(early))
                plan.append([early.pop(0) for _ in range(n)])
            else:
                rest = late[:8] + early + late[8:] if it == fx + 2 else rest
                early = late = []
                n = (len(rest) + 7 - it) // (8 - it)
                plan.append([rest.pop(0) for _ in range(n)])
        for it in range(8):
            A, B = BUF[it & 1], BUF[it & 1] + 32
            mf = []
            endT = []
            for T in range(8):
                c = ar(ACC + 4 * T, 4)
                if it == 0:
                    mf.append(f'v_mfma_f32_16x16x32_bf16 {c}, {ar(AD, 4)}, {ar(B + 4 * T, 4)}, 0')
                for t in range(T + 1):
                    mf.append(f'v_mfma_f32_16x16x32_bf16 {c}, {ar(A + 4 * t, 4)}, {ar(B + 4 * (T - t), 4)}, {c}')
                endT.append(len(mf) - 1)
            fill = [[] for _ in mf]
            base = 8 if it == 0 else 0
            if it < 7:
                rd = [x for t in range(8) for x in (rdA(it + 1, t), rdB(it + 1, t))]
                for i, x in enumerate(rd):
                    fill[base + 2 * i].append(x)
            zw = [f'ds_write_b128 v{vG}, {ar(ACC + 4 * T, 4)} offset:{1024 * T}' for T in range(8)]
            if it == 7:
                for T in range(o.get('z_in', 7)):
                    fill[max(endT[T] + 5, 6 + 4 * T)].append(zw.pop(0))
            n = len(plan[it])
            pos = base
            for i, g in enumerate(plan[it]):
                p = max(base + ((i + 1) * 35) // n, pos)
                k = len(g) - 1
                for z, x in enumerate(g[:-1]):
                    fill[max(pos, p - (k - z + 1) // 2)].append(x)
                fill[p].append(g[-1])
                pos = p
            if it == 0:
                for i, x in enumerate(self.clear_pst(228)):
                    fill[i].append(x)
            if it == fx:
                fill[-1].append(f'buffer_load_dword v{vFl}, off, {WS}, s{sT3} sc1')
            if it == fx + 1:
                fill[-1].append(lambda: self.check(S_WS, f's{sT3}', 0 if o.get('nofx') else 8, vFl))
            if it == 7:
                fill[0].append(f's_add_u32 s{sFW}, s{sT3}, {(C_FWR - C_FXR) * 256}')

            if it == 0:
                unp = []
                for T in range(2):
                    for row in range(4):
                        src = XR + 8 * T + 2 * row
                        xf = XF + 16 * T + 4 * row
                        st = SR + 8 * T + 2 * row
                        unp += [f'v_lshlrev_b32 v{xf}, 16, v{src}', f'v_and_b32 v{xf + 1}, s{sT2}, v{src}',
                                f'v_lshlrev_b32 v{xf + 2}, 16, v{src + 1}', f'v_and_b32 v{xf + 3}, s{sT2}, v{src + 1}']
                        unp += [f'v_fma_f32 v{xf + 32 + c}, v{xf + c}, v{st}, v{st + 1}' for c in range(4)]
            u0 = o.get('unp_at', 36 * 6 + 14)
            for i, x in enumerate(unp):
                p = u0 + (i * (36 * 8 - u0)) // 64
                if p // 36 == it:
                    fill[p % 36].append(x)
            self.stamp(f'it{it}')
            if it > 0:
                a.need(ar(A, 24 if it < 7 else 32), ar(B, 24))
            for m, f in zip(mf, fill):
                a(m)
                a(f)
        self.stamp(6)
        a(zw)
        a('s_waitcnt lgkmcnt(0)')
        a('s_barrier')
        self.stamp('zbar')
        Z = XR
        for T in range(2):
            for ch in range(4):
                a(f'ds_read_b128 {vr(Z + 16 * T + 4 * ch, 4)}, v{vZR} offset:{ch * GW + 1024 * T}')
        for T in range(2):
            for p in range(2):
                ho = XF + 32 + 16 * T + 8 * p
                for b in range(2):
                    row = 2 * p + b
                    for c in range(4):
                        x = XF + 16 * T + 4 * row + c
                        a(f'v_fmac_f32 v{x}, v{x + 32}, v{Z + 16 * T + 4 * c + row}')
                    for c2 in range(2):
                        x = XF + 16 * T + 4 * row + 2 * c2
                        a(f'v_cvt_pk_bf16_f32 v{ho + 2 * b + c2}, v{x}, v{x + 1}')
                a(f'buffer_store_dwordx4 {vr(ho, 4)}, v{vHS}, {WS}, 0 offen offset:{2048 * T + 1024 * p} sc1')
        self.stamp(7)

    def side(self):
        a = self.a
        a('.Lside:')
        a.fresh('role')
        self.stamp('sx_in')
        vTid = 1
        a(f's_sub_u32 s{sG}, s{sJ}, 20')
        a(f's_lshl3_add_u32 s{sG}, s{sG}, s{sX}')
        J2, vJ2, sG2, sJo, sJs = 136, 230, sQ, sDv, sM
        vFl = 231
        up = self.opt.get('up', 1)

        def job2_loads():
            a(f's_add_u32 s{sG2}, s{sG}, {48 if self.opt.get("pair", 1) else 0}')
            a(f's_sub_u32 s{sT0}, s{sG2}, 96')
            a(f's_cselect_b32 s{sG2}, s{sG2}, s{sT0}')
            a(f's_cmp_ge_u32 s{sG2}, 72')
            a(f's_cselect_b32 s{sT2}, s{S_WU}, s{S_WG}')
            a(f's_cselect_b32 s{sT3}, s{S_WU + 1}, s{S_WG + 1}')
            a(f's_cselect_b32 s{sT1}, 72, 48')
            a(f's_sub_u32 s{sT1}, s{sG2}, s{sT1}')
            a(f's_lshr_b32 s{sT0}, s{sG2}, 1')
            a(f's_cmp_ge_u32 s{sG2}, 48')
            a(f's_cselect_b32 s{S_WD}, s{sT2}, s{S_WD}')
            a(f's_cselect_b32 s{S_WD + 1}, s{sT3}, s{S_WD + 1}')
            a(f's_cselect_b32 s{sT0}, s{sT1}, s{sT0}')
            self.real_line(sT0, sT2)
            a(f's_and_b32 s{sT2}, s{sG2}, 1')
            a(f's_lshl1_add_u32 s{sT2}, s{sT0}, s{sT2}')
            a(f's_mul_i32 s{sT2}, s{sT2}, {32 * 1280}')
            a(f's_lshl_b32 s{sT0}, s{sT0}, 7')
            a(f's_movk_i32 s{sT1}, 1280')
            a(f's_movk_i32 s{sJs}, 128')
            a(f's_cmp_ge_u32 s{sG2}, 48')
            a(f's_cselect_b32 s{sJo}, s{sT0}, s{sT2}')
            a(f's_cselect_b32 s{sT1}, 3072, s{sT1}')
            a(f's_cselect_b32 s{sJs}, {32 * 3072}, s{sJs}')
            a(f'v_and_b32 v{vJ2}, 7, v0')
            a(f'v_lshlrev_b32 v{vJ2}, 4, v{vJ2}')
            a(f'v_lshrrev_b32 v15, 3, v{vTid}')
            a(f'v_mad_u32_u24 v{vJ2}, v15, s{sT1}, v{vJ2}')
            for j in range(10):
                a(f'buffer_load_dwordx4 {vr(J2 + 4 * j, 4)}, v{vJ2}, {sr(S_WD, 4)}, s{sJo} offen')
                a(f's_add_u32 s{sJo}, s{sJo}, s{sJs}')
        a(f's_cmp_ge_u32 s{sG}, 64')
        a.snapshot('s4')
        a('s_cbranch_scc1 .Ls4')
        XR, WR = 16, J2
        vA, vRow, vS8 = 2, 3, 4
        a(f'v_lshrrev_b32 v{vRow}, 3, v{vTid}')
        a(f'v_and_b32 v{vS8}, 7, v0')
        a(f's_lshr_b32 s{sT0}, s{sG}, 3')
        a(f's_lshl_b32 s{sT0}, s{sT0}, 8')
        a(f's_and_b32 s{sT1}, s{sG}, 3')
        a(f's_lshl2_add_u32 s{sT0}, s{sT1}, s{sT0}')
        a(f's_bfe_u32 s{sT1}, s{sG}, 0x10002')
        a(f's_lshl1_add_u32 s{sT0}, s{sT1}, s{sT0}')
        a(f'v_and_b32 v5, 0xf0, v{vTid}')
        a(f'v_and_b32 v6, 1, v{vRow}')
        a(f'v_add3_u32 v5, v5, v6, s{sT0}')
        a(f's_movk_i32 s{sT1}, 1280')
        a(f'v_lshlrev_b32 v6, 4, v{vS8}')
        a(f'v_mad_u32_u24 v5, v5, s{sT1}, v6')
        for j in range(10):
            a(f'buffer_load_dwordx4 {vr(XR + 4 * j, 4)}, v5, {sr(S_X, 4)}, 0 offen offset:{128 * j}')
        if up == 1:
            job2_loads()
        self.stamp('sx_issued')
        self.gemm_ids()
        self.w_addr()
        vW, vRd, vSt = 5, 6, 7
        a(f's_movk_i32 s{sT1}, 528')
        a(f'v_lshlrev_b32 v{vW}, 3, v{vRow}')
        a(f'v_mad_u32_u24 v{vW}, v{vS8}, s{sT1}, v{vW}')
        a(f'v_and_b32 v{vRd}, 31, v0')
        a(f'v_lshlrev_b32 v{vRd}, 4, v{vRd}')
        a(f'v_lshrrev_b32 v8, 5, v{vTid}')
        a(f'v_mad_u32_u24 v{vRd}, v8, s{sT1}, v{vRd}')
        a(f's_lshl_b32 s{sT0}, s{sG}, 8')
        a(f'v_and_b32 v{vSt}, 15, v0')
        a(f's_and_b32 s{sT1}, s{sT0}, 0x2000')
        a(f's_add_u32 s{sT1}, s{sT1}, s{sT0}')
        a(f'v_lshl_add_u32 v{vSt}, v{vSt}, 4, s{sT1}')
        a(f'v_lshrrev_b32 v8, 4, v{vTid}')
        a(f's_mov_b32 s{sT1}, {2 * QS}')
        a(f'v_mad_u32_u24 v{vSt}, v8, s{sT1}, v{vSt}')
        for j in range(10):
            for o_ in range(2):
                a(f'ds_write_b64 v{vW}, {vr(XR + 4 * j + 2 * o_, 2)} offset:{j * 4224 + o_ * 256}')
        self.stamp('sx_data')
        a(f'buffer_load_dword v{vFl}, off, {sr(S_DBG, 4)}, 0 offset:128 sc1')
        a(f'buffer_load_dword v{vFl - 2}, off, {sr(S_DBG, 4)}, 0 sc1')
        if up == 2:
            job2_loads()
            a(f's_lshl_b32 s{sT0}, s{sG}, 8')
        a('s_waitcnt lgkmcnt(0)')
        a('s_barrier')
        self.stamp('sx_bar')
        XO = 96
        for j in range(10):
            a(f'ds_read_b128 {vr(XO + 4 * j, 4)}, v{vRd} offset:{j * 4224}')
        self.get_pol(vFl)
        self.check(S_DBG, '0', 1, vFl - 2)
        a(f's_mov_b32 s{sOne}, 0x3f803f80')
        for i in range(4):
            a(f'v_mov_b32 v{8 + i}, 0')
        for j in range(10):
            a(f's_mov_b32 s{sT1}, {grp_base(j, XP4, XP4T)}')
            a(f'buffer_store_dwordx4 {vr(XO + 4 * j, 4)}, v{vSt}, {WS}, s{sT1} offen sc1')
            for i in range(4 * j, 4 * j + 4):
                a(f'v_dot2c_f32_bf16 v{8 + (i & 1)}, s{sOne}, v{XR + i}')
                a(f'v_dot2c_f32_bf16 v{10 + (i & 1)}, v{XR + i}, v{XR + i}')
        a('v_add_f32 v8, v8, v9')
        a('v_add_f32 v10, v10, v11')
        for m in ('quad_perm:[1,0,3,2]', 'quad_perm:[2,3,0,1]', 'row_half_mirror'):
            a(f'v_add_f32_dpp v8, v8, v8 {m} row_mask:0xf bank_mask:0xf')
            a(f'v_add_f32_dpp v10, v10, v10 {m} row_mask:0xf bank_mask:0xf')
        a(f'v_mul_f32 v8, {f32(1 / 640)}, v8')
        a(f'v_mul_f32 v10, {f32(1 / 640)}, v10')
        a('v_fma_f32 v10, -v8, v8, v10')
        a('v_max_f32 v10, 0, v10')
        a(f'v_add_f32 v10, {f32(1e-5)}, v10')
        a('v_rsq_f32 v10, v10')
        a(f'v_lshl_add_u32 v12, v{vRow}, 3, s{sT0}')
        a('v_mul_f32 v11, -v8, v10')
        a(f's_mov_b32 s{sT1}, {ST1}')
        a('s_mov_b32 exec_lo, 0x01010101')
        a('s_mov_b32 exec_hi, 0x01010101')
        a(f'buffer_store_dwordx2 v[10:11], v12, {WS}, s{sT1} offen sc1')
        a('s_mov_b64 exec, -1')
        a('s_branch .Lr1')
        a('.Ls4:')
        a.fresh('s4')
        T4 = 10240
        a(f's_sub_u32 s{sT4}, s{sG}, 64')
        a(f's_lshr_b32 s{sT5}, s{sT4}, 2')
        a(f's_and_b32 s{sT4}, s{sT4}, 3')
        a(f's_mul_i32 s{sT0}, s{sT4}, 160')
        a(f's_lshl3_add_u32 s{sT0}, s{S_W}, s{sT0}')
        a(f's_mul_i32 s{sT0}, s{sT0}, 3072')
        a(f's_mul_i32 s{sT1}, s{sT5}, 3')
        a(f's_add_u32 s{sT1}, s{sT1}, 1')
        self.real_line(sT1, sT2)
        a(f's_lshl_b32 s{sT1}, s{sT1}, 7')
        a(f's_add_u32 s{sT0}, s{sT0}, s{sT1}')
        a('v_lshrrev_b32 v3, 3, v0')
        a('v_and_b32 v4, 7, v0')
        a(f'v_lshl_add_u32 v2, v4, 4, s{sT0}')
        a(f's_movk_i32 s{sT1}, 3072')
        a(f'v_mad_u32_u24 v2, v3, s{sT1}, v2')
        a(f's_mov_b32 s{sT0}, 0')
        for i in range(10):
            a(f'buffer_load_dwordx4 {vr(XR + 4 * i, 4)}, v2, {sr(S_WU if i & 1 else S_WG, 4)}, s{sT0} offen')
            if i & 1:
                a(f's_add_u32 s{sT0}, s{sT0}, {32 * 3072}')
        if up == 1:
            job2_loads()
        self.stamp('sx_issued')
        self.gemm_ids()
        self.w_addr()
        a(f's_lshl_b32 s{sT0}, s{S_W}, 9')
        a(f'v_lshl_add_u32 v5, v3, 6, s{sT0}')
        a('v_and_b32 v6, 1, v0')
        a('v_lshl_add_u32 v5, v6, 4, v5')
        a('v_bfe_u32 v6, v0, 1, 2')
        a('v_lshlrev_b32 v7, 5, v6')
        a('v_xor_b32 v5, v5, v7')
        a(f's_movk_i32 s{sT0}, {T4}')
        a(f'v_mad_u32_u24 v5, v6, s{sT0}, v5')
        a('v_xor_b32 v6, 32, v5')
        a('v_lshrrev_b32 v7, 5, v0')
        a('v_bfe_u32 v8, v0, 2, 2')
        a('v_lshl_add_u32 v7, v7, 3, v8')
        a('v_lshlrev_b32 v7, 6, v7')
        a('v_and_b32 v8, 3, v0')
        a('v_lshl_add_u32 v7, v8, 4, v7')
        a('v_bfe_u32 v8, v0, 4, 1')
        a('v_lshl_add_u32 v7, v8, 3, v7')
        a(f's_lshl_b32 s{sT1}, s{S_W}, 5')
        a(f'v_xor_b32 v7, s{sT1}, v7')
        a(f's_mul_i32 s{sT1}, s{S_W}, {T4}')
        a(f'v_add_u32 v7, s{sT1}, v7')
        for i in range(10):
            a(f'ds_write_b128 v{6 if i & 1 else 5}, {vr(XR + 4 * i, 4)} offset:{(i >> 1) * 2048}')
        self.stamp('sx_data')
        a(f'buffer_load_dword v{vFl}, off, {sr(S_DBG, 4)}, 0 offset:128 sc1')
        a(f'buffer_load_dword v{vFl - 2}, off, {sr(S_DBG, 4)}, 0 sc1')
        if up == 2:
            job2_loads()
        a('s_waitcnt lgkmcnt(0)')
        a('s_barrier')
        self.stamp('sx_bar')
        for j in range(10):
            for e in range(2):
                a(f'ds_read_b64_tr_b16 {vr(XO + 4 * j + 2 * e, 2)}, v7 offset:{1024 * j + 256 * e}')
        a(f's_lshl2_add_u32 s{sT0}, s{sT5}, s{S_W}')
        a(f's_lshl2_add_u32 s{sT0}, s{sT0}, s{sT4}')
        a(f's_mul_i32 s{sT0}, s{sT0}, 10240')
        a(f's_add_u32 s{sT0}, s{sT0}, {W45F}')
        a('v_lshlrev_b32 v9, 4, v0')
        self.get_pol(vFl)
        self.check(S_DBG, '0', 1, vFl - 2)
        for j in range(10):
            if j and j & 3 == 0:
                a(f's_add_u32 s{sT0}, s{sT0}, 4096')
            a(f'buffer_store_dwordx4 {vr(XO + 4 * j, 4)}, v9, {WS}, s{sT0} offen offset:{(j & 3) * 1024} sc1')
        a('.Lr1:')
        a.fresh()
        self.stamp('sx_st')
        o = self.opt
        assert up >= 1
        a(f's_mov_b32 s{sG}, s{sG2}')
        a(f's_mov_b32 s{sSide}, s{sG2}')
        self.w_select()
        WB = 49152
        T0 = 216
        na, nb, nc = o.get('sw_a', 10), o.get('sw_b', 10), o.get('sw_c', 12)
        assert na + nb + nc <= 32

        def end_r1(younger):
            self.stamp('sx_ld2')
            a(f's_waitcnt vmcnt({younger})')
            a('s_barrier')
            self.stamp('sx_dr')
            self.arrive_start([(sArr, C_FX)])
        a(f's_cmp_ge_u32 s{sG}, 48')
        a('s_cbranch_scc1 .Ls2')
        wl = self.w_loads_main()
        a(wl[:na])
        v8, v9, v10 = T0, T0 + 1, T0 + 2
        a(f'v_lshrrev_b32 v{vRow}, 3, v{vTid}')
        a(f'v_and_b32 v{vS8}, 7, v0')
        a(f's_movk_i32 s{sT1}, 1344')
        a(f'v_lshlrev_b32 v{vW}, 4, v{vS8}')
        a(f'v_mad_u32_u24 v{vW}, v{vRow}, s{sT1}, v{vW}')
        a(f'v_lshrrev_b32 v{v8}, 4, v0')
        a(f'v_bfe_u32 v{v9}, v0, 2, 2')
        a(f'v_lshl_add_u32 v{v8}, v{v8}, 3, v{v9}')
        a(f's_mul_i32 s{sT0}, s{S_W}, 320')
        a(f'v_mov_b32 v{v9}, s{sT0}')
        a(f'v_mad_u32_u24 v{v8}, v{v8}, s{sT1}, v{v9}')
        a(f'v_and_b32 v{v9}, 3, v0')
        a(f'v_lshl_add_u32 v{v10}, v{v9}, 3, v{v8}')
        a(f'v_lshl_add_u32 v{v8}, v{v9}, 4, v{v8}')
        end_r1(na)
        q = wl[na:na + nb]
        for j in range(10):
            a(f'ds_write_b128 v{vW}, {vr(WR + 4 * j, 4)} offset:{WB + 128 * j}')
            if q and j < o.get('sw_b1', 4):
                a(q.pop(0))
        self.arrive_finish([(sArr, 11, C_FXR)], v9)
        self.stamp(1)
        a(q)
        a('s_barrier')
        for cc in range(2):
            for nt in range(5):
                for e in range(2):
                    off = WB + cc * 160 + e * 4 * 1344 + ((nt >> 1) * 64 + (nt & 1) * 8)
                    a(f'ds_read_b64_tr_b16 {ar(4 * (5 * cc + nt) + 2 * e, 2)}, v{v10 if nt == 4 else v8} offset:{off}')
        a(f's_mul_i32 s{sT0}, s{S_W}, 96')
        a(f's_add_u32 s{sT0}, s{sT0}, s{sG}')
        a(f's_mul_i32 s{sT0}, s{sT0}, 5120')
        a(f's_add_u32 s{sT0}, s{sT0}, {WDF}')
        a(f'v_lshlrev_b32 v{v9}, 4, v0')
        for cc in range(2):
            for nt in range(5):
                if nt == 4:
                    a(f's_add_u32 s{sT0}, s{sT0}, 4096')
                a(f'buffer_store_dwordx4 {ar(4 * (5 * cc + nt), 4)}, v{v9}, {WS}, s{sT0} offen offset:{(nt & 3) * 1024} sc1')
            a(f's_add_u32 s{sT0}, s{sT0}, {48 * 5120 - 4096}')
        a('s_branch .Lr2')
        a('.Ls2:')
        a.fresh()
        AC = T0 + 4
        for i in range(10, 20):
            a(f'buffer_load_dwordx4 {vr(J2 + 4 * i, 4)}, v{vJ2}, {sr(S_WD, 4)}, s{sJo} offen')
            a(f's_add_u32 s{sJo}, s{sJo}, s{sJs}')
        for i in range(8):
            a(f'v_mov_b32 v{AC + i}, 0')
        a(f's_mov_b32 s{sT4}, 0x3f80')
        a(f's_mov_b32 s{sT3}, 0x3f800000')
        end_r1(10)
        q = self.w_loads_main()[:na + nb]
        for i in range(80):
            a(f'v_dot2c_f32_bf16 v{AC + 2 * (i & 3)}, s{sT4}, v{J2 + i}')
            a(f'v_dot2c_f32_bf16 v{AC + 1 + 2 * (i & 3)}, s{sT3}, v{J2 + i}')
            if i == 39:
                self.arrive_finish([(sArr, 11, C_FXR)], T0)
                self.stamp(1)
            if i & 1 and i > 39 and q:
                a(q.pop(0))
        a(q)
        a(f'v_lshlrev_b32 v5, 5, v{vTid}')
        a(f'ds_write_b128 v5, {vr(AC, 4)} offset:{WB}')
        a(f'ds_write_b128 v5, {vr(AC + 4, 4)} offset:{WB + 16}')
        a('s_waitcnt lgkmcnt(0)')
        a('s_barrier')
        a('v_bfe_u32 v6, v0, 1, 4')
        a('v_and_b32 v7, 32, v0')
        a('v_add_u32 v6, v6, v7')
        a('v_and_b32 v7, 1, v0')
        a('v_lshl_add_u32 v6, v7, 4, v6')
        a('v_lshlrev_b32 v6, 2, v6')
        for i in range(16):
            a(f'ds_read2st64_b32 {vr(J2 + 2 * i, 2)}, v6 offset0:{WB // 256 + 2 * i} offset1:{WB // 256 + 2 * i + 1}')
        for i in range(1, 16):
            a(f'v_pk_add_f32 {vr(J2, 2)}, {vr(J2, 2)}, {vr(J2 + 2 * i, 2)}')
        a(f'v_add_f32 v{J2}, v{J2}, v{J2 + 1}')
        a(f'v_cvt_pk_bf16_f32 v{T0}, v{J2}, v{J2}')
        a(f'v_lshlrev_b32 v7, 16, v{T0}')
        a(f'v_sub_f32 v7, v{J2}, v7')
        a(f'v_cvt_pk_bf16_f32 v{T0 + 1}, v7, v7')
        a(f's_sub_u32 s{sT0}, s{sG}, 48')
        a(f's_lshl_b32 s{sT0}, s{sT0}, 9')
        a(f's_add_u32 s{sT0}, s{sT0}, {CSF}')
        a('v_lshlrev_b32 v6, 3, v0')
        a(f'buffer_store_dwordx2 {vr(T0, 2)}, v6, {WS}, s{sT0} offen sc1')
        a('.Lr2:')
        a.fresh()
        self.stamp(2)
        a(f's_lshr_b32 s{sT0}, s{sG}, 5')
        a(f's_and_b32 s{sT1}, s{sG}, 15')
        a(f's_lshl4_add_u32 s{sT0}, s{sT0}, s{sT1}')
        a(f's_and_b32 s{sT1}, s{sG}, 16')
        a(f's_lshl2_add_u32 s{sT0}, s{sT1}, s{sT0}')
        a(f's_lshl_b32 s{sT0}, s{sT0}, 7')
        a(f's_add_u32 s{sT0}, s{sT0}, {CF3}')
        a('v_mov_b32 v4, 0')
        a('v_and_b32 v5, 31, v0')
        a('v_lshlrev_b32 v5, 2, v5')
        a(f'buffer_store_dword v4, v5, {WS}, s{sT0} offen sc1')
        a(self.clear_pst(2))
        n0 = na + nb + nc
        a(wl[na + nb:n0])
        a(f's_add_u32 s{sT4}, s{sXo}, {C_FXR * 256}')
        a(f's_add_u32 s{sFW}, s{sT4}, {(C_FWR - C_FXR) * 256}')
        a.drain_stores()
        a('s_waitcnt lgkmcnt(0)')
        a('s_barrier')
        self.stamp(6)
        self.arrive_start([(sArr, C_B1), (sJs, C_FW)])
        a(f'buffer_load_dword v1, off, {WS}, s{sT4} sc1')

        def mid():
            self.arrive_finish([(sJs, 11, C_FWR), (sArr, 31, C_B2)], T0)
            self.check(S_WS, f's{sT4}', 8, 1)
        self.side_window(wl[n0:], mid)
        a(f's_waitcnt vmcnt({self.opt["wd_pre"]})')
        self.stamp(7)
        a('s_branch .Ljoin')

    def signal(self, soff):
        a = self.a
        if self.opt['sig'] == 's':
            a(f's_atomic_add s{sU2}, {sr(S_WS, 2)}, {soff}')
        else:
            a('s_mov_b64 exec, 1')
            a(f'buffer_atomic_add v{self.vOne}, off, {WS}, {soff} sc1')
            a('s_mov_b64 exec, -1')

    def gemms(self):
        a = self.a
        o = self.opt
        t, t2 = self.vTmp, self.vTmp2
        L, AB = 0, 8
        vRD = 4
        vAL, vAS, vA2, vWD, vWD2, vCS, vFl = 1, 2, 3, 247, 255, 246, 254
        vW5 = 252
        vS = 232
        BP = 236
        TM = 242
        ACC = 168
        RING1, CS, RING2 = 124, 148, 240
        sF3s, sF3p = sQ, sM
        sRB2w = sG
        kap = [[3 * c + ((pi + 1) % 3 if c & 1 else pi) for c in range(4)] for pi in range(3)]
        wd = []
        for i in range(60):
            g = []
            if i % 5 == 0:
                g.append(f's_mov_b32 s{sWoff}, {WDF + 5120 * kap[i // 20][i // 5 % 4]}')
            g.append(f'buffer_load_dwordx4 {ar(4 * i, 4)}, v{vWD2 if i % 5 == 4 else vWD}, {WS}, s{sWoff} offen offset:{(i % 5 & 3) * 1024} sc1')
            wd.append(g)
        if o.get('nowd'):
            wd = [[] for _ in wd]
        real, setup0 = a, []
        a = setup0.append
        a(f's_and_b32 s{sT0}, s{sJ}, 7')
        a(f's_lshl2_add_u32 s{sT0}, s{sT0}, s{S_W}')
        a(f's_mul_i32 s{sT0}, s{sT0}, {12 * 5120}')
        a(f'v_lshl_add_u32 v{vWD}, v0, 4, s{sT0}')
        a(f'v_add_u32 v{vWD2}, 0x1000, v{vWD}')
        a(f'v_lshlrev_b32 v{vRD}, 4, v0')
        for s in range(1, 4):
            a(f'v_xor_b32 v{t}, {16 * s}, v{vRD}')
            a(f'v_add_u32 v{vRD + s}, {TILE * s}, v{t}')
        a(f'v_lshl_add_u32 v{vW5}, s{S_W}, 10, v{vRD}')
        a(f'v_lshl_add_u32 v{vW5 + 1}, s{S_W}, 10, v{vRD + 1}')
        a(f's_lshl2_add_u32 s{sT0}, s{sRB}, s{S_W}')
        a(f's_lshl_b32 s{sT1}, s{sT0}, 8')
        a(f'v_and_b32 v{t}, 15, v0')
        a(f'v_lshlrev_b32 v{vA2}, 4, v{t}')
        a(f'v_add_u32 v{t}, s{sT1}, v{vA2}')
        a(f'v_lshrrev_b32 v{t2}, 4, v0')
        a(f's_mov_b32 s{sT1}, {QS}')
        a(f'v_mad_u32_u24 v{vAL}, v{t2}, s{sT1}, v{t}')
        a(f'v_lshl_add_u32 v{vA2}, v{t2}, 9, v{vA2}')
        def act_blk(dst, n, tmp):
            a(f's_and_b32 s{tmp}, s{n}, 7')
            a(f's_mul_i32 s{dst}, s{tmp}, 196608')
            a(f's_bfe_u32 s{tmp}, s{n}, 0x20003')
            a(f's_lshl_b32 s{tmp}, s{tmp}, 22')
            a(f's_add_u32 s{dst}, s{dst}, s{tmp}')
            a(f's_lshr_b32 s{tmp}, s{n}, 5')
            a(f's_lshl_b32 s{tmp}, s{tmp}, 13')
            a(f's_add_u32 s{dst}, s{dst}, s{tmp}')

        def f3_line(r, tmp):
            a(f's_and_b32 s{tmp}, s{r}, 16')
            a(f's_mul_i32 s{tmp}, s{tmp}, 3')
            a(f's_add_u32 s{r}, s{r}, s{tmp}')
            a(f's_lshl_b32 s{r}, s{r}, 7')
            a(f's_add_u32 s{r}, s{r}, {CF3}')
        act_blk(sT1, sT0, sT4)
        a(f'v_lshl_add_u32 v{vAS}, v0, 4, s{sT1}')
        a(f's_lshr_b32 s{sF3s}, s{sT0}, 1')
        f3_line(sF3s, sT4)
        a(f's_lshr_b32 s{sT1}, s{sJ}, 3')
        a(f's_lshl2_add_u32 s{sF3p}, s{sX}, s{sT1}')
        a(f's_lshl_b32 s{sRB2w}, s{sF3p}, 1')
        f3_line(sF3p, sT4)
        for i in range(4):
            a(f's_add_u32 s{sT0}, s{sRot}, {i}')
            a(f's_and_b32 s{sT0}, s{sT0}, 3')
            a(f's_mul_i32 s{sT1}, s{sT0}, {40 * QS}')
            a(f's_add_u32 s{sT1}, s{sT1}, {HP4}')
            a([f's_cmp_lt_u32 s{sT0}, 3', f's_cselect_b32 s{sAB + i}, s{sT1}, {HP4T}'])
        a(f'v_and_b32 v{t}, 3, v0')
        a(f'v_bfe_u32 v{t2}, v0, 2, 1')
        a(f'v_lshl_add_u32 v{t}, v{t2}, 3, v{t}')
        a(f'v_bfe_u32 v{t2}, v0, 4, 1')
        a(f'v_lshl_add_u32 v{t}, v{t2}, 2, v{t}')
        a(f'v_lshlrev_b32 v{t}, 4, v{t}')
        a(f'v_bfe_u32 v{t2}, v0, 3, 1')
        a(f's_movk_i32 s{sT1}, 12288')
        a(f'v_mad_u32_u24 v{vCS}, v{t2}, s{sT1}, v{t}')
        for i in range(4):
            a(f'v_mov_b32 v{vS + i}, 0')
        a(f's_mov_b32 s{sOne}, 0x3f803f80')
        a(f's_mov_b32 s{sU2}, 1')
        a(f's_lshl_b32 s{sT2}, s{sA}, 7')
        a(f's_add_u32 s{sT2}, s{sT2}, {CSF}')
        a(f's_lshl_b32 s{sT3}, s{sB}, 7')
        a(f's_add_u32 s{sT3}, s{sT3}, {CSF}')
        for r in (sA, sB):
            a(f's_and_b32 s{sT0}, s{r}, -8')
            a(f's_add_u32 s{r}, s{r}, s{sT0}')
            a(f's_lshl_b32 s{r}, s{r}, 10')
            a(f's_add_u32 s{r}, s{r}, {ACT}')
        act_blk(sT6, sRB2w, sT4)
        a(f's_mul_i32 s{sT5}, s{S_W}, 49152')
        a(f's_add_u32 s{sT5}, s{sT5}, s{sT6}')
        for lam in range(4):
            a(f's_xor_b32 s{sT0}, s{S_W}, {lam}')
            a(f's_lshr_b32 s{sT1}, s{sT0}, 1')
            a(f's_mul_i32 s{sT1}, s{sT1}, 196608')
            a(f's_and_b32 s{sT0}, s{sT0}, 1')
            a(f's_lshl_b32 s{sT0}, s{sT0}, 8')
            a(f's_add_u32 s{sT0}, s{sT0}, s{sT5}')
            a(f's_add_u32 s{sL[lam]}, s{sT1}, s{sT0}')
        sRes, sOutB, sQS = 20, 21, 22
        a(f's_lshr_b32 s{sT0}, s{S_W}, 1')
        a(f's_add_u32 s{sT0}, s{sT0}, s{sRB2w}')
        a(f's_lshl_b32 s{sRes}, s{sT0}, 8')
        a(f's_and_b32 s{sT4}, s{S_W}, 1')
        a(f's_lshl3_add_u32 s{sRes}, s{sT4}, s{sRes}')
        a(f's_and_b32 s{sT5}, s{sJ}, 7')
        a(f's_mul_i32 s{sT6}, s{sT5}, {20 * QS}')
        a(f's_add_u32 s{sRes}, s{sRes}, s{sT6}')
        a(f's_mov_b32 s{sT6}, {HP4}')
        a([f's_cmp_lt_u32 s{sT5}, 6', f's_cselect_b32 s{sT6}, s{sT6}, {HP4T - 120 * QS}'])
        a(f's_add_u32 s{sRes}, s{sRes}, s{sT6}')
        a(f's_mov_b32 s{sQS}, {QS}')
        a(f's_lshr_b32 s{sOutB}, s{sRB2w}, 3')
        a(f's_lshl_b32 s{sOutB}, s{sOutB}, 8')
        a(f's_and_b32 s{sT6}, s{sT0}, 3')
        a(f's_lshl2_add_u32 s{sOutB}, s{sT6}, s{sOutB}')
        a(f's_bfe_u32 s{sT6}, s{sRB2w}, 0x10002')
        a(f's_lshl1_add_u32 s{sOutB}, s{sT6}, s{sOutB}')
        a(f's_add_u32 s{sOutB}, s{sOutB}, s{sT4}')
        a(f's_mul_i32 s{sOutB}, s{sOutB}, 1280')
        a(f's_mul_i32 s{sT6}, s{sT5}, 160')
        a(f's_add_u32 s{sOutB}, s{sOutB}, s{sT6}')
        a(f's_lshl_b32 s{sU0}, s{sCB}, 8')
        a(f's_add_u32 s{sU0}, s{sU0}, {PST}')
        a(f's_mov_b32 s{sU1}, {PST}')
        a(f's_and_b32 s{sCB}, s{sCB}, 3')
        a(f's_mul_i32 s{sCB}, s{sCB}, 10')
        a = real
        nw = 40 - 8 * o.get('defer', 2)
        wdp = [wd.pop(0) for _ in range(o['wd_pre'])]

        def mixer(ww, setup, lq, per=6):
            def some(n, nl):
                for i in range(n):
                    a(ww.pop(0))
                    for _ in range(per):
                        if setup:
                            a(setup.pop(0))
                    for _ in range(((i + 1) * nl) // n - (i * nl) // n):
                        if lq:
                            a(lq.pop(0))
            return some

        def side_window(wl, fx_check):
            ww, setup = self.w_writes_main()[:nw], list(setup0)
            self.w_write_addr()
            lq = list(wl)
            hold = [x for x in setup if isinstance(x, str) and (f'v{vW5},' in x or f's{sU1},' in x)]
            setup = [x for x in setup if x not in hold]
            some = mixer(ww, [], lq)
            nl = len(lq)
            n_ = min(nl, nw - 8)
            assert all(40 - nl + (i * nl) // n_ >= 8 * (i // 8 + 1) for i in range(n_))
            some(n_, nl)
            fx_check()
            lq += self.w_loads_tail()
            if o.get('outpf', 1):
                a(f's_lshr_b32 s{sT0}, s{sSide}, 3')
                a(f's_lshl2_add_u32 s{sT0}, s{sT0}, s{S_W}')
                a(f's_mul_i32 s{sT0}, s{sT0}, {22 * 320}')
                a(f's_and_b32 s{sSide}, s{sSide}, 7')
                a(f's_mul_i32 s{sSide}, s{sSide}, {256 * 1280}')
                a(f's_add_u32 s{sSide}, s{sSide}, s{sT0}')
                a(f'v_min_u32 v{TM}, 21, v0')
                a(f'v_mul_u32_u24 v{TM}, 320, v{TM}')
                lq.insert(o.get('pf_pos', 20), f'buffer_load_dword a255, v{TM}, {sr(S_OUT, 4)}, s{sSide} offen offset:160')
            lq.append(f'buffer_load_dword v{TM + 1}, off, {WS}, s{sFW} sc1')
            mixer(ww, setup, lq)(len(ww), len(lq))
            a(setup)
            a(hold)
            if wdp:
                self.check(S_WS, f's{sFW}', 0 if o.get('nofw') else 8, TM + 1)
            a(wdp)
        self.side_window = side_window
        ww = self.w_writes_main()
        setup = self.win_pre + setup0
        lq = list(self.win_loads)
        n1, n2 = o.get('ww1', 13), o.get('ww2', 7)
        self.w_write_addr()
        a('s_barrier')
        self.stamp('hbar')
        some = mixer(ww, setup, lq, o.get('su_per', 7))
        assert 5 * o.get('su_per', 7) >= len(self.win_pre)
        some(5, 0)
        fwe = o.get('fwe', 1)
        if wdp and fwe:
            a(f'buffer_load_dword v{TM + 1}, off, {WS}, s{sFW} sc1')
        hold = [x for x in setup if isinstance(x, str) and (f'v{vW5},' in x or f's{sU1},' in x)]
        setup[:] = [x for x in setup if x not in hold]
        some(n1 - 5, o.get('l1', 8))
        self.stamp('hissued')
        a.drain_stores()
        self.stamp('hdrained')
        a('s_barrier')
        self.stamp('hbar2')
        self.arrive_start([(sArr, C_B1)])
        if wdp and not fwe:
            a(f'buffer_load_dword v{TM + 1}, off, {WS}, s{sFW} sc1')
        if wdp and fwe:
            self.check(S_WS, f's{sFW}', 0 if o.get('nofw') else 8, TM + 1)
            nl2 = len(lq) + o.get('l2', 8)
            lq += wdp
            some(n2, nl2)
        else:
            some(n2, len(lq))
        self.arrive_finish([(sArr, 31, C_B2)], TM)
        self.stamp('arrived')
        if wdp and not fwe:
            self.check(S_WS, f's{sFW}', 0 if o.get('nofw') else 8, TM + 1)
            lq += wdp
        some(nw - n1 - n2, len(lq))
        a(setup)
        a(hold)
        a(lq)
        a('.Ljoin:')
        self.stamp('wwritten')
        a(f's_add_u32 s{sT0}, s{sXo}, {C_B2 * 256}')
        self.warm([[3, 6], [4, 7], [5]])
        with self.wave0():
            self.spin(S_WS, f's{sT0}', 0 if o.get('noe2') else 8, t)
        self.stamp('polled')
        a('s_waitcnt lgkmcnt(0)')
        a('s_barrier')
        self.stamp(8)
        al = []
        for j in range(40):
            if j % 10 == 0:
                al.append([f'buffer_load_dwordx4 {vr(AB + 4 * j, 4)}, v{vAL}, {WS}, s{sAB + j // 10} offen sc1'])
            else:
                al.append([f's_add_u32 s{sT1}, s{sAB + j // 10}, {(j % 10) * 4 * QS}',
                           f'buffer_load_dwordx4 {vr(AB + 4 * j, 4)}, v{vAL}, {WS}, s{sT1} offen sc1'])
        al.append(f'buffer_load_dwordx4 {ar(CS, 4)}, v{vCS}, {WS}, s{sT2} offen sc1')
        al.append(f'buffer_load_dwordx4 {ar(CS + 4, 4)}, v{vCS}, {WS}, s{sT2} offen offset:256 sc1')
        al.append(f'buffer_load_dwordx4 {ar(CS + 8, 4)}, v{vCS}, {WS}, s{sT3} offen sc1')
        for _ in range(o['a_ahead']):
            a(al.pop(0))

        def rd(dst, slot, j):
            return f'ds_read_b128 {ar(dst, 4)}, v{vRD + slot} offset:{1024 * j}'

        def swaps(j):
            return [f'v_permlane16_swap_b32 v{AB + 4 * j + e}, v{AB + 4 * j + 2 + e}' for e in range(2)]

        def acc(slot):
            return vr(ACC + 16 * slot, 16)
        wtail = [f'ds_write_b128 v{vW5 + (i & 1)}, {ar(160 + 4 * i, 4)} offset:{(i >> 1) * 4096}' for i in range(20)]
        if o.get('nowt'):
            wtail = [[] for _ in wtail]
        C0, C1, R = vS, vS + 1, vS + 2
        c0 = -2.0 * 0.7978845608028654 * 1.4426950408889634
        G = ACC + 48
        gather = [f'buffer_load_dwordx2 {vr(G + 2 * s, 2)}, v{self.vPS}, {WS}, s{sU1} offen offset:{256 * s} sc1'
                  for s in range(8)]
        valid = [f'v_or3_b32 v{t}, v{G + 1}, v{G + 3}, v{G + 5}', f'v_or3_b32 v{t2}, v{G + 7}, v{G + 9}, v{G + 11}',
                 f'v_or3_b32 v{t}, v{t}, v{G + 13}, v{G + 15}', f'v_or_b32 v{t}, v{t}, v{t2}',
                 f'v_cmp_gt_i32 vcc, 0, v{t}']

        def chk_stats():
            slow, back = a.label('slow'), a.label('back')
            a('s_nop 1')
            a(f's_cbranch_vccnz {slow}')
            a(f'{back}:')

            def cold():
                top = a.label('top')
                a(f'{slow}:')
                with a.untracked():
                    a(f's_mov_b32 s{sSpin}, {SPIN}')
                    a(f'{top}:')
                    a(gather)
                    a('s_waitcnt vmcnt(0)')
                    a(valid)
                    a(f's_sub_u32 s{sSpin}, s{sSpin}, 1')
                    a(f's_cbranch_scc1 {back}')
                    a('s_nop 3')
                    a(f's_cbranch_vccnz {top}')
                    a(f's_branch {back}')
            self.cold.append(cold)
        halves = [
            f'v_add_f32 v{vS}, v{vS}, v{vS + 1}',
            f'v_add_f32 v{vS + 2}, v{vS + 2}, v{vS + 3}',
            f'v_mov_b32 v{vS + 1}, v{vS}',
            f'v_mov_b32 v{vS + 3}, v{vS + 2}',
            f'v_cmp_gt_u32 vcc, 32, v{L}',
            f'v_permlane32_swap_b32 v{vS}, v{vS + 1}',
            f'v_permlane32_swap_b32 v{vS + 2}, v{vS + 3}']
        pub = halves + [
            f'v_add_f32 v{G}, v{vS}, v{vS + 1}',
            f'v_add_f32 v{G + 1}, v{vS + 2}, v{vS + 3}',
            f'v_and_b32 v{G + 1}, 0x7fffffff, v{G + 1}',
            ['s_mov_b32 exec_hi, 0',
             f'buffer_store_dwordx2 {vr(G, 2)}, v{self.vPS}, {WS}, s{sU0} offen sc1',
             's_mov_b32 exec_hi, -1']]
        st = valid + [chk_stats]
        for w_ in range(2):
            g = G + w_
            st += [f'v_add_f32 v{g}, v{g}, v{g + 2}', f'v_add_f32 v{g + 4}, v{g + 4}, v{g + 6}',
                   f'v_add_f32 v{g + 8}, v{g + 8}, v{g + 10}', f'v_add_f32 v{g + 12}, v{g + 12}, v{g + 14}',
                   f'v_add_f32 v{vS + 2 * w_}, v{g}, v{g + 4}', f'v_add_f32 v{vS + 2 * w_ + 1}, v{g + 8}, v{g + 12}']
        st += halves + [
            f'v_add_f32 v{vS}, v{vS}, v{vS + 1}',
            f'v_add_f32 v{vS + 2}, v{vS + 2}, v{vS + 3}',
            f'v_mul_f32 v{vS}, {f32(-1 / 640)}, v{vS}',
            f'v_mul_f32 v{vS + 2}, {f32(1 / 640)}, v{vS + 2}',
            f'v_cvt_pk_bf16_f32 v{t}, v{vS}, v{vS}',
            f'v_fma_f32 v{R}, -v{vS}, v{vS}, v{R}',
            f'v_lshlrev_b32 v{t}, 16, v{t}',
            f'v_max_f32 v{R}, 0, v{R}',
            f'v_sub_f32 v{t2}, v{vS}, v{t}',
            f'v_add_f32 v{R}, {f32(1e-5)}, v{R}',
            f'v_cvt_pk_bf16_f32 v{t}, v{t}, v{t2}',
            f'v_rsq_f32 v{vS + 3}, v{R}',
            f'v_cndmask_b32 v{BP + 2}, 0, v{t}, vcc',
            f'v_cndmask_b32 v{BP + 3}, 0, v{t}, vcc',
            f'v_mul_f32 v{C0}, {f32(c0)}, v{vS + 3}',
            f'v_mul_f32 v{t}, v{vS + 3}, v{vS + 3}',
            f'v_mul_f32 v{t}, {f32(0.044715)}, v{t}',
            f'v_mul_f32 v{C1}, v{t}, v{C0}',
        ]

        def csm(tile, slot, first):
            b = vr(BP, 4) if tile & 1 else vr(BP + 2, 4)
            return f'v_mfma_f32_32x32x16_bf16 {acc(slot)}, {ar(CS + 4 * (tile >> 1), 4)}, {b}, {"0" if first else acc(slot)}'

        def pick(r0, r1):
            a(f's_set_gpr_idx_on s{sCB}, gpr_idx(SRC0)')
            a('s_nop 0')
            for r in range(r0, r1):
                a(f'v_mov_b32_e32 v{G + r}, v{AB + r}')
            a('s_set_gpr_idx_off')
        for j in range(2):
            for s in range(3):
                a(rd(RING1 + 12 * j + 4 * s, s, j))
        a(swaps(0))
        self.stamp('a0')
        p2 = [(3, 3, j) for j in range(40)] + [(4, 0, j) for j in range(40)] + [(5, 1, j) for j in range(40)]
        gq = list(gather)
        GJ, SJ = o.get('gather_j', 22), o.get('stat_j', 33)
        B1, B2 = 21, 33
        nwd1 = min(o.get('wd_p1', 6), 31 - o['wd_pre'])
        assert o['a_ahead'] <= (14 if o.get('defer', 2) == 2 else 23)
        for j in range(40):
            base = RING1 + 12 * (j & 1)
            self.stamp(f'p{j}')
            a.need(ar(base, 12))
            for s in range(3):
                c = '0' if j == 0 else acc(s)
                a(f'v_mfma_f32_32x32x16_bf16 {acc(s)}, {ar(base + 4 * s, 4)}, {vr(AB + 4 * j, 4)}, {c}')
                if j < 38:
                    a(rd(base + 4 * s, s, j + 2))
                else:
                    i = (j - 38) * 3 + s
                    if i < 4:
                        a(rd(RING2 + 4 * i, p2[i][1], p2[i][2]))
                if s == 0 and j < 39:
                    a(swaps(j + 1))
                if s == 1 and (B1 < j <= B1 + 10 or B2 < j):
                    a(wtail.pop(0))
                if s != 1 and j >= GJ and gq:
                    a(gq.pop(0))
                if s == 2:
                    if al:
                        a(al.pop(0))
                    elif nwd1 and not gq and j < o.get('wd1_hi', 40):
                        a(wd.pop(0))
                        nwd1 -= 1
                if j not in (8, 9) and ww:
                    if s == 0:
                        while len(ww[0]) > 1:
                            a(ww[0].pop(0))
                    if s == 1:
                        a(ww.pop(0))
                if s == 2 and j not in (7, 8) and ww:
                    a(ww[0].pop(0))
                    a(ww[0].pop(0))
                if j == 19 and s == 1:
                    assert not ww
                    for i in (0, 1, 4, 5):
                        a(f'v_mov_b32 v{BP + i}, 0')
                if j == 8 and s == 1:
                    pick(0, 4)
                if j == 9 and s == 1:
                    pick(4, 10)
                if j in (10, 11) and s != 1:
                    for _ in range(3):
                        if pub:
                            a(pub.pop(0))
                if j >= SJ:
                    for _ in range((3, 0 if j > B2 else 5, 4)[s]):
                        if st:
                            a(st.pop(0))
            if j in (B1, B2):
                a('s_barrier')
            if j == 9:
                for r in range(10):
                    a(f'v_dot2c_f32_bf16 v{vS + (r & 1)}, s{sOne}, v{G + r}')
                    a(f'v_dot2c_f32_bf16 v{vS + 2 + (r & 1)}, v{G + r}, v{G + r}')
        assert not pub and not al and not st
        a(st)
        RES, vRes, vRes2 = 200, vAL, vCS
        res_addr = [
            f'v_and_b32 v{vRes}, 15, v{L}',
            f'v_lshl_add_u32 v{vRes2}, v{vRes}, 4, s{sRes}',
            f'v_lshrrev_b32 v{vRes}, 4, v{L}',
            f'v_mad_u32_u24 v{vRes2}, v{vRes}, s{sQS}, v{vRes2}',
            f'v_mad_u32_u24 v{vRes}, v{vRes}, s{sQS}, v{vRes2}',
        ]
        a('s_barrier')
        for tl in range(3):
            a(csm(tl, tl, False))
            a(res_addr if tl == 0 else wtail.pop(0))
        self.stamp(9)

        def epi(tile, slot, packed=False):
            b = ACC + 16 * slot
            tm = [TM, TM + 1, TM + 2, TM + 3]
            ops = []
            for h in range(2):
                g, u = b + 8 * h, b + 8 * h + 4
                if packed:
                    P = lambda r, i: vr(r + 2 * i, 2)
                    cc, rr = vr(C0, 2), vr(R, 2)
                    ops += [(1, f'v_pk_mul_f32 {P(TM, i)}, {P(g, i)}, {P(g, i)}') for i in range(2)]
                    ops += [(1, f'v_pk_fma_f32 {P(TM, i)}, {P(TM, i)}, {cc}, {cc} op_sel:[0,1,0] op_sel_hi:[1,1,0]') for i in range(2)]
                    ops += [(1, f'v_pk_mul_f32 {P(u, i)}, {P(u, i)}, {P(g, i)}') for i in range(1)]
                    ops += [(1, f'v_pk_mul_f32 {P(TM, i)}, {P(TM, i)}, {P(g, i)}') for i in range(2)]
                    ops += [(2, f'v_exp_f32 v{tm[i]}, v{tm[i]}') for i in range(4)]
                    ops += [(1, f'v_pk_mul_f32 {P(u, i)}, {P(u, i)}, {P(g, i)}') for i in range(1, 2)]
                    ops += [(1, f'v_pk_fma_f32 {P(TM, i)}, {P(TM, i)}, {rr}, {rr} op_sel:[0,0,0] op_sel_hi:[1,0,0]') for i in range(2)]
                    ops += [(2, f'v_rcp_f32 v{tm[i]}, v{tm[i]}') for i in range(4)]
                    ops += [(1, f'v_pk_mul_f32 {P(u, i)}, {P(u, i)}, {P(TM, i)}') for i in range(2)]
                    ops += [(1, f'v_cvt_pk_bf16_f32 v{b + 2 * h + i}, v{u + 2 * i}, v{u + 2 * i + 1}') for i in range(2)]
                    continue
                ops += [(1, f'v_mul_f32 v{tm[i]}, v{g + i}, v{g + i}') for i in range(4)]
                ops += [(1, f'v_fma_f32 v{tm[i]}, v{tm[i]}, v{C1}, v{C0}') for i in range(4)]
                ops += [(1, f'v_mul_f32 v{tm[i]}, v{tm[i]}, v{g + i}') for i in range(4)]
                for i in range(4):
                    ops += [(2, f'v_exp_f32 v{tm[i]}, v{tm[i]}'), (1, f'v_mul_f32 v{u + i}, v{u + i}, v{g + i}')]
                ops += [(1, f'v_fma_f32 v{tm[i]}, v{tm[i]}, v{R}, v{R}') for i in range(4)]
                ops += [(2, f'v_rcp_f32 v{tm[i]}, v{tm[i]}') for i in range(4)]
                ops += [(1, f'v_mul_f32 v{u + i}, v{u + i}, v{tm[i]}') for i in range(4)]
                ops += [(1, f'v_cvt_pk_bf16_f32 v{b + 2 * h + i}, v{u + 2 * i}, v{u + 2 * i + 1}') for i in range(2)]
            so = sA if tile < 4 else sB
            txt = f'buffer_store_dwordx4 {vr(b, 4)}, v{vAS}, {WS}, s{so} offen offset:{(tile & 3) * 1024} sc1'
            ops.append((5, (lambda: a(txt, tag=f'act{tile}')) if not o.get('nost') else []))
            if o.get('noepi'):
                ops = [(c_, x if callable(x) else []) for c_, x in ops]
            return ops

        G2 = 72
        FR = [[8 + 4 * i for i in range(16)],
              [152 + 4 * i for i in range(4)] + [200 + 4 * i for i in range(8)] + [168 + 4 * i for i in range(4)],
              [8 + 4 * i for i in range(16)]]
        order = [[(c, lam) for lam in (3, 2, 1, 0) for c in range(4)]] * 3

        def act_ld(pi, n):
            c, lam = order[pi][n]
            if o.get('noact'):
                return []
            return [f's_add_u32 s{sT1}, s{sL[lam]}, {ACT + 16384 * (kap[pi][c] >> 2) + 2048 * (kap[pi][c] & 3)}',
                    f'buffer_load_dwordx4 {vr(FR[pi][n], 4)}, v{vA2}, {WS}, s{sT1} offen sc1']

        def sig(pi, tag):
            def f():
                self.stamp(f'presig{pi}')
                a.need_tag(tag)
                if o.get('wgsig', 0) >> pi & 1:
                    l = a.label('nosig')
                    a('s_barrier')
                    a(f's_bitcmp1_b32 s{S_W}, 0')
                    a(f's_cbranch_scc1 {l}')
                    with a.untracked():
                        self.signal(f's{sF3s}')
                    a(f'{l}:')
                else:
                    self.signal(f's{sF3s}')
                self.stamp(f'sig{pi}')
                if pi < 2:
                    a(f's_add_u32 s{sF3s}, s{sF3s}, 2048')
            return f

        def poll_ld():
            return f'buffer_load_dword v{vFl}, off, {WS}, s{sF3p} sc1'

        def poll_chk(pi):
            def f():
                self.stamp(f'prechk{pi}')
                self.check(S_WS, f's{sF3p}', 0 if o.get('noe3', 0) >> pi & 1 else 16 if o.get('wgsig', 0) >> pi & 1 else 32, vFl)
                self.stamp(f'chk{pi}')
                if pi < 2:
                    a(f's_add_u32 s{sF3p}, s{sF3p}, 2048')
            return f
        RES, vRes, vRes2 = 200, vAL, vCS
        res_addr = [
            f'v_and_b32 v{vRes}, 15, v{L}',
            f'v_lshl_add_u32 v{vRes2}, v{vRes}, 4, s{sRes}',
            f'v_lshrrev_b32 v{vRes}, 4, v{L}',
            f'v_mad_u32_u24 v{vRes2}, v{vRes}, s{sQS}, v{vRes2}',
            f'v_mad_u32_u24 v{vRes}, v{vRes}, s{sQS}, v{vRes2}',
        ]
        res_ld = []
        for nt in range(5):
            q = 8 * (nt >> 1) + (nt & 1)
            res_ld.append([f's_mov_b32 s{sT6}, {q * QS}',
                           f'buffer_load_dwordx2 {vr(RES + 2 * nt, 2)}, v{vRes2 if nt == 4 else vRes}, {WS}, s{sT6} offen sc1'])
        slot_of = {0: 0, 1: 1, 2: 2, 3: 3, 4: 0, 5: 1}
        eq = epi(0, 0) + epi(1, 1) + epi(2, 2)
        budget = 0.0
        RATE = o['epi_rate']
        extra = {i: [] for i in range(120)}
        first_w = wtail.pop(0)
        for k in range(len(wtail)):
            extra[k].append(wtail[k])
        extra[30].append('s_barrier')
        nwd = len(wd) - o.get('wd_post', 12)
        done = 60 - len(wd)
        lo, hi = o.get('wd_lo', 4), o.get('wd_hi', 78)
        hold = None
        for k in range(nwd):
            g = wd.pop(0)
            p = lo + (k * (hi - lo)) // nwd
            fr = done + k
            if fr == 39:
                extra[81].append([f's_mov_b32 s{sT6}, {WDF + 5120 * kap[1][3]}', g[-1].replace(f's{sWoff} offen', f's{sT6} offen')] if g else [])
                continue
            assert fr < 56 or p > 14
            extra[p].append(g)
        SA, SB = o.get('siga', 62), o.get('sigb', 104)
        extra[SA].append(sig(0, 'act1'))
        extra[o.get('lda', 86)].append(poll_ld())
        for k, x in enumerate(res_ld):
            extra[o.get('res_at', 86) + 2 * k].append(x)
        ca = o.get('chka', 105)
        extra[ca].append(poll_chk(0))
        na = o.get('a_in', 7)
        for n in range(na):
            extra[ca + 1 + (n * (119 - ca)) // na].append(act_ld(0, n))
        extra[SB].append(sig(1, 'act3'))
        extra[50].append('s_barrier')

        def cost(x):
            if callable(x):
                return 3
            if isinstance(x, (list, tuple)):
                return sum(cost(y) for y in x)
            return 5 if x.startswith('ds_write') else 2 if x.startswith('buffer') or x == 's_barrier' else 1
        CAP = o.get('cap', 6.6)
        for i, (tile, ls, j) in enumerate(p2):
            slot = slot_of[tile]
            self.stamp(f'q{i}')
            if j == 0:
                a(csm(tile, slot, True))
                if i == 0:
                    a(first_w)
                if i:
                    budget = 6
                    while eq and budget >= eq[0][0]:
                        cst, x = eq.pop(0)
                        budget -= cst
                        a(x)
            if i & 1 == 0:
                a.need(ar(RING2 + 4 * (i & 3), 8))
            a(f'v_mfma_f32_32x32x16_bf16 {acc(slot)}, {ar(RING2 + 4 * (i & 3), 4)}, {vr(AB + 4 * j, 4)}, {acc(slot)}')
            if i + 4 < len(p2):
                a(rd(RING2 + 4 * (i & 3), p2[i + 4][1], p2[i + 4][2]))
            a(extra[i])
            if i == 42:
                eq += epi(3, 3)
            if i == 82:
                eq += epi(4, 0)
                if o.get('st4_late'):
                    st4 = eq.pop()[1]
            if i >= 1:
                budget = min(budget, 1.0) + CAP - 1 - (i & 1) - cost(extra[i])
                budget = max(budget, -1)
                while eq and budget >= min(eq[0][0], 2):
                    cst, x = eq.pop(0)
                    budget -= cst
                    a(x)
                    if callable(x) and o.get('verbose'):
                        print('store at gap', i)
                if i == 39:
                    assert len(eq) <= 2 * 69, len(eq)
                if i == SA - 1:
                    assert len(eq) <= 2 * 69, len(eq)
                if i == 79:
                    assert len(eq) <= 2 * 69, len(eq)
                if i == o.get('res_at', 86) - 1:
                    assert len(eq) <= 2 * 69, len(eq)
                if i == SB - 1:
                    assert len(eq) <= 69, len(eq)
            if j == 39:
                self.stamp(f't{tile}')
        for cst, x in eq:
            a(x)
        a(f's_mov_b32 s{sT0}, 0xffff0000')
        for i in range(10):
            a(f'v_lshlrev_b32 v{G2 + 2 * i}, 16, v{RES + i}')
            a(f'v_and_b32 v{G2 + 2 * i + 1}, s{sT0}, v{RES + i}')
        e5 = epi(5, 1, o.get('pk5', 1))
        LA = o.get('la2', 12)
        rest = [act_ld(0, n) for n in range(na, LA)]
        if o.get('ldb', -1) < 0:
            rest.append(poll_ld())
        if o.get('st4_late'):
            rest.append(st4)
        k = 0
        for i, (cst, x) in enumerate(e5):
            while k < len(rest) and (k + 1) * (len(e5) - 1) <= i * len(rest):
                a(rest[k])
                k += 1
            a(x)
        assert k == len(rest)
        self.stamp(10)

        vOut, vRR, vRW, vTW, vTR = 4, 7, 232, 238, 242
        RED = 2 * TILE
        setup = [
            f's_movk_i32 s{sT6}, {16 * 1280 - 160}',
            f's_movk_i32 s{sT5}, 6554',
            f's_movk_i32 s{sT4}, 176',
            f's_mul_i32 s{sT3}, s{S_W}, {16 * 176}',
            f'v_and_b32 v{t}, 15, v{L}',
            f'v_lshrrev_b32 v{t2}, 4, v{L}',
            f'v_mov_b32 v{vTW + 1}, s{sT3}',
            f'v_mad_u32_u24 v{vTW + 1}, v{t}, s{sT4}, v{vTW + 1}',
            f'v_lshl_add_u32 v{vTW}, v{t2}, 4, v{vTW + 1}',
            f'v_lshl_add_u32 v{vTW + 1}, v{t2}, 3, v{vTW + 1}',
        ]
        setup += [f'v_mul_u32_u24 v{t2}, s{sT5}, v{L}',
                  f'v_lshrrev_b32 v{t2}, 16, v{t2}',
                  f'v_lshl_add_u32 v{vOut}, v{L}, 4, s{sOutB}',
                  f'v_mad_u32_u24 v{vOut}, v{t2}, s{sT6}, v{vOut}',
                  f'v_add_u32 v{t}, v{L}, v{t2}',
                  f'v_lshl_add_u32 v{vTR}, v{t}, 4, s{sT3}',
                  f's_mov_b32 s{sT4}, {6 * 16 * 1280}',
                  f's_mov_b32 s{sT5}, {12 * 16 * 1280}']
        for lam in range(4):
            setup += [f's_xor_b32 s{sT0}, s{S_W}, {lam}', f's_mul_i32 s{sT0}, s{sT0}, {15 * 1024}',
                      f's_add_u32 s{sT0}, s{sT0}, {RED + (lam - 1) * 5120 if lam else RED}',
                      f'v_lshl_add_u32 v{vRW + lam - 1 if lam else vRR}, v{L}, 4, s{sT0}']

        def mf2(pi, n, nt):
            c, lam = order[pi][n]
            d = vr(G2 + 4 * (5 * lam + nt), 4)
            cin = '0' if (pi == 0 and c == 0 and lam != 0) else d
            return f'v_mfma_f32_16x16x32_bf16 {d}, {ar(4 * (5 * (4 * pi + c) + nt), 4)}, {vr(FR[pi][n], 4)}, {cin}'
        ex = [{i: [] for i in range(80)} for _ in range(3)]
        for k, x in enumerate(setup):
            ex[0][k].append(x)
        def put(pos, x):
            ex[pos // 80][pos % 80].append(x)
        if o.get('ldb', -1) >= 0:
            put(o['ldb'], poll_ld())
        cb_, cc_ = o.get('chkb', 5 * (16 - LA)), 80 + o.get('chkc', 44)
        put(cb_, [poll_chk(1), lambda: self.stamp('chkb')])
        put(o.get('sigc', 40), [sig(2, 'act5'), lambda: self.stamp('sigc')])
        put(80 + o.get('ldc', 28), poll_ld())
        put(cc_, [lambda: self.stamp('chkc0'), poll_chk(2), lambda: self.stamp(11)])
        pos = 0
        for g in range(LA, 48):
            pos = max(pos + (o.get('burst', 2) if g >= 16 else 0), o.get('g_gap', 5) * (g - LA) if g < 32 else 5 * (g - LA),
                      cb_ if g >= 16 else 0, cc_ if g >= 32 else 0)
            assert pos < 20 * (g // 4)
            put(pos, act_ld(g // 16, g % 16))
            if g < 32 and wd and 32 - g <= len(wd) + o.get('wdp_early', 0):
                put(pos + 2, wd.pop(0))
        assert not wd
        chain = o.get('chain', 1)
        for blk, lam in enumerate((3, 2, 1)):
            for nt in range(5):
                ex[2][20 * blk + 4 * nt + 12 if chain else 20 * (blk + 1) + 5 + 2 * nt].append(
                    f'ds_write_b128 v{vRW + lam - 1}, {vr(G2 + 4 * (5 * lam + nt), 4)} offset:{1024 * nt}')
        for pi in range(3):
            for i in range(80):
                if chain:
                    a(mf2(pi, 4 * (i // 20) + (i & 3), i % 20 // 4))
                else:
                    a(mf2(pi, i // 5, i % 5))
                self.stamp(f'm{80 * pi + i}')
                a(ex[pi][i])
            self.stamp('end' + 'ABC'[pi])
        a('s_waitcnt lgkmcnt(0)')
        a('s_barrier')
        self.stamp('redbar')
        RD, RR = 152, 8
        for nt in range(5):
            for s in range(3):
                a(f'ds_read_b128 {vr(RD + 12 * nt + 4 * s, 4)}, v{vRR} offset:{5120 * s + 1024 * nt}')
        sc = ' sc1' if o['out_sc1'] else ''
        for nt in range(5):
            b = RD + 12 * nt
            c = G2 + 4 * nt
            for p in range(2):
                a(f'v_pk_add_f32 {vr(c + 2 * p, 2)}, {vr(c + 2 * p, 2)}, {vr(b + 2 * p, 2)}')
                a(f'v_pk_add_f32 {vr(b + 4 + 2 * p, 2)}, {vr(b + 4 + 2 * p, 2)}, {vr(b + 8 + 2 * p, 2)}')
            for p in range(2):
                a(f'v_pk_add_f32 {vr(c + 2 * p, 2)}, {vr(c + 2 * p, 2)}, {vr(b + 4 + 2 * p, 2)}')
            for p in range(2):
                a(f'v_cvt_pk_bf16_f32 v{RR + 2 * nt + p}, v{c + 2 * p}, v{c + 2 * p + 1}')
            if nt & 1:
                a(f'ds_write_b128 v{vTW}, {vr(RR + 2 * nt - 2, 4)} offset:{64 * (nt >> 1)}')
            if nt == 4:
                a(f'ds_write_b64 v{vTW + 1}, {vr(RR + 8, 2)} offset:128')
        for k in range(3):
            a(f'ds_read_b128 {vr(RR + 12 + 4 * k, 4)}, v{vTR} offset:{6 * 176 * k}')
        a('s_mov_b32 exec_hi, 0xfffffff')
        for k in range(3):
            if k == 2:
                a('s_mov_b32 exec_hi, 0xff')
            a(f'buffer_store_dwordx4 {vr(RR + 12 + 4 * k, 4)}, v{vOut}, {sr(S_OUT, 4)}, {("0", f"s{sT4}", f"s{sT5}")[k]} offen{sc}')
        a('s_mov_b32 exec_hi, -1')
        lz = a.label('nz')
        a('s_cmp_lg_u32 s2, 0')
        a(f's_cbranch_scc1 {lz}')
        with a.untracked():
            a(f'buffer_store_dword v{BP}, off, {sr(S_DBG, 4)}, 0 sc1')
            a(f'buffer_store_dword v{BP}, off, {sr(S_DBG, 4)}, 0 offset:128 sc1')
        a(f'{lz}:')
        if self.diag:
            self.stamp('outst')
            a('s_waitcnt vmcnt(0)')
            self.stamp(12)
            a('s_waitcnt lgkmcnt(0)')
            with self.wave0():
                a(f's_lshl_b32 s{sT0}, s2, 7')
                a(f's_add_u32 s{sT0}, s{sT0}, {STAMP}')
                a(f's_sub_u32 s{S_WS}, s{S_WS}, s0')
                a(f's_subb_u32 s{S_WS + 1}, s{S_WS + 1}, 0')
                a('v_mov_b32 v0, s0')
                a(f'buffer_store_dword v0, off, {WS}, s{sT0} offset:60')
                for i in range(NSTAMP):
                    a(f'v_mov_b32 v0, s{S_STAMP + 2 * i}')
                    a(f'buffer_store_dword v0, off, {WS}, s{sT0} offset:{4 * i}')
        if self.opt.get('fixt'):
            with a.untracked():
                fs = S_STAMP + 2 * self.opt.get("fixs", 0)
                if self.opt.get('fixmax'):
                    lo, hi = {'all': (0, 256), 'conv': (0, 160), 'side': (160, 256)}[self.opt['fixmax']]
                    a(f's_cmp_lg_u32 s{S_W}, 0')
                    a('s_cbranch_scc1 .Lend')
                    a(f's_sub_u32 s{sT0}, s2, {lo}')
                    a(f's_cmp_lt_u32 s{sT0}, {hi - lo}')
                    a(f's_cselect_b32 s{sT0}, s{fs}, 0')
                    a(f'v_mov_b32 v1, s{sT0}')
                    a('s_mov_b64 exec, 1')
                    a(f'buffer_atomic_umax v1, off, {sr(S_DBG, 4)}, 0 offset:64 sc1')
                    a('s_cmp_lg_u32 s2, 0')
                    a('s_cbranch_scc1 .Lend')
                    a('.Lfix0:')
                    a(f's_memrealtime {sr(sT0, 2)}')
                    a('s_waitcnt lgkmcnt(0)')
                    a(f's_sub_u32 s{sT0}, s{sT0}, s{S_STAMP}')
                    a(f's_cmp_lt_u32 s{sT0}, 3500')
                    a('s_cbranch_scc1 .Lfix0')
                    a(f'buffer_load_dword v1, off, {sr(S_DBG, 4)}, 0 offset:64 sc1')
                    a('s_waitcnt vmcnt(0)')
                    a(f'v_readfirstlane_b32 s{sT3}, v1')
                    a('s_nop 4')
                    fs = sT3
                a(f's_cmp_lg_u32 s2, {self.opt.get("fixwg", 0)}')
                a('s_cbranch_scc1 .Lend')
                a(f's_cmp_lg_u32 s{S_W}, 0')
                a('s_cbranch_scc1 .Lend')
                a(f's_sub_u32 s{sT2}, s{fs}, s{S_STAMP + 2 * self.opt.get("fixb", 0)}')
                a(f's_mul_i32 s{sT2}, s{sT2}, 10')
                a(f's_min_u32 s{sT2}, s{sT2}, 100000')
                a(f's_add_u32 s{sT2}, s{sT2}, {self.opt["fixt"]}')
                a('.Lfix:')
                a(f's_memrealtime {sr(sT0, 2)}')
                a('s_waitcnt lgkmcnt(0)')
                a(f's_sub_u32 s{sT0}, s{sT0}, s{S_STAMP}')
                a(f's_cmp_lt_u32 s{sT0}, s{sT2}')
                a('s_cbranch_scc1 .Lfix')
        a('.Lend:')
        a('s_endpgm')

    def build(self):
        a = self.a
        if self.diag:
            for i in range(2 * NSTAMP):
                a(f's_mov_b32 s{S_STAMP + i}, 0')
        self.prologue()
        self.conv()
        self.gemms()
        self.side()
        for c in self.cold:
            a.fresh()
            a('s_nop 7')
            c()
        a('.Lcode_end:')
        a('s_endpgm')
        pads = (self.opt.get('base', 0x300), NPAD, sr(sRet, 2), '.Lend', self.opt.get('pstride', 4096)) if self.opt['pads'] else None
        body = a.finish(verbose=True, align=self.opt.get('align', 1), pads=pads)
        body += '.p2align 12\n    s_endpgm\n'
        ref = open('cdna_kernels/' + NAME + '.s.ref').read().split('\n')
        head = [l for l in ref if l.startswith(';') and '@launch' not in l and 'Override' not in l and 'grid=ceil' not in l]
        txt = '\n'.join(head) + '\n'
        txt += '; One persistent launch: kv/transposition -> Toeplitz-MFMA long conv -> gate/up GEMM + GEGLU -> down GEMM.\n'
        txt += '; @launch grid=(256,1,1) block=(256,1,1) lds=163840\n'
        txt += f'''.amdgcn_target "amdgcn-amd-amdhsa--gfx950"
.text
.globl {NAME}_kernel
.p2align 8
.type {NAME}_kernel,@function
{NAME}_kernel:
{body}.section .rodata,"a"
.p2align 6
.amdhsa_kernel {NAME}_kernel
  .amdhsa_next_free_vgpr 512
  .amdhsa_next_free_sgpr 102
  .amdhsa_accum_offset 256
  .amdhsa_group_segment_fixed_size 0
  .amdhsa_kernarg_size 104
  .amdhsa_user_sgpr_count 2
  .amdhsa_user_sgpr_kernarg_segment_ptr 1
  .amdhsa_system_sgpr_workgroup_id_x 1
  .amdhsa_float_denorm_mode_32 3
.end_amdhsa_kernel
'''
        return txt


if __name__ == '__main__':
    out = sys.argv[1]
    diag = 'diag' in sys.argv[2:]
    opt = {}
    for x in sys.argv[2:]:
        if '=' in x:
            k, v = x.split('=')
            try:
                v = int(v)
            except ValueError:
                try:
                    v = float(v)
                except ValueError:
                    pass
            opt[k] = v
    open(out, 'w').write(Gen(diag, opt).build())
```

```python
import struct
import sys
from asmlib import Asm, vr, ar, sr

NAME = 'sequential_preLN__ssm_conv_h3__geglu_ffn__prompt'

MB = 1 << 20
QS = 16384
CNT = 0
CF3 = 16384
PROBE = 32768
ST1 = 49152
CSF = 65536
STAMP = 98304
PST = 131072
W45F = PST + 262144
WDF = 2 * MB
KVX, KVXT = 4 * MB, 8 * MB
KVM = 36 * MB
XP4, XP4T = 12 * MB, 8 * MB + 524288
HP4, HP4T = 16 * MB, 9 * MB
ACT = 20 * MB
WS_END = 40 * MB
C_F1, C_F1B, C_FX, C_FW, C_FXR, C_B1, C_B2, C_FWR = [4 * i for i in range(8)]


def grp_base(g, main, tail):
    return (main + (g & 3) * 524288 + (g >> 2) * 8192) if g < 8 else tail + (g - 8) * 8192


SPIN = 100000

S_W = 3
S_K, S_V, S_SH, S_SK, S_X, S_WG, S_WU, S_WD, S_OUT, S_DBG, S_WS = 4, 8, 12, 16, 20, 24, 28, 32, 36, 40, 44
S_D = 48
sX, sJ, sG, sM, sQ, sRB, sCB, sA, sB, sRot = 50, 51, 52, 53, 54, 55, 56, 57, 58, 59
sT0, sT1, sT2, sT3, sT4, sT5, sT6, sT7 = 60, 61, 62, 63, 64, 65, 66, 67
sWoff, sWoff2, sSpin, sDv = 68, 69, 70, 71
sOne, sU0, sU1, sU2 = 72, 73, 74, 75
sXo = 1
sRet = 48
NPAD = 8
S_STAMP = 76
NSTAMP = 13
sAB = 4
sL = [8, 9, 10, 11]
sPL, sPH, sFW, sSide, sArr = 16, 17, 18, 19, 23
sE = [None, 12, 13, 14]

GSTR = 4128
GW = 4 * GSTR
UBASE = 4 * GW
USTR = 4608
TILE = 40960
WS = sr(S_WS, 4)


def f32(x):
    return '0x%08x' % struct.unpack('<I', struct.pack('<f', x))[0]


class Gen:
    def __init__(self, diag=False, opt=None):
        self.a = Asm()
        self.diag = diag
        self.opt = dict(place=1, w_kv=0, w_e1=10, apoll=9, w_u=0, tb_pre=4, tb_mid=0, ssm=1, defer=0, wdp_from=24, a_ahead=14, sig='v', epi_rate=4.5,
                        fx_it=3, early_n=0, out_sc1=1, pads=1, wd_pre=20, wd_post=4, l2=10, wd_p1=11, chkb=40, sigc=39, wd_pre1=8, arr='s')
        if opt:
            self.opt.update(opt)
        self.cold = []

    PROF = {
        'main': [0, 1, 2, 3, 4, 5, 6, 7, 8, 9, 10, 11, 12],
        'front': [0, 'karg', 'issued', 1, 'kvdone', 2, 'tbpre', 'drained', 3, 'tbpost', 4, 'uload', 5],
        'e2': [0, 6, 'zbar', 7, 'hbar', 'hissued', 'hdrained', 'hbar2', 'arrived', 'wwritten', 'polled', 8, 'a0'],
        'g1': [0, 8, 'a0', 'p8', 'p16', 'p24', 'p32', 9, 't3', 't4', 't5', 10, 12],
        'g2a': [0, 't5', 10, 'm4', 'prechk1', 'chk1', 'm24', 'presig2', 'sig2', 'm44', 'm64', 'endA', 'm84'],
        'sum': [0, 'x1', 'x2', 'x3', 'x4', 'x5', 'x6', 7, 8, 'x9', 'x10', 'x11', 12],
        'side': [0, 'sx_in', 'sx_issued', 'sx_data', 'sx_bar', 'sx_st', 'sx_ld2', 'sx_dr', 1, 2, 6, 7, 8],
        'loop': [0, 4, 5, 'it1', 'it2', 'it3', 'it4', 'it5', 'it6', 'it7', 6, 7, 8],
        'g1b': [0, 9, 'q10', 'q20', 't3', 'presig0', 'sig0', 't4', 'prechk0', 'chk0', 'presig1', 'sig1', 't5'],
        'g2': [0, 't5', 10, 'chkb', 'sigc', 'endA', 'chkc0', 11, 'endB', 'endC', 'redbar', 'outst', 12],
    }

    def stamp(self, i):
        prof = self.PROF[self.opt.get('prof', 'main')]
        if self.diag and i in prof:
            i = prof.index(i)
            self.a(f'{"s_memtime" if self.opt.get("cyc") else "s_memrealtime"} {sr(S_STAMP + 2 * i, 2)}')

    def spin_atomic(self, soff, target, depth, vt):
        a = self.a
        top, done = a.label('spin'), a.label('done')
        with a.untracked():
            a(f's_mov_b32 s{sSpin}, {SPIN}')
            for d in range(depth - 1):
                a(f'v_mov_b32 v{vt + d}, 0')
                a(f'buffer_atomic_add v{vt + d}, off, {WS}, {soff} sc0 sc1')
                a(f's_sleep {self.opt.get("pslp", 3)}')
            a(f'{top}:')
            for d in range(depth):
                n = (d + depth - 1) % depth
                a(f'v_mov_b32 v{vt + n}, 0')
                a(f'buffer_atomic_add v{vt + n}, off, {WS}, {soff} sc0 sc1')
                a(f's_waitcnt vmcnt({depth - 1})')
                a(f'v_readfirstlane_b32 s{sT7}, v{vt + d}')
                a(f's_cmp_ge_u32 s{sT7}, {target}')
                a(f's_cbranch_scc1 {done}')
            a(f's_sub_u32 s{sSpin}, s{sSpin}, 1')
            a(f's_cbranch_scc0 {top}')
            a(f'{done}:')

    def spin(self, srd, soff, target, vt):
        a = self.a
        top, done = a.label('spin'), a.label('done')
        with a.untracked():
            a(f's_mov_b32 s{sSpin}, {SPIN}')
            a(f'{top}:')
            a(f'buffer_load_dword v{vt}, off, {sr(srd, 4)}, {soff} sc1')
            a('s_waitcnt vmcnt(0)')
            a(f'v_readfirstlane_b32 s{sT7}, v{vt}')
            a(f's_sub_u32 s{sSpin}, s{sSpin}, 1')
            a(f's_cbranch_scc1 {done}')
            a(f's_cmp_lt_u32 s{sT7}, {target}')
            a(f's_cbranch_scc1 {top}')
            a(f'{done}:')

    def check(self, srd, soff, target, vt):
        a = self.a
        slow, back = a.label('slow'), a.label('back')
        a(f'v_readfirstlane_b32 s{sT7}, v{vt}')
        a(f's_cmp_lt_u32 s{sT7}, {target}')
        a(f's_cbranch_scc1 {slow}')
        a(f'{back}:')

        def cold():
            a(f'{slow}:')
            self.spin(srd, soff, target, vt)
            a(f's_branch {back}')
        self.cold.append(cold)

    def get_pol(self, vt):
        a = self.a
        self.check(S_DBG, '0 offset:128', 1, vt)
        a(f's_and_b32 s0, s{sT7}, 2')
        a('s_lshl_b32 s0, s0, 20')
        a(f's_add_u32 s{S_WS}, s{S_WS}, s0')
        a(f's_addc_u32 s{S_WS + 1}, s{S_WS + 1}, 0')

    def wave0(self):
        g = self

        class W:
            def __enter__(s):
                s.l = g.a.label('nw0')
                g.a(f's_cmp_lg_u32 s{S_W}, 0')
                g.a(f's_cbranch_scc1 {s.l}')
                s.u = g.a.untracked()
                s.u.__enter__()
                g.a('s_mov_b64 exec, 1')

            def __exit__(s, *x):
                g.a('s_mov_b64 exec, -1')
                s.u.__exit__()
                g.a(f'{s.l}:')
        return W()

    def warm(self, sets):
        if not self.opt['pads']:
            return
        a = self.a
        for w, ks in enumerate(sets):
            if not ks:
                continue
            l = a.label('nw')
            a(f's_cmp_lg_u32 s{S_W}, {w + 1}')
            a(f's_cbranch_scc1 {l}')
            for k in ks:
                a(f's_call_b64 {sr(sRet, 2)}, .Lpad_{k}')
            a(f'{l}:')

    def arrive_start(self, items, pre=None):
        a = self.a
        l = a.label('noarr')
        for r, _ in items:
            a(f's_mov_b32 s{r}, 1')
        a(f's_cmp_lg_u32 s{S_W}, 0')
        a(f's_cbranch_scc1 {l}')
        with a.untracked():
            if pre:
                pre()
            for r, line in items:
                a(f's_atomic_add s{r}, {sr(S_WS, 2)}, s{sXo} offset:{line * 256} glc')
        a(f'{l}:')

    def arrive_finish(self, items, vt):
        a = self.a
        a('s_waitcnt lgkmcnt(0)')
        for r, last, rep in items:
            l = a.label('notlast')
            a(f's_cmp_lg_u32 s{r}, {last}')
            a(f's_cbranch_scc1 {l}')
            with a.untracked():
                a('s_mov_b32 exec_lo, 15')
                a('s_mov_b32 exec_hi, 15')
                a(f'v_lshlrev_b32 v{vt}, 8, v0')
                a(f's_mov_b32 s{sT7}, {rep * 256}')
                a(f'buffer_atomic_add v{self.vOne}, v{vt}, {WS}, s{sT7} offen sc1')
                a('s_mov_b64 exec, -1')
            a(f'{l}:')

    def prologue(self):
        a = self.a
        a('s_cmp_ge_u32 s2, 0x100')
        a('s_cbranch_scc1 .Lend')
        self.stamp(0)
        for srd, off in ((S_K, 8), (S_WS, 96), (S_V, 16), (S_SH, 24), (S_SK, 32), (S_X, 0), (S_WG, 56), (S_WU, 64),
                         (S_WD, 72), (S_OUT, 80), (S_DBG, 88), (S_D, 40)):
            a(f's_load_dwordx2 {sr(srd, 2)}, s[0:1], {off}')
        a('v_lshrrev_b32 v1, 6, v0')
        a(f's_and_b32 s{sX}, s2, 7')
        a(f's_lshr_b32 s{sJ}, s2, 3')
        a(f'v_readfirstlane_b32 s{S_W}, v1')
        a('v_mov_b32 v1, v0')
        a('v_and_b32 v0, 63, v0')
        for srd, n in ((S_K, 2621440), (S_V, 2621440), (S_SH, 5120), (S_SK, 4096), (S_X, 2621440), (S_WG, 1966080),
                       (S_WU, 1966080), (S_WD, 1966080), (S_OUT, 2621440), (S_DBG, 256), (S_WS, WS_END)):
            a(f's_mov_b32 s{srd + 2}, {n}')
            a(f's_mov_b32 s{srd + 3}, 0x20000')
        a(f's_and_b32 s{sM}, s{sJ}, 15')
        a(f's_mov_b32 s{sG}, s{sX}')
        a(f's_cmp_lt_u32 s{sJ}, 16')
        a.snapshot('role')
        a('s_cbranch_scc1 .Lconv')
        a(f's_lshr_b32 s{sG}, s{sX}, 2')
        a(f's_add_u32 s{sG}, s{sG}, 8')
        a(f's_and_b32 s{sT0}, s{sX}, 3')
        a(f's_lshl2_add_u32 s{sM}, s{sT0}, s{sM}')
        a(f's_cmp_lt_u32 s{sJ}, 20')
        a('s_cbranch_scc1 .Lconv')
        with a.untracked():
            a(f's_cmp_lg_u32 s2, {self.opt.get("initwg", 208)}')
            a('s_cbranch_scc1 .Lnoinit')
            a('v_lshrrev_b32 v2, 3, v1')
            a('v_and_b32 v3, 7, v0')
            a('v_lshlrev_b32 v3, 4, v3')
            a('v_lshl_add_u32 v2, v2, 8, v3')
            for i in range(4):
                a(f'v_mov_b32 v{4 + i}, 0')
            a('s_waitcnt lgkmcnt(0)')
            a.fresh()
            a(f'buffer_store_dwordx4 v[4:7], v2, {WS}, 0 offen sc1')
            for off in (0x2000, 2 * MB, 2 * MB + 0x2000):
                a(f's_mov_b32 s{sT0}, {off}')
                a(f'buffer_store_dwordx4 v[4:7], v2, {WS}, s{sT0} offen sc1')
            a('v_mov_b32 v3, 1')
            a('s_waitcnt vmcnt(0)')
            a('s_barrier')
            a(f's_cmp_lg_u32 s{S_W}, 0')
            a('s_cbranch_scc1 .Lside')
            a('s_mov_b64 exec, 1')
            a(f'buffer_store_dword v3, off, {sr(S_DBG, 4)}, 0 sc1')
            a('s_mov_b64 exec, -1')
            a('s_branch .Lside')
            a('.Lnoinit:')
            a(f's_cmp_lg_u32 s2, {self.opt.get("polwg", 216)}')
            a('s_cbranch_scc1 .Lnopol')
            a(f's_and_b32 s{sT1}, s{S_W}, 1')
            a(f's_lshl_b32 s{sT0}, s{sT1}, 13')
            a(f's_lshl_b32 s{sT2}, s{S_W}, 8')
            a(f's_add_u32 s{sT0}, s{sT0}, s{sT2}')
            a(f's_add_u32 s{sT0}, s{sT0}, {PROBE}')
            if 'fpol' in self.opt:
                a(f's_mov_b32 s{sT1}, {self.opt["fpol"]}')
            a(f's_add_u32 s{sT1}, s{sT1}, 1')
            a(f'v_mov_b32 v4, s{sT1}')
            a('v_mov_b32 v5, 0')
            a('v_lshlrev_b32 v2, 2, v0')
            a('s_waitcnt lgkmcnt(0)')
            wu = self.opt.get('pwarm', 1)
            if wu == 1:
                a(f'buffer_store_dword v5, v2, {WS}, s{sT0} offen sc1')
                a('s_waitcnt vmcnt(0)')
            a('s_mov_b64 exec, 1')
            for i in range(0 if wu == 2 else 1, 1 + self.opt.get('hops', 1)):
                if i == 1:
                    a('s_barrier')
                a(f's_mov_b32 s{sT3}, 0')
                a(f's_atomic_add s{sT3}, {sr(S_WS, 2)}, s{sT0} glc')
                a('s_waitcnt lgkmcnt(0)')
            a(f'buffer_atomic_cmpswap v[4:5], off, {sr(S_DBG, 4)}, 0 offset:128 sc1')
            a('s_mov_b64 exec, -1')
            a('s_branch .Lside')
            a('.Lnopol:')
            if self.opt.get('cpf', 1):
                a(f's_getpc_b64 {sr(sT0, 2)}')
                a('.Lpc:')
                a(f's_and_b32 s{sT2}, s{sJ}, 3')
                a(f's_lshl2_add_u32 s{sT2}, s{sT2}, s{S_W}')
                a(f's_mul_i32 s{sT2}, s{sT2}, {18 * 128}')
                a('v_min_u32 v2, 17, v0')
                a(f'v_lshl_add_u32 v2, v2, 7, s{sT2}')
                a('v_min_u32 v2, .Lcode_end-.Lpc-4, v2')
                a('v_mov_b32 v3, 0')
                a(f'v_lshl_add_u64 v[4:5], v[2:3], 0, {sr(sT0, 2)}')
                a('global_load_dword a253, v[4:5], off')
            a('s_branch .Lside')
        a('.Lconv:')
        a.fresh('role')

    def gemm_ids(self):
        a = self.a
        a.need(sr(S_WS, 2))
        a(f's_lshr_b32 s{sT0}, s{sX}, 2')
        a(f's_lshl_b32 s{sT0}, s{sT0}, 5')
        a(f's_and_b32 s{sXo}, s{sX}, 3')
        a(f's_add_u32 s{sXo}, s{sXo}, s{sT0}')
        a(f's_lshl_b32 s{sXo}, s{sXo}, 8')
        a(f's_lshr_b32 s{sRB}, s{sX}, 2')
        a(f's_lshr_b32 s{sT0}, s{sJ}, 2')
        a(f's_lshl3_add_u32 s{sRB}, s{sRB}, s{sT0}')
        a(f's_and_b32 s{sRot}, s{sX}, 3')
        a(f's_and_b32 s{sT0}, s{sJ}, 3')
        a(f's_lshl2_add_u32 s{sCB}, s{sRot}, s{sT0}')
        a(f's_and_b32 s{sT0}, s{sCB}, 1')
        a(f's_mul_i32 s{sA}, s{sCB}, 6')
        a(f's_add_u32 s{sB}, s{sA}, 4')
        a(f's_lshl1_add_u32 s{sA}, s{sT0}, s{sA}')
        a(f's_lshl_b32 s{sT1}, s{sT0}, 2')
        a(f's_sub_u32 s{sB}, s{sB}, s{sT1}')

    vWL, vWLb, vW45, vTmp, vTmp2, vOne, vPS = 254, 253, 252, 250, 249, 248, 251
    WRAW = [8, 40, 72, 104, 136]
    vWW = 236
    PT = 200

    def real_line(self, r, tmp):
        a = self.a
        if not self.opt.get('swz', 1):
            return
        a(f's_sub_u32 s{tmp}, s{r}, 3')
        a(f's_cmp_lt_u32 s{tmp}, 2')
        a(f's_cselect_b32 s{tmp}, 7, 0')
        a(f's_xor_b32 s{r}, s{r}, s{tmp}')
        a(f's_sub_u32 s{tmp}, s{r}, 10')
        a(f's_cmp_lt_u32 s{tmp}, 2')
        a(f's_cselect_b32 s{tmp}, 1, 0')
        a(f's_xor_b32 s{r}, s{r}, s{tmp}')

    def w_addr(self):
        a = self.a
        t = self.vTmp
        a(f's_lshr_b32 s{sT1}, s{sA}, 2')
        self.real_line(sT1, sT0)
        a(f's_lshl_b32 s{sT1}, s{sT1}, 7')
        a(f'v_and_b32 v{t}, 7, v0')
        a(f'v_lshl_add_u32 v{self.vWLb}, v{t}, 4, s{sT1}')
        a(f's_lshr_b32 s{sT0}, s{S_W}, 1')
        a(f's_lshl_b32 s{sT0}, s{sT0}, 6')
        a(f's_mul_i32 s{sWoff}, s{sRot}, 160')
        a(f's_add_u32 s{sWoff}, s{sWoff}, s{sT0}')
        a(f's_mul_i32 s{sT0}, s{sCB}, {80 * 1024}')
        a(f's_add_u32 s{sT0}, s{sT0}, {W45F}')
        a(f'v_lshl_add_u32 v{self.vW45}, v0, 4, s{sT0}')
        a(f's_mul_i32 s{sWoff2}, s{sRot}, 10')
        a(f's_add_u32 s{sWoff2}, s{sWoff2}, s{S_W}')
        a(f's_lshl_b32 s{sWoff2}, s{sWoff2}, 10')
        a(f'v_mov_b32 v{self.vOne}, 1')
        a(f's_and_b32 s{sT0}, s{sRB}, 7')
        a(f's_lshr_b32 s{sT1}, s{S_W}, 1')
        a(f's_lshl1_add_u32 s{sT0}, s{sT0}, s{sT1}')
        a(f's_lshr_b32 s{sT1}, s{sRB}, 3')
        a(f's_lshl1_add_u32 s{sT0}, s{sT0}, s{sT1}')
        a(f's_and_b32 s{sT1}, s{S_W}, 1')
        a(f's_lshl1_add_u32 s{sT0}, s{sT0}, s{sT1}')
        a(f's_lshl_b32 s{sT0}, s{sT0}, 12')
        a(f'v_and_b32 v{t}, 31, v0')
        a(f'v_lshl_add_u32 v{self.vPS}, v{t}, 3, s{sT0}')
        a(f'v_lshrrev_b32 v{t}, 5, v0')
        a(f'v_lshl_add_u32 v{self.vPS}, v{t}, 11, v{self.vPS}')

    def w_select(self):
        a = self.a
        a(f's_bitcmp1_b32 s{S_W}, 0')
        a(f's_cselect_b32 s{S_WG}, s{S_WU}, s{S_WG}')
        a(f's_cselect_b32 s{S_WG + 1}, s{S_WU + 1}, s{S_WG + 1}')
        for i in range(1, 4):
            a(f's_movk_i32 s{sE[i]}, {6144 * i}')
        a(f's_movk_i32 s15, 3072')

    def clear_pst(self, v2):
        return [f'v_mov_b32 v{v2}, -1', f'v_mov_b32 v{v2 + 1}, -1',
                f's_lshl_b32 s{sU0}, s{sCB}, 8', f's_add_u32 s{sU0}, s{sU0}, {PST}',
                ['s_mov_b32 exec_hi, 0',
                 f'buffer_store_dwordx2 {vr(v2, 2)}, v{self.vPS}, {WS}, s{sU0} offen sc1',
                 's_mov_b32 exec_hi, -1']]

    def w_loads_main(self, park=False):
        out = []
        t, t2 = self.vTmp, self.vTmp2
        for b in range(5):
            for e in range(8):
                g = []
                if e == 0:
                    g = [f'v_and_b32 v{t}, 56, v0', f'v_add_u32 v{t}, s{sWoff}, v{t}', f'v_subrev_u32 v{t2}, 640, v{t}',
                         f'v_min_u32 v{t}, v{t}, v{t2}', f'v_mad_u32_u24 v{self.vWL}, v{t}, s15, v{self.vWLb}',
                         f's_add_u32 s{sWoff}, s{sWoff}, 128']
                so = f's{sE[e >> 1]}' if e >> 1 else '0'
                dst = ar(208 + 4 * e, 4) if park and b == 4 else vr(self.WRAW[b] + 4 * e, 4)
                g.append(f'buffer_load_dwordx4 {dst}, v{self.vWL}, {sr(S_WG, 4)}, {so} offen offset:{3072 * (e & 1)}')
                out.append(g)
        return out

    def w_loads_tail(self):
        out = []
        for i in range(20):
            if i & 1:
                g = [f's_add_u32 s{sU1}, s{sWoff2}, {TILE}',
                     f'buffer_load_dwordx4 {ar(160 + 4 * i, 4)}, v{self.vW45}, {WS}, s{sU1} offen sc1']
            else:
                g = []
                if i:
                    g = [f's_add_u32 s{sWoff2}, s{sWoff2}, 4096',
                         [f's_sub_u32 s{sU1}, s{sWoff2}, {TILE}', f's_cselect_b32 s{sWoff2}, s{sWoff2}, s{sU1}']]
                g.append(f'buffer_load_dwordx4 {ar(160 + 4 * i, 4)}, v{self.vW45}, {WS}, s{sWoff2} offen sc1')
            out.append(g)
        return out

    def w_write_addr(self):
        a = self.a
        t, t2 = self.vTmp, self.vTmp2
        a(f's_lshr_b32 s{sT0}, s{S_W}, 1')
        a(f's_lshl_b32 s{sT0}, s{sT0}, 12')
        a(f's_and_b32 s{sT1}, s{S_W}, 1')
        a(f's_lshl_b32 s{sT1}, s{sT1}, 7')
        a(f's_add_u32 s{sT0}, s{sT0}, s{sT1}')
        a(f'v_lshrrev_b32 v{t}, 3, v0')
        a(f'v_lshl_add_u32 v{t}, v{t}, 9, s{sT0}')
        a(f'v_and_b32 v{t2}, 1, v0')
        a(f'v_lshl_add_u32 v{t}, v{t2}, 6, v{t}')
        a(f'v_bfe_u32 v{t2}, v0, 1, 2')
        a(f's_mov_b32 s{sT0}, {TILE + 16}')
        a(f'v_mad_u32_u24 v{self.vWW}, v{t2}, s{sT0}, v{t}')
        for q in range(1, 4):
            a(f'v_xor_b32 v{self.vWW + q}, {16 * q}, v{self.vWW}')
        a(f's_mov_b32 s{sPL}, 0x05040100')
        a(f's_mov_b32 s{sPH}, 0x07060302')

    def w_writes_main(self):
        out = []
        for b in range(5):
            for c8 in range(8):
                p = self.PT + 4 * (c8 & 3) if b < 5 - self.opt.get('defer', 2) else (228 if c8 & 1 else 242)
                r = self.WRAW[b] + (c8 >> 1)
                g = [f'v_perm_b32 v{p + d}, v{r + 8 * d + 4}, v{r + 8 * d}, s{sPH if c8 & 1 else sPL}' for d in range(4)]
                g.append(f'ds_write_b128 v{self.vWW + (c8 & 3)}, {vr(p, 4)} offset:{b * 8192 + (c8 >> 2) * 256}')
                out.append(g)
        return out

    def conv(self):
        a = self.a
        o = self.opt
        vK, vKh, vC, vR, vSHa, vL16 = 1, 2, 3, 4, 5, 6
        SH = 8
        KR = 16
        VR = 38
        WF = 56
        KF = 72
        O = 120
        SK = 136
        KV = 168
        VF = 200
        vSW, vSR, vKS, vG, vBa, vAa, vZR, vZR2, vUL, vUW, vI7, vGZ, vXS, vHS, vFl, vPrev = range(232, 248)
        ZERO, AD = 224, 240
        vAa2 = vZR2
        kvmix = 0
        a(f's_lshl4_add_u32 s{sQ}, s{sG}, s{sM}')
        a(f'v_and_b32 v{vC}, 15, v0')
        a(f'v_lshrrev_b32 v{vR}, 4, v0')
        a(f's_lshl2_add_u32 s{sT0}, s{sM}, s{S_W}')
        a(f's_mul_i32 s{sT0}, s{sT0}, {32 * 1280}')
        a(f's_lshl_b32 s{sT1}, s{sG}, 7')
        a(f's_add_u32 s{sT0}, s{sT0}, s{sT1}')
        a(f's_movk_i32 s{sT2}, {8 * 1280}')
        a(f'v_lshl_add_u32 v{vK}, v{vC}, 3, s{sT0}')
        a(f'v_mad_u32_u24 v{vK}, v{vR}, s{sT2}, v{vK}')
        a(f'v_subrev_u32 v{vKh}, 3840, v{vK}')
        a(f's_lshl_b32 s{sT1}, s{sG}, 9')
        a(f'v_lshl_add_u32 v{vSHa}, v{vC}, 5, s{sT1}')
        a(f's_movk_i32 s{sT3}, 5120')
        a(f'v_lshlrev_b32 v{vL16}, 4, v0')

        def addr_phase_a():
            a(f'v_subrev_u32 v{vPrev}, 8, v{vL16}')
            a(f's_mul_i32 s{sT0}, s{S_W}, {USTR}')
            a(f's_add_u32 s{sT0}, s{sT0}, {UBASE}')
            a(f's_movk_i32 s{sT1}, 272')
            a(f'v_lshl_add_u32 v{vSW}, v{vR}, 4, s{sT0}')
            a(f'v_mad_u32_u24 v{vSW}, v{vC}, s{sT1}, v{vSW}')
            a(f'v_lshl_add_u32 v{vSR}, v{vC}, 4, s{sT0}')
            a(f'v_mad_u32_u24 v{vSR}, v{vR}, s{sT1}, v{vSR}')
            a(f'v_add_u32 v{vUW}, s{sT0}, v{vL16}')
            a(f's_add_u32 s{sT0}, s{sT0}, 32')
            a(f'v_lshl_add_u32 v{vBa}, v{vC}, 5, s{sT0}')
            a(f'v_lshl_add_u32 v{vBa}, v{vR}, 4, v{vBa}')
            a(f's_and_b32 s{sT0}, s{sG}, 3')
            a(f's_lshl_b32 s{sT0}, s{sT0}, 19')
            a(f's_cmp_lt_u32 s{sG}, 8')
            a(f's_cselect_b32 s{sT4}, s{sT0}, {KVXT - KVX}')
            a(f's_lshr_b32 s{sT0}, s{sX}, 2')
            a(f's_lshl_b32 s{sT0}, s{sT0}, 13')
            a(f's_add_u32 s{sT4}, s{sT4}, s{sT0}')
            a(f's_and_b32 s{sT0}, s{sM}, 8')
            a(f's_add_u32 s{sT0}, s{sT0}, s{sM}')
            a(f's_lshl2_add_u32 s{sT1}, s{sT0}, s{S_W}')
            a(f's_lshl_b32 s{sT1}, s{sT1}, 8')
            a(f's_add_u32 s{sT0}, s{sT4}, s{sT1}')
            a(f's_mov_b32 s{sT1}, {2 * QS}')
            if kvmix:
                a(f's_lshl2_add_u32 s{sT1}, s{sM}, s{S_W}')
                a(f's_lshl_b32 s{sT1}, s{sT1}, 8')
                a(f's_lshl_b32 s{sT0}, s{sG}, 18')
                a(f's_add_u32 s{sT0}, s{sT0}, s{sT1}')
                a(f's_mov_b32 s{sT1}, {QS}')
            a(f'v_lshl_add_u32 v{vKS}, v{vC}, 4, s{sT0}')
            a(f'v_mad_u32_u24 v{vKS}, v{vR}, s{sT1}, v{vKS}')

        def addr_rest():
            self.gemm_ids()
            self.w_addr()
            a(f's_mul_i32 s{sT5}, s{S_W}, {GW}')
            a(f'v_add_u32 v{vG}, s{sT5}, v{vL16}')
            a(f'v_bfe_u32 v{vAa}, v0, 2, 2')
            a(f'v_sub_u32 v{vAa}, v{vAa}, v{vR}')
            a(f'v_sub_u32 v{vAa}, v{vAa}, v{vR}')
            a(f's_add_u32 s{sT0}, s{sT5}, 56')
            a(f'v_lshl_add_u32 v{vAa}, v{vAa}, 3, s{sT0}')
            a(f'v_and_b32 v{vI7}, 3, v0')
            a(f's_movk_i32 s{sT1}, {GSTR}')
            a(f'v_mad_u32_u24 v{vAa}, v{vI7}, s{sT1}, v{vAa}')
            a(f'v_add_u32 v{vAa2}, 0x800, v{vAa}')
            a(f'v_and_b32 v{vGZ}, 16, v0')
            a(f'v_add_u32 v{vGZ}, s{sT5}, v{vGZ}')
            a(f'v_mad_u32_u24 v{vGZ}, v{vI7}, s{sT1}, v{vGZ}')
            a(f'v_and_b32 v{vI7}, 7, v0')
            a(f's_lshl_b32 s{sT6}, s{sM}, 15')
            a(f's_add_u32 s{sT6}, s{sT6}, s{sT4}')
            a(f's_lshl_b32 s{sT1}, s{S_W}, 6')
            a(f's_add_u32 s{sT0}, s{sT6}, s{sT1}')
            if kvmix:
                a(f's_lshl_b32 s{sT0}, s{sQ}, 14')
                a(f's_add_u32 s{sT0}, s{sT0}, s{sT1}')
            a(f'v_and_b32 v{vUL}, 3, v0')
            a(f'v_lshl_add_u32 v{vUL}, v{vUL}, 4, s{sT0}')
            a(f'v_lshrrev_b32 v{vXS}, 2, v0')
            a(f'v_lshl_add_u32 v{vUL}, v{vXS}, 8, v{vUL}')
            a(f's_lshl_b32 s{sT0}, s{S_W}, 12')
            a(f'v_add_u32 v{vXS}, s{sT0}, v{vL16}')
            a(f's_lshl_b32 s{sT1}, s{sQ}, 14')
            a(f's_add_u32 s{sT0}, s{sT0}, s{sT1}')
            a(f's_mov_b32 s{sT1}, {HP4}')
            a(f's_cmp_lt_u32 s{sQ}, 120')
            a(f's_cselect_b32 s{sT1}, s{sT1}, {HP4T - 120 * QS}')
            a(f's_add_u32 s{sT0}, s{sT0}, s{sT1}')
            a(f'v_add_u32 v{vHS}, s{sT0}, v{vL16}')
            a(f's_lshl_b32 s{sT0}, s{S_W}, 11')
            a(f'v_add_u32 v{vZR}, s{sT0}, v{vL16}')
            for i in range(4):
                a(f'v_mov_b32 v{ZERO + i}, 0')
        if o.get('addr_early', 0) >= 1:
            addr_phase_a()
        if o.get('addr_early', 0) >= 2:
            addr_rest()
        a.need(sr(S_WS, 2))
        self.stamp('karg')
        a(f'buffer_load_dwordx4 {vr(SH, 4)}, v{vSHa}, {sr(S_SH, 4)}, 0 offen')
        a(f'buffer_load_dwordx4 {vr(SH + 4, 4)}, v{vSHa}, {sr(S_SH, 4)}, 0 offen offset:16')
        for r in range(3):
            a(f'buffer_load_dwordx2 {vr(KR + 2 * r, 2)}, v{vKh}, {sr(S_K, 4)}, 0 offen offset:{r * 1280}')
        for r in range(8):
            so = f's{sT3}' if r >= 4 else '0'
            a(f'buffer_load_dwordx2 {vr(KR + 6 + 2 * r, 2)}, v{vK}, {sr(S_K, 4)}, {so} offen offset:{(r & 3) * 1280}')
            a(f'buffer_load_dwordx2 {vr(VR + 2 * r, 2)}, v{vK}, {sr(S_V, 4)}, {so} offen offset:{(r & 3) * 1280}')
        self.stamp('issued')
        if o.get('tlb'):
            a(f'v_lshlrev_b32 v228, {o["tlb"]}, v0')
            a(f'buffer_load_dword v229, v228, {WS}, 0 offen sc1')
            a(f'buffer_load_dword v228, v228, {sr(S_OUT, 4)}, 0 offen sc1')
        if o.get('addr_early', 0) < 1:
            addr_phase_a()
        if o.get('addr_early', 0) < 2:
            addr_rest()
        a(f's_lshl2_add_u32 s{sT0}, s{sQ}, s{S_W}')
        a(f's_lshl_b32 s{sT1}, s{sT0}, 12')
        a(f's_add_u32 s{S_SK}, s{S_SK}, s{sT1}')
        a(f's_addc_u32 s{S_SK + 1}, s{S_SK + 1}, 0')
        a(f's_lshl_b32 s{sT0}, s{sT0}, 1')
        a(f's_and_b32 s{sT0}, s{sT0}, -4')
        a(f's_load_dword s{sDv}, {sr(S_D, 2)}, s{sT0}')
        ssm = []
        for j in range(4):
            ssm.append(f'buffer_load_dwordx4 {vr(SK + 8 * j + 4, 4)}, v{vL16}, {sr(S_SK, 4)}, 0 offen offset:{1024 * j}')
            if j == 0:
                ssm.append(f'buffer_load_dwordx2 {vr(SK + 2, 2)}, v{vPrev}, {sr(S_SK, 4)}, 0 offen')
            else:
                ssm.append(f'buffer_load_dwordx2 {vr(SK + 8 * j + 2, 2)}, v{vL16}, {sr(S_SK, 4)}, 0 offen offset:{1024 * j - 8}')
        if o.get('ssm', 1) == 0:
            a(ssm)
        self.w_select()
        self.warm([[0], [1], []])
        park = o.get('park', 1)
        wl = self.w_loads_main(park)

        def w_some(n):
            for _ in range(n):
                a(wl.pop(0))
        a(f's_mov_b32 s{sT2}, 0xffff0000')
        for ch in range(4):
            for j in range(4):
                src = SH + 2 * ch + (j >> 1)
                if j & 1:
                    a(f'v_and_b32 v{WF + 4 * j + ch}, s{sT2}, v{src}')
                else:
                    a(f'v_lshlrev_b32 v{WF + 4 * j + ch}, 16, v{src}')

        def unpack(dst, src):
            a(f'v_lshlrev_b32 v{dst}, 16, v{src}')
            a(f'v_and_b32 v{dst + 1}, s{sT2}, v{src}')
            a(f'v_lshlrev_b32 v{dst + 2}, 16, v{src + 1}')
            a(f'v_and_b32 v{dst + 3}, s{sT2}, v{src + 1}')
        for r in range(3):
            unpack(KF + 4 * r, KR + 2 * r)
        self.stamp(1)
        for r in range(8):
            unpack(KF + 4 * (r + 3), KR + 2 * (r + 3))
            vf = VF + 4 * (r & 1)
            for j in (3, 2, 1, 0):
                for p in range(2):
                    d = vr(KV + 4 * r + 2 * p, 2)
                    k = vr(KF + 4 * (r + 3 - j) + 2 * p, 2)
                    w = vr(WF + 4 * j + 2 * p, 2)
                    if j == 3:
                        a(f'v_pk_mul_f32 {d}, {k}, {w}')
                    else:
                        a(f'v_pk_fma_f32 {d}, {k}, {w}, {d}')
                if j == 3:
                    unpack(vf, VR + 2 * r)
            for p in range(2):
                d = vr(KV + 4 * r + 2 * p, 2)
                a(f'v_pk_mul_f32 {d}, {d}, {vr(vf + 2 * p, 2)}')
            if r == o.get('pol_r', 6):
                a(f'buffer_load_dword v{vFl}, off, {sr(S_DBG, 4)}, 0 offset:128 sc1')
            if o.get('ssm', 1) == 1 and r >= o.get('ssm_r', 7):
                for _ in range((len(ssm) + 7 - r) // (8 - r)):
                    a(ssm.pop(0))
            if r & 1:
                d = (7 - r) >> 1
                for ch in range(4):
                    a(f'v_cvt_pk_bf16_f32 v{O + 4 * ch + d}, v{KV + 4 * r + ch}, v{KV + 4 * (r - 1) + ch}')
        self.stamp('kvdone')
        if o.get('pol_r', 6) == 8:
            a(f'buffer_load_dword v{vFl}, off, {sr(S_DBG, 4)}, 0 offset:128 sc1')
        for ch in range(4):
            a(f'ds_write_b128 v{vSW}, {vr(O + 4 * ch, 4)} offset:{ch * 64}')
        for j in range(4):
            a(f'ds_read_b128 {vr(KV + 4 * j, 4)}, v{vSR} offset:{j * 1088}')
        assert not kvmix
        self.get_pol(vFl)
        a(f'buffer_load_dword v{vFl}, off, {sr(S_DBG, 4)}, 0 sc1')
        a(f's_mov_b32 s{sT0}, {KVM if kvmix else KVX}')
        for j in range(4):
            a(f'buffer_store_dwordx4 {vr(KV + 4 * j, 4)}, v{vKS}, {WS}, s{sT0} offen sc1')
            if j < 3:
                a(f's_add_u32 s{sT0}, s{sT0}, {4 * QS if kvmix else 8 * QS}')
        self.stamp(2)
        if kvmix and o.get('pol_l', 0) == 0:
            a(f'buffer_load_dword v{vFl}, off, {sr(S_DBG, 4)}, 0 sc1')
        if o.get('ssm', 1) == 2:
            a(ssm)
        a(f'ds_write_b128 v{vUW}, {vr(ZERO, 4)}')
        a(f'ds_write_b128 v{vGZ}, {vr(ZERO, 4)}')

        def table(j):
            D = SK + 8 * j
            Ea, Eb, Db = 184 + 12 * (j & 1), 184 + 12 * (j & 1) + 4, 184 + 12 * (j & 1) + 8

            def wr(rho, reg):
                a(f'ds_write_b128 v{vG}, {vr(reg, 4)} offset:{rho * GSTR + 1024 * j + 32}')
            wr(3, D + 4)
            for i in range(2):
                a(f'v_pk_mov_b32 {vr(Db + 2 * i, 2)}, {vr(D + 2 + 2 * i, 2)}, {vr(D + 4 + 2 * i, 2)} op_sel:[1,0]')
            for i in range(4):
                a(f'v_alignbit_b32 v{Ea + i}, v{D + 3 + i}, v{D + 2 + i}, 16')
            wr(1, Db)
            wr(0, Ea)
            for i in range(4):
                a(f'v_alignbit_b32 v{Eb + i}, v{D + 4 + i}, v{D + 3 + i}, 16')
            wr(2, Eb)
        w_some(o['w_kv'])
        n1, n2 = o['tb_pre'], o['tb_pre'] + o['tb_mid']
        for j in range(n1):
            table(j)
            if kvmix and o.get('pol_l', 0) == j + 1:
                a(f'buffer_load_dword v{vFl}, off, {sr(S_DBG, 4)}, 0 sc1')
        a.need(f's{sDv}')
        a(f's_and_b32 s{sT1}, s{S_W}, 1')
        a(f's_lshl_b32 s{sT1}, s{sT1}, 4')
        a(f's_lshr_b32 s{sDv}, s{sDv}, s{sT1}')
        a(f's_and_b32 s{sDv}, s{sDv}, 0xffff')
        a(f'v_sub_u32 v5, 7, v{vI7}')
        a(f'v_and_b32 v7, 1, v5')
        a(f'v_lshlrev_b32 v7, 4, v7')
        a(f'v_lshlrev_b32 v7, v7, s{sDv}')
        a(f'v_bfe_u32 v1, v0, 3, 1')
        a(f'v_add_u32 v1, 2, v1')
        a(f'v_cmp_eq_u32 vcc, v1, v{vR}')
        a(f'v_cndmask_b32 v7, 0, v7, vcc')
        a(f'v_lshrrev_b32 v5, 1, v5')
        for d in range(4):
            a(f'v_cmp_eq_u32 vcc, {d}, v5')
            a(f'v_cndmask_b32 v1, 0, v7, vcc')
            a(f'v_accvgpr_write_b32 a{AD + d}, v1')
        self.stamp('tbpre')
        a.drain_stores()
        if kvmix:
            self.get_pol(vFl)
        self.stamp('drained')
        a('s_barrier')
        self.stamp(3)
        a(f's_and_b32 s{sT0}, s{sXo}, 0x2000')
        a(f's_add_u32 s{sT0}, s{sT0}, {C_F1B * 256}')
        a(f's_cmp_lt_u32 s{sG}, 8')
        a(f's_cselect_b32 s{sT0}, s{sXo}, s{sT0}')
        with self.wave0():
            self.check(S_DBG, '0', 1, vFl)
            if o.get('apoll') == 9:
                a(f's_mov_b32 s{sU2}, 1')
                a(f's_atomic_add s{sU2}, {sr(S_WS, 2)}, s{sT0} glc')
            else:
                a(f'buffer_atomic_add v{self.vOne}, off, {WS}, s{sT0} sc1')
        w_some(o['w_e1'])
        for j in range(n1, n2):
            table(j)
        ACC = 128
        BUF = (0, 64)
        XR, SR, XF = 136, 152, 168

        def rdA(it, t):
            o0 = 8 * it + 64 * (t & 3)
            return f'ds_read2_b64 {ar(BUF[it & 1] + 4 * t, 4)}, v{vAa2 if t & 4 else vAa} offset0:{o0} offset1:{o0 + 1}'

        def rdB(it, t):
            return f'ds_read_b128 {ar(BUF[it & 1] + 32 + 4 * t, 4)}, v{vBa} offset:{448 - 64 * it + 512 * t}'
        if n2 == 4:
            for t in range(8):
                a(rdA(0, t))
        self.stamp('tbpost')
        self.warm([[2], [], []])
        with self.wave0():
            if o.get('apoll') == 9:
                top, done = a.label('spin'), a.label('done')
                a(f's_mov_b32 s{sSpin}, {SPIN}')
                a('s_waitcnt lgkmcnt(0)')
                a(f's_cmp_ge_u32 s{sU2}, 15')
                a(f's_cbranch_scc1 {done}')
                a(f'{top}:')
                a(f's_mov_b32 s{sU2}, 0')
                a(f's_atomic_add s{sU2}, {sr(S_WS, 2)}, s{sT0} glc')
                a(f's_sub_u32 s{sSpin}, s{sSpin}, 1')
                a(f's_cbranch_scc1 {done}')
                a('s_waitcnt lgkmcnt(0)')
                a(f's_cmp_lt_u32 s{sU2}, 16')
                a(f's_cbranch_scc1 {top}')
                a(f'{done}:')
                a('s_waitcnt lgkmcnt(0)')
            elif o.get('apoll'):
                self.spin_atomic(f's{sT0}', 16, o['apoll'], 1)
            else:
                self.spin(S_WS, f's{sT0}', 0 if o.get('noe1') else 16, vFl)
        a('s_barrier')
        self.stamp(4)
        a(f's_sub_u32 s{sT0}, {KVM}, s0' if kvmix else f's_mov_b32 s{sT0}, {KVX}')
        for j in range(4):
            a(f'buffer_load_dwordx4 {ar(BUF[1] + 4 * j, 4)}, v{vUL}, {WS}, s{sT0} offen sc1')
            if j < 3:
                a(f's_add_u32 s{sT0}, s{sT0}, {12288 if j == 1 and not kvmix else 4096}')
        w_some(o['w_u'])
        for j in range(n2, 4):
            table(j)
        if n2 < 4:
            for t in range(8):
                a(rdA(0, t))
        a(f's_add_u32 s{sT3}, s{sXo}, {C_FXR * 256}')
        a(f's_mov_b32 s{sT4}, {XP4}')
        a(f's_cmp_lt_u32 s{sG}, 8')
        a(f's_cselect_b32 s{sT4}, s{sT4}, {XP4T - (KVXT - KVX)}')
        a(f's_add_u32 s{sT6}, s{sT6}, s{sT4}')
        a(f's_lshr_b32 s{sT4}, s{S_W}, 1')
        a(f's_lshl_b32 s{sT4}, s{sT4}, 13')
        a(f's_add_u32 s{sT6}, s{sT6}, s{sT4}')
        a(f's_mov_b32 s{sT4}, {ST1}')
        for j in range(4):
            a(f'ds_write_b128 v{vUW}, {ar(BUF[1] + 4 * j, 4)} offset:{512 + 1024 * j}')
            if j == 0:
                self.stamp('uload')
            a(rdB(0, 2 * j))
            a(rdB(0, 2 * j + 1))
        self.stamp(5)
        fx = o['fx_it']
        xl = []
        for T in range(2):
            for p in range(2):
                off = 2048 * T + 1024 * p
                xl.append([f'buffer_load_dwordx4 {vr(XR + 8 * T + 4 * p, 4)}, v{vXS}, {WS}, s{sT6} offen offset:{off} sc1'])
                xl.append([f'buffer_load_dwordx4 {vr(SR + 8 * T + 4 * p, 4)}, v{vXS}, {WS}, s{sT4} offen offset:{off} sc1'])
        if o.get('nowl'):
            wl = [g[:-1] + [[]] for g in wl]
        wt = self.w_loads_tail()
        if park:
            early, late = wl, xl + wt[:12]
            self.win_pre = [f'v_accvgpr_read_b32 v{self.WRAW[4] + i}, a{208 + i}' for i in range(32)]
            self.win_loads = wt[12:]
        else:
            early, late = wl[:-8], xl + wt
            self.win_pre = wl[-8][:-1]
            self.win_loads = [wl[-8][-1]] + wl[-7:]
        tot = len(early) + len(late)
        per = [(tot * (i + 1)) // 8 - (tot * i) // 8 for i in range(8)]
        plan = []
        for it in range(8):
            n = per[it]
            if it <= fx + 1:
                n = min(max(n, o.get('early_n', 0)), len(early))
                plan.append([early.pop(0) for _ in range(n)])
            else:
                rest = late[:8] + early + late[8:] if it == fx + 2 else rest
                early = late = []
                n = (len(rest) + 7 - it) // (8 - it)
                plan.append([rest.pop(0) for _ in range(n)])
        for it in range(8):
            A, B = BUF[it & 1], BUF[it & 1] + 32
            mf = []
            endT = []
            for T in range(8):
                c = ar(ACC + 4 * T, 4)
                if it == 0:
                    mf.append(f'v_mfma_f32_16x16x32_bf16 {c}, {ar(AD, 4)}, {ar(B + 4 * T, 4)}, 0')
                for t in range(T + 1):
                    mf.append(f'v_mfma_f32_16x16x32_bf16 {c}, {ar(A + 4 * t, 4)}, {ar(B + 4 * (T - t), 4)}, {c}')
                endT.append(len(mf) - 1)
            fill = [[] for _ in mf]
            base = 8 if it == 0 else 0
            if it < 7:
                rd = [x for t in range(8) for x in (rdA(it + 1, t), rdB(it + 1, t))]
                for i, x in enumerate(rd):
                    fill[base + 2 * i].append(x)
            zw = [f'ds_write_b128 v{vG}, {ar(ACC + 4 * T, 4)} offset:{1024 * T}' for T in range(8)]
            if it == 7:
                for T in range(o.get('z_in', 7)):
                    fill[max(endT[T] + 5, 6 + 4 * T)].append(zw.pop(0))
            n = len(plan[it])
            pos = base
            for i, g in enumerate(plan[it]):
                p = max(base + ((i + 1) * 35) // n, pos)
                k = len(g) - 1
                for z, x in enumerate(g[:-1]):
                    fill[max(pos, p - (k - z + 1) // 2)].append(x)
                fill[p].append(g[-1])
                pos = p
            if it == 0:
                for i, x in enumerate(self.clear_pst(228)):
                    fill[i].append(x)
            if it == fx:
                fill[-1].append(f'buffer_load_dword v{vFl}, off, {WS}, s{sT3} sc1')
            if it == fx + 1:
                fill[-1].append(lambda: self.check(S_WS, f's{sT3}', 0 if o.get('nofx') else 8, vFl))
            if it == 7:
                fill[0].append(f's_add_u32 s{sFW}, s{sT3}, {(C_FWR - C_FXR) * 256}')

            if it == 0:
                unp = []
                for T in range(2):
                    for row in range(4):
                        src = XR + 8 * T + 2 * row
                        xf = XF + 16 * T + 4 * row
                        st = SR + 8 * T + 2 * row
                        unp += [f'v_lshlrev_b32 v{xf}, 16, v{src}', f'v_and_b32 v{xf + 1}, s{sT2}, v{src}',
                                f'v_lshlrev_b32 v{xf + 2}, 16, v{src + 1}', f'v_and_b32 v{xf + 3}, s{sT2}, v{src + 1}']
                        unp += [f'v_fma_f32 v{xf + 32 + c}, v{xf + c}, v{st}, v{st + 1}' for c in range(4)]
            u0 = o.get('unp_at', 36 * 6 + 14)
            for i, x in enumerate(unp):
                p = u0 + (i * (36 * 8 - u0)) // 64
                if p // 36 == it:
                    fill[p % 36].append(x)
            self.stamp(f'it{it}')
            if it > 0:
                a.need(ar(A, 24 if it < 7 else 32), ar(B, 24))
            for m, f in zip(mf, fill):
                a(m)
                a(f)
        self.stamp(6)
        a(zw)
        a('s_waitcnt lgkmcnt(0)')
        a('s_barrier')
        self.stamp('zbar')
        Z = XR
        for T in range(2):
            for ch in range(4):
                a(f'ds_read_b128 {vr(Z + 16 * T + 4 * ch, 4)}, v{vZR} offset:{ch * GW + 1024 * T}')
        for T in range(2):
            for p in range(2):
                ho = XF + 32 + 16 * T + 8 * p
                for b in range(2):
                    row = 2 * p + b
                    for c in range(4):
                        x = XF + 16 * T + 4 * row + c
                        a(f'v_fmac_f32 v{x}, v{x + 32}, v{Z + 16 * T + 4 * c + row}')
                    for c2 in range(2):
                        x = XF + 16 * T + 4 * row + 2 * c2
                        a(f'v_cvt_pk_bf16_f32 v{ho + 2 * b + c2}, v{x}, v{x + 1}')
                a(f'buffer_store_dwordx4 {vr(ho, 4)}, v{vHS}, {WS}, 0 offen offset:{2048 * T + 1024 * p} sc1')
        self.stamp(7)

    def side(self):
        a = self.a
        a('.Lside:')
        a.fresh('role')
        self.stamp('sx_in')
        vTid = 1
        a(f's_sub_u32 s{sG}, s{sJ}, 20')
        a(f's_lshl3_add_u32 s{sG}, s{sG}, s{sX}')
        J2, vJ2, sG2, sJo, sJs = 136, 230, sQ, sDv, sM
        vFl = 231
        up = self.opt.get('up', 1)

        def job2_loads():
            a(f's_add_u32 s{sG2}, s{sG}, {48 if self.opt.get("pair", 1) else 0}')
            a(f's_sub_u32 s{sT0}, s{sG2}, 96')
            a(f's_cselect_b32 s{sG2}, s{sG2}, s{sT0}')
            a(f's_cmp_ge_u32 s{sG2}, 72')
            a(f's_cselect_b32 s{sT2}, s{S_WU}, s{S_WG}')
            a(f's_cselect_b32 s{sT3}, s{S_WU + 1}, s{S_WG + 1}')
            a(f's_cselect_b32 s{sT1}, 72, 48')
            a(f's_sub_u32 s{sT1}, s{sG2}, s{sT1}')
            a(f's_lshr_b32 s{sT0}, s{sG2}, 1')
            a(f's_cmp_ge_u32 s{sG2}, 48')
            a(f's_cselect_b32 s{S_WD}, s{sT2}, s{S_WD}')
            a(f's_cselect_b32 s{S_WD + 1}, s{sT3}, s{S_WD + 1}')
            a(f's_cselect_b32 s{sT0}, s{sT1}, s{sT0}')
            self.real_line(sT0, sT2)
            a(f's_and_b32 s{sT2}, s{sG2}, 1')
            a(f's_lshl1_add_u32 s{sT2}, s{sT0}, s{sT2}')
            a(f's_mul_i32 s{sT2}, s{sT2}, {32 * 1280}')
            a(f's_lshl_b32 s{sT0}, s{sT0}, 7')
            a(f's_movk_i32 s{sT1}, 1280')
            a(f's_movk_i32 s{sJs}, 128')
            a(f's_cmp_ge_u32 s{sG2}, 48')
            a(f's_cselect_b32 s{sJo}, s{sT0}, s{sT2}')
            a(f's_cselect_b32 s{sT1}, 3072, s{sT1}')
            a(f's_cselect_b32 s{sJs}, {32 * 3072}, s{sJs}')
            a(f'v_and_b32 v{vJ2}, 7, v0')
            a(f'v_lshlrev_b32 v{vJ2}, 4, v{vJ2}')
            a(f'v_lshrrev_b32 v15, 3, v{vTid}')
            a(f'v_mad_u32_u24 v{vJ2}, v15, s{sT1}, v{vJ2}')
            for j in range(10):
                a(f'buffer_load_dwordx4 {vr(J2 + 4 * j, 4)}, v{vJ2}, {sr(S_WD, 4)}, s{sJo} offen')
                a(f's_add_u32 s{sJo}, s{sJo}, s{sJs}')
        a(f's_cmp_ge_u32 s{sG}, 64')
        a.snapshot('s4')
        a('s_cbranch_scc1 .Ls4')
        XR, WR = 16, J2
        vA, vRow, vS8 = 2, 3, 4
        a(f'v_lshrrev_b32 v{vRow}, 3, v{vTid}')
        a(f'v_and_b32 v{vS8}, 7, v0')
        a(f's_lshr_b32 s{sT0}, s{sG}, 3')
        a(f's_lshl_b32 s{sT0}, s{sT0}, 8')
        a(f's_and_b32 s{sT1}, s{sG}, 3')
        a(f's_lshl2_add_u32 s{sT0}, s{sT1}, s{sT0}')
        a(f's_bfe_u32 s{sT1}, s{sG}, 0x10002')
        a(f's_lshl1_add_u32 s{sT0}, s{sT1}, s{sT0}')
        a(f'v_and_b32 v5, 0xf0, v{vTid}')
        a(f'v_and_b32 v6, 1, v{vRow}')
        a(f'v_add3_u32 v5, v5, v6, s{sT0}')
        a(f's_movk_i32 s{sT1}, 1280')
        a(f'v_lshlrev_b32 v6, 4, v{vS8}')
        a(f'v_mad_u32_u24 v5, v5, s{sT1}, v6')
        for j in range(10):
            a(f'buffer_load_dwordx4 {vr(XR + 4 * j, 4)}, v5, {sr(S_X, 4)}, 0 offen offset:{128 * j}')
        if up == 1:
            job2_loads()
        self.stamp('sx_issued')
        self.gemm_ids()
        self.w_addr()
        vW, vRd, vSt = 5, 6, 7
        a(f's_movk_i32 s{sT1}, 528')
        a(f'v_lshlrev_b32 v{vW}, 3, v{vRow}')
        a(f'v_mad_u32_u24 v{vW}, v{vS8}, s{sT1}, v{vW}')
        a(f'v_and_b32 v{vRd}, 31, v0')
        a(f'v_lshlrev_b32 v{vRd}, 4, v{vRd}')
        a(f'v_lshrrev_b32 v8, 5, v{vTid}')
        a(f'v_mad_u32_u24 v{vRd}, v8, s{sT1}, v{vRd}')
        a(f's_lshl_b32 s{sT0}, s{sG}, 8')
        a(f'v_and_b32 v{vSt}, 15, v0')
        a(f's_and_b32 s{sT1}, s{sT0}, 0x2000')
        a(f's_add_u32 s{sT1}, s{sT1}, s{sT0}')
        a(f'v_lshl_add_u32 v{vSt}, v{vSt}, 4, s{sT1}')
        a(f'v_lshrrev_b32 v8, 4, v{vTid}')
        a(f's_mov_b32 s{sT1}, {2 * QS}')
        a(f'v_mad_u32_u24 v{vSt}, v8, s{sT1}, v{vSt}')
        for j in range(10):
            for o_ in range(2):
                a(f'ds_write_b64 v{vW}, {vr(XR + 4 * j + 2 * o_, 2)} offset:{j * 4224 + o_ * 256}')
        self.stamp('sx_data')
        a(f'buffer_load_dword v{vFl}, off, {sr(S_DBG, 4)}, 0 offset:128 sc1')
        a(f'buffer_load_dword v{vFl - 2}, off, {sr(S_DBG, 4)}, 0 sc1')
        if up == 2:
            job2_loads()
            a(f's_lshl_b32 s{sT0}, s{sG}, 8')
        a('s_waitcnt lgkmcnt(0)')
        a('s_barrier')
        self.stamp('sx_bar')
        XO = 96
        for j in range(10):
            a(f'ds_read_b128 {vr(XO + 4 * j, 4)}, v{vRd} offset:{j * 4224}')
        self.get_pol(vFl)
        self.check(S_DBG, '0', 1, vFl - 2)
        a(f's_mov_b32 s{sOne}, 0x3f803f80')
        for i in range(4):
            a(f'v_mov_b32 v{8 + i}, 0')
        for j in range(10):
            a(f's_mov_b32 s{sT1}, {grp_base(j, XP4, XP4T)}')
            a(f'buffer_store_dwordx4 {vr(XO + 4 * j, 4)}, v{vSt}, {WS}, s{sT1} offen sc1')
            for i in range(4 * j, 4 * j + 4):
                a(f'v_dot2c_f32_bf16 v{8 + (i & 1)}, s{sOne}, v{XR + i}')
                a(f'v_dot2c_f32_bf16 v{10 + (i & 1)}, v{XR + i}, v{XR + i}')
        a('v_add_f32 v8, v8, v9')
        a('v_add_f32 v10, v10, v11')
        for m in ('quad_perm:[1,0,3,2]', 'quad_perm:[2,3,0,1]', 'row_half_mirror'):
            a(f'v_add_f32_dpp v8, v8, v8 {m} row_mask:0xf bank_mask:0xf')
            a(f'v_add_f32_dpp v10, v10, v10 {m} row_mask:0xf bank_mask:0xf')
        a(f'v_mul_f32 v8, {f32(1 / 640)}, v8')
        a(f'v_mul_f32 v10, {f32(1 / 640)}, v10')
        a('v_fma_f32 v10, -v8, v8, v10')
        a('v_max_f32 v10, 0, v10')
        a(f'v_add_f32 v10, {f32(1e-5)}, v10')
        a('v_rsq_f32 v10, v10')
        a(f'v_lshl_add_u32 v12, v{vRow}, 3, s{sT0}')
        a('v_mul_f32 v11, -v8, v10')
        a(f's_mov_b32 s{sT1}, {ST1}')
        a('s_mov_b32 exec_lo, 0x01010101')
        a('s_mov_b32 exec_hi, 0x01010101')
        a(f'buffer_store_dwordx2 v[10:11], v12, {WS}, s{sT1} offen sc1')
        a('s_mov_b64 exec, -1')
        a('s_branch .Lr1')
        a('.Ls4:')
        a.fresh('s4')
        T4 = 10240
        a(f's_sub_u32 s{sT4}, s{sG}, 64')
        a(f's_lshr_b32 s{sT5}, s{sT4}, 2')
        a(f's_and_b32 s{sT4}, s{sT4}, 3')
        a(f's_mul_i32 s{sT0}, s{sT4}, 160')
        a(f's_lshl3_add_u32 s{sT0}, s{S_W}, s{sT0}')
        a(f's_mul_i32 s{sT0}, s{sT0}, 3072')
        a(f's_mul_i32 s{sT1}, s{sT5}, 3')
        a(f's_add_u32 s{sT1}, s{sT1}, 1')
        self.real_line(sT1, sT2)
        a(f's_lshl_b32 s{sT1}, s{sT1}, 7')
        a(f's_add_u32 s{sT0}, s{sT0}, s{sT1}')
        a('v_lshrrev_b32 v3, 3, v0')
        a('v_and_b32 v4, 7, v0')
        a(f'v_lshl_add_u32 v2, v4, 4, s{sT0}')
        a(f's_movk_i32 s{sT1}, 3072')
        a(f'v_mad_u32_u24 v2, v3, s{sT1}, v2')
        a(f's_mov_b32 s{sT0}, 0')
        for i in range(10):
            a(f'buffer_load_dwordx4 {vr(XR + 4 * i, 4)}, v2, {sr(S_WU if i & 1 else S_WG, 4)}, s{sT0} offen')
            if i & 1:
                a(f's_add_u32 s{sT0}, s{sT0}, {32 * 3072}')
        if up == 1:
            job2_loads()
        self.stamp('sx_issued')
        self.gemm_ids()
        self.w_addr()
        a(f's_lshl_b32 s{sT0}, s{S_W}, 9')
        a(f'v_lshl_add_u32 v5, v3, 6, s{sT0}')
        a('v_and_b32 v6, 1, v0')
        a('v_lshl_add_u32 v5, v6, 4, v5')
        a('v_bfe_u32 v6, v0, 1, 2')
        a('v_lshlrev_b32 v7, 5, v6')
        a('v_xor_b32 v5, v5, v7')
        a(f's_movk_i32 s{sT0}, {T4}')
        a(f'v_mad_u32_u24 v5, v6, s{sT0}, v5')
        a('v_xor_b32 v6, 32, v5')
        a('v_lshrrev_b32 v7, 5, v0')
        a('v_bfe_u32 v8, v0, 2, 2')
        a('v_lshl_add_u32 v7, v7, 3, v8')
        a('v_lshlrev_b32 v7, 6, v7')
        a('v_and_b32 v8, 3, v0')
        a('v_lshl_add_u32 v7, v8, 4, v7')
        a('v_bfe_u32 v8, v0, 4, 1')
        a('v_lshl_add_u32 v7, v8, 3, v7')
        a(f's_lshl_b32 s{sT1}, s{S_W}, 5')
        a(f'v_xor_b32 v7, s{sT1}, v7')
        a(f's_mul_i32 s{sT1}, s{S_W}, {T4}')
        a(f'v_add_u32 v7, s{sT1}, v7')
        for i in range(10):
            a(f'ds_write_b128 v{6 if i & 1 else 5}, {vr(XR + 4 * i, 4)} offset:{(i >> 1) * 2048}')
        self.stamp('sx_data')
        a(f'buffer_load_dword v{vFl}, off, {sr(S_DBG, 4)}, 0 offset:128 sc1')
        a(f'buffer_load_dword v{vFl - 2}, off, {sr(S_DBG, 4)}, 0 sc1')
        if up == 2:
            job2_loads()
        a('s_waitcnt lgkmcnt(0)')
        a('s_barrier')
        self.stamp('sx_bar')
        for j in range(10):
            for e in range(2):
                a(f'ds_read_b64_tr_b16 {vr(XO + 4 * j + 2 * e, 2)}, v7 offset:{1024 * j + 256 * e}')
        a(f's_lshl2_add_u32 s{sT0}, s{sT5}, s{S_W}')
        a(f's_lshl2_add_u32 s{sT0}, s{sT0}, s{sT4}')
        a(f's_mul_i32 s{sT0}, s{sT0}, 10240')
        a(f's_add_u32 s{sT0}, s{sT0}, {W45F}')
        a('v_lshlrev_b32 v9, 4, v0')
        self.get_pol(vFl)
        self.check(S_DBG, '0', 1, vFl - 2)
        for j in range(10):
            if j and j & 3 == 0:
                a(f's_add_u32 s{sT0}, s{sT0}, 4096')
            a(f'buffer_store_dwordx4 {vr(XO + 4 * j, 4)}, v9, {WS}, s{sT0} offen offset:{(j & 3) * 1024} sc1')
        a('.Lr1:')
        a.fresh()
        self.stamp('sx_st')
        o = self.opt
        assert up >= 1
        a(f's_mov_b32 s{sG}, s{sG2}')
        a(f's_mov_b32 s{sSide}, s{sG2}')
        self.w_select()
        WB = 49152
        T0 = 216
        na, nb, nc = o.get('sw_a', 10), o.get('sw_b', 10), o.get('sw_c', 12)
        assert na + nb + nc <= 32

        def end_r1(younger):
            self.stamp('sx_ld2')
            a(f's_waitcnt vmcnt({younger})')
            a('s_barrier')
            self.stamp('sx_dr')
            self.arrive_start([(sArr, C_FX)])
        a(f's_cmp_ge_u32 s{sG}, 48')
        a('s_cbranch_scc1 .Ls2')
        wl = self.w_loads_main()
        a(wl[:na])
        v8, v9, v10 = T0, T0 + 1, T0 + 2
        a(f'v_lshrrev_b32 v{vRow}, 3, v{vTid}')
        a(f'v_and_b32 v{vS8}, 7, v0')
        a(f's_movk_i32 s{sT1}, 1344')
        a(f'v_lshlrev_b32 v{vW}, 4, v{vS8}')
        a(f'v_mad_u32_u24 v{vW}, v{vRow}, s{sT1}, v{vW}')
        a(f'v_lshrrev_b32 v{v8}, 4, v0')
        a(f'v_bfe_u32 v{v9}, v0, 2, 2')
        a(f'v_lshl_add_u32 v{v8}, v{v8}, 3, v{v9}')
        a(f's_mul_i32 s{sT0}, s{S_W}, 320')
        a(f'v_mov_b32 v{v9}, s{sT0}')
        a(f'v_mad_u32_u24 v{v8}, v{v8}, s{sT1}, v{v9}')
        a(f'v_and_b32 v{v9}, 3, v0')
        a(f'v_lshl_add_u32 v{v10}, v{v9}, 3, v{v8}')
        a(f'v_lshl_add_u32 v{v8}, v{v9}, 4, v{v8}')
        end_r1(na)
        q = wl[na:na + nb]
        for j in range(10):
            a(f'ds_write_b128 v{vW}, {vr(WR + 4 * j, 4)} offset:{WB + 128 * j}')
            if q and j < o.get('sw_b1', 4):
                a(q.pop(0))
        self.arrive_finish([(sArr, 11, C_FXR)], v9)
        self.stamp(1)
        a(q)
        a('s_barrier')
        for cc in range(2):
            for nt in range(5):
                for e in range(2):
                    off = WB + cc * 160 + e * 4 * 1344 + ((nt >> 1) * 64 + (nt & 1) * 8)
                    a(f'ds_read_b64_tr_b16 {ar(4 * (5 * cc + nt) + 2 * e, 2)}, v{v10 if nt == 4 else v8} offset:{off}')
        a(f's_mul_i32 s{sT0}, s{S_W}, 96')
        a(f's_add_u32 s{sT0}, s{sT0}, s{sG}')
        a(f's_mul_i32 s{sT0}, s{sT0}, 5120')
        a(f's_add_u32 s{sT0}, s{sT0}, {WDF}')
        a(f'v_lshlrev_b32 v{v9}, 4, v0')
        for cc in range(2):
            for nt in range(5):
                if nt == 4:
                    a(f's_add_u32 s{sT0}, s{sT0}, 4096')
                a(f'buffer_store_dwordx4 {ar(4 * (5 * cc + nt), 4)}, v{v9}, {WS}, s{sT0} offen offset:{(nt & 3) * 1024} sc1')
            a(f's_add_u32 s{sT0}, s{sT0}, {48 * 5120 - 4096}')
        a('s_branch .Lr2')
        a('.Ls2:')
        a.fresh()
        AC = T0 + 4
        for i in range(10, 20):
            a(f'buffer_load_dwordx4 {vr(J2 + 4 * i, 4)}, v{vJ2}, {sr(S_WD, 4)}, s{sJo} offen')
            a(f's_add_u32 s{sJo}, s{sJo}, s{sJs}')
        for i in range(8):
            a(f'v_mov_b32 v{AC + i}, 0')
        a(f's_mov_b32 s{sT4}, 0x3f80')
        a(f's_mov_b32 s{sT3}, 0x3f800000')
        end_r1(10)
        q = self.w_loads_main()[:na + nb]
        for i in range(80):
            a(f'v_dot2c_f32_bf16 v{AC + 2 * (i & 3)}, s{sT4}, v{J2 + i}')
            a(f'v_dot2c_f32_bf16 v{AC + 1 + 2 * (i & 3)}, s{sT3}, v{J2 + i}')
            if i == 39:
                self.arrive_finish([(sArr, 11, C_FXR)], T0)
                self.stamp(1)
            if i & 1 and i > 39 and q:
                a(q.pop(0))
        a(q)
        a(f'v_lshlrev_b32 v5, 5, v{vTid}')
        a(f'ds_write_b128 v5, {vr(AC, 4)} offset:{WB}')
        a(f'ds_write_b128 v5, {vr(AC + 4, 4)} offset:{WB + 16}')
        a('s_waitcnt lgkmcnt(0)')
        a('s_barrier')
        a('v_bfe_u32 v6, v0, 1, 4')
        a('v_and_b32 v7, 32, v0')
        a('v_add_u32 v6, v6, v7')
        a('v_and_b32 v7, 1, v0')
        a('v_lshl_add_u32 v6, v7, 4, v6')
        a('v_lshlrev_b32 v6, 2, v6')
        for i in range(16):
            a(f'ds_read2st64_b32 {vr(J2 + 2 * i, 2)}, v6 offset0:{WB // 256 + 2 * i} offset1:{WB // 256 + 2 * i + 1}')
        for i in range(1, 16):
            a(f'v_pk_add_f32 {vr(J2, 2)}, {vr(J2, 2)}, {vr(J2 + 2 * i, 2)}')
        a(f'v_add_f32 v{J2}, v{J2}, v{J2 + 1}')
        a(f'v_cvt_pk_bf16_f32 v{T0}, v{J2}, v{J2}')
        a(f'v_lshlrev_b32 v7, 16, v{T0}')
        a(f'v_sub_f32 v7, v{J2}, v7')
        a(f'v_cvt_pk_bf16_f32 v{T0 + 1}, v7, v7')
        a(f's_sub_u32 s{sT0}, s{sG}, 48')
        a(f's_lshl_b32 s{sT0}, s{sT0}, 9')
        a(f's_add_u32 s{sT0}, s{sT0}, {CSF}')
        a('v_lshlrev_b32 v6, 3, v0')
        a(f'buffer_store_dwordx2 {vr(T0, 2)}, v6, {WS}, s{sT0} offen sc1')
        a('.Lr2:')
        a.fresh()
        self.stamp(2)
        a(f's_lshr_b32 s{sT0}, s{sG}, 5')
        a(f's_and_b32 s{sT1}, s{sG}, 15')
        a(f's_lshl4_add_u32 s{sT0}, s{sT0}, s{sT1}')
        a(f's_and_b32 s{sT1}, s{sG}, 16')
        a(f's_lshl2_add_u32 s{sT0}, s{sT1}, s{sT0}')
        a(f's_lshl_b32 s{sT0}, s{sT0}, 7')
        a(f's_add_u32 s{sT0}, s{sT0}, {CF3}')
        a('v_mov_b32 v4, 0')
        a('v_and_b32 v5, 31, v0')
        a('v_lshlrev_b32 v5, 2, v5')
        a(f'buffer_store_dword v4, v5, {WS}, s{sT0} offen sc1')
        if o.get('outpf', 2) >= 2:
            big = o.get('outpf', 2) == 3
            a(f's_lshr_b32 s{sT0}, s{sG}, 3')
            a(f's_mul_i32 s{sT0}, s{sT0}, 86')
            a(f's_and_b32 s{sT1}, s{sG}, 7')
            a(f's_lshl_b32 s{sT1}, s{sT1}, 10')
            a(f's_add_u32 s{sT0}, s{sT0}, s{sT1}')
            for i in range(4):
                a(f'v_mov_b32 v{T0 + 4 + i}, 0')
            for k in range(3 if big else 2):
                a(f'v_lshrrev_b32 v6, {3 if big else 2}, v{vTid}')
                a(f'v_add_u32 v6, {k * (32 if big else 64)}, v6')
                a('v_min_u32 v6, 85, v6')
                a(f'v_add_u32 v6, s{sT0}, v6')
                a('v_mul_u32_u24 v6, 320, v6')
                a('v_add_u32 v6, 160, v6')
                a(f'v_and_b32 v6, {-128 if big else -64}, v6')
                a(f'v_and_b32 v7, {7 if big else 3}, v0')
                a('v_lshl_add_u32 v6, v7, 4, v6')
                a(f'buffer_store_dwordx4 {vr(T0 + 4, 4)}, v6, {sr(S_OUT, 4)}, 0 offen sc1')
        a(self.clear_pst(2))
        n0 = na + nb + nc
        a(wl[na + nb:n0])
        a(f's_add_u32 s{sT4}, s{sXo}, {C_FXR * 256}')
        a(f's_add_u32 s{sFW}, s{sT4}, {(C_FWR - C_FXR) * 256}')
        a.drain_stores()
        a('s_waitcnt lgkmcnt(0)')
        a('s_barrier')
        self.stamp(6)
        self.arrive_start([(sArr, C_B1), (sJs, C_FW)])
        a(f'buffer_load_dword v1, off, {WS}, s{sT4} sc1')

        def mid():
            self.arrive_finish([(sJs, 11, C_FWR), (sArr, 31, C_B2)], T0)
            self.check(S_WS, f's{sT4}', 8, 1)
        self.side_window(wl[n0:], mid)
        a(f's_waitcnt vmcnt({self.opt["wd_pre"]})')
        self.stamp(7)
        a('s_branch .Ljoin')

    def signal(self, soff):
        a = self.a
        if self.opt['sig'] == 's':
            a(f's_atomic_add s{sU2}, {sr(S_WS, 2)}, {soff}')
        else:
            a('s_mov_b64 exec, 1')
            a(f'buffer_atomic_add v{self.vOne}, off, {WS}, {soff} sc1')
            a('s_mov_b64 exec, -1')

    def gemms(self):
        a = self.a
        o = self.opt
        t, t2 = self.vTmp, self.vTmp2
        L, AB = 0, 8
        vRD = 4
        vAL, vAS, vA2, vWD, vWD2, vCS, vFl = 1, 2, 3, 247, 255, 246, 254
        vW5 = 252
        vS = 232
        BP = 236
        TM = 242
        ACC = 168
        RING1, CS, RING2 = 124, 148, 240
        sF3s, sF3p = sQ, sM
        sRB2w = sG
        kap = [[3 * c + ((pi + 1) % 3 if c & 1 else pi) for c in range(4)] for pi in range(3)]
        wd = []
        for i in range(60):
            g = []
            if i % 5 == 0:
                g.append(f's_mov_b32 s{sWoff}, {WDF + 5120 * kap[i // 20][i // 5 % 4]}')
            g.append(f'buffer_load_dwordx4 {ar(4 * i, 4)}, v{vWD2 if i % 5 == 4 else vWD}, {WS}, s{sWoff} offen offset:{(i % 5 & 3) * 1024} sc1')
            wd.append(g)
        if o.get('nowd'):
            wd = [[] for _ in wd]
        real, setup0 = a, []
        a = setup0.append
        a(f's_and_b32 s{sT0}, s{sJ}, 7')
        a(f's_lshl2_add_u32 s{sT0}, s{sT0}, s{S_W}')
        a(f's_mul_i32 s{sT0}, s{sT0}, {12 * 5120}')
        a(f'v_lshl_add_u32 v{vWD}, v0, 4, s{sT0}')
        a(f'v_add_u32 v{vWD2}, 0x1000, v{vWD}')
        a(f'v_lshlrev_b32 v{vRD}, 4, v0')
        for s in range(1, 4):
            a(f'v_xor_b32 v{t}, {16 * s}, v{vRD}')
            a(f'v_add_u32 v{vRD + s}, {TILE * s}, v{t}')
        a(f'v_lshl_add_u32 v{vW5}, s{S_W}, 10, v{vRD}')
        a(f'v_lshl_add_u32 v{vW5 + 1}, s{S_W}, 10, v{vRD + 1}')
        a(f's_lshl2_add_u32 s{sT0}, s{sRB}, s{S_W}')
        a(f's_lshl_b32 s{sT1}, s{sT0}, 8')
        a(f'v_and_b32 v{t}, 15, v0')
        a(f'v_lshlrev_b32 v{vA2}, 4, v{t}')
        a(f'v_add_u32 v{t}, s{sT1}, v{vA2}')
        a(f'v_lshrrev_b32 v{t2}, 4, v0')
        a(f's_mov_b32 s{sT1}, {QS}')
        a(f'v_mad_u32_u24 v{vAL}, v{t2}, s{sT1}, v{t}')
        a(f'v_lshl_add_u32 v{vA2}, v{t2}, 9, v{vA2}')
        def act_blk(dst, n, tmp):
            a(f's_and_b32 s{tmp}, s{n}, 7')
            a(f's_mul_i32 s{dst}, s{tmp}, 196608')
            a(f's_bfe_u32 s{tmp}, s{n}, 0x20003')
            a(f's_lshl_b32 s{tmp}, s{tmp}, 22')
            a(f's_add_u32 s{dst}, s{dst}, s{tmp}')
            a(f's_lshr_b32 s{tmp}, s{n}, 5')
            a(f's_lshl_b32 s{tmp}, s{tmp}, 13')
            a(f's_add_u32 s{dst}, s{dst}, s{tmp}')

        def f3_line(r, tmp):
            a(f's_and_b32 s{tmp}, s{r}, 16')
            a(f's_mul_i32 s{tmp}, s{tmp}, 3')
            a(f's_add_u32 s{r}, s{r}, s{tmp}')
            a(f's_lshl_b32 s{r}, s{r}, 7')
            a(f's_add_u32 s{r}, s{r}, {CF3}')
        act_blk(sT1, sT0, sT4)
        a(f'v_lshl_add_u32 v{vAS}, v0, 4, s{sT1}')
        a(f's_lshr_b32 s{sF3s}, s{sT0}, 1')
        f3_line(sF3s, sT4)
        a(f's_lshr_b32 s{sT1}, s{sJ}, 3')
        a(f's_lshl2_add_u32 s{sF3p}, s{sX}, s{sT1}')
        a(f's_lshl_b32 s{sRB2w}, s{sF3p}, 1')
        f3_line(sF3p, sT4)
        for i in range(4):
            a(f's_add_u32 s{sT0}, s{sRot}, {i}')
            a(f's_and_b32 s{sT0}, s{sT0}, 3')
            a(f's_mul_i32 s{sT1}, s{sT0}, {40 * QS}')
            a(f's_add_u32 s{sT1}, s{sT1}, {HP4}')
            a([f's_cmp_lt_u32 s{sT0}, 3', f's_cselect_b32 s{sAB + i}, s{sT1}, {HP4T}'])
        a(f'v_and_b32 v{t}, 3, v0')
        a(f'v_bfe_u32 v{t2}, v0, 2, 1')
        a(f'v_lshl_add_u32 v{t}, v{t2}, 3, v{t}')
        a(f'v_bfe_u32 v{t2}, v0, 4, 1')
        a(f'v_lshl_add_u32 v{t}, v{t2}, 2, v{t}')
        a(f'v_lshlrev_b32 v{t}, 4, v{t}')
        a(f'v_bfe_u32 v{t2}, v0, 3, 1')
        a(f's_movk_i32 s{sT1}, 12288')
        a(f'v_mad_u32_u24 v{vCS}, v{t2}, s{sT1}, v{t}')
        for i in range(4):
            a(f'v_mov_b32 v{vS + i}, 0')
        a(f's_mov_b32 s{sOne}, 0x3f803f80')
        a(f's_mov_b32 s{sU2}, 1')
        a(f's_lshl_b32 s{sT2}, s{sA}, 7')
        a(f's_add_u32 s{sT2}, s{sT2}, {CSF}')
        a(f's_lshl_b32 s{sT3}, s{sB}, 7')
        a(f's_add_u32 s{sT3}, s{sT3}, {CSF}')
        for r in (sA, sB):
            a(f's_and_b32 s{sT0}, s{r}, -8')
            a(f's_add_u32 s{r}, s{r}, s{sT0}')
            a(f's_lshl_b32 s{r}, s{r}, 10')
            a(f's_add_u32 s{r}, s{r}, {ACT}')
        act_blk(sT6, sRB2w, sT4)
        a(f's_mul_i32 s{sT5}, s{S_W}, 49152')
        a(f's_add_u32 s{sT5}, s{sT5}, s{sT6}')
        for lam in range(4):
            a(f's_xor_b32 s{sT0}, s{S_W}, {lam}')
            a(f's_lshr_b32 s{sT1}, s{sT0}, 1')
            a(f's_mul_i32 s{sT1}, s{sT1}, 196608')
            a(f's_and_b32 s{sT0}, s{sT0}, 1')
            a(f's_lshl_b32 s{sT0}, s{sT0}, 8')
            a(f's_add_u32 s{sT0}, s{sT0}, s{sT5}')
            a(f's_add_u32 s{sL[lam]}, s{sT1}, s{sT0}')
        sRes, sOutB, sQS = 20, 21, 22
        a(f's_lshr_b32 s{sT0}, s{S_W}, 1')
        a(f's_add_u32 s{sT0}, s{sT0}, s{sRB2w}')
        a(f's_lshl_b32 s{sRes}, s{sT0}, 8')
        a(f's_and_b32 s{sT4}, s{S_W}, 1')
        a(f's_lshl3_add_u32 s{sRes}, s{sT4}, s{sRes}')
        a(f's_and_b32 s{sT5}, s{sJ}, 7')
        a(f's_mul_i32 s{sT6}, s{sT5}, {20 * QS}')
        a(f's_add_u32 s{sRes}, s{sRes}, s{sT6}')
        a(f's_mov_b32 s{sT6}, {HP4}')
        a([f's_cmp_lt_u32 s{sT5}, 6', f's_cselect_b32 s{sT6}, s{sT6}, {HP4T - 120 * QS}'])
        a(f's_add_u32 s{sRes}, s{sRes}, s{sT6}')
        a(f's_mov_b32 s{sQS}, {QS}')
        a(f's_lshr_b32 s{sOutB}, s{sRB2w}, 3')
        a(f's_lshl_b32 s{sOutB}, s{sOutB}, 8')
        a(f's_and_b32 s{sT6}, s{sT0}, 3')
        a(f's_lshl2_add_u32 s{sOutB}, s{sT6}, s{sOutB}')
        a(f's_bfe_u32 s{sT6}, s{sRB2w}, 0x10002')
        a(f's_lshl1_add_u32 s{sOutB}, s{sT6}, s{sOutB}')
        a(f's_add_u32 s{sOutB}, s{sOutB}, s{sT4}')
        a(f's_mul_i32 s{sOutB}, s{sOutB}, 1280')
        a(f's_mul_i32 s{sT6}, s{sT5}, 160')
        a(f's_add_u32 s{sOutB}, s{sOutB}, s{sT6}')
        a(f's_lshl_b32 s{sU0}, s{sCB}, 8')
        a(f's_add_u32 s{sU0}, s{sU0}, {PST}')
        a(f's_mov_b32 s{sU1}, {PST}')
        a(f's_and_b32 s{sCB}, s{sCB}, 3')
        a(f's_mul_i32 s{sCB}, s{sCB}, 10')
        a = real
        nw = 40 - 8 * o.get('defer', 2)
        wdp = [wd.pop(0) for _ in range(o['wd_pre'])]

        def mixer(ww, setup, lq, per=6):
            def some(n, nl):
                for i in range(n):
                    a(ww.pop(0))
                    for _ in range(per):
                        if setup:
                            a(setup.pop(0))
                    for _ in range(((i + 1) * nl) // n - (i * nl) // n):
                        if lq:
                            a(lq.pop(0))
            return some

        def side_window(wl, fx_check):
            ww, setup = self.w_writes_main()[:nw], list(setup0)
            self.w_write_addr()
            lq = list(wl)
            hold = [x for x in setup if isinstance(x, str) and (f'v{vW5},' in x or f's{sU1},' in x)]
            setup = [x for x in setup if x not in hold]
            some = mixer(ww, [], lq)
            nl = len(lq)
            n_ = min(nl, nw - 8)
            assert all(40 - nl + (i * nl) // n_ >= 8 * (i // 8 + 1) for i in range(n_))
            some(n_, nl)
            fx_check()
            lq += self.w_loads_tail()
            if o.get('outpf', 2) == 1:
                a(f's_lshr_b32 s{sT0}, s{sSide}, 3')
                a(f's_lshl2_add_u32 s{sT0}, s{sT0}, s{S_W}')
                a(f's_mul_i32 s{sT0}, s{sT0}, {22 * 320}')
                a(f's_and_b32 s{sSide}, s{sSide}, 7')
                a(f's_mul_i32 s{sSide}, s{sSide}, {256 * 1280}')
                a(f's_add_u32 s{sSide}, s{sSide}, s{sT0}')
                a(f'v_min_u32 v{TM}, 21, v0')
                a(f'v_mul_u32_u24 v{TM}, 320, v{TM}')
                lq.insert(o.get('pf_pos', 20), f'buffer_load_dword a255, v{TM}, {sr(S_OUT, 4)}, s{sSide} offen offset:160')
            lq.append(f'buffer_load_dword v{TM + 1}, off, {WS}, s{sFW} sc1')
            mixer(ww, setup, lq)(len(ww), len(lq))
            a(setup)
            a(hold)
            if wdp:
                self.check(S_WS, f's{sFW}', 0 if o.get('nofw') else 8, TM + 1)
            a(wdp)
        self.side_window = side_window
        ww = self.w_writes_main()
        setup = self.win_pre + setup0
        lq = list(self.win_loads)
        n1, n2 = o.get('ww1', 13), o.get('ww2', 7)
        self.w_write_addr()
        a('s_barrier')
        self.stamp('hbar')
        some = mixer(ww, setup, lq, o.get('su_per', 7))
        assert 5 * o.get('su_per', 7) >= len(self.win_pre)
        some(5, 0)
        fwe = o.get('fwe', 1)
        if wdp and fwe:
            a(f'buffer_load_dword v{TM + 1}, off, {WS}, s{sFW} sc1')
        hold = [x for x in setup if isinstance(x, str) and (f'v{vW5},' in x or f's{sU1},' in x)]
        setup[:] = [x for x in setup if x not in hold]
        some(n1 - 5, o.get('l1', 8))
        self.stamp('hissued')
        a.drain_stores()
        self.stamp('hdrained')
        a('s_barrier')
        self.stamp('hbar2')
        self.arrive_start([(sArr, C_B1)])
        if wdp and not fwe:
            a(f'buffer_load_dword v{TM + 1}, off, {WS}, s{sFW} sc1')
        if wdp and fwe:
            self.check(S_WS, f's{sFW}', 0 if o.get('nofw') else 8, TM + 1)
            nl2 = len(lq) + o.get('l2', 8)
            lq += wdp
            some(n2, nl2)
        else:
            some(n2, len(lq))
        self.arrive_finish([(sArr, 31, C_B2)], TM)
        self.stamp('arrived')
        if wdp and not fwe:
            self.check(S_WS, f's{sFW}', 0 if o.get('nofw') else 8, TM + 1)
            lq += wdp
        some(nw - n1 - n2, len(lq))
        a(setup)
        a(hold)
        a(lq)
        a('.Ljoin:')
        self.stamp('wwritten')
        a(f's_add_u32 s{sT0}, s{sXo}, {C_B2 * 256}')
        self.warm([[3, 6], [4, 7], [5]])
        with self.wave0():
            self.spin(S_WS, f's{sT0}', 0 if o.get('noe2') else 8, t)
        self.stamp('polled')
        a('s_waitcnt lgkmcnt(0)')
        a('s_barrier')
        self.stamp(8)
        al = []
        for j in range(40):
            if j % 10 == 0:
                al.append([f'buffer_load_dwordx4 {vr(AB + 4 * j, 4)}, v{vAL}, {WS}, s{sAB + j // 10} offen sc1'])
            else:
                al.append([f's_add_u32 s{sT1}, s{sAB + j // 10}, {(j % 10) * 4 * QS}',
                           f'buffer_load_dwordx4 {vr(AB + 4 * j, 4)}, v{vAL}, {WS}, s{sT1} offen sc1'])
        al.append(f'buffer_load_dwordx4 {ar(CS, 4)}, v{vCS}, {WS}, s{sT2} offen sc1')
        al.append(f'buffer_load_dwordx4 {ar(CS + 4, 4)}, v{vCS}, {WS}, s{sT2} offen offset:256 sc1')
        al.append(f'buffer_load_dwordx4 {ar(CS + 8, 4)}, v{vCS}, {WS}, s{sT3} offen sc1')
        for _ in range(o['a_ahead']):
            a(al.pop(0))

        def rd(dst, slot, j):
            return f'ds_read_b128 {ar(dst, 4)}, v{vRD + slot} offset:{1024 * j}'

        def swaps(j):
            return [f'v_permlane16_swap_b32 v{AB + 4 * j + e}, v{AB + 4 * j + 2 + e}' for e in range(2)]

        def acc(slot):
            return vr(ACC + 16 * slot, 16)
        wtail = [f'ds_write_b128 v{vW5 + (i & 1)}, {ar(160 + 4 * i, 4)} offset:{(i >> 1) * 4096}' for i in range(20)]
        if o.get('nowt'):
            wtail = [[] for _ in wtail]
        C0, C1, R = vS, vS + 1, vS + 2
        c0 = -2.0 * 0.7978845608028654 * 1.4426950408889634
        G = ACC + 48
        gather = [f'buffer_load_dwordx2 {vr(G + 2 * s, 2)}, v{self.vPS}, {WS}, s{sU1} offen offset:{256 * s} sc1'
                  for s in range(8)]
        valid = [f'v_or3_b32 v{t}, v{G + 1}, v{G + 3}, v{G + 5}', f'v_or3_b32 v{t2}, v{G + 7}, v{G + 9}, v{G + 11}',
                 f'v_or3_b32 v{t}, v{t}, v{G + 13}, v{G + 15}', f'v_or_b32 v{t}, v{t}, v{t2}',
                 f'v_cmp_gt_i32 vcc, 0, v{t}']

        def chk_stats():
            slow, back = a.label('slow'), a.label('back')
            a('s_nop 1')
            a(f's_cbranch_vccnz {slow}')
            a(f'{back}:')

            def cold():
                top = a.label('top')
                a(f'{slow}:')
                with a.untracked():
                    a(f's_mov_b32 s{sSpin}, {SPIN}')
                    a(f'{top}:')
                    a(gather)
                    a('s_waitcnt vmcnt(0)')
                    a(valid)
                    a(f's_sub_u32 s{sSpin}, s{sSpin}, 1')
                    a(f's_cbranch_scc1 {back}')
                    a('s_nop 3')
                    a(f's_cbranch_vccnz {top}')
                    a(f's_branch {back}')
            self.cold.append(cold)
        halves = [
            f'v_add_f32 v{vS}, v{vS}, v{vS + 1}',
            f'v_add_f32 v{vS + 2}, v{vS + 2}, v{vS + 3}',
            f'v_mov_b32 v{vS + 1}, v{vS}',
            f'v_mov_b32 v{vS + 3}, v{vS + 2}',
            f'v_cmp_gt_u32 vcc, 32, v{L}',
            f'v_permlane32_swap_b32 v{vS}, v{vS + 1}',
            f'v_permlane32_swap_b32 v{vS + 2}, v{vS + 3}']
        pub = halves + [
            f'v_add_f32 v{G}, v{vS}, v{vS + 1}',
            f'v_add_f32 v{G + 1}, v{vS + 2}, v{vS + 3}',
            f'v_and_b32 v{G + 1}, 0x7fffffff, v{G + 1}',
            ['s_mov_b32 exec_hi, 0',
             f'buffer_store_dwordx2 {vr(G, 2)}, v{self.vPS}, {WS}, s{sU0} offen sc1',
             's_mov_b32 exec_hi, -1']]
        st = valid + [chk_stats]
        for w_ in range(2):
            g = G + w_
            st += [f'v_add_f32 v{g}, v{g}, v{g + 2}', f'v_add_f32 v{g + 4}, v{g + 4}, v{g + 6}',
                   f'v_add_f32 v{g + 8}, v{g + 8}, v{g + 10}', f'v_add_f32 v{g + 12}, v{g + 12}, v{g + 14}',
                   f'v_add_f32 v{vS + 2 * w_}, v{g}, v{g + 4}', f'v_add_f32 v{vS + 2 * w_ + 1}, v{g + 8}, v{g + 12}']
        st += halves + [
            f'v_add_f32 v{vS}, v{vS}, v{vS + 1}',
            f'v_add_f32 v{vS + 2}, v{vS + 2}, v{vS + 3}',
            f'v_mul_f32 v{vS}, {f32(-1 / 640)}, v{vS}',
            f'v_mul_f32 v{vS + 2}, {f32(1 / 640)}, v{vS + 2}',
            f'v_cvt_pk_bf16_f32 v{t}, v{vS}, v{vS}',
            f'v_fma_f32 v{R}, -v{vS}, v{vS}, v{R}',
            f'v_lshlrev_b32 v{t}, 16, v{t}',
            f'v_max_f32 v{R}, 0, v{R}',
            f'v_sub_f32 v{t2}, v{vS}, v{t}',
            f'v_add_f32 v{R}, {f32(1e-5)}, v{R}',
            f'v_cvt_pk_bf16_f32 v{t}, v{t}, v{t2}',
            f'v_rsq_f32 v{vS + 3}, v{R}',
            f'v_cndmask_b32 v{BP + 2}, 0, v{t}, vcc',
            f'v_cndmask_b32 v{BP + 3}, 0, v{t}, vcc',
            f'v_mul_f32 v{C0}, {f32(c0)}, v{vS + 3}',
            f'v_mul_f32 v{t}, v{vS + 3}, v{vS + 3}',
            f'v_mul_f32 v{t}, {f32(0.044715)}, v{t}',
            f'v_mul_f32 v{C1}, v{t}, v{C0}',
        ]

        def csm(tile, slot, first):
            b = vr(BP, 4) if tile & 1 else vr(BP + 2, 4)
            return f'v_mfma_f32_32x32x16_bf16 {acc(slot)}, {ar(CS + 4 * (tile >> 1), 4)}, {b}, {"0" if first else acc(slot)}'

        def pick(r0, r1):
            a(f's_set_gpr_idx_on s{sCB}, gpr_idx(SRC0)')
            a('s_nop 0')
            for r in range(r0, r1):
                a(f'v_mov_b32_e32 v{G + r}, v{AB + r}')
            a('s_set_gpr_idx_off')
        for j in range(2):
            for s in range(3):
                a(rd(RING1 + 12 * j + 4 * s, s, j))
        a(swaps(0))
        self.stamp('a0')
        p2 = [(3, 3, j) for j in range(40)] + [(4, 0, j) for j in range(40)] + [(5, 1, j) for j in range(40)]
        gq = list(gather)
        GJ, SJ = o.get('gather_j', 22), o.get('stat_j', 33)
        B1, B2 = 21, 33
        nwd1 = min(o.get('wd_p1', 6), 31 - o['wd_pre'])
        assert o['a_ahead'] <= (14 if o.get('defer', 2) == 2 else 23)
        for j in range(40):
            base = RING1 + 12 * (j & 1)
            self.stamp(f'p{j}')
            a.need(ar(base, 12))
            for s in range(3):
                c = '0' if j == 0 else acc(s)
                a(f'v_mfma_f32_32x32x16_bf16 {acc(s)}, {ar(base + 4 * s, 4)}, {vr(AB + 4 * j, 4)}, {c}')
                if j < 38:
                    a(rd(base + 4 * s, s, j + 2))
                else:
                    i = (j - 38) * 3 + s
                    if i < 4:
                        a(rd(RING2 + 4 * i, p2[i][1], p2[i][2]))
                if s == 0 and j < 39:
                    a(swaps(j + 1))
                if s == 1 and (B1 < j <= B1 + 10 or B2 < j):
                    a(wtail.pop(0))
                if s != 1 and j >= GJ and gq:
                    a(gq.pop(0))
                if s == 2:
                    if al:
                        a(al.pop(0))
                    elif nwd1 and not gq and j < o.get('wd1_hi', 40):
                        a(wd.pop(0))
                        nwd1 -= 1
                if j not in (8, 9) and ww:
                    if s == 0:
                        while len(ww[0]) > 1:
                            a(ww[0].pop(0))
                    if s == 1:
                        a(ww.pop(0))
                if s == 2 and j not in (7, 8) and ww:
                    a(ww[0].pop(0))
                    a(ww[0].pop(0))
                if j == 19 and s == 1:
                    assert not ww
                    for i in (0, 1, 4, 5):
                        a(f'v_mov_b32 v{BP + i}, 0')
                if j == 8 and s == 1:
                    pick(0, 4)
                if j == 9 and s == 1:
                    pick(4, 10)
                if j in (10, 11) and s != 1:
                    for _ in range(3):
                        if pub:
                            a(pub.pop(0))
                if j >= SJ:
                    for _ in range((3, 0 if j > B2 else 5, 4)[s]):
                        if st:
                            a(st.pop(0))
            if j in (B1, B2):
                a('s_barrier')
            if j == 9:
                for r in range(10):
                    a(f'v_dot2c_f32_bf16 v{vS + (r & 1)}, s{sOne}, v{G + r}')
                    a(f'v_dot2c_f32_bf16 v{vS + 2 + (r & 1)}, v{G + r}, v{G + r}')
        assert not pub and not al and not st
        a(st)
        RES, vRes, vRes2 = 200, vAL, vCS
        res_addr = [
            f'v_and_b32 v{vRes}, 15, v{L}',
            f'v_lshl_add_u32 v{vRes2}, v{vRes}, 4, s{sRes}',
            f'v_lshrrev_b32 v{vRes}, 4, v{L}',
            f'v_mad_u32_u24 v{vRes2}, v{vRes}, s{sQS}, v{vRes2}',
            f'v_mad_u32_u24 v{vRes}, v{vRes}, s{sQS}, v{vRes2}',
        ]
        a('s_barrier')
        for tl in range(3):
            a(csm(tl, tl, False))
            a(res_addr if tl == 0 else wtail.pop(0))
        self.stamp(9)

        def epi(tile, slot, packed=False):
            b = ACC + 16 * slot
            tm = [TM, TM + 1, TM + 2, TM + 3]
            ops = []
            for h in range(2):
                g, u = b + 8 * h, b + 8 * h + 4
                if packed:
                    P = lambda r, i: vr(r + 2 * i, 2)
                    cc, rr = vr(C0, 2), vr(R, 2)
                    ops += [(1, f'v_pk_mul_f32 {P(TM, i)}, {P(g, i)}, {P(g, i)}') for i in range(2)]
                    ops += [(1, f'v_pk_fma_f32 {P(TM, i)}, {P(TM, i)}, {cc}, {cc} op_sel:[0,1,0] op_sel_hi:[1,1,0]') for i in range(2)]
                    ops += [(1, f'v_pk_mul_f32 {P(u, i)}, {P(u, i)}, {P(g, i)}') for i in range(1)]
                    ops += [(1, f'v_pk_mul_f32 {P(TM, i)}, {P(TM, i)}, {P(g, i)}') for i in range(2)]
                    ops += [(2, f'v_exp_f32 v{tm[i]}, v{tm[i]}') for i in range(4)]
                    ops += [(1, f'v_pk_mul_f32 {P(u, i)}, {P(u, i)}, {P(g, i)}') for i in range(1, 2)]
                    ops += [(1, f'v_pk_fma_f32 {P(TM, i)}, {P(TM, i)}, {rr}, {rr} op_sel:[0,0,0] op_sel_hi:[1,0,0]') for i in range(2)]
                    ops += [(2, f'v_rcp_f32 v{tm[i]}, v{tm[i]}') for i in range(4)]
                    ops += [(1, f'v_pk_mul_f32 {P(u, i)}, {P(u, i)}, {P(TM, i)}') for i in range(2)]
                    ops += [(1, f'v_cvt_pk_bf16_f32 v{b + 2 * h + i}, v{u + 2 * i}, v{u + 2 * i + 1}') for i in range(2)]
                    continue
                ops += [(1, f'v_mul_f32 v{tm[i]}, v{g + i}, v{g + i}') for i in range(4)]
                ops += [(1, f'v_fma_f32 v{tm[i]}, v{tm[i]}, v{C1}, v{C0}') for i in range(4)]
                ops += [(1, f'v_mul_f32 v{tm[i]}, v{tm[i]}, v{g + i}') for i in range(4)]
                for i in range(4):
                    ops += [(2, f'v_exp_f32 v{tm[i]}, v{tm[i]}'), (1, f'v_mul_f32 v{u + i}, v{u + i}, v{g + i}')]
                ops += [(1, f'v_fma_f32 v{tm[i]}, v{tm[i]}, v{R}, v{R}') for i in range(4)]
                ops += [(2, f'v_rcp_f32 v{tm[i]}, v{tm[i]}') for i in range(4)]
                ops += [(1, f'v_mul_f32 v{u + i}, v{u + i}, v{tm[i]}') for i in range(4)]
                ops += [(1, f'v_cvt_pk_bf16_f32 v{b + 2 * h + i}, v{u + 2 * i}, v{u + 2 * i + 1}') for i in range(2)]
            so = sA if tile < 4 else sB
            txt = f'buffer_store_dwordx4 {vr(b, 4)}, v{vAS}, {WS}, s{so} offen offset:{(tile & 3) * 1024} sc1'
            ops.append((5, (lambda: a(txt, tag=f'act{tile}')) if not o.get('nost') else []))
            if o.get('noepi'):
                ops = [(c_, x if callable(x) else []) for c_, x in ops]
            return ops

        G2 = 72
        FR = [[8 + 4 * i for i in range(16)],
              [152 + 4 * i for i in range(4)] + [200 + 4 * i for i in range(8)] + [168 + 4 * i for i in range(4)],
              [8 + 4 * i for i in range(16)]]
        order = [[(c, lam) for lam in (3, 2, 1, 0) for c in range(4)]] * 3

        def act_ld(pi, n):
            c, lam = order[pi][n]
            if o.get('noact'):
                return []
            return [f's_add_u32 s{sT1}, s{sL[lam]}, {ACT + 16384 * (kap[pi][c] >> 2) + 2048 * (kap[pi][c] & 3)}',
                    f'buffer_load_dwordx4 {vr(FR[pi][n], 4)}, v{vA2}, {WS}, s{sT1} offen sc1']

        def sig(pi, tag):
            def f():
                self.stamp(f'presig{pi}')
                a.need_tag(tag)
                if o.get('wgsig', 0) >> pi & 1:
                    l = a.label('nosig')
                    a('s_barrier')
                    a(f's_bitcmp1_b32 s{S_W}, 0')
                    a(f's_cbranch_scc1 {l}')
                    with a.untracked():
                        self.signal(f's{sF3s}')
                    a(f'{l}:')
                else:
                    self.signal(f's{sF3s}')
                self.stamp(f'sig{pi}')
                if pi < 2:
                    a(f's_add_u32 s{sF3s}, s{sF3s}, 2048')
            return f

        def poll_ld():
            return f'buffer_load_dword v{vFl}, off, {WS}, s{sF3p} sc1'

        def poll_chk(pi):
            def f():
                self.stamp(f'prechk{pi}')
                self.check(S_WS, f's{sF3p}', 0 if o.get('noe3', 0) >> pi & 1 else 16 if o.get('wgsig', 0) >> pi & 1 else 32, vFl)
                self.stamp(f'chk{pi}')
                if pi < 2:
                    a(f's_add_u32 s{sF3p}, s{sF3p}, 2048')
            return f
        RES, vRes, vRes2 = 200, vAL, vCS
        res_addr = [
            f'v_and_b32 v{vRes}, 15, v{L}',
            f'v_lshl_add_u32 v{vRes2}, v{vRes}, 4, s{sRes}',
            f'v_lshrrev_b32 v{vRes}, 4, v{L}',
            f'v_mad_u32_u24 v{vRes2}, v{vRes}, s{sQS}, v{vRes2}',
            f'v_mad_u32_u24 v{vRes}, v{vRes}, s{sQS}, v{vRes2}',
        ]
        res_ld = []
        for nt in range(5):
            q = 8 * (nt >> 1) + (nt & 1)
            res_ld.append([f's_mov_b32 s{sT6}, {q * QS}',
                           f'buffer_load_dwordx2 {vr(RES + 2 * nt, 2)}, v{vRes2 if nt == 4 else vRes}, {WS}, s{sT6} offen sc1'])
        slot_of = {0: 0, 1: 1, 2: 2, 3: 3, 4: 0, 5: 1}
        eq = epi(0, 0) + epi(1, 1) + epi(2, 2)
        budget = 0.0
        RATE = o['epi_rate']
        extra = {i: [] for i in range(120)}
        first_w = wtail.pop(0)
        for k in range(len(wtail)):
            extra[k].append(wtail[k])
        extra[30].append('s_barrier')
        nwd = len(wd) - o.get('wd_post', 12)
        done = 60 - len(wd)
        lo, hi = o.get('wd_lo', 4), o.get('wd_hi', 78)
        hold = None
        for k in range(nwd):
            g = wd.pop(0)
            p = lo + (k * (hi - lo)) // nwd
            fr = done + k
            if fr == 39:
                extra[81].append([f's_mov_b32 s{sT6}, {WDF + 5120 * kap[1][3]}', g[-1].replace(f's{sWoff} offen', f's{sT6} offen')] if g else [])
                continue
            assert fr < 56 or p > 14
            extra[p].append(g)
        SA, SB = o.get('siga', 62), o.get('sigb', 104)
        extra[SA].append(sig(0, 'act1'))
        extra[o.get('lda', 86)].append(poll_ld())
        for k, x in enumerate(res_ld):
            extra[o.get('res_at', 86) + 2 * k].append(x)
        ca = o.get('chka', 105)
        extra[ca].append(poll_chk(0))
        na = o.get('a_in', 7)
        for n in range(na):
            extra[ca + 1 + (n * (119 - ca)) // na].append(act_ld(0, n))
        extra[SB].append(sig(1, 'act3'))
        extra[50].append('s_barrier')

        def cost(x):
            if callable(x):
                return 3
            if isinstance(x, (list, tuple)):
                return sum(cost(y) for y in x)
            return 5 if x.startswith('ds_write') else 2 if x.startswith('buffer') or x == 's_barrier' else 1
        CAP = o.get('cap', 6.6)
        for i, (tile, ls, j) in enumerate(p2):
            slot = slot_of[tile]
            self.stamp(f'q{i}')
            if j == 0:
                a(csm(tile, slot, True))
                if i == 0:
                    a(first_w)
                if i:
                    budget = 6
                    while eq and budget >= eq[0][0]:
                        cst, x = eq.pop(0)
                        budget -= cst
                        a(x)
            if i & 1 == 0:
                a.need(ar(RING2 + 4 * (i & 3), 8))
            a(f'v_mfma_f32_32x32x16_bf16 {acc(slot)}, {ar(RING2 + 4 * (i & 3), 4)}, {vr(AB + 4 * j, 4)}, {acc(slot)}')
            if i + 4 < len(p2):
                a(rd(RING2 + 4 * (i & 3), p2[i + 4][1], p2[i + 4][2]))
            a(extra[i])
            if i == 42:
                eq += epi(3, 3)
            if i == 82:
                eq += epi(4, 0)
                if o.get('st4_late'):
                    st4 = eq.pop()[1]
            if i >= 1:
                budget = min(budget, 1.0) + CAP - 1 - (i & 1) - cost(extra[i])
                budget = max(budget, -1)
                while eq and budget >= min(eq[0][0], 2):
                    cst, x = eq.pop(0)
                    budget -= cst
                    a(x)
                    if callable(x) and o.get('verbose'):
                        print('store at gap', i)
                if i == 39:
                    assert len(eq) <= 2 * 69, len(eq)
                if i == SA - 1:
                    assert len(eq) <= 2 * 69, len(eq)
                if i == 79:
                    assert len(eq) <= 2 * 69, len(eq)
                if i == o.get('res_at', 86) - 1:
                    assert len(eq) <= 2 * 69, len(eq)
                if i == SB - 1:
                    assert len(eq) <= 69, len(eq)
            if j == 39:
                self.stamp(f't{tile}')
        for cst, x in eq:
            a(x)
        a(f's_mov_b32 s{sT0}, 0xffff0000')
        for i in range(10):
            a(f'v_lshlrev_b32 v{G2 + 2 * i}, 16, v{RES + i}')
            a(f'v_and_b32 v{G2 + 2 * i + 1}, s{sT0}, v{RES + i}')
        e5 = epi(5, 1, o.get('pk5', 1))
        LA = o.get('la2', 12)
        rest = [act_ld(0, n) for n in range(na, LA)]
        if o.get('ldb', -1) < 0:
            rest.append(poll_ld())
        if o.get('st4_late'):
            rest.append(st4)
        k = 0
        for i, (cst, x) in enumerate(e5):
            while k < len(rest) and (k + 1) * (len(e5) - 1) <= i * len(rest):
                a(rest[k])
                k += 1
            a(x)
        assert k == len(rest)
        self.stamp(10)

        vOut, vRR, vRW, vTW, vTR = 4, 7, 232, 238, 242
        RED = 2 * TILE
        setup = [
            f's_movk_i32 s{sT6}, {16 * 1280 - 160}',
            f's_movk_i32 s{sT5}, 6554',
            f's_movk_i32 s{sT4}, 176',
            f's_mul_i32 s{sT3}, s{S_W}, {16 * 176}',
            f'v_and_b32 v{t}, 15, v{L}',
            f'v_lshrrev_b32 v{t2}, 4, v{L}',
            f'v_mov_b32 v{vTW + 1}, s{sT3}',
            f'v_mad_u32_u24 v{vTW + 1}, v{t}, s{sT4}, v{vTW + 1}',
            f'v_lshl_add_u32 v{vTW}, v{t2}, 4, v{vTW + 1}',
            f'v_lshl_add_u32 v{vTW + 1}, v{t2}, 3, v{vTW + 1}',
        ]
        setup += [f'v_mul_u32_u24 v{t2}, s{sT5}, v{L}',
                  f'v_lshrrev_b32 v{t2}, 16, v{t2}',
                  f'v_lshl_add_u32 v{vOut}, v{L}, 4, s{sOutB}',
                  f'v_mad_u32_u24 v{vOut}, v{t2}, s{sT6}, v{vOut}',
                  f'v_add_u32 v{t}, v{L}, v{t2}',
                  f'v_lshl_add_u32 v{vTR}, v{t}, 4, s{sT3}',
                  f's_mov_b32 s{sT4}, {6 * 16 * 1280}',
                  f's_mov_b32 s{sT5}, {12 * 16 * 1280}']
        for lam in range(4):
            setup += [f's_xor_b32 s{sT0}, s{S_W}, {lam}', f's_mul_i32 s{sT0}, s{sT0}, {15 * 1024}',
                      f's_add_u32 s{sT0}, s{sT0}, {RED + (lam - 1) * 5120 if lam else RED}',
                      f'v_lshl_add_u32 v{vRW + lam - 1 if lam else vRR}, v{L}, 4, s{sT0}']

        def mf2(pi, n, nt):
            c, lam = order[pi][n]
            d = vr(G2 + 4 * (5 * lam + nt), 4)
            cin = '0' if (pi == 0 and c == 0 and lam != 0) else d
            return f'v_mfma_f32_16x16x32_bf16 {d}, {ar(4 * (5 * (4 * pi + c) + nt), 4)}, {vr(FR[pi][n], 4)}, {cin}'
        ex = [{i: [] for i in range(80)} for _ in range(3)]
        for k, x in enumerate(setup):
            ex[0][k].append(x)
        def put(pos, x):
            ex[pos // 80][pos % 80].append(x)
        if o.get('ldb', -1) >= 0:
            put(o['ldb'], poll_ld())
        cb_, cc_ = o.get('chkb', 5 * (16 - LA)), 80 + o.get('chkc', 44)
        put(cb_, [poll_chk(1), lambda: self.stamp('chkb')])
        put(o.get('sigc', 40), [sig(2, 'act5'), lambda: self.stamp('sigc')])
        put(80 + o.get('ldc', 28), poll_ld())
        put(cc_, [lambda: self.stamp('chkc0'), poll_chk(2), lambda: self.stamp(11)])
        pos = 0
        for g in range(LA, 48):
            pos = max(pos + (o.get('burst', 2) if g >= 16 else 0), o.get('g_gap', 5) * (g - LA) if g < 32 else 5 * (g - LA),
                      cb_ if g >= 16 else 0, cc_ if g >= 32 else 0)
            assert pos < 20 * (g // 4)
            put(pos, act_ld(g // 16, g % 16))
            if g < 32 and wd and 32 - g <= len(wd) + o.get('wdp_early', 0):
                put(pos + 2, wd.pop(0))
        assert not wd
        chain = o.get('chain', 1)
        for blk, lam in enumerate((3, 2, 1)):
            for nt in range(5):
                ex[2][20 * blk + 4 * nt + 12 if chain else 20 * (blk + 1) + 5 + 2 * nt].append(
                    f'ds_write_b128 v{vRW + lam - 1}, {vr(G2 + 4 * (5 * lam + nt), 4)} offset:{1024 * nt}')
        for pi in range(3):
            for i in range(80):
                if chain:
                    a(mf2(pi, 4 * (i // 20) + (i & 3), i % 20 // 4))
                else:
                    a(mf2(pi, i // 5, i % 5))
                self.stamp(f'm{80 * pi + i}')
                a(ex[pi][i])
            self.stamp('end' + 'ABC'[pi])
        a('s_waitcnt lgkmcnt(0)')
        a('s_barrier')
        self.stamp('redbar')
        RD, RR = 152, 8
        for nt in range(5):
            for s in range(3):
                a(f'ds_read_b128 {vr(RD + 12 * nt + 4 * s, 4)}, v{vRR} offset:{5120 * s + 1024 * nt}')
        sc = ' sc1' if o['out_sc1'] else ''
        for nt in range(5):
            b = RD + 12 * nt
            c = G2 + 4 * nt
            for p in range(2):
                a(f'v_pk_add_f32 {vr(c + 2 * p, 2)}, {vr(c + 2 * p, 2)}, {vr(b + 2 * p, 2)}')
                a(f'v_pk_add_f32 {vr(b + 4 + 2 * p, 2)}, {vr(b + 4 + 2 * p, 2)}, {vr(b + 8 + 2 * p, 2)}')
            for p in range(2):
                a(f'v_pk_add_f32 {vr(c + 2 * p, 2)}, {vr(c + 2 * p, 2)}, {vr(b + 4 + 2 * p, 2)}')
            for p in range(2):
                a(f'v_cvt_pk_bf16_f32 v{RR + 2 * nt + p}, v{c + 2 * p}, v{c + 2 * p + 1}')
            if nt & 1:
                a(f'ds_write_b128 v{vTW}, {vr(RR + 2 * nt - 2, 4)} offset:{64 * (nt >> 1)}')
            if nt == 4:
                a(f'ds_write_b64 v{vTW + 1}, {vr(RR + 8, 2)} offset:128')
        for k in range(3):
            a(f'ds_read_b128 {vr(RR + 12 + 4 * k, 4)}, v{vTR} offset:{6 * 176 * k}')
        a('s_mov_b32 exec_hi, 0xfffffff')
        for k in range(3):
            if k == 2:
                a('s_mov_b32 exec_hi, 0xff')
            a(f'buffer_store_dwordx4 {vr(RR + 12 + 4 * k, 4)}, v{vOut}, {sr(S_OUT, 4)}, {("0", f"s{sT4}", f"s{sT5}")[k]} offen{sc}')
        a('s_mov_b32 exec_hi, -1')
        lz = a.label('nz')
        a('s_cmp_lg_u32 s2, 0')
        a(f's_cbranch_scc1 {lz}')
        with a.untracked():
            a(f'buffer_store_dword v{BP}, off, {sr(S_DBG, 4)}, 0 sc1')
            a(f'buffer_store_dword v{BP}, off, {sr(S_DBG, 4)}, 0 offset:128 sc1')
        a(f'{lz}:')
        if self.diag:
            self.stamp('outst')
            a('s_waitcnt vmcnt(0)')
            self.stamp(12)
            a('s_waitcnt lgkmcnt(0)')
            with self.wave0():
                a(f's_lshl_b32 s{sT0}, s2, 7')
                a(f's_add_u32 s{sT0}, s{sT0}, {STAMP}')
                a(f's_sub_u32 s{S_WS}, s{S_WS}, s0')
                a(f's_subb_u32 s{S_WS + 1}, s{S_WS + 1}, 0')
                a('v_mov_b32 v0, s0')
                a(f'buffer_store_dword v0, off, {WS}, s{sT0} offset:60')
                for i in range(NSTAMP):
                    a(f'v_mov_b32 v0, s{S_STAMP + 2 * i}')
                    a(f'buffer_store_dword v0, off, {WS}, s{sT0} offset:{4 * i}')
        if self.opt.get('fixt'):
            with a.untracked():
                fs = S_STAMP + 2 * self.opt.get("fixs", 0)
                if self.opt.get('fixmax'):
                    lo, hi = {'all': (0, 256), 'conv': (0, 160), 'side': (160, 256)}[self.opt['fixmax']]
                    a(f's_cmp_lg_u32 s{S_W}, 0')
                    a('s_cbranch_scc1 .Lend')
                    a(f's_sub_u32 s{sT0}, s2, {lo}')
                    a(f's_cmp_lt_u32 s{sT0}, {hi - lo}')
                    a(f's_cselect_b32 s{sT0}, s{fs}, 0')
                    a(f'v_mov_b32 v1, s{sT0}')
                    a('s_mov_b64 exec, 1')
                    a(f'buffer_atomic_umax v1, off, {sr(S_DBG, 4)}, 0 offset:64 sc1')
                    a('s_cmp_lg_u32 s2, 0')
                    a('s_cbranch_scc1 .Lend')
                    a('.Lfix0:')
                    a(f's_memrealtime {sr(sT0, 2)}')
                    a('s_waitcnt lgkmcnt(0)')
                    a(f's_sub_u32 s{sT0}, s{sT0}, s{S_STAMP}')
                    a(f's_cmp_lt_u32 s{sT0}, 3500')
                    a('s_cbranch_scc1 .Lfix0')
                    a(f'buffer_load_dword v1, off, {sr(S_DBG, 4)}, 0 offset:64 sc1')
                    a('s_waitcnt vmcnt(0)')
                    a(f'v_readfirstlane_b32 s{sT3}, v1')
                    a('s_nop 4')
                    fs = sT3
                a(f's_cmp_lg_u32 s2, {self.opt.get("fixwg", 0)}')
                a('s_cbranch_scc1 .Lend')
                a(f's_cmp_lg_u32 s{S_W}, 0')
                a('s_cbranch_scc1 .Lend')
                a(f's_sub_u32 s{sT2}, s{fs}, s{S_STAMP + 2 * self.opt.get("fixb", 0)}')
                a(f's_mul_i32 s{sT2}, s{sT2}, 10')
                a(f's_min_u32 s{sT2}, s{sT2}, 100000')
                a(f's_add_u32 s{sT2}, s{sT2}, {self.opt["fixt"]}')
                a('.Lfix:')
                a(f's_memrealtime {sr(sT0, 2)}')
                a('s_waitcnt lgkmcnt(0)')
                a(f's_sub_u32 s{sT0}, s{sT0}, s{S_STAMP}')
                a(f's_cmp_lt_u32 s{sT0}, s{sT2}')
                a('s_cbranch_scc1 .Lfix')
        a('.Lend:')
        a('s_endpgm')

    def build(self):
        a = self.a
        if self.diag:
            for i in range(2 * NSTAMP):
                a(f's_mov_b32 s{S_STAMP + i}, 0')
        self.prologue()
        self.conv()
        self.gemms()
        self.side()
        for c in self.cold:
            a.fresh()
            a('s_nop 7')
            c()
        a('.Lcode_end:')
        a('s_endpgm')
        pads = (self.opt.get('base', 0x300), NPAD, sr(sRet, 2), '.Lend', self.opt.get('pstride', 4096)) if self.opt['pads'] else None
        body = a.finish(verbose=True, align=self.opt.get('align', 1), pads=pads)
        body += '.p2align 12\n    s_endpgm\n'
        ref = open('cdna_kernels/' + NAME + '.s.ref').read().split('\n')
        head = [l for l in ref if l.startswith(';') and '@launch' not in l and 'Override' not in l and 'grid=ceil' not in l]
        txt = '\n'.join(head) + '\n'
        txt += '; One persistent launch: kv/transposition -> Toeplitz-MFMA long conv -> gate/up GEMM + GEGLU -> down GEMM.\n'
        txt += '; @launch grid=(256,1,1) block=(256,1,1) lds=163840\n'
        txt += f'''.amdgcn_target "amdgcn-amd-amdhsa--gfx950"
.text
.globl {NAME}_kernel
.p2align 8
.type {NAME}_kernel,@function
{NAME}_kernel:
{body}.section .rodata,"a"
.p2align 6
.amdhsa_kernel {NAME}_kernel
  .amdhsa_next_free_vgpr 512
  .amdhsa_next_free_sgpr 102
  .amdhsa_accum_offset 256
  .amdhsa_group_segment_fixed_size 0
  .amdhsa_kernarg_size 104
  .amdhsa_user_sgpr_count 2
  .amdhsa_user_sgpr_kernarg_segment_ptr 1
  .amdhsa_system_sgpr_workgroup_id_x 1
  .amdhsa_float_denorm_mode_32 3
.end_amdhsa_kernel
'''
        return txt


if __name__ == '__main__':
    out = sys.argv[1]
    diag = 'diag' in sys.argv[2:]
    opt = {}
    for x in sys.argv[2:]:
        if '=' in x:
            k, v = x.split('=')
            try:
                v = int(v)
            except ValueError:
                try:
                    v = float(v)
                except ValueError:
                    pass
            opt[k] = v
    open(out, 'w').write(Gen(diag, opt).build())
```

```python
import struct
import sys
from asmlib import Asm, vr, ar, sr

NAME = 'sequential_preLN__ssm_conv_h3__geglu_ffn__prompt'

MB = 1 << 20
QS = 16384
CNT = 0
CF3 = 16384
PROBE = 32768
ST1 = 49152
CSF = 65536
STAMP = 98304
PST = 131072
W45F = PST + 262144
WDF = 2 * MB
KVX, KVXT = 4 * MB, 8 * MB
KVM = 36 * MB
XP4, XP4T = 12 * MB, 8 * MB + 524288
HP4, HP4T = 16 * MB, 9 * MB
ACT = 20 * MB
WS_END = 40 * MB
C_F1, C_F1B, C_FX, C_FW, C_FXR, C_B1, C_B2, C_FWR = [4 * i for i in range(8)]


def grp_base(g, main, tail):
    return (main + (g & 3) * 524288 + (g >> 2) * 8192) if g < 8 else tail + (g - 8) * 8192


SPIN = 100000

S_W = 3
S_K, S_V, S_SH, S_SK, S_X, S_WG, S_WU, S_WD, S_OUT, S_DBG, S_WS = 4, 8, 12, 16, 20, 24, 28, 32, 36, 40, 44
S_D = 48
sX, sJ, sG, sM, sQ, sRB, sCB, sA, sB, sRot = 50, 51, 52, 53, 54, 55, 56, 57, 58, 59
sT0, sT1, sT2, sT3, sT4, sT5, sT6, sT7 = 60, 61, 62, 63, 64, 65, 66, 67
sWoff, sWoff2, sSpin, sDv = 68, 69, 70, 71
sOne, sU0, sU1, sU2 = 72, 73, 74, 75
sXo = 1
sRet = 48
NPAD = 8
S_STAMP = 76
NSTAMP = 13
sAB = 4
sL = [8, 9, 10, 11]
sPL, sPH, sFW, sSide, sArr = 16, 17, 18, 19, 23
sE = [None, 12, 13, 14]

GSTR = 4128
GW = 4 * GSTR
UBASE = 4 * GW
USTR = 4608
TILE = 40960
WS = sr(S_WS, 4)


def f32(x):
    return '0x%08x' % struct.unpack('<I', struct.pack('<f', x))[0]


class Gen:
    def __init__(self, diag=False, opt=None):
        self.a = Asm()
        self.diag = diag
        self.opt = dict(place=1, w_kv=0, w_e1=10, apoll=9, w_u=0, tb_pre=4, tb_mid=0, ssm=0, sp=31, defer=0, wdp_from=24, a_ahead=14, sig='v', epi_rate=4.5,
                        fx_it=3, early_n=0, out_sc1=1, pads=1, wd_pre=20, wd_post=4, l2=10, wd_p1=11, chkb=20, sigc=39, ssig=4, ldc=24, chkc=38, wd_pre1=8, arr='s')
        if opt:
            self.opt.update(opt)
        self.cold = []

    PROF = {
        'main': [0, 1, 2, 3, 4, 5, 6, 7, 8, 9, 10, 11, 12],
        'front': [0, 'karg', 'issued', 1, 'kvdone', 2, 'tbpre', 'drained', 3, 'tbpost', 4, 'uload', 5],
        'e2': [0, 6, 'zbar', 7, 'hbar', 'hissued', 'hdrained', 'hbar2', 'arrived', 'wwritten', 'polled', 8, 'a0'],
        'g1': [0, 8, 'a0', 'p8', 'p16', 'p24', 'p32', 9, 't3', 't4', 't5', 10, 12],
        'g2a': [0, 't5', 10, 'm4', 'prechk1', 'chk1', 'm24', 'presig2', 'sig2', 'm44', 'm64', 'endA', 'm84'],
        'sum': [0, 'x1', 'x2', 'x3', 'x4', 'x5', 'x6', 7, 8, 'x9', 'x10', 'x11', 12],
        'side': [0, 'sx_in', 'sx_issued', 'sx_data', 'sx_bar', 'sx_st', 'sx_ld2', 'sx_dr', 1, 2, 6, 7, 8],
        'loop': [0, 4, 5, 'it1', 'it2', 'it3', 'it4', 'it5', 'it6', 'it7', 6, 7, 8],
        'g1b': [0, 9, 'q10', 'q20', 't3', 'presig0', 'sig0', 't4', 'prechk0', 'chk0', 'presig1', 'sig1', 't5'],
        'g2': [0, 't5', 10, 'chkb', 'sigc', 'endA', 'chkc0', 11, 'endB', 'endC', 'redbar', 'outst', 12],
    }

    def stamp(self, i):
        prof = self.PROF[self.opt.get('prof', 'main')]
        if self.diag and i in prof:
            i = prof.index(i)
            self.a(f'{"s_memtime" if self.opt.get("cyc") else "s_memrealtime"} {sr(S_STAMP + 2 * i, 2)}')

    def spin_atomic(self, soff, target, depth, vt):
        a = self.a
        top, done = a.label('spin'), a.label('done')
        with a.untracked():
            a(f's_mov_b32 s{sSpin}, {SPIN}')
            for d in range(depth - 1):
                a(f'v_mov_b32 v{vt + d}, 0')
                a(f'buffer_atomic_add v{vt + d}, off, {WS}, {soff} sc0 sc1')
                a(f's_sleep {self.opt.get("pslp", 3)}')
            a(f'{top}:')
            for d in range(depth):
                n = (d + depth - 1) % depth
                a(f'v_mov_b32 v{vt + n}, 0')
                a(f'buffer_atomic_add v{vt + n}, off, {WS}, {soff} sc0 sc1')
                a(f's_waitcnt vmcnt({depth - 1})')
                a(f'v_readfirstlane_b32 s{sT7}, v{vt + d}')
                a(f's_cmp_ge_u32 s{sT7}, {target}')
                a(f's_cbranch_scc1 {done}')
            a(f's_sub_u32 s{sSpin}, s{sSpin}, 1')
            a(f's_cbranch_scc0 {top}')
            a(f'{done}:')

    def spin(self, srd, soff, target, vt):
        a = self.a
        top, done = a.label('spin'), a.label('done')
        with a.untracked():
            a(f's_mov_b32 s{sSpin}, {SPIN}')
            a(f'{top}:')
            a(f'buffer_load_dword v{vt}, off, {sr(srd, 4)}, {soff} sc1')
            a('s_waitcnt vmcnt(0)')
            a(f'v_readfirstlane_b32 s{sT7}, v{vt}')
            a(f's_sub_u32 s{sSpin}, s{sSpin}, 1')
            a(f's_cbranch_scc1 {done}')
            a(f's_cmp_lt_u32 s{sT7}, {target}')
            a(f's_cbranch_scc1 {top}')
            a(f'{done}:')

    def check(self, srd, soff, target, vt, sreg=None):
        a = self.a
        slow, back = a.label('slow'), a.label('back')
        a(f'v_readfirstlane_b32 s{sT7}, v{vt}' if sreg is None else f's_mov_b32 s{sT7}, s{sreg}')
        a(f's_cmp_lt_u32 s{sT7}, {target}')
        a(f's_cbranch_scc1 {slow}')
        a(f'{back}:')

        def cold():
            a(f'{slow}:')
            self.spin(srd, soff, target, vt)
            a(f's_branch {back}')
        self.cold.append(cold)

    def get_pol(self, vt):
        a = self.a
        self.check(S_DBG, '0 offset:128', 1, vt, sU0)
        a(f's_and_b32 s0, s{sT7}, 2')
        a('s_lshl_b32 s0, s0, 20')
        a(f's_add_u32 s{S_WS}, s{S_WS}, s0')
        a(f's_addc_u32 s{S_WS + 1}, s{S_WS + 1}, 0')

    def wave0(self):
        g = self

        class W:
            def __enter__(s):
                s.l = g.a.label('nw0')
                g.a(f's_cmp_lg_u32 s{S_W}, 0')
                g.a(f's_cbranch_scc1 {s.l}')
                s.u = g.a.untracked()
                s.u.__enter__()
                g.a('s_mov_b64 exec, 1')

            def __exit__(s, *x):
                g.a('s_mov_b64 exec, -1')
                s.u.__exit__()
                g.a(f'{s.l}:')
        return W()

    def warm(self, sets):
        if not self.opt['pads']:
            return
        a = self.a
        for w, ks in enumerate(sets):
            if not ks:
                continue
            l = a.label('nw')
            a(f's_cmp_lg_u32 s{S_W}, {w + 1}')
            a(f's_cbranch_scc1 {l}')
            for k in ks:
                a(f's_call_b64 {sr(sRet, 2)}, .Lpad_{k}')
            a(f'{l}:')

    def arrive_start(self, items, pre=None):
        a = self.a
        l = a.label('noarr')
        for r, _ in items:
            a(f's_mov_b32 s{r}, 1')
        a(f's_cmp_lg_u32 s{S_W}, 0')
        a(f's_cbranch_scc1 {l}')
        with a.untracked():
            if pre:
                pre()
            for r, line in items:
                a(f's_atomic_add s{r}, {sr(S_WS, 2)}, s{sXo} offset:{line * 256} glc')
        a(f'{l}:')

    def arrive_finish(self, items, vt):
        a = self.a
        a('s_waitcnt lgkmcnt(0)')
        for r, last, rep in items:
            l = a.label('notlast')
            a(f's_cmp_lg_u32 s{r}, {last}')
            a(f's_cbranch_scc1 {l}')
            with a.untracked():
                a('s_mov_b32 exec_lo, 15')
                a('s_mov_b32 exec_hi, 15')
                a(f'v_lshlrev_b32 v{vt}, 8, v0')
                a(f's_mov_b32 s{sT7}, {rep * 256}')
                a(f'buffer_atomic_add v{self.vOne}, v{vt}, {WS}, s{sT7} offen sc1')
                a('s_mov_b64 exec, -1')
            a(f'{l}:')

    def prologue(self):
        a = self.a
        a('s_cmp_ge_u32 s2, 0x100')
        a('s_cbranch_scc1 .Lend')
        self.stamp(0)
        for srd, off in ((S_K, 8), (S_WS, 96), (S_V, 16), (S_SH, 24), (S_SK, 32), (S_X, 0), (S_WG, 56), (S_WU, 64),
                         (S_WD, 72), (S_OUT, 80), (S_DBG, 88), (S_D, 40)):
            a(f's_load_dwordx2 {sr(srd, 2)}, s[0:1], {off}')
        a('v_lshrrev_b32 v1, 6, v0')
        a(f's_and_b32 s{sX}, s2, 7')
        a(f's_lshr_b32 s{sJ}, s2, 3')
        a(f'v_readfirstlane_b32 s{S_W}, v1')
        a('v_mov_b32 v1, v0')
        a('v_and_b32 v0, 63, v0')
        for srd, n in ((S_K, 2621440), (S_V, 2621440), (S_SH, 5120), (S_SK, 4096), (S_X, 2621440), (S_WG, 1966080),
                       (S_WU, 1966080), (S_WD, 1966080), (S_OUT, 2621440), (S_DBG, 256), (S_WS, WS_END)):
            a(f's_mov_b32 s{srd + 2}, {n}')
            a(f's_mov_b32 s{srd + 3}, 0x20000')
        a(f's_and_b32 s{sM}, s{sJ}, 15')
        a(f's_mov_b32 s{sG}, s{sX}')
        a(f's_cmp_lt_u32 s{sJ}, 16')
        a.snapshot('role')
        a('s_cbranch_scc1 .Lconv')
        a(f's_lshr_b32 s{sG}, s{sX}, 2')
        a(f's_add_u32 s{sG}, s{sG}, 8')
        a(f's_and_b32 s{sT0}, s{sX}, 3')
        a(f's_lshl2_add_u32 s{sM}, s{sT0}, s{sM}')
        a(f's_cmp_lt_u32 s{sJ}, 20')
        a('s_cbranch_scc1 .Lconv')
        with a.untracked():
            a(f's_cmp_lg_u32 s2, {self.opt.get("initwg", 208)}')
            a('s_cbranch_scc1 .Lnoinit')
            a('v_lshrrev_b32 v2, 3, v1')
            a('v_and_b32 v3, 7, v0')
            a('v_lshlrev_b32 v3, 4, v3')
            a('v_lshl_add_u32 v2, v2, 8, v3')
            for i in range(4):
                a(f'v_mov_b32 v{4 + i}, 0')
            a('s_waitcnt lgkmcnt(0)')
            a.fresh()
            a(f'buffer_store_dwordx4 v[4:7], v2, {WS}, 0 offen sc1')
            for off in (0x2000, 2 * MB, 2 * MB + 0x2000):
                a(f's_mov_b32 s{sT0}, {off}')
                a(f'buffer_store_dwordx4 v[4:7], v2, {WS}, s{sT0} offen sc1')
            a('v_mov_b32 v3, 1')
            a('s_waitcnt vmcnt(0)')
            a('s_barrier')
            a(f's_cmp_lg_u32 s{S_W}, 0')
            a('s_cbranch_scc1 .Lside')
            a('s_mov_b64 exec, 1')
            a(f'buffer_store_dword v3, off, {sr(S_DBG, 4)}, 0 sc1')
            a('s_mov_b64 exec, -1')
            a('s_branch .Lside')
            a('.Lnoinit:')
            a(f's_cmp_lg_u32 s2, {self.opt.get("polwg", 216)}')
            a('s_cbranch_scc1 .Lnopol')
            a(f's_and_b32 s{sT1}, s{S_W}, 1')
            a(f's_lshl_b32 s{sT0}, s{sT1}, 13')
            a(f's_lshl_b32 s{sT2}, s{S_W}, 8')
            a(f's_add_u32 s{sT0}, s{sT0}, s{sT2}')
            a(f's_add_u32 s{sT0}, s{sT0}, {PROBE}')
            if 'fpol' in self.opt:
                a(f's_mov_b32 s{sT1}, {self.opt["fpol"]}')
            a(f's_add_u32 s{sT1}, s{sT1}, 1')
            a(f'v_mov_b32 v4, s{sT1}')
            a('v_mov_b32 v5, 0')
            a('v_lshlrev_b32 v2, 2, v0')
            a('s_waitcnt lgkmcnt(0)')
            wu = self.opt.get('pwarm', 1)
            if wu == 1:
                a(f'buffer_store_dword v5, v2, {WS}, s{sT0} offen sc1')
                a('s_waitcnt vmcnt(0)')
            a('s_mov_b64 exec, 1')
            for i in range(0 if wu == 2 else 1, 1 + self.opt.get('hops', 1)):
                if i == 1:
                    a('s_barrier')
                a(f's_mov_b32 s{sT3}, 0')
                a(f's_atomic_add s{sT3}, {sr(S_WS, 2)}, s{sT0} glc')
                a('s_waitcnt lgkmcnt(0)')
            a(f'buffer_atomic_cmpswap v[4:5], off, {sr(S_DBG, 4)}, 0 offset:128 sc1')
            a('s_mov_b64 exec, -1')
            a('s_branch .Lside')
            a('.Lnopol:')
            if self.opt.get('cpf', 1):
                a(f's_getpc_b64 {sr(sT0, 2)}')
                a('.Lpc:')
                a(f's_and_b32 s{sT2}, s{sJ}, 3')
                a(f's_lshl2_add_u32 s{sT2}, s{sT2}, s{S_W}')
                a(f's_mul_i32 s{sT2}, s{sT2}, {18 * 128}')
                a('v_min_u32 v2, 17, v0')
                a(f'v_lshl_add_u32 v2, v2, 7, s{sT2}')
                a('v_min_u32 v2, .Lcode_end-.Lpc-4, v2')
                a('v_mov_b32 v3, 0')
                a(f'v_lshl_add_u64 v[4:5], v[2:3], 0, {sr(sT0, 2)}')
                a('global_load_dword a253, v[4:5], off')
            a('s_branch .Lside')
        a('.Lconv:')
        a.fresh('role')

    def gemm_ids(self):
        a = self.a
        a.need(sr(S_WS, 2))
        a(f's_lshr_b32 s{sT0}, s{sX}, 2')
        a(f's_lshl_b32 s{sT0}, s{sT0}, 5')
        a(f's_and_b32 s{sXo}, s{sX}, 3')
        a(f's_add_u32 s{sXo}, s{sXo}, s{sT0}')
        a(f's_lshl_b32 s{sXo}, s{sXo}, 8')
        a(f's_lshr_b32 s{sRB}, s{sX}, 2')
        a(f's_lshr_b32 s{sT0}, s{sJ}, 2')
        a(f's_lshl3_add_u32 s{sRB}, s{sRB}, s{sT0}')
        a(f's_and_b32 s{sRot}, s{sX}, 3')
        a(f's_and_b32 s{sT0}, s{sJ}, 3')
        a(f's_lshl2_add_u32 s{sCB}, s{sRot}, s{sT0}')
        a(f's_and_b32 s{sT0}, s{sCB}, 1')
        a(f's_mul_i32 s{sA}, s{sCB}, 6')
        a(f's_add_u32 s{sB}, s{sA}, 4')
        a(f's_lshl1_add_u32 s{sA}, s{sT0}, s{sA}')
        a(f's_lshl_b32 s{sT1}, s{sT0}, 2')
        a(f's_sub_u32 s{sB}, s{sB}, s{sT1}')

    vWL, vWLb, vW45, vTmp, vTmp2, vOne, vPS = 254, 253, 252, 250, 249, 248, 251
    WRAW = [8, 40, 72, 104, 136]
    vWW = 236
    PT = 200

    def real_line(self, r, tmp):
        a = self.a
        if not self.opt.get('swz', 1):
            return
        a(f's_sub_u32 s{tmp}, s{r}, 3')
        a(f's_cmp_lt_u32 s{tmp}, 2')
        a(f's_cselect_b32 s{tmp}, 7, 0')
        a(f's_xor_b32 s{r}, s{r}, s{tmp}')
        a(f's_sub_u32 s{tmp}, s{r}, 10')
        a(f's_cmp_lt_u32 s{tmp}, 2')
        a(f's_cselect_b32 s{tmp}, 1, 0')
        a(f's_xor_b32 s{r}, s{r}, s{tmp}')

    def w_addr(self):
        a = self.a
        t = self.vTmp
        a(f's_lshr_b32 s{sT1}, s{sA}, 2')
        self.real_line(sT1, sT0)
        a(f's_lshl_b32 s{sT1}, s{sT1}, 7')
        a(f'v_and_b32 v{t}, 7, v0')
        a(f'v_lshl_add_u32 v{self.vWLb}, v{t}, 4, s{sT1}')
        a(f's_lshr_b32 s{sT0}, s{S_W}, 1')
        a(f's_lshl_b32 s{sT0}, s{sT0}, 6')
        a(f's_mul_i32 s{sWoff}, s{sRot}, 160')
        a(f's_add_u32 s{sWoff}, s{sWoff}, s{sT0}')
        a(f's_mul_i32 s{sT0}, s{sCB}, {80 * 1024}')
        a(f's_add_u32 s{sT0}, s{sT0}, {W45F}')
        a(f'v_lshl_add_u32 v{self.vW45}, v0, 4, s{sT0}')
        a(f's_mul_i32 s{sWoff2}, s{sRot}, 10')
        a(f's_add_u32 s{sWoff2}, s{sWoff2}, s{S_W}')
        a(f's_lshl_b32 s{sWoff2}, s{sWoff2}, 10')
        a(f'v_mov_b32 v{self.vOne}, 1')
        a(f's_and_b32 s{sT0}, s{sRB}, 7')
        a(f's_lshr_b32 s{sT1}, s{S_W}, 1')
        a(f's_lshl1_add_u32 s{sT0}, s{sT0}, s{sT1}')
        a(f's_lshr_b32 s{sT1}, s{sRB}, 3')
        a(f's_lshl1_add_u32 s{sT0}, s{sT0}, s{sT1}')
        a(f's_and_b32 s{sT1}, s{S_W}, 1')
        a(f's_lshl1_add_u32 s{sT0}, s{sT0}, s{sT1}')
        a(f's_lshl_b32 s{sT0}, s{sT0}, 12')
        a(f'v_and_b32 v{t}, 31, v0')
        a(f'v_lshl_add_u32 v{self.vPS}, v{t}, 3, s{sT0}')
        a(f'v_lshrrev_b32 v{t}, 5, v0')
        a(f'v_lshl_add_u32 v{self.vPS}, v{t}, 11, v{self.vPS}')

    def w_select(self):
        a = self.a
        a(f's_bitcmp1_b32 s{S_W}, 0')
        a(f's_cselect_b32 s{S_WG}, s{S_WU}, s{S_WG}')
        a(f's_cselect_b32 s{S_WG + 1}, s{S_WU + 1}, s{S_WG + 1}')
        for i in range(1, 4):
            a(f's_movk_i32 s{sE[i]}, {6144 * i}')
        a(f's_movk_i32 s15, 3072')

    def clear_pst(self, v2):
        return [f'v_mov_b32 v{v2}, -1', f'v_mov_b32 v{v2 + 1}, -1',
                f's_lshl_b32 s{sU0}, s{sCB}, 8', f's_add_u32 s{sU0}, s{sU0}, {PST}',
                ['s_mov_b32 exec_hi, 0',
                 f'buffer_store_dwordx2 {vr(v2, 2)}, v{self.vPS}, {WS}, s{sU0} offen sc1',
                 's_mov_b32 exec_hi, -1']]

    def w_loads_main(self, park=False):
        out = []
        t, t2 = self.vTmp, self.vTmp2
        for b in range(5):
            for e in range(8):
                g = []
                if e == 0:
                    g = [f'v_and_b32 v{t}, 56, v0', f'v_add_u32 v{t}, s{sWoff}, v{t}', f'v_subrev_u32 v{t2}, 640, v{t}',
                         f'v_min_u32 v{t}, v{t}, v{t2}', f'v_mad_u32_u24 v{self.vWL}, v{t}, s15, v{self.vWLb}',
                         f's_add_u32 s{sWoff}, s{sWoff}, 128']
                so = f's{sE[e >> 1]}' if e >> 1 else '0'
                dst = ar(208 + 4 * e, 4) if park and b == 4 else vr(self.WRAW[b] + 4 * e, 4)
                g.append(f'buffer_load_dwordx4 {dst}, v{self.vWL}, {sr(S_WG, 4)}, {so} offen offset:{3072 * (e & 1)}')
                out.append(g)
        return out

    def w_loads_tail(self):
        out = []
        for i in range(20):
            if i & 1:
                g = [f's_add_u32 s{sU1}, s{sWoff2}, {TILE}',
                     f'buffer_load_dwordx4 {ar(160 + 4 * i, 4)}, v{self.vW45}, {WS}, s{sU1} offen sc1']
            else:
                g = []
                if i:
                    g = [f's_add_u32 s{sWoff2}, s{sWoff2}, 4096',
                         [f's_sub_u32 s{sU1}, s{sWoff2}, {TILE}', f's_cselect_b32 s{sWoff2}, s{sWoff2}, s{sU1}']]
                g.append(f'buffer_load_dwordx4 {ar(160 + 4 * i, 4)}, v{self.vW45}, {WS}, s{sWoff2} offen sc1')
            out.append(g)
        return out

    def w_write_addr(self):
        a = self.a
        t, t2 = self.vTmp, self.vTmp2
        a(f's_lshr_b32 s{sT0}, s{S_W}, 1')
        a(f's_lshl_b32 s{sT0}, s{sT0}, 12')
        a(f's_and_b32 s{sT1}, s{S_W}, 1')
        a(f's_lshl_b32 s{sT1}, s{sT1}, 7')
        a(f's_add_u32 s{sT0}, s{sT0}, s{sT1}')
        a(f'v_lshrrev_b32 v{t}, 3, v0')
        a(f'v_lshl_add_u32 v{t}, v{t}, 9, s{sT0}')
        a(f'v_and_b32 v{t2}, 1, v0')
        a(f'v_lshl_add_u32 v{t}, v{t2}, 6, v{t}')
        a(f'v_bfe_u32 v{t2}, v0, 1, 2')
        a(f's_mov_b32 s{sT0}, {TILE + 16}')
        a(f'v_mad_u32_u24 v{self.vWW}, v{t2}, s{sT0}, v{t}')
        for q in range(1, 4):
            a(f'v_xor_b32 v{self.vWW + q}, {16 * q}, v{self.vWW}')
        a(f's_mov_b32 s{sPL}, 0x05040100')
        a(f's_mov_b32 s{sPH}, 0x07060302')

    def w_writes_main(self):
        out = []
        for b in range(5):
            for c8 in range(8):
                p = self.PT + 4 * (c8 & 3) if b < 5 - self.opt.get('defer', 2) else (228 if c8 & 1 else 242)
                r = self.WRAW[b] + (c8 >> 1)
                g = [f'v_perm_b32 v{p + d}, v{r + 8 * d + 4}, v{r + 8 * d}, s{sPH if c8 & 1 else sPL}' for d in range(4)]
                g.append(f'ds_write_b128 v{self.vWW + (c8 & 3)}, {vr(p, 4)} offset:{b * 8192 + (c8 >> 2) * 256}')
                out.append(g)
        return out

    def conv(self):
        a = self.a
        o = self.opt
        vK, vKh, vC, vR, vSHa, vL16 = 1, 2, 3, 4, 5, 6
        SH = 8
        KR = 16
        VR = 38
        WF = 56
        KF = 72
        O = 120
        SK = 136
        KV = 168
        VF = 200
        vSW, vSR, vKS, vG, vBa, vAa, vZR, vZR2, vUL, vUW, vI7, vGZ, vXS, vHS, vFl, vPrev = range(232, 248)
        ZERO, AD = 224, 240
        vAa2 = vZR2
        kvmix = 0
        a(f's_lshl4_add_u32 s{sQ}, s{sG}, s{sM}')
        a(f'v_and_b32 v{vC}, 15, v0')
        a(f'v_lshrrev_b32 v{vR}, 4, v0')
        a(f's_lshl2_add_u32 s{sT0}, s{sM}, s{S_W}')
        a(f's_mul_i32 s{sT0}, s{sT0}, {32 * 1280}')
        a(f's_lshl_b32 s{sT1}, s{sG}, 7')
        a(f's_add_u32 s{sT0}, s{sT0}, s{sT1}')
        a(f's_movk_i32 s{sT2}, {8 * 1280}')
        a(f'v_lshl_add_u32 v{vK}, v{vC}, 3, s{sT0}')
        a(f'v_mad_u32_u24 v{vK}, v{vR}, s{sT2}, v{vK}')
        a(f'v_subrev_u32 v{vKh}, 3840, v{vK}')
        a(f's_lshl_b32 s{sT1}, s{sG}, 9')
        a(f'v_lshl_add_u32 v{vSHa}, v{vC}, 5, s{sT1}')
        a(f's_movk_i32 s{sT3}, 5120')
        a(f'v_lshlrev_b32 v{vL16}, 4, v0')

        def addr_phase_a():
            a(f'v_subrev_u32 v{vPrev}, 8, v{vL16}')
            a(f's_mul_i32 s{sT0}, s{S_W}, {USTR}')
            a(f's_add_u32 s{sT0}, s{sT0}, {UBASE}')
            a(f's_movk_i32 s{sT1}, 272')
            a(f'v_lshl_add_u32 v{vSW}, v{vR}, 4, s{sT0}')
            a(f'v_mad_u32_u24 v{vSW}, v{vC}, s{sT1}, v{vSW}')
            a(f'v_lshl_add_u32 v{vSR}, v{vC}, 4, s{sT0}')
            a(f'v_mad_u32_u24 v{vSR}, v{vR}, s{sT1}, v{vSR}')
            a(f'v_add_u32 v{vUW}, s{sT0}, v{vL16}')
            a(f's_add_u32 s{sT0}, s{sT0}, 32')
            a(f'v_lshl_add_u32 v{vBa}, v{vC}, 5, s{sT0}')
            a(f'v_lshl_add_u32 v{vBa}, v{vR}, 4, v{vBa}')
            a(f's_and_b32 s{sT0}, s{sG}, 3')
            a(f's_lshl_b32 s{sT0}, s{sT0}, 19')
            a(f's_cmp_lt_u32 s{sG}, 8')
            a(f's_cselect_b32 s{sT4}, s{sT0}, {KVXT - KVX}')
            a(f's_lshr_b32 s{sT0}, s{sX}, 2')
            a(f's_lshl_b32 s{sT0}, s{sT0}, 13')
            a(f's_add_u32 s{sT4}, s{sT4}, s{sT0}')
            a(f's_and_b32 s{sT0}, s{sM}, 8')
            a(f's_add_u32 s{sT0}, s{sT0}, s{sM}')
            a(f's_lshl2_add_u32 s{sT1}, s{sT0}, s{S_W}')
            a(f's_lshl_b32 s{sT1}, s{sT1}, 8')
            a(f's_add_u32 s{sT0}, s{sT4}, s{sT1}')
            a(f's_mov_b32 s{sT1}, {2 * QS}')
            if kvmix:
                a(f's_lshl2_add_u32 s{sT1}, s{sM}, s{S_W}')
                a(f's_lshl_b32 s{sT1}, s{sT1}, 8')
                a(f's_lshl_b32 s{sT0}, s{sG}, 18')
                a(f's_add_u32 s{sT0}, s{sT0}, s{sT1}')
                a(f's_mov_b32 s{sT1}, {QS}')
            a(f'v_lshl_add_u32 v{vKS}, v{vC}, 4, s{sT0}')
            a(f'v_mad_u32_u24 v{vKS}, v{vR}, s{sT1}, v{vKS}')

        def addr_rest():
            self.gemm_ids()
            self.w_addr()
            a(f's_mul_i32 s{sT5}, s{S_W}, {GW}')
            a(f'v_add_u32 v{vG}, s{sT5}, v{vL16}')
            a(f'v_bfe_u32 v{vAa}, v0, 2, 2')
            a(f'v_sub_u32 v{vAa}, v{vAa}, v{vR}')
            a(f'v_sub_u32 v{vAa}, v{vAa}, v{vR}')
            a(f's_add_u32 s{sT0}, s{sT5}, 56')
            a(f'v_lshl_add_u32 v{vAa}, v{vAa}, 3, s{sT0}')
            a(f'v_and_b32 v{vI7}, 3, v0')
            a(f's_movk_i32 s{sT1}, {GSTR}')
            a(f'v_mad_u32_u24 v{vAa}, v{vI7}, s{sT1}, v{vAa}')
            a(f'v_add_u32 v{vAa2}, 0x800, v{vAa}')
            a(f'v_and_b32 v{vGZ}, 16, v0')
            a(f'v_add_u32 v{vGZ}, s{sT5}, v{vGZ}')
            a(f'v_mad_u32_u24 v{vGZ}, v{vI7}, s{sT1}, v{vGZ}')
            a(f'v_and_b32 v{vI7}, 7, v0')
            a(f's_lshl_b32 s{sT6}, s{sM}, 15')
            a(f's_add_u32 s{sT6}, s{sT6}, s{sT4}')
            a(f's_lshl_b32 s{sT1}, s{S_W}, 6')
            a(f's_add_u32 s{sT0}, s{sT6}, s{sT1}')
            if kvmix:
                a(f's_lshl_b32 s{sT0}, s{sQ}, 14')
                a(f's_add_u32 s{sT0}, s{sT0}, s{sT1}')
            a(f'v_and_b32 v{vUL}, 3, v0')
            a(f'v_lshl_add_u32 v{vUL}, v{vUL}, 4, s{sT0}')
            a(f'v_lshrrev_b32 v{vXS}, 2, v0')
            a(f'v_lshl_add_u32 v{vUL}, v{vXS}, 8, v{vUL}')
            a(f's_lshl_b32 s{sT0}, s{S_W}, 12')
            a(f'v_add_u32 v{vXS}, s{sT0}, v{vL16}')
            a(f's_lshl_b32 s{sT1}, s{sQ}, 14')
            a(f's_add_u32 s{sT0}, s{sT0}, s{sT1}')
            a(f's_mov_b32 s{sT1}, {HP4}')
            a(f's_cmp_lt_u32 s{sQ}, 120')
            a(f's_cselect_b32 s{sT1}, s{sT1}, {HP4T - 120 * QS}')
            a(f's_add_u32 s{sT0}, s{sT0}, s{sT1}')
            a(f'v_add_u32 v{vHS}, s{sT0}, v{vL16}')
            a(f's_lshl_b32 s{sT0}, s{S_W}, 11')
            a(f'v_add_u32 v{vZR}, s{sT0}, v{vL16}')
            for i in range(4):
                a(f'v_mov_b32 v{ZERO + i}, 0')
        if o.get('addr_early', 0) >= 1:
            addr_phase_a()
        if o.get('addr_early', 0) >= 2:
            addr_rest()
        a.need(sr(S_WS, 2))
        self.stamp('karg')
        a(f'buffer_load_dwordx4 {vr(SH, 4)}, v{vSHa}, {sr(S_SH, 4)}, 0 offen')
        a(f'buffer_load_dwordx4 {vr(SH + 4, 4)}, v{vSHa}, {sr(S_SH, 4)}, 0 offen offset:16')
        for r in range(3):
            a(f'buffer_load_dwordx2 {vr(KR + 2 * r, 2)}, v{vKh}, {sr(S_K, 4)}, 0 offen offset:{r * 1280}')
        for r in range(8):
            so = f's{sT3}' if r >= 4 else '0'
            a(f'buffer_load_dwordx2 {vr(KR + 6 + 2 * r, 2)}, v{vK}, {sr(S_K, 4)}, {so} offen offset:{(r & 3) * 1280}')
            a(f'buffer_load_dwordx2 {vr(VR + 2 * r, 2)}, v{vK}, {sr(S_V, 4)}, {so} offen offset:{(r & 3) * 1280}')
        self.stamp('issued')
        if o.get('tlb'):
            a(f'v_lshlrev_b32 v228, {o["tlb"]}, v0')
            a(f'buffer_load_dword v229, v228, {WS}, 0 offen sc1')
            a(f'buffer_load_dword v228, v228, {sr(S_OUT, 4)}, 0 offen sc1')
        if o.get('addr_early', 0) < 1:
            addr_phase_a()
        if o.get('addr_early', 0) < 2:
            addr_rest()
        a(f's_lshl2_add_u32 s{sT0}, s{sQ}, s{S_W}')
        a(f's_lshl_b32 s{sT1}, s{sT0}, 12')
        a(f's_add_u32 s{S_SK}, s{S_SK}, s{sT1}')
        a(f's_addc_u32 s{S_SK + 1}, s{S_SK + 1}, 0')
        a(f's_lshl_b32 s{sT0}, s{sT0}, 1')
        a(f's_and_b32 s{sT0}, s{sT0}, -4')
        a(f's_load_dword s{sDv}, {sr(S_D, 2)}, s{sT0}')
        ssm = []
        for j in range(4):
            ssm.append(f'buffer_load_dwordx4 {vr(SK + 8 * j + 4, 4)}, v{vL16}, {sr(S_SK, 4)}, 0 offen offset:{1024 * j}')
            if j == 0:
                ssm.append(f'buffer_load_dwordx2 {vr(SK + 2, 2)}, v{vPrev}, {sr(S_SK, 4)}, 0 offen')
            else:
                ssm.append(f'buffer_load_dwordx2 {vr(SK + 8 * j + 2, 2)}, v{vL16}, {sr(S_SK, 4)}, 0 offen offset:{1024 * j - 8}')
        if o.get('ssm', 1) == 0:
            a(ssm)
        self.w_select()
        self.warm([[0], [1], []])
        park = o.get('park', 1)
        wl = self.w_loads_main(park)

        def w_some(n):
            for _ in range(n):
                a(wl.pop(0))
        a(f's_mov_b32 s{sT2}, 0xffff0000')
        for ch in range(4):
            for j in range(4):
                src = SH + 2 * ch + (j >> 1)
                if j & 1:
                    a(f'v_and_b32 v{WF + 4 * j + ch}, s{sT2}, v{src}')
                else:
                    a(f'v_lshlrev_b32 v{WF + 4 * j + ch}, 16, v{src}')

        def unpack(dst, src):
            a(f'v_lshlrev_b32 v{dst}, 16, v{src}')
            a(f'v_and_b32 v{dst + 1}, s{sT2}, v{src}')
            a(f'v_lshlrev_b32 v{dst + 2}, 16, v{src + 1}')
            a(f'v_and_b32 v{dst + 3}, s{sT2}, v{src + 1}')
        for r in range(3):
            unpack(KF + 4 * r, KR + 2 * r)
        self.stamp(1)
        for r in range(8):
            unpack(KF + 4 * (r + 3), KR + 2 * (r + 3))
            vf = VF + 4 * (r & 1)
            for j in (3, 2, 1, 0):
                for p in range(2):
                    d = vr(KV + 4 * r + 2 * p, 2)
                    k = vr(KF + 4 * (r + 3 - j) + 2 * p, 2)
                    w = vr(WF + 4 * j + 2 * p, 2)
                    if j == 3:
                        a(f'v_pk_mul_f32 {d}, {k}, {w}')
                    else:
                        a(f'v_pk_fma_f32 {d}, {k}, {w}, {d}')
                if j == 3:
                    unpack(vf, VR + 2 * r)
            for p in range(2):
                d = vr(KV + 4 * r + 2 * p, 2)
                a(f'v_pk_mul_f32 {d}, {d}, {vr(vf + 2 * p, 2)}')
            if r == o.get('pol_r', 4):
                a(f's_load_dword s{sU0}, {sr(S_DBG, 2)}, 0x80')
            if o.get('ssm', 1) == 1 and r >= o.get('ssm_r', 7):
                for _ in range((len(ssm) + 7 - r) // (8 - r)):
                    a(ssm.pop(0))
            if r & 1:
                d = (7 - r) >> 1
                for ch in range(4):
                    a(f'v_cvt_pk_bf16_f32 v{O + 4 * ch + d}, v{KV + 4 * r + ch}, v{KV + 4 * (r - 1) + ch}')
        self.stamp('kvdone')
        if o.get('pol_r', 4) == 8:
            a(f's_load_dword s{sU0}, {sr(S_DBG, 2)}, 0x80')
        for ch in range(4):
            a(f'ds_write_b128 v{vSW}, {vr(O + 4 * ch, 4)} offset:{ch * 64}')
        for j in range(4):
            a(f'ds_read_b128 {vr(KV + 4 * j, 4)}, v{vSR} offset:{j * 1088}')
        assert not kvmix
        self.get_pol(vFl)
        a(f'buffer_load_dword v{vFl}, off, {sr(S_DBG, 4)}, 0 sc1')
        a(f's_mov_b32 s{sT0}, {KVM if kvmix else KVX}')
        for j in range(4):
            a(f'buffer_store_dwordx4 {vr(KV + 4 * j, 4)}, v{vKS}, {WS}, s{sT0} offen sc1')
            if j < 3:
                a(f's_add_u32 s{sT0}, s{sT0}, {4 * QS if kvmix else 8 * QS}')
        self.stamp(2)
        if kvmix and o.get('pol_l', 0) == 0:
            a(f'buffer_load_dword v{vFl}, off, {sr(S_DBG, 4)}, 0 sc1')
        if o.get('ssm', 1) == 2:
            a(ssm)
        a(f'ds_write_b128 v{vUW}, {vr(ZERO, 4)}')
        a(f'ds_write_b128 v{vGZ}, {vr(ZERO, 4)}')

        def table(j):
            D = SK + 8 * j
            Ea, Eb, Db = 184 + 12 * (j & 1), 184 + 12 * (j & 1) + 4, 184 + 12 * (j & 1) + 8

            def wr(rho, reg):
                a(f'ds_write_b128 v{vG}, {vr(reg, 4)} offset:{rho * GSTR + 1024 * j + 32}')
            wr(3, D + 4)
            for i in range(2):
                a(f'v_pk_mov_b32 {vr(Db + 2 * i, 2)}, {vr(D + 2 + 2 * i, 2)}, {vr(D + 4 + 2 * i, 2)} op_sel:[1,0]')
            for i in range(4):
                a(f'v_alignbit_b32 v{Ea + i}, v{D + 3 + i}, v{D + 2 + i}, 16')
            wr(1, Db)
            wr(0, Ea)
            for i in range(4):
                a(f'v_alignbit_b32 v{Eb + i}, v{D + 4 + i}, v{D + 3 + i}, 16')
            wr(2, Eb)
        w_some(o['w_kv'])
        n1, n2 = o['tb_pre'], o['tb_pre'] + o['tb_mid']
        for j in range(n1):
            table(j)
            if kvmix and o.get('pol_l', 0) == j + 1:
                a(f'buffer_load_dword v{vFl}, off, {sr(S_DBG, 4)}, 0 sc1')
        a.need(f's{sDv}')
        a(f's_and_b32 s{sT1}, s{S_W}, 1')
        a(f's_lshl_b32 s{sT1}, s{sT1}, 4')
        a(f's_lshr_b32 s{sDv}, s{sDv}, s{sT1}')
        a(f's_and_b32 s{sDv}, s{sDv}, 0xffff')
        a(f'v_sub_u32 v5, 7, v{vI7}')
        a(f'v_and_b32 v7, 1, v5')
        a(f'v_lshlrev_b32 v7, 4, v7')
        a(f'v_lshlrev_b32 v7, v7, s{sDv}')
        a(f'v_bfe_u32 v1, v0, 3, 1')
        a(f'v_add_u32 v1, 2, v1')
        a(f'v_cmp_eq_u32 vcc, v1, v{vR}')
        a(f'v_cndmask_b32 v7, 0, v7, vcc')
        a(f'v_lshrrev_b32 v5, 1, v5')
        for d in range(4):
            a(f'v_cmp_eq_u32 vcc, {d}, v5')
            a(f'v_cndmask_b32 v1, 0, v7, vcc')
            a(f'v_accvgpr_write_b32 a{AD + d}, v1')
        self.stamp('tbpre')
        a.drain_stores()
        if kvmix:
            self.get_pol(vFl)
        self.stamp('drained')
        a('s_barrier')
        self.stamp(3)
        a(f's_and_b32 s{sT0}, s{sXo}, 0x2000')
        a(f's_add_u32 s{sT0}, s{sT0}, {C_F1B * 256}')
        a(f's_cmp_lt_u32 s{sG}, 8')
        a(f's_cselect_b32 s{sT0}, s{sXo}, s{sT0}')
        with self.wave0():
            self.check(S_DBG, '0', 1, vFl)
            if o.get('apoll') == 9:
                a(f's_mov_b32 s{sU2}, 1')
                a(f's_atomic_add s{sU2}, {sr(S_WS, 2)}, s{sT0} glc')
            else:
                a(f'buffer_atomic_add v{self.vOne}, off, {WS}, s{sT0} sc1')
        w_some(o['w_e1'])
        for j in range(n1, n2):
            table(j)
        ACC = 128
        BUF = (0, 64)
        XR, SR, XF = 136, 152, 168

        def rdA(it, t):
            o0 = 8 * it + 64 * (t & 3)
            return f'ds_read2_b64 {ar(BUF[it & 1] + 4 * t, 4)}, v{vAa2 if t & 4 else vAa} offset0:{o0} offset1:{o0 + 1}'

        def rdB(it, t):
            return f'ds_read_b128 {ar(BUF[it & 1] + 32 + 4 * t, 4)}, v{vBa} offset:{448 - 64 * it + 512 * t}'
        if n2 == 4:
            for t in range(8):
                a(rdA(0, t))
        self.stamp('tbpost')
        self.warm([[2], [], []])
        with self.wave0():
            if o.get('apoll') == 9:
                top, done = a.label('spin'), a.label('done')
                a(f's_mov_b32 s{sSpin}, {SPIN}')
                a('s_waitcnt lgkmcnt(0)')
                a(f's_cmp_ge_u32 s{sU2}, 15')
                a(f's_cbranch_scc1 {done}')
                a(f'{top}:')
                a(f's_mov_b32 s{sU2}, 0')
                a(f's_atomic_add s{sU2}, {sr(S_WS, 2)}, s{sT0} glc')
                a(f's_sub_u32 s{sSpin}, s{sSpin}, 1')
                a(f's_cbranch_scc1 {done}')
                a('s_waitcnt lgkmcnt(0)')
                a(f's_cmp_lt_u32 s{sU2}, 16')
                a(f's_cbranch_scc1 {top}')
                a(f'{done}:')
                a('s_waitcnt lgkmcnt(0)')
            elif o.get('apoll'):
                self.spin_atomic(f's{sT0}', 16, o['apoll'], 1)
            else:
                self.spin(S_WS, f's{sT0}', 0 if o.get('noe1') else 16, vFl)
        a('s_barrier')
        self.stamp(4)
        a(f's_sub_u32 s{sT0}, {KVM}, s0' if kvmix else f's_mov_b32 s{sT0}, {KVX}')
        for j in range(4):
            a(f'buffer_load_dwordx4 {ar(BUF[1] + 4 * j, 4)}, v{vUL}, {WS}, s{sT0} offen sc1')
            if j < 3:
                a(f's_add_u32 s{sT0}, s{sT0}, {12288 if j == 1 and not kvmix else 4096}')
        w_some(o['w_u'])
        for j in range(n2, 4):
            table(j)
        if n2 < 4:
            for t in range(8):
                a(rdA(0, t))
        a(f's_add_u32 s{sT3}, s{sXo}, {C_FXR * 256}')
        a(f's_mov_b32 s{sT4}, {XP4}')
        a(f's_cmp_lt_u32 s{sG}, 8')
        a(f's_cselect_b32 s{sT4}, s{sT4}, {XP4T - (KVXT - KVX)}')
        a(f's_add_u32 s{sT6}, s{sT6}, s{sT4}')
        a(f's_lshr_b32 s{sT4}, s{S_W}, 1')
        a(f's_lshl_b32 s{sT4}, s{sT4}, 13')
        a(f's_add_u32 s{sT6}, s{sT6}, s{sT4}')
        a(f's_mov_b32 s{sT4}, {ST1}')
        for j in range(4):
            a(f'ds_write_b128 v{vUW}, {ar(BUF[1] + 4 * j, 4)} offset:{512 + 1024 * j}')
            if j == 0:
                self.stamp('uload')
            a(rdB(0, 2 * j))
            a(rdB(0, 2 * j + 1))
        self.stamp(5)
        fx = o['fx_it']
        xl = []
        for T in range(2):
            for p in range(2):
                off = 2048 * T + 1024 * p
                xl.append([f'buffer_load_dwordx4 {vr(XR + 8 * T + 4 * p, 4)}, v{vXS}, {WS}, s{sT6} offen offset:{off} sc1'])
                xl.append([f'buffer_load_dwordx4 {vr(SR + 8 * T + 4 * p, 4)}, v{vXS}, {WS}, s{sT4} offen offset:{off} sc1'])
        if o.get('nowl'):
            wl = [g[:-1] + [[]] for g in wl]
        wt = self.w_loads_tail()
        if park:
            early, late = wl, xl + wt[:12]
            self.win_pre = [f'v_accvgpr_read_b32 v{self.WRAW[4] + i}, a{208 + i}' for i in range(32)]
            self.win_loads = wt[12:]
        else:
            early, late = wl[:-8], xl + wt
            self.win_pre = wl[-8][:-1]
            self.win_loads = [wl[-8][-1]] + wl[-7:]
        tot = len(early) + len(late)
        per = [(tot * (i + 1)) // 8 - (tot * i) // 8 for i in range(8)]
        plan = []
        for it in range(8):
            n = per[it]
            if it <= fx + 1:
                n = min(max(n, o.get('early_n', 0)), len(early))
                plan.append([early.pop(0) for _ in range(n)])
            else:
                rest = late[:8] + early + late[8:] if it == fx + 2 else rest
                early = late = []
                n = (len(rest) + 7 - it) // (8 - it)
                plan.append([rest.pop(0) for _ in range(n)])
        for it in range(8):
            A, B = BUF[it & 1], BUF[it & 1] + 32
            mf = []
            endT = []
            for T in range(8):
                c = ar(ACC + 4 * T, 4)
                if it == 0:
                    mf.append(f'v_mfma_f32_16x16x32_bf16 {c}, {ar(AD, 4)}, {ar(B + 4 * T, 4)}, 0')
                for t in range(T + 1):
                    mf.append(f'v_mfma_f32_16x16x32_bf16 {c}, {ar(A + 4 * t, 4)}, {ar(B + 4 * (T - t), 4)}, {c}')
                endT.append(len(mf) - 1)
            fill = [[] for _ in mf]
            base = 8 if it == 0 else 0
            if it < 7:
                rd = [x for t in range(8) for x in (rdA(it + 1, t), rdB(it + 1, t))]
                for i, x in enumerate(rd):
                    fill[base + 2 * i].append(x)
            zw = [f'ds_write_b128 v{vG}, {ar(ACC + 4 * T, 4)} offset:{1024 * T}' for T in range(8)]
            if it == 7:
                for T in range(o.get('z_in', 7)):
                    fill[max(endT[T] + 5, 6 + 4 * T)].append(zw.pop(0))
            n = len(plan[it])
            pos = base
            for i, g in enumerate(plan[it]):
                p = max(base + ((i + 1) * 35) // n, pos)
                k = len(g) - 1
                for z, x in enumerate(g[:-1]):
                    fill[max(pos, p - (k - z + 1) // 2)].append(x)
                fill[p].append(g[-1])
                pos = p
            if it == 0:
                for i, x in enumerate(self.clear_pst(228)):
                    fill[i].append(x)
            spx = o['sp'] >> 3 & 1
            if it == fx and not spx:
                fill[-1].append(f'buffer_load_dword v{vFl}, off, {WS}, s{sT3} sc1')
            if it == fx + 1 and spx:
                fill[o.get('fx_p', 0)].append(f's_load_dword s{sDv}, {sr(S_WS, 2)}, s{sT3}')
            if it == fx + 1:
                fill[-1].append(lambda: self.check(S_WS, f's{sT3}', 0 if o.get('nofx') else 8, vFl, sDv if spx else None))
            if it == 7:
                fill[0].append(f's_add_u32 s{sFW}, s{sT3}, {(C_FWR - C_FXR) * 256}')

            if it == 0:
                unp = []
                for T in range(2):
                    for row in range(4):
                        src = XR + 8 * T + 2 * row
                        xf = XF + 16 * T + 4 * row
                        st = SR + 8 * T + 2 * row
                        unp += [f'v_lshlrev_b32 v{xf}, 16, v{src}', f'v_and_b32 v{xf + 1}, s{sT2}, v{src}',
                                f'v_lshlrev_b32 v{xf + 2}, 16, v{src + 1}', f'v_and_b32 v{xf + 3}, s{sT2}, v{src + 1}']
                        unp += [f'v_fma_f32 v{xf + 32 + c}, v{xf + c}, v{st}, v{st + 1}' for c in range(4)]
            u0 = o.get('unp_at', 36 * 6 + 14)
            for i, x in enumerate(unp):
                p = u0 + (i * (36 * 8 - u0)) // 64
                if p // 36 == it:
                    fill[p % 36].append(x)
            self.stamp(f'it{it}')
            if it > 0:
                a.need(ar(A, 24 if it < 7 else 32), ar(B, 24))
            for m, f in zip(mf, fill):
                a(m)
                a(f)
        self.stamp(6)
        a(zw)
        a('s_waitcnt lgkmcnt(0)')
        a('s_barrier')
        self.stamp('zbar')
        Z = XR
        for T in range(2):
            for ch in range(4):
                a(f'ds_read_b128 {vr(Z + 16 * T + 4 * ch, 4)}, v{vZR} offset:{ch * GW + 1024 * T}')
        for T in range(2):
            for p in range(2):
                ho = XF + 32 + 16 * T + 8 * p
                for b in range(2):
                    row = 2 * p + b
                    for c in range(4):
                        x = XF + 16 * T + 4 * row + c
                        a(f'v_fmac_f32 v{x}, v{x + 32}, v{Z + 16 * T + 4 * c + row}')
                    for c2 in range(2):
                        x = XF + 16 * T + 4 * row + 2 * c2
                        a(f'v_cvt_pk_bf16_f32 v{ho + 2 * b + c2}, v{x}, v{x + 1}')
                a(f'buffer_store_dwordx4 {vr(ho, 4)}, v{vHS}, {WS}, 0 offen offset:{2048 * T + 1024 * p} sc1')
        self.stamp(7)

    def side(self):
        a = self.a
        a('.Lside:')
        a.fresh('role')
        self.stamp('sx_in')
        vTid = 1
        a(f's_sub_u32 s{sG}, s{sJ}, 20')
        a(f's_lshl3_add_u32 s{sG}, s{sG}, s{sX}')
        J2, vJ2, sG2, sJo, sJs = 136, 230, sQ, sDv, sM
        vFl = 231
        up = self.opt.get('up', 1)

        def job2_loads():
            a(f's_add_u32 s{sG2}, s{sG}, {48 if self.opt.get("pair", 1) else 0}')
            a(f's_sub_u32 s{sT0}, s{sG2}, 96')
            a(f's_cselect_b32 s{sG2}, s{sG2}, s{sT0}')
            a(f's_cmp_ge_u32 s{sG2}, 72')
            a(f's_cselect_b32 s{sT2}, s{S_WU}, s{S_WG}')
            a(f's_cselect_b32 s{sT3}, s{S_WU + 1}, s{S_WG + 1}')
            a(f's_cselect_b32 s{sT1}, 72, 48')
            a(f's_sub_u32 s{sT1}, s{sG2}, s{sT1}')
            a(f's_lshr_b32 s{sT0}, s{sG2}, 1')
            a(f's_cmp_ge_u32 s{sG2}, 48')
            a(f's_cselect_b32 s{S_WD}, s{sT2}, s{S_WD}')
            a(f's_cselect_b32 s{S_WD + 1}, s{sT3}, s{S_WD + 1}')
            a(f's_cselect_b32 s{sT0}, s{sT1}, s{sT0}')
            self.real_line(sT0, sT2)
            a(f's_and_b32 s{sT2}, s{sG2}, 1')
            a(f's_lshl1_add_u32 s{sT2}, s{sT0}, s{sT2}')
            a(f's_mul_i32 s{sT2}, s{sT2}, {32 * 1280}')
            a(f's_lshl_b32 s{sT0}, s{sT0}, 7')
            a(f's_movk_i32 s{sT1}, 1280')
            a(f's_movk_i32 s{sJs}, 128')
            a(f's_cmp_ge_u32 s{sG2}, 48')
            a(f's_cselect_b32 s{sJo}, s{sT0}, s{sT2}')
            a(f's_cselect_b32 s{sT1}, 3072, s{sT1}')
            a(f's_cselect_b32 s{sJs}, {32 * 3072}, s{sJs}')
            a(f'v_and_b32 v{vJ2}, 7, v0')
            a(f'v_lshlrev_b32 v{vJ2}, 4, v{vJ2}')
            a(f'v_lshrrev_b32 v15, 3, v{vTid}')
            a(f'v_mad_u32_u24 v{vJ2}, v15, s{sT1}, v{vJ2}')
            for j in range(10):
                a(f'buffer_load_dwordx4 {vr(J2 + 4 * j, 4)}, v{vJ2}, {sr(S_WD, 4)}, s{sJo} offen')
                a(f's_add_u32 s{sJo}, s{sJo}, s{sJs}')
        a(f's_cmp_ge_u32 s{sG}, 64')
        a.snapshot('s4')
        a('s_cbranch_scc1 .Ls4')
        XR, WR = 16, J2
        vA, vRow, vS8 = 2, 3, 4
        a(f'v_lshrrev_b32 v{vRow}, 3, v{vTid}')
        a(f'v_and_b32 v{vS8}, 7, v0')
        a(f's_lshr_b32 s{sT0}, s{sG}, 3')
        a(f's_lshl_b32 s{sT0}, s{sT0}, 8')
        a(f's_and_b32 s{sT1}, s{sG}, 3')
        a(f's_lshl2_add_u32 s{sT0}, s{sT1}, s{sT0}')
        a(f's_bfe_u32 s{sT1}, s{sG}, 0x10002')
        a(f's_lshl1_add_u32 s{sT0}, s{sT1}, s{sT0}')
        a(f'v_and_b32 v5, 0xf0, v{vTid}')
        a(f'v_and_b32 v6, 1, v{vRow}')
        a(f'v_add3_u32 v5, v5, v6, s{sT0}')
        a(f's_movk_i32 s{sT1}, 1280')
        a(f'v_lshlrev_b32 v6, 4, v{vS8}')
        a(f'v_mad_u32_u24 v5, v5, s{sT1}, v6')
        for j in range(10):
            a(f'buffer_load_dwordx4 {vr(XR + 4 * j, 4)}, v5, {sr(S_X, 4)}, 0 offen offset:{128 * j}')
        if up == 1:
            job2_loads()
        self.stamp('sx_issued')
        self.gemm_ids()
        self.w_addr()
        vW, vRd, vSt = 5, 6, 7
        a(f's_movk_i32 s{sT1}, 528')
        a(f'v_lshlrev_b32 v{vW}, 3, v{vRow}')
        a(f'v_mad_u32_u24 v{vW}, v{vS8}, s{sT1}, v{vW}')
        a(f'v_and_b32 v{vRd}, 31, v0')
        a(f'v_lshlrev_b32 v{vRd}, 4, v{vRd}')
        a(f'v_lshrrev_b32 v8, 5, v{vTid}')
        a(f'v_mad_u32_u24 v{vRd}, v8, s{sT1}, v{vRd}')
        a(f's_lshl_b32 s{sT0}, s{sG}, 8')
        a(f'v_and_b32 v{vSt}, 15, v0')
        a(f's_and_b32 s{sT1}, s{sT0}, 0x2000')
        a(f's_add_u32 s{sT1}, s{sT1}, s{sT0}')
        a(f'v_lshl_add_u32 v{vSt}, v{vSt}, 4, s{sT1}')
        a(f'v_lshrrev_b32 v8, 4, v{vTid}')
        a(f's_mov_b32 s{sT1}, {2 * QS}')
        a(f'v_mad_u32_u24 v{vSt}, v8, s{sT1}, v{vSt}')
        for j in range(10):
            for o_ in range(2):
                a(f'ds_write_b64 v{vW}, {vr(XR + 4 * j + 2 * o_, 2)} offset:{j * 4224 + o_ * 256}')
        self.stamp('sx_data')
        a(f's_load_dword s{sU0}, {sr(S_DBG, 2)}, 0x80')
        a(f's_load_dword s{sU1}, {sr(S_DBG, 2)}, 0x0')
        if up == 2:
            job2_loads()
            a(f's_lshl_b32 s{sT0}, s{sG}, 8')
        a('s_waitcnt lgkmcnt(0)')
        a('s_barrier')
        self.stamp('sx_bar')
        XO = 96
        for j in range(10):
            a(f'ds_read_b128 {vr(XO + 4 * j, 4)}, v{vRd} offset:{j * 4224}')
        self.get_pol(vFl)
        self.check(S_DBG, '0', 1, vFl, sU1)
        a(f's_mov_b32 s{sOne}, 0x3f803f80')
        for i in range(4):
            a(f'v_mov_b32 v{8 + i}, 0')
        for j in range(10):
            a(f's_mov_b32 s{sT1}, {grp_base(j, XP4, XP4T)}')
            a(f'buffer_store_dwordx4 {vr(XO + 4 * j, 4)}, v{vSt}, {WS}, s{sT1} offen sc1')
            for i in range(4 * j, 4 * j + 4):
                a(f'v_dot2c_f32_bf16 v{8 + (i & 1)}, s{sOne}, v{XR + i}')
                a(f'v_dot2c_f32_bf16 v{10 + (i & 1)}, v{XR + i}, v{XR + i}')
        a('v_add_f32 v8, v8, v9')
        a('v_add_f32 v10, v10, v11')
        for m in ('quad_perm:[1,0,3,2]', 'quad_perm:[2,3,0,1]', 'row_half_mirror'):
            a(f'v_add_f32_dpp v8, v8, v8 {m} row_mask:0xf bank_mask:0xf')
            a(f'v_add_f32_dpp v10, v10, v10 {m} row_mask:0xf bank_mask:0xf')
        a(f'v_mul_f32 v8, {f32(1 / 640)}, v8')
        a(f'v_mul_f32 v10, {f32(1 / 640)}, v10')
        a('v_fma_f32 v10, -v8, v8, v10')
        a('v_max_f32 v10, 0, v10')
        a(f'v_add_f32 v10, {f32(1e-5)}, v10')
        a('v_rsq_f32 v10, v10')
        a(f'v_lshl_add_u32 v12, v{vRow}, 3, s{sT0}')
        a('v_mul_f32 v11, -v8, v10')
        a(f's_mov_b32 s{sT1}, {ST1}')
        a('s_mov_b32 exec_lo, 0x01010101')
        a('s_mov_b32 exec_hi, 0x01010101')
        a(f'buffer_store_dwordx2 v[10:11], v12, {WS}, s{sT1} offen sc1')
        a('s_mov_b64 exec, -1')
        a('s_branch .Lr1')
        a('.Ls4:')
        a.fresh('s4')
        T4 = 10240
        a(f's_sub_u32 s{sT4}, s{sG}, 64')
        a(f's_lshr_b32 s{sT5}, s{sT4}, 2')
        a(f's_and_b32 s{sT4}, s{sT4}, 3')
        a(f's_mul_i32 s{sT0}, s{sT4}, 160')
        a(f's_lshl3_add_u32 s{sT0}, s{S_W}, s{sT0}')
        a(f's_mul_i32 s{sT0}, s{sT0}, 3072')
        a(f's_mul_i32 s{sT1}, s{sT5}, 3')
        a(f's_add_u32 s{sT1}, s{sT1}, 1')
        self.real_line(sT1, sT2)
        a(f's_lshl_b32 s{sT1}, s{sT1}, 7')
        a(f's_add_u32 s{sT0}, s{sT0}, s{sT1}')
        a('v_lshrrev_b32 v3, 3, v0')
        a('v_and_b32 v4, 7, v0')
        a(f'v_lshl_add_u32 v2, v4, 4, s{sT0}')
        a(f's_movk_i32 s{sT1}, 3072')
        a(f'v_mad_u32_u24 v2, v3, s{sT1}, v2')
        a(f's_mov_b32 s{sT0}, 0')
        for i in range(10):
            a(f'buffer_load_dwordx4 {vr(XR + 4 * i, 4)}, v2, {sr(S_WU if i & 1 else S_WG, 4)}, s{sT0} offen')
            if i & 1:
                a(f's_add_u32 s{sT0}, s{sT0}, {32 * 3072}')
        if up == 1:
            job2_loads()
        self.stamp('sx_issued')
        self.gemm_ids()
        self.w_addr()
        a(f's_lshl_b32 s{sT0}, s{S_W}, 9')
        a(f'v_lshl_add_u32 v5, v3, 6, s{sT0}')
        a('v_and_b32 v6, 1, v0')
        a('v_lshl_add_u32 v5, v6, 4, v5')
        a('v_bfe_u32 v6, v0, 1, 2')
        a('v_lshlrev_b32 v7, 5, v6')
        a('v_xor_b32 v5, v5, v7')
        a(f's_movk_i32 s{sT0}, {T4}')
        a(f'v_mad_u32_u24 v5, v6, s{sT0}, v5')
        a('v_xor_b32 v6, 32, v5')
        a('v_lshrrev_b32 v7, 5, v0')
        a('v_bfe_u32 v8, v0, 2, 2')
        a('v_lshl_add_u32 v7, v7, 3, v8')
        a('v_lshlrev_b32 v7, 6, v7')
        a('v_and_b32 v8, 3, v0')
        a('v_lshl_add_u32 v7, v8, 4, v7')
        a('v_bfe_u32 v8, v0, 4, 1')
        a('v_lshl_add_u32 v7, v8, 3, v7')
        a(f's_lshl_b32 s{sT1}, s{S_W}, 5')
        a(f'v_xor_b32 v7, s{sT1}, v7')
        a(f's_mul_i32 s{sT1}, s{S_W}, {T4}')
        a(f'v_add_u32 v7, s{sT1}, v7')
        for i in range(10):
            a(f'ds_write_b128 v{6 if i & 1 else 5}, {vr(XR + 4 * i, 4)} offset:{(i >> 1) * 2048}')
        self.stamp('sx_data')
        a(f's_load_dword s{sU0}, {sr(S_DBG, 2)}, 0x80')
        a(f's_load_dword s{sU1}, {sr(S_DBG, 2)}, 0x0')
        if up == 2:
            job2_loads()
        a('s_waitcnt lgkmcnt(0)')
        a('s_barrier')
        self.stamp('sx_bar')
        for j in range(10):
            for e in range(2):
                a(f'ds_read_b64_tr_b16 {vr(XO + 4 * j + 2 * e, 2)}, v7 offset:{1024 * j + 256 * e}')
        a(f's_lshl2_add_u32 s{sT0}, s{sT5}, s{S_W}')
        a(f's_lshl2_add_u32 s{sT0}, s{sT0}, s{sT4}')
        a(f's_mul_i32 s{sT0}, s{sT0}, 10240')
        a(f's_add_u32 s{sT0}, s{sT0}, {W45F}')
        a('v_lshlrev_b32 v9, 4, v0')
        self.get_pol(vFl)
        self.check(S_DBG, '0', 1, vFl, sU1)
        for j in range(10):
            if j and j & 3 == 0:
                a(f's_add_u32 s{sT0}, s{sT0}, 4096')
            a(f'buffer_store_dwordx4 {vr(XO + 4 * j, 4)}, v9, {WS}, s{sT0} offen offset:{(j & 3) * 1024} sc1')
        a('.Lr1:')
        a.fresh()
        self.stamp('sx_st')
        o = self.opt
        assert up >= 1
        a(f's_mov_b32 s{sG}, s{sG2}')
        a(f's_mov_b32 s{sSide}, s{sG2}')
        self.w_select()
        WB = 49152
        T0 = 216
        na, nb, nc = o.get('sw_a', 10), o.get('sw_b', 10), o.get('sw_c', 12)
        assert na + nb + nc <= 32

        def end_r1(younger):
            self.stamp('sx_ld2')
            a(f's_waitcnt vmcnt({younger})')
            a('s_barrier')
            self.stamp('sx_dr')
            self.arrive_start([(sArr, C_FX)])
        a(f's_cmp_ge_u32 s{sG}, 48')
        a('s_cbranch_scc1 .Ls2')
        wl = self.w_loads_main()
        a(wl[:na])
        v8, v9, v10 = T0, T0 + 1, T0 + 2
        a(f'v_lshrrev_b32 v{vRow}, 3, v{vTid}')
        a(f'v_and_b32 v{vS8}, 7, v0')
        a(f's_movk_i32 s{sT1}, 1344')
        a(f'v_lshlrev_b32 v{vW}, 4, v{vS8}')
        a(f'v_mad_u32_u24 v{vW}, v{vRow}, s{sT1}, v{vW}')
        a(f'v_lshrrev_b32 v{v8}, 4, v0')
        a(f'v_bfe_u32 v{v9}, v0, 2, 2')
        a(f'v_lshl_add_u32 v{v8}, v{v8}, 3, v{v9}')
        a(f's_mul_i32 s{sT0}, s{S_W}, 320')
        a(f'v_mov_b32 v{v9}, s{sT0}')
        a(f'v_mad_u32_u24 v{v8}, v{v8}, s{sT1}, v{v9}')
        a(f'v_and_b32 v{v9}, 3, v0')
        a(f'v_lshl_add_u32 v{v10}, v{v9}, 3, v{v8}')
        a(f'v_lshl_add_u32 v{v8}, v{v9}, 4, v{v8}')
        end_r1(na)
        q = wl[na:na + nb]
        for j in range(10):
            a(f'ds_write_b128 v{vW}, {vr(WR + 4 * j, 4)} offset:{WB + 128 * j}')
            if q and j < o.get('sw_b1', 4):
                a(q.pop(0))
        self.arrive_finish([(sArr, 11, C_FXR)], v9)
        self.stamp(1)
        a(q)
        a('s_barrier')
        for cc in range(2):
            for nt in range(5):
                for e in range(2):
                    off = WB + cc * 160 + e * 4 * 1344 + ((nt >> 1) * 64 + (nt & 1) * 8)
                    a(f'ds_read_b64_tr_b16 {ar(4 * (5 * cc + nt) + 2 * e, 2)}, v{v10 if nt == 4 else v8} offset:{off}')
        a(f's_mul_i32 s{sT0}, s{S_W}, 96')
        a(f's_add_u32 s{sT0}, s{sT0}, s{sG}')
        a(f's_mul_i32 s{sT0}, s{sT0}, 5120')
        a(f's_add_u32 s{sT0}, s{sT0}, {WDF}')
        a(f'v_lshlrev_b32 v{v9}, 4, v0')
        for cc in range(2):
            for nt in range(5):
                if nt == 4:
                    a(f's_add_u32 s{sT0}, s{sT0}, 4096')
                a(f'buffer_store_dwordx4 {ar(4 * (5 * cc + nt), 4)}, v{v9}, {WS}, s{sT0} offen offset:{(nt & 3) * 1024} sc1')
            a(f's_add_u32 s{sT0}, s{sT0}, {48 * 5120 - 4096}')
        a('s_branch .Lr2')
        a('.Ls2:')
        a.fresh()
        AC = T0 + 4
        for i in range(10, 20):
            a(f'buffer_load_dwordx4 {vr(J2 + 4 * i, 4)}, v{vJ2}, {sr(S_WD, 4)}, s{sJo} offen')
            a(f's_add_u32 s{sJo}, s{sJo}, s{sJs}')
        for i in range(8):
            a(f'v_mov_b32 v{AC + i}, 0')
        a(f's_mov_b32 s{sT4}, 0x3f80')
        a(f's_mov_b32 s{sT3}, 0x3f800000')
        end_r1(10)
        q = self.w_loads_main()[:na + nb]
        for i in range(80):
            a(f'v_dot2c_f32_bf16 v{AC + 2 * (i & 3)}, s{sT4}, v{J2 + i}')
            a(f'v_dot2c_f32_bf16 v{AC + 1 + 2 * (i & 3)}, s{sT3}, v{J2 + i}')
            if i == 39:
                self.arrive_finish([(sArr, 11, C_FXR)], T0)
                self.stamp(1)
            if i & 1 and i > 39 and q:
                a(q.pop(0))
        a(q)
        a(f'v_lshlrev_b32 v5, 5, v{vTid}')
        a(f'ds_write_b128 v5, {vr(AC, 4)} offset:{WB}')
        a(f'ds_write_b128 v5, {vr(AC + 4, 4)} offset:{WB + 16}')
        a('s_waitcnt lgkmcnt(0)')
        a('s_barrier')
        a('v_bfe_u32 v6, v0, 1, 4')
        a('v_and_b32 v7, 32, v0')
        a('v_add_u32 v6, v6, v7')
        a('v_and_b32 v7, 1, v0')
        a('v_lshl_add_u32 v6, v7, 4, v6')
        a('v_lshlrev_b32 v6, 2, v6')
        for i in range(16):
            a(f'ds_read2st64_b32 {vr(J2 + 2 * i, 2)}, v6 offset0:{WB // 256 + 2 * i} offset1:{WB // 256 + 2 * i + 1}')
        for i in range(1, 16):
            a(f'v_pk_add_f32 {vr(J2, 2)}, {vr(J2, 2)}, {vr(J2 + 2 * i, 2)}')
        a(f'v_add_f32 v{J2}, v{J2}, v{J2 + 1}')
        a(f'v_cvt_pk_bf16_f32 v{T0}, v{J2}, v{J2}')
        a(f'v_lshlrev_b32 v7, 16, v{T0}')
        a(f'v_sub_f32 v7, v{J2}, v7')
        a(f'v_cvt_pk_bf16_f32 v{T0 + 1}, v7, v7')
        a(f's_sub_u32 s{sT0}, s{sG}, 48')
        a(f's_lshl_b32 s{sT0}, s{sT0}, 9')
        a(f's_add_u32 s{sT0}, s{sT0}, {CSF}')
        a('v_lshlrev_b32 v6, 3, v0')
        a(f'buffer_store_dwordx2 {vr(T0, 2)}, v6, {WS}, s{sT0} offen sc1')
        a('.Lr2:')
        a.fresh()
        self.stamp(2)
        a(f's_lshr_b32 s{sT0}, s{sG}, 5')
        a(f's_and_b32 s{sT1}, s{sG}, 15')
        a(f's_lshl4_add_u32 s{sT0}, s{sT0}, s{sT1}')
        a(f's_and_b32 s{sT1}, s{sG}, 16')
        a(f's_lshl2_add_u32 s{sT0}, s{sT1}, s{sT0}')
        a(f's_lshl_b32 s{sT0}, s{sT0}, 7')
        a(f's_add_u32 s{sT0}, s{sT0}, {CF3}')
        a('v_mov_b32 v4, 0')
        a('v_and_b32 v5, 31, v0')
        a('v_lshlrev_b32 v5, 2, v5')
        a(f'buffer_store_dword v4, v5, {WS}, s{sT0} offen sc1')
        if o.get('outpf', 2) >= 2:
            big = o.get('outpf', 2) == 3
            a(f's_lshr_b32 s{sT0}, s{sG}, 3')
            a(f's_mul_i32 s{sT0}, s{sT0}, 86')
            a(f's_and_b32 s{sT1}, s{sG}, 7')
            a(f's_lshl_b32 s{sT1}, s{sT1}, 10')
            a(f's_add_u32 s{sT0}, s{sT0}, s{sT1}')
            for i in range(4):
                a(f'v_mov_b32 v{T0 + 4 + i}, 0')
            for k in range(3 if big else 2):
                a(f'v_lshrrev_b32 v6, {3 if big else 2}, v{vTid}')
                a(f'v_add_u32 v6, {k * (32 if big else 64)}, v6')
                a('v_min_u32 v6, 85, v6')
                a(f'v_add_u32 v6, s{sT0}, v6')
                a('v_mul_u32_u24 v6, 320, v6')
                a('v_add_u32 v6, 160, v6')
                a(f'v_and_b32 v6, {-128 if big else -64}, v6')
                a(f'v_and_b32 v7, {7 if big else 3}, v0')
                a('v_lshl_add_u32 v6, v7, 4, v6')
                a(f'buffer_store_dwordx4 {vr(T0 + 4, 4)}, v6, {sr(S_OUT, 4)}, 0 offen sc1')
        a(self.clear_pst(2))
        n0 = na + nb + nc
        a(wl[na + nb:n0])
        a(f's_add_u32 s{sT4}, s{sXo}, {C_FXR * 256}')
        a(f's_add_u32 s{sFW}, s{sT4}, {(C_FWR - C_FXR) * 256}')
        a.drain_stores()
        a('s_waitcnt lgkmcnt(0)')
        a('s_barrier')
        self.stamp(6)
        self.arrive_start([(sArr, C_B1), (sJs, C_FW)])
        a(f'buffer_load_dword v1, off, {WS}, s{sT4} sc1')

        def mid():
            self.arrive_finish([(sJs, 11, C_FWR), (sArr, 31, C_B2)], T0)
            self.check(S_WS, f's{sT4}', 8, 1)
        self.side_window(wl[n0:], mid)
        a(f's_waitcnt vmcnt({self.opt["wd_pre"]})')
        self.stamp(7)
        a('s_branch .Ljoin')

    def signal(self, soff, pi):
        a = self.a
        if self.opt.get('ssig', 0) >> pi & 1:
            a(f's_atomic_add s{sU2}, {sr(S_WS, 2)}, {soff}')
        else:
            a('s_mov_b64 exec, 1')
            a(f'buffer_atomic_add v{self.vOne}, off, {WS}, {soff} sc1')
            a('s_mov_b64 exec, -1')

    def gemms(self):
        a = self.a
        o = self.opt
        t, t2 = self.vTmp, self.vTmp2
        L, AB = 0, 8
        vRD = 4
        vAL, vAS, vA2, vWD, vWD2, vCS, vFl = 1, 2, 3, 247, 255, 246, 254
        vW5 = 252
        vS = 232
        BP = 236
        TM = 242
        ACC = 168
        RING1, CS, RING2 = 124, 148, 240
        sF3s, sF3p = sQ, sM
        sRB2w = sG
        kap = [[3 * c + ((pi + 1) % 3 if c & 1 else pi) for c in range(4)] for pi in range(3)]
        wd = []
        for i in range(60):
            g = []
            if i % 5 == 0:
                g.append(f's_mov_b32 s{sWoff}, {WDF + 5120 * kap[i // 20][i // 5 % 4]}')
            g.append(f'buffer_load_dwordx4 {ar(4 * i, 4)}, v{vWD2 if i % 5 == 4 else vWD}, {WS}, s{sWoff} offen offset:{(i % 5 & 3) * 1024} sc1')
            wd.append(g)
        if o.get('nowd'):
            wd = [[] for _ in wd]
        real, setup0 = a, []
        a = setup0.append
        a(f's_and_b32 s{sT0}, s{sJ}, 7')
        a(f's_lshl2_add_u32 s{sT0}, s{sT0}, s{S_W}')
        a(f's_mul_i32 s{sT0}, s{sT0}, {12 * 5120}')
        a(f'v_lshl_add_u32 v{vWD}, v0, 4, s{sT0}')
        a(f'v_add_u32 v{vWD2}, 0x1000, v{vWD}')
        a(f'v_lshlrev_b32 v{vRD}, 4, v0')
        for s in range(1, 4):
            a(f'v_xor_b32 v{t}, {16 * s}, v{vRD}')
            a(f'v_add_u32 v{vRD + s}, {TILE * s}, v{t}')
        a(f'v_lshl_add_u32 v{vW5}, s{S_W}, 10, v{vRD}')
        a(f'v_lshl_add_u32 v{vW5 + 1}, s{S_W}, 10, v{vRD + 1}')
        a(f's_lshl2_add_u32 s{sT0}, s{sRB}, s{S_W}')
        a(f's_lshl_b32 s{sT1}, s{sT0}, 8')
        a(f'v_and_b32 v{t}, 15, v0')
        a(f'v_lshlrev_b32 v{vA2}, 4, v{t}')
        a(f'v_add_u32 v{t}, s{sT1}, v{vA2}')
        a(f'v_lshrrev_b32 v{t2}, 4, v0')
        a(f's_mov_b32 s{sT1}, {QS}')
        a(f'v_mad_u32_u24 v{vAL}, v{t2}, s{sT1}, v{t}')
        a(f'v_lshl_add_u32 v{vA2}, v{t2}, 9, v{vA2}')
        def act_blk(dst, n, tmp):
            a(f's_and_b32 s{tmp}, s{n}, 7')
            a(f's_mul_i32 s{dst}, s{tmp}, 196608')
            a(f's_bfe_u32 s{tmp}, s{n}, 0x20003')
            a(f's_lshl_b32 s{tmp}, s{tmp}, 22')
            a(f's_add_u32 s{dst}, s{dst}, s{tmp}')
            a(f's_lshr_b32 s{tmp}, s{n}, 5')
            a(f's_lshl_b32 s{tmp}, s{tmp}, 13')
            a(f's_add_u32 s{dst}, s{dst}, s{tmp}')

        def f3_line(r, tmp):
            a(f's_and_b32 s{tmp}, s{r}, 16')
            a(f's_mul_i32 s{tmp}, s{tmp}, 3')
            a(f's_add_u32 s{r}, s{r}, s{tmp}')
            a(f's_lshl_b32 s{r}, s{r}, 7')
            a(f's_add_u32 s{r}, s{r}, {CF3}')
        act_blk(sT1, sT0, sT4)
        a(f'v_lshl_add_u32 v{vAS}, v0, 4, s{sT1}')
        a(f's_lshr_b32 s{sF3s}, s{sT0}, 1')
        f3_line(sF3s, sT4)
        a(f's_lshr_b32 s{sT1}, s{sJ}, 3')
        a(f's_lshl2_add_u32 s{sF3p}, s{sX}, s{sT1}')
        a(f's_lshl_b32 s{sRB2w}, s{sF3p}, 1')
        f3_line(sF3p, sT4)
        for i in range(4):
            a(f's_add_u32 s{sT0}, s{sRot}, {i}')
            a(f's_and_b32 s{sT0}, s{sT0}, 3')
            a(f's_mul_i32 s{sT1}, s{sT0}, {40 * QS}')
            a(f's_add_u32 s{sT1}, s{sT1}, {HP4}')
            a([f's_cmp_lt_u32 s{sT0}, 3', f's_cselect_b32 s{sAB + i}, s{sT1}, {HP4T}'])
        a(f'v_and_b32 v{t}, 3, v0')
        a(f'v_bfe_u32 v{t2}, v0, 2, 1')
        a(f'v_lshl_add_u32 v{t}, v{t2}, 3, v{t}')
        a(f'v_bfe_u32 v{t2}, v0, 4, 1')
        a(f'v_lshl_add_u32 v{t}, v{t2}, 2, v{t}')
        a(f'v_lshlrev_b32 v{t}, 4, v{t}')
        a(f'v_bfe_u32 v{t2}, v0, 3, 1')
        a(f's_movk_i32 s{sT1}, 12288')
        a(f'v_mad_u32_u24 v{vCS}, v{t2}, s{sT1}, v{t}')
        for i in range(4):
            a(f'v_mov_b32 v{vS + i}, 0')
        a(f's_mov_b32 s{sOne}, 0x3f803f80')
        a(f's_mov_b32 s{sU2}, 1')
        a(f's_lshl_b32 s{sT2}, s{sA}, 7')
        a(f's_add_u32 s{sT2}, s{sT2}, {CSF}')
        a(f's_lshl_b32 s{sT3}, s{sB}, 7')
        a(f's_add_u32 s{sT3}, s{sT3}, {CSF}')
        for r in (sA, sB):
            a(f's_and_b32 s{sT0}, s{r}, -8')
            a(f's_add_u32 s{r}, s{r}, s{sT0}')
            a(f's_lshl_b32 s{r}, s{r}, 10')
            a(f's_add_u32 s{r}, s{r}, {ACT}')
        act_blk(sT6, sRB2w, sT4)
        a(f's_mul_i32 s{sT5}, s{S_W}, 49152')
        a(f's_add_u32 s{sT5}, s{sT5}, s{sT6}')
        for lam in range(4):
            a(f's_xor_b32 s{sT0}, s{S_W}, {lam}')
            a(f's_lshr_b32 s{sT1}, s{sT0}, 1')
            a(f's_mul_i32 s{sT1}, s{sT1}, 196608')
            a(f's_and_b32 s{sT0}, s{sT0}, 1')
            a(f's_lshl_b32 s{sT0}, s{sT0}, 8')
            a(f's_add_u32 s{sT0}, s{sT0}, s{sT5}')
            a(f's_add_u32 s{sL[lam]}, s{sT1}, s{sT0}')
        sRes, sOutB, sQS = 20, 21, 22
        a(f's_lshr_b32 s{sT0}, s{S_W}, 1')
        a(f's_add_u32 s{sT0}, s{sT0}, s{sRB2w}')
        a(f's_lshl_b32 s{sRes}, s{sT0}, 8')
        a(f's_and_b32 s{sT4}, s{S_W}, 1')
        a(f's_lshl3_add_u32 s{sRes}, s{sT4}, s{sRes}')
        a(f's_and_b32 s{sT5}, s{sJ}, 7')
        a(f's_mul_i32 s{sT6}, s{sT5}, {20 * QS}')
        a(f's_add_u32 s{sRes}, s{sRes}, s{sT6}')
        a(f's_mov_b32 s{sT6}, {HP4}')
        a([f's_cmp_lt_u32 s{sT5}, 6', f's_cselect_b32 s{sT6}, s{sT6}, {HP4T - 120 * QS}'])
        a(f's_add_u32 s{sRes}, s{sRes}, s{sT6}')
        a(f's_mov_b32 s{sQS}, {QS}')
        a(f's_lshr_b32 s{sOutB}, s{sRB2w}, 3')
        a(f's_lshl_b32 s{sOutB}, s{sOutB}, 8')
        a(f's_and_b32 s{sT6}, s{sT0}, 3')
        a(f's_lshl2_add_u32 s{sOutB}, s{sT6}, s{sOutB}')
        a(f's_bfe_u32 s{sT6}, s{sRB2w}, 0x10002')
        a(f's_lshl1_add_u32 s{sOutB}, s{sT6}, s{sOutB}')
        a(f's_add_u32 s{sOutB}, s{sOutB}, s{sT4}')
        a(f's_mul_i32 s{sOutB}, s{sOutB}, 1280')
        a(f's_mul_i32 s{sT6}, s{sT5}, 160')
        a(f's_add_u32 s{sOutB}, s{sOutB}, s{sT6}')
        a(f's_lshl_b32 s{sU0}, s{sCB}, 8')
        a(f's_add_u32 s{sU0}, s{sU0}, {PST}')
        a(f's_mov_b32 s{sU1}, {PST}')
        a(f's_and_b32 s{sCB}, s{sCB}, 3')
        a(f's_mul_i32 s{sCB}, s{sCB}, 10')
        a = real
        spw = o['sp'] >> 4 & 1
        fw_ld = f's_load_dword s{sDv}, {sr(S_WS, 2)}, s{sFW}' if spw else f'buffer_load_dword v{TM + 1}, off, {WS}, s{sFW} sc1'
        nw = 40 - 8 * o.get('defer', 2)
        wdp = [wd.pop(0) for _ in range(o['wd_pre'])]

        def mixer(ww, setup, lq, per=6):
            def some(n, nl):
                for i in range(n):
                    a(ww.pop(0))
                    for _ in range(per):
                        if setup:
                            a(setup.pop(0))
                    for _ in range(((i + 1) * nl) // n - (i * nl) // n):
                        if lq:
                            a(lq.pop(0))
            return some

        def side_window(wl, fx_check):
            ww, setup = self.w_writes_main()[:nw], list(setup0)
            self.w_write_addr()
            lq = list(wl)
            hold = [x for x in setup if isinstance(x, str) and (f'v{vW5},' in x or f's{sU1},' in x)]
            setup = [x for x in setup if x not in hold]
            some = mixer(ww, [], lq)
            nl = len(lq)
            n_ = min(nl, nw - 8)
            assert all(40 - nl + (i * nl) // n_ >= 8 * (i // 8 + 1) for i in range(n_))
            some(n_, nl)
            fx_check()
            lq += self.w_loads_tail()
            if o.get('outpf', 2) == 1:
                a(f's_lshr_b32 s{sT0}, s{sSide}, 3')
                a(f's_lshl2_add_u32 s{sT0}, s{sT0}, s{S_W}')
                a(f's_mul_i32 s{sT0}, s{sT0}, {22 * 320}')
                a(f's_and_b32 s{sSide}, s{sSide}, 7')
                a(f's_mul_i32 s{sSide}, s{sSide}, {256 * 1280}')
                a(f's_add_u32 s{sSide}, s{sSide}, s{sT0}')
                a(f'v_min_u32 v{TM}, 21, v0')
                a(f'v_mul_u32_u24 v{TM}, 320, v{TM}')
                lq.insert(o.get('pf_pos', 20), f'buffer_load_dword a255, v{TM}, {sr(S_OUT, 4)}, s{sSide} offen offset:160')
            lq.append(fw_ld)
            mixer(ww, setup, lq)(len(ww), len(lq))
            a(setup)
            a(hold)
            if wdp:
                self.check(S_WS, f's{sFW}', 0 if o.get('nofw') else 8, TM + 1, sDv if spw else None)
            a(wdp)
        self.side_window = side_window
        ww = self.w_writes_main()
        setup = self.win_pre + setup0
        lq = list(self.win_loads)
        n1, n2 = o.get('ww1', 13), o.get('ww2', 7)
        self.w_write_addr()
        a('s_barrier')
        self.stamp('hbar')
        some = mixer(ww, setup, lq, o.get('su_per', 7))
        assert 5 * o.get('su_per', 7) >= len(self.win_pre)
        some(5, 0)
        fwe = o.get('fwe', 1)
        if wdp and fwe:
            a(fw_ld)
        hold = [x for x in setup if isinstance(x, str) and (f'v{vW5},' in x or f's{sU1},' in x)]
        setup[:] = [x for x in setup if x not in hold]
        some(n1 - 5, o.get('l1', 8))
        self.stamp('hissued')
        if wdp and fwe and spw:
            a.need(f's{sDv}')
        a.drain_stores()
        self.stamp('hdrained')
        a('s_barrier')
        self.stamp('hbar2')
        self.arrive_start([(sArr, C_B1)])
        if wdp and not fwe:
            a(fw_ld)
        if wdp and fwe:
            self.check(S_WS, f's{sFW}', 0 if o.get('nofw') else 8, TM + 1, sDv if spw else None)
            nl2 = len(lq) + o.get('l2', 8)
            lq += wdp
            some(n2, nl2)
        else:
            some(n2, len(lq))
        self.arrive_finish([(sArr, 31, C_B2)], TM)
        self.stamp('arrived')
        if wdp and not fwe:
            self.check(S_WS, f's{sFW}', 0 if o.get('nofw') else 8, TM + 1, sDv if spw else None)
            lq += wdp
        some(nw - n1 - n2, len(lq))
        a(setup)
        a(hold)
        a(lq)
        a('.Ljoin:')
        self.stamp('wwritten')
        a(f's_add_u32 s{sT0}, s{sXo}, {C_B2 * 256}')
        self.warm([[3, 6], [4, 7], [5]])
        with self.wave0():
            self.spin(S_WS, f's{sT0}', 0 if o.get('noe2') else 8, t)
        self.stamp('polled')
        a('s_waitcnt lgkmcnt(0)')
        a('s_barrier')
        self.stamp(8)
        al = []
        for j in range(40):
            if j % 10 == 0:
                al.append([f'buffer_load_dwordx4 {vr(AB + 4 * j, 4)}, v{vAL}, {WS}, s{sAB + j // 10} offen sc1'])
            else:
                al.append([f's_add_u32 s{sT1}, s{sAB + j // 10}, {(j % 10) * 4 * QS}',
                           f'buffer_load_dwordx4 {vr(AB + 4 * j, 4)}, v{vAL}, {WS}, s{sT1} offen sc1'])
        al.append(f'buffer_load_dwordx4 {ar(CS, 4)}, v{vCS}, {WS}, s{sT2} offen sc1')
        al.append(f'buffer_load_dwordx4 {ar(CS + 4, 4)}, v{vCS}, {WS}, s{sT2} offen offset:256 sc1')
        al.append(f'buffer_load_dwordx4 {ar(CS + 8, 4)}, v{vCS}, {WS}, s{sT3} offen sc1')
        for _ in range(o['a_ahead']):
            a(al.pop(0))

        def rd(dst, slot, j):
            return f'ds_read_b128 {ar(dst, 4)}, v{vRD + slot} offset:{1024 * j}'

        def swaps(j):
            return [f'v_permlane16_swap_b32 v{AB + 4 * j + e}, v{AB + 4 * j + 2 + e}' for e in range(2)]

        def acc(slot):
            return vr(ACC + 16 * slot, 16)
        wtail = [f'ds_write_b128 v{vW5 + (i & 1)}, {ar(160 + 4 * i, 4)} offset:{(i >> 1) * 4096}' for i in range(20)]
        if o.get('nowt'):
            wtail = [[] for _ in wtail]
        C0, C1, R = vS, vS + 1, vS + 2
        c0 = -2.0 * 0.7978845608028654 * 1.4426950408889634
        G = ACC + 48
        gather = [f'buffer_load_dwordx2 {vr(G + 2 * s, 2)}, v{self.vPS}, {WS}, s{sU1} offen offset:{256 * s} sc1'
                  for s in range(8)]
        valid = [f'v_or3_b32 v{t}, v{G + 1}, v{G + 3}, v{G + 5}', f'v_or3_b32 v{t2}, v{G + 7}, v{G + 9}, v{G + 11}',
                 f'v_or3_b32 v{t}, v{t}, v{G + 13}, v{G + 15}', f'v_or_b32 v{t}, v{t}, v{t2}',
                 f'v_cmp_gt_i32 vcc, 0, v{t}']

        def chk_stats():
            slow, back = a.label('slow'), a.label('back')
            a('s_nop 1')
            a(f's_cbranch_vccnz {slow}')
            a(f'{back}:')

            def cold():
                top = a.label('top')
                a(f'{slow}:')
                with a.untracked():
                    a(f's_mov_b32 s{sSpin}, {SPIN}')
                    a(f'{top}:')
                    a(gather)
                    a('s_waitcnt vmcnt(0)')
                    a(valid)
                    a(f's_sub_u32 s{sSpin}, s{sSpin}, 1')
                    a(f's_cbranch_scc1 {back}')
                    a('s_nop 3')
                    a(f's_cbranch_vccnz {top}')
                    a(f's_branch {back}')
            self.cold.append(cold)
        halves = [
            f'v_add_f32 v{vS}, v{vS}, v{vS + 1}',
            f'v_add_f32 v{vS + 2}, v{vS + 2}, v{vS + 3}',
            f'v_mov_b32 v{vS + 1}, v{vS}',
            f'v_mov_b32 v{vS + 3}, v{vS + 2}',
            f'v_cmp_gt_u32 vcc, 32, v{L}',
            f'v_permlane32_swap_b32 v{vS}, v{vS + 1}',
            f'v_permlane32_swap_b32 v{vS + 2}, v{vS + 3}']
        pub = halves + [
            f'v_add_f32 v{G}, v{vS}, v{vS + 1}',
            f'v_add_f32 v{G + 1}, v{vS + 2}, v{vS + 3}',
            f'v_and_b32 v{G + 1}, 0x7fffffff, v{G + 1}',
            ['s_mov_b32 exec_hi, 0',
             f'buffer_store_dwordx2 {vr(G, 2)}, v{self.vPS}, {WS}, s{sU0} offen sc1',
             's_mov_b32 exec_hi, -1']]
        st = valid + [chk_stats]
        for w_ in range(2):
            g = G + w_
            st += [f'v_add_f32 v{g}, v{g}, v{g + 2}', f'v_add_f32 v{g + 4}, v{g + 4}, v{g + 6}',
                   f'v_add_f32 v{g + 8}, v{g + 8}, v{g + 10}', f'v_add_f32 v{g + 12}, v{g + 12}, v{g + 14}',
                   f'v_add_f32 v{vS + 2 * w_}, v{g}, v{g + 4}', f'v_add_f32 v{vS + 2 * w_ + 1}, v{g + 8}, v{g + 12}']
        st += halves + [
            f'v_add_f32 v{vS}, v{vS}, v{vS + 1}',
            f'v_add_f32 v{vS + 2}, v{vS + 2}, v{vS + 3}',
            f'v_mul_f32 v{vS}, {f32(-1 / 640)}, v{vS}',
            f'v_mul_f32 v{vS + 2}, {f32(1 / 640)}, v{vS + 2}',
            f'v_cvt_pk_bf16_f32 v{t}, v{vS}, v{vS}',
            f'v_fma_f32 v{R}, -v{vS}, v{vS}, v{R}',
            f'v_lshlrev_b32 v{t}, 16, v{t}',
            f'v_max_f32 v{R}, 0, v{R}',
            f'v_sub_f32 v{t2}, v{vS}, v{t}',
            f'v_add_f32 v{R}, {f32(1e-5)}, v{R}',
            f'v_cvt_pk_bf16_f32 v{t}, v{t}, v{t2}',
            f'v_rsq_f32 v{vS + 3}, v{R}',
            f'v_cndmask_b32 v{BP + 2}, 0, v{t}, vcc',
            f'v_cndmask_b32 v{BP + 3}, 0, v{t}, vcc',
            f'v_mul_f32 v{C0}, {f32(c0)}, v{vS + 3}',
            f'v_mul_f32 v{t}, v{vS + 3}, v{vS + 3}',
            f'v_mul_f32 v{t}, {f32(0.044715)}, v{t}',
            f'v_mul_f32 v{C1}, v{t}, v{C0}',
        ]

        def csm(tile, slot, first):
            b = vr(BP, 4) if tile & 1 else vr(BP + 2, 4)
            return f'v_mfma_f32_32x32x16_bf16 {acc(slot)}, {ar(CS + 4 * (tile >> 1), 4)}, {b}, {"0" if first else acc(slot)}'

        def pick(r0, r1):
            a(f's_set_gpr_idx_on s{sCB}, gpr_idx(SRC0)')
            a('s_nop 0')
            for r in range(r0, r1):
                a(f'v_mov_b32_e32 v{G + r}, v{AB + r}')
            a('s_set_gpr_idx_off')
        for j in range(2):
            for s in range(3):
                a(rd(RING1 + 12 * j + 4 * s, s, j))
        a(swaps(0))
        self.stamp('a0')
        p2 = [(3, 3, j) for j in range(40)] + [(4, 0, j) for j in range(40)] + [(5, 1, j) for j in range(40)]
        gq = list(gather)
        GJ, SJ = o.get('gather_j', 21), o.get('stat_j', 33)
        BARS = [int(x) for x in str(o.get('bars', '15x27')).split('x')]
        nwd1 = min(o.get('wd_p1', 6), 31 - o['wd_pre'])
        assert not ww
        NR = o.get('ring', 8)
        assert NR == 4 or o['wd_post'] >= 4

        def r2(i):
            return RING2 + 4 * (i & 3) if NR == 4 else 224 + 4 * ((i + 4) & 7)
        misc = [f'v_mov_b32 v{BP + i}, 0' for i in (0, 1, 4, 5)]
        wdone, wfree = 0, 0
        C1CAP = o.get('cap1', 5)
        for j in range(40):
            base = RING1 + 12 * (j & 1)
            self.stamp(f'p{j}')
            a.need(ar(base, 12))
            for s in range(3):
                c = '0' if j == 0 else acc(s)
                a(f'v_mfma_f32_32x32x16_bf16 {acc(s)}, {ar(base + 4 * s, 4)}, {vr(AB + 4 * j, 4)}, {c}')
                used = 1 if s < 2 else 2
                if j < 38:
                    a(rd(base + 4 * s, s, j + 2))
                else:
                    i = (j - 38) * 3 + s
                    if i < 4:
                        a(rd(r2(i), p2[i][1], p2[i][2]))
                if s == 0 and j < 39:
                    a(swaps(j + 1))
                    used += 3 if j < SJ else 2
                if j == 39:
                    if s == 0:
                        a('s_barrier')
                        wtail = wtail[-4:] + wtail[:-4]
                    else:
                        a(wtail.pop(0))
                elif s == 1 and wdone < wfree:
                    a(wtail.pop(0))
                    wdone += 1
                    used += 4
                if s == 2:
                    if al:
                        a(al.pop(0))
                        used += 3
                    elif nwd1 and not gq and j < o.get('wd1_hi', 39):
                        a(wd.pop(0))
                        nwd1 -= 1
                        used += 2
                if j >= GJ and gq and s < 2:
                    a(gq.pop(0))
                    used += 2
                q = misc if j < 8 else pub if j < SJ else st
                while q and used < C1CAP + (o.get('cap1s', 1) if q is st else 0) and j != 8:
                    a(q.pop(0))
                    used += 1
            if j in BARS:
                a('s_barrier')
                wfree = 2 * ((j + 1) // 4)
            if j == 8:
                a(f's_set_gpr_idx_on s{sCB}, gpr_idx(SRC0,SRC1)')
                a('s_nop 0')
                for r in range(10):
                    a(f'v_dot2c_f32_bf16_e32 v{vS + (r & 1)}, s{sOne}, v{AB + r}')
                    a(f'v_dot2c_f32_bf16_e32 v{vS + 2 + (r & 1)}, v{AB + r}, v{AB + r}')
                a('s_set_gpr_idx_off')
            if o.get('verbose') and j in (9, 10, 11, 12, 37, 38):
                print('step', j, 'pub', len(pub), 'st', len(st))
        assert not pub and not al and not st and not misc
        RES, vRes, vRes2 = 200, vAL, vCS
        res_addr = [
            f'v_and_b32 v{vRes}, 15, v{L}',
            f'v_lshl_add_u32 v{vRes2}, v{vRes}, 4, s{sRes}',
            f'v_lshrrev_b32 v{vRes}, 4, v{L}',
            f'v_mad_u32_u24 v{vRes2}, v{vRes}, s{sQS}, v{vRes2}',
            f'v_mad_u32_u24 v{vRes}, v{vRes}, s{sQS}, v{vRes2}',
        ]
        for tl in range(3):
            a(csm(tl, tl, False))
            a(wtail.pop(0) if wtail else [])
        self.stamp(9)

        def epi(tile, slot, packed=False):
            b = ACC + 16 * slot
            tm = [TM, TM + 1, TM + 2, TM + 3]
            ops = []
            for h in range(2):
                g, u = b + 8 * h, b + 8 * h + 4
                if packed:
                    P = lambda r, i: vr(r + 2 * i, 2)
                    cc, rr = vr(C0, 2), vr(R, 2)
                    ops += [(1, f'v_pk_mul_f32 {P(TM, i)}, {P(g, i)}, {P(g, i)}') for i in range(2)]
                    ops += [(1, f'v_pk_fma_f32 {P(TM, i)}, {P(TM, i)}, {cc}, {cc} op_sel:[0,1,0] op_sel_hi:[1,1,0]') for i in range(2)]
                    ops += [(1, f'v_pk_mul_f32 {P(u, i)}, {P(u, i)}, {P(g, i)}') for i in range(1)]
                    ops += [(1, f'v_pk_mul_f32 {P(TM, i)}, {P(TM, i)}, {P(g, i)}') for i in range(2)]
                    ops += [(2, f'v_exp_f32 v{tm[i]}, v{tm[i]}') for i in range(4)]
                    ops += [(1, f'v_pk_mul_f32 {P(u, i)}, {P(u, i)}, {P(g, i)}') for i in range(1, 2)]
                    ops += [(1, f'v_pk_fma_f32 {P(TM, i)}, {P(TM, i)}, {rr}, {rr} op_sel:[0,0,0] op_sel_hi:[1,0,0]') for i in range(2)]
                    ops += [(2, f'v_rcp_f32 v{tm[i]}, v{tm[i]}') for i in range(4)]
                    ops += [(1, f'v_pk_mul_f32 {P(u, i)}, {P(u, i)}, {P(TM, i)}') for i in range(2)]
                    ops += [(1, f'v_cvt_pk_bf16_f32 v{b + 2 * h + i}, v{u + 2 * i}, v{u + 2 * i + 1}') for i in range(2)]
                    continue
                ops += [(1, f'v_mul_f32 v{tm[i]}, v{g + i}, v{g + i}') for i in range(4)]
                ops += [(1, f'v_fma_f32 v{tm[i]}, v{tm[i]}, v{C1}, v{C0}') for i in range(4)]
                ops += [(1, f'v_mul_f32 v{tm[i]}, v{tm[i]}, v{g + i}') for i in range(4)]
                for i in range(4):
                    ops += [(2, f'v_exp_f32 v{tm[i]}, v{tm[i]}'), (1, f'v_mul_f32 v{u + i}, v{u + i}, v{g + i}')]
                ops += [(1, f'v_fma_f32 v{tm[i]}, v{tm[i]}, v{R}, v{R}') for i in range(4)]
                ops += [(2, f'v_rcp_f32 v{tm[i]}, v{tm[i]}') for i in range(4)]
                ops += [(1, f'v_mul_f32 v{u + i}, v{u + i}, v{tm[i]}') for i in range(4)]
                ops += [(1, f'v_cvt_pk_bf16_f32 v{b + 2 * h + i}, v{u + 2 * i}, v{u + 2 * i + 1}') for i in range(2)]
            so = sA if tile < 4 else sB
            txt = f'buffer_store_dwordx4 {vr(b, 4)}, v{vAS}, {WS}, s{so} offen offset:{(tile & 3) * 1024} sc1'
            ops.append((5, (lambda: a(txt, tag=f'act{tile}')) if not o.get('nost') else []))
            if o.get('noepi'):
                ops = [(c_, x if callable(x) else []) for c_, x in ops]
            return ops

        G2 = 72
        FR = [[8 + 4 * i for i in range(16)],
              [152 + 4 * i for i in range(4)] + [200 + 4 * i for i in range(8)] + [168 + 4 * i for i in range(4)],
              [8 + 4 * i for i in range(16)]]
        order = [[(c, lam) for lam in (3, 2, 1, 0) for c in range(4)]] * 3

        def act_ld(pi, n):
            c, lam = order[pi][n]
            if o.get('noact'):
                return []
            return [f's_add_u32 s{sT1}, s{sL[lam]}, {ACT + 16384 * (kap[pi][c] >> 2) + 2048 * (kap[pi][c] & 3)}',
                    f'buffer_load_dwordx4 {vr(FR[pi][n], 4)}, v{vA2}, {WS}, s{sT1} offen sc1']

        def sig(pi, tag):
            def f():
                self.stamp(f'presig{pi}')
                a.need_tag(tag)
                if o.get('wgsig', 0) >> pi & 1:
                    l = a.label('nosig')
                    a('s_barrier')
                    a(f's_bitcmp1_b32 s{S_W}, 0')
                    a(f's_cbranch_scc1 {l}')
                    with a.untracked():
                        self.signal(f's{sF3s}', pi)
                    a(f'{l}:')
                else:
                    self.signal(f's{sF3s}', pi)
                self.stamp(f'sig{pi}')
                if pi < 2:
                    a(f's_add_u32 s{sF3s}, s{sF3s}, 2048')
            return f

        def poll_ld(pi):
            if o['sp'] >> pi & 1:
                return f's_load_dword s{sDv}, {sr(S_WS, 2)}, s{sF3p}'
            return f'buffer_load_dword v{vFl}, off, {WS}, s{sF3p} sc1'

        def poll_chk(pi):
            def f():
                self.stamp(f'prechk{pi}')
                self.check(S_WS, f's{sF3p}', 0 if o.get('noe3', 0) >> pi & 1 else 16 if o.get('wgsig', 0) >> pi & 1 else 32, vFl,
                           sDv if o['sp'] >> pi & 1 else None)
                self.stamp(f'chk{pi}')
                if pi < 2:
                    a(f's_add_u32 s{sF3p}, s{sF3p}, 2048')
            return f
        RES, vRes, vRes2 = 200, vAL, vCS
        res_addr = [
            f'v_and_b32 v{vRes}, 15, v{L}',
            f'v_lshl_add_u32 v{vRes2}, v{vRes}, 4, s{sRes}',
            f'v_lshrrev_b32 v{vRes}, 4, v{L}',
            f'v_mad_u32_u24 v{vRes2}, v{vRes}, s{sQS}, v{vRes2}',
            f'v_mad_u32_u24 v{vRes}, v{vRes}, s{sQS}, v{vRes2}',
        ]
        res_ld = []
        for nt in range(5):
            q = 8 * (nt >> 1) + (nt & 1)
            res_ld.append([f's_mov_b32 s{sT6}, {q * QS}',
                           f'buffer_load_dwordx2 {vr(RES + 2 * nt, 2)}, v{vRes2 if nt == 4 else vRes}, {WS}, s{sT6} offen sc1'])
        slot_of = {0: 0, 1: 1, 2: 2, 3: 3, 4: 0, 5: 1}
        eq = epi(0, 0) + epi(1, 1) + epi(2, 2)
        budget = 0.0
        RATE = o['epi_rate']
        extra = {i: [] for i in range(120)}
        first_w = wtail.pop(0) if wtail else []
        extra0 = {k: wtail[k] for k in range(len(wtail))}
        wlast, nxt = o.get('grow', 0), 4
        extra[o.get('bar4', 26)].append('s_barrier')
        for k, x in enumerate(res_addr):
            extra[66 + k].append(x)
        nwd = len(wd) - o.get('wd_post', 12)
        done = 60 - len(wd)
        lo, hi = o.get('wd_lo', 4), o.get('wd_hi', 78)
        hold = None
        for k in range(nwd):
            g = wd.pop(0)
            p = lo + (k * (hi - lo)) // nwd
            fr = done + k
            if fr == 39:
                extra[81].append([f's_mov_b32 s{sT6}, {WDF + 5120 * kap[1][3]}', g[-1].replace(f's{sWoff} offen', f's{sT6} offen')] if g else [])
                continue
            assert fr < 56 or p > 14
            extra[p].append(g)
        SA, SB = o.get('siga', 62), o.get('sigb', 104)
        extra[SA].append(sig(0, 'act1'))
        extra[o.get('lda', 86)].append(poll_ld(0))
        for k, x in enumerate(res_ld):
            extra[o.get('res_at', 86) + 2 * k].append(x)
        ca = o.get('chka', 105)
        extra[ca].append(poll_chk(0))
        na = o.get('a_in', 7)
        for n in range(na):
            extra[ca + 1 + (n * (119 - ca)) // na].append(act_ld(0, n))
        extra[SB].append(sig(1, 'act3'))
        extra[50].append('s_barrier')

        def cost(x):
            if callable(x):
                return 3
            if isinstance(x, (list, tuple)):
                return sum(cost(y) for y in x)
            return 5 if x.startswith('ds_write') else 2 if x.startswith('buffer') or x == 's_barrier' else 1
        CAP = o.get('cap', 6.6)
        for i, (tile, ls, j) in enumerate(p2):
            slot = slot_of[tile]
            self.stamp(f'q{i}')
            if j == 0:
                a(csm(tile, slot, True))
                if i == 0:
                    a(first_w)
                if i:
                    budget = 6
                    while eq and budget >= eq[0][0]:
                        cst, x = eq.pop(0)
                        budget -= cst
                        a(x)
            WP = 2 if NR == 4 or i < 12 else o.get('wper', 4)
            if i % WP == 0:
                a.need(*[ar(r2(i + z), 4) for z in range(WP)])
            a(f'v_mfma_f32_32x32x16_bf16 {acc(slot)}, {ar(r2(i), 4)}, {vr(AB + 4 * j, 4)}, {acc(slot)}')
            a(extra0.get(i, []))
            nrd = 0
            while nxt < len(p2) and nxt <= i + NR and nrd < (2 if i >= wlast else 1):
                if NR == 8 and i < wlast:
                    a(rd(r2(nxt + 4), p2[nxt][1], p2[nxt][2])) if False else None
                a(rd(r2(nxt), p2[nxt][1], p2[nxt][2]))
                nxt += 1
                nrd += 1
            a(extra[i])
            if i == 42:
                eq += epi(3, 3)
            if i == 82:
                eq += epi(4, 0)
                if o.get('st4_late'):
                    st4 = eq.pop()[1]
            if i >= 1:
                budget = min(budget, 1.0) + CAP - nrd - ((i + 1) % WP == 0) - cost(extra[i]) - cost(extra0.get(i, []))
                budget = max(budget, -1)
                while eq and budget >= min(eq[0][0], 2):
                    cst, x = eq.pop(0)
                    budget -= cst
                    a(x)
                    if callable(x) and o.get('verbose'):
                        print('store at gap', i)
                if i == 39:
                    assert len(eq) <= 2 * 69, len(eq)
                if i == SA - 1:
                    assert len(eq) <= 2 * 69, len(eq)
                if i == 79:
                    assert len(eq) <= 2 * 69, len(eq)
                if i == o.get('res_at', 86) - 1:
                    assert len(eq) <= 2 * 69, len(eq)
                if i == SB - 1:
                    assert len(eq) <= 69, len(eq)
            if j == 39:
                self.stamp(f't{tile}')
        for cst, x in eq:
            a(x)
        a(f's_mov_b32 s{sT0}, 0xffff0000')
        for i in range(10):
            a(f'v_lshlrev_b32 v{G2 + 2 * i}, 16, v{RES + i}')
            a(f'v_and_b32 v{G2 + 2 * i + 1}, s{sT0}, v{RES + i}')
        e5 = epi(5, 1, o.get('pk5', 1))
        LA = o.get('la2', 12)
        rest = [act_ld(0, n) for n in range(na, LA)]
        if o.get('ldb', -1) < 0:
            rest.append(poll_ld(1))
        if o.get('st4_late'):
            rest.append(st4)
        k = 0
        for i, (cst, x) in enumerate(e5):
            while k < len(rest) and (k + 1) * (len(e5) - 1) <= i * len(rest):
                a(rest[k])
                k += 1
            a(x)
        assert k == len(rest)
        self.stamp(10)

        vOut, vRR, vRW, vTW, vTR = 4, 7, 232, 238, 242
        RED = 2 * TILE
        setup = [
            f's_movk_i32 s{sT6}, {16 * 1280 - 160}',
            f's_movk_i32 s{sT5}, 6554',
            f's_movk_i32 s{sT4}, 176',
            f's_mul_i32 s{sT3}, s{S_W}, {16 * 176}',
            f'v_and_b32 v{t}, 15, v{L}',
            f'v_lshrrev_b32 v{t2}, 4, v{L}',
            f'v_mov_b32 v{vTW + 1}, s{sT3}',
            f'v_mad_u32_u24 v{vTW + 1}, v{t}, s{sT4}, v{vTW + 1}',
            f'v_lshl_add_u32 v{vTW}, v{t2}, 4, v{vTW + 1}',
            f'v_lshl_add_u32 v{vTW + 1}, v{t2}, 3, v{vTW + 1}',
        ]
        setup += [f'v_mul_u32_u24 v{t2}, s{sT5}, v{L}',
                  f'v_lshrrev_b32 v{t2}, 16, v{t2}',
                  f'v_lshl_add_u32 v{vOut}, v{L}, 4, s{sOutB}',
                  f'v_mad_u32_u24 v{vOut}, v{t2}, s{sT6}, v{vOut}',
                  f'v_add_u32 v{t}, v{L}, v{t2}',
                  f'v_lshl_add_u32 v{vTR}, v{t}, 4, s{sT3}',
                  f's_mov_b32 s{sT4}, {6 * 16 * 1280}',
                  f's_mov_b32 s{sT5}, {12 * 16 * 1280}']
        for lam in range(4):
            setup += [f's_xor_b32 s{sT0}, s{S_W}, {lam}', f's_mul_i32 s{sT0}, s{sT0}, {15 * 1024}',
                      f's_add_u32 s{sT0}, s{sT0}, {RED + (lam - 1) * 5120 if lam else RED}',
                      f'v_lshl_add_u32 v{vRW + lam - 1 if lam else vRR}, v{L}, 4, s{sT0}']

        def mf2(pi, n, nt):
            c, lam = order[pi][n]
            d = vr(G2 + 4 * (5 * lam + nt), 4)
            cin = '0' if (pi == 0 and c == 0 and lam != 0) else d
            return f'v_mfma_f32_16x16x32_bf16 {d}, {ar(4 * (5 * (4 * pi + c) + nt), 4)}, {vr(FR[pi][n], 4)}, {cin}'
        ex = [{i: [] for i in range(80)} for _ in range(3)]
        for k, x in enumerate(setup):
            ex[0][k].append(x)
        def put(pos, x):
            ex[pos // 80][pos % 80].append(x)
        if o.get('ldb', -1) >= 0:
            put(o['ldb'], poll_ld(1))
        cb_, cc_ = o.get('chkb', 5 * (16 - LA)), 80 + o.get('chkc', 44)
        put(cb_, [poll_chk(1), lambda: self.stamp('chkb')])
        put(o.get('sigc', 40), [sig(2, 'act5'), lambda: self.stamp('sigc')])
        put(80 + o.get('ldc', 28), poll_ld(2))
        put(cc_, [lambda: self.stamp('chkc0'), poll_chk(2), lambda: self.stamp(11)])
        pos = 0
        for g in range(LA, 48):
            pos = max(pos + (o.get('burst', 2) if g >= 16 else 0), o.get('g_gap', 5) * (g - LA) if g < 32 else 5 * (g - LA),
                      cb_ if g >= 16 else 0, cc_ if g >= 32 else 0)
            assert pos < 20 * (g // 4)
            put(pos, act_ld(g // 16, g % 16))
            if g < 32 and wd and 32 - g <= len(wd) + o.get('wdp_early', 0):
                put(pos + 2, wd.pop(0))
        assert not wd
        chain = o.get('chain', 1)
        for blk, lam in enumerate((3, 2, 1)):
            for nt in range(5):
                ex[2][20 * blk + 4 * nt + 12 if chain else 20 * (blk + 1) + 5 + 2 * nt].append(
                    f'ds_write_b128 v{vRW + lam - 1}, {vr(G2 + 4 * (5 * lam + nt), 4)} offset:{1024 * nt}')
        RD, RR = 152, 8
        red2 = o.get('red2', 1)

        def rd_part(s_, nt):
            return f'ds_read_b128 {vr(RD + 12 * nt + 4 * s_, 4)}, v{vRR} offset:{5120 * s_ + 1024 * nt}'
        if red2:
            assert chain
            b1, b2 = o.get('rb1', 52), o.get('rb2', 72)
            ex[2][b1] += [f's_waitcnt lgkmcnt({(b1 - 48) // 4})', 's_barrier']
            k = 0
            for nt in range(5):
                for s_ in (2, 1):
                    ex[2][b1 + 1 + k].append(rd_part(s_, nt))
                    k += 1
            adds = [f'v_add_f32 v{RD + 12 * nt + 4 + r}, v{RD + 12 * nt + 4 + r}, v{RD + 12 * nt + 8 + r}'
                    for nt in range(5) for r in range(4)]
            for k, x in enumerate(adds):
                ex[2][min(79, b1 + 12 + k // 2)].append(x)
            ex[2][b2] += ['s_waitcnt lgkmcnt(0)', 's_barrier']
            for nt in range(5):
                ex[2][min(79, b2 + nt)].append(rd_part(0, nt))
        for pi in range(3):
            for i in range(80):
                if chain:
                    a(mf2(pi, 4 * (i // 20) + (i & 3), i % 20 // 4))
                else:
                    a(mf2(pi, i // 5, i % 5))
                self.stamp(f'm{80 * pi + i}')
                a(ex[pi][i])
            self.stamp('end' + 'ABC'[pi])
        if not red2:
            a('s_waitcnt lgkmcnt(0)')
            a('s_barrier')
            for nt in range(5):
                for s_ in range(3):
                    a(rd_part(s_, nt))
        self.stamp('redbar')
        sc = ' sc1' if o['out_sc1'] else ''
        if red2:
            for nt in range(5):
                for p in range(2):
                    a(f'v_pk_add_f32 {vr(G2 + 4 * nt + 2 * p, 2)}, {vr(G2 + 4 * nt + 2 * p, 2)}, {vr(RD + 12 * nt + 4 + 2 * p, 2)}')
        for nt in range(5):
            b = RD + 12 * nt
            c = G2 + 4 * nt
            for p in range(2):
                a(f'v_pk_add_f32 {vr(c + 2 * p, 2)}, {vr(c + 2 * p, 2)}, {vr(b + 2 * p, 2)}')
                if not red2:
                    a(f'v_pk_add_f32 {vr(b + 4 + 2 * p, 2)}, {vr(b + 4 + 2 * p, 2)}, {vr(b + 8 + 2 * p, 2)}')
            for p in range(2):
                if not red2:
                    a(f'v_pk_add_f32 {vr(c + 2 * p, 2)}, {vr(c + 2 * p, 2)}, {vr(b + 4 + 2 * p, 2)}')
            for p in range(2):
                a(f'v_cvt_pk_bf16_f32 v{RR + 2 * nt + p}, v{c + 2 * p}, v{c + 2 * p + 1}')
            if nt & 1:
                a(f'ds_write_b128 v{vTW}, {vr(RR + 2 * nt - 2, 4)} offset:{64 * (nt >> 1)}')
            if nt == 4:
                a(f'ds_write_b64 v{vTW + 1}, {vr(RR + 8, 2)} offset:128')
        for k in range(3):
            a(f'ds_read_b128 {vr(RR + 12 + 4 * k, 4)}, v{vTR} offset:{6 * 176 * k}')
        a('s_mov_b32 exec_hi, 0xfffffff')
        for k in range(3):
            if k == 2:
                a('s_mov_b32 exec_hi, 0xff')
            a(f'buffer_store_dwordx4 {vr(RR + 12 + 4 * k, 4)}, v{vOut}, {sr(S_OUT, 4)}, {("0", f"s{sT4}", f"s{sT5}")[k]} offen{sc}')
        a('s_mov_b32 exec_hi, -1')
        lz = a.label('nz')
        a('s_cmp_lg_u32 s2, 0')
        a(f's_cbranch_scc1 {lz}')
        with a.untracked():
            a(f'buffer_store_dword v{BP}, off, {sr(S_DBG, 4)}, 0 sc1')
            a(f'buffer_store_dword v{BP}, off, {sr(S_DBG, 4)}, 0 offset:128 sc1')
        a(f'{lz}:')
        if self.diag:
            self.stamp('outst')
            a('s_waitcnt vmcnt(0)')
            self.stamp(12)
            a('s_waitcnt lgkmcnt(0)')
            with self.wave0():
                a(f's_lshl_b32 s{sT0}, s2, 7')
                a(f's_add_u32 s{sT0}, s{sT0}, {STAMP}')
                a(f's_sub_u32 s{S_WS}, s{S_WS}, s0')
                a(f's_subb_u32 s{S_WS + 1}, s{S_WS + 1}, 0')
                a('v_mov_b32 v0, s0')
                a(f'buffer_store_dword v0, off, {WS}, s{sT0} offset:60')
                for i in range(NSTAMP):
                    a(f'v_mov_b32 v0, s{S_STAMP + 2 * i}')
                    a(f'buffer_store_dword v0, off, {WS}, s{sT0} offset:{4 * i}')
        if self.opt.get('fixt'):
            with a.untracked():
                fs = S_STAMP + 2 * self.opt.get("fixs", 0)
                if self.opt.get('fixmax'):
                    lo, hi = {'all': (0, 256), 'conv': (0, 160), 'side': (160, 256)}[self.opt['fixmax']]
                    a(f's_cmp_lg_u32 s{S_W}, 0')
                    a('s_cbranch_scc1 .Lend')
                    a(f's_sub_u32 s{sT0}, s2, {lo}')
                    a(f's_cmp_lt_u32 s{sT0}, {hi - lo}')
                    a(f's_cselect_b32 s{sT0}, s{fs}, 0')
                    a(f'v_mov_b32 v1, s{sT0}')
                    a('s_mov_b64 exec, 1')
                    a(f'buffer_atomic_umax v1, off, {sr(S_DBG, 4)}, 0 offset:64 sc1')
                    a('s_cmp_lg_u32 s2, 0')
                    a('s_cbranch_scc1 .Lend')
                    a('.Lfix0:')
                    a(f's_memrealtime {sr(sT0, 2)}')
                    a('s_waitcnt lgkmcnt(0)')
                    a(f's_sub_u32 s{sT0}, s{sT0}, s{S_STAMP}')
                    a(f's_cmp_lt_u32 s{sT0}, 3500')
                    a('s_cbranch_scc1 .Lfix0')
                    a(f'buffer_load_dword v1, off, {sr(S_DBG, 4)}, 0 offset:64 sc1')
                    a('s_waitcnt vmcnt(0)')
                    a(f'v_readfirstlane_b32 s{sT3}, v1')
                    a('s_nop 4')
                    fs = sT3
                a(f's_cmp_lg_u32 s2, {self.opt.get("fixwg", 0)}')
                a('s_cbranch_scc1 .Lend')
                a(f's_cmp_lg_u32 s{S_W}, 0')
                a('s_cbranch_scc1 .Lend')
                a(f's_sub_u32 s{sT2}, s{fs}, s{S_STAMP + 2 * self.opt.get("fixb", 0)}')
                a(f's_mul_i32 s{sT2}, s{sT2}, 10')
                a(f's_min_u32 s{sT2}, s{sT2}, 100000')
                a(f's_add_u32 s{sT2}, s{sT2}, {self.opt["fixt"]}')
                a('.Lfix:')
                a(f's_memrealtime {sr(sT0, 2)}')
                a('s_waitcnt lgkmcnt(0)')
                a(f's_sub_u32 s{sT0}, s{sT0}, s{S_STAMP}')
                a(f's_cmp_lt_u32 s{sT0}, s{sT2}')
                a('s_cbranch_scc1 .Lfix')
        a('.Lend:')
        a('s_endpgm')

    def build(self):
        a = self.a
        if self.diag:
            for i in range(2 * NSTAMP):
                a(f's_mov_b32 s{S_STAMP + i}, 0')
        self.prologue()
        self.conv()
        self.gemms()
        self.side()
        for c in self.cold:
            a.fresh()
            a('s_nop 7')
            c()
        a('.Lcode_end:')
        a('s_endpgm')
        pads = (self.opt.get('base', 0x300), NPAD, sr(sRet, 2), '.Lend', self.opt.get('pstride', 4096)) if self.opt['pads'] else None
        body = a.finish(verbose=True, align=self.opt.get('align', 1), pads=pads)
        body += '.p2align 12\n    s_endpgm\n'
        ref = open('cdna_kernels/' + NAME + '.s.ref').read().split('\n')
        head = [l for l in ref if l.startswith(';') and '@launch' not in l and 'Override' not in l and 'grid=ceil' not in l]
        txt = '\n'.join(head) + '\n'
        txt += '; One persistent launch: kv/transposition -> Toeplitz-MFMA long conv -> gate/up GEMM + GEGLU -> down GEMM.\n'
        txt += '; @launch grid=(256,1,1) block=(256,1,1) lds=163840\n'
        txt += f'''.amdgcn_target "amdgcn-amd-amdhsa--gfx950"
.text
.globl {NAME}_kernel
.p2align 8
.type {NAME}_kernel,@function
{NAME}_kernel:
{body}.section .rodata,"a"
.p2align 6
.amdhsa_kernel {NAME}_kernel
  .amdhsa_next_free_vgpr 512
  .amdhsa_next_free_sgpr 102
  .amdhsa_accum_offset 256
  .amdhsa_group_segment_fixed_size 0
  .amdhsa_kernarg_size 104
  .amdhsa_user_sgpr_count 2
  .amdhsa_user_sgpr_kernarg_segment_ptr 1
  .amdhsa_system_sgpr_workgroup_id_x 1
  .amdhsa_float_denorm_mode_32 3
.end_amdhsa_kernel
'''
        return txt


if __name__ == '__main__':
    out = sys.argv[1]
    diag = 'diag' in sys.argv[2:]
    opt = {}
    for x in sys.argv[2:]:
        if '=' in x:
            k, v = x.split('=')
            try:
                v = int(v)
            except ValueError:
                try:
                    v = float(v)
                except ValueError:
                    pass
            opt[k] = v
    open(out, 'w').write(Gen(diag, opt).build())
```

```python
import re
import subprocess

REG_RE = re.compile(r'^(-|\|)?([vas])(\d+|\[(\d+):(\d+)\])\|?$')


def regs_of(tok):
    tok = tok.strip()
    if tok.startswith('abs(') or tok.startswith('-abs('):
        tok = tok[tok.index('(') + 1:-1]
    if tok == 'vcc':
        return [('s', 106), ('s', 107)]
    if tok == 'exec':
        return [('s', 126), ('s', 127)]
    if tok == 'm0':
        return [('s', 124)]
    m = REG_RE.match(tok)
    if not m:
        return []
    f = m.group(2)
    if m.group(4) is not None:
        return [(f, i) for i in range(int(m.group(4)), int(m.group(5)) + 1)]
    return [(f, int(m.group(3)))]


TRANS = ('v_exp_f32', 'v_log_f32', 'v_rcp_f32', 'v_rsq_f32', 'v_sqrt_f32', 'v_sin_f32', 'v_cos_f32')


class Ins:
    def __init__(self, text, untracked=False):
        self.text = text
        self.untracked = untracked
        t = text.split(';')[0].strip()
        self.is_label = t.endswith(':')
        self.is_dir = t.startswith('.') and not self.is_label
        self.op = ''
        self.defs = []
        self.uses = []
        self.kind = 'other'
        self.mods = ''
        if self.is_label or self.is_dir or not t:
            self.kind = 'none'
            return
        parts = t.split(None, 1)
        op = self.op = parts[0]
        rest = parts[1] if len(parts) > 1 else ''
        ops = []
        cur = ''
        depth = 0
        for ch in rest:
            if ch == '[':
                depth += 1
            if ch == ']':
                depth -= 1
            if ch == ',' and depth == 0:
                ops.append(cur.strip())
                cur = ''
            else:
                cur += ch
        if cur.strip():
            ops.append(cur.strip())
        if ops:
            last = ops[-1].split(None, 1)
            ops[-1] = last[0]
            self.mods = last[1] if len(last) > 1 else ''
        self.ops = ops
        R = [regs_of(o) for o in ops]
        allr = [r for x in R for r in x]
        rest1 = [r for x in R[1:] for r in x]
        self.srcA = self.srcB = self.srcC = []
        self.data = []
        if op.startswith('buffer_load') or op.startswith('global_load'):
            self.kind = 'vmem'
            if re.search(r'\blds\b', self.mods) or '_lds_' in op:
                self.uses = allr + [('s', 124)]
            else:
                self.defs = R[0]
                self.uses = rest1
        elif op.startswith('buffer_store') or op.startswith('global_store'):
            self.kind = 'vmem'
            self.uses = allr
            self.data = R[0] if op.startswith('buffer') else R[1]
        elif op.startswith('buffer_atomic'):
            self.kind = 'vmem'
            self.uses = allr
            if re.search(r'\bsc0\b', self.mods):
                self.defs = R[0]
        elif op.startswith('buffer_inv') or op.startswith('buffer_wbl2'):
            self.kind = 'vmem'
        elif op.startswith('ds_read') or op.startswith('ds_bpermute') or op.startswith('ds_swizzle'):
            self.kind = 'ds'
            self.defs = R[0]
            self.uses = rest1
        elif op.startswith('ds_'):
            self.kind = 'ds'
            self.uses = allr
        elif op.startswith('v_mfma'):
            self.kind = 'mfma'
            self.defs = R[0]
            self.uses = rest1
            self.srcA, self.srcB, self.srcC = R[1], R[2], R[3]
            self.passes = 8 if '32x32' in op else 4
        elif op.startswith('v_'):
            self.kind = 'valu'
            base = re.sub(r'_(e32|e64|dpp|sdwa)$', '', op)
            self.base = base
            self.defs = R[0]
            self.uses = rest1
            if base.startswith('v_fmac') or base.startswith('v_dot2c') or base.startswith('v_pk_fmac') \
                    or op.endswith('_dpp') or op.endswith('_sdwa') or base == 'v_writelane_b32':
                self.uses = allr
            if 'swap' in base:
                self.defs = allr
                self.uses = allr
            if base.startswith('v_cmpx'):
                self.defs = R[0] + [('s', 126), ('s', 127)]
        elif op.startswith('s_atomic'):
            self.kind = 'smem'
            self.uses = allr
            if 'glc' in self.mods:
                self.defs = R[0]
        elif op.startswith('s_load') or op.startswith('s_buffer_load') or op in ('s_memtime', 's_memrealtime'):
            self.kind = 'smem'
            self.defs = R[0]
            self.uses = rest1
        elif op.startswith('s_'):
            self.kind = 'salu'
            nodef = ('s_cmp', 's_waitcnt', 's_barrier', 's_branch', 's_cbranch', 's_nop', 's_setprio', 's_sleep',
                     's_endpgm', 's_bitcmp', 's_setpc', 's_set_gpr_idx')
            if any(op.startswith(x) for x in nodef):
                self.uses = allr
            else:
                self.defs = R[0]
                self.uses = rest1
                if 'saveexec' in op:
                    self.defs = R[0] + [('s', 126), ('s', 127)]
                if op.startswith('s_addk') or op.startswith('s_mulk') or op.startswith('s_cmov'):
                    self.uses = allr


def states_of(ins):
    if ins.kind == 'none':
        return 0
    if ins.op == 's_nop':
        return int(ins.ops[0]) + 1
    return 1


def overlap(a, b):
    if not a or not b:
        return False
    return not set(a).isdisjoint(b)


def need_states(p, c):
    n = 0
    pk, ck = p.kind, c.kind
    vdefs = [r for r in p.defs if r[0] != 's']
    sdefs = [r for r in p.defs if r[0] == 's']
    if pk == 'valu':
        isdot = p.base.startswith('v_dot')
        if ck == 'mfma' and overlap(vdefs, c.uses):
            n = max(n, 3 if isdot else 2)
        if ck == 'valu':
            if 'permlane' in c.base and overlap(vdefs, c.uses):
                n = max(n, 2)
            if c.op.endswith('_dpp') and overlap(vdefs, c.uses):
                n = max(n, 2)
            if c.base in ('v_readlane_b32', 'v_readfirstlane_b32') and overlap(vdefs, c.uses):
                n = max(n, 1)
            if p.base in TRANS and overlap(vdefs, c.uses):
                n = max(n, 1)
            if sdefs and overlap(sdefs, c.uses):
                n = max(n, 4 if c.base in ('v_readlane_b32', 'v_writelane_b32') else 2)
            if sdefs and ('s', 106) in sdefs and c.base == 'v_cndmask_b32':
                n = max(n, 2)
            if 'op_sel' in p.mods and overlap(vdefs, c.uses + c.defs):
                n = max(n, 1)
            if ('s', 126) in sdefs:
                n = max(n, 5)
        if isdot and overlap(vdefs, c.uses + c.defs):
            same = ck == 'valu' and c.base == p.base
            if same:
                srcab = [r for o in c.ops[1:3] for r in regs_of(o)]
                if overlap(vdefs, srcab):
                    n = max(n, 3)
            else:
                n = max(n, 3)
        if ck == 'vmem' and sdefs and overlap(sdefs, c.uses):
            n = max(n, 5)
        if ck in ('salu', 'smem') and sdefs and overlap(sdefs, c.uses):
            n = max(n, 2)
        if ck == 'mfma' and ('s', 126) in sdefs:
            n = max(n, 4)
    if pk == 'mfma':
        ps = p.passes
        if ck == 'mfma':
            if overlap(p.defs, c.srcA + c.srcB):
                n = max(n, ps + 4)
            if overlap(p.defs, c.srcC):
                if not (p.defs == c.srcC and p.passes == c.passes):
                    n = max(n, ps + 2)
            elif overlap(p.defs, c.defs):
                n = max(n, ps + 4)
        elif ck in ('valu', 'vmem', 'ds'):
            if overlap(p.defs, c.uses + c.defs):
                n = max(n, ps + 4)
            if overlap(p.srcC, c.defs):
                n = max(n, ps - 1)
    if pk == 'vmem' and len(p.data) >= 3:
        if overlap(p.data, c.defs):
            n = max(n, 2)
    if pk == 'salu' and ('s', 124) in p.defs and ck in ('vmem', 'ds') and ('s', 124) in c.uses:
        n = max(n, 1)
    return n


class Asm:
    def __init__(self):
        self.items = []
        self._untracked = 0
        self.nlabel = 0

    def __call__(self, text, tag=None):
        if callable(text):
            text()
            return
        if isinstance(text, (list, tuple)):
            for x in text:
                self(x)
            return
        for line in text.split('\n'):
            line = line.strip()
            if line:
                i = Ins(line, self._untracked > 0)
                i.tag = tag
                self.items.append(i)

    def need_tag(self, tag):
        i = Ins('')
        i.kind = 'need'
        i.uses = [('tag', tag)]
        self.items.append(i)

    def label(self, stem='L'):
        self.nlabel += 1
        return f'.L{stem}_{self.nlabel}'

    def mark(self, what, name=None):
        i = Ins('')
        i.kind = 'mark'
        i.what = what
        i.name = name
        self.items.append(i)

    def need(self, *toks):
        i = Ins('')
        i.kind = 'need'
        i.uses = [r for t in toks for r in regs_of(t)]
        self.items.append(i)

    def drain_stores(self):
        i = Ins('')
        i.kind = 'need'
        i.uses = [('store', 0)]
        self.items.append(i)

    def snapshot(self, name):
        self.mark('snap', name)

    def fresh(self, name=None):
        self.mark('fresh', name)

    class _U:
        def __init__(self, a):
            self.a = a

        def __enter__(self):
            self.a._untracked += 1

        def __exit__(self, *x):
            self.a._untracked -= 1

    def untracked(self):
        return Asm._U(self)

    def finish(self, verbose=False, align=True, pads=None, hoist=None):
        out = []
        vm = []
        lg = []
        sm = set()
        snaps = {}
        hist = []
        stats = {'nop': 0, 'wait': 0}

        def emit(i):
            out.append(i)
            if i.kind not in ('none', 'mark'):
                hist.append(i)
                if len(hist) > 24:
                    hist.pop(0)

        for ins in self.items:
            if ins.kind == 'mark':
                if ins.what == 'snap':
                    snaps[ins.name] = (list(vm), list(lg), set(sm))
                elif ins.what == 'fresh':
                    if ins.name:
                        a, b, c = snaps[ins.name]
                        vm, lg, sm = list(a), list(b), set(c)
                    else:
                        vm, lg, sm = [], [], set()
                continue
            if ins.kind == 'none':
                emit(ins)
                continue
            touched = set(ins.uses) | set(ins.defs)
            if ins.op == 's_waitcnt':
                if not ins.untracked:
                    m = re.search(r'vmcnt\((\d+)\)', ins.text)
                    if m:
                        n = int(m.group(1))
                        if len(vm) > n:
                            vm = vm[len(vm) - n:] if n else []
                    m = re.search(r'lgkmcnt\((\d+)\)', ins.text)
                    if m:
                        n = int(m.group(1))
                        if n == 0:
                            sm = set()
                            lg = []
                        elif len(lg) > n:
                            lg = lg[len(lg) - n:]
                emit(ins)
                continue
            wv = wl = None
            for idx in range(len(vm) - 1, -1, -1):
                if vm[idx] & touched:
                    wv = len(vm) - 1 - idx
                    break
            for idx in range(len(lg) - 1, -1, -1):
                if lg[idx] & touched:
                    wl = len(lg) - 1 - idx
                    break
            if sm & touched:
                wl = 0
            if ins.untracked and (wv is not None or wl is not None):
                raise RuntimeError('untracked instruction touches pending register: ' + ins.text)
            if wv is not None or wl is not None:
                s = 's_waitcnt'
                if wv is not None:
                    wv = min(wv, 63)
                    s += f' vmcnt({wv})'
                    vm = vm[len(vm) - wv:] if wv else []
                if wl is not None:
                    wl = min(wl, 15)
                    s += f' lgkmcnt({wl})'
                    lg = lg[len(lg) - wl:] if wl else []
                    if wl == 0:
                        sm = set()
                emit(Ins(s))
                stats['wait'] += 1
            if ins.kind == 'need':
                continue
            need = 0
            dist = 0
            for p in reversed(hist):
                n = need_states(p, ins)
                if n > dist:
                    need = max(need, n - dist)
                dist += states_of(p)
                if dist >= 20:
                    break
            while need > 0:
                k = min(need, 16)
                emit(Ins(f's_nop {k - 1}'))
                stats['nop'] += 1
                need -= k
            emit(ins)
            if not ins.untracked:
                if ins.kind == 'vmem':
                    d = set(ins.defs)
                    if 'store' in ins.op:
                        d.add(('store', 0))
                    if getattr(ins, 'tag', None):
                        d.add(('tag', ins.tag))
                    vm.append(d)
                elif ins.kind == 'ds':
                    lg.append(set(ins.defs))
                elif ins.kind == 'smem':
                    sm |= set(ins.defs)
        if verbose:
            print('auto waits', stats['wait'], 'auto nops', stats['nop'], 'instructions',
                  sum(1 for i in out if i.kind not in ('none', 'mark')))
        out = [i for i in out if i.kind != 'mark']
        if hoist is not None:
            front = []
            for b, e in hoist:
                i0 = [i.text for i in out].index(b)
                i1 = [i.text for i in out].index(e)
                front += out[i0:i1]
                out = out[:i0] + out[i1:]
            sizes_of([i for i in front + out if 'Lpad_' not in i.text])
            fs = sum(i.size for i in front if i.kind != 'none')
            if pads is not None:
                pads = (((fs + 255) & -256) + 0x300,) + tuple(pads[1:])
            if verbose:
                print('front bytes', fs)
            body = self._tail(out, verbose, align, pads, front)
            return ''.join((i.text if i.is_label else '    ' + i.text) + '\n' for i in front), body
        return self._tail(out, verbose, align, pads, [])

    def _tail(self, out, verbose, align, pads, front):
        global EXTRA
        EXTRA = [i for i in front if i.is_label]
        if align:
            out = align8(out, verbose)
        if pads is not None:
            out = add_pads(out, verbose, *pads)
        EXTRA = []
        lines = []
        for i in out:
            lines.append(i.text if i.is_label else '    ' + i.text)
        return '\n'.join(lines) + '\n'


def add_pads(out, verbose, base, npads, ret, stop_label, stride=4096):
    sizes_of([i for i in out if 'Lpad_' not in i.text] )
    res = []
    off = base
    k = 0
    nxt = (base // stride + 1) * stride
    done = False
    prev = None
    where = []
    last_label = ''
    for i in out:
        if i.kind == 'none':
            if i.text.strip() == stop_label + ':':
                done = True
            if i.is_label:
                last_label = i.text
            res.append(i)
            continue
        if not done and k < npads and off >= nxt and (prev.kind == 'mfma' or off >= nxt + 32):
            res += [Ins(f's_branch .Lover_{k}'), Ins(f'.Lpad_{k}:'), Ins(f's_setpc_b64 {ret}'), Ins(f'.Lover_{k}:')]
            where.append((k, hex(off), last_label))
            off += 8
            k += 1
            nxt += stride
        res.append(i)
        off += getattr(i, 'size', 4)
        prev = i
    tail = []
    while k < npads:
        tail.append(Ins(f'.Lpad_{k}:'))
        k += 1
    if tail:
        res += tail + [Ins(f's_setpc_b64 {ret}')]
    if verbose:
        print('pads', where)
    return res


EXTRA = []


def sizes_of(out):
    txt = '\n'.join(i.text for i in EXTRA + out) + '\n'
    r = subprocess.run(['llvm-mc', '-triple=amdgcn-amd-amdhsa', '-mcpu=gfx950', '-show-encoding'],
                       input=txt, capture_output=True, text=True)
    assert r.returncode == 0, r.stderr[:2000]
    sz = [l.split('encoding: [')[1].count(',') + 1 for l in r.stdout.split('\n') if 'encoding: [' in l]
    real = [i for i in out if i.kind != 'none']
    assert len(sz) == len(real), (len(sz), len(real))
    for i, n in zip(real, sz):
        i.size = n


def align8(out, verbose, c_mis=1.35, c_nop=4.0, c_pro=0.05):
    sizes_of([i for i in out if 'Lpad_' not in i.text])
    for i in out:
        if 'Lpad_' in i.text:
            i.size = 4
    real = [i for i in out if i.kind != 'none']
    INF = 1e18
    cost = [0.0, INF]
    back = []
    for i in real:
        nc = [INF, INF]
        nb = [None, None]
        prom = i.size == 4 and i.kind == 'valu' and not i.op.startswith('v_readfirstlane') \
            and not i.op.endswith('_e32') and not i.op.startswith('v_accvgpr') and i.op != 'v_nop'
        for p in range(2):
            if cost[p] >= INF:
                continue
            for nop in (0, 1):
                q = p ^ nop
                for pr in ((0, 1) if prom else (0,)):
                    sz = 8 if pr else i.size
                    c = cost[p] + nop * c_nop + pr * c_pro + (c_mis if sz >= 8 and q else 0)
                    e = q ^ ((sz >> 2) & 1)
                    if c < nc[e]:
                        nc[e] = c
                        nb[e] = (p, nop, pr)
        back.append(nb)
        cost = nc
    p = 0 if cost[0] <= cost[1] else 1
    dec = []
    for nb in reversed(back):
        pp, nop, pr = nb[p]
        dec.append((nop, pr))
        p = pp
    dec.reverse()
    res = []
    k = 0
    n1 = n2 = 0
    for i in out:
        if i.kind == 'none':
            res.append(i)
            continue
        nop, pr = dec[k]
        k += 1
        if nop:
            res.append(Ins('s_nop 0'))
            n1 += 1
        if pr:
            i.text = i.text.replace(i.op, i.op + '_e64', 1)
            n2 += 1
        res.append(i)
    if verbose:
        print('align: nops', n1, 'widened', n2, 'cost', min(cost))
    return res


def vr(base, n=1, f='v'):
    return f'{f}{base}' if n == 1 else f'{f}[{base}:{base + n - 1}]'


def ar(base, n=1):
    return vr(base, n, 'a')


def sr(base, n=1):
    return vr(base, n, 's')
```

```python
import struct
import sys
from asmlib import Asm, vr, ar, sr

NAME = 'sequential_preLN__ssm_conv_h3__geglu_ffn__prompt'

MB = 1 << 20
QS = 16384
CNT = 0
CF3 = 16384
PROBE = 32768
ST1 = 49152
CSF = 65536
STAMP = 98304
PST = 131072
W45F = PST + 262144
WDF = 2 * MB
KVX, KVXT = 4 * MB, 8 * MB
KVM = 36 * MB
XP4, XP4T = 12 * MB, 8 * MB + 524288
HP4, HP4T = 16 * MB, 9 * MB
ACT = 20 * MB
WS_END = 40 * MB
C_F1, C_F1B, C_FX, C_FW, C_FXR, C_B1, C_B2, C_FWR = [4 * i for i in range(8)]


def grp_base(g, main, tail):
    return (main + (g & 3) * 524288 + (g >> 2) * 8192) if g < 8 else tail + (g - 8) * 8192


SPIN = 100000

S_W = 3
S_K, S_V, S_SH, S_SK, S_X, S_WG, S_WU, S_WD, S_OUT, S_DBG, S_WS = 4, 8, 12, 16, 20, 24, 28, 32, 36, 40, 44
S_D = 48
sX, sJ, sG, sM, sQ, sRB, sCB, sA, sB, sRot = 50, 51, 52, 53, 54, 55, 56, 57, 58, 59
sT0, sT1, sT2, sT3, sT4, sT5, sT6, sT7 = 60, 61, 62, 63, 64, 65, 66, 67
sWoff, sWoff2, sSpin, sDv = 68, 69, 70, 71
sOne, sU0, sU1, sU2 = 72, 73, 74, 75
sXo = 1
sRet = 48
NPAD = 8
S_STAMP = 76
NSTAMP = 13
sAB = 4
sL = [8, 9, 10, 11]
sPL, sPH, sFW, sSide, sArr = 16, 17, 18, 19, 23
sE = [None, 12, 13, 14]

GSTR = 4128
GOFF, UOFF, ZOFF = 16384, 33024, 32768
TILE = 40960
WS = sr(S_WS, 4)


def f32(x):
    return '0x%08x' % struct.unpack('<I', struct.pack('<f', x))[0]


class Gen:
    def __init__(self, diag=False, opt=None):
        self.a = Asm()
        self.diag = diag
        self.opt = dict(place=1, w_kv=0, w_e1=10, apoll=9, w_u=0, tb_pre=4, tb_mid=0, ssm=0, sp=31, defer=0, wdp_from=24, a_ahead=14, sig='v', epi_rate=4.5,
                        fx_it=3, early_n=0, out_sc1=1, pads=1, wd_pre=20, wd_post=4, l2=10, wd_p1=11, chkb=20, sigc=39, ssig=4, ldc=24, chkc=38, wd_pre1=8, arr='s')
        if opt:
            self.opt.update(opt)
        self.cold = []

    PROF = {
        'main': [0, 1, 2, 3, 4, 5, 6, 7, 8, 9, 10, 11, 12],
        'front': [0, 'karg', 'issued', 1, 'kvdone', 2, 'tbpre', 'drained', 3, 'tbpost', 4, 'uload', 5],
        'e2': [0, 6, 'zbar', 7, 'hbar', 'hissued', 'hdrained', 'hbar2', 'arrived', 'wwritten', 'polled', 8, 'a0'],
        'g1': [0, 8, 'a0', 'p8', 'p16', 'p24', 'p32', 9, 't3', 't4', 't5', 10, 12],
        'g2a': [0, 't5', 10, 'm4', 'prechk1', 'chk1', 'm24', 'presig2', 'sig2', 'm44', 'm64', 'endA', 'm84'],
        'sum': [0, 'x1', 'x2', 'x3', 'x4', 'x5', 'x6', 7, 8, 'x9', 'x10', 'x11', 12],
        'side': [0, 'sx_in', 'sx_issued', 'sx_data', 'sx_bar', 'sx_st', 'sx_ld2', 'sx_dr', 1, 2, 6, 7, 8],
        'loop': [0, 4, 5, 'it1', 'it2', 'it3', 'it4', 'it5', 'it6', 'it7', 6, 7, 8],
        'g1b': [0, 9, 'q10', 'q20', 't3', 'presig0', 'sig0', 't4', 'prechk0', 'chk0', 'presig1', 'sig1', 't5'],
        'g2': [0, 't5', 10, 'chkb', 'sigc', 'endA', 'chkc0', 11, 'endB', 'endC', 'redbar', 'outst', 12],
    }

    def stamp(self, i):
        prof = self.PROF[self.opt.get('prof', 'main')]
        if self.diag and i in prof:
            i = prof.index(i)
            self.a(f'{"s_memtime" if self.opt.get("cyc") else "s_memrealtime"} {sr(S_STAMP + 2 * i, 2)}')

    def spin_atomic(self, soff, target, depth, vt):
        a = self.a
        top, done = a.label('spin'), a.label('done')
        with a.untracked():
            a(f's_mov_b32 s{sSpin}, {SPIN}')
            for d in range(depth - 1):
                a(f'v_mov_b32 v{vt + d}, 0')
                a(f'buffer_atomic_add v{vt + d}, off, {WS}, {soff} sc0 sc1')
                a(f's_sleep {self.opt.get("pslp", 3)}')
            a(f'{top}:')
            for d in range(depth):
                n = (d + depth - 1) % depth
                a(f'v_mov_b32 v{vt + n}, 0')
                a(f'buffer_atomic_add v{vt + n}, off, {WS}, {soff} sc0 sc1')
                a(f's_waitcnt vmcnt({depth - 1})')
                a(f'v_readfirstlane_b32 s{sT7}, v{vt + d}')
                a(f's_cmp_ge_u32 s{sT7}, {target}')
                a(f's_cbranch_scc1 {done}')
            a(f's_sub_u32 s{sSpin}, s{sSpin}, 1')
            a(f's_cbranch_scc0 {top}')
            a(f'{done}:')

    def spin(self, srd, soff, target, vt):
        a = self.a
        top, done = a.label('spin'), a.label('done')
        with a.untracked():
            a(f's_mov_b32 s{sSpin}, {SPIN}')
            a(f'{top}:')
            a(f'buffer_load_dword v{vt}, off, {sr(srd, 4)}, {soff} sc1')
            a('s_waitcnt vmcnt(0)')
            a(f'v_readfirstlane_b32 s{sT7}, v{vt}')
            a(f's_sub_u32 s{sSpin}, s{sSpin}, 1')
            a(f's_cbranch_scc1 {done}')
            a(f's_cmp_lt_u32 s{sT7}, {target}')
            a(f's_cbranch_scc1 {top}')
            a(f'{done}:')

    def check(self, srd, soff, target, vt, sreg=None):
        a = self.a
        slow, back = a.label('slow'), a.label('back')
        a(f'v_readfirstlane_b32 s{sT7}, v{vt}' if sreg is None else f's_mov_b32 s{sT7}, s{sreg}')
        a(f's_cmp_lt_u32 s{sT7}, {target}')
        a(f's_cbranch_scc1 {slow}')
        a(f'{back}:')

        def cold():
            a(f'{slow}:')
            self.spin(srd, soff, target, vt)
            a(f's_branch {back}')
        self.cold.append(cold)

    def get_pol(self, vt):
        a = self.a
        self.check(S_DBG, '0 offset:128', 1, vt, sU0)
        a(f's_and_b32 s0, s{sT7}, 2')
        a('s_lshl_b32 s0, s0, 20')
        a(f's_add_u32 s{S_WS}, s{S_WS}, s0')
        a(f's_addc_u32 s{S_WS + 1}, s{S_WS + 1}, 0')

    def wave0(self):
        g = self

        class W:
            def __enter__(s):
                s.l = g.a.label('nw0')
                g.a(f's_cmp_lg_u32 s{S_W}, 0')
                g.a(f's_cbranch_scc1 {s.l}')
                s.u = g.a.untracked()
                s.u.__enter__()
                g.a('s_mov_b64 exec, 1')

            def __exit__(s, *x):
                g.a('s_mov_b64 exec, -1')
                s.u.__exit__()
                g.a(f'{s.l}:')
        return W()

    def warm(self, sets):
        if not self.opt['pads']:
            return
        a = self.a
        for w, ks in enumerate(sets):
            if not ks:
                continue
            l = a.label('nw')
            a(f's_cmp_lg_u32 s{S_W}, {w + 1}')
            a(f's_cbranch_scc1 {l}')
            for k in ks:
                a(f's_call_b64 {sr(sRet, 2)}, .Lpad_{k}')
            a(f'{l}:')

    def arrive_start(self, items, pre=None):
        a = self.a
        l = a.label('noarr')
        for r, _ in items:
            a(f's_mov_b32 s{r}, 1')
        a(f's_cmp_lg_u32 s{S_W}, 0')
        a(f's_cbranch_scc1 {l}')
        with a.untracked():
            if pre:
                pre()
            for r, line in items:
                a(f's_atomic_add s{r}, {sr(S_WS, 2)}, s{sXo} offset:{line * 256} glc')
        a(f'{l}:')

    def arrive_finish(self, items, vt):
        a = self.a
        a('s_waitcnt lgkmcnt(0)')
        for r, last, rep in items:
            l = a.label('notlast')
            a(f's_cmp_lg_u32 s{r}, {last}')
            a(f's_cbranch_scc1 {l}')
            with a.untracked():
                a('s_mov_b32 exec_lo, 15')
                a('s_mov_b32 exec_hi, 15')
                a(f'v_lshlrev_b32 v{vt}, 8, v0')
                a(f's_mov_b32 s{sT7}, {rep * 256}')
                a(f'buffer_atomic_add v{self.vOne}, v{vt}, {WS}, s{sT7} offen sc1')
                a('s_mov_b64 exec, -1')
            a(f'{l}:')

    def prologue(self):
        a = self.a
        a('s_cmp_ge_u32 s2, 0x100')
        a('s_cbranch_scc1 .Lend')
        self.stamp(0)
        for srd, off in ((S_K, 8), (S_WS, 96), (S_V, 16), (S_SH, 24), (S_SK, 32), (S_X, 0), (S_WG, 56), (S_WU, 64),
                         (S_WD, 72), (S_OUT, 80), (S_DBG, 88), (S_D, 40)):
            a(f's_load_dwordx2 {sr(srd, 2)}, s[0:1], {off}')
        a('v_lshrrev_b32 v1, 6, v0')
        a(f's_and_b32 s{sX}, s2, 7')
        a(f's_lshr_b32 s{sJ}, s2, 3')
        a(f'v_readfirstlane_b32 s{S_W}, v1')
        a('v_mov_b32 v1, v0')
        a('v_and_b32 v0, 63, v0')
        for srd, n in ((S_K, 2621440), (S_V, 2621440), (S_SH, 5120), (S_SK, 4096), (S_X, 2621440), (S_WG, 1966080),
                       (S_WU, 1966080), (S_WD, 1966080), (S_OUT, 2621440), (S_DBG, 256), (S_WS, WS_END)):
            a(f's_mov_b32 s{srd + 2}, {n}')
            a(f's_mov_b32 s{srd + 3}, 0x20000')
        a(f's_and_b32 s{sM}, s{sJ}, 15')
        a(f's_mov_b32 s{sG}, s{sX}')
        a(f's_cmp_lt_u32 s{sJ}, 16')
        a.snapshot('role')
        a('s_cbranch_scc1 .Lconv')
        a(f's_lshr_b32 s{sG}, s{sX}, 2')
        a(f's_add_u32 s{sG}, s{sG}, 8')
        a(f's_and_b32 s{sT0}, s{sX}, 3')
        a(f's_lshl2_add_u32 s{sM}, s{sT0}, s{sM}')
        a(f's_cmp_lt_u32 s{sJ}, 20')
        a('s_cbranch_scc1 .Lconv')
        with a.untracked():
            a(f's_cmp_lg_u32 s2, {self.opt.get("initwg", 208)}')
            a('s_cbranch_scc1 .Lnoinit')
            a('v_lshrrev_b32 v2, 3, v1')
            a('v_and_b32 v3, 7, v0')
            a('v_lshlrev_b32 v3, 4, v3')
            a('v_lshl_add_u32 v2, v2, 8, v3')
            for i in range(4):
                a(f'v_mov_b32 v{4 + i}, 0')
            a('s_waitcnt lgkmcnt(0)')
            a.fresh()
            a(f'buffer_store_dwordx4 v[4:7], v2, {WS}, 0 offen sc1')
            for off in (0x2000, 2 * MB, 2 * MB + 0x2000):
                a(f's_mov_b32 s{sT0}, {off}')
                a(f'buffer_store_dwordx4 v[4:7], v2, {WS}, s{sT0} offen sc1')
            a('v_mov_b32 v3, 1')
            a('s_waitcnt vmcnt(0)')
            a('s_barrier')
            a(f's_cmp_lg_u32 s{S_W}, 0')
            a('s_cbranch_scc1 .Lside')
            a('s_mov_b64 exec, 1')
            a(f'buffer_store_dword v3, off, {sr(S_DBG, 4)}, 0 sc1')
            a('s_mov_b64 exec, -1')
            a('s_branch .Lside')
            a('.Lnoinit:')
            a(f's_cmp_lg_u32 s2, {self.opt.get("polwg", 216)}')
            a('s_cbranch_scc1 .Lnopol')
            a(f's_and_b32 s{sT1}, s{S_W}, 1')
            a(f's_lshl_b32 s{sT0}, s{sT1}, 13')
            a(f's_lshl_b32 s{sT2}, s{S_W}, 8')
            a(f's_add_u32 s{sT0}, s{sT0}, s{sT2}')
            a(f's_add_u32 s{sT0}, s{sT0}, {PROBE}')
            if 'fpol' in self.opt:
                a(f's_mov_b32 s{sT1}, {self.opt["fpol"]}')
            a(f's_add_u32 s{sT1}, s{sT1}, 1')
            a(f'v_mov_b32 v4, s{sT1}')
            a('v_mov_b32 v5, 0')
            a('v_lshlrev_b32 v2, 2, v0')
            a('s_waitcnt lgkmcnt(0)')
            wu = self.opt.get('pwarm', 1)
            if wu == 1:
                a(f'buffer_store_dword v5, v2, {WS}, s{sT0} offen sc1')
                a('s_waitcnt vmcnt(0)')
            a('s_mov_b64 exec, 1')
            for i in range(0 if wu == 2 else 1, 1 + self.opt.get('hops', 1)):
                if i == 1:
                    a('s_barrier')
                a(f's_mov_b32 s{sT3}, 0')
                a(f's_atomic_add s{sT3}, {sr(S_WS, 2)}, s{sT0} glc')
                a('s_waitcnt lgkmcnt(0)')
            a(f'buffer_atomic_cmpswap v[4:5], off, {sr(S_DBG, 4)}, 0 offset:128 sc1')
            a('s_mov_b64 exec, -1')
            a('s_branch .Lside')
            a('.Lnopol:')
            if self.opt.get('cpf', 1):
                a(f's_getpc_b64 {sr(sT0, 2)}')
                a('.Lpc:')
                a(f's_and_b32 s{sT2}, s{sJ}, 3')
                a(f's_lshl2_add_u32 s{sT2}, s{sT2}, s{S_W}')
                a(f's_mul_i32 s{sT2}, s{sT2}, {18 * 128}')
                a('v_min_u32 v2, 17, v0')
                a(f'v_lshl_add_u32 v2, v2, 7, s{sT2}')
                a('v_min_u32 v2, .Lcode_end-.Lpc-4, v2')
                a('v_mov_b32 v3, 0')
                a(f'v_lshl_add_u64 v[4:5], v[2:3], 0, {sr(sT0, 2)}')
                a('global_load_dword a253, v[4:5], off')
            a('s_branch .Lside')
        a('.Lconv:')
        a.fresh('role')

    def gemm_ids(self):
        a = self.a
        a.need(sr(S_WS, 2))
        a(f's_lshr_b32 s{sT0}, s{sX}, 2')
        a(f's_lshl_b32 s{sT0}, s{sT0}, 5')
        a(f's_and_b32 s{sXo}, s{sX}, 3')
        a(f's_add_u32 s{sXo}, s{sXo}, s{sT0}')
        a(f's_lshl_b32 s{sXo}, s{sXo}, 8')
        a(f's_lshr_b32 s{sRB}, s{sX}, 2')
        a(f's_lshr_b32 s{sT0}, s{sJ}, 2')
        a(f's_lshl3_add_u32 s{sRB}, s{sRB}, s{sT0}')
        a(f's_and_b32 s{sRot}, s{sX}, 3')
        a(f's_and_b32 s{sT0}, s{sJ}, 3')
        a(f's_lshl2_add_u32 s{sCB}, s{sRot}, s{sT0}')
        a(f's_and_b32 s{sT0}, s{sCB}, 1')
        a(f's_mul_i32 s{sA}, s{sCB}, 6')
        a(f's_add_u32 s{sB}, s{sA}, 4')
        a(f's_lshl1_add_u32 s{sA}, s{sT0}, s{sA}')
        a(f's_lshl_b32 s{sT1}, s{sT0}, 2')
        a(f's_sub_u32 s{sB}, s{sB}, s{sT1}')

    vWL, vWLb, vW45, vTmp, vTmp2, vOne, vPS = 254, 253, 252, 250, 249, 248, 251
    WRAW = [8, 40, 72, 104, 136]
    vWW = [232, 233, 234, 243]
    PT = 200

    def real_line(self, r, tmp):
        a = self.a
        if not self.opt.get('swz', 1):
            return
        a(f's_sub_u32 s{tmp}, s{r}, 3')
        a(f's_cmp_lt_u32 s{tmp}, 2')
        a(f's_cselect_b32 s{tmp}, 7, 0')
        a(f's_xor_b32 s{r}, s{r}, s{tmp}')
        a(f's_sub_u32 s{tmp}, s{r}, 10')
        a(f's_cmp_lt_u32 s{tmp}, 2')
        a(f's_cselect_b32 s{tmp}, 1, 0')
        a(f's_xor_b32 s{r}, s{r}, s{tmp}')

    def w_addr(self):
        a = self.a
        t = self.vTmp
        a(f's_lshr_b32 s{sT1}, s{sA}, 2')
        self.real_line(sT1, sT0)
        a(f's_lshl_b32 s{sT1}, s{sT1}, 7')
        a(f'v_and_b32 v{t}, 7, v0')
        a(f'v_lshl_add_u32 v{self.vWLb}, v{t}, 4, s{sT1}')
        a(f's_lshr_b32 s{sT0}, s{S_W}, 1')
        a(f's_lshl_b32 s{sT0}, s{sT0}, 6')
        a(f's_mul_i32 s{sWoff}, s{sRot}, 160')
        a(f's_add_u32 s{sWoff}, s{sWoff}, s{sT0}')
        a(f's_mul_i32 s{sT0}, s{sCB}, {80 * 1024}')
        a(f's_add_u32 s{sT0}, s{sT0}, {W45F}')
        a(f'v_lshl_add_u32 v{self.vW45}, v0, 4, s{sT0}')
        a(f's_mul_i32 s{sWoff2}, s{sRot}, 10')
        a(f's_add_u32 s{sWoff2}, s{sWoff2}, s{S_W}')
        a(f's_lshl_b32 s{sWoff2}, s{sWoff2}, 10')
        a(f'v_mov_b32 v{self.vOne}, 1')
        a(f's_and_b32 s{sT0}, s{sRB}, 7')
        a(f's_lshr_b32 s{sT1}, s{S_W}, 1')
        a(f's_lshl1_add_u32 s{sT0}, s{sT0}, s{sT1}')
        a(f's_lshr_b32 s{sT1}, s{sRB}, 3')
        a(f's_lshl1_add_u32 s{sT0}, s{sT0}, s{sT1}')
        a(f's_and_b32 s{sT1}, s{S_W}, 1')
        a(f's_lshl1_add_u32 s{sT0}, s{sT0}, s{sT1}')
        a(f's_lshl_b32 s{sT0}, s{sT0}, 12')
        a(f'v_and_b32 v{t}, 31, v0')
        a(f'v_lshl_add_u32 v{self.vPS}, v{t}, 3, s{sT0}')
        a(f'v_lshrrev_b32 v{t}, 5, v0')
        a(f'v_lshl_add_u32 v{self.vPS}, v{t}, 11, v{self.vPS}')

    def w_select(self):
        a = self.a
        a(f's_bitcmp1_b32 s{S_W}, 0')
        a(f's_cselect_b32 s{S_WG}, s{S_WU}, s{S_WG}')
        a(f's_cselect_b32 s{S_WG + 1}, s{S_WU + 1}, s{S_WG + 1}')
        for i in range(1, 4):
            a(f's_movk_i32 s{sE[i]}, {6144 * i}')
        a(f's_movk_i32 s15, 3072')

    def clear_pst(self, v2):
        return [f'v_mov_b32 v{v2}, -1', f'v_mov_b32 v{v2 + 1}, -1',
                f's_lshl_b32 s{sU0}, s{sCB}, 8', f's_add_u32 s{sU0}, s{sU0}, {PST}',
                ['s_mov_b32 exec_hi, 0',
                 f'buffer_store_dwordx2 {vr(v2, 2)}, v{self.vPS}, {WS}, s{sU0} offen sc1',
                 's_mov_b32 exec_hi, -1']]

    def w_loads_main(self, park=False):
        out = []
        t, t2 = self.vTmp, self.vTmp2
        for b in range(5):
            for e in range(8):
                g = []
                if e == 0:
                    g = [f'v_and_b32 v{t}, 56, v0', f'v_add_u32 v{t}, s{sWoff}, v{t}', f'v_subrev_u32 v{t2}, 640, v{t}',
                         f'v_min_u32 v{t}, v{t}, v{t2}', f'v_mad_u32_u24 v{self.vWL}, v{t}, s15, v{self.vWLb}',
                         f's_add_u32 s{sWoff}, s{sWoff}, 128']
                so = f's{sE[e >> 1]}' if e >> 1 else '0'
                dst = vr(self.WRAW[b] + 4 * e, 4)
                if b == 4 and park:
                    dst = ar(208 + 4 * e, 4) if park == 1 else vr(self.WRAW[0] + 4 * e, 4)
                g.append(f'buffer_load_dwordx4 {dst}, v{self.vWL}, {sr(S_WG, 4)}, {so} offen offset:{3072 * (e & 1)}')
                out.append(g)
        return out

    def w_loads_tail(self):
        out = []
        for i in range(20):
            if i & 1:
                g = [f's_add_u32 s{sU1}, s{sWoff2}, {TILE}',
                     f'buffer_load_dwordx4 {ar(160 + 4 * i, 4)}, v{self.vW45}, {WS}, s{sU1} offen sc1']
            else:
                g = []
                if i:
                    g = [f's_add_u32 s{sWoff2}, s{sWoff2}, 4096',
                         [f's_sub_u32 s{sU1}, s{sWoff2}, {TILE}', f's_cselect_b32 s{sWoff2}, s{sWoff2}, s{sU1}']]
                g.append(f'buffer_load_dwordx4 {ar(160 + 4 * i, 4)}, v{self.vW45}, {WS}, s{sWoff2} offen sc1')
            out.append(g)
        return out

    def w_write_addr(self):
        a = self.a
        t, t2 = self.vTmp, self.vTmp2
        a(f's_lshr_b32 s{sT0}, s{S_W}, 1')
        a(f's_lshl_b32 s{sT0}, s{sT0}, 12')
        a(f's_and_b32 s{sT1}, s{S_W}, 1')
        a(f's_lshl_b32 s{sT1}, s{sT1}, 7')
        a(f's_add_u32 s{sT0}, s{sT0}, s{sT1}')
        a(f'v_lshrrev_b32 v{t}, 3, v0')
        a(f'v_lshl_add_u32 v{t}, v{t}, 9, s{sT0}')
        a(f'v_and_b32 v{t2}, 1, v0')
        a(f'v_lshl_add_u32 v{t}, v{t2}, 6, v{t}')
        a(f'v_bfe_u32 v{t2}, v0, 1, 2')
        a(f's_mov_b32 s{sT0}, {TILE + 16}')
        a(f'v_mad_u32_u24 v{self.vWW[0]}, v{t2}, s{sT0}, v{t}')
        for q in range(1, 4):
            a(f'v_xor_b32 v{self.vWW[q]}, {16 * q}, v{self.vWW[0]}')
        a(f's_mov_b32 s{sPL}, 0x05040100')
        a(f's_mov_b32 s{sPH}, 0x07060302')

    def w_writes_main(self, b4=None):
        out = []
        for b in range(5):
            for c8 in range(8):
                p = self.PT + 4 * (c8 & 3) if b < 5 - self.opt.get('defer', 2) else (228 if c8 & 1 else 242)
                r = (b4 if b == 4 and b4 else self.WRAW[b]) + (c8 >> 1)
                g = [f'v_perm_b32 v{p + d}, v{r + 8 * d + 4}, v{r + 8 * d}, s{sPH if c8 & 1 else sPL}' for d in range(4)]
                g.append(f'ds_write_b128 v{self.vWW[c8 & 3]}, {vr(p, 4)} offset:{b * 8192 + (c8 >> 2) * 256}')
                out.append(g)
        return out

    def conv(self):
        a = self.a
        o = self.opt
        vK, vKh, vC, vR, vSHa, vL16 = 1, 2, 3, 4, 5, 6
        SH = 8
        KR = 16
        VR = 38
        WF = 56
        KF = 72
        O = 120
        SK = 136
        KV = 168
        VF = 200
        vSW, vSR, vKS, vG, vBa, vAa, vZR, vZR2, vUL, vUW, vI7, vGZ, vXS, vHS, vFl, vPrev = range(232, 248)
        ZERO, AD = 224, 240
        vAa2 = vZR2
        kvmix = 0
        a(f's_lshl4_add_u32 s{sQ}, s{sG}, s{sM}')
        a(f'v_and_b32 v{vC}, 15, v0')
        a(f'v_lshrrev_b32 v{vR}, 4, v0')
        a(f's_lshl2_add_u32 s{sT0}, s{sM}, s{S_W}')
        a(f's_mul_i32 s{sT0}, s{sT0}, {32 * 1280}')
        a(f's_lshl_b32 s{sT1}, s{sG}, 7')
        a(f's_add_u32 s{sT0}, s{sT0}, s{sT1}')
        a(f's_movk_i32 s{sT2}, {8 * 1280}')
        a(f'v_lshl_add_u32 v{vK}, v{vC}, 3, s{sT0}')
        a(f'v_mad_u32_u24 v{vK}, v{vR}, s{sT2}, v{vK}')
        a(f'v_subrev_u32 v{vKh}, 3840, v{vK}')
        a(f's_lshl_b32 s{sT1}, s{sG}, 9')
        a(f'v_lshl_add_u32 v{vSHa}, v{vC}, 5, s{sT1}')
        a(f's_movk_i32 s{sT3}, 5120')
        a(f'v_lshlrev_b32 v{vL16}, 4, v0')

        def addr_phase_a():
            a(f'v_subrev_u32 v{vPrev}, 8, v{vL16}')
            a(f's_mul_i32 s{sT0}, s{S_W}, {TILE}')
            a(f's_add_u32 s{sT0}, s{sT0}, {UOFF}')
            a(f's_movk_i32 s{sT1}, 272')
            a(f'v_lshl_add_u32 v{vSW}, v{vR}, 4, s{sT0}')
            a(f'v_mad_u32_u24 v{vSW}, v{vC}, s{sT1}, v{vSW}')
            a(f'v_lshl_add_u32 v{vSR}, v{vC}, 4, s{sT0}')
            a(f'v_mad_u32_u24 v{vSR}, v{vR}, s{sT1}, v{vSR}')
            a(f'v_add_u32 v{vUW}, s{sT0}, v{vL16}')
            a(f's_add_u32 s{sT0}, s{sT0}, 32')
            a(f'v_lshl_add_u32 v{vBa}, v{vC}, 5, s{sT0}')
            a(f'v_lshl_add_u32 v{vBa}, v{vR}, 4, v{vBa}')
            a(f's_and_b32 s{sT0}, s{sG}, 3')
            a(f's_lshl_b32 s{sT0}, s{sT0}, 19')
            a(f's_cmp_lt_u32 s{sG}, 8')
            a(f's_cselect_b32 s{sT4}, s{sT0}, {KVXT - KVX}')
            a(f's_lshr_b32 s{sT0}, s{sX}, 2')
            a(f's_lshl_b32 s{sT0}, s{sT0}, 13')
            a(f's_add_u32 s{sT4}, s{sT4}, s{sT0}')
            a(f's_and_b32 s{sT0}, s{sM}, 8')
            a(f's_add_u32 s{sT0}, s{sT0}, s{sM}')
            a(f's_lshl2_add_u32 s{sT1}, s{sT0}, s{S_W}')
            a(f's_lshl_b32 s{sT1}, s{sT1}, 8')
            a(f's_add_u32 s{sT0}, s{sT4}, s{sT1}')
            a(f's_mov_b32 s{sT1}, {2 * QS}')
            if kvmix:
                a(f's_lshl2_add_u32 s{sT1}, s{sM}, s{S_W}')
                a(f's_lshl_b32 s{sT1}, s{sT1}, 8')
                a(f's_lshl_b32 s{sT0}, s{sG}, 18')
                a(f's_add_u32 s{sT0}, s{sT0}, s{sT1}')
                a(f's_mov_b32 s{sT1}, {QS}')
            a(f'v_lshl_add_u32 v{vKS}, v{vC}, 4, s{sT0}')
            a(f'v_mad_u32_u24 v{vKS}, v{vR}, s{sT1}, v{vKS}')

        def addr_rest():
            self.gemm_ids()
            self.w_addr()
            a(f's_mul_i32 s{sT5}, s{S_W}, {TILE}')
            a(f's_add_u32 s{sT5}, s{sT5}, {GOFF}')
            a(f'v_add_u32 v{vG}, s{sT5}, v{vL16}')
            a(f'v_bfe_u32 v{vAa}, v0, 2, 2')
            a(f'v_sub_u32 v{vAa}, v{vAa}, v{vR}')
            a(f'v_sub_u32 v{vAa}, v{vAa}, v{vR}')
            a(f's_add_u32 s{sT0}, s{sT5}, 56')
            a(f'v_lshl_add_u32 v{vAa}, v{vAa}, 3, s{sT0}')
            a(f'v_and_b32 v{vI7}, 3, v0')
            a(f's_movk_i32 s{sT1}, {GSTR}')
            a(f'v_mad_u32_u24 v{vAa}, v{vI7}, s{sT1}, v{vAa}')
            a(f'v_add_u32 v{vAa2}, 0x800, v{vAa}')
            a(f'v_and_b32 v{vGZ}, 16, v0')
            a(f'v_add_u32 v{vGZ}, s{sT5}, v{vGZ}')
            a(f'v_mad_u32_u24 v{vGZ}, v{vI7}, s{sT1}, v{vGZ}')
            a(f'v_and_b32 v{vI7}, 7, v0')
            a(f's_lshl_b32 s{sT6}, s{sM}, 15')
            a(f's_add_u32 s{sT6}, s{sT6}, s{sT4}')
            a(f's_lshl_b32 s{sT1}, s{S_W}, 6')
            a(f's_add_u32 s{sT0}, s{sT6}, s{sT1}')
            if kvmix:
                a(f's_lshl_b32 s{sT0}, s{sQ}, 14')
                a(f's_add_u32 s{sT0}, s{sT0}, s{sT1}')
            a(f'v_and_b32 v{vUL}, 3, v0')
            a(f'v_lshl_add_u32 v{vUL}, v{vUL}, 4, s{sT0}')
            a(f'v_lshrrev_b32 v{vXS}, 2, v0')
            a(f'v_lshl_add_u32 v{vUL}, v{vXS}, 8, v{vUL}')
            a(f's_lshl_b32 s{sT0}, s{S_W}, 12')
            a(f'v_add_u32 v{vXS}, s{sT0}, v{vL16}')
            a(f's_lshl_b32 s{sT1}, s{sQ}, 14')
            a(f's_add_u32 s{sT0}, s{sT0}, s{sT1}')
            a(f's_mov_b32 s{sT1}, {HP4}')
            a(f's_cmp_lt_u32 s{sQ}, 120')
            a(f's_cselect_b32 s{sT1}, s{sT1}, {HP4T - 120 * QS}')
            a(f's_add_u32 s{sT0}, s{sT0}, s{sT1}')
            a(f'v_add_u32 v{vHS}, s{sT0}, v{vL16}')
            a(f's_lshl_b32 s{sT0}, s{S_W}, 11')
            a(f's_add_u32 s{sT0}, s{sT0}, {ZOFF}')
            a(f'v_add_u32 v{vZR}, s{sT0}, v{vL16}')
            for i in range(4):
                a(f'v_mov_b32 v{ZERO + i}, 0')
        if o.get('addr_early', 0) >= 1:
            addr_phase_a()
        if o.get('addr_early', 0) >= 2:
            addr_rest()
        a.need(sr(S_WS, 2))
        self.stamp('karg')
        a(f'buffer_load_dwordx4 {vr(SH, 4)}, v{vSHa}, {sr(S_SH, 4)}, 0 offen')
        a(f'buffer_load_dwordx4 {vr(SH + 4, 4)}, v{vSHa}, {sr(S_SH, 4)}, 0 offen offset:16')
        for r in range(3):
            a(f'buffer_load_dwordx2 {vr(KR + 2 * r, 2)}, v{vKh}, {sr(S_K, 4)}, 0 offen offset:{r * 1280}')
        for r in range(8):
            so = f's{sT3}' if r >= 4 else '0'
            a(f'buffer_load_dwordx2 {vr(KR + 6 + 2 * r, 2)}, v{vK}, {sr(S_K, 4)}, {so} offen offset:{(r & 3) * 1280}')
            a(f'buffer_load_dwordx2 {vr(VR + 2 * r, 2)}, v{vK}, {sr(S_V, 4)}, {so} offen offset:{(r & 3) * 1280}')
        self.stamp('issued')
        if o.get('tlb'):
            a(f'v_lshlrev_b32 v228, {o["tlb"]}, v0')
            a(f'buffer_load_dword v229, v228, {WS}, 0 offen sc1')
            a(f'buffer_load_dword v228, v228, {sr(S_OUT, 4)}, 0 offen sc1')
        if o.get('addr_early', 0) < 1:
            addr_phase_a()
        if o.get('addr_early', 0) < 2:
            addr_rest()
        a(f's_lshl2_add_u32 s{sT0}, s{sQ}, s{S_W}')
        a(f's_lshl_b32 s{sT1}, s{sT0}, 12')
        a(f's_add_u32 s{S_SK}, s{S_SK}, s{sT1}')
        a(f's_addc_u32 s{S_SK + 1}, s{S_SK + 1}, 0')
        a(f's_lshl_b32 s{sT0}, s{sT0}, 1')
        a(f's_and_b32 s{sT0}, s{sT0}, -4')
        a(f's_load_dword s{sDv}, {sr(S_D, 2)}, s{sT0}')
        ssm = []
        for j in range(4):
            ssm.append(f'buffer_load_dwordx4 {vr(SK + 8 * j + 4, 4)}, v{vL16}, {sr(S_SK, 4)}, 0 offen offset:{1024 * j}')
            if j == 0:
                ssm.append(f'buffer_load_dwordx2 {vr(SK + 2, 2)}, v{vPrev}, {sr(S_SK, 4)}, 0 offen')
            else:
                ssm.append(f'buffer_load_dwordx2 {vr(SK + 8 * j + 2, 2)}, v{vL16}, {sr(S_SK, 4)}, 0 offen offset:{1024 * j - 8}')
        if o.get('ssm', 1) == 0:
            a(ssm)
        self.w_select()
        self.warm([[[0], [], []], [[0], [1], []], [[0], [1], [2]]][o.get('warm0', 0)])
        park = o.get('park', 2)
        assert park < 2 or o['w_kv'] + o['w_e1'] + o['w_u'] >= 8
        wl = self.w_loads_main(park)

        def w_some(n):
            for _ in range(n):
                a(wl.pop(0))
        a(f's_mov_b32 s{sT2}, 0xffff0000')
        for ch in range(4):
            for j in range(4):
                src = SH + 2 * ch + (j >> 1)
                if j & 1:
                    a(f'v_and_b32 v{WF + 4 * j + ch}, s{sT2}, v{src}')
                else:
                    a(f'v_lshlrev_b32 v{WF + 4 * j + ch}, 16, v{src}')

        def unpack(dst, src):
            a(f'v_lshlrev_b32 v{dst}, 16, v{src}')
            a(f'v_and_b32 v{dst + 1}, s{sT2}, v{src}')
            a(f'v_lshlrev_b32 v{dst + 2}, 16, v{src + 1}')
            a(f'v_and_b32 v{dst + 3}, s{sT2}, v{src + 1}')
        for r in range(3):
            unpack(KF + 4 * r, KR + 2 * r)
        self.stamp(1)
        for r in range(8):
            unpack(KF + 4 * (r + 3), KR + 2 * (r + 3))
            vf = VF + 4 * (r & 1)
            for j in (3, 2, 1, 0):
                for p in range(2):
                    d = vr(KV + 4 * r + 2 * p, 2)
                    k = vr(KF + 4 * (r + 3 - j) + 2 * p, 2)
                    w = vr(WF + 4 * j + 2 * p, 2)
                    if j == 3:
                        a(f'v_pk_mul_f32 {d}, {k}, {w}')
                    else:
                        a(f'v_pk_fma_f32 {d}, {k}, {w}, {d}')
                if j == 3:
                    unpack(vf, VR + 2 * r)
            for p in range(2):
                d = vr(KV + 4 * r + 2 * p, 2)
                a(f'v_pk_mul_f32 {d}, {d}, {vr(vf + 2 * p, 2)}')
            if r == o.get('pol_r', 4):
                a(f's_load_dword s{sU0}, {sr(S_DBG, 2)}, 0x80')
            if o.get('ssm', 1) == 1 and r >= o.get('ssm_r', 7):
                for _ in range((len(ssm) + 7 - r) // (8 - r)):
                    a(ssm.pop(0))
            if r & 1:
                d = (7 - r) >> 1
                for ch in range(4):
                    a(f'v_cvt_pk_bf16_f32 v{O + 4 * ch + d}, v{KV + 4 * r + ch}, v{KV + 4 * (r - 1) + ch}')
        self.stamp('kvdone')
        if o.get('pol_r', 4) == 8:
            a(f's_load_dword s{sU0}, {sr(S_DBG, 2)}, 0x80')
        for ch in range(4):
            a(f'ds_write_b128 v{vSW}, {vr(O + 4 * ch, 4)} offset:{ch * 64}')
        for j in range(4):
            a(f'ds_read_b128 {vr(KV + 4 * j, 4)}, v{vSR} offset:{j * 1088}')
        assert not kvmix
        self.get_pol(vFl)
        a(f'buffer_load_dword v{vFl}, off, {sr(S_DBG, 4)}, 0 sc1')
        a(f's_mov_b32 s{sT0}, {KVM if kvmix else KVX}')
        for j in range(4):
            a(f'buffer_store_dwordx4 {vr(KV + 4 * j, 4)}, v{vKS}, {WS}, s{sT0} offen sc1')
            if j < 3:
                a(f's_add_u32 s{sT0}, s{sT0}, {4 * QS if kvmix else 8 * QS}')
        self.stamp(2)
        if kvmix and o.get('pol_l', 0) == 0:
            a(f'buffer_load_dword v{vFl}, off, {sr(S_DBG, 4)}, 0 sc1')
        if o.get('ssm', 1) == 2:
            a(ssm)
        a(f'ds_write_b128 v{vUW}, {vr(ZERO, 4)}')
        a(f'ds_write_b128 v{vGZ}, {vr(ZERO, 4)}')

        def table(j):
            D = SK + 8 * j
            Ea, Eb, Db = 184 + 12 * (j & 1), 184 + 12 * (j & 1) + 4, 184 + 12 * (j & 1) + 8

            def wr(rho, reg):
                a(f'ds_write_b128 v{vG}, {vr(reg, 4)} offset:{rho * GSTR + 1024 * j + 32}')
            wr(3, D + 4)
            for i in range(2):
                a(f'v_pk_mov_b32 {vr(Db + 2 * i, 2)}, {vr(D + 2 + 2 * i, 2)}, {vr(D + 4 + 2 * i, 2)} op_sel:[1,0]')
            for i in range(4):
                a(f'v_alignbit_b32 v{Ea + i}, v{D + 3 + i}, v{D + 2 + i}, 16')
            wr(1, Db)
            wr(0, Ea)
            for i in range(4):
                a(f'v_alignbit_b32 v{Eb + i}, v{D + 4 + i}, v{D + 3 + i}, 16')
            wr(2, Eb)
        w_some(o['w_kv'])
        n1, n2 = o['tb_pre'], o['tb_pre'] + o['tb_mid']
        for j in range(n1):
            table(j)
            if kvmix and o.get('pol_l', 0) == j + 1:
                a(f'buffer_load_dword v{vFl}, off, {sr(S_DBG, 4)}, 0 sc1')
        a.need(f's{sDv}')
        a(f's_and_b32 s{sT1}, s{S_W}, 1')
        a(f's_lshl_b32 s{sT1}, s{sT1}, 4')
        a(f's_lshr_b32 s{sDv}, s{sDv}, s{sT1}')
        a(f's_and_b32 s{sDv}, s{sDv}, 0xffff')
        a(f'v_sub_u32 v5, 7, v{vI7}')
        a(f'v_and_b32 v7, 1, v5')
        a(f'v_lshlrev_b32 v7, 4, v7')
        a(f'v_lshlrev_b32 v7, v7, s{sDv}')
        a(f'v_bfe_u32 v1, v0, 3, 1')
        a(f'v_add_u32 v1, 2, v1')
        a(f'v_cmp_eq_u32 vcc, v1, v{vR}')
        a(f'v_cndmask_b32 v7, 0, v7, vcc')
        a(f'v_lshrrev_b32 v5, 1, v5')
        for d in range(4):
            a(f'v_cmp_eq_u32 vcc, {d}, v5')
            a(f'v_cndmask_b32 v1, 0, v7, vcc')
            a(f'v_accvgpr_write_b32 a{AD + d}, v1')
        self.stamp('tbpre')
        a.drain_stores()
        if kvmix:
            self.get_pol(vFl)
        self.stamp('drained')
        a('s_barrier')
        self.stamp(3)
        a(f's_and_b32 s{sT0}, s{sXo}, 0x2000')
        a(f's_add_u32 s{sT0}, s{sT0}, {C_F1B * 256}')
        a(f's_cmp_lt_u32 s{sG}, 8')
        a(f's_cselect_b32 s{sT0}, s{sXo}, s{sT0}')
        with self.wave0():
            self.check(S_DBG, '0', 1, vFl)
            if o.get('apoll') == 9:
                a(f's_mov_b32 s{sU2}, 1')
                a(f's_atomic_add s{sU2}, {sr(S_WS, 2)}, s{sT0} glc')
            else:
                a(f'buffer_atomic_add v{self.vOne}, off, {WS}, s{sT0} sc1')
        w_some(o['w_e1'])
        for j in range(n1, n2):
            table(j)
        ACC = 128
        BUF = (0, 64)
        XR, SR, XF = 136, 152, 168

        def rdA(it, t):
            o0 = 8 * it + 64 * (t & 3)
            return f'ds_read2_b64 {ar(BUF[it & 1] + 4 * t, 4)}, v{vAa2 if t & 4 else vAa} offset0:{o0} offset1:{o0 + 1}'

        def rdB(it, t):
            return f'ds_read_b128 {ar(BUF[it & 1] + 32 + 4 * t, 4)}, v{vBa} offset:{448 - 64 * it + 512 * t}'
        if n2 == 4:
            for t in range(8):
                a(rdA(0, t))
        self.stamp('tbpost')
        self.warm([[[1, 4], [2, 5], [3]], [[2, 5], [3], [4]], [[3], [4], [5]]][o.get('warm0', 0)])
        with self.wave0():
            if o.get('apoll') == 9:
                top, done = a.label('spin'), a.label('done')
                a(f's_mov_b32 s{sSpin}, {SPIN}')
                a('s_waitcnt lgkmcnt(0)')
                a(f's_cmp_ge_u32 s{sU2}, 15')
                a(f's_cbranch_scc1 {done}')
                a(f'{top}:')
                a(f's_mov_b32 s{sU2}, 0')
                a(f's_atomic_add s{sU2}, {sr(S_WS, 2)}, s{sT0} glc')
                a(f's_sub_u32 s{sSpin}, s{sSpin}, 1')
                a(f's_cbranch_scc1 {done}')
                a('s_waitcnt lgkmcnt(0)')
                a(f's_cmp_lt_u32 s{sU2}, 16')
                a(f's_cbranch_scc1 {top}')
                a(f'{done}:')
                a('s_waitcnt lgkmcnt(0)')
            elif o.get('apoll'):
                self.spin_atomic(f's{sT0}', 16, o['apoll'], 1)
            else:
                self.spin(S_WS, f's{sT0}', 0 if o.get('noe1') else 16, vFl)
        a('s_barrier')
        self.stamp(4)
        a(f's_sub_u32 s{sT0}, {KVM}, s0' if kvmix else f's_mov_b32 s{sT0}, {KVX}')
        for j in range(4):
            a(f'buffer_load_dwordx4 {ar(BUF[1] + 4 * j, 4)}, v{vUL}, {WS}, s{sT0} offen sc1')
            if j < 3:
                a(f's_add_u32 s{sT0}, s{sT0}, {12288 if j == 1 and not kvmix else 4096}')
        w_some(o['w_u'])
        self.w_write_addr()
        a(f'v_add_u32 v{vPrev}, {2 * TILE}, v{vZR}')
        self.conv_ww = self.w_writes_main(self.WRAW[0] if park == 2 else None)
        if park == 2:
            for _ in range(8):
                a(self.conv_ww.pop(0))
        for j in range(n2, 4):
            table(j)
        if n2 < 4:
            for t in range(8):
                a(rdA(0, t))
        a(f's_add_u32 s{sT3}, s{sXo}, {C_FXR * 256}')
        a(f's_mov_b32 s{sT4}, {XP4}')
        a(f's_cmp_lt_u32 s{sG}, 8')
        a(f's_cselect_b32 s{sT4}, s{sT4}, {XP4T - (KVXT - KVX)}')
        a(f's_add_u32 s{sT6}, s{sT6}, s{sT4}')
        a(f's_lshr_b32 s{sT4}, s{S_W}, 1')
        a(f's_lshl_b32 s{sT4}, s{sT4}, 13')
        a(f's_add_u32 s{sT6}, s{sT6}, s{sT4}')
        a(f's_mov_b32 s{sT4}, {ST1}')
        for j in range(4):
            a(f'ds_write_b128 v{vUW}, {ar(BUF[1] + 4 * j, 4)} offset:{512 + 1024 * j}')
            if j == 0:
                self.stamp('uload')
            a(rdB(0, 2 * j))
            a(rdB(0, 2 * j + 1))
        self.stamp(5)
        fx = o['fx_it']
        xl = []
        for T in range(2):
            for p in range(2):
                off = 2048 * T + 1024 * p
                xl.append([f'buffer_load_dwordx4 {vr(XR + 8 * T + 4 * p, 4)}, v{vXS}, {WS}, s{sT6} offen offset:{off} sc1'])
                xl.append([f'buffer_load_dwordx4 {vr(SR + 8 * T + 4 * p, 4)}, v{vXS}, {WS}, s{sT4} offen offset:{off} sc1'])
        if o.get('nowl'):
            wl = [g[:-1] + [[]] for g in wl]
        wt = self.w_loads_tail()
        if park == 2:
            nl = o.get('w45_loop', 12)
            early, late = wl, xl + wt[:nl]
            self.win_pre = []
            self.win_loads = wt[nl:]
        elif park:
            early, late = wl, xl + wt[:12]
            self.win_pre = [f'v_accvgpr_read_b32 v{self.WRAW[4] + i}, a{208 + i}' for i in range(32)]
            self.win_loads = wt[12:]
        else:
            early, late = wl[:-8], xl + wt
            self.win_pre = wl[-8][:-1]
            self.win_loads = [wl[-8][-1]] + wl[-7:]
        tot = len(early) + len(late)
        per = [(tot * (i + 1)) // 8 - (tot * i) // 8 for i in range(8)]
        plan = []
        for it in range(8):
            n = per[it]
            if it <= fx + 1:
                n = min(max(n, o.get('early_n', 0)), len(early))
                plan.append([early.pop(0) for _ in range(n)])
            else:
                rest = late[:8] + early + late[8:] if it == fx + 2 else rest
                early = late = []
                n = (len(rest) + 7 - it) // (8 - it)
                plan.append([rest.pop(0) for _ in range(n)])
        for it in range(8):
            A, B = BUF[it & 1], BUF[it & 1] + 32
            mf = []
            endT = []
            for T in range(8):
                c = ar(ACC + 4 * T, 4)
                if it == 0:
                    mf.append(f'v_mfma_f32_16x16x32_bf16 {c}, {ar(AD, 4)}, {ar(B + 4 * T, 4)}, 0')
                for t in range(T + 1):
                    mf.append(f'v_mfma_f32_16x16x32_bf16 {c}, {ar(A + 4 * t, 4)}, {ar(B + 4 * (T - t), 4)}, {c}')
                endT.append(len(mf) - 1)
            fill = [[] for _ in mf]
            base = 8 if it == 0 else 0
            if it < 7:
                rd = [x for t in range(8) for x in (rdA(it + 1, t), rdB(it + 1, t))]
                for i, x in enumerate(rd):
                    fill[base + 2 * i].append(x)
            zw = [f'ds_write_b128 v{vG}, {ar(ACC + 4 * T, 4)} offset:{ZOFF - GOFF + 1024 * T}' for T in range(8)]
            if it == 7:
                for T in range(o.get('z_in', 7)):
                    fill[max(endT[T] + 5, 6 + 4 * T)].append(zw.pop(0))
            n = len(plan[it])
            pos = base
            for i, g in enumerate(plan[it]):
                p = max(base + ((i + 1) * 35) // n, pos)
                k = len(g) - 1
                for z, x in enumerate(g[:-1]):
                    fill[max(pos, p - (k - z + 1) // 2)].append(x)
                fill[p].append(g[-1])
                pos = p
            if it == 0:
                for i, x in enumerate(self.clear_pst(228)):
                    fill[i].append(x)
            spx = o['sp'] >> 3 & 1
            if it == fx and not spx:
                fill[-1].append(f'buffer_load_dword v{vFl}, off, {WS}, s{sT3} sc1')
            if it == fx + 1 and spx:
                fill[o.get('fx_p', 0)].append(f's_load_dword s{sDv}, {sr(S_WS, 2)}, s{sT3}')
            if it == fx + 1:
                fill[-1].append(lambda: self.check(S_WS, f's{sT3}', 0 if o.get('nofx') else 8, vFl, sDv if spx else None))
            if it == 7:
                fill[0].append(f's_add_u32 s{sFW}, s{sT3}, {(C_FWR - C_FXR) * 256}')

            if it == 0:
                unp = []
                for T in range(2):
                    for row in range(4):
                        src = XR + 8 * T + 2 * row
                        xf = XF + 16 * T + 4 * row
                        st = SR + 8 * T + 2 * row
                        unp += [f'v_lshlrev_b32 v{xf}, 16, v{src}', f'v_and_b32 v{xf + 1}, s{sT2}, v{src}',
                                f'v_lshlrev_b32 v{xf + 2}, 16, v{src + 1}', f'v_and_b32 v{xf + 3}, s{sT2}, v{src + 1}']
                        unp += [f'v_fma_f32 v{xf + 32 + c}, v{xf + c}, v{st}, v{st + 1}' for c in range(4)]
            u0 = o.get('unp_at', 36 * 6 + 14)
            for i, x in enumerate(unp):
                p = u0 + (i * (36 * 8 - u0)) // 64
                if p // 36 == it:
                    fill[p % 36].append(x)
            self.stamp(f'it{it}')
            if it > 0:
                a.need(ar(A, 24 if it < 7 else 32), ar(B, 24))
            for m, f in zip(mf, fill):
                a(m)
                a(f)
        self.stamp(6)
        a(zw)
        a('s_waitcnt lgkmcnt(0)')
        a('s_barrier')
        self.stamp('zbar')
        Z = XR
        for T in range(2):
            for ch in range(4):
                a(f'ds_read_b128 {vr(Z + 16 * T + 4 * ch, 4)}, v{vPrev if ch & 2 else vZR} offset:{(ch & 1) * TILE + 1024 * T}')
        for T in range(2):
            for p in range(2):
                ho = XF + 32 + 16 * T + 8 * p
                for b in range(2):
                    row = 2 * p + b
                    for c in range(4):
                        x = XF + 16 * T + 4 * row + c
                        a(f'v_fmac_f32 v{x}, v{x + 32}, v{Z + 16 * T + 4 * c + row}')
                    for c2 in range(2):
                        x = XF + 16 * T + 4 * row + 2 * c2
                        a(f'v_cvt_pk_bf16_f32 v{ho + 2 * b + c2}, v{x}, v{x + 1}')
                a(f'buffer_store_dwordx4 {vr(ho, 4)}, v{vHS}, {WS}, 0 offen offset:{2048 * T + 1024 * p} sc1')
        self.stamp(7)

    def side(self):
        a = self.a
        head = self.opt.get('head', 0)
        if head:
            a('.Lhead_a0:')
        a('.Lside:')
        a.fresh('role')
        self.stamp('sx_in')
        vTid = 1
        a(f's_sub_u32 s{sG}, s{sJ}, 20')
        a(f's_lshl3_add_u32 s{sG}, s{sG}, s{sX}')
        J2, vJ2, sG2, sJo, sJs = 136, 230, sQ, sDv, sM
        vFl = 231
        up = self.opt.get('up', 1)

        def job2_loads():
            a(f's_add_u32 s{sG2}, s{sG}, {48 if self.opt.get("pair", 1) else 0}')
            a(f's_sub_u32 s{sT0}, s{sG2}, 96')
            a(f's_cselect_b32 s{sG2}, s{sG2}, s{sT0}')
            a(f's_cmp_ge_u32 s{sG2}, 72')
            a(f's_cselect_b32 s{sT2}, s{S_WU}, s{S_WG}')
            a(f's_cselect_b32 s{sT3}, s{S_WU + 1}, s{S_WG + 1}')
            a(f's_cselect_b32 s{sT1}, 72, 48')
            a(f's_sub_u32 s{sT1}, s{sG2}, s{sT1}')
            a(f's_lshr_b32 s{sT0}, s{sG2}, 1')
            a(f's_cmp_ge_u32 s{sG2}, 48')
            a(f's_cselect_b32 s{S_WD}, s{sT2}, s{S_WD}')
            a(f's_cselect_b32 s{S_WD + 1}, s{sT3}, s{S_WD + 1}')
            a(f's_cselect_b32 s{sT0}, s{sT1}, s{sT0}')
            self.real_line(sT0, sT2)
            a(f's_and_b32 s{sT2}, s{sG2}, 1')
            a(f's_lshl1_add_u32 s{sT2}, s{sT0}, s{sT2}')
            a(f's_mul_i32 s{sT2}, s{sT2}, {32 * 1280}')
            a(f's_lshl_b32 s{sT0}, s{sT0}, 7')
            a(f's_movk_i32 s{sT1}, 1280')
            a(f's_movk_i32 s{sJs}, 128')
            a(f's_cmp_ge_u32 s{sG2}, 48')
            a(f's_cselect_b32 s{sJo}, s{sT0}, s{sT2}')
            a(f's_cselect_b32 s{sT1}, 3072, s{sT1}')
            a(f's_cselect_b32 s{sJs}, {32 * 3072}, s{sJs}')
            a(f'v_and_b32 v{vJ2}, 7, v0')
            a(f'v_lshlrev_b32 v{vJ2}, 4, v{vJ2}')
            a(f'v_lshrrev_b32 v15, 3, v{vTid}')
            a(f'v_mad_u32_u24 v{vJ2}, v15, s{sT1}, v{vJ2}')
            for j in range(10):
                a(f'buffer_load_dwordx4 {vr(J2 + 4 * j, 4)}, v{vJ2}, {sr(S_WD, 4)}, s{sJo} offen')
                a(f's_add_u32 s{sJo}, s{sJo}, s{sJs}')
        a(f's_cmp_ge_u32 s{sG}, 64')
        a.snapshot('s4')
        a('s_cbranch_scc1 .Ls4')
        XR, WR = 16, J2
        vA, vRow, vS8 = 2, 3, 4
        a(f'v_lshrrev_b32 v{vRow}, 3, v{vTid}')
        a(f'v_and_b32 v{vS8}, 7, v0')
        a(f's_lshr_b32 s{sT0}, s{sG}, 3')
        a(f's_lshl_b32 s{sT0}, s{sT0}, 8')
        a(f's_and_b32 s{sT1}, s{sG}, 3')
        a(f's_lshl2_add_u32 s{sT0}, s{sT1}, s{sT0}')
        a(f's_bfe_u32 s{sT1}, s{sG}, 0x10002')
        a(f's_lshl1_add_u32 s{sT0}, s{sT1}, s{sT0}')
        a(f'v_and_b32 v5, 0xf0, v{vTid}')
        a(f'v_and_b32 v6, 1, v{vRow}')
        a(f'v_add3_u32 v5, v5, v6, s{sT0}')
        a(f's_movk_i32 s{sT1}, 1280')
        a(f'v_lshlrev_b32 v6, 4, v{vS8}')
        a(f'v_mad_u32_u24 v5, v5, s{sT1}, v6')
        for j in range(10):
            a(f'buffer_load_dwordx4 {vr(XR + 4 * j, 4)}, v5, {sr(S_X, 4)}, 0 offen offset:{128 * j}')
        if head:
            a('s_branch .Lhead_a1')
            a('.Lhead_a1:')
        if up == 1:
            job2_loads()
        self.stamp('sx_issued')
        self.gemm_ids()
        self.w_addr()
        vW, vRd, vSt = 5, 6, 7
        a(f's_movk_i32 s{sT1}, 528')
        a(f'v_lshlrev_b32 v{vW}, 3, v{vRow}')
        a(f'v_mad_u32_u24 v{vW}, v{vS8}, s{sT1}, v{vW}')
        a(f'v_and_b32 v{vRd}, 31, v0')
        a(f'v_lshlrev_b32 v{vRd}, 4, v{vRd}')
        a(f'v_lshrrev_b32 v8, 5, v{vTid}')
        a(f'v_mad_u32_u24 v{vRd}, v8, s{sT1}, v{vRd}')
        a(f's_lshl_b32 s{sT0}, s{sG}, 8')
        a(f'v_and_b32 v{vSt}, 15, v0')
        a(f's_and_b32 s{sT1}, s{sT0}, 0x2000')
        a(f's_add_u32 s{sT1}, s{sT1}, s{sT0}')
        a(f'v_lshl_add_u32 v{vSt}, v{vSt}, 4, s{sT1}')
        a(f'v_lshrrev_b32 v8, 4, v{vTid}')
        a(f's_mov_b32 s{sT1}, {2 * QS}')
        a(f'v_mad_u32_u24 v{vSt}, v8, s{sT1}, v{vSt}')
        for j in range(10):
            for o_ in range(2):
                a(f'ds_write_b64 v{vW}, {vr(XR + 4 * j + 2 * o_, 2)} offset:{j * 4224 + o_ * 256}')
        self.stamp('sx_data')
        a(f's_load_dword s{sU0}, {sr(S_DBG, 2)}, 0x80')
        a(f's_load_dword s{sU1}, {sr(S_DBG, 2)}, 0x0')
        if up == 2:
            job2_loads()
            a(f's_lshl_b32 s{sT0}, s{sG}, 8')
        a('s_waitcnt lgkmcnt(0)')
        a('s_barrier')
        self.stamp('sx_bar')
        XO = 96
        for j in range(10):
            a(f'ds_read_b128 {vr(XO + 4 * j, 4)}, v{vRd} offset:{j * 4224}')
        self.get_pol(vFl)
        self.check(S_DBG, '0', 1, vFl, sU1)
        a(f's_mov_b32 s{sOne}, 0x3f803f80')
        for i in range(4):
            a(f'v_mov_b32 v{8 + i}, 0')
        for j in range(10):
            a(f's_mov_b32 s{sT1}, {grp_base(j, XP4, XP4T)}')
            a(f'buffer_store_dwordx4 {vr(XO + 4 * j, 4)}, v{vSt}, {WS}, s{sT1} offen sc1')
            for i in range(4 * j, 4 * j + 4):
                a(f'v_dot2c_f32_bf16 v{8 + (i & 1)}, s{sOne}, v{XR + i}')
                a(f'v_dot2c_f32_bf16 v{10 + (i & 1)}, v{XR + i}, v{XR + i}')
        a('v_add_f32 v8, v8, v9')
        a('v_add_f32 v10, v10, v11')
        for m in ('quad_perm:[1,0,3,2]', 'quad_perm:[2,3,0,1]', 'row_half_mirror'):
            a(f'v_add_f32_dpp v8, v8, v8 {m} row_mask:0xf bank_mask:0xf')
            a(f'v_add_f32_dpp v10, v10, v10 {m} row_mask:0xf bank_mask:0xf')
        a(f'v_mul_f32 v8, {f32(1 / 640)}, v8')
        a(f'v_mul_f32 v10, {f32(1 / 640)}, v10')
        a('v_fma_f32 v10, -v8, v8, v10')
        a('v_max_f32 v10, 0, v10')
        a(f'v_add_f32 v10, {f32(1e-5)}, v10')
        a('v_rsq_f32 v10, v10')
        a('v_lshlrev_b32 v12, 5, v0')
        a('v_mul_f32 v11, -v8, v10')
        a(f's_lshl_b32 s{sT1}, s{S_W}, 6')
        a(f's_add_u32 s{sT1}, s{sT1}, s{sT0}')
        a(f's_add_u32 s{sT1}, s{sT1}, {ST1}')
        a('ds_bpermute_b32 v8, v12, v10')
        a('ds_bpermute_b32 v9, v12, v11')
        a('v_lshlrev_b32 v12, 3, v0')
        a.need('v[8:9]')
        a('s_mov_b64 exec, 0xff')
        a(f'buffer_store_dwordx2 v[8:9], v12, {WS}, s{sT1} offen sc1')
        a('s_mov_b64 exec, -1')
        a('s_branch .Lr1')
        if head:
            a('.Lhead_b0:')
        a('.Ls4:')
        a.fresh('s4')
        T4 = 10240
        a(f's_sub_u32 s{sT4}, s{sG}, 64')
        a(f's_lshr_b32 s{sT5}, s{sT4}, 2')
        a(f's_and_b32 s{sT4}, s{sT4}, 3')
        a(f's_mul_i32 s{sT0}, s{sT4}, 160')
        a(f's_lshl3_add_u32 s{sT0}, s{S_W}, s{sT0}')
        a(f's_mul_i32 s{sT0}, s{sT0}, 3072')
        a(f's_mul_i32 s{sT1}, s{sT5}, 3')
        a(f's_add_u32 s{sT1}, s{sT1}, 1')
        self.real_line(sT1, sT2)
        a(f's_lshl_b32 s{sT1}, s{sT1}, 7')
        a(f's_add_u32 s{sT0}, s{sT0}, s{sT1}')
        a('v_lshrrev_b32 v3, 3, v0')
        a('v_and_b32 v4, 7, v0')
        a(f'v_lshl_add_u32 v2, v4, 4, s{sT0}')
        a(f's_movk_i32 s{sT1}, 3072')
        a(f'v_mad_u32_u24 v2, v3, s{sT1}, v2')
        a(f's_mov_b32 s{sT0}, 0')
        for i in range(10):
            a(f'buffer_load_dwordx4 {vr(XR + 4 * i, 4)}, v2, {sr(S_WU if i & 1 else S_WG, 4)}, s{sT0} offen')
            if i & 1:
                a(f's_add_u32 s{sT0}, s{sT0}, {32 * 3072}')
        if head:
            a('s_branch .Lhead_b1')
            a('.Lhead_b1:')
        if up == 1:
            job2_loads()
        self.stamp('sx_issued')
        self.gemm_ids()
        self.w_addr()
        a(f's_lshl_b32 s{sT0}, s{S_W}, 9')
        a(f'v_lshl_add_u32 v5, v3, 6, s{sT0}')
        a('v_and_b32 v6, 1, v0')
        a('v_lshl_add_u32 v5, v6, 4, v5')
        a('v_bfe_u32 v6, v0, 1, 2')
        a('v_lshlrev_b32 v7, 5, v6')
        a('v_xor_b32 v5, v5, v7')
        a(f's_movk_i32 s{sT0}, {T4}')
        a(f'v_mad_u32_u24 v5, v6, s{sT0}, v5')
        a('v_xor_b32 v6, 32, v5')
        a('v_lshrrev_b32 v7, 5, v0')
        a('v_bfe_u32 v8, v0, 2, 2')
        a('v_lshl_add_u32 v7, v7, 3, v8')
        a('v_lshlrev_b32 v7, 6, v7')
        a('v_and_b32 v8, 3, v0')
        a('v_lshl_add_u32 v7, v8, 4, v7')
        a('v_bfe_u32 v8, v0, 4, 1')
        a('v_lshl_add_u32 v7, v8, 3, v7')
        a(f's_lshl_b32 s{sT1}, s{S_W}, 5')
        a(f'v_xor_b32 v7, s{sT1}, v7')
        a(f's_mul_i32 s{sT1}, s{S_W}, {T4}')
        a(f'v_add_u32 v7, s{sT1}, v7')
        for i in range(10):
            a(f'ds_write_b128 v{6 if i & 1 else 5}, {vr(XR + 4 * i, 4)} offset:{(i >> 1) * 2048}')
        self.stamp('sx_data')
        a(f's_load_dword s{sU0}, {sr(S_DBG, 2)}, 0x80')
        a(f's_load_dword s{sU1}, {sr(S_DBG, 2)}, 0x0')
        if up == 2:
            job2_loads()
        a('s_waitcnt lgkmcnt(0)')
        a('s_barrier')
        self.stamp('sx_bar')
        for j in range(10):
            for e in range(2):
                a(f'ds_read_b64_tr_b16 {vr(XO + 4 * j + 2 * e, 2)}, v7 offset:{1024 * j + 256 * e}')
        a(f's_lshl2_add_u32 s{sT0}, s{sT5}, s{S_W}')
        a(f's_lshl2_add_u32 s{sT0}, s{sT0}, s{sT4}')
        a(f's_mul_i32 s{sT0}, s{sT0}, 10240')
        a(f's_add_u32 s{sT0}, s{sT0}, {W45F}')
        a('v_lshlrev_b32 v9, 4, v0')
        self.get_pol(vFl)
        self.check(S_DBG, '0', 1, vFl, sU1)
        for j in range(10):
            if j and j & 3 == 0:
                a(f's_add_u32 s{sT0}, s{sT0}, 4096')
            a(f'buffer_store_dwordx4 {vr(XO + 4 * j, 4)}, v9, {WS}, s{sT0} offen offset:{(j & 3) * 1024} sc1')
        a('.Lr1:')
        a.fresh()
        self.stamp('sx_st')
        o = self.opt
        assert up >= 1
        a(f's_mov_b32 s{sG}, s{sG2}')
        a(f's_mov_b32 s{sSide}, s{sG2}')
        self.w_select()
        WB = 49152
        T0 = 216
        na, nb, nc = o.get('sw_a', 10), o.get('sw_b', 10), o.get('sw_c', 12)
        assert na + nb + nc <= 32

        def end_r1(younger):
            self.stamp('sx_ld2')
            a(f's_waitcnt vmcnt({younger})')
            a('s_barrier')
            self.stamp('sx_dr')
            self.arrive_start([(sArr, C_FX)])
        a(f's_cmp_ge_u32 s{sG}, 48')
        a('s_cbranch_scc1 .Ls2')
        wl = self.w_loads_main()
        a(wl[:na])
        v8, v9, v10 = T0, T0 + 1, T0 + 2
        a(f'v_lshrrev_b32 v{vRow}, 3, v{vTid}')
        a(f'v_and_b32 v{vS8}, 7, v0')
        a(f's_movk_i32 s{sT1}, 1344')
        a(f'v_lshlrev_b32 v{vW}, 4, v{vS8}')
        a(f'v_mad_u32_u24 v{vW}, v{vRow}, s{sT1}, v{vW}')
        a(f'v_lshrrev_b32 v{v8}, 4, v0')
        a(f'v_bfe_u32 v{v9}, v0, 2, 2')
        a(f'v_lshl_add_u32 v{v8}, v{v8}, 3, v{v9}')
        a(f's_mul_i32 s{sT0}, s{S_W}, 320')
        a(f'v_mov_b32 v{v9}, s{sT0}')
        a(f'v_mad_u32_u24 v{v8}, v{v8}, s{sT1}, v{v9}')
        a(f'v_and_b32 v{v9}, 3, v0')
        a(f'v_lshl_add_u32 v{v10}, v{v9}, 3, v{v8}')
        a(f'v_lshl_add_u32 v{v8}, v{v9}, 4, v{v8}')
        end_r1(na)
        q = wl[na:na + nb]
        for j in range(10):
            a(f'ds_write_b128 v{vW}, {vr(WR + 4 * j, 4)} offset:{WB + 128 * j}')
            if q and j < o.get('sw_b1', 4):
                a(q.pop(0))
        self.arrive_finish([(sArr, 11, C_FXR)], v9)
        self.stamp(1)
        a(q)
        a('s_barrier')
        for cc in range(2):
            for nt in range(5):
                for e in range(2):
                    off = WB + cc * 160 + e * 4 * 1344 + ((nt >> 1) * 64 + (nt & 1) * 8)
                    a(f'ds_read_b64_tr_b16 {ar(4 * (5 * cc + nt) + 2 * e, 2)}, v{v10 if nt == 4 else v8} offset:{off}')
        a(f's_mul_i32 s{sT0}, s{S_W}, 96')
        a(f's_add_u32 s{sT0}, s{sT0}, s{sG}')
        a(f's_mul_i32 s{sT0}, s{sT0}, 5120')
        a(f's_add_u32 s{sT0}, s{sT0}, {WDF}')
        a(f'v_lshlrev_b32 v{v9}, 4, v0')
        for cc in range(2):
            for nt in range(5):
                if nt == 4:
                    a(f's_add_u32 s{sT0}, s{sT0}, 4096')
                a(f'buffer_store_dwordx4 {ar(4 * (5 * cc + nt), 4)}, v{v9}, {WS}, s{sT0} offen offset:{(nt & 3) * 1024} sc1')
            a(f's_add_u32 s{sT0}, s{sT0}, {48 * 5120 - 4096}')
        a('s_branch .Lr2')
        a('.Ls2:')
        a.fresh()
        AC = T0 + 4
        for i in range(10, 20):
            a(f'buffer_load_dwordx4 {vr(J2 + 4 * i, 4)}, v{vJ2}, {sr(S_WD, 4)}, s{sJo} offen')
            a(f's_add_u32 s{sJo}, s{sJo}, s{sJs}')
        for i in range(8):
            a(f'v_mov_b32 v{AC + i}, 0')
        a(f's_mov_b32 s{sT4}, 0x3f80')
        a(f's_mov_b32 s{sT3}, 0x3f800000')
        end_r1(10)
        q = self.w_loads_main()[:na + nb]
        for i in range(80):
            a(f'v_dot2c_f32_bf16 v{AC + 2 * (i & 3)}, s{sT4}, v{J2 + i}')
            a(f'v_dot2c_f32_bf16 v{AC + 1 + 2 * (i & 3)}, s{sT3}, v{J2 + i}')
            if i == 39:
                self.arrive_finish([(sArr, 11, C_FXR)], T0)
                self.stamp(1)
            if i & 1 and i > 39 and q:
                a(q.pop(0))
        a(q)
        a(f'v_lshlrev_b32 v5, 5, v{vTid}')
        a(f'ds_write_b128 v5, {vr(AC, 4)} offset:{WB}')
        a(f'ds_write_b128 v5, {vr(AC + 4, 4)} offset:{WB + 16}')
        a('s_waitcnt lgkmcnt(0)')
        a('s_barrier')
        a('v_bfe_u32 v6, v0, 1, 4')
        a('v_and_b32 v7, 32, v0')
        a('v_add_u32 v6, v6, v7')
        a('v_and_b32 v7, 1, v0')
        a('v_lshl_add_u32 v6, v7, 4, v6')
        a('v_lshlrev_b32 v6, 2, v6')
        for i in range(16):
            a(f'ds_read2st64_b32 {vr(J2 + 2 * i, 2)}, v6 offset0:{WB // 256 + 2 * i} offset1:{WB // 256 + 2 * i + 1}')
        for i in range(1, 16):
            a(f'v_pk_add_f32 {vr(J2, 2)}, {vr(J2, 2)}, {vr(J2 + 2 * i, 2)}')
        a(f'v_add_f32 v{J2}, v{J2}, v{J2 + 1}')
        a(f'v_cvt_pk_bf16_f32 v{T0}, v{J2}, v{J2}')
        a(f'v_lshlrev_b32 v7, 16, v{T0}')
        a(f'v_sub_f32 v7, v{J2}, v7')
        a(f'v_cvt_pk_bf16_f32 v{T0 + 1}, v7, v7')
        a(f's_sub_u32 s{sT0}, s{sG}, 48')
        a(f's_lshl_b32 s{sT0}, s{sT0}, 9')
        a(f's_add_u32 s{sT0}, s{sT0}, {CSF}')
        a('v_lshlrev_b32 v6, 3, v0')
        a(f's_cmp_lg_u32 s{S_W}, 0')
        a('s_cbranch_scc1 .Lr2')
        a(f'buffer_store_dwordx2 {vr(T0, 2)}, v6, {WS}, s{sT0} offen sc1')
        a('.Lr2:')
        a.fresh()
        self.stamp(2)
        a(f's_lshr_b32 s{sT0}, s{sG}, 5')
        a(f's_and_b32 s{sT1}, s{sG}, 15')
        a(f's_lshl4_add_u32 s{sT0}, s{sT0}, s{sT1}')
        a(f's_and_b32 s{sT1}, s{sG}, 16')
        a(f's_lshl2_add_u32 s{sT0}, s{sT1}, s{sT0}')
        a(f's_lshl_b32 s{sT0}, s{sT0}, 7')
        a(f's_add_u32 s{sT0}, s{sT0}, {CF3}')
        a('v_mov_b32 v4, 0')
        a('v_and_b32 v5, 31, v0')
        a('v_lshlrev_b32 v5, 2, v5')
        lf3 = a.label('nof3')
        a(f's_cmp_lg_u32 s{S_W}, 1')
        a(f's_cbranch_scc1 {lf3}')
        with a.untracked():
            a(f'buffer_store_dword v4, v5, {WS}, s{sT0} offen sc1')
        a(f'{lf3}:')
        if o.get('outpf', 2) >= 2:
            big = o.get('outpf', 2) == 3
            a(f's_lshr_b32 s{sT0}, s{sG}, 3')
            a(f's_mul_i32 s{sT0}, s{sT0}, 86')
            a(f's_and_b32 s{sT1}, s{sG}, 7')
            a(f's_lshl_b32 s{sT1}, s{sT1}, 10')
            a(f's_add_u32 s{sT0}, s{sT0}, s{sT1}')
            for i in range(4):
                a(f'v_mov_b32 v{T0 + 4 + i}, 0')
            for k in range(3 if big else 2):
                a(f'v_lshrrev_b32 v6, {3 if big else 2}, v{vTid}')
                a(f'v_add_u32 v6, {k * (32 if big else 64)}, v6')
                a('v_min_u32 v6, 85, v6')
                a(f'v_add_u32 v6, s{sT0}, v6')
                a('v_mul_u32_u24 v6, 320, v6')
                a('v_add_u32 v6, 160, v6')
                a(f'v_and_b32 v6, {-128 if big else -64}, v6')
                a(f'v_and_b32 v7, {7 if big else 3}, v0')
                a('v_lshl_add_u32 v6, v7, 4, v6')
                a(f'buffer_store_dwordx4 {vr(T0 + 4, 4)}, v6, {sr(S_OUT, 4)}, 0 offen sc1')
        a(self.clear_pst(2))
        n0 = na + nb + nc
        a(wl[na + nb:n0])
        a(f's_add_u32 s{sT4}, s{sXo}, {C_FXR * 256}')
        a(f's_add_u32 s{sFW}, s{sT4}, {(C_FWR - C_FXR) * 256}')
        a.drain_stores()
        a('s_waitcnt lgkmcnt(0)')
        a('s_barrier')
        self.stamp(6)
        self.arrive_start([(sArr, C_B1), (sJs, C_FW)])
        a(f'buffer_load_dword v1, off, {WS}, s{sT4} sc1')

        def mid():
            self.arrive_finish([(sJs, 11, C_FWR), (sArr, 31, C_B2)], T0)
            self.check(S_WS, f's{sT4}', 8, 1)
        self.side_window(wl[n0:], mid)
        self.warm([[3], [4], [5]])
        a(f's_waitcnt vmcnt({self.opt["wd_pre"]})')
        self.stamp(7)
        a('s_branch .Ljoin')

    def signal(self, soff, pi):
        a = self.a
        if self.opt.get('ssig', 0) >> pi & 1:
            a(f's_atomic_add s{sU2}, {sr(S_WS, 2)}, {soff}')
        else:
            a('s_mov_b64 exec, 1')
            a(f'buffer_atomic_add v{self.vOne}, off, {WS}, {soff} sc1')
            a('s_mov_b64 exec, -1')

    def gemms(self):
        a = self.a
        o = self.opt
        t, t2 = self.vTmp, self.vTmp2
        L, AB = 0, 8
        vRD = 4
        vAL, vAS, vA2, vWD, vWD2, vCS, vFl = 1, 2, 3, 247, 255, 246, 254
        vW5 = 252
        vS = 232
        BP = 236
        TM = 242
        ACC = 168
        RING1, CS, RING2 = 124, 148, 240
        sF3s, sF3p = sQ, sM
        sRB2w = sG
        kap = [[3 * c + ((pi + 1) % 3 if c & 1 else pi) for c in range(4)] for pi in range(3)]
        wd = []
        for i in range(60):
            g = []
            if i % 5 == 0:
                g.append(f's_mov_b32 s{sWoff}, {WDF + 5120 * kap[i // 20][i // 5 % 4]}')
            g.append(f'buffer_load_dwordx4 {ar(4 * i, 4)}, v{vWD2 if i % 5 == 4 else vWD}, {WS}, s{sWoff} offen offset:{(i % 5 & 3) * 1024} sc1')
            wd.append(g)
        if o.get('nowd'):
            wd = [[] for _ in wd]
        real, setup0 = a, []
        a = setup0.append
        a(f's_and_b32 s{sT0}, s{sJ}, 7')
        a(f's_lshl2_add_u32 s{sT0}, s{sT0}, s{S_W}')
        a(f's_mul_i32 s{sT0}, s{sT0}, {12 * 5120}')
        a(f'v_lshl_add_u32 v{vWD}, v0, 4, s{sT0}')
        a(f'v_add_u32 v{vWD2}, 0x1000, v{vWD}')
        a(f'v_lshlrev_b32 v{vRD}, 4, v0')
        for s in range(1, 4):
            a(f'v_xor_b32 v{t}, {16 * s}, v{vRD}')
            a(f'v_add_u32 v{vRD + s}, {TILE * s}, v{t}')
        a(f'v_lshl_add_u32 v{vW5}, s{S_W}, 10, v{vRD}')
        a(f'v_lshl_add_u32 v{vW5 + 1}, s{S_W}, 10, v{vRD + 1}')
        a(f's_lshl2_add_u32 s{sT0}, s{sRB}, s{S_W}')
        a(f's_lshl_b32 s{sT1}, s{sT0}, 8')
        a(f'v_and_b32 v{t}, 15, v0')
        a(f'v_lshlrev_b32 v{vA2}, 4, v{t}')
        a(f'v_add_u32 v{t}, s{sT1}, v{vA2}')
        a(f'v_lshrrev_b32 v{t2}, 4, v0')
        a(f's_mov_b32 s{sT1}, {QS}')
        a(f'v_mad_u32_u24 v{vAL}, v{t2}, s{sT1}, v{t}')
        a(f'v_lshl_add_u32 v{vA2}, v{t2}, 9, v{vA2}')
        def act_blk(dst, n, tmp):
            a(f's_and_b32 s{tmp}, s{n}, 7')
            a(f's_mul_i32 s{dst}, s{tmp}, 196608')
            a(f's_bfe_u32 s{tmp}, s{n}, 0x20003')
            a(f's_lshl_b32 s{tmp}, s{tmp}, 22')
            a(f's_add_u32 s{dst}, s{dst}, s{tmp}')
            a(f's_lshr_b32 s{tmp}, s{n}, 5')
            a(f's_lshl_b32 s{tmp}, s{tmp}, 13')
            a(f's_add_u32 s{dst}, s{dst}, s{tmp}')

        def f3_line(r, tmp):
            a(f's_and_b32 s{tmp}, s{r}, 16')
            a(f's_mul_i32 s{tmp}, s{tmp}, 3')
            a(f's_add_u32 s{r}, s{r}, s{tmp}')
            a(f's_lshl_b32 s{r}, s{r}, 7')
            a(f's_add_u32 s{r}, s{r}, {CF3}')
        act_blk(sT1, sT0, sT4)
        a(f'v_lshl_add_u32 v{vAS}, v0, 4, s{sT1}')
        a(f's_lshr_b32 s{sF3s}, s{sT0}, 1')
        f3_line(sF3s, sT4)
        a(f's_lshr_b32 s{sT1}, s{sJ}, 3')
        a(f's_lshl2_add_u32 s{sF3p}, s{sX}, s{sT1}')
        a(f's_lshl_b32 s{sRB2w}, s{sF3p}, 1')
        f3_line(sF3p, sT4)
        for i in range(4):
            a(f's_add_u32 s{sT0}, s{sRot}, {i}')
            a(f's_and_b32 s{sT0}, s{sT0}, 3')
            a(f's_mul_i32 s{sT1}, s{sT0}, {40 * QS}')
            a(f's_add_u32 s{sT1}, s{sT1}, {HP4}')
            a([f's_cmp_lt_u32 s{sT0}, 3', f's_cselect_b32 s{sAB + i}, s{sT1}, {HP4T}'])
        a(f'v_and_b32 v{t}, 3, v0')
        a(f'v_bfe_u32 v{t2}, v0, 2, 1')
        a(f'v_lshl_add_u32 v{t}, v{t2}, 3, v{t}')
        a(f'v_bfe_u32 v{t2}, v0, 4, 1')
        a(f'v_lshl_add_u32 v{t}, v{t2}, 2, v{t}')
        a(f'v_lshlrev_b32 v{t}, 4, v{t}')
        a(f'v_bfe_u32 v{t2}, v0, 3, 1')
        a(f's_movk_i32 s{sT1}, 12288')
        a(f'v_mad_u32_u24 v{vCS}, v{t2}, s{sT1}, v{t}')
        a(f's_mov_b32 s{sOne}, 0x3f803f80')
        a(f's_mov_b32 s{sU2}, 1')
        a(f's_lshl_b32 s{sT2}, s{sA}, 7')
        a(f's_add_u32 s{sT2}, s{sT2}, {CSF}')
        a(f's_lshl_b32 s{sT3}, s{sB}, 7')
        a(f's_add_u32 s{sT3}, s{sT3}, {CSF}')
        for r in (sA, sB):
            a(f's_and_b32 s{sT0}, s{r}, -8')
            a(f's_add_u32 s{r}, s{r}, s{sT0}')
            a(f's_lshl_b32 s{r}, s{r}, 10')
            a(f's_add_u32 s{r}, s{r}, {ACT}')
        act_blk(sT6, sRB2w, sT4)
        a(f's_mul_i32 s{sT5}, s{S_W}, 49152')
        a(f's_add_u32 s{sT5}, s{sT5}, s{sT6}')
        for lam in range(4):
            a(f's_xor_b32 s{sT0}, s{S_W}, {lam}')
            a(f's_lshr_b32 s{sT1}, s{sT0}, 1')
            a(f's_mul_i32 s{sT1}, s{sT1}, 196608')
            a(f's_and_b32 s{sT0}, s{sT0}, 1')
            a(f's_lshl_b32 s{sT0}, s{sT0}, 8')
            a(f's_add_u32 s{sT0}, s{sT0}, s{sT5}')
            a(f's_add_u32 s{sL[lam]}, s{sT1}, s{sT0}')
        sRes, sOutB, sQS = 20, 21, 22
        a(f's_lshr_b32 s{sT0}, s{S_W}, 1')
        a(f's_add_u32 s{sT0}, s{sT0}, s{sRB2w}')
        a(f's_lshl_b32 s{sRes}, s{sT0}, 8')
        a(f's_and_b32 s{sT4}, s{S_W}, 1')
        a(f's_lshl3_add_u32 s{sRes}, s{sT4}, s{sRes}')
        a(f's_and_b32 s{sT5}, s{sJ}, 7')
        a(f's_mul_i32 s{sT6}, s{sT5}, {20 * QS}')
        a(f's_add_u32 s{sRes}, s{sRes}, s{sT6}')
        a(f's_mov_b32 s{sT6}, {HP4}')
        a([f's_cmp_lt_u32 s{sT5}, 6', f's_cselect_b32 s{sT6}, s{sT6}, {HP4T - 120 * QS}'])
        a(f's_add_u32 s{sRes}, s{sRes}, s{sT6}')
        a(f's_mov_b32 s{sQS}, {QS}')
        a(f's_lshr_b32 s{sOutB}, s{sRB2w}, 3')
        a(f's_lshl_b32 s{sOutB}, s{sOutB}, 8')
        a(f's_and_b32 s{sT6}, s{sT0}, 3')
        a(f's_lshl2_add_u32 s{sOutB}, s{sT6}, s{sOutB}')
        a(f's_bfe_u32 s{sT6}, s{sRB2w}, 0x10002')
        a(f's_lshl1_add_u32 s{sOutB}, s{sT6}, s{sOutB}')
        a(f's_add_u32 s{sOutB}, s{sOutB}, s{sT4}')
        a(f's_mul_i32 s{sOutB}, s{sOutB}, 1280')
        a(f's_mul_i32 s{sT6}, s{sT5}, 160')
        a(f's_add_u32 s{sOutB}, s{sOutB}, s{sT6}')
        a(f's_lshl_b32 s{sU0}, s{sCB}, 8')
        a(f's_add_u32 s{sU0}, s{sU0}, {PST}')
        a(f's_mov_b32 s{sU1}, {PST}')
        a(f's_and_b32 s{sCB}, s{sCB}, 3')
        a(f's_mul_i32 s{sCB}, s{sCB}, 10')
        a = real
        spw = o['sp'] >> 4 & 1
        fw_ld = f's_load_dword s{sDv}, {sr(S_WS, 2)}, s{sFW}' if spw else f'buffer_load_dword v{TM + 2}, off, {WS}, s{sFW} sc1'
        nw = 40 - 8 * o.get('defer', 2)
        wdp = [wd.pop(0) for _ in range(o['wd_pre'])]

        def mixer(ww, setup, lq, per=6):
            def some(n, nl):
                for i in range(n):
                    a(ww.pop(0))
                    for _ in range(per):
                        if setup:
                            a(setup.pop(0))
                    for _ in range(((i + 1) * nl) // n - (i * nl) // n):
                        if lq:
                            a(lq.pop(0))
            return some

        def side_window(wl, fx_check):
            ww, setup = self.w_writes_main()[:nw], list(setup0)
            self.w_write_addr()
            lq = list(wl)
            hold = [x for x in setup if isinstance(x, str) and (f'v{vW5},' in x or f's{sU1},' in x)]
            setup = [x for x in setup if x not in hold]
            some = mixer(ww, [], lq)
            nl = len(lq)
            n_ = min(nl, nw - 8)
            assert all(40 - nl + (i * nl) // n_ >= 8 * (i // 8 + 1) for i in range(n_))
            some(n_, nl)
            fx_check()
            lq += self.w_loads_tail()
            if o.get('outpf', 2) == 1:
                a(f's_lshr_b32 s{sT0}, s{sSide}, 3')
                a(f's_lshl2_add_u32 s{sT0}, s{sT0}, s{S_W}')
                a(f's_mul_i32 s{sT0}, s{sT0}, {22 * 320}')
                a(f's_and_b32 s{sSide}, s{sSide}, 7')
                a(f's_mul_i32 s{sSide}, s{sSide}, {256 * 1280}')
                a(f's_add_u32 s{sSide}, s{sSide}, s{sT0}')
                a(f'v_min_u32 v{TM}, 21, v0')
                a(f'v_mul_u32_u24 v{TM}, 320, v{TM}')
                lq.insert(o.get('pf_pos', 20), f'buffer_load_dword a255, v{TM}, {sr(S_OUT, 4)}, s{sSide} offen offset:160')
            lq.append(fw_ld)
            mixer(ww, setup, lq)(len(ww), len(lq))
            a(setup)
            a(hold)
            if wdp:
                self.check(S_WS, f's{sFW}', 0 if o.get('nofw') else 8, TM + 2, sDv if spw else None)
            a(wdp)
        self.side_window = side_window
        ww = self.conv_ww
        setup = self.win_pre + setup0
        lq = list(self.win_loads)
        n1, n2 = o.get('ww1', 10), o.get('ww2', 6)
        assert len(ww) - n1 >= 8
        hold = [x for x in setup if isinstance(x, str) and (f'v{vW5},' in x or f's{sU1},' in x)]
        setup[:] = [x for x in setup if x not in hold]
        self.stamp('hbar')
        some = mixer(ww, setup, lq, o.get('su_per', 7))
        assert 5 * o.get('su_per', 7) >= len(self.win_pre)
        some(5, 0)
        fwe = o.get('fwe', 1)
        if wdp and fwe:
            a(fw_ld)
        some(n1 - 5, o.get('l1', 8))
        self.stamp('hissued')
        if wdp and fwe and spw:
            a.need(f's{sDv}')
        a.drain_stores()
        self.stamp('hdrained')
        a('s_barrier')
        self.stamp('hbar2')
        self.arrive_start([(sArr, C_B1)])
        if wdp and not fwe:
            a(fw_ld)
        if wdp and fwe:
            self.check(S_WS, f's{sFW}', 0 if o.get('nofw') else 8, TM + 2, sDv if spw else None)
            nl2 = len(lq) + o.get('l2', 8)
            lq += wdp
            some(n2, nl2)
        else:
            some(n2, len(lq))
        self.arrive_finish([(sArr, 31, C_B2)], TM)
        self.stamp('arrived')
        if wdp and not fwe:
            self.check(S_WS, f's{sFW}', 0 if o.get('nofw') else 8, TM + 2, sDv if spw else None)
            lq += wdp
        some(len(ww), len(lq))
        a(setup)
        a(hold)
        a(lq)
        a('.Ljoin:')
        self.stamp('wwritten')
        a(f's_add_u32 s{sT0}, s{sXo}, {C_B2 * 256}')
        with self.wave0():
            l = a.label('passed')
            if o.get('e2s', 1):
                a(f's_load_dword s{sDv}, {sr(S_WS, 2)}, s{sT0}')
                a('s_waitcnt lgkmcnt(0)')
                a(f's_cmp_ge_u32 s{sDv}, 8')
                a(f's_cbranch_scc1 {l}')
            self.spin(S_WS, f's{sT0}', 0 if o.get('noe2') else 8, t)
            a(f'{l}:')
        self.stamp('polled')
        a('s_waitcnt lgkmcnt(0)')
        a('s_barrier')
        self.stamp(8)
        al = []
        for j in range(40):
            if j % 10 == 0:
                al.append([f'buffer_load_dwordx4 {vr(AB + 4 * j, 4)}, v{vAL}, {WS}, s{sAB + j // 10} offen sc1'])
            else:
                al.append([f's_add_u32 s{sT1}, s{sAB + j // 10}, {(j % 10) * 4 * QS}',
                           f'buffer_load_dwordx4 {vr(AB + 4 * j, 4)}, v{vAL}, {WS}, s{sT1} offen sc1'])
        al.append(f'buffer_load_dwordx4 {ar(CS, 4)}, v{vCS}, {WS}, s{sT2} offen sc1')
        al.append(f'buffer_load_dwordx4 {ar(CS + 4, 4)}, v{vCS}, {WS}, s{sT2} offen offset:256 sc1')
        al.append(f'buffer_load_dwordx4 {ar(CS + 8, 4)}, v{vCS}, {WS}, s{sT3} offen sc1')
        for _ in range(o['a_ahead']):
            a(al.pop(0))

        def rd(dst, slot, j):
            return f'ds_read_b128 {ar(dst, 4)}, v{vRD + slot} offset:{1024 * j}'

        def swaps(j):
            return [f'v_permlane16_swap_b32 v{AB + 4 * j + e}, v{AB + 4 * j + 2 + e}' for e in range(2)]

        def acc(slot):
            return vr(ACC + 16 * slot, 16)
        wtail = [f'ds_write_b128 v{vW5 + (i & 1)}, {ar(160 + 4 * i, 4)} offset:{(i >> 1) * 4096}' for i in range(20)]
        if o.get('nowt'):
            wtail = [[] for _ in wtail]
        C0, C1, R = vS, vS + 1, vS + 2
        c0 = -2.0 * 0.7978845608028654 * 1.4426950408889634
        G = ACC + 48
        gather = [f'buffer_load_dwordx2 {vr(G + 2 * s, 2)}, v{self.vPS}, {WS}, s{sU1} offen offset:{256 * s} sc1'
                  for s in range(8)]
        valid = [f'v_or3_b32 v{t}, v{G + 1}, v{G + 3}, v{G + 5}', f'v_or3_b32 v{t2}, v{G + 7}, v{G + 9}, v{G + 11}',
                 f'v_or3_b32 v{t}, v{t}, v{G + 13}, v{G + 15}', f'v_or_b32 v{t}, v{t}, v{t2}',
                 f'v_cmp_gt_i32 vcc, 0, v{t}']

        def chk_stats():
            slow, back = a.label('slow'), a.label('back')
            a('s_nop 1')
            a(f's_cbranch_vccnz {slow}')
            a(f'{back}:')

            def cold():
                top = a.label('top')
                a(f'{slow}:')
                with a.untracked():
                    a(f's_mov_b32 s{sSpin}, {SPIN}')
                    a(f'{top}:')
                    a(gather)
                    a('s_waitcnt vmcnt(0)')
                    a(valid)
                    a(f's_sub_u32 s{sSpin}, s{sSpin}, 1')
                    a(f's_cbranch_scc1 {back}')
                    a('s_nop 3')
                    a(f's_cbranch_vccnz {top}')
                    a(f's_branch {back}')
            self.cold.append(cold)
        halves = [
            f'v_add_f32 v{vS}, v{vS}, v{vS + 1}',
            f'v_add_f32 v{vS + 2}, v{vS + 2}, v{vS + 3}',
            f'v_mov_b32 v{vS + 1}, v{vS}',
            f'v_mov_b32 v{vS + 3}, v{vS + 2}',
            f'v_cmp_gt_u32 vcc, 32, v{L}',
            f'v_permlane32_swap_b32 v{vS}, v{vS + 1}',
            f'v_permlane32_swap_b32 v{vS + 2}, v{vS + 3}']
        pub = halves + [
            f'v_add_f32 v{G}, v{vS}, v{vS + 1}',
            f'v_add_f32 v{G + 1}, v{vS + 2}, v{vS + 3}',
            f'v_and_b32 v{G + 1}, 0x7fffffff, v{G + 1}',
            ['s_mov_b32 exec_hi, 0',
             f'buffer_store_dwordx2 {vr(G, 2)}, v{self.vPS}, {WS}, s{sU0} offen sc1',
             's_mov_b32 exec_hi, -1']]
        st = valid + [chk_stats]
        for w_ in range(2):
            g = G + w_
            st += [f'v_add_f32 v{g}, v{g}, v{g + 2}', f'v_add_f32 v{g + 4}, v{g + 4}, v{g + 6}',
                   f'v_add_f32 v{g + 8}, v{g + 8}, v{g + 10}', f'v_add_f32 v{g + 12}, v{g + 12}, v{g + 14}',
                   f'v_add_f32 v{vS + 2 * w_}, v{g}, v{g + 4}', f'v_add_f32 v{vS + 2 * w_ + 1}, v{g + 8}, v{g + 12}']
        st += halves + [
            f'v_add_f32 v{vS}, v{vS}, v{vS + 1}',
            f'v_add_f32 v{vS + 2}, v{vS + 2}, v{vS + 3}',
            f'v_mul_f32 v{vS}, {f32(-1 / 640)}, v{vS}',
            f'v_mul_f32 v{vS + 2}, {f32(1 / 640)}, v{vS + 2}',
            f'v_cvt_pk_bf16_f32 v{t}, v{vS}, v{vS}',
            f'v_fma_f32 v{R}, -v{vS}, v{vS}, v{R}',
            f'v_lshlrev_b32 v{t}, 16, v{t}',
            f'v_max_f32 v{R}, 0, v{R}',
            f'v_sub_f32 v{t2}, v{vS}, v{t}',
            f'v_add_f32 v{R}, {f32(1e-5)}, v{R}',
            f'v_cvt_pk_bf16_f32 v{t}, v{t}, v{t2}',
            f'v_rsq_f32 v{vS + 3}, v{R}',
            f'v_cndmask_b32 v{BP + 2}, 0, v{t}, vcc',
            f'v_cndmask_b32 v{BP + 3}, 0, v{t}, vcc',
            f'v_mul_f32 v{C0}, {f32(c0)}, v{vS + 3}',
            f'v_mul_f32 v{t}, v{vS + 3}, v{vS + 3}',
            f'v_mul_f32 v{t}, {f32(0.044715)}, v{t}',
            f'v_mul_f32 v{C1}, v{t}, v{C0}',
        ]

        def csm(tile, slot, first):
            b = vr(BP, 4) if tile & 1 else vr(BP + 2, 4)
            return f'v_mfma_f32_32x32x16_bf16 {acc(slot)}, {ar(CS + 4 * (tile >> 1), 4)}, {b}, {"0" if first else acc(slot)}'

        def pick(r0, r1):
            a(f's_set_gpr_idx_on s{sCB}, gpr_idx(SRC0)')
            a('s_nop 0')
            for r in range(r0, r1):
                a(f'v_mov_b32_e32 v{G + r}, v{AB + r}')
            a('s_set_gpr_idx_off')
        for j in range(2):
            for s in range(3):
                a(rd(RING1 + 12 * j + 4 * s, s, j))
        a(swaps(0))
        self.stamp('a0')
        p2 = [(3, 3, j) for j in range(40)] + [(4, 0, j) for j in range(40)] + [(5, 1, j) for j in range(40)]
        gq = list(gather)
        GJ, SJ = o.get('gather_j', 21), o.get('stat_j', 33)
        BARS = [int(x) for x in str(o.get('bars', '15x27')).split('x')]
        nwd1 = min(o.get('wd_p1', 6), 31 - o['wd_pre'])
        assert not ww
        NR = o.get('ring', 8)
        assert NR == 4 or o['wd_post'] >= 4

        def r2(i):
            return RING2 + 4 * (i & 3) if NR == 4 else 224 + 4 * ((i + 4) & 7)
        misc = [f'v_mov_b32 v{BP + i}, 0' for i in (0, 1, 4, 5)] + [f'v_mov_b32 v{vS + i}, 0' for i in range(4)]
        wdone, wfree = 0, 0
        C1CAP = o.get('cap1', 5)
        for j in range(40):
            base = RING1 + 12 * (j & 1)
            self.stamp(f'p{j}')
            a.need(ar(base, 12))
            for s in range(3):
                c = '0' if j == 0 else acc(s)
                a(f'v_mfma_f32_32x32x16_bf16 {acc(s)}, {ar(base + 4 * s, 4)}, {vr(AB + 4 * j, 4)}, {c}')
                used = 1 if s < 2 else 2
                if j < 38:
                    a(rd(base + 4 * s, s, j + 2))
                else:
                    i = (j - 38) * 3 + s
                    if i < 4:
                        a(rd(r2(i), p2[i][1], p2[i][2]))
                if s == 0 and j < 39:
                    a(swaps(j + 1))
                    used += 3 if j < SJ else 2
                if j == 39:
                    if s == 0:
                        a('s_barrier')
                        wtail = wtail[-4:] + wtail[:-4]
                    else:
                        a(wtail.pop(0))
                elif s == 1 and wdone < wfree:
                    a(wtail.pop(0))
                    wdone += 1
                    used += 4
                if s == 2:
                    if al:
                        a(al.pop(0))
                        used += 3
                    elif nwd1 and not gq and j < o.get('wd1_hi', 39):
                        a(wd.pop(0))
                        nwd1 -= 1
                        used += 2
                if j >= GJ and gq and s < 2:
                    a(gq.pop(0))
                    used += 2
                q = misc if j < 8 else pub if j < SJ else st
                while q and used < C1CAP + (o.get('cap1s', 1) if q is st else 0) and j != 8:
                    a(q.pop(0))
                    used += 1
            if j in BARS:
                a('s_barrier')
                wfree = 2 * ((j + 1) // 4)
            if j == 8:
                a(f's_set_gpr_idx_on s{sCB}, gpr_idx(SRC0,SRC1)')
                a('s_nop 0')
                for r in range(10):
                    a(f'v_dot2c_f32_bf16_e32 v{vS + (r & 1)}, s{sOne}, v{AB + r}')
                    a(f'v_dot2c_f32_bf16_e32 v{vS + 2 + (r & 1)}, v{AB + r}, v{AB + r}')
                a('s_set_gpr_idx_off')
            if o.get('verbose') and j in (9, 10, 11, 12, 37, 38):
                print('step', j, 'pub', len(pub), 'st', len(st))
        assert not pub and not al and not st and not misc
        RES, vRes, vRes2 = 200, vAL, vCS
        res_addr = [
            f'v_and_b32 v{vRes}, 15, v{L}',
            f'v_lshl_add_u32 v{vRes2}, v{vRes}, 4, s{sRes}',
            f'v_lshrrev_b32 v{vRes}, 4, v{L}',
            f'v_mad_u32_u24 v{vRes2}, v{vRes}, s{sQS}, v{vRes2}',
            f'v_mad_u32_u24 v{vRes}, v{vRes}, s{sQS}, v{vRes2}',
        ]
        for tl in range(3):
            a(csm(tl, tl, False))
            a(wtail.pop(0) if wtail else [])
        self.stamp(9)

        def epi(tile, slot, packed=False):
            b = ACC + 16 * slot
            tm = [TM, TM + 1, TM + 2, TM + 3]
            ops = []
            for h in range(2):
                g, u = b + 8 * h, b + 8 * h + 4
                if packed:
                    P = lambda r, i: vr(r + 2 * i, 2)
                    cc, rr = vr(C0, 2), vr(R, 2)
                    ops += [(1, f'v_pk_mul_f32 {P(TM, i)}, {P(g, i)}, {P(g, i)}') for i in range(2)]
                    ops += [(1, f'v_pk_fma_f32 {P(TM, i)}, {P(TM, i)}, {cc}, {cc} op_sel:[0,1,0] op_sel_hi:[1,1,0]') for i in range(2)]
                    ops += [(1, f'v_pk_mul_f32 {P(u, i)}, {P(u, i)}, {P(g, i)}') for i in range(1)]
                    ops += [(1, f'v_pk_mul_f32 {P(TM, i)}, {P(TM, i)}, {P(g, i)}') for i in range(2)]
                    ops += [(2, f'v_exp_f32 v{tm[i]}, v{tm[i]}') for i in range(4)]
                    ops += [(1, f'v_pk_mul_f32 {P(u, i)}, {P(u, i)}, {P(g, i)}') for i in range(1, 2)]
                    ops += [(1, f'v_pk_fma_f32 {P(TM, i)}, {P(TM, i)}, {rr}, {rr} op_sel:[0,0,0] op_sel_hi:[1,0,0]') for i in range(2)]
                    ops += [(2, f'v_rcp_f32 v{tm[i]}, v{tm[i]}') for i in range(4)]
                    ops += [(1, f'v_pk_mul_f32 {P(u, i)}, {P(u, i)}, {P(TM, i)}') for i in range(2)]
                    ops += [(1, f'v_cvt_pk_bf16_f32 v{b + 2 * h + i}, v{u + 2 * i}, v{u + 2 * i + 1}') for i in range(2)]
                    continue
                ops += [(1, f'v_mul_f32 v{tm[i]}, v{g + i}, v{g + i}') for i in range(4)]
                ops += [(1, f'v_fma_f32 v{tm[i]}, v{tm[i]}, v{C1}, v{C0}') for i in range(4)]
                ops += [(1, f'v_mul_f32 v{tm[i]}, v{tm[i]}, v{g + i}') for i in range(4)]
                for i in range(4):
                    ops += [(2, f'v_exp_f32 v{tm[i]}, v{tm[i]}'), (1, f'v_mul_f32 v{u + i}, v{u + i}, v{g + i}')]
                ops += [(1, f'v_fma_f32 v{tm[i]}, v{tm[i]}, v{R}, v{R}') for i in range(4)]
                ops += [(2, f'v_rcp_f32 v{tm[i]}, v{tm[i]}') for i in range(4)]
                ops += [(1, f'v_mul_f32 v{u + i}, v{u + i}, v{tm[i]}') for i in range(4)]
                ops += [(1, f'v_cvt_pk_bf16_f32 v{b + 2 * h + i}, v{u + 2 * i}, v{u + 2 * i + 1}') for i in range(2)]
            so = sA if tile < 4 else sB
            txt = f'buffer_store_dwordx4 {vr(b, 4)}, v{vAS}, {WS}, s{so} offen offset:{(tile & 3) * 1024} sc1'
            ops.append((5, (lambda: a(txt, tag=f'act{tile}')) if not o.get('nost') else []))
            if o.get('noepi'):
                ops = [(c_, x if callable(x) else []) for c_, x in ops]
            return ops

        G2 = 72
        FR = [[8 + 4 * i for i in range(16)],
              [152 + 4 * i for i in range(4)] + [200 + 4 * i for i in range(8)] + [168 + 4 * i for i in range(4)],
              [8 + 4 * i for i in range(16)]]
        order = [[(c, lam) for lam in (3, 2, 1, 0) for c in range(4)]] * 3

        def act_ld(pi, n):
            c, lam = order[pi][n]
            if o.get('noact'):
                return []
            return [f's_add_u32 s{sT1}, s{sL[lam]}, {ACT + 16384 * (kap[pi][c] >> 2) + 2048 * (kap[pi][c] & 3)}',
                    f'buffer_load_dwordx4 {vr(FR[pi][n], 4)}, v{vA2}, {WS}, s{sT1} offen sc1']

        def sig(pi, tag):
            def f():
                self.stamp(f'presig{pi}')
                a.need_tag(tag)
                if o.get('wgsig', 0) >> pi & 1:
                    l = a.label('nosig')
                    a('s_barrier')
                    a(f's_bitcmp1_b32 s{S_W}, 0')
                    a(f's_cbranch_scc1 {l}')
                    with a.untracked():
                        self.signal(f's{sF3s}', pi)
                    a(f'{l}:')
                else:
                    self.signal(f's{sF3s}', pi)
                self.stamp(f'sig{pi}')
                if pi < 2:
                    a(f's_add_u32 s{sF3s}, s{sF3s}, 2048')
            return f

        def poll_ld(pi):
            if o['sp'] >> pi & 1:
                return f's_load_dword s{sDv}, {sr(S_WS, 2)}, s{sF3p}'
            return f'buffer_load_dword v{vFl}, off, {WS}, s{sF3p} sc1'

        def poll_chk(pi):
            def f():
                self.stamp(f'prechk{pi}')
                self.check(S_WS, f's{sF3p}', 0 if o.get('noe3', 0) >> pi & 1 else 16 if o.get('wgsig', 0) >> pi & 1 else 32, vFl,
                           sDv if o['sp'] >> pi & 1 else None)
                self.stamp(f'chk{pi}')
                if pi < 2:
                    a(f's_add_u32 s{sF3p}, s{sF3p}, 2048')
            return f
        RES, vRes, vRes2 = 200, vAL, vCS
        res_addr = [
            f'v_and_b32 v{vRes}, 15, v{L}',
            f'v_lshl_add_u32 v{vRes2}, v{vRes}, 4, s{sRes}',
            f'v_lshrrev_b32 v{vRes}, 4, v{L}',
            f'v_mad_u32_u24 v{vRes2}, v{vRes}, s{sQS}, v{vRes2}',
            f'v_mad_u32_u24 v{vRes}, v{vRes}, s{sQS}, v{vRes2}',
        ]
        res_ld = []
        for nt in range(5):
            q = 8 * (nt >> 1) + (nt & 1)
            res_ld.append([f's_mov_b32 s{sT6}, {q * QS}',
                           f'buffer_load_dwordx2 {vr(RES + 2 * nt, 2)}, v{vRes2 if nt == 4 else vRes}, {WS}, s{sT6} offen sc1'])
        slot_of = {0: 0, 1: 1, 2: 2, 3: 3, 4: 0, 5: 1}
        eq = epi(0, 0) + epi(1, 1) + epi(2, 2)
        budget = 0.0
        RATE = o['epi_rate']
        extra = {i: [] for i in range(120)}
        first_w = wtail.pop(0) if wtail else []
        extra0 = {k: wtail[k] for k in range(len(wtail))}
        wlast, nxt = o.get('grow', 0), 4
        extra[o.get('bar4', 26)].append('s_barrier')
        for k, x in enumerate(res_addr):
            extra[66 + k].append(x)
        nwd = len(wd) - o.get('wd_post', 12)
        done = 60 - len(wd)
        lo, hi = o.get('wd_lo', 4), o.get('wd_hi', 78)
        hold = None
        for k in range(nwd):
            g = wd.pop(0)
            p = lo + (k * (hi - lo)) // nwd
            fr = done + k
            if fr == 39:
                extra[81].append([f's_mov_b32 s{sT6}, {WDF + 5120 * kap[1][3]}', g[-1].replace(f's{sWoff} offen', f's{sT6} offen')] if g else [])
                continue
            assert fr < 56 or p > 14
            extra[p].append(g)
        SA, SB = o.get('siga', 62), o.get('sigb', 104)
        extra[SA].append(sig(0, 'act1'))
        extra[o.get('lda', 86)].append(poll_ld(0))
        for k, x in enumerate(res_ld):
            extra[o.get('res_at', 86) + 2 * k].append(x)
        ca = o.get('chka', 105)
        extra[ca].append(poll_chk(0))
        na = o.get('a_in', 7)
        for n in range(na):
            extra[ca + 1 + (n * (119 - ca)) // na].append(act_ld(0, n))
        extra[SB].append(sig(1, 'act3'))
        extra[50].append('s_barrier')

        def cost(x):
            if callable(x):
                return 3
            if isinstance(x, (list, tuple)):
                return sum(cost(y) for y in x)
            return 5 if x.startswith('ds_write') else 2 if x.startswith('buffer') or x == 's_barrier' else 1
        CAP = o.get('cap', 6.6)
        for i, (tile, ls, j) in enumerate(p2):
            slot = slot_of[tile]
            self.stamp(f'q{i}')
            if j == 0:
                a(csm(tile, slot, True))
                if i == 0:
                    a(first_w)
                if i:
                    budget = 6
                    while eq and budget >= eq[0][0]:
                        cst, x = eq.pop(0)
                        budget -= cst
                        a(x)
            WP = 2 if NR == 4 or i < 12 else o.get('wper', 4)
            if i % WP == 0:
                a.need(*[ar(r2(i + z), 4) for z in range(WP)])
            a(f'v_mfma_f32_32x32x16_bf16 {acc(slot)}, {ar(r2(i), 4)}, {vr(AB + 4 * j, 4)}, {acc(slot)}')
            a(extra0.get(i, []))
            nrd = 0
            while nxt < len(p2) and nxt <= i + NR and nrd < (2 if i >= wlast else 1):
                if NR == 8 and i < wlast:
                    a(rd(r2(nxt + 4), p2[nxt][1], p2[nxt][2])) if False else None
                a(rd(r2(nxt), p2[nxt][1], p2[nxt][2]))
                nxt += 1
                nrd += 1
            a(extra[i])
            if i == 42:
                eq += epi(3, 3)
            if i == 82:
                eq += epi(4, 0)
                if o.get('st4_late'):
                    st4 = eq.pop()[1]
            if i >= 1:
                budget = min(budget, 1.0) + CAP - nrd - ((i + 1) % WP == 0) - cost(extra[i]) - cost(extra0.get(i, []))
                budget = max(budget, -1)
                while eq and budget >= min(eq[0][0], 2):
                    cst, x = eq.pop(0)
                    budget -= cst
                    a(x)
                    if callable(x) and o.get('verbose'):
                        print('store at gap', i)
                if i == 39:
                    assert len(eq) <= 2 * 69, len(eq)
                if i == SA - 1:
                    assert len(eq) <= 2 * 69, len(eq)
                if i == 79:
                    assert len(eq) <= 2 * 69, len(eq)
                if i == o.get('res_at', 86) - 1:
                    assert len(eq) <= 2 * 69, len(eq)
                if i == SB - 1:
                    assert len(eq) <= 69, len(eq)
            if j == 39:
                self.stamp(f't{tile}')
        for cst, x in eq:
            a(x)
        a(f's_mov_b32 s{sT0}, 0xffff0000')
        for i in range(10):
            a(f'v_lshlrev_b32 v{G2 + 2 * i}, 16, v{RES + i}')
            a(f'v_and_b32 v{G2 + 2 * i + 1}, s{sT0}, v{RES + i}')
        e5 = epi(5, 1, o.get('pk5', 1))
        LA = o.get('la2', 12)
        rest = [act_ld(0, n) for n in range(na, LA)]
        if o.get('ldb', -1) < 0:
            rest.append(poll_ld(1))
        if o.get('st4_late'):
            rest.append(st4)
        k = 0
        for i, (cst, x) in enumerate(e5):
            while k < len(rest) and (k + 1) * (len(e5) - 1) <= i * len(rest):
                a(rest[k])
                k += 1
            a(x)
        assert k == len(rest)
        self.stamp(10)

        vOut, vRR, vRW, vTW, vTR = 4, 7, 232, 238, 242
        RED = 2 * TILE
        setup = [
            f's_movk_i32 s{sT6}, {16 * 1280 - 160}',
            f's_movk_i32 s{sT5}, 6554',
            f's_movk_i32 s{sT4}, 176',
            f's_mul_i32 s{sT3}, s{S_W}, {16 * 176}',
            f'v_and_b32 v{t}, 15, v{L}',
            f'v_lshrrev_b32 v{t2}, 4, v{L}',
            f'v_mov_b32 v{vTW + 1}, s{sT3}',
            f'v_mad_u32_u24 v{vTW + 1}, v{t}, s{sT4}, v{vTW + 1}',
            f'v_lshl_add_u32 v{vTW}, v{t2}, 4, v{vTW + 1}',
            f'v_lshl_add_u32 v{vTW + 1}, v{t2}, 3, v{vTW + 1}',
        ]
        setup += [f'v_mul_u32_u24 v{t2}, s{sT5}, v{L}',
                  f'v_lshrrev_b32 v{t2}, 16, v{t2}',
                  f'v_lshl_add_u32 v{vOut}, v{L}, 4, s{sOutB}',
                  f'v_mad_u32_u24 v{vOut}, v{t2}, s{sT6}, v{vOut}',
                  f'v_add_u32 v{t}, v{L}, v{t2}',
                  f'v_lshl_add_u32 v{vTR}, v{t}, 4, s{sT3}',
                  f's_mov_b32 s{sT4}, {6 * 16 * 1280}',
                  f's_mov_b32 s{sT5}, {12 * 16 * 1280}']
        for lam in range(4):
            setup += [f's_xor_b32 s{sT0}, s{S_W}, {lam}', f's_mul_i32 s{sT0}, s{sT0}, {15 * 1024}',
                      f's_add_u32 s{sT0}, s{sT0}, {RED + (lam - 1) * 5120 if lam else RED}',
                      f'v_lshl_add_u32 v{vRW + lam - 1 if lam else vRR}, v{L}, 4, s{sT0}']

        def mf2(pi, n, nt):
            c, lam = order[pi][n]
            d = vr(G2 + 4 * (5 * lam + nt), 4)
            cin = '0' if (pi == 0 and c == 0 and lam != 0) else d
            return f'v_mfma_f32_16x16x32_bf16 {d}, {ar(4 * (5 * (4 * pi + c) + nt), 4)}, {vr(FR[pi][n], 4)}, {cin}'
        ex = [{i: [] for i in range(80)} for _ in range(3)]
        for k, x in enumerate(setup):
            ex[0][k].append(x)
        def put(pos, x):
            ex[pos // 80][pos % 80].append(x)
        if o.get('ldb', -1) >= 0:
            put(o['ldb'], poll_ld(1))
        cb_, cc_ = o.get('chkb', 5 * (16 - LA)), 80 + o.get('chkc', 44)
        put(cb_, [poll_chk(1), lambda: self.stamp('chkb')])
        put(o.get('sigc', 40), [sig(2, 'act5'), lambda: self.stamp('sigc')])
        put(80 + o.get('ldc', 28), poll_ld(2))
        put(cc_, [lambda: self.stamp('chkc0'), poll_chk(2), lambda: self.stamp(11)])
        pos = 0
        for g in range(LA, 48):
            pos = max(pos + (o.get('burst', 2) if g >= 16 else 0), o.get('g_gap', 5) * (g - LA) if g < 32 else 5 * (g - LA),
                      cb_ if g >= 16 else 0, cc_ if g >= 32 else 0)
            assert pos < 20 * (g // 4)
            put(pos, act_ld(g // 16, g % 16))
            if g < 32 and wd and 32 - g <= len(wd) + o.get('wdp_early', 0):
                put(pos + 2, wd.pop(0))
        assert not wd
        chain = o.get('chain', 1)
        for blk, lam in enumerate((3, 2, 1)):
            for nt in range(5):
                ex[2][20 * blk + 4 * nt + 12 if chain else 20 * (blk + 1) + 5 + 2 * nt].append(
                    f'ds_write_b128 v{vRW + lam - 1}, {vr(G2 + 4 * (5 * lam + nt), 4)} offset:{1024 * nt}')
        RD, RR = 152, 8
        red2 = o.get('red2', 1)

        def rd_part(s_, nt):
            return f'ds_read_b128 {vr(RD + 12 * nt + 4 * s_, 4)}, v{vRR} offset:{5120 * s_ + 1024 * nt}'
        if red2:
            assert chain
            b1, b2 = o.get('rb1', 52), o.get('rb2', 72)
            ex[2][b1] += [f's_waitcnt lgkmcnt({(b1 - 48) // 4})', 's_barrier']
            k = 0
            for nt in range(5):
                for s_ in (2, 1):
                    ex[2][b1 + 1 + k].append(rd_part(s_, nt))
                    k += 1
            adds = [f'v_add_f32 v{RD + 12 * nt + 4 + r}, v{RD + 12 * nt + 4 + r}, v{RD + 12 * nt + 8 + r}'
                    for nt in range(5) for r in range(4)]
            for k, x in enumerate(adds):
                ex[2][min(79, b1 + 12 + k // 2)].append(x)
            ex[2][b2] += ['s_waitcnt lgkmcnt(0)', 's_barrier']
            for nt in range(5):
                ex[2][min(79, b2 + nt)].append(rd_part(0, nt))
        for pi in range(3):
            for i in range(80):
                if chain:
                    a(mf2(pi, 4 * (i // 20) + (i & 3), i % 20 // 4))
                else:
                    a(mf2(pi, i // 5, i % 5))
                self.stamp(f'm{80 * pi + i}')
                a(ex[pi][i])
            self.stamp('end' + 'ABC'[pi])
        if not red2:
            a('s_waitcnt lgkmcnt(0)')
            a('s_barrier')
            for nt in range(5):
                for s_ in range(3):
                    a(rd_part(s_, nt))
        self.stamp('redbar')
        sc = ' sc1' if o['out_sc1'] else ''
        if red2:
            for nt in range(5):
                for p in range(2):
                    a(f'v_pk_add_f32 {vr(G2 + 4 * nt + 2 * p, 2)}, {vr(G2 + 4 * nt + 2 * p, 2)}, {vr(RD + 12 * nt + 4 + 2 * p, 2)}')
        for nt in range(5):
            b = RD + 12 * nt
            c = G2 + 4 * nt
            for p in range(2):
                a(f'v_pk_add_f32 {vr(c + 2 * p, 2)}, {vr(c + 2 * p, 2)}, {vr(b + 2 * p, 2)}')
                if not red2:
                    a(f'v_pk_add_f32 {vr(b + 4 + 2 * p, 2)}, {vr(b + 4 + 2 * p, 2)}, {vr(b + 8 + 2 * p, 2)}')
            for p in range(2):
                if not red2:
                    a(f'v_pk_add_f32 {vr(c + 2 * p, 2)}, {vr(c + 2 * p, 2)}, {vr(b + 4 + 2 * p, 2)}')
            for p in range(2):
                a(f'v_cvt_pk_bf16_f32 v{RR + 2 * nt + p}, v{c + 2 * p}, v{c + 2 * p + 1}')
            if nt & 1:
                a(f'ds_write_b128 v{vTW}, {vr(RR + 2 * nt - 2, 4)} offset:{64 * (nt >> 1)}')
            if nt == 4:
                a(f'ds_write_b64 v{vTW + 1}, {vr(RR + 8, 2)} offset:128')
        for k in range(3):
            a(f'ds_read_b128 {vr(RR + 12 + 4 * k, 4)}, v{vTR} offset:{6 * 176 * k}')
        a('s_mov_b32 exec_hi, 0xfffffff')
        for k in range(3):
            if k == 2:
                a('s_mov_b32 exec_hi, 0xff')
            a(f'buffer_store_dwordx4 {vr(RR + 12 + 4 * k, 4)}, v{vOut}, {sr(S_OUT, 4)}, {("0", f"s{sT4}", f"s{sT5}")[k]} offen{sc}')
        a('s_mov_b32 exec_hi, -1')
        lz = a.label('nz')
        a('s_cmp_lg_u32 s2, 0')
        a(f's_cbranch_scc1 {lz}')
        with a.untracked():
            a(f'buffer_store_dword v{BP}, off, {sr(S_DBG, 4)}, 0 sc1')
            a(f'buffer_store_dword v{BP}, off, {sr(S_DBG, 4)}, 0 offset:128 sc1')
        a(f'{lz}:')
        if self.diag:
            self.stamp('outst')
            a('s_waitcnt vmcnt(0)')
            self.stamp(12)
            a('s_waitcnt lgkmcnt(0)')
            with self.wave0():
                a(f's_lshl_b32 s{sT0}, s2, 7')
                a(f's_add_u32 s{sT0}, s{sT0}, {STAMP}')
                a(f's_sub_u32 s{S_WS}, s{S_WS}, s0')
                a(f's_subb_u32 s{S_WS + 1}, s{S_WS + 1}, 0')
                a('v_mov_b32 v0, s0')
                a(f'buffer_store_dword v0, off, {WS}, s{sT0} offset:60')
                for i in range(NSTAMP):
                    a(f'v_mov_b32 v0, s{S_STAMP + 2 * i}')
                    a(f'buffer_store_dword v0, off, {WS}, s{sT0} offset:{4 * i}')
        if self.opt.get('fixt'):
            with a.untracked():
                fs = S_STAMP + 2 * self.opt.get("fixs", 0)
                if self.opt.get('fixmax'):
                    lo, hi = {'all': (0, 256), 'conv': (0, 160), 'side': (160, 256)}[self.opt['fixmax']]
                    a(f's_cmp_lg_u32 s{S_W}, 0')
                    a('s_cbranch_scc1 .Lend')
                    a(f's_sub_u32 s{sT0}, s2, {lo}')
                    a(f's_cmp_lt_u32 s{sT0}, {hi - lo}')
                    a(f's_cselect_b32 s{sT0}, s{fs}, 0')
                    a(f'v_mov_b32 v1, s{sT0}')
                    a('s_mov_b64 exec, 1')
                    a(f'buffer_atomic_umax v1, off, {sr(S_DBG, 4)}, 0 offset:64 sc1')
                    a('s_cmp_lg_u32 s2, 0')
                    a('s_cbranch_scc1 .Lend')
                    a('.Lfix0:')
                    a(f's_memrealtime {sr(sT0, 2)}')
                    a('s_waitcnt lgkmcnt(0)')
                    a(f's_sub_u32 s{sT0}, s{sT0}, s{S_STAMP}')
                    a(f's_cmp_lt_u32 s{sT0}, 3500')
                    a('s_cbranch_scc1 .Lfix0')
                    a(f'buffer_load_dword v1, off, {sr(S_DBG, 4)}, 0 offset:64 sc1')
                    a('s_waitcnt vmcnt(0)')
                    a(f'v_readfirstlane_b32 s{sT3}, v1')
                    a('s_nop 4')
                    fs = sT3
                a(f's_cmp_lg_u32 s2, {self.opt.get("fixwg", 0)}')
                a('s_cbranch_scc1 .Lend')
                a(f's_cmp_lg_u32 s{S_W}, 0')
                a('s_cbranch_scc1 .Lend')
                a(f's_sub_u32 s{sT2}, s{fs}, s{S_STAMP + 2 * self.opt.get("fixb", 0)}')
                a(f's_mul_i32 s{sT2}, s{sT2}, 10')
                a(f's_min_u32 s{sT2}, s{sT2}, 100000')
                a(f's_add_u32 s{sT2}, s{sT2}, {self.opt["fixt"]}')
                a('.Lfix:')
                a(f's_memrealtime {sr(sT0, 2)}')
                a('s_waitcnt lgkmcnt(0)')
                a(f's_sub_u32 s{sT0}, s{sT0}, s{S_STAMP}')
                a(f's_cmp_lt_u32 s{sT0}, s{sT2}')
                a('s_cbranch_scc1 .Lfix')
        a('.Lend:')
        a('s_endpgm')

    def build(self):
        a = self.a
        if self.diag:
            for i in range(2 * NSTAMP):
                a(f's_mov_b32 s{S_STAMP + i}, 0')
        self.prologue()
        self.conv()
        self.gemms()
        self.side()
        for c in self.cold:
            a.fresh()
            a('s_nop 7')
            c()
        a('.Lcode_end:')
        a('s_endpgm')
        pads = (self.opt.get('base', 0x300), NPAD, sr(sRet, 2), '.Lend', self.opt.get('pstride', 4096)) if self.opt['pads'] else None
        hoist = [('.Lhead_a0:', '.Lhead_a1:'), ('.Lhead_b0:', '.Lhead_b1:')] if self.opt.get('head', 0) else []
        front, body = a.finish(verbose=True, align=self.opt.get('align', 1), pads=pads, hoist=hoist)
        body += '.p2align 12\n    s_endpgm\n'
        ref = open('cdna_kernels/' + NAME + '.s.ref').read().split('\n')
        head = [l for l in ref if l.startswith(';') and '@launch' not in l and 'Override' not in l and 'grid=ceil' not in l]
        txt = '\n'.join(head) + '\n'
        txt += '; One persistent launch: kv/transposition -> Toeplitz-MFMA long conv -> gate/up GEMM + GEGLU -> down GEMM.\n'
        txt += '; @launch grid=(256,1,1) block=(256,1,1) lds=163840\n'
        txt += f'''.amdgcn_target "amdgcn-amd-amdhsa--gfx950"
.text
{front}.globl {NAME}_kernel
.p2align 8
.type {NAME}_kernel,@function
{NAME}_kernel:
{body}.section .rodata,"a"
.p2align 6
.amdhsa_kernel {NAME}_kernel
  .amdhsa_next_free_vgpr 512
  .amdhsa_next_free_sgpr 102
  .amdhsa_accum_offset 256
  .amdhsa_group_segment_fixed_size 0
  .amdhsa_kernarg_size 104
  .amdhsa_user_sgpr_count 2
  .amdhsa_user_sgpr_kernarg_segment_ptr 1
  .amdhsa_system_sgpr_workgroup_id_x 1
  .amdhsa_float_denorm_mode_32 3
.end_amdhsa_kernel
'''
        return txt


if __name__ == '__main__':
    out = sys.argv[1]
    diag = 'diag' in sys.argv[2:]
    opt = {}
    for x in sys.argv[2:]:
        if '=' in x:
            k, v = x.split('=')
            try:
                v = int(v)
            except ValueError:
                try:
                    v = float(v)
                except ValueError:
                    pass
            opt[k] = v
    open(out, 'w').write(Gen(diag, opt).build())
```

```python
import struct
import sys
from asmlib import Asm, vr, ar, sr

NAME = 'sequential_preLN__ssm_conv_h3__geglu_ffn__prompt'

MB = 1 << 20
QS = 16384
CNT = 0
CF3 = 16384
PROBE = 32768
ST1 = 49152
CSF = 65536
STAMP = 98304
PST = 131072
W45F = PST + 262144
WDF = 2 * MB
KVX, KVXT = 4 * MB, 8 * MB
KVM = 36 * MB
XP4, XP4T = 12 * MB, 8 * MB + 524288
HP4, HP4T = 16 * MB, 9 * MB
ACT = 20 * MB
WS_END = 40 * MB
C_F1, C_F1B, C_FX, C_FW, C_FXR, C_B1, C_B2, C_FWR = [4 * i for i in range(8)]


def grp_base(g, main, tail):
    return (main + (g & 3) * 524288 + (g >> 2) * 8192) if g < 8 else tail + (g - 8) * 8192


SPIN = 100000

S_W = 3
S_K, S_V, S_SH, S_SK, S_X, S_WG, S_WU, S_WD, S_OUT, S_DBG, S_WS = 4, 8, 12, 16, 20, 24, 28, 32, 36, 40, 44
S_D = 48
sX, sJ, sG, sM, sQ, sRB, sCB, sA, sB, sRot = 50, 51, 52, 53, 54, 55, 56, 57, 58, 59
sT0, sT1, sT2, sT3, sT4, sT5, sT6, sT7 = 60, 61, 62, 63, 64, 65, 66, 67
sWoff, sWoff2, sSpin, sDv = 68, 69, 70, 71
sOne, sU0, sU1, sU2 = 72, 73, 74, 75
sXo = 1
sRet = 48
NPAD = 8
S_STAMP = 76
NSTAMP = 13
sAB = 4
sL = [8, 9, 10, 11]
sPL, sPH, sFW, sSide, sArr = 16, 17, 18, 19, 23
sE = [None, 12, 13, 14]

GSTR = 4128
GOFF, UOFF, ZOFF = 16384, 33024, 32768
TILE = 40960
WS = sr(S_WS, 4)


def f32(x):
    return '0x%08x' % struct.unpack('<I', struct.pack('<f', x))[0]


class Gen:
    def __init__(self, diag=False, opt=None):
        self.a = Asm()
        self.diag = diag
        self.opt = dict(place=1, w_kv=0, w_e1=10, apoll=9, w_u=0, tb_pre=4, tb_mid=0, ssm=0, sp=31, defer=0, wdp_from=24, a_ahead=14, sig='v', epi_rate=4.5,
                        fx_it=3, early_n=0, out_sc1=1, pads=1, wd_pre=20, wd_post=4, l2=10, wd_p1=11, chkb=20, sigc=39, ssig=4, ldc=24, chkc=38, wd_pre1=8, arr='s')
        if opt:
            self.opt.update(opt)
        self.cold = []

    PROF = {
        'main': [0, 1, 2, 3, 4, 5, 6, 7, 8, 9, 10, 11, 12],
        'front': [0, 'karg', 'issued', 1, 'kvdone', 2, 'tbpre', 'drained', 3, 'tbpost', 4, 'uload', 5],
        'e2': [0, 6, 'zbar', 7, 'hbar', 'hissued', 'hdrained', 'hbar2', 'arrived', 'wwritten', 'polled', 8, 'a0'],
        'g1': [0, 8, 'a0', 'p8', 'p16', 'p24', 'p32', 9, 't3', 't4', 't5', 10, 12],
        'g2a': [0, 't5', 10, 'm4', 'prechk1', 'chk1', 'm24', 'presig2', 'sig2', 'm44', 'm64', 'endA', 'm84'],
        'sum': [0, 'x1', 'x2', 'x3', 'x4', 'x5', 'x6', 7, 8, 'x9', 'x10', 'x11', 12],
        'side': [0, 'sx_in', 'sx_issued', 'sx_data', 'sx_bar', 'sx_st', 'sx_ld2', 'sx_dr', 1, 2, 6, 7, 8],
        'loop': [0, 4, 5, 'it1', 'it2', 'it3', 'it4', 'it5', 'it6', 'it7', 6, 7, 8],
        'g1b': [0, 9, 'q10', 'q20', 't3', 'presig0', 'sig0', 't4', 'prechk0', 'chk0', 'presig1', 'sig1', 't5'],
        'g2': [0, 't5', 10, 'chkb', 'sigc', 'endA', 'chkc0', 11, 'endB', 'endC', 'redbar', 'outst', 12],
    }

    def nt(self, bit):
        return ' ' + self.opt.get('ntw', 'nt') if self.opt.get('nt', 0) >> bit & 1 else ''

    def stamp(self, i):
        prof = self.PROF[self.opt.get('prof', 'main')]
        if self.diag and i in prof:
            i = prof.index(i)
            self.a(f'{"s_memtime" if self.opt.get("cyc") else "s_memrealtime"} {sr(S_STAMP + 2 * i, 2)}')

    def spin_atomic(self, soff, target, depth, vt):
        a = self.a
        top, done = a.label('spin'), a.label('done')
        with a.untracked():
            a(f's_mov_b32 s{sSpin}, {SPIN}')
            for d in range(depth - 1):
                a(f'v_mov_b32 v{vt + d}, 0')
                a(f'buffer_atomic_add v{vt + d}, off, {WS}, {soff} sc0 sc1')
                a(f's_sleep {self.opt.get("pslp", 3)}')
            a(f'{top}:')
            for d in range(depth):
                n = (d + depth - 1) % depth
                a(f'v_mov_b32 v{vt + n}, 0')
                a(f'buffer_atomic_add v{vt + n}, off, {WS}, {soff} sc0 sc1')
                a(f's_waitcnt vmcnt({depth - 1})')
                a(f'v_readfirstlane_b32 s{sT7}, v{vt + d}')
                a(f's_cmp_ge_u32 s{sT7}, {target}')
                a(f's_cbranch_scc1 {done}')
            a(f's_sub_u32 s{sSpin}, s{sSpin}, 1')
            a(f's_cbranch_scc0 {top}')
            a(f'{done}:')

    def spin(self, srd, soff, target, vt):
        a = self.a
        top, done = a.label('spin'), a.label('done')
        with a.untracked():
            a(f's_mov_b32 s{sSpin}, {SPIN}')
            a(f'{top}:')
            a(f'buffer_load_dword v{vt}, off, {sr(srd, 4)}, {soff} sc1')
            a('s_waitcnt vmcnt(0)')
            a(f'v_readfirstlane_b32 s{sT7}, v{vt}')
            a(f's_sub_u32 s{sSpin}, s{sSpin}, 1')
            a(f's_cbranch_scc1 {done}')
            a(f's_cmp_lt_u32 s{sT7}, {target}')
            a(f's_cbranch_scc1 {top}')
            a(f'{done}:')

    def check(self, srd, soff, target, vt, sreg=None):
        a = self.a
        slow, back = a.label('slow'), a.label('back')
        a(f'v_readfirstlane_b32 s{sT7}, v{vt}' if sreg is None else f's_mov_b32 s{sT7}, s{sreg}')
        a(f's_cmp_lt_u32 s{sT7}, {target}')
        a(f's_cbranch_scc1 {slow}')
        a(f'{back}:')

        def cold():
            a(f'{slow}:')
            self.spin(srd, soff, target, vt)
            a(f's_branch {back}')
        self.cold.append(cold)

    def get_pol(self, vt):
        a = self.a
        self.check(S_DBG, '0 offset:128', 1, vt, sU0)
        a(f's_and_b32 s0, s{sT7}, 2')
        a('s_lshl_b32 s0, s0, 20')
        a(f's_add_u32 s{S_WS}, s{S_WS}, s0')
        a(f's_addc_u32 s{S_WS + 1}, s{S_WS + 1}, 0')

    def wave0(self):
        g = self

        class W:
            def __enter__(s):
                s.l = g.a.label('nw0')
                g.a(f's_cmp_lg_u32 s{S_W}, 0')
                g.a(f's_cbranch_scc1 {s.l}')
                s.u = g.a.untracked()
                s.u.__enter__()
                g.a('s_mov_b64 exec, 1')

            def __exit__(s, *x):
                g.a('s_mov_b64 exec, -1')
                s.u.__exit__()
                g.a(f'{s.l}:')
        return W()

    def warm(self, sets):
        if not self.opt['pads']:
            return
        a = self.a
        for w, ks in enumerate(sets):
            if not ks:
                continue
            l = a.label('nw')
            a(f's_cmp_lg_u32 s{S_W}, {w + 1}')
            a(f's_cbranch_scc1 {l}')
            for k in ks:
                a(f's_call_b64 {sr(sRet, 2)}, .Lpad_{k}')
            a(f'{l}:')

    def arrive_start(self, items, pre=None):
        a = self.a
        l = a.label('noarr')
        for r, _ in items:
            a(f's_mov_b32 s{r}, 1')
        a(f's_cmp_lg_u32 s{S_W}, 0')
        a(f's_cbranch_scc1 {l}')
        with a.untracked():
            if pre:
                pre()
            for r, line in items:
                a(f's_atomic_add s{r}, {sr(S_WS, 2)}, s{sXo} offset:{line * 256} glc')
        a(f'{l}:')

    def arrive_finish(self, items, vt):
        a = self.a
        a('s_waitcnt lgkmcnt(0)')
        for r, last, rep in items:
            l = a.label('notlast')
            a(f's_cmp_lg_u32 s{r}, {last}')
            a(f's_cbranch_scc1 {l}')
            with a.untracked():
                a('s_mov_b32 exec_lo, 15')
                a('s_mov_b32 exec_hi, 15')
                a(f'v_lshlrev_b32 v{vt}, 8, v0')
                a(f's_mov_b32 s{sT7}, {rep * 256}')
                a(f'buffer_atomic_add v{self.vOne}, v{vt}, {WS}, s{sT7} offen sc1')
                a('s_mov_b64 exec, -1')
            a(f'{l}:')

    def prologue(self):
        a = self.a
        a('s_cmp_ge_u32 s2, 0x100')
        a('s_cbranch_scc1 .Lend')
        self.stamp(0)
        for srd, off in ((S_K, 8), (S_WS, 96), (S_V, 16), (S_SH, 24), (S_SK, 32), (S_X, 0), (S_WG, 56), (S_WU, 64),
                         (S_WD, 72), (S_OUT, 80), (S_DBG, 88), (S_D, 40)):
            a(f's_load_dwordx2 {sr(srd, 2)}, s[0:1], {off}')
        a('v_lshrrev_b32 v1, 6, v0')
        a(f's_and_b32 s{sX}, s2, 7')
        a(f's_lshr_b32 s{sJ}, s2, 3')
        a(f'v_readfirstlane_b32 s{S_W}, v1')
        a('v_mov_b32 v1, v0')
        a('v_and_b32 v0, 63, v0')
        for srd, n in ((S_K, 2621440), (S_V, 2621440), (S_SH, 5120), (S_SK, 4096), (S_X, 2621440), (S_WG, 1966080),
                       (S_WU, 1966080), (S_WD, 1966080), (S_OUT, 2621440), (S_DBG, 256), (S_WS, WS_END)):
            a(f's_mov_b32 s{srd + 2}, {n}')
            a(f's_mov_b32 s{srd + 3}, 0x20000')
        a(f's_and_b32 s{sM}, s{sJ}, 15')
        a(f's_mov_b32 s{sG}, s{sX}')
        a(f's_cmp_lt_u32 s{sJ}, 16')
        a.snapshot('role')
        a('s_cbranch_scc1 .Lconv')
        a(f's_lshr_b32 s{sG}, s{sX}, 2')
        a(f's_add_u32 s{sG}, s{sG}, 8')
        a(f's_and_b32 s{sT0}, s{sX}, 3')
        a(f's_lshl2_add_u32 s{sM}, s{sT0}, s{sM}')
        a(f's_cmp_lt_u32 s{sJ}, 20')
        a('s_cbranch_scc1 .Lconv')
        with a.untracked():
            a(f's_cmp_lg_u32 s2, {self.opt.get("initwg", 208)}')
            a('s_cbranch_scc1 .Lnoinit')
            a('v_lshrrev_b32 v2, 3, v1')
            a('v_and_b32 v3, 7, v0')
            a('v_lshlrev_b32 v3, 4, v3')
            a('v_lshl_add_u32 v2, v2, 8, v3')
            for i in range(4):
                a(f'v_mov_b32 v{4 + i}, 0')
            a('s_waitcnt lgkmcnt(0)')
            a.fresh()
            a(f'buffer_store_dwordx4 v[4:7], v2, {WS}, 0 offen sc1')
            for off in (0x2000, 2 * MB, 2 * MB + 0x2000):
                a(f's_mov_b32 s{sT0}, {off}')
                a(f'buffer_store_dwordx4 v[4:7], v2, {WS}, s{sT0} offen sc1')
            a('v_mov_b32 v3, 1')
            a('s_waitcnt vmcnt(0)')
            a('s_barrier')
            a(f's_cmp_lg_u32 s{S_W}, 0')
            a('s_cbranch_scc1 .Lside')
            a('s_mov_b64 exec, 1')
            a(f'buffer_store_dword v3, off, {sr(S_DBG, 4)}, 0 sc1')
            a('s_mov_b64 exec, -1')
            a('s_branch .Lside')
            a('.Lnoinit:')
            a(f's_cmp_lg_u32 s2, {self.opt.get("polwg", 216)}')
            a('s_cbranch_scc1 .Lnopol')
            a(f's_and_b32 s{sT1}, s{S_W}, 1')
            a(f's_lshl_b32 s{sT0}, s{sT1}, 13')
            a(f's_lshl_b32 s{sT2}, s{S_W}, 8')
            a(f's_add_u32 s{sT0}, s{sT0}, s{sT2}')
            a(f's_add_u32 s{sT0}, s{sT0}, {PROBE}')
            if 'fpol' in self.opt:
                a(f's_mov_b32 s{sT1}, {self.opt["fpol"]}')
            a(f's_add_u32 s{sT1}, s{sT1}, 1')
            a(f'v_mov_b32 v4, s{sT1}')
            a('v_mov_b32 v5, 0')
            a('v_lshlrev_b32 v2, 2, v0')
            a('s_waitcnt lgkmcnt(0)')
            wu = self.opt.get('pwarm', 1)
            if wu == 1:
                a(f'buffer_store_dword v5, v2, {WS}, s{sT0} offen sc1')
                a('s_waitcnt vmcnt(0)')
            a('s_mov_b64 exec, 1')
            for i in range(0 if wu == 2 else 1, 1 + self.opt.get('hops', 1)):
                if i == 1:
                    a('s_barrier')
                a(f's_mov_b32 s{sT3}, 0')
                a(f's_atomic_add s{sT3}, {sr(S_WS, 2)}, s{sT0} glc')
                a('s_waitcnt lgkmcnt(0)')
            a(f'buffer_atomic_cmpswap v[4:5], off, {sr(S_DBG, 4)}, 0 offset:128 sc1')
            a('s_mov_b64 exec, -1')
            a('s_branch .Lside')
            a('.Lnopol:')
            if self.opt.get('cpf', 1):
                a(f's_getpc_b64 {sr(sT0, 2)}')
                a('.Lpc:')
                a(f's_and_b32 s{sT2}, s{sJ}, 3')
                a(f's_lshl2_add_u32 s{sT2}, s{sT2}, s{S_W}')
                a(f's_mul_i32 s{sT2}, s{sT2}, {18 * 128}')
                a('v_min_u32 v2, 17, v0')
                a(f'v_lshl_add_u32 v2, v2, 7, s{sT2}')
                a('v_min_u32 v2, .Lcode_end-.Lpc-4, v2')
                a('v_mov_b32 v3, 0')
                a(f'v_lshl_add_u64 v[4:5], v[2:3], 0, {sr(sT0, 2)}')
                a('global_load_dword a253, v[4:5], off')
            a('s_branch .Lside')
        a('.Lconv:')
        a.fresh('role')

    def gemm_ids(self):
        a = self.a
        a.need(sr(S_WS, 2))
        a(f's_lshr_b32 s{sT0}, s{sX}, 2')
        a(f's_lshl_b32 s{sT0}, s{sT0}, 5')
        a(f's_and_b32 s{sXo}, s{sX}, 3')
        a(f's_add_u32 s{sXo}, s{sXo}, s{sT0}')
        a(f's_lshl_b32 s{sXo}, s{sXo}, 8')
        a(f's_lshr_b32 s{sRB}, s{sX}, 2')
        a(f's_lshr_b32 s{sT0}, s{sJ}, 2')
        a(f's_lshl3_add_u32 s{sRB}, s{sRB}, s{sT0}')
        a(f's_and_b32 s{sRot}, s{sX}, 3')
        a(f's_and_b32 s{sT0}, s{sJ}, 3')
        a(f's_lshl2_add_u32 s{sCB}, s{sRot}, s{sT0}')
        a(f's_and_b32 s{sT0}, s{sCB}, 1')
        a(f's_mul_i32 s{sA}, s{sCB}, 6')
        a(f's_add_u32 s{sB}, s{sA}, 4')
        a(f's_lshl1_add_u32 s{sA}, s{sT0}, s{sA}')
        a(f's_lshl_b32 s{sT1}, s{sT0}, 2')
        a(f's_sub_u32 s{sB}, s{sB}, s{sT1}')

    vWL, vWLb, vW45, vTmp, vTmp2, vOne, vPS = 254, 253, 252, 250, 249, 248, 251
    WRAW = [8, 40, 72, 104, 136]
    vWW = [232, 233, 234, 243]
    PT = 200

    def real_line(self, r, tmp):
        a = self.a
        if not self.opt.get('swz', 1):
            return
        a(f's_sub_u32 s{tmp}, s{r}, 3')
        a(f's_cmp_lt_u32 s{tmp}, 2')
        a(f's_cselect_b32 s{tmp}, 7, 0')
        a(f's_xor_b32 s{r}, s{r}, s{tmp}')
        a(f's_sub_u32 s{tmp}, s{r}, 10')
        a(f's_cmp_lt_u32 s{tmp}, 2')
        a(f's_cselect_b32 s{tmp}, 1, 0')
        a(f's_xor_b32 s{r}, s{r}, s{tmp}')

    def w_addr(self):
        a = self.a
        t = self.vTmp
        a(f's_lshr_b32 s{sT1}, s{sA}, 2')
        self.real_line(sT1, sT0)
        a(f's_lshl_b32 s{sT1}, s{sT1}, 7')
        a(f'v_and_b32 v{t}, 7, v0')
        a(f'v_lshl_add_u32 v{self.vWLb}, v{t}, 4, s{sT1}')
        a(f's_lshr_b32 s{sT0}, s{S_W}, 1')
        a(f's_lshl_b32 s{sT0}, s{sT0}, 6')
        a(f's_mul_i32 s{sWoff}, s{sRot}, 160')
        a(f's_add_u32 s{sWoff}, s{sWoff}, s{sT0}')
        a(f's_mul_i32 s{sT0}, s{sCB}, {80 * 1024}')
        a(f's_add_u32 s{sT0}, s{sT0}, {W45F}')
        a(f'v_lshl_add_u32 v{self.vW45}, v0, 4, s{sT0}')
        a(f's_mul_i32 s{sWoff2}, s{sRot}, 10')
        a(f's_add_u32 s{sWoff2}, s{sWoff2}, s{S_W}')
        a(f's_lshl_b32 s{sWoff2}, s{sWoff2}, 10')
        a(f'v_mov_b32 v{self.vOne}, 1')
        a(f's_and_b32 s{sT0}, s{sRB}, 7')
        a(f's_lshr_b32 s{sT1}, s{S_W}, 1')
        a(f's_lshl1_add_u32 s{sT0}, s{sT0}, s{sT1}')
        a(f's_lshr_b32 s{sT1}, s{sRB}, 3')
        a(f's_lshl1_add_u32 s{sT0}, s{sT0}, s{sT1}')
        a(f's_and_b32 s{sT1}, s{S_W}, 1')
        a(f's_lshl1_add_u32 s{sT0}, s{sT0}, s{sT1}')
        a(f's_lshl_b32 s{sT0}, s{sT0}, 12')
        a(f'v_and_b32 v{t}, 31, v0')
        a(f'v_lshl_add_u32 v{self.vPS}, v{t}, 3, s{sT0}')
        a(f'v_lshrrev_b32 v{t}, 5, v0')
        a(f'v_lshl_add_u32 v{self.vPS}, v{t}, 11, v{self.vPS}')

    def w_select(self):
        a = self.a
        a(f's_bitcmp1_b32 s{S_W}, 0')
        a(f's_cselect_b32 s{S_WG}, s{S_WU}, s{S_WG}')
        a(f's_cselect_b32 s{S_WG + 1}, s{S_WU + 1}, s{S_WG + 1}')
        for i in range(1, 4):
            a(f's_movk_i32 s{sE[i]}, {6144 * i}')
        a(f's_movk_i32 s15, 3072')

    def clear_pst(self, v2):
        return [f'v_mov_b32 v{v2}, -1', f'v_mov_b32 v{v2 + 1}, -1',
                f's_lshl_b32 s{sU0}, s{sCB}, 8', f's_add_u32 s{sU0}, s{sU0}, {PST}',
                ['s_mov_b32 exec_hi, 0',
                 f'buffer_store_dwordx2 {vr(v2, 2)}, v{self.vPS}, {WS}, s{sU0} offen sc1',
                 's_mov_b32 exec_hi, -1']]

    def w_loads_main(self, park=False):
        out = []
        t, t2 = self.vTmp, self.vTmp2
        for b in range(5):
            for e in range(8):
                g = []
                if e == 0:
                    g = [f'v_and_b32 v{t}, 56, v0', f'v_add_u32 v{t}, s{sWoff}, v{t}', f'v_subrev_u32 v{t2}, 640, v{t}',
                         f'v_min_u32 v{t}, v{t}, v{t2}', f'v_mad_u32_u24 v{self.vWL}, v{t}, s15, v{self.vWLb}',
                         f's_add_u32 s{sWoff}, s{sWoff}, 128']
                so = f's{sE[e >> 1]}' if e >> 1 else '0'
                dst = vr(self.WRAW[b] + 4 * e, 4)
                if b == 4 and park:
                    dst = ar(208 + 4 * e, 4) if park == 1 else vr(self.WRAW[0] + 4 * e, 4)
                g.append(f'buffer_load_dwordx4 {dst}, v{self.vWL}, {sr(S_WG, 4)}, {so} offen offset:{3072 * (e & 1)}')
                out.append(g)
        return out

    def w_loads_tail(self):
        out = []
        for i in range(20):
            if i & 1:
                g = [f's_add_u32 s{sU1}, s{sWoff2}, {TILE}',
                     f'buffer_load_dwordx4 {ar(160 + 4 * i, 4)}, v{self.vW45}, {WS}, s{sU1} offen sc1']
            else:
                g = []
                if i:
                    g = [f's_add_u32 s{sWoff2}, s{sWoff2}, 4096',
                         [f's_sub_u32 s{sU1}, s{sWoff2}, {TILE}', f's_cselect_b32 s{sWoff2}, s{sWoff2}, s{sU1}']]
                g.append(f'buffer_load_dwordx4 {ar(160 + 4 * i, 4)}, v{self.vW45}, {WS}, s{sWoff2} offen sc1')
            out.append(g)
        return out

    def w_write_addr(self):
        a = self.a
        t, t2 = self.vTmp, self.vTmp2
        a(f's_lshr_b32 s{sT0}, s{S_W}, 1')
        a(f's_lshl_b32 s{sT0}, s{sT0}, 12')
        a(f's_and_b32 s{sT1}, s{S_W}, 1')
        a(f's_lshl_b32 s{sT1}, s{sT1}, 7')
        a(f's_add_u32 s{sT0}, s{sT0}, s{sT1}')
        a(f'v_lshrrev_b32 v{t}, 3, v0')
        a(f'v_lshl_add_u32 v{t}, v{t}, 9, s{sT0}')
        a(f'v_and_b32 v{t2}, 1, v0')
        a(f'v_lshl_add_u32 v{t}, v{t2}, 6, v{t}')
        a(f'v_bfe_u32 v{t2}, v0, 1, 2')
        a(f's_mov_b32 s{sT0}, {TILE + 16}')
        a(f'v_mad_u32_u24 v{self.vWW[0]}, v{t2}, s{sT0}, v{t}')
        for q in range(1, 4):
            a(f'v_xor_b32 v{self.vWW[q]}, {16 * q}, v{self.vWW[0]}')
        a(f's_mov_b32 s{sPL}, 0x05040100')
        a(f's_mov_b32 s{sPH}, 0x07060302')

    def w_writes_main(self, b4=None):
        out = []
        for b in range(5):
            for c8 in range(8):
                p = self.PT + 4 * (c8 & 3) if b < 5 - self.opt.get('defer', 2) else (228 if c8 & 1 else 242)
                r = (b4 if b == 4 and b4 else self.WRAW[b]) + (c8 >> 1)
                g = [f'v_perm_b32 v{p + d}, v{r + 8 * d + 4}, v{r + 8 * d}, s{sPH if c8 & 1 else sPL}' for d in range(4)]
                g.append(f'ds_write_b128 v{self.vWW[c8 & 3]}, {vr(p, 4)} offset:{b * 8192 + (c8 >> 2) * 256}')
                out.append(g)
        return out

    def conv(self):
        a = self.a
        o = self.opt
        vK, vKh, vC, vR, vSHa, vL16 = 1, 2, 3, 4, 5, 6
        SH = 8
        KR = 16
        VR = 38
        WF = 56
        KF = 72
        O = 120
        SK = 136
        KV = 168
        VF = 200
        vSW, vSR, vKS, vG, vBa, vAa, vZR, vZR2, vUL, vUW, vI7, vGZ, vXS, vHS, vFl, vPrev = range(232, 248)
        ZERO, AD = 224, 240
        vAa2 = vZR2
        kvmix = 0
        a(f's_lshl4_add_u32 s{sQ}, s{sG}, s{sM}')
        a(f'v_and_b32 v{vC}, 15, v0')
        a(f'v_lshrrev_b32 v{vR}, 4, v0')
        a(f's_lshl2_add_u32 s{sT0}, s{sM}, s{S_W}')
        a(f's_mul_i32 s{sT0}, s{sT0}, {32 * 1280}')
        a(f's_lshl_b32 s{sT1}, s{sG}, 7')
        a(f's_add_u32 s{sT0}, s{sT0}, s{sT1}')
        a(f's_movk_i32 s{sT2}, {8 * 1280}')
        a(f'v_lshl_add_u32 v{vK}, v{vC}, 3, s{sT0}')
        a(f'v_mad_u32_u24 v{vK}, v{vR}, s{sT2}, v{vK}')
        a(f'v_subrev_u32 v{vKh}, 3840, v{vK}')
        a(f's_lshl_b32 s{sT1}, s{sG}, 9')
        a(f'v_lshl_add_u32 v{vSHa}, v{vC}, 5, s{sT1}')
        a(f's_movk_i32 s{sT3}, 5120')
        a(f'v_lshlrev_b32 v{vL16}, 4, v0')

        def addr_phase_a():
            a(f'v_subrev_u32 v{vPrev}, 8, v{vL16}')
            a(f's_mul_i32 s{sT0}, s{S_W}, {TILE}')
            a(f's_add_u32 s{sT0}, s{sT0}, {UOFF}')
            a(f's_movk_i32 s{sT1}, 272')
            a(f'v_lshl_add_u32 v{vSW}, v{vR}, 4, s{sT0}')
            a(f'v_mad_u32_u24 v{vSW}, v{vC}, s{sT1}, v{vSW}')
            a(f'v_lshl_add_u32 v{vSR}, v{vC}, 4, s{sT0}')
            a(f'v_mad_u32_u24 v{vSR}, v{vR}, s{sT1}, v{vSR}')
            a(f'v_add_u32 v{vUW}, s{sT0}, v{vL16}')
            a(f's_add_u32 s{sT0}, s{sT0}, 32')
            a(f'v_lshl_add_u32 v{vBa}, v{vC}, 5, s{sT0}')
            a(f'v_lshl_add_u32 v{vBa}, v{vR}, 4, v{vBa}')
            a(f's_and_b32 s{sT0}, s{sG}, 3')
            a(f's_lshl_b32 s{sT0}, s{sT0}, 19')
            a(f's_cmp_lt_u32 s{sG}, 8')
            a(f's_cselect_b32 s{sT4}, s{sT0}, {KVXT - KVX}')
            a(f's_lshr_b32 s{sT0}, s{sX}, 2')
            a(f's_lshl_b32 s{sT0}, s{sT0}, 13')
            a(f's_add_u32 s{sT4}, s{sT4}, s{sT0}')
            a(f's_and_b32 s{sT0}, s{sM}, 8')
            a(f's_add_u32 s{sT0}, s{sT0}, s{sM}')
            a(f's_lshl2_add_u32 s{sT1}, s{sT0}, s{S_W}')
            a(f's_lshl_b32 s{sT1}, s{sT1}, 8')
            a(f's_add_u32 s{sT0}, s{sT4}, s{sT1}')
            a(f's_mov_b32 s{sT1}, {2 * QS}')
            if kvmix:
                a(f's_lshl2_add_u32 s{sT1}, s{sM}, s{S_W}')
                a(f's_lshl_b32 s{sT1}, s{sT1}, 8')
                a(f's_lshl_b32 s{sT0}, s{sG}, 18')
                a(f's_add_u32 s{sT0}, s{sT0}, s{sT1}')
                a(f's_mov_b32 s{sT1}, {QS}')
            a(f'v_lshl_add_u32 v{vKS}, v{vC}, 4, s{sT0}')
            a(f'v_mad_u32_u24 v{vKS}, v{vR}, s{sT1}, v{vKS}')

        def addr_rest():
            self.gemm_ids()
            self.w_addr()
            a(f's_mul_i32 s{sT5}, s{S_W}, {TILE}')
            a(f's_add_u32 s{sT5}, s{sT5}, {GOFF}')
            a(f'v_add_u32 v{vG}, s{sT5}, v{vL16}')
            a(f'v_bfe_u32 v{vAa}, v0, 2, 2')
            a(f'v_sub_u32 v{vAa}, v{vAa}, v{vR}')
            a(f'v_sub_u32 v{vAa}, v{vAa}, v{vR}')
            a(f's_add_u32 s{sT0}, s{sT5}, 56')
            a(f'v_lshl_add_u32 v{vAa}, v{vAa}, 3, s{sT0}')
            a(f'v_and_b32 v{vI7}, 3, v0')
            a(f's_movk_i32 s{sT1}, {GSTR}')
            a(f'v_mad_u32_u24 v{vAa}, v{vI7}, s{sT1}, v{vAa}')
            a(f'v_add_u32 v{vAa2}, 0x800, v{vAa}')
            a(f'v_and_b32 v{vGZ}, 16, v0')
            a(f'v_add_u32 v{vGZ}, s{sT5}, v{vGZ}')
            a(f'v_mad_u32_u24 v{vGZ}, v{vI7}, s{sT1}, v{vGZ}')
            a(f'v_and_b32 v{vI7}, 7, v0')
            a(f's_lshl_b32 s{sT6}, s{sM}, 15')
            a(f's_add_u32 s{sT6}, s{sT6}, s{sT4}')
            a(f's_lshl_b32 s{sT1}, s{S_W}, 6')
            a(f's_add_u32 s{sT0}, s{sT6}, s{sT1}')
            if kvmix:
                a(f's_lshl_b32 s{sT0}, s{sQ}, 14')
                a(f's_add_u32 s{sT0}, s{sT0}, s{sT1}')
            a(f'v_and_b32 v{vUL}, 3, v0')
            a(f'v_lshl_add_u32 v{vUL}, v{vUL}, 4, s{sT0}')
            a(f'v_lshrrev_b32 v{vXS}, 2, v0')
            a(f'v_lshl_add_u32 v{vUL}, v{vXS}, 8, v{vUL}')
            a(f's_lshl_b32 s{sT0}, s{S_W}, 12')
            a(f'v_add_u32 v{vXS}, s{sT0}, v{vL16}')
            a(f's_lshl_b32 s{sT1}, s{sQ}, 14')
            a(f's_add_u32 s{sT0}, s{sT0}, s{sT1}')
            a(f's_mov_b32 s{sT1}, {HP4}')
            a(f's_cmp_lt_u32 s{sQ}, 120')
            a(f's_cselect_b32 s{sT1}, s{sT1}, {HP4T - 120 * QS}')
            a(f's_add_u32 s{sT0}, s{sT0}, s{sT1}')
            a(f'v_add_u32 v{vHS}, s{sT0}, v{vL16}')
            a(f's_lshl_b32 s{sT0}, s{S_W}, 11')
            a(f's_add_u32 s{sT0}, s{sT0}, {ZOFF}')
            a(f'v_add_u32 v{vZR}, s{sT0}, v{vL16}')
            for i in range(4):
                a(f'v_mov_b32 v{ZERO + i}, 0')
        if o.get('addr_early', 0) >= 1:
            addr_phase_a()
        if o.get('addr_early', 0) >= 2:
            addr_rest()
        a.need(sr(S_WS, 2))
        self.stamp('karg')
        a(f'buffer_load_dwordx4 {vr(SH, 4)}, v{vSHa}, {sr(S_SH, 4)}, 0 offen')
        a(f'buffer_load_dwordx4 {vr(SH + 4, 4)}, v{vSHa}, {sr(S_SH, 4)}, 0 offen offset:16')
        for r in range(3):
            a(f'buffer_load_dwordx2 {vr(KR + 2 * r, 2)}, v{vKh}, {sr(S_K, 4)}, 0 offen offset:{r * 1280}{self.nt(6)}')
        for r in range(8):
            so = f's{sT3}' if r >= 4 else '0'
            a(f'buffer_load_dwordx2 {vr(KR + 6 + 2 * r, 2)}, v{vK}, {sr(S_K, 4)}, {so} offen offset:{(r & 3) * 1280}{self.nt(0 if r < 5 else 6)}')
            a(f'buffer_load_dwordx2 {vr(VR + 2 * r, 2)}, v{vK}, {sr(S_V, 4)}, {so} offen offset:{(r & 3) * 1280}{self.nt(1)}')
        self.stamp('issued')
        if o.get('tlb'):
            a(f'v_lshlrev_b32 v228, {o["tlb"]}, v0')
            a(f'buffer_load_dword v229, v228, {WS}, 0 offen sc1')
            a(f'buffer_load_dword v228, v228, {sr(S_OUT, 4)}, 0 offen sc1')
        if o.get('addr_early', 0) < 1:
            addr_phase_a()
        if o.get('addr_early', 0) < 2:
            addr_rest()
        a(f's_lshl2_add_u32 s{sT0}, s{sQ}, s{S_W}')
        a(f's_lshl_b32 s{sT1}, s{sT0}, 12')
        a(f's_add_u32 s{S_SK}, s{S_SK}, s{sT1}')
        a(f's_addc_u32 s{S_SK + 1}, s{S_SK + 1}, 0')
        a(f's_lshl_b32 s{sT0}, s{sT0}, 1')
        a(f's_and_b32 s{sT0}, s{sT0}, -4')
        a(f's_load_dword s{sDv}, {sr(S_D, 2)}, s{sT0}')
        ssm = []
        for j in range(4):
            ssm.append(f'buffer_load_dwordx4 {vr(SK + 8 * j + 4, 4)}, v{vL16}, {sr(S_SK, 4)}, 0 offen offset:{1024 * j}{self.nt(2)}')
            if j == 0:
                ssm.append(f'buffer_load_dwordx2 {vr(SK + 2, 2)}, v{vPrev}, {sr(S_SK, 4)}, 0 offen')
            else:
                ssm.append(f'buffer_load_dwordx2 {vr(SK + 8 * j + 2, 2)}, v{vL16}, {sr(S_SK, 4)}, 0 offen offset:{1024 * j - 8}')
        if o.get('ssm', 1) == 0:
            a(ssm)
        self.w_select()
        self.warm([[[0], [], []], [[0], [1], []], [[0], [1], [2]]][o.get('warm0', 0)])
        park = o.get('park', 2)
        assert park < 2 or o['w_kv'] + o['w_e1'] + o['w_u'] >= 8
        wl = self.w_loads_main(park)

        def w_some(n):
            for _ in range(n):
                a(wl.pop(0))
        a(f's_mov_b32 s{sT2}, 0xffff0000')
        for ch in range(4):
            for j in range(4):
                src = SH + 2 * ch + (j >> 1)
                if j & 1:
                    a(f'v_and_b32 v{WF + 4 * j + ch}, s{sT2}, v{src}')
                else:
                    a(f'v_lshlrev_b32 v{WF + 4 * j + ch}, 16, v{src}')

        def unpack(dst, src):
            a(f'v_lshlrev_b32 v{dst}, 16, v{src}')
            a(f'v_and_b32 v{dst + 1}, s{sT2}, v{src}')
            a(f'v_lshlrev_b32 v{dst + 2}, 16, v{src + 1}')
            a(f'v_and_b32 v{dst + 3}, s{sT2}, v{src + 1}')
        for r in range(3):
            unpack(KF + 4 * r, KR + 2 * r)
        self.stamp(1)
        for r in range(8):
            unpack(KF + 4 * (r + 3), KR + 2 * (r + 3))
            vf = VF + 4 * (r & 1)
            for j in (3, 2, 1, 0):
                for p in range(2):
                    d = vr(KV + 4 * r + 2 * p, 2)
                    k = vr(KF + 4 * (r + 3 - j) + 2 * p, 2)
                    w = vr(WF + 4 * j + 2 * p, 2)
                    if j == 3:
                        a(f'v_pk_mul_f32 {d}, {k}, {w}')
                    else:
                        a(f'v_pk_fma_f32 {d}, {k}, {w}, {d}')
                if j == 3:
                    unpack(vf, VR + 2 * r)
            for p in range(2):
                d = vr(KV + 4 * r + 2 * p, 2)
                a(f'v_pk_mul_f32 {d}, {d}, {vr(vf + 2 * p, 2)}')
            if r == o.get('pol_r', 4):
                a(f's_load_dword s{sU0}, {sr(S_DBG, 2)}, 0x80')
            if o.get('ssm', 1) == 1 and r >= o.get('ssm_r', 7):
                for _ in range((len(ssm) + 7 - r) // (8 - r)):
                    a(ssm.pop(0))
            if r & 1:
                d = (7 - r) >> 1
                for ch in range(4):
                    a(f'v_cvt_pk_bf16_f32 v{O + 4 * ch + d}, v{KV + 4 * r + ch}, v{KV + 4 * (r - 1) + ch}')
        self.stamp('kvdone')
        if o.get('pol_r', 4) == 8:
            a(f's_load_dword s{sU0}, {sr(S_DBG, 2)}, 0x80')
        for ch in range(4):
            a(f'ds_write_b128 v{vSW}, {vr(O + 4 * ch, 4)} offset:{ch * 64}')
        for j in range(4):
            a(f'ds_read_b128 {vr(KV + 4 * j, 4)}, v{vSR} offset:{j * 1088}')
        assert not kvmix
        self.get_pol(vFl)
        a(f'buffer_load_dword v{vFl}, off, {sr(S_DBG, 4)}, 0 sc1')
        a(f's_mov_b32 s{sT0}, {KVM if kvmix else KVX}')
        for j in range(4):
            a(f'buffer_store_dwordx4 {vr(KV + 4 * j, 4)}, v{vKS}, {WS}, s{sT0} offen sc1')
            if j < 3:
                a(f's_add_u32 s{sT0}, s{sT0}, {4 * QS if kvmix else 8 * QS}')
        self.stamp(2)
        if kvmix and o.get('pol_l', 0) == 0:
            a(f'buffer_load_dword v{vFl}, off, {sr(S_DBG, 4)}, 0 sc1')
        if o.get('ssm', 1) == 2:
            a(ssm)
        a(f'ds_write_b128 v{vUW}, {vr(ZERO, 4)}')
        a(f'ds_write_b128 v{vGZ}, {vr(ZERO, 4)}')

        def table(j):
            D = SK + 8 * j
            Ea, Eb, Db = 184 + 12 * (j & 1), 184 + 12 * (j & 1) + 4, 184 + 12 * (j & 1) + 8

            def wr(rho, reg):
                a(f'ds_write_b128 v{vG}, {vr(reg, 4)} offset:{rho * GSTR + 1024 * j + 32}')
            wr(3, D + 4)
            for i in range(2):
                a(f'v_pk_mov_b32 {vr(Db + 2 * i, 2)}, {vr(D + 2 + 2 * i, 2)}, {vr(D + 4 + 2 * i, 2)} op_sel:[1,0]')
            for i in range(4):
                a(f'v_alignbit_b32 v{Ea + i}, v{D + 3 + i}, v{D + 2 + i}, 16')
            wr(1, Db)
            wr(0, Ea)
            for i in range(4):
                a(f'v_alignbit_b32 v{Eb + i}, v{D + 4 + i}, v{D + 3 + i}, 16')
            wr(2, Eb)
        w_some(o['w_kv'])
        n1, n2 = o['tb_pre'], o['tb_pre'] + o['tb_mid']
        for j in range(n1):
            table(j)
            if kvmix and o.get('pol_l', 0) == j + 1:
                a(f'buffer_load_dword v{vFl}, off, {sr(S_DBG, 4)}, 0 sc1')
        a.need(f's{sDv}')
        a(f's_and_b32 s{sT1}, s{S_W}, 1')
        a(f's_lshl_b32 s{sT1}, s{sT1}, 4')
        a(f's_lshr_b32 s{sDv}, s{sDv}, s{sT1}')
        a(f's_and_b32 s{sDv}, s{sDv}, 0xffff')
        a(f'v_sub_u32 v5, 7, v{vI7}')
        a(f'v_and_b32 v7, 1, v5')
        a(f'v_lshlrev_b32 v7, 4, v7')
        a(f'v_lshlrev_b32 v7, v7, s{sDv}')
        a(f'v_bfe_u32 v1, v0, 3, 1')
        a(f'v_add_u32 v1, 2, v1')
        a(f'v_cmp_eq_u32 vcc, v1, v{vR}')
        a(f'v_cndmask_b32 v7, 0, v7, vcc')
        a(f'v_lshrrev_b32 v5, 1, v5')
        for d in range(4):
            a(f'v_cmp_eq_u32 vcc, {d}, v5')
            a(f'v_cndmask_b32 v1, 0, v7, vcc')
            a(f'v_accvgpr_write_b32 a{AD + d}, v1')
        self.stamp('tbpre')
        a.drain_stores()
        if kvmix:
            self.get_pol(vFl)
        self.stamp('drained')
        a('s_barrier')
        self.stamp(3)
        a(f's_and_b32 s{sT0}, s{sXo}, 0x2000')
        a(f's_add_u32 s{sT0}, s{sT0}, {C_F1B * 256}')
        a(f's_cmp_lt_u32 s{sG}, 8')
        a(f's_cselect_b32 s{sT0}, s{sXo}, s{sT0}')
        with self.wave0():
            self.check(S_DBG, '0', 1, vFl)
            if o.get('apoll') == 9:
                a(f's_mov_b32 s{sU2}, 1')
                a(f's_atomic_add s{sU2}, {sr(S_WS, 2)}, s{sT0} glc')
            else:
                a(f'buffer_atomic_add v{self.vOne}, off, {WS}, s{sT0} sc1')
        w_some(o['w_e1'])
        for j in range(n1, n2):
            table(j)
        ACC = 128
        BUF = (0, 64)
        XR, SR, XF = 136, 152, 168

        def rdA(it, t):
            o0 = 8 * it + 64 * (t & 3)
            return f'ds_read2_b64 {ar(BUF[it & 1] + 4 * t, 4)}, v{vAa2 if t & 4 else vAa} offset0:{o0} offset1:{o0 + 1}'

        def rdB(it, t):
            return f'ds_read_b128 {ar(BUF[it & 1] + 32 + 4 * t, 4)}, v{vBa} offset:{448 - 64 * it + 512 * t}'
        if n2 == 4:
            for t in range(8):
                a(rdA(0, t))
        self.stamp('tbpost')
        self.warm([[[1, 4], [2, 5], [3]], [[2, 5], [3], [4]], [[3], [4], [5]]][o.get('warm0', 0)])
        with self.wave0():
            if o.get('apoll') == 9:
                top, done = a.label('spin'), a.label('done')
                a(f's_mov_b32 s{sSpin}, {SPIN}')
                a('s_waitcnt lgkmcnt(0)')
                a(f's_cmp_ge_u32 s{sU2}, 15')
                a(f's_cbranch_scc1 {done}')
                a(f'{top}:')
                a(f's_mov_b32 s{sU2}, 0')
                a(f's_atomic_add s{sU2}, {sr(S_WS, 2)}, s{sT0} glc')
                a(f's_sub_u32 s{sSpin}, s{sSpin}, 1')
                a(f's_cbranch_scc1 {done}')
                a('s_waitcnt lgkmcnt(0)')
                a(f's_cmp_lt_u32 s{sU2}, 16')
                a(f's_cbranch_scc1 {top}')
                a(f'{done}:')
                a('s_waitcnt lgkmcnt(0)')
            elif o.get('apoll'):
                self.spin_atomic(f's{sT0}', 16, o['apoll'], 1)
            else:
                self.spin(S_WS, f's{sT0}', 0 if o.get('noe1') else 16, vFl)
        a('s_barrier')
        self.stamp(4)
        a(f's_sub_u32 s{sT0}, {KVM}, s0' if kvmix else f's_mov_b32 s{sT0}, {KVX}')
        for j in range(4):
            a(f'buffer_load_dwordx4 {ar(BUF[1] + 4 * j, 4)}, v{vUL}, {WS}, s{sT0} offen sc1')
            if j < 3:
                a(f's_add_u32 s{sT0}, s{sT0}, {12288 if j == 1 and not kvmix else 4096}')
        w_some(o['w_u'])
        self.w_write_addr()
        a(f'v_add_u32 v{vPrev}, {2 * TILE}, v{vZR}')
        self.conv_ww = self.w_writes_main(self.WRAW[0] if park == 2 else None)
        if park == 2:
            for _ in range(8):
                a(self.conv_ww.pop(0))
        for j in range(n2, 4):
            table(j)
        if n2 < 4:
            for t in range(8):
                a(rdA(0, t))
        a(f's_add_u32 s{sT3}, s{sXo}, {C_FXR * 256}')
        a(f's_mov_b32 s{sT4}, {XP4}')
        a(f's_cmp_lt_u32 s{sG}, 8')
        a(f's_cselect_b32 s{sT4}, s{sT4}, {XP4T - (KVXT - KVX)}')
        a(f's_add_u32 s{sT6}, s{sT6}, s{sT4}')
        a(f's_lshr_b32 s{sT4}, s{S_W}, 1')
        a(f's_lshl_b32 s{sT4}, s{sT4}, 13')
        a(f's_add_u32 s{sT6}, s{sT6}, s{sT4}')
        a(f's_mov_b32 s{sT4}, {ST1}')
        for j in range(4):
            a(f'ds_write_b128 v{vUW}, {ar(BUF[1] + 4 * j, 4)} offset:{512 + 1024 * j}')
            if j == 0:
                self.stamp('uload')
            a(rdB(0, 2 * j))
            a(rdB(0, 2 * j + 1))
        self.stamp(5)
        fx = o['fx_it']
        xl = []
        for T in range(2):
            for p in range(2):
                off = 2048 * T + 1024 * p
                xl.append([f'buffer_load_dwordx4 {vr(XR + 8 * T + 4 * p, 4)}, v{vXS}, {WS}, s{sT6} offen offset:{off} sc1'])
                xl.append([f'buffer_load_dwordx4 {vr(SR + 8 * T + 4 * p, 4)}, v{vXS}, {WS}, s{sT4} offen offset:{off} sc1'])
        if o.get('nowl'):
            wl = [g[:-1] + [[]] for g in wl]
        wt = self.w_loads_tail()
        if park == 2:
            nl = o.get('w45_loop', 12)
            early, late = wl, xl + wt[:nl]
            self.win_pre = []
            self.win_loads = wt[nl:]
        elif park:
            early, late = wl, xl + wt[:12]
            self.win_pre = [f'v_accvgpr_read_b32 v{self.WRAW[4] + i}, a{208 + i}' for i in range(32)]
            self.win_loads = wt[12:]
        else:
            early, late = wl[:-8], xl + wt
            self.win_pre = wl[-8][:-1]
            self.win_loads = [wl[-8][-1]] + wl[-7:]
        tot = len(early) + len(late)
        per = [(tot * (i + 1)) // 8 - (tot * i) // 8 for i in range(8)]
        plan = []
        for it in range(8):
            n = per[it]
            if it <= fx + 1:
                n = min(max(n, o.get('early_n', 0)), len(early))
                plan.append([early.pop(0) for _ in range(n)])
            else:
                rest = late[:8] + early + late[8:] if it == fx + 2 else rest
                early = late = []
                n = (len(rest) + 7 - it) // (8 - it)
                plan.append([rest.pop(0) for _ in range(n)])
        for it in range(8):
            A, B = BUF[it & 1], BUF[it & 1] + 32
            mf = []
            endT = []
            for T in range(8):
                c = ar(ACC + 4 * T, 4)
                if it == 0:
                    mf.append(f'v_mfma_f32_16x16x32_bf16 {c}, {ar(AD, 4)}, {ar(B + 4 * T, 4)}, 0')
                for t in range(T + 1):
                    mf.append(f'v_mfma_f32_16x16x32_bf16 {c}, {ar(A + 4 * t, 4)}, {ar(B + 4 * (T - t), 4)}, {c}')
                endT.append(len(mf) - 1)
            fill = [[] for _ in mf]
            base = 8 if it == 0 else 0
            if it < 7:
                rd = [x for t in range(8) for x in (rdA(it + 1, t), rdB(it + 1, t))]
                for i, x in enumerate(rd):
                    fill[base + 2 * i].append(x)
            zw = [f'ds_write_b128 v{vG}, {ar(ACC + 4 * T, 4)} offset:{ZOFF - GOFF + 1024 * T}' for T in range(8)]
            if it == 7:
                for T in range(o.get('z_in', 7)):
                    fill[max(endT[T] + 5, 6 + 4 * T)].append(zw.pop(0))
            n = len(plan[it])
            pos = base
            for i, g in enumerate(plan[it]):
                p = max(base + ((i + 1) * 35) // n, pos)
                k = len(g) - 1
                for z, x in enumerate(g[:-1]):
                    fill[max(pos, p - (k - z + 1) // 2)].append(x)
                fill[p].append(g[-1])
                pos = p
            if it == 0:
                for i, x in enumerate(self.clear_pst(228)):
                    fill[i].append(x)
            spx = o['sp'] >> 3 & 1
            if it == fx and not spx:
                fill[-1].append(f'buffer_load_dword v{vFl}, off, {WS}, s{sT3} sc1')
            if it == fx + 1 and spx:
                fill[o.get('fx_p', 0)].append(f's_load_dword s{sDv}, {sr(S_WS, 2)}, s{sT3}')
            if it == fx + 1:
                fill[-1].append(lambda: self.check(S_WS, f's{sT3}', 0 if o.get('nofx') else 8, vFl, sDv if spx else None))
            if it == 7:
                fill[0].append(f's_add_u32 s{sFW}, s{sT3}, {(C_FWR - C_FXR) * 256}')

            if it == 0:
                unp = []
                for T in range(2):
                    for row in range(4):
                        src = XR + 8 * T + 2 * row
                        xf = XF + 16 * T + 4 * row
                        st = SR + 8 * T + 2 * row
                        unp += [f'v_lshlrev_b32 v{xf}, 16, v{src}', f'v_and_b32 v{xf + 1}, s{sT2}, v{src}',
                                f'v_lshlrev_b32 v{xf + 2}, 16, v{src + 1}', f'v_and_b32 v{xf + 3}, s{sT2}, v{src + 1}']
                        unp += [f'v_fma_f32 v{xf + 32 + c}, v{xf + c}, v{st}, v{st + 1}' for c in range(4)]
            u0 = o.get('unp_at', 36 * 6 + 14)
            for i, x in enumerate(unp):
                p = u0 + (i * (36 * 8 - u0)) // 64
                if p // 36 == it:
                    fill[p % 36].append(x)
            self.stamp(f'it{it}')
            if it > 0:
                a.need(ar(A, 24 if it < 7 else 32), ar(B, 24))
            for m, f in zip(mf, fill):
                a(m)
                a(f)
        self.stamp(6)
        a(zw)
        a('s_waitcnt lgkmcnt(0)')
        a('s_barrier')
        self.stamp('zbar')
        Z = XR
        for T in range(2):
            for ch in range(4):
                a(f'ds_read_b128 {vr(Z + 16 * T + 4 * ch, 4)}, v{vPrev if ch & 2 else vZR} offset:{(ch & 1) * TILE + 1024 * T}')
        for T in range(2):
            for p in range(2):
                ho = XF + 32 + 16 * T + 8 * p
                for b in range(2):
                    row = 2 * p + b
                    for c in range(4):
                        x = XF + 16 * T + 4 * row + c
                        a(f'v_fmac_f32 v{x}, v{x + 32}, v{Z + 16 * T + 4 * c + row}')
                    for c2 in range(2):
                        x = XF + 16 * T + 4 * row + 2 * c2
                        a(f'v_cvt_pk_bf16_f32 v{ho + 2 * b + c2}, v{x}, v{x + 1}')
                a(f'buffer_store_dwordx4 {vr(ho, 4)}, v{vHS}, {WS}, 0 offen offset:{2048 * T + 1024 * p} sc1')
        self.stamp(7)

    def side(self):
        a = self.a
        head = self.opt.get('head', 0)
        if head:
            a('.Lhead_a0:')
        a('.Lside:')
        a.fresh('role')
        self.stamp('sx_in')
        vTid = 1
        a(f's_sub_u32 s{sG}, s{sJ}, 20')
        a(f's_lshl3_add_u32 s{sG}, s{sG}, s{sX}')
        J2, vJ2, sG2, sJo, sJs = 136, 230, sQ, sDv, sM
        vFl = 231
        up = self.opt.get('up', 1)

        def job2_loads():
            a(f's_add_u32 s{sG2}, s{sG}, {48 if self.opt.get("pair", 1) else 0}')
            a(f's_sub_u32 s{sT0}, s{sG2}, 96')
            a(f's_cselect_b32 s{sG2}, s{sG2}, s{sT0}')
            a(f's_cmp_ge_u32 s{sG2}, 72')
            a(f's_cselect_b32 s{sT2}, s{S_WU}, s{S_WG}')
            a(f's_cselect_b32 s{sT3}, s{S_WU + 1}, s{S_WG + 1}')
            a(f's_cselect_b32 s{sT1}, 72, 48')
            a(f's_sub_u32 s{sT1}, s{sG2}, s{sT1}')
            a(f's_lshr_b32 s{sT0}, s{sG2}, 1')
            a(f's_cmp_ge_u32 s{sG2}, 48')
            a(f's_cselect_b32 s{S_WD}, s{sT2}, s{S_WD}')
            a(f's_cselect_b32 s{S_WD + 1}, s{sT3}, s{S_WD + 1}')
            a(f's_cselect_b32 s{sT0}, s{sT1}, s{sT0}')
            self.real_line(sT0, sT2)
            a(f's_and_b32 s{sT2}, s{sG2}, 1')
            a(f's_lshl1_add_u32 s{sT2}, s{sT0}, s{sT2}')
            a(f's_mul_i32 s{sT2}, s{sT2}, {32 * 1280}')
            a(f's_lshl_b32 s{sT0}, s{sT0}, 7')
            a(f's_movk_i32 s{sT1}, 1280')
            a(f's_movk_i32 s{sJs}, 128')
            a(f's_cmp_ge_u32 s{sG2}, 48')
            a(f's_cselect_b32 s{sJo}, s{sT0}, s{sT2}')
            a(f's_cselect_b32 s{sT1}, 3072, s{sT1}')
            a(f's_cselect_b32 s{sJs}, {32 * 3072}, s{sJs}')
            a(f'v_and_b32 v{vJ2}, 7, v0')
            a(f'v_lshlrev_b32 v{vJ2}, 4, v{vJ2}')
            a(f'v_lshrrev_b32 v15, 3, v{vTid}')
            a(f'v_mad_u32_u24 v{vJ2}, v15, s{sT1}, v{vJ2}')
            l2 = a.label('j2')
            if self.nt(4):
                l = a.label('j2')
                a(f's_cbranch_scc1 {l}')
                with a.untracked():
                    for j in range(10):
                        a(f'buffer_load_dwordx4 {vr(J2 + 4 * j, 4)}, v{vJ2}, {sr(S_WD, 4)}, s{sJo} offen offset:{128 * j}{self.nt(4)}')
                    a(f's_branch {l2}')
                a(f'{l}:')
            for j in range(10):
                a(f'buffer_load_dwordx4 {vr(J2 + 4 * j, 4)}, v{vJ2}, {sr(S_WD, 4)}, s{sJo} offen')
                a(f's_add_u32 s{sJo}, s{sJo}, s{sJs}')
            a(f'{l2}:')
        a(f's_cmp_ge_u32 s{sG}, 64')
        a.snapshot('s4')
        a('s_cbranch_scc1 .Ls4')
        XR, WR = 16, J2
        vA, vRow, vS8 = 2, 3, 4
        a(f'v_lshrrev_b32 v{vRow}, 3, v{vTid}')
        a(f'v_and_b32 v{vS8}, 7, v0')
        a(f's_lshr_b32 s{sT0}, s{sG}, 3')
        a(f's_lshl_b32 s{sT0}, s{sT0}, 8')
        a(f's_and_b32 s{sT1}, s{sG}, 3')
        a(f's_lshl2_add_u32 s{sT0}, s{sT1}, s{sT0}')
        a(f's_bfe_u32 s{sT1}, s{sG}, 0x10002')
        a(f's_lshl1_add_u32 s{sT0}, s{sT1}, s{sT0}')
        a(f'v_and_b32 v5, 0xf0, v{vTid}')
        a(f'v_and_b32 v6, 1, v{vRow}')
        a(f'v_add3_u32 v5, v5, v6, s{sT0}')
        a(f's_movk_i32 s{sT1}, 1280')
        a(f'v_lshlrev_b32 v6, 4, v{vS8}')
        a(f'v_mad_u32_u24 v5, v5, s{sT1}, v6')
        for j in range(10):
            a(f'buffer_load_dwordx4 {vr(XR + 4 * j, 4)}, v5, {sr(S_X, 4)}, 0 offen offset:{128 * j}{self.nt(3)}')
        if head:
            a('s_branch .Lhead_a1')
            a('.Lhead_a1:')
        if up == 1:
            job2_loads()
        self.stamp('sx_issued')
        self.gemm_ids()
        self.w_addr()
        vW, vRd, vSt = 5, 6, 7
        a(f's_movk_i32 s{sT1}, 528')
        a(f'v_lshlrev_b32 v{vW}, 3, v{vRow}')
        a(f'v_mad_u32_u24 v{vW}, v{vS8}, s{sT1}, v{vW}')
        a(f'v_and_b32 v{vRd}, 31, v0')
        a(f'v_lshlrev_b32 v{vRd}, 4, v{vRd}')
        a(f'v_lshrrev_b32 v8, 5, v{vTid}')
        a(f'v_mad_u32_u24 v{vRd}, v8, s{sT1}, v{vRd}')
        a(f's_lshl_b32 s{sT0}, s{sG}, 8')
        a(f'v_and_b32 v{vSt}, 15, v0')
        a(f's_and_b32 s{sT1}, s{sT0}, 0x2000')
        a(f's_add_u32 s{sT1}, s{sT1}, s{sT0}')
        a(f'v_lshl_add_u32 v{vSt}, v{vSt}, 4, s{sT1}')
        a(f'v_lshrrev_b32 v8, 4, v{vTid}')
        a(f's_mov_b32 s{sT1}, {2 * QS}')
        a(f'v_mad_u32_u24 v{vSt}, v8, s{sT1}, v{vSt}')
        for j in range(10):
            for o_ in range(2):
                a(f'ds_write_b64 v{vW}, {vr(XR + 4 * j + 2 * o_, 2)} offset:{j * 4224 + o_ * 256}')
        self.stamp('sx_data')
        a(f's_load_dword s{sU0}, {sr(S_DBG, 2)}, 0x80')
        a(f's_load_dword s{sU1}, {sr(S_DBG, 2)}, 0x0')
        if up == 2:
            job2_loads()
            a(f's_lshl_b32 s{sT0}, s{sG}, 8')
        a('s_waitcnt lgkmcnt(0)')
        a('s_barrier')
        self.stamp('sx_bar')
        XO = 96
        for j in range(10):
            a(f'ds_read_b128 {vr(XO + 4 * j, 4)}, v{vRd} offset:{j * 4224}')
        self.get_pol(vFl)
        self.check(S_DBG, '0', 1, vFl, sU1)
        a(f's_mov_b32 s{sOne}, 0x3f803f80')
        for i in range(4):
            a(f'v_mov_b32 v{8 + i}, 0')
        for j in range(10):
            a(f's_mov_b32 s{sT1}, {grp_base(j, XP4, XP4T)}')
            a(f'buffer_store_dwordx4 {vr(XO + 4 * j, 4)}, v{vSt}, {WS}, s{sT1} offen sc1')
            for i in range(4 * j, 4 * j + 4):
                a(f'v_dot2c_f32_bf16 v{8 + (i & 1)}, s{sOne}, v{XR + i}')
                a(f'v_dot2c_f32_bf16 v{10 + (i & 1)}, v{XR + i}, v{XR + i}')
        a('v_add_f32 v8, v8, v9')
        a('v_add_f32 v10, v10, v11')
        for m in ('quad_perm:[1,0,3,2]', 'quad_perm:[2,3,0,1]', 'row_half_mirror'):
            a(f'v_add_f32_dpp v8, v8, v8 {m} row_mask:0xf bank_mask:0xf')
            a(f'v_add_f32_dpp v10, v10, v10 {m} row_mask:0xf bank_mask:0xf')
        a(f'v_mul_f32 v8, {f32(1 / 640)}, v8')
        a(f'v_mul_f32 v10, {f32(1 / 640)}, v10')
        a('v_fma_f32 v10, -v8, v8, v10')
        a('v_max_f32 v10, 0, v10')
        a(f'v_add_f32 v10, {f32(1e-5)}, v10')
        a('v_rsq_f32 v10, v10')
        a('v_lshlrev_b32 v12, 5, v0')
        a('v_mul_f32 v11, -v8, v10')
        a(f's_lshl_b32 s{sT1}, s{S_W}, 6')
        a(f's_add_u32 s{sT1}, s{sT1}, s{sT0}')
        a(f's_add_u32 s{sT1}, s{sT1}, {ST1}')
        a('ds_bpermute_b32 v8, v12, v10')
        a('ds_bpermute_b32 v9, v12, v11')
        a('v_lshlrev_b32 v12, 3, v0')
        a.need('v[8:9]')
        a('s_mov_b64 exec, 0xff')
        a(f'buffer_store_dwordx2 v[8:9], v12, {WS}, s{sT1} offen sc1')
        a('s_mov_b64 exec, -1')
        a('s_branch .Lr1')
        if head:
            a('.Lhead_b0:')
        a('.Ls4:')
        a.fresh('s4')
        T4 = 10240
        a(f's_sub_u32 s{sT4}, s{sG}, 64')
        a(f's_lshr_b32 s{sT5}, s{sT4}, 2')
        a(f's_and_b32 s{sT4}, s{sT4}, 3')
        a(f's_mul_i32 s{sT0}, s{sT4}, 160')
        a(f's_lshl3_add_u32 s{sT0}, s{S_W}, s{sT0}')
        a(f's_mul_i32 s{sT0}, s{sT0}, 3072')
        a(f's_mul_i32 s{sT1}, s{sT5}, 3')
        a(f's_add_u32 s{sT1}, s{sT1}, 1')
        self.real_line(sT1, sT2)
        a(f's_lshl_b32 s{sT1}, s{sT1}, 7')
        a(f's_add_u32 s{sT0}, s{sT0}, s{sT1}')
        a('v_lshrrev_b32 v3, 3, v0')
        a('v_and_b32 v4, 7, v0')
        a(f'v_lshl_add_u32 v2, v4, 4, s{sT0}')
        a(f's_movk_i32 s{sT1}, 3072')
        a(f'v_mad_u32_u24 v2, v3, s{sT1}, v2')
        a(f's_mov_b32 s{sT0}, 0')
        for i in range(10):
            a(f'buffer_load_dwordx4 {vr(XR + 4 * i, 4)}, v2, {sr(S_WU if i & 1 else S_WG, 4)}, s{sT0} offen{self.nt(5)}')
            if i & 1:
                a(f's_add_u32 s{sT0}, s{sT0}, {32 * 3072}')
        if head:
            a('s_branch .Lhead_b1')
            a('.Lhead_b1:')
        if up == 1:
            job2_loads()
        self.stamp('sx_issued')
        self.gemm_ids()
        self.w_addr()
        a(f's_lshl_b32 s{sT0}, s{S_W}, 9')
        a(f'v_lshl_add_u32 v5, v3, 6, s{sT0}')
        a('v_and_b32 v6, 1, v0')
        a('v_lshl_add_u32 v5, v6, 4, v5')
        a('v_bfe_u32 v6, v0, 1, 2')
        a('v_lshlrev_b32 v7, 5, v6')
        a('v_xor_b32 v5, v5, v7')
        a(f's_movk_i32 s{sT0}, {T4}')
        a(f'v_mad_u32_u24 v5, v6, s{sT0}, v5')
        a('v_xor_b32 v6, 32, v5')
        a('v_lshrrev_b32 v7, 5, v0')
        a('v_bfe_u32 v8, v0, 2, 2')
        a('v_lshl_add_u32 v7, v7, 3, v8')
        a('v_lshlrev_b32 v7, 6, v7')
        a('v_and_b32 v8, 3, v0')
        a('v_lshl_add_u32 v7, v8, 4, v7')
        a('v_bfe_u32 v8, v0, 4, 1')
        a('v_lshl_add_u32 v7, v8, 3, v7')
        a(f's_lshl_b32 s{sT1}, s{S_W}, 5')
        a(f'v_xor_b32 v7, s{sT1}, v7')
        a(f's_mul_i32 s{sT1}, s{S_W}, {T4}')
        a(f'v_add_u32 v7, s{sT1}, v7')
        for i in range(10):
            a(f'ds_write_b128 v{6 if i & 1 else 5}, {vr(XR + 4 * i, 4)} offset:{(i >> 1) * 2048}')
        self.stamp('sx_data')
        a(f's_load_dword s{sU0}, {sr(S_DBG, 2)}, 0x80')
        a(f's_load_dword s{sU1}, {sr(S_DBG, 2)}, 0x0')
        if up == 2:
            job2_loads()
        a('s_waitcnt lgkmcnt(0)')
        a('s_barrier')
        self.stamp('sx_bar')
        for j in range(10):
            for e in range(2):
                a(f'ds_read_b64_tr_b16 {vr(XO + 4 * j + 2 * e, 2)}, v7 offset:{1024 * j + 256 * e}')
        a(f's_lshl2_add_u32 s{sT0}, s{sT5}, s{S_W}')
        a(f's_lshl2_add_u32 s{sT0}, s{sT0}, s{sT4}')
        a(f's_mul_i32 s{sT0}, s{sT0}, 10240')
        a(f's_add_u32 s{sT0}, s{sT0}, {W45F}')
        a('v_lshlrev_b32 v9, 4, v0')
        self.get_pol(vFl)
        self.check(S_DBG, '0', 1, vFl, sU1)
        for j in range(10):
            if j and j & 3 == 0:
                a(f's_add_u32 s{sT0}, s{sT0}, 4096')
            a(f'buffer_store_dwordx4 {vr(XO + 4 * j, 4)}, v9, {WS}, s{sT0} offen offset:{(j & 3) * 1024} sc1')
        a('.Lr1:')
        a.fresh()
        self.stamp('sx_st')
        o = self.opt
        assert up >= 1
        a(f's_mov_b32 s{sG}, s{sG2}')
        a(f's_mov_b32 s{sSide}, s{sG2}')
        self.w_select()
        WB = 49152
        T0 = 216
        na, nb, nc = o.get('sw_a', 10), o.get('sw_b', 10), o.get('sw_c', 12)
        assert na + nb + nc <= 32

        def end_r1(younger):
            self.stamp('sx_ld2')
            a(f's_waitcnt vmcnt({younger})')
            a('s_barrier')
            self.stamp('sx_dr')
            self.arrive_start([(sArr, C_FX)])
        a(f's_cmp_ge_u32 s{sG}, 48')
        a('s_cbranch_scc1 .Ls2')
        wl = self.w_loads_main()
        a(wl[:na])
        v8, v9, v10 = T0, T0 + 1, T0 + 2
        a(f'v_lshrrev_b32 v{vRow}, 3, v{vTid}')
        a(f'v_and_b32 v{vS8}, 7, v0')
        a(f's_movk_i32 s{sT1}, 1344')
        a(f'v_lshlrev_b32 v{vW}, 4, v{vS8}')
        a(f'v_mad_u32_u24 v{vW}, v{vRow}, s{sT1}, v{vW}')
        a(f'v_lshrrev_b32 v{v8}, 4, v0')
        a(f'v_bfe_u32 v{v9}, v0, 2, 2')
        a(f'v_lshl_add_u32 v{v8}, v{v8}, 3, v{v9}')
        a(f's_mul_i32 s{sT0}, s{S_W}, 320')
        a(f'v_mov_b32 v{v9}, s{sT0}')
        a(f'v_mad_u32_u24 v{v8}, v{v8}, s{sT1}, v{v9}')
        a(f'v_and_b32 v{v9}, 3, v0')
        a(f'v_lshl_add_u32 v{v10}, v{v9}, 3, v{v8}')
        a(f'v_lshl_add_u32 v{v8}, v{v9}, 4, v{v8}')
        end_r1(na)
        q = wl[na:na + nb]
        for j in range(10):
            a(f'ds_write_b128 v{vW}, {vr(WR + 4 * j, 4)} offset:{WB + 128 * j}')
            if q and j < o.get('sw_b1', 4):
                a(q.pop(0))
        self.arrive_finish([(sArr, 11, C_FXR)], v9)
        self.stamp(1)
        a(q)
        a('s_barrier')
        for cc in range(2):
            for nt in range(5):
                for e in range(2):
                    off = WB + cc * 160 + e * 4 * 1344 + ((nt >> 1) * 64 + (nt & 1) * 8)
                    a(f'ds_read_b64_tr_b16 {ar(4 * (5 * cc + nt) + 2 * e, 2)}, v{v10 if nt == 4 else v8} offset:{off}')
        a(f's_mul_i32 s{sT0}, s{S_W}, 96')
        a(f's_add_u32 s{sT0}, s{sT0}, s{sG}')
        a(f's_mul_i32 s{sT0}, s{sT0}, 5120')
        a(f's_add_u32 s{sT0}, s{sT0}, {WDF}')
        a(f'v_lshlrev_b32 v{v9}, 4, v0')
        for cc in range(2):
            for nt in range(5):
                if nt == 4:
                    a(f's_add_u32 s{sT0}, s{sT0}, 4096')
                a(f'buffer_store_dwordx4 {ar(4 * (5 * cc + nt), 4)}, v{v9}, {WS}, s{sT0} offen offset:{(nt & 3) * 1024} sc1')
            a(f's_add_u32 s{sT0}, s{sT0}, {48 * 5120 - 4096}')
        a('s_branch .Lr2')
        a('.Ls2:')
        a.fresh()
        AC = T0 + 4
        for i in range(10, 20):
            a(f'buffer_load_dwordx4 {vr(J2 + 4 * i, 4)}, v{vJ2}, {sr(S_WD, 4)}, s{sJo} offen')
            a(f's_add_u32 s{sJo}, s{sJo}, s{sJs}')
        for i in range(8):
            a(f'v_mov_b32 v{AC + i}, 0')
        a(f's_mov_b32 s{sT4}, 0x3f80')
        a(f's_mov_b32 s{sT3}, 0x3f800000')
        end_r1(10)
        q = self.w_loads_main()[:na + nb]
        for i in range(80):
            a(f'v_dot2c_f32_bf16 v{AC + 2 * (i & 3)}, s{sT4}, v{J2 + i}')
            a(f'v_dot2c_f32_bf16 v{AC + 1 + 2 * (i & 3)}, s{sT3}, v{J2 + i}')
            if i == 39:
                self.arrive_finish([(sArr, 11, C_FXR)], T0)
                self.stamp(1)
            if i & 1 and i > 39 and q:
                a(q.pop(0))
        a(q)
        a(f'v_lshlrev_b32 v5, 5, v{vTid}')
        a(f'ds_write_b128 v5, {vr(AC, 4)} offset:{WB}')
        a(f'ds_write_b128 v5, {vr(AC + 4, 4)} offset:{WB + 16}')
        a('s_waitcnt lgkmcnt(0)')
        a('s_barrier')
        a('v_bfe_u32 v6, v0, 1, 4')
        a('v_and_b32 v7, 32, v0')
        a('v_add_u32 v6, v6, v7')
        a('v_and_b32 v7, 1, v0')
        a('v_lshl_add_u32 v6, v7, 4, v6')
        a('v_lshlrev_b32 v6, 2, v6')
        for i in range(16):
            a(f'ds_read2st64_b32 {vr(J2 + 2 * i, 2)}, v6 offset0:{WB // 256 + 2 * i} offset1:{WB // 256 + 2 * i + 1}')
        for i in range(1, 16):
            a(f'v_pk_add_f32 {vr(J2, 2)}, {vr(J2, 2)}, {vr(J2 + 2 * i, 2)}')
        a(f'v_add_f32 v{J2}, v{J2}, v{J2 + 1}')
        a(f'v_cvt_pk_bf16_f32 v{T0}, v{J2}, v{J2}')
        a(f'v_lshlrev_b32 v7, 16, v{T0}')
        a(f'v_sub_f32 v7, v{J2}, v7')
        a(f'v_cvt_pk_bf16_f32 v{T0 + 1}, v7, v7')
        a(f's_sub_u32 s{sT0}, s{sG}, 48')
        a(f's_lshl_b32 s{sT0}, s{sT0}, 9')
        a(f's_add_u32 s{sT0}, s{sT0}, {CSF}')
        a('v_lshlrev_b32 v6, 3, v0')
        a(f's_cmp_lg_u32 s{S_W}, 0')
        a('s_cbranch_scc1 .Lr2')
        a(f'buffer_store_dwordx2 {vr(T0, 2)}, v6, {WS}, s{sT0} offen sc1')
        a('.Lr2:')
        a.fresh()
        self.stamp(2)
        a(f's_lshr_b32 s{sT0}, s{sG}, 5')
        a(f's_and_b32 s{sT1}, s{sG}, 15')
        a(f's_lshl4_add_u32 s{sT0}, s{sT0}, s{sT1}')
        a(f's_and_b32 s{sT1}, s{sG}, 16')
        a(f's_lshl2_add_u32 s{sT0}, s{sT1}, s{sT0}')
        a(f's_lshl_b32 s{sT0}, s{sT0}, 7')
        a(f's_add_u32 s{sT0}, s{sT0}, {CF3}')
        a('v_mov_b32 v4, 0')
        a('v_and_b32 v5, 31, v0')
        a('v_lshlrev_b32 v5, 2, v5')
        lf3 = a.label('nof3')
        a(f's_cmp_lg_u32 s{S_W}, 1')
        a(f's_cbranch_scc1 {lf3}')
        with a.untracked():
            a(f'buffer_store_dword v4, v5, {WS}, s{sT0} offen sc1')
        a(f'{lf3}:')
        if o.get('outpf', 2) >= 2:
            big = o.get('outpf', 2) == 3
            a(f's_lshr_b32 s{sT0}, s{sG}, 3')
            a(f's_mul_i32 s{sT0}, s{sT0}, 86')
            a(f's_and_b32 s{sT1}, s{sG}, 7')
            a(f's_lshl_b32 s{sT1}, s{sT1}, 10')
            a(f's_add_u32 s{sT0}, s{sT0}, s{sT1}')
            for i in range(4):
                a(f'v_mov_b32 v{T0 + 4 + i}, 0')
            for k in range(3 if big else 2):
                a(f'v_lshrrev_b32 v6, {3 if big else 2}, v{vTid}')
                a(f'v_add_u32 v6, {k * (32 if big else 64)}, v6')
                a('v_min_u32 v6, 85, v6')
                a(f'v_add_u32 v6, s{sT0}, v6')
                a('v_mul_u32_u24 v6, 320, v6')
                a('v_add_u32 v6, 160, v6')
                a(f'v_and_b32 v6, {-128 if big else -64}, v6')
                a(f'v_and_b32 v7, {7 if big else 3}, v0')
                a('v_lshl_add_u32 v6, v7, 4, v6')
                a(f'buffer_store_dwordx4 {vr(T0 + 4, 4)}, v6, {sr(S_OUT, 4)}, 0 offen sc1')
        a(self.clear_pst(2))
        n0 = na + nb + nc
        a(wl[na + nb:n0])
        a(f's_add_u32 s{sT4}, s{sXo}, {C_FXR * 256}')
        a(f's_add_u32 s{sFW}, s{sT4}, {(C_FWR - C_FXR) * 256}')
        a.drain_stores()
        a('s_waitcnt lgkmcnt(0)')
        a('s_barrier')
        self.stamp(6)
        self.arrive_start([(sArr, C_B1), (sJs, C_FW)])
        a(f'buffer_load_dword v1, off, {WS}, s{sT4} sc1')

        def mid():
            self.arrive_finish([(sJs, 11, C_FWR), (sArr, 31, C_B2)], T0)
            self.check(S_WS, f's{sT4}', 8, 1)
        self.side_window(wl[n0:], mid)
        self.warm([[3], [4], [5]])
        a(f's_waitcnt vmcnt({self.opt["wd_pre"]})')
        self.stamp(7)
        a('s_branch .Ljoin')

    def signal(self, soff, pi):
        a = self.a
        if self.opt.get('ssig', 0) >> pi & 1:
            a(f's_atomic_add s{sU2}, {sr(S_WS, 2)}, {soff}')
        else:
            a('s_mov_b64 exec, 1')
            a(f'buffer_atomic_add v{self.vOne}, off, {WS}, {soff} sc1')
            a('s_mov_b64 exec, -1')

    def gemms(self):
        a = self.a
        o = self.opt
        t, t2 = self.vTmp, self.vTmp2
        L, AB = 0, 8
        vRD = 4
        vAL, vAS, vA2, vWD, vWD2, vCS, vFl = 1, 2, 3, 247, 255, 246, 254
        vW5 = 252
        vS = 232
        BP = 236
        TM = 242
        ACC = 168
        RING1, CS, RING2 = 124, 148, 240
        sF3s, sF3p = sQ, sM
        sRB2w = sG
        kap = [[3 * c + ((pi + 1) % 3 if c & 1 else pi) for c in range(4)] for pi in range(3)]
        wd = []
        for i in range(60):
            g = []
            if i % 5 == 0:
                g.append(f's_mov_b32 s{sWoff}, {WDF + 5120 * kap[i // 20][i // 5 % 4]}')
            g.append(f'buffer_load_dwordx4 {ar(4 * i, 4)}, v{vWD2 if i % 5 == 4 else vWD}, {WS}, s{sWoff} offen offset:{(i % 5 & 3) * 1024} sc1')
            wd.append(g)
        if o.get('nowd'):
            wd = [[] for _ in wd]
        real, setup0 = a, []
        a = setup0.append
        a(f's_and_b32 s{sT0}, s{sJ}, 7')
        a(f's_lshl2_add_u32 s{sT0}, s{sT0}, s{S_W}')
        a(f's_mul_i32 s{sT0}, s{sT0}, {12 * 5120}')
        a(f'v_lshl_add_u32 v{vWD}, v0, 4, s{sT0}')
        a(f'v_add_u32 v{vWD2}, 0x1000, v{vWD}')
        a(f'v_lshlrev_b32 v{vRD}, 4, v0')
        for s in range(1, 4):
            a(f'v_xor_b32 v{t}, {16 * s}, v{vRD}')
            a(f'v_add_u32 v{vRD + s}, {TILE * s}, v{t}')
        a(f'v_lshl_add_u32 v{vW5}, s{S_W}, 10, v{vRD}')
        a(f'v_lshl_add_u32 v{vW5 + 1}, s{S_W}, 10, v{vRD + 1}')
        a(f's_lshl2_add_u32 s{sT0}, s{sRB}, s{S_W}')
        a(f's_lshl_b32 s{sT1}, s{sT0}, 8')
        a(f'v_and_b32 v{t}, 15, v0')
        a(f'v_lshlrev_b32 v{vA2}, 4, v{t}')
        a(f'v_add_u32 v{t}, s{sT1}, v{vA2}')
        a(f'v_lshrrev_b32 v{t2}, 4, v0')
        a(f's_mov_b32 s{sT1}, {QS}')
        a(f'v_mad_u32_u24 v{vAL}, v{t2}, s{sT1}, v{t}')
        a(f'v_lshl_add_u32 v{vA2}, v{t2}, 9, v{vA2}')
        def act_blk(dst, n, tmp):
            a(f's_and_b32 s{tmp}, s{n}, 7')
            a(f's_mul_i32 s{dst}, s{tmp}, 196608')
            a(f's_bfe_u32 s{tmp}, s{n}, 0x20003')
            a(f's_lshl_b32 s{tmp}, s{tmp}, 22')
            a(f's_add_u32 s{dst}, s{dst}, s{tmp}')
            a(f's_lshr_b32 s{tmp}, s{n}, 5')
            a(f's_lshl_b32 s{tmp}, s{tmp}, 13')
            a(f's_add_u32 s{dst}, s{dst}, s{tmp}')

        def f3_line(r, tmp):
            a(f's_and_b32 s{tmp}, s{r}, 16')
            a(f's_mul_i32 s{tmp}, s{tmp}, 3')
            a(f's_add_u32 s{r}, s{r}, s{tmp}')
            a(f's_lshl_b32 s{r}, s{r}, 7')
            a(f's_add_u32 s{r}, s{r}, {CF3}')
        act_blk(sT1, sT0, sT4)
        a(f'v_lshl_add_u32 v{vAS}, v0, 4, s{sT1}')
        a(f's_lshr_b32 s{sF3s}, s{sT0}, 1')
        f3_line(sF3s, sT4)
        a(f's_lshr_b32 s{sT1}, s{sJ}, 3')
        a(f's_lshl2_add_u32 s{sF3p}, s{sX}, s{sT1}')
        a(f's_lshl_b32 s{sRB2w}, s{sF3p}, 1')
        f3_line(sF3p, sT4)
        for i in range(4):
            a(f's_add_u32 s{sT0}, s{sRot}, {i}')
            a(f's_and_b32 s{sT0}, s{sT0}, 3')
            a(f's_mul_i32 s{sT1}, s{sT0}, {40 * QS}')
            a(f's_add_u32 s{sT1}, s{sT1}, {HP4}')
            a([f's_cmp_lt_u32 s{sT0}, 3', f's_cselect_b32 s{sAB + i}, s{sT1}, {HP4T}'])
        a(f'v_and_b32 v{t}, 3, v0')
        a(f'v_bfe_u32 v{t2}, v0, 2, 1')
        a(f'v_lshl_add_u32 v{t}, v{t2}, 3, v{t}')
        a(f'v_bfe_u32 v{t2}, v0, 4, 1')
        a(f'v_lshl_add_u32 v{t}, v{t2}, 2, v{t}')
        a(f'v_lshlrev_b32 v{t}, 4, v{t}')
        a(f'v_bfe_u32 v{t2}, v0, 3, 1')
        a(f's_movk_i32 s{sT1}, 12288')
        a(f'v_mad_u32_u24 v{vCS}, v{t2}, s{sT1}, v{t}')
        a(f's_mov_b32 s{sOne}, 0x3f803f80')
        a(f's_mov_b32 s{sU2}, 1')
        a(f's_lshl_b32 s{sT2}, s{sA}, 7')
        a(f's_add_u32 s{sT2}, s{sT2}, {CSF}')
        a(f's_lshl_b32 s{sT3}, s{sB}, 7')
        a(f's_add_u32 s{sT3}, s{sT3}, {CSF}')
        for r in (sA, sB):
            a(f's_and_b32 s{sT0}, s{r}, -8')
            a(f's_add_u32 s{r}, s{r}, s{sT0}')
            a(f's_lshl_b32 s{r}, s{r}, 10')
            a(f's_add_u32 s{r}, s{r}, {ACT}')
        act_blk(sT6, sRB2w, sT4)
        a(f's_mul_i32 s{sT5}, s{S_W}, 49152')
        a(f's_add_u32 s{sT5}, s{sT5}, s{sT6}')
        for lam in range(4):
            a(f's_xor_b32 s{sT0}, s{S_W}, {lam}')
            a(f's_lshr_b32 s{sT1}, s{sT0}, 1')
            a(f's_mul_i32 s{sT1}, s{sT1}, 196608')
            a(f's_and_b32 s{sT0}, s{sT0}, 1')
            a(f's_lshl_b32 s{sT0}, s{sT0}, 8')
            a(f's_add_u32 s{sT0}, s{sT0}, s{sT5}')
            a(f's_add_u32 s{sL[lam]}, s{sT1}, s{sT0}')
        sRes, sOutB, sQS = 20, 21, 22
        a(f's_lshr_b32 s{sT0}, s{S_W}, 1')
        a(f's_add_u32 s{sT0}, s{sT0}, s{sRB2w}')
        a(f's_lshl_b32 s{sRes}, s{sT0}, 8')
        a(f's_and_b32 s{sT4}, s{S_W}, 1')
        a(f's_lshl3_add_u32 s{sRes}, s{sT4}, s{sRes}')
        a(f's_and_b32 s{sT5}, s{sJ}, 7')
        a(f's_mul_i32 s{sT6}, s{sT5}, {20 * QS}')
        a(f's_add_u32 s{sRes}, s{sRes}, s{sT6}')
        a(f's_mov_b32 s{sT6}, {HP4}')
        a([f's_cmp_lt_u32 s{sT5}, 6', f's_cselect_b32 s{sT6}, s{sT6}, {HP4T - 120 * QS}'])
        a(f's_add_u32 s{sRes}, s{sRes}, s{sT6}')
        a(f's_mov_b32 s{sQS}, {QS}')
        a(f's_lshr_b32 s{sOutB}, s{sRB2w}, 3')
        a(f's_lshl_b32 s{sOutB}, s{sOutB}, 8')
        a(f's_and_b32 s{sT6}, s{sT0}, 3')
        a(f's_lshl2_add_u32 s{sOutB}, s{sT6}, s{sOutB}')
        a(f's_bfe_u32 s{sT6}, s{sRB2w}, 0x10002')
        a(f's_lshl1_add_u32 s{sOutB}, s{sT6}, s{sOutB}')
        a(f's_add_u32 s{sOutB}, s{sOutB}, s{sT4}')
        a(f's_mul_i32 s{sOutB}, s{sOutB}, 1280')
        a(f's_mul_i32 s{sT6}, s{sT5}, 160')
        a(f's_add_u32 s{sOutB}, s{sOutB}, s{sT6}')
        a(f's_lshl_b32 s{sU0}, s{sCB}, 8')
        a(f's_add_u32 s{sU0}, s{sU0}, {PST}')
        a(f's_mov_b32 s{sU1}, {PST}')
        a(f's_and_b32 s{sCB}, s{sCB}, 3')
        a(f's_mul_i32 s{sCB}, s{sCB}, 10')
        a = real
        spw = o['sp'] >> 4 & 1
        fw_ld = f's_load_dword s{sDv}, {sr(S_WS, 2)}, s{sFW}' if spw else f'buffer_load_dword v{TM + 2}, off, {WS}, s{sFW} sc1'
        nw = 40 - 8 * o.get('defer', 2)
        wdp = [wd.pop(0) for _ in range(o['wd_pre'])]

        def mixer(ww, setup, lq, per=6):
            def some(n, nl):
                for i in range(n):
                    a(ww.pop(0))
                    for _ in range(per):
                        if setup:
                            a(setup.pop(0))
                    for _ in range(((i + 1) * nl) // n - (i * nl) // n):
                        if lq:
                            a(lq.pop(0))
            return some

        def side_window(wl, fx_check):
            ww, setup = self.w_writes_main()[:nw], list(setup0)
            self.w_write_addr()
            lq = list(wl)
            hold = [x for x in setup if isinstance(x, str) and (f'v{vW5},' in x or f's{sU1},' in x)]
            setup = [x for x in setup if x not in hold]
            some = mixer(ww, [], lq)
            nl = len(lq)
            n_ = min(nl, nw - 8)
            assert all(40 - nl + (i * nl) // n_ >= 8 * (i // 8 + 1) for i in range(n_))
            some(n_, nl)
            fx_check()
            lq += self.w_loads_tail()
            if o.get('outpf', 2) == 1:
                a(f's_lshr_b32 s{sT0}, s{sSide}, 3')
                a(f's_lshl2_add_u32 s{sT0}, s{sT0}, s{S_W}')
                a(f's_mul_i32 s{sT0}, s{sT0}, {22 * 320}')
                a(f's_and_b32 s{sSide}, s{sSide}, 7')
                a(f's_mul_i32 s{sSide}, s{sSide}, {256 * 1280}')
                a(f's_add_u32 s{sSide}, s{sSide}, s{sT0}')
                a(f'v_min_u32 v{TM}, 21, v0')
                a(f'v_mul_u32_u24 v{TM}, 320, v{TM}')
                lq.insert(o.get('pf_pos', 20), f'buffer_load_dword a255, v{TM}, {sr(S_OUT, 4)}, s{sSide} offen offset:160')
            lq.append(fw_ld)
            mixer(ww, setup, lq)(len(ww), len(lq))
            a(setup)
            a(hold)
            if wdp:
                self.check(S_WS, f's{sFW}', 0 if o.get('nofw') else 8, TM + 2, sDv if spw else None)
            a(wdp)
        self.side_window = side_window
        ww = self.conv_ww
        setup = self.win_pre + setup0
        lq = list(self.win_loads)
        n1, n2 = o.get('ww1', 10), o.get('ww2', 6)
        assert len(ww) - n1 >= 8
        hold = [x for x in setup if isinstance(x, str) and (f'v{vW5},' in x or f's{sU1},' in x)]
        setup[:] = [x for x in setup if x not in hold]
        self.stamp('hbar')
        some = mixer(ww, setup, lq, o.get('su_per', 7))
        assert 5 * o.get('su_per', 7) >= len(self.win_pre)
        some(5, 0)
        fwe = o.get('fwe', 1)
        if wdp and fwe:
            a(fw_ld)
        some(n1 - 5, o.get('l1', 8))
        self.stamp('hissued')
        if wdp and fwe and spw:
            a.need(f's{sDv}')
        a.drain_stores()
        self.stamp('hdrained')
        a('s_barrier')
        self.stamp('hbar2')
        self.arrive_start([(sArr, C_B1)])
        if wdp and not fwe:
            a(fw_ld)
        if wdp and fwe:
            self.check(S_WS, f's{sFW}', 0 if o.get('nofw') else 8, TM + 2, sDv if spw else None)
            nl2 = len(lq) + o.get('l2', 8)
            lq += wdp
            some(n2, nl2)
        else:
            some(n2, len(lq))
        self.arrive_finish([(sArr, 31, C_B2)], TM)
        self.stamp('arrived')
        if wdp and not fwe:
            self.check(S_WS, f's{sFW}', 0 if o.get('nofw') else 8, TM + 2, sDv if spw else None)
            lq += wdp
        some(len(ww), len(lq))
        a(setup)
        a(hold)
        a(lq)
        a('.Ljoin:')
        self.stamp('wwritten')
        a(f's_add_u32 s{sT0}, s{sXo}, {C_B2 * 256}')
        with self.wave0():
            l = a.label('passed')
            if o.get('e2s', 1):
                a(f's_load_dword s{sDv}, {sr(S_WS, 2)}, s{sT0}')
                a('s_waitcnt lgkmcnt(0)')
                a(f's_cmp_ge_u32 s{sDv}, 8')
                a(f's_cbranch_scc1 {l}')
            self.spin(S_WS, f's{sT0}', 0 if o.get('noe2') else 8, t)
            a(f'{l}:')
        self.stamp('polled')
        a('s_waitcnt lgkmcnt(0)')
        a('s_barrier')
        self.stamp(8)
        al = []
        for j in range(40):
            if j % 10 == 0:
                al.append([f'buffer_load_dwordx4 {vr(AB + 4 * j, 4)}, v{vAL}, {WS}, s{sAB + j // 10} offen sc1'])
            else:
                al.append([f's_add_u32 s{sT1}, s{sAB + j // 10}, {(j % 10) * 4 * QS}',
                           f'buffer_load_dwordx4 {vr(AB + 4 * j, 4)}, v{vAL}, {WS}, s{sT1} offen sc1'])
        al.append(f'buffer_load_dwordx4 {ar(CS, 4)}, v{vCS}, {WS}, s{sT2} offen sc1')
        al.append(f'buffer_load_dwordx4 {ar(CS + 4, 4)}, v{vCS}, {WS}, s{sT2} offen offset:256 sc1')
        al.append(f'buffer_load_dwordx4 {ar(CS + 8, 4)}, v{vCS}, {WS}, s{sT3} offen sc1')
        for _ in range(o['a_ahead']):
            a(al.pop(0))

        def rd(dst, slot, j):
            return f'ds_read_b128 {ar(dst, 4)}, v{vRD + slot} offset:{1024 * j}'

        def swaps(j):
            return [f'v_permlane16_swap_b32 v{AB + 4 * j + e}, v{AB + 4 * j + 2 + e}' for e in range(2)]

        def acc(slot):
            return vr(ACC + 16 * slot, 16)
        wtail = [f'ds_write_b128 v{vW5 + (i & 1)}, {ar(160 + 4 * i, 4)} offset:{(i >> 1) * 4096}' for i in range(20)]
        if o.get('nowt'):
            wtail = [[] for _ in wtail]
        C0, C1, R = vS, vS + 1, vS + 2
        c0 = -2.0 * 0.7978845608028654 * 1.4426950408889634
        G = ACC + 48
        gather = [f'buffer_load_dwordx2 {vr(G + 2 * s, 2)}, v{self.vPS}, {WS}, s{sU1} offen offset:{256 * s} sc1'
                  for s in range(8)]
        valid = [f'v_or3_b32 v{t}, v{G + 1}, v{G + 3}, v{G + 5}', f'v_or3_b32 v{t2}, v{G + 7}, v{G + 9}, v{G + 11}',
                 f'v_or3_b32 v{t}, v{t}, v{G + 13}, v{G + 15}', f'v_or_b32 v{t}, v{t}, v{t2}',
                 f'v_cmp_gt_i32 vcc, 0, v{t}']

        def chk_stats():
            slow, back = a.label('slow'), a.label('back')
            a('s_nop 1')
            a(f's_cbranch_vccnz {slow}')
            a(f'{back}:')

            def cold():
                top = a.label('top')
                a(f'{slow}:')
                with a.untracked():
                    a(f's_mov_b32 s{sSpin}, {SPIN}')
                    a(f'{top}:')
                    a(gather)
                    a('s_waitcnt vmcnt(0)')
                    a(valid)
                    a(f's_sub_u32 s{sSpin}, s{sSpin}, 1')
                    a(f's_cbranch_scc1 {back}')
                    a('s_nop 3')
                    a(f's_cbranch_vccnz {top}')
                    a(f's_branch {back}')
            self.cold.append(cold)
        halves = [
            f'v_add_f32 v{vS}, v{vS}, v{vS + 1}',
            f'v_add_f32 v{vS + 2}, v{vS + 2}, v{vS + 3}',
            f'v_mov_b32 v{vS + 1}, v{vS}',
            f'v_mov_b32 v{vS + 3}, v{vS + 2}',
            f'v_cmp_gt_u32 vcc, 32, v{L}',
            f'v_permlane32_swap_b32 v{vS}, v{vS + 1}',
            f'v_permlane32_swap_b32 v{vS + 2}, v{vS + 3}']
        pub = halves + [
            f'v_add_f32 v{G}, v{vS}, v{vS + 1}',
            f'v_add_f32 v{G + 1}, v{vS + 2}, v{vS + 3}',
            f'v_and_b32 v{G + 1}, 0x7fffffff, v{G + 1}',
            ['s_mov_b32 exec_hi, 0',
             f'buffer_store_dwordx2 {vr(G, 2)}, v{self.vPS}, {WS}, s{sU0} offen sc1',
             's_mov_b32 exec_hi, -1']]
        st = valid + [chk_stats]
        for w_ in range(2):
            g = G + w_
            st += [f'v_add_f32 v{g}, v{g}, v{g + 2}', f'v_add_f32 v{g + 4}, v{g + 4}, v{g + 6}',
                   f'v_add_f32 v{g + 8}, v{g + 8}, v{g + 10}', f'v_add_f32 v{g + 12}, v{g + 12}, v{g + 14}',
                   f'v_add_f32 v{vS + 2 * w_}, v{g}, v{g + 4}', f'v_add_f32 v{vS + 2 * w_ + 1}, v{g + 8}, v{g + 12}']
        st += halves + [
            f'v_add_f32 v{vS}, v{vS}, v{vS + 1}',
            f'v_add_f32 v{vS + 2}, v{vS + 2}, v{vS + 3}',
            f'v_mul_f32 v{vS}, {f32(-1 / 640)}, v{vS}',
            f'v_mul_f32 v{vS + 2}, {f32(1 / 640)}, v{vS + 2}',
            f'v_cvt_pk_bf16_f32 v{t}, v{vS}, v{vS}',
            f'v_fma_f32 v{R}, -v{vS}, v{vS}, v{R}',
            f'v_lshlrev_b32 v{t}, 16, v{t}',
            f'v_max_f32 v{R}, 0, v{R}',
            f'v_sub_f32 v{t2}, v{vS}, v{t}',
            f'v_add_f32 v{R}, {f32(1e-5)}, v{R}',
            f'v_cvt_pk_bf16_f32 v{t}, v{t}, v{t2}',
            f'v_rsq_f32 v{vS + 3}, v{R}',
            f'v_cndmask_b32 v{BP + 2}, 0, v{t}, vcc',
            f'v_cndmask_b32 v{BP + 3}, 0, v{t}, vcc',
            f'v_mul_f32 v{C0}, {f32(c0)}, v{vS + 3}',
            f'v_mul_f32 v{t}, v{vS + 3}, v{vS + 3}',
            f'v_mul_f32 v{t}, {f32(0.044715)}, v{t}',
            f'v_mul_f32 v{C1}, v{t}, v{C0}',
        ]

        def csm(tile, slot, first):
            b = vr(BP, 4) if tile & 1 else vr(BP + 2, 4)
            return f'v_mfma_f32_32x32x16_bf16 {acc(slot)}, {ar(CS + 4 * (tile >> 1), 4)}, {b}, {"0" if first else acc(slot)}'

        def pick(r0, r1):
            a(f's_set_gpr_idx_on s{sCB}, gpr_idx(SRC0)')
            a('s_nop 0')
            for r in range(r0, r1):
                a(f'v_mov_b32_e32 v{G + r}, v{AB + r}')
            a('s_set_gpr_idx_off')
        for j in range(2):
            for s in range(3):
                a(rd(RING1 + 12 * j + 4 * s, s, j))
        a(swaps(0))
        self.stamp('a0')
        p2 = [(3, 3, j) for j in range(40)] + [(4, 0, j) for j in range(40)] + [(5, 1, j) for j in range(40)]
        gq = list(gather)
        GJ, SJ = o.get('gather_j', 21), o.get('stat_j', 33)
        BARS = [int(x) for x in str(o.get('bars', '15x27')).split('x')]
        nwd1 = min(o.get('wd_p1', 6), 31 - o['wd_pre'])
        assert not ww
        NR = o.get('ring', 8)
        assert NR == 4 or o['wd_post'] >= 4

        def r2(i):
            return RING2 + 4 * (i & 3) if NR == 4 else 224 + 4 * ((i + 4) & 7)
        misc = [f'v_mov_b32 v{BP + i}, 0' for i in (0, 1, 4, 5)] + [f'v_mov_b32 v{vS + i}, 0' for i in range(4)]
        wdone, wfree = 0, 0
        C1CAP = o.get('cap1', 5)
        for j in range(40):
            base = RING1 + 12 * (j & 1)
            self.stamp(f'p{j}')
            a.need(ar(base, 12))
            for s in range(3):
                c = '0' if j == 0 else acc(s)
                a(f'v_mfma_f32_32x32x16_bf16 {acc(s)}, {ar(base + 4 * s, 4)}, {vr(AB + 4 * j, 4)}, {c}')
                used = 1 if s < 2 else 2
                if j < 38:
                    a(rd(base + 4 * s, s, j + 2))
                else:
                    i = (j - 38) * 3 + s
                    if i < 4:
                        a(rd(r2(i), p2[i][1], p2[i][2]))
                if s == 0 and j < 39:
                    a(swaps(j + 1))
                    used += 3 if j < SJ else 2
                if j == 39:
                    if s == 0:
                        a('s_barrier')
                        wtail = wtail[-4:] + wtail[:-4]
                    else:
                        a(wtail.pop(0))
                elif s == 1 and wdone < wfree:
                    a(wtail.pop(0))
                    wdone += 1
                    used += 4
                if s == 2:
                    if al:
                        a(al.pop(0))
                        used += 3
                    elif nwd1 and not gq and j < o.get('wd1_hi', 39):
                        a(wd.pop(0))
                        nwd1 -= 1
                        used += 2
                if j >= GJ and gq and s < 2:
                    a(gq.pop(0))
                    used += 2
                q = misc if j < 8 else pub if j < SJ else st
                while q and used < C1CAP + (o.get('cap1s', 1) if q is st else 0) and j != 8:
                    a(q.pop(0))
                    used += 1
            if j in BARS:
                a('s_barrier')
                wfree = 2 * ((j + 1) // 4)
            if j == 8:
                a(f's_set_gpr_idx_on s{sCB}, gpr_idx(SRC0,SRC1)')
                a('s_nop 0')
                for r in range(10):
                    a(f'v_dot2c_f32_bf16_e32 v{vS + (r & 1)}, s{sOne}, v{AB + r}')
                    a(f'v_dot2c_f32_bf16_e32 v{vS + 2 + (r & 1)}, v{AB + r}, v{AB + r}')
                a('s_set_gpr_idx_off')
            if o.get('verbose') and j in (9, 10, 11, 12, 37, 38):
                print('step', j, 'pub', len(pub), 'st', len(st))
        assert not pub and not al and not st and not misc
        RES, vRes, vRes2 = 200, vAL, vCS
        res_addr = [
            f'v_and_b32 v{vRes}, 15, v{L}',
            f'v_lshl_add_u32 v{vRes2}, v{vRes}, 4, s{sRes}',
            f'v_lshrrev_b32 v{vRes}, 4, v{L}',
            f'v_mad_u32_u24 v{vRes2}, v{vRes}, s{sQS}, v{vRes2}',
            f'v_mad_u32_u24 v{vRes}, v{vRes}, s{sQS}, v{vRes2}',
        ]
        for tl in range(3):
            a(csm(tl, tl, False))
            a(wtail.pop(0) if wtail else [])
        self.stamp(9)

        def epi(tile, slot, packed=False):
            b = ACC + 16 * slot
            tm = [TM, TM + 1, TM + 2, TM + 3]
            ops = []
            for h in range(2):
                g, u = b + 8 * h, b + 8 * h + 4
                if packed:
                    P = lambda r, i: vr(r + 2 * i, 2)
                    cc, rr = vr(C0, 2), vr(R, 2)
                    ops += [(1, f'v_pk_mul_f32 {P(TM, i)}, {P(g, i)}, {P(g, i)}') for i in range(2)]
                    ops += [(1, f'v_pk_fma_f32 {P(TM, i)}, {P(TM, i)}, {cc}, {cc} op_sel:[0,1,0] op_sel_hi:[1,1,0]') for i in range(2)]
                    ops += [(1, f'v_pk_mul_f32 {P(u, i)}, {P(u, i)}, {P(g, i)}') for i in range(1)]
                    ops += [(1, f'v_pk_mul_f32 {P(TM, i)}, {P(TM, i)}, {P(g, i)}') for i in range(2)]
                    ops += [(2, f'v_exp_f32 v{tm[i]}, v{tm[i]}') for i in range(4)]
                    ops += [(1, f'v_pk_mul_f32 {P(u, i)}, {P(u, i)}, {P(g, i)}') for i in range(1, 2)]
                    ops += [(1, f'v_pk_fma_f32 {P(TM, i)}, {P(TM, i)}, {rr}, {rr} op_sel:[0,0,0] op_sel_hi:[1,0,0]') for i in range(2)]
                    ops += [(2, f'v_rcp_f32 v{tm[i]}, v{tm[i]}') for i in range(4)]
                    ops += [(1, f'v_pk_mul_f32 {P(u, i)}, {P(u, i)}, {P(TM, i)}') for i in range(2)]
                    ops += [(1, f'v_cvt_pk_bf16_f32 v{b + 2 * h + i}, v{u + 2 * i}, v{u + 2 * i + 1}') for i in range(2)]
                    continue
                ops += [(1, f'v_mul_f32 v{tm[i]}, v{g + i}, v{g + i}') for i in range(4)]
                ops += [(1, f'v_fma_f32 v{tm[i]}, v{tm[i]}, v{C1}, v{C0}') for i in range(4)]
                ops += [(1, f'v_mul_f32 v{tm[i]}, v{tm[i]}, v{g + i}') for i in range(4)]
                for i in range(4):
                    ops += [(2, f'v_exp_f32 v{tm[i]}, v{tm[i]}'), (1, f'v_mul_f32 v{u + i}, v{u + i}, v{g + i}')]
                ops += [(1, f'v_fma_f32 v{tm[i]}, v{tm[i]}, v{R}, v{R}') for i in range(4)]
                ops += [(2, f'v_rcp_f32 v{tm[i]}, v{tm[i]}') for i in range(4)]
                ops += [(1, f'v_mul_f32 v{u + i}, v{u + i}, v{tm[i]}') for i in range(4)]
                ops += [(1, f'v_cvt_pk_bf16_f32 v{b + 2 * h + i}, v{u + 2 * i}, v{u + 2 * i + 1}') for i in range(2)]
            so = sA if tile < 4 else sB
            txt = f'buffer_store_dwordx4 {vr(b, 4)}, v{vAS}, {WS}, s{so} offen offset:{(tile & 3) * 1024} sc1'
            ops.append((5, (lambda: a(txt, tag=f'act{tile}')) if not o.get('nost') else []))
            if o.get('noepi'):
                ops = [(c_, x if callable(x) else []) for c_, x in ops]
            return ops

        G2 = 72
        FR = [[8 + 4 * i for i in range(16)],
              [152 + 4 * i for i in range(4)] + [200 + 4 * i for i in range(8)] + [168 + 4 * i for i in range(4)],
              [8 + 4 * i for i in range(16)]]
        order = [[(c, lam) for lam in (3, 2, 1, 0) for c in range(4)]] * 3

        def act_ld(pi, n):
            c, lam = order[pi][n]
            if o.get('noact'):
                return []
            return [f's_add_u32 s{sT1}, s{sL[lam]}, {ACT + 16384 * (kap[pi][c] >> 2) + 2048 * (kap[pi][c] & 3)}',
                    f'buffer_load_dwordx4 {vr(FR[pi][n], 4)}, v{vA2}, {WS}, s{sT1} offen sc1']

        def sig(pi, tag):
            def f():
                self.stamp(f'presig{pi}')
                a.need_tag(tag)
                if o.get('wgsig', 0) >> pi & 1:
                    l = a.label('nosig')
                    a('s_barrier')
                    a(f's_bitcmp1_b32 s{S_W}, 0')
                    a(f's_cbranch_scc1 {l}')
                    with a.untracked():
                        self.signal(f's{sF3s}', pi)
                    a(f'{l}:')
                else:
                    self.signal(f's{sF3s}', pi)
                self.stamp(f'sig{pi}')
                if pi < 2:
                    a(f's_add_u32 s{sF3s}, s{sF3s}, 2048')
            return f

        def poll_ld(pi):
            if o['sp'] >> pi & 1:
                return f's_load_dword s{sDv}, {sr(S_WS, 2)}, s{sF3p}'
            return f'buffer_load_dword v{vFl}, off, {WS}, s{sF3p} sc1'

        def poll_chk(pi):
            def f():
                self.stamp(f'prechk{pi}')
                self.check(S_WS, f's{sF3p}', 0 if o.get('noe3', 0) >> pi & 1 else 16 if o.get('wgsig', 0) >> pi & 1 else 32, vFl,
                           sDv if o['sp'] >> pi & 1 else None)
                self.stamp(f'chk{pi}')
                if pi < 2:
                    a(f's_add_u32 s{sF3p}, s{sF3p}, 2048')
            return f
        RES, vRes, vRes2 = 200, vAL, vCS
        res_addr = [
            f'v_and_b32 v{vRes}, 15, v{L}',
            f'v_lshl_add_u32 v{vRes2}, v{vRes}, 4, s{sRes}',
            f'v_lshrrev_b32 v{vRes}, 4, v{L}',
            f'v_mad_u32_u24 v{vRes2}, v{vRes}, s{sQS}, v{vRes2}',
            f'v_mad_u32_u24 v{vRes}, v{vRes}, s{sQS}, v{vRes2}',
        ]
        res_ld = []
        for nt in range(5):
            q = 8 * (nt >> 1) + (nt & 1)
            res_ld.append([f's_mov_b32 s{sT6}, {q * QS}',
                           f'buffer_load_dwordx2 {vr(RES + 2 * nt, 2)}, v{vRes2 if nt == 4 else vRes}, {WS}, s{sT6} offen sc1'])
        slot_of = {0: 0, 1: 1, 2: 2, 3: 3, 4: 0, 5: 1}
        eq = epi(0, 0) + epi(1, 1) + epi(2, 2)
        budget = 0.0
        RATE = o['epi_rate']
        extra = {i: [] for i in range(120)}
        first_w = wtail.pop(0) if wtail else []
        extra0 = {k: wtail[k] for k in range(len(wtail))}
        wlast, nxt = o.get('grow', 0), 4
        extra[o.get('bar4', 26)].append('s_barrier')
        for k, x in enumerate(res_addr):
            extra[66 + k].append(x)
        nwd = len(wd) - o.get('wd_post', 12)
        done = 60 - len(wd)
        lo, hi = o.get('wd_lo', 4), o.get('wd_hi', 78)
        hold = None
        for k in range(nwd):
            g = wd.pop(0)
            p = lo + (k * (hi - lo)) // nwd
            fr = done + k
            if fr == 39:
                extra[81].append([f's_mov_b32 s{sT6}, {WDF + 5120 * kap[1][3]}', g[-1].replace(f's{sWoff} offen', f's{sT6} offen')] if g else [])
                continue
            assert fr < 56 or p > 14
            extra[p].append(g)
        SA, SB = o.get('siga', 62), o.get('sigb', 104)
        extra[SA].append(sig(0, 'act1'))
        extra[o.get('lda', 86)].append(poll_ld(0))
        for k, x in enumerate(res_ld):
            extra[o.get('res_at', 86) + 2 * k].append(x)
        ca = o.get('chka', 105)
        extra[ca].append(poll_chk(0))
        na = o.get('a_in', 7)
        for n in range(na):
            extra[ca + 1 + (n * (119 - ca)) // na].append(act_ld(0, n))
        extra[SB].append(sig(1, 'act3'))
        extra[50].append('s_barrier')

        def cost(x):
            if callable(x):
                return 3
            if isinstance(x, (list, tuple)):
                return sum(cost(y) for y in x)
            return 5 if x.startswith('ds_write') else 2 if x.startswith('buffer') or x == 's_barrier' else 1
        CAP = o.get('cap', 6.6)
        for i, (tile, ls, j) in enumerate(p2):
            slot = slot_of[tile]
            self.stamp(f'q{i}')
            if j == 0:
                a(csm(tile, slot, True))
                if i == 0:
                    a(first_w)
                if i:
                    budget = 6
                    while eq and budget >= eq[0][0]:
                        cst, x = eq.pop(0)
                        budget -= cst
                        a(x)
            WP = 2 if NR == 4 or i < 12 else o.get('wper', 4)
            if i % WP == 0:
                a.need(*[ar(r2(i + z), 4) for z in range(WP)])
            a(f'v_mfma_f32_32x32x16_bf16 {acc(slot)}, {ar(r2(i), 4)}, {vr(AB + 4 * j, 4)}, {acc(slot)}')
            a(extra0.get(i, []))
            nrd = 0
            while nxt < len(p2) and nxt <= i + NR and nrd < (2 if i >= wlast else 1):
                if NR == 8 and i < wlast:
                    a(rd(r2(nxt + 4), p2[nxt][1], p2[nxt][2])) if False else None
                a(rd(r2(nxt), p2[nxt][1], p2[nxt][2]))
                nxt += 1
                nrd += 1
            a(extra[i])
            if i == 42:
                eq += epi(3, 3)
            if i == 82:
                eq += epi(4, 0)
                if o.get('st4_late'):
                    st4 = eq.pop()[1]
            if i >= 1:
                budget = min(budget, 1.0) + CAP - nrd - ((i + 1) % WP == 0) - cost(extra[i]) - cost(extra0.get(i, []))
                budget = max(budget, -1)
                while eq and budget >= min(eq[0][0], 2):
                    cst, x = eq.pop(0)
                    budget -= cst
                    a(x)
                    if callable(x) and o.get('verbose'):
                        print('store at gap', i)
                if i == 39:
                    assert len(eq) <= 2 * 69, len(eq)
                if i == SA - 1:
                    assert len(eq) <= 2 * 69, len(eq)
                if i == 79:
                    assert len(eq) <= 2 * 69, len(eq)
                if i == o.get('res_at', 86) - 1:
                    assert len(eq) <= 2 * 69, len(eq)
                if i == SB - 1:
                    assert len(eq) <= 69, len(eq)
            if j == 39:
                self.stamp(f't{tile}')
        for cst, x in eq:
            a(x)
        a(f's_mov_b32 s{sT0}, 0xffff0000')
        for i in range(10):
            a(f'v_lshlrev_b32 v{G2 + 2 * i}, 16, v{RES + i}')
            a(f'v_and_b32 v{G2 + 2 * i + 1}, s{sT0}, v{RES + i}')
        e5 = epi(5, 1, o.get('pk5', 1))
        LA = o.get('la2', 12)
        rest = [act_ld(0, n) for n in range(na, LA)]
        if o.get('ldb', -1) < 0:
            rest.append(poll_ld(1))
        if o.get('st4_late'):
            rest.append(st4)
        k = 0
        for i, (cst, x) in enumerate(e5):
            while k < len(rest) and (k + 1) * (len(e5) - 1) <= i * len(rest):
                a(rest[k])
                k += 1
            a(x)
        assert k == len(rest)
        self.stamp(10)

        vOut, vRR, vRW, vTW, vTR = 4, 7, 232, 238, 242
        RED = 2 * TILE
        setup = [
            f's_movk_i32 s{sT6}, {16 * 1280 - 160}',
            f's_movk_i32 s{sT5}, 6554',
            f's_movk_i32 s{sT4}, 176',
            f's_mul_i32 s{sT3}, s{S_W}, {16 * 176}',
            f'v_and_b32 v{t}, 15, v{L}',
            f'v_lshrrev_b32 v{t2}, 4, v{L}',
            f'v_mov_b32 v{vTW + 1}, s{sT3}',
            f'v_mad_u32_u24 v{vTW + 1}, v{t}, s{sT4}, v{vTW + 1}',
            f'v_lshl_add_u32 v{vTW}, v{t2}, 4, v{vTW + 1}',
            f'v_lshl_add_u32 v{vTW + 1}, v{t2}, 3, v{vTW + 1}',
        ]
        setup += [f'v_mul_u32_u24 v{t2}, s{sT5}, v{L}',
                  f'v_lshrrev_b32 v{t2}, 16, v{t2}',
                  f'v_lshl_add_u32 v{vOut}, v{L}, 4, s{sOutB}',
                  f'v_mad_u32_u24 v{vOut}, v{t2}, s{sT6}, v{vOut}',
                  f'v_add_u32 v{t}, v{L}, v{t2}',
                  f'v_lshl_add_u32 v{vTR}, v{t}, 4, s{sT3}',
                  f's_mov_b32 s{sT4}, {6 * 16 * 1280}',
                  f's_mov_b32 s{sT5}, {12 * 16 * 1280}']
        for lam in range(4):
            setup += [f's_xor_b32 s{sT0}, s{S_W}, {lam}', f's_mul_i32 s{sT0}, s{sT0}, {15 * 1024}',
                      f's_add_u32 s{sT0}, s{sT0}, {RED + (lam - 1) * 5120 if lam else RED}',
                      f'v_lshl_add_u32 v{vRW + lam - 1 if lam else vRR}, v{L}, 4, s{sT0}']

        def mf2(pi, n, nt):
            c, lam = order[pi][n]
            d = vr(G2 + 4 * (5 * lam + nt), 4)
            cin = '0' if (pi == 0 and c == 0 and lam != 0) else d
            return f'v_mfma_f32_16x16x32_bf16 {d}, {ar(4 * (5 * (4 * pi + c) + nt), 4)}, {vr(FR[pi][n], 4)}, {cin}'
        ex = [{i: [] for i in range(80)} for _ in range(3)]
        for k, x in enumerate(setup):
            ex[0][k].append(x)
        def put(pos, x):
            ex[pos // 80][pos % 80].append(x)
        if o.get('ldb', -1) >= 0:
            put(o['ldb'], poll_ld(1))
        cb_, cc_ = o.get('chkb', 5 * (16 - LA)), 80 + o.get('chkc', 44)
        put(cb_, [poll_chk(1), lambda: self.stamp('chkb')])
        put(o.get('sigc', 40), [sig(2, 'act5'), lambda: self.stamp('sigc')])
        put(80 + o.get('ldc', 28), poll_ld(2))
        put(cc_, [lambda: self.stamp('chkc0'), poll_chk(2), lambda: self.stamp(11)])
        pos = 0
        for g in range(LA, 48):
            pos = max(pos + (o.get('burst', 2) if g >= 16 else 0), o.get('g_gap', 5) * (g - LA) if g < 32 else 5 * (g - LA),
                      cb_ if g >= 16 else 0, cc_ if g >= 32 else 0)
            assert pos < 20 * (g // 4)
            put(pos, act_ld(g // 16, g % 16))
            if g < 32 and wd and 32 - g <= len(wd) + o.get('wdp_early', 0):
                put(pos + 2, wd.pop(0))
        assert not wd
        chain = o.get('chain', 1)
        for blk, lam in enumerate((3, 2, 1)):
            for nt in range(5):
                ex[2][20 * blk + 4 * nt + 12 if chain else 20 * (blk + 1) + 5 + 2 * nt].append(
                    f'ds_write_b128 v{vRW + lam - 1}, {vr(G2 + 4 * (5 * lam + nt), 4)} offset:{1024 * nt}')
        RD, RR = 152, 8
        red2 = o.get('red2', 1)

        def rd_part(s_, nt):
            return f'ds_read_b128 {vr(RD + 12 * nt + 4 * s_, 4)}, v{vRR} offset:{5120 * s_ + 1024 * nt}'
        if red2:
            assert chain
            b1, b2 = o.get('rb1', 52), o.get('rb2', 72)
            ex[2][b1] += [f's_waitcnt lgkmcnt({(b1 - 48) // 4})', 's_barrier']
            k = 0
            for nt in range(5):
                for s_ in (2, 1):
                    ex[2][b1 + 1 + k].append(rd_part(s_, nt))
                    k += 1
            adds = [f'v_add_f32 v{RD + 12 * nt + 4 + r}, v{RD + 12 * nt + 4 + r}, v{RD + 12 * nt + 8 + r}'
                    for nt in range(5) for r in range(4)]
            for k, x in enumerate(adds):
                ex[2][min(79, b1 + 12 + k // 2)].append(x)
            ex[2][b2] += ['s_waitcnt lgkmcnt(0)', 's_barrier']
            for nt in range(5):
                ex[2][min(79, b2 + nt)].append(rd_part(0, nt))
        for pi in range(3):
            for i in range(80):
                if chain:
                    a(mf2(pi, 4 * (i // 20) + (i & 3), i % 20 // 4))
                else:
                    a(mf2(pi, i // 5, i % 5))
                self.stamp(f'm{80 * pi + i}')
                a(ex[pi][i])
            self.stamp('end' + 'ABC'[pi])
        if not red2:
            a('s_waitcnt lgkmcnt(0)')
            a('s_barrier')
            for nt in range(5):
                for s_ in range(3):
                    a(rd_part(s_, nt))
        self.stamp('redbar')
        sc = ' sc1' if o['out_sc1'] else ''
        if red2:
            for nt in range(5):
                for p in range(2):
                    a(f'v_pk_add_f32 {vr(G2 + 4 * nt + 2 * p, 2)}, {vr(G2 + 4 * nt + 2 * p, 2)}, {vr(RD + 12 * nt + 4 + 2 * p, 2)}')
        for nt in range(5):
            b = RD + 12 * nt
            c = G2 + 4 * nt
            for p in range(2):
                a(f'v_pk_add_f32 {vr(c + 2 * p, 2)}, {vr(c + 2 * p, 2)}, {vr(b + 2 * p, 2)}')
                if not red2:
                    a(f'v_pk_add_f32 {vr(b + 4 + 2 * p, 2)}, {vr(b + 4 + 2 * p, 2)}, {vr(b + 8 + 2 * p, 2)}')
            for p in range(2):
                if not red2:
                    a(f'v_pk_add_f32 {vr(c + 2 * p, 2)}, {vr(c + 2 * p, 2)}, {vr(b + 4 + 2 * p, 2)}')
            for p in range(2):
                a(f'v_cvt_pk_bf16_f32 v{RR + 2 * nt + p}, v{c + 2 * p}, v{c + 2 * p + 1}')
            if nt & 1:
                a(f'ds_write_b128 v{vTW}, {vr(RR + 2 * nt - 2, 4)} offset:{64 * (nt >> 1)}')
            if nt == 4:
                a(f'ds_write_b64 v{vTW + 1}, {vr(RR + 8, 2)} offset:128')
        for k in range(3):
            a(f'ds_read_b128 {vr(RR + 12 + 4 * k, 4)}, v{vTR} offset:{6 * 176 * k}')
        a('s_mov_b32 exec_hi, 0xfffffff')
        for k in range(3):
            if k == 2:
                a('s_mov_b32 exec_hi, 0xff')
            a(f'buffer_store_dwordx4 {vr(RR + 12 + 4 * k, 4)}, v{vOut}, {sr(S_OUT, 4)}, {("0", f"s{sT4}", f"s{sT5}")[k]} offen{sc}')
        a('s_mov_b32 exec_hi, -1')
        lz = a.label('nz')
        a('s_cmp_lg_u32 s2, 0')
        a(f's_cbranch_scc1 {lz}')
        with a.untracked():
            a(f'buffer_store_dword v{BP}, off, {sr(S_DBG, 4)}, 0 sc1')
            a(f'buffer_store_dword v{BP}, off, {sr(S_DBG, 4)}, 0 offset:128 sc1')
        a(f'{lz}:')
        if self.diag:
            self.stamp('outst')
            a('s_waitcnt vmcnt(0)')
            self.stamp(12)
            a('s_waitcnt lgkmcnt(0)')
            with self.wave0():
                a(f's_lshl_b32 s{sT0}, s2, 7')
                a(f's_add_u32 s{sT0}, s{sT0}, {STAMP}')
                a(f's_sub_u32 s{S_WS}, s{S_WS}, s0')
                a(f's_subb_u32 s{S_WS + 1}, s{S_WS + 1}, 0')
                a('v_mov_b32 v0, s0')
                a(f'buffer_store_dword v0, off, {WS}, s{sT0} offset:60')
                for i in range(NSTAMP):
                    a(f'v_mov_b32 v0, s{S_STAMP + 2 * i}')
                    a(f'buffer_store_dword v0, off, {WS}, s{sT0} offset:{4 * i}')
        if self.opt.get('fixt'):
            with a.untracked():
                fs = S_STAMP + 2 * self.opt.get("fixs", 0)
                if self.opt.get('fixmax'):
                    lo, hi = {'all': (0, 256), 'conv': (0, 160), 'side': (160, 256)}[self.opt['fixmax']]
                    a(f's_cmp_lg_u32 s{S_W}, 0')
                    a('s_cbranch_scc1 .Lend')
                    a(f's_sub_u32 s{sT0}, s2, {lo}')
                    a(f's_cmp_lt_u32 s{sT0}, {hi - lo}')
                    a(f's_cselect_b32 s{sT0}, s{fs}, 0')
                    a(f'v_mov_b32 v1, s{sT0}')
                    a('s_mov_b64 exec, 1')
                    a(f'buffer_atomic_umax v1, off, {sr(S_DBG, 4)}, 0 offset:64 sc1')
                    a('s_cmp_lg_u32 s2, 0')
                    a('s_cbranch_scc1 .Lend')
                    a('.Lfix0:')
                    a(f's_memrealtime {sr(sT0, 2)}')
                    a('s_waitcnt lgkmcnt(0)')
                    a(f's_sub_u32 s{sT0}, s{sT0}, s{S_STAMP}')
                    a(f's_cmp_lt_u32 s{sT0}, 3500')
                    a('s_cbranch_scc1 .Lfix0')
                    a(f'buffer_load_dword v1, off, {sr(S_DBG, 4)}, 0 offset:64 sc1')
                    a('s_waitcnt vmcnt(0)')
                    a(f'v_readfirstlane_b32 s{sT3}, v1')
                    a('s_nop 4')
                    fs = sT3
                a(f's_cmp_lg_u32 s2, {self.opt.get("fixwg", 0)}')
                a('s_cbranch_scc1 .Lend')
                a(f's_cmp_lg_u32 s{S_W}, 0')
                a('s_cbranch_scc1 .Lend')
                a(f's_sub_u32 s{sT2}, s{fs}, s{S_STAMP + 2 * self.opt.get("fixb", 0)}')
                a(f's_mul_i32 s{sT2}, s{sT2}, 10')
                a(f's_min_u32 s{sT2}, s{sT2}, 100000')
                a(f's_add_u32 s{sT2}, s{sT2}, {self.opt["fixt"]}')
                a('.Lfix:')
                a(f's_memrealtime {sr(sT0, 2)}')
                a('s_waitcnt lgkmcnt(0)')
                a(f's_sub_u32 s{sT0}, s{sT0}, s{S_STAMP}')
                a(f's_cmp_lt_u32 s{sT0}, s{sT2}')
                a('s_cbranch_scc1 .Lfix')
        a('.Lend:')
        a('s_endpgm')

    def build(self):
        a = self.a
        if self.diag:
            for i in range(2 * NSTAMP):
                a(f's_mov_b32 s{S_STAMP + i}, 0')
        self.prologue()
        self.conv()
        self.gemms()
        self.side()
        for c in self.cold:
            a.fresh()
            a('s_nop 7')
            c()
        a('.Lcode_end:')
        a('s_endpgm')
        pads = (self.opt.get('base', 0x300), NPAD, sr(sRet, 2), '.Lend', self.opt.get('pstride', 4096)) if self.opt['pads'] else None
        hoist = [('.Lhead_a0:', '.Lhead_a1:'), ('.Lhead_b0:', '.Lhead_b1:')] if self.opt.get('head', 0) else []
        front, body = a.finish(verbose=True, align=self.opt.get('align', 1), pads=pads, hoist=hoist)
        body += '.p2align 12\n    s_endpgm\n'
        ref = open('cdna_kernels/' + NAME + '.s.ref').read().split('\n')
        head = [l for l in ref if l.startswith(';') and '@launch' not in l and 'Override' not in l and 'grid=ceil' not in l]
        txt = '\n'.join(head) + '\n'
        txt += '; One persistent launch: kv/transposition -> Toeplitz-MFMA long conv -> gate/up GEMM + GEGLU -> down GEMM.\n'
        txt += '; @launch grid=(256,1,1) block=(256,1,1) lds=163840\n'
        txt += f'''.amdgcn_target "amdgcn-amd-amdhsa--gfx950"
.text
{front}.globl {NAME}_kernel
.p2align 8
.type {NAME}_kernel,@function
{NAME}_kernel:
{body}.section .rodata,"a"
.p2align 6
.amdhsa_kernel {NAME}_kernel
  .amdhsa_next_free_vgpr 512
  .amdhsa_next_free_sgpr 102
  .amdhsa_accum_offset 256
  .amdhsa_group_segment_fixed_size 0
  .amdhsa_kernarg_size 104
  .amdhsa_user_sgpr_count 2
  .amdhsa_user_sgpr_kernarg_segment_ptr 1
  .amdhsa_system_sgpr_workgroup_id_x 1
  .amdhsa_float_denorm_mode_32 3
.end_amdhsa_kernel
'''
        return txt


if __name__ == '__main__':
    out = sys.argv[1]
    diag = 'diag' in sys.argv[2:]
    opt = {}
    for x in sys.argv[2:]:
        if '=' in x:
            k, v = x.split('=')
            try:
                v = int(v)
            except ValueError:
                try:
                    v = float(v)
                except ValueError:
                    pass
            opt[k] = v
    open(out, 'w').write(Gen(diag, opt).build())
```

```python
import struct
import sys
from asmlib import Asm, vr, ar, sr

NAME = 'sequential_preLN__ssm_conv_h3__geglu_ffn__prompt'

MB = 1 << 20
QS = 16384
CNT = 0
CF3 = 16384
PROBE = 32768
ST1 = 49152
CSF = 65536
STAMP = 98304
PST = 131072
W45F = PST + 262144
WDF = 2 * MB
KVX, KVXT = 4 * MB, 8 * MB
KVM = 36 * MB
XP4, XP4T = 12 * MB, 8 * MB + 524288
HP4, HP4T = 16 * MB, 9 * MB
ACT = 20 * MB
WS_END = 40 * MB
C_F1, C_F1B, C_FX, C_FW, C_FXR, C_B1, C_B2, C_FWR = [4 * i for i in range(8)]


def grp_base(g, main, tail):
    return (main + (g & 3) * 524288 + (g >> 2) * 8192) if g < 8 else tail + (g - 8) * 8192


SPIN = 100000

S_W = 3
S_K, S_V, S_SH, S_SK, S_X, S_WG, S_WU, S_WD, S_OUT, S_DBG, S_WS = 4, 8, 12, 16, 20, 24, 28, 32, 36, 40, 44
S_D = 48
sX, sJ, sG, sM, sQ, sRB, sCB, sA, sB, sRot = 50, 51, 52, 53, 54, 55, 56, 57, 58, 59
sT0, sT1, sT2, sT3, sT4, sT5, sT6, sT7 = 60, 61, 62, 63, 64, 65, 66, 67
sWoff, sWoff2, sSpin, sDv = 68, 69, 70, 71
sOne, sU0, sU1, sU2 = 72, 73, 74, 75
sXo = 1
sRet = 48
NPAD = 8
S_STAMP = 76
NSTAMP = 13
sAB = 4
sL = [8, 9, 10, 11]
sPL, sPH, sFW, sSide, sArr = 16, 17, 18, 19, 23
sE = [None, 12, 13, 14]

GSTR = 4128
GOFF, UOFF, ZOFF = 16384, 33024, 32768
TILE = 40960
WS = sr(S_WS, 4)


def f32(x):
    return '0x%08x' % struct.unpack('<I', struct.pack('<f', x))[0]


class Gen:
    def __init__(self, diag=False, opt=None):
        self.a = Asm()
        self.diag = diag
        self.opt = dict(place=1, w_kv=0, w_e1=8, apoll=9, w_u=0, tb_pre=4, tb_mid=0, ssm=0, sp=31, defer=0, wdp_from=24, a_ahead=14, sig='v', epi_rate=4.5,
                        fx_it=3, early_n=0, out_sc1=1, pads=1, wd_pre=20, wd_post=4, l2=10, wd_p1=11, chkb=20, sigc=39, ssig=4, ldc=24, chkc=38, wd_pre1=8, arr='s')
        if opt:
            self.opt.update(opt)
        self.cold = []

    PROF = {
        'main': [0, 1, 2, 3, 4, 5, 6, 7, 8, 9, 10, 11, 12],
        'front': [0, 'karg', 'issued', 1, 'kvdone', 2, 'tbpre', 'drained', 3, 'tbpost', 4, 'uload', 5],
        'e2': [0, 6, 'zbar', 7, 'hbar', 'hissued', 'hdrained', 'hbar2', 'arrived', 'wwritten', 'polled', 8, 'a0'],
        'g1': [0, 8, 'a0', 'p8', 'p16', 'p24', 'p32', 9, 't3', 't4', 't5', 10, 12],
        'g2a': [0, 't5', 10, 'm4', 'prechk1', 'chk1', 'm24', 'presig2', 'sig2', 'm44', 'm64', 'endA', 'm84'],
        'sum': [0, 'x1', 'x2', 'x3', 'x4', 'x5', 'x6', 7, 8, 'x9', 'x10', 'x11', 12],
        'side': [0, 'sx_in', 'sx_issued', 'sx_data', 'sx_bar', 'sx_st', 'sx_ld2', 'sx_dr', 1, 2, 6, 7, 8],
        'loop': [0, 4, 5, 'it1', 'it2', 'it3', 'it4', 'it5', 'it6', 'it7', 6, 7, 8],
        'g1b': [0, 9, 'q10', 'q20', 't3', 'presig0', 'sig0', 't4', 'prechk0', 'chk0', 'presig1', 'sig1', 't5'],
        'g2': [0, 't5', 10, 'chkb', 'sigc', 'endA', 'chkc0', 11, 'endB', 'endC', 'redbar', 'outst', 12],
    }

    def nt(self, bit):
        return ' ' + self.opt.get('ntw', 'nt') if self.opt.get('nt', 30) >> bit & 1 else ''

    def stamp(self, i):
        prof = self.PROF[self.opt.get('prof', 'main')]
        if self.diag and i in prof:
            i = prof.index(i)
            self.a(f'{"s_memtime" if self.opt.get("cyc") else "s_memrealtime"} {sr(S_STAMP + 2 * i, 2)}')

    def spin_atomic(self, soff, target, depth, vt):
        a = self.a
        top, done = a.label('spin'), a.label('done')
        with a.untracked():
            a(f's_mov_b32 s{sSpin}, {SPIN}')
            for d in range(depth - 1):
                a(f'v_mov_b32 v{vt + d}, 0')
                a(f'buffer_atomic_add v{vt + d}, off, {WS}, {soff} sc0 sc1')
                a(f's_sleep {self.opt.get("pslp", 3)}')
            a(f'{top}:')
            for d in range(depth):
                n = (d + depth - 1) % depth
                a(f'v_mov_b32 v{vt + n}, 0')
                a(f'buffer_atomic_add v{vt + n}, off, {WS}, {soff} sc0 sc1')
                a(f's_waitcnt vmcnt({depth - 1})')
                a(f'v_readfirstlane_b32 s{sT7}, v{vt + d}')
                a(f's_cmp_ge_u32 s{sT7}, {target}')
                a(f's_cbranch_scc1 {done}')
            a(f's_sub_u32 s{sSpin}, s{sSpin}, 1')
            a(f's_cbranch_scc0 {top}')
            a(f'{done}:')

    def spin(self, srd, soff, target, vt):
        a = self.a
        top, done = a.label('spin'), a.label('done')
        with a.untracked():
            a(f's_mov_b32 s{sSpin}, {SPIN}')
            a(f'{top}:')
            a(f'buffer_load_dword v{vt}, off, {sr(srd, 4)}, {soff} sc1')
            a('s_waitcnt vmcnt(0)')
            a(f'v_readfirstlane_b32 s{sT7}, v{vt}')
            a(f's_sub_u32 s{sSpin}, s{sSpin}, 1')
            a(f's_cbranch_scc1 {done}')
            a(f's_cmp_lt_u32 s{sT7}, {target}')
            a(f's_cbranch_scc1 {top}')
            a(f'{done}:')

    def check(self, srd, soff, target, vt, sreg=None):
        a = self.a
        slow, back = a.label('slow'), a.label('back')
        a(f'v_readfirstlane_b32 s{sT7}, v{vt}' if sreg is None else f's_mov_b32 s{sT7}, s{sreg}')
        a(f's_cmp_lt_u32 s{sT7}, {target}')
        a(f's_cbranch_scc1 {slow}')
        a(f'{back}:')

        def cold():
            a(f'{slow}:')
            self.spin(srd, soff, target, vt)
            a(f's_branch {back}')
        self.cold.append(cold)

    def get_pol(self, vt):
        a = self.a
        self.check(S_DBG, '0 offset:128', 1, vt, sU0)
        a(f's_and_b32 s0, s{sT7}, 2')
        a('s_lshl_b32 s0, s0, 20')
        a(f's_add_u32 s{S_WS}, s{S_WS}, s0')
        a(f's_addc_u32 s{S_WS + 1}, s{S_WS + 1}, 0')

    def wave0(self):
        g = self

        class W:
            def __enter__(s):
                s.l = g.a.label('nw0')
                g.a(f's_cmp_lg_u32 s{S_W}, 0')
                g.a(f's_cbranch_scc1 {s.l}')
                s.u = g.a.untracked()
                s.u.__enter__()
                g.a('s_mov_b64 exec, 1')

            def __exit__(s, *x):
                g.a('s_mov_b64 exec, -1')
                s.u.__exit__()
                g.a(f'{s.l}:')
        return W()

    def warm(self, sets):
        if not self.opt['pads']:
            return
        a = self.a
        for w, ks in enumerate(sets):
            if not ks:
                continue
            l = a.label('nw')
            a(f's_cmp_lg_u32 s{S_W}, {w + 1}')
            a(f's_cbranch_scc1 {l}')
            for k in ks:
                a(f's_call_b64 {sr(sRet, 2)}, .Lpad_{k}')
            a(f'{l}:')

    def arrive_start(self, items, pre=None):
        a = self.a
        l = a.label('noarr')
        for r, _ in items:
            a(f's_mov_b32 s{r}, 1')
        a(f's_cmp_lg_u32 s{S_W}, 0')
        a(f's_cbranch_scc1 {l}')
        with a.untracked():
            if pre:
                pre()
            for r, line in items:
                a(f's_atomic_add s{r}, {sr(S_WS, 2)}, s{sXo} offset:{line * 256} glc')
        a(f'{l}:')

    def arrive_finish(self, items, vt):
        a = self.a
        a('s_waitcnt lgkmcnt(0)')
        for r, last, rep in items:
            l = a.label('notlast')
            a(f's_cmp_lg_u32 s{r}, {last}')
            a(f's_cbranch_scc1 {l}')
            with a.untracked():
                a('s_mov_b32 exec_lo, 15')
                a('s_mov_b32 exec_hi, 15')
                a(f'v_lshlrev_b32 v{vt}, 8, v0')
                a(f's_mov_b32 s{sT7}, {rep * 256}')
                a(f'buffer_atomic_add v{self.vOne}, v{vt}, {WS}, s{sT7} offen sc1')
                a('s_mov_b64 exec, -1')
            a(f'{l}:')

    def prologue(self):
        a = self.a
        a('s_cmp_ge_u32 s2, 0x100')
        a('s_cbranch_scc1 .Lend')
        self.stamp(0)
        for srd, off in ((S_K, 8), (S_WS, 96), (S_V, 16), (S_SH, 24), (S_SK, 32), (S_X, 0), (S_WG, 56), (S_WU, 64),
                         (S_WD, 72), (S_OUT, 80), (S_DBG, 88), (S_D, 40)):
            a(f's_load_dwordx2 {sr(srd, 2)}, s[0:1], {off}')
        a('v_lshrrev_b32 v1, 6, v0')
        a(f's_and_b32 s{sX}, s2, 7')
        a(f's_lshr_b32 s{sJ}, s2, 3')
        a(f'v_readfirstlane_b32 s{S_W}, v1')
        a('v_mov_b32 v1, v0')
        a('v_and_b32 v0, 63, v0')
        for srd, n in ((S_K, 2621440), (S_V, 2621440), (S_SH, 5120), (S_SK, 4096), (S_X, 2621440), (S_WG, 1966080),
                       (S_WU, 1966080), (S_WD, 1966080), (S_OUT, 2621440), (S_DBG, 256), (S_WS, WS_END)):
            a(f's_mov_b32 s{srd + 2}, {n}')
            a(f's_mov_b32 s{srd + 3}, 0x20000')
        a(f's_and_b32 s{sM}, s{sJ}, 15')
        a(f's_mov_b32 s{sG}, s{sX}')
        a(f's_cmp_lt_u32 s{sJ}, 16')
        a.snapshot('role')
        a('s_cbranch_scc1 .Lconv')
        a(f's_lshr_b32 s{sG}, s{sX}, 2')
        a(f's_add_u32 s{sG}, s{sG}, 8')
        a(f's_and_b32 s{sT0}, s{sX}, 3')
        a(f's_lshl2_add_u32 s{sM}, s{sT0}, s{sM}')
        a(f's_cmp_lt_u32 s{sJ}, 20')
        a('s_cbranch_scc1 .Lconv')
        with a.untracked():
            a(f's_cmp_lg_u32 s2, {self.opt.get("initwg", 208)}')
            a('s_cbranch_scc1 .Lnoinit')
            a('v_lshrrev_b32 v2, 3, v1')
            a('v_and_b32 v3, 7, v0')
            a('v_lshlrev_b32 v3, 4, v3')
            a('v_lshl_add_u32 v2, v2, 8, v3')
            for i in range(4):
                a(f'v_mov_b32 v{4 + i}, 0')
            a('s_waitcnt lgkmcnt(0)')
            a.fresh()
            a(f'buffer_store_dwordx4 v[4:7], v2, {WS}, 0 offen sc1')
            for off in (0x2000, 2 * MB, 2 * MB + 0x2000):
                a(f's_mov_b32 s{sT0}, {off}')
                a(f'buffer_store_dwordx4 v[4:7], v2, {WS}, s{sT0} offen sc1')
            a('v_mov_b32 v3, 1')
            a('s_waitcnt vmcnt(0)')
            a('s_barrier')
            a(f's_cmp_lg_u32 s{S_W}, 0')
            a('s_cbranch_scc1 .Lside')
            a('s_mov_b64 exec, 1')
            a(f'buffer_store_dword v3, off, {sr(S_DBG, 4)}, 0 sc1')
            a('s_mov_b64 exec, -1')
            a('s_branch .Lside')
            a('.Lnoinit:')
            a(f's_cmp_lg_u32 s2, {self.opt.get("polwg", 216)}')
            a('s_cbranch_scc1 .Lnopol')
            a(f's_and_b32 s{sT1}, s{S_W}, 1')
            a(f's_lshl_b32 s{sT0}, s{sT1}, 13')
            a(f's_lshl_b32 s{sT2}, s{S_W}, 8')
            a(f's_add_u32 s{sT0}, s{sT0}, s{sT2}')
            a(f's_add_u32 s{sT0}, s{sT0}, {PROBE}')
            if 'fpol' in self.opt:
                a(f's_mov_b32 s{sT1}, {self.opt["fpol"]}')
            a(f's_add_u32 s{sT1}, s{sT1}, 1')
            a(f'v_mov_b32 v4, s{sT1}')
            a('v_mov_b32 v5, 0')
            a('v_lshlrev_b32 v2, 2, v0')
            a('s_waitcnt lgkmcnt(0)')
            wu = self.opt.get('pwarm', 1)
            if wu == 1:
                a(f'buffer_store_dword v5, v2, {WS}, s{sT0} offen sc1')
                a('s_waitcnt vmcnt(0)')
            a('s_mov_b64 exec, 1')
            for i in range(0 if wu == 2 else 1, 1 + self.opt.get('hops', 1)):
                if i == 1:
                    a('s_barrier')
                a(f's_mov_b32 s{sT3}, 0')
                a(f's_atomic_add s{sT3}, {sr(S_WS, 2)}, s{sT0} glc')
                a('s_waitcnt lgkmcnt(0)')
            a(f'buffer_atomic_cmpswap v[4:5], off, {sr(S_DBG, 4)}, 0 offset:128 sc1')
            a('s_mov_b64 exec, -1')
            a('s_branch .Lside')
            a('.Lnopol:')
            if self.opt.get('cpf', 1):
                a(f's_getpc_b64 {sr(sT0, 2)}')
                a('.Lpc:')
                a(f's_and_b32 s{sT2}, s{sJ}, 3')
                a(f's_lshl2_add_u32 s{sT2}, s{sT2}, s{S_W}')
                a(f's_mul_i32 s{sT2}, s{sT2}, {18 * 128}')
                a('v_min_u32 v2, 17, v0')
                a(f'v_lshl_add_u32 v2, v2, 7, s{sT2}')
                a('v_min_u32 v2, .Lcode_end-.Lpc-4, v2')
                a('v_mov_b32 v3, 0')
                a(f'v_lshl_add_u64 v[4:5], v[2:3], 0, {sr(sT0, 2)}')
                a('global_load_dword a253, v[4:5], off')
            a('s_branch .Lside')
        a('.Lconv:')
        a.fresh('role')

    def gemm_ids(self):
        a = self.a
        a.need(sr(S_WS, 2))
        a(f's_lshr_b32 s{sT0}, s{sX}, 2')
        a(f's_lshl_b32 s{sT0}, s{sT0}, 5')
        a(f's_and_b32 s{sXo}, s{sX}, 3')
        a(f's_add_u32 s{sXo}, s{sXo}, s{sT0}')
        a(f's_lshl_b32 s{sXo}, s{sXo}, 8')
        a(f's_lshr_b32 s{sRB}, s{sX}, 2')
        a(f's_lshr_b32 s{sT0}, s{sJ}, 2')
        a(f's_lshl3_add_u32 s{sRB}, s{sRB}, s{sT0}')
        a(f's_and_b32 s{sRot}, s{sX}, 3')
        a(f's_and_b32 s{sT0}, s{sJ}, 3')
        a(f's_lshl2_add_u32 s{sCB}, s{sRot}, s{sT0}')
        a(f's_and_b32 s{sT0}, s{sCB}, 1')
        a(f's_mul_i32 s{sA}, s{sCB}, 6')
        a(f's_add_u32 s{sB}, s{sA}, 4')
        a(f's_lshl1_add_u32 s{sA}, s{sT0}, s{sA}')
        a(f's_lshl_b32 s{sT1}, s{sT0}, 2')
        a(f's_sub_u32 s{sB}, s{sB}, s{sT1}')

    vWL, vWLb, vW45, vTmp, vTmp2, vOne, vPS = 254, 253, 252, 250, 249, 248, 251
    WRAW = [8, 40, 72, 104, 136]
    vWW = [232, 233, 234, 243]
    PT = 200

    def real_line(self, r, tmp):
        a = self.a
        if not self.opt.get('swz', 1):
            return
        a(f's_sub_u32 s{tmp}, s{r}, 3')
        a(f's_cmp_lt_u32 s{tmp}, 2')
        a(f's_cselect_b32 s{tmp}, 7, 0')
        a(f's_xor_b32 s{r}, s{r}, s{tmp}')
        a(f's_sub_u32 s{tmp}, s{r}, 10')
        a(f's_cmp_lt_u32 s{tmp}, 2')
        a(f's_cselect_b32 s{tmp}, 1, 0')
        a(f's_xor_b32 s{r}, s{r}, s{tmp}')

    def w_addr(self):
        a = self.a
        t = self.vTmp
        a(f's_lshr_b32 s{sT1}, s{sA}, 2')
        self.real_line(sT1, sT0)
        a(f's_lshl_b32 s{sT1}, s{sT1}, 7')
        a(f'v_and_b32 v{t}, 7, v0')
        a(f'v_lshl_add_u32 v{self.vWLb}, v{t}, 4, s{sT1}')
        a(f's_lshr_b32 s{sT0}, s{S_W}, 1')
        a(f's_lshl_b32 s{sT0}, s{sT0}, 6')
        a(f's_mul_i32 s{sWoff}, s{sRot}, 160')
        a(f's_add_u32 s{sWoff}, s{sWoff}, s{sT0}')
        a(f's_mul_i32 s{sT0}, s{sCB}, {80 * 1024}')
        a(f's_add_u32 s{sT0}, s{sT0}, {W45F}')
        a(f'v_lshl_add_u32 v{self.vW45}, v0, 4, s{sT0}')
        a(f's_mul_i32 s{sWoff2}, s{sRot}, 10')
        a(f's_add_u32 s{sWoff2}, s{sWoff2}, s{S_W}')
        a(f's_lshl_b32 s{sWoff2}, s{sWoff2}, 10')
        a(f'v_mov_b32 v{self.vOne}, 1')
        a(f's_and_b32 s{sT0}, s{sRB}, 7')
        a(f's_lshr_b32 s{sT1}, s{S_W}, 1')
        a(f's_lshl1_add_u32 s{sT0}, s{sT0}, s{sT1}')
        a(f's_lshr_b32 s{sT1}, s{sRB}, 3')
        a(f's_lshl1_add_u32 s{sT0}, s{sT0}, s{sT1}')
        a(f's_and_b32 s{sT1}, s{S_W}, 1')
        a(f's_lshl1_add_u32 s{sT0}, s{sT0}, s{sT1}')
        a(f's_lshl_b32 s{sT0}, s{sT0}, 12')
        a(f'v_and_b32 v{t}, 31, v0')
        a(f'v_lshl_add_u32 v{self.vPS}, v{t}, 3, s{sT0}')
        a(f'v_lshrrev_b32 v{t}, 5, v0')
        a(f'v_lshl_add_u32 v{self.vPS}, v{t}, 11, v{self.vPS}')

    def w_select(self):
        a = self.a
        a(f's_bitcmp1_b32 s{S_W}, 0')
        a(f's_cselect_b32 s{S_WG}, s{S_WU}, s{S_WG}')
        a(f's_cselect_b32 s{S_WG + 1}, s{S_WU + 1}, s{S_WG + 1}')
        for i in range(1, 4):
            a(f's_movk_i32 s{sE[i]}, {6144 * i}')
        a(f's_movk_i32 s15, 3072')

    def clear_pst(self, v2):
        return [f'v_mov_b32 v{v2}, -1', f'v_mov_b32 v{v2 + 1}, -1',
                f's_lshl_b32 s{sU0}, s{sCB}, 8', f's_add_u32 s{sU0}, s{sU0}, {PST}',
                ['s_mov_b32 exec_hi, 0',
                 f'buffer_store_dwordx2 {vr(v2, 2)}, v{self.vPS}, {WS}, s{sU0} offen sc1',
                 's_mov_b32 exec_hi, -1']]

    def w_loads_main(self, park=False):
        out = []
        t, t2 = self.vTmp, self.vTmp2
        for b in range(5):
            for e in range(8):
                g = []
                if e == 0:
                    g = [f'v_and_b32 v{t}, 56, v0', f'v_add_u32 v{t}, s{sWoff}, v{t}', f'v_subrev_u32 v{t2}, 640, v{t}',
                         f'v_min_u32 v{t}, v{t}, v{t2}', f'v_mad_u32_u24 v{self.vWL}, v{t}, s15, v{self.vWLb}',
                         f's_add_u32 s{sWoff}, s{sWoff}, 128']
                so = f's{sE[e >> 1]}' if e >> 1 else '0'
                dst = vr(self.WRAW[b] + 4 * e, 4)
                if b == 4 and park:
                    dst = ar(208 + 4 * e, 4) if park == 1 else vr(self.WRAW[0] + 4 * e, 4)
                g.append(f'buffer_load_dwordx4 {dst}, v{self.vWL}, {sr(S_WG, 4)}, {so} offen offset:{3072 * (e & 1)}')
                out.append(g)
        return out

    def w_loads_tail(self):
        out = []
        for i in range(20):
            if i & 1:
                g = [f's_add_u32 s{sU1}, s{sWoff2}, {TILE}',
                     f'buffer_load_dwordx4 {ar(160 + 4 * i, 4)}, v{self.vW45}, {WS}, s{sU1} offen sc1']
            else:
                g = []
                if i:
                    g = [f's_add_u32 s{sWoff2}, s{sWoff2}, 4096',
                         [f's_sub_u32 s{sU1}, s{sWoff2}, {TILE}', f's_cselect_b32 s{sWoff2}, s{sWoff2}, s{sU1}']]
                g.append(f'buffer_load_dwordx4 {ar(160 + 4 * i, 4)}, v{self.vW45}, {WS}, s{sWoff2} offen sc1')
            out.append(g)
        return out

    def w_write_addr(self):
        a = self.a
        t, t2 = self.vTmp, self.vTmp2
        a(f's_lshr_b32 s{sT0}, s{S_W}, 1')
        a(f's_lshl_b32 s{sT0}, s{sT0}, 12')
        a(f's_and_b32 s{sT1}, s{S_W}, 1')
        a(f's_lshl_b32 s{sT1}, s{sT1}, 7')
        a(f's_add_u32 s{sT0}, s{sT0}, s{sT1}')
        a(f'v_lshrrev_b32 v{t}, 3, v0')
        a(f'v_lshl_add_u32 v{t}, v{t}, 9, s{sT0}')
        a(f'v_and_b32 v{t2}, 1, v0')
        a(f'v_lshl_add_u32 v{t}, v{t2}, 6, v{t}')
        a(f'v_bfe_u32 v{t2}, v0, 1, 2')
        a(f's_mov_b32 s{sT0}, {TILE + 16}')
        a(f'v_mad_u32_u24 v{self.vWW[0]}, v{t2}, s{sT0}, v{t}')
        for q in range(1, 4):
            a(f'v_xor_b32 v{self.vWW[q]}, {16 * q}, v{self.vWW[0]}')
        a(f's_mov_b32 s{sPL}, 0x05040100')
        a(f's_mov_b32 s{sPH}, 0x07060302')

    def w_writes_main(self, b4=None):
        out = []
        for b in range(5):
            for c8 in range(8):
                p = self.PT + 4 * (c8 & 3) if b < 5 - self.opt.get('defer', 2) else (228 if c8 & 1 else 242)
                r = (b4 if b == 4 and b4 else self.WRAW[b]) + (c8 >> 1)
                g = [f'v_perm_b32 v{p + d}, v{r + 8 * d + 4}, v{r + 8 * d}, s{sPH if c8 & 1 else sPL}' for d in range(4)]
                g.append(f'ds_write_b128 v{self.vWW[c8 & 3]}, {vr(p, 4)} offset:{b * 8192 + (c8 >> 2) * 256}')
                out.append(g)
        return out

    def conv(self):
        a = self.a
        o = self.opt
        vK, vKh, vC, vR, vSHa, vL16 = 1, 2, 3, 4, 5, 6
        SH = 8
        KR = 16
        VR = 38
        WF = 56
        KF = 72
        O = 120
        SK = 136
        KV = 168
        VF = 200
        vSW, vSR, vKS, vG, vBa, vAa, vZR, vZR2, vUL, vUW, vI7, vGZ, vXS, vHS, vFl, vPrev = range(232, 248)
        ZERO, AD = 224, 240
        vAa2 = vZR2
        kvmix = 0
        a(f's_lshl4_add_u32 s{sQ}, s{sG}, s{sM}')
        a(f'v_and_b32 v{vC}, 15, v0')
        a(f'v_lshrrev_b32 v{vR}, 4, v0')
        a(f's_lshl2_add_u32 s{sT0}, s{sM}, s{S_W}')
        a(f's_mul_i32 s{sT0}, s{sT0}, {32 * 1280}')
        a(f's_lshl_b32 s{sT1}, s{sG}, 7')
        a(f's_add_u32 s{sT0}, s{sT0}, s{sT1}')
        a(f's_movk_i32 s{sT2}, {8 * 1280}')
        a(f'v_lshl_add_u32 v{vK}, v{vC}, 3, s{sT0}')
        a(f'v_mad_u32_u24 v{vK}, v{vR}, s{sT2}, v{vK}')
        a(f'v_subrev_u32 v{vKh}, 3840, v{vK}')
        a(f's_lshl_b32 s{sT1}, s{sG}, 9')
        a(f'v_lshl_add_u32 v{vSHa}, v{vC}, 5, s{sT1}')
        a(f's_movk_i32 s{sT3}, 5120')
        a(f'v_lshlrev_b32 v{vL16}, 4, v0')

        def addr_phase_a():
            a(f'v_subrev_u32 v{vPrev}, 8, v{vL16}')
            a(f's_mul_i32 s{sT0}, s{S_W}, {TILE}')
            a(f's_add_u32 s{sT0}, s{sT0}, {UOFF}')
            a(f's_movk_i32 s{sT1}, 272')
            a(f'v_lshl_add_u32 v{vSW}, v{vR}, 4, s{sT0}')
            a(f'v_mad_u32_u24 v{vSW}, v{vC}, s{sT1}, v{vSW}')
            a(f'v_lshl_add_u32 v{vSR}, v{vC}, 4, s{sT0}')
            a(f'v_mad_u32_u24 v{vSR}, v{vR}, s{sT1}, v{vSR}')
            a(f'v_add_u32 v{vUW}, s{sT0}, v{vL16}')
            a(f's_add_u32 s{sT0}, s{sT0}, 32')
            a(f'v_lshl_add_u32 v{vBa}, v{vC}, 5, s{sT0}')
            a(f'v_lshl_add_u32 v{vBa}, v{vR}, 4, v{vBa}')
            a(f's_and_b32 s{sT0}, s{sG}, 3')
            a(f's_lshl_b32 s{sT0}, s{sT0}, 19')
            a(f's_cmp_lt_u32 s{sG}, 8')
            a(f's_cselect_b32 s{sT4}, s{sT0}, {KVXT - KVX}')
            a(f's_lshr_b32 s{sT0}, s{sX}, 2')
            a(f's_lshl_b32 s{sT0}, s{sT0}, 13')
            a(f's_add_u32 s{sT4}, s{sT4}, s{sT0}')
            a(f's_and_b32 s{sT0}, s{sM}, 8')
            a(f's_add_u32 s{sT0}, s{sT0}, s{sM}')
            a(f's_lshl2_add_u32 s{sT1}, s{sT0}, s{S_W}')
            a(f's_lshl_b32 s{sT1}, s{sT1}, 8')
            a(f's_add_u32 s{sT0}, s{sT4}, s{sT1}')
            a(f's_mov_b32 s{sT1}, {2 * QS}')
            if kvmix:
                a(f's_lshl2_add_u32 s{sT1}, s{sM}, s{S_W}')
                a(f's_lshl_b32 s{sT1}, s{sT1}, 8')
                a(f's_lshl_b32 s{sT0}, s{sG}, 18')
                a(f's_add_u32 s{sT0}, s{sT0}, s{sT1}')
                a(f's_mov_b32 s{sT1}, {QS}')
            a(f'v_lshl_add_u32 v{vKS}, v{vC}, 4, s{sT0}')
            a(f'v_mad_u32_u24 v{vKS}, v{vR}, s{sT1}, v{vKS}')

        def addr_rest():
            self.gemm_ids()
            self.w_addr()
            a(f's_mul_i32 s{sT5}, s{S_W}, {TILE}')
            a(f's_add_u32 s{sT5}, s{sT5}, {GOFF}')
            a(f'v_add_u32 v{vG}, s{sT5}, v{vL16}')
            a(f'v_bfe_u32 v{vAa}, v0, 2, 2')
            a(f'v_sub_u32 v{vAa}, v{vAa}, v{vR}')
            a(f'v_sub_u32 v{vAa}, v{vAa}, v{vR}')
            a(f's_add_u32 s{sT0}, s{sT5}, 56')
            a(f'v_lshl_add_u32 v{vAa}, v{vAa}, 3, s{sT0}')
            a(f'v_and_b32 v{vI7}, 3, v0')
            a(f's_movk_i32 s{sT1}, {GSTR}')
            a(f'v_mad_u32_u24 v{vAa}, v{vI7}, s{sT1}, v{vAa}')
            a(f'v_add_u32 v{vAa2}, 0x800, v{vAa}')
            a(f'v_and_b32 v{vGZ}, 16, v0')
            a(f'v_add_u32 v{vGZ}, s{sT5}, v{vGZ}')
            a(f'v_mad_u32_u24 v{vGZ}, v{vI7}, s{sT1}, v{vGZ}')
            a(f'v_and_b32 v{vI7}, 7, v0')
            a(f's_lshl_b32 s{sT6}, s{sM}, 15')
            a(f's_add_u32 s{sT6}, s{sT6}, s{sT4}')
            a(f's_lshl_b32 s{sT1}, s{S_W}, 6')
            a(f's_add_u32 s{sT0}, s{sT6}, s{sT1}')
            if kvmix:
                a(f's_lshl_b32 s{sT0}, s{sQ}, 14')
                a(f's_add_u32 s{sT0}, s{sT0}, s{sT1}')
            a(f'v_and_b32 v{vUL}, 3, v0')
            a(f'v_lshl_add_u32 v{vUL}, v{vUL}, 4, s{sT0}')
            a(f'v_lshrrev_b32 v{vXS}, 2, v0')
            a(f'v_lshl_add_u32 v{vUL}, v{vXS}, 8, v{vUL}')
            a(f's_lshl_b32 s{sT0}, s{S_W}, 12')
            a(f'v_add_u32 v{vXS}, s{sT0}, v{vL16}')
            a(f's_lshl_b32 s{sT1}, s{sQ}, 14')
            a(f's_add_u32 s{sT0}, s{sT0}, s{sT1}')
            a(f's_mov_b32 s{sT1}, {HP4}')
            a(f's_cmp_lt_u32 s{sQ}, 120')
            a(f's_cselect_b32 s{sT1}, s{sT1}, {HP4T - 120 * QS}')
            a(f's_add_u32 s{sT0}, s{sT0}, s{sT1}')
            a(f'v_add_u32 v{vHS}, s{sT0}, v{vL16}')
            a(f's_lshl_b32 s{sT0}, s{S_W}, 11')
            a(f's_add_u32 s{sT0}, s{sT0}, {ZOFF}')
            a(f'v_add_u32 v{vZR}, s{sT0}, v{vL16}')
            for i in range(4):
                a(f'v_mov_b32 v{ZERO + i}, 0')
        if o.get('addr_early', 0) >= 1:
            addr_phase_a()
        if o.get('addr_early', 0) >= 2:
            addr_rest()
        a.need(sr(S_WS, 2))
        self.stamp('karg')
        a(f'buffer_load_dwordx4 {vr(SH, 4)}, v{vSHa}, {sr(S_SH, 4)}, 0 offen')
        a(f'buffer_load_dwordx4 {vr(SH + 4, 4)}, v{vSHa}, {sr(S_SH, 4)}, 0 offen offset:16')
        for r in range(3):
            a(f'buffer_load_dwordx2 {vr(KR + 2 * r, 2)}, v{vKh}, {sr(S_K, 4)}, 0 offen offset:{r * 1280}{self.nt(6)}')
        for r in range(8):
            so = f's{sT3}' if r >= 4 else '0'
            a(f'buffer_load_dwordx2 {vr(KR + 6 + 2 * r, 2)}, v{vK}, {sr(S_K, 4)}, {so} offen offset:{(r & 3) * 1280}{self.nt(0 if r < 5 else 6)}')
            a(f'buffer_load_dwordx2 {vr(VR + 2 * r, 2)}, v{vK}, {sr(S_V, 4)}, {so} offen offset:{(r & 3) * 1280}{self.nt(1)}')
        self.stamp('issued')
        if o.get('tlb'):
            a(f'v_lshlrev_b32 v228, {o["tlb"]}, v0')
            a(f'buffer_load_dword v229, v228, {WS}, 0 offen sc1')
            a(f'buffer_load_dword v228, v228, {sr(S_OUT, 4)}, 0 offen sc1')
        if o.get('addr_early', 0) < 1:
            addr_phase_a()
        if o.get('addr_early', 0) < 2:
            addr_rest()
        a(f's_lshl2_add_u32 s{sT0}, s{sQ}, s{S_W}')
        a(f's_lshl_b32 s{sT1}, s{sT0}, 12')
        a(f's_add_u32 s{S_SK}, s{S_SK}, s{sT1}')
        a(f's_addc_u32 s{S_SK + 1}, s{S_SK + 1}, 0')
        a(f's_lshl_b32 s{sT0}, s{sT0}, 1')
        a(f's_and_b32 s{sT0}, s{sT0}, -4')
        a(f's_load_dword s{sDv}, {sr(S_D, 2)}, s{sT0}')
        ssm = []
        for j in range(4):
            ssm.append(f'buffer_load_dwordx4 {vr(SK + 8 * j + 4, 4)}, v{vL16}, {sr(S_SK, 4)}, 0 offen offset:{1024 * j}{self.nt(2)}')
            if j == 0:
                ssm.append(f'buffer_load_dwordx2 {vr(SK + 2, 2)}, v{vPrev}, {sr(S_SK, 4)}, 0 offen')
            else:
                ssm.append(f'buffer_load_dwordx2 {vr(SK + 8 * j + 2, 2)}, v{vL16}, {sr(S_SK, 4)}, 0 offen offset:{1024 * j - 8}')
        if o.get('ssm', 1) == 0:
            a(ssm)
        self.w_select()
        self.warm([[[0], [], []], [[0], [1], []], [[0], [1], [2]]][o.get('warm0', 0)])
        park = o.get('park', 2)
        assert park < 2 or o['w_kv'] + o['w_e1'] + o['w_u'] >= 8
        wl = self.w_loads_main(park)

        def w_some(n):
            for _ in range(n):
                a(wl.pop(0))
        a(f's_mov_b32 s{sT2}, 0xffff0000')
        for ch in range(4):
            for j in range(4):
                src = SH + 2 * ch + (j >> 1)
                if j & 1:
                    a(f'v_and_b32 v{WF + 4 * j + ch}, s{sT2}, v{src}')
                else:
                    a(f'v_lshlrev_b32 v{WF + 4 * j + ch}, 16, v{src}')

        def unpack(dst, src):
            a(f'v_lshlrev_b32 v{dst}, 16, v{src}')
            a(f'v_and_b32 v{dst + 1}, s{sT2}, v{src}')
            a(f'v_lshlrev_b32 v{dst + 2}, 16, v{src + 1}')
            a(f'v_and_b32 v{dst + 3}, s{sT2}, v{src + 1}')
        for r in range(3):
            unpack(KF + 4 * r, KR + 2 * r)
        self.stamp(1)
        for r in range(8):
            unpack(KF + 4 * (r + 3), KR + 2 * (r + 3))
            vf = VF + 4 * (r & 1)
            for j in (3, 2, 1, 0):
                for p in range(2):
                    d = vr(KV + 4 * r + 2 * p, 2)
                    k = vr(KF + 4 * (r + 3 - j) + 2 * p, 2)
                    w = vr(WF + 4 * j + 2 * p, 2)
                    if j == 3:
                        a(f'v_pk_mul_f32 {d}, {k}, {w}')
                    else:
                        a(f'v_pk_fma_f32 {d}, {k}, {w}, {d}')
                if j == 3:
                    unpack(vf, VR + 2 * r)
            for p in range(2):
                d = vr(KV + 4 * r + 2 * p, 2)
                a(f'v_pk_mul_f32 {d}, {d}, {vr(vf + 2 * p, 2)}')
            if r == o.get('pol_r', 4):
                a(f's_load_dword s{sU0}, {sr(S_DBG, 2)}, 0x80')
            if o.get('ssm', 1) == 1 and r >= o.get('ssm_r', 7):
                for _ in range((len(ssm) + 7 - r) // (8 - r)):
                    a(ssm.pop(0))
            if r & 1:
                d = (7 - r) >> 1
                for ch in range(4):
                    a(f'v_cvt_pk_bf16_f32 v{O + 4 * ch + d}, v{KV + 4 * r + ch}, v{KV + 4 * (r - 1) + ch}')
        self.stamp('kvdone')
        if o.get('pol_r', 4) == 8:
            a(f's_load_dword s{sU0}, {sr(S_DBG, 2)}, 0x80')
        for ch in range(4):
            a(f'ds_write_b128 v{vSW}, {vr(O + 4 * ch, 4)} offset:{ch * 64}')
        for j in range(4):
            a(f'ds_read_b128 {vr(KV + 4 * j, 4)}, v{vSR} offset:{j * 1088}')
        assert not kvmix
        self.get_pol(vFl)
        a(f'buffer_load_dword v{vFl}, off, {sr(S_DBG, 4)}, 0 sc1')
        a(f's_mov_b32 s{sT0}, {KVM if kvmix else KVX}')
        for j in range(4):
            a(f'buffer_store_dwordx4 {vr(KV + 4 * j, 4)}, v{vKS}, {WS}, s{sT0} offen sc1')
            if j < 3:
                a(f's_add_u32 s{sT0}, s{sT0}, {4 * QS if kvmix else 8 * QS}')
        self.stamp(2)
        if kvmix and o.get('pol_l', 0) == 0:
            a(f'buffer_load_dword v{vFl}, off, {sr(S_DBG, 4)}, 0 sc1')
        if o.get('ssm', 1) == 2:
            a(ssm)
        a(f'ds_write_b128 v{vUW}, {vr(ZERO, 4)}')
        a(f'ds_write_b128 v{vGZ}, {vr(ZERO, 4)}')

        def table(j):
            D = SK + 8 * j
            Ea, Eb, Db = 184 + 12 * (j & 1), 184 + 12 * (j & 1) + 4, 184 + 12 * (j & 1) + 8

            def wr(rho, reg):
                a(f'ds_write_b128 v{vG}, {vr(reg, 4)} offset:{rho * GSTR + 1024 * j + 32}')
            wr(3, D + 4)
            for i in range(2):
                a(f'v_pk_mov_b32 {vr(Db + 2 * i, 2)}, {vr(D + 2 + 2 * i, 2)}, {vr(D + 4 + 2 * i, 2)} op_sel:[1,0]')
            for i in range(4):
                a(f'v_alignbit_b32 v{Ea + i}, v{D + 3 + i}, v{D + 2 + i}, 16')
            wr(1, Db)
            wr(0, Ea)
            for i in range(4):
                a(f'v_alignbit_b32 v{Eb + i}, v{D + 4 + i}, v{D + 3 + i}, 16')
            wr(2, Eb)
        w_some(o['w_kv'])
        n1, n2 = o['tb_pre'], o['tb_pre'] + o['tb_mid']
        for j in range(n1):
            table(j)
            if kvmix and o.get('pol_l', 0) == j + 1:
                a(f'buffer_load_dword v{vFl}, off, {sr(S_DBG, 4)}, 0 sc1')
        a.need(f's{sDv}')
        a(f's_and_b32 s{sT1}, s{S_W}, 1')
        a(f's_lshl_b32 s{sT1}, s{sT1}, 4')
        a(f's_lshr_b32 s{sDv}, s{sDv}, s{sT1}')
        a(f's_and_b32 s{sDv}, s{sDv}, 0xffff')
        a(f'v_sub_u32 v5, 7, v{vI7}')
        a(f'v_and_b32 v7, 1, v5')
        a(f'v_lshlrev_b32 v7, 4, v7')
        a(f'v_lshlrev_b32 v7, v7, s{sDv}')
        a(f'v_bfe_u32 v1, v0, 3, 1')
        a(f'v_add_u32 v1, 2, v1')
        a(f'v_cmp_eq_u32 vcc, v1, v{vR}')
        a(f'v_cndmask_b32 v7, 0, v7, vcc')
        a(f'v_lshrrev_b32 v5, 1, v5')
        for d in range(4):
            a(f'v_cmp_eq_u32 vcc, {d}, v5')
            a(f'v_cndmask_b32 v1, 0, v7, vcc')
            a(f'v_accvgpr_write_b32 a{AD + d}, v1')
        self.stamp('tbpre')
        a.drain_stores()
        if kvmix:
            self.get_pol(vFl)
        self.stamp('drained')
        a('s_barrier')
        self.stamp(3)
        a(f's_and_b32 s{sT0}, s{sXo}, 0x2000')
        a(f's_add_u32 s{sT0}, s{sT0}, {C_F1B * 256}')
        a(f's_cmp_lt_u32 s{sG}, 8')
        a(f's_cselect_b32 s{sT0}, s{sXo}, s{sT0}')
        with self.wave0():
            self.check(S_DBG, '0', 1, vFl)
            if o.get('apoll') == 9:
                a(f's_mov_b32 s{sU2}, 1')
                a(f's_atomic_add s{sU2}, {sr(S_WS, 2)}, s{sT0} glc')
            else:
                a(f'buffer_atomic_add v{self.vOne}, off, {WS}, s{sT0} sc1')
        w_some(o['w_e1'])
        for j in range(n1, n2):
            table(j)
        ACC = 128
        BUF = (0, 64)
        XR, SR, XF = 136, 152, 168

        def rdA(it, t):
            o0 = 8 * it + 64 * (t & 3)
            return f'ds_read2_b64 {ar(BUF[it & 1] + 4 * t, 4)}, v{vAa2 if t & 4 else vAa} offset0:{o0} offset1:{o0 + 1}'

        def rdB(it, t):
            return f'ds_read_b128 {ar(BUF[it & 1] + 32 + 4 * t, 4)}, v{vBa} offset:{448 - 64 * it + 512 * t}'
        if n2 == 4:
            for t in range(8):
                a(rdA(0, t))
        self.stamp('tbpost')
        self.warm([[[1, 4], [2, 5], [3]], [[2, 5], [3], [4]], [[3], [4], [5]]][o.get('warm0', 0)])
        with self.wave0():
            if o.get('apoll') == 9:
                top, done = a.label('spin'), a.label('done')
                a(f's_mov_b32 s{sSpin}, {SPIN}')
                a('s_waitcnt lgkmcnt(0)')
                a(f's_cmp_ge_u32 s{sU2}, 15')
                a(f's_cbranch_scc1 {done}')
                a(f'{top}:')
                a(f's_mov_b32 s{sU2}, 0')
                a(f's_atomic_add s{sU2}, {sr(S_WS, 2)}, s{sT0} glc')
                a(f's_sub_u32 s{sSpin}, s{sSpin}, 1')
                a(f's_cbranch_scc1 {done}')
                a('s_waitcnt lgkmcnt(0)')
                a(f's_cmp_lt_u32 s{sU2}, 16')
                a(f's_cbranch_scc1 {top}')
                a(f'{done}:')
                a('s_waitcnt lgkmcnt(0)')
            elif o.get('apoll'):
                self.spin_atomic(f's{sT0}', 16, o['apoll'], 1)
            else:
                self.spin(S_WS, f's{sT0}', 0 if o.get('noe1') else 16, vFl)
        a('s_barrier')
        self.stamp(4)
        a(f's_sub_u32 s{sT0}, {KVM}, s0' if kvmix else f's_mov_b32 s{sT0}, {KVX}')
        for j in range(4):
            a(f'buffer_load_dwordx4 {ar(BUF[1] + 4 * j, 4)}, v{vUL}, {WS}, s{sT0} offen sc1')
            if j < 3:
                a(f's_add_u32 s{sT0}, s{sT0}, {12288 if j == 1 and not kvmix else 4096}')
        w_some(o['w_u'])
        self.w_write_addr()
        a(f'v_add_u32 v{vPrev}, {2 * TILE}, v{vZR}')
        self.conv_ww = self.w_writes_main(self.WRAW[0] if park == 2 else None)
        if park == 2:
            for _ in range(8):
                a(self.conv_ww.pop(0))
        for j in range(n2, 4):
            table(j)
        if n2 < 4:
            for t in range(8):
                a(rdA(0, t))
        a(f's_add_u32 s{sT3}, s{sXo}, {C_FXR * 256}')
        a(f's_mov_b32 s{sT4}, {XP4}')
        a(f's_cmp_lt_u32 s{sG}, 8')
        a(f's_cselect_b32 s{sT4}, s{sT4}, {XP4T - (KVXT - KVX)}')
        a(f's_add_u32 s{sT6}, s{sT6}, s{sT4}')
        a(f's_lshr_b32 s{sT4}, s{S_W}, 1')
        a(f's_lshl_b32 s{sT4}, s{sT4}, 13')
        a(f's_add_u32 s{sT6}, s{sT6}, s{sT4}')
        a(f's_mov_b32 s{sT4}, {ST1}')
        for j in range(4):
            a(f'ds_write_b128 v{vUW}, {ar(BUF[1] + 4 * j, 4)} offset:{512 + 1024 * j}')
            if j == 0:
                self.stamp('uload')
            a(rdB(0, 2 * j))
            a(rdB(0, 2 * j + 1))
        self.stamp(5)
        fx = o['fx_it']
        xl = []
        for T in range(2):
            for p in range(2):
                off = 2048 * T + 1024 * p
                xl.append([f'buffer_load_dwordx4 {vr(XR + 8 * T + 4 * p, 4)}, v{vXS}, {WS}, s{sT6} offen offset:{off} sc1'])
                xl.append([f'buffer_load_dwordx4 {vr(SR + 8 * T + 4 * p, 4)}, v{vXS}, {WS}, s{sT4} offen offset:{off} sc1'])
        if o.get('nowl'):
            wl = [g[:-1] + [[]] for g in wl]
        wt = self.w_loads_tail()
        if park == 2:
            nl = o.get('w45_loop', 12)
            early, late = wl, xl + wt[:nl]
            self.win_pre = []
            self.win_loads = wt[nl:]
        elif park:
            early, late = wl, xl + wt[:12]
            self.win_pre = [f'v_accvgpr_read_b32 v{self.WRAW[4] + i}, a{208 + i}' for i in range(32)]
            self.win_loads = wt[12:]
        else:
            early, late = wl[:-8], xl + wt
            self.win_pre = wl[-8][:-1]
            self.win_loads = [wl[-8][-1]] + wl[-7:]
        tot = len(early) + len(late)
        per = [(tot * (i + 1)) // 8 - (tot * i) // 8 for i in range(8)]
        plan = []
        for it in range(8):
            n = per[it]
            if it <= fx + 1:
                n = min(max(n, o.get('early_n', 0)), len(early))
                plan.append([early.pop(0) for _ in range(n)])
            else:
                rest = late[:8] + early + late[8:] if it == fx + 2 else rest
                early = late = []
                n = (len(rest) + 7 - it) // (8 - it)
                plan.append([rest.pop(0) for _ in range(n)])
        for it in range(8):
            A, B = BUF[it & 1], BUF[it & 1] + 32
            mf = []
            endT = []
            for T in range(8):
                c = ar(ACC + 4 * T, 4)
                if it == 0:
                    mf.append(f'v_mfma_f32_16x16x32_bf16 {c}, {ar(AD, 4)}, {ar(B + 4 * T, 4)}, 0')
                for t in range(T + 1):
                    mf.append(f'v_mfma_f32_16x16x32_bf16 {c}, {ar(A + 4 * t, 4)}, {ar(B + 4 * (T - t), 4)}, {c}')
                endT.append(len(mf) - 1)
            fill = [[] for _ in mf]
            base = 8 if it == 0 else 0
            if it < 7:
                rd = [x for t in range(8) for x in (rdA(it + 1, t), rdB(it + 1, t))]
                for i, x in enumerate(rd):
                    fill[base + 2 * i].append(x)
            zw = [f'ds_write_b128 v{vG}, {ar(ACC + 4 * T, 4)} offset:{ZOFF - GOFF + 1024 * T}' for T in range(8)]
            if it == 7:
                for T in range(o.get('z_in', 7)):
                    fill[max(endT[T] + 5, 6 + 4 * T)].append(zw.pop(0))
            n = len(plan[it])
            pos = base
            for i, g in enumerate(plan[it]):
                p = max(base + ((i + 1) * 35) // n, pos)
                k = len(g) - 1
                for z, x in enumerate(g[:-1]):
                    fill[max(pos, p - (k - z + 1) // 2)].append(x)
                fill[p].append(g[-1])
                pos = p
            if it == 0:
                for i, x in enumerate(self.clear_pst(228)):
                    fill[i].append(x)
            spx = o['sp'] >> 3 & 1
            if it == fx and not spx:
                fill[-1].append(f'buffer_load_dword v{vFl}, off, {WS}, s{sT3} sc1')
            if it == fx + 1 and spx:
                fill[o.get('fx_p', 0)].append(f's_load_dword s{sDv}, {sr(S_WS, 2)}, s{sT3}')
            if it == fx + 1:
                fill[-1].append(lambda: self.check(S_WS, f's{sT3}', 0 if o.get('nofx') else 8, vFl, sDv if spx else None))
            if it == 7:
                fill[0].append(f's_add_u32 s{sFW}, s{sT3}, {(C_FWR - C_FXR) * 256}')

            if it == 0:
                unp = []
                for T in range(2):
                    for row in range(4):
                        src = XR + 8 * T + 2 * row
                        xf = XF + 16 * T + 4 * row
                        st = SR + 8 * T + 2 * row
                        unp += [f'v_lshlrev_b32 v{xf}, 16, v{src}', f'v_and_b32 v{xf + 1}, s{sT2}, v{src}',
                                f'v_lshlrev_b32 v{xf + 2}, 16, v{src + 1}', f'v_and_b32 v{xf + 3}, s{sT2}, v{src + 1}']
                        unp += [f'v_fma_f32 v{xf + 32 + c}, v{xf + c}, v{st}, v{st + 1}' for c in range(4)]
            u0 = o.get('unp_at', 36 * 6 + 14)
            for i, x in enumerate(unp):
                p = u0 + (i * (36 * 8 - u0)) // 64
                if p // 36 == it:
                    fill[p % 36].append(x)
            self.stamp(f'it{it}')
            if it > 0:
                a.need(ar(A, 24 if it < 7 else 32), ar(B, 24))
            for m, f in zip(mf, fill):
                a(m)
                a(f)
        self.stamp(6)
        a(zw)
        a('s_waitcnt lgkmcnt(0)')
        a('s_barrier')
        self.stamp('zbar')
        Z = XR
        for T in range(2):
            for ch in range(4):
                a(f'ds_read_b128 {vr(Z + 16 * T + 4 * ch, 4)}, v{vPrev if ch & 2 else vZR} offset:{(ch & 1) * TILE + 1024 * T}')
        for T in range(2):
            for p in range(2):
                ho = XF + 32 + 16 * T + 8 * p
                for b in range(2):
                    row = 2 * p + b
                    for c in range(4):
                        x = XF + 16 * T + 4 * row + c
                        a(f'v_fmac_f32 v{x}, v{x + 32}, v{Z + 16 * T + 4 * c + row}')
                    for c2 in range(2):
                        x = XF + 16 * T + 4 * row + 2 * c2
                        a(f'v_cvt_pk_bf16_f32 v{ho + 2 * b + c2}, v{x}, v{x + 1}')
                a(f'buffer_store_dwordx4 {vr(ho, 4)}, v{vHS}, {WS}, 0 offen offset:{2048 * T + 1024 * p} sc1')
        self.stamp(7)

    def side(self):
        a = self.a
        head = self.opt.get('head', 0)
        if head:
            a('.Lhead_a0:')
        a('.Lside:')
        a.fresh('role')
        self.stamp('sx_in')
        vTid = 1
        a(f's_sub_u32 s{sG}, s{sJ}, 20')
        a(f's_lshl3_add_u32 s{sG}, s{sG}, s{sX}')
        J2, vJ2, sG2, sJo, sJs = 136, 230, sQ, sDv, sM
        vFl = 231
        sLn = sU2
        up = self.opt.get('up', 1)

        def job2_loads():
            a(f's_add_u32 s{sG2}, s{sG}, {48 if self.opt.get("pair", 1) else 0}')
            a(f's_sub_u32 s{sT0}, s{sG2}, 96')
            a(f's_cselect_b32 s{sG2}, s{sG2}, s{sT0}')
            a(f's_sub_u32 s{sLn}, s{sG2}, 48')
            if self.opt.get('s2loc', 1):
                a(f's_lshr_b32 s{sLn}, s{sLn}, 3')
                a(f's_mul_i32 s{sT1}, s{sX}, 6')
                a(f's_add_u32 s{sLn}, s{sLn}, s{sT1}')
            a(f's_cmp_ge_u32 s{sLn}, 24')
            a(f's_cselect_b32 s{sT2}, s{S_WU}, s{S_WG}')
            a(f's_cselect_b32 s{sT3}, s{S_WU + 1}, s{S_WG + 1}')
            a(f's_cselect_b32 s{sT1}, 24, 0')
            a(f's_sub_u32 s{sT1}, s{sLn}, s{sT1}')
            a(f's_lshr_b32 s{sT0}, s{sG2}, 1')
            a(f's_cmp_ge_u32 s{sG2}, 48')
            a(f's_cselect_b32 s{S_WD}, s{sT2}, s{S_WD}')
            a(f's_cselect_b32 s{S_WD + 1}, s{sT3}, s{S_WD + 1}')
            a(f's_cselect_b32 s{sT0}, s{sT1}, s{sT0}')
            self.real_line(sT0, sT2)
            a(f's_and_b32 s{sT2}, s{sG2}, 1')
            a(f's_lshl1_add_u32 s{sT2}, s{sT0}, s{sT2}')
            a(f's_mul_i32 s{sT2}, s{sT2}, {32 * 1280}')
            a(f's_lshl_b32 s{sT0}, s{sT0}, 7')
            a(f's_movk_i32 s{sT1}, 1280')
            a(f's_movk_i32 s{sJs}, 128')
            a(f's_cmp_ge_u32 s{sG2}, 48')
            a(f's_cselect_b32 s{sJo}, s{sT0}, s{sT2}')
            a(f's_cselect_b32 s{sT1}, 3072, s{sT1}')
            a(f's_cselect_b32 s{sJs}, {32 * 3072}, s{sJs}')
            a(f'v_and_b32 v{vJ2}, 7, v0')
            a(f'v_lshlrev_b32 v{vJ2}, 4, v{vJ2}')
            a(f'v_lshrrev_b32 v15, 3, v{vTid}')
            a(f'v_mad_u32_u24 v{vJ2}, v15, s{sT1}, v{vJ2}')
            l2 = a.label('j2')
            if self.nt(4):
                l = a.label('j2')
                a(f's_cbranch_scc1 {l}')
                with a.untracked():
                    for j in range(10):
                        a(f'buffer_load_dwordx4 {vr(J2 + 4 * j, 4)}, v{vJ2}, {sr(S_WD, 4)}, s{sJo} offen offset:{128 * j}{self.nt(4)}')
                    a(f's_branch {l2}')
                a(f'{l}:')
            for j in range(10):
                a(f'buffer_load_dwordx4 {vr(J2 + 4 * j, 4)}, v{vJ2}, {sr(S_WD, 4)}, s{sJo} offen')
                a(f's_add_u32 s{sJo}, s{sJo}, s{sJs}')
            a(f'{l2}:')
        a(f's_cmp_ge_u32 s{sG}, 64')
        a.snapshot('s4')
        a('s_cbranch_scc1 .Ls4')
        XR, WR = 16, J2
        vA, vRow, vS8 = 2, 3, 4
        a(f'v_lshrrev_b32 v{vRow}, 3, v{vTid}')
        a(f'v_and_b32 v{vS8}, 7, v0')
        a(f's_lshr_b32 s{sT0}, s{sG}, 3')
        a(f's_lshl_b32 s{sT0}, s{sT0}, 8')
        a(f's_and_b32 s{sT1}, s{sG}, 3')
        a(f's_lshl2_add_u32 s{sT0}, s{sT1}, s{sT0}')
        a(f's_bfe_u32 s{sT1}, s{sG}, 0x10002')
        a(f's_lshl1_add_u32 s{sT0}, s{sT1}, s{sT0}')
        a(f'v_and_b32 v5, 0xf0, v{vTid}')
        a(f'v_and_b32 v6, 1, v{vRow}')
        a(f'v_add3_u32 v5, v5, v6, s{sT0}')
        a(f's_movk_i32 s{sT1}, 1280')
        a(f'v_lshlrev_b32 v6, 4, v{vS8}')
        a(f'v_mad_u32_u24 v5, v5, s{sT1}, v6')
        for j in range(10):
            a(f'buffer_load_dwordx4 {vr(XR + 4 * j, 4)}, v5, {sr(S_X, 4)}, 0 offen offset:{128 * j}{self.nt(3)}')
        if head:
            a('s_branch .Lhead_a1')
            a('.Lhead_a1:')
        if up == 1:
            job2_loads()
        self.stamp('sx_issued')
        self.gemm_ids()
        self.w_addr()
        vW, vRd, vSt = 5, 6, 7
        a(f's_movk_i32 s{sT1}, 528')
        a(f'v_lshlrev_b32 v{vW}, 3, v{vRow}')
        a(f'v_mad_u32_u24 v{vW}, v{vS8}, s{sT1}, v{vW}')
        a(f'v_and_b32 v{vRd}, 31, v0')
        a(f'v_lshlrev_b32 v{vRd}, 4, v{vRd}')
        a(f'v_lshrrev_b32 v8, 5, v{vTid}')
        a(f'v_mad_u32_u24 v{vRd}, v8, s{sT1}, v{vRd}')
        a(f's_lshl_b32 s{sT0}, s{sG}, 8')
        a(f'v_and_b32 v{vSt}, 15, v0')
        a(f's_and_b32 s{sT1}, s{sT0}, 0x2000')
        a(f's_add_u32 s{sT1}, s{sT1}, s{sT0}')
        a(f'v_lshl_add_u32 v{vSt}, v{vSt}, 4, s{sT1}')
        a(f'v_lshrrev_b32 v8, 4, v{vTid}')
        a(f's_mov_b32 s{sT1}, {2 * QS}')
        a(f'v_mad_u32_u24 v{vSt}, v8, s{sT1}, v{vSt}')
        for j in range(10):
            for o_ in range(2):
                a(f'ds_write_b64 v{vW}, {vr(XR + 4 * j + 2 * o_, 2)} offset:{j * 4224 + o_ * 256}')
        self.stamp('sx_data')
        a(f's_load_dword s{sU0}, {sr(S_DBG, 2)}, 0x80')
        a(f's_load_dword s{sU1}, {sr(S_DBG, 2)}, 0x0')
        if up == 2:
            job2_loads()
            a(f's_lshl_b32 s{sT0}, s{sG}, 8')
        a('s_waitcnt lgkmcnt(0)')
        a('s_barrier')
        self.stamp('sx_bar')
        XO = 96
        for j in range(10):
            a(f'ds_read_b128 {vr(XO + 4 * j, 4)}, v{vRd} offset:{j * 4224}')
        self.get_pol(vFl)
        self.check(S_DBG, '0', 1, vFl, sU1)
        a(f's_mov_b32 s{sOne}, 0x3f803f80')
        for i in range(4):
            a(f'v_mov_b32 v{8 + i}, 0')
        for j in range(10):
            a(f's_mov_b32 s{sT1}, {grp_base(j, XP4, XP4T)}')
            a(f'buffer_store_dwordx4 {vr(XO + 4 * j, 4)}, v{vSt}, {WS}, s{sT1} offen sc1')
            for i in range(4 * j, 4 * j + 4):
                a(f'v_dot2c_f32_bf16 v{8 + (i & 1)}, s{sOne}, v{XR + i}')
                a(f'v_dot2c_f32_bf16 v{10 + (i & 1)}, v{XR + i}, v{XR + i}')
        a('v_add_f32 v8, v8, v9')
        a('v_add_f32 v10, v10, v11')
        for m in ('quad_perm:[1,0,3,2]', 'quad_perm:[2,3,0,1]', 'row_half_mirror'):
            a(f'v_add_f32_dpp v8, v8, v8 {m} row_mask:0xf bank_mask:0xf')
            a(f'v_add_f32_dpp v10, v10, v10 {m} row_mask:0xf bank_mask:0xf')
        a(f'v_mul_f32 v8, {f32(1 / 640)}, v8')
        a(f'v_mul_f32 v10, {f32(1 / 640)}, v10')
        a('v_fma_f32 v10, -v8, v8, v10')
        a('v_max_f32 v10, 0, v10')
        a(f'v_add_f32 v10, {f32(1e-5)}, v10')
        a('v_rsq_f32 v10, v10')
        a('v_lshlrev_b32 v12, 5, v0')
        a('v_mul_f32 v11, -v8, v10')
        a(f's_lshl_b32 s{sT1}, s{S_W}, 6')
        a(f's_add_u32 s{sT1}, s{sT1}, s{sT0}')
        a(f's_add_u32 s{sT1}, s{sT1}, {ST1}')
        a('ds_bpermute_b32 v8, v12, v10')
        a('ds_bpermute_b32 v9, v12, v11')
        a('v_lshlrev_b32 v12, 3, v0')
        a.need('v[8:9]')
        a('s_mov_b64 exec, 0xff')
        a(f'buffer_store_dwordx2 v[8:9], v12, {WS}, s{sT1} offen sc1')
        a('s_mov_b64 exec, -1')
        a('s_branch .Lr1')
        if head:
            a('.Lhead_b0:')
        a('.Ls4:')
        a.fresh('s4')
        T4 = 10240
        a(f's_sub_u32 s{sT4}, s{sG}, 64')
        if self.opt.get('s4loc', 1):
            a(f's_lshr_b32 s{sT4}, s{sT4}, 3')
            a(f's_and_b32 s{sT5}, s{sX}, 3')
            a(f's_lshr_b32 s{sT0}, s{sX}, 2')
            a(f's_lshl1_add_u32 s{sT5}, s{sT5}, s{sT0}')
        else:
            a(f's_lshr_b32 s{sT5}, s{sT4}, 2')
            a(f's_and_b32 s{sT4}, s{sT4}, 3')
        a(f's_mul_i32 s{sT0}, s{sT4}, 160')
        a(f's_lshl3_add_u32 s{sT0}, s{S_W}, s{sT0}')
        a(f's_mul_i32 s{sT0}, s{sT0}, 3072')
        a(f's_mul_i32 s{sT1}, s{sT5}, 3')
        a(f's_add_u32 s{sT1}, s{sT1}, 1')
        self.real_line(sT1, sT2)
        a(f's_lshl_b32 s{sT1}, s{sT1}, 7')
        a(f's_add_u32 s{sT0}, s{sT0}, s{sT1}')
        a('v_lshrrev_b32 v3, 3, v0')
        a('v_and_b32 v4, 7, v0')
        a(f'v_lshl_add_u32 v2, v4, 4, s{sT0}')
        a(f's_movk_i32 s{sT1}, 3072')
        a(f'v_mad_u32_u24 v2, v3, s{sT1}, v2')
        a(f's_mov_b32 s{sT0}, 0')
        for i in range(10):
            a(f'buffer_load_dwordx4 {vr(XR + 4 * i, 4)}, v2, {sr(S_WU if i & 1 else S_WG, 4)}, s{sT0} offen{self.nt(5)}')
            if i & 1:
                a(f's_add_u32 s{sT0}, s{sT0}, {32 * 3072}')
        if head:
            a('s_branch .Lhead_b1')
            a('.Lhead_b1:')
        if up == 1:
            job2_loads()
        self.stamp('sx_issued')
        self.gemm_ids()
        self.w_addr()
        a(f's_lshl_b32 s{sT0}, s{S_W}, 9')
        a(f'v_lshl_add_u32 v5, v3, 6, s{sT0}')
        a('v_and_b32 v6, 1, v0')
        a('v_lshl_add_u32 v5, v6, 4, v5')
        a('v_bfe_u32 v6, v0, 1, 2')
        a('v_lshlrev_b32 v7, 5, v6')
        a('v_xor_b32 v5, v5, v7')
        a(f's_movk_i32 s{sT0}, {T4}')
        a(f'v_mad_u32_u24 v5, v6, s{sT0}, v5')
        a('v_xor_b32 v6, 32, v5')
        a('v_lshrrev_b32 v7, 5, v0')
        a('v_bfe_u32 v8, v0, 2, 2')
        a('v_lshl_add_u32 v7, v7, 3, v8')
        a('v_lshlrev_b32 v7, 6, v7')
        a('v_and_b32 v8, 3, v0')
        a('v_lshl_add_u32 v7, v8, 4, v7')
        a('v_bfe_u32 v8, v0, 4, 1')
        a('v_lshl_add_u32 v7, v8, 3, v7')
        a(f's_lshl_b32 s{sT1}, s{S_W}, 5')
        a(f'v_xor_b32 v7, s{sT1}, v7')
        a(f's_mul_i32 s{sT1}, s{S_W}, {T4}')
        a(f'v_add_u32 v7, s{sT1}, v7')
        for i in range(10):
            a(f'ds_write_b128 v{6 if i & 1 else 5}, {vr(XR + 4 * i, 4)} offset:{(i >> 1) * 2048}')
        self.stamp('sx_data')
        a(f's_load_dword s{sU0}, {sr(S_DBG, 2)}, 0x80')
        a(f's_load_dword s{sU1}, {sr(S_DBG, 2)}, 0x0')
        if up == 2:
            job2_loads()
        a('s_waitcnt lgkmcnt(0)')
        a('s_barrier')
        self.stamp('sx_bar')
        for j in range(10):
            for e in range(2):
                a(f'ds_read_b64_tr_b16 {vr(XO + 4 * j + 2 * e, 2)}, v7 offset:{1024 * j + 256 * e}')
        a(f's_lshl2_add_u32 s{sT0}, s{sT5}, s{S_W}')
        a(f's_lshl2_add_u32 s{sT0}, s{sT0}, s{sT4}')
        a(f's_mul_i32 s{sT0}, s{sT0}, 10240')
        a(f's_add_u32 s{sT0}, s{sT0}, {W45F}')
        a('v_lshlrev_b32 v9, 4, v0')
        self.get_pol(vFl)
        self.check(S_DBG, '0', 1, vFl, sU1)
        for j in range(10):
            if j and j & 3 == 0:
                a(f's_add_u32 s{sT0}, s{sT0}, 4096')
            a(f'buffer_store_dwordx4 {vr(XO + 4 * j, 4)}, v9, {WS}, s{sT0} offen offset:{(j & 3) * 1024} sc1')
        a('.Lr1:')
        a.fresh()
        self.stamp('sx_st')
        o = self.opt
        assert up >= 1
        a(f's_mov_b32 s{sG}, s{sG2}')
        a(f's_mov_b32 s{sSide}, s{sG2}')
        self.w_select()
        WB = 49152
        T0 = 216
        na, nb, nc = o.get('sw_a', 10), o.get('sw_b', 10), o.get('sw_c', 12)
        assert na + nb + nc <= 32

        def end_r1(younger):
            self.stamp('sx_ld2')
            a(f's_waitcnt vmcnt({younger})')
            a('s_barrier')
            self.stamp('sx_dr')
            self.arrive_start([(sArr, C_FX)])
        a(f's_cmp_ge_u32 s{sG}, 48')
        a('s_cbranch_scc1 .Ls2')
        wl = self.w_loads_main()
        a(wl[:na])
        v8, v9, v10 = T0, T0 + 1, T0 + 2
        a(f'v_lshrrev_b32 v{vRow}, 3, v{vTid}')
        a(f'v_and_b32 v{vS8}, 7, v0')
        a(f's_movk_i32 s{sT1}, 1344')
        a(f'v_lshlrev_b32 v{vW}, 4, v{vS8}')
        a(f'v_mad_u32_u24 v{vW}, v{vRow}, s{sT1}, v{vW}')
        a(f'v_lshrrev_b32 v{v8}, 4, v0')
        a(f'v_bfe_u32 v{v9}, v0, 2, 2')
        a(f'v_lshl_add_u32 v{v8}, v{v8}, 3, v{v9}')
        a(f's_mul_i32 s{sT0}, s{S_W}, 320')
        a(f'v_mov_b32 v{v9}, s{sT0}')
        a(f'v_mad_u32_u24 v{v8}, v{v8}, s{sT1}, v{v9}')
        a(f'v_and_b32 v{v9}, 3, v0')
        a(f'v_lshl_add_u32 v{v10}, v{v9}, 3, v{v8}')
        a(f'v_lshl_add_u32 v{v8}, v{v9}, 4, v{v8}')
        end_r1(na)
        q = wl[na:na + nb]
        for j in range(10):
            a(f'ds_write_b128 v{vW}, {vr(WR + 4 * j, 4)} offset:{WB + 128 * j}')
            if q and j < o.get('sw_b1', 4):
                a(q.pop(0))
        self.arrive_finish([(sArr, 11, C_FXR)], v9)
        self.stamp(1)
        a(q)
        a('s_barrier')
        for cc in range(2):
            for nt in range(5):
                for e in range(2):
                    off = WB + cc * 160 + e * 4 * 1344 + ((nt >> 1) * 64 + (nt & 1) * 8)
                    a(f'ds_read_b64_tr_b16 {ar(4 * (5 * cc + nt) + 2 * e, 2)}, v{v10 if nt == 4 else v8} offset:{off}')
        a(f's_mul_i32 s{sT0}, s{S_W}, 96')
        a(f's_add_u32 s{sT0}, s{sT0}, s{sG}')
        a(f's_mul_i32 s{sT0}, s{sT0}, 5120')
        a(f's_add_u32 s{sT0}, s{sT0}, {WDF}')
        a(f'v_lshlrev_b32 v{v9}, 4, v0')
        for cc in range(2):
            for nt in range(5):
                if nt == 4:
                    a(f's_add_u32 s{sT0}, s{sT0}, 4096')
                a(f'buffer_store_dwordx4 {ar(4 * (5 * cc + nt), 4)}, v{v9}, {WS}, s{sT0} offen offset:{(nt & 3) * 1024} sc1')
            a(f's_add_u32 s{sT0}, s{sT0}, {48 * 5120 - 4096}')
        a('s_branch .Lr2')
        a('.Ls2:')
        a.fresh()
        AC = T0 + 4
        for i in range(10, 20):
            a(f'buffer_load_dwordx4 {vr(J2 + 4 * i, 4)}, v{vJ2}, {sr(S_WD, 4)}, s{sJo} offen')
            a(f's_add_u32 s{sJo}, s{sJo}, s{sJs}')
        for i in range(8):
            a(f'v_mov_b32 v{AC + i}, 0')
        a(f's_mov_b32 s{sT4}, 0x3f80')
        a(f's_mov_b32 s{sT3}, 0x3f800000')
        end_r1(10)
        q = self.w_loads_main()[:na + nb]
        for i in range(80):
            a(f'v_dot2c_f32_bf16 v{AC + 2 * (i & 3)}, s{sT4}, v{J2 + i}')
            a(f'v_dot2c_f32_bf16 v{AC + 1 + 2 * (i & 3)}, s{sT3}, v{J2 + i}')
            if i == 39:
                self.arrive_finish([(sArr, 11, C_FXR)], T0)
                self.stamp(1)
            if i & 1 and i > 39 and q:
                a(q.pop(0))
        a(q)
        a(f'v_lshlrev_b32 v5, 5, v{vTid}')
        a(f'ds_write_b128 v5, {vr(AC, 4)} offset:{WB}')
        a(f'ds_write_b128 v5, {vr(AC + 4, 4)} offset:{WB + 16}')
        a('s_waitcnt lgkmcnt(0)')
        a('s_barrier')
        a('v_bfe_u32 v6, v0, 1, 4')
        a('v_and_b32 v7, 32, v0')
        a('v_add_u32 v6, v6, v7')
        a('v_and_b32 v7, 1, v0')
        a('v_lshl_add_u32 v6, v7, 4, v6')
        a('v_lshlrev_b32 v6, 2, v6')
        for i in range(16):
            a(f'ds_read2st64_b32 {vr(J2 + 2 * i, 2)}, v6 offset0:{WB // 256 + 2 * i} offset1:{WB // 256 + 2 * i + 1}')
        for i in range(1, 16):
            a(f'v_pk_add_f32 {vr(J2, 2)}, {vr(J2, 2)}, {vr(J2 + 2 * i, 2)}')
        a(f'v_add_f32 v{J2}, v{J2}, v{J2 + 1}')
        a(f'v_cvt_pk_bf16_f32 v{T0}, v{J2}, v{J2}')
        a(f'v_lshlrev_b32 v7, 16, v{T0}')
        a(f'v_sub_f32 v7, v{J2}, v7')
        a(f'v_cvt_pk_bf16_f32 v{T0 + 1}, v7, v7')
        a(f's_lshl_b32 s{sT0}, s{sLn}, 9')
        a(f's_add_u32 s{sT0}, s{sT0}, {CSF}')
        a('v_lshlrev_b32 v6, 3, v0')
        a(f's_cmp_lg_u32 s{S_W}, 0')
        a('s_cbranch_scc1 .Lr2')
        a(f'buffer_store_dwordx2 {vr(T0, 2)}, v6, {WS}, s{sT0} offen sc1')
        a('.Lr2:')
        a.fresh()
        self.stamp(2)
        a(f's_lshr_b32 s{sT0}, s{sG}, 5')
        a(f's_and_b32 s{sT1}, s{sG}, 15')
        a(f's_lshl4_add_u32 s{sT0}, s{sT0}, s{sT1}')
        a(f's_and_b32 s{sT1}, s{sG}, 16')
        a(f's_lshl2_add_u32 s{sT0}, s{sT1}, s{sT0}')
        a(f's_lshl_b32 s{sT0}, s{sT0}, 7')
        a(f's_add_u32 s{sT0}, s{sT0}, {CF3}')
        a('v_mov_b32 v4, 0')
        a('v_and_b32 v5, 31, v0')
        a('v_lshlrev_b32 v5, 2, v5')
        lf3 = a.label('nof3')
        a(f's_cmp_lg_u32 s{S_W}, 1')
        a(f's_cbranch_scc1 {lf3}')
        with a.untracked():
            a(f'buffer_store_dword v4, v5, {WS}, s{sT0} offen sc1')
        a(f'{lf3}:')
        if o.get('outpf', 2) >= 2:
            big = o.get('outpf', 2) == 3
            a(f's_lshr_b32 s{sT0}, s{sG}, 3')
            a(f's_mul_i32 s{sT0}, s{sT0}, 86')
            a(f's_and_b32 s{sT1}, s{sG}, 7')
            a(f's_lshl_b32 s{sT1}, s{sT1}, 10')
            a(f's_add_u32 s{sT0}, s{sT0}, s{sT1}')
            for i in range(4):
                a(f'v_mov_b32 v{T0 + 4 + i}, 0')
            for k in range(3 if big else 2):
                a(f'v_lshrrev_b32 v6, {3 if big else 2}, v{vTid}')
                a(f'v_add_u32 v6, {k * (32 if big else 64)}, v6')
                a('v_min_u32 v6, 85, v6')
                a(f'v_add_u32 v6, s{sT0}, v6')
                a('v_mul_u32_u24 v6, 320, v6')
                a('v_add_u32 v6, 160, v6')
                a(f'v_and_b32 v6, {-128 if big else -64}, v6')
                a(f'v_and_b32 v7, {7 if big else 3}, v0')
                a('v_lshl_add_u32 v6, v7, 4, v6')
                a(f'buffer_store_dwordx4 {vr(T0 + 4, 4)}, v6, {sr(S_OUT, 4)}, 0 offen sc1')
        a(self.clear_pst(2))
        n0 = na + nb + nc
        a(wl[na + nb:n0])
        a(f's_add_u32 s{sT4}, s{sXo}, {C_FXR * 256}')
        a(f's_add_u32 s{sFW}, s{sT4}, {(C_FWR - C_FXR) * 256}')
        a.drain_stores()
        a('s_waitcnt lgkmcnt(0)')
        a('s_barrier')
        self.stamp(6)
        self.arrive_start([(sArr, C_B1), (sJs, C_FW)])
        a(f'buffer_load_dword v1, off, {WS}, s{sT4} sc1')

        def mid():
            self.arrive_finish([(sJs, 11, C_FWR), (sArr, 31, C_B2)], T0)
            self.check(S_WS, f's{sT4}', 8, 1)
        self.side_window(wl[n0:], mid)
        self.warm([[3], [4], [5]])
        a(f's_waitcnt vmcnt({self.opt["wd_pre"]})')
        self.stamp(7)
        a('s_branch .Ljoin')

    def signal(self, soff, pi):
        a = self.a
        if self.opt.get('ssig', 0) >> pi & 1:
            a(f's_atomic_add s{sU2}, {sr(S_WS, 2)}, {soff}')
        else:
            a('s_mov_b64 exec, 1')
            a(f'buffer_atomic_add v{self.vOne}, off, {WS}, {soff} sc1')
            a('s_mov_b64 exec, -1')

    def gemms(self):
        a = self.a
        o = self.opt
        t, t2 = self.vTmp, self.vTmp2
        L, AB = 0, 8
        vRD = 4
        vAL, vAS, vA2, vWD, vWD2, vCS, vFl = 1, 2, 3, 247, 255, 246, 254
        vW5 = 252
        vS = 232
        BP = 236
        TM = 242
        ACC = 168
        RING1, CS, RING2 = 124, 148, 240
        sF3s, sF3p = sQ, sM
        sRB2w = sG
        kap = [[3 * c + ((pi + 1) % 3 if c & 1 else pi) for c in range(4)] for pi in range(3)]
        wd = []
        for i in range(60):
            g = []
            if i % 5 == 0:
                g.append(f's_mov_b32 s{sWoff}, {WDF + 5120 * kap[i // 20][i // 5 % 4]}')
            g.append(f'buffer_load_dwordx4 {ar(4 * i, 4)}, v{vWD2 if i % 5 == 4 else vWD}, {WS}, s{sWoff} offen offset:{(i % 5 & 3) * 1024} sc1')
            wd.append(g)
        if o.get('nowd'):
            wd = [[] for _ in wd]
        real, setup0 = a, []
        a = setup0.append
        a(f's_and_b32 s{sT0}, s{sJ}, 7')
        a(f's_lshl2_add_u32 s{sT0}, s{sT0}, s{S_W}')
        a(f's_mul_i32 s{sT0}, s{sT0}, {12 * 5120}')
        a(f'v_lshl_add_u32 v{vWD}, v0, 4, s{sT0}')
        a(f'v_add_u32 v{vWD2}, 0x1000, v{vWD}')
        a(f'v_lshlrev_b32 v{vRD}, 4, v0')
        for s in range(1, 4):
            a(f'v_xor_b32 v{t}, {16 * s}, v{vRD}')
            a(f'v_add_u32 v{vRD + s}, {TILE * s}, v{t}')
        a(f'v_lshl_add_u32 v{vW5}, s{S_W}, 10, v{vRD}')
        a(f'v_lshl_add_u32 v{vW5 + 1}, s{S_W}, 10, v{vRD + 1}')
        a(f's_lshl2_add_u32 s{sT0}, s{sRB}, s{S_W}')
        a(f's_lshl_b32 s{sT1}, s{sT0}, 8')
        a(f'v_and_b32 v{t}, 15, v0')
        a(f'v_lshlrev_b32 v{vA2}, 4, v{t}')
        a(f'v_add_u32 v{t}, s{sT1}, v{vA2}')
        a(f'v_lshrrev_b32 v{t2}, 4, v0')
        a(f's_mov_b32 s{sT1}, {QS}')
        a(f'v_mad_u32_u24 v{vAL}, v{t2}, s{sT1}, v{t}')
        a(f'v_lshl_add_u32 v{vA2}, v{t2}, 9, v{vA2}')
        def act_blk(dst, n, tmp):
            a(f's_and_b32 s{tmp}, s{n}, 7')
            a(f's_mul_i32 s{dst}, s{tmp}, 196608')
            a(f's_bfe_u32 s{tmp}, s{n}, 0x20003')
            a(f's_lshl_b32 s{tmp}, s{tmp}, 22')
            a(f's_add_u32 s{dst}, s{dst}, s{tmp}')
            a(f's_lshr_b32 s{tmp}, s{n}, 5')
            a(f's_lshl_b32 s{tmp}, s{tmp}, 13')
            a(f's_add_u32 s{dst}, s{dst}, s{tmp}')

        def f3_line(r, tmp):
            a(f's_and_b32 s{tmp}, s{r}, 16')
            a(f's_mul_i32 s{tmp}, s{tmp}, 3')
            a(f's_add_u32 s{r}, s{r}, s{tmp}')
            a(f's_lshl_b32 s{r}, s{r}, 7')
            a(f's_add_u32 s{r}, s{r}, {CF3}')
        act_blk(sT1, sT0, sT4)
        a(f'v_lshl_add_u32 v{vAS}, v0, 4, s{sT1}')
        a(f's_lshr_b32 s{sF3s}, s{sT0}, 1')
        f3_line(sF3s, sT4)
        a(f's_lshr_b32 s{sT1}, s{sJ}, 3')
        a(f's_lshl2_add_u32 s{sF3p}, s{sX}, s{sT1}')
        a(f's_lshl_b32 s{sRB2w}, s{sF3p}, 1')
        f3_line(sF3p, sT4)
        for i in range(4):
            a(f's_add_u32 s{sT0}, s{sRot}, {i}')
            a(f's_and_b32 s{sT0}, s{sT0}, 3')
            a(f's_mul_i32 s{sT1}, s{sT0}, {40 * QS}')
            a(f's_add_u32 s{sT1}, s{sT1}, {HP4}')
            a([f's_cmp_lt_u32 s{sT0}, 3', f's_cselect_b32 s{sAB + i}, s{sT1}, {HP4T}'])
        a(f'v_and_b32 v{t}, 3, v0')
        a(f'v_bfe_u32 v{t2}, v0, 2, 1')
        a(f'v_lshl_add_u32 v{t}, v{t2}, 3, v{t}')
        a(f'v_bfe_u32 v{t2}, v0, 4, 1')
        a(f'v_lshl_add_u32 v{t}, v{t2}, 2, v{t}')
        a(f'v_lshlrev_b32 v{t}, 4, v{t}')
        a(f'v_bfe_u32 v{t2}, v0, 3, 1')
        a(f's_movk_i32 s{sT1}, 12288')
        a(f'v_mad_u32_u24 v{vCS}, v{t2}, s{sT1}, v{t}')
        a(f's_mov_b32 s{sOne}, 0x3f803f80')
        a(f's_mov_b32 s{sU2}, 1')
        a(f's_lshl_b32 s{sT2}, s{sA}, 7')
        a(f's_add_u32 s{sT2}, s{sT2}, {CSF}')
        a(f's_lshl_b32 s{sT3}, s{sB}, 7')
        a(f's_add_u32 s{sT3}, s{sT3}, {CSF}')
        for r in (sA, sB):
            a(f's_and_b32 s{sT0}, s{r}, -8')
            a(f's_add_u32 s{r}, s{r}, s{sT0}')
            a(f's_lshl_b32 s{r}, s{r}, 10')
            a(f's_add_u32 s{r}, s{r}, {ACT}')
        act_blk(sT6, sRB2w, sT4)
        a(f's_mul_i32 s{sT5}, s{S_W}, 49152')
        a(f's_add_u32 s{sT5}, s{sT5}, s{sT6}')
        for lam in range(4):
            a(f's_xor_b32 s{sT0}, s{S_W}, {lam}')
            a(f's_lshr_b32 s{sT1}, s{sT0}, 1')
            a(f's_mul_i32 s{sT1}, s{sT1}, 196608')
            a(f's_and_b32 s{sT0}, s{sT0}, 1')
            a(f's_lshl_b32 s{sT0}, s{sT0}, 8')
            a(f's_add_u32 s{sT0}, s{sT0}, s{sT5}')
            a(f's_add_u32 s{sL[lam]}, s{sT1}, s{sT0}')
        sRes, sOutB, sQS = 20, 21, 22
        a(f's_lshr_b32 s{sT0}, s{S_W}, 1')
        a(f's_add_u32 s{sT0}, s{sT0}, s{sRB2w}')
        a(f's_lshl_b32 s{sRes}, s{sT0}, 8')
        a(f's_and_b32 s{sT4}, s{S_W}, 1')
        a(f's_lshl3_add_u32 s{sRes}, s{sT4}, s{sRes}')
        a(f's_and_b32 s{sT5}, s{sJ}, 7')
        a(f's_mul_i32 s{sT6}, s{sT5}, {20 * QS}')
        a(f's_add_u32 s{sRes}, s{sRes}, s{sT6}')
        a(f's_mov_b32 s{sT6}, {HP4}')
        a([f's_cmp_lt_u32 s{sT5}, 6', f's_cselect_b32 s{sT6}, s{sT6}, {HP4T - 120 * QS}'])
        a(f's_add_u32 s{sRes}, s{sRes}, s{sT6}')
        a(f's_mov_b32 s{sQS}, {QS}')
        a(f's_lshr_b32 s{sOutB}, s{sRB2w}, 3')
        a(f's_lshl_b32 s{sOutB}, s{sOutB}, 8')
        a(f's_and_b32 s{sT6}, s{sT0}, 3')
        a(f's_lshl2_add_u32 s{sOutB}, s{sT6}, s{sOutB}')
        a(f's_bfe_u32 s{sT6}, s{sRB2w}, 0x10002')
        a(f's_lshl1_add_u32 s{sOutB}, s{sT6}, s{sOutB}')
        a(f's_add_u32 s{sOutB}, s{sOutB}, s{sT4}')
        a(f's_mul_i32 s{sOutB}, s{sOutB}, 1280')
        a(f's_mul_i32 s{sT6}, s{sT5}, 160')
        a(f's_add_u32 s{sOutB}, s{sOutB}, s{sT6}')
        a(f's_lshl_b32 s{sU0}, s{sCB}, 8')
        a(f's_add_u32 s{sU0}, s{sU0}, {PST}')
        a(f's_mov_b32 s{sU1}, {PST}')
        a(f's_and_b32 s{sCB}, s{sCB}, 3')
        a(f's_mul_i32 s{sCB}, s{sCB}, 10')
        a = real
        spw = o['sp'] >> 4 & 1
        fw_ld = f's_load_dword s{sDv}, {sr(S_WS, 2)}, s{sFW}' if spw else f'buffer_load_dword v{TM + 2}, off, {WS}, s{sFW} sc1'
        nw = 40 - 8 * o.get('defer', 2)
        wdp = [wd.pop(0) for _ in range(o['wd_pre'])]

        def mixer(ww, setup, lq, per=6):
            def some(n, nl):
                for i in range(n):
                    a(ww.pop(0))
                    for _ in range(per):
                        if setup:
                            a(setup.pop(0))
                    for _ in range(((i + 1) * nl) // n - (i * nl) // n):
                        if lq:
                            a(lq.pop(0))
            return some

        def side_window(wl, fx_check):
            ww, setup = self.w_writes_main()[:nw], list(setup0)
            self.w_write_addr()
            lq = list(wl)
            hold = [x for x in setup if isinstance(x, str) and (f'v{vW5},' in x or f's{sU1},' in x)]
            setup = [x for x in setup if x not in hold]
            some = mixer(ww, [], lq)
            nl = len(lq)
            n_ = min(nl, nw - 8)
            assert all(40 - nl + (i * nl) // n_ >= 8 * (i // 8 + 1) for i in range(n_))
            some(n_, nl)
            fx_check()
            lq += self.w_loads_tail()
            if o.get('outpf', 2) == 1:
                a(f's_lshr_b32 s{sT0}, s{sSide}, 3')
                a(f's_lshl2_add_u32 s{sT0}, s{sT0}, s{S_W}')
                a(f's_mul_i32 s{sT0}, s{sT0}, {22 * 320}')
                a(f's_and_b32 s{sSide}, s{sSide}, 7')
                a(f's_mul_i32 s{sSide}, s{sSide}, {256 * 1280}')
                a(f's_add_u32 s{sSide}, s{sSide}, s{sT0}')
                a(f'v_min_u32 v{TM}, 21, v0')
                a(f'v_mul_u32_u24 v{TM}, 320, v{TM}')
                lq.insert(o.get('pf_pos', 20), f'buffer_load_dword a255, v{TM}, {sr(S_OUT, 4)}, s{sSide} offen offset:160')
            lq.append(fw_ld)
            mixer(ww, setup, lq)(len(ww), len(lq))
            a(setup)
            a(hold)
            if wdp:
                self.check(S_WS, f's{sFW}', 0 if o.get('nofw') else 8, TM + 2, sDv if spw else None)
            a(wdp)
        self.side_window = side_window
        ww = self.conv_ww
        setup = self.win_pre + setup0
        lq = list(self.win_loads)
        n1, n2 = o.get('ww1', 10), o.get('ww2', 6)
        assert len(ww) - n1 >= 8
        hold = [x for x in setup if isinstance(x, str) and (f'v{vW5},' in x or f's{sU1},' in x)]
        setup[:] = [x for x in setup if x not in hold]
        self.stamp('hbar')
        some = mixer(ww, setup, lq, o.get('su_per', 7))
        assert 5 * o.get('su_per', 7) >= len(self.win_pre)
        some(5, 0)
        fwe = o.get('fwe', 1)
        if wdp and fwe:
            a(fw_ld)
        some(n1 - 5, o.get('l1', 8))
        self.stamp('hissued')
        if wdp and fwe and spw:
            a.need(f's{sDv}')
        a.drain_stores()
        self.stamp('hdrained')
        a('s_barrier')
        self.stamp('hbar2')
        self.arrive_start([(sArr, C_B1)])
        if wdp and not fwe:
            a(fw_ld)
        if wdp and fwe:
            self.check(S_WS, f's{sFW}', 0 if o.get('nofw') else 8, TM + 2, sDv if spw else None)
            nl2 = len(lq) + o.get('l2', 8)
            lq += wdp
            some(n2, nl2)
        else:
            some(n2, len(lq))
        self.arrive_finish([(sArr, 31, C_B2)], TM)
        self.stamp('arrived')
        if wdp and not fwe:
            self.check(S_WS, f's{sFW}', 0 if o.get('nofw') else 8, TM + 2, sDv if spw else None)
            lq += wdp
        some(len(ww), len(lq))
        a(setup)
        a(hold)
        a(lq)
        a('.Ljoin:')
        self.stamp('wwritten')
        a(f's_add_u32 s{sT0}, s{sXo}, {C_B2 * 256}')
        with self.wave0():
            l = a.label('passed')
            if o.get('e2s', 1):
                a(f's_load_dword s{sDv}, {sr(S_WS, 2)}, s{sT0}')
                a('s_waitcnt lgkmcnt(0)')
                a(f's_cmp_ge_u32 s{sDv}, 8')
                a(f's_cbranch_scc1 {l}')
            self.spin(S_WS, f's{sT0}', 0 if o.get('noe2') else 8, t)
            a(f'{l}:')
        self.stamp('polled')
        a('s_waitcnt lgkmcnt(0)')
        a('s_barrier')
        self.stamp(8)
        al = []
        for j in range(40):
            if j % 10 == 0:
                al.append([f'buffer_load_dwordx4 {vr(AB + 4 * j, 4)}, v{vAL}, {WS}, s{sAB + j // 10} offen sc1'])
            else:
                al.append([f's_add_u32 s{sT1}, s{sAB + j // 10}, {(j % 10) * 4 * QS}',
                           f'buffer_load_dwordx4 {vr(AB + 4 * j, 4)}, v{vAL}, {WS}, s{sT1} offen sc1'])
        al.append(f'buffer_load_dwordx4 {ar(CS, 4)}, v{vCS}, {WS}, s{sT2} offen sc1')
        al.append(f'buffer_load_dwordx4 {ar(CS + 4, 4)}, v{vCS}, {WS}, s{sT2} offen offset:256 sc1')
        al.append(f'buffer_load_dwordx4 {ar(CS + 8, 4)}, v{vCS}, {WS}, s{sT3} offen sc1')
        for _ in range(o['a_ahead']):
            a(al.pop(0))

        def rd(dst, slot, j):
            return f'ds_read_b128 {ar(dst, 4)}, v{vRD + slot} offset:{1024 * j}'

        def swaps(j):
            return [f'v_permlane16_swap_b32 v{AB + 4 * j + e}, v{AB + 4 * j + 2 + e}' for e in range(2)]

        def acc(slot):
            return vr(ACC + 16 * slot, 16)
        wtail = [f'ds_write_b128 v{vW5 + (i & 1)}, {ar(160 + 4 * i, 4)} offset:{(i >> 1) * 4096}' for i in range(20)]
        if o.get('nowt'):
            wtail = [[] for _ in wtail]
        C0, C1, R = vS, vS + 1, vS + 2
        c0 = -2.0 * 0.7978845608028654 * 1.4426950408889634
        G = ACC + 48
        gather = [f'buffer_load_dwordx2 {vr(G + 2 * s, 2)}, v{self.vPS}, {WS}, s{sU1} offen offset:{256 * s} sc1'
                  for s in range(8)]
        valid = [f'v_or3_b32 v{t}, v{G + 1}, v{G + 3}, v{G + 5}', f'v_or3_b32 v{t2}, v{G + 7}, v{G + 9}, v{G + 11}',
                 f'v_or3_b32 v{t}, v{t}, v{G + 13}, v{G + 15}', f'v_or_b32 v{t}, v{t}, v{t2}',
                 f'v_cmp_gt_i32 vcc, 0, v{t}']

        def chk_stats():
            slow, back = a.label('slow'), a.label('back')
            a('s_nop 1')
            a(f's_cbranch_vccnz {slow}')
            a(f'{back}:')

            def cold():
                top = a.label('top')
                a(f'{slow}:')
                with a.untracked():
                    a(f's_mov_b32 s{sSpin}, {SPIN}')
                    a(f'{top}:')
                    a(gather)
                    a('s_waitcnt vmcnt(0)')
                    a(valid)
                    a(f's_sub_u32 s{sSpin}, s{sSpin}, 1')
                    a(f's_cbranch_scc1 {back}')
                    a('s_nop 3')
                    a(f's_cbranch_vccnz {top}')
                    a(f's_branch {back}')
            self.cold.append(cold)
        halves = [
            f'v_add_f32 v{vS}, v{vS}, v{vS + 1}',
            f'v_add_f32 v{vS + 2}, v{vS + 2}, v{vS + 3}',
            f'v_mov_b32 v{vS + 1}, v{vS}',
            f'v_mov_b32 v{vS + 3}, v{vS + 2}',
            f'v_cmp_gt_u32 vcc, 32, v{L}',
            f'v_permlane32_swap_b32 v{vS}, v{vS + 1}',
            f'v_permlane32_swap_b32 v{vS + 2}, v{vS + 3}']
        pub = halves + [
            f'v_add_f32 v{G}, v{vS}, v{vS + 1}',
            f'v_add_f32 v{G + 1}, v{vS + 2}, v{vS + 3}',
            f'v_and_b32 v{G + 1}, 0x7fffffff, v{G + 1}',
            ['s_mov_b32 exec_hi, 0',
             f'buffer_store_dwordx2 {vr(G, 2)}, v{self.vPS}, {WS}, s{sU0} offen sc1',
             's_mov_b32 exec_hi, -1']]
        st = valid + [chk_stats]
        for w_ in range(2):
            g = G + w_
            st += [f'v_add_f32 v{g}, v{g}, v{g + 2}', f'v_add_f32 v{g + 4}, v{g + 4}, v{g + 6}',
                   f'v_add_f32 v{g + 8}, v{g + 8}, v{g + 10}', f'v_add_f32 v{g + 12}, v{g + 12}, v{g + 14}',
                   f'v_add_f32 v{vS + 2 * w_}, v{g}, v{g + 4}', f'v_add_f32 v{vS + 2 * w_ + 1}, v{g + 8}, v{g + 12}']
        st += halves + [
            f'v_add_f32 v{vS}, v{vS}, v{vS + 1}',
            f'v_add_f32 v{vS + 2}, v{vS + 2}, v{vS + 3}',
            f'v_mul_f32 v{vS}, {f32(-1 / 640)}, v{vS}',
            f'v_mul_f32 v{vS + 2}, {f32(1 / 640)}, v{vS + 2}',
            f'v_cvt_pk_bf16_f32 v{t}, v{vS}, v{vS}',
            f'v_fma_f32 v{R}, -v{vS}, v{vS}, v{R}',
            f'v_lshlrev_b32 v{t}, 16, v{t}',
            f'v_max_f32 v{R}, 0, v{R}',
            f'v_sub_f32 v{t2}, v{vS}, v{t}',
            f'v_add_f32 v{R}, {f32(1e-5)}, v{R}',
            f'v_cvt_pk_bf16_f32 v{t}, v{t}, v{t2}',
            f'v_rsq_f32 v{vS + 3}, v{R}',
            f'v_cndmask_b32 v{BP + 2}, 0, v{t}, vcc',
            f'v_cndmask_b32 v{BP + 3}, 0, v{t}, vcc',
            f'v_mul_f32 v{C0}, {f32(c0)}, v{vS + 3}',
            f'v_mul_f32 v{t}, v{vS + 3}, v{vS + 3}',
            f'v_mul_f32 v{t}, {f32(0.044715)}, v{t}',
            f'v_mul_f32 v{C1}, v{t}, v{C0}',
        ]

        def csm(tile, slot, first):
            b = vr(BP, 4) if tile & 1 else vr(BP + 2, 4)
            return f'v_mfma_f32_32x32x16_bf16 {acc(slot)}, {ar(CS + 4 * (tile >> 1), 4)}, {b}, {"0" if first else acc(slot)}'

        def pick(r0, r1):
            a(f's_set_gpr_idx_on s{sCB}, gpr_idx(SRC0)')
            a('s_nop 0')
            for r in range(r0, r1):
                a(f'v_mov_b32_e32 v{G + r}, v{AB + r}')
            a('s_set_gpr_idx_off')
        for j in range(2):
            for s in range(3):
                a(rd(RING1 + 12 * j + 4 * s, s, j))
        a(swaps(0))
        self.stamp('a0')
        p2 = [(3, 3, j) for j in range(40)] + [(4, 0, j) for j in range(40)] + [(5, 1, j) for j in range(40)]
        gq = list(gather)
        GJ, SJ = o.get('gather_j', 21), o.get('stat_j', 33)
        BARS = [int(x) for x in str(o.get('bars', '15x27')).split('x')]
        nwd1 = min(o.get('wd_p1', 6), 31 - o['wd_pre'])
        assert not ww
        NR = o.get('ring', 8)
        assert NR == 4 or o['wd_post'] >= 4

        def r2(i):
            return RING2 + 4 * (i & 3) if NR == 4 else 224 + 4 * ((i + 4) & 7)
        misc = [f'v_mov_b32 v{BP + i}, 0' for i in (0, 1, 4, 5)] + [f'v_mov_b32 v{vS + i}, 0' for i in range(4)]
        wdone, wfree = 0, 0
        C1CAP = o.get('cap1', 5)
        for j in range(40):
            base = RING1 + 12 * (j & 1)
            self.stamp(f'p{j}')
            a.need(ar(base, 12))
            for s in range(3):
                c = '0' if j == 0 else acc(s)
                a(f'v_mfma_f32_32x32x16_bf16 {acc(s)}, {ar(base + 4 * s, 4)}, {vr(AB + 4 * j, 4)}, {c}')
                used = 1 if s < 2 else 2
                if j < 38:
                    a(rd(base + 4 * s, s, j + 2))
                else:
                    i = (j - 38) * 3 + s
                    if i < 4:
                        a(rd(r2(i), p2[i][1], p2[i][2]))
                if s == 0 and j < 39:
                    a(swaps(j + 1))
                    used += 3 if j < SJ else 2
                if j == 39:
                    if s == 0:
                        a('s_barrier')
                        wtail = wtail[-4:] + wtail[:-4]
                    else:
                        a(wtail.pop(0))
                elif s == 1 and wdone < wfree:
                    a(wtail.pop(0))
                    wdone += 1
                    used += 4
                if s == 2:
                    if al:
                        a(al.pop(0))
                        used += 3
                    elif nwd1 and not gq and j < o.get('wd1_hi', 39):
                        a(wd.pop(0))
                        nwd1 -= 1
                        used += 2
                if j >= GJ and gq and s < 2:
                    a(gq.pop(0))
                    used += 2
                q = misc if j < 8 else pub if j < SJ else st
                while q and used < C1CAP + (o.get('cap1s', 1) if q is st else 0) and j != 8:
                    a(q.pop(0))
                    used += 1
            if j in BARS:
                a('s_barrier')
                wfree = 2 * ((j + 1) // 4)
            if j == 8:
                a(f's_set_gpr_idx_on s{sCB}, gpr_idx(SRC0,SRC1)')
                a('s_nop 0')
                for r in range(10):
                    a(f'v_dot2c_f32_bf16_e32 v{vS + (r & 1)}, s{sOne}, v{AB + r}')
                    a(f'v_dot2c_f32_bf16_e32 v{vS + 2 + (r & 1)}, v{AB + r}, v{AB + r}')
                a('s_set_gpr_idx_off')
            if o.get('verbose') and j in (9, 10, 11, 12, 37, 38):
                print('step', j, 'pub', len(pub), 'st', len(st))
        assert not pub and not al and not st and not misc
        RES, vRes, vRes2 = 200, vAL, vCS
        res_addr = [
            f'v_and_b32 v{vRes}, 15, v{L}',
            f'v_lshl_add_u32 v{vRes2}, v{vRes}, 4, s{sRes}',
            f'v_lshrrev_b32 v{vRes}, 4, v{L}',
            f'v_mad_u32_u24 v{vRes2}, v{vRes}, s{sQS}, v{vRes2}',
            f'v_mad_u32_u24 v{vRes}, v{vRes}, s{sQS}, v{vRes2}',
        ]
        for tl in range(3):
            a(csm(tl, tl, False))
            a(wtail.pop(0) if wtail else [])
        self.stamp(9)

        def epi(tile, slot, packed=False):
            b = ACC + 16 * slot
            tm = [TM, TM + 1, TM + 2, TM + 3]
            ops = []
            for h in range(2):
                g, u = b + 8 * h, b + 8 * h + 4
                if packed:
                    P = lambda r, i: vr(r + 2 * i, 2)
                    cc, rr = vr(C0, 2), vr(R, 2)
                    ops += [(1, f'v_pk_mul_f32 {P(TM, i)}, {P(g, i)}, {P(g, i)}') for i in range(2)]
                    ops += [(1, f'v_pk_fma_f32 {P(TM, i)}, {P(TM, i)}, {cc}, {cc} op_sel:[0,1,0] op_sel_hi:[1,1,0]') for i in range(2)]
                    ops += [(1, f'v_pk_mul_f32 {P(u, i)}, {P(u, i)}, {P(g, i)}') for i in range(1)]
                    ops += [(1, f'v_pk_mul_f32 {P(TM, i)}, {P(TM, i)}, {P(g, i)}') for i in range(2)]
                    ops += [(2, f'v_exp_f32 v{tm[i]}, v{tm[i]}') for i in range(4)]
                    ops += [(1, f'v_pk_mul_f32 {P(u, i)}, {P(u, i)}, {P(g, i)}') for i in range(1, 2)]
                    ops += [(1, f'v_pk_fma_f32 {P(TM, i)}, {P(TM, i)}, {rr}, {rr} op_sel:[0,0,0] op_sel_hi:[1,0,0]') for i in range(2)]
                    ops += [(2, f'v_rcp_f32 v{tm[i]}, v{tm[i]}') for i in range(4)]
                    ops += [(1, f'v_pk_mul_f32 {P(u, i)}, {P(u, i)}, {P(TM, i)}') for i in range(2)]
                    ops += [(1, f'v_cvt_pk_bf16_f32 v{b + 2 * h + i}, v{u + 2 * i}, v{u + 2 * i + 1}') for i in range(2)]
                    continue
                ops += [(1, f'v_mul_f32 v{tm[i]}, v{g + i}, v{g + i}') for i in range(4)]
                ops += [(1, f'v_fma_f32 v{tm[i]}, v{tm[i]}, v{C1}, v{C0}') for i in range(4)]
                ops += [(1, f'v_mul_f32 v{tm[i]}, v{tm[i]}, v{g + i}') for i in range(4)]
                for i in range(4):
                    ops += [(2, f'v_exp_f32 v{tm[i]}, v{tm[i]}'), (1, f'v_mul_f32 v{u + i}, v{u + i}, v{g + i}')]
                ops += [(1, f'v_fma_f32 v{tm[i]}, v{tm[i]}, v{R}, v{R}') for i in range(4)]
                ops += [(2, f'v_rcp_f32 v{tm[i]}, v{tm[i]}') for i in range(4)]
                ops += [(1, f'v_mul_f32 v{u + i}, v{u + i}, v{tm[i]}') for i in range(4)]
                ops += [(1, f'v_cvt_pk_bf16_f32 v{b + 2 * h + i}, v{u + 2 * i}, v{u + 2 * i + 1}') for i in range(2)]
            so = sA if tile < 4 else sB
            txt = f'buffer_store_dwordx4 {vr(b, 4)}, v{vAS}, {WS}, s{so} offen offset:{(tile & 3) * 1024} sc1'
            ops.append((5, (lambda: a(txt, tag=f'act{tile}')) if not o.get('nost') else []))
            if o.get('noepi'):
                ops = [(c_, x if callable(x) else []) for c_, x in ops]
            return ops

        G2 = 72
        FR = [[8 + 4 * i for i in range(16)],
              [152 + 4 * i for i in range(4)] + [200 + 4 * i for i in range(8)] + [168 + 4 * i for i in range(4)],
              [8 + 4 * i for i in range(16)]]
        order = [[(c, lam) for lam in (3, 2, 1, 0) for c in range(4)]] * 3

        def act_ld(pi, n):
            c, lam = order[pi][n]
            if o.get('noact'):
                return []
            return [f's_add_u32 s{sT1}, s{sL[lam]}, {ACT + 16384 * (kap[pi][c] >> 2) + 2048 * (kap[pi][c] & 3)}',
                    f'buffer_load_dwordx4 {vr(FR[pi][n], 4)}, v{vA2}, {WS}, s{sT1} offen sc1']

        def sig(pi, tag):
            def f():
                self.stamp(f'presig{pi}')
                a.need_tag(tag)
                if o.get('wgsig', 0) >> pi & 1:
                    l = a.label('nosig')
                    a('s_barrier')
                    a(f's_bitcmp1_b32 s{S_W}, 0')
                    a(f's_cbranch_scc1 {l}')
                    with a.untracked():
                        self.signal(f's{sF3s}', pi)
                    a(f'{l}:')
                else:
                    self.signal(f's{sF3s}', pi)
                self.stamp(f'sig{pi}')
                if pi < 2:
                    a(f's_add_u32 s{sF3s}, s{sF3s}, 2048')
            return f

        def poll_ld(pi):
            if o['sp'] >> pi & 1:
                return f's_load_dword s{sDv}, {sr(S_WS, 2)}, s{sF3p}'
            return f'buffer_load_dword v{vFl}, off, {WS}, s{sF3p} sc1'

        def poll_chk(pi):
            def f():
                self.stamp(f'prechk{pi}')
                self.check(S_WS, f's{sF3p}', 0 if o.get('noe3', 0) >> pi & 1 else 16 if o.get('wgsig', 0) >> pi & 1 else 32, vFl,
                           sDv if o['sp'] >> pi & 1 else None)
                self.stamp(f'chk{pi}')
                if pi < 2:
                    a(f's_add_u32 s{sF3p}, s{sF3p}, 2048')
            return f
        RES, vRes, vRes2 = 200, vAL, vCS
        res_addr = [
            f'v_and_b32 v{vRes}, 15, v{L}',
            f'v_lshl_add_u32 v{vRes2}, v{vRes}, 4, s{sRes}',
            f'v_lshrrev_b32 v{vRes}, 4, v{L}',
            f'v_mad_u32_u24 v{vRes2}, v{vRes}, s{sQS}, v{vRes2}',
            f'v_mad_u32_u24 v{vRes}, v{vRes}, s{sQS}, v{vRes2}',
        ]
        res_ld = []
        for nt in range(5):
            q = 8 * (nt >> 1) + (nt & 1)
            res_ld.append([f's_mov_b32 s{sT6}, {q * QS}',
                           f'buffer_load_dwordx2 {vr(RES + 2 * nt, 2)}, v{vRes2 if nt == 4 else vRes}, {WS}, s{sT6} offen sc1'])
        slot_of = {0: 0, 1: 1, 2: 2, 3: 3, 4: 0, 5: 1}
        eq = epi(0, 0) + epi(1, 1) + epi(2, 2)
        budget = 0.0
        RATE = o['epi_rate']
        extra = {i: [] for i in range(120)}
        first_w = wtail.pop(0) if wtail else []
        extra0 = {k: wtail[k] for k in range(len(wtail))}
        wlast, nxt = o.get('grow', 0), 4
        extra[o.get('bar4', 26)].append('s_barrier')
        for k, x in enumerate(res_addr):
            extra[66 + k].append(x)
        nwd = len(wd) - o.get('wd_post', 12)
        done = 60 - len(wd)
        lo, hi = o.get('wd_lo', 4), o.get('wd_hi', 78)
        hold = None
        for k in range(nwd):
            g = wd.pop(0)
            p = lo + (k * (hi - lo)) // nwd
            fr = done + k
            if fr == 39:
                extra[81].append([f's_mov_b32 s{sT6}, {WDF + 5120 * kap[1][3]}', g[-1].replace(f's{sWoff} offen', f's{sT6} offen')] if g else [])
                continue
            assert fr < 56 or p > 14
            extra[p].append(g)
        SA, SB = o.get('siga', 62), o.get('sigb', 104)
        extra[SA].append(sig(0, 'act1'))
        extra[o.get('lda', 86)].append(poll_ld(0))
        for k, x in enumerate(res_ld):
            extra[o.get('res_at', 86) + 2 * k].append(x)
        ca = o.get('chka', 105)
        extra[ca].append(poll_chk(0))
        na = o.get('a_in', 7)
        for n in range(na):
            extra[ca + 1 + (n * (119 - ca)) // na].append(act_ld(0, n))
        extra[SB].append(sig(1, 'act3'))
        extra[50].append('s_barrier')

        def cost(x):
            if callable(x):
                return 3
            if isinstance(x, (list, tuple)):
                return sum(cost(y) for y in x)
            return 5 if x.startswith('ds_write') else 2 if x.startswith('buffer') or x == 's_barrier' else 1
        CAP = o.get('cap', 6.6)
        for i, (tile, ls, j) in enumerate(p2):
            slot = slot_of[tile]
            self.stamp(f'q{i}')
            if j == 0:
                a(csm(tile, slot, True))
                if i == 0:
                    a(first_w)
                if i:
                    budget = 6
                    while eq and budget >= eq[0][0]:
                        cst, x = eq.pop(0)
                        budget -= cst
                        a(x)
            WP = 2 if NR == 4 or i < 12 else o.get('wper', 4)
            if i % WP == 0:
                a.need(*[ar(r2(i + z), 4) for z in range(WP)])
            a(f'v_mfma_f32_32x32x16_bf16 {acc(slot)}, {ar(r2(i), 4)}, {vr(AB + 4 * j, 4)}, {acc(slot)}')
            a(extra0.get(i, []))
            nrd = 0
            while nxt < len(p2) and nxt <= i + NR and nrd < (2 if i >= wlast else 1):
                if NR == 8 and i < wlast:
                    a(rd(r2(nxt + 4), p2[nxt][1], p2[nxt][2])) if False else None
                a(rd(r2(nxt), p2[nxt][1], p2[nxt][2]))
                nxt += 1
                nrd += 1
            a(extra[i])
            if i == 42:
                eq += epi(3, 3)
            if i == 82:
                eq += epi(4, 0)
                if o.get('st4_late'):
                    st4 = eq.pop()[1]
            if i >= 1:
                budget = min(budget, 1.0) + CAP - nrd - ((i + 1) % WP == 0) - cost(extra[i]) - cost(extra0.get(i, []))
                budget = max(budget, -1)
                while eq and budget >= min(eq[0][0], 2):
                    cst, x = eq.pop(0)
                    budget -= cst
                    a(x)
                    if callable(x) and o.get('verbose'):
                        print('store at gap', i)
                if i == 39:
                    assert len(eq) <= 2 * 69, len(eq)
                if i == SA - 1:
                    assert len(eq) <= 2 * 69, len(eq)
                if i == 79:
                    assert len(eq) <= 2 * 69, len(eq)
                if i == o.get('res_at', 86) - 1:
                    assert len(eq) <= 2 * 69, len(eq)
                if i == SB - 1:
                    assert len(eq) <= 69, len(eq)
            if j == 39:
                self.stamp(f't{tile}')
        for cst, x in eq:
            a(x)
        a(f's_mov_b32 s{sT0}, 0xffff0000')
        for i in range(10):
            a(f'v_lshlrev_b32 v{G2 + 2 * i}, 16, v{RES + i}')
            a(f'v_and_b32 v{G2 + 2 * i + 1}, s{sT0}, v{RES + i}')
        e5 = epi(5, 1, o.get('pk5', 1))
        LA = o.get('la2', 12)
        rest = [act_ld(0, n) for n in range(na, LA)]
        if o.get('ldb', -1) < 0:
            rest.append(poll_ld(1))
        if o.get('st4_late'):
            rest.append(st4)
        k = 0
        for i, (cst, x) in enumerate(e5):
            while k < len(rest) and (k + 1) * (len(e5) - 1) <= i * len(rest):
                a(rest[k])
                k += 1
            a(x)
        assert k == len(rest)
        self.stamp(10)

        vOut, vRR, vRW, vTW, vTR = 4, 7, 232, 238, 242
        RED = 2 * TILE
        setup = [
            f's_movk_i32 s{sT6}, {16 * 1280 - 160}',
            f's_movk_i32 s{sT5}, 6554',
            f's_movk_i32 s{sT4}, 176',
            f's_mul_i32 s{sT3}, s{S_W}, {16 * 176}',
            f'v_and_b32 v{t}, 15, v{L}',
            f'v_lshrrev_b32 v{t2}, 4, v{L}',
            f'v_mov_b32 v{vTW + 1}, s{sT3}',
            f'v_mad_u32_u24 v{vTW + 1}, v{t}, s{sT4}, v{vTW + 1}',
            f'v_lshl_add_u32 v{vTW}, v{t2}, 4, v{vTW + 1}',
            f'v_lshl_add_u32 v{vTW + 1}, v{t2}, 3, v{vTW + 1}',
        ]
        setup += [f'v_mul_u32_u24 v{t2}, s{sT5}, v{L}',
                  f'v_lshrrev_b32 v{t2}, 16, v{t2}',
                  f'v_lshl_add_u32 v{vOut}, v{L}, 4, s{sOutB}',
                  f'v_mad_u32_u24 v{vOut}, v{t2}, s{sT6}, v{vOut}',
                  f'v_add_u32 v{t}, v{L}, v{t2}',
                  f'v_lshl_add_u32 v{vTR}, v{t}, 4, s{sT3}',
                  f's_mov_b32 s{sT4}, {6 * 16 * 1280}',
                  f's_mov_b32 s{sT5}, {12 * 16 * 1280}']
        for lam in range(4):
            setup += [f's_xor_b32 s{sT0}, s{S_W}, {lam}', f's_mul_i32 s{sT0}, s{sT0}, {15 * 1024}',
                      f's_add_u32 s{sT0}, s{sT0}, {RED + (lam - 1) * 5120 if lam else RED}',
                      f'v_lshl_add_u32 v{vRW + lam - 1 if lam else vRR}, v{L}, 4, s{sT0}']

        def mf2(pi, n, nt):
            c, lam = order[pi][n]
            d = vr(G2 + 4 * (5 * lam + nt), 4)
            cin = '0' if (pi == 0 and c == 0 and lam != 0) else d
            return f'v_mfma_f32_16x16x32_bf16 {d}, {ar(4 * (5 * (4 * pi + c) + nt), 4)}, {vr(FR[pi][n], 4)}, {cin}'
        ex = [{i: [] for i in range(80)} for _ in range(3)]
        for k, x in enumerate(setup):
            ex[0][k].append(x)
        def put(pos, x):
            ex[pos // 80][pos % 80].append(x)
        if o.get('ldb', -1) >= 0:
            put(o['ldb'], poll_ld(1))
        cb_, cc_ = o.get('chkb', 5 * (16 - LA)), 80 + o.get('chkc', 44)
        put(cb_, [poll_chk(1), lambda: self.stamp('chkb')])
        put(o.get('sigc', 40), [sig(2, 'act5'), lambda: self.stamp('sigc')])
        put(80 + o.get('ldc', 28), poll_ld(2))
        put(cc_, [lambda: self.stamp('chkc0'), poll_chk(2), lambda: self.stamp(11)])
        pos = 0
        for g in range(LA, 48):
            pos = max(pos + (o.get('burst', 2) if g >= 16 else 0), o.get('g_gap', 5) * (g - LA) if g < 32 else 5 * (g - LA),
                      cb_ if g >= 16 else 0, cc_ if g >= 32 else 0)
            assert pos < 20 * (g // 4)
            put(pos, act_ld(g // 16, g % 16))
            if g < 32 and wd and 32 - g <= len(wd) + o.get('wdp_early', 0):
                put(pos + 2, wd.pop(0))
        assert not wd
        chain = o.get('chain', 1)
        for blk, lam in enumerate((3, 2, 1)):
            for nt in range(5):
                ex[2][20 * blk + 4 * nt + 12 if chain else 20 * (blk + 1) + 5 + 2 * nt].append(
                    f'ds_write_b128 v{vRW + lam - 1}, {vr(G2 + 4 * (5 * lam + nt), 4)} offset:{1024 * nt}')
        RD, RR = 152, 8
        red2 = o.get('red2', 1)

        def rd_part(s_, nt):
            return f'ds_read_b128 {vr(RD + 12 * nt + 4 * s_, 4)}, v{vRR} offset:{5120 * s_ + 1024 * nt}'
        if red2:
            assert chain
            b1, b2 = o.get('rb1', 52), o.get('rb2', 72)
            ex[2][b1] += [f's_waitcnt lgkmcnt({(b1 - 48) // 4})', 's_barrier']
            k = 0
            for nt in range(5):
                for s_ in (2, 1):
                    ex[2][b1 + 1 + k].append(rd_part(s_, nt))
                    k += 1
            adds = [f'v_add_f32 v{RD + 12 * nt + 4 + r}, v{RD + 12 * nt + 4 + r}, v{RD + 12 * nt + 8 + r}'
                    for nt in range(5) for r in range(4)]
            for k, x in enumerate(adds):
                ex[2][min(79, b1 + 12 + k // 2)].append(x)
            ex[2][b2] += ['s_waitcnt lgkmcnt(0)', 's_barrier']
            for nt in range(5):
                ex[2][min(79, b2 + nt)].append(rd_part(0, nt))
        for pi in range(3):
            for i in range(80):
                if chain:
                    a(mf2(pi, 4 * (i // 20) + (i & 3), i % 20 // 4))
                else:
                    a(mf2(pi, i // 5, i % 5))
                self.stamp(f'm{80 * pi + i}')
                a(ex[pi][i])
            self.stamp('end' + 'ABC'[pi])
        if not red2:
            a('s_waitcnt lgkmcnt(0)')
            a('s_barrier')
            for nt in range(5):
                for s_ in range(3):
                    a(rd_part(s_, nt))
        self.stamp('redbar')
        sc = ' sc1' if o['out_sc1'] else ''
        if red2:
            for nt in range(5):
                for p in range(2):
                    a(f'v_pk_add_f32 {vr(G2 + 4 * nt + 2 * p, 2)}, {vr(G2 + 4 * nt + 2 * p, 2)}, {vr(RD + 12 * nt + 4 + 2 * p, 2)}')
        for nt in range(5):
            b = RD + 12 * nt
            c = G2 + 4 * nt
            for p in range(2):
                a(f'v_pk_add_f32 {vr(c + 2 * p, 2)}, {vr(c + 2 * p, 2)}, {vr(b + 2 * p, 2)}')
                if not red2:
                    a(f'v_pk_add_f32 {vr(b + 4 + 2 * p, 2)}, {vr(b + 4 + 2 * p, 2)}, {vr(b + 8 + 2 * p, 2)}')
            for p in range(2):
                if not red2:
                    a(f'v_pk_add_f32 {vr(c + 2 * p, 2)}, {vr(c + 2 * p, 2)}, {vr(b + 4 + 2 * p, 2)}')
            for p in range(2):
                a(f'v_cvt_pk_bf16_f32 v{RR + 2 * nt + p}, v{c + 2 * p}, v{c + 2 * p + 1}')
            if nt & 1:
                a(f'ds_write_b128 v{vTW}, {vr(RR + 2 * nt - 2, 4)} offset:{64 * (nt >> 1)}')
            if nt == 4:
                a(f'ds_write_b64 v{vTW + 1}, {vr(RR + 8, 2)} offset:128')
        for k in range(3):
            a(f'ds_read_b128 {vr(RR + 12 + 4 * k, 4)}, v{vTR} offset:{6 * 176 * k}')
        a('s_mov_b32 exec_hi, 0xfffffff')
        for k in range(3):
            if k == 2:
                a('s_mov_b32 exec_hi, 0xff')
            a(f'buffer_store_dwordx4 {vr(RR + 12 + 4 * k, 4)}, v{vOut}, {sr(S_OUT, 4)}, {("0", f"s{sT4}", f"s{sT5}")[k]} offen{sc}')
        a('s_mov_b32 exec_hi, -1')
        lz = a.label('nz')
        a('s_cmp_lg_u32 s2, 0')
        a(f's_cbranch_scc1 {lz}')
        with a.untracked():
            a(f'buffer_store_dword v{BP}, off, {sr(S_DBG, 4)}, 0 sc1')
            a(f'buffer_store_dword v{BP}, off, {sr(S_DBG, 4)}, 0 offset:128 sc1')
        a(f'{lz}:')
        if self.diag:
            self.stamp('outst')
            a('s_waitcnt vmcnt(0)')
            self.stamp(12)
            a('s_waitcnt lgkmcnt(0)')
            with self.wave0():
                a(f's_lshl_b32 s{sT0}, s2, 7')
                a(f's_add_u32 s{sT0}, s{sT0}, {STAMP}')
                a(f's_sub_u32 s{S_WS}, s{S_WS}, s0')
                a(f's_subb_u32 s{S_WS + 1}, s{S_WS + 1}, 0')
                a('v_mov_b32 v0, s0')
                a(f'buffer_store_dword v0, off, {WS}, s{sT0} offset:60')
                for i in range(NSTAMP):
                    a(f'v_mov_b32 v0, s{S_STAMP + 2 * i}')
                    a(f'buffer_store_dword v0, off, {WS}, s{sT0} offset:{4 * i}')
        if self.opt.get('fixt'):
            with a.untracked():
                fs = S_STAMP + 2 * self.opt.get("fixs", 0)
                if self.opt.get('fixmax'):
                    fm = self.opt['fixmax']
                    lo, hi = {'all': (0, 256), 'conv': (0, 160), 'side': (160, 256)}[fm] if fm[0] != 'w' else (int(fm[1:]), int(fm[1:]) + 1)
                    a(f's_cmp_lg_u32 s{S_W}, 0')
                    a('s_cbranch_scc1 .Lend')
                    a(f's_sub_u32 s{sT0}, s2, {lo}')
                    a(f's_cmp_lt_u32 s{sT0}, {hi - lo}')
                    a(f's_cselect_b32 s{sT0}, s{fs}, 0')
                    a(f'v_mov_b32 v1, s{sT0}')
                    a('s_mov_b64 exec, 1')
                    a(f'buffer_atomic_umax v1, off, {sr(S_DBG, 4)}, 0 offset:64 sc1')
                    a('s_cmp_lg_u32 s2, 0')
                    a('s_cbranch_scc1 .Lend')
                    a('.Lfix0:')
                    a(f's_memrealtime {sr(sT0, 2)}')
                    a('s_waitcnt lgkmcnt(0)')
                    a(f's_sub_u32 s{sT0}, s{sT0}, s{S_STAMP}')
                    a(f's_cmp_lt_u32 s{sT0}, 3500')
                    a('s_cbranch_scc1 .Lfix0')
                    a(f'buffer_load_dword v1, off, {sr(S_DBG, 4)}, 0 offset:64 sc1')
                    a('s_waitcnt vmcnt(0)')
                    a(f'v_readfirstlane_b32 s{sT3}, v1')
                    a('s_nop 4')
                    fs = sT3
                a(f's_cmp_lg_u32 s2, {self.opt.get("fixwg", 0)}')
                a('s_cbranch_scc1 .Lend')
                a(f's_cmp_lg_u32 s{S_W}, 0')
                a('s_cbranch_scc1 .Lend')
                a(f's_sub_u32 s{sT2}, s{fs}, s{S_STAMP + 2 * self.opt.get("fixb", 0)}')
                a(f's_add_u32 s{sT2}, s{sT2}, {self.opt.get("fixbias", 0)}')
                a(f's_mul_i32 s{sT2}, s{sT2}, 10')
                a(f's_min_u32 s{sT2}, s{sT2}, 100000')
                a(f's_add_u32 s{sT2}, s{sT2}, {self.opt["fixt"]}')
                a('.Lfix:')
                a(f's_memrealtime {sr(sT0, 2)}')
                a('s_waitcnt lgkmcnt(0)')
                a(f's_sub_u32 s{sT0}, s{sT0}, s{S_STAMP}')
                a(f's_cmp_lt_u32 s{sT0}, s{sT2}')
                a('s_cbranch_scc1 .Lfix')
        a('.Lend:')
        a('s_endpgm')

    def build(self):
        a = self.a
        if self.diag:
            for i in range(2 * NSTAMP):
                a(f's_mov_b32 s{S_STAMP + i}, 0')
        self.prologue()
        self.conv()
        self.gemms()
        self.side()
        for c in self.cold:
            a.fresh()
            a('s_nop 7')
            c()
        a('.Lcode_end:')
        a('s_endpgm')
        pads = (self.opt.get('base', 0x300), NPAD, sr(sRet, 2), '.Lend', self.opt.get('pstride', 4096)) if self.opt['pads'] else None
        hoist = [('.Lhead_a0:', '.Lhead_a1:'), ('.Lhead_b0:', '.Lhead_b1:')] if self.opt.get('head', 0) else []
        front, body = a.finish(verbose=True, align=self.opt.get('align', 1), pads=pads, hoist=hoist)
        body += '.p2align 12\n    s_endpgm\n'
        ref = open('cdna_kernels/' + NAME + '.s.ref').read().split('\n')
        head = [l for l in ref if l.startswith(';') and '@launch' not in l and 'Override' not in l and 'grid=ceil' not in l]
        txt = '\n'.join(head) + '\n'
        txt += '; One persistent launch: kv/transposition -> Toeplitz-MFMA long conv -> gate/up GEMM + GEGLU -> down GEMM.\n'
        txt += '; @launch grid=(256,1,1) block=(256,1,1) lds=163840\n'
        txt += f'''.amdgcn_target "amdgcn-amd-amdhsa--gfx950"
.text
{front}.globl {NAME}_kernel
.p2align 8
.type {NAME}_kernel,@function
{NAME}_kernel:
{body}.section .rodata,"a"
.p2align 6
.amdhsa_kernel {NAME}_kernel
  .amdhsa_next_free_vgpr 512
  .amdhsa_next_free_sgpr 102
  .amdhsa_accum_offset 256
  .amdhsa_group_segment_fixed_size 0
  .amdhsa_kernarg_size 104
  .amdhsa_user_sgpr_count 2
  .amdhsa_user_sgpr_kernarg_segment_ptr 1
  .amdhsa_system_sgpr_workgroup_id_x 1
  .amdhsa_float_denorm_mode_32 3
.end_amdhsa_kernel
'''
        return txt


if __name__ == '__main__':
    out = sys.argv[1]
    diag = 'diag' in sys.argv[2:]
    opt = {}
    for x in sys.argv[2:]:
        if '=' in x:
            k, v = x.split('=')
            try:
                v = int(v)
            except ValueError:
                try:
                    v = float(v)
                except ValueError:
                    pass
            opt[k] = v
    open(out, 'w').write(Gen(diag, opt).build())
```

```python
import struct
import sys
from asmlib import Asm, vr, ar, sr

NAME = 'sequential_preLN__ssm_conv_h3__geglu_ffn__prompt'

MB = 1 << 20
QS = 16384
CNT = 0
CF3 = 16384
PROBE = 32768
ST1 = 49152
CSF = 65536
STAMP = 98304
PST = 131072
W45F = PST + 262144
WDF = 2 * MB
KVX, KVXT = 4 * MB, 8 * MB
KVM = 36 * MB
XP4, XP4T = 12 * MB, 8 * MB + 524288
HP4, HP4T = 16 * MB, 9 * MB
ACT = 20 * MB
WS_END = 40 * MB
C_F1, C_F1B, C_FX, C_FW, C_FXR, C_B1, C_B2, C_FWR = [4 * i for i in range(8)]


def grp_base(g, main, tail):
    return (main + (g & 3) * 524288 + (g >> 2) * 8192) if g < 8 else tail + (g - 8) * 8192


SPIN = 100000

S_W = 3
S_K, S_V, S_SH, S_SK, S_X, S_WG, S_WU, S_WD, S_OUT, S_DBG, S_WS = 4, 8, 12, 16, 20, 24, 28, 32, 36, 40, 44
S_D = 48
sX, sJ, sG, sM, sQ, sRB, sCB, sA, sB, sRot = 50, 51, 52, 53, 54, 55, 56, 57, 58, 59
sT0, sT1, sT2, sT3, sT4, sT5, sT6, sT7 = 60, 61, 62, 63, 64, 65, 66, 67
sWoff, sWoff2, sSpin, sDv = 68, 69, 70, 71
sOne, sU0, sU1, sU2 = 72, 73, 74, 75
sXo = 1
sRet = 48
NPAD = 8
S_STAMP = 76
NSTAMP = 13
sAB = 4
sL = [8, 9, 10, 11]
sPL, sPH, sFW, sSide, sArr = 16, 17, 18, 19, 23
sE = [None, 12, 13, 14]

GSTR = 4128
GOFF, UOFF, ZOFF = 16384, 33024, 32768
TILE = 40960
WS = sr(S_WS, 4)


def f32(x):
    return '0x%08x' % struct.unpack('<I', struct.pack('<f', x))[0]


class Gen:
    def __init__(self, diag=False, opt=None):
        self.a = Asm()
        self.diag = diag
        self.opt = dict(place=1, w_kv=0, w_e1=8, apoll=9, w_u=0, tb_pre=0, tb_mid=4, ssm=0, sp=31, defer=0, wdp_from=24, a_ahead=12, sig='v', epi_rate=4.5,
                        fx_it=3, early_n=0, out_sc1=1, pads=1, wd_pre=20, wd_post=4, l2=10, wd_p1=11, chkb=20, sigc=39, ssig=4, ldc=24, chkc=38, wd_pre1=8, arr='s')
        if opt:
            self.opt.update(opt)
        self.cold = []

    PROF = {
        'main': [0, 1, 2, 3, 4, 5, 6, 7, 8, 9, 10, 11, 12],
        'front': [0, 'karg', 'issued', 1, 'kvdone', 2, 'tbpre', 'drained', 3, 'tbpost', 4, 'uload', 5],
        'e2': [0, 6, 'zbar', 7, 'hbar', 'hissued', 'hdrained', 'hbar2', 'arrived', 'wwritten', 'polled', 8, 'a0'],
        'g1': [0, 8, 'a0', 'p8', 'p16', 'p24', 'p32', 9, 't3', 't4', 't5', 10, 12],
        'g2a': [0, 't5', 10, 'm4', 'prechk1', 'chk1', 'm24', 'presig2', 'sig2', 'm44', 'm64', 'endA', 'm84'],
        'sum': [0, 'x1', 'x2', 'x3', 'x4', 'x5', 'x6', 7, 8, 'x9', 'x10', 'x11', 12],
        'side': [0, 'sx_in', 'sx_issued', 'sx_data', 'sx_bar', 'sx_st', 'sx_ld2', 'sx_dr', 1, 2, 6, 7, 8],
        'loop': [0, 4, 5, 'it1', 'it2', 'it3', 'it4', 'it5', 'it6', 'it7', 6, 7, 8],
        'g1b': [0, 9, 'q10', 'q20', 't3', 'presig0', 'sig0', 't4', 'prechk0', 'chk0', 'presig1', 'sig1', 't5'],
        'g2': [0, 't5', 10, 'chkb', 'sigc', 'endA', 'chkc0', 11, 'endB', 'endC', 'redbar', 'outst', 12],
    }

    def nt(self, bit):
        return ' ' + self.opt.get('ntw', 'nt') if self.opt.get('nt', 30) >> bit & 1 else ''

    def stamp(self, i):
        prof = self.PROF[self.opt.get('prof', 'main')]
        if self.diag and i in prof:
            i = prof.index(i)
            self.a(f'{"s_memtime" if self.opt.get("cyc") else "s_memrealtime"} {sr(S_STAMP + 2 * i, 2)}')

    def spin_atomic(self, soff, target, depth, vt):
        a = self.a
        top, done = a.label('spin'), a.label('done')
        with a.untracked():
            a(f's_mov_b32 s{sSpin}, {SPIN}')
            for d in range(depth - 1):
                a(f'v_mov_b32 v{vt + d}, 0')
                a(f'buffer_atomic_add v{vt + d}, off, {WS}, {soff} sc0 sc1')
                a(f's_sleep {self.opt.get("pslp", 3)}')
            a(f'{top}:')
            for d in range(depth):
                n = (d + depth - 1) % depth
                a(f'v_mov_b32 v{vt + n}, 0')
                a(f'buffer_atomic_add v{vt + n}, off, {WS}, {soff} sc0 sc1')
                a(f's_waitcnt vmcnt({depth - 1})')
                a(f'v_readfirstlane_b32 s{sT7}, v{vt + d}')
                a(f's_cmp_ge_u32 s{sT7}, {target}')
                a(f's_cbranch_scc1 {done}')
            a(f's_sub_u32 s{sSpin}, s{sSpin}, 1')
            a(f's_cbranch_scc0 {top}')
            a(f'{done}:')

    def spin(self, srd, soff, target, vt):
        a = self.a
        top, done = a.label('spin'), a.label('done')
        with a.untracked():
            a(f's_mov_b32 s{sSpin}, {SPIN}')
            a(f'{top}:')
            a(f'buffer_load_dword v{vt}, off, {sr(srd, 4)}, {soff} sc1')
            a('s_waitcnt vmcnt(0)')
            a(f'v_readfirstlane_b32 s{sT7}, v{vt}')
            a(f's_sub_u32 s{sSpin}, s{sSpin}, 1')
            a(f's_cbranch_scc1 {done}')
            a(f's_cmp_lt_u32 s{sT7}, {target}')
            a(f's_cbranch_scc1 {top}')
            a(f'{done}:')

    def check(self, srd, soff, target, vt, sreg=None):
        a = self.a
        slow, back = a.label('slow'), a.label('back')
        a(f'v_readfirstlane_b32 s{sT7}, v{vt}' if sreg is None else f's_mov_b32 s{sT7}, s{sreg}')
        a(f's_cmp_lt_u32 s{sT7}, {target}')
        a(f's_cbranch_scc1 {slow}')
        a(f'{back}:')

        def cold():
            a(f'{slow}:')
            self.spin(srd, soff, target, vt)
            a(f's_branch {back}')
        self.cold.append(cold)

    def get_pol(self, vt):
        a = self.a
        self.check(S_DBG, '0 offset:128', 1, vt, sU0)
        a(f's_and_b32 s0, s{sT7}, 2')
        a('s_lshl_b32 s0, s0, 20')
        a(f's_add_u32 s{S_WS}, s{S_WS}, s0')
        a(f's_addc_u32 s{S_WS + 1}, s{S_WS + 1}, 0')

    def wave0(self):
        g = self

        class W:
            def __enter__(s):
                s.l = g.a.label('nw0')
                g.a(f's_cmp_lg_u32 s{S_W}, 0')
                g.a(f's_cbranch_scc1 {s.l}')
                s.u = g.a.untracked()
                s.u.__enter__()
                g.a('s_mov_b64 exec, 1')

            def __exit__(s, *x):
                g.a('s_mov_b64 exec, -1')
                s.u.__exit__()
                g.a(f'{s.l}:')
        return W()

    def warm(self, sets):
        if not self.opt['pads']:
            return
        a = self.a
        for w, ks in enumerate(sets):
            if not ks:
                continue
            l = a.label('nw')
            a(f's_cmp_lg_u32 s{S_W}, {w + 1}')
            a(f's_cbranch_scc1 {l}')
            for k in ks:
                a(f's_call_b64 {sr(sRet, 2)}, .Lpad_{k}')
            a(f'{l}:')

    def arrive_start(self, items, pre=None):
        a = self.a
        l = a.label('noarr')
        for r, _ in items:
            a(f's_mov_b32 s{r}, 1')
        a(f's_cmp_lg_u32 s{S_W}, 0')
        a(f's_cbranch_scc1 {l}')
        with a.untracked():
            if pre:
                pre()
            for r, line in items:
                a(f's_atomic_add s{r}, {sr(S_WS, 2)}, s{sXo} offset:{line * 256} glc')
        a(f'{l}:')

    def arrive_finish(self, items, vt):
        a = self.a
        a('s_waitcnt lgkmcnt(0)')
        for r, last, rep in items:
            l = a.label('notlast')
            a(f's_cmp_lg_u32 s{r}, {last}')
            a(f's_cbranch_scc1 {l}')
            with a.untracked():
                a('s_mov_b32 exec_lo, 15')
                a('s_mov_b32 exec_hi, 15')
                a(f'v_lshlrev_b32 v{vt}, 8, v0')
                a(f's_mov_b32 s{sT7}, {rep * 256}')
                a(f'buffer_atomic_add v{self.vOne}, v{vt}, {WS}, s{sT7} offen sc1')
                a('s_mov_b64 exec, -1')
            a(f'{l}:')

    def prologue(self):
        a = self.a
        a('s_cmp_ge_u32 s2, 0x100')
        a('s_cbranch_scc1 .Lend')
        self.stamp(0)
        for srd, off in ((S_K, 8), (S_WS, 96), (S_V, 16), (S_SH, 24), (S_SK, 32), (S_X, 0), (S_WG, 56), (S_WU, 64),
                         (S_WD, 72), (S_OUT, 80), (S_DBG, 88), (S_D, 40)):
            a(f's_load_dwordx2 {sr(srd, 2)}, s[0:1], {off}')
        a('v_lshrrev_b32 v1, 6, v0')
        a(f's_and_b32 s{sX}, s2, 7')
        a(f's_lshr_b32 s{sJ}, s2, 3')
        a(f'v_readfirstlane_b32 s{S_W}, v1')
        a('v_mov_b32 v1, v0')
        a('v_and_b32 v0, 63, v0')
        for srd, n in ((S_K, 2621440), (S_V, 2621440), (S_SH, 5120), (S_SK, 4096), (S_X, 2621440), (S_WG, 1966080),
                       (S_WU, 1966080), (S_WD, 1966080), (S_OUT, 2621440), (S_DBG, 256), (S_WS, WS_END)):
            a(f's_mov_b32 s{srd + 2}, {n}')
            a(f's_mov_b32 s{srd + 3}, 0x20000')
        a(f's_and_b32 s{sM}, s{sJ}, 15')
        a(f's_mov_b32 s{sG}, s{sX}')
        a(f's_cmp_lt_u32 s{sJ}, 16')
        a.snapshot('role')
        a('s_cbranch_scc1 .Lconv')
        a(f's_lshr_b32 s{sG}, s{sX}, 2')
        a(f's_add_u32 s{sG}, s{sG}, 8')
        a(f's_and_b32 s{sT0}, s{sX}, 3')
        a(f's_lshl2_add_u32 s{sM}, s{sT0}, s{sM}')
        a(f's_cmp_lt_u32 s{sJ}, 20')
        a('s_cbranch_scc1 .Lconv')
        with a.untracked():
            a(f's_cmp_lg_u32 s2, {self.opt.get("initwg", 210)}')
            a('s_cbranch_scc1 .Lnoinit')
            a('v_lshrrev_b32 v2, 3, v1')
            a('v_and_b32 v3, 7, v0')
            a('v_lshlrev_b32 v3, 4, v3')
            a('v_lshl_add_u32 v2, v2, 8, v3')
            for i in range(4):
                a(f'v_mov_b32 v{4 + i}, 0')
            a('s_waitcnt lgkmcnt(0)')
            a.fresh()
            a(f'buffer_store_dwordx4 v[4:7], v2, {WS}, 0 offen sc1')
            for off in (0x2000, 2 * MB, 2 * MB + 0x2000):
                a(f's_mov_b32 s{sT0}, {off}')
                a(f'buffer_store_dwordx4 v[4:7], v2, {WS}, s{sT0} offen sc1')
            a('v_mov_b32 v3, 1')
            a('s_waitcnt vmcnt(0)')
            a('s_barrier')
            a(f's_cmp_lg_u32 s{S_W}, 0')
            a('s_cbranch_scc1 .Lside')
            a('s_mov_b64 exec, 1')
            a(f'buffer_store_dword v3, off, {sr(S_DBG, 4)}, 0 sc1')
            a('s_mov_b64 exec, -1')
            a('s_branch .Lside')
            a('.Lnoinit:')
            a(f's_cmp_lg_u32 s2, {self.opt.get("polwg", 218)}')
            a('s_cbranch_scc1 .Lnopol')
            a(f's_and_b32 s{sT1}, s{S_W}, 1')
            a(f's_lshl_b32 s{sT0}, s{sT1}, 13')
            a(f's_lshl_b32 s{sT2}, s{S_W}, 8')
            a(f's_add_u32 s{sT0}, s{sT0}, s{sT2}')
            a(f's_add_u32 s{sT0}, s{sT0}, {PROBE}')
            if 'fpol' in self.opt:
                a(f's_mov_b32 s{sT1}, {self.opt["fpol"]}')
            a(f's_add_u32 s{sT1}, s{sT1}, 1')
            a(f'v_mov_b32 v4, s{sT1}')
            a('v_mov_b32 v5, 0')
            a('v_lshlrev_b32 v2, 2, v0')
            a('s_waitcnt lgkmcnt(0)')
            wu = self.opt.get('pwarm', 1)
            if wu == 1:
                a(f'buffer_store_dword v5, v2, {WS}, s{sT0} offen sc1')
                a('s_waitcnt vmcnt(0)')
            a('s_mov_b64 exec, 1')
            for i in range(0 if wu == 2 else 1, 1 + self.opt.get('hops', 1)):
                if i == 1:
                    a('s_barrier')
                a(f's_mov_b32 s{sT3}, 0')
                a(f's_atomic_add s{sT3}, {sr(S_WS, 2)}, s{sT0} glc')
                a('s_waitcnt lgkmcnt(0)')
            a(f'buffer_atomic_cmpswap v[4:5], off, {sr(S_DBG, 4)}, 0 offset:128 sc1')
            a('s_mov_b64 exec, -1')
            a('s_branch .Lside')
            a('.Lnopol:')
            if self.opt.get('cpf', 1):
                a(f's_getpc_b64 {sr(sT0, 2)}')
                a('.Lpc:')
                a(f's_and_b32 s{sT2}, s{sJ}, 3')
                a(f's_lshl2_add_u32 s{sT2}, s{sT2}, s{S_W}')
                a(f's_mul_i32 s{sT2}, s{sT2}, {18 * 128}')
                a('v_min_u32 v2, 17, v0')
                a(f'v_lshl_add_u32 v2, v2, 7, s{sT2}')
                a('v_min_u32 v2, .Lcode_end-.Lpc-4, v2')
                a('v_mov_b32 v3, 0')
                a(f'v_lshl_add_u64 v[4:5], v[2:3], 0, {sr(sT0, 2)}')
                a('global_load_dword a253, v[4:5], off')
            a('s_branch .Lside')
        a('.Lconv:')
        a.fresh('role')

    def gemm_ids(self):
        a = self.a
        a.need(sr(S_WS, 2))
        a(f's_lshr_b32 s{sT0}, s{sX}, 2')
        a(f's_lshl_b32 s{sT0}, s{sT0}, 5')
        a(f's_and_b32 s{sXo}, s{sX}, 3')
        a(f's_add_u32 s{sXo}, s{sXo}, s{sT0}')
        a(f's_lshl_b32 s{sXo}, s{sXo}, 8')
        a(f's_lshr_b32 s{sRB}, s{sX}, 2')
        a(f's_lshr_b32 s{sT0}, s{sJ}, 2')
        a(f's_lshl3_add_u32 s{sRB}, s{sRB}, s{sT0}')
        a(f's_and_b32 s{sRot}, s{sX}, 3')
        a(f's_and_b32 s{sT0}, s{sJ}, 3')
        a(f's_lshl2_add_u32 s{sCB}, s{sRot}, s{sT0}')
        a(f's_and_b32 s{sT0}, s{sCB}, 1')
        a(f's_mul_i32 s{sA}, s{sCB}, 6')
        a(f's_add_u32 s{sB}, s{sA}, 4')
        a(f's_lshl1_add_u32 s{sA}, s{sT0}, s{sA}')
        a(f's_lshl_b32 s{sT1}, s{sT0}, 2')
        a(f's_sub_u32 s{sB}, s{sB}, s{sT1}')

    vWL, vWLb, vW45, vTmp, vTmp2, vOne, vPS = 254, 253, 252, 250, 249, 248, 251
    WRAW = [8, 40, 72, 104, 136]
    vWW = [232, 233, 234, 243]
    PT = 200

    def real_line(self, r, tmp):
        a = self.a
        if not self.opt.get('swz', 1):
            return
        a(f's_sub_u32 s{tmp}, s{r}, 3')
        a(f's_cmp_lt_u32 s{tmp}, 2')
        a(f's_cselect_b32 s{tmp}, 7, 0')
        a(f's_xor_b32 s{r}, s{r}, s{tmp}')
        a(f's_sub_u32 s{tmp}, s{r}, 10')
        a(f's_cmp_lt_u32 s{tmp}, 2')
        a(f's_cselect_b32 s{tmp}, 1, 0')
        a(f's_xor_b32 s{r}, s{r}, s{tmp}')

    def w_addr(self):
        a = self.a
        t = self.vTmp
        a(f's_lshr_b32 s{sT1}, s{sA}, 2')
        self.real_line(sT1, sT0)
        a(f's_lshl_b32 s{sT1}, s{sT1}, 7')
        a(f'v_and_b32 v{t}, 7, v0')
        a(f'v_lshl_add_u32 v{self.vWLb}, v{t}, 4, s{sT1}')
        a(f's_lshr_b32 s{sT0}, s{S_W}, 1')
        a(f's_lshl_b32 s{sT0}, s{sT0}, 6')
        a(f's_mul_i32 s{sWoff}, s{sRot}, 160')
        a(f's_add_u32 s{sWoff}, s{sWoff}, s{sT0}')
        a(f's_mul_i32 s{sT0}, s{sCB}, {80 * 1024}')
        a(f's_add_u32 s{sT0}, s{sT0}, {W45F}')
        a(f'v_lshl_add_u32 v{self.vW45}, v0, 4, s{sT0}')
        a(f's_mul_i32 s{sWoff2}, s{sRot}, 10')
        a(f's_add_u32 s{sWoff2}, s{sWoff2}, s{S_W}')
        a(f's_lshl_b32 s{sWoff2}, s{sWoff2}, 10')
        a(f'v_mov_b32 v{self.vOne}, 1')
        a(f's_and_b32 s{sT0}, s{sRB}, 7')
        a(f's_lshr_b32 s{sT1}, s{S_W}, 1')
        a(f's_lshl1_add_u32 s{sT0}, s{sT0}, s{sT1}')
        a(f's_lshr_b32 s{sT1}, s{sRB}, 3')
        a(f's_lshl1_add_u32 s{sT0}, s{sT0}, s{sT1}')
        a(f's_and_b32 s{sT1}, s{S_W}, 1')
        a(f's_lshl1_add_u32 s{sT0}, s{sT0}, s{sT1}')
        a(f's_lshl_b32 s{sT0}, s{sT0}, 12')
        a(f'v_and_b32 v{t}, 31, v0')
        a(f'v_lshl_add_u32 v{self.vPS}, v{t}, 3, s{sT0}')
        a(f'v_lshrrev_b32 v{t}, 5, v0')
        a(f'v_lshl_add_u32 v{self.vPS}, v{t}, 11, v{self.vPS}')

    def w_select(self):
        a = self.a
        a(f's_bitcmp1_b32 s{S_W}, 0')
        a(f's_cselect_b32 s{S_WG}, s{S_WU}, s{S_WG}')
        a(f's_cselect_b32 s{S_WG + 1}, s{S_WU + 1}, s{S_WG + 1}')
        for i in range(1, 4):
            a(f's_movk_i32 s{sE[i]}, {6144 * i}')
        a(f's_movk_i32 s15, 3072')

    def clear_pst(self, v2):
        return [f'v_mov_b32 v{v2}, -1', f'v_mov_b32 v{v2 + 1}, -1',
                f's_lshl_b32 s{sU0}, s{sCB}, 8', f's_add_u32 s{sU0}, s{sU0}, {PST}',
                ['s_mov_b32 exec_hi, 0',
                 f'buffer_store_dwordx2 {vr(v2, 2)}, v{self.vPS}, {WS}, s{sU0} offen sc1',
                 's_mov_b32 exec_hi, -1']]

    def w_loads_main(self, park=False):
        out = []
        t, t2 = self.vTmp, self.vTmp2
        for b in range(5):
            for e in range(8):
                g = []
                if e == 0:
                    g = [f'v_and_b32 v{t}, 56, v0', f'v_add_u32 v{t}, s{sWoff}, v{t}', f'v_subrev_u32 v{t2}, 640, v{t}',
                         f'v_min_u32 v{t}, v{t}, v{t2}', f'v_mad_u32_u24 v{self.vWL}, v{t}, s15, v{self.vWLb}',
                         f's_add_u32 s{sWoff}, s{sWoff}, 128']
                so = f's{sE[e >> 1]}' if e >> 1 else '0'
                dst = vr(self.WRAW[b] + 4 * e, 4)
                if b == 4 and park:
                    dst = ar(208 + 4 * e, 4) if park == 1 else vr(self.WRAW[0] + 4 * e, 4)
                g.append(f'buffer_load_dwordx4 {dst}, v{self.vWL}, {sr(S_WG, 4)}, {so} offen offset:{3072 * (e & 1)}')
                out.append(g)
        return out

    def w_loads_tail(self):
        out = []
        for i in range(20):
            if i & 1:
                g = [f's_add_u32 s{sU1}, s{sWoff2}, {TILE}',
                     f'buffer_load_dwordx4 {ar(160 + 4 * i, 4)}, v{self.vW45}, {WS}, s{sU1} offen sc1']
            else:
                g = []
                if i:
                    g = [f's_add_u32 s{sWoff2}, s{sWoff2}, 4096',
                         [f's_sub_u32 s{sU1}, s{sWoff2}, {TILE}', f's_cselect_b32 s{sWoff2}, s{sWoff2}, s{sU1}']]
                g.append(f'buffer_load_dwordx4 {ar(160 + 4 * i, 4)}, v{self.vW45}, {WS}, s{sWoff2} offen sc1')
            out.append(g)
        return out

    def w_write_addr(self):
        a = self.a
        t, t2 = self.vTmp, self.vTmp2
        a(f's_lshr_b32 s{sT0}, s{S_W}, 1')
        a(f's_lshl_b32 s{sT0}, s{sT0}, 12')
        a(f's_and_b32 s{sT1}, s{S_W}, 1')
        a(f's_lshl_b32 s{sT1}, s{sT1}, 7')
        a(f's_add_u32 s{sT0}, s{sT0}, s{sT1}')
        a(f'v_lshrrev_b32 v{t}, 3, v0')
        a(f'v_lshl_add_u32 v{t}, v{t}, 9, s{sT0}')
        a(f'v_and_b32 v{t2}, 1, v0')
        a(f'v_lshl_add_u32 v{t}, v{t2}, 6, v{t}')
        a(f'v_bfe_u32 v{t2}, v0, 1, 2')
        a(f's_mov_b32 s{sT0}, {TILE + 16}')
        a(f'v_mad_u32_u24 v{self.vWW[0]}, v{t2}, s{sT0}, v{t}')
        for q in range(1, 4):
            a(f'v_xor_b32 v{self.vWW[q]}, {16 * q}, v{self.vWW[0]}')
        a(f's_mov_b32 s{sPL}, 0x05040100')
        a(f's_mov_b32 s{sPH}, 0x07060302')

    def w_writes_main(self, b4=None):
        out = []
        for b in range(5):
            for c8 in range(8):
                p = self.PT + 4 * (c8 & 3) if b < 5 - self.opt.get('defer', 2) else (228 if c8 & 1 else 242)
                r = (b4 if b == 4 and b4 else self.WRAW[b]) + (c8 >> 1)
                g = [f'v_perm_b32 v{p + d}, v{r + 8 * d + 4}, v{r + 8 * d}, s{sPH if c8 & 1 else sPL}' for d in range(4)]
                g.append(f'ds_write_b128 v{self.vWW[c8 & 3]}, {vr(p, 4)} offset:{b * 8192 + (c8 >> 2) * 256}')
                out.append(g)
        return out

    def conv(self):
        a = self.a
        o = self.opt
        vK, vKh, vC, vR, vSHa, vL16 = 1, 2, 3, 4, 5, 6
        SH = 8
        KR = 16
        VR = 38
        WF = 56
        KF = 72
        O = 120
        SK = 136
        KV = 168
        VF = 200
        vSW, vSR, vKS, vG, vBa, vAa, vZR, vZR2, vUL, vUW, vI7, vGZ, vXS, vHS, vFl, vPrev = range(232, 248)
        ZERO, AD = 224, 240
        vAa2 = vZR2
        kvmix = 0
        a(f's_lshl4_add_u32 s{sQ}, s{sG}, s{sM}')
        a(f'v_and_b32 v{vC}, 15, v0')
        a(f'v_lshrrev_b32 v{vR}, 4, v0')
        a(f's_lshl2_add_u32 s{sT0}, s{sM}, s{S_W}')
        a(f's_mul_i32 s{sT0}, s{sT0}, {32 * 1280}')
        a(f's_lshl_b32 s{sT1}, s{sG}, 7')
        a(f's_add_u32 s{sT0}, s{sT0}, s{sT1}')
        a(f's_movk_i32 s{sT2}, {8 * 1280}')
        a(f'v_lshl_add_u32 v{vK}, v{vC}, 3, s{sT0}')
        a(f'v_mad_u32_u24 v{vK}, v{vR}, s{sT2}, v{vK}')
        a(f'v_subrev_u32 v{vKh}, 3840, v{vK}')
        a(f's_lshl_b32 s{sT1}, s{sG}, 9')
        a(f'v_lshl_add_u32 v{vSHa}, v{vC}, 5, s{sT1}')
        a(f's_movk_i32 s{sT3}, 5120')
        a(f'v_lshlrev_b32 v{vL16}, 4, v0')

        def addr_phase_a():
            a(f'v_subrev_u32 v{vPrev}, 8, v{vL16}')
            a(f's_mul_i32 s{sT0}, s{S_W}, {TILE}')
            a(f's_add_u32 s{sT0}, s{sT0}, {UOFF}')
            a(f's_movk_i32 s{sT1}, 272')
            a(f'v_lshl_add_u32 v{vSW}, v{vR}, 4, s{sT0}')
            a(f'v_mad_u32_u24 v{vSW}, v{vC}, s{sT1}, v{vSW}')
            a(f'v_lshl_add_u32 v{vSR}, v{vC}, 4, s{sT0}')
            a(f'v_mad_u32_u24 v{vSR}, v{vR}, s{sT1}, v{vSR}')
            a(f'v_add_u32 v{vUW}, s{sT0}, v{vL16}')
            a(f's_add_u32 s{sT0}, s{sT0}, 32')
            a(f'v_lshl_add_u32 v{vBa}, v{vC}, 5, s{sT0}')
            a(f'v_lshl_add_u32 v{vBa}, v{vR}, 4, v{vBa}')
            a(f's_and_b32 s{sT0}, s{sG}, 3')
            a(f's_lshl_b32 s{sT0}, s{sT0}, 19')
            a(f's_cmp_lt_u32 s{sG}, 8')
            a(f's_cselect_b32 s{sT4}, s{sT0}, {KVXT - KVX}')
            a(f's_lshr_b32 s{sT0}, s{sX}, 2')
            a(f's_lshl_b32 s{sT0}, s{sT0}, 13')
            a(f's_add_u32 s{sT4}, s{sT4}, s{sT0}')
            a(f's_and_b32 s{sT0}, s{sM}, 8')
            a(f's_add_u32 s{sT0}, s{sT0}, s{sM}')
            a(f's_lshl2_add_u32 s{sT1}, s{sT0}, s{S_W}')
            a(f's_lshl_b32 s{sT1}, s{sT1}, 8')
            a(f's_add_u32 s{sT0}, s{sT4}, s{sT1}')
            a(f's_mov_b32 s{sT1}, {2 * QS}')
            if kvmix:
                a(f's_lshl2_add_u32 s{sT1}, s{sM}, s{S_W}')
                a(f's_lshl_b32 s{sT1}, s{sT1}, 8')
                a(f's_lshl_b32 s{sT0}, s{sG}, 18')
                a(f's_add_u32 s{sT0}, s{sT0}, s{sT1}')
                a(f's_mov_b32 s{sT1}, {QS}')
            a(f'v_lshl_add_u32 v{vKS}, v{vC}, 4, s{sT0}')
            a(f'v_mad_u32_u24 v{vKS}, v{vR}, s{sT1}, v{vKS}')

        def addr_rest():
            self.gemm_ids()
            self.w_addr()
            a(f's_mul_i32 s{sT5}, s{S_W}, {TILE}')
            a(f's_add_u32 s{sT5}, s{sT5}, {GOFF}')
            a(f'v_add_u32 v{vG}, s{sT5}, v{vL16}')
            a(f'v_bfe_u32 v{vAa}, v0, 2, 2')
            a(f'v_sub_u32 v{vAa}, v{vAa}, v{vR}')
            a(f'v_sub_u32 v{vAa}, v{vAa}, v{vR}')
            a(f's_add_u32 s{sT0}, s{sT5}, 56')
            a(f'v_lshl_add_u32 v{vAa}, v{vAa}, 3, s{sT0}')
            a(f'v_and_b32 v{vI7}, 3, v0')
            a(f's_movk_i32 s{sT1}, {GSTR}')
            a(f'v_mad_u32_u24 v{vAa}, v{vI7}, s{sT1}, v{vAa}')
            a(f'v_add_u32 v{vAa2}, 0x800, v{vAa}')
            a(f'v_and_b32 v{vGZ}, 16, v0')
            a(f'v_add_u32 v{vGZ}, s{sT5}, v{vGZ}')
            a(f'v_mad_u32_u24 v{vGZ}, v{vI7}, s{sT1}, v{vGZ}')
            a(f'v_and_b32 v{vI7}, 7, v0')
            a(f's_lshl_b32 s{sT6}, s{sM}, 15')
            a(f's_add_u32 s{sT6}, s{sT6}, s{sT4}')
            a(f's_lshl_b32 s{sT1}, s{S_W}, 6')
            a(f's_add_u32 s{sT0}, s{sT6}, s{sT1}')
            if kvmix:
                a(f's_lshl_b32 s{sT0}, s{sQ}, 14')
                a(f's_add_u32 s{sT0}, s{sT0}, s{sT1}')
            a(f'v_and_b32 v{vUL}, 3, v0')
            a(f'v_lshl_add_u32 v{vUL}, v{vUL}, 4, s{sT0}')
            a(f'v_lshrrev_b32 v{vXS}, 2, v0')
            a(f'v_lshl_add_u32 v{vUL}, v{vXS}, 8, v{vUL}')
            a(f's_lshl_b32 s{sT0}, s{S_W}, 12')
            a(f'v_add_u32 v{vXS}, s{sT0}, v{vL16}')
            a(f's_lshl_b32 s{sT1}, s{sQ}, 14')
            a(f's_add_u32 s{sT0}, s{sT0}, s{sT1}')
            a(f's_mov_b32 s{sT1}, {HP4}')
            a(f's_cmp_lt_u32 s{sQ}, 120')
            a(f's_cselect_b32 s{sT1}, s{sT1}, {HP4T - 120 * QS}')
            a(f's_add_u32 s{sT0}, s{sT0}, s{sT1}')
            a(f'v_add_u32 v{vHS}, s{sT0}, v{vL16}')
            a(f's_lshl_b32 s{sT0}, s{S_W}, 11')
            a(f's_add_u32 s{sT0}, s{sT0}, {ZOFF}')
            a(f'v_add_u32 v{vZR}, s{sT0}, v{vL16}')
            for i in range(4):
                a(f'v_mov_b32 v{ZERO + i}, 0')
        if o.get('addr_early', 0) >= 1:
            addr_phase_a()
        if o.get('addr_early', 0) >= 2:
            addr_rest()
        a.need(sr(S_WS, 2))
        self.stamp('karg')
        a(f'buffer_load_dwordx4 {vr(SH, 4)}, v{vSHa}, {sr(S_SH, 4)}, 0 offen')
        a(f'buffer_load_dwordx4 {vr(SH + 4, 4)}, v{vSHa}, {sr(S_SH, 4)}, 0 offen offset:16')
        for r in range(3):
            a(f'buffer_load_dwordx2 {vr(KR + 2 * r, 2)}, v{vKh}, {sr(S_K, 4)}, 0 offen offset:{r * 1280}{self.nt(6)}')
        for r in range(8):
            so = f's{sT3}' if r >= 4 else '0'
            a(f'buffer_load_dwordx2 {vr(KR + 6 + 2 * r, 2)}, v{vK}, {sr(S_K, 4)}, {so} offen offset:{(r & 3) * 1280}{self.nt(0 if r < 5 else 6)}')
            a(f'buffer_load_dwordx2 {vr(VR + 2 * r, 2)}, v{vK}, {sr(S_V, 4)}, {so} offen offset:{(r & 3) * 1280}{self.nt(1)}')
        self.stamp('issued')
        if o.get('tlb'):
            a(f'v_lshlrev_b32 v228, {o["tlb"]}, v0')
            a(f'buffer_load_dword v229, v228, {WS}, 0 offen sc1')
            a(f'buffer_load_dword v228, v228, {sr(S_OUT, 4)}, 0 offen sc1')
        if o.get('addr_early', 0) < 1:
            addr_phase_a()
        if o.get('addr_early', 0) < 2:
            addr_rest()
        a(f's_lshl2_add_u32 s{sT0}, s{sQ}, s{S_W}')
        a(f's_lshl_b32 s{sT1}, s{sT0}, 12')
        a(f's_add_u32 s{S_SK}, s{S_SK}, s{sT1}')
        a(f's_addc_u32 s{S_SK + 1}, s{S_SK + 1}, 0')
        a(f's_lshl_b32 s{sT0}, s{sT0}, 1')
        a(f's_and_b32 s{sT0}, s{sT0}, -4')
        a(f's_load_dword s{sDv}, {sr(S_D, 2)}, s{sT0}')
        ssm = []
        for j in range(4):
            ssm.append(f'buffer_load_dwordx4 {vr(SK + 8 * j + 4, 4)}, v{vL16}, {sr(S_SK, 4)}, 0 offen offset:{1024 * j}{self.nt(2)}')
            if j == 0:
                ssm.append(f'buffer_load_dwordx2 {vr(SK + 2, 2)}, v{vPrev}, {sr(S_SK, 4)}, 0 offen')
            else:
                ssm.append(f'buffer_load_dwordx2 {vr(SK + 8 * j + 2, 2)}, v{vL16}, {sr(S_SK, 4)}, 0 offen offset:{1024 * j - 8}')
        if o.get('ssm', 1) == 0:
            a(ssm)
        self.w_select()
        self.warm([[[0], [], []], [[0], [1], []], [[0], [1], [2]]][o.get('warm0', 0)])
        park = o.get('park', 2)
        assert park < 2 or o['w_kv'] + o['w_e1'] + o['w_u'] >= 8
        wl = self.w_loads_main(park)

        def w_some(n):
            for _ in range(n):
                a(wl.pop(0))
        a(f's_mov_b32 s{sT2}, 0xffff0000')
        for ch in range(4):
            for j in range(4):
                src = SH + 2 * ch + (j >> 1)
                if j & 1:
                    a(f'v_and_b32 v{WF + 4 * j + ch}, s{sT2}, v{src}')
                else:
                    a(f'v_lshlrev_b32 v{WF + 4 * j + ch}, 16, v{src}')

        def unpack(dst, src):
            a(f'v_lshlrev_b32 v{dst}, 16, v{src}')
            a(f'v_and_b32 v{dst + 1}, s{sT2}, v{src}')
            a(f'v_lshlrev_b32 v{dst + 2}, 16, v{src + 1}')
            a(f'v_and_b32 v{dst + 3}, s{sT2}, v{src + 1}')
        for r in range(3):
            unpack(KF + 4 * r, KR + 2 * r)
        self.stamp(1)
        for r in range(8):
            unpack(KF + 4 * (r + 3), KR + 2 * (r + 3))
            vf = VF + 4 * (r & 1)
            for j in (3, 2, 1, 0):
                for p in range(2):
                    d = vr(KV + 4 * r + 2 * p, 2)
                    k = vr(KF + 4 * (r + 3 - j) + 2 * p, 2)
                    w = vr(WF + 4 * j + 2 * p, 2)
                    if j == 3:
                        a(f'v_pk_mul_f32 {d}, {k}, {w}')
                    else:
                        a(f'v_pk_fma_f32 {d}, {k}, {w}, {d}')
                if j == 3:
                    unpack(vf, VR + 2 * r)
            for p in range(2):
                d = vr(KV + 4 * r + 2 * p, 2)
                a(f'v_pk_mul_f32 {d}, {d}, {vr(vf + 2 * p, 2)}')
            if r == o.get('pol_r', 4):
                a(f's_load_dword s{sU0}, {sr(S_DBG, 2)}, 0x80')
            if o.get('ssm', 1) == 1 and r >= o.get('ssm_r', 7):
                for _ in range((len(ssm) + 7 - r) // (8 - r)):
                    a(ssm.pop(0))
            if r & 1:
                d = (7 - r) >> 1
                for ch in range(4):
                    a(f'v_cvt_pk_bf16_f32 v{O + 4 * ch + d}, v{KV + 4 * r + ch}, v{KV + 4 * (r - 1) + ch}')
        self.stamp('kvdone')
        if o.get('pol_r', 4) == 8:
            a(f's_load_dword s{sU0}, {sr(S_DBG, 2)}, 0x80')
        for ch in range(4):
            a(f'ds_write_b128 v{vSW}, {vr(O + 4 * ch, 4)} offset:{ch * 64}')
        for j in range(4):
            a(f'ds_read_b128 {vr(KV + 4 * j, 4)}, v{vSR} offset:{j * 1088}')
        assert not kvmix
        self.get_pol(vFl)
        a(f'buffer_load_dword v{vFl}, off, {sr(S_DBG, 4)}, 0 sc1')
        a(f's_mov_b32 s{sT0}, {KVM if kvmix else KVX}')
        for j in range(4):
            a(f'buffer_store_dwordx4 {vr(KV + 4 * j, 4)}, v{vKS}, {WS}, s{sT0} offen sc1')
            if j < 3:
                a(f's_add_u32 s{sT0}, s{sT0}, {4 * QS if kvmix else 8 * QS}')
        self.stamp(2)
        if kvmix and o.get('pol_l', 0) == 0:
            a(f'buffer_load_dword v{vFl}, off, {sr(S_DBG, 4)}, 0 sc1')
        if o.get('ssm', 1) == 2:
            a(ssm)
        a(f'ds_write_b128 v{vUW}, {vr(ZERO, 4)}')
        a(f'ds_write_b128 v{vGZ}, {vr(ZERO, 4)}')

        def table(j):
            D = SK + 8 * j
            Ea, Eb, Db = 184 + 12 * (j & 1), 184 + 12 * (j & 1) + 4, 184 + 12 * (j & 1) + 8

            def wr(rho, reg):
                a(f'ds_write_b128 v{vG}, {vr(reg, 4)} offset:{rho * GSTR + 1024 * j + 32}')
            wr(3, D + 4)
            for i in range(2):
                a(f'v_pk_mov_b32 {vr(Db + 2 * i, 2)}, {vr(D + 2 + 2 * i, 2)}, {vr(D + 4 + 2 * i, 2)} op_sel:[1,0]')
            for i in range(4):
                a(f'v_alignbit_b32 v{Ea + i}, v{D + 3 + i}, v{D + 2 + i}, 16')
            wr(1, Db)
            wr(0, Ea)
            for i in range(4):
                a(f'v_alignbit_b32 v{Eb + i}, v{D + 4 + i}, v{D + 3 + i}, 16')
            wr(2, Eb)
        w_some(o['w_kv'])
        n1, n2 = o['tb_pre'], o['tb_pre'] + o['tb_mid']
        for j in range(n1):
            table(j)
            if kvmix and o.get('pol_l', 0) == j + 1:
                a(f'buffer_load_dword v{vFl}, off, {sr(S_DBG, 4)}, 0 sc1')
        a.need(f's{sDv}')
        a(f's_and_b32 s{sT1}, s{S_W}, 1')
        a(f's_lshl_b32 s{sT1}, s{sT1}, 4')
        a(f's_lshr_b32 s{sDv}, s{sDv}, s{sT1}')
        a(f's_and_b32 s{sDv}, s{sDv}, 0xffff')
        a(f'v_sub_u32 v5, 7, v{vI7}')
        a(f'v_and_b32 v7, 1, v5')
        a(f'v_lshlrev_b32 v7, 4, v7')
        a(f'v_lshlrev_b32 v7, v7, s{sDv}')
        a(f'v_bfe_u32 v1, v0, 3, 1')
        a(f'v_add_u32 v1, 2, v1')
        a(f'v_cmp_eq_u32 vcc, v1, v{vR}')
        a(f'v_cndmask_b32 v7, 0, v7, vcc')
        a(f'v_lshrrev_b32 v5, 1, v5')
        for d in range(4):
            a(f'v_cmp_eq_u32 vcc, {d}, v5')
            a(f'v_cndmask_b32 v1, 0, v7, vcc')
            a(f'v_accvgpr_write_b32 a{AD + d}, v1')
        self.stamp('tbpre')
        a.drain_stores()
        if kvmix:
            self.get_pol(vFl)
        self.stamp('drained')
        a('s_barrier')
        self.stamp(3)
        a(f's_and_b32 s{sT0}, s{sXo}, 0x2000')
        a(f's_add_u32 s{sT0}, s{sT0}, {C_F1B * 256}')
        a(f's_cmp_lt_u32 s{sG}, 8')
        a(f's_cselect_b32 s{sT0}, s{sXo}, s{sT0}')
        with self.wave0():
            self.check(S_DBG, '0', 1, vFl)
            if o.get('apoll') == 9:
                a(f's_mov_b32 s{sU2}, 1')
                a(f's_atomic_add s{sU2}, {sr(S_WS, 2)}, s{sT0} glc')
            else:
                a(f'buffer_atomic_add v{self.vOne}, off, {WS}, s{sT0} sc1')
        w_some(o['w_e1'])
        for j in range(n1, n2):
            table(j)
        ACC = 128
        BUF = (0, 64)
        XR, SR, XF = 136, 152, 168

        def rdA(it, t):
            o0 = 8 * it + 64 * (t & 3)
            return f'ds_read2_b64 {ar(BUF[it & 1] + 4 * t, 4)}, v{vAa2 if t & 4 else vAa} offset0:{o0} offset1:{o0 + 1}'

        def rdB(it, t):
            return f'ds_read_b128 {ar(BUF[it & 1] + 32 + 4 * t, 4)}, v{vBa} offset:{448 - 64 * it + 512 * t}'
        if n2 == 4:
            for t in range(8):
                a(rdA(0, t))
        self.stamp('tbpost')
        self.warm([[[1, 4], [2, 5], [3]], [[2, 5], [3], [4]], [[3], [4], [5]]][o.get('warm0', 0)])
        with self.wave0():
            if o.get('apoll') == 9:
                top, done = a.label('spin'), a.label('done')
                a(f's_mov_b32 s{sSpin}, {SPIN}')
                a('s_waitcnt lgkmcnt(0)')
                a(f's_cmp_ge_u32 s{sU2}, 15')
                a(f's_cbranch_scc1 {done}')
                a(f'{top}:')
                a(f's_mov_b32 s{sU2}, 0')
                a(f's_atomic_add s{sU2}, {sr(S_WS, 2)}, s{sT0} glc')
                a(f's_sub_u32 s{sSpin}, s{sSpin}, 1')
                a(f's_cbranch_scc1 {done}')
                a('s_waitcnt lgkmcnt(0)')
                a(f's_cmp_lt_u32 s{sU2}, 16')
                a(f's_cbranch_scc1 {top}')
                a(f'{done}:')
                a('s_waitcnt lgkmcnt(0)')
            elif o.get('apoll'):
                self.spin_atomic(f's{sT0}', 16, o['apoll'], 1)
            else:
                self.spin(S_WS, f's{sT0}', 0 if o.get('noe1') else 16, vFl)
        a('s_barrier')
        self.stamp(4)
        a(f's_sub_u32 s{sT0}, {KVM}, s0' if kvmix else f's_mov_b32 s{sT0}, {KVX}')
        for j in range(4):
            a(f'buffer_load_dwordx4 {ar(BUF[1] + 4 * j, 4)}, v{vUL}, {WS}, s{sT0} offen sc1')
            if j < 3:
                a(f's_add_u32 s{sT0}, s{sT0}, {12288 if j == 1 and not kvmix else 4096}')
        w_some(o['w_u'])
        self.w_write_addr()
        a(f'v_add_u32 v{vPrev}, {2 * TILE}, v{vZR}')
        self.conv_ww = self.w_writes_main(self.WRAW[0] if park == 2 else None)
        if park == 2:
            for _ in range(8):
                a(self.conv_ww.pop(0))
        for j in range(n2, 4):
            table(j)
        if n2 < 4:
            for t in range(8):
                a(rdA(0, t))
        a(f's_add_u32 s{sT3}, s{sXo}, {C_FXR * 256}')
        a(f's_mov_b32 s{sT4}, {XP4}')
        a(f's_cmp_lt_u32 s{sG}, 8')
        a(f's_cselect_b32 s{sT4}, s{sT4}, {XP4T - (KVXT - KVX)}')
        a(f's_add_u32 s{sT6}, s{sT6}, s{sT4}')
        a(f's_lshr_b32 s{sT4}, s{S_W}, 1')
        a(f's_lshl_b32 s{sT4}, s{sT4}, 13')
        a(f's_add_u32 s{sT6}, s{sT6}, s{sT4}')
        a(f's_mov_b32 s{sT4}, {ST1}')
        for j in range(4):
            a(f'ds_write_b128 v{vUW}, {ar(BUF[1] + 4 * j, 4)} offset:{512 + 1024 * j}')
            if j == 0:
                self.stamp('uload')
            a(rdB(0, 2 * j))
            a(rdB(0, 2 * j + 1))
        self.stamp(5)
        fx = o['fx_it']
        xl = []
        for T in range(2):
            for p in range(2):
                off = 2048 * T + 1024 * p
                xl.append([f'buffer_load_dwordx4 {vr(XR + 8 * T + 4 * p, 4)}, v{vXS}, {WS}, s{sT6} offen offset:{off} sc1'])
                xl.append([f'buffer_load_dwordx4 {vr(SR + 8 * T + 4 * p, 4)}, v{vXS}, {WS}, s{sT4} offen offset:{off} sc1'])
        if o.get('nowl'):
            wl = [g[:-1] + [[]] for g in wl]
        wt = self.w_loads_tail()
        if park == 2:
            nl = o.get('w45_loop', 12)
            early, late = wl, xl + wt[:nl]
            self.win_pre = []
            self.win_loads = wt[nl:]
        elif park:
            early, late = wl, xl + wt[:12]
            self.win_pre = [f'v_accvgpr_read_b32 v{self.WRAW[4] + i}, a{208 + i}' for i in range(32)]
            self.win_loads = wt[12:]
        else:
            early, late = wl[:-8], xl + wt
            self.win_pre = wl[-8][:-1]
            self.win_loads = [wl[-8][-1]] + wl[-7:]
        tot = len(early) + len(late)
        per = [(tot * (i + 1)) // 8 - (tot * i) // 8 for i in range(8)]
        plan = []
        for it in range(8):
            n = per[it]
            if it <= fx + 1:
                n = min(max(n, o.get('early_n', 0)), len(early))
                plan.append([early.pop(0) for _ in range(n)])
            else:
                rest = late[:8] + early + late[8:] if it == fx + 2 else rest
                early = late = []
                n = (len(rest) + 7 - it) // (8 - it)
                plan.append([rest.pop(0) for _ in range(n)])
        for it in range(8):
            A, B = BUF[it & 1], BUF[it & 1] + 32
            mf = []
            endT = []
            for T in range(8):
                c = ar(ACC + 4 * T, 4)
                if it == 0:
                    mf.append(f'v_mfma_f32_16x16x32_bf16 {c}, {ar(AD, 4)}, {ar(B + 4 * T, 4)}, 0')
                for t in range(T + 1):
                    mf.append(f'v_mfma_f32_16x16x32_bf16 {c}, {ar(A + 4 * t, 4)}, {ar(B + 4 * (T - t), 4)}, {c}')
                endT.append(len(mf) - 1)
            fill = [[] for _ in mf]
            base = 8 if it == 0 else 0
            if it < 7:
                rd = [x for t in range(8) for x in (rdA(it + 1, t), rdB(it + 1, t))]
                for i, x in enumerate(rd):
                    fill[base + 2 * i].append(x)
            zw = [f'ds_write_b128 v{vG}, {ar(ACC + 4 * T, 4)} offset:{ZOFF - GOFF + 1024 * T}' for T in range(8)]
            if it == 7:
                for T in range(o.get('z_in', 7)):
                    fill[max(endT[T] + 5, 6 + 4 * T)].append(zw.pop(0))
            n = len(plan[it])
            pos = base
            for i, g in enumerate(plan[it]):
                p = max(base + ((i + 1) * 35) // n, pos)
                k = len(g) - 1
                for z, x in enumerate(g[:-1]):
                    fill[max(pos, p - (k - z + 1) // 2)].append(x)
                fill[p].append(g[-1])
                pos = p
            if it == 0:
                for i, x in enumerate(self.clear_pst(228)):
                    fill[i].append(x)
            spx = o['sp'] >> 3 & 1
            if it == fx and not spx:
                fill[-1].append(f'buffer_load_dword v{vFl}, off, {WS}, s{sT3} sc1')
            if it == fx + 1 and spx:
                fill[o.get('fx_p', 0)].append(f's_load_dword s{sDv}, {sr(S_WS, 2)}, s{sT3}')
            if it == fx + 1:
                fill[-1].append(lambda: self.check(S_WS, f's{sT3}', 0 if o.get('nofx') else 8, vFl, sDv if spx else None))
            if it == 7:
                fill[0].append(f's_add_u32 s{sFW}, s{sT3}, {(C_FWR - C_FXR) * 256}')

            if it == 0:
                unp = []
                for T in range(2):
                    for row in range(4):
                        src = XR + 8 * T + 2 * row
                        xf = XF + 16 * T + 4 * row
                        st = SR + 8 * T + 2 * row
                        unp += [f'v_lshlrev_b32 v{xf}, 16, v{src}', f'v_and_b32 v{xf + 1}, s{sT2}, v{src}',
                                f'v_lshlrev_b32 v{xf + 2}, 16, v{src + 1}', f'v_and_b32 v{xf + 3}, s{sT2}, v{src + 1}']
                        unp += [f'v_fma_f32 v{xf + 32 + c}, v{xf + c}, v{st}, v{st + 1}' for c in range(4)]
            u0 = o.get('unp_at', 36 * 6 + 14)
            for i, x in enumerate(unp):
                p = u0 + (i * (36 * 8 - u0)) // 64
                if p // 36 == it:
                    fill[p % 36].append(x)
            self.stamp(f'it{it}')
            if it > 0:
                a.need(ar(A, 24 if it < 7 else 32), ar(B, 24))
            for m, f in zip(mf, fill):
                a(m)
                a(f)
        self.stamp(6)
        a(zw)
        a('s_waitcnt lgkmcnt(0)')
        a('s_barrier')
        self.stamp('zbar')
        Z = XR
        for T in range(2):
            for ch in range(4):
                a(f'ds_read_b128 {vr(Z + 16 * T + 4 * ch, 4)}, v{vPrev if ch & 2 else vZR} offset:{(ch & 1) * TILE + 1024 * T}')
        for T in range(2):
            for p in range(2):
                ho = XF + 32 + 16 * T + 8 * p
                for b in range(2):
                    row = 2 * p + b
                    for c in range(4):
                        x = XF + 16 * T + 4 * row + c
                        a(f'v_fmac_f32 v{x}, v{x + 32}, v{Z + 16 * T + 4 * c + row}')
                    for c2 in range(2):
                        x = XF + 16 * T + 4 * row + 2 * c2
                        a(f'v_cvt_pk_bf16_f32 v{ho + 2 * b + c2}, v{x}, v{x + 1}')
                a(f'buffer_store_dwordx4 {vr(ho, 4)}, v{vHS}, {WS}, 0 offen offset:{2048 * T + 1024 * p} sc1')
        self.stamp(7)

    def side(self):
        a = self.a
        head = self.opt.get('head', 0)
        if head:
            a('.Lhead_a0:')
        a('.Lside:')
        a.fresh('role')
        self.stamp('sx_in')
        vTid = 1
        a(f's_sub_u32 s{sG}, s{sJ}, 20')
        a(f's_lshl3_add_u32 s{sG}, s{sG}, s{sX}')
        J2, vJ2, sG2, sJo, sJs = 136, 230, sQ, sDv, sM
        vFl = 231
        sLn = sU2
        up = self.opt.get('up', 1)

        def job2_loads():
            a(f's_add_u32 s{sG2}, s{sG}, {48 if self.opt.get("pair", 1) else 0}')
            a(f's_sub_u32 s{sT0}, s{sG2}, 96')
            a(f's_cselect_b32 s{sG2}, s{sG2}, s{sT0}')
            a(f's_sub_u32 s{sLn}, s{sG2}, 48')
            if self.opt.get('s2loc', 1):
                a(f's_lshr_b32 s{sLn}, s{sLn}, 3')
                a(f's_mul_i32 s{sT1}, s{sX}, 6')
                a(f's_add_u32 s{sLn}, s{sLn}, s{sT1}')
            a(f's_cmp_ge_u32 s{sLn}, 24')
            a(f's_cselect_b32 s{sT2}, s{S_WU}, s{S_WG}')
            a(f's_cselect_b32 s{sT3}, s{S_WU + 1}, s{S_WG + 1}')
            a(f's_cselect_b32 s{sT1}, 24, 0')
            a(f's_sub_u32 s{sT1}, s{sLn}, s{sT1}')
            a(f's_lshr_b32 s{sT0}, s{sG2}, 1')
            a(f's_cmp_ge_u32 s{sG2}, 48')
            a(f's_cselect_b32 s{S_WD}, s{sT2}, s{S_WD}')
            a(f's_cselect_b32 s{S_WD + 1}, s{sT3}, s{S_WD + 1}')
            a(f's_cselect_b32 s{sT0}, s{sT1}, s{sT0}')
            self.real_line(sT0, sT2)
            a(f's_and_b32 s{sT2}, s{sG2}, 1')
            a(f's_lshl1_add_u32 s{sT2}, s{sT0}, s{sT2}')
            a(f's_mul_i32 s{sT2}, s{sT2}, {32 * 1280}')
            a(f's_lshl_b32 s{sT0}, s{sT0}, 7')
            a(f's_movk_i32 s{sT1}, 1280')
            a(f's_movk_i32 s{sJs}, 128')
            a(f's_cmp_ge_u32 s{sG2}, 48')
            a(f's_cselect_b32 s{sJo}, s{sT0}, s{sT2}')
            a(f's_cselect_b32 s{sT1}, 3072, s{sT1}')
            a(f's_cselect_b32 s{sJs}, {32 * 3072}, s{sJs}')
            a(f'v_and_b32 v{vJ2}, 7, v0')
            a(f'v_lshlrev_b32 v{vJ2}, 4, v{vJ2}')
            a(f'v_lshrrev_b32 v15, 3, v{vTid}')
            a(f'v_mad_u32_u24 v{vJ2}, v15, s{sT1}, v{vJ2}')
            l2 = a.label('j2')
            if self.nt(4):
                l = a.label('j2')
                a(f's_cbranch_scc1 {l}')
                with a.untracked():
                    for j in range(10):
                        a(f'buffer_load_dwordx4 {vr(J2 + 4 * j, 4)}, v{vJ2}, {sr(S_WD, 4)}, s{sJo} offen offset:{128 * j}{self.nt(4)}')
                    a(f's_branch {l2}')
                a(f'{l}:')
            for j in range(10):
                a(f'buffer_load_dwordx4 {vr(J2 + 4 * j, 4)}, v{vJ2}, {sr(S_WD, 4)}, s{sJo} offen')
                a(f's_add_u32 s{sJo}, s{sJo}, s{sJs}')
            a(f'{l2}:')
        a(f's_cmp_ge_u32 s{sG}, 64')
        a.snapshot('s4')
        a('s_cbranch_scc1 .Ls4')
        XR, WR = 16, J2
        vA, vRow, vS8 = 2, 3, 4
        a(f'v_lshrrev_b32 v{vRow}, 3, v{vTid}')
        a(f'v_and_b32 v{vS8}, 7, v0')
        a(f's_lshr_b32 s{sT0}, s{sG}, 3')
        a(f's_lshl_b32 s{sT0}, s{sT0}, 8')
        a(f's_and_b32 s{sT1}, s{sG}, 3')
        a(f's_lshl2_add_u32 s{sT0}, s{sT1}, s{sT0}')
        a(f's_bfe_u32 s{sT1}, s{sG}, 0x10002')
        a(f's_lshl1_add_u32 s{sT0}, s{sT1}, s{sT0}')
        a(f'v_and_b32 v5, 0xf0, v{vTid}')
        a(f'v_and_b32 v6, 1, v{vRow}')
        a(f'v_add3_u32 v5, v5, v6, s{sT0}')
        a(f's_movk_i32 s{sT1}, 1280')
        a(f'v_lshlrev_b32 v6, 4, v{vS8}')
        a(f'v_mad_u32_u24 v5, v5, s{sT1}, v6')
        for j in range(10):
            a(f'buffer_load_dwordx4 {vr(XR + 4 * j, 4)}, v5, {sr(S_X, 4)}, 0 offen offset:{128 * j}{self.nt(3)}')
        if head:
            a('s_branch .Lhead_a1')
            a('.Lhead_a1:')
        if up == 1:
            job2_loads()
        self.stamp('sx_issued')
        self.gemm_ids()
        self.w_addr()
        vW, vRd, vSt = 5, 6, 7
        a(f's_movk_i32 s{sT1}, 528')
        a(f'v_lshlrev_b32 v{vW}, 3, v{vRow}')
        a(f'v_mad_u32_u24 v{vW}, v{vS8}, s{sT1}, v{vW}')
        a(f'v_and_b32 v{vRd}, 31, v0')
        a(f'v_lshlrev_b32 v{vRd}, 4, v{vRd}')
        a(f'v_lshrrev_b32 v8, 5, v{vTid}')
        a(f'v_mad_u32_u24 v{vRd}, v8, s{sT1}, v{vRd}')
        a(f's_lshl_b32 s{sT0}, s{sG}, 8')
        a(f'v_and_b32 v{vSt}, 15, v0')
        a(f's_and_b32 s{sT1}, s{sT0}, 0x2000')
        a(f's_add_u32 s{sT1}, s{sT1}, s{sT0}')
        a(f'v_lshl_add_u32 v{vSt}, v{vSt}, 4, s{sT1}')
        a(f'v_lshrrev_b32 v8, 4, v{vTid}')
        a(f's_mov_b32 s{sT1}, {2 * QS}')
        a(f'v_mad_u32_u24 v{vSt}, v8, s{sT1}, v{vSt}')
        for j in range(10):
            for o_ in range(2):
                a(f'ds_write_b64 v{vW}, {vr(XR + 4 * j + 2 * o_, 2)} offset:{j * 4224 + o_ * 256}')
        self.stamp('sx_data')
        a(f's_load_dword s{sU0}, {sr(S_DBG, 2)}, 0x80')
        a(f's_load_dword s{sU1}, {sr(S_DBG, 2)}, 0x0')
        if up == 2:
            job2_loads()
            a(f's_lshl_b32 s{sT0}, s{sG}, 8')
        a('s_waitcnt lgkmcnt(0)')
        a('s_barrier')
        self.stamp('sx_bar')
        XO = 96
        for j in range(10):
            a(f'ds_read_b128 {vr(XO + 4 * j, 4)}, v{vRd} offset:{j * 4224}')
        self.get_pol(vFl)
        self.check(S_DBG, '0', 1, vFl, sU1)
        a(f's_mov_b32 s{sOne}, 0x3f803f80')
        for i in range(4):
            a(f'v_mov_b32 v{8 + i}, 0')
        for j in range(10):
            a(f's_mov_b32 s{sT1}, {grp_base(j, XP4, XP4T)}')
            a(f'buffer_store_dwordx4 {vr(XO + 4 * j, 4)}, v{vSt}, {WS}, s{sT1} offen sc1')
            for i in range(4 * j, 4 * j + 4):
                a(f'v_dot2c_f32_bf16 v{8 + (i & 1)}, s{sOne}, v{XR + i}')
                a(f'v_dot2c_f32_bf16 v{10 + (i & 1)}, v{XR + i}, v{XR + i}')
        a('v_add_f32 v8, v8, v9')
        a('v_add_f32 v10, v10, v11')
        for m in ('quad_perm:[1,0,3,2]', 'quad_perm:[2,3,0,1]', 'row_half_mirror'):
            a(f'v_add_f32_dpp v8, v8, v8 {m} row_mask:0xf bank_mask:0xf')
            a(f'v_add_f32_dpp v10, v10, v10 {m} row_mask:0xf bank_mask:0xf')
        a(f'v_mul_f32 v8, {f32(1 / 640)}, v8')
        a(f'v_mul_f32 v10, {f32(1 / 640)}, v10')
        a('v_fma_f32 v10, -v8, v8, v10')
        a('v_max_f32 v10, 0, v10')
        if self.opt.get('mim', 3) & 1:
            a('v_cvt_pk_bf16_f32 v8, v8, v10')
            a('v_and_b32 v10, 0xffff0000, v8')
            a('v_lshlrev_b32 v8, 16, v8')
            a(f'v_add_f32 v10, {f32(1e-5)}, v10')
            a('v_cvt_pk_bf16_f32 v10, 0, v10')
            a('v_sqrt_f32 v10, v10')
            a('v_cvt_pk_bf16_f32 v10, 0, v10')
            a('v_rcp_f32 v10, v10')
        else:
            a(f'v_add_f32 v10, {f32(1e-5)}, v10')
            a('v_rsq_f32 v10, v10')
        a('v_lshlrev_b32 v12, 5, v0')
        a('v_mul_f32 v11, -v8, v10')
        a(f's_lshl_b32 s{sT1}, s{S_W}, 6')
        a(f's_add_u32 s{sT1}, s{sT1}, s{sT0}')
        a(f's_add_u32 s{sT1}, s{sT1}, {ST1}')
        a('ds_bpermute_b32 v8, v12, v10')
        a('ds_bpermute_b32 v9, v12, v11')
        a('v_lshlrev_b32 v12, 3, v0')
        a.need('v[8:9]')
        a('s_mov_b64 exec, 0xff')
        a(f'buffer_store_dwordx2 v[8:9], v12, {WS}, s{sT1} offen sc1')
        a('s_mov_b64 exec, -1')
        a('s_branch .Lr1')
        if head:
            a('.Lhead_b0:')
        a('.Ls4:')
        a.fresh('s4')
        T4 = 10240
        a(f's_sub_u32 s{sT4}, s{sG}, 64')
        if self.opt.get('s4loc', 1):
            a(f's_lshr_b32 s{sT4}, s{sT4}, 3')
            a(f's_and_b32 s{sT5}, s{sX}, 3')
            a(f's_lshr_b32 s{sT0}, s{sX}, 2')
            a(f's_lshl1_add_u32 s{sT5}, s{sT5}, s{sT0}')
        else:
            a(f's_lshr_b32 s{sT5}, s{sT4}, 2')
            a(f's_and_b32 s{sT4}, s{sT4}, 3')
        a(f's_mul_i32 s{sT0}, s{sT4}, 160')
        a(f's_lshl3_add_u32 s{sT0}, s{S_W}, s{sT0}')
        a(f's_mul_i32 s{sT0}, s{sT0}, 3072')
        a(f's_mul_i32 s{sT1}, s{sT5}, 3')
        a(f's_add_u32 s{sT1}, s{sT1}, 1')
        self.real_line(sT1, sT2)
        a(f's_lshl_b32 s{sT1}, s{sT1}, 7')
        a(f's_add_u32 s{sT0}, s{sT0}, s{sT1}')
        a('v_lshrrev_b32 v3, 3, v0')
        a('v_and_b32 v4, 7, v0')
        a(f'v_lshl_add_u32 v2, v4, 4, s{sT0}')
        a(f's_movk_i32 s{sT1}, 3072')
        a(f'v_mad_u32_u24 v2, v3, s{sT1}, v2')
        a(f's_mov_b32 s{sT0}, 0')
        for i in range(10):
            a(f'buffer_load_dwordx4 {vr(XR + 4 * i, 4)}, v2, {sr(S_WU if i & 1 else S_WG, 4)}, s{sT0} offen{self.nt(5)}')
            if i & 1:
                a(f's_add_u32 s{sT0}, s{sT0}, {32 * 3072}')
        if head:
            a('s_branch .Lhead_b1')
            a('.Lhead_b1:')
        if up == 1:
            job2_loads()
        self.stamp('sx_issued')
        self.gemm_ids()
        self.w_addr()
        a(f's_lshl_b32 s{sT0}, s{S_W}, 9')
        a(f'v_lshl_add_u32 v5, v3, 6, s{sT0}')
        a('v_and_b32 v6, 1, v0')
        a('v_lshl_add_u32 v5, v6, 4, v5')
        a('v_bfe_u32 v6, v0, 1, 2')
        a('v_lshlrev_b32 v7, 5, v6')
        a('v_xor_b32 v5, v5, v7')
        a(f's_movk_i32 s{sT0}, {T4}')
        a(f'v_mad_u32_u24 v5, v6, s{sT0}, v5')
        a('v_xor_b32 v6, 32, v5')
        a('v_lshrrev_b32 v7, 5, v0')
        a('v_bfe_u32 v8, v0, 2, 2')
        a('v_lshl_add_u32 v7, v7, 3, v8')
        a('v_lshlrev_b32 v7, 6, v7')
        a('v_and_b32 v8, 3, v0')
        a('v_lshl_add_u32 v7, v8, 4, v7')
        a('v_bfe_u32 v8, v0, 4, 1')
        a('v_lshl_add_u32 v7, v8, 3, v7')
        a(f's_lshl_b32 s{sT1}, s{S_W}, 5')
        a(f'v_xor_b32 v7, s{sT1}, v7')
        a(f's_mul_i32 s{sT1}, s{S_W}, {T4}')
        a(f'v_add_u32 v7, s{sT1}, v7')
        for i in range(10):
            a(f'ds_write_b128 v{6 if i & 1 else 5}, {vr(XR + 4 * i, 4)} offset:{(i >> 1) * 2048}')
        self.stamp('sx_data')
        a(f's_load_dword s{sU0}, {sr(S_DBG, 2)}, 0x80')
        a(f's_load_dword s{sU1}, {sr(S_DBG, 2)}, 0x0')
        if up == 2:
            job2_loads()
        a('s_waitcnt lgkmcnt(0)')
        a('s_barrier')
        self.stamp('sx_bar')
        for j in range(10):
            for e in range(2):
                a(f'ds_read_b64_tr_b16 {vr(XO + 4 * j + 2 * e, 2)}, v7 offset:{1024 * j + 256 * e}')
        a(f's_lshl2_add_u32 s{sT0}, s{sT5}, s{S_W}')
        a(f's_lshl2_add_u32 s{sT0}, s{sT0}, s{sT4}')
        a(f's_mul_i32 s{sT0}, s{sT0}, 10240')
        a(f's_add_u32 s{sT0}, s{sT0}, {W45F}')
        a('v_lshlrev_b32 v9, 4, v0')
        self.get_pol(vFl)
        self.check(S_DBG, '0', 1, vFl, sU1)
        for j in range(10):
            if j and j & 3 == 0:
                a(f's_add_u32 s{sT0}, s{sT0}, 4096')
            a(f'buffer_store_dwordx4 {vr(XO + 4 * j, 4)}, v9, {WS}, s{sT0} offen offset:{(j & 3) * 1024} sc1')
        a('.Lr1:')
        a.fresh()
        self.stamp('sx_st')
        o = self.opt
        assert up >= 1
        a(f's_mov_b32 s{sG}, s{sG2}')
        a(f's_mov_b32 s{sSide}, s{sG2}')
        self.w_select()
        WB = 49152
        T0 = 216
        na, nb, nc = o.get('sw_a', 10), o.get('sw_b', 10), o.get('sw_c', 12)
        assert na + nb + nc <= 32

        def end_r1(younger):
            self.stamp('sx_ld2')
            a(f's_waitcnt vmcnt({younger})')
            a('s_barrier')
            self.stamp('sx_dr')
            self.arrive_start([(sArr, C_FX)])
        a(f's_cmp_ge_u32 s{sG}, 48')
        a('s_cbranch_scc1 .Ls2')
        wl = self.w_loads_main()
        a(wl[:na])
        v8, v9, v10 = T0, T0 + 1, T0 + 2
        a(f'v_lshrrev_b32 v{vRow}, 3, v{vTid}')
        a(f'v_and_b32 v{vS8}, 7, v0')
        a(f's_movk_i32 s{sT1}, 1344')
        a(f'v_lshlrev_b32 v{vW}, 4, v{vS8}')
        a(f'v_mad_u32_u24 v{vW}, v{vRow}, s{sT1}, v{vW}')
        a(f'v_lshrrev_b32 v{v8}, 4, v0')
        a(f'v_bfe_u32 v{v9}, v0, 2, 2')
        a(f'v_lshl_add_u32 v{v8}, v{v8}, 3, v{v9}')
        a(f's_mul_i32 s{sT0}, s{S_W}, 320')
        a(f'v_mov_b32 v{v9}, s{sT0}')
        a(f'v_mad_u32_u24 v{v8}, v{v8}, s{sT1}, v{v9}')
        a(f'v_and_b32 v{v9}, 3, v0')
        a(f'v_lshl_add_u32 v{v10}, v{v9}, 3, v{v8}')
        a(f'v_lshl_add_u32 v{v8}, v{v9}, 4, v{v8}')
        end_r1(na)
        q = wl[na:na + nb]
        for j in range(10):
            a(f'ds_write_b128 v{vW}, {vr(WR + 4 * j, 4)} offset:{WB + 128 * j}')
            if q and j < o.get('sw_b1', 4):
                a(q.pop(0))
        self.arrive_finish([(sArr, 11, C_FXR)], v9)
        self.stamp(1)
        a(q)
        a('s_barrier')
        for cc in range(2):
            for nt in range(5):
                for e in range(2):
                    off = WB + cc * 160 + e * 4 * 1344 + ((nt >> 1) * 64 + (nt & 1) * 8)
                    a(f'ds_read_b64_tr_b16 {ar(4 * (5 * cc + nt) + 2 * e, 2)}, v{v10 if nt == 4 else v8} offset:{off}')
        a(f's_mul_i32 s{sT0}, s{S_W}, 96')
        a(f's_add_u32 s{sT0}, s{sT0}, s{sG}')
        a(f's_mul_i32 s{sT0}, s{sT0}, 5120')
        a(f's_add_u32 s{sT0}, s{sT0}, {WDF}')
        a(f'v_lshlrev_b32 v{v9}, 4, v0')
        for cc in range(2):
            for nt in range(5):
                if nt == 4:
                    a(f's_add_u32 s{sT0}, s{sT0}, 4096')
                a(f'buffer_store_dwordx4 {ar(4 * (5 * cc + nt), 4)}, v{v9}, {WS}, s{sT0} offen offset:{(nt & 3) * 1024} sc1')
            a(f's_add_u32 s{sT0}, s{sT0}, {48 * 5120 - 4096}')
        a('s_branch .Lr2')
        a('.Ls2:')
        a.fresh()
        AC = T0 + 4
        for i in range(10, 20):
            a(f'buffer_load_dwordx4 {vr(J2 + 4 * i, 4)}, v{vJ2}, {sr(S_WD, 4)}, s{sJo} offen')
            a(f's_add_u32 s{sJo}, s{sJo}, s{sJs}')
        for i in range(8):
            a(f'v_mov_b32 v{AC + i}, 0')
        a(f's_mov_b32 s{sT4}, 0x3f80')
        a(f's_mov_b32 s{sT3}, 0x3f800000')
        end_r1(10)
        q = self.w_loads_main()[:na + nb]
        for i in range(80):
            a(f'v_dot2c_f32_bf16 v{AC + 2 * (i & 3)}, s{sT4}, v{J2 + i}')
            a(f'v_dot2c_f32_bf16 v{AC + 1 + 2 * (i & 3)}, s{sT3}, v{J2 + i}')
            if i == 39:
                self.arrive_finish([(sArr, 11, C_FXR)], T0)
                self.stamp(1)
            if i & 1 and i > 39 and q:
                a(q.pop(0))
        a(q)
        a(f'v_lshlrev_b32 v5, 5, v{vTid}')
        a(f'ds_write_b128 v5, {vr(AC, 4)} offset:{WB}')
        a(f'ds_write_b128 v5, {vr(AC + 4, 4)} offset:{WB + 16}')
        a('s_waitcnt lgkmcnt(0)')
        a('s_barrier')
        a('v_bfe_u32 v6, v0, 1, 4')
        a('v_and_b32 v7, 32, v0')
        a('v_add_u32 v6, v6, v7')
        a('v_and_b32 v7, 1, v0')
        a('v_lshl_add_u32 v6, v7, 4, v6')
        a('v_lshlrev_b32 v6, 2, v6')
        for i in range(16):
            a(f'ds_read2st64_b32 {vr(J2 + 2 * i, 2)}, v6 offset0:{WB // 256 + 2 * i} offset1:{WB // 256 + 2 * i + 1}')
        for i in range(1, 16):
            a(f'v_pk_add_f32 {vr(J2, 2)}, {vr(J2, 2)}, {vr(J2 + 2 * i, 2)}')
        a(f'v_add_f32 v{J2}, v{J2}, v{J2 + 1}')
        a(f'v_cvt_pk_bf16_f32 v{T0}, v{J2}, v{J2}')
        a(f'v_lshlrev_b32 v7, 16, v{T0}')
        a(f'v_sub_f32 v7, v{J2}, v7')
        a(f'v_cvt_pk_bf16_f32 v{T0 + 1}, v7, v7')
        a(f's_lshl_b32 s{sT0}, s{sLn}, 9')
        a(f's_add_u32 s{sT0}, s{sT0}, {CSF}')
        a('v_lshlrev_b32 v6, 3, v0')
        a(f's_cmp_lg_u32 s{S_W}, 0')
        a('s_cbranch_scc1 .Lr2')
        a(f'buffer_store_dwordx2 {vr(T0, 2)}, v6, {WS}, s{sT0} offen sc1')
        a('.Lr2:')
        a.fresh()
        self.stamp(2)
        a(f's_lshr_b32 s{sT0}, s{sG}, 5')
        a(f's_and_b32 s{sT1}, s{sG}, 15')
        a(f's_lshl4_add_u32 s{sT0}, s{sT0}, s{sT1}')
        a(f's_and_b32 s{sT1}, s{sG}, 16')
        a(f's_lshl2_add_u32 s{sT0}, s{sT1}, s{sT0}')
        a(f's_lshl_b32 s{sT0}, s{sT0}, 7')
        a(f's_add_u32 s{sT0}, s{sT0}, {CF3}')
        a('v_mov_b32 v4, 0')
        a('v_and_b32 v5, 31, v0')
        a('v_lshlrev_b32 v5, 2, v5')
        lf3 = a.label('nof3')
        a(f's_cmp_lg_u32 s{S_W}, 1')
        a(f's_cbranch_scc1 {lf3}')
        with a.untracked():
            a(f'buffer_store_dword v4, v5, {WS}, s{sT0} offen sc1')
        a(f'{lf3}:')
        if o.get('outpf', 2) >= 2:
            big = o.get('outpf', 2) == 3
            a(f's_lshr_b32 s{sT0}, s{sG}, 3')
            a(f's_mul_i32 s{sT0}, s{sT0}, 86')
            a(f's_and_b32 s{sT1}, s{sG}, 7')
            a(f's_lshl_b32 s{sT1}, s{sT1}, 10')
            a(f's_add_u32 s{sT0}, s{sT0}, s{sT1}')
            for i in range(4):
                a(f'v_mov_b32 v{T0 + 4 + i}, 0')
            for k in range(3 if big else 2):
                a(f'v_lshrrev_b32 v6, {3 if big else 2}, v{vTid}')
                a(f'v_add_u32 v6, {k * (32 if big else 64)}, v6')
                a('v_min_u32 v6, 85, v6')
                a(f'v_add_u32 v6, s{sT0}, v6')
                a('v_mul_u32_u24 v6, 320, v6')
                a('v_add_u32 v6, 160, v6')
                a(f'v_and_b32 v6, {-128 if big else -64}, v6')
                a(f'v_and_b32 v7, {7 if big else 3}, v0')
                a('v_lshl_add_u32 v6, v7, 4, v6')
                a(f'buffer_store_dwordx4 {vr(T0 + 4, 4)}, v6, {sr(S_OUT, 4)}, 0 offen sc1')
        a(self.clear_pst(2))
        n0 = na + nb + nc
        a(wl[na + nb:n0])
        a(f's_add_u32 s{sT4}, s{sXo}, {C_FXR * 256}')
        a(f's_add_u32 s{sFW}, s{sT4}, {(C_FWR - C_FXR) * 256}')
        a.drain_stores()
        a('s_waitcnt lgkmcnt(0)')
        a('s_barrier')
        self.stamp(6)
        self.arrive_start([(sArr, C_B1), (sJs, C_FW)])
        a(f'buffer_load_dword v1, off, {WS}, s{sT4} sc1')

        def mid():
            self.arrive_finish([(sJs, 11, C_FWR), (sArr, 31, C_B2)], T0)
            self.check(S_WS, f's{sT4}', 8, 1)
        self.side_window(wl[n0:], mid)
        self.warm([[3], [4], [5]])
        a(f's_waitcnt vmcnt({self.opt["wd_pre"]})')
        self.stamp(7)
        a('s_branch .Ljoin')

    def signal(self, soff, pi):
        a = self.a
        if self.opt.get('ssig', 0) >> pi & 1:
            a(f's_atomic_add s{sU2}, {sr(S_WS, 2)}, {soff}')
        else:
            a('s_mov_b64 exec, 1')
            a(f'buffer_atomic_add v{self.vOne}, off, {WS}, {soff} sc1')
            a('s_mov_b64 exec, -1')

    def gemms(self):
        a = self.a
        o = self.opt
        t, t2 = self.vTmp, self.vTmp2
        L, AB = 0, 8
        vRD = 4
        vAL, vAS, vA2, vWD, vWD2, vCS, vFl = 1, 2, 3, 247, 255, 246, 254
        vW5 = 252
        vS = 232
        BP = 236
        TM = 242
        ACC = 168
        RING1, CS, RING2 = 124, 148, 240
        sF3s, sF3p = sQ, sM
        sRB2w = sG
        kap = [[3 * c + ((pi + 1) % 3 if c & 1 else pi) for c in range(4)] for pi in range(3)]
        wd = []
        for i in range(60):
            g = []
            if i % 5 == 0:
                g.append(f's_mov_b32 s{sWoff}, {WDF + 5120 * kap[i // 20][i // 5 % 4]}')
            g.append(f'buffer_load_dwordx4 {ar(4 * i, 4)}, v{vWD2 if i % 5 == 4 else vWD}, {WS}, s{sWoff} offen offset:{(i % 5 & 3) * 1024} sc1')
            wd.append(g)
        if o.get('nowd'):
            wd = [[] for _ in wd]
        real, setup0 = a, []
        a = setup0.append
        a(f's_and_b32 s{sT0}, s{sJ}, 7')
        a(f's_lshl2_add_u32 s{sT0}, s{sT0}, s{S_W}')
        a(f's_mul_i32 s{sT0}, s{sT0}, {12 * 5120}')
        a(f'v_lshl_add_u32 v{vWD}, v0, 4, s{sT0}')
        a(f'v_add_u32 v{vWD2}, 0x1000, v{vWD}')
        a(f'v_lshlrev_b32 v{vRD}, 4, v0')
        for s in range(1, 4):
            a(f'v_xor_b32 v{t}, {16 * s}, v{vRD}')
            a(f'v_add_u32 v{vRD + s}, {TILE * s}, v{t}')
        a(f'v_lshl_add_u32 v{vW5}, s{S_W}, 10, v{vRD}')
        a(f'v_lshl_add_u32 v{vW5 + 1}, s{S_W}, 10, v{vRD + 1}')
        a(f's_lshl2_add_u32 s{sT0}, s{sRB}, s{S_W}')
        a(f's_lshl_b32 s{sT1}, s{sT0}, 8')
        a(f'v_and_b32 v{t}, 15, v0')
        a(f'v_lshlrev_b32 v{vA2}, 4, v{t}')
        a(f'v_add_u32 v{t}, s{sT1}, v{vA2}')
        a(f'v_lshrrev_b32 v{t2}, 4, v0')
        a(f's_mov_b32 s{sT1}, {QS}')
        a(f'v_mad_u32_u24 v{vAL}, v{t2}, s{sT1}, v{t}')
        a(f'v_lshl_add_u32 v{vA2}, v{t2}, 9, v{vA2}')
        def act_blk(dst, n, tmp):
            a(f's_and_b32 s{tmp}, s{n}, 7')
            a(f's_mul_i32 s{dst}, s{tmp}, 196608')
            a(f's_bfe_u32 s{tmp}, s{n}, 0x20003')
            a(f's_lshl_b32 s{tmp}, s{tmp}, 22')
            a(f's_add_u32 s{dst}, s{dst}, s{tmp}')
            a(f's_lshr_b32 s{tmp}, s{n}, 5')
            a(f's_lshl_b32 s{tmp}, s{tmp}, 13')
            a(f's_add_u32 s{dst}, s{dst}, s{tmp}')

        def f3_line(r, tmp):
            a(f's_and_b32 s{tmp}, s{r}, 16')
            a(f's_mul_i32 s{tmp}, s{tmp}, 3')
            a(f's_add_u32 s{r}, s{r}, s{tmp}')
            a(f's_lshl_b32 s{r}, s{r}, 7')
            a(f's_add_u32 s{r}, s{r}, {CF3}')
        act_blk(sT1, sT0, sT4)
        a(f'v_lshl_add_u32 v{vAS}, v0, 4, s{sT1}')
        a(f's_lshr_b32 s{sF3s}, s{sT0}, 1')
        f3_line(sF3s, sT4)
        a(f's_lshr_b32 s{sT1}, s{sJ}, 3')
        a(f's_lshl2_add_u32 s{sF3p}, s{sX}, s{sT1}')
        a(f's_lshl_b32 s{sRB2w}, s{sF3p}, 1')
        f3_line(sF3p, sT4)
        for i in range(4):
            a(f's_add_u32 s{sT0}, s{sRot}, {i}')
            a(f's_and_b32 s{sT0}, s{sT0}, 3')
            a(f's_mul_i32 s{sT1}, s{sT0}, {40 * QS}')
            a(f's_add_u32 s{sT1}, s{sT1}, {HP4}')
            a([f's_cmp_lt_u32 s{sT0}, 3', f's_cselect_b32 s{sAB + i}, s{sT1}, {HP4T}'])
        a(f'v_and_b32 v{t}, 3, v0')
        a(f'v_bfe_u32 v{t2}, v0, 2, 1')
        a(f'v_lshl_add_u32 v{t}, v{t2}, 3, v{t}')
        a(f'v_bfe_u32 v{t2}, v0, 4, 1')
        a(f'v_lshl_add_u32 v{t}, v{t2}, 2, v{t}')
        a(f'v_lshlrev_b32 v{t}, 4, v{t}')
        a(f'v_bfe_u32 v{t2}, v0, 3, 1')
        a(f's_movk_i32 s{sT1}, 12288')
        a(f'v_mad_u32_u24 v{vCS}, v{t2}, s{sT1}, v{t}')
        a(f's_mov_b32 s{sOne}, 0x3f803f80')
        a(f's_mov_b32 s{sU2}, 1')
        a(f's_lshl_b32 s{sT2}, s{sA}, 7')
        a(f's_add_u32 s{sT2}, s{sT2}, {CSF}')
        a(f's_lshl_b32 s{sT3}, s{sB}, 7')
        a(f's_add_u32 s{sT3}, s{sT3}, {CSF}')
        for r in (sA, sB):
            a(f's_and_b32 s{sT0}, s{r}, -8')
            a(f's_add_u32 s{r}, s{r}, s{sT0}')
            a(f's_lshl_b32 s{r}, s{r}, 10')
            a(f's_add_u32 s{r}, s{r}, {ACT}')
        act_blk(sT6, sRB2w, sT4)
        a(f's_mul_i32 s{sT5}, s{S_W}, 49152')
        a(f's_add_u32 s{sT5}, s{sT5}, s{sT6}')
        for lam in range(4):
            a(f's_xor_b32 s{sT0}, s{S_W}, {lam}')
            a(f's_lshr_b32 s{sT1}, s{sT0}, 1')
            a(f's_mul_i32 s{sT1}, s{sT1}, 196608')
            a(f's_and_b32 s{sT0}, s{sT0}, 1')
            a(f's_lshl_b32 s{sT0}, s{sT0}, 8')
            a(f's_add_u32 s{sT0}, s{sT0}, s{sT5}')
            a(f's_add_u32 s{sL[lam]}, s{sT1}, s{sT0}')
        sRes, sOutB, sQS = 20, 21, 22
        a(f's_lshr_b32 s{sT0}, s{S_W}, 1')
        a(f's_add_u32 s{sT0}, s{sT0}, s{sRB2w}')
        a(f's_lshl_b32 s{sRes}, s{sT0}, 8')
        a(f's_and_b32 s{sT4}, s{S_W}, 1')
        a(f's_lshl3_add_u32 s{sRes}, s{sT4}, s{sRes}')
        a(f's_and_b32 s{sT5}, s{sJ}, 7')
        a(f's_mul_i32 s{sT6}, s{sT5}, {20 * QS}')
        a(f's_add_u32 s{sRes}, s{sRes}, s{sT6}')
        a(f's_mov_b32 s{sT6}, {HP4}')
        a([f's_cmp_lt_u32 s{sT5}, 6', f's_cselect_b32 s{sT6}, s{sT6}, {HP4T - 120 * QS}'])
        a(f's_add_u32 s{sRes}, s{sRes}, s{sT6}')
        a(f's_mov_b32 s{sQS}, {QS}')
        a(f's_lshr_b32 s{sOutB}, s{sRB2w}, 3')
        a(f's_lshl_b32 s{sOutB}, s{sOutB}, 8')
        a(f's_and_b32 s{sT6}, s{sT0}, 3')
        a(f's_lshl2_add_u32 s{sOutB}, s{sT6}, s{sOutB}')
        a(f's_bfe_u32 s{sT6}, s{sRB2w}, 0x10002')
        a(f's_lshl1_add_u32 s{sOutB}, s{sT6}, s{sOutB}')
        a(f's_add_u32 s{sOutB}, s{sOutB}, s{sT4}')
        a(f's_mul_i32 s{sOutB}, s{sOutB}, 1280')
        a(f's_mul_i32 s{sT6}, s{sT5}, 160')
        a(f's_add_u32 s{sOutB}, s{sOutB}, s{sT6}')
        a(f's_lshl_b32 s{sU0}, s{sCB}, 8')
        a(f's_add_u32 s{sU0}, s{sU0}, {PST}')
        a(f's_mov_b32 s{sU1}, {PST}')
        a(f's_and_b32 s{sCB}, s{sCB}, 3')
        a(f's_mul_i32 s{sCB}, s{sCB}, 10')
        a = real
        spw = o['sp'] >> 4 & 1
        fw_ld = f's_load_dword s{sDv}, {sr(S_WS, 2)}, s{sFW}' if spw else f'buffer_load_dword v{TM + 2}, off, {WS}, s{sFW} sc1'
        nw = 40 - 8 * o.get('defer', 2)
        wdp = [wd.pop(0) for _ in range(o['wd_pre'])]

        def mixer(ww, setup, lq, per=6):
            def some(n, nl):
                for i in range(n):
                    a(ww.pop(0))
                    for _ in range(per):
                        if setup:
                            a(setup.pop(0))
                    for _ in range(((i + 1) * nl) // n - (i * nl) // n):
                        if lq:
                            a(lq.pop(0))
            return some

        def side_window(wl, fx_check):
            ww, setup = self.w_writes_main()[:nw], list(setup0)
            self.w_write_addr()
            lq = list(wl)
            hold = [x for x in setup if isinstance(x, str) and (f'v{vW5},' in x or f's{sU1},' in x)]
            setup = [x for x in setup if x not in hold]
            some = mixer(ww, [], lq)
            nl = len(lq)
            n_ = min(nl, nw - 8)
            assert all(40 - nl + (i * nl) // n_ >= 8 * (i // 8 + 1) for i in range(n_))
            some(n_, nl)
            fx_check()
            lq += self.w_loads_tail()
            if o.get('outpf', 2) == 1:
                a(f's_lshr_b32 s{sT0}, s{sSide}, 3')
                a(f's_lshl2_add_u32 s{sT0}, s{sT0}, s{S_W}')
                a(f's_mul_i32 s{sT0}, s{sT0}, {22 * 320}')
                a(f's_and_b32 s{sSide}, s{sSide}, 7')
                a(f's_mul_i32 s{sSide}, s{sSide}, {256 * 1280}')
                a(f's_add_u32 s{sSide}, s{sSide}, s{sT0}')
                a(f'v_min_u32 v{TM}, 21, v0')
                a(f'v_mul_u32_u24 v{TM}, 320, v{TM}')
                lq.insert(o.get('pf_pos', 20), f'buffer_load_dword a255, v{TM}, {sr(S_OUT, 4)}, s{sSide} offen offset:160')
            lq.append(fw_ld)
            mixer(ww, setup, lq)(len(ww), len(lq))
            a(setup)
            a(hold)
            if wdp:
                self.check(S_WS, f's{sFW}', 0 if o.get('nofw') else 8, TM + 2, sDv if spw else None)
            a(wdp)
        self.side_window = side_window
        ww = self.conv_ww
        setup = self.win_pre + setup0
        lq = list(self.win_loads)
        n1, n2 = o.get('ww1', 10), o.get('ww2', 6)
        assert len(ww) - n1 >= 8
        hold = [x for x in setup if isinstance(x, str) and (f'v{vW5},' in x or f's{sU1},' in x)]
        setup[:] = [x for x in setup if x not in hold]
        self.stamp('hbar')
        some = mixer(ww, setup, lq, o.get('su_per', 7))
        assert 5 * o.get('su_per', 7) >= len(self.win_pre)
        some(5, 0)
        fwe = o.get('fwe', 1)
        if wdp and fwe:
            a(fw_ld)
        some(n1 - 5, o.get('l1', 8))
        self.stamp('hissued')
        if wdp and fwe and spw:
            a.need(f's{sDv}')
        a.drain_stores()
        self.stamp('hdrained')
        a('s_barrier')
        self.stamp('hbar2')
        self.arrive_start([(sArr, C_B1)])
        if wdp and not fwe:
            a(fw_ld)
        if wdp and fwe:
            self.check(S_WS, f's{sFW}', 0 if o.get('nofw') else 8, TM + 2, sDv if spw else None)
            nl2 = len(lq) + o.get('l2', 8)
            lq += wdp
            some(n2, nl2)
        else:
            some(n2, len(lq))
        self.arrive_finish([(sArr, 31, C_B2)], TM)
        self.stamp('arrived')
        if wdp and not fwe:
            self.check(S_WS, f's{sFW}', 0 if o.get('nofw') else 8, TM + 2, sDv if spw else None)
            lq += wdp
        some(len(ww), len(lq))
        a(setup)
        a(hold)
        a(lq)
        a('.Ljoin:')
        self.stamp('wwritten')
        a(f's_add_u32 s{sT0}, s{sXo}, {C_B2 * 256}')
        with self.wave0():
            l = a.label('passed')
            if o.get('e2s', 1):
                a(f's_load_dword s{sDv}, {sr(S_WS, 2)}, s{sT0}')
                a('s_waitcnt lgkmcnt(0)')
                a(f's_cmp_ge_u32 s{sDv}, 8')
                a(f's_cbranch_scc1 {l}')
            self.spin(S_WS, f's{sT0}', 0 if o.get('noe2') else 8, t)
            a(f'{l}:')
        self.stamp('polled')
        a('s_waitcnt lgkmcnt(0)')
        a('s_barrier')
        self.stamp(8)
        al = []
        for j in range(40):
            if j % 10 == 0:
                al.append([f'buffer_load_dwordx4 {vr(AB + 4 * j, 4)}, v{vAL}, {WS}, s{sAB + j // 10} offen sc1'])
            else:
                al.append([f's_add_u32 s{sT1}, s{sAB + j // 10}, {(j % 10) * 4 * QS}',
                           f'buffer_load_dwordx4 {vr(AB + 4 * j, 4)}, v{vAL}, {WS}, s{sT1} offen sc1'])
        al.append(f'buffer_load_dwordx4 {ar(CS, 4)}, v{vCS}, {WS}, s{sT2} offen sc1')
        al.append(f'buffer_load_dwordx4 {ar(CS + 4, 4)}, v{vCS}, {WS}, s{sT2} offen offset:256 sc1')
        al.append(f'buffer_load_dwordx4 {ar(CS + 8, 4)}, v{vCS}, {WS}, s{sT3} offen sc1')
        for _ in range(o['a_ahead']):
            a(al.pop(0))

        def rd(dst, slot, j):
            return f'ds_read_b128 {ar(dst, 4)}, v{vRD + slot} offset:{1024 * j}'

        def swaps(j):
            return [f'v_permlane16_swap_b32 v{AB + 4 * j + e}, v{AB + 4 * j + 2 + e}' for e in range(2)]

        def acc(slot):
            return vr(ACC + 16 * slot, 16)
        wtail = [f'ds_write_b128 v{vW5 + (i & 1)}, {ar(160 + 4 * i, 4)} offset:{(i >> 1) * 4096}' for i in range(20)]
        if o.get('nowt'):
            wtail = [[] for _ in wtail]
        C0, C1, R = vS, vS + 1, vS + 2
        c0 = -2.0 * 0.7978845608028654 * 1.4426950408889634
        G = ACC + 48
        gather = [f'buffer_load_dwordx2 {vr(G + 2 * s, 2)}, v{self.vPS}, {WS}, s{sU1} offen offset:{256 * s} sc1'
                  for s in range(8)]
        valid = [f'v_or3_b32 v{t}, v{G + 1}, v{G + 3}, v{G + 5}', f'v_or3_b32 v{t2}, v{G + 7}, v{G + 9}, v{G + 11}',
                 f'v_or3_b32 v{t}, v{t}, v{G + 13}, v{G + 15}', f'v_or_b32 v{t}, v{t}, v{t2}',
                 f'v_cmp_gt_i32 vcc, 0, v{t}']

        def chk_stats():
            slow, back = a.label('slow'), a.label('back')
            a('s_nop 1')
            a(f's_cbranch_vccnz {slow}')
            a(f'{back}:')

            def cold():
                top = a.label('top')
                a(f'{slow}:')
                with a.untracked():
                    a(f's_mov_b32 s{sSpin}, {SPIN}')
                    a(f'{top}:')
                    a(gather)
                    a('s_waitcnt vmcnt(0)')
                    a(valid)
                    a(f's_sub_u32 s{sSpin}, s{sSpin}, 1')
                    a(f's_cbranch_scc1 {back}')
                    a('s_nop 3')
                    a(f's_cbranch_vccnz {top}')
                    a(f's_branch {back}')
            self.cold.append(cold)
        halves = [
            f'v_add_f32 v{vS}, v{vS}, v{vS + 1}',
            f'v_add_f32 v{vS + 2}, v{vS + 2}, v{vS + 3}',
            f'v_mov_b32 v{vS + 1}, v{vS}',
            f'v_mov_b32 v{vS + 3}, v{vS + 2}',
            f'v_cmp_gt_u32 vcc, 32, v{L}',
            f'v_permlane32_swap_b32 v{vS}, v{vS + 1}',
            f'v_permlane32_swap_b32 v{vS + 2}, v{vS + 3}']
        pub = halves + [
            f'v_add_f32 v{G}, v{vS}, v{vS + 1}',
            f'v_add_f32 v{G + 1}, v{vS + 2}, v{vS + 3}',
            f'v_and_b32 v{G + 1}, 0x7fffffff, v{G + 1}',
            ['s_mov_b32 exec_hi, 0',
             f'buffer_store_dwordx2 {vr(G, 2)}, v{self.vPS}, {WS}, s{sU0} offen sc1',
             's_mov_b32 exec_hi, -1']]
        st = valid + [chk_stats]
        for w_ in range(2):
            g = G + w_
            st += [f'v_add_f32 v{g}, v{g}, v{g + 2}', f'v_add_f32 v{g + 4}, v{g + 4}, v{g + 6}',
                   f'v_add_f32 v{g + 8}, v{g + 8}, v{g + 10}', f'v_add_f32 v{g + 12}, v{g + 12}, v{g + 14}',
                   f'v_add_f32 v{vS + 2 * w_}, v{g}, v{g + 4}', f'v_add_f32 v{vS + 2 * w_ + 1}, v{g + 8}, v{g + 12}']
        st += halves + [
            f'v_add_f32 v{vS}, v{vS}, v{vS + 1}',
            f'v_add_f32 v{vS + 2}, v{vS + 2}, v{vS + 3}',
            f'v_mul_f32 v{vS}, {f32(-1 / 640)}, v{vS}',
            f'v_mul_f32 v{vS + 2}, {f32(1 / 640)}, v{vS + 2}',
        ] + ([
            f'v_cvt_pk_bf16_f32 v{t}, v{vS}, 0',
            f'v_fma_f32 v{R}, -v{vS}, v{vS}, v{R}',
            f'v_cndmask_b32 v{BP + 2}, 0, v{t}, vcc',
            f'v_max_f32 v{R}, 0, v{R}',
            f'v_cndmask_b32 v{BP + 3}, 0, v{t}, vcc',
            f'v_cvt_pk_bf16_f32 v{R}, 0, v{R}',
            f'v_add_f32 v{R}, {f32(1e-5)}, v{R}',
            f'v_cvt_pk_bf16_f32 v{R}, 0, v{R}',
            f'v_sqrt_f32 v{R}, v{R}',
            f'v_cvt_pk_bf16_f32 v{R}, 0, v{R}',
            f'v_rcp_f32 v{vS + 3}, v{R}',
            f'v_mul_f32 v{R}, v{R}, v{R}',
        ] if o.get('mim', 3) & 2 else [
            f'v_cvt_pk_bf16_f32 v{t}, v{vS}, v{vS}',
            f'v_fma_f32 v{R}, -v{vS}, v{vS}, v{R}',
            f'v_lshlrev_b32 v{t}, 16, v{t}',
            f'v_max_f32 v{R}, 0, v{R}',
            f'v_sub_f32 v{t2}, v{vS}, v{t}',
            f'v_add_f32 v{R}, {f32(1e-5)}, v{R}',
            f'v_cvt_pk_bf16_f32 v{t}, v{t}, v{t2}',
            f'v_rsq_f32 v{vS + 3}, v{R}',
            f'v_cndmask_b32 v{BP + 2}, 0, v{t}, vcc',
            f'v_cndmask_b32 v{BP + 3}, 0, v{t}, vcc',
        ]) + [
            f'v_mul_f32 v{C0}, {f32(c0)}, v{vS + 3}',
            f'v_mul_f32 v{t}, v{vS + 3}, v{vS + 3}',
            f'v_mul_f32 v{t}, {f32(0.044715)}, v{t}',
            f'v_mul_f32 v{C1}, v{t}, v{C0}',
        ]
        if o.get('perturb'):
            st.append(f'v_mul_f32 v{R}, {f32(1 / (1 + o["perturb"]))}, v{R}')

        def csm(tile, slot, first):
            b = vr(BP, 4) if tile & 1 else vr(BP + 2, 4)
            return f'v_mfma_f32_32x32x16_bf16 {acc(slot)}, {ar(CS + 4 * (tile >> 1), 4)}, {b}, {"0" if first else acc(slot)}'

        def pick(r0, r1):
            a(f's_set_gpr_idx_on s{sCB}, gpr_idx(SRC0)')
            a('s_nop 0')
            for r in range(r0, r1):
                a(f'v_mov_b32_e32 v{G + r}, v{AB + r}')
            a('s_set_gpr_idx_off')
        for j in range(2):
            for s in range(3):
                a(rd(RING1 + 12 * j + 4 * s, s, j))
        a(swaps(0))
        self.stamp('a0')
        p2 = [(3, 3, j) for j in range(40)] + [(4, 0, j) for j in range(40)] + [(5, 1, j) for j in range(40)]
        gq = list(gather)
        GJ, SJ = o.get('gather_j', 23), o.get('stat_j', 33)
        BARS = [int(x) for x in str(o.get('bars', '11x23x31')).split('x')]
        nwd1 = min(o.get('wd_p1', 6), 31 - o['wd_pre'])
        assert not ww
        NR = o.get('ring', 8)
        assert NR == 4 or o['wd_post'] >= 4

        def r2(i):
            return RING2 + 4 * (i & 3) if NR == 4 else 224 + 4 * ((i + 4) & 7)
        vAT = [vA2, vW5, vW5 + 1, self.vPS]
        misc = [f's_mov_b32 s{24 + k}, {ACT + 16384 * (k >> 1) + 4096 * (k & 1)}' for k in range(6)]
        misc += [f'v_mov_b32 v{BP + i}, 0' for i in (0, 1, 4, 5)] + [f'v_mov_b32 v{vS + i}, 0' for i in range(4)]
        wdone, wfree = 0, 0
        C1CAP = o.get('cap1', 5)
        for j in range(40):
            base = RING1 + 12 * (j & 1)
            self.stamp(f'p{j}')
            a.need(ar(base, 12))
            for s in range(3):
                c = '0' if j == 0 else acc(s)
                a(f'v_mfma_f32_32x32x16_bf16 {acc(s)}, {ar(base + 4 * s, 4)}, {vr(AB + 4 * j, 4)}, {c}')
                used = 1 if s < 2 else 2
                if j < 38:
                    a(rd(base + 4 * s, s, j + 2))
                else:
                    i = (j - 38) * 3 + s
                    if i < 4:
                        a(rd(r2(i), p2[i][1], p2[i][2]))
                if s == 0 and j < 39:
                    a(swaps(j + 1))
                    used += 3 if j < SJ else 2
                if j == 39:
                    if s == 0:
                        a('s_barrier')
                        wtail = wtail[-4:] + wtail[:-4]
                    else:
                        a(wtail.pop(0))
                elif s == 1 and wdone < wfree:
                    a(wtail.pop(0))
                    wdone += 1
                    used += 4
                if s == 2:
                    if al:
                        a(al.pop(0))
                        used += 3
                    elif nwd1 and not gq and j < o.get('wd1_hi', 39):
                        a(wd.pop(0))
                        nwd1 -= 1
                        used += 2
                if j >= GJ and gq and s < 2:
                    a(gq.pop(0))
                    used += 2
                q = misc if j < 8 else pub if j < SJ else st
                while q and used < C1CAP + (o.get('cap1s', 1) if q is st else 0) and j != 8:
                    a(q.pop(0))
                    used += 1
            if j in BARS:
                a('s_barrier')
                wfree = 2 * ((j + 1) // 4)
            if j == 8:
                a(f's_set_gpr_idx_on s{sCB}, gpr_idx(SRC0,SRC1)')
                a('s_nop 0')
                for r in range(10):
                    a(f'v_dot2c_f32_bf16_e32 v{vS + (r & 1)}, s{sOne}, v{AB + r}')
                    a(f'v_dot2c_f32_bf16_e32 v{vS + 2 + (r & 1)}, v{AB + r}, v{AB + r}')
                a('s_set_gpr_idx_off')
            if o.get('verbose') and j in (9, 10, 11, 12, 37, 38):
                print('step', j, 'pub', len(pub), 'st', len(st))
        assert not pub and not al and not st and not misc
        RES, vRes, vRes2 = 200, vAL, vCS
        res_addr = [
            f'v_and_b32 v{vRes}, 15, v{L}',
            f'v_lshl_add_u32 v{vRes2}, v{vRes}, 4, s{sRes}',
            f'v_lshrrev_b32 v{vRes}, 4, v{L}',
            f'v_mad_u32_u24 v{vRes2}, v{vRes}, s{sQS}, v{vRes2}',
            f'v_mad_u32_u24 v{vRes}, v{vRes}, s{sQS}, v{vRes2}',
        ]
        for tl in range(3):
            a(csm(tl, tl, False))
            a(wtail.pop(0) if wtail else [])
        self.stamp(9)

        def epi(tile, slot, packed=False):
            b = ACC + 16 * slot
            tm = [TM, TM + 1, TM + 2, TM + 3]
            ops = []
            for h in range(2):
                g, u = b + 8 * h, b + 8 * h + 4
                if packed:
                    P = lambda r, i: vr(r + 2 * i, 2)
                    cc, rr = vr(C0, 2), vr(R, 2)
                    ops += [(1, f'v_pk_mul_f32 {P(TM, i)}, {P(g, i)}, {P(g, i)}') for i in range(2)]
                    ops += [(1, f'v_pk_fma_f32 {P(TM, i)}, {P(TM, i)}, {cc}, {cc} op_sel:[0,1,0] op_sel_hi:[1,1,0]') for i in range(2)]
                    ops += [(1, f'v_pk_mul_f32 {P(u, i)}, {P(u, i)}, {P(g, i)}') for i in range(1)]
                    ops += [(1, f'v_pk_mul_f32 {P(TM, i)}, {P(TM, i)}, {P(g, i)}') for i in range(2)]
                    ops += [(2, f'v_exp_f32 v{tm[i]}, v{tm[i]}') for i in range(4)]
                    ops += [(1, f'v_pk_mul_f32 {P(u, i)}, {P(u, i)}, {P(g, i)}') for i in range(1, 2)]
                    ops += [(1, f'v_pk_fma_f32 {P(TM, i)}, {P(TM, i)}, {rr}, {rr} op_sel:[0,0,0] op_sel_hi:[1,0,0]') for i in range(2)]
                    ops += [(2, f'v_rcp_f32 v{tm[i]}, v{tm[i]}') for i in range(4)]
                    ops += [(1, f'v_pk_mul_f32 {P(u, i)}, {P(u, i)}, {P(TM, i)}') for i in range(2)]
                    ops += [(1, f'v_cvt_pk_bf16_f32 v{b + 2 * h + i}, v{u + 2 * i}, v{u + 2 * i + 1}') for i in range(2)]
                    continue
                ops += [(1, f'v_mul_f32 v{tm[i]}, v{g + i}, v{g + i}') for i in range(4)]
                ops += [(1, f'v_fma_f32 v{tm[i]}, v{tm[i]}, v{C1}, v{C0}') for i in range(4)]
                ops += [(1, f'v_mul_f32 v{tm[i]}, v{tm[i]}, v{g + i}') for i in range(4)]
                for i in range(4):
                    ops += [(2, f'v_exp_f32 v{tm[i]}, v{tm[i]}'), (1, f'v_mul_f32 v{u + i}, v{u + i}, v{g + i}')]
                ops += [(1, f'v_fma_f32 v{tm[i]}, v{tm[i]}, v{R}, v{R}') for i in range(4)]
                ops += [(2, f'v_rcp_f32 v{tm[i]}, v{tm[i]}') for i in range(4)]
                ops += [(1, f'v_mul_f32 v{u + i}, v{u + i}, v{tm[i]}') for i in range(4)]
                ops += [(1, f'v_cvt_pk_bf16_f32 v{b + 2 * h + i}, v{u + 2 * i}, v{u + 2 * i + 1}') for i in range(2)]
            so = sA if tile < 4 else sB
            txt = f'buffer_store_dwordx4 {vr(b, 4)}, v{vAS}, {WS}, s{so} offen offset:{(tile & 3) * 1024} sc1'
            ops.append((5, (lambda: a(txt, tag=f'act{tile}')) if not o.get('nost') else []))
            if o.get('noepi'):
                ops = [(c_, x if callable(x) else []) for c_, x in ops]
            return ops

        G2 = 72
        FR = [[8 + 4 * i for i in range(16)],
              [152 + 4 * i for i in range(4)] + [200 + 4 * i for i in range(8)] + [168 + 4 * i for i in range(4)],
              [8 + 4 * i for i in range(16)]]
        order = [[(c, lam) for lam in (3, 2, 1, 0) for c in range(4)]] * 3

        def act_ld(pi, n):
            c, lam = order[pi][n]
            if o.get('noact'):
                return []
            if o.get('atab', 1):
                k = kap[pi][c]
                return f'buffer_load_dwordx4 {vr(FR[pi][n], 4)}, v{vAT[lam]}, {WS}, s{24 + (k >> 1)} offen offset:{2048 * (k & 1)} sc1'
            return [f's_add_u32 s{sT1}, s{sL[lam]}, {ACT + 16384 * (kap[pi][c] >> 2) + 2048 * (kap[pi][c] & 3)}',
                    f'buffer_load_dwordx4 {vr(FR[pi][n], 4)}, v{vA2}, {WS}, s{sT1} offen sc1']

        def sig(pi, tag):
            def f():
                self.stamp(f'presig{pi}')
                a.need_tag(tag)
                if o.get('wgsig', 0) >> pi & 1:
                    l = a.label('nosig')
                    a('s_barrier')
                    a(f's_bitcmp1_b32 s{S_W}, 0')
                    a(f's_cbranch_scc1 {l}')
                    with a.untracked():
                        self.signal(f's{sF3s}', pi)
                    a(f'{l}:')
                else:
                    self.signal(f's{sF3s}', pi)
                self.stamp(f'sig{pi}')
                if pi < 2:
                    a(f's_add_u32 s{sF3s}, s{sF3s}, 2048')
            return f

        def poll_ld(pi):
            if o['sp'] >> pi & 1:
                return f's_load_dword s{sDv}, {sr(S_WS, 2)}, s{sF3p}'
            return f'buffer_load_dword v{vFl}, off, {WS}, s{sF3p} sc1'

        def poll_chk(pi):
            def f():
                self.stamp(f'prechk{pi}')
                self.check(S_WS, f's{sF3p}', 0 if o.get('noe3', 0) >> pi & 1 else 16 if o.get('wgsig', 0) >> pi & 1 else 32, vFl,
                           sDv if o['sp'] >> pi & 1 else None)
                self.stamp(f'chk{pi}')
                if pi < 2:
                    a(f's_add_u32 s{sF3p}, s{sF3p}, 2048')
            return f
        RES, vRes, vRes2 = 200, vAL, vCS
        res_addr = [
            f'v_and_b32 v{vRes}, 15, v{L}',
            f'v_lshl_add_u32 v{vRes2}, v{vRes}, 4, s{sRes}',
            f'v_lshrrev_b32 v{vRes}, 4, v{L}',
            f'v_mad_u32_u24 v{vRes2}, v{vRes}, s{sQS}, v{vRes2}',
            f'v_mad_u32_u24 v{vRes}, v{vRes}, s{sQS}, v{vRes2}',
        ]
        res_ld = []
        for nt in range(5):
            q = 8 * (nt >> 1) + (nt & 1)
            res_ld.append([f's_mov_b32 s{sT6}, {q * QS}',
                           f'buffer_load_dwordx2 {vr(RES + 2 * nt, 2)}, v{vRes2 if nt == 4 else vRes}, {WS}, s{sT6} offen sc1'])
        slot_of = {0: 0, 1: 1, 2: 2, 3: 3, 4: 0, 5: 1}
        eq = epi(0, 0) + epi(1, 1) + epi(2, 2)
        budget = 0.0
        RATE = o['epi_rate']
        extra = {i: [] for i in range(120)}
        first_w = wtail.pop(0) if wtail else []
        extra0 = {k: wtail[k] for k in range(len(wtail))}
        wlast, nxt = o.get('grow', 0), 4
        extra[o.get('bar4', 26)].append('s_barrier')
        if o.get('atab', 1):
            for lam in (1, 2, 3, 0):
                extra[72 + (lam or 4)].append(f'v_add_u32 v{vAT[lam]}, s{sL[lam]}, v{vA2}')
        for k, x in enumerate(res_addr):
            extra[66 + k].append(x)
        nwd = len(wd) - o.get('wd_post', 12)
        done = 60 - len(wd)
        lo, hi = o.get('wd_lo', 4), o.get('wd_hi', 78)
        hold = None
        for k in range(nwd):
            g = wd.pop(0)
            p = lo + (k * (hi - lo)) // nwd
            fr = done + k
            if fr == 39:
                extra[81].append([f's_mov_b32 s{sT6}, {WDF + 5120 * kap[1][3]}', g[-1].replace(f's{sWoff} offen', f's{sT6} offen')] if g else [])
                continue
            assert fr < 56 or p > 14
            extra[p].append(g)
        SA, SB = o.get('siga', 62), o.get('sigb', 104)
        extra[SA].append(sig(0, 'act1'))
        extra[o.get('lda', 86)].append(poll_ld(0))
        for k, x in enumerate(res_ld):
            extra[o.get('res_at', 86) + 2 * k].append(x)
        ca = o.get('chka', 105)
        extra[ca].append(poll_chk(0))
        na = o.get('a_in', 7)
        for n in range(na):
            extra[ca + 1 + (n * (119 - ca)) // na].append(act_ld(0, n))
        extra[SB].append(sig(1, 'act3'))
        extra[50].append('s_barrier')

        def cost(x):
            if callable(x):
                return 3
            if isinstance(x, (list, tuple)):
                return sum(cost(y) for y in x)
            return 5 if x.startswith('ds_write') else 2 if x.startswith('buffer') or x == 's_barrier' else 1
        CAP = o.get('cap', 6.6)
        for i, (tile, ls, j) in enumerate(p2):
            slot = slot_of[tile]
            self.stamp(f'q{i}')
            if j == 0:
                a(csm(tile, slot, True))
                if i == 0:
                    a(first_w)
                if i:
                    budget = 6
                    while eq and budget >= eq[0][0]:
                        cst, x = eq.pop(0)
                        budget -= cst
                        a(x)
            WP = 2 if NR == 4 or i < 12 else o.get('wper', 4)
            if i % WP == 0:
                a.need(*[ar(r2(i + z), 4) for z in range(WP)])
            a(f'v_mfma_f32_32x32x16_bf16 {acc(slot)}, {ar(r2(i), 4)}, {vr(AB + 4 * j, 4)}, {acc(slot)}')
            a(extra0.get(i, []))
            nrd = 0
            while nxt < len(p2) and nxt <= i + NR and nrd < (2 if i >= wlast else 1):
                if NR == 8 and i < wlast:
                    a(rd(r2(nxt + 4), p2[nxt][1], p2[nxt][2])) if False else None
                a(rd(r2(nxt), p2[nxt][1], p2[nxt][2]))
                nxt += 1
                nrd += 1
            a(extra[i])
            if i == 42:
                eq += epi(3, 3)
            if i == 82:
                eq += epi(4, 0)
                if o.get('st4_late'):
                    st4 = eq.pop()[1]
            if i >= 1:
                budget = min(budget, 1.0) + CAP - nrd - ((i + 1) % WP == 0) - cost(extra[i]) - cost(extra0.get(i, []))
                budget = max(budget, -1)
                while eq and budget >= min(eq[0][0], 2):
                    cst, x = eq.pop(0)
                    budget -= cst
                    a(x)
                    if callable(x) and o.get('verbose'):
                        print('store at gap', i)
                if i == 39:
                    assert len(eq) <= 2 * 69, len(eq)
                if i == SA - 1:
                    assert len(eq) <= 2 * 69, len(eq)
                if i == 79:
                    assert len(eq) <= 2 * 69, len(eq)
                if i == o.get('res_at', 86) - 1:
                    assert len(eq) <= 2 * 69, len(eq)
                if i == SB - 1:
                    assert len(eq) <= 69, len(eq)
            if j == 39:
                self.stamp(f't{tile}')
        for cst, x in eq:
            a(x)
        a(f's_mov_b32 s{sT0}, 0xffff0000')
        for i in range(10):
            a(f'v_lshlrev_b32 v{G2 + 2 * i}, 16, v{RES + i}')
            a(f'v_and_b32 v{G2 + 2 * i + 1}, s{sT0}, v{RES + i}')
        e5 = epi(5, 1, o.get('pk5', 1))
        LA = o.get('la2', 12)
        rest = [act_ld(0, n) for n in range(na, LA)]
        if o.get('ldb', -1) < 0:
            rest.append(poll_ld(1))
        if o.get('st4_late'):
            rest.append(st4)
        k = 0
        for i, (cst, x) in enumerate(e5):
            while k < len(rest) and (k + 1) * (len(e5) - 1) <= i * len(rest):
                a(rest[k])
                k += 1
            a(x)
        assert k == len(rest)
        self.stamp(10)

        vOut, vRR, vRW, vTW, vTR = 4, 7, 232, 238, 242
        RED = 2 * TILE
        setup = [
            f's_movk_i32 s{sT6}, {16 * 1280 - 160}',
            f's_movk_i32 s{sT5}, 6554',
            f's_movk_i32 s{sT4}, 176',
            f's_mul_i32 s{sT3}, s{S_W}, {16 * 176}',
            f'v_and_b32 v{t}, 15, v{L}',
            f'v_lshrrev_b32 v{t2}, 4, v{L}',
            f'v_mov_b32 v{vTW + 1}, s{sT3}',
            f'v_mad_u32_u24 v{vTW + 1}, v{t}, s{sT4}, v{vTW + 1}',
            f'v_lshl_add_u32 v{vTW}, v{t2}, 4, v{vTW + 1}',
            f'v_lshl_add_u32 v{vTW + 1}, v{t2}, 3, v{vTW + 1}',
        ]
        setup += [f'v_mul_u32_u24 v{t2}, s{sT5}, v{L}',
                  f'v_lshrrev_b32 v{t2}, 16, v{t2}',
                  f'v_lshl_add_u32 v{vOut}, v{L}, 4, s{sOutB}',
                  f'v_mad_u32_u24 v{vOut}, v{t2}, s{sT6}, v{vOut}',
                  f'v_add_u32 v{t}, v{L}, v{t2}',
                  f'v_lshl_add_u32 v{vTR}, v{t}, 4, s{sT3}',
                  f's_mov_b32 s{sT4}, {6 * 16 * 1280}',
                  f's_mov_b32 s{sT5}, {12 * 16 * 1280}']
        for lam in range(4):
            setup += [f's_xor_b32 s{sT0}, s{S_W}, {lam}', f's_mul_i32 s{sT0}, s{sT0}, {15 * 1024}',
                      f's_add_u32 s{sT0}, s{sT0}, {RED + (lam - 1) * 5120 if lam else RED}',
                      f'v_lshl_add_u32 v{vRW + lam - 1 if lam else vRR}, v{L}, 4, s{sT0}']

        def mf2(pi, n, nt):
            c, lam = order[pi][n]
            d = vr(G2 + 4 * (5 * lam + nt), 4)
            cin = '0' if (pi == 0 and c == 0 and lam != 0) else d
            return f'v_mfma_f32_16x16x32_bf16 {d}, {ar(4 * (5 * (4 * pi + c) + nt), 4)}, {vr(FR[pi][n], 4)}, {cin}'
        ex = [{i: [] for i in range(80)} for _ in range(3)]
        for k, x in enumerate(setup):
            ex[0][k].append(x)
        def put(pos, x):
            ex[pos // 80][pos % 80].append(x)
        if o.get('ldb', -1) >= 0:
            put(o['ldb'], poll_ld(1))
        cb_, cc_ = o.get('chkb', 5 * (16 - LA)), 80 + o.get('chkc', 44)
        put(cb_, [poll_chk(1), lambda: self.stamp('chkb')])
        put(o.get('sigc', 40), [sig(2, 'act5'), lambda: self.stamp('sigc')])
        put(80 + o.get('ldc', 28), poll_ld(2))
        put(cc_, [lambda: self.stamp('chkc0'), poll_chk(2), lambda: self.stamp(11)])
        pos = 0
        for g in range(LA, 48):
            pos = max(pos + (o.get('burst', 2) if g >= 16 else 0), o.get('g_gap', 5) * (g - LA) if g < 32 else 5 * (g - LA),
                      cb_ if g >= 16 else 0, cc_ if g >= 32 else 0)
            assert pos < 20 * (g // 4)
            put(pos, act_ld(g // 16, g % 16))
            if g < 32 and wd and 32 - g <= len(wd) + o.get('wdp_early', 0):
                put(pos + 2, wd.pop(0))
        assert not wd
        chain = o.get('chain', 1)
        for blk, lam in enumerate((3, 2, 1)):
            for nt in range(5):
                ex[2][20 * blk + 4 * nt + 12 if chain else 20 * (blk + 1) + 5 + 2 * nt].append(
                    f'ds_write_b128 v{vRW + lam - 1}, {vr(G2 + 4 * (5 * lam + nt), 4)} offset:{1024 * nt}')
        RD, RR = 152, 8
        red2 = o.get('red2', 1)

        def rd_part(s_, nt):
            return f'ds_read_b128 {vr(RD + 12 * nt + 4 * s_, 4)}, v{vRR} offset:{5120 * s_ + 1024 * nt}'
        if red2:
            assert chain
            b1, b2 = o.get('rb1', 52), o.get('rb2', 72)
            ex[2][b1] += [f's_waitcnt lgkmcnt({(b1 - 48) // 4})', 's_barrier']
            k = 0
            for nt in range(5):
                for s_ in (2, 1):
                    ex[2][b1 + 1 + k].append(rd_part(s_, nt))
                    k += 1
            adds = [f'v_add_f32 v{RD + 12 * nt + 4 + r}, v{RD + 12 * nt + 4 + r}, v{RD + 12 * nt + 8 + r}'
                    for nt in range(5) for r in range(4)]
            for k, x in enumerate(adds):
                ex[2][min(79, b1 + 12 + k // 2)].append(x)
            ex[2][b2] += ['s_waitcnt lgkmcnt(0)', 's_barrier']
            for nt in range(5):
                ex[2][min(79, b2 + nt)].append(rd_part(0, nt))
        for pi in range(3):
            for i in range(80):
                if chain:
                    a(mf2(pi, 4 * (i // 20) + (i & 3), i % 20 // 4))
                else:
                    a(mf2(pi, i // 5, i % 5))
                self.stamp(f'm{80 * pi + i}')
                a(ex[pi][i])
            self.stamp('end' + 'ABC'[pi])
        if not red2:
            a('s_waitcnt lgkmcnt(0)')
            a('s_barrier')
            for nt in range(5):
                for s_ in range(3):
                    a(rd_part(s_, nt))
        self.stamp('redbar')
        sc = ' sc1' if o['out_sc1'] else ''
        if red2:
            for nt in range(5):
                for p in range(2):
                    a(f'v_pk_add_f32 {vr(G2 + 4 * nt + 2 * p, 2)}, {vr(G2 + 4 * nt + 2 * p, 2)}, {vr(RD + 12 * nt + 4 + 2 * p, 2)}')
        for nt in range(5):
            b = RD + 12 * nt
            c = G2 + 4 * nt
            for p in range(2):
                a(f'v_pk_add_f32 {vr(c + 2 * p, 2)}, {vr(c + 2 * p, 2)}, {vr(b + 2 * p, 2)}')
                if not red2:
                    a(f'v_pk_add_f32 {vr(b + 4 + 2 * p, 2)}, {vr(b + 4 + 2 * p, 2)}, {vr(b + 8 + 2 * p, 2)}')
            for p in range(2):
                if not red2:
                    a(f'v_pk_add_f32 {vr(c + 2 * p, 2)}, {vr(c + 2 * p, 2)}, {vr(b + 4 + 2 * p, 2)}')
            for p in range(2):
                a(f'v_cvt_pk_bf16_f32 v{RR + 2 * nt + p}, v{c + 2 * p}, v{c + 2 * p + 1}')
            if nt & 1:
                a(f'ds_write_b128 v{vTW}, {vr(RR + 2 * nt - 2, 4)} offset:{64 * (nt >> 1)}')
            if nt == 4:
                a(f'ds_write_b64 v{vTW + 1}, {vr(RR + 8, 2)} offset:128')
        for k in range(3):
            a(f'ds_read_b128 {vr(RR + 12 + 4 * k, 4)}, v{vTR} offset:{6 * 176 * k}')
        a('s_mov_b32 exec_hi, 0xfffffff')
        for k in range(3):
            if k == 2:
                a('s_mov_b32 exec_hi, 0xff')
            a(f'buffer_store_dwordx4 {vr(RR + 12 + 4 * k, 4)}, v{vOut}, {sr(S_OUT, 4)}, {("0", f"s{sT4}", f"s{sT5}")[k]} offen{sc}')
        a('s_mov_b32 exec_hi, -1')
        lz = a.label('nz')
        a('s_cmp_lg_u32 s2, 0')
        a(f's_cbranch_scc1 {lz}')
        with a.untracked():
            a(f'buffer_store_dword v{BP}, off, {sr(S_DBG, 4)}, 0 sc1')
            a(f'buffer_store_dword v{BP}, off, {sr(S_DBG, 4)}, 0 offset:128 sc1')
        a(f'{lz}:')
        if self.diag:
            self.stamp('outst')
            a('s_waitcnt vmcnt(0)')
            self.stamp(12)
            a('s_waitcnt lgkmcnt(0)')
            with self.wave0():
                a(f's_lshl_b32 s{sT0}, s2, 7')
                a(f's_add_u32 s{sT0}, s{sT0}, {STAMP}')
                a(f's_sub_u32 s{S_WS}, s{S_WS}, s0')
                a(f's_subb_u32 s{S_WS + 1}, s{S_WS + 1}, 0')
                a('v_mov_b32 v0, s0')
                a(f'buffer_store_dword v0, off, {WS}, s{sT0} offset:60')
                for i in range(NSTAMP):
                    a(f'v_mov_b32 v0, s{S_STAMP + 2 * i}')
                    a(f'buffer_store_dword v0, off, {WS}, s{sT0} offset:{4 * i}')
        if self.opt.get('fixt'):
            with a.untracked():
                fs = S_STAMP + 2 * self.opt.get("fixs", 0)
                if self.opt.get('fixmax'):
                    fm = self.opt['fixmax']
                    lo, hi = {'all': (0, 256), 'conv': (0, 160), 'side': (160, 256)}[fm] if fm[0] != 'w' else (int(fm[1:]), int(fm[1:]) + 1)
                    a(f's_cmp_lg_u32 s{S_W}, 0')
                    a('s_cbranch_scc1 .Lend')
                    a(f's_sub_u32 s{sT0}, s2, {lo}')
                    a(f's_cmp_lt_u32 s{sT0}, {hi - lo}')
                    a(f's_cselect_b32 s{sT0}, s{fs}, 0')
                    a(f'v_mov_b32 v1, s{sT0}')
                    a('s_mov_b64 exec, 1')
                    a(f'buffer_atomic_umax v1, off, {sr(S_DBG, 4)}, 0 offset:64 sc1')
                    a('s_cmp_lg_u32 s2, 0')
                    a('s_cbranch_scc1 .Lend')
                    a('.Lfix0:')
                    a(f's_memrealtime {sr(sT0, 2)}')
                    a('s_waitcnt lgkmcnt(0)')
                    a(f's_sub_u32 s{sT0}, s{sT0}, s{S_STAMP}')
                    a(f's_cmp_lt_u32 s{sT0}, 3500')
                    a('s_cbranch_scc1 .Lfix0')
                    a(f'buffer_load_dword v1, off, {sr(S_DBG, 4)}, 0 offset:64 sc1')
                    a('s_waitcnt vmcnt(0)')
                    a(f'v_readfirstlane_b32 s{sT3}, v1')
                    a('s_nop 4')
                    fs = sT3
                a(f's_cmp_lg_u32 s2, {self.opt.get("fixwg", 0)}')
                a('s_cbranch_scc1 .Lend')
                a(f's_cmp_lg_u32 s{S_W}, 0')
                a('s_cbranch_scc1 .Lend')
                a(f's_sub_u32 s{sT2}, s{fs}, s{S_STAMP + 2 * self.opt.get("fixb", 0)}')
                a(f's_add_u32 s{sT2}, s{sT2}, {self.opt.get("fixbias", 0)}')
                a(f's_mul_i32 s{sT2}, s{sT2}, 10')
                a(f's_min_u32 s{sT2}, s{sT2}, 100000')
                a(f's_add_u32 s{sT2}, s{sT2}, {self.opt["fixt"]}')
                a('.Lfix:')
                a(f's_memrealtime {sr(sT0, 2)}')
                a('s_waitcnt lgkmcnt(0)')
                a(f's_sub_u32 s{sT0}, s{sT0}, s{S_STAMP}')
                a(f's_cmp_lt_u32 s{sT0}, s{sT2}')
                a('s_cbranch_scc1 .Lfix')
        a('.Lend:')
        a('s_endpgm')

    def build(self):
        a = self.a
        if self.diag:
            for i in range(2 * NSTAMP):
                a(f's_mov_b32 s{S_STAMP + i}, 0')
        self.prologue()
        self.conv()
        self.gemms()
        self.side()
        for c in self.cold:
            a.fresh()
            a('s_nop 7')
            c()
        a('.Lcode_end:')
        a('s_endpgm')
        pads = (self.opt.get('base', 0x300), NPAD, sr(sRet, 2), '.Lend', self.opt.get('pstride', 4096)) if self.opt['pads'] else None
        hoist = [('.Lhead_a0:', '.Lhead_a1:'), ('.Lhead_b0:', '.Lhead_b1:')] if self.opt.get('head', 0) else []
        front, body = a.finish(verbose=True, align=self.opt.get('align', 1), pads=pads, hoist=hoist)
        body += '.p2align 12\n    s_endpgm\n'
        ref = open('cdna_kernels/' + NAME + '.s.ref').read().split('\n')
        head = [l for l in ref if l.startswith(';') and '@launch' not in l and 'Override' not in l and 'grid=ceil' not in l]
        txt = '\n'.join(head) + '\n'
        txt += '; One persistent launch: kv/transposition -> Toeplitz-MFMA long conv -> gate/up GEMM + GEGLU -> down GEMM.\n'
        txt += '; @launch grid=(256,1,1) block=(256,1,1) lds=163840\n'
        txt += f'''.amdgcn_target "amdgcn-amd-amdhsa--gfx950"
.text
{front}.globl {NAME}_kernel
.p2align 8
.type {NAME}_kernel,@function
{NAME}_kernel:
{body}.section .rodata,"a"
.p2align 6
.amdhsa_kernel {NAME}_kernel
  .amdhsa_next_free_vgpr 512
  .amdhsa_next_free_sgpr 102
  .amdhsa_accum_offset 256
  .amdhsa_group_segment_fixed_size 0
  .amdhsa_kernarg_size 104
  .amdhsa_user_sgpr_count 2
  .amdhsa_user_sgpr_kernarg_segment_ptr 1
  .amdhsa_system_sgpr_workgroup_id_x 1
  .amdhsa_float_denorm_mode_32 3
.end_amdhsa_kernel
'''
        return txt


if __name__ == '__main__':
    out = sys.argv[1]
    diag = 'diag' in sys.argv[2:]
    opt = {}
    for x in sys.argv[2:]:
        if '=' in x:
            k, v = x.split('=')
            try:
                v = int(v)
            except ValueError:
                try:
                    v = float(v)
                except ValueError:
                    pass
            opt[k] = v
    open(out, 'w').write(Gen(diag, opt).build())
```

```python
import struct
import sys
from asmlib import Asm, vr, ar, sr

NAME = 'sequential_preLN__ssm_conv_h3__geglu_ffn__prompt'

MB = 1 << 20
QS = 16384
CNT = 0
CF3 = 16384
PROBE = 32768
ST1 = 49152
CSF = 65536
STAMP = 98304
PST = 131072
W45F = PST + 262144
WDF = 2 * MB
KVX, KVXT = 4 * MB, 8 * MB
KVM = 36 * MB
XP4, XP4T = 12 * MB, 8 * MB + 524288
HP4, HP4T = 16 * MB, 9 * MB
ACT = 20 * MB
WS_END = 40 * MB
C_F1, C_F1B, C_FX, C_FW, C_FXR, C_B1, C_B2, C_FWR = [4 * i for i in range(8)]


def grp_base(g, main, tail):
    return (main + (g & 3) * 524288 + (g >> 2) * 8192) if g < 8 else tail + (g - 8) * 8192


SPIN = 100000

S_W = 3
S_K, S_V, S_SH, S_SK, S_X, S_WG, S_WU, S_WD, S_OUT, S_DBG, S_WS = 4, 8, 12, 16, 20, 24, 28, 32, 36, 40, 44
S_D = 48
sX, sJ, sG, sM, sQ, sRB, sCB, sA, sB, sRot = 50, 51, 52, 53, 54, 55, 56, 57, 58, 59
sT0, sT1, sT2, sT3, sT4, sT5, sT6, sT7 = 60, 61, 62, 63, 64, 65, 66, 67
sWoff, sWoff2, sSpin, sDv = 68, 69, 70, 71
sOne, sU0, sU1, sU2 = 72, 73, 74, 75
sXo = 1
sRet = 48
NPAD = 8
S_STAMP = 76
NSTAMP = 13
sAB = 4
sL = [8, 9, 10, 11]
sPL, sPH, sFW, sSide, sArr = 16, 17, 18, 19, 23
sE = [None, 12, 13, 14]

GSTR = 4128
GOFF, UOFF, ZOFF = 16384, 33024, 32768
TILE = 40960
WS = sr(S_WS, 4)


def f32(x):
    return '0x%08x' % struct.unpack('<I', struct.pack('<f', x))[0]


class Gen:
    def __init__(self, diag=False, opt=None):
        self.a = Asm()
        self.diag = diag
        self.opt = dict(place=1, w_kv=0, w_e1=8, apoll=9, w_u=0, tb_pre=0, tb_mid=4, ssm=0, sp=31, defer=0, wdp_from=24, a_ahead=10, sig='v', epi_rate=4.5,
                        fx_it=3, early_n=0, out_sc1=1, pads=1, wd_pre=20, wd_post=4, l2=10, wd_p1=11, chkb=20, sigc=39, ssig=4, ldc=24, chkc=38, wd_pre1=8, arr='s')
        if opt:
            self.opt.update(opt)
        self.cold = []

    PROF = {
        'main': [0, 1, 2, 3, 4, 5, 6, 7, 8, 9, 10, 11, 12],
        'front': [0, 'karg', 'issued', 1, 'kvdone', 2, 'tbpre', 'drained', 3, 'tbpost', 4, 'uload', 5],
        'e2': [0, 6, 'zbar', 7, 'hbar', 'hissued', 'hdrained', 'hbar2', 'arrived', 'wwritten', 'polled', 8, 'a0'],
        'g1': [0, 8, 'a0', 'p8', 'p16', 'p24', 'p32', 9, 't3', 't4', 't5', 10, 12],
        'g2a': [0, 't5', 10, 'm4', 'prechk1', 'chk1', 'm24', 'presig2', 'sig2', 'm44', 'm64', 'endA', 'm84'],
        'sum': [0, 'x1', 'x2', 'x3', 'x4', 'x5', 'x6', 7, 8, 'x9', 'x10', 'x11', 12],
        'side': [0, 'sx_in', 'sx_issued', 'sx_data', 'sx_bar', 'sx_st', 'sx_ld2', 'sx_dr', 1, 2, 6, 7, 8],
        'loop': [0, 4, 5, 'it1', 'it2', 'it3', 'it4', 'it5', 'it6', 'it7', 6, 7, 8],
        'g1c': [0, 'a0', 'p4', 'p8', 'p12', 'p16', 'p20', 'p24', 'p28', 'p32', 'p36', 9, 't3'],
        'g1b': [0, 9, 'q10', 'q20', 't3', 'presig0', 'sig0', 't4', 'prechk0', 'chk0', 'presig1', 'sig1', 't5'],
        'g2': [0, 't5', 10, 'chkb', 'sigc', 'endA', 'chkc0', 11, 'endB', 'endC', 'redbar', 'outst', 12],
    }

    def nt(self, bit):
        return ' ' + self.opt.get('ntw', 'nt') if self.opt.get('nt', 30) >> bit & 1 else ''

    def stamp(self, i):
        prof = self.PROF[self.opt.get('prof', 'main')]
        if self.diag and i in prof:
            i = prof.index(i)
            self.a(f'{"s_memtime" if self.opt.get("cyc") else "s_memrealtime"} {sr(S_STAMP + 2 * i, 2)}')

    def spin_atomic(self, soff, target, depth, vt):
        a = self.a
        top, done = a.label('spin'), a.label('done')
        with a.untracked():
            a(f's_mov_b32 s{sSpin}, {SPIN}')
            for d in range(depth - 1):
                a(f'v_mov_b32 v{vt + d}, 0')
                a(f'buffer_atomic_add v{vt + d}, off, {WS}, {soff} sc0 sc1')
                a(f's_sleep {self.opt.get("pslp", 3)}')
            a(f'{top}:')
            for d in range(depth):
                n = (d + depth - 1) % depth
                a(f'v_mov_b32 v{vt + n}, 0')
                a(f'buffer_atomic_add v{vt + n}, off, {WS}, {soff} sc0 sc1')
                a(f's_waitcnt vmcnt({depth - 1})')
                a(f'v_readfirstlane_b32 s{sT7}, v{vt + d}')
                a(f's_cmp_ge_u32 s{sT7}, {target}')
                a(f's_cbranch_scc1 {done}')
            a(f's_sub_u32 s{sSpin}, s{sSpin}, 1')
            a(f's_cbranch_scc0 {top}')
            a(f'{done}:')

    def spin(self, srd, soff, target, vt):
        a = self.a
        top, done = a.label('spin'), a.label('done')
        with a.untracked():
            a(f's_mov_b32 s{sSpin}, {SPIN}')
            a(f'{top}:')
            a(f'buffer_load_dword v{vt}, off, {sr(srd, 4)}, {soff} sc1')
            a('s_waitcnt vmcnt(0)')
            a(f'v_readfirstlane_b32 s{sT7}, v{vt}')
            a(f's_sub_u32 s{sSpin}, s{sSpin}, 1')
            a(f's_cbranch_scc1 {done}')
            a(f's_cmp_lt_u32 s{sT7}, {target}')
            a(f's_cbranch_scc1 {top}')
            a(f'{done}:')

    def check(self, srd, soff, target, vt, sreg=None):
        a = self.a
        slow, back = a.label('slow'), a.label('back')
        a(f'v_readfirstlane_b32 s{sT7}, v{vt}' if sreg is None else f's_mov_b32 s{sT7}, s{sreg}')
        a(f's_cmp_lt_u32 s{sT7}, {target}')
        a(f's_cbranch_scc1 {slow}')
        a(f'{back}:')

        def cold():
            a(f'{slow}:')
            self.spin(srd, soff, target, vt)
            a(f's_branch {back}')
        self.cold.append(cold)

    def get_pol(self, vt):
        a = self.a
        if 'spol' in self.opt:
            a(f's_mov_b32 s{sT7}, {1 + self.opt["spol"]}')
        else:
            self.check(S_DBG, '0 offset:128', 1, vt, sU0)
        a(f's_and_b32 s0, s{sT7}, 2')
        a('s_lshl_b32 s0, s0, 20')
        a(f's_add_u32 s{S_WS}, s{S_WS}, s0')
        a(f's_addc_u32 s{S_WS + 1}, s{S_WS + 1}, 0')

    def wave0(self):
        g = self

        class W:
            def __enter__(s):
                s.l = g.a.label('nw0')
                g.a(f's_cmp_lg_u32 s{S_W}, 0')
                g.a(f's_cbranch_scc1 {s.l}')
                s.u = g.a.untracked()
                s.u.__enter__()
                g.a('s_mov_b64 exec, 1')

            def __exit__(s, *x):
                g.a('s_mov_b64 exec, -1')
                s.u.__exit__()
                g.a(f'{s.l}:')
        return W()

    def warm(self, sets):
        if not self.opt['pads']:
            return
        a = self.a
        for w, ks in enumerate(sets):
            if not ks:
                continue
            l = a.label('nw')
            a(f's_cmp_lg_u32 s{S_W}, {w + 1}')
            a(f's_cbranch_scc1 {l}')
            for k in ks:
                a(f's_call_b64 {sr(sRet, 2)}, .Lpad_{k}')
            a(f'{l}:')

    def arrive_start(self, items, pre=None):
        a = self.a
        l = a.label('noarr')
        for r, _ in items:
            a(f's_mov_b32 s{r}, 1')
        a(f's_cmp_lg_u32 s{S_W}, 0')
        a(f's_cbranch_scc1 {l}')
        with a.untracked():
            if pre:
                pre()
            for r, line in items:
                a(f's_atomic_add s{r}, {sr(S_WS, 2)}, s{sXo} offset:{line * 256} glc')
        a(f'{l}:')

    def arrive_finish(self, items, vt):
        a = self.a
        a('s_waitcnt lgkmcnt(0)')
        for r, last, rep in items:
            l = a.label('notlast')
            a(f's_cmp_lg_u32 s{r}, {last}')
            a(f's_cbranch_scc1 {l}')
            with a.untracked():
                a('s_mov_b32 exec_lo, 15')
                a('s_mov_b32 exec_hi, 15')
                a(f'v_lshlrev_b32 v{vt}, 8, v0')
                a(f's_mov_b32 s{sT7}, {rep * 256}')
                a(f'buffer_atomic_add v{self.vOne}, v{vt}, {WS}, s{sT7} offen sc1')
                a('s_mov_b64 exec, -1')
            a(f'{l}:')

    def prologue(self):
        a = self.a
        a('s_cmp_ge_u32 s2, 0x100')
        a('s_cbranch_scc1 .Lend')
        self.stamp(0)
        for srd, off in ((S_K, 8), (S_WS, 96), (S_V, 16), (S_SH, 24), (S_SK, 32), (S_X, 0), (S_WG, 56), (S_WU, 64),
                         (S_WD, 72), (S_OUT, 80), (S_DBG, 88), (S_D, 40)):
            a(f's_load_dwordx2 {sr(srd, 2)}, s[0:1], {off}')
        a('v_lshrrev_b32 v1, 6, v0')
        a(f's_and_b32 s{sX}, s2, 7')
        a(f's_lshr_b32 s{sJ}, s2, 3')
        a(f'v_readfirstlane_b32 s{S_W}, v1')
        a('v_mov_b32 v1, v0')
        a('v_and_b32 v0, 63, v0')
        for srd, n in ((S_K, 2621440), (S_V, 2621440), (S_SH, 5120), (S_SK, 4096), (S_X, 2621440), (S_WG, 1966080),
                       (S_WU, 1966080), (S_WD, 1966080), (S_OUT, 2621440), (S_DBG, 256), (S_WS, WS_END)):
            a(f's_mov_b32 s{srd + 2}, {n}')
            a(f's_mov_b32 s{srd + 3}, 0x20000')
        a(f's_and_b32 s{sM}, s{sJ}, 15')
        a(f's_mov_b32 s{sG}, s{sX}')
        a(f's_cmp_lt_u32 s{sJ}, 16')
        a.snapshot('role')
        a('s_cbranch_scc1 .Lconv')
        a(f's_lshr_b32 s{sG}, s{sX}, 2')
        a(f's_add_u32 s{sG}, s{sG}, 8')
        a(f's_and_b32 s{sT0}, s{sX}, 3')
        a(f's_lshl2_add_u32 s{sM}, s{sT0}, s{sM}')
        a(f's_cmp_lt_u32 s{sJ}, 20')
        a('s_cbranch_scc1 .Lconv')
        with a.untracked():
            a(f's_cmp_lg_u32 s2, {self.opt.get("initwg", 210)}')
            a('s_cbranch_scc1 .Lnoinit')
            a('v_lshrrev_b32 v2, 3, v1')
            a('v_and_b32 v3, 7, v0')
            a('v_lshlrev_b32 v3, 4, v3')
            a('v_lshl_add_u32 v2, v2, 8, v3')
            for i in range(4):
                a(f'v_mov_b32 v{4 + i}, 0')
            a('s_waitcnt lgkmcnt(0)')
            a.fresh()
            a(f'buffer_store_dwordx4 v[4:7], v2, {WS}, 0 offen sc1')
            for off in (0x2000, 2 * MB, 2 * MB + 0x2000):
                a(f's_mov_b32 s{sT0}, {off}')
                a(f'buffer_store_dwordx4 v[4:7], v2, {WS}, s{sT0} offen sc1')
            a('v_mov_b32 v3, 1')
            a('s_waitcnt vmcnt(0)')
            a('s_barrier')
            a(f's_cmp_lg_u32 s{S_W}, 0')
            a('s_cbranch_scc1 .Lside')
            a('s_mov_b64 exec, 1')
            a(f'buffer_store_dword v3, off, {sr(S_DBG, 4)}, 0 sc1')
            a('s_mov_b64 exec, -1')
            a('s_branch .Lside')
            a('.Lnoinit:')
            a(f's_cmp_lg_u32 s2, {self.opt.get("polwg", 218)}')
            a('s_cbranch_scc1 .Lnopol')
            a(f's_and_b32 s{sT1}, s{S_W}, 1')
            a(f's_lshl_b32 s{sT0}, s{sT1}, 13')
            a(f's_lshl_b32 s{sT2}, s{S_W}, 8')
            a(f's_add_u32 s{sT0}, s{sT0}, s{sT2}')
            a(f's_add_u32 s{sT0}, s{sT0}, {PROBE}')
            if 'fpol' in self.opt:
                a(f's_mov_b32 s{sT1}, {self.opt["fpol"]}')
            a(f's_add_u32 s{sT1}, s{sT1}, 1')
            a(f'v_mov_b32 v4, s{sT1}')
            a('v_mov_b32 v5, 0')
            a('v_lshlrev_b32 v2, 2, v0')
            a('s_waitcnt lgkmcnt(0)')
            wu = self.opt.get('pwarm', 1)
            if wu == 1:
                a(f'buffer_store_dword v5, v2, {WS}, s{sT0} offen sc1')
                a('s_waitcnt vmcnt(0)')
            a('s_mov_b64 exec, 1')
            for i in range(0 if wu == 2 else 1, 1 + self.opt.get('hops', 1)):
                if i == 1:
                    a('s_barrier')
                a(f's_mov_b32 s{sT3}, 0')
                a(f's_atomic_add s{sT3}, {sr(S_WS, 2)}, s{sT0} glc')
                a('s_waitcnt lgkmcnt(0)')
            a(f'buffer_atomic_cmpswap v[4:5], off, {sr(S_DBG, 4)}, 0 offset:128 sc1')
            a('s_mov_b64 exec, -1')
            a('s_branch .Lside')
            a('.Lnopol:')
            if self.opt.get('cpf', 1):
                a(f's_getpc_b64 {sr(sT0, 2)}')
                a('.Lpc:')
                a(f's_and_b32 s{sT2}, s{sJ}, 3')
                a(f's_lshl2_add_u32 s{sT2}, s{sT2}, s{S_W}')
                a(f's_mul_i32 s{sT2}, s{sT2}, {18 * 128}')
                a('v_min_u32 v2, 17, v0')
                a(f'v_lshl_add_u32 v2, v2, 7, s{sT2}')
                a('v_min_u32 v2, .Lcode_end-.Lpc-4, v2')
                a('v_mov_b32 v3, 0')
                a(f'v_lshl_add_u64 v[4:5], v[2:3], 0, {sr(sT0, 2)}')
                a('global_load_dword a253, v[4:5], off')
            a('s_branch .Lside')
        a('.Lconv:')
        a.fresh('role')

    def gemm_ids(self):
        a = self.a
        a.need(sr(S_WS, 2))
        a(f's_lshr_b32 s{sT0}, s{sX}, 2')
        a(f's_lshl_b32 s{sT0}, s{sT0}, 5')
        a(f's_and_b32 s{sXo}, s{sX}, 3')
        a(f's_add_u32 s{sXo}, s{sXo}, s{sT0}')
        a(f's_lshl_b32 s{sXo}, s{sXo}, 8')
        a(f's_lshr_b32 s{sRB}, s{sX}, 2')
        a(f's_lshr_b32 s{sT0}, s{sJ}, 2')
        a(f's_lshl3_add_u32 s{sRB}, s{sRB}, s{sT0}')
        a(f's_and_b32 s{sRot}, s{sX}, 3')
        a(f's_and_b32 s{sT0}, s{sJ}, 3')
        a(f's_lshl2_add_u32 s{sCB}, s{sRot}, s{sT0}')
        a(f's_and_b32 s{sT0}, s{sCB}, 1')
        a(f's_mul_i32 s{sA}, s{sCB}, 6')
        a(f's_add_u32 s{sB}, s{sA}, 4')
        a(f's_lshl1_add_u32 s{sA}, s{sT0}, s{sA}')
        a(f's_lshl_b32 s{sT1}, s{sT0}, 2')
        a(f's_sub_u32 s{sB}, s{sB}, s{sT1}')

    vWL, vWLb, vW45, vTmp, vTmp2, vOne, vPS = 254, 253, 252, 250, 249, 248, 251
    WRAW = [8, 40, 72, 104, 136]
    vWW = [232, 233, 234, 243]
    PT = 200

    def real_line(self, r, tmp):
        a = self.a
        if not self.opt.get('swz', 1):
            return
        a(f's_sub_u32 s{tmp}, s{r}, 3')
        a(f's_cmp_lt_u32 s{tmp}, 2')
        a(f's_cselect_b32 s{tmp}, 7, 0')
        a(f's_xor_b32 s{r}, s{r}, s{tmp}')
        a(f's_sub_u32 s{tmp}, s{r}, 10')
        a(f's_cmp_lt_u32 s{tmp}, 2')
        a(f's_cselect_b32 s{tmp}, 1, 0')
        a(f's_xor_b32 s{r}, s{r}, s{tmp}')

    def w_addr(self):
        a = self.a
        t = self.vTmp
        a(f's_lshr_b32 s{sT1}, s{sA}, 2')
        self.real_line(sT1, sT0)
        a(f's_lshl_b32 s{sT1}, s{sT1}, 7')
        a(f'v_and_b32 v{t}, 7, v0')
        a(f'v_lshl_add_u32 v{self.vWLb}, v{t}, 4, s{sT1}')
        a(f's_lshr_b32 s{sT0}, s{S_W}, 1')
        a(f's_lshl_b32 s{sT0}, s{sT0}, 6')
        a(f's_mul_i32 s{sWoff}, s{sRot}, 160')
        a(f's_add_u32 s{sWoff}, s{sWoff}, s{sT0}')
        a(f's_mul_i32 s{sT0}, s{sCB}, {80 * 1024}')
        a(f's_add_u32 s{sT0}, s{sT0}, {W45F}')
        a(f'v_lshl_add_u32 v{self.vW45}, v0, 4, s{sT0}')
        a(f's_mul_i32 s{sWoff2}, s{sRot}, 10')
        a(f's_add_u32 s{sWoff2}, s{sWoff2}, s{S_W}')
        a(f's_lshl_b32 s{sWoff2}, s{sWoff2}, 10')
        a(f'v_mov_b32 v{self.vOne}, 1')
        a(f's_and_b32 s{sT0}, s{sRB}, 7')
        a(f's_lshr_b32 s{sT1}, s{S_W}, 1')
        a(f's_lshl1_add_u32 s{sT0}, s{sT0}, s{sT1}')
        a(f's_lshr_b32 s{sT1}, s{sRB}, 3')
        a(f's_lshl1_add_u32 s{sT0}, s{sT0}, s{sT1}')
        a(f's_and_b32 s{sT1}, s{S_W}, 1')
        a(f's_lshl1_add_u32 s{sT0}, s{sT0}, s{sT1}')
        a(f's_lshl_b32 s{sT0}, s{sT0}, 12')
        a(f'v_lshl_add_u32 v{self.vPS}, v0, 4, s{sT0}')

    def w_select(self):
        a = self.a
        a(f's_bitcmp1_b32 s{S_W}, 0')
        a(f's_cselect_b32 s{S_WG}, s{S_WU}, s{S_WG}')
        a(f's_cselect_b32 s{S_WG + 1}, s{S_WU + 1}, s{S_WG + 1}')
        for i in range(1, 4):
            a(f's_movk_i32 s{sE[i]}, {6144 * i}')
        a(f's_movk_i32 s15, 3072')

    def clear_pst(self, v2):
        return [f'v_mov_b32 v{v2 + i}, -1' for i in range(4)] + [
            f's_lshl_b32 s{sU0}, s{sCB}, 8', f's_add_u32 s{sU0}, s{sU0}, {PST}',
            ['s_mov_b64 exec, 0xffff',
             f'buffer_store_dwordx4 {vr(v2, 4)}, v{self.vPS}, {WS}, s{sU0} offen sc1',
             's_mov_b64 exec, -1']]

    def w_loads_main(self, park=False):
        out = []
        t, t2 = self.vTmp, self.vTmp2
        for b in range(5):
            for e in range(8):
                g = []
                if e == 0:
                    g = [f'v_and_b32 v{t}, 56, v0', f'v_add_u32 v{t}, s{sWoff}, v{t}', f'v_subrev_u32 v{t2}, 640, v{t}',
                         f'v_min_u32 v{t}, v{t}, v{t2}', f'v_mad_u32_u24 v{self.vWL}, v{t}, s15, v{self.vWLb}',
                         f's_add_u32 s{sWoff}, s{sWoff}, 128']
                so = f's{sE[e >> 1]}' if e >> 1 else '0'
                dst = vr(self.WRAW[b] + 4 * e, 4)
                if b == 4 and park:
                    dst = ar(208 + 4 * e, 4) if park == 1 else vr(self.WRAW[0] + 4 * e, 4)
                g.append(f'buffer_load_dwordx4 {dst}, v{self.vWL}, {sr(S_WG, 4)}, {so} offen offset:{3072 * (e & 1)}')
                out.append(g)
        return out

    def w_loads_tail(self):
        out = []
        for i in range(20):
            if i & 1:
                g = [f's_add_u32 s{sU1}, s{sWoff2}, {TILE}',
                     f'buffer_load_dwordx4 {ar(160 + 4 * i, 4)}, v{self.vW45}, {WS}, s{sU1} offen sc1']
            else:
                g = []
                if i:
                    g = [f's_add_u32 s{sWoff2}, s{sWoff2}, 4096',
                         [f's_sub_u32 s{sU1}, s{sWoff2}, {TILE}', f's_cselect_b32 s{sWoff2}, s{sWoff2}, s{sU1}']]
                g.append(f'buffer_load_dwordx4 {ar(160 + 4 * i, 4)}, v{self.vW45}, {WS}, s{sWoff2} offen sc1')
            out.append(g)
        return out

    def w_write_addr(self):
        a = self.a
        t, t2 = self.vTmp, self.vTmp2
        a(f's_lshr_b32 s{sT0}, s{S_W}, 1')
        a(f's_lshl_b32 s{sT0}, s{sT0}, 12')
        a(f's_and_b32 s{sT1}, s{S_W}, 1')
        a(f's_lshl_b32 s{sT1}, s{sT1}, 7')
        a(f's_add_u32 s{sT0}, s{sT0}, s{sT1}')
        a(f'v_lshrrev_b32 v{t}, 3, v0')
        a(f'v_lshl_add_u32 v{t}, v{t}, 9, s{sT0}')
        a(f'v_and_b32 v{t2}, 1, v0')
        a(f'v_lshl_add_u32 v{t}, v{t2}, 6, v{t}')
        a(f'v_bfe_u32 v{t2}, v0, 1, 2')
        a(f's_mov_b32 s{sT0}, {TILE + 16}')
        a(f'v_mad_u32_u24 v{self.vWW[0]}, v{t2}, s{sT0}, v{t}')
        for q in range(1, 4):
            a(f'v_xor_b32 v{self.vWW[q]}, {16 * q}, v{self.vWW[0]}')
        a(f's_mov_b32 s{sPL}, 0x05040100')
        a(f's_mov_b32 s{sPH}, 0x07060302')

    def w_writes_main(self, b4=None):
        out = []
        for b in range(5):
            for c8 in range(8):
                p = self.PT + 4 * (c8 & 3) if b < 5 - self.opt.get('defer', 2) else (228 if c8 & 1 else 242)
                r = (b4 if b == 4 and b4 else self.WRAW[b]) + (c8 >> 1)
                g = [f'v_perm_b32 v{p + d}, v{r + 8 * d + 4}, v{r + 8 * d}, s{sPH if c8 & 1 else sPL}' for d in range(4)]
                g.append(f'ds_write_b128 v{self.vWW[c8 & 3]}, {vr(p, 4)} offset:{b * 8192 + (c8 >> 2) * 256}')
                out.append(g)
        return out

    def conv(self):
        a = self.a
        o = self.opt
        vK, vKh, vC, vR, vSHa, vL16 = 1, 2, 3, 4, 5, 6
        SH = 8
        KR = 16
        VR = 38
        WF = 56
        KF = 72
        O = 120
        SK = 136
        KV = 168
        VF = 200
        vSW, vSR, vKS, vG, vBa, vAa, vZR, vZR2, vUL, vUW, vI7, vGZ, vXS, vHS, vFl, vPrev = range(232, 248)
        ZERO, AD = 224, 240
        vAa2 = vZR2
        kvmix = 0
        a(f's_lshl4_add_u32 s{sQ}, s{sG}, s{sM}')
        a(f'v_and_b32 v{vC}, 15, v0')
        a(f'v_lshrrev_b32 v{vR}, 4, v0')
        a(f's_lshl2_add_u32 s{sT0}, s{sM}, s{S_W}')
        a(f's_mul_i32 s{sT0}, s{sT0}, {32 * 1280}')
        a(f's_lshl_b32 s{sT1}, s{sG}, 7')
        a(f's_add_u32 s{sT0}, s{sT0}, s{sT1}')
        a(f's_movk_i32 s{sT2}, {8 * 1280}')
        a(f'v_lshl_add_u32 v{vK}, v{vC}, 3, s{sT0}')
        a(f'v_mad_u32_u24 v{vK}, v{vR}, s{sT2}, v{vK}')
        a(f'v_subrev_u32 v{vKh}, 3840, v{vK}')
        a(f's_lshl_b32 s{sT1}, s{sG}, 9')
        a(f'v_lshl_add_u32 v{vSHa}, v{vC}, 5, s{sT1}')
        a(f's_movk_i32 s{sT3}, 5120')
        a(f'v_lshlrev_b32 v{vL16}, 4, v0')

        def addr_phase_a():
            a(f'v_subrev_u32 v{vPrev}, 8, v{vL16}')
            a(f's_mul_i32 s{sT0}, s{S_W}, {TILE}')
            a(f's_add_u32 s{sT0}, s{sT0}, {UOFF}')
            a(f's_movk_i32 s{sT1}, 272')
            a(f'v_lshl_add_u32 v{vSW}, v{vR}, 4, s{sT0}')
            a(f'v_mad_u32_u24 v{vSW}, v{vC}, s{sT1}, v{vSW}')
            a(f'v_lshl_add_u32 v{vSR}, v{vC}, 4, s{sT0}')
            a(f'v_mad_u32_u24 v{vSR}, v{vR}, s{sT1}, v{vSR}')
            a(f'v_add_u32 v{vUW}, s{sT0}, v{vL16}')
            a(f's_add_u32 s{sT0}, s{sT0}, 32')
            a(f'v_lshl_add_u32 v{vBa}, v{vC}, 5, s{sT0}')
            a(f'v_lshl_add_u32 v{vBa}, v{vR}, 4, v{vBa}')
            a(f's_and_b32 s{sT0}, s{sG}, 3')
            a(f's_lshl_b32 s{sT0}, s{sT0}, 19')
            a(f's_cmp_lt_u32 s{sG}, 8')
            a(f's_cselect_b32 s{sT4}, s{sT0}, {KVXT - KVX}')
            a(f's_lshr_b32 s{sT0}, s{sX}, 2')
            a(f's_lshl_b32 s{sT0}, s{sT0}, 13')
            a(f's_add_u32 s{sT4}, s{sT4}, s{sT0}')
            a(f's_and_b32 s{sT0}, s{sM}, 8')
            a(f's_add_u32 s{sT0}, s{sT0}, s{sM}')
            a(f's_lshl2_add_u32 s{sT1}, s{sT0}, s{S_W}')
            a(f's_lshl_b32 s{sT1}, s{sT1}, 8')
            a(f's_add_u32 s{sT0}, s{sT4}, s{sT1}')
            a(f's_mov_b32 s{sT1}, {2 * QS}')
            if kvmix:
                a(f's_lshl2_add_u32 s{sT1}, s{sM}, s{S_W}')
                a(f's_lshl_b32 s{sT1}, s{sT1}, 8')
                a(f's_lshl_b32 s{sT0}, s{sG}, 18')
                a(f's_add_u32 s{sT0}, s{sT0}, s{sT1}')
                a(f's_mov_b32 s{sT1}, {QS}')
            a(f'v_lshl_add_u32 v{vKS}, v{vC}, 4, s{sT0}')
            a(f'v_mad_u32_u24 v{vKS}, v{vR}, s{sT1}, v{vKS}')

        def addr_rest():
            self.gemm_ids()
            self.w_addr()
            a(f's_mul_i32 s{sT5}, s{S_W}, {TILE}')
            a(f's_add_u32 s{sT5}, s{sT5}, {GOFF}')
            a(f'v_add_u32 v{vG}, s{sT5}, v{vL16}')
            a(f'v_bfe_u32 v{vAa}, v0, 2, 2')
            a(f'v_sub_u32 v{vAa}, v{vAa}, v{vR}')
            a(f'v_sub_u32 v{vAa}, v{vAa}, v{vR}')
            a(f's_add_u32 s{sT0}, s{sT5}, 56')
            a(f'v_lshl_add_u32 v{vAa}, v{vAa}, 3, s{sT0}')
            a(f'v_and_b32 v{vI7}, 3, v0')
            a(f's_movk_i32 s{sT1}, {GSTR}')
            a(f'v_mad_u32_u24 v{vAa}, v{vI7}, s{sT1}, v{vAa}')
            a(f'v_add_u32 v{vAa2}, 0x800, v{vAa}')
            a(f'v_and_b32 v{vGZ}, 16, v0')
            a(f'v_add_u32 v{vGZ}, s{sT5}, v{vGZ}')
            a(f'v_mad_u32_u24 v{vGZ}, v{vI7}, s{sT1}, v{vGZ}')
            a(f'v_and_b32 v{vI7}, 7, v0')
            a(f's_lshl_b32 s{sT6}, s{sM}, 15')
            a(f's_add_u32 s{sT6}, s{sT6}, s{sT4}')
            a(f's_lshl_b32 s{sT1}, s{S_W}, 6')
            a(f's_add_u32 s{sT0}, s{sT6}, s{sT1}')
            if kvmix:
                a(f's_lshl_b32 s{sT0}, s{sQ}, 14')
                a(f's_add_u32 s{sT0}, s{sT0}, s{sT1}')
            a(f'v_and_b32 v{vUL}, 3, v0')
            a(f'v_lshl_add_u32 v{vUL}, v{vUL}, 4, s{sT0}')
            a(f'v_lshrrev_b32 v{vXS}, 2, v0')
            a(f'v_lshl_add_u32 v{vUL}, v{vXS}, 8, v{vUL}')
            a(f's_lshl_b32 s{sT0}, s{S_W}, 12')
            a(f'v_add_u32 v{vXS}, s{sT0}, v{vL16}')
            a(f's_lshl_b32 s{sT1}, s{sQ}, 14')
            a(f's_add_u32 s{sT0}, s{sT0}, s{sT1}')
            a(f's_mov_b32 s{sT1}, {HP4}')
            a(f's_cmp_lt_u32 s{sQ}, 120')
            a(f's_cselect_b32 s{sT1}, s{sT1}, {HP4T - 120 * QS}')
            a(f's_add_u32 s{sT0}, s{sT0}, s{sT1}')
            a(f'v_add_u32 v{vHS}, s{sT0}, v{vL16}')
            a(f's_lshl_b32 s{sT0}, s{S_W}, 11')
            a(f's_add_u32 s{sT0}, s{sT0}, {ZOFF}')
            a(f'v_add_u32 v{vZR}, s{sT0}, v{vL16}')
            for i in range(4):
                a(f'v_mov_b32 v{ZERO + i}, 0')
        if o.get('addr_early', 0) >= 1:
            addr_phase_a()
        if o.get('addr_early', 0) >= 2:
            addr_rest()
        for bit, srd in enumerate((S_SK, S_V, S_K, S_WG)):
            if o.get('noldc', 0) >> bit & 1:
                a(f's_mov_b32 s{srd + 2}, 0')
        a.need(sr(S_WS, 2))
        self.stamp('karg')
        a(f'buffer_load_dwordx4 {vr(SH, 4)}, v{vSHa}, {sr(S_SH, 4)}, 0 offen')
        a(f'buffer_load_dwordx4 {vr(SH + 4, 4)}, v{vSHa}, {sr(S_SH, 4)}, 0 offen offset:16')
        for r in range(3):
            a(f'buffer_load_dwordx2 {vr(KR + 2 * r, 2)}, v{vKh}, {sr(S_K, 4)}, 0 offen offset:{r * 1280}{self.nt(6)}')
        for r in range(8):
            so = f's{sT3}' if r >= 4 else '0'
            a(f'buffer_load_dwordx2 {vr(KR + 6 + 2 * r, 2)}, v{vK}, {sr(S_K, 4)}, {so} offen offset:{(r & 3) * 1280}{self.nt(0 if r < 5 else 6)}')
            a(f'buffer_load_dwordx2 {vr(VR + 2 * r, 2)}, v{vK}, {sr(S_V, 4)}, {so} offen offset:{(r & 3) * 1280}{self.nt(1)}')
        self.stamp('issued')
        if o.get('tlb'):
            a(f'v_lshlrev_b32 v228, {o["tlb"]}, v0')
            a(f'buffer_load_dword v229, v228, {WS}, 0 offen sc1')
            a(f'buffer_load_dword v228, v228, {sr(S_OUT, 4)}, 0 offen sc1')
        if o.get('addr_early', 0) < 1:
            addr_phase_a()
        if o.get('addr_early', 0) < 2:
            addr_rest()
        a(f's_lshl2_add_u32 s{sT0}, s{sQ}, s{S_W}')
        a(f's_lshl_b32 s{sT1}, s{sT0}, 12')
        a(f's_add_u32 s{S_SK}, s{S_SK}, s{sT1}')
        a(f's_addc_u32 s{S_SK + 1}, s{S_SK + 1}, 0')
        a(f's_lshl_b32 s{sT0}, s{sT0}, 1')
        a(f's_and_b32 s{sT0}, s{sT0}, -4')
        a(f's_load_dword s{sDv}, {sr(S_D, 2)}, s{sT0}')
        ssm = []
        for j in range(4):
            ssm.append(f'buffer_load_dwordx4 {vr(SK + 8 * j + 4, 4)}, v{vL16}, {sr(S_SK, 4)}, 0 offen offset:{1024 * j}{self.nt(2)}')
            if j == 0:
                ssm.append(f'buffer_load_dwordx2 {vr(SK + 2, 2)}, v{vPrev}, {sr(S_SK, 4)}, 0 offen')
            else:
                ssm.append(f'buffer_load_dwordx2 {vr(SK + 8 * j + 2, 2)}, v{vL16}, {sr(S_SK, 4)}, 0 offen offset:{1024 * j - 8}')
        if o.get('ssm', 1) == 0:
            a(ssm)
        self.w_select()
        self.warm([[[0], [], []], [[0], [1], []], [[0], [1], [2]]][o.get('warm0', 0)])
        park = o.get('park', 2)
        assert park < 2 or o['w_kv'] + o['w_e1'] + o['w_u'] >= 8
        wl = self.w_loads_main(park)

        def w_some(n):
            for _ in range(n):
                a(wl.pop(0))
        a(f's_mov_b32 s{sT2}, 0xffff0000')
        for ch in range(4):
            for j in range(4):
                src = SH + 2 * ch + (j >> 1)
                if j & 1:
                    a(f'v_and_b32 v{WF + 4 * j + ch}, s{sT2}, v{src}')
                else:
                    a(f'v_lshlrev_b32 v{WF + 4 * j + ch}, 16, v{src}')

        def unpack(dst, src):
            a(f'v_lshlrev_b32 v{dst}, 16, v{src}')
            a(f'v_and_b32 v{dst + 1}, s{sT2}, v{src}')
            a(f'v_lshlrev_b32 v{dst + 2}, 16, v{src + 1}')
            a(f'v_and_b32 v{dst + 3}, s{sT2}, v{src + 1}')
        for r in range(3):
            unpack(KF + 4 * r, KR + 2 * r)
        self.stamp(1)
        for r in range(8):
            unpack(KF + 4 * (r + 3), KR + 2 * (r + 3))
            vf = VF + 4 * (r & 1)
            for j in (3, 2, 1, 0):
                for p in range(2):
                    d = vr(KV + 4 * r + 2 * p, 2)
                    k = vr(KF + 4 * (r + 3 - j) + 2 * p, 2)
                    w = vr(WF + 4 * j + 2 * p, 2)
                    if j == 3:
                        a(f'v_pk_mul_f32 {d}, {k}, {w}')
                    else:
                        a(f'v_pk_fma_f32 {d}, {k}, {w}, {d}')
                if j == 3:
                    unpack(vf, VR + 2 * r)
            for p in range(2):
                d = vr(KV + 4 * r + 2 * p, 2)
                a(f'v_pk_mul_f32 {d}, {d}, {vr(vf + 2 * p, 2)}')
            if r == o.get('pol_r', 7):
                a(f's_load_dword s{sU0}, {sr(S_DBG, 2)}, 0x80')
            if o.get('ssm', 1) == 1 and r >= o.get('ssm_r', 7):
                for _ in range((len(ssm) + 7 - r) // (8 - r)):
                    a(ssm.pop(0))
            if r & 1:
                d = (7 - r) >> 1
                for ch in range(4):
                    a(f'v_cvt_pk_bf16_f32 v{O + 4 * ch + d}, v{KV + 4 * r + ch}, v{KV + 4 * (r - 1) + ch}')
        self.stamp('kvdone')
        if o.get('pol_r', 7) == 8:
            a(f's_load_dword s{sU0}, {sr(S_DBG, 2)}, 0x80')
        for ch in range(4):
            a(f'ds_write_b128 v{vSW}, {vr(O + 4 * ch, 4)} offset:{ch * 64}')
        for j in range(4):
            a(f'ds_read_b128 {vr(KV + 4 * j, 4)}, v{vSR} offset:{j * 1088}')
        assert not kvmix
        self.get_pol(vFl)
        a(f'buffer_load_dword v{vFl}, off, {sr(S_DBG, 4)}, 0 sc1')
        a(f's_mov_b32 s{sT0}, {KVM if kvmix else KVX}')
        for j in range(4):
            a(f'buffer_store_dwordx4 {vr(KV + 4 * j, 4)}, v{vKS}, {WS}, s{sT0} offen sc1')
            if j < 3:
                a(f's_add_u32 s{sT0}, s{sT0}, {4 * QS if kvmix else 8 * QS}')
        self.stamp(2)
        if kvmix and o.get('pol_l', 0) == 0:
            a(f'buffer_load_dword v{vFl}, off, {sr(S_DBG, 4)}, 0 sc1')
        if o.get('ssm', 1) == 2:
            a(ssm)
        a(f'ds_write_b128 v{vUW}, {vr(ZERO, 4)}')
        a(f'ds_write_b128 v{vGZ}, {vr(ZERO, 4)}')

        def table(j):
            D = SK + 8 * j
            Ea, Eb, Db = 184 + 12 * (j & 1), 184 + 12 * (j & 1) + 4, 184 + 12 * (j & 1) + 8

            def wr(rho, reg):
                a(f'ds_write_b128 v{vG}, {vr(reg, 4)} offset:{rho * GSTR + 1024 * j + 32}')
            wr(3, D + 4)
            for i in range(2):
                a(f'v_pk_mov_b32 {vr(Db + 2 * i, 2)}, {vr(D + 2 + 2 * i, 2)}, {vr(D + 4 + 2 * i, 2)} op_sel:[1,0]')
            for i in range(4):
                a(f'v_alignbit_b32 v{Ea + i}, v{D + 3 + i}, v{D + 2 + i}, 16')
            wr(1, Db)
            wr(0, Ea)
            for i in range(4):
                a(f'v_alignbit_b32 v{Eb + i}, v{D + 4 + i}, v{D + 3 + i}, 16')
            wr(2, Eb)
        w_some(o['w_kv'])
        n1, n2 = o['tb_pre'], o['tb_pre'] + o['tb_mid']
        for j in range(n1):
            table(j)
            if kvmix and o.get('pol_l', 0) == j + 1:
                a(f'buffer_load_dword v{vFl}, off, {sr(S_DBG, 4)}, 0 sc1')
        a.need(f's{sDv}')
        a(f's_and_b32 s{sT1}, s{S_W}, 1')
        a(f's_lshl_b32 s{sT1}, s{sT1}, 4')
        a(f's_lshr_b32 s{sDv}, s{sDv}, s{sT1}')
        a(f's_and_b32 s{sDv}, s{sDv}, 0xffff')
        a(f'v_sub_u32 v5, 7, v{vI7}')
        a(f'v_and_b32 v7, 1, v5')
        a(f'v_lshlrev_b32 v7, 4, v7')
        a(f'v_lshlrev_b32 v7, v7, s{sDv}')
        a(f'v_bfe_u32 v1, v0, 3, 1')
        a(f'v_add_u32 v1, 2, v1')
        a(f'v_cmp_eq_u32 vcc, v1, v{vR}')
        a(f'v_cndmask_b32 v7, 0, v7, vcc')
        a(f'v_lshrrev_b32 v5, 1, v5')
        for d in range(4):
            a(f'v_cmp_eq_u32 vcc, {d}, v5')
            a(f'v_cndmask_b32 v1, 0, v7, vcc')
            a(f'v_accvgpr_write_b32 a{AD + d}, v1')
        self.stamp('tbpre')
        a.drain_stores()
        if kvmix:
            self.get_pol(vFl)
        self.stamp('drained')
        a('s_barrier')
        self.stamp(3)
        a(f's_and_b32 s{sT0}, s{sXo}, 0x2000')
        a(f's_add_u32 s{sT0}, s{sT0}, {C_F1B * 256}')
        a(f's_cmp_lt_u32 s{sG}, 8')
        a(f's_cselect_b32 s{sT0}, s{sXo}, s{sT0}')
        with self.wave0():
            self.check(S_DBG, '0', 1, vFl)
            if o.get('apoll') == 9:
                a(f's_mov_b32 s{sU2}, 1')
                a(f's_atomic_add s{sU2}, {sr(S_WS, 2)}, s{sT0} glc')
            else:
                a(f'buffer_atomic_add v{self.vOne}, off, {WS}, s{sT0} sc1')
        w_some(o['w_e1'])
        for j in range(n1, n2):
            table(j)
        ACC = 128
        BUF = (0, 64)
        XR, SR, XF = 136, 152, 168

        def rdA(it, t):
            o0 = 8 * it + 64 * (t & 3)
            return f'ds_read2_b64 {ar(BUF[it & 1] + 4 * t, 4)}, v{vAa2 if t & 4 else vAa} offset0:{o0} offset1:{o0 + 1}'

        def rdB(it, t):
            return f'ds_read_b128 {ar(BUF[it & 1] + 32 + 4 * t, 4)}, v{vBa} offset:{448 - 64 * it + 512 * t}'
        if n2 == 4:
            for t in range(8):
                a(rdA(0, t))
        self.stamp('tbpost')
        self.warm([[[1, 4], [2, 5], [3]], [[2, 5], [3], [4]], [[3], [4], [5]]][o.get('warm0', 0)])
        with self.wave0():
            if o.get('apoll') == 9:
                top, done = a.label('spin'), a.label('done')
                a(f's_mov_b32 s{sSpin}, {SPIN}')
                a('s_waitcnt lgkmcnt(0)')
                a(f's_cmp_ge_u32 s{sU2}, 15')
                a(f's_cbranch_scc1 {done}')
                a(f'{top}:')
                a(f's_mov_b32 s{sU2}, 0')
                a(f's_atomic_add s{sU2}, {sr(S_WS, 2)}, s{sT0} glc')
                a(f's_sub_u32 s{sSpin}, s{sSpin}, 1')
                a(f's_cbranch_scc1 {done}')
                a('s_waitcnt lgkmcnt(0)')
                a(f's_cmp_lt_u32 s{sU2}, 16')
                a(f's_cbranch_scc1 {top}')
                a(f'{done}:')
                a('s_waitcnt lgkmcnt(0)')
            elif o.get('apoll'):
                self.spin_atomic(f's{sT0}', 16, o['apoll'], 1)
            else:
                self.spin(S_WS, f's{sT0}', 0 if o.get('noe1') else 16, vFl)
        a('s_barrier')
        self.stamp(4)
        a(f's_sub_u32 s{sT0}, {KVM}, s0' if kvmix else f's_mov_b32 s{sT0}, {KVX}')
        for j in range(4):
            a(f'buffer_load_dwordx4 {ar(BUF[1] + 4 * j, 4)}, v{vUL}, {WS}, s{sT0} offen sc1')
            if j < 3:
                a(f's_add_u32 s{sT0}, s{sT0}, {12288 if j == 1 and not kvmix else 4096}')
        w_some(o['w_u'])
        self.w_write_addr()
        a(f'v_add_u32 v{vPrev}, {2 * TILE}, v{vZR}')
        self.conv_ww = self.w_writes_main(self.WRAW[0] if park == 2 else None)
        if park == 2:
            for _ in range(8):
                a(self.conv_ww.pop(0))
        for j in range(n2, 4):
            table(j)
        if n2 < 4:
            for t in range(8):
                a(rdA(0, t))
        a(f's_add_u32 s{sT3}, s{sXo}, {C_FXR * 256}')
        a(f's_mov_b32 s{sT4}, {XP4}')
        a(f's_cmp_lt_u32 s{sG}, 8')
        a(f's_cselect_b32 s{sT4}, s{sT4}, {XP4T - (KVXT - KVX)}')
        a(f's_add_u32 s{sT6}, s{sT6}, s{sT4}')
        a(f's_lshr_b32 s{sT4}, s{S_W}, 1')
        a(f's_lshl_b32 s{sT4}, s{sT4}, 13')
        a(f's_add_u32 s{sT6}, s{sT6}, s{sT4}')
        a(f's_mov_b32 s{sT4}, {ST1}')
        for j in range(4):
            a(f'ds_write_b128 v{vUW}, {ar(BUF[1] + 4 * j, 4)} offset:{512 + 1024 * j}')
            if j == 0:
                self.stamp('uload')
            a(rdB(0, 2 * j))
            a(rdB(0, 2 * j + 1))
        self.stamp(5)
        fx = o['fx_it']
        xl = []
        for T in range(2):
            for p in range(2):
                off = 2048 * T + 1024 * p
                xl.append([f'buffer_load_dwordx4 {vr(XR + 8 * T + 4 * p, 4)}, v{vXS}, {WS}, s{sT6} offen offset:{off} sc1'])
                xl.append([f'buffer_load_dwordx4 {vr(SR + 8 * T + 4 * p, 4)}, v{vXS}, {WS}, s{sT4} offen offset:{off} sc1'])
        if o.get('nowl'):
            wl = [g[:-1] + [[]] for g in wl]
        wt = self.w_loads_tail()
        if park == 2:
            nl = o.get('w45_loop', 12)
            early, late = wl, xl + wt[:nl]
            self.win_pre = []
            self.win_loads = wt[nl:]
        elif park:
            early, late = wl, xl + wt[:12]
            self.win_pre = [f'v_accvgpr_read_b32 v{self.WRAW[4] + i}, a{208 + i}' for i in range(32)]
            self.win_loads = wt[12:]
        else:
            early, late = wl[:-8], xl + wt
            self.win_pre = wl[-8][:-1]
            self.win_loads = [wl[-8][-1]] + wl[-7:]
        tot = len(early) + len(late)
        per = [(tot * (i + 1)) // 8 - (tot * i) // 8 for i in range(8)]
        plan = []
        for it in range(8):
            n = per[it]
            if it <= fx + 1:
                n = min(max(n, o.get('early_n', 0)), len(early))
                plan.append([early.pop(0) for _ in range(n)])
            else:
                rest = late[:8] + early + late[8:] if it == fx + 2 else rest
                early = late = []
                n = (len(rest) + 7 - it) // (8 - it)
                plan.append([rest.pop(0) for _ in range(n)])
        for it in range(8):
            A, B = BUF[it & 1], BUF[it & 1] + 32
            mf = []
            endT = []
            for T in range(8):
                c = ar(ACC + 4 * T, 4)
                if it == 0:
                    mf.append(f'v_mfma_f32_16x16x32_bf16 {c}, {ar(AD, 4)}, {ar(B + 4 * T, 4)}, 0')
                for t in range(T + 1):
                    mf.append(f'v_mfma_f32_16x16x32_bf16 {c}, {ar(A + 4 * t, 4)}, {ar(B + 4 * (T - t), 4)}, {c}')
                endT.append(len(mf) - 1)
            fill = [[] for _ in mf]
            base = 8 if it == 0 else 0
            if it < 7:
                rd = [x for t in range(8) for x in (rdA(it + 1, t), rdB(it + 1, t))]
                for i, x in enumerate(rd):
                    fill[base + 2 * i].append(x)
            zw = [f'ds_write_b128 v{vG}, {ar(ACC + 4 * T, 4)} offset:{ZOFF - GOFF + 1024 * T}' for T in range(8)]
            if it == 7:
                for T in range(o.get('z_in', 7)):
                    fill[max(endT[T] + 5, 6 + 4 * T)].append(zw.pop(0))
            n = len(plan[it])
            pos = base
            for i, g in enumerate(plan[it]):
                p = max(base + ((i + 1) * 35) // n, pos)
                k = len(g) - 1
                for z, x in enumerate(g[:-1]):
                    fill[max(pos, p - (k - z + 1) // 2)].append(x)
                fill[p].append(g[-1])
                pos = p
            if it == 0:
                for i, x in enumerate(self.clear_pst(228)):
                    fill[i].append(x)
            spx = o['sp'] >> 3 & 1
            if it == fx and not spx:
                fill[-1].append(f'buffer_load_dword v{vFl}, off, {WS}, s{sT3} sc1')
            if it == fx + 1 and spx:
                fill[o.get('fx_p', 0)].append(f's_load_dword s{sDv}, {sr(S_WS, 2)}, s{sT3}')
            if it == fx + 1:
                fill[-1].append(lambda: self.check(S_WS, f's{sT3}', 0 if o.get('nofx') else 8, vFl, sDv if spx else None))
            if it == 7:
                fill[0].append(f's_add_u32 s{sFW}, s{sT3}, {(C_FWR - C_FXR) * 256}')

            if it == 0:
                unp = []
                for T in range(2):
                    for row in range(4):
                        src = XR + 8 * T + 2 * row
                        xf = XF + 16 * T + 4 * row
                        st = SR + 8 * T + 2 * row
                        unp += [f'v_lshlrev_b32 v{xf}, 16, v{src}', f'v_and_b32 v{xf + 1}, s{sT2}, v{src}',
                                f'v_lshlrev_b32 v{xf + 2}, 16, v{src + 1}', f'v_and_b32 v{xf + 3}, s{sT2}, v{src + 1}']
                        unp += [f'v_fma_f32 v{xf + 32 + c}, v{xf + c}, v{st}, v{st + 1}' for c in range(4)]
            u0 = o.get('unp_at', 36 * 6 + 14)
            for i, x in enumerate(unp):
                p = u0 + (i * (36 * 8 - u0)) // 64
                if p // 36 == it:
                    fill[p % 36].append(x)
            self.stamp(f'it{it}')
            if it > 0:
                a.need(ar(A, 24 if it < 7 else 32), ar(B, 24))
            for m, f in zip(mf, fill):
                a(m)
                a(f)
        self.stamp(6)
        a(zw)
        a('s_waitcnt lgkmcnt(0)')
        a('s_barrier')
        self.stamp('zbar')
        Z = XR
        for T in range(2):
            for ch in range(4):
                a(f'ds_read_b128 {vr(Z + 16 * T + 4 * ch, 4)}, v{vPrev if ch & 2 else vZR} offset:{(ch & 1) * TILE + 1024 * T}')
        for T in range(2):
            for p in range(2):
                ho = XF + 32 + 16 * T + 8 * p
                for b in range(2):
                    row = 2 * p + b
                    for c in range(4):
                        x = XF + 16 * T + 4 * row + c
                        a(f'v_fmac_f32 v{x}, v{x + 32}, v{Z + 16 * T + 4 * c + row}')
                    for c2 in range(2):
                        x = XF + 16 * T + 4 * row + 2 * c2
                        a(f'v_cvt_pk_bf16_f32 v{ho + 2 * b + c2}, v{x}, v{x + 1}')
                a(f'buffer_store_dwordx4 {vr(ho, 4)}, v{vHS}, {WS}, 0 offen offset:{2048 * T + 1024 * p} sc1')
        self.stamp(7)

    def side(self):
        a = self.a
        head = self.opt.get('head', 0)
        if head:
            a('.Lhead_a0:')
        a('.Lside:')
        a.fresh('role')
        self.stamp('sx_in')
        for bit, srd in enumerate((S_X, S_WG, S_WU, S_WD)):
            if self.opt.get('nold', 0) >> bit & 1:
                a(f's_mov_b32 s{srd + 2}, 0')
        if self.opt.get('nost1'):
            a(f's_mov_b32 s{S_WS + 2}, {W45F}')
        vTid = 1
        a(f's_sub_u32 s{sG}, s{sJ}, 20')
        a(f's_lshl3_add_u32 s{sG}, s{sG}, s{sX}')
        J2, vJ2, sG2, sJo, sJs = 136, 230, sQ, sDv, sM
        vFl = 231
        sLn = sU2
        up = self.opt.get('up', 1)

        def job2_loads():
            a(f's_add_u32 s{sG2}, s{sG}, {48 if self.opt.get("pair", 1) else 0}')
            a(f's_sub_u32 s{sT0}, s{sG2}, 96')
            a(f's_cselect_b32 s{sG2}, s{sG2}, s{sT0}')
            a(f's_sub_u32 s{sLn}, s{sG2}, 48')
            if self.opt.get('s2loc', 1):
                a(f's_lshr_b32 s{sLn}, s{sLn}, 3')
                a(f's_mul_i32 s{sT1}, s{sX}, 6')
                a(f's_add_u32 s{sLn}, s{sLn}, s{sT1}')
            a(f's_cmp_ge_u32 s{sLn}, 24')
            a(f's_cselect_b32 s{sT2}, s{S_WU}, s{S_WG}')
            a(f's_cselect_b32 s{sT3}, s{S_WU + 1}, s{S_WG + 1}')
            a(f's_cselect_b32 s{sT1}, 24, 0')
            a(f's_sub_u32 s{sT1}, s{sLn}, s{sT1}')
            a(f's_lshr_b32 s{sT0}, s{sG2}, 1')
            a(f's_cmp_ge_u32 s{sG2}, 48')
            a(f's_cselect_b32 s{S_WD}, s{sT2}, s{S_WD}')
            a(f's_cselect_b32 s{S_WD + 1}, s{sT3}, s{S_WD + 1}')
            a(f's_cselect_b32 s{sT0}, s{sT1}, s{sT0}')
            self.real_line(sT0, sT2)
            a(f's_and_b32 s{sT2}, s{sG2}, 1')
            a(f's_lshl1_add_u32 s{sT2}, s{sT0}, s{sT2}')
            a(f's_mul_i32 s{sT2}, s{sT2}, {32 * 1280}')
            a(f's_lshl_b32 s{sT0}, s{sT0}, 7')
            a(f's_movk_i32 s{sT1}, 1280')
            a(f's_movk_i32 s{sJs}, 128')
            a(f's_cmp_ge_u32 s{sG2}, 48')
            a(f's_cselect_b32 s{sJo}, s{sT0}, s{sT2}')
            a(f's_cselect_b32 s{sT1}, 3072, s{sT1}')
            a(f's_cselect_b32 s{sJs}, {32 * 3072}, s{sJs}')
            a(f'v_and_b32 v{vJ2}, 7, v0')
            a(f'v_lshlrev_b32 v{vJ2}, 4, v{vJ2}')
            a(f'v_lshrrev_b32 v15, 3, v{vTid}')
            a(f'v_mad_u32_u24 v{vJ2}, v15, s{sT1}, v{vJ2}')
            if self.opt.get('nos2'):
                a(f's_cselect_b32 s{S_WD + 2}, 0, s{S_WD + 2}')
            l2 = a.label('j2')
            if self.nt(4):
                l = a.label('j2')
                a(f's_cbranch_scc1 {l}')
                with a.untracked():
                    for j in range(10):
                        a(f'buffer_load_dwordx4 {vr(J2 + 4 * j, 4)}, v{vJ2}, {sr(S_WD, 4)}, s{sJo} offen offset:{128 * j}{self.nt(4)}')
                    a(f's_branch {l2}')
                a(f'{l}:')
            for j in range(10):
                a(f'buffer_load_dwordx4 {vr(J2 + 4 * j, 4)}, v{vJ2}, {sr(S_WD, 4)}, s{sJo} offen')
                a(f's_add_u32 s{sJo}, s{sJo}, s{sJs}')
            a(f'{l2}:')
        a(f's_cmp_ge_u32 s{sG}, 64')
        a.snapshot('s4')
        a('s_cbranch_scc1 .Ls4')
        XR, WR = 16, J2
        vA, vRow, vS8 = 2, 3, 4
        a(f'v_lshrrev_b32 v{vRow}, 3, v{vTid}')
        a(f'v_and_b32 v{vS8}, 7, v0')
        a(f's_lshr_b32 s{sT0}, s{sG}, 3')
        a(f's_lshl_b32 s{sT0}, s{sT0}, 8')
        a(f's_and_b32 s{sT1}, s{sG}, 3')
        a(f's_lshl2_add_u32 s{sT0}, s{sT1}, s{sT0}')
        a(f's_bfe_u32 s{sT1}, s{sG}, 0x10002')
        a(f's_lshl1_add_u32 s{sT0}, s{sT1}, s{sT0}')
        a(f'v_and_b32 v5, 0xf0, v{vTid}')
        a(f'v_and_b32 v6, 1, v{vRow}')
        a(f'v_add3_u32 v5, v5, v6, s{sT0}')
        a(f's_movk_i32 s{sT1}, 1280')
        a(f'v_lshlrev_b32 v6, 4, v{vS8}')
        a(f'v_mad_u32_u24 v5, v5, s{sT1}, v6')
        for j in range(10):
            a(f'buffer_load_dwordx4 {vr(XR + 4 * j, 4)}, v5, {sr(S_X, 4)}, 0 offen offset:{128 * j}{self.nt(3)}')
        if head:
            a('s_branch .Lhead_a1')
            a('.Lhead_a1:')
        if up == 1:
            job2_loads()
        self.stamp('sx_issued')
        self.gemm_ids()
        self.w_addr()
        vW, vRd, vSt = 5, 6, 7
        a(f's_movk_i32 s{sT1}, 528')
        a(f'v_lshlrev_b32 v{vW}, 3, v{vRow}')
        a(f'v_mad_u32_u24 v{vW}, v{vS8}, s{sT1}, v{vW}')
        a(f'v_and_b32 v{vRd}, 31, v0')
        a(f'v_lshlrev_b32 v{vRd}, 4, v{vRd}')
        a(f'v_lshrrev_b32 v8, 5, v{vTid}')
        a(f'v_mad_u32_u24 v{vRd}, v8, s{sT1}, v{vRd}')
        a(f's_lshl_b32 s{sT0}, s{sG}, 8')
        a(f'v_and_b32 v{vSt}, 15, v0')
        a(f's_and_b32 s{sT1}, s{sT0}, 0x2000')
        a(f's_add_u32 s{sT1}, s{sT1}, s{sT0}')
        a(f'v_lshl_add_u32 v{vSt}, v{vSt}, 4, s{sT1}')
        a(f'v_lshrrev_b32 v8, 4, v{vTid}')
        a(f's_mov_b32 s{sT1}, {2 * QS}')
        a(f'v_mad_u32_u24 v{vSt}, v8, s{sT1}, v{vSt}')
        for j in range(10):
            for o_ in range(2):
                a(f'ds_write_b64 v{vW}, {vr(XR + 4 * j + 2 * o_, 2)} offset:{j * 4224 + o_ * 256}')
        self.stamp('sx_data')
        a(f's_load_dword s{sU0}, {sr(S_DBG, 2)}, 0x80')
        a(f's_load_dword s{sU1}, {sr(S_DBG, 2)}, 0x0')
        if up == 2:
            job2_loads()
            a(f's_lshl_b32 s{sT0}, s{sG}, 8')
        a('s_waitcnt lgkmcnt(0)')
        a('s_barrier')
        self.stamp('sx_bar')
        XO = 96
        for j in range(10):
            a(f'ds_read_b128 {vr(XO + 4 * j, 4)}, v{vRd} offset:{j * 4224}')
        self.get_pol(vFl)
        self.check(S_DBG, '0', 1, vFl, sU1)
        a(f's_mov_b32 s{sOne}, 0x3f803f80')
        for i in range(4):
            a(f'v_mov_b32 v{8 + i}, 0')
        for j in range(10):
            a(f's_mov_b32 s{sT1}, {grp_base(j, XP4, XP4T)}')
            a(f'buffer_store_dwordx4 {vr(XO + 4 * j, 4)}, v{vSt}, {WS}, s{sT1} offen sc1')
            for i in range(4 * j, 4 * j + 4):
                a(f'v_dot2c_f32_bf16 v{8 + (i & 1)}, s{sOne}, v{XR + i}')
                a(f'v_dot2c_f32_bf16 v{10 + (i & 1)}, v{XR + i}, v{XR + i}')
        a('v_add_f32 v8, v8, v9')
        a('v_add_f32 v10, v10, v11')
        for m in ('quad_perm:[1,0,3,2]', 'quad_perm:[2,3,0,1]', 'row_half_mirror'):
            a(f'v_add_f32_dpp v8, v8, v8 {m} row_mask:0xf bank_mask:0xf')
            a(f'v_add_f32_dpp v10, v10, v10 {m} row_mask:0xf bank_mask:0xf')
        a(f'v_mul_f32 v8, {f32(1 / 640)}, v8')
        a(f'v_mul_f32 v10, {f32(1 / 640)}, v10')
        a('v_fma_f32 v10, -v8, v8, v10')
        a('v_max_f32 v10, 0, v10')
        if self.opt.get('mim', 3) & 1:
            a('v_cvt_pk_bf16_f32 v8, v8, v10')
            a('v_and_b32 v10, 0xffff0000, v8')
            a('v_lshlrev_b32 v8, 16, v8')
            a(f'v_add_f32 v10, {f32(1e-5)}, v10')
            a('v_cvt_pk_bf16_f32 v10, 0, v10')
            a('v_sqrt_f32 v10, v10')
            a('v_cvt_pk_bf16_f32 v10, 0, v10')
            a('v_rcp_f32 v10, v10')
        else:
            a(f'v_add_f32 v10, {f32(1e-5)}, v10')
            a('v_rsq_f32 v10, v10')
        a('v_lshlrev_b32 v12, 5, v0')
        a('v_mul_f32 v11, -v8, v10')
        a(f's_lshl_b32 s{sT1}, s{S_W}, 6')
        a(f's_add_u32 s{sT1}, s{sT1}, s{sT0}')
        a(f's_add_u32 s{sT1}, s{sT1}, {ST1}')
        a('ds_bpermute_b32 v8, v12, v10')
        a('ds_bpermute_b32 v9, v12, v11')
        a('v_lshlrev_b32 v12, 3, v0')
        a.need('v[8:9]')
        a('s_mov_b64 exec, 0xff')
        a(f'buffer_store_dwordx2 v[8:9], v12, {WS}, s{sT1} offen sc1')
        a('s_mov_b64 exec, -1')
        a('s_branch .Lr1')
        if head:
            a('.Lhead_b0:')
        a('.Ls4:')
        a.fresh('s4')
        T4 = 10240
        a(f's_sub_u32 s{sT4}, s{sG}, 64')
        if self.opt.get('s4loc', 1):
            a(f's_lshr_b32 s{sT4}, s{sT4}, 3')
            a(f's_and_b32 s{sT5}, s{sX}, 3')
            a(f's_lshr_b32 s{sT0}, s{sX}, 2')
            a(f's_lshl1_add_u32 s{sT5}, s{sT5}, s{sT0}')
        else:
            a(f's_lshr_b32 s{sT5}, s{sT4}, 2')
            a(f's_and_b32 s{sT4}, s{sT4}, 3')
        a(f's_mul_i32 s{sT0}, s{sT4}, 160')
        a(f's_lshl3_add_u32 s{sT0}, s{S_W}, s{sT0}')
        a(f's_mul_i32 s{sT0}, s{sT0}, 3072')
        a(f's_mul_i32 s{sT1}, s{sT5}, 3')
        a(f's_add_u32 s{sT1}, s{sT1}, 1')
        self.real_line(sT1, sT2)
        a(f's_lshl_b32 s{sT1}, s{sT1}, 7')
        a(f's_add_u32 s{sT0}, s{sT0}, s{sT1}')
        a('v_lshrrev_b32 v3, 3, v0')
        a('v_and_b32 v4, 7, v0')
        a(f'v_lshl_add_u32 v2, v4, 4, s{sT0}')
        a(f's_movk_i32 s{sT1}, 3072')
        a(f'v_mad_u32_u24 v2, v3, s{sT1}, v2')
        a(f's_mov_b32 s{sT0}, 0')
        for i in range(10):
            a(f'buffer_load_dwordx4 {vr(XR + 4 * i, 4)}, v2, {sr(S_WU if i & 1 else S_WG, 4)}, s{sT0} offen{self.nt(5)}')
            if i & 1:
                a(f's_add_u32 s{sT0}, s{sT0}, {32 * 3072}')
        if head:
            a('s_branch .Lhead_b1')
            a('.Lhead_b1:')
        if up == 1:
            job2_loads()
        self.stamp('sx_issued')
        self.gemm_ids()
        self.w_addr()
        a(f's_lshl_b32 s{sT0}, s{S_W}, 9')
        a(f'v_lshl_add_u32 v5, v3, 6, s{sT0}')
        a('v_and_b32 v6, 1, v0')
        a('v_lshl_add_u32 v5, v6, 4, v5')
        a('v_bfe_u32 v6, v0, 1, 2')
        a('v_lshlrev_b32 v7, 5, v6')
        a('v_xor_b32 v5, v5, v7')
        a(f's_movk_i32 s{sT0}, {T4}')
        a(f'v_mad_u32_u24 v5, v6, s{sT0}, v5')
        a('v_xor_b32 v6, 32, v5')
        a('v_lshrrev_b32 v7, 5, v0')
        a('v_bfe_u32 v8, v0, 2, 2')
        a('v_lshl_add_u32 v7, v7, 3, v8')
        a('v_lshlrev_b32 v7, 6, v7')
        a('v_and_b32 v8, 3, v0')
        a('v_lshl_add_u32 v7, v8, 4, v7')
        a('v_bfe_u32 v8, v0, 4, 1')
        a('v_lshl_add_u32 v7, v8, 3, v7')
        a(f's_lshl_b32 s{sT1}, s{S_W}, 5')
        a(f'v_xor_b32 v7, s{sT1}, v7')
        a(f's_mul_i32 s{sT1}, s{S_W}, {T4}')
        a(f'v_add_u32 v7, s{sT1}, v7')
        for i in range(10):
            a(f'ds_write_b128 v{6 if i & 1 else 5}, {vr(XR + 4 * i, 4)} offset:{(i >> 1) * 2048}')
        self.stamp('sx_data')
        a(f's_load_dword s{sU0}, {sr(S_DBG, 2)}, 0x80')
        a(f's_load_dword s{sU1}, {sr(S_DBG, 2)}, 0x0')
        if up == 2:
            job2_loads()
        a('s_waitcnt lgkmcnt(0)')
        a('s_barrier')
        self.stamp('sx_bar')
        for j in range(10):
            for e in range(2):
                a(f'ds_read_b64_tr_b16 {vr(XO + 4 * j + 2 * e, 2)}, v7 offset:{1024 * j + 256 * e}')
        a(f's_lshl2_add_u32 s{sT0}, s{sT5}, s{S_W}')
        a(f's_lshl2_add_u32 s{sT0}, s{sT0}, s{sT4}')
        a(f's_mul_i32 s{sT0}, s{sT0}, 10240')
        a(f's_add_u32 s{sT0}, s{sT0}, {W45F}')
        a('v_lshlrev_b32 v9, 4, v0')
        self.get_pol(vFl)
        self.check(S_DBG, '0', 1, vFl, sU1)
        for j in range(10):
            if j and j & 3 == 0:
                a(f's_add_u32 s{sT0}, s{sT0}, 4096')
            a(f'buffer_store_dwordx4 {vr(XO + 4 * j, 4)}, v9, {WS}, s{sT0} offen offset:{(j & 3) * 1024} sc1')
        a('.Lr1:')
        a.fresh()
        self.stamp('sx_st')
        o = self.opt
        assert up >= 1
        a(f's_mov_b32 s{sG}, s{sG2}')
        a(f's_mov_b32 s{sSide}, s{sG2}')
        self.w_select()
        WB = 49152
        T0 = 216
        na, nb, nc = o.get('sw_a', 10), o.get('sw_b', 10), o.get('sw_c', 12)
        assert na + nb + nc <= 32

        def end_r1(younger):
            self.stamp('sx_ld2')
            a(f's_waitcnt vmcnt({younger})')
            a('s_barrier')
            self.stamp('sx_dr')
            self.arrive_start([(sArr, C_FX)])
        a(f's_cmp_ge_u32 s{sG}, 48')
        a('s_cbranch_scc1 .Ls2')
        wl = self.w_loads_main()
        a(wl[:na])
        v8, v9, v10 = T0, T0 + 1, T0 + 2
        a(f'v_lshrrev_b32 v{vRow}, 3, v{vTid}')
        a(f'v_and_b32 v{vS8}, 7, v0')
        a(f's_movk_i32 s{sT1}, 1344')
        a(f'v_lshlrev_b32 v{vW}, 4, v{vS8}')
        a(f'v_mad_u32_u24 v{vW}, v{vRow}, s{sT1}, v{vW}')
        a(f'v_lshrrev_b32 v{v8}, 4, v0')
        a(f'v_bfe_u32 v{v9}, v0, 2, 2')
        a(f'v_lshl_add_u32 v{v8}, v{v8}, 3, v{v9}')
        a(f's_mul_i32 s{sT0}, s{S_W}, 320')
        a(f'v_mov_b32 v{v9}, s{sT0}')
        a(f'v_mad_u32_u24 v{v8}, v{v8}, s{sT1}, v{v9}')
        a(f'v_and_b32 v{v9}, 3, v0')
        a(f'v_lshl_add_u32 v{v10}, v{v9}, 3, v{v8}')
        a(f'v_lshl_add_u32 v{v8}, v{v9}, 4, v{v8}')
        end_r1(na)
        q = wl[na:na + nb]
        for j in range(10):
            a(f'ds_write_b128 v{vW}, {vr(WR + 4 * j, 4)} offset:{WB + 128 * j}')
            if q and j < o.get('sw_b1', 4):
                a(q.pop(0))
        self.arrive_finish([(sArr, 11, C_FXR)], v9)
        self.stamp(1)
        a(q)
        a('s_barrier')
        for cc in range(2):
            for nt in range(5):
                for e in range(2):
                    off = WB + cc * 160 + e * 4 * 1344 + ((nt >> 1) * 64 + (nt & 1) * 8)
                    a(f'ds_read_b64_tr_b16 {ar(4 * (5 * cc + nt) + 2 * e, 2)}, v{v10 if nt == 4 else v8} offset:{off}')
        a(f's_mul_i32 s{sT0}, s{S_W}, 96')
        a(f's_add_u32 s{sT0}, s{sT0}, s{sG}')
        a(f's_mul_i32 s{sT0}, s{sT0}, 5120')
        a(f's_add_u32 s{sT0}, s{sT0}, {WDF}')
        a(f'v_lshlrev_b32 v{v9}, 4, v0')
        for cc in range(2):
            for nt in range(5):
                if nt == 4:
                    a(f's_add_u32 s{sT0}, s{sT0}, 4096')
                a(f'buffer_store_dwordx4 {ar(4 * (5 * cc + nt), 4)}, v{v9}, {WS}, s{sT0} offen offset:{(nt & 3) * 1024} sc1')
            a(f's_add_u32 s{sT0}, s{sT0}, {48 * 5120 - 4096}')
        a('s_branch .Lr2')
        a('.Ls2:')
        a.fresh()
        AC = T0 + 4
        for i in range(10, 20):
            a(f'buffer_load_dwordx4 {vr(J2 + 4 * i, 4)}, v{vJ2}, {sr(S_WD, 4)}, s{sJo} offen')
            a(f's_add_u32 s{sJo}, s{sJo}, s{sJs}')
        for i in range(8):
            a(f'v_mov_b32 v{AC + i}, 0')
        a(f's_mov_b32 s{sT4}, 0x3f80')
        a(f's_mov_b32 s{sT3}, 0x3f800000')
        end_r1(10)
        q = self.w_loads_main()[:na + nb]
        for i in range(80):
            a(f'v_dot2c_f32_bf16 v{AC + 2 * (i & 3)}, s{sT4}, v{J2 + i}')
            a(f'v_dot2c_f32_bf16 v{AC + 1 + 2 * (i & 3)}, s{sT3}, v{J2 + i}')
            if i == 39:
                self.arrive_finish([(sArr, 11, C_FXR)], T0)
                self.stamp(1)
            if i & 1 and i > 39 and q:
                a(q.pop(0))
        a(q)
        a(f'v_lshlrev_b32 v5, 5, v{vTid}')
        a(f'ds_write_b128 v5, {vr(AC, 4)} offset:{WB}')
        a(f'ds_write_b128 v5, {vr(AC + 4, 4)} offset:{WB + 16}')
        a('s_waitcnt lgkmcnt(0)')
        a('s_barrier')
        a('v_bfe_u32 v6, v0, 1, 4')
        a('v_and_b32 v7, 32, v0')
        a('v_add_u32 v6, v6, v7')
        a('v_and_b32 v7, 1, v0')
        a('v_lshl_add_u32 v6, v7, 4, v6')
        a('v_lshlrev_b32 v6, 2, v6')
        for i in range(16):
            a(f'ds_read2st64_b32 {vr(J2 + 2 * i, 2)}, v6 offset0:{WB // 256 + 2 * i} offset1:{WB // 256 + 2 * i + 1}')
        for i in range(1, 16):
            a(f'v_pk_add_f32 {vr(J2, 2)}, {vr(J2, 2)}, {vr(J2 + 2 * i, 2)}')
        a(f'v_add_f32 v{J2}, v{J2}, v{J2 + 1}')
        a(f'v_cvt_pk_bf16_f32 v{T0}, v{J2}, v{J2}')
        a(f'v_lshlrev_b32 v7, 16, v{T0}')
        a(f'v_sub_f32 v7, v{J2}, v7')
        a(f'v_cvt_pk_bf16_f32 v{T0 + 1}, v7, v7')
        a(f's_lshl_b32 s{sT0}, s{sLn}, 9')
        a(f's_add_u32 s{sT0}, s{sT0}, {CSF}')
        a('v_lshlrev_b32 v6, 3, v0')
        a(f's_cmp_lg_u32 s{S_W}, 0')
        a('s_cbranch_scc1 .Lr2')
        a(f'buffer_store_dwordx2 {vr(T0, 2)}, v6, {WS}, s{sT0} offen sc1')
        a('.Lr2:')
        a.fresh()
        if self.opt.get('nost1'):
            a(f's_mov_b32 s{S_WS + 2}, {WS_END}')
        self.stamp(2)
        a(f's_lshr_b32 s{sT0}, s{sG}, 5')
        a(f's_and_b32 s{sT1}, s{sG}, 15')
        a(f's_lshl4_add_u32 s{sT0}, s{sT0}, s{sT1}')
        a(f's_and_b32 s{sT1}, s{sG}, 16')
        a(f's_lshl2_add_u32 s{sT0}, s{sT1}, s{sT0}')
        a(f's_lshl_b32 s{sT0}, s{sT0}, 7')
        a(f's_add_u32 s{sT0}, s{sT0}, {CF3}')
        a('v_mov_b32 v4, 0')
        a('v_and_b32 v5, 31, v0')
        a('v_lshlrev_b32 v5, 2, v5')
        lf3 = a.label('nof3')
        a(f's_cmp_lg_u32 s{S_W}, 1')
        a(f's_cbranch_scc1 {lf3}')
        with a.untracked():
            a(f'buffer_store_dword v4, v5, {WS}, s{sT0} offen sc1')
        a(f'{lf3}:')
        if o.get('outpf', 2) >= 2:
            big = o.get('outpf', 2) == 3
            a(f's_lshr_b32 s{sT0}, s{sG}, 3')
            a(f's_mul_i32 s{sT0}, s{sT0}, 86')
            a(f's_and_b32 s{sT1}, s{sG}, 7')
            a(f's_lshl_b32 s{sT1}, s{sT1}, 10')
            a(f's_add_u32 s{sT0}, s{sT0}, s{sT1}')
            for i in range(4):
                a(f'v_mov_b32 v{T0 + 4 + i}, 0')
            for k in range(3 if big else 2):
                a(f'v_lshrrev_b32 v6, {3 if big else 2}, v{vTid}')
                a(f'v_add_u32 v6, {k * (32 if big else 64)}, v6')
                a('v_min_u32 v6, 85, v6')
                a(f'v_add_u32 v6, s{sT0}, v6')
                a('v_mul_u32_u24 v6, 320, v6')
                a('v_add_u32 v6, 160, v6')
                a(f'v_and_b32 v6, {-128 if big else -64}, v6')
                a(f'v_and_b32 v7, {7 if big else 3}, v0')
                a('v_lshl_add_u32 v6, v7, 4, v6')
                a(f'buffer_store_dwordx4 {vr(T0 + 4, 4)}, v6, {sr(S_OUT, 4)}, 0 offen sc1')
        a(self.clear_pst(T0 + 8))
        n0 = na + nb + nc
        a(wl[na + nb:n0])
        a(f's_add_u32 s{sT4}, s{sXo}, {C_FXR * 256}')
        a(f's_add_u32 s{sFW}, s{sT4}, {(C_FWR - C_FXR) * 256}')
        a.drain_stores()
        a('s_waitcnt lgkmcnt(0)')
        a('s_barrier')
        self.stamp(6)
        self.arrive_start([(sArr, C_B1), (sJs, C_FW)])
        a(f'buffer_load_dword v1, off, {WS}, s{sT4} sc1')

        def mid():
            self.arrive_finish([(sJs, 11, C_FWR), (sArr, 31, C_B2)], T0)
            self.check(S_WS, f's{sT4}', 8, 1)
        self.side_window(wl[n0:], mid)
        self.warm([[3], [4], [5]])
        a(f's_waitcnt vmcnt({self.opt["wd_pre"]})')
        self.stamp(7)
        a('s_branch .Ljoin')

    def signal(self, soff, pi):
        a = self.a
        if self.opt.get('ssig', 0) >> pi & 1:
            a(f's_atomic_add s{sU2}, {sr(S_WS, 2)}, {soff}')
        else:
            a('s_mov_b64 exec, 1')
            a(f'buffer_atomic_add v{self.vOne}, off, {WS}, {soff} sc1')
            a('s_mov_b64 exec, -1')

    def gemms(self):
        a = self.a
        o = self.opt
        t, t2 = self.vTmp, self.vTmp2
        L, AB = 0, 8
        vRD = 4
        vAL, vAS, vA2, vWD, vWD2, vCS, vFl = 1, 2, 3, 247, 255, 246, 254
        vW5 = 252
        vS = 232
        BP = 236
        TM = 242
        ACC = 168
        RING1, CS, RING2 = 124, 148, 240
        sF3s, sF3p = sQ, sM
        sRB2w = sG
        kap = [[3 * c + ((pi + 1) % 3 if c & 1 else pi) for c in range(4)] for pi in range(3)]
        wdx = o.get('wdx')

        def wd_off(k):
            if wdx is None:
                return WDF + 5120 * k
            return ACT + 16384 * k + 3072 * (k >> 1 & 1) + (8192 * (k & 1) if wdx == 2 else 0)
        wd = []
        for i in range(60):
            g = []
            if i % 5 == 0:
                g.append(f's_mov_b32 s{sWoff}, {wd_off(kap[i // 20][i // 5 % 4])}')
            g.append(f'buffer_load_dwordx4 {ar(4 * i, 4)}, v{vWD2 if i % 5 == 4 else vWD}, {WS}, s{sWoff} offen offset:{(i % 5 & 3) * 1024} sc1')
            wd.append(g)
        if o.get('nowd'):
            wd = [[] for _ in wd]
        real, setup0 = a, []
        a = setup0.append
        a(f's_and_b32 s{sT0}, s{sJ}, 7')
        a(f's_lshl2_add_u32 s{sT0}, s{sT0}, s{S_W}')
        if wdx is None:
            a(f's_mul_i32 s{sT0}, s{sT0}, {12 * 5120}')
        else:
            a(f's_lshr_b32 s{sT1}, s{sT0}, 3')
            a(f's_lshl_b32 s{sT1}, s{sT1}, 22')
            a(f's_and_b32 s{sT0}, s{sT0}, 7')
            a(f's_mul_i32 s{sT0}, s{sT0}, 196608')
            a(f's_add_u32 s{sT0}, s{sT0}, s{sT1}')
            a(f's_add_u32 s{sT0}, s{sT0}, {2 * MB}')
            if wdx < 2:
                a(f's_and_b32 s{sT1}, s{sXo}, 0x2000')
                a(f's_xor_b32 s{sT1}, s{sT1}, {0x2000 * (1 - wdx)}')
                a(f's_add_u32 s{sT0}, s{sT0}, s{sT1}')
        a(f'v_lshl_add_u32 v{vWD}, v0, 4, s{sT0}')
        a(f'v_add_u32 v{vWD2}, 0x1000, v{vWD}')
        a(f'v_lshlrev_b32 v{vRD}, 4, v0')
        for s in range(1, 4):
            a(f'v_xor_b32 v{t}, {16 * s}, v{vRD}')
            a(f'v_add_u32 v{vRD + s}, {TILE * s}, v{t}')
        a(f'v_lshl_add_u32 v{vW5}, s{S_W}, 10, v{vRD}')
        a(f'v_lshl_add_u32 v{vW5 + 1}, s{S_W}, 10, v{vRD + 1}')
        a(f's_lshl2_add_u32 s{sT0}, s{sRB}, s{S_W}')
        a(f's_lshl_b32 s{sT1}, s{sT0}, 8')
        a(f'v_and_b32 v{t}, 15, v0')
        a(f'v_lshlrev_b32 v{vA2}, 4, v{t}')
        a(f'v_add_u32 v{t}, s{sT1}, v{vA2}')
        a(f'v_lshrrev_b32 v{t2}, 4, v0')
        a(f's_mov_b32 s{sT1}, {QS}')
        a(f'v_mad_u32_u24 v{vAL}, v{t2}, s{sT1}, v{t}')
        a(f'v_lshl_add_u32 v{vA2}, v{t2}, 9, v{vA2}')
        def act_blk(dst, n, tmp):
            a(f's_and_b32 s{tmp}, s{n}, 7')
            a(f's_mul_i32 s{dst}, s{tmp}, 196608')
            a(f's_bfe_u32 s{tmp}, s{n}, 0x20003')
            a(f's_lshl_b32 s{tmp}, s{tmp}, 22')
            a(f's_add_u32 s{dst}, s{dst}, s{tmp}')
            a(f's_lshr_b32 s{tmp}, s{n}, 5')
            a(f's_lshl_b32 s{tmp}, s{tmp}, 13')
            a(f's_add_u32 s{dst}, s{dst}, s{tmp}')

        def f3_line(r, tmp):
            a(f's_and_b32 s{tmp}, s{r}, 16')
            a(f's_mul_i32 s{tmp}, s{tmp}, 3')
            a(f's_add_u32 s{r}, s{r}, s{tmp}')
            a(f's_lshl_b32 s{r}, s{r}, 7')
            a(f's_add_u32 s{r}, s{r}, {CF3}')
        act_blk(sT1, sT0, sT4)
        a(f'v_lshl_add_u32 v{vAS}, v0, 4, s{sT1}')
        a(f's_lshr_b32 s{sF3s}, s{sT0}, 1')
        f3_line(sF3s, sT4)
        a(f's_lshr_b32 s{sT1}, s{sJ}, 3')
        a(f's_lshl2_add_u32 s{sF3p}, s{sX}, s{sT1}')
        a(f's_lshl_b32 s{sRB2w}, s{sF3p}, 1')
        f3_line(sF3p, sT4)
        for i in range(4):
            a(f's_add_u32 s{sT0}, s{sRot}, {i}')
            a(f's_and_b32 s{sT0}, s{sT0}, 3')
            a(f's_mul_i32 s{sT1}, s{sT0}, {40 * QS}')
            a(f's_add_u32 s{sT1}, s{sT1}, {HP4}')
            a([f's_cmp_lt_u32 s{sT0}, 3', f's_cselect_b32 s{sAB + i}, s{sT1}, {HP4T}'])
        a(f'v_and_b32 v{t}, 3, v0')
        a(f'v_bfe_u32 v{t2}, v0, 2, 1')
        a(f'v_lshl_add_u32 v{t}, v{t2}, 3, v{t}')
        a(f'v_bfe_u32 v{t2}, v0, 4, 1')
        a(f'v_lshl_add_u32 v{t}, v{t2}, 2, v{t}')
        a(f'v_lshlrev_b32 v{t}, 4, v{t}')
        a(f'v_bfe_u32 v{t2}, v0, 3, 1')
        a(f's_movk_i32 s{sT1}, 12288')
        a(f'v_mad_u32_u24 v{vCS}, v{t2}, s{sT1}, v{t}')
        a(f's_mov_b32 s{sOne}, 0x3f803f80')
        a(f's_mov_b32 s{sU2}, 1')
        a(f's_lshl_b32 s{sT2}, s{sA}, 7')
        a(f's_add_u32 s{sT2}, s{sT2}, {CSF}')
        a(f's_lshl_b32 s{sT3}, s{sB}, 7')
        a(f's_add_u32 s{sT3}, s{sT3}, {CSF}')
        for r in (sA, sB):
            a(f's_and_b32 s{sT0}, s{r}, -8')
            a(f's_add_u32 s{r}, s{r}, s{sT0}')
            a(f's_lshl_b32 s{r}, s{r}, 10')
            a(f's_add_u32 s{r}, s{r}, {ACT}')
        act_blk(sT6, sRB2w, sT4)
        a(f's_mul_i32 s{sT5}, s{S_W}, 49152')
        a(f's_add_u32 s{sT5}, s{sT5}, s{sT6}')
        for lam in range(4):
            a(f's_xor_b32 s{sT0}, s{S_W}, {lam}')
            a(f's_lshr_b32 s{sT1}, s{sT0}, 1')
            a(f's_mul_i32 s{sT1}, s{sT1}, 196608')
            a(f's_and_b32 s{sT0}, s{sT0}, 1')
            a(f's_lshl_b32 s{sT0}, s{sT0}, 8')
            a(f's_add_u32 s{sT0}, s{sT0}, s{sT5}')
            a(f's_add_u32 s{sL[lam]}, s{sT1}, s{sT0}')
        sRes, sOutB, sQS = 20, 21, 22
        a(f's_lshr_b32 s{sT0}, s{S_W}, 1')
        a(f's_add_u32 s{sT0}, s{sT0}, s{sRB2w}')
        a(f's_lshl_b32 s{sRes}, s{sT0}, 8')
        a(f's_and_b32 s{sT4}, s{S_W}, 1')
        a(f's_lshl3_add_u32 s{sRes}, s{sT4}, s{sRes}')
        a(f's_and_b32 s{sT5}, s{sJ}, 7')
        a(f's_mul_i32 s{sT6}, s{sT5}, {20 * QS}')
        a(f's_add_u32 s{sRes}, s{sRes}, s{sT6}')
        a(f's_mov_b32 s{sT6}, {HP4}')
        a([f's_cmp_lt_u32 s{sT5}, 6', f's_cselect_b32 s{sT6}, s{sT6}, {HP4T - 120 * QS}'])
        a(f's_add_u32 s{sRes}, s{sRes}, s{sT6}')
        a(f's_mov_b32 s{sQS}, {QS}')
        a(f's_lshr_b32 s{sOutB}, s{sRB2w}, 3')
        a(f's_lshl_b32 s{sOutB}, s{sOutB}, 8')
        a(f's_and_b32 s{sT6}, s{sT0}, 3')
        a(f's_lshl2_add_u32 s{sOutB}, s{sT6}, s{sOutB}')
        a(f's_bfe_u32 s{sT6}, s{sRB2w}, 0x10002')
        a(f's_lshl1_add_u32 s{sOutB}, s{sT6}, s{sOutB}')
        a(f's_add_u32 s{sOutB}, s{sOutB}, s{sT4}')
        a(f's_mul_i32 s{sOutB}, s{sOutB}, 1280')
        a(f's_mul_i32 s{sT6}, s{sT5}, 160')
        a(f's_add_u32 s{sOutB}, s{sOutB}, s{sT6}')
        a(f's_lshl_b32 s{sU0}, s{sCB}, 8')
        a(f's_add_u32 s{sU0}, s{sU0}, {PST}')
        a(f's_mov_b32 s{sU1}, {PST}')
        a(f's_and_b32 s{sCB}, s{sCB}, 3')
        a(f's_mul_i32 s{sCB}, s{sCB}, 10')
        a = real
        spw = o['sp'] >> 4 & 1
        fw_ld = f's_load_dword s{sDv}, {sr(S_WS, 2)}, s{sFW}' if spw else f'buffer_load_dword v{TM + 2}, off, {WS}, s{sFW} sc1'
        nw = 40 - 8 * o.get('defer', 2)
        wdp = [wd.pop(0) for _ in range(o['wd_pre'])]

        def mixer(ww, setup, lq, per=6):
            def some(n, nl):
                for i in range(n):
                    a(ww.pop(0))
                    for _ in range(per):
                        if setup:
                            a(setup.pop(0))
                    for _ in range(((i + 1) * nl) // n - (i * nl) // n):
                        if lq:
                            a(lq.pop(0))
            return some

        def side_window(wl, fx_check):
            ww, setup = self.w_writes_main()[:nw], list(setup0)
            self.w_write_addr()
            lq = list(wl)
            hold = [x for x in setup if isinstance(x, str) and (f'v{vW5},' in x or f's{sU1},' in x)]
            setup = [x for x in setup if x not in hold]
            some = mixer(ww, [], lq)
            nl = len(lq)
            n_ = min(nl, nw - 8)
            assert all(40 - nl + (i * nl) // n_ >= 8 * (i // 8 + 1) for i in range(n_))
            some(n_, nl)
            fx_check()
            lq += self.w_loads_tail()
            if o.get('outpf', 2) == 1:
                a(f's_lshr_b32 s{sT0}, s{sSide}, 3')
                a(f's_lshl2_add_u32 s{sT0}, s{sT0}, s{S_W}')
                a(f's_mul_i32 s{sT0}, s{sT0}, {22 * 320}')
                a(f's_and_b32 s{sSide}, s{sSide}, 7')
                a(f's_mul_i32 s{sSide}, s{sSide}, {256 * 1280}')
                a(f's_add_u32 s{sSide}, s{sSide}, s{sT0}')
                a(f'v_min_u32 v{TM}, 21, v0')
                a(f'v_mul_u32_u24 v{TM}, 320, v{TM}')
                lq.insert(o.get('pf_pos', 20), f'buffer_load_dword a255, v{TM}, {sr(S_OUT, 4)}, s{sSide} offen offset:160')
            lq.append(fw_ld)
            mixer(ww, setup, lq)(len(ww), len(lq))
            a(setup)
            a(hold)
            if wdp:
                self.check(S_WS, f's{sFW}', 0 if o.get('nofw') else 8, TM + 2, sDv if spw else None)
            a(wdp)
        self.side_window = side_window
        ww = self.conv_ww
        setup = self.win_pre + setup0
        lq = list(self.win_loads)
        n1, n2 = o.get('ww1', 10), o.get('ww2', 6)
        assert len(ww) - n1 >= 8
        hold = [x for x in setup if isinstance(x, str) and (f'v{vW5},' in x or f's{sU1},' in x)]
        setup[:] = [x for x in setup if x not in hold]
        self.stamp('hbar')
        some = mixer(ww, setup, lq, o.get('su_per', 7))
        assert 5 * o.get('su_per', 7) >= len(self.win_pre)
        some(5, 0)
        fwe = o.get('fwe', 1)
        if wdp and fwe:
            a(fw_ld)
        some(n1 - 5, o.get('l1', 8))
        self.stamp('hissued')
        if wdp and fwe and spw:
            a.need(f's{sDv}')
        a.drain_stores()
        self.stamp('hdrained')
        a('s_barrier')
        self.stamp('hbar2')
        self.arrive_start([(sArr, C_B1)])
        if wdp and not fwe:
            a(fw_ld)
        if wdp and fwe:
            self.check(S_WS, f's{sFW}', 0 if o.get('nofw') else 8, TM + 2, sDv if spw else None)
            nl2 = len(lq) + o.get('l2', 8)
            lq += wdp
            some(n2, nl2)
        else:
            some(n2, len(lq))
        self.arrive_finish([(sArr, 31, C_B2)], TM)
        self.stamp('arrived')
        if wdp and not fwe:
            self.check(S_WS, f's{sFW}', 0 if o.get('nofw') else 8, TM + 2, sDv if spw else None)
            lq += wdp
        some(len(ww), len(lq))
        a(setup)
        a(hold)
        a(lq)
        a('.Ljoin:')
        self.stamp('wwritten')
        a(f's_add_u32 s{sT0}, s{sXo}, {C_B2 * 256}')
        with self.wave0():
            l = a.label('passed')
            if o.get('e2s', 1):
                a(f's_load_dword s{sDv}, {sr(S_WS, 2)}, s{sT0}')
                a('s_waitcnt lgkmcnt(0)')
                a(f's_cmp_ge_u32 s{sDv}, 8')
                a(f's_cbranch_scc1 {l}')
            self.spin(S_WS, f's{sT0}', 0 if o.get('noe2') else 8, t)
            a(f'{l}:')
        self.stamp('polled')
        a('s_waitcnt lgkmcnt(0)')
        a('s_barrier')
        self.stamp(8)
        al = []
        for j in range(40):
            if j % 10 == 0:
                al.append([f'buffer_load_dwordx4 {vr(AB + 4 * j, 4)}, v{vAL}, {WS}, s{sAB + j // 10} offen sc1'])
            else:
                al.append([f's_add_u32 s{sT1}, s{sAB + j // 10}, {(j % 10) * 4 * QS}',
                           f'buffer_load_dwordx4 {vr(AB + 4 * j, 4)}, v{vAL}, {WS}, s{sT1} offen sc1'])
        al.append(f'buffer_load_dwordx4 {ar(CS, 4)}, v{vCS}, {WS}, s{sT2} offen sc1')
        al.append(f'buffer_load_dwordx4 {ar(CS + 4, 4)}, v{vCS}, {WS}, s{sT2} offen offset:256 sc1')
        al.append(f'buffer_load_dwordx4 {ar(CS + 8, 4)}, v{vCS}, {WS}, s{sT3} offen sc1')
        for _ in range(o['a_ahead']):
            a(al.pop(0))

        def rd(dst, slot, j):
            return f'ds_read_b128 {ar(dst, 4)}, v{vRD + slot} offset:{1024 * j}'

        def swaps(j):
            return [f'v_permlane16_swap_b32 v{AB + 4 * j + e}, v{AB + 4 * j + 2 + e}' for e in range(2)]

        def acc(slot):
            return vr(ACC + 16 * slot, 16)
        wtail = [f'ds_write_b128 v{vW5 + (i & 1)}, {ar(160 + 4 * i, 4)} offset:{(i >> 1) * 4096}' for i in range(20)]
        if o.get('nowt'):
            wtail = [[] for _ in wtail]
        C0, C1, R = vS, vS + 1, vS + 2
        c0 = -2.0 * 0.7978845608028654 * 1.4426950408889634
        G = ACC + 48
        gather = [f'buffer_load_dwordx4 {vr(G + 4 * s, 4)}, v{self.vPS}, {WS}, s{sU1} offen offset:{1024 * s} sc1'
                  for s in range(4)]
        valid = [f'v_or3_b32 v{t}, v{G + 1}, v{G + 3}, v{G + 5}', f'v_or3_b32 v{t2}, v{G + 7}, v{G + 9}, v{G + 11}',
                 f'v_or3_b32 v{t}, v{t}, v{G + 13}, v{G + 15}', f'v_or_b32 v{t}, v{t}, v{t2}',
                 f'v_cmp_gt_i32 vcc, 0, v{t}']

        def chk_stats():
            slow, back = a.label('slow'), a.label('back')
            a('s_nop 1')
            a(f's_cbranch_vccnz {slow}')
            a(f'{back}:')

            def cold():
                top = a.label('top')
                a(f'{slow}:')
                with a.untracked():
                    a(f's_mov_b32 s{sSpin}, {SPIN}')
                    a(f'{top}:')
                    a(gather)
                    a('s_waitcnt vmcnt(0)')
                    a(valid)
                    a(f's_sub_u32 s{sSpin}, s{sSpin}, 1')
                    a(f's_cbranch_scc1 {back}')
                    a('s_nop 3')
                    a(f's_cbranch_vccnz {top}')
                    a(f's_branch {back}')
            self.cold.append(cold)
        halves = [
            f'v_add_f32 v{vS}, v{vS}, v{vS + 1}',
            f'v_add_f32 v{vS + 2}, v{vS + 2}, v{vS + 3}',
            f'v_mov_b32 v{vS + 1}, v{vS}',
            f'v_mov_b32 v{vS + 3}, v{vS + 2}',
            f'v_cmp_gt_u32 vcc, 32, v{L}',
            f'v_permlane32_swap_b32 v{vS}, v{vS + 1}',
            f'v_permlane32_swap_b32 v{vS + 2}, v{vS + 3}']
        pub = halves + [
            f'v_add_f32 v{G}, v{vS}, v{vS + 1}',
            f'v_add_f32 v{G + 1}, v{vS + 2}, v{vS + 3}',
            f'v_mov_b32 v{G + 2}, v{G}',
            f'v_and_b32 v{G + 1}, 0x7fffffff, v{G + 1}',
            f'v_mov_b32 v{G + 3}, v{G + 1}',
            f'v_permlane16_swap_b32 v{G}, v{G + 2}',
            f'v_permlane16_swap_b32 v{G + 1}, v{G + 3}',
            ['s_mov_b64 exec, 0xffff',
             f'buffer_store_dwordx4 {vr(G, 4)}, v{self.vPS}, {WS}, s{sU0} offen sc1',
             's_mov_b64 exec, -1']]
        st = valid + [chk_stats]
        st += [f'v_add_f32 v{G + d + e}, v{G + d + e}, v{G + d + e + 4}' for e in (0, 8) for d in range(4)]
        st += [f'v_add_f32 v{vS + (0, 2, 1, 3)[d]}, v{G + d}, v{G + d + 8}' for d in (0, 2, 1, 3)]
        st += [f'v_permlane16_swap_b32 v{vS}, v{vS + 1}', f'v_permlane16_swap_b32 v{vS + 2}, v{vS + 3}']
        st += halves + [
            f'v_add_f32 v{vS}, v{vS}, v{vS + 1}',
            f'v_add_f32 v{vS + 2}, v{vS + 2}, v{vS + 3}',
            f'v_mul_f32 v{vS}, {f32(-1 / 640)}, v{vS}',
            f'v_mul_f32 v{vS + 2}, {f32(1 / 640)}, v{vS + 2}',
        ] + ([
            f'v_cvt_pk_bf16_f32 v{t}, v{vS}, 0',
            f'v_fma_f32 v{R}, -v{vS}, v{vS}, v{R}',
            f'v_cndmask_b32 v{BP + 2}, 0, v{t}, vcc',
            f'v_max_f32 v{R}, 0, v{R}',
            f'v_cndmask_b32 v{BP + 3}, 0, v{t}, vcc',
            f'v_cvt_pk_bf16_f32 v{R}, 0, v{R}',
            f'v_add_f32 v{R}, {f32(1e-5)}, v{R}',
            f'v_cvt_pk_bf16_f32 v{R}, 0, v{R}',
            f'v_sqrt_f32 v{R}, v{R}',
            f'v_cvt_pk_bf16_f32 v{R}, 0, v{R}',
            f'v_rcp_f32 v{vS + 3}, v{R}',
            f'v_mul_f32 v{R}, v{R}, v{R}',
        ] if o.get('mim', 3) & 2 else [
            f'v_cvt_pk_bf16_f32 v{t}, v{vS}, v{vS}',
            f'v_fma_f32 v{R}, -v{vS}, v{vS}, v{R}',
            f'v_lshlrev_b32 v{t}, 16, v{t}',
            f'v_max_f32 v{R}, 0, v{R}',
            f'v_sub_f32 v{t2}, v{vS}, v{t}',
            f'v_add_f32 v{R}, {f32(1e-5)}, v{R}',
            f'v_cvt_pk_bf16_f32 v{t}, v{t}, v{t2}',
            f'v_rsq_f32 v{vS + 3}, v{R}',
            f'v_cndmask_b32 v{BP + 2}, 0, v{t}, vcc',
            f'v_cndmask_b32 v{BP + 3}, 0, v{t}, vcc',
        ]) + [
            f'v_mul_f32 v{C0}, {f32(c0)}, v{vS + 3}',
            f'v_mul_f32 v{t}, v{vS + 3}, v{vS + 3}',
            f'v_mul_f32 v{t}, {f32(0.044715)}, v{t}',
            f'v_mul_f32 v{C1}, v{t}, v{C0}',
        ]
        if o.get('perturb'):
            st.append(f'v_mul_f32 v{R}, {f32(1 / (1 + o["perturb"]))}, v{R}')

        def csm(tile, slot, first):
            b = vr(BP, 4) if tile & 1 else vr(BP + 2, 4)
            return f'v_mfma_f32_32x32x16_bf16 {acc(slot)}, {ar(CS + 4 * (tile >> 1), 4)}, {b}, {"0" if first else acc(slot)}'

        def pick(r0, r1):
            a(f's_set_gpr_idx_on s{sCB}, gpr_idx(SRC0)')
            a('s_nop 0')
            for r in range(r0, r1):
                a(f'v_mov_b32_e32 v{G + r}, v{AB + r}')
            a('s_set_gpr_idx_off')
        for j in range(2):
            for s in range(3):
                a(rd(RING1 + 12 * j + 4 * s, s, j))
        a(swaps(0))
        self.stamp('a0')
        p2 = [(3, 3, j) for j in range(40)] + [(4, 0, j) for j in range(40)] + [(5, 1, j) for j in range(40)]
        gq = list(gather)
        GJ, SJ = o.get('gather_j', 24), o.get('stat_j', 34)
        BARS = [int(x) for x in str(o.get('bars', '15x27')).split('x')]
        nwd1 = min(o.get('wd_p1', 6), 31 - o['wd_pre'])
        assert not ww
        NR = o.get('ring', 8)
        assert NR == 4 or o['wd_post'] >= 4

        def r2(i):
            return RING2 + 4 * (i & 3) if NR == 4 else 224 + 4 * ((i + 4) & 7)
        vAT = [vA2, vW5, vW5 + 1, self.vPS]
        misc = [f's_mov_b32 s{24 + k}, {ACT + 16384 * (k >> 1) + 4096 * (k & 1)}' for k in range(6)]
        misc += [f'v_mov_b32 v{BP + i}, 0' for i in (0, 1, 4, 5)] + [f'v_mov_b32 v{vS + i}, 0' for i in range(4)]
        wdone, wfree = 0, 0
        C1CAP = o.get('cap1', 5)
        for j in range(40):
            base = RING1 + 12 * (j & 1)
            self.stamp(f'p{j}')
            a.need(ar(base, 12))
            for s in range(3):
                c = '0' if j == 0 else acc(s)
                a(f'v_mfma_f32_32x32x16_bf16 {acc(s)}, {ar(base + 4 * s, 4)}, {vr(AB + 4 * j, 4)}, {c}')
                used = 1 if s < 2 else 2
                if j < 38:
                    a(rd(base + 4 * s, s, j + 2))
                else:
                    i = (j - 38) * 3 + s
                    if i < 4:
                        a(rd(r2(i), p2[i][1], p2[i][2]))
                if s == 0 and j < 39:
                    a(swaps(j + 1))
                    used += 3 if j < SJ else 2
                if j == 39:
                    if s == 0:
                        a('s_barrier')
                        wtail = wtail[-4:] + wtail[:-4]
                    else:
                        a(wtail.pop(0))
                elif s == 1 and wdone < wfree:
                    a(wtail.pop(0))
                    wdone += 1
                    used += 4
                if s == 2:
                    if al:
                        a(al.pop(0))
                        used += 3
                    elif nwd1 and not gq and j < o.get('wd1_hi', 39):
                        a(wd.pop(0))
                        nwd1 -= 1
                        used += 2
                if j >= GJ and gq and s == o.get('gather_s', 1) and used < 5:
                    a(gq.pop(0))
                    used += 2
                q = misc if j < 8 else pub if j < SJ else st
                while q and used < C1CAP + (o.get('cap1s', 1) if q is st else 0) and j != 8:
                    a(q.pop(0))
                    used += 1
            if j in BARS:
                a('s_barrier' if not o.get('nobar') else [])
                wfree = 2 * ((j + 1) // 4)
            if j == 8:
                a(f's_set_gpr_idx_on s{sCB}, gpr_idx(SRC0,SRC1)')
                a('s_nop 0')
                for r in range(10):
                    a(f'v_dot2c_f32_bf16_e32 v{vS + (r & 1)}, s{sOne}, v{AB + r}')
                    a(f'v_dot2c_f32_bf16_e32 v{vS + 2 + (r & 1)}, v{AB + r}, v{AB + r}')
                a('s_set_gpr_idx_off')
            if o.get('verbose') and j in (9, 10, 11, 12, 37, 38):
                print('step', j, 'pub', len(pub), 'st', len(st))
        assert not pub and not al and not st and not misc
        RES, vRes, vRes2 = 200, vAL, vCS
        res_addr = [
            f'v_and_b32 v{vRes}, 15, v{L}',
            f'v_lshl_add_u32 v{vRes2}, v{vRes}, 4, s{sRes}',
            f'v_lshrrev_b32 v{vRes}, 4, v{L}',
            f'v_mad_u32_u24 v{vRes2}, v{vRes}, s{sQS}, v{vRes2}',
            f'v_mad_u32_u24 v{vRes}, v{vRes}, s{sQS}, v{vRes2}',
        ]
        for tl in range(3):
            a(csm(tl, tl, False))
            a(wtail.pop(0) if wtail else [])
        self.stamp(9)

        def epi(tile, slot, packed=False):
            b = ACC + 16 * slot
            tm = [TM, TM + 1, TM + 2, TM + 3]
            ops = []
            for h in range(2):
                g, u = b + 8 * h, b + 8 * h + 4
                if packed:
                    P = lambda r, i: vr(r + 2 * i, 2)
                    cc, rr = vr(C0, 2), vr(R, 2)
                    ops += [(1, f'v_pk_mul_f32 {P(TM, i)}, {P(g, i)}, {P(g, i)}') for i in range(2)]
                    ops += [(1, f'v_pk_fma_f32 {P(TM, i)}, {P(TM, i)}, {cc}, {cc} op_sel:[0,1,0] op_sel_hi:[1,1,0]') for i in range(2)]
                    ops += [(1, f'v_pk_mul_f32 {P(u, i)}, {P(u, i)}, {P(g, i)}') for i in range(1)]
                    ops += [(1, f'v_pk_mul_f32 {P(TM, i)}, {P(TM, i)}, {P(g, i)}') for i in range(2)]
                    ops += [(2, f'v_exp_f32 v{tm[i]}, v{tm[i]}') for i in range(4)]
                    ops += [(1, f'v_pk_mul_f32 {P(u, i)}, {P(u, i)}, {P(g, i)}') for i in range(1, 2)]
                    ops += [(1, f'v_pk_fma_f32 {P(TM, i)}, {P(TM, i)}, {rr}, {rr} op_sel:[0,0,0] op_sel_hi:[1,0,0]') for i in range(2)]
                    ops += [(2, f'v_rcp_f32 v{tm[i]}, v{tm[i]}') for i in range(4)]
                    ops += [(1, f'v_pk_mul_f32 {P(u, i)}, {P(u, i)}, {P(TM, i)}') for i in range(2)]
                    ops += [(1, f'v_cvt_pk_bf16_f32 v{b + 2 * h + i}, v{u + 2 * i}, v{u + 2 * i + 1}') for i in range(2)]
                    continue
                ops += [(1, f'v_mul_f32 v{tm[i]}, v{g + i}, v{g + i}') for i in range(4)]
                ops += [(1, f'v_fma_f32 v{tm[i]}, v{tm[i]}, v{C1}, v{C0}') for i in range(4)]
                ops += [(1, f'v_mul_f32 v{tm[i]}, v{tm[i]}, v{g + i}') for i in range(4)]
                for i in range(4):
                    ops += [(2, f'v_exp_f32 v{tm[i]}, v{tm[i]}'), (1, f'v_mul_f32 v{u + i}, v{u + i}, v{g + i}')]
                ops += [(1, f'v_fma_f32 v{tm[i]}, v{tm[i]}, v{R}, v{R}') for i in range(4)]
                ops += [(2, f'v_rcp_f32 v{tm[i]}, v{tm[i]}') for i in range(4)]
                ops += [(1, f'v_mul_f32 v{u + i}, v{u + i}, v{tm[i]}') for i in range(4)]
                ops += [(1, f'v_cvt_pk_bf16_f32 v{b + 2 * h + i}, v{u + 2 * i}, v{u + 2 * i + 1}') for i in range(2)]
            so = sA if tile < 4 else sB
            txt = f'buffer_store_dwordx4 {vr(b, 4)}, v{vAS}, {WS}, s{so} offen offset:{(tile & 3) * 1024} sc1'
            ops.append((5, (lambda: a(txt, tag=f'act{tile}')) if not o.get('nost') else []))
            if o.get('noepi'):
                ops = [(c_, x if callable(x) else []) for c_, x in ops]
            return ops

        G2 = 72
        FR = [[8 + 4 * i for i in range(16)],
              [152 + 4 * i for i in range(4)] + [200 + 4 * i for i in range(8)] + [168 + 4 * i for i in range(4)],
              [8 + 4 * i for i in range(16)]]
        order = [[(c, lam) for lam in (3, 2, 1, 0) for c in range(4)]] * 3

        def act_ld(pi, n):
            c, lam = order[pi][n]
            if o.get('noact'):
                return []
            if o.get('atab', 1):
                k = kap[pi][c]
                return f'buffer_load_dwordx4 {vr(FR[pi][n], 4)}, v{vAT[lam]}, {WS}, s{24 + (k >> 1)} offen offset:{2048 * (k & 1)} sc1'
            return [f's_add_u32 s{sT1}, s{sL[lam]}, {ACT + 16384 * (kap[pi][c] >> 2) + 2048 * (kap[pi][c] & 3)}',
                    f'buffer_load_dwordx4 {vr(FR[pi][n], 4)}, v{vA2}, {WS}, s{sT1} offen sc1']

        def sig(pi, tag):
            def f():
                self.stamp(f'presig{pi}')
                a.need_tag(tag)
                if o.get('wgsig', 0) >> pi & 1:
                    l = a.label('nosig')
                    a('s_barrier')
                    a(f's_bitcmp1_b32 s{S_W}, 0')
                    a(f's_cbranch_scc1 {l}')
                    with a.untracked():
                        self.signal(f's{sF3s}', pi)
                    a(f'{l}:')
                else:
                    self.signal(f's{sF3s}', pi)
                self.stamp(f'sig{pi}')
                if pi < 2:
                    a(f's_add_u32 s{sF3s}, s{sF3s}, 2048')
            return f

        def poll_ld(pi):
            if o['sp'] >> pi & 1:
                return f's_load_dword s{sDv}, {sr(S_WS, 2)}, s{sF3p}'
            return f'buffer_load_dword v{vFl}, off, {WS}, s{sF3p} sc1'

        def poll_chk(pi):
            def f():
                self.stamp(f'prechk{pi}')
                self.check(S_WS, f's{sF3p}', 0 if o.get('noe3', 0) >> pi & 1 else 16 if o.get('wgsig', 0) >> pi & 1 else 32, vFl,
                           sDv if o['sp'] >> pi & 1 else None)
                self.stamp(f'chk{pi}')
                if pi < 2:
                    a(f's_add_u32 s{sF3p}, s{sF3p}, 2048')
            return f
        RES, vRes, vRes2 = 200, vAL, vCS
        res_addr = [
            f'v_and_b32 v{vRes}, 15, v{L}',
            f'v_lshl_add_u32 v{vRes2}, v{vRes}, 4, s{sRes}',
            f'v_lshrrev_b32 v{vRes}, 4, v{L}',
            f'v_mad_u32_u24 v{vRes2}, v{vRes}, s{sQS}, v{vRes2}',
            f'v_mad_u32_u24 v{vRes}, v{vRes}, s{sQS}, v{vRes2}',
        ]
        res_ld = []
        for nt in range(5):
            q = 8 * (nt >> 1) + (nt & 1)
            res_ld.append([f's_mov_b32 s{sT6}, {q * QS}',
                           f'buffer_load_dwordx2 {vr(RES + 2 * nt, 2)}, v{vRes2 if nt == 4 else vRes}, {WS}, s{sT6} offen sc1'])
        slot_of = {0: 0, 1: 1, 2: 2, 3: 3, 4: 0, 5: 1}
        eq = epi(0, 0) + epi(1, 1) + epi(2, 2)
        budget = 0.0
        RATE = o['epi_rate']
        extra = {i: [] for i in range(120)}
        first_w = wtail.pop(0) if wtail else []
        extra0 = {k: wtail[k] for k in range(len(wtail))}
        wlast, nxt = o.get('grow', 0), 4
        extra[o.get('bar4', 26)].append('s_barrier')
        if o.get('atab', 1):
            for lam in (1, 2, 3, 0):
                extra[72 + (lam or 4)].append(f'v_add_u32 v{vAT[lam]}, s{sL[lam]}, v{vA2}')
        for k, x in enumerate(res_addr):
            extra[66 + k].append(x)
        nwd = len(wd) - o.get('wd_post', 12)
        done = 60 - len(wd)
        lo, hi = o.get('wd_lo', 4), o.get('wd_hi', 78)
        hold = None
        for k in range(nwd):
            g = wd.pop(0)
            p = lo + (k * (hi - lo)) // nwd
            fr = done + k
            if fr == 39:
                extra[81].append([f's_mov_b32 s{sT6}, {wd_off(kap[1][3])}', g[-1].replace(f's{sWoff} offen', f's{sT6} offen')] if g else [])
                continue
            assert fr < 56 or p > 14
            extra[p].append(g)
        SA, SB = o.get('siga', 62), o.get('sigb', 104)
        extra[SA].append(sig(0, 'act1'))
        extra[o.get('lda', 86)].append(poll_ld(0))
        for k, x in enumerate(res_ld):
            extra[o.get('res_at', 86) + 2 * k].append(x)
        ca = o.get('chka', 105)
        extra[ca].append(poll_chk(0))
        na = o.get('a_in', 7)
        for n in range(na):
            extra[ca + 1 + (n * (119 - ca)) // na].append(act_ld(0, n))
        extra[SB].append(sig(1, 'act3'))
        extra[50].append('s_barrier')

        def cost(x):
            if callable(x):
                return 3
            if isinstance(x, (list, tuple)):
                return sum(cost(y) for y in x)
            return 5 if x.startswith('ds_write') else 2 if x.startswith('buffer') or x == 's_barrier' else 1
        CAP = o.get('cap', 6.6)
        for i, (tile, ls, j) in enumerate(p2):
            slot = slot_of[tile]
            self.stamp(f'q{i}')
            if j == 0:
                a(csm(tile, slot, True))
                if i == 0:
                    a(first_w)
                if i:
                    budget = 6
                    while eq and budget >= eq[0][0]:
                        cst, x = eq.pop(0)
                        budget -= cst
                        a(x)
            WP = 2 if NR == 4 or i < 12 else o.get('wper', 4)
            if i % WP == 0:
                a.need(*[ar(r2(i + z), 4) for z in range(WP)])
            a(f'v_mfma_f32_32x32x16_bf16 {acc(slot)}, {ar(r2(i), 4)}, {vr(AB + 4 * j, 4)}, {acc(slot)}')
            a(extra0.get(i, []))
            nrd = 0
            while nxt < len(p2) and nxt <= i + NR and nrd < (2 if i >= wlast else 1):
                if NR == 8 and i < wlast:
                    a(rd(r2(nxt + 4), p2[nxt][1], p2[nxt][2])) if False else None
                a(rd(r2(nxt), p2[nxt][1], p2[nxt][2]))
                nxt += 1
                nrd += 1
            a(extra[i])
            if i == 42:
                eq += epi(3, 3)
            if i == 82:
                eq += epi(4, 0)
                if o.get('st4_late'):
                    st4 = eq.pop()[1]
            if i >= 1:
                budget = min(budget, 1.0) + CAP - nrd - ((i + 1) % WP == 0) - cost(extra[i]) - cost(extra0.get(i, []))
                budget = max(budget, -1)
                while eq and budget >= min(eq[0][0], 2):
                    cst, x = eq.pop(0)
                    budget -= cst
                    a(x)
                    if callable(x) and o.get('verbose'):
                        print('store at gap', i)
                if i == 39:
                    assert len(eq) <= 2 * 69, len(eq)
                if i == SA - 1:
                    assert len(eq) <= 2 * 69, len(eq)
                if i == 79:
                    assert len(eq) <= 2 * 69, len(eq)
                if i == o.get('res_at', 86) - 1:
                    assert len(eq) <= 2 * 69, len(eq)
                if i == SB - 1:
                    assert len(eq) <= 69, len(eq)
            if j == 39:
                self.stamp(f't{tile}')
        for cst, x in eq:
            a(x)
        a(f's_mov_b32 s{sT0}, 0xffff0000')
        for i in range(10):
            a(f'v_lshlrev_b32 v{G2 + 2 * i}, 16, v{RES + i}')
            a(f'v_and_b32 v{G2 + 2 * i + 1}, s{sT0}, v{RES + i}')
        e5 = epi(5, 1, o.get('pk5', 1))
        LA = o.get('la2', 12)
        rest = [act_ld(0, n) for n in range(na, LA)]
        if o.get('ldb', -1) < 0:
            rest.append(poll_ld(1))
        if o.get('st4_late'):
            rest.append(st4)
        k = 0
        for i, (cst, x) in enumerate(e5):
            while k < len(rest) and (k + 1) * (len(e5) - 1) <= i * len(rest):
                a(rest[k])
                k += 1
            a(x)
        assert k == len(rest)
        self.stamp(10)

        vOut, vRR, vRW, vTW, vTR = 4, 7, 232, 238, 242
        RED = 2 * TILE
        setup = [
            f's_movk_i32 s{sT6}, {16 * 1280 - 160}',
            f's_movk_i32 s{sT5}, 6554',
            f's_movk_i32 s{sT4}, 176',
            f's_mul_i32 s{sT3}, s{S_W}, {16 * 176}',
            f'v_and_b32 v{t}, 15, v{L}',
            f'v_lshrrev_b32 v{t2}, 4, v{L}',
            f'v_mov_b32 v{vTW + 1}, s{sT3}',
            f'v_mad_u32_u24 v{vTW + 1}, v{t}, s{sT4}, v{vTW + 1}',
            f'v_lshl_add_u32 v{vTW}, v{t2}, 4, v{vTW + 1}',
            f'v_lshl_add_u32 v{vTW + 1}, v{t2}, 3, v{vTW + 1}',
        ]
        setup += [f'v_mul_u32_u24 v{t2}, s{sT5}, v{L}',
                  f'v_lshrrev_b32 v{t2}, 16, v{t2}',
                  f'v_lshl_add_u32 v{vOut}, v{L}, 4, s{sOutB}',
                  f'v_mad_u32_u24 v{vOut}, v{t2}, s{sT6}, v{vOut}',
                  f'v_add_u32 v{t}, v{L}, v{t2}',
                  f'v_lshl_add_u32 v{vTR}, v{t}, 4, s{sT3}',
                  f's_mov_b32 s{sT4}, {6 * 16 * 1280}',
                  f's_mov_b32 s{sT5}, {12 * 16 * 1280}']
        for lam in range(4):
            setup += [f's_xor_b32 s{sT0}, s{S_W}, {lam}', f's_mul_i32 s{sT0}, s{sT0}, {15 * 1024}',
                      f's_add_u32 s{sT0}, s{sT0}, {RED + (lam - 1) * 5120 if lam else RED}',
                      f'v_lshl_add_u32 v{vRW + lam - 1 if lam else vRR}, v{L}, 4, s{sT0}']

        def mf2(pi, n, nt):
            c, lam = order[pi][n]
            d = vr(G2 + 4 * (5 * lam + nt), 4)
            cin = '0' if (pi == 0 and c == 0 and lam != 0) else d
            return f'v_mfma_f32_16x16x32_bf16 {d}, {ar(4 * (5 * (4 * pi + c) + nt), 4)}, {vr(FR[pi][n], 4)}, {cin}'
        ex = [{i: [] for i in range(80)} for _ in range(3)]
        for k, x in enumerate(setup):
            ex[0][k].append(x)
        def put(pos, x):
            ex[pos // 80][pos % 80].append(x)
        if o.get('ldb', -1) >= 0:
            put(o['ldb'], poll_ld(1))
        cb_, cc_ = o.get('chkb', 5 * (16 - LA)), 80 + o.get('chkc', 44)
        put(cb_, [poll_chk(1), lambda: self.stamp('chkb')])
        put(o.get('sigc', 40), [sig(2, 'act5'), lambda: self.stamp('sigc')])
        put(80 + o.get('ldc', 28), poll_ld(2))
        put(cc_, [lambda: self.stamp('chkc0'), poll_chk(2), lambda: self.stamp(11)])
        pos = 0
        for g in range(LA, 48):
            pos = max(pos + (o.get('burst', 2) if g >= 16 else 0), o.get('g_gap', 5) * (g - LA) if g < 32 else 5 * (g - LA),
                      cb_ if g >= 16 else 0, cc_ if g >= 32 else 0)
            assert pos < 20 * (g // 4)
            put(pos, act_ld(g // 16, g % 16))
            if g < 32 and wd and 32 - g <= len(wd) + o.get('wdp_early', 0):
                put(pos + 2, wd.pop(0))
        assert not wd
        chain = o.get('chain', 1)
        for blk, lam in enumerate((3, 2, 1)):
            for nt in range(5):
                ex[2][20 * blk + 4 * nt + 12 if chain else 20 * (blk + 1) + 5 + 2 * nt].append(
                    f'ds_write_b128 v{vRW + lam - 1}, {vr(G2 + 4 * (5 * lam + nt), 4)} offset:{1024 * nt}')
        RD, RR = 152, 8
        red2 = o.get('red2', 1)

        def rd_part(s_, nt):
            return f'ds_read_b128 {vr(RD + 12 * nt + 4 * s_, 4)}, v{vRR} offset:{5120 * s_ + 1024 * nt}'
        if red2:
            assert chain
            b1, b2 = o.get('rb1', 52), o.get('rb2', 72)
            ex[2][b1] += [f's_waitcnt lgkmcnt({(b1 - 48) // 4})', 's_barrier']
            k = 0
            for nt in range(5):
                for s_ in (2, 1):
                    ex[2][b1 + 1 + k].append(rd_part(s_, nt))
                    k += 1
            adds = [f'v_add_f32 v{RD + 12 * nt + 4 + r}, v{RD + 12 * nt + 4 + r}, v{RD + 12 * nt + 8 + r}'
                    for nt in range(5) for r in range(4)]
            for k, x in enumerate(adds):
                ex[2][min(79, b1 + 12 + k // 2)].append(x)
            ex[2][b2] += ['s_waitcnt lgkmcnt(0)', 's_barrier']
            for nt in range(5):
                ex[2][min(79, b2 + nt)].append(rd_part(0, nt))
        for pi in range(3):
            for i in range(80):
                if chain:
                    a(mf2(pi, 4 * (i // 20) + (i & 3), i % 20 // 4))
                else:
                    a(mf2(pi, i // 5, i % 5))
                self.stamp(f'm{80 * pi + i}')
                a(ex[pi][i])
            self.stamp('end' + 'ABC'[pi])
        if not red2:
            a('s_waitcnt lgkmcnt(0)')
            a('s_barrier')
            for nt in range(5):
                for s_ in range(3):
                    a(rd_part(s_, nt))
        self.stamp('redbar')
        sc = ' sc1' if o['out_sc1'] else ''
        if red2:
            for nt in range(5):
                for p in range(2):
                    a(f'v_pk_add_f32 {vr(G2 + 4 * nt + 2 * p, 2)}, {vr(G2 + 4 * nt + 2 * p, 2)}, {vr(RD + 12 * nt + 4 + 2 * p, 2)}')
        for nt in range(5):
            b = RD + 12 * nt
            c = G2 + 4 * nt
            for p in range(2):
                a(f'v_pk_add_f32 {vr(c + 2 * p, 2)}, {vr(c + 2 * p, 2)}, {vr(b + 2 * p, 2)}')
                if not red2:
                    a(f'v_pk_add_f32 {vr(b + 4 + 2 * p, 2)}, {vr(b + 4 + 2 * p, 2)}, {vr(b + 8 + 2 * p, 2)}')
            for p in range(2):
                if not red2:
                    a(f'v_pk_add_f32 {vr(c + 2 * p, 2)}, {vr(c + 2 * p, 2)}, {vr(b + 4 + 2 * p, 2)}')
            for p in range(2):
                a(f'v_cvt_pk_bf16_f32 v{RR + 2 * nt + p}, v{c + 2 * p}, v{c + 2 * p + 1}')
            if nt & 1:
                a(f'ds_write_b128 v{vTW}, {vr(RR + 2 * nt - 2, 4)} offset:{64 * (nt >> 1)}')
            if nt == 4:
                a(f'ds_write_b64 v{vTW + 1}, {vr(RR + 8, 2)} offset:128')
        for k in range(3):
            a(f'ds_read_b128 {vr(RR + 12 + 4 * k, 4)}, v{vTR} offset:{6 * 176 * k}')
        a('s_mov_b32 exec_hi, 0xfffffff')
        for k in range(3):
            if k == 2:
                a('s_mov_b32 exec_hi, 0xff')
            a(f'buffer_store_dwordx4 {vr(RR + 12 + 4 * k, 4)}, v{vOut}, {sr(S_OUT, 4)}, {("0", f"s{sT4}", f"s{sT5}")[k]} offen{sc}')
        a('s_mov_b32 exec_hi, -1')
        lz = a.label('nz')
        a('s_cmp_lg_u32 s2, 0')
        a(f's_cbranch_scc1 {lz}')
        with a.untracked():
            a(f'buffer_store_dword v{BP}, off, {sr(S_DBG, 4)}, 0 sc1')
            a(f'buffer_store_dword v{BP}, off, {sr(S_DBG, 4)}, 0 offset:128 sc1')
        a(f'{lz}:')
        if self.diag:
            self.stamp('outst')
            a('s_waitcnt vmcnt(0)')
            self.stamp(12)
            a('s_waitcnt lgkmcnt(0)')
            with self.wave0():
                a(f's_lshl_b32 s{sT0}, s2, 7')
                a(f's_add_u32 s{sT0}, s{sT0}, {STAMP}')
                a(f's_sub_u32 s{S_WS}, s{S_WS}, s0')
                a(f's_subb_u32 s{S_WS + 1}, s{S_WS + 1}, 0')
                a('v_mov_b32 v0, s0')
                a(f'buffer_store_dword v0, off, {WS}, s{sT0} offset:60')
                for i in range(NSTAMP):
                    a(f'v_mov_b32 v0, s{S_STAMP + 2 * i}')
                    a(f'buffer_store_dword v0, off, {WS}, s{sT0} offset:{4 * i}')
        if self.opt.get('fixt'):
            with a.untracked():
                fs = S_STAMP + 2 * self.opt.get("fixs", 0)
                if self.opt.get('fixmax'):
                    fm = self.opt['fixmax']
                    lo, hi = {'all': (0, 256), 'conv': (0, 160), 'side': (160, 256)}[fm] if fm[0] != 'w' else (int(fm[1:]), int(fm[1:]) + 1)
                    a(f's_cmp_lg_u32 s{S_W}, 0')
                    a('s_cbranch_scc1 .Lend')
                    a(f's_sub_u32 s{sT0}, s2, {lo}')
                    a(f's_cmp_lt_u32 s{sT0}, {hi - lo}')
                    a(f's_cselect_b32 s{sT0}, s{fs}, 0')
                    a(f'v_mov_b32 v1, s{sT0}')
                    a('s_mov_b64 exec, 1')
                    a(f'buffer_atomic_umax v1, off, {sr(S_DBG, 4)}, 0 offset:64 sc1')
                    a('s_cmp_lg_u32 s2, 0')
                    a('s_cbranch_scc1 .Lend')
                    a('.Lfix0:')
                    a(f's_memrealtime {sr(sT0, 2)}')
                    a('s_waitcnt lgkmcnt(0)')
                    a(f's_sub_u32 s{sT0}, s{sT0}, s{S_STAMP}')
                    a(f's_cmp_lt_u32 s{sT0}, 3500')
                    a('s_cbranch_scc1 .Lfix0')
                    a(f'buffer_load_dword v1, off, {sr(S_DBG, 4)}, 0 offset:64 sc1')
                    a('s_waitcnt vmcnt(0)')
                    a(f'v_readfirstlane_b32 s{sT3}, v1')
                    a('s_nop 4')
                    fs = sT3
                a(f's_cmp_lg_u32 s2, {self.opt.get("fixwg", 0)}')
                a('s_cbranch_scc1 .Lend')
                a(f's_cmp_lg_u32 s{S_W}, 0')
                a('s_cbranch_scc1 .Lend')
                a(f's_sub_u32 s{sT2}, s{fs}, s{S_STAMP + 2 * self.opt.get("fixb", 0)}')
                a(f's_add_u32 s{sT2}, s{sT2}, {self.opt.get("fixbias", 0)}')
                a(f's_mul_i32 s{sT2}, s{sT2}, 10')
                a(f's_min_u32 s{sT2}, s{sT2}, 100000')
                a(f's_add_u32 s{sT2}, s{sT2}, {self.opt["fixt"]}')
                a('.Lfix:')
                a(f's_memrealtime {sr(sT0, 2)}')
                a('s_waitcnt lgkmcnt(0)')
                a(f's_sub_u32 s{sT0}, s{sT0}, s{S_STAMP}')
                a(f's_cmp_lt_u32 s{sT0}, s{sT2}')
                a('s_cbranch_scc1 .Lfix')
        a('.Lend:')
        a('s_endpgm')

    def build(self):
        a = self.a
        if self.diag:
            for i in range(2 * NSTAMP):
                a(f's_mov_b32 s{S_STAMP + i}, 0')
        self.prologue()
        self.conv()
        self.gemms()
        self.side()
        for c in self.cold:
            a.fresh()
            a('s_nop 7')
            c()
        a('.Lcode_end:')
        a('s_endpgm')
        pads = (self.opt.get('base', 0x300), NPAD, sr(sRet, 2), '.Lend', self.opt.get('pstride', 4096)) if self.opt['pads'] else None
        hoist = [('.Lhead_a0:', '.Lhead_a1:'), ('.Lhead_b0:', '.Lhead_b1:')] if self.opt.get('head', 0) else []
        front, body = a.finish(verbose=True, align=self.opt.get('align', 1), pads=pads, hoist=hoist)
        body += '.p2align 12\n    s_endpgm\n'
        ref = open('cdna_kernels/' + NAME + '.s.ref').read().split('\n')
        head = [l for l in ref if l.startswith(';') and '@launch' not in l and 'Override' not in l and 'grid=ceil' not in l]
        txt = '\n'.join(head) + '\n'
        txt += '; One persistent launch: kv/transposition -> Toeplitz-MFMA long conv -> gate/up GEMM + GEGLU -> down GEMM.\n'
        txt += '; @launch grid=(256,1,1) block=(256,1,1) lds=163840\n'
        txt += f'''.amdgcn_target "amdgcn-amd-amdhsa--gfx950"
.text
{front}.globl {NAME}_kernel
.p2align 8
.type {NAME}_kernel,@function
{NAME}_kernel:
{body}.section .rodata,"a"
.p2align 6
.amdhsa_kernel {NAME}_kernel
  .amdhsa_next_free_vgpr 512
  .amdhsa_next_free_sgpr 102
  .amdhsa_accum_offset 256
  .amdhsa_group_segment_fixed_size 0
  .amdhsa_kernarg_size 104
  .amdhsa_user_sgpr_count 2
  .amdhsa_user_sgpr_kernarg_segment_ptr 1
  .amdhsa_system_sgpr_workgroup_id_x 1
  .amdhsa_float_denorm_mode_32 3
.end_amdhsa_kernel
'''
        return txt


if __name__ == '__main__':
    out = sys.argv[1]
    diag = 'diag' in sys.argv[2:]
    opt = {}
    for x in sys.argv[2:]:
        if '=' in x:
            k, v = x.split('=')
            try:
                v = int(v)
            except ValueError:
                try:
                    v = float(v)
                except ValueError:
                    pass
            opt[k] = v
    open(out, 'w').write(Gen(diag, opt).build())
```

```python
import ctypes, subprocess, sys
import numpy as np
sys.path.insert(0, 'cdna_kernels'); sys.path.insert(0, 'gen')
from asmlib import Asm, vr, ar, sr

SRC_BYTES = 64 << 20

def wrap(body, grid, lds):
    return f'''; @launch grid=({grid},1,1) block=(256,1,1) lds={lds}
.amdgcn_target "amdgcn-amd-amdhsa--gfx950"
.text
.globl mb_kernel
.p2align 8
.type mb_kernel,@function
mb_kernel:
{body}.section .rodata,"a"
.p2align 6
.amdhsa_kernel mb_kernel
  .amdhsa_next_free_vgpr 512
  .amdhsa_next_free_sgpr 102
  .amdhsa_accum_offset 256
  .amdhsa_group_segment_fixed_size 0
  .amdhsa_kernarg_size 16
  .amdhsa_user_sgpr_count 2
  .amdhsa_user_sgpr_kernarg_segment_ptr 1
  .amdhsa_system_sgpr_workgroup_id_x 1
.end_amdhsa_kernel
'''

def head(a):
    a('s_load_dwordx2 s[4:5], s[0:1], 0')
    a('s_load_dwordx2 s[8:9], s[0:1], 8')
    a(f's_mov_b32 s6, {SRC_BYTES}')
    a('s_mov_b32 s7, 0x20000')
    a('s_mov_b32 s10, 65536')
    a('s_mov_b32 s11, 0x20000')
    a('v_lshrrev_b32 v1, 6, v0')
    a('v_and_b32 v0, 63, v0')
    a('v_readfirstlane_b32 s3, v1')
    a('s_waitcnt lgkmcnt(0)')

def tail(a, n):
    a('s_waitcnt vmcnt(0) lgkmcnt(0)')
    a('s_cmp_lg_u32 s3, 0')
    a('s_cbranch_scc1 .Lend')
    a('s_lshl_b32 s20, s2, 6')
    a('s_mov_b64 exec, 1')
    for i in range(n):
        a(f'v_mov_b32 v1, s{40 + 2 * i}')
        a(f'buffer_store_dword v1, off, s[8:11], s20 offset:{4 * i}')
    a('.Lend:')
    a('s_endpgm')

def bw(fl, lds, n, seg, segstride, step, wstride, bstride, nshare, rot=0, agpr=1, mfma=0, st_every=0, st_fl='sc1', st_wave=-1):
    a = Asm()
    head(a)
    lps = seg // 16
    sh = lps.bit_length() - 1
    a(f'v_and_b32 v2, {lps - 1}, v0')
    a('v_lshlrev_b32 v2, 4, v2')
    a(f'v_lshrrev_b32 v3, {sh}, v0')
    a(f's_mov_b32 s20, {segstride}')
    a('v_mad_u32_u24 v2, v3, s20, v2')
    a(f's_mul_i32 s20, s3, {wstride}')
    a('s_lshr_b32 s21, s2, 3')
    a(f's_lshr_b32 s22, s21, {nshare.bit_length() - 1}')
    a(f's_mul_i32 s22, s22, {bstride}')
    a('s_add_u32 s20, s20, s22')
    a('s_and_b32 s22, s2, 7')
    a('s_lshl_b32 s22, s22, 22')
    a('s_add_u32 s20, s20, s22')
    a('v_add_u32 v2, s20, v2')
    a(f's_and_b32 s23, s21, {nshare - 1}')
    a(f's_mul_i32 s23, s23, {rot * step}')
    a('s_lshl_b32 s25, s3, 14')
    a('s_lshl2_add_u32 s27, s2, s3')
    a('s_lshl_b32 s27, s27, 14')
    a('s_add_u32 s27, s27, 0x2000000')
    a('v_lshlrev_b32 v3, 4, v0')
    for i in range(8):
        a(f'v_mov_b32 v{8 + i}, 0')
    for rep in range(2):
        a('s_barrier')
        a(f's_memtime s[{40 + 4 * rep}:{41 + 4 * rep}]')
        a('s_mov_b32 s24, s23')
        for i in range(n):
            if lds:
                a(f's_add_u32 m0, s25, {(i & 15) * 1024}')
                a(f'buffer_load_dwordx4 v2, s[4:7], s24 offen {fl} lds')
            else:
                a(f'buffer_load_dwordx4 {ar(4 * i, 4) if agpr else vr(16 + 4 * i, 4)}, v2, s[4:7], s24 offen {fl}')
            a(f's_add_u32 s24, s24, {step}')
            if rot:
                a(f's_sub_u32 s26, s24, {n * step}')
                a('s_cselect_b32 s24, s24, s26')
            if st_every and i % st_every == st_every // 2:
                l = a.label('ns')
                if st_wave >= 0:
                    a(f's_cmp_lg_u32 s3, {st_wave}')
                    a(f's_cbranch_scc1 {l}')
                with a.untracked():
                    a(f'buffer_store_dwordx4 v[8:11], v3, s[4:7], s27 offen {st_fl}')
                a(f'{l}:')
                a('s_add_u32 s27, s27, 1024')
            for _ in range(mfma):
                a('v_mfma_f32_16x16x32_bf16 v[4:7], v[8:11], v[12:15], v[4:7]')
        a('s_waitcnt vmcnt(0)')
        if st_wave < 0:
            a('s_barrier')
        a(f's_memtime s[{42 + 4 * rep}:{43 + 4 * rep}]')
        a('s_waitcnt lgkmcnt(0)')
    tail(a, 4)
    return a.finish()

def main():
    import cdna_launch as cl
    from cdna_launch import AsmKernel, DeviceBuffer, with_harness_metadata, pack_ptr_kernargs
    hip = cl._hip
    src = DeviceBuffer(SRC_BYTES); st = DeviceBuffer(65536)
    ka = pack_ptr_kernargs([src.ptr, st.ptr])
    def run(name, body, grid, nbytes):
        open('mb.s', 'w').write(with_harness_metadata(wrap(body, grid, 65536), 'mb_kernel', 2))
        r = subprocess.run(['clang', '-x', 'assembler', '-target', 'amdgcn-amd-amdhsa', '-mcpu=gfx950', 'mb.s', '-o', 'mb.co'], capture_output=True, text=True)
        assert r.returncode == 0, r.stderr
        k = AsmKernel('mb.co', 'mb_kernel')
        res = []
        for it in range(4):
            cl._check(hip.hipMemset(src._ptr, it, SRC_BYTES)); cl._check(hip.hipDeviceSynchronize())
            k.launch((grid, 1, 1), (256, 1, 1), ka, 65536); cl._check(hip.hipDeviceSynchronize())
            s = st.to_numpy(np.uint32, (1024, 16))[:grid].astype(np.int64)
            res.append((np.median(s[:, 1] - s[:, 0]), np.median(s[:, 3] - s[:, 2])))
        k.unload()
        f, w = np.median([x[0] for x in res[1:]]), np.median([x[1] for x in res[1:]])
        print(f'{name:52s} grid{grid}: first {f:6.0f} cyc ({nbytes / f:5.1f} B/clk)  warm {w:6.0f} cyc ({nbytes / w:5.1f} B/clk)', flush=True)
    for G in (256,):
        for nm, kw in CASES:
            run(nm, bw(**kw), G, kw['n'] * 4096)

c1 = dict(n=56, seg=1024, segstride=0, step=1024, wstride=57344, bstride=229376, nshare=4)
cA = dict(n=40, seg=256, segstride=16384, step=65536, wstride=256, bstride=1024, nshare=8)
CASES = [
    ('W 8x128 stride3072', dict(fl='', lds=0, n=40, seg=128, segstride=3072, step=98304, wstride=24576, bstride=256, nshare=8)),
    ('W 8x128 stride24576 step3072', dict(fl='', lds=0, n=8, seg=128, segstride=24576, step=3072, wstride=196608, bstride=256, nshare=8)),
    ('W 8x128 stride3072 n8', dict(fl='', lds=0, n=8, seg=128, segstride=3072, step=98304, wstride=24576, bstride=256, nshare=8)),
    ('W 8x128 stride24576 step27648', dict(fl='', lds=0, n=40, seg=128, segstride=24576, step=3072+196608//8*3, wstride=786432, bstride=256, nshare=8)),
]
if __name__ == '__main__':
    if len(sys.argv) > 1:
        for nm, kw in CASES:
            open('mb_chk.s', 'w').write(wrap(bw(**kw), 256, 65536))
            r = subprocess.run(['clang', '-x', 'assembler', '-target', 'amdgcn-amd-amdhsa', '-mcpu=gfx950', '-c', 'mb_chk.s', '-o', 'mb.o'], capture_output=True, text=True)
            assert r.returncode == 0, r.stderr
        print('ok')
    else:
        main()
```

```python
import sys, subprocess
import numpy as np
from mbasm import *

def pat(step, n, reps=3):
    a = Asm()
    head(a)
    a('v_lshlrev_b32 v2, 4, v0')
    a('s_lshl2_add_u32 s20, s2, s3')
    a('s_and_b32 s20, s20, 63')
    a('s_lshl_b32 s20, s20, 16')
    for i in range(40):
        a(f'buffer_load_dwordx4 {vr(8 + 4 * i, 4)}, v2, s[4:7], s20 offen')
        a('s_add_u32 s20, s20, 1024')
    for i in range(20):
        a(f'buffer_load_dwordx4 {ar(4 * i, 4)}, v2, s[4:7], s20 offen')
        a('s_add_u32 s20, s20, 1024')
    a('s_waitcnt vmcnt(0)')
    a('s_lshl_b32 s25, s3, 14')
    a('v_add_u32 v3, s25, v2')
    for i in range(16):
        a(f'ds_write_b128 v3, {vr(8 + 4 * i, 4)} offset:{1024 * i}')
    for i in range(168, 256):
        a(f'v_mov_b32 v{i}, 0')
        a(f'v_accvgpr_write_b32 a{i}, 0')
    a('s_waitcnt lgkmcnt(0)')
    a(f's_mov_b32 s30, {reps}')
    a('.Lrep:')
    a('s_barrier')
    a('s_memtime s[40:41]')
    a('s_memrealtime s[44:45]')
    with a.untracked():
        for j in range(n):
            step(a, j)
    a('s_waitcnt lgkmcnt(0)')
    a('s_memtime s[42:43]')
    a('s_memrealtime s[46:47]')
    a('s_waitcnt lgkmcnt(0)')
    a('s_sub_u32 s30, s30, 1')
    a('s_cmp_lg_u32 s30, 0')
    a('s_cbranch_scc1 .Lrep')
    tail(a, 4)
    return a.finish()

def M32(d, x, y): return f'v_mfma_f32_32x32x16_bf16 {d}, {x}, {y}, {d}'
def M16(d, x, y): return f'v_mfma_f32_16x16x32_bf16 {d}, {x}, {y}, {d}'
V = lambda i: vr(8 + 4 * (i % 40), 4)
A = lambda i: ar(4 * (i % 20), 4)
CV = lambda s: vr(168 + 16 * s, 16)
CA = lambda s: ar(168 + 16 * s, 16)
cv = lambda s: vr(168 + 4 * s, 4)
ca = lambda s: ar(168 + 4 * s, 4)
RD = lambda i: f'ds_read_b128 {A(i)}, v2 offset:{1024 * (i % 60)}'
E = [f'v_mul_f32 v2{40 + i}, v{20 + i}, v{20 + i}' for i in range(4)] + [f'v_fma_f32 v2{40 + i}, v2{40 + i}, v30, v31' for i in range(4)] + \
    [f'v_mul_f32 v2{40 + i}, v2{40 + i}, v{20 + i}' for i in range(4)] + [x for i in range(4) for x in (f'v_exp_f32 v2{40 + i}, v2{40 + i}', None, f'v_mul_f32 v2{44 + i}, v{24 + i}, v{20 + i}')] + \
    [f'v_fma_f32 v2{40 + i}, v2{40 + i}, v32, v32' for i in range(4)] + [x for i in range(4) for x in (f'v_rcp_f32 v2{40 + i}, v2{40 + i}', None)] + \
    [f'v_mul_f32 v2{44 + i}, v2{44 + i}, v2{40 + i}' for i in range(4)] + [f'v_cvt_pk_bf16_f32 v2{48 + i}, v2{44 + 2 * i}, v2{45 + 2 * i}' for i in range(2)]
def ep(k0, k1):
    return [E[k % len(E)] for k in range(k0, k1) if E[k % len(E)]]
W = lambda n: f's_waitcnt lgkmcnt({n})'
def p2_32(a, j, r):
    a([W(4) if j % 4 == 0 else [], M32(CV(0), A(j % 8), V(j)), f'ds_read_b128 {A(j % 8)}, v2 offset:{1024 * (j % 60)}', ep(int(j * r), int((j + 1) * r))])
def p2_16(a, j, r, chain):
    k0, k1, k2 = int(j * r), int(j * r + (r - 1) / 2), int((j + 1) * r)
    if chain:
        i = j & ~1
        x = [M16(cv((j & 1) + 2 * (j >> 1 & 1)), A(i % 8), V(2 * i + (j & 1))), M16(cv((j & 1) + 2 * (j >> 1 & 1)), A((i + 1) % 8), V(2 * i + 2 + (j & 1)))]
        rd = f'ds_read_b128 {A((j + 6) % 8)}, v2 offset:{1024 * (j % 60)}'
    else:
        x = [M16(cv(2 * (j & 1)), A(j % 8), V(j & ~1)), M16(cv(2 * (j & 1) + 1), A(j % 8), V(j | 1))]
        rd = f'ds_read_b128 {A((j + 7) % 8)}, v2 offset:{1024 * (j % 60)}'
    a([W(4) if j % 4 == 0 else [], x[0], rd, ep(k0, k1), x[1], ep(k1, k2)])
CASES4 = {
 'p1 32': (lambda a, j: p2_32(a, j, 1.5), 120),
 'p1 16': (lambda a, j: p2_16(a, j, 1.5, 0), 120),
 'p1 16 chain2': (lambda a, j: p2_16(a, j, 1.5, 1), 120),
 'p2 32 r3.5': (lambda a, j: p2_32(a, j, 3.5), 120),
 'p2 16 r3.5': (lambda a, j: p2_16(a, j, 3.5, 0), 120),
 'p2 16 chain2 r3.5': (lambda a, j: p2_16(a, j, 3.5, 1), 120),
 'p2 32 r4.3': (lambda a, j: p2_32(a, j, 4.3), 120),
 'p2 16 r4.3': (lambda a, j: p2_16(a, j, 4.3, 0), 120),
 'p2 16 chain2 r4.3': (lambda a, j: p2_16(a, j, 4.3, 1), 120),
}

def main4():
    import cdna_launch as cl
    from cdna_launch import AsmKernel, DeviceBuffer, with_harness_metadata, pack_ptr_kernargs
    import time
    hip = cl._hip
    x = (np.random.randn(SRC_BYTES // 16).astype(np.float32) * 0.1)
    u = ((x.view(np.uint32) + 0x8000) >> 16).astype(np.uint16)
    src = DeviceBuffer.from_numpy(np.tile(u, 8)); st = DeviceBuffer(65536)
    ka = pack_ptr_kernargs([src.ptr, st.ptr])
    ks = []
    for i, (nm, (f, n)) in enumerate(CASES4.items()):
        open('mb.s', 'w').write(with_harness_metadata(wrap(pat(f, n), 256, 65536), 'mb_kernel', 2))
        r = subprocess.run(['clang', '-x', 'assembler', '-target', 'amdgcn-amd-amdhsa', '-mcpu=gfx950', 'mb.s', '-o', f'mb{i}.co'], capture_output=True, text=True)
        assert r.returncode == 0, r.stderr
        ks.append((nm, AsmKernel(f'mb{i}.co', 'mb_kernel'), []))
    for it in range(9):
        for nm, k, res in ks:
            time.sleep(0.002)
            k.launch((256, 1, 1), (256, 1, 1), ka, 65536); cl._check(hip.hipDeviceSynchronize())
            s = st.to_numpy(np.uint32, (1024, 16))[:256].astype(np.int64)
            res.append((np.mean(s[:, 1] - s[:, 0]), np.mean(s[:, 3] - s[:, 2]) / 100))
    for nm, k, res in ks:
        c, t = np.median([x[0] for x in res]), np.median([x[1] for x in res])
        print(f'{nm:40s} {c:7.0f} cyc {t:6.3f} us  tax {t - c / 2400:6.3f}', flush=True)

if __name__ == '__main__':
    if len(sys.argv) > 1:
        for nm, (f, n) in CASES4.items():
            pat(f, n)
        print('ok')
    else:
        main4()
```
